```python
import torch

def _softmax(x, axis=-1):
    return torch.softmax(x, dim=axis)
def _gelu(x):
    return torch.nn.functional.gelu(x, approximate="tanh")
def _silu(x):
    return torch.nn.functional.silu(x)
def _sigmoid(x):
    return torch.sigmoid(x)
def _layernorm(x, axis=-1, eps=1e-5):
    m = x.mean(dim=axis, keepdim=True)
    v = x.var(dim=axis, keepdim=True, unbiased=False)
    return (x - m) / torch.sqrt(v + eps)
def _scatter_add(tgt, idx, src, axis=0):
    return tgt.clone().index_add_(axis, idx, src)
def _segment_sum(src, seg, n):
    out = torch.zeros((n,) + src.shape[1:], dtype=src.dtype)
    return out.index_add_(0, seg, src)
def _pad(x, pw):
    flat = tuple(v for pair in reversed(pw) for v in pair)
    return torch.nn.functional.pad(x, flat)

kernel_name = 'gated_mix__linear_kernel_hedgehog__dense_activation_gelu__prompt'

def setup_inputs():

    _w = (lambda a: (lambda t: t.to(torch.bfloat16) if t.is_floating_point() else t)(torch.as_tensor(a)))
    def _A_setup():
        B, S, D, H = 1, 2048, 448, 16
        Dh = D // H
        return {
            "x": _w((lambda *s: torch.randn(*s, dtype=torch.bfloat16) * 0.05)(B, S, D)),
            "wqkv": _w((lambda *s: torch.randn(*s, dtype=torch.bfloat16) * 0.8)(D, 3 * D)),
            "w_phi": _w((lambda *s: torch.randn(*s, dtype=torch.bfloat16) * 0.8)(H, Dh, Dh) * (Dh ** -0.5)),
            "wo": _w((lambda *s: torch.randn(*s, dtype=torch.bfloat16) * 0.05)(D, D)),
        }
    _A_in = _A_setup()

    def _B_setup():
        B, S, D, F = 1, 2048, 448, 1792
        return {
            "x": _w((lambda *s: torch.randn(*s, dtype=torch.bfloat16) * 0.05)(B, S, D)),
            "w1": _w((lambda *s: torch.randn(*s, dtype=torch.bfloat16) * 3.2)(D, F) * (D ** -0.5)),
            "b1": _w((lambda *s: torch.randn(*s, dtype=torch.bfloat16) * 3.2)(F) * 0.01),
            "w2": _w((lambda *s: torch.randn(*s, dtype=torch.bfloat16) * 0.2)(F, D) * (F ** -0.5)),
            "b2": _w((lambda *s: torch.randn(*s, dtype=torch.bfloat16) * 0.4)(D) * 0.01),
        }
    _B_in = _B_setup()

    return {
        "A_x": _A_in["x"],
        "A_wqkv": _A_in["wqkv"],
        "A_w_phi": _A_in["w_phi"],
        "A_wo": _A_in["wo"],
        "B_x": _B_in["x"],
        "B_w1": _B_in["w1"],
        "B_b1": _B_in["b1"],
        "B_w2": _B_in["w2"],
        "B_b2": _B_in["b2"],
        "gate_w": _w((lambda *s: torch.randn(*s, dtype=torch.bfloat16) * 0.05)(448) * 16.0),
    }

def reference(A_x, A_wqkv, A_w_phi, A_wo, B_x, B_w1, B_b1, B_w2, B_b2, gate_w):
    def _A_ref(x, wqkv, w_phi, wo):
        B, S, D = x.shape
        H = 16; Dh = D // H
        qkv = (lambda x, *d: x.permute(*d))((x @ wqkv).reshape(B, S, 3, H, Dh), 2, 0, 3, 1, 4)
        q, k, v = qkv[0], qkv[1], qkv[2]
        pq = torch.einsum("bhsd,hdf->bhsf", q, w_phi)
        pk = torch.einsum("bhsd,hdf->bhsf", k, w_phi)
        phi_q = torch.concatenate([_softmax(pq, axis=-1), _softmax(-pq, axis=-1)], axis=-1)
        phi_k = torch.concatenate([_softmax(pk, axis=-1), _softmax(-pk, axis=-1)], axis=-1)
        kv = torch.einsum("bhsf,bhsd->bhfd", phi_k, v)
        z  = torch.einsum("bhsf->bhf", phi_k)
        num = torch.einsum("bhqf,bhfd->bhqd", phi_q, kv)
        den = torch.einsum("bhqf,bhf->bhq", phi_q, z)[..., None] + 1e-6
        o = num / den
        return (lambda x, *d: x.permute(*d))(o, 0, 2, 1, 3).reshape(B, S, D) @ wo

    def _B_ref(x, w1, b1, w2, b2):
        h = torch.einsum("bsd,df->bsf", x, w1) + b1
        h = _gelu(h)
        return torch.einsum("bsf,fd->bsd", h, w2) + b2

    x = A_x
    g = _sigmoid((x * gate_w).sum(-1, keepdims=True))
    a = _A_ref(x, A_wqkv, A_w_phi, A_wo)
    b = _B_ref(x, B_w1, B_b1, B_w2, B_b2)
    return g * a + (1 - g) * b
```

```python
import re

def _regs(tok):
    tok = tok.strip()
    neg = tok.startswith('-')
    if neg: tok = tok[1:]
    if tok.startswith('abs(') and tok.endswith(')'): tok = tok[4:-1]
    if tok.startswith('|') and tok.endswith('|'): tok = tok[1:-1]
    m = re.fullmatch(r'([vsa])(\d+)', tok)
    if m: return [m.group(1) + m.group(2)]
    m = re.fullmatch(r'([vsa])\[(\d+):(\d+)\]', tok)
    if m: return [m.group(1) + str(i) for i in range(int(m.group(2)), int(m.group(3)) + 1)]
    if tok in ('vcc', 'vcc_lo', 'vcc_hi'): return ['vcc']
    if tok in ('exec', 'exec_lo', 'exec_hi'): return ['exec']
    if tok == 'm0': return ['m0']
    return []

TRANS = ('v_exp_f32', 'v_log_f32', 'v_rcp_f32', 'v_rsq_f32', 'v_sqrt_f32', 'v_sin_f32', 'v_cos_f32', 'v_rcp_iflag_f32')

class Ins:
    def __init__(self, text):
        self.text = text
        t = text.split(';')[0].strip()
        self.label = t.endswith(':')
        self.directive = t.startswith('.')
        self.op = ''; self.w = []; self.r = []; self.kind = 'other'
        self.srcC = []; self.srcAB = []; self.passes = 0; self.storedata = []; self.ldsdma = False
        if self.label or self.directive or not t:
            self.kind = 'label' if self.label else 'none'; return
        parts = t.split(None, 1)
        op = parts[0]; self.op = op
        rest = parts[1] if len(parts) > 1 else ''
        ops = [o.strip() for o in re.split(r',(?![^\[]*\])', rest)] if rest else []
        mods = ''
        if ops:
            sp = ops[-1].split(None, 1)
            ops[-1] = sp[0]; mods = sp[1] if len(sp) > 1 else ''
        self.mods = mods
        base = re.sub(r'_(e32|e64|dpp|sdwa)$', '', op)
        self.base = base
        R = lambda xs: [r for x in xs for r in _regs(x)]
        if op.startswith('v_mfma'):
            self.kind = 'mfma'; self.w = R(ops[:1]); self.srcAB = R(ops[1:3]); self.srcC = R(ops[3:4]); self.r = self.srcAB + self.srcC
            self.passes = 8 if '32x32x16' in op else 4 if '16x16x32' in op else None
            assert self.passes
        elif op.startswith('v_'):
            self.kind = 'valu'
            if base.startswith('v_permlane') and 'swap' in base:
                self.w = R(ops[:2]); self.r = R(ops[:2])
            elif base in ('v_add_co_u32', 'v_sub_co_u32', 'v_subrev_co_u32', 'v_addc_co_u32', 'v_subb_co_u32', 'v_div_scale_f32', 'v_mad_u64_u32'):
                self.w = R(ops[:2]); self.r = R(ops[2:])
            elif base == 'v_nop': pass
            else:
                self.w = R(ops[:1]); self.r = R(ops[1:])
                if base in ('v_fmac_f32', 'v_pk_fmac_f16', 'v_dot2c_f32_bf16', 'v_writelane_b32'): self.r += self.w
                if base.startswith('v_cmpx'): self.w += ['exec']
        elif op.startswith('ds_'):
            self.kind = 'ds'
            if op.startswith('ds_read') or op.startswith('ds_bpermute') or op.startswith('ds_permute') or op.startswith('ds_swizzle') or '_rtn' in op:
                self.w = R(ops[:1]); self.r = R(ops[1:])
            else: self.r = R(ops)
        elif op.startswith('buffer_') or op.startswith('global_'):
            self.kind = 'vmem'
            words = mods.split()
            if op in ('buffer_inv', 'buffer_wbl2'): pass
            elif op.startswith('buffer_load') and 'lds' in words:
                self.ldsdma = True; self.r = R(ops) + ['m0']
            elif op.startswith('global_load_lds'):
                self.ldsdma = True; self.r = R(ops) + ['m0']
            elif op.startswith('buffer_load') or op.startswith('global_load'):
                self.w = R(ops[:1]); self.r = R(ops[1:])
                if 'd16' in op: self.r += self.w
            elif op.startswith('buffer_store'):
                self.r = R(ops);
                if 'x3' in op or 'x4' in op: self.storedata = R(ops[:1])
            elif op.startswith('global_store'):
                self.r = R(ops)
                if 'x3' in op or 'x4' in op: self.storedata = R(ops[1:2])
            elif 'atomic' in op:
                self.r = R(ops)
                if 'sc0' in words: self.w = R(ops[:1])
            else: raise ValueError(op)
        elif op.startswith('s_'):
            self.kind = 'salu'
            if op.startswith('s_load') or op.startswith('s_buffer_load') or op in ('s_memtime', 's_memrealtime'):
                self.kind = 'smem'; self.w = R(ops[:1]); self.r = R(ops[1:])
            elif op.startswith('s_cbranch') or op in ('s_branch', 's_setpc_b64', 's_endpgm', 's_swappc_b64'):
                self.kind = 'branch'; self.r = R(ops)
            elif op in ('s_nop', 's_waitcnt', 's_barrier', 's_sleep', 's_setprio') or op.startswith('s_cmp') or op.startswith('s_bitcmp'):
                self.r = R(ops)
            else:
                self.w = R(ops[:1]); self.r = R(ops[1:])
                if 'saveexec' in op: self.w += ['exec']
        else:
            raise ValueError("unknown op " + op)
    def states(self):
        if self.kind in ('label', 'none'): return 0
        if self.op == 's_nop': return int(self.text.split()[1], 0) + 1
        return 1

def need(p, c):
    n = 0
    pw = set(p.w); cr = set(c.r); cw = set(c.w)
    isv = lambda s: {x for x in s if x[0] in 'va' and x != 'vcc'}
    iss = lambda s: {x for x in s if x[0] == 's' or x == 'vcc'}
    if p.kind == 'valu':
        vw = isv(pw); sw = iss(pw)
        if c.kind == 'mfma' and vw & cr: n = max(n, 2)
        if c.kind == 'valu':
            if c.base.startswith('v_permlane') and vw & cr: n = max(n, 2)
            if c.base in ('v_readfirstlane_b32', 'v_readlane_b32') and vw & cr: n = max(n, 1)
            if 'dpp' in c.text.split(';')[0] or 'row_' in c.mods or 'quad_perm' in c.mods:
                if vw & cr: n = max(n, 2)
                if 'exec' in pw: n = max(n, 5)
            if p.base in TRANS and c.base not in TRANS and vw & cr: n = max(n, 1)
            if p.base in TRANS and c.base in TRANS and vw & cr: n = max(n, 1)
            if sw & cr:
                n = max(n, 4 if c.base in ('v_readlane_b32', 'v_writelane_b32', 'v_div_fmas_f32') else 2)
            if c.base == 'v_cndmask_b32' and 'vcc' in sw and not any(x[0] == 's' for x in c.r) : n = max(n, 2)
            if (('op_sel' in p.mods and not re.match(r'v_pk_\w+_f32', p.op)) or 'sdwa' in p.op or 'dst_sel' in p.mods) and (vw & (cr | cw)): n = max(n, 1)
            if 'exec' in pw and c.base in ('v_readfirstlane_b32', 'v_readlane_b32', 'v_writelane_b32'): n = max(n, 4)
            if 'exec' in pw and c.base.startswith('v_permlane'): n = max(n, 4)
        if c.kind == 'mfma' and 'exec' in pw: n = max(n, 4)
        if c.kind == 'vmem' and sw & cr: n = max(n, 5)
        if c.kind in ('salu', 'branch', 'smem') and sw & cr: n = max(n, 1)
    if p.kind == 'mfma':
        P = p.passes
        if c.kind == 'mfma':
            if pw & set(c.srcAB): n = max(n, {4: 8, 8: 12}[P])
            if pw & set(c.srcC):
                if not (set(c.srcC) == pw and c.passes == P): n = max(n, {4: 6, 8: 10}[P])
            elif pw & cw: n = max(n, {4: 8, 8: 12}[P])
        elif c.kind in ('valu', 'ds', 'vmem'):
            if pw & (cr | cw): n = max(n, {4: 8, 8: 12}[P])
            if c.kind == 'valu' and set(p.srcC) & cw: n = max(n, {4: 3, 8: 7}[P])
    if p.kind == 'salu' and 'm0' in pw and c.kind == 'vmem' and c.ldsdma: n = max(n, 1)
    if p.kind == 'vmem' and p.storedata and (set(p.storedata) & cw):
        n = max(n, 2 if c.kind in ('valu', 'mfma') else 1)
    return n

MAXD = 13
class Asm:
    def __init__(self):
        self.ins = []
        self.vm = 0
        self.lg = 0
        self.nnop = 0
    def raw(self, text): self.ins.append(Ins(text))
    def __call__(self, text):
        for line in text.split('\n'):
            line = line.strip()
            if not line: continue
            i = Ins(line)
            self._pad(i)
            self.ins.append(i)
            if i.kind == 'vmem': self.vm += 1
            if i.kind == 'ds': self.lg += 1
        return self.vm if self.ins[-1].kind == 'vmem' else self.lg
    def _pad(self, c):
        if c.kind in ('label', 'none'): return
        d = 0; req = 0
        for p in reversed(self.ins):
            if d >= MAXD: break
            if p.kind == 'label' and getattr(p, 'fence', False): break
            r = need(p, c) - d
            if r > req: req = r
            d += p.states()
        while req > 0:
            k = min(req, 16)
            self.ins.append(Ins(f"s_nop {k-1}")); self.nnop += 1
            req -= k
    def settle(self, n=12):
        d = 0; req = 0
        for p in reversed(self.ins):
            if d >= MAXD: break
            worst = 0
            if p.kind == 'mfma': worst = {4: 8, 8: 12}[p.passes]
            elif p.kind == 'valu': worst = 5 if any(x[0] == 's' or x in ('vcc', 'exec') for x in p.w) else 2
            elif p.kind == 'vmem' and p.storedata: worst = 2
            elif p.kind == 'salu' and 'm0' in p.w: worst = 1
            req = max(req, worst - d)
            d += p.states()
        if req > 0: self.ins.append(Ins(f"s_nop {req-1}"))
    def label(self, name):
        self.settle()
        i = Ins(name + ':'); i.fence = True; self.ins.append(i)
    def branch(self, text):
        self.settle()
        self(text)
    def wait_vm(self, tok):
        n = self.vm - tok
        assert 0 <= n
        self(f"s_waitcnt vmcnt({min(n, 63)})")
    def wait_lg(self, tok):
        n = self.lg - tok
        assert 0 <= n
        self(f"s_waitcnt lgkmcnt({min(n, 15)})")
    def text(self):
        out = []
        for i in self.ins:
            out.append(i.text if (i.label or i.directive) else "    " + i.text)
        return "\n".join(out) + "\n"
```

```python
import sys, struct
from asmlib import Asm

NAME = "gated_mix__linear_kernel_hedgehog__dense_activation_gelu__prompt_kernel"
def f2u(x): return struct.unpack("<I", struct.pack("<f", x))[0]

WS_EPOCH = 0
WS_RPF   = 0x100
WS_HF    = 0x1000
WS_KVF   = 0x3000
WS_OF    = 0x5000
WS_STAMP = 0x10000
WS_WQ    = 0x100000
WS_KVP   = 0x280000
WS_O     = 0x480000
WS_H     = 0x680000
WS_SIZE  = 0xE00000

U = [0, 32768, 65536, 98304, 131072]
L_K, L_V, L_Q = 0, 28672, 131072
L_MISC = 131072 + 28672
L_PHI, L_B1, L_G = L_MISC, L_MISC + 2048, L_MISC + 3072
L_KVF = L_MISC
RSLOT = [2, 3, 1, 0, 2, 3, 1]
RED_STRIDE = 1088

P_X, P_WQKV, P_PHI, P_WO, P_W1, P_B1, P_W2 = 16, 18, 20, 22, 26, 28, 30
P_B2, P_GATE, P_OUT, P_WS = 32, 34, 36, 40
R_X, R_W1, R_W2, R_WO, R_WS, R_OUT, R_T = 44, 48, 52, 56, 60, 64, 68
S_MT, S_J, S_W, S_TG, S_C, S_TAG, S_CH = 72, 73, 74, 75, 76, 77, 78
S_CHO = 80
S_M0X = 87
S_XB, S_W1B = 88, 89
S_T = 90
S_UP = 98
S_CNT = 79
S_E = 42
S_CT, S_TG2 = 43, 3
S_K1, S_K2 = 4, 5
S_ST = 6
S_L28 = 8
def srd(r): return f"s[{r}:{r+3}]"

V_LANE, V_L16 = 1, 2
V_XA, V_XB, V_WA, V_WB = 3, 4, 5, 6
V_AX = 8
V_AW = 12
V_TR = 16
V_STAMP = 17
V_G, V_G2 = 18, 19
V_C0 = 20
V_T = 21
V_W = 32
V_P = 64
V_ACC = 96
V_PHI = 128
V_X = 144
def vr(a, n): return f"v[{a}:{a+n-1}]"

def gen(stamps=False, spin=20000):
    K = Asm()
    nst = [0]
    def stamp(name):
        if not stamps: return
        K("s_waitcnt lgkmcnt(0)")
        K(f"s_memrealtime s[{S_ST}:{S_ST+1}]")
        K("s_waitcnt lgkmcnt(0)")
        K(f"v_writelane_b32 v{V_STAMP}, s{S_ST}, {STAMP_IDS.setdefault(name, len(STAMP_IDS))}")
    uid = [0]
    def poll(vaddr):
        uid[0] += 1; n = uid[0]
        K(f"s_mov_b32 s{S_CNT}, {spin}")
        K.label(f"L_poll{n}")
        K(f"buffer_load_dword v{V_T}, v{vaddr}, {srd(R_WS)}, 0 offen sc1")
        K("s_waitcnt vmcnt(0)")
        K(f"v_cmp_ne_u32 vcc, s{S_TAG}, v{V_T}")
        K.branch(f"s_cbranch_vccz L_polld{n}")
        K(f"s_sub_u32 s{S_CNT}, s{S_CNT}, 1")
        K.branch(f"s_cbranch_scc1 L_polld{n}")
        K("s_sleep 1")
        K.branch(f"s_branch L_poll{n}")
        K.label(f"L_polld{n}")
    def flag(soff_reg):
        K(f"v_mov_b32 v{V_T}, s{S_TAG}")
        K(f"v_mov_b32 v{V_T+1}, 0")
        K("s_mov_b64 exec, 1")
        K(f"buffer_store_dword v{V_T}, v{V_T+1}, {srd(R_WS)}, s{soff_reg} offen sc1")
        K("s_mov_b64 exec, -1")
    def mksrd(r, p, nbytes):
        K(f"s_mov_b32 s{r}, s{p}"); K(f"s_and_b32 s{r+1}, s{p+1}, 0xffff")
        K(f"s_mov_b32 s{r+2}, {nbytes}"); K(f"s_mov_b32 s{r+3}, 0x20000")
    def mfma(d, a, b, c=None):
        cs = vr(d, 16) if c is None else c
        K(f"v_mfma_f32_32x32x16_bf16 {vr(d,16)}, {vr(a,4)}, {vr(b,4)}, {cs}")

    K.raw(f"{NAME}:")
    K("s_cmp_ge_u32 s2, 256"); K("s_cbranch_scc1 L_end")
    K("s_load_dwordx16 s[16:31], s[0:1], 0"); K("s_load_dwordx8 s[32:39], s[0:1], 64"); K("s_load_dwordx2 s[40:41], s[0:1], 96")
    if stamps: K(f"v_mov_b32 v{V_STAMP}, 0")
    K(f"v_lshrrev_b32 v{V_T}, 6, v0"); K(f"v_and_b32 v{V_LANE}, 63, v0")
    K(f"v_readfirstlane_b32 s{S_W}, v{V_T}")
    T = S_T
    K(f"s_and_b32 s{T}, s2, 7"); K(f"s_lshr_b32 s{T+1}, s2, 3")
    K(f"s_lshr_b32 s{T+2}, s{T+1}, 4"); K(f"s_lshl_b32 s{S_MT}, s{T}, 1"); K(f"s_add_u32 s{S_MT}, s{S_MT}, s{T+2}")
    K(f"s_and_b32 s{S_J}, s{T+1}, 15")
    K(f"s_and_b32 s{S_TG}, s{S_W}, 3"); K(f"s_lshr_b32 s{S_C}, s{S_W}, 2")
    K(f"s_mul_i32 s{T+2}, s{T+2}, 3"); K(f"s_add_u32 s{T+2}, s{T+2}, s{S_J}"); K(f"s_add_u32 s{T+2}, s{T+2}, s{T}")
    K(f"s_mul_i32 s{T+3}, s{T+2}, 37"); K(f"s_lshr_b32 s{T+3}, s{T+3}, 8"); K(f"s_mul_i32 s{T+3}, s{T+3}, 7")
    K(f"s_sub_u32 s{S_CH}, s{T+2}, s{T+3}")
    for t in range(7):
        K(f"s_lshl_b32 s{S_CHO+t}, s{S_CH}, 12")
        if t < 6:
            K(f"s_add_u32 s{S_CH}, s{S_CH}, 1"); K(f"s_cmp_eq_u32 s{S_CH}, 7"); K(f"s_cselect_b32 s{S_CH}, 0, s{S_CH}")
    K(f"s_lshl_b32 s{S_M0X}, s{S_W}, 11")
    K(f"s_mul_i32 s{S_XB}, s{S_MT}, {128*896}"); K(f"s_lshl_b32 s{S_W1B}, s{S_J}, 8")
    K(f"s_cmp_ge_u32 s{S_J}, 7"); K(f"s_cselect_b32 s{T}, 7, 0"); K(f"s_cselect_b32 s{T+1}, 2, 0")
    K(f"s_sub_u32 s{S_CT}, s{S_J}, s{T}"); K(f"s_add_u32 s{S_TG2}, s{T+1}, s{S_C}")
    K(f"s_mov_b32 s{S_UP}, 0"); K(f"s_mov_b32 s{S_UP+1}, -1")
    K(f"s_mov_b32 s{S_L28}, 0x10000000"); K(f"s_mov_b32 s{S_L28+1}, 0x10000000")
    t0, t1, t2, t3, t4, t5 = V_T, V_T+1, V_T+2, V_T+3, V_T+4, V_T+5
    K(f"v_lshlrev_b32 v{V_L16}, 4, v{V_LANE}")
    K(f"v_lshrrev_b32 v{t0}, 3, v{V_LANE}")
    K(f"v_and_b32 v{t1}, 7, v{V_LANE}")
    K(f"v_lshrrev_b32 v{t2}, 1, v{t0}")
    K(f"v_xor_b32 v{t2}, v{t1}, v{t2}")
    K(f"s_lshl_b32 s{T}, s{S_W}, 4")
    K(f"v_add_u32 v{t3}, s{T}, v{t0}")
    K(f"v_mul_u32_u24 v{t3}, 896, v{t3}")
    K(f"v_lshl_add_u32 v{V_XA}, v{t2}, 4, v{t3}")
    K(f"v_xor_b32 v{t2}, 4, v{t2}")
    K(f"v_lshl_add_u32 v{V_XB}, v{t2}, 4, v{t3}")
    K(f"v_add_u32 v{V_XB}, {8*896-1024}, v{V_XB}")
    K(f"v_lshrrev_b32 v{t0}, 4, v{V_LANE}")
    K(f"v_and_b32 v{t1}, 15, v{V_LANE}")
    K(f"v_lshlrev_b32 v{t2}, 2, v{t0}")
    K(f"v_xor_b32 v{t2}, v{t1}, v{t2}")
    K(f"s_lshl_b32 s{T}, s{S_W}, 3")
    K(f"v_add_u32 v{t3}, s{T}, v{t0}")
    K(f"v_mul_u32_u24 v{t3}, 3584, v{t3}")
    K(f"v_lshl_add_u32 v{V_WA}, v{t2}, 4, v{t3}")
    K(f"v_add_u32 v{V_WB}, {4*3584-1024}, v{V_WA}")
    K(f"v_and_b32 v{t0}, 31, v{V_LANE}")
    K(f"v_lshrrev_b32 v{t2}, 5, v{V_LANE}")
    K(f"v_bfe_u32 v{t3}, v{V_LANE}, 1, 3")
    K(f"v_xor_b32 v{t3}, v{t2}, v{t3}")
    K(f"s_lshl_b32 s{T}, s{S_TG}, 12")
    K(f"v_lshlrev_b32 v{t0}, 7, v{t0}")
    K(f"v_lshl_add_u32 v{t0}, v{t3}, 4, v{t0}")
    K(f"v_add_u32 v{V_AX}, s{T}, v{t0}")
    for k in range(1, 4): K(f"v_xor_b32 v{V_AX+k}, {32*k}, v{V_AX}")
    K(f"v_bfe_u32 v{t4}, v{V_LANE}, 4, 1"); K(f"v_lshlrev_b32 v{t4}, 5, v{t4}")
    K(f"v_and_b32 v{t5}, 3, v{V_LANE}"); K(f"v_lshl_add_u32 v{t4}, v{t5}, 3, v{t4}")
    K(f"v_bfe_u32 v{t5}, v{V_LANE}, 2, 2")
    K(f"v_lshl_add_u32 v{t0}, v{t2}, 3, v{t5}")
    K(f"v_lshl_add_u32 v{V_TR}, v{t0}, 6, v{t4}")
    K(f"v_lshl_add_u32 v{t0}, v{t0}, 8, v{t4}")
    K(f"s_lshl_b32 s{T}, s{S_C}, 1")
    K(f"v_xor_b32 v{t1}, s{T}, v{t5}")
    K(f"v_lshl_add_u32 v{t0}, v{t1}, 6, v{t0}")
    K(f"v_add_u32 v{V_AW}, 65536, v{t0}")
    K(f"v_xor_b32 v{V_AW+1}, 64, v{V_AW}")
    K("s_waitcnt lgkmcnt(0)")
    K(f"s_load_dword s{S_E}, s[{P_WS}:{P_WS+1}], {WS_EPOCH}")
    mksrd(R_X, P_X, 2048*896); mksrd(R_W1, P_W1, 448*3584); mksrd(R_WS, P_WS, WS_SIZE)
    mksrd(R_W2, P_W2, 1792*896); mksrd(R_WO, P_WO, 448*896); mksrd(R_OUT, P_OUT, 2048*896)
    stamp("start")
    K(f"s_cmp_ge_u32 s{S_J}, 14")
    K.branch("s_cbranch_scc1 L_spare1")

    def dma_phi():
        uid[0] += 1; n = uid[0]
        K(f"s_cmp_ge_u32 s{S_W}, 2")
        K.branch(f"s_cbranch_scc1 L_phi{n}")
        mksrd(R_T, P_PHI, 16*1568)
        K(f"s_mul_i32 s{T}, s{S_J}, 1568"); K(f"s_lshl_b32 s{T+1}, s{S_W}, 10"); K(f"s_add_u32 s{T}, s{T}, s{T+1}")
        K(f"s_add_u32 m0, s{T+1}, {L_PHI}")
        K(f"s_cmp_eq_u32 s{S_W}, 0"); K(f"s_cselect_b32 exec_hi, -1, 3")
        K(f"buffer_load_dwordx4 v{V_L16}, {srd(R_T)}, s{T} offen lds")
        K.vm -= 1
        K("s_mov_b64 exec, -1")
        K.label(f"L_phi{n}")

    dma_phi()
    mksrd(R_T, P_B1, 3584)
    K(f"s_lshl_b32 s{T}, s{S_C}, 7"); K(f"s_add_u32 s{T}, s{T}, s{S_W1B}")
    K(f"s_lshl_b32 s{T+1}, s{S_W}, 7"); K(f"s_add_u32 m0, s{T+1}, {L_B1}")
    K("s_mov_b64 exec, 0xff")
    tk_b1 = K(f"buffer_load_dwordx4 v{V_L16}, {srd(R_T)}, s{T} offen lds")
    K("s_mov_b64 exec, -1")
    tk_stage = {}
    def dma_stage(t):
        sl = t % 4
        K(f"s_lshr_b32 s{T}, s{S_CHO+t}, 5"); K(f"s_add_u32 s{T}, s{T}, s{S_XB}")
        K(f"s_add_u32 m0, s{S_M0X}, {sl*16384}")
        K(f"s_mul_i32 s{T+1}, s{S_CHO+t}, 56")
        K(f"buffer_load_dwordx4 v{V_XA}, {srd(R_X)}, s{T} offen lds")
        K(f"buffer_load_dwordx4 v{V_XB}, {srd(R_X)}, s{T} offen offset:1024 lds")
        K(f"s_add_u32 s{T+1}, s{T+1}, s{S_W1B}")
        K(f"s_add_u32 m0, s{S_M0X}, {65536 + sl*16384}")
        K(f"buffer_load_dwordx4 v{V_WA}, {srd(R_W1)}, s{T+1} offen lds")
        tk_stage[t] = K(f"buffer_load_dwordx4 v{V_WB}, {srd(R_W1)}, s{T+1} offen offset:1024 lds")
    for t in range(4): dma_stage(t)
    K.wait_vm(tk_b1)
    K(f"v_lshrrev_b32 v{t0}, 5, v{V_LANE}"); K(f"s_lshl_b32 s{T}, s{S_W}, 7"); K(f"s_add_u32 s{T}, s{T}, {L_B1}")
    K(f"v_lshl_add_u32 v{t0}, v{t0}, 3, s{T}")
    for q in range(8): K(f"ds_read_b64 {vr(V_W+2*q,2)}, v{t0} offset:{16*q}")
    K("s_waitcnt lgkmcnt(0)")
    K(f"s_add_u32 s{S_TAG}, s{S_E}, 0x9E3779B9")
    for q in range(16):
        K(f"v_lshlrev_b32 v{V_ACC+2*q}, 16, v{V_W+q}")
        K(f"v_and_b32 v{V_ACC+2*q+1}, 0xffff0000, v{V_W+q}")
    for t in range(7):
        sl = t % 4
        K.wait_vm(tk_stage[t]); K("s_barrier")
        if t == 0: stamp("ffn1_first")
        if 1 <= t <= 3: dma_stage(t + 3)
        tk = {}
        def rd(ksl):
            b = V_W + 8 * (ksl % 3)
            K(f"ds_read_b128 {vr(V_X + 16*t + 4*ksl, 4)}, v{V_AX+ksl} offset:{sl*16384}")
            for pp in range(2):
                for r in range(2):
                    tk[ksl] = K(f"ds_read_b64_tr_b16 {vr(b + 4*pp + 2*r, 2)}, v{V_AW+pp} offset:{sl*16384 + (16*ksl + 4*r)*256}")
        rd(0); rd(1)
        for ksl in range(4):
            if ksl + 2 < 4: rd(ksl + 2)
            K.wait_lg(tk[ksl])
            b = V_W + 8 * (ksl % 3)
            for pp in range(2): mfma(V_ACC + 16*pp, b + 4*pp, V_X + 16*t + 4*ksl)
    K("s_barrier")
    stamp("ffn1_done")

    def dma_wqkv():
        K(f"v_and_b32 v{t1}, 31, v{V_LANE}"); K(f"v_lshlrev_b32 v{t1}, 2, v{t1}"); K(f"v_add_u32 v{t1}, {WS_RPF}, v{t1}")
        poll(t1)
        stamp("rp_seen")
        K(f"s_mul_i32 s{T}, s{S_J}, {3*28672}"); K(f"s_add_u32 s{T}, s{T}, {WS_WQ}")
        K(f"s_mul_i32 s{T+1}, s{S_W}, 7168")
        K(f"s_add_u32 s{T+2}, s{T}, s{T+1}"); K(f"s_add_u32 s{T+2}, s{T+2}, 28672")
        K(f"s_mov_b32 m0, s{T+1}")
        for q in range(4): K(f"buffer_load_dwordx4 v{V_L16}, {srd(R_WS)}, s{T+2} offen offset:{1024*q} sc1 lds")
        K(f"s_add_u32 s{T+2}, s{T+2}, 4096"); K(f"s_add_u32 m0, s{T+1}, 4096")
        for q in range(3): K(f"buffer_load_dwordx4 v{V_L16}, {srd(R_WS)}, s{T+2} offen offset:{1024*q} sc1 lds")
        K(f"s_mul_i32 s{T+1}, s{S_W}, 3584")
        K(f"s_add_u32 s{T+2}, s{T}, s{T+1}"); K(f"s_add_u32 m0, s{T+1}, {L_Q}")
        for q in range(3): K(f"buffer_load_dwordx4 v{V_L16}, {srd(R_WS)}, s{T+2} offen offset:{1024*q} sc1 lds")
        K("s_mov_b32 exec_hi, 0")
        tk = K(f"buffer_load_dwordx4 v{V_L16}, {srd(R_WS)}, s{T+2} offen offset:3072 sc1 lds")
        K("s_mov_b32 exec_hi, -1")
        return tk
    tk_wq = dma_wqkv()

    K(f"v_lshrrev_b32 v{t0}, 3, v{V_LANE}"); K(f"v_and_b32 v{t1}, 7, v{V_LANE}")
    K(f"v_bfe_u32 v{t2}, v{V_LANE}, 4, 1"); K(f"v_lshlrev_b32 v{t2}, 2, v{t2}"); K(f"v_xor_b32 v{t1}, v{t1}, v{t2}")
    K(f"v_mul_u32_u24 v{t0}, 896, v{t0}"); K(f"v_lshl_add_u32 v{V_XA}, v{t1}, 4, v{t0}")
    for q in range(1, 4): K(f"v_add_u32 v{V_XA+q}, {q*(8*896-1024)}, v{V_XA}")
    K(f"s_mul_i32 s{S_XB}, s{S_TG}, {448*896}"); K(f"s_mul_i32 s{T}, s{S_C}, {32*896}"); K(f"s_add_u32 s{S_XB}, s{S_XB}, s{T}")
    K(f"s_lshl_b32 s{T}, s{S_CT}, 7"); K(f"s_add_u32 s{S_XB}, s{S_XB}, s{T}")
    K(f"s_lshl_b32 s{S_M0X}, s{S_TG}, 13"); K(f"s_lshl_b32 s{T}, s{S_C}, 12"); K(f"s_add_u32 s{S_M0X}, s{S_M0X}, s{T}")
    tk_r = {}
    def dma_w2(r):
        K(f"s_add_u32 s{T}, s{S_XB}, {64*896*r}"); K(f"s_add_u32 m0, s{S_M0X}, {U[RSLOT[r]]}")
        for q in range(4): tk_r[r] = K(f"buffer_load_dwordx4 v{V_XA+q}, {srd(R_W2)}, s{T} offen offset:{1024*q} lds")
    def dma_wo(hf):
        K(f"s_mul_i32 s{T}, s{S_W}, {28*896}"); K(f"s_lshl_b32 s{T+1}, s{S_CT}, 7"); K(f"s_add_u32 s{T}, s{T}, s{T+1}")
        if hf: K(f"s_add_u32 s{T}, s{T}, {224*896}")
        K(f"s_mul_i32 s{T+1}, s{S_W}, 3584"); K(f"s_add_u32 m0, s{T+1}, {U[4] if hf else U[0]}")
        for q in range(3): K(f"buffer_load_dwordx4 v{V_XA+q}, {srd(R_WO)}, s{T} offen offset:{1024*q} lds")
        K("s_mov_b32 exec_hi, 0")
        tk = K(f"buffer_load_dwordx4 v{V_XA+3}, {srd(R_WO)}, s{T} offen offset:3072 lds")
        K("s_mov_b32 exec_hi, -1")
        return tk

    c0 = -2.0 * 0.7978845608028654 * 1.4426950408889634
    K(f"v_mov_b32 v{V_C0}, {f2u(c0):#x}"); K(f"s_mov_b32 s{S_K1}, {f2u(c0*0.044715):#x}")
    K(f"s_lshl_b32 s{T}, s{S_MT}, 2"); K(f"s_add_u32 s{T}, s{T}, s{S_TG}"); K(f"s_mul_i32 s{T+3}, s{T}, 112")
    K(f"s_lshl_b32 s{T+1}, s{S_J}, 1"); K(f"s_add_u32 s{T+1}, s{T+1}, s{S_C}")
    K(f"s_lshl_b32 s{T+2}, s{T+1}, 2"); K(f"s_add_u32 s{T+3}, s{T+3}, s{T+2}"); K(f"s_lshl_b32 s{T+3}, s{T+3}, 10"); K(f"s_add_u32 s{T+3}, s{T+3}, {WS_H}")
    K(f"s_lshl_b32 s{T+4}, s{T}, 7"); K(f"s_add_u32 s{T+4}, s{T+4}, s{T+2}"); K(f"s_add_u32 s{T+4}, s{T+4}, {WS_HF}")
    for g in range(4):
        a = V_ACC + 8*g; tt = V_P + 8*(g % 2)
        for e in range(8): K(f"v_mul_f32 v{tt+e}, v{a+e}, v{a+e}")
        for e in range(8): K(f"v_fma_f32 v{tt+e}, v{tt+e}, s{S_K1}, v{V_C0}")
        for e in range(8): K(f"v_mul_f32 v{tt+e}, v{a+e}, v{tt+e}")
        for e in range(8): K(f"v_exp_f32 v{tt+e}, v{tt+e}")
        for e in range(8): K(f"v_add_f32 v{tt+e}, 1.0, v{tt+e}")
        for e in range(8): K(f"v_rcp_f32 v{tt+e}, v{tt+e}")
        for e in range(8): K(f"v_mul_f32 v{tt+e}, v{a+e}, v{tt+e}")
        o = V_W + 4*g
        for e in range(4): K(f"v_cvt_pk_bf16_f32 v{o+e}, v{tt+2*e}, v{tt+2*e+1}")
        tk_h = K(f"buffer_store_dwordx4 {vr(o,4)}, v{V_L16}, {srd(R_WS)}, s{T+3} offen offset:{1024*g} sc1")
    stamp("gelu_done")
    dma_w2(0); dma_w2(1)
    K.wait_vm(tk_h)
    flag(T+4)
    stamp("h_pub")
    K.branch("s_branch L_attn")

    K.label("L_spare1")
    vm_save = K.vm
    dma_phi()
    mksrd(R_T, P_WQKV, 448*2688)
    K(f"s_cmp_ge_u32 s{S_W}, 7")
    K.branch("s_cbranch_scc1 L_rp_skip")
    K(f"s_lshl_b32 s{T}, s{S_MT}, 1"); K(f"s_add_u32 s{T}, s{T}, s{S_J}"); K(f"s_sub_u32 s{T}, s{T}, 14")
    K(f"s_mul_i32 s{T}, s{T}, 14"); K(f"s_lshl_b32 s{T+1}, s{S_W}, 1"); K(f"s_add_u32 s{T}, s{T}, s{T+1}")
    K(f"v_lshrrev_b32 v{t0}, 3, v{V_LANE}")
    K(f"v_bfe_u32 v{t1}, v{V_LANE}, 2, 1")
    K(f"v_and_b32 v{t2}, 3, v{V_LANE}")
    K(f"v_mul_u32_u24 v{t3}, 56, v{t0}"); K(f"v_mul_u32_u24 v{t4}, 2688, v{t1}"); K(f"v_add_u32 v{t3}, v{t3}, v{t4}")
    K(f"v_lshl_add_u32 v{t3}, v{t2}, 4, v{t3}")
    K(f"s_mul_i32 s{T+1}, s{T}, 2688")
    for q in range(6): K(f"buffer_load_dwordx4 {vr(V_W+4*q,4)}, v{t3}, {srd(R_T)}, s{T+1} offen offset:{448*q}")
    mksrd(R_T, P_GATE, 896)
    K(f"v_lshlrev_b32 v{t4}, 1, v{t1}"); K(f"s_lshl_b32 s{T+2}, s{T}, 1")
    K(f"buffer_load_ushort v{t5}, v{t4}, {srd(R_T)}, s{T+2} offen")
    K(f"s_mov_b32 s{T+2}, 86016"); K(f"v_mul_lo_u32 v{t0}, v{t0}, s{T+2}"); K(f"v_and_b32 v{t1}, 7, v{V_LANE}")
    K(f"v_lshl_add_u32 v{t0}, v{t1}, 4, v{t0}")
    K(f"v_cmp_eq_u32 vcc, 3, v{t2}")
    K(f"s_lshl_b32 s{T+1}, s{T}, 6"); K(f"s_add_u32 s{T+1}, s{T+1}, {WS_WQ}")
    K("s_waitcnt vmcnt(0)")
    for q in range(6):
        p, hg = q // 2, q % 2
        K(f"v_cndmask_b32 v{V_W+4*q+2}, v{V_W+4*q+2}, v{t5}, vcc" if p == 0 else f"v_cndmask_b32 v{V_W+4*q+2}, v{V_W+4*q+2}, 0, vcc")
        K(f"v_cndmask_b32 v{V_W+4*q+3}, v{V_W+4*q+3}, 0, vcc")
        K(f"s_add_u32 s{T+2}, s{T+1}, {p*28672 + hg*8*86016}")
        K(f"buffer_store_dwordx4 {vr(V_W+4*q,4)}, v{t0}, {srd(R_WS)}, s{T+2} offen sc1")
    K.label("L_rp_skip")
    K("s_waitcnt vmcnt(0) lgkmcnt(0)")
    K(f"s_add_u32 s{S_TAG}, s{S_E}, 0x9E3779B9")
    K("s_barrier")
    K(f"s_lshl_b32 s{T}, s{S_MT}, 1"); K(f"s_add_u32 s{T}, s{T}, s{S_J}"); K(f"s_lshl_b32 s{T}, s{T}, 2"); K(f"s_add_u32 s{T}, s{T}, {WS_RPF - 56}")
    K(f"s_cmp_lg_u32 s{S_W}, 7")
    K.branch("s_cbranch_scc1 L_rp_nf")
    flag(T)
    K.label("L_rp_nf")
    stamp("rp_pub")
    for t in range(7):
        K(f"s_lshr_b32 s{T}, s{S_CHO+t}, 5"); K(f"s_add_u32 s{T}, s{T}, s{S_XB}")
        K(f"s_add_u32 m0, s{S_M0X}, {t*16384}")
        K(f"buffer_load_dwordx4 v{V_XA}, {srd(R_X)}, s{T} offen lds")
        K(f"buffer_load_dwordx4 v{V_XB}, {srd(R_X)}, s{T} offen offset:1024 lds")
    K("s_waitcnt vmcnt(0)"); K("s_barrier")
    for t in range(7):
        if t == 4:
            for k in range(4): K(f"v_add_u32 v{V_AX+k}, 65536, v{V_AX+k}")
        for ksl in range(4): K(f"ds_read_b128 {vr(V_X + 16*t + 4*ksl, 4)}, v{V_AX+ksl} offset:{(t%4)*16384}")
        if t % 2 == 1: K("s_waitcnt lgkmcnt(0)")
    K("s_waitcnt lgkmcnt(0)"); K("s_barrier")
    dma_wqkv()
    K("s_waitcnt vmcnt(0)")
    K.vm = vm_save

    K.label("L_attn")
    K("s_barrier")
    stamp("qkv_start")
    VPH = V_P + 24
    K(f"v_lshrrev_b32 v{t0}, 5, v{V_LANE}"); K(f"v_bfe_u32 v{t1}, v{V_LANE}, 2, 2"); K(f"v_lshl_add_u32 v{t0}, v{t0}, 2, v{t1}")
    K(f"v_and_b32 v{t2}, 63, v{V_TR}")
    K(f"v_mul_u32_u24 v{t1}, 56, v{t0}"); K(f"v_add_u32 v{t1}, v{t1}, v{t2}"); K(f"v_add_u32 v{t1}, {L_PHI}, v{t1}")
    for s in range(2):
        for r in range(2): K(f"ds_read_b64_tr_b16 {vr(VPH + 4*s + 2*r, 2)}, v{t1} offset:{(16*s + 8*r)*56}")
    K(f"v_lshl_add_u32 v{t0}, v{t0}, 7, v{t2}"); K(f"v_bfe_u32 v{t1}, v{V_LANE}, 3, 1"); K(f"v_lshl_add_u32 v{V_AX}, v{t1}, 6, v{t0}")
    K(f"s_lshl_b32 s{T}, s{S_TG}, 13")
    K(f"v_add_u32 v{V_AW}, s{T}, v{V_AX}"); K(f"v_xor_b32 v{V_AW+1}, 64, v{V_AW}")
    K(f"v_add_u32 v{V_AW+2}, 65536, v{V_AW}"); K(f"v_add_u32 v{V_AW+3}, 65536, v{V_AW+1}")
    K("s_waitcnt lgkmcnt(0)")
    K(f"v_cndmask_b32 v{VPH+6}, v{VPH+6}, 0, s[{S_UP}:{S_UP+1}]"); K(f"v_cndmask_b32 v{VPH+7}, v{VPH+7}, 0, s[{S_UP}:{S_UP+1}]")
    K(f"s_cmp_eq_u32 s{S_C}, 1")
    K.branch("s_cbranch_scc1 L_q")
    def gemm_qkv(panels):
        nb = len(panels) * 4
        tk = {}
        def rd(ks):
            t, ksl = ks // 4, ks % 4
            if ksl == 0: K(f"v_add_u32 v{t3 + t % 2}, s{S_CHO+t}, v{t5}")
            b = V_W + nb * (ks % 3)
            for n, (off, acc, sw) in enumerate(panels):
                for r in range(2):
                    tk[ks] = K(f"ds_read_b64_tr_b16 {vr(b + 4*n + 2*r, 2)}, v{t3 + t % 2} offset:{off + (16*ksl + 4*r)*64}")
        rd(0); rd(1)
        for ks in range(28):
            if ks + 2 < 28: rd(ks + 2)
            K.wait_lg(tk[ks])
            b = V_W + nb * (ks % 3)
            for n, (off, acc, sw) in enumerate(panels):
                wv, xv = b + 4*n, V_X + 4*ks
                if sw: mfma(acc, xv, wv, "0" if ks == 0 else None)
                else: mfma(acc, wv, xv, "0" if ks == 0 else None)
    K(f"v_mov_b32 v{t5}, v{V_TR}")
    gemm_qkv([(L_K, V_ACC, False), (L_V, V_ACC + 16, True)])
    K.branch("s_branch L_sm")
    K.label("L_q")
    K(f"v_add_u32 v{t5}, {L_Q}, v{V_TR}")
    gemm_qkv([(0, V_ACC, False)])
    K(f"v_cvt_pk_bf16_f32 v{t0}, v{V_ACC+12}, v{V_ACC+12}"); K(f"v_lshlrev_b32 v{t0}, 16, v{t0}")
    K(f"v_mul_f32 v{t0}, {f2u(-1.4426950408889634):#x}, v{t0}"); K(f"v_exp_f32 v{t0}, v{t0}"); K(f"v_add_f32 v{t0}, 1.0, v{t0}"); K(f"v_rcp_f32 v{t0}, v{t0}")
    K(f"v_cvt_pk_bf16_f32 v{t0}, v{t0}, v{t0}"); K(f"v_lshlrev_b32 v{t0}, 16, v{t0}")
    K(f"s_lshl_b32 s{T}, s{S_TG}, 7"); K(f"s_add_u32 s{T}, s{T}, {L_G - 128}")
    K(f"v_lshl_add_u32 v{t1}, v{V_LANE}, 2, s{T}")
    K("s_mov_b32 exec_lo, 0")
    K(f"ds_write_b32 v{t1}, v{t0}")
    K("s_mov_b32 exec_lo, -1")
    K.label("L_sm")
    QP = V_W
    for e in range(8): K(f"v_cvt_pk_bf16_f32 v{QP+e}, v{V_ACC+2*e}, v{V_ACC+2*e+1}")
    P = V_ACC
    mfma(P, VPH, QP, "0"); mfma(P, VPH + 4, QP + 4)
    K("s_waitcnt lgkmcnt(0)")
    K("s_barrier")
    stamp("qkv_done")
    L2E = 1.4426950408889634
    K(f"s_mov_b32 s{S_K1}, {f2u(L2E):#x}"); K(f"s_mov_b32 s{S_K2}, {f2u(-L2E):#x}")
    for e in range(4): K(f"v_cndmask_b32 v{P+12+e}, v{P+12+e}, v{P}, s[{S_UP}:{S_UP+1}]")
    mx, mn = t0, t1
    K(f"v_max3_f32 v{mx}, v{P}, v{P+1}, v{P+2}"); K(f"v_min3_f32 v{mn}, v{P}, v{P+1}, v{P+2}")
    for e in range(3, 15, 2):
        K(f"v_max3_f32 v{mx}, v{mx}, v{P+e}, v{P+e+1}"); K(f"v_min3_f32 v{mn}, v{mn}, v{P+e}, v{P+e+1}")
    K(f"v_max_f32 v{mx}, v{mx}, v{P+15}"); K(f"v_min_f32 v{mn}, v{mn}, v{P+15}")
    K(f"v_mov_b32 v{t2}, v{mx}"); K(f"v_mov_b32 v{t3}, v{mn}")
    K(f"v_permlane32_swap_b32 v{mx}, v{t2}"); K(f"v_permlane32_swap_b32 v{mn}, v{t3}")
    K(f"v_max_f32 v{mx}, v{mx}, v{t2}"); K(f"v_min_f32 v{mn}, v{mn}, v{t3}")
    K(f"v_mul_f32 v{mx}, s{S_K2}, v{mx}"); K(f"v_mul_f32 v{mn}, s{S_K1}, v{mn}")
    EP, EN = V_P, V_W + 8
    for e in range(16):
        K(f"v_fma_f32 v{EP+e}, v{P+e}, s{S_K1}, v{mx}"); K(f"v_fma_f32 v{EN+e}, v{P+e}, s{S_K2}, v{mn}")
    for e in range(16):
        K(f"v_exp_f32 v{EP+e}, v{EP+e}"); K(f"v_exp_f32 v{EN+e}, v{EN+e}")
    sp, sn, up, un = t0, t1, t2, t3
    K(f"v_add_f32 v{up}, v{EP+12}, v{EP+13}"); K(f"v_add_f32 v{un}, v{EN+12}, v{EN+13}")
    K(f"v_add_f32 v{sp}, v{EP}, v{EP+1}"); K(f"v_add_f32 v{sn}, v{EN}, v{EN+1}")
    for e in (14, 15): K(f"v_add_f32 v{up}, v{up}, v{EP+e}"); K(f"v_add_f32 v{un}, v{un}, v{EN+e}")
    for e in range(2, 12): K(f"v_add_f32 v{sp}, v{sp}, v{EP+e}"); K(f"v_add_f32 v{sn}, v{sn}, v{EN+e}")
    K(f"v_cndmask_b32 v{up}, v{up}, 0, s[{S_UP}:{S_UP+1}]"); K(f"v_cndmask_b32 v{un}, v{un}, 0, s[{S_UP}:{S_UP+1}]")
    K(f"v_add_f32 v{sp}, v{sp}, v{up}"); K(f"v_add_f32 v{sn}, v{sn}, v{un}")
    K(f"v_mov_b32 v{up}, v{sp}"); K(f"v_mov_b32 v{un}, v{sn}")
    K(f"v_permlane32_swap_b32 v{sp}, v{up}"); K(f"v_permlane32_swap_b32 v{sn}, v{un}")
    K(f"v_add_f32 v{sp}, v{sp}, v{up}"); K(f"v_add_f32 v{sn}, v{sn}, v{un}")
    K(f"v_rcp_f32 v{sp}, v{sp}"); K(f"v_rcp_f32 v{sn}, v{sn}")
    K(f"v_cndmask_b32 v{up}, v{sp}, 0, s[{S_UP}:{S_UP+1}]"); K(f"v_cndmask_b32 v{un}, v{sn}, 0, s[{S_UP}:{S_UP+1}]")
    for e in range(16):
        K(f"v_mul_f32 v{EP+e}, v{EP+e}, v{sp if e < 12 else up}"); K(f"v_mul_f32 v{EN+e}, v{EN+e}, v{sn if e < 12 else un}")
    for e in range(8):
        K(f"v_cvt_pk_bf16_f32 v{V_PHI+e}, v{EP+2*e}, v{EP+2*e+1}"); K(f"v_cvt_pk_bf16_f32 v{V_PHI+8+e}, v{EN+2*e}, v{EN+2*e+1}")
    stamp("sm_done")
    K(f"s_cmp_eq_u32 s{S_C}, 1")
    K.branch("s_cbranch_scc1 L_kvskip")
    ID = V_W
    K(f"v_and_b32 v{t0}, 31, v{V_LANE}"); K(f"v_lshrrev_b32 v{t1}, 5, v{V_LANE}"); K(f"v_lshlrev_b32 v{t1}, 2, v{t1}")
    K(f"v_sub_u32 v{t0}, v{t0}, v{t1}")
    K(f"v_and_b32 v{t1}, 1, v{V_LANE}"); K(f"v_lshlrev_b32 v{t1}, 4, v{t1}"); K(f"v_mov_b32 v{t2}, 0x3f80"); K(f"v_lshlrev_b32 v{t1}, v{t1}, v{t2}")
    K(f"v_and_b32 v{t0}, -2, v{t0}")
    for s in range(2):
        for q in range(4):
            f = 16*s + 8*(q // 2) + 2*(q % 2)
            K(f"v_cmp_eq_u32 vcc, {f}, v{t0}")
            K(f"v_cndmask_b32 v{ID+4*s+q}, 0, v{t1}, vcc")
    TP, TN = V_P, V_P + 16
    mfma(TP, V_PHI, ID, "0"); mfma(TN, V_PHI + 8, ID, "0")
    mfma(TP, V_PHI + 4, ID + 4); mfma(TN, V_PHI + 12, ID + 4)
    VB = V_W + 8
    K(f"v_mov_b32 v{t0}, 0x3f803f80")
    for e in range(8):
        K(f"v_cvt_pk_bf16_f32 v{VB+e}, v{V_ACC+16+2*e}, v{V_ACC+16+2*e+1}")
    for e in range(8):
        K(f"v_cndmask_b32 v{VB+e}, v{VB+e}, v{t0}, s[{S_L28}:{S_L28+1}]")
    for e in range(8): K(f"v_cvt_pk_bf16_f32 v{V_PHI+e}, v{TP+2*e}, v{TP+2*e+1}")
    for e in range(8): K(f"v_cvt_pk_bf16_f32 v{V_PHI+8+e}, v{TN+2*e}, v{TN+2*e+1}")
    mfma(V_ACC, V_PHI, VB, "0"); mfma(V_ACC + 16, V_PHI + 8, VB, "0")
    mfma(V_ACC, V_PHI + 4, VB + 4); mfma(V_ACC + 16, V_PHI + 12, VB + 4)
    K(f"s_lshl_b32 s{T}, s{S_TG}, 13"); K(f"v_add_u32 v{t0}, s{T}, v{V_L16}")
    for b in range(8): K(f"ds_write_b128 v{t0}, {vr(V_ACC+4*b,4)} offset:{1024*b}")
    K.label("L_kvskip")
    K(f"s_lshl_b32 s{T}, s{S_TG2}, 7"); K(f"s_add_u32 s{T}, s{T}, {L_G}")
    K(f"v_and_b32 v{t0}, 31, v{V_LANE}"); K(f"v_lshl_add_u32 v{t0}, v{t0}, 2, s{T}")
    K(f"ds_read_b32 v{V_G}, v{t0}")
    K(f"s_lshl_b32 s{T+1}, s{S_TG}, 5"); K(f"s_add_u32 s{T}, s{T}, s{T+1}")
    K(f"v_lshrrev_b32 v{t0}, 3, v{V_LANE}"); K(f"v_lshl_add_u32 v{t0}, v{t0}, 2, s{T}")
    K(f"ds_read_b32 v{V_G2}, v{t0}")
    K("s_waitcnt lgkmcnt(0)")
    K("s_barrier")
    K(f"s_lshl_b32 s{T}, s{S_W}, 10"); K(f"v_add_u32 v{t0}, s{T}, v{V_L16}")
    for g in range(4): K(f"ds_read_b128 {vr(V_W+4*g,4)}, v{t0} offset:{8192*g}")
    K(f"s_lshl_b32 s{T+1}, s{S_J}, 4"); K(f"s_add_u32 s{T+1}, s{T+1}, s{S_MT}"); K(f"s_lshl_b32 s{T+1}, s{T+1}, 13")
    K(f"s_add_u32 s{T+1}, s{T+1}, s{T}"); K(f"s_add_u32 s{T+1}, s{T+1}, {WS_KVP}")
    K(f"s_lshl_b32 s{T+2}, s{S_J}, 3"); K(f"s_add_u32 s{T+2}, s{T+2}, s{S_W}"); K(f"s_lshl_b32 s{T+2}, s{T+2}, 6"); K(f"s_add_u32 s{T+5}, s{T+2}, {WS_KVF}")
    K(f"s_lshl_b32 s{T+3}, s{S_MT}, 2"); K(f"s_add_u32 s{T+2}, s{T+5}, s{T+3}")
    K("s_waitcnt lgkmcnt(0)")
    for e in range(4): K(f"v_add_f32 v{V_W+e}, v{V_W+e}, v{V_W+4+e}"); K(f"v_add_f32 v{V_W+8+e}, v{V_W+8+e}, v{V_W+12+e}")
    for e in range(4): K(f"v_add_f32 v{V_W+e}, v{V_W+e}, v{V_W+8+e}")
    K(f"buffer_store_dwordx4 {vr(V_W,4)}, v{V_L16}, {srd(R_WS)}, s{T+1} offen sc1")
    K("s_waitcnt vmcnt(0)")
    flag(T+2)
    stamp("kv_pub")
    K("s_barrier")

    def kv_reduce_and_o(base):
        K(f"s_lshl_b32 s{T}, s{S_J}, 3"); K(f"s_add_u32 s{T}, s{T}, s{S_W}"); K(f"s_lshl_b32 s{T}, s{T}, 6"); K(f"s_add_u32 s{T}, s{T}, {WS_KVF}")
        K(f"v_and_b32 v{t1}, 15, v{V_LANE}"); K(f"v_lshl_add_u32 v{t1}, v{t1}, 2, s{T}")
        poll(t1)
        stamp("kv_seen")
        K(f"s_lshl_b32 s{T}, s{S_J}, 17"); K(f"s_lshl_b32 s{T+1}, s{S_W}, 10"); K(f"s_add_u32 s{T}, s{T}, s{T+1}"); K(f"s_add_u32 s{T}, s{T}, {WS_KVP}")
        for m in range(16):
            K(f"buffer_load_dwordx4 {vr(base+4*m,4)}, v{V_L16}, {srd(R_WS)}, s{T} offen sc1")
            if m < 15: K(f"s_add_u32 s{T}, s{T}, 8192")
        K("s_waitcnt vmcnt(0)")
        st = 8
        while st >= 1:
            for m in range(st):
                for e in range(4): K(f"v_add_f32 v{base+4*m+e}, v{base+4*m+e}, v{base+4*(m+st)+e}")
            st //= 2
        K(f"v_cvt_pk_bf16_f32 v{base}, v{base}, v{base+1}"); K(f"v_cvt_pk_bf16_f32 v{base+1}, v{base+2}, v{base+3}")
        K(f"s_lshr_b32 s{T}, s{S_W}, 1"); K(f"s_lshl_b32 s{T}, s{T}, 10"); K(f"s_and_b32 s{T+1}, s{S_W}, 1"); K(f"s_lshl_b32 s{T+1}, s{T+1}, 3")
        K(f"s_add_u32 s{T}, s{T}, s{T+1}"); K(f"s_add_u32 s{T}, s{T}, {L_KVF}")
        K(f"v_add_u32 v{t0}, s{T}, v{V_L16}")
        K(f"ds_write_b64 v{t0}, {vr(base,2)}")
        K("s_waitcnt lgkmcnt(0)")
        K("s_barrier")
        uid[0] += 1; n = uid[0]
        K(f"s_cmp_eq_u32 s{S_C}, 0")
        K.branch(f"s_cbranch_scc1 L_noo{n}")
        K(f"v_add_u32 v{t0}, {L_KVF}, v{V_L16}")
        for f in range(4): K(f"ds_read_b128 {vr(base+4*f,4)}, v{t0} offset:{1024*f}")
        K("s_waitcnt lgkmcnt(0)")
        N = base + 16
        for f in range(4): mfma(N, base + 4*f, V_PHI + 4*f, "0" if f == 0 else None)
        K(f"s_lshl_b32 s{T}, s{S_MT}, 2"); K(f"s_add_u32 s{T}, s{T}, s{S_TG}"); K(f"s_lshl_b32 s{T}, s{T}, 4"); K(f"s_add_u32 s{T}, s{T}, s{S_J}")
        K(f"s_lshl_b32 s{T+1}, s{T}, 11"); K(f"s_add_u32 s{T+1}, s{T+1}, {WS_O}")
        K(f"s_lshl_b32 s{T+2}, s{T}, 2"); K(f"s_add_u32 s{T+2}, s{T+2}, {WS_OF}")
        K(f"v_cvt_pk_bf16_f32 v{t0}, v{N+12}, v{N+12}"); K(f"v_lshlrev_b32 v{t0}, 16, v{t0}")
        K(f"v_add_f32 v{t0}, {f2u(1e-6):#x}, v{t0}")
        K(f"v_cvt_pk_bf16_f32 v{t0}, v{t0}, v{t0}"); K(f"v_lshlrev_b32 v{t0}, 16, v{t0}")
        K(f"v_rcp_f32 v{t0}, v{t0}")
        K(f"v_mov_b32 v{t1}, v{t0}")
        K(f"v_permlane32_swap_b32 v{t1}, v{t0}")
        for e in range(8): K(f"v_cvt_pk_bf16_f32 v{base+e}, v{N+2*e}, v{N+2*e+1}")
        for e in range(8):
            K(f"v_lshlrev_b32 v{N+2*e}, 16, v{base+e}"); K(f"v_and_b32 v{N+2*e+1}, 0xffff0000, v{base+e}")
        for e in range(16): K(f"v_mul_f32 v{N+e}, v{N+e}, v{t0}")
        for e in range(8): K(f"v_cvt_pk_bf16_f32 v{base+e}, v{N+2*e}, v{N+2*e+1}")
        K(f"v_cndmask_b32 v{base+6}, v{base+6}, 0, s[{S_UP}:{S_UP+1}]"); K(f"v_cndmask_b32 v{base+7}, v{base+7}, 0, s[{S_UP}:{S_UP+1}]")
        sv = K.vm
        K(f"buffer_store_dwordx4 {vr(base,4)}, v{V_L16}, {srd(R_WS)}, s{T+1} offen sc1")
        K(f"buffer_store_dwordx4 {vr(base+4,4)}, v{V_L16}, {srd(R_WS)}, s{T+1} offen offset:1024 sc1")
        K("s_waitcnt vmcnt(0)")
        flag(T+2)
        K.vm = sv
        stamp("o_pub")
        K.label(f"L_noo{n}")

    K(f"s_cmp_lt_u32 s{S_J}, 14")
    K.branch("s_cbranch_scc1 L_p2")
    sv = K.vm
    kv_reduce_and_o(V_X)
    K.vm = sv
    K.branch("s_branch L_fin")

    K.label("L_p2")
    dma_w2(2); dma_w2(3)
    tk_wob = dma_wo(1)
    K(f"s_lshl_b32 s{T+6}, s{S_MT}, 2"); K(f"s_add_u32 s{T+6}, s{T+6}, s{S_TG2}")
    K(f"s_lshl_b32 s{T}, s{T+6}, 7"); K(f"s_mul_i32 s{T+1}, s{S_TG}, 28"); K(f"s_add_u32 s{T}, s{T}, s{T+1}"); K(f"s_add_u32 s{T}, s{T}, {WS_HF}")
    K(f"v_min_u32 v{t1}, 6, v{V_LANE}"); K(f"v_lshl_add_u32 v{t1}, v{t1}, 2, s{T}")
    poll(t1)
    stamp("h_seen")
    K(f"s_mul_i32 s{T}, s{T+6}, 112"); K(f"s_add_u32 s{T}, s{T}, s{T+1}"); K(f"s_lshl_b32 s{T}, s{T}, 10"); K(f"s_add_u32 s{T}, s{T}, {WS_H}")
    tk_a = {}
    for n in range(28):
        tk_a[n] = K(f"buffer_load_dwordx4 {vr(V_X+4*n,4)}, v{V_L16}, {srd(R_WS)}, s{T} offen offset:{1024*(n%4)} sc1")
        if n % 4 == 3 and n < 27: K(f"s_add_u32 s{T}, s{T}, 4096")
    VB2 = 28
    mksrd(R_T, P_B2, 896)
    K(f"v_and_b32 v{t0}, 7, v{V_LANE}"); K(f"v_lshlrev_b32 v{t0}, 4, v{t0}"); K(f"s_lshl_b32 s{T}, s{S_CT}, 7")
    K(f"buffer_load_dwordx4 {vr(VB2,4)}, v{t0}, {srd(R_T)}, s{T} offen")
    tk_woa = None
    for r in range(7):
        u = RSLOT[r]
        if r >= 4: K.wait_vm(tk_r[r])
        K("s_barrier")
        if 1 <= r <= 3: dma_w2(r + 3)
        if r == 4: tk_woa = dma_wo(0)
        tk = {}
        def rd(ksl):
            b = V_W + 8 * (ksl % 3)
            for pp in range(2):
                for h in range(2):
                    tk[ksl] = K(f"ds_read_b64_tr_b16 {vr(b + 4*pp + 2*h, 2)}, v{V_AW + pp + (2 if u >= 2 else 0)} offset:{(u%2)*32768 + (16*ksl + 8*h)*128}")
        rd(0); rd(1)
        for ksl in range(4):
            if ksl + 2 < 4: rd(ksl + 2)
            if r <= 3: K.wait_vm(tk_a[4*r + ksl])
            K.wait_lg(tk[ksl])
            b = V_W + 8 * (ksl % 3)
            for pp in range(2): mfma(V_ACC + 16*pp, b + 4*pp, V_X + 16*r + 4*ksl, "0" if (r == 0 and ksl == 0) else None)
        if r == 3:
            stamp("p2_r3")
            kv_reduce_and_o(V_X)
    stamp("p2_h_done")
    K(f"s_lshl_b32 s{T}, s{T+6}, 6"); K(f"s_lshl_b32 s{T+1}, s{S_TG}, 4"); K(f"s_add_u32 s{T}, s{T}, s{T+1}"); K(f"s_add_u32 s{T}, s{T}, {WS_OF}")
    K(f"v_and_b32 v{t1}, 3, v{V_LANE}"); K(f"v_lshl_add_u32 v{t1}, v{t1}, 2, s{T}")
    poll(t1)
    stamp("o_seen")
    K(f"s_lshl_b32 s{T}, s{T+6}, 15"); K(f"s_lshl_b32 s{T+1}, s{S_TG}, 13"); K(f"s_add_u32 s{T}, s{T}, s{T+1}"); K(f"s_add_u32 s{T}, s{T}, {WS_O}")
    for n in range(8):
        tk_a[n] = K(f"buffer_load_dwordx4 {vr(V_X+4*n,4)}, v{V_L16}, {srd(R_WS)}, s{T} offen offset:{1024*(n%4)} sc1")
        if n == 3: K(f"s_add_u32 s{T}, s{T}, 4096")
    K(f"s_cmp_ge_u32 s{S_TG}, 2"); K(f"s_cselect_b32 s{T}, {U[4]}, 0"); K(f"s_and_b32 s{T+1}, s{S_TG}, 1"); K(f"s_mul_i32 s{T+1}, s{T+1}, 14336"); K(f"s_add_u32 s{T}, s{T}, s{T+1}")
    K(f"v_add_u32 v{V_AW}, s{T}, v{V_AX}"); K(f"v_xor_b32 v{V_AW+1}, 64, v{V_AW}")
    K(f"v_lshrrev_b32 v{t0}, 5, v{V_LANE}"); K(f"v_lshlrev_b32 v{t0}, 9, v{t0}")
    K(f"v_sub_u32 v{V_AW+2}, v{V_AW}, v{t0}"); K(f"v_sub_u32 v{V_AW+3}, v{V_AW+1}, v{t0}")
    K("s_barrier")
    tk = {}
    def rd(ks):
        b = V_W + 8 * (ks % 3); hh, s = ks // 2, ks % 2
        for pp in range(2):
            for h in range(2):
                tk[ks] = K(f"ds_read_b64_tr_b16 {vr(b + 4*pp + 2*h, 2)}, v{V_AW + pp + (2 if (s == 1 and h == 1) else 0)} offset:{(28*hh + 16*s + 8*h)*128}")
    rd(0); rd(1)
    for ks in range(8):
        if ks + 2 < 8: rd(ks + 2)
        K.wait_vm(tk_a[ks]); K.wait_lg(tk[ks])
        b = V_W + 8 * (ks % 3)
        for pp in range(2): mfma(V_P + 16*pp, b + 4*pp, V_X + 4*ks, "0" if ks == 0 else None)
    K(f"v_sub_f32 v{t0}, 1.0, v{V_G}"); K(f"v_cvt_pk_bf16_f32 v{t0}, v{t0}, v{t0}"); K(f"v_lshlrev_b32 v{t0}, 16, v{t0}")
    for e in range(32): K(f"v_mul_f32 v{V_ACC+e}, v{V_ACC+e}, v{t0}")
    for e in range(32): K(f"v_fmac_f32 v{V_ACC+e}, v{V_P+e}, v{V_G}")
    RB = 32768
    K(f"s_mul_i32 s{T}, s{S_W}, {8*RED_STRIDE}"); K(f"s_add_u32 s{T}, s{T}, {RB}"); K(f"v_add_u32 v{t0}, s{T}, v{V_L16}")
    for b in range(8): K(f"ds_write_b128 v{t0}, {vr(V_ACC+4*b,4)} offset:{RED_STRIDE*b}")
    K(f"s_mul_i32 s{T}, s{S_C}, {32*RED_STRIDE}"); K(f"s_lshl_b32 s{T+1}, s{S_TG}, 7"); K(f"s_add_u32 s{T}, s{T}, s{T+1}"); K(f"s_add_u32 s{T}, s{T}, {RB}")
    K(f"v_and_b32 v{t1}, 7, v{V_LANE}"); K(f"v_mul_u32_u24 v{t2}, {RED_STRIDE}, v{t1}"); K(f"v_lshrrev_b32 v{t3}, 3, v{V_LANE}")
    K(f"v_lshl_add_u32 v{t2}, v{t3}, 4, v{t2}"); K(f"v_add_u32 v{t2}, s{T}, v{t2}")
    K(f"v_mul_u32_u24 v{t3}, 896, v{t3}"); K(f"v_lshl_add_u32 v{t3}, v{t1}, 4, v{t3}")
    K(f"s_lshl_b32 s{T}, s{T+6}, 2"); K(f"s_add_u32 s{T}, s{T}, s{S_TG}"); K(f"s_mul_i32 s{T}, s{T}, {8*896}"); K(f"s_lshl_b32 s{T+1}, s{S_CT}, 7"); K(f"s_add_u32 s{T}, s{T}, s{T+1}")
    K(f"v_sub_f32 v{t0}, 1.0, v{V_G2}"); K(f"v_cvt_pk_bf16_f32 v{t0}, v{t0}, v{t0}"); K(f"v_lshlrev_b32 v{t0}, 16, v{t0}")
    K("s_waitcnt lgkmcnt(0)")
    K("s_barrier")
    for q in range(4):
        K(f"ds_read_b128 {vr(V_W+8*q,4)}, v{t2} offset:{8*RED_STRIDE*q}")
        K(f"ds_read_b128 {vr(V_W+8*q+4,4)}, v{t2} offset:{8*RED_STRIDE*q + 512}")
    for e in range(4):
        K(f"v_lshlrev_b32 v{V_P+2*e}, 16, v{VB2+e}"); K(f"v_and_b32 v{V_P+2*e+1}, 0xffff0000, v{VB2+e}")
    K("s_waitcnt lgkmcnt(0)")
    for e in range(8): K(f"v_add_f32 v{V_W+e}, v{V_W+e}, v{V_W+8+e}"); K(f"v_add_f32 v{V_W+16+e}, v{V_W+16+e}, v{V_W+24+e}")
    for e in range(8): K(f"v_add_f32 v{V_W+e}, v{V_W+e}, v{V_W+16+e}")
    for e in range(8): K(f"v_fmac_f32 v{V_W+e}, v{V_P+e}, v{t0}")
    for e in range(4): K(f"v_cvt_pk_bf16_f32 v{V_W+e}, v{V_W+2*e}, v{V_W+2*e+1}")
    K(f"buffer_store_dwordx4 {vr(V_W,4)}, v{t3}, {srd(R_OUT)}, s{T} offen")
    K(f"s_or_b32 s{T}, s2, s{S_W}"); K(f"s_cmp_lg_u32 s{T}, 0")
    K.branch("s_cbranch_scc1 L_fin")
    K(f"s_mov_b32 s{T}, {WS_EPOCH}")
    flag(T)
    K.label("L_fin")
    if stamps:
        K("s_waitcnt vmcnt(0)")
        stamp("end")
        K(f"s_lshl_b32 s{T}, s2, 3"); K(f"s_add_u32 s{T}, s{T}, s{S_W}"); K(f"s_lshl_b32 s{T}, s{T}, 8"); K(f"s_add_u32 s{T}, s{T}, {WS_STAMP}")
        K(f"v_lshlrev_b32 v{t0}, 2, v{V_LANE}")
        K(f"buffer_store_dword v{V_STAMP}, v{t0}, {srd(R_WS)}, s{T} offen")
    K.label("L_end")
    K("s_endpgm")

    head = f"""; Fused gated mix of hedgehog linear attention and GELU FFN (generated by a hand-written generator script)
; @launch grid=(256,1,1) block=(512,1,1) lds=163840
.amdgcn_target "amdgcn-amd-amdhsa--gfx950"
.text
.globl {NAME}
.p2align 8
.type {NAME},@function
"""
    tail = f""".section .rodata,"a"
.p2align 6
.amdhsa_kernel {NAME}
  .amdhsa_next_free_vgpr 256
  .amdhsa_next_free_sgpr 102
  .amdhsa_accum_offset 256
  .amdhsa_group_segment_fixed_size 0
  .amdhsa_kernarg_size 104
  .amdhsa_user_sgpr_count 2
  .amdhsa_user_sgpr_kernarg_segment_ptr 1
  .amdhsa_system_sgpr_workgroup_id_x 1
.end_amdhsa_kernel
"""
    return head + K.text() + tail

STAMP_IDS = {}
if __name__ == "__main__":
    out = sys.argv[1] if len(sys.argv) > 1 else "k.s"
    st = "--stamps" in sys.argv
    open(out, "w").write(gen(stamps=st))
    if st: print(STAMP_IDS)
```

```python
import sys, struct
from asmlib import Asm

NAME = "gated_mix__linear_kernel_hedgehog__dense_activation_gelu__prompt_kernel"
def f2u(x): return struct.unpack("<I", struct.pack("<f", x))[0]

WS_EPOCH = 0
WS_RPF   = 0x1000
WS_STAMP = 0x10000
WS_G     = 0xA0000
WS_WQ    = 0x100000
WS_KVP   = 0x280000
WS_O     = 0x480000
WS_H     = 0x680000
WS_HF    = 0xE00000
WS_KVF   = 0xE50000
WS_OF    = 0xE70000
WS_SIZE  = 0xF00000

U = [0, 32768, 65536, 98304, 131072]
SB = [73728, 0, 24576, 49152, 98304, 122880, 73728]
L_K, L_V, L_Q = 65536, 94208, 126976
L_MISC = 155648
L_PHI, L_CNT, L_B2, L_B1 = L_MISC, L_MISC + 2048, L_MISC + 2560, L_MISC + 3072
L_KVS = U[2]
L_KVF = L_MISC + 4096
L_WO0 = U[3]
RUNIT = [0, 1, 0, 1, 2, 0, 1]
C_E, C_0, C_1, C_2, C_3, C_4, C_W0, C_W1, C_F = 0, 4, 8, 12, 16, 20, 24, 28, 32

P_X, P_WQKV, P_PHI, P_WO, P_W1, P_B1, P_W2 = 16, 18, 20, 22, 26, 28, 30
P_B2, P_GATE, P_OUT, P_WS = 32, 34, 36, 40
R_X, R_W1, R_W2, R_WO, R_WS, R_OUT, R_T = 44, 48, 52, 56, 60, 64, 68
S_MT, S_J, S_W, S_A, S_DONE, S_TAG, S_CH, S_CNT = 72, 73, 74, 75, 76, 78, 77, 100
S_CHO = 80
S_M0 = 87
S_XB, S_W1B = 88, 89
S_T = 90
S_UP = 98
S_E = 42
S_CT, S_ROW, S_ACT = 43, 3, 101
S_K = 4
S_ST = 6
S_L28 = 24
S_FL = 8
S_HB, S_W2B, S_OB, S_HB3, S_W2B3, S_M02, S_M0W = 9, 10, 11, 12, 13, 14, 15
def srd(r): return f"s[{r}:{r+3}]"
def sp(r): return f"s[{r}:{r+1}]"

V_LANE, V_L16, V_STAMP, V_TAG, V_POLL, V_CNT = 1, 2, 3, 4, 5, 6
V_T = 8
A_AX, A_AW, A_AD, A_TR, A_G, A_PA = 14, 18, 26, 30, 31, 7
V_W, V_P, V_ACC, V_PHI, V_X = 32, 64, 96, 128, 144
M_L16B, M_AB, M_D2, M_PH, M_PO = 7, 14, 18, 22, 23
M_ACC, M_BH, M_AR = 24, 88, 152
M_XD, M_WD, M_XA, M_WA, M_PE = 112, 116, 118, 122, 240
NA = 13
def vr(a, n): return f"v[{a}:{a+n-1}]"
UPM = sp(S_UP)
L2E = 1.4426950408889634

def gen(stamps=False, spin=20000, rot1=True, rot2=True, codepf=True, slp=4, cyc=False, G=5, prioA=1, prioM=0, kvf=27, up=3, fine=False, l2pf=2, pkg=0, pkq=0, pkk=1, hf=8, LA=9, LA0=6, c0=2, w1pf=1):
    K = Asm()
    T = S_T
    TD = T + 5
    t0, t1, t2, t3, t4, t5 = range(V_T, V_T + 6)
    def stamp(name):
        if not stamps: return
        K("s_waitcnt lgkmcnt(0)")
        K(f"s_memrealtime {sp(S_ST)}")
        if cyc: K(f"s_memtime s[0:1]")
        K("s_waitcnt lgkmcnt(0)")
        i = STAMP_IDS.setdefault(name, len(STAMP_IDS))
        K(f"v_writelane_b32 v{V_STAMP}, s{S_ST}, {i}")
        if cyc: K(f"v_writelane_b32 v{V_STAMP}, s0, {32 + i}")
    def stamp0(name):
        if stamps and fine:
            K(f"s_mov_b32 s{S_CNT}, s{S_ST}"); stamp(name); K(f"s_mov_b32 s{S_ST}, s{S_CNT}")
    uid = [0]
    def newl(p): uid[0] += 1; return f"L_{p}{uid[0]}"
    def poll_issue(vaddr):
        return K(f"buffer_load_dword v{V_POLL}, v{vaddr}, {srd(R_WS)}, 0 offen sc1")
    def poll_check(tok, vaddr):
        l, d = newl("poll"), newl("polld")
        K(f"s_mov_b32 s{S_CNT}, {spin}")
        K.wait_vm(tok)
        K.label(l)
        K(f"v_cmp_ne_u32 vcc, s{S_TAG}, v{V_POLL}")
        K.branch(f"s_cbranch_vccz {d}")
        K(f"s_sub_u32 s{S_CNT}, s{S_CNT}, 1")
        K.branch(f"s_cbranch_scc1 {d}")
        K(f"s_sleep {slp}")
        K(f"buffer_load_dword v{V_POLL}, v{vaddr}, {srd(R_WS)}, 0 offen sc1"); K.vm -= 1
        K("s_waitcnt vmcnt(0)")
        K.branch(f"s_branch {l}")
        K.label(d)
    def flag(soff_reg):
        K("s_mov_b64 exec, 1")
        K(f"buffer_store_dword v{V_TAG}, v{V_LANE}, {srd(R_WS)}, s{soff_reg} offen sc1")
        K("s_mov_b64 exec, -1")
    def arrive(c):
        K(f"v_mov_b32 v{t5}, 1")
        K("s_mov_b64 exec, 1")
        K(f"ds_add_u32 v{V_CNT}, v{t5} offset:{c}")
        K("s_mov_b64 exec, -1")
    def await_(c, n):
        l, d = newl("aw"), newl("awd")
        K(f"s_mov_b32 s{S_CNT}, {spin * 8}")
        K.label(l)
        K(f"ds_read_b32 v{t5}, v{V_CNT} offset:{c}")
        K("s_waitcnt lgkmcnt(0)")
        K(f"v_cmp_ne_u32 vcc, {n}, v{t5}")
        K.branch(f"s_cbranch_vccz {d}")
        K(f"s_sub_u32 s{S_CNT}, s{S_CNT}, 1")
        K.branch(f"s_cbranch_scc0 {l}")
        K.label(d)
    def mksrd(r, p, nbytes):
        K(f"s_mov_b32 s{r}, s{p}"); K(f"s_and_b32 s{r+1}, s{p+1}, 0xffff")
        K(f"s_mov_b32 s{r+2}, {nbytes}"); K(f"s_mov_b32 s{r+3}, 0x20000")
    def mfma(d, a, b, c=None):
        cs = vr(d, 16) if c is None else c
        K(f"v_mfma_f32_32x32x16_bf16 {vr(d,16)}, {vr(a,4)}, {vr(b,4)}, {cs}")
    def padd(d, a, b, pk):
        if pk: K(f"v_pk_add_f32 {vr(d,2)}, {vr(a,2)}, {vr(b,2)}")
        else: K(f"v_add_f32 v{d}, v{a}, v{b}"); K(f"v_add_f32 v{d+1}, v{a+1}, v{b+1}")
    def pscale(d, r, pk):
        if pk: K(f"v_pk_mul_f32 {vr(d,2)}, {vr(d,2)}, {vr(r & ~1,2)} " + ("op_sel:[0,1] op_sel_hi:[1,1]" if r & 1 else "op_sel_hi:[1,0]"))
        else: K(f"v_mul_f32 v{d}, v{d}, v{r}"); K(f"v_mul_f32 v{d+1}, v{d+1}, v{r}")
    def rotseq():
        for t in range(7):
            K(f"s_lshl_b32 s{S_CHO+t}, s{S_CH}, 12")
            if t < 6:
                K(f"s_add_u32 s{S_CH}, s{S_CH}, 1"); K(f"s_cmp_eq_u32 s{S_CH}, 7"); K(f"s_cselect_b32 s{S_CH}, 0, s{S_CH}")
    def settag():
        K(f"s_add_u32 s{S_TAG}, s{S_E}, 0x9E3779B9"); K(f"s_mov_b32 s{S_TAG+1}, s{S_TAG}"); K(f"v_mov_b32 v{V_TAG}, s{S_TAG}")
    def xfrag_addr(dst):
        K(f"v_and_b32 v{t0}, 31, v{V_LANE}"); K(f"v_lshrrev_b32 v{t2}, 5, v{V_LANE}"); K(f"v_bfe_u32 v{t3}, v{V_LANE}, 1, 3")
        K(f"v_xor_b32 v{t3}, v{t2}, v{t3}"); K(f"s_lshl_b32 s{T}, s{S_A}, 12"); K(f"v_lshlrev_b32 v{t0}, 7, v{t0}")
        K(f"v_lshl_add_u32 v{t0}, v{t3}, 4, v{t0}"); K(f"v_add_u32 v{dst}, s{T}, v{t0}")
        for k in range(1, 4): K(f"v_xor_b32 v{dst+k}, {32*k}, v{dst}")
    def lanepart():
        K(f"v_bfe_u32 v{t4}, v{V_LANE}, 4, 1"); K(f"v_lshlrev_b32 v{t4}, 5, v{t4}")
        K(f"v_and_b32 v{t3}, 3, v{V_LANE}"); K(f"v_lshl_add_u32 v{t4}, v{t3}, 3, v{t4}")
        K(f"v_bfe_u32 v{t3}, v{V_LANE}, 2, 2"); K(f"v_lshrrev_b32 v{t2}, 5, v{V_LANE}")
    def p2ids():
        K(f"s_and_b32 s{T}, s2, 7"); K(f"s_lshr_b32 s{T+1}, s2, 3")
        K(f"s_mul_i32 s{T+2}, s{T+1}, 37"); K(f"s_lshr_b32 s{T+2}, s{T+2}, 8"); K(f"s_mul_i32 s{T+3}, s{T+2}, 7"); K(f"s_sub_u32 s{S_CT}, s{T+1}, s{T+3}")
        K(f"s_lshl_b32 s{T+2}, s{T+2}, 1"); K(f"s_lshl_b32 s{T+3}, s{T}, 3"); K(f"s_add_u32 s{S_ROW}, s{T+2}, s{T+3}")
        K(f"s_cmp_lt_u32 s{T+1}, 28"); K(f"s_cselect_b32 s{S_ACT}, 1, 0")
    pend = []
    def drip(n):
        for _ in range(n):
            if pend: pend.pop(0)()
    def run(steps):
        for f in steps: f()

    K.raw(f"{NAME}:")
    K("s_cmp_ge_u32 s2, 256"); K("s_cbranch_scc1 L_end")
    K("s_load_dwordx16 s[16:31], s[0:1], 0"); K("s_load_dwordx8 s[32:39], s[0:1], 64"); K("s_load_dwordx2 s[40:41], s[0:1], 96")
    if stamps:
        K(f"s_memrealtime {sp(S_ST)}")
        K(f"v_mov_b32 v{V_STAMP}, 0")
    K(f"v_lshrrev_b32 v{t0}, 6, v0"); K(f"v_and_b32 v{V_LANE}, 63, v0")
    K(f"v_readfirstlane_b32 s{S_W}, v{t0}")
    K(f"v_lshlrev_b32 v{V_L16}, 4, v{V_LANE}")
    K(f"s_and_b32 s{T}, s2, 7"); K(f"s_lshr_b32 s{T+1}, s2, 3")
    if codepf:
        K(f"s_lshr_b32 s{T+2}, s2, 5"); K(f"s_lshl_b32 s{T+2}, s{T+2}, 3"); K(f"s_or_b32 s{T+2}, s{T+2}, s{S_W}"); K(f"s_cmp_lg_u32 s{T+2}, 7")
        K("s_cbranch_scc1 L_nopf")
        K(f"s_getpc_b64 {sp(T+2)}")
        K.raw("L_pc:")
        K(f"s_lshl_b32 s{T+4}, s{T+1}, 7"); K(f"s_sub_u32 s{T+2}, s{T+2}, L_pc - {NAME}"); K(f"s_subb_u32 s{T+3}, s{T+3}, 0")
        K(f"s_add_u32 s{T+2}, s{T+2}, s{T+4}"); K(f"s_addc_u32 s{T+3}, s{T+3}, 0")
        K(f"v_lshlrev_b32 v{t0}, 9, v{V_LANE}")
        K("s_mov_b32 exec_hi, 0xffffff")
        K(f"global_load_dword v0, v{t0}, {sp(T+2)}"); K.vm -= 1
        K("s_mov_b32 exec_hi, -1")
        K.label("L_nopf")
    K(f"s_and_b32 s{T+2}, s{T}, 2"); K(f"s_lshl_b32 s{T+2}, s{T+2}, 1")
    K(f"s_and_b32 s{T+3}, s{T}, 1"); K(f"s_cmp_lt_u32 s{T+1}, 4"); K(f"s_cselect_b32 s{T+4}, 14, 12"); K(f"s_add_u32 s{T+3}, s{T+3}, s{T+4}")
    K(f"s_lshr_b32 s{T+4}, s{T+1}, 3"); K(f"s_lshl_b32 s{S_J}, s{T+4}, 2"); K(f"s_and_b32 s{S_MT}, s{T}, 3"); K(f"s_add_u32 s{S_J}, s{S_J}, s{S_MT}"); K(f"s_sub_u32 s{S_J}, s{S_J}, 4")
    K(f"s_cmp_lt_u32 s{T+1}, 8"); K(f"s_cselect_b32 s{S_J}, s{T+3}, s{S_J}"); K(f"s_cselect_b32 s{T+2}, s{T+2}, 0")
    K(f"s_and_b32 s{T+3}, s{T+1}, 7"); K(f"s_xor_b32 s{T+3}, s{T+3}, s{T+2}")
    K(f"s_and_b32 s{S_MT}, s{T}, 4"); K(f"s_lshl_b32 s{S_MT}, s{S_MT}, 1"); K(f"s_add_u32 s{S_MT}, s{S_MT}, s{T+3}")
    K(f"s_and_b32 s{S_A}, s{S_W}, 3")
    K(f"s_lshl_b32 s{S_W1B}, s{S_J}, 8")
    K(f"s_lshl_b32 s{T+4}, s{T+4}, 1"); K(f"s_add_u32 s{T+2}, s{T+3}, s{T+4}")
    K(f"s_cmp_ge_u32 s{T+2}, 7"); K(f"s_cselect_b32 s{T+3}, 7, 0"); K(f"s_sub_u32 s{S_CH}, s{T+2}, s{T+3}")
    if not rot1: K(f"s_mov_b32 s{S_CH}, 0")
    K(f"s_cmp_lt_u32 s{S_J}, 14")
    K.branch("s_cbranch_scc1 L_norp")
    K(f"s_cmp_eq_u32 s{S_W}, 7")
    K.branch("s_cbranch_scc1 L_rp7")
    K0 = S_XB
    K(f"s_lshl_b32 s{K0}, s{S_MT}, 1"); K(f"s_add_u32 s{K0}, s{K0}, s{S_J}"); K(f"s_sub_u32 s{K0}, s{K0}, 14")
    K(f"s_mul_i32 s{K0}, s{K0}, 14"); K(f"s_lshl_b32 s{T+5}, s{S_W}, 1"); K(f"s_add_u32 s{K0}, s{K0}, s{T+5}")
    K(f"v_lshrrev_b32 v{t0}, 3, v{V_LANE}"); K(f"v_bfe_u32 v{t1}, v{V_LANE}, 2, 1"); K(f"v_and_b32 v{t2}, 3, v{V_LANE}")
    K(f"v_mul_u32_u24 v{t3}, 56, v{t0}"); K(f"v_mul_u32_u24 v{t4}, 2688, v{t1}"); K(f"v_add_u32 v{t3}, v{t3}, v{t4}")
    K(f"v_lshl_add_u32 v{t3}, v{t2}, 4, v{t3}")
    K(f"s_mul_i32 s{T+5}, s{K0}, 2688")
    K("s_waitcnt lgkmcnt(0)")
    mksrd(R_T, P_WQKV, 448*2688)
    RB = 96
    stamp0("rp_karg")
    for q in range(6): K(f"buffer_load_dwordx4 {vr(RB+4*q,4)}, v{t3}, {srd(R_T)}, s{T+5} offen offset:{448*q}")
    mksrd(R_T, P_GATE, 896)
    K(f"v_lshlrev_b32 v{t4}, 1, v{t1}"); K(f"s_lshl_b32 s{T+5}, s{K0}, 1")
    K(f"buffer_load_ushort v{RB+24}, v{t4}, {srd(R_T)}, s{T+5} offen")
    K(f"s_mov_b32 s{T+5}, 86016"); K(f"v_mul_lo_u32 v{RB+25}, v{t0}, s{T+5}"); K(f"v_and_b32 v{t1}, 7, v{V_LANE}")
    K(f"v_lshl_add_u32 v{RB+25}, v{t1}, 4, v{RB+25}")
    K(f"v_cmp_eq_u32 vcc, 3, v{t2}")
    mksrd(R_WS, P_WS, WS_SIZE)
    K(f"s_lshl_b32 s{T+5}, s{K0}, 6"); K(f"s_add_u32 s{T+5}, s{T+5}, {WS_WQ}")
    for q in (2, 3, 4, 5, 0, 1):
        p, hg = q // 2, q % 2; b = RB + 4*q
        K(f"s_waitcnt vmcnt({[4, 5, 4, 4, 4, 4][q]})")
        K(f"v_cndmask_b32 v{b+2}, v{b+2}, v{RB+24}, vcc" if p == 0 else f"v_cndmask_b32 v{b+2}, v{b+2}, 0, vcc")
        K(f"v_cndmask_b32 v{b+3}, v{b+3}, 0, vcc")
        K(f"s_add_u32 s{T+6}, s{T+5}, {p*28672 + hg*8*86016}")
        K(f"buffer_store_dwordx4 {vr(b,4)}, v{RB+25}, {srd(R_WS)}, s{T+6} offen sc1")
    stamp0("rp_st")
    K(f"s_cmp_lt_u32 s{S_W}, 4")
    K.branch("s_cbranch_scc1 L_norp")
    K("s_waitcnt vmcnt(0)")
    K("s_barrier")
    K.branch("s_branch L_norp")
    K.label("L_rp7")
    K("s_waitcnt lgkmcnt(0)")
    K(f"s_load_dword s{S_E}, {sp(P_WS)}, {WS_EPOCH}")
    mksrd(R_WS, P_WS, WS_SIZE)
    K(f"s_lshl_b32 s{T+5}, s{S_MT}, 1"); K(f"s_add_u32 s{T+5}, s{T+5}, s{S_J}"); K(f"s_sub_u32 s{T+5}, s{T+5}, 14")
    K(f"s_lshl_b32 s{S_FL}, s{T+5}, 7"); K(f"s_add_u32 s{S_FL}, s{S_FL}, {WS_RPF}")
    for e in range(4): K(f"v_mov_b32 v{96+e}, 0")
    K(f"s_lshl_b32 s{T+5}, s{T+5}, 12"); K(f"s_add_u32 s{T+5}, s{T+5}, {WS_KVP}")
    for q in range(4): K(f"buffer_store_dwordx4 v[96:99], v{V_L16}, {srd(R_WS)}, s{T+5} offen offset:{1024*q} sc1")
    K("s_waitcnt vmcnt(0) lgkmcnt(0)")
    settag()
    K("s_barrier")
    flag(S_FL)
    if stamps:
        K(f"v_writelane_b32 v{V_STAMP}, s{S_ST}, {STAMP_IDS.setdefault('start', len(STAMP_IDS))}")
        K(f"s_mov_b32 s{T+5}, s{S_ST}")
        stamp("rp_pub")
        K(f"s_mov_b32 s{S_ST}, s{T+5}")
    K.label("L_norp")
    rotseq()
    K(f"s_cmp_ge_u32 s{S_W}, 4")
    K.branch("s_cbranch_scc1 L_T")

    def bias_dma():
        mksrd(R_T, P_B1, 3584)
        K(f"s_lshl_b32 s{T+1}, s{S_A}, 6"); K(f"s_add_u32 s{T}, s{S_W1B}, s{T+1}"); K(f"s_add_u32 m0, s{T+1}, {L_B1}")
        K("s_mov_b64 exec, 15")
        K(f"buffer_load_dwordx4 v{V_L16}, {srd(R_T)}, s{T} offen lds")
        K("s_mov_b64 exec, -1")
    def bias_read(tmp, c):
        K(f"v_lshrrev_b32 v{t0}, 5, v{V_LANE}"); K(f"v_lshlrev_b32 v{t0}, 3, v{t0}"); K(f"v_add_u32 v{t0}, {L_B1 + 128*c}, v{t0}")
        for q in range(4): tk = K(f"ds_read2_b64 {vr(tmp+4*q,4)}, v{t0} offset0:{4*q} offset1:{4*q+2}")
        return tk
    def bias_unpack(acc, tmp):
        for q in range(16):
            K(f"v_lshlrev_b32 v{acc+2*q}, 16, v{tmp+q}"); K(f"v_and_b32 v{acc+2*q+1}, 0xffff0000, v{tmp+q}")
    def w1frag_addr(dst, base):
        K(f"v_lshl_add_u32 v{t0}, v{t2}, 3, v{t3}"); K(f"v_lshl_add_u32 v{t0}, v{t0}, 7, v{t4}"); K(f"v_bfe_u32 v{t1}, v{V_LANE}, 3, 1"); K(f"v_lshl_add_u32 v{t0}, v{t1}, 6, v{t0}")
        K(f"v_add_u32 v{dst}, {base}, v{t0}"); K(f"v_xor_b32 v{dst+1}, 64, v{dst}")
    def shift(regs, d):
        for r in regs:
            if d > 0: K(f"v_add_u32 v{r}, {d}, v{r}")
            elif d < 0: K(f"v_subrev_u32 v{r}, {-d}, v{r}")
    def gelu(acc, tmp, out, c, pk, dr):
        c0 = -2.0 * 0.7978845608028654 * 1.4426950408889634
        K(f"v_mov_b32 v{t0}, {f2u(c0):#x}"); K(f"s_mov_b32 s{S_K}, {f2u(c0*0.044715):#x}"); K(f"s_mov_b32 s{S_K+1}, {f2u(c0*0.044715):#x}")
        if pk: K(f"v_mov_b32 v{t1}, 1.0")
        K(f"s_lshl_b32 s{T}, s{S_MT}, 2"); K(f"s_add_u32 s{T}, s{T}, s{S_A}"); K(f"s_mul_i32 s{T+7}, s{T}, 112")
        K(f"s_lshl_b32 s{T+1}, s{S_J}, 3"); K(f"s_add_u32 s{T+7}, s{T+7}, s{T+1}"); K(f"s_lshl_b32 s{T+7}, s{T+7}, 10"); K(f"s_add_u32 s{T+7}, s{T+7}, {WS_H + 4096*c}")
        K(f"s_lshl_b32 s{S_FL}, s{T}, 4"); K(f"s_add_u32 s{S_FL}, s{S_FL}, s{S_J}"); K(f"s_lshl_b32 s{S_FL}, s{S_FL}, 8"); K(f"s_add_u32 s{S_FL}, s{S_FL}, {WS_HF + 128*c}")
        for g in range(4):
            a = acc + 8*g; tt = tmp + 8*(g % 2); o = out + 4*g
            if pk:
                for e in range(0, 8, 2): K(f"v_pk_mul_f32 {vr(tt+e,2)}, {vr(a+e,2)}, {vr(a+e,2)}")
                for e in range(0, 8, 2): K(f"v_pk_fma_f32 {vr(tt+e,2)}, {vr(tt+e,2)}, {sp(S_K)}, {vr(t0,2)} op_sel_hi:[1,1,0]")
                drip(1)
                for e in range(0, 8, 2): K(f"v_pk_mul_f32 {vr(tt+e,2)}, {vr(a+e,2)}, {vr(tt+e,2)}")
            else:
                for e in range(8): K(f"v_mul_f32 v{tt+e}, v{a+e}, v{a+e}")
                if dr > 4: drip(1)
                for e in range(8): K(f"v_fma_f32 v{tt+e}, v{tt+e}, s{S_K}, v{t0}")
                drip(1)
                for e in range(8): K(f"v_mul_f32 v{tt+e}, v{a+e}, v{tt+e}")
            for e in range(8):
                K(f"v_exp_f32 v{tt+e}, v{tt+e}")
                if e == 3: drip(1)
            if pk:
                for e in range(0, 8, 2): K(f"v_pk_add_f32 {vr(tt+e,2)}, {vr(tt+e,2)}, {vr(t0,2)} op_sel:[0,1] op_sel_hi:[1,1]")
            else:
                for e in range(8): K(f"v_add_f32 v{tt+e}, 1.0, v{tt+e}")
            drip(1)
            for e in range(8): K(f"v_rcp_f32 v{tt+e}, v{tt+e}")
            drip(1)
            if pk:
                for e in range(0, 8, 2): K(f"v_pk_mul_f32 {vr(tt+e,2)}, {vr(a+e,2)}, {vr(tt+e,2)}")
            else:
                for e in range(8): K(f"v_mul_f32 v{tt+e}, v{a+e}, v{tt+e}")
            if dr > 5: drip(1)
            for e in range(4): K(f"v_cvt_pk_bf16_f32 v{o+e}, v{tt+2*e}, v{tt+2*e+1}")
            tk = K(f"buffer_store_dwordx4 {vr(o,4)}, v{V_L16}, {srd(R_WS)}, s{T+7} offen offset:{1024*g} sc1")
        drip(99)
        return tk
    def l2_prefetch():
        mksrd(R_W2, P_W2, 1792*896); mksrd(R_WO, P_WO, 448*896)
        K(f"s_lshr_b32 s{T+2}, s2, 3"); K(f"s_lshl_b32 s{T+2}, s{T+2}, 2"); K(f"s_add_u32 s{T+2}, s{T+2}, s{S_A}")
        K(f"v_lshlrev_b32 v{t2}, 7, v{V_LANE}")
        K(f"s_mul_i32 s{T+3}, s{T+2}, {98*128}"); K(f"s_mul_i32 s{T+4}, s{T+2}, {25*128}")
        K(f"buffer_load_dword v0, v{t2}, {srd(R_W2)}, s{T+3} offen")
        K(f"s_add_u32 s{T+3}, s{T+3}, {64*128}")
        K("s_mov_b32 exec_hi, 3")
        K(f"buffer_load_dword v0, v{t2}, {srd(R_W2)}, s{T+3} offen")
        K("s_mov_b64 exec, 0x1ffffff")
        K(f"buffer_load_dword v0, v{t2}, {srd(R_WO)}, s{T+4} offen")
        K("s_mov_b64 exec, -1")

    if prioM: K(f"s_setprio {prioM}")
    K(f"s_lshl_b32 s{S_M0}, s{S_A}, 12")
    K(f"s_mul_i32 s{S_XB}, s{S_MT}, {128*896}")
    K(f"v_lshrrev_b32 v{t0}, 3, v{V_LANE}"); K(f"v_and_b32 v{t1}, 7, v{V_LANE}"); K(f"v_lshrrev_b32 v{t2}, 1, v{t0}"); K(f"v_xor_b32 v{t2}, v{t1}, v{t2}")
    K(f"s_lshl_b32 s{T+2}, s{S_A}, 5"); K(f"v_add_u32 v{t3}, s{T+2}, v{t0}"); K(f"v_mul_u32_u24 v{t3}, 896, v{t3}")
    K(f"v_lshl_add_u32 v{M_XD}, v{t2}, 4, v{t3}"); K(f"v_xor_b32 v{t2}, 4, v{t2}"); K(f"v_lshl_add_u32 v{M_XD+1}, v{t2}, 4, v{t3}")
    K(f"v_add_u32 v{M_XD+1}, {8*896-1024}, v{M_XD+1}")
    K(f"v_add_u32 v{M_XD+2}, {16*896-2048}, v{M_XD}"); K(f"v_add_u32 v{M_XD+3}, {16*896-2048}, v{M_XD+1}")
    K(f"v_bfe_u32 v{t2}, v{V_LANE}, 4, 1"); K(f"v_lshlrev_b32 v{t2}, 2, v{t2}"); K(f"v_xor_b32 v{t2}, v{t1}, v{t2}")
    K(f"s_lshl_b32 s{T+2}, s{S_A}, 4"); K(f"v_add_u32 v{t3}, s{T+2}, v{t0}"); K(f"v_mul_u32_u24 v{t3}, 3584, v{t3}")
    K(f"v_lshl_add_u32 v{M_WD}, v{t2}, 4, v{t3}"); K(f"v_add_u32 v{M_WD+1}, {8*3584-1024}, v{M_WD}")
    K(f"s_lshl_b32 s{S_M0W}, s{S_A}, 11")
    K("s_waitcnt lgkmcnt(0)")
    if stamps: K(f"v_writelane_b32 v{V_STAMP}, s{S_ST}, {STAMP_IDS.setdefault('start', len(STAMP_IDS))}")
    mksrd(R_X, P_X, 2048*896); mksrd(R_W1, P_W1, 448*3584)
    K(f"s_cmp_lt_u32 s{S_J}, 14"); K(f"s_cselect_b32 s{R_W1+2}, s{R_W1+2}, 0")
    tk_stage = {}; tkw = {}
    def g_w1(t, c, lds, tkd):
        def f0():
            K(f"s_mul_i32 s{TD}, s{S_CHO+t}, 56"); K(f"s_add_u32 s{TD}, s{TD}, s{S_W1B}")
            if c: K(f"s_add_u32 s{TD}, s{TD}, 128")
            K(f"s_add_u32 m0, s{S_M0W}, {lds}")
            K(f"buffer_load_dwordx4 v{M_WD}, {srd(R_W1)}, s{TD} offen lds")
        def f1(): tkd[t] = K(f"buffer_load_dwordx4 v{M_WD+1}, {srd(R_W1)}, s{TD} offen offset:1024 lds")
        return [f0, f1]
    def g_stage(t):
        def step(q):
            def f():
                if q == 0: K(f"s_lshr_b32 s{TD}, s{S_CHO+t}, 5"); K(f"s_add_u32 s{TD}, s{TD}, s{S_XB}"); K(f"s_add_u32 m0, s{S_M0}, {SB[t]}")
                K(f"buffer_load_dwordx4 v{M_XD+q}, {srd(R_X)}, s{TD} offen offset:{1024*q} lds")
            return f
        return [step(q) for q in range(4)] + g_w1(t, 0, SB[t] + 16384, tk_stage)
    ilist = []
    for t in range(7): ilist += [(f, 2 if t == 6 else -1) for f in g_stage(t)]
    for c in range(7): ilist += [(f, 3 + c // 3) for f in g_w1(c, 1, 8192*c, tkw)]
    pos = [0]
    def issue_to(n, lastbar):
        while pos[0] < min(n, len(ilist)):
            f, need = ilist[pos[0]]
            assert need <= lastbar, (pos[0], need, lastbar)
            f(); pos[0] += 1
    if fine: stamp("P_karg")
    vm0 = K.vm
    issue_to(4, -1)
    bias_dma()
    issue_to(6, -1)
    if w1pf:
        K(f"s_lshl_b32 s{T}, s{S_A}, 4"); K(f"v_add_u32 v{t0}, s{T}, v{V_LANE}"); K(f"v_mul_u32_u24 v{t0}, 3584, v{t0}")
        K("s_mov_b64 exec, 0xffff")
        K(f"buffer_load_dword v{V_POLL}, v{t0}, {srd(R_W1)}, s{TD} offen offset:128")
        K("s_mov_b64 exec, -1")
    issue_to(12, -1)
    K(f"s_cmp_lt_u32 s{S_J}, 14")
    K.branch("s_cbranch_scc1 L_norb")
    K.wait_vm(vm0)
    K("s_barrier")
    K.label("L_norb")
    if fine: stamp("P_i1")
    K(f"s_load_dword s{S_E}, {sp(P_WS)}, {WS_EPOCH}")
    mksrd(R_WS, P_WS, WS_SIZE); mksrd(R_W2, P_W2, 1792*896); mksrd(R_WO, P_WO, 448*896); mksrd(R_OUT, P_OUT, 2048*896)
    p2ids()
    K(f"s_cselect_b32 s{R_W2+2}, s{R_W2+2}, 0")
    mksrd(R_T, P_B2, 896)
    K(f"s_lshl_b32 s{T}, s{S_CT}, 7"); K(f"s_lshl_b32 s{T+1}, s{S_A}, 10"); K(f"s_add_u32 s{T}, s{T}, s{T+1}")
    K(f"s_lshl_b32 s{T+1}, s{S_A}, 7"); K(f"s_add_u32 m0, s{T+1}, {L_B2}")
    K("s_mov_b64 exec, 0xff")
    K(f"buffer_load_dwordx4 v{V_L16}, {srd(R_T)}, s{T} offen lds")
    K("s_mov_b64 exec, -1")
    K(f"v_mov_b32 v{V_CNT}, {L_CNT}")
    K(f"v_add_u32 v{M_L16B}, {112*1024}, v{V_L16}")
    K(f"s_and_b32 s{T+2}, s{S_A}, 1"); K(f"s_mul_i32 s{T+3}, s{S_A}, 7"); K(f"s_add_u32 s{T+4}, s{T+3}, s{T+2}")
    K(f"s_cmp_eq_u32 s{T+2}, 0"); K(f"s_cselect_b32 s{T+2}, 6, 0"); K(f"s_add_u32 s{T+2}, s{T+2}, s{T+3}")
    K(f"s_lshl_b32 s{T}, s{S_CT}, 7")
    K(f"s_mul_i32 s{S_W2B}, s{T+4}, {64*896}"); K(f"s_add_u32 s{S_W2B}, s{S_W2B}, s{T}")
    K(f"s_mul_i32 s{S_W2B3}, s{T+2}, {64*896}"); K(f"s_add_u32 s{S_W2B3}, s{S_W2B3}, s{T}")
    K(f"s_mul_i32 s{T}, s{S_ROW}, {112*1024}"); K(f"s_add_u32 s{T}, s{T}, {WS_H}")
    K(f"s_lshl_b32 s{S_HB}, s{T+4}, 12"); K(f"s_add_u32 s{S_HB}, s{S_HB}, s{T}")
    K(f"s_lshl_b32 s{S_HB3}, s{T+2}, 12"); K(f"s_add_u32 s{S_HB3}, s{S_HB3}, s{T}")
    K(f"s_lshl_b32 s{S_M02}, s{S_A}, 13")
    K(f"v_bfe_u32 v{t0}, v{V_LANE}, 3, 1"); K(f"v_and_b32 v{t1}, 7, v{V_LANE}"); K(f"v_lshlrev_b32 v{t0}, 12, v{t0}")
    K(f"s_lshl_b32 s{T}, s{S_ROW}, 12"); K(f"s_add_u32 s{T}, s{T}, {WS_HF}"); K(f"v_add_u32 v{t0}, s{T}, v{t0}")
    K(f"v_min_u32 v{t2}, 6, v{t1}"); K(f"v_add_u32 v{t2}, s{T+3}, v{t2}"); K(f"v_lshl_add_u32 v{M_PH}, v{t2}, 7, v{t0}")
    K(f"v_min_u32 v{t2}, 2, v{t1}"); K(f"v_lshl_add_u32 v{t2}, v{t2}, 1, s{T+4}"); K(f"v_lshl_add_u32 v{M_WA+2}, v{t2}, 7, v{t0}")
    K(f"v_bfe_u32 v{t0}, v{V_LANE}, 2, 1"); K(f"v_and_b32 v{t1}, 3, v{V_LANE}"); K(f"v_lshl_add_u32 v{t0}, v{t0}, 4, v{t1}"); K(f"v_lshlrev_b32 v{t0}, 7, v{t0}")
    K(f"s_lshl_b32 s{T}, s{S_ROW}, 4"); K(f"s_lshl_b32 s{T+1}, s{S_A}, 2"); K(f"s_add_u32 s{S_OB}, s{T+1}, s{T}")
    K(f"s_lshl_b32 s{T+1}, s{S_OB}, 7"); K(f"s_add_u32 s{T+1}, s{T+1}, {WS_OF}"); K(f"v_add_u32 v{M_PO}, s{T+1}, v{t0}")
    K(f"v_lshrrev_b32 v{t0}, 3, v{V_LANE}"); K(f"v_and_b32 v{t1}, 7, v{V_LANE}")
    K(f"v_bfe_u32 v{t2}, v{V_LANE}, 4, 1"); K(f"v_lshlrev_b32 v{t2}, 2, v{t2}"); K(f"v_xor_b32 v{t1}, v{t1}, v{t2}")
    K(f"v_mul_u32_u24 v{t0}, 896, v{t0}"); K(f"v_lshl_add_u32 v{M_D2}, v{t1}, 4, v{t0}")
    for q in range(1, 4): K(f"v_add_u32 v{M_D2+q}, {q*(8*896-1024)}, v{M_D2}")
    xfrag_addr(M_XA)
    lanepart()
    w1frag_addr(M_WA, 0)
    AB = M_AB
    K(f"v_lshl_add_u32 v{t0}, v{t2}, 2, v{t3}"); K(f"v_lshl_add_u32 v{t0}, v{t0}, 7, v{t4}"); K(f"v_bfe_u32 v{t1}, v{V_LANE}, 3, 1"); K(f"v_lshl_add_u32 v0, v{t1}, 6, v{t0}")
    K(f"v_add_u32 v{AB}, s{S_M02}, v0"); K(f"v_xor_b32 v{AB+1}, 64, v{AB}")
    K(f"v_add_u32 v{AB+2}, 65536, v{AB}"); K(f"v_add_u32 v{AB+3}, 65536, v{AB+1}")
    F_ACC, F_W, F_T, F_O = 24, 56, 80, 96
    K("s_waitcnt lgkmcnt(0)")
    settag()
    if fine: stamp("P_setup")
    for t in range(7):
        issue_to(6*(t+1) + (LA0 if t == 0 else LA), t - 1)
        shift(range(M_XA, M_XA + 4), SB[t] - (SB[t-1] if t else 0))
        if fine: stamp(f"P{t}a")
        K.wait_vm(tk_stage[t])
        if t >= 2: K("s_waitcnt lgkmcnt(4)")
        if fine: stamp(f"P{t}b")
        K("s_barrier")
        if t == 6: stamp("P_b6")
        for ksl in range(4): K(f"ds_read_b128 {vr(V_X + 16*t + 4*ksl, 4)}, v{M_XA+ksl}")
    arrive(C_E)
    issue_to(99, 6)
    K(f"s_cmp_ge_u32 s{S_J}, 14")
    K.branch("s_cbranch_scc1 L_rp")
    tkb = bias_read(F_T, 1); K.wait_lg(tkb); bias_unpack(F_ACC, F_T)
    K.wait_vm(tkw[2])
    arrive(C_W0); await_(C_W0, 4)
    stamp("pass2_start")
    tk = {}
    def rd2(ks):
        if ks == 12: await_(C_W1, 4)
        b = F_W + 8 * (ks % 3)
        for pp in range(2):
            for r in range(2):
                tk[ks] = K(f"ds_read_b64_tr_b16 {vr(b + 4*pp + 2*r, 2)}, v{M_WA+pp} offset:{(16*ks + 4*r)*128}")
    rd2(0); rd2(1); rd2(2)
    for ks in range(28):
        K.wait_lg(tk[ks])
        b = F_W + 8 * (ks % 3)
        for pp in range(2): mfma(F_ACC + 16*pp, b + 4*pp, V_X + 4*ks)
        if ks == 6: K.wait_vm(tkw[6]); arrive(C_W1)
        if ks + 3 < 28: rd2(ks + 3)
        if ks == 25: arrive(C_F)
    stamp("pass2")
    tk_r = {}
    def g_w2(r):
        def step(q):
            def f():
                if q % 4 == 0:
                    K(f"s_add_u32 s{TD}, s{S_W2B3 if r == 3 else S_W2B}, {(0 if r == 3 else (2*r % 7)*64*896) + (q // 4)*32*896}")
                    K(f"s_add_u32 m0, s{S_M02}, {U[RUNIT[r]] + (q // 4)*4096}")
                tk_r[r] = K(f"buffer_load_dwordx4 v{M_D2+q%4}, {srd(R_W2)}, s{TD} offen offset:{1024*(q%4)} lds")
            return f
        return [step(q) for q in range(8)]
    def g_wo(hf):
        def step(q):
            def f():
                if q == 0:
                    K(f"s_mul_i32 s{TD}, s{S_A}, {112*896}"); K(f"s_lshl_b32 s{TD+1}, s{S_CT}, 7"); K(f"s_add_u32 s{TD}, s{TD}, s{TD+1}")
                    if hf: K(f"s_add_u32 s{TD}, s{TD}, {56*896}"); K(f"s_add_u32 s{TD+1}, s{S_M02}, {U[2]}")
                    else: K(f"s_mul_i32 s{TD+1}, s{S_A}, 7168"); K(f"s_add_u32 s{TD+1}, s{TD+1}, {L_WO0}")
                    K(f"s_mov_b32 m0, s{TD+1}")
                if q == 4: K(f"s_add_u32 s{TD}, s{TD}, {32*896}"); K(f"s_add_u32 m0, s{TD+1}, 4096")
                tk_r[7+hf] = K(f"buffer_load_dwordx4 v{M_D2+q%4}, {srd(R_WO)}, s{TD} offen offset:{1024*(q%4)} lds")
            return f
        return [step(q) for q in range(7)]
    await_(C_F, 4)
    pend.extend(g_w2(0) + g_w2(1))
    K(f"v_mov_b32 v{M_PE}, v{M_WA+2}")
    gelu(F_ACC, F_T, F_O, 1, pkg, 5)
    assert not pend
    stamp("gelu1")
    age_r1 = K.vm - tk_r[1]
    K(f"s_cmp_eq_u32 s{S_ACT}, 1")
    K.branch("s_cbranch_scc1 L_p2")
    K("s_waitcnt vmcnt(0)")
    flag(S_FL)
    K.branch("s_branch L_fin")

    K.label("L_rp")
    K(f"s_lshl_b32 s{T}, s{S_MT}, 2"); K(f"s_add_u32 s{T}, s{T}, s{S_A}")
    K(f"s_lshl_b32 s{S_FL}, s{T}, 4"); K(f"s_add_u32 s{S_FL}, s{S_FL}, s{S_J}"); K(f"s_lshl_b32 s{S_FL}, s{S_FL}, 8"); K(f"s_add_u32 s{S_FL}, s{S_FL}, {WS_HF + 128}")
    K("s_waitcnt vmcnt(0)")
    arrive(C_F); await_(C_F, 4)
    K(f"v_mov_b32 v{M_PE}, v{M_WA+2}")
    run(g_w2(0) + g_w2(1))
    K("s_waitcnt vmcnt(0)")

    K.label("L_p2")
    tk_h = K.vm
    K(f"s_waitcnt vmcnt({age_r1})")
    tk = {}
    def rdb(ks):
        r, ksl = ks // 4, ks % 4
        b = M_BH + 8 * (ks % 8)
        if ksl == 0 and r >= 2: K.wait_vm(tk_r[r])
        if ks == 28:
            K(f"s_mul_i32 s{T}, s{S_A}, 7168"); K(f"s_add_u32 s{T}, s{T}, {L_WO0}")
        if ks == 32: K(f"s_add_u32 s{T}, s{S_M02}, {U[2]}")
        if ks in (28, 32):
            K(f"v_add_u32 v{AB}, s{T}, v0"); K(f"v_xor_b32 v{AB+1}, 64, v{AB}")
            K(f"v_lshrrev_b32 v{t0}, 5, v{V_LANE}"); K(f"v_lshlrev_b32 v{t0}, 9, v{t0}")
            K(f"v_sub_u32 v{AB+2}, v{AB}, v{t0}"); K(f"v_sub_u32 v{AB+3}, v{AB+1}, v{t0}")
        for pp in range(2):
            for h in range(2):
                if r < 7:
                    u = RUNIT[r]
                    tk[ks] = K(f"ds_read_b64_tr_b16 {vr(b + 4*pp + 2*h, 2)}, v{AB + pp + (2 if u >= 2 else 0)} offset:{(u%2)*32768 + (16*ksl + 8*h)*128}")
                else:
                    hh, sx = (ks % 4) // 2, ks % 2
                    tk[ks] = K(f"ds_read_b64_tr_b16 {vr(b + 4*pp + 2*h, 2)}, v{AB + pp + (2 if (sx == 1 and h == 1) else 0)} offset:{(28*hh + 16*sx + 8*h)*128}")
    K(f"v_lshrrev_b32 v{t2}, 5, v{V_LANE}"); K(f"s_lshl_b32 s{T}, s{S_A}, 7"); K(f"s_add_u32 s{T}, s{T}, {L_B2}"); K(f"v_lshl_add_u32 v{t0}, v{t2}, 3, s{T}")
    B2T = M_AR
    for ks in range(4):
        rdb(ks)
        if ks == 2: K.wait_lg(tk[1])
    K.wait_lg(tk[2])
    for q in range(8): K(f"ds_read_b64 {vr(B2T+2*q,2)}, v{t0} offset:{16*q}")
    K.wait_lg(tk[3])
    g2, g3 = g_w2(2), g_w2(3)
    for q in range(8):
        g2[q]()
        if q < 4:
            if q >= 1: K.wait_lg(K.lg - 8)
            rdb(4 + q)
    K("s_waitcnt lgkmcnt(0)")
    for q in range(8):
        g3[q]()
        for e in (2*q, 2*q + 1):
            for t2_ in range(2):
                K(f"v_lshlrev_b32 v{M_ACC+32*t2_+2*e}, 16, v{B2T+e}")
                K(f"v_and_b32 v{M_ACC+32*t2_+2*e+1}, 0xffff0000, v{B2T+e}")
        if q == 1:
            K.wait_vm(tk_h)
            flag(S_FL)
            stamp("h_pub1")
            tkp = poll_issue(M_PE)
    stamp("p2_prep")
    poll_check(tkp, M_PE)
    stamp("hE_seen")
    tk_a = {}
    def lda(ks):
        b = M_AR + 8 * (ks % NA); r = ks // 4
        if ks % 4 == 0: K(f"s_add_u32 s{T+7}, s{S_HB3 if r == 3 else S_HB}, {0 if r == 3 else (2*r % 7)*4096}")
        K(f"buffer_load_dwordx4 {vr(b,4)}, v{V_L16}, {srd(R_WS)}, s{T+7} offen offset:{1024*(ks%4)} sc1")
        tk_a[ks] = K(f"buffer_load_dwordx4 {vr(b+4,4)}, v{M_L16B}, {srd(R_WS)}, s{T+7} offen offset:{1024*(ks%4)} sc1")
    for ks in range(12):
        lda(ks)
        if ks == 7: tkp = poll_issue(M_PH)
    stamp("h_issued")
    def step(ks):
        K.wait_vm(tk_a[ks])
        if ks >= 8: K.wait_lg(tk[ks])
        a = M_AR + 8 * (ks % NA); b = M_BH + 8 * (ks % 8)
        for t2_ in range(2):
            for pp in range(2): mfma(M_ACC + 32*t2_ + 16*pp, b + 4*pp, a + 4*t2_)
    nxt = 12
    for ks in range(28):
        step(ks)
        if ks == c0:
            poll_check(tkp, M_PH)
            stamp("hL_seen")
        if ks == 3:
            await_(C_3, 4)
            pend.extend(g_w2(4) + g_wo(0))
        if ks == 11: pend.extend(g_w2(5))
        if ks == 15: pend.extend(g_w2(6))
        if ks == 19: pend.extend(g_wo(1))
        if ks + 3 >= 8: rdb(ks + 3)
        while ks >= c0 and nxt <= ks + NA and nxt < 28: lda(nxt); nxt += 1
        drip(2)
        if ks == 24: tkp = poll_issue(M_PO)
        if ks == 3: stamp("p2_k3")
        if ks == 15: stamp("p2_k15")
    assert not pend
    stamp("p2_h_done")
    K(f"v_and_b32 v{t2}, 31, v{V_LANE}"); K(f"v_lshlrev_b32 v{t2}, 2, v{t2}")
    K(f"s_lshl_b32 s{T+3}, s{S_OB}, 7"); K(f"s_add_u32 s{T+3}, s{T+3}, {WS_G}")
    K(f"s_lshl_b32 s{T+4}, s{S_OB}, 11"); K(f"s_add_u32 s{T+4}, s{T+4}, {WS_O}")
    K(f"v_add_u32 v{M_L16B}, 32768, v{V_L16}")
    poll_check(tkp, M_PO)
    stamp("o_seen")
    K(f"buffer_load_dword v{t4}, v{t2}, {srd(R_WS)}, s{T+3} offen sc1")
    tk_g = K(f"buffer_load_dword v{t5}, v{t2}, {srd(R_WS)}, s{T+3} offen offset:2048 sc1")
    for ks in range(28, 36):
        b = M_AR + 8 * (ks % NA)
        if ks == 32: K(f"s_add_u32 s{T+4}, s{T+4}, 4096")
        K(f"buffer_load_dwordx4 {vr(b,4)}, v{V_L16}, {srd(R_WS)}, s{T+4} offen offset:{1024*(ks%4)} sc1")
        tk_a[ks] = K(f"buffer_load_dwordx4 {vr(b+4,4)}, v{M_L16B}, {srd(R_WS)}, s{T+4} offen offset:{1024*(ks%4)} sc1")
    K.wait_vm(tk_g)
    K(f"v_sub_f32 v{t4}, 1.0, v{t4}"); K(f"v_sub_f32 v{t5}, 1.0, v{t5}")
    K(f"v_cvt_pk_bf16_f32 v{t4}, v{t4}, v{t5}"); K(f"v_and_b32 v{t5}, 0xffff0000, v{t4}"); K(f"v_lshlrev_b32 v{t4}, 16, v{t4}")
    for e in range(0, 64, 2):
        K(f"v_pk_mul_f32 {vr(M_ACC+e,2)}, {vr(M_ACC+e,2)}, {vr(t4,2)} " + ("op_sel_hi:[1,0]" if e < 32 else "op_sel:[0,1] op_sel_hi:[1,1]"))
    for ks in range(28, 36):
        step(ks)
        if ks + 3 < 36: rdb(ks + 3)
    K(f"v_add_u32 v{M_D2}, s{S_M02}, v{V_L16}")
    for q in range(1, 4): K(f"v_xor_b32 v{M_D2+q}, {64*q}, v{M_D2}")
    for t2_ in range(2):
        for b in range(8): K(f"ds_write_b128 v{M_D2 + b%4}, {vr(M_ACC+32*t2_+4*b,4)} offset:{32768*t2_ + 1024*b}")
    stamp("p2_done")

    K.branch("s_branch L_red")

    K.label("L_T")
    if prioA: K(f"s_setprio {prioA}")
    K("s_waitcnt lgkmcnt(0)")
    if stamps: K(f"v_writelane_b32 v{V_STAMP}, s{S_ST}, {STAMP_IDS.setdefault('start', len(STAMP_IDS))}")
    K(f"s_load_dword s{S_E}, {sp(P_WS)}, {WS_EPOCH}")
    if l2pf == 2:
        l = newl("mpf")
        K(f"s_cmp_lg_u32 s{S_W}, 6")
        K.branch(f"s_cbranch_scc1 {l}")
        mksrd(R_W2, P_W2, 1792*896); mksrd(R_WO, P_WO, 448*896)
        K(f"v_lshlrev_b32 v{t2}, 7, v{V_LANE}")
        K(f"s_mul_i32 s{T+3}, s2, {49*128}"); K(f"s_mul_i32 s{T+4}, s2, {13*128}")
        K("s_mov_b32 exec_hi, 0x1ffff")
        K(f"buffer_load_dword v0, v{t2}, {srd(R_W2)}, s{T+3} offen"); K.vm -= 1
        K("s_mov_b64 exec, 0x1fff")
        K(f"buffer_load_dword v0, v{t2}, {srd(R_WO)}, s{T+4} offen"); K.vm -= 1
        K("s_mov_b64 exec, -1")
        K.label(l)
    l = newl("phi")
    K(f"s_cmp_ge_u32 s{S_A}, 2")
    K.branch(f"s_cbranch_scc1 {l}")
    mksrd(R_T, P_PHI, 16*1568)
    K(f"s_mul_i32 s{T}, s{S_J}, 1568"); K(f"s_lshl_b32 s{T+1}, s{S_A}, 10"); K(f"s_add_u32 s{T}, s{T}, s{T+1}")
    K(f"s_add_u32 m0, s{T+1}, {L_PHI}")
    K(f"s_cmp_eq_u32 s{S_A}, 0"); K(f"s_cselect_b32 exec_hi, -1, 3")
    K(f"buffer_load_dwordx4 v{V_L16}, {srd(R_T)}, s{T} offen lds"); K.vm -= 1
    K("s_mov_b64 exec, -1")
    K.label(l)
    mksrd(R_WS, P_WS, WS_SIZE); mksrd(R_OUT, P_OUT, 2048*896)
    p2ids()
    K(f"s_mov_b32 s{S_UP}, 0"); K(f"s_mov_b32 s{S_UP+1}, -1")
    K(f"s_mov_b32 s{S_L28}, 0x10000000"); K(f"s_mov_b32 s{S_L28+1}, 0x10000000")
    K(f"s_mov_b32 s{S_DONE}, 0")
    K(f"v_mov_b32 v{V_CNT}, {L_CNT}")
    K(f"v_mov_b32 v{t0}, 0"); K(f"v_lshl_add_u32 v{t1}, v{V_LANE}, 2, v{V_CNT}"); K(f"ds_write_b32 v{t1}, v{t0}")
    xfrag_addr(A_AX)
    lanepart()
    K(f"v_lshl_add_u32 v{t0}, v{t2}, 3, v{t3}"); K(f"v_lshl_add_u32 v{A_TR}, v{t0}, 6, v{t4}")
    w1frag_addr(A_AW, 16384)
    K(f"s_lshl_b32 s{T}, s{S_A}, 10"); K(f"s_add_u32 s{T}, s{T}, {WS_RPF}")
    K(f"v_and_b32 v{A_PA}, 7, v{V_LANE}"); K(f"v_lshl_add_u32 v{A_PA}, v{A_PA}, 7, s{T}")
    K("s_waitcnt lgkmcnt(0)")
    settag()
    if fine: stamp("T_rdy")
    tkx = {}
    def g_panel(p, lds):
        def step(q):
            def f():
                if q == 0:
                    K(f"s_mul_i32 s{TD}, s{S_J}, {3*28672}"); K(f"s_mul_i32 s{TD+1}, s{S_A}, 7168"); K(f"s_add_u32 s{TD}, s{TD}, s{TD+1}")
                    K(f"s_add_u32 s{TD}, s{TD}, {WS_WQ + p*28672}"); K(f"s_add_u32 m0, s{TD+1}, {lds}")
                if q == 4: K(f"s_add_u32 s{TD}, s{TD}, 4096"); K(f"s_add_u32 m0, s{TD+1}, {lds + 4096}")
                tkx[p] = K(f"buffer_load_dwordx4 v{V_L16}, {srd(R_WS)}, s{TD} offen offset:{1024*(q%4)} sc1 lds")
            return f
        return [step(q) for q in range(7)]
    tk = {}
    def rd1(ks):
        t, ksl = ks // 4, ks % 4
        if ksl == 0:
            shift(range(A_AX, A_AX + 6), SB[t] - (SB[t-1] if t else 0))
            K("s_barrier")
            if t in (0, 4): stamp(f"T_b{t}")
        b = V_W + 8 * (ks % 3)
        K(f"ds_read_b128 {vr(V_X + 4*ks, 4)}, v{A_AX+ksl}")
        for pp in range(2):
            for r in range(2):
                tk[ks] = K(f"ds_read_b64_tr_b16 {vr(b + 4*pp + 2*r, 2)}, v{A_AW+pp} offset:{(16*ksl + 4*r)*128}")
    rd1(0); tkb = bias_read(V_P, 0); rd1(1)
    K.wait_lg(tkb); rd1(2); bias_unpack(V_ACC, V_P)
    for ks in range(28):
        K.wait_lg(tk[ks])
        b = V_W + 8 * (ks % 3)
        for pp in range(2): mfma(V_ACC + 16*pp, b + 4*pp, V_X + 4*ks)
        if ks + 3 < 28: rd1(ks + 3)
        if ks == 21: tkp = poll_issue(A_PA)
        if ks == 25: arrive(C_E)
    stamp("pass1")
    await_(C_E, 8)
    poll_check(tkp, A_PA)
    stamp("rp_seen")
    l, l2 = newl("nog"), newl("gj")
    K(f"s_cmp_ge_u32 s{S_J}, 14")
    K.branch(f"s_cbranch_scc1 {l}")
    sv = K.vm
    pend.extend(g_panel(1, L_K) + g_panel(2, L_V) + g_panel(0, L_Q))
    drip(4)
    gelu(V_ACC, V_P, V_PHI, 0, False, 5)
    if l2pf == 1: l2_prefetch()
    stamp("gelu0")
    K.wait_vm(tkx[2])
    K.branch(f"s_branch {l2}")
    K.label(l)
    K.vm = sv
    run(g_panel(1, L_K) + g_panel(2, L_V) + g_panel(0, L_Q))
    if l2pf == 1: l2_prefetch()
    K.wait_vm(tkx[2])
    K.label(l2)
    K(f"s_mov_b32 s{S_K}, {f2u(L2E):#x}"); K(f"s_mov_b32 s{S_K+1}, {f2u(L2E):#x}")
    arrive(C_0)
    VPH = V_W + 24
    lanepart()
    K(f"v_lshl_add_u32 v{t0}, v{t2}, 2, v{t3}"); K(f"v_mul_u32_u24 v{t1}, 56, v{t0}"); K(f"v_add_u32 v{t1}, v{t1}, v{t4}"); K(f"v_add_u32 v{A_AW+1}, {L_PHI}, v{t1}")
    await_(C_0, 4)
    stamp("kv_start")

    def gemm_qkv(panels, hook=None):
        nb = len(panels) * 4
        D = 3 if len(panels) == 2 else 6
        tk = {}
        for n, (off, acc, sw) in enumerate(panels): K(f"v_add_u32 v{A_AX+n}, {off}, v{A_TR}")
        def rd(ks):
            t, ksl = ks // 4, ks % 4
            b = V_W + nb * (ks % D)
            for n, (off, acc, sw) in enumerate(panels):
                if ksl == 0: K(f"v_add_u32 v{A_AD + n}, s{S_CHO+t}, v{A_AX+n}")
                for r in range(2):
                    tk[ks] = K(f"ds_read_b64_tr_b16 {vr(b + 4*n + 2*r, 2)}, v{A_AD + n} offset:{(16*ksl + 4*r)*64}")
        for k in range(D): rd(k)
        for ks in range(28):
            K.wait_lg(tk[ks])
            b = V_W + nb * (ks % D)
            for n, (off, acc, sw) in enumerate(panels):
                wv, xv = b + 4*n, V_X + 4*ks
                if sw: mfma(acc, xv, wv, "0" if ks == 0 else None)
                else: mfma(acc, wv, xv, "0" if ks == 0 else None)
            if ks + D < 28: rd(ks + D)
            if hook: hook(ks)
    QP = V_W
    P = V_ACC
    def featmap():
        for e in range(8): K(f"v_cvt_pk_bf16_f32 v{QP+e}, v{V_ACC+2*e}, v{V_ACC+2*e+1}")
        mfma(P, VPH, QP, "0"); mfma(P, VPH + 4, QP + 4)
    def softmax(pk):
        for e in range(4): K(f"v_cndmask_b32 v{P+12+e}, v{P+12+e}, v{P}, {UPM}")
        mx, mn = t0, t2
        K(f"v_max3_f32 v{mx}, v{P}, v{P+1}, v{P+2}"); K(f"v_min3_f32 v{mn}, v{P}, v{P+1}, v{P+2}")
        K(f"v_max3_f32 v{t1}, v{P+3}, v{P+4}, v{P+5}"); K(f"v_min3_f32 v{t3}, v{P+3}, v{P+4}, v{P+5}")
        for e in range(6, 14, 4):
            K(f"v_max3_f32 v{mx}, v{mx}, v{P+e}, v{P+e+1}"); K(f"v_min3_f32 v{mn}, v{mn}, v{P+e}, v{P+e+1}")
            K(f"v_max3_f32 v{t1}, v{t1}, v{P+e+2}, v{P+e+3}"); K(f"v_min3_f32 v{t3}, v{t3}, v{P+e+2}, v{P+e+3}")
        K(f"v_max3_f32 v{mx}, v{mx}, v{P+14}, v{P+15}"); K(f"v_min3_f32 v{mn}, v{mn}, v{P+14}, v{P+15}")
        K(f"v_max_f32 v{mx}, v{mx}, v{t1}"); K(f"v_min_f32 v{mn}, v{mn}, v{t3}")
        K(f"v_mov_b32 v{t1}, v{mx}"); K(f"v_mov_b32 v{t3}, v{mn}")
        K(f"v_permlane32_swap_b32 v{mx}, v{t1}"); K(f"v_permlane32_swap_b32 v{mn}, v{t3}")
        K(f"v_max_f32 v{mx}, v{mx}, v{t1}"); K(f"v_min_f32 v{mn}, v{mn}, v{t3}")
        K(f"v_mul_f32 v{mx}, s{S_K}, v{mx}"); K(f"v_mul_f32 v{mn}, s{S_K}, v{mn}")
        EP, EN = V_P, V_P + 16
        for e in range(0, 16, 2):
            if pk:
                K(f"v_pk_fma_f32 {vr(EP+e,2)}, {vr(P+e,2)}, {sp(S_K)}, {vr(mx,2)} op_sel_hi:[1,1,0] neg_lo:[0,0,1] neg_hi:[0,0,1]")
                K(f"v_pk_fma_f32 {vr(EN+e,2)}, {vr(P+e,2)}, {sp(S_K)}, {vr(mn,2)} op_sel_hi:[1,1,0] neg_lo:[1,0,0] neg_hi:[1,0,0]")
            else:
                for x in (e, e + 1):
                    K(f"v_fma_f32 v{EP+x}, v{P+x}, s{S_K}, -v{mx}"); K(f"v_fma_f32 v{EN+x}, -v{P+x}, s{S_K}, v{mn}")
        for e in range(16):
            K(f"v_exp_f32 v{EP+e}, v{EP+e}"); K(f"v_exp_f32 v{EN+e}, v{EN+e}")
        S = V_W
        for n, E in enumerate((EP, EN)):
            padd(S+4*n, E, E+2, pk); padd(S+4*n+2, E+12, E+14, pk)
        for n, E in enumerate((EP, EN)):
            padd(S+4*n, S+4*n, E+4, pk)
            K(f"v_cndmask_b32 v{S+4*n+2}, v{S+4*n+2}, 0, {UPM}"); K(f"v_cndmask_b32 v{S+4*n+3}, v{S+4*n+3}, 0, {UPM}")
        for n, E in enumerate((EP, EN)):
            padd(S+4*n, S+4*n, E+6, pk); padd(S+4*n+2, S+4*n+2, E+8, pk)
        for n, E in enumerate((EP, EN)): padd(S+4*n, S+4*n, E+10, pk)
        for n in range(2): padd(S+4*n, S+4*n, S+4*n+2, pk)
        K(f"v_add_f32 v{t0}, v{S}, v{S+1}"); K(f"v_add_f32 v{t2}, v{S+4}, v{S+5}")
        K(f"v_mov_b32 v{t1}, v{t0}"); K(f"v_mov_b32 v{t3}, v{t2}")
        K(f"v_permlane32_swap_b32 v{t0}, v{t1}"); K(f"v_permlane32_swap_b32 v{t2}, v{t3}")
        K(f"v_add_f32 v{t0}, v{t0}, v{t1}"); K(f"v_add_f32 v{t2}, v{t2}, v{t3}")
        K(f"v_rcp_f32 v{t0}, v{t0}"); K(f"v_rcp_f32 v{t2}, v{t2}")
        K(f"v_cndmask_b32 v{t1}, v{t0}, 0, {UPM}"); K(f"v_cndmask_b32 v{t3}, v{t2}, 0, {UPM}")
        for e in range(0, 16, 2):
            pscale(EP+e, t0 if e < 12 else t1, pk); pscale(EN+e, t2 if e < 12 else t3, pk)
        for e in range(8):
            K(f"v_cvt_pk_bf16_f32 v{V_PHI+e}, v{EP+2*e}, v{EP+2*e+1}"); K(f"v_cvt_pk_bf16_f32 v{V_PHI+8+e}, v{EN+2*e}, v{EN+2*e+1}")

    def hook(ks):
        if ks == 25:
            for s in range(2):
                for r in range(2): K(f"ds_read_b64_tr_b16 {vr(VPH + 4*s + 2*r, 2)}, v{A_AW+1} offset:{(16*s + 8*r)*56}")
        if ks == hf:
            K("s_waitcnt vmcnt(0)")
            l = newl("nhf")
            K(f"s_cmp_ge_u32 s{S_J}, 14")
            K(f"s_cbranch_scc1 {l}")
            flag(S_FL); K.vm -= 1
            stamp("h_pub0")
            K.raw(f"{l}:")
    gemm_qkv([(L_K, V_ACC, False), (L_V, V_ACC + 16, True)], hook)
    K("s_waitcnt lgkmcnt(0)")
    K(f"v_cndmask_b32 v{VPH+6}, v{VPH+6}, 0, {UPM}"); K(f"v_cndmask_b32 v{VPH+7}, v{VPH+7}, 0, {UPM}")
    featmap()
    arrive(C_1)
    stamp("kv_gemm")
    ID, VB = V_W + 8, V_W + 16
    K(f"v_and_b32 v{t0}, 31, v{V_LANE}"); K(f"v_lshrrev_b32 v{t1}, 5, v{V_LANE}"); K(f"v_lshlrev_b32 v{t1}, 2, v{t1}")
    K(f"v_sub_u32 v{t0}, v{t0}, v{t1}")
    K(f"v_and_b32 v{t1}, 1, v{V_LANE}"); K(f"v_lshlrev_b32 v{t1}, 4, v{t1}"); K(f"v_mov_b32 v{t2}, 0x3f80"); K(f"v_lshlrev_b32 v{t1}, v{t1}, v{t2}")
    K(f"v_and_b32 v{t0}, -2, v{t0}")
    for s in range(2):
        for q in range(4): K(f"v_cmp_eq_u32 {sp(T+2*q)}, {16*s + 8*(q // 2) + 2*(q % 2)}, v{t0}")
        for q in range(4): K(f"v_cndmask_b32 v{ID+4*s+q}, 0, v{t1}, {sp(T+2*q)}")
    softmax(pkk)
    stamp("sm_k")
    TP, TN = V_P, V_P + 16
    mfma(TP, V_PHI, ID, "0"); mfma(TN, V_PHI + 8, ID, "0")
    mfma(TP, V_PHI + 4, ID + 4); mfma(TN, V_PHI + 12, ID + 4)
    K(f"v_mov_b32 v{t0}, 0x3f803f80")
    for e in range(8): K(f"v_cvt_pk_bf16_f32 v{VB+e}, v{V_ACC+16+2*e}, v{V_ACC+16+2*e+1}")
    for e in range(8): K(f"v_cndmask_b32 v{VB+e}, v{VB+e}, v{t0}, {sp(S_L28)}")
    for e in range(8): K(f"v_cvt_pk_bf16_f32 v{V_PHI+e}, v{TP+2*e}, v{TP+2*e+1}")
    mfma(V_ACC, V_PHI, VB, "0"); mfma(V_ACC, V_PHI + 4, VB + 4)
    for e in range(8): K(f"v_cvt_pk_bf16_f32 v{V_PHI+8+e}, v{TN+2*e}, v{TN+2*e+1}")
    mfma(V_ACC + 16, V_PHI + 8, VB, "0"); mfma(V_ACC + 16, V_PHI + 12, VB + 4)
    await_(C_1, 4)
    K(f"s_lshl_b32 s{T}, s{S_A}, 13"); K(f"s_add_u32 s{T}, s{T}, {L_KVS}"); K(f"v_add_u32 v{t0}, s{T}, v{V_L16}")
    for b in range(8): K(f"ds_write_b128 v{t0}, {vr(V_ACC+4*b,4)} offset:{1024*b}")
    arrive(C_2)
    K(f"s_lshl_b32 s{T}, s{S_A}, 11"); K(f"s_add_u32 s{T+1}, s{T}, {L_KVS}"); K(f"v_add_u32 v{t0}, s{T+1}, v{V_L16}")
    K(f"s_lshl_b32 s{T+1}, s{S_J}, 13"); K(f"s_add_u32 s{S_HB}, s{T+1}, s{T}"); K(f"s_add_u32 s{S_HB}, s{S_HB}, {WS_KVP}")
    K(f"v_lshlrev_b32 v{A_AW}, 2, v{V_LANE}")
    K(f"s_lshl_b32 s{T+2}, s{S_J}, 2"); K(f"s_add_u32 s{T+2}, s{T+2}, s{S_A}"); K(f"s_lshl_b32 s{T+2}, s{T+2}, 11"); K(f"s_add_u32 s{T+2}, s{T+2}, {WS_KVF}")
    K(f"v_and_b32 v{A_PA}, 15, v{V_LANE}"); K(f"v_lshl_add_u32 v{A_PA}, v{A_PA}, 7, s{T+2}")
    K(f"s_lshl_b32 s{T+3}, s{S_MT}, 7"); K(f"s_add_u32 s{S_FL}, s{T+2}, s{T+3}")
    await_(C_2, 4)
    for hb in range(2):
        for g in range(4): K(f"ds_read_b128 {vr(V_P+16*hb+4*g,4)}, v{t0} offset:{8192*g + 1024*hb}")
    arrive(C_3)
    for hb in range(2):
        K(f"s_waitcnt lgkmcnt({5 - 4*hb})")
        B = V_P + 16*hb
        for e in (0, 2): padd(B+e, B+e, B+4+e, pkq); padd(B+8+e, B+8+e, B+12+e, pkq)
        for e in (0, 2): padd(B+e, B+e, B+8+e, pkq)
        for e in range(4): K(f"buffer_atomic_add_f32 v{B+e}, v{A_AW}, {srd(R_WS)}, s{S_HB} offen offset:{1024*hb + 256*e}")
    stamp("kv_st")
    def hook(ks):
        if ks == kvf:
            K("s_waitcnt vmcnt(0)")
            flag(S_FL)
            stamp("kv_pub")
    gemm_qkv([(L_Q, V_ACC, False)], hook)
    K(f"v_cvt_pk_bf16_f32 v{t0}, v{V_ACC+12}, v{V_ACC+12}")
    featmap()
    tkp = poll_issue(A_PA)
    K(f"v_lshlrev_b32 v{t0}, 16, v{t0}")
    K(f"v_mul_f32 v{t0}, s{S_K}, v{t0}"); K(f"v_exp_f32 v{t0}, -v{t0}"); K(f"v_add_f32 v{t0}, 1.0, v{t0}"); K(f"v_rcp_f32 v{t0}, v{t0}")
    K(f"v_cvt_pk_bf16_f32 v{t0}, v{t0}, v{t0}"); K(f"v_lshlrev_b32 v{A_G}, 16, v{t0}")
    K(f"s_lshl_b32 s{T}, s{S_MT}, 2"); K(f"s_add_u32 s{T}, s{T}, s{S_A}"); K(f"s_lshl_b32 s{T}, s{T}, 4"); K(f"s_add_u32 s{T}, s{T}, s{S_J}")
    K(f"s_lshl_b32 s{S_OB}, s{T}, 11"); K(f"s_add_u32 s{S_OB}, s{S_OB}, {WS_O}")
    K(f"s_lshl_b32 s{T+2}, s{T}, 7"); K(f"s_add_u32 s{S_FL}, s{T+2}, {WS_OF}"); K(f"s_add_u32 s{T+3}, s{T+2}, {WS_G - 128}")
    K(f"v_lshlrev_b32 v{t1}, 2, v{V_LANE}")
    K("s_mov_b32 exec_lo, 0")
    K(f"buffer_store_dword v{A_G}, v{t1}, {srd(R_WS)}, s{T+3} offen sc1")
    K("s_mov_b32 exec_lo, -1")
    stamp("q_gemm")
    softmax(pkq)
    stamp("sm_q")
    poll_check(tkp, A_PA)
    stamp("kv_seen")
    for e in range(8): K(f"buffer_load_dword v{V_P+e}, v{A_AW}, {srd(R_WS)}, s{S_HB} offen offset:{256*e} sc1")
    K("s_waitcnt vmcnt(0)")
    stamp("kv_landed")
    F = V_W
    for e in range(4): K(f"v_cvt_pk_bf16_f32 v{F+e}, v{V_P+2*e}, v{V_P+2*e+1}")
    K(f"s_lshl_b32 s{T}, s{S_A}, 10"); K(f"v_add_u32 v{t1}, {L_KVF}, v{V_L16}"); K(f"v_add_u32 v{t0}, s{T}, v{t1}")
    K(f"ds_write_b128 v{t0}, {vr(F,4)}")
    arrive(C_4)
    await_(C_4, 4)
    for f in range(4): K(f"ds_read_b128 {vr(F+4*f,4)}, v{t1} offset:{1024*f}")
    N = V_ACC
    for f in range(4):
        K(f"s_waitcnt lgkmcnt({3-f})")
        mfma(N, F + 4*f, V_PHI + 4*f, "0" if f == 0 else None)
    K(f"v_cvt_pk_bf16_f32 v{t0}, v{N+12}, v{N+12}")
    for e in range(8): K(f"v_cvt_pk_bf16_f32 v{F+e}, v{N+2*e}, v{N+2*e+1}")
    K(f"v_lshlrev_b32 v{t0}, 16, v{t0}")
    K(f"v_add_f32 v{t0}, {f2u(1e-6):#x}, v{t0}")
    K(f"v_cvt_pk_bf16_f32 v{t0}, v{t0}, v{t0}"); K(f"v_lshlrev_b32 v{t0}, 16, v{t0}")
    K(f"v_rcp_f32 v{t0}, v{t0}")
    for e in range(4):
        K(f"v_lshlrev_b32 v{N+2*e}, 16, v{F+e}"); K(f"v_and_b32 v{N+2*e+1}, 0xffff0000, v{F+e}")
    K(f"v_mul_f32 v{t0}, v{t0}, v{A_G}"); K(f"v_mov_b32 v{t1}, v{t0}")
    for e in range(4, 8):
        K(f"v_lshlrev_b32 v{N+2*e}, 16, v{F+e}"); K(f"v_and_b32 v{N+2*e+1}, 0xffff0000, v{F+e}")
    K(f"v_permlane32_swap_b32 v{t1}, v{t0}")
    for e in range(0, 16, 2): pscale(N+e, t0, pkq)
    for e in range(8): K(f"v_cvt_pk_bf16_f32 v{F+e}, v{N+2*e}, v{N+2*e+1}")
    K(f"v_cndmask_b32 v{F+6}, v{F+6}, 0, {UPM}"); K(f"v_cndmask_b32 v{F+7}, v{F+7}, 0, {UPM}")
    K(f"buffer_store_dwordx4 {vr(F,4)}, v{V_L16}, {srd(R_WS)}, s{S_OB} offen sc1")
    K(f"buffer_store_dwordx4 {vr(F+4,4)}, v{V_L16}, {srd(R_WS)}, s{S_OB} offen offset:1024 sc1")
    K("s_waitcnt vmcnt(0)")
    flag(S_FL)
    stamp("o_pub")
    K(f"s_cmp_eq_u32 s{S_ACT}, 0")
    K.branch("s_cbranch_scc1 L_fin")

    K.label("L_red")
    K(f"v_and_b32 v{t1}, 7, v{V_LANE}"); K(f"v_lshrrev_b32 v{t3}, 3, v{V_LANE}")
    K(f"s_lshl_b32 s{T+1}, s{S_A}, 3"); K(f"v_add_u32 v{t0}, s{T+1}, v{t3}")
    K(f"v_and_b32 v{t2}, 3, v{V_LANE}"); K(f"v_lshlrev_b32 v{t2}, 2, v{t2}"); K(f"v_xor_b32 v{t0}, v{t0}, v{t2}")
    K(f"v_lshlrev_b32 v{t0}, 4, v{t0}"); K(f"v_lshl_add_u32 v{t0}, v{t1}, 10, v{t0}")
    K(f"s_lshr_b32 s{T+2}, s{S_W}, 2"); K(f"s_lshl_b32 s{T}, s{T+2}, 15"); K(f"v_add_u32 v{t0}, s{T}, v{t0}")
    K(f"v_mul_u32_u24 v{t3}, 896, v{t3}"); K(f"v_lshl_add_u32 v{t3}, v{t1}, 4, v{t3}")
    K(f"s_lshl_b32 s{T}, s{S_ROW}, 2"); K(f"s_add_u32 s{T}, s{T}, s{S_W}"); K(f"s_mul_i32 s{T}, s{T}, {8*896}"); K(f"s_lshl_b32 s{T+1}, s{S_CT}, 7"); K(f"s_add_u32 s{T+5}, s{T}, s{T+1}")
    K("s_waitcnt lgkmcnt(0)")
    K("s_barrier")
    R = 160
    for q in range(4):
        K(f"ds_read_b128 {vr(R+8*q,4)}, v{t0} offset:{8192*q}")
        K(f"ds_read_b128 {vr(R+8*q+4,4)}, v{t0} offset:{8192*q + 512}")
    K("s_waitcnt lgkmcnt(4)")
    for e in range(0, 8, 2): K(f"v_pk_add_f32 {vr(R+e,2)}, {vr(R+e,2)}, {vr(R+8+e,2)}")
    K("s_waitcnt lgkmcnt(0)")
    for e in range(0, 8, 2): K(f"v_pk_add_f32 {vr(R+16+e,2)}, {vr(R+16+e,2)}, {vr(R+24+e,2)}")
    for e in range(0, 8, 2): K(f"v_pk_add_f32 {vr(R+e,2)}, {vr(R+e,2)}, {vr(R+16+e,2)}")
    for e in range(4): K(f"v_cvt_pk_bf16_f32 v{R+e}, v{R+2*e}, v{R+2*e+1}")
    K(f"buffer_store_dwordx4 {vr(R,4)}, v{t3}, {srd(R_OUT)}, s{T+5} offen")
    K(f"s_or_b32 s{T}, s2, s{S_W}"); K(f"s_cmp_lg_u32 s{T}, 0")
    K.branch("s_cbranch_scc1 L_fin")
    K(f"s_mov_b32 s{T}, {WS_EPOCH}")
    flag(T)
    K.label("L_fin")
    if stamps:
        K("s_waitcnt vmcnt(0)")
        stamp("end")
        K(f"s_lshl_b32 s{T}, s2, 3"); K(f"s_add_u32 s{T}, s{T}, s{S_W}"); K(f"s_lshl_b32 s{T}, s{T}, 8"); K(f"s_add_u32 s{T}, s{T}, {WS_STAMP}")
        K(f"v_lshlrev_b32 v{t0}, 2, v{V_LANE}")
        K(f"buffer_store_dword v{V_STAMP}, v{t0}, {srd(R_WS)}, s{T} offen")
    K.label("L_end")
    K("s_endpgm")
    K.raw(f".fill (28672 - (L_end - {NAME})) / 4, 4, 0xbf800000" if not stamps else "s_nop 0")

    head = f"""; Fused gated mix of hedgehog linear attention and GELU FFN (emitted by a hand-written generator script)
; @launch grid=(256,1,1) block=(512,1,1) lds=163840
.amdgcn_target "amdgcn-amd-amdhsa--gfx950"
.text
.globl {NAME}
.p2align 8
.type {NAME},@function
"""
    tail = f""".section .rodata,"a"
.p2align 6
.amdhsa_kernel {NAME}
  .amdhsa_next_free_vgpr 256
  .amdhsa_next_free_sgpr 102
  .amdhsa_accum_offset 256
  .amdhsa_group_segment_fixed_size 0
  .amdhsa_kernarg_size 104
  .amdhsa_user_sgpr_count 2
  .amdhsa_user_sgpr_kernarg_segment_ptr 1
  .amdhsa_system_sgpr_workgroup_id_x 1
.end_amdhsa_kernel
"""
    return head + K.text() + tail

STAMP_IDS = {}
def parse_opts(argv):
    kw = {}
    for a in argv:
        if a.startswith("-D"):
            k, v = a[2:].split("="); kw[k] = int(v)
    return kw
if __name__ == "__main__":
    out = sys.argv[1] if len(sys.argv) > 1 else "k.s"
    open(out, "w").write(gen(**parse_opts(sys.argv)))
```

```python
import sys, struct
from asmlib import Asm

NAME = "gated_mix__linear_kernel_hedgehog__dense_activation_gelu__prompt_kernel"
def f2u(x): return struct.unpack("<I", struct.pack("<f", x))[0]

WS_EPOCH = 0
WS_RPF   = 0x8000
WS_STAMP = 0x10000
WS_G     = 0xA0000
WS_WQ    = 0x100000
WS_KVP   = 0x280000
WS_O     = 0x480000
WS_H     = 0x680000
WS_HF    = 0xE00000
WS_KVF   = 0xE50000
WS_OF    = 0xE70000
WS_SIZE  = 0xF00000

U = [0, 32768, 65536, 98304, 131072]
L_K, L_V, L_Q = 98304, 126976, 65536
L_MISC = 155648
L_PHI, L_CNT, L_B2, L_B1 = L_MISC, L_MISC + 2048, L_MISC + 2560, L_MISC + 3072
L_KVS = U[3]
L_KVF = L_MISC + 4096
RUNIT = [0, 1, 0, 1, 3, 0, 1, 2, 3]
C_E, C_0, C_1, C_2, C_3, C_4, C_Q, C_G, C_B, C_S = 0, 4, 8, 12, 16, 20, 24, 28, 32, 36

P_X, P_WQKV, P_PHI, P_WO, P_W1, P_B1, P_W2 = 16, 18, 20, 22, 26, 28, 30
P_B2, P_GATE, P_OUT, P_WS = 32, 34, 36, 40
R_X, R_W1, R_W2, R_WO, R_WS, R_OUT, R_T = 44, 48, 52, 56, 60, 64, 68
S_MT, S_J, S_W, S_A, S_FL2, S_TAG, S_CH, S_CNT = 72, 73, 74, 75, 76, 78, 77, 100
S_CHO = 80
S_M0 = 87
S_XB, S_W1B = 88, 89
S_T = 90
S_UP = 98
S_E = 42
S_H = S_J
S_CT, S_ROW, S_ACT = 43, 3, 101
S_K = 4
S_ST = 6
S_L28 = 24
S_FL = 8
S_HB, S_W2B, S_OB, S_HB3, S_W2B3, S_M02, S_RS = 9, 10, 11, 12, 13, 14, 15
S_PE, S_P3, S_PO = 34, 35, 38
PD = [16, 17, 18, 19, 20, 21, 22, 23, 26, 27, 28, 29, 30, 31, 32, 33]
def srd(r): return f"s[{r}:{r+3}]"
def sp(r): return f"s[{r}:{r+1}]"

V_LANE, V_L16, V_STAMP, V_TAG, V_POLL, V_CNT = 1, 2, 3, 4, 5, 6
V_T = 8
V_D2 = 18
A_PA, A_AX, A_AD, A_L4, A_PH, A_TR, A_G = 7, 14, 22, 24, 25, 30, 31
V_W, V_P, V_ACC, V_PHI, V_X = 32, 64, 96, 128, 144
A_XD, A_WD, A_QD, A_GW = 64, 68, 72, 16
M_L16B, M_AB = 7, 14
M_ACC, M_BH, M_AR = 24, 88, 152
M_AX, M_AW = 136, 140
NA = 13
def vr(a, n): return f"v[{a}:{a+n-1}]"
UPM = sp(S_UP)
L2E = 1.4426950408889634

def gen(stamps=False, spin=20000, rot1=True, codepf=True, slp=2, cyc=False, G=5, prioA=1, prioM=2, kvf=27, fine=False,
        pkq=0, pkk=1, LA=9, LA0=6, c0=2, mpf=40, outm=0, tlb=21, gw=6, hf0=7, rpb=3, prioG=2, k6=4, qpf=1, sb=1, qd=6):
    K = Asm()
    T = S_T
    TD = T + 5
    t0, t1, t2, t3, t4, t5 = range(V_T, V_T + 6)
    def stamp(name):
        if not stamps: return
        K("s_waitcnt lgkmcnt(0)")
        K(f"s_memrealtime {sp(S_ST)}")
        if cyc: K(f"s_memtime s[0:1]")
        K("s_waitcnt lgkmcnt(0)")
        i = STAMP_IDS.setdefault(name, len(STAMP_IDS))
        K(f"v_writelane_b32 v{V_STAMP}, s{S_ST}, {i}")
        if cyc: K(f"v_writelane_b32 v{V_STAMP}, s0, {32 + i}")
    uid = [0]
    def newl(p): uid[0] += 1; return f"L_{p}{uid[0]}"
    def poll_issue(fl):
        for n, (so, im) in enumerate(fl):
            if n == 15: K("s_waitcnt lgkmcnt(14)")
            K(f"s_load_dword s{PD[n]}, {sp(P_WS)}, s{so} offset:{im} glc")
    def poll_check(fl):
        l, d = newl("poll"), newl("polld")
        K(f"s_mov_b32 s{S_CNT}, {spin}")
        K.raw(f"{l}:")
        K("s_waitcnt lgkmcnt(0)")
        for n in range(0, len(fl), 2):
            K(f"s_xor_b64 {sp(PD[n])}, {sp(PD[n])}, {sp(S_TAG)}")
            if n: K(f"s_or_b64 {sp(PD[0])}, {sp(PD[0])}, {sp(PD[n])}")
        K.branch(f"s_cbranch_scc0 {d}")
        K(f"s_sub_u32 s{S_CNT}, s{S_CNT}, 1")
        K(f"s_cbranch_scc1 {d}")
        if slp: K(f"s_sleep {slp}")
        poll_issue(fl)
        K(f"s_branch {l}")
        K.label(d)
    def vpoll_issue(vaddr):
        return K(f"buffer_load_dword v{V_POLL}, v{vaddr}, {srd(R_WS)}, 0 offen sc1")
    def vpoll_check(tok, vaddr):
        l, d = newl("poll"), newl("polld")
        K(f"s_mov_b32 s{S_CNT}, {spin}")
        K.wait_vm(tok)
        K.label(l)
        K(f"v_cmp_ne_u32 vcc, s{S_TAG}, v{V_POLL}")
        K.branch(f"s_cbranch_vccz {d}")
        K(f"s_sub_u32 s{S_CNT}, s{S_CNT}, 1")
        K.branch(f"s_cbranch_scc1 {d}")
        K(f"s_sleep 10")
        K(f"buffer_load_dword v{V_POLL}, v{vaddr}, {srd(R_WS)}, 0 offen sc1"); K.vm -= 1
        K("s_waitcnt vmcnt(0)")
        K.branch(f"s_branch {l}")
        K.label(d)
    def flag(soff_reg):
        K("s_mov_b64 exec, 1")
        K(f"buffer_store_dword v{V_TAG}, v{V_LANE}, {srd(R_WS)}, s{soff_reg} offen sc1")
        K("s_mov_b64 exec, -1")
    def arrive(c):
        K(f"v_mov_b32 v{t5}, 1")
        K("s_mov_b64 exec, 1")
        K(f"ds_add_u32 v{V_CNT}, v{t5} offset:{c}")
        K("s_mov_b64 exec, -1")
    def await_(c, n, sleep=0):
        l, d = newl("aw"), newl("awd")
        K(f"s_mov_b32 s{S_CNT}, {spin * 8}")
        K.label(l)
        K(f"ds_read_b32 v{t5}, v{V_CNT} offset:{c}")
        K("s_waitcnt lgkmcnt(0)")
        K(f"v_cmp_ne_u32 vcc, {n}, v{t5}")
        K.branch(f"s_cbranch_vccz {d}")
        if sleep: K(f"s_sleep {sleep}")
        K(f"s_sub_u32 s{S_CNT}, s{S_CNT}, 1")
        K.branch(f"s_cbranch_scc0 {l}")
        K.label(d)
    def mksrd(r, p, nbytes):
        K(f"s_mov_b32 s{r}, s{p}"); K(f"s_and_b32 s{r+1}, s{p+1}, 0xffff")
        K(f"s_mov_b32 s{r+2}, {nbytes}"); K(f"s_mov_b32 s{r+3}, 0x20000")
    def mfma(d, a, b, c=None):
        cs = vr(d, 16) if c is None else c
        K(f"v_mfma_f32_32x32x16_bf16 {vr(d,16)}, {vr(a,4)}, {vr(b,4)}, {cs}")
    def padd(d, a, b, pk):
        if pk: K(f"v_pk_add_f32 {vr(d,2)}, {vr(a,2)}, {vr(b,2)}")
        else: K(f"v_add_f32 v{d}, v{a}, v{b}"); K(f"v_add_f32 v{d+1}, v{a+1}, v{b+1}")
    def pscale(d, r, pk):
        if pk: K(f"v_pk_mul_f32 {vr(d,2)}, {vr(d,2)}, {vr(r & ~1,2)} " + ("op_sel:[0,1] op_sel_hi:[1,1]" if r & 1 else "op_sel_hi:[1,0]"))
        else: K(f"v_mul_f32 v{d}, v{d}, v{r}"); K(f"v_mul_f32 v{d+1}, v{d+1}, v{r}")
    def settag():
        K(f"s_add_u32 s{S_TAG}, s{S_E}, 0x9E3779B9"); K(f"s_mov_b32 s{S_TAG+1}, s{S_TAG}"); K(f"v_mov_b32 v{V_TAG}, s{S_TAG}")
    def xfrag_addr(dst):
        K(f"v_and_b32 v{t0}, 31, v{V_LANE}"); K(f"v_lshrrev_b32 v{t2}, 5, v{V_LANE}"); K(f"v_bfe_u32 v{t3}, v{V_LANE}, 1, 3")
        K(f"v_xor_b32 v{t3}, v{t2}, v{t3}"); K(f"s_lshl_b32 s{T}, s{S_A}, 12"); K(f"v_lshlrev_b32 v{t0}, 7, v{t0}")
        K(f"v_lshl_add_u32 v{t0}, v{t3}, 4, v{t0}"); K(f"v_add_u32 v{dst}, s{T}, v{t0}")
        for k in range(1, 4): K(f"v_xor_b32 v{dst+k}, {32*k}, v{dst}")
    def lanepart():
        K(f"v_bfe_u32 v{t4}, v{V_LANE}, 4, 1"); K(f"v_lshlrev_b32 v{t4}, 5, v{t4}")
        K(f"v_and_b32 v{t3}, 3, v{V_LANE}"); K(f"v_lshl_add_u32 v{t4}, v{t3}, 3, v{t4}")
        K(f"v_bfe_u32 v{t3}, v{V_LANE}, 2, 2"); K(f"v_lshrrev_b32 v{t2}, 5, v{V_LANE}")
    def p2setup():
        mksrd(R_W2, P_W2, 1792*896)
        K(f"s_and_b32 s{T}, s2, 7"); K(f"s_lshr_b32 s{T+1}, s2, 3")
        K(f"s_mul_i32 s{T+2}, s{T+1}, 37"); K(f"s_lshr_b32 s{T+2}, s{T+2}, 8"); K(f"s_mul_i32 s{T+3}, s{T+2}, 7"); K(f"s_sub_u32 s{S_CT}, s{T+1}, s{T+3}")
        K(f"s_lshl_b32 s{T+2}, s{T+2}, 1"); K(f"s_lshl_b32 s{T+3}, s{T}, 3"); K(f"s_add_u32 s{S_ROW}, s{T+2}, s{T+3}")
        K(f"s_cmp_lt_u32 s{T+1}, 28"); K(f"s_cselect_b32 s{S_ACT}, 1, 0")
        K(f"s_and_b32 s{T+2}, s{S_A}, 1"); K(f"s_mul_i32 s{T+3}, s{S_A}, 7"); K(f"s_add_u32 s{T+4}, s{T+3}, s{T+2}")
        K(f"s_cmp_eq_u32 s{T+2}, 0"); K(f"s_cselect_b32 s{T+2}, 6, 0"); K(f"s_add_u32 s{T+2}, s{T+2}, s{T+3}")
        K(f"s_lshl_b32 s{T}, s{S_CT}, 7")
        K(f"s_mul_i32 s{S_W2B}, s{T+4}, {64*896}"); K(f"s_add_u32 s{S_W2B}, s{S_W2B}, s{T}")
        K(f"s_mul_i32 s{S_W2B3}, s{T+2}, {64*896}"); K(f"s_add_u32 s{S_W2B3}, s{S_W2B3}, s{T}")
        K(f"s_lshl_b32 s{S_M02}, s{S_A}, 13")
        K(f"v_lshrrev_b32 v{t0}, 3, v{V_LANE}"); K(f"v_and_b32 v{t1}, 7, v{V_LANE}")
        K(f"v_bfe_u32 v{t2}, v{V_LANE}, 4, 1"); K(f"v_lshlrev_b32 v{t2}, 2, v{t2}"); K(f"v_xor_b32 v{t1}, v{t1}, v{t2}")
        K(f"v_mul_u32_u24 v{t0}, 896, v{t0}"); K(f"v_lshl_add_u32 v{V_D2}, v{t1}, 4, v{t0}")
        for q in range(1, 4): K(f"v_add_u32 v{V_D2+q}, {q*(8*896-1024)}, v{V_D2}")
        K(f"v_mov_b32 v{V_CNT}, {L_CNT}")
    def shift(regs, d):
        for r in regs:
            if d > 0: K(f"v_add_u32 v{r}, {d}, v{r}")
            elif d < 0: K(f"v_subrev_u32 v{r}, {-d}, v{r}")
    pend = []
    def drip(n):
        for _ in range(n):
            if pend: pend.pop(0)()
    def run(steps):
        for f in steps: f()
    tk_r = {}
    def g_w2(r):
        def step(q):
            def f():
                if q % 4 == 0:
                    K(f"s_add_u32 s{TD}, s{S_W2B3 if r == 3 else S_W2B}, {(0 if r == 3 else (2*r % 7)*64*896) + (q // 4)*32*896}")
                    K(f"s_add_u32 m0, s{S_M02}, {U[RUNIT[r]] + (q // 4)*4096}")
                x = K(f"buffer_load_dwordx4 v{V_D2+q%4}, {srd(R_W2)}, s{TD} offen offset:{1024*(q%4)} lds")
                if q == 7: tk_r[r] = x
            return f
        return [step(q) for q in range(8)]
    SH = [0, 0, 65536, 0, -65536, 0, 65536]

    K.raw(f"{NAME}:")
    K("s_cmp_ge_u32 s2, 256"); K("s_cbranch_scc1 L_end")
    K("s_load_dwordx16 s[16:31], s[0:1], 0"); K("s_load_dwordx8 s[32:39], s[0:1], 64"); K("s_load_dwordx2 s[40:41], s[0:1], 96")
    if stamps:
        K(f"s_memrealtime {sp(S_ST)}")
        K(f"v_mov_b32 v{V_STAMP}, 0")
    K(f"v_lshrrev_b32 v{t0}, 6, v0"); K(f"v_and_b32 v{V_LANE}, 63, v0")
    K(f"v_readfirstlane_b32 s{S_W}, v{t0}")
    K(f"v_lshlrev_b32 v{V_L16}, 4, v{V_LANE}")
    K(f"s_and_b32 s{T}, s2, 7"); K(f"s_lshr_b32 s{T+1}, s2, 3")
    if codepf:
        K(f"s_lshr_b32 s{T+2}, s2, 5"); K(f"s_lshl_b32 s{T+2}, s{T+2}, 3"); K(f"s_or_b32 s{T+2}, s{T+2}, s{S_W}"); K(f"s_cmp_lg_u32 s{T+2}, 7")
        K("s_cbranch_scc1 L_nopf")
        K(f"s_getpc_b64 {sp(T+2)}")
        K.raw("L_pc:")
        K(f"s_lshl_b32 s{T+4}, s{T+1}, 7"); K(f"s_sub_u32 s{T+2}, s{T+2}, L_pc - {NAME}"); K(f"s_subb_u32 s{T+3}, s{T+3}, 0")
        K(f"s_add_u32 s{T+2}, s{T+2}, s{T+4}"); K(f"s_addc_u32 s{T+3}, s{T+3}, 0")
        K(f"v_lshlrev_b32 v{t0}, 9, v{V_LANE}")
        K("s_mov_b32 exec_hi, 0xffffff")
        K(f"global_load_dword v{V_POLL}, v{t0}, {sp(T+2)}"); K.vm -= 1
        K("s_mov_b32 exec_hi, -1")
        K.label("L_nopf")
    K(f"s_and_b32 s{T+2}, s{T}, 2"); K(f"s_lshl_b32 s{T+2}, s{T+2}, 1")
    K(f"s_and_b32 s{T+3}, s{T}, 1"); K(f"s_cmp_lt_u32 s{T+1}, 4"); K(f"s_cselect_b32 s{T+4}, 14, 12"); K(f"s_add_u32 s{T+3}, s{T+3}, s{T+4}")
    K(f"s_lshr_b32 s{T+4}, s{T+1}, 3"); K(f"s_lshl_b32 s{S_J}, s{T+4}, 2"); K(f"s_and_b32 s{S_MT}, s{T}, 3"); K(f"s_add_u32 s{S_J}, s{S_J}, s{S_MT}"); K(f"s_sub_u32 s{S_J}, s{S_J}, 4")
    K(f"s_cmp_lt_u32 s{T+1}, 8"); K(f"s_cselect_b32 s{S_J}, s{T+3}, s{S_J}"); K(f"s_cselect_b32 s{T+2}, s{T+2}, 0")
    K(f"s_and_b32 s{T+3}, s{T+1}, 7"); K(f"s_xor_b32 s{T+3}, s{T+3}, s{T+2}")
    K(f"s_and_b32 s{S_MT}, s{T}, 4"); K(f"s_lshl_b32 s{S_MT}, s{S_MT}, 1"); K(f"s_add_u32 s{S_MT}, s{S_MT}, s{T+3}")
    K(f"s_and_b32 s{S_A}, s{S_W}, 3")
    K(f"s_lshl_b32 s{S_W1B}, s{S_J}, 8")
    K(f"s_cmp_lt_u32 s{S_J}, 14")
    K.branch("s_cbranch_scc1 L_norp")
    K(f"s_lshl_b32 s{S_FL}, s{S_MT}, 1"); K(f"s_add_u32 s{S_FL}, s{S_FL}, s{S_J}"); K(f"s_sub_u32 s{S_FL}, s{S_FL}, 14")
    RB = 96
    K(f"s_cmp_eq_u32 s{S_W}, 7")
    K.branch("s_cbranch_scc1 L_rp7")
    K0 = S_XB
    K(f"s_mul_i32 s{K0}, s{S_FL}, 14"); K(f"s_lshl_b32 s{T+5}, s{S_W}, 1"); K(f"s_add_u32 s{K0}, s{K0}, s{T+5}")
    K(f"v_lshrrev_b32 v{t0}, 3, v{V_LANE}"); K(f"v_bfe_u32 v{t1}, v{V_LANE}, 2, 1"); K(f"v_and_b32 v{t2}, 3, v{V_LANE}")
    K(f"v_mul_u32_u24 v{t3}, 56, v{t0}"); K(f"v_mul_u32_u24 v{t4}, 2688, v{t1}"); K(f"v_add_u32 v{t3}, v{t3}, v{t4}")
    K(f"v_lshl_add_u32 v{t3}, v{t2}, 4, v{t3}")
    K(f"s_mul_i32 s{T+5}, s{K0}, 2688"); K(f"v_lshlrev_b32 v{t4}, 1, v{t1}"); K(f"s_lshl_b32 s{T+6}, s{K0}, 1")
    K("s_waitcnt lgkmcnt(0)")
    mksrd(R_T, P_WQKV, 448*2688)
    tkl = {}
    for q in (2, 3, 4, 5): tkl[q] = K(f"buffer_load_dwordx4 {vr(RB+4*q,4)}, v{t3}, {srd(R_T)}, s{T+5} offen offset:{448*q}")
    mksrd(R_X, P_GATE, 896)
    K(f"buffer_load_ushort v{RB+24}, v{t4}, {srd(R_X)}, s{T+6} offen")
    for q in (0, 1): tkl[q] = K(f"buffer_load_dwordx4 {vr(RB+4*q,4)}, v{t3}, {srd(R_T)}, s{T+5} offen offset:{448*q}")
    mksrd(R_WS, P_WS, WS_SIZE)
    K(f"s_mov_b32 s{T+6}, 86016"); K(f"v_mul_lo_u32 v{RB+25}, v{t0}, s{T+6}"); K(f"v_and_b32 v{t1}, 7, v{V_LANE}")
    K(f"v_lshl_add_u32 v{RB+25}, v{t1}, 4, v{RB+25}")
    K(f"v_cmp_eq_u32 vcc, 3, v{t2}")
    K(f"s_lshl_b32 s{T+5}, s{K0}, 6"); K(f"s_add_u32 s{T+5}, s{T+5}, {WS_WQ}")
    for q in (2, 3, 4, 5, 0, 1):
        p, hg = q // 2, q % 2; b = RB + 4*q
        K.wait_vm(tkl[q])
        K(f"v_cndmask_b32 v{b+2}, v{b+2}, v{RB+24}, vcc" if p == 0 else f"v_cndmask_b32 v{b+2}, v{b+2}, 0, vcc")
        K(f"v_cndmask_b32 v{b+3}, v{b+3}, 0, vcc")
        K(f"s_add_u32 s{T+6}, s{T+5}, {p*28672 + hg*8*86016}")
        K(f"buffer_store_dwordx4 {vr(b,4)}, v{RB+25}, {srd(R_WS)}, s{T+6} offen sc1")
    K("s_waitcnt vmcnt(0)")
    K("s_barrier")
    K.branch("s_branch L_norp")
    K.label("L_rp7")
    for e in range(4): K(f"v_mov_b32 v{RB+e}, 0")
    K(f"s_lshl_b32 s{T+5}, s{S_FL}, 12"); K(f"s_add_u32 s{T+5}, s{T+5}, {WS_KVP}")
    K(f"s_lshl_b32 s{S_FL}, s{S_FL}, 7"); K(f"s_add_u32 s{S_FL}, s{S_FL}, {WS_RPF}")
    K("s_waitcnt lgkmcnt(0)")
    K(f"s_load_dword s{S_E}, {sp(P_WS)}, {WS_EPOCH}")
    mksrd(R_WS, P_WS, WS_SIZE)
    for q in range(4): K(f"buffer_store_dwordx4 {vr(RB,4)}, v{V_L16}, {srd(R_WS)}, s{T+5} offen offset:{1024*q} sc1")
    K("s_waitcnt vmcnt(0) lgkmcnt(0)")
    settag()
    K("s_barrier")
    flag(S_FL)
    if stamps: K(f"s_mov_b32 s{S_CNT}, s{S_ST}"); stamp("rp_pub"); K(f"s_mov_b32 s{S_ST}, s{S_CNT}")
    K.label("L_norp")
    K(f"s_cmp_ge_u32 s{S_W}, 4")
    K.branch("s_cbranch_scc1 L_M")

    if prioA: K(f"s_setprio {prioA}")
    K(f"s_lshl_b32 s{T+4}, s{T+4}, 1"); K(f"s_add_u32 s{T+2}, s{T+3}, s{T+4}")
    K(f"s_cmp_ge_u32 s{T+2}, 7"); K(f"s_cselect_b32 s{T+3}, 7, 0"); K(f"s_sub_u32 s{S_CH}, s{T+2}, s{T+3}")
    if not rot1: K(f"s_mov_b32 s{S_CH}, 0")
    def rotstep(t):
        K(f"s_lshl_b32 s{S_CHO+t}, s{S_CH}, 12")
        if t < 6: K(f"s_add_u32 s{S_CH}, s{S_CH}, 1"); K(f"s_cmp_eq_u32 s{S_CH}, 7"); K(f"s_cselect_b32 s{S_CH}, 0, s{S_CH}")
    rotstep(0); rotstep(1)
    K(f"s_lshl_b32 s{S_M0}, s{S_A}, 12")
    K(f"s_mul_i32 s{S_XB}, s{S_MT}, {128*896}")
    K(f"v_lshrrev_b32 v{t0}, 3, v{V_LANE}"); K(f"v_and_b32 v{t1}, 7, v{V_LANE}"); K(f"v_lshrrev_b32 v{t2}, 1, v{t0}"); K(f"v_xor_b32 v{t2}, v{t1}, v{t2}")
    K(f"s_lshl_b32 s{T+2}, s{S_A}, 5"); K(f"v_add_u32 v{t3}, s{T+2}, v{t0}"); K(f"v_mul_u32_u24 v{t3}, 896, v{t3}")
    K(f"v_lshl_add_u32 v{A_XD}, v{t2}, 4, v{t3}"); K(f"v_xor_b32 v{t2}, 4, v{t2}"); K(f"v_lshl_add_u32 v{A_XD+1}, v{t2}, 4, v{t3}")
    K(f"v_add_u32 v{A_XD+1}, {8*896-1024}, v{A_XD+1}")
    K(f"v_add_u32 v{A_XD+2}, {16*896-2048}, v{A_XD}"); K(f"v_add_u32 v{A_XD+3}, {16*896-2048}, v{A_XD+1}")
    K(f"v_lshrrev_b32 v{t0}, 4, v{V_LANE}"); K(f"v_and_b32 v{t1}, 15, v{V_LANE}"); K(f"v_lshlrev_b32 v{t2}, 2, v{t0}"); K(f"v_xor_b32 v{t2}, v{t1}, v{t2}")
    K(f"s_lshl_b32 s{T+2}, s{S_A}, 4"); K(f"v_add_u32 v{t3}, s{T+2}, v{t0}"); K(f"v_mul_u32_u24 v{t3}, 3584, v{t3}")
    K(f"v_lshl_add_u32 v{A_WD}, v{t2}, 4, v{t3}")
    for q in range(1, 4): K(f"v_add_u32 v{A_WD+q}, {q*(4*3584-1024)}, v{A_WD}")
    K("s_waitcnt lgkmcnt(0)")
    if stamps: K(f"v_writelane_b32 v{V_STAMP}, s{S_ST}, {STAMP_IDS.setdefault('start', len(STAMP_IDS))}")
    mksrd(R_X, P_X, 2048*896); mksrd(R_W1, P_W1, 448*3584)
    K(f"s_cmp_lt_u32 s{S_J}, 14"); K(f"s_cselect_b32 s{R_W1+2}, s{R_W1+2}, 0")
    tk_stage = {}
    def g_stage(t):
        u = U[t % 4]
        def step(q):
            def f():
                if q == 0: K(f"s_lshr_b32 s{TD}, s{S_CHO+t}, 5"); K(f"s_add_u32 s{TD}, s{TD}, s{S_XB}"); K(f"s_add_u32 m0, s{S_M0}, {u}")
                if q == 4: K(f"s_mul_i32 s{TD}, s{S_CHO+t}, 56"); K(f"s_add_u32 s{TD}, s{TD}, s{S_W1B}"); K(f"s_add_u32 m0, s{S_M0}, {u + 16384}")
                if q < 4: K(f"buffer_load_dwordx4 v{A_XD+q}, {srd(R_X)}, s{TD} offen offset:{1024*q} lds")
                else: x = K(f"buffer_load_dwordx4 v{A_WD+q-4}, {srd(R_W1)}, s{TD} offen offset:{1024*(q-4)} lds")
                if q == 7: tk_stage[t] = x
            return f
        return [step(q) for q in range(8)]
    ilist = []
    for t in range(7): ilist += [(f, t - 2 if t >= 4 else -1) for f in g_stage(t)]
    pos = [0]
    def issue_to(n, lastbar):
        while pos[0] < min(n, len(ilist)) and ilist[pos[0]][1] <= lastbar:
            ilist[pos[0]][0](); pos[0] += 1
    if fine: stamp("A_karg")
    issue_to(8, -1)
    issue_to(8 + LA0, -1)
    if fine: stamp("A_i1")
    K(f"s_load_dword s{S_E}, {sp(P_WS)}, {WS_EPOCH}")
    for t in range(2, 7): rotstep(t)
    mksrd(R_WS, P_WS, WS_SIZE); mksrd(R_OUT, P_OUT, 2048*896)
    p2setup()
    K(f"s_mov_b32 s{S_UP}, 0"); K(f"s_mov_b32 s{S_UP+1}, -1")
    K(f"s_mov_b32 s{S_L28}, 0x10000000"); K(f"s_mov_b32 s{S_L28+1}, 0x10000000")
    xfrag_addr(A_AX)
    lanepart()
    K(f"v_lshl_add_u32 v{t0}, v{t2}, 3, v{t3}"); K(f"v_lshl_add_u32 v{A_TR}, v{t0}, 6, v{t4}")
    K(f"v_lshl_add_u32 v{t0}, v{t2}, 2, v{t3}"); K(f"v_mul_u32_u24 v{t1}, 56, v{t0}"); K(f"v_add_u32 v{t1}, v{t1}, v{t4}"); K(f"v_add_u32 v{A_PH}, {L_PHI}, v{t1}")
    K(f"v_lshlrev_b32 v{A_L4}, 2, v{V_LANE}")
    K(f"s_lshl_b32 s{T}, s{S_A}, 10"); K(f"s_add_u32 s{T}, s{T}, {WS_RPF}"); K(f"v_and_b32 v{A_PA}, 7, v{V_LANE}"); K(f"v_lshl_add_u32 v{A_PA}, v{A_PA}, 7, s{T}")
    K(f"s_mul_i32 s{S_RS}, s{S_J}, {3*28672}"); K(f"s_mul_i32 s{S_P3}, s{S_A}, 7168"); K(f"s_add_u32 s{S_RS}, s{S_RS}, s{S_P3}"); K(f"s_add_u32 s{S_RS}, s{S_RS}, {WS_WQ}")
    K("s_waitcnt lgkmcnt(0)")
    settag()
    if fine: stamp("A_setup")
    tkx = {}
    def g_panel(p, lds):
        def step(q):
            def f():
                if q % 4 == 0: K(f"s_add_u32 s{TD}, s{S_RS}, {28672*p + (q // 4)*4096}"); K(f"s_add_u32 m0, s{S_P3}, {lds + (q // 4)*4096}")
                tkx[p] = K(f"buffer_load_dwordx4 v{V_L16}, {srd(R_WS)}, s{TD} offen offset:{1024*(q%4)} sc1 lds")
            return f
        return [step(q) for q in range(7)]
    for t in range(7):
        issue_to(8*(t+1) + (LA0 if t == 0 else LA), t - 1)
        shift(range(A_AX, A_AX + 4), SH[t])
        if t == 5:
            assert pos[0] == len(ilist)
            tkp = vpoll_issue(A_PA)
        if fine: stamp(f"A{t}a")
        K.wait_vm(tk_stage[t])
        if fine: stamp(f"A{t}b")
        if t < 6:
            if t >= 2: K("s_waitcnt lgkmcnt(4)")
            K("s_barrier")
        else: arrive(C_S)
        if t in (0, 4, 6): stamp(f"A_b{t}")
        for ksl in range(4): K(f"ds_read_b128 {vr(V_X + 16*t + 4*ksl, 4)}, v{A_AX+ksl} offset:{(t % 2) * 32768}")
    arrive(C_E)
    vpoll_check(tkp, A_PA)
    stamp("rp_seen")
    run(g_panel(1, L_K) + g_panel(2, L_V))
    stamp("kv_issued")
    K(f"s_mov_b32 s{S_K}, {f2u(L2E):#x}"); K(f"s_mov_b32 s{S_K+1}, {f2u(L2E):#x}")
    VPH, ID, VB = V_W + 24, 26, V_W + 16
    IDR = [26, 27, 28, 29, V_D2, V_D2+1, V_D2+2, V_D2+3]
    K(f"v_and_b32 v{t0}, 31, v{V_LANE}"); K(f"v_lshrrev_b32 v{t1}, 5, v{V_LANE}"); K(f"v_lshlrev_b32 v{t1}, 2, v{t1}")
    K(f"v_sub_u32 v{t0}, v{t0}, v{t1}")
    K(f"v_and_b32 v{t1}, 1, v{V_LANE}"); K(f"v_lshlrev_b32 v{t1}, 4, v{t1}"); K(f"v_mov_b32 v{t2}, 0x3f80"); K(f"v_lshlrev_b32 v{t1}, v{t1}, v{t2}")
    K(f"v_and_b32 v{t0}, -2, v{t0}")
    for s in range(2):
        for q in range(4): K(f"v_cmp_eq_u32 {sp(T+2*q)}, {16*s + 8*(q // 2) + 2*(q % 2)}, v{t0}")
        for q in range(4): K(f"v_cndmask_b32 v{IDR[4*s+q]}, 0, v{t1}, {sp(T+2*q)}")
    for s in range(2):
        for r in range(2): K(f"ds_read_b64_tr_b16 {vr(VPH + 4*s + 2*r, 2)}, v{A_PH} offset:{(16*s + 8*r)*56}")
    K(f"s_lshl_b32 s{T}, s{S_A}, 11"); K(f"s_lshl_b32 s{T+1}, s{S_H}, 13"); K(f"s_add_u32 s{S_HB}, s{T+1}, s{T}"); K(f"s_add_u32 s{S_PE}, s{S_HB}, {WS_KVF}"); K(f"s_add_u32 s{S_HB}, s{S_HB}, {WS_KVP}")
    K(f"s_lshl_b32 s{T+3}, s{S_MT}, 7"); K(f"s_add_u32 s{S_FL}, s{S_PE}, s{T+3}")
    FL_K = [(S_PE, 128*u) for u in range(16)]
    K(f"s_lshl_b32 s{T}, s{S_MT}, 2"); K(f"s_add_u32 s{T}, s{T}, s{S_A}"); K(f"s_lshl_b32 s{T}, s{T}, 4"); K(f"s_add_u32 s{T}, s{T}, s{S_H}")
    K(f"s_lshl_b32 s{S_OB}, s{T}, 11"); K(f"s_add_u32 s{S_OB}, s{S_OB}, {WS_O}")
    K(f"s_lshl_b32 s{T+2}, s{T}, 7"); K(f"s_add_u32 s{S_FL2}, s{T+2}, {WS_OF}"); K(f"s_add_u32 s{S_XB}, s{T+2}, {WS_G - 128}")
    K.wait_vm(tkx[2]); arrive(C_0)
    stamp("kv_landed0")
    await_(C_0, 4, 1)
    K(f"v_cndmask_b32 v{VPH+6}, v{VPH+6}, 0, {UPM}"); K(f"v_cndmask_b32 v{VPH+7}, v{VPH+7}, 0, {UPM}")
    await_(C_G, 4, 1)
    stamp("kv_start")

    def gemm_qkv(panels, hook=None):
        nb = len(panels) * 4
        D = 3 if len(panels) == 2 else 6
        tk = {}
        for n, (off, acc, sw) in enumerate(panels): K(f"v_add_u32 v{A_AX+n}, {off}, v{A_TR}")
        def rd(ks, n):
            t, ksl = ks // 4, ks % 4
            b = V_W + nb * (ks % D)
            if ksl == 0: K(f"v_add_u32 v{A_AD + n}, s{S_CHO+t}, v{A_AX+n}")
            for r in range(2):
                tk[ks] = K(f"ds_read_b64_tr_b16 {vr(b + 4*n + 2*r, 2)}, v{A_AD + n} offset:{(16*ksl + 4*r)*64}")
        for k in range(D):
            for n in range(len(panels)): rd(k, n)
        for ks in range(28):
            K.wait_lg(tk[ks])
            b = V_W + nb * (ks % D)
            for n, (off, acc, sw) in enumerate(panels):
                wv, xv = b + 4*n, V_X + 4*ks
                if sw: mfma(acc, xv, wv, "0" if ks == 0 else None)
                else: mfma(acc, wv, xv, "0" if ks == 0 else None)
                if ks + D < 28: rd(ks + D, n)
            if hook: hook(ks)
    QP = V_W
    P = V_ACC
    def featmap():
        for e in range(8): K(f"v_cvt_pk_bf16_f32 v{QP+e}, v{V_ACC+2*e}, v{V_ACC+2*e+1}")
        mfma(P, VPH, QP, "0"); mfma(P, VPH + 4, QP + 4)
    def softmax(pk):
        for e in range(4): K(f"v_cndmask_b32 v{P+12+e}, v{P+12+e}, v{P}, {UPM}")
        mx, mn = t0, t2
        K(f"v_max3_f32 v{mx}, v{P}, v{P+1}, v{P+2}"); K(f"v_min3_f32 v{mn}, v{P}, v{P+1}, v{P+2}")
        K(f"v_max3_f32 v{t1}, v{P+3}, v{P+4}, v{P+5}"); K(f"v_min3_f32 v{t3}, v{P+3}, v{P+4}, v{P+5}")
        for e in range(6, 14, 4):
            K(f"v_max3_f32 v{mx}, v{mx}, v{P+e}, v{P+e+1}"); K(f"v_min3_f32 v{mn}, v{mn}, v{P+e}, v{P+e+1}")
            K(f"v_max3_f32 v{t1}, v{t1}, v{P+e+2}, v{P+e+3}"); K(f"v_min3_f32 v{t3}, v{t3}, v{P+e+2}, v{P+e+3}")
        K(f"v_max3_f32 v{mx}, v{mx}, v{P+14}, v{P+15}"); K(f"v_min3_f32 v{mn}, v{mn}, v{P+14}, v{P+15}")
        K(f"v_max_f32 v{mx}, v{mx}, v{t1}"); K(f"v_min_f32 v{mn}, v{mn}, v{t3}")
        K(f"v_mov_b32 v{t1}, v{mx}"); K(f"v_mov_b32 v{t3}, v{mn}")
        K(f"v_permlane32_swap_b32 v{mx}, v{t1}"); K(f"v_permlane32_swap_b32 v{mn}, v{t3}")
        K(f"v_max_f32 v{mx}, v{mx}, v{t1}"); K(f"v_min_f32 v{mn}, v{mn}, v{t3}")
        K(f"v_mul_f32 v{mx}, s{S_K}, v{mx}"); K(f"v_mul_f32 v{mn}, s{S_K}, v{mn}")
        EP, EN = V_P, V_P + 16
        for e in range(0, 16, 2):
            if pk:
                K(f"v_pk_fma_f32 {vr(EP+e,2)}, {vr(P+e,2)}, {sp(S_K)}, {vr(mx,2)} op_sel_hi:[1,1,0] neg_lo:[0,0,1] neg_hi:[0,0,1]")
                K(f"v_pk_fma_f32 {vr(EN+e,2)}, {vr(P+e,2)}, {sp(S_K)}, {vr(mn,2)} op_sel_hi:[1,1,0] neg_lo:[1,0,0] neg_hi:[1,0,0]")
            else:
                for x in (e, e + 1):
                    K(f"v_fma_f32 v{EP+x}, v{P+x}, s{S_K}, -v{mx}"); K(f"v_fma_f32 v{EN+x}, -v{P+x}, s{S_K}, v{mn}")
        for e in range(16):
            K(f"v_exp_f32 v{EP+e}, v{EP+e}"); K(f"v_exp_f32 v{EN+e}, v{EN+e}")
        S = V_W
        for n, E in enumerate((EP, EN)):
            padd(S+4*n, E, E+2, pk); padd(S+4*n+2, E+12, E+14, pk)
        for n, E in enumerate((EP, EN)):
            padd(S+4*n, S+4*n, E+4, pk)
            K(f"v_cndmask_b32 v{S+4*n+2}, v{S+4*n+2}, 0, {UPM}"); K(f"v_cndmask_b32 v{S+4*n+3}, v{S+4*n+3}, 0, {UPM}")
        for n, E in enumerate((EP, EN)):
            padd(S+4*n, S+4*n, E+6, pk); padd(S+4*n+2, S+4*n+2, E+8, pk)
        for n, E in enumerate((EP, EN)): padd(S+4*n, S+4*n, E+10, pk)
        for n in range(2): padd(S+4*n, S+4*n, S+4*n+2, pk)
        K(f"v_add_f32 v{t0}, v{S}, v{S+1}"); K(f"v_add_f32 v{t2}, v{S+4}, v{S+5}")
        K(f"v_mov_b32 v{t1}, v{t0}"); K(f"v_mov_b32 v{t3}, v{t2}")
        K(f"v_permlane32_swap_b32 v{t0}, v{t1}"); K(f"v_permlane32_swap_b32 v{t2}, v{t3}")
        K(f"v_add_f32 v{t0}, v{t0}, v{t1}"); K(f"v_add_f32 v{t2}, v{t2}, v{t3}")
        K(f"v_rcp_f32 v{t0}, v{t0}"); K(f"v_rcp_f32 v{t2}, v{t2}")
        K(f"v_cndmask_b32 v{t1}, v{t0}, 0, {UPM}"); K(f"v_cndmask_b32 v{t3}, v{t2}, 0, {UPM}")
        for e in range(0, 16, 2):
            pscale(EP+e, t0 if e < 12 else t1, pk); pscale(EN+e, t2 if e < 12 else t3, pk)
        for e in range(8):
            K(f"v_cvt_pk_bf16_f32 v{V_PHI+e}, v{EP+2*e}, v{EP+2*e+1}"); K(f"v_cvt_pk_bf16_f32 v{V_PHI+8+e}, v{EN+2*e}, v{EN+2*e+1}")

    pend.extend(g_panel(0, L_Q))
    def hook(ks):
        if ks >= qd and (ks - qd) % 3 == 0: drip(1)
        if ks == 25: arrive(C_1)
    gemm_qkv([(L_K, V_ACC, False), (L_V, V_ACC + 16, True)], hook)
    featmap()
    stamp("kv_gemm")
    K(f"v_mov_b32 v{t4}, 0x3f803f80")
    for e in range(8): K(f"v_cvt_pk_bf16_f32 v{VB+e}, v{V_ACC+16+2*e}, v{V_ACC+16+2*e+1}")
    for e in range(8): K(f"v_cndmask_b32 v{VB+e}, v{VB+e}, v{t4}, {sp(S_L28)}")
    softmax(pkk)
    stamp("sm_k")
    TP, TN = V_P, V_P + 16
    mfma(TP, V_PHI, IDR[0], "0"); mfma(TP, V_PHI + 4, IDR[4])
    mfma(TN, V_PHI + 8, IDR[0], "0"); mfma(TN, V_PHI + 12, IDR[4])
    await_(C_1, 4)
    K(f"s_lshl_b32 s{T}, s{S_A}, 13"); K(f"s_add_u32 s{T}, s{T}, {L_KVS}"); K(f"v_add_u32 v{t0}, s{T}, v{V_L16}")
    K(f"s_lshl_b32 s{T}, s{S_A}, 11"); K(f"s_add_u32 s{T}, s{T}, {L_KVS}"); K(f"v_add_u32 v{t1}, s{T}, v{V_L16}")
    for e in range(8): K(f"v_cvt_pk_bf16_f32 v{V_PHI+e}, v{TP+2*e}, v{TP+2*e+1}")
    mfma(V_ACC, V_PHI, VB, "0"); mfma(V_ACC, V_PHI + 4, VB + 4)
    for e in range(8): K(f"v_cvt_pk_bf16_f32 v{V_PHI+8+e}, v{TN+2*e}, v{TN+2*e+1}")
    mfma(V_ACC + 16, V_PHI + 8, VB, "0"); mfma(V_ACC + 16, V_PHI + 12, VB + 4)
    K("s_waitcnt vmcnt(0)")
    for b in range(8): K(f"ds_write_b128 v{t0}, {vr(V_ACC+4*b,4)} offset:{1024*b}")
    arrive(C_2)
    await_(C_2, 4)
    for hb in range(2):
        for g in range(4): K(f"ds_read_b128 {vr(V_P+16*hb+4*g,4)}, v{t1} offset:{8192*g + 1024*hb}")
    arrive(C_3)
    for hb in range(2):
        K(f"s_waitcnt lgkmcnt({5 - 4*hb})")
        B = V_P + 16*hb
        for e in (0, 2): padd(B+e, B+e, B+4+e, pkq); padd(B+8+e, B+8+e, B+12+e, pkq)
        for e in (0, 2): padd(B+e, B+e, B+8+e, pkq)
        for e in range(4): K(f"buffer_atomic_add_f32 v{B+e}, v{A_L4}, {srd(R_WS)}, s{S_HB} offen offset:{1024*hb + 256*e}")
    stamp("kv_st")
    def hook(ks):
        if ks == 22: arrive(C_Q)
        if ks == kvf:
            K("s_waitcnt vmcnt(0)")
            flag(S_FL)
            stamp("kv_pub")
    gemm_qkv([(L_Q, V_ACC, False)], hook)
    K(f"v_cvt_pk_bf16_f32 v{t0}, v{V_ACC+12}, v{V_ACC+12}")
    featmap()
    K(f"v_lshlrev_b32 v{t0}, 16, v{t0}")
    K(f"v_mul_f32 v{t0}, s{S_K}, v{t0}"); K(f"v_exp_f32 v{t0}, -v{t0}"); K(f"v_add_f32 v{t0}, 1.0, v{t0}"); K(f"v_rcp_f32 v{t0}, v{t0}")
    K(f"v_cvt_pk_bf16_f32 v{t0}, v{t0}, v{t0}"); K(f"v_lshlrev_b32 v{A_G}, 16, v{t0}")
    K("s_mov_b32 exec_lo, 0")
    K(f"buffer_store_dword v{A_G}, v{A_L4}, {srd(R_WS)}, s{S_XB} offen sc1")
    K("s_mov_b32 exec_lo, -1")
    stamp("q_gemm")
    softmax(pkq)
    stamp("sm_q")
    poll_issue(FL_K)
    poll_check(FL_K)
    stamp("kv_seen")
    for e in range(8): K(f"buffer_load_dword v{V_P+e}, v{A_L4}, {srd(R_WS)}, s{S_HB} offen offset:{256*e} sc1")
    F = V_W
    K(f"s_lshl_b32 s{T}, s{S_A}, 10"); K(f"v_add_u32 v{t1}, {L_KVF}, v{V_L16}"); K(f"v_add_u32 v{t0}, s{T}, v{t1}")
    K("s_waitcnt vmcnt(0)")
    stamp("kv_landed")
    for e in range(4): K(f"v_cvt_pk_bf16_f32 v{F+e}, v{V_P+2*e}, v{V_P+2*e+1}")
    K(f"ds_write_b128 v{t0}, {vr(F,4)}")
    arrive(C_4)
    await_(C_4, 4)
    for f in range(4): K(f"ds_read_b128 {vr(F+4*f,4)}, v{t1} offset:{1024*f}")
    N = V_ACC
    for f in range(4):
        K(f"s_waitcnt lgkmcnt({3-f})")
        mfma(N, F + 4*f, V_PHI + 4*f, "0" if f == 0 else None)
    K(f"v_cvt_pk_bf16_f32 v{t0}, v{N+12}, v{N+12}")
    for e in range(8): K(f"v_cvt_pk_bf16_f32 v{F+e}, v{N+2*e}, v{N+2*e+1}")
    K(f"v_lshlrev_b32 v{t0}, 16, v{t0}")
    K(f"v_add_f32 v{t0}, {f2u(1e-6):#x}, v{t0}")
    K(f"v_cvt_pk_bf16_f32 v{t0}, v{t0}, v{t0}"); K(f"v_lshlrev_b32 v{t0}, 16, v{t0}")
    K(f"v_rcp_f32 v{t0}, v{t0}")
    for e in range(4):
        K(f"v_lshlrev_b32 v{N+2*e}, 16, v{F+e}"); K(f"v_and_b32 v{N+2*e+1}, 0xffff0000, v{F+e}")
    K(f"v_mul_f32 v{t0}, v{t0}, v{A_G}"); K(f"v_mov_b32 v{t1}, v{t0}")
    for e in range(4, 8):
        K(f"v_lshlrev_b32 v{N+2*e}, 16, v{F+e}"); K(f"v_and_b32 v{N+2*e+1}, 0xffff0000, v{F+e}")
    K(f"v_permlane32_swap_b32 v{t1}, v{t0}")
    for e in range(0, 16, 2): pscale(N+e, t0, pkq)
    for e in range(8): K(f"v_cvt_pk_bf16_f32 v{F+e}, v{N+2*e}, v{N+2*e+1}")
    K(f"v_cndmask_b32 v{F+6}, v{F+6}, 0, {UPM}"); K(f"v_cndmask_b32 v{F+7}, v{F+7}, 0, {UPM}")
    K(f"buffer_store_dwordx4 {vr(F,4)}, v{V_L16}, {srd(R_WS)}, s{S_OB} offen sc1")
    K(f"buffer_store_dwordx4 {vr(F+4,4)}, v{V_L16}, {srd(R_WS)}, s{S_OB} offen offset:1024 sc1")
    K("s_waitcnt vmcnt(0)")
    flag(S_FL2)
    stamp("o_pub")
    K(f"s_cmp_eq_u32 s{S_ACT}, 0")
    K.branch("s_cbranch_scc1 L_fin")
    K.branch("s_branch L_red")

    K.label("L_M")
    if prioM: K(f"s_setprio {prioM}")
    K("s_waitcnt lgkmcnt(0)")
    if stamps: K(f"v_writelane_b32 v{V_STAMP}, s{S_ST}, {STAMP_IDS.setdefault('start', len(STAMP_IDS))}")
    K(f"s_load_dword s{S_E}, {sp(P_WS)}, {WS_EPOCH}")
    mksrd(R_T, P_B1, 3584)
    K(f"s_lshl_b32 s{T+1}, s{S_A}, 8"); K(f"s_add_u32 m0, s{T+1}, {L_B1}")
    K("s_mov_b64 exec, 0xffff")
    tk_b1 = K(f"buffer_load_dwordx4 v{V_L16}, {srd(R_T)}, s{S_W1B} offen lds")
    K("s_mov_b64 exec, -1")
    mksrd(R_T, P_PHI, 16*1568)
    K(f"s_mul_i32 s{T}, s{S_J}, 1568"); K(f"s_mul_i32 s{T+1}, s{S_A}, 400"); K(f"s_add_u32 s{T}, s{T}, s{T+1}"); K(f"s_add_u32 m0, s{T+1}, {L_PHI}")
    K("s_mov_b64 exec, 0x1ffffff")
    K(f"buffer_load_dwordx4 v{V_L16}, {srd(R_T)}, s{T} offen lds")
    K("s_mov_b64 exec, -1")
    mksrd(R_WS, P_WS, WS_SIZE); mksrd(R_WO, P_WO, 448*896); mksrd(R_OUT, P_OUT, 2048*896)
    p2setup()
    K(f"s_mul_i32 s{T}, s{S_ROW}, {112*1024}"); K(f"s_add_u32 s{T}, s{T}, {WS_H}")
    K(f"s_lshl_b32 s{S_HB}, s{T+4}, 12"); K(f"s_add_u32 s{S_HB}, s{S_HB}, s{T}")
    K(f"s_lshl_b32 s{S_HB3}, s{T+2}, 12"); K(f"s_add_u32 s{S_HB3}, s{S_HB3}, s{T}")
    mksrd(R_T, P_B2, 896)
    K(f"s_lshl_b32 s{T}, s{S_CT}, 7"); K(f"s_lshl_b32 s{T+1}, s{S_A}, 10"); K(f"s_add_u32 s{T}, s{T}, s{T+1}")
    K(f"s_lshl_b32 s{T+1}, s{S_A}, 7"); K(f"s_add_u32 m0, s{T+1}, {L_B2}")
    K("s_mov_b64 exec, 0xff")
    tk_b2 = K(f"buffer_load_dwordx4 v{V_L16}, {srd(R_T)}, s{T} offen lds")
    K("s_mov_b64 exec, -1")
    K(f"s_lshl_b32 s{T}, s{S_ROW}, 12"); K(f"s_add_u32 s{T}, s{T}, {WS_HF}")
    K(f"s_lshl_b32 s{S_PE}, s{T+4}, 7"); K(f"s_add_u32 s{S_PE}, s{S_PE}, s{T}")
    K(f"s_lshl_b32 s{S_P3}, s{T+2}, 7"); K(f"s_add_u32 s{S_P3}, s{S_P3}, s{T}")
    K(f"s_lshl_b32 s{T}, s{S_ROW}, 4"); K(f"s_lshl_b32 s{T+1}, s{S_A}, 2"); K(f"s_add_u32 s{S_OB}, s{T+1}, s{T}")
    K(f"s_lshl_b32 s{S_PO}, s{S_OB}, 7"); K(f"s_add_u32 s{S_PO}, s{S_PO}, {WS_OF}")
    FL_E = [(S_PE, 4096*r + 256*u) for r in range(2) for u in range(3)]
    FL_L = [(S_PE, 4096*r + 256*u + 128) for r in range(2) for u in range(3)] + [(S_P3, 0), (S_P3, 4096)]
    FL_O = [(S_PO, 2048*r + 128*u) for r in range(2) for u in range(4)]
    K(f"s_lshl_b32 s{T}, s{S_MT}, 2"); K(f"s_add_u32 s{T}, s{T}, s{S_A}"); K(f"s_mul_i32 s{S_RS}, s{T}, 112")
    K(f"s_lshl_b32 s{T+1}, s{S_J}, 3"); K(f"s_add_u32 s{S_RS}, s{S_RS}, s{T+1}"); K(f"s_lshl_b32 s{S_RS}, s{S_RS}, 10"); K(f"s_add_u32 s{S_RS}, s{S_RS}, {WS_H}")
    K(f"s_lshl_b32 s{S_FL}, s{T}, 4"); K(f"s_add_u32 s{S_FL}, s{S_FL}, s{S_J}"); K(f"s_lshl_b32 s{S_FL}, s{S_FL}, 8"); K(f"s_add_u32 s{S_FL}, s{S_FL}, {WS_HF}")
    K(f"s_add_u32 s{S_FL2}, s{S_FL}, 128")
    K(f"v_mov_b32 v{t0}, 0"); K(f"v_lshl_add_u32 v{t1}, v{V_LANE}, 2, v{V_CNT}"); K(f"ds_write_b32 v{t1}, v{t0}")
    K(f"v_add_u32 v{M_L16B}, {112*1024}, v{V_L16}")
    MP = M_AR + 40
    K(f"v_lshlrev_b32 v{MP}, 7, v{V_LANE}")
    K(f"s_lshl_b32 s{T+3}, s2, 2"); K(f"s_add_u32 s{T+3}, s{T+3}, s{S_A}")
    K(f"s_mul_i32 s{S_XB}, s{T+3}, {13*128}"); K(f"s_lshl_b32 s{S_M0}, s{T+3}, 9")
    def mall_pf():
        K("s_mov_b64 exec, 0x1fff")
        K(f"buffer_load_dword v{V_POLL}, v{MP}, {srd(R_W2)}, s{S_XB} offen")
        K("s_mov_b64 exec, 15")
        K(f"buffer_load_dword v{V_POLL}, v{MP}, {srd(R_WO)}, s{S_M0} offen")
        K("s_mov_b64 exec, -1")
    if mpf == 1: mall_pf()
    if tlb:
        l = newl("tlb")
        K(f"s_cmp_lg_u32 s{S_A}, 1")
        K.branch(f"s_cbranch_scc1 {l}")
        K(f"v_lshlrev_b32 v{t0}, {tlb}, v{V_LANE}")
        K(f"buffer_load_dword v{V_POLL}, v{t0}, {srd(R_WS)}, 0 offen offset:2048"); K.vm -= 1
        K(f"buffer_load_dword v{V_POLL}, v{t0}, {srd(R_OUT)}, 0 offen"); K.vm -= 1
        K.label(l)
    xfrag_addr(M_AX)
    lanepart()
    K(f"v_lshl_add_u32 v{t0}, v{t2}, 3, v{t3}"); K(f"v_lshl_add_u32 v{t0}, v{t0}, 8, v{t4}"); K(f"v_lshl_add_u32 v{t0}, v{t3}, 6, v{t0}")
    K(f"v_add_u32 v{M_AW}, 16384, v{t0}")
    for p in range(1, 4): K(f"v_xor_b32 v{M_AW+p}, {64*p}, v{M_AW}")
    AB = M_AB
    K(f"v_lshl_add_u32 v{t0}, v{t2}, 2, v{t3}"); K(f"v_lshl_add_u32 v{t0}, v{t0}, 7, v{t4}"); K(f"v_bfe_u32 v{t1}, v{V_LANE}, 3, 1"); K(f"v_lshl_add_u32 v{t0}, v{t1}, 6, v{t0}")
    K(f"v_add_u32 v{AB}, s{S_M02}, v{t0}"); K(f"v_xor_b32 v{AB+1}, 64, v{AB}")
    K(f"v_add_u32 v{AB+2}, 65536, v{AB}"); K(f"v_add_u32 v{AB+3}, 65536, v{AB+1}")
    K(f"v_lshlrev_b32 v{t0}, 9, v{t2}"); K(f"v_sub_u32 v22, v{AB+2}, v{t0}"); K(f"v_sub_u32 v23, v{AB+3}, v{t0}")
    K(f"s_lshl_b32 s{T}, s{S_A}, 7"); K(f"s_add_u32 s{T}, s{T}, {L_B2}"); K(f"v_lshl_add_u32 v0, v{t2}, 3, s{T}")
    K(f"s_lshl_b32 s{T}, s{S_A}, 8"); K(f"s_add_u32 s{T}, s{T}, {L_B1}"); K(f"v_lshl_add_u32 v{t0}, v{t2}, 3, s{T}")
    box = {}
    K(f"s_cmp_ge_u32 s{S_J}, 14")
    K.branch("s_cbranch_scc1 L_nof")
    vm_nof = K.vm
    K.wait_vm(tk_b1)
    for q in range(8): K(f"ds_read2_b64 {vr(M_AR+4*q,4)}, v{t0} offset0:{4*q} offset1:{4*q+2}")
    K("s_waitcnt lgkmcnt(0)")
    settag()
    for q in range(32):
        K(f"v_lshlrev_b32 v{M_ACC+2*q}, 16, v{M_AR+q}")
        K(f"v_and_b32 v{M_ACC+2*q+1}, 0xffff0000, v{M_AR+q}")
    if fine: stamp("M_rdy")
    WR, XR = M_BH, M_BH + 4*G
    tk = {}
    def rdg(g):
        ks, p = g // 4, g % 4
        t, ksl = ks // 4, ks % 4
        uo = (t % 2) * 32768
        if p == 0 and ksl == 0:
            shift(range(M_AX, M_AX + 8), SH[t])
            if t == 3: K.wait_vm(tk_b2)
            if t < 6: K("s_barrier")
            else:
                l = newl("s6")
                K.wait_lg(box['cs'])
                K(f"v_cmp_ne_u32 vcc, 4, v{t4}")
                K(f"s_cbranch_vccz {l}")
                lgs = K.lg
                await_(C_S, 4)
                K.lg = lgs
                K.raw(f"{l}:")
        if p == 0: K(f"ds_read_b128 {vr(XR + 4*(ks % 3), 4)}, v{M_AX+ksl} offset:{uo}")
        for r in range(2):
            tk[g] = K(f"ds_read_b64_tr_b16 {vr(WR + 4*(g % G) + 2*r, 2)}, v{M_AW+p} offset:{uo + (16*ksl + 4*r)*256}")
    for g in range(G): rdg(g)
    for g in range(112):
        K.wait_lg(tk[g])
        mfma(M_ACC + 16*(g % 4), WR + 4*(g % G), XR + 4*((g // 4) % 3))
        if g + G < 112: rdg(g + G)
        if g + G == 112: arrive(C_E)
        if g + G + 3 == 96: box['cs'] = K(f"ds_read_b32 v{t4}, v{V_CNT} offset:{C_S}")
        if mpf > 1 and g == mpf: mall_pf()
    stamp("ffn1")
    if prioG: K(f"s_setprio {prioG}")
    cc = -2.0 * 0.7978845608028654 * 1.4426950408889634
    K(f"v_mov_b32 v{t0}, {f2u(cc):#x}"); K(f"v_mov_b32 v{t1}, 1.0"); K(f"s_mov_b32 s{S_K}, {f2u(cc*0.044715):#x}"); K(f"s_mov_b32 s{S_K+1}, {f2u(cc*0.044715):#x}")
    tkh = {}
    for g in range(8):
        a = M_ACC + 8*g; tt = M_AR + 8*(g % 2); o = M_AR + 48 + 4*g
        for e in range(0, 8, 2): K(f"v_pk_mul_f32 {vr(tt+e,2)}, {vr(a+e,2)}, {vr(a+e,2)}")
        for e in range(0, 8, 2): K(f"v_pk_fma_f32 {vr(tt+e,2)}, {vr(tt+e,2)}, {sp(S_K)}, {vr(t0,2)} op_sel_hi:[1,1,0]")
        for e in range(0, 8, 2): K(f"v_pk_mul_f32 {vr(tt+e,2)}, {vr(a+e,2)}, {vr(tt+e,2)}")
        for e in range(8): K(f"v_exp_f32 v{tt+e}, v{tt+e}")
        for e in range(0, 8, 2): K(f"v_pk_add_f32 {vr(tt+e,2)}, {vr(tt+e,2)}, {vr(t0,2)} op_sel:[0,1] op_sel_hi:[1,1]")
        for e in range(8): K(f"v_rcp_f32 v{tt+e}, v{tt+e}")
        for e in range(0, 8, 2): K(f"v_pk_mul_f32 {vr(tt+e,2)}, {vr(a+e,2)}, {vr(tt+e,2)}")
        for e in range(4): K(f"v_cvt_pk_bf16_f32 v{o+e}, v{tt+2*e}, v{tt+2*e+1}")
        if g == gw: arrive(C_G)
        if (g + 1) % sb == 0:
            for x in range(g + 1 - sb, g + 1):
                if x == 4: K(f"s_add_u32 s{S_RS}, s{S_RS}, 4096")
                tkh[x] = K(f"buffer_store_dwordx4 {vr(M_AR + 48 + 4*x,4)}, v{V_L16}, {srd(R_WS)}, s{S_RS} offen offset:{1024*(x%4)} sc1")
    stamp("gelu_v")
    K.wait_vm(tkh[3]); flag(S_FL)
    stamp("gelu")
    K(f"s_cmp_eq_u32 s{S_ACT}, 1")
    K.branch("s_cbranch_scc1 L_p2")
    K("s_waitcnt vmcnt(0)")
    flag(S_FL2)
    K.branch("s_branch L_fin")
    K.label("L_nof")
    K.vm = vm_nof
    K("s_waitcnt lgkmcnt(0)")
    settag()
    for t in range(6):
        if t == 3: K("s_waitcnt vmcnt(0)")
        K("s_barrier")
    if mpf > 1: mall_pf()
    arrive(C_E); arrive(C_G)

    K.label("L_p2")
    tk_h = K.vm
    def g_wo(hf):
        def step(q):
            def f():
                if q == 0:
                    K(f"s_mul_i32 s{TD}, s{S_A}, {112*896}"); K(f"s_lshl_b32 s{TD+1}, s{S_CT}, 7"); K(f"s_add_u32 s{TD}, s{TD}, s{TD+1}")
                    if hf: K(f"s_add_u32 s{TD}, s{TD}, {56*896}")
                    K(f"s_add_u32 m0, s{S_M02}, {U[RUNIT[7+hf]]}")
                if q == 4: K(f"s_add_u32 s{TD}, s{TD}, {32*896}"); K(f"s_add_u32 m0, s{S_M02}, {U[RUNIT[7+hf]] + 4096}")
                x = K(f"buffer_load_dwordx4 v{V_D2+q%4}, {srd(R_WO)}, s{TD} offen offset:{1024*(q%4)} lds")
                if q == 6: tk_r[7+hf] = x
            return f
        return [step(q) for q in range(7)]
    tk = {}
    def rdb(ks, part=3):
        r, ksl = ks // 4, ks % 4
        b = M_BH + 8 * (ks % 8)
        u = RUNIT[r]
        if ksl == 0 and r >= 2 and part & 1: K.wait_vm(tk_r[r])
        for pp in range(2):
            for h in range(2):
                if not part & (1 << pp): continue
                if r < 7:
                    tk[ks] = K(f"ds_read_b64_tr_b16 {vr(b + 4*pp + 2*h, 2)}, v{AB + pp + (2 if u >= 2 else 0)} offset:{(u%2)*32768 + (16*ksl + 8*h)*128}")
                else:
                    hh, sx = (ks % 4) // 2, ks % 2
                    tk[ks] = K(f"ds_read_b64_tr_b16 {vr(b + 4*pp + 2*h, 2)}, v{(22 if (sx == 1 and h == 1) else AB + 2) + pp} offset:{(u%2)*32768 + (28*hh + 16*sx + 8*h)*128}")
    tk_a = {}
    def lda(ks, part=3):
        b = M_AR + 8 * (ks % NA); r = ks // 4
        if part & 1:
            if ks % 4 == 0: K(f"s_add_u32 s{T+7}, s{S_HB3 if r == 3 else S_HB}, {0 if r == 3 else (2*r % 7)*4096}")
            K(f"buffer_load_dwordx4 {vr(b,4)}, v{V_L16}, {srd(R_WS)}, s{T+7} offen offset:{1024*(ks%4)} sc1")
        if part & 2: tk_a[ks] = K(f"buffer_load_dwordx4 {vr(b+4,4)}, v{M_L16B}, {srd(R_WS)}, s{T+7} offen offset:{1024*(ks%4)} sc1")
    B2T = M_AR + 80
    for q in range(4): K(f"ds_read2_b64 {vr(B2T+4*q,4)}, v0 offset0:{4*q} offset1:{4*q+2}")
    def unpack(e):
        for t2_ in range(2):
            K(f"v_lshlrev_b32 v{M_ACC+32*t2_+2*e}, 16, v{B2T+e}")
            K(f"v_and_b32 v{M_ACC+32*t2_+2*e+1}, 0xffff0000, v{B2T+e}")
    await_(C_E, 8)
    g0, g1, g2, g3 = g_w2(0), g_w2(1), g_w2(2), g_w2(3)
    for q in range(8):
        g0[q](); unpack(2*q); unpack(2*q + 1)
    K.wait_vm(tk_h - 1)
    flag(S_FL2)
    K(f"s_setprio 0")
    stamp("h_pub1")
    poll_issue(FL_E)
    run(g1)
    poll_check(FL_E)
    stamp("hE_seen")
    for ks in range(4): lda(ks)
    K.wait_vm(tk_r[0])
    for ks in range(4):
        if ks == 3: K.wait_lg(tk[0])
        rdb(ks); lda(4 + ks)
    K.wait_vm(tk_r[1]); K.wait_lg(tk[3])
    for q in range(8):
        g2[q]()
        if q < 4:
            if q == 3: K.wait_lg(tk[4])
            rdb(4 + q)
    K("s_waitcnt lgkmcnt(0)")
    stamp("p2_prep")
    poll_issue(FL_L)
    for ks in range(8, 12): pend.extend([lambda ks=ks: lda(ks, 1), lambda ks=ks: lda(ks, 2)])
    pend.extend(g3)
    def step(ks, side):
        K.wait_vm(tk_a[ks])
        if ks >= 8: K.wait_lg(tk[ks])
        a = M_AR + 8 * (ks % NA); b = M_BH + 8 * (ks % 8)
        n = 0
        for t2_ in range(2):
            for pp in range(2):
                mfma(M_ACC + 32*t2_ + 16*pp, b + 4*pp, a + 4*t2_)
                side(n); n += 1
    nxt = [12]
    for ks in range(28):
        def side(n):
            if n < 2 and ks + 3 >= 8: rdb(ks + 3, 1 << n)
            drip(2 if len(pend) > 8 else 1)
        step(ks, side)
        if ks == c0:
            poll_check(FL_L)
            stamp("hL_seen")
        if ks == 7:
            await_(C_3, 4)
            pend.extend(g_w2(4))
        while ks >= c0 and nxt[0] <= ks + NA and nxt[0] < 28:
            pend.extend([lambda k=nxt[0]: lda(k, 1), lambda k=nxt[0]: lda(k, 2)]); nxt[0] += 1
        if ks == 11: pend.extend(g_w2(5))
        if ks == 15: pend.extend(g_w2(6))
        if ks == 17:
            await_(C_Q, 4)
            pend.extend(g_wo(0))
        if ks == 19: pend.extend(g_wo(1))
        if ks in (3, 11, 19): stamp(f"p2_k{ks}")
    assert not pend
    K("s_waitcnt lgkmcnt(4)")
    poll_issue(FL_O)
    stamp("p2_h_done")
    K(f"v_and_b32 v{t2}, 31, v{V_LANE}"); K(f"v_lshlrev_b32 v{t2}, 2, v{t2}")
    K(f"s_lshl_b32 s{T+3}, s{S_OB}, 7"); K(f"s_add_u32 s{T+3}, s{T+3}, {WS_G}")
    K(f"s_lshl_b32 s{T+4}, s{S_OB}, 11"); K(f"s_add_u32 s{T+4}, s{T+4}, {WS_O}")
    K(f"v_add_u32 v{M_L16B}, 32768, v{V_L16}")
    K(f"v_add_u32 v{V_D2}, s{S_M02}, v{V_L16}")
    for q in range(1, 4): K(f"v_xor_b32 v{V_D2+q}, {64*q}, v{V_D2}")
    poll_check(FL_O)
    stamp("o_seen")
    K(f"buffer_load_dword v{t4}, v{t2}, {srd(R_WS)}, s{T+3} offen sc1")
    tk_g = K(f"buffer_load_dword v{t5}, v{t2}, {srd(R_WS)}, s{T+3} offen offset:2048 sc1")
    for ks in range(28, 36):
        b = M_AR + 8 * (ks % NA)
        if ks == 32: K(f"s_add_u32 s{T+4}, s{T+4}, 4096")
        K(f"buffer_load_dwordx4 {vr(b,4)}, v{V_L16}, {srd(R_WS)}, s{T+4} offen offset:{1024*(ks%4)} sc1")
        tk_a[ks] = K(f"buffer_load_dwordx4 {vr(b+4,4)}, v{M_L16B}, {srd(R_WS)}, s{T+4} offen offset:{1024*(ks%4)} sc1")
    K.wait_vm(tk_g)
    K(f"v_sub_f32 v{t4}, 1.0, v{t4}"); K(f"v_sub_f32 v{t5}, 1.0, v{t5}")
    K(f"v_cvt_pk_bf16_f32 v{t4}, v{t4}, v{t5}"); K(f"v_and_b32 v{t5}, 0xffff0000, v{t4}"); K(f"v_lshlrev_b32 v{t4}, 16, v{t4}")
    for e in range(0, 64, 2): pscale(M_ACC+e, t4 if e < 32 else t5, True)
    for ks in range(28, 36):
        def side(n):
            if n < 2 and ks + 3 < 36: rdb(ks + 3, 1 << n)
        step(ks, side)
    for t2_ in range(2):
        for b in range(8): K(f"ds_write_b128 v{V_D2 + b%4}, {vr(M_ACC+32*t2_+4*b,4)} offset:{32768*t2_ + 1024*b}")
    stamp("p2_done")

    K.label("L_red")
    K(f"v_and_b32 v{t1}, 7, v{V_LANE}"); K(f"v_lshrrev_b32 v{t3}, 3, v{V_LANE}")
    K(f"s_lshl_b32 s{T+1}, s{S_A}, 3"); K(f"v_add_u32 v{t0}, s{T+1}, v{t3}")
    K(f"v_and_b32 v{t2}, 3, v{V_LANE}"); K(f"v_lshlrev_b32 v{t2}, 2, v{t2}"); K(f"v_xor_b32 v{t0}, v{t0}, v{t2}")
    K(f"v_lshlrev_b32 v{t0}, 4, v{t0}"); K(f"v_lshl_add_u32 v{t0}, v{t1}, 10, v{t0}")
    K(f"s_lshr_b32 s{T+2}, s{S_W}, 2"); K(f"s_lshl_b32 s{T}, s{T+2}, 15"); K(f"v_add_u32 v{t0}, s{T}, v{t0}")
    K(f"v_mul_u32_u24 v{t3}, 896, v{t3}"); K(f"v_lshl_add_u32 v{t3}, v{t1}, 4, v{t3}")
    K(f"s_lshl_b32 s{T}, s{S_ROW}, 2"); K(f"s_add_u32 s{T}, s{T}, s{S_W}"); K(f"s_mul_i32 s{T}, s{T}, {8*896}"); K(f"s_lshl_b32 s{T+1}, s{S_CT}, 7"); K(f"s_add_u32 s{T+5}, s{T}, s{T+1}")
    K("s_waitcnt lgkmcnt(0)")
    K("s_barrier")
    R = 160
    for q in range(4):
        K(f"ds_read_b128 {vr(R+8*q,4)}, v{t0} offset:{8192*q}")
        K(f"ds_read_b128 {vr(R+8*q+4,4)}, v{t0} offset:{8192*q + 512}")
    K("s_waitcnt lgkmcnt(4)")
    for e in range(0, 8, 2): padd(R+e, R+e, R+8+e, True)
    K("s_waitcnt lgkmcnt(0)")
    for e in range(0, 8, 2): padd(R+16+e, R+16+e, R+24+e, True)
    for e in range(0, 8, 2): padd(R+e, R+e, R+16+e, True)
    for e in range(4): K(f"v_cvt_pk_bf16_f32 v{R+e}, v{R+2*e}, v{R+2*e+1}")
    K(f"buffer_store_dwordx4 {vr(R,4)}, v{t3}, {srd(R_OUT)}, s{T+5} offen" + ["", " sc1", " nt", " sc0 sc1"][outm])
    K(f"s_or_b32 s{T}, s2, s{S_W}"); K(f"s_cmp_lg_u32 s{T}, 0")
    K.branch("s_cbranch_scc1 L_fin")
    K(f"s_mov_b32 s{T}, {WS_EPOCH}")
    flag(T)
    K.label("L_fin")
    if stamps:
        K("s_waitcnt vmcnt(0)")
        stamp("end")
        K(f"s_lshl_b32 s{T}, s2, 3"); K(f"s_add_u32 s{T}, s{T}, s{S_W}"); K(f"s_lshl_b32 s{T}, s{T}, 8"); K(f"s_add_u32 s{T}, s{T}, {WS_STAMP}")
        K(f"v_lshlrev_b32 v{t0}, 2, v{V_LANE}")
        K(f"buffer_store_dword v{V_STAMP}, v{t0}, {srd(R_WS)}, s{T} offen")
    K.label("L_end")
    K("s_endpgm")
    K.raw(f".fill (28672 + 4096 * {1 if stamps else 0} - (L_end - {NAME})) / 4, 4, 0xbf800000")

    head = f"""; Fused gated mix of hedgehog linear attention and GELU FFN (emitted by a hand-written generator script)
; @launch grid=(256,1,1) block=(512,1,1) lds=163840
.amdgcn_target "amdgcn-amd-amdhsa--gfx950"
.text
.globl {NAME}
.p2align 8
.type {NAME},@function
"""
    tail = f""".section .rodata,"a"
.p2align 6
.amdhsa_kernel {NAME}
  .amdhsa_next_free_vgpr 256
  .amdhsa_next_free_sgpr 102
  .amdhsa_accum_offset 256
  .amdhsa_group_segment_fixed_size 0
  .amdhsa_kernarg_size 104
  .amdhsa_user_sgpr_count 2
  .amdhsa_user_sgpr_kernarg_segment_ptr 1
  .amdhsa_system_sgpr_workgroup_id_x 1
.end_amdhsa_kernel
"""
    return head + K.text() + tail

STAMP_IDS = {}
def parse_opts(argv):
    kw = {}
    for a in argv:
        if a.startswith("-D"):
            k, v = a[2:].split("="); kw[k] = int(v)
    return kw
if __name__ == "__main__":
    out = sys.argv[1] if len(sys.argv) > 1 else "k.s"
    open(out, "w").write(gen(**parse_opts(sys.argv)))
```

```python
import sys, struct
from asmlib import Asm

NAME = "gated_mix__linear_kernel_hedgehog__dense_activation_gelu__prompt_kernel"
def f2u(x): return struct.unpack("<I", struct.pack("<f", x))[0]

WS_EPOCH = 0
WS_RPF   = 0x8000
WS_STAMP = 0x10000
WS_G     = 0xA0000
WS_WQ    = 0x100000
WS_KVP   = 0x280000
WS_O     = 0x480000
WS_H     = 0x680000
WS_HF    = 0xE00000
WS_KVF   = 0xE50000
WS_OF    = 0xE70000
WS_SIZE  = 0xF00000

U = [0, 32768, 65536, 98304, 131072]
L_K, L_V, L_Q = 98304, 126976, 65536
L_MISC = 155648
L_PHI, L_CNT, L_B2, L_B1 = L_MISC, L_MISC + 2048, L_MISC + 2560, L_MISC + 3072
L_KVS = U[3]
L_KVF = L_MISC + 4096
RUNIT = [0, 1, 0, 1, 3, 0, 1, 2, 3]
C_E, C_0, C_1, C_2, C_3, C_4, C_Q, C_G, C_B, C_S = 0, 4, 8, 12, 16, 20, 24, 28, 32, 36

P_X, P_WQKV, P_PHI, P_WO, P_W1, P_B1, P_W2 = 16, 18, 20, 22, 26, 28, 30
P_B2, P_GATE, P_OUT, P_WS = 32, 34, 36, 40
R_X, R_W1, R_W2, R_WO, R_WS, R_OUT, R_T = 44, 48, 52, 56, 60, 64, 68
S_MT, S_J, S_W, S_A, S_FL2, S_TAG, S_CH, S_CNT = 72, 73, 74, 75, 76, 78, 77, 100
S_CHO = 80
S_M0 = 87
S_XB, S_W1B = 88, 89
S_T = 90
S_UP = 98
S_E = 42
S_H = S_J
S_CT, S_ROW, S_ACT = 43, 3, 101
S_K = 4
S_ST = 6
S_L28 = 24
S_FL = 8
S_HB, S_W2B, S_OB, S_HB3, S_W2B3, S_M02, S_RS = 9, 10, 11, 12, 13, 14, 15
S_PE, S_P3, S_PO = 34, 35, 38
PD = [16, 17, 18, 19, 20, 21, 22, 23, 26, 27, 28, 29, 30, 31, 32, 33]
def srd(r): return f"s[{r}:{r+3}]"
def sp(r): return f"s[{r}:{r+1}]"

V_LANE, V_L16, V_STAMP, V_TAG, V_POLL, V_CNT = 1, 2, 3, 4, 5, 6
V_T = 8
V_D2 = 18
A_PA, A_AX, A_AD, A_L4, A_PH, A_TR, A_G = 7, 14, 22, 24, 25, 30, 31
V_W, V_P, V_ACC, V_PHI, V_X = 32, 64, 96, 128, 144
A_XD, A_WD, A_QD, A_GW = 64, 68, 72, 16
M_L16B, M_AB = 7, 14
M_ACC, M_BH, M_AR = 24, 88, 152
M_AX, M_AW = 136, 140
NA = 13
def vr(a, n): return f"v[{a}:{a+n-1}]"
UPM = sp(S_UP)
L2E = 1.4426950408889634

def gen(stamps=False, spin=20000, rot1=True, codepf=True, slp=2, cyc=False, G=5, prioA=1, prioM=2, kvf=27, fine=False,
        pkq=0, pkk=1, LA=9, LA0=6, c0=2, mpf=40, outm=0, tlb=21, gw=6, hf0=7, rpb=3, prioG=2, k6=4, qpf=1, sb=1, qd=6, probe=None):
    K = Asm()
    T = S_T
    TD = T + 5
    t0, t1, t2, t3, t4, t5 = range(V_T, V_T + 6)
    def stamp(name):
        if not stamps: return
        if probe is not None and name != probe: return
        K("s_waitcnt lgkmcnt(0)")
        K(f"s_memrealtime {sp(S_ST)}")
        if cyc: K(f"s_memtime s[0:1]")
        K("s_waitcnt lgkmcnt(0)")
        i = STAMP_IDS.setdefault(name, len(STAMP_IDS))
        K(f"v_writelane_b32 v{V_STAMP}, s{S_ST}, {i}")
        if cyc: K(f"v_writelane_b32 v{V_STAMP}, s0, {32 + i}")
    uid = [0]
    def newl(p): uid[0] += 1; return f"L_{p}{uid[0]}"
    def poll_issue(fl):
        for n, (so, im) in enumerate(fl):
            if n == 15: K("s_waitcnt lgkmcnt(14)")
            K(f"s_load_dword s{PD[n]}, {sp(P_WS)}, s{so} offset:{im} glc")
    def poll_check(fl):
        l, d = newl("poll"), newl("polld")
        K(f"s_mov_b32 s{S_CNT}, {spin}")
        K.raw(f"{l}:")
        K("s_waitcnt lgkmcnt(0)")
        for n in range(0, len(fl), 2):
            K(f"s_xor_b64 {sp(PD[n])}, {sp(PD[n])}, {sp(S_TAG)}")
            if n: K(f"s_or_b64 {sp(PD[0])}, {sp(PD[0])}, {sp(PD[n])}")
        K.branch(f"s_cbranch_scc0 {d}")
        K(f"s_sub_u32 s{S_CNT}, s{S_CNT}, 1")
        K(f"s_cbranch_scc1 {d}")
        if slp: K(f"s_sleep {slp}")
        poll_issue(fl)
        K(f"s_branch {l}")
        K.label(d)
    def vpoll_issue(vaddr):
        return K(f"buffer_load_dword v{V_POLL}, v{vaddr}, {srd(R_WS)}, 0 offen sc1")
    def vpoll_check(tok, vaddr):
        l, d = newl("poll"), newl("polld")
        K(f"s_mov_b32 s{S_CNT}, {spin}")
        K.wait_vm(tok)
        K.label(l)
        K(f"v_cmp_ne_u32 vcc, s{S_TAG}, v{V_POLL}")
        K.branch(f"s_cbranch_vccz {d}")
        K(f"s_sub_u32 s{S_CNT}, s{S_CNT}, 1")
        K.branch(f"s_cbranch_scc1 {d}")
        K(f"s_sleep 10")
        K(f"buffer_load_dword v{V_POLL}, v{vaddr}, {srd(R_WS)}, 0 offen sc1"); K.vm -= 1
        K("s_waitcnt vmcnt(0)")
        K.branch(f"s_branch {l}")
        K.label(d)
    def flag(soff_reg):
        K("s_mov_b64 exec, 1")
        K(f"buffer_store_dword v{V_TAG}, v{V_LANE}, {srd(R_WS)}, s{soff_reg} offen sc1")
        K("s_mov_b64 exec, -1")
    def arrive(c):
        K(f"v_mov_b32 v{t5}, 1")
        K("s_mov_b64 exec, 1")
        K(f"ds_add_u32 v{V_CNT}, v{t5} offset:{c}")
        K("s_mov_b64 exec, -1")
    def await_(c, n, sleep=0):
        l, d = newl("aw"), newl("awd")
        K(f"s_mov_b32 s{S_CNT}, {spin * 8}")
        K.label(l)
        K(f"ds_read_b32 v{t5}, v{V_CNT} offset:{c}")
        K("s_waitcnt lgkmcnt(0)")
        K(f"v_cmp_ne_u32 vcc, {n}, v{t5}")
        K.branch(f"s_cbranch_vccz {d}")
        if sleep: K(f"s_sleep {sleep}")
        K(f"s_sub_u32 s{S_CNT}, s{S_CNT}, 1")
        K.branch(f"s_cbranch_scc0 {l}")
        K.label(d)
    def mksrd(r, p, nbytes):
        K(f"s_mov_b32 s{r}, s{p}"); K(f"s_and_b32 s{r+1}, s{p+1}, 0xffff")
        K(f"s_mov_b32 s{r+2}, {nbytes}"); K(f"s_mov_b32 s{r+3}, 0x20000")
    def mfma(d, a, b, c=None):
        cs = vr(d, 16) if c is None else c
        K(f"v_mfma_f32_32x32x16_bf16 {vr(d,16)}, {vr(a,4)}, {vr(b,4)}, {cs}")
    def padd(d, a, b, pk):
        if pk: K(f"v_pk_add_f32 {vr(d,2)}, {vr(a,2)}, {vr(b,2)}")
        else: K(f"v_add_f32 v{d}, v{a}, v{b}"); K(f"v_add_f32 v{d+1}, v{a+1}, v{b+1}")
    def pscale(d, r, pk):
        if pk: K(f"v_pk_mul_f32 {vr(d,2)}, {vr(d,2)}, {vr(r & ~1,2)} " + ("op_sel:[0,1] op_sel_hi:[1,1]" if r & 1 else "op_sel_hi:[1,0]"))
        else: K(f"v_mul_f32 v{d}, v{d}, v{r}"); K(f"v_mul_f32 v{d+1}, v{d+1}, v{r}")
    def settag():
        K(f"s_add_u32 s{S_TAG}, s{S_E}, 0x9E3779B9"); K(f"s_mov_b32 s{S_TAG+1}, s{S_TAG}"); K(f"v_mov_b32 v{V_TAG}, s{S_TAG}")
    def xfrag_addr(dst):
        K(f"v_and_b32 v{t0}, 31, v{V_LANE}"); K(f"v_lshrrev_b32 v{t2}, 5, v{V_LANE}"); K(f"v_bfe_u32 v{t3}, v{V_LANE}, 1, 3")
        K(f"v_xor_b32 v{t3}, v{t2}, v{t3}"); K(f"s_lshl_b32 s{T}, s{S_A}, 12"); K(f"v_lshlrev_b32 v{t0}, 7, v{t0}")
        K(f"v_lshl_add_u32 v{t0}, v{t3}, 4, v{t0}"); K(f"v_add_u32 v{dst}, s{T}, v{t0}")
        for k in range(1, 4): K(f"v_xor_b32 v{dst+k}, {32*k}, v{dst}")
    def lanepart():
        K(f"v_bfe_u32 v{t4}, v{V_LANE}, 4, 1"); K(f"v_lshlrev_b32 v{t4}, 5, v{t4}")
        K(f"v_and_b32 v{t3}, 3, v{V_LANE}"); K(f"v_lshl_add_u32 v{t4}, v{t3}, 3, v{t4}")
        K(f"v_bfe_u32 v{t3}, v{V_LANE}, 2, 2"); K(f"v_lshrrev_b32 v{t2}, 5, v{V_LANE}")
    def p2setup():
        mksrd(R_W2, P_W2, 1792*896)
        K(f"s_and_b32 s{T}, s2, 7"); K(f"s_lshr_b32 s{T+1}, s2, 3")
        K(f"s_mul_i32 s{T+2}, s{T+1}, 37"); K(f"s_lshr_b32 s{T+2}, s{T+2}, 8"); K(f"s_mul_i32 s{T+3}, s{T+2}, 7"); K(f"s_sub_u32 s{S_CT}, s{T+1}, s{T+3}")
        K(f"s_lshl_b32 s{T+2}, s{T+2}, 1"); K(f"s_lshl_b32 s{T+3}, s{T}, 3"); K(f"s_add_u32 s{S_ROW}, s{T+2}, s{T+3}")
        K(f"s_cmp_lt_u32 s{T+1}, 28"); K(f"s_cselect_b32 s{S_ACT}, 1, 0")
        K(f"s_and_b32 s{T+2}, s{S_A}, 1"); K(f"s_mul_i32 s{T+3}, s{S_A}, 7"); K(f"s_add_u32 s{T+4}, s{T+3}, s{T+2}")
        K(f"s_cmp_eq_u32 s{T+2}, 0"); K(f"s_cselect_b32 s{T+2}, 6, 0"); K(f"s_add_u32 s{T+2}, s{T+2}, s{T+3}")
        K(f"s_lshl_b32 s{T}, s{S_CT}, 7")
        K(f"s_mul_i32 s{S_W2B}, s{T+4}, {64*896}"); K(f"s_add_u32 s{S_W2B}, s{S_W2B}, s{T}")
        K(f"s_mul_i32 s{S_W2B3}, s{T+2}, {64*896}"); K(f"s_add_u32 s{S_W2B3}, s{S_W2B3}, s{T}")
        K(f"s_lshl_b32 s{S_M02}, s{S_A}, 13")
        K(f"v_lshrrev_b32 v{t0}, 3, v{V_LANE}"); K(f"v_and_b32 v{t1}, 7, v{V_LANE}")
        K(f"v_bfe_u32 v{t2}, v{V_LANE}, 4, 1"); K(f"v_lshlrev_b32 v{t2}, 2, v{t2}"); K(f"v_xor_b32 v{t1}, v{t1}, v{t2}")
        K(f"v_mul_u32_u24 v{t0}, 896, v{t0}"); K(f"v_lshl_add_u32 v{V_D2}, v{t1}, 4, v{t0}")
        for q in range(1, 4): K(f"v_add_u32 v{V_D2+q}, {q*(8*896-1024)}, v{V_D2}")
        K(f"v_mov_b32 v{V_CNT}, {L_CNT}")
    def shift(regs, d):
        for r in regs:
            if d > 0: K(f"v_add_u32 v{r}, {d}, v{r}")
            elif d < 0: K(f"v_subrev_u32 v{r}, {-d}, v{r}")
    pend = []
    def drip(n):
        for _ in range(n):
            if pend: pend.pop(0)()
    def run(steps):
        for f in steps: f()
    tk_r = {}
    def g_w2(r):
        def step(q):
            def f():
                if q % 4 == 0:
                    K(f"s_add_u32 s{TD}, s{S_W2B3 if r == 3 else S_W2B}, {(0 if r == 3 else (2*r % 7)*64*896) + (q // 4)*32*896}")
                    K(f"s_add_u32 m0, s{S_M02}, {U[RUNIT[r]] + (q // 4)*4096}")
                x = K(f"buffer_load_dwordx4 v{V_D2+q%4}, {srd(R_W2)}, s{TD} offen offset:{1024*(q%4)} lds")
                if q == 7: tk_r[r] = x
            return f
        return [step(q) for q in range(8)]
    SH = [0, 0, 65536, 0, -65536, 0, 65536]

    K.raw(f"{NAME}:")
    K("s_cmp_ge_u32 s2, 256"); K("s_cbranch_scc1 L_end")
    K("s_load_dwordx16 s[16:31], s[0:1], 0"); K("s_load_dwordx8 s[32:39], s[0:1], 64"); K("s_load_dwordx2 s[40:41], s[0:1], 96")
    if stamps:
        K(f"s_memrealtime {sp(S_ST)}")
        K(f"v_mov_b32 v{V_STAMP}, 0")
    K(f"v_lshrrev_b32 v{t0}, 6, v0"); K(f"v_and_b32 v{V_LANE}, 63, v0")
    K(f"v_readfirstlane_b32 s{S_W}, v{t0}")
    K(f"v_lshlrev_b32 v{V_L16}, 4, v{V_LANE}")
    K(f"s_and_b32 s{T}, s2, 7"); K(f"s_lshr_b32 s{T+1}, s2, 3")
    if codepf:
        K(f"s_lshr_b32 s{T+2}, s2, 5"); K(f"s_lshl_b32 s{T+2}, s{T+2}, 3"); K(f"s_or_b32 s{T+2}, s{T+2}, s{S_W}"); K(f"s_cmp_lg_u32 s{T+2}, 7")
        K("s_cbranch_scc1 L_nopf")
        K(f"s_getpc_b64 {sp(T+2)}")
        K.raw("L_pc:")
        K(f"s_lshl_b32 s{T+4}, s{T+1}, 7"); K(f"s_sub_u32 s{T+2}, s{T+2}, L_pc - {NAME}"); K(f"s_subb_u32 s{T+3}, s{T+3}, 0")
        K(f"s_add_u32 s{T+2}, s{T+2}, s{T+4}"); K(f"s_addc_u32 s{T+3}, s{T+3}, 0")
        K(f"v_lshlrev_b32 v{t0}, 9, v{V_LANE}")
        K("s_mov_b32 exec_hi, 0xffffff")
        K(f"global_load_dword v{V_POLL}, v{t0}, {sp(T+2)}"); K.vm -= 1
        K("s_mov_b32 exec_hi, -1")
        K.label("L_nopf")
    K(f"s_and_b32 s{T+2}, s{T}, 2"); K(f"s_lshl_b32 s{T+2}, s{T+2}, 1")
    K(f"s_and_b32 s{T+3}, s{T}, 1"); K(f"s_cmp_lt_u32 s{T+1}, 4"); K(f"s_cselect_b32 s{T+4}, 14, 12"); K(f"s_add_u32 s{T+3}, s{T+3}, s{T+4}")
    K(f"s_lshr_b32 s{T+4}, s{T+1}, 3"); K(f"s_lshl_b32 s{S_J}, s{T+4}, 2"); K(f"s_and_b32 s{S_MT}, s{T}, 3"); K(f"s_add_u32 s{S_J}, s{S_J}, s{S_MT}"); K(f"s_sub_u32 s{S_J}, s{S_J}, 4")
    K(f"s_cmp_lt_u32 s{T+1}, 8"); K(f"s_cselect_b32 s{S_J}, s{T+3}, s{S_J}"); K(f"s_cselect_b32 s{T+2}, s{T+2}, 0")
    K(f"s_and_b32 s{T+3}, s{T+1}, 7"); K(f"s_xor_b32 s{T+3}, s{T+3}, s{T+2}")
    K(f"s_and_b32 s{S_MT}, s{T}, 4"); K(f"s_lshl_b32 s{S_MT}, s{S_MT}, 1"); K(f"s_add_u32 s{S_MT}, s{S_MT}, s{T+3}")
    K(f"s_and_b32 s{S_A}, s{S_W}, 3")
    K(f"s_lshl_b32 s{S_W1B}, s{S_J}, 8")
    K(f"s_cmp_lt_u32 s{S_J}, 14")
    K.branch("s_cbranch_scc1 L_norp")
    K(f"s_lshl_b32 s{S_FL}, s{S_MT}, 1"); K(f"s_add_u32 s{S_FL}, s{S_FL}, s{S_J}"); K(f"s_sub_u32 s{S_FL}, s{S_FL}, 14")
    RB = 96
    K(f"s_cmp_eq_u32 s{S_W}, 7")
    K.branch("s_cbranch_scc1 L_rp7")
    K0 = S_XB
    K(f"s_mul_i32 s{K0}, s{S_FL}, 14"); K(f"s_lshl_b32 s{T+5}, s{S_W}, 1"); K(f"s_add_u32 s{K0}, s{K0}, s{T+5}")
    K(f"v_lshrrev_b32 v{t0}, 3, v{V_LANE}"); K(f"v_bfe_u32 v{t1}, v{V_LANE}, 2, 1"); K(f"v_and_b32 v{t2}, 3, v{V_LANE}")
    K(f"v_mul_u32_u24 v{t3}, 56, v{t0}"); K(f"v_mul_u32_u24 v{t4}, 2688, v{t1}"); K(f"v_add_u32 v{t3}, v{t3}, v{t4}")
    K(f"v_lshl_add_u32 v{t3}, v{t2}, 4, v{t3}")
    K(f"s_mul_i32 s{T+5}, s{K0}, 2688"); K(f"v_lshlrev_b32 v{t4}, 1, v{t1}"); K(f"s_lshl_b32 s{T+6}, s{K0}, 1")
    K("s_waitcnt lgkmcnt(0)")
    mksrd(R_T, P_WQKV, 448*2688)
    tkl = {}
    for q in (2, 3, 4, 5): tkl[q] = K(f"buffer_load_dwordx4 {vr(RB+4*q,4)}, v{t3}, {srd(R_T)}, s{T+5} offen offset:{448*q}")
    mksrd(R_X, P_GATE, 896)
    K(f"buffer_load_ushort v{RB+24}, v{t4}, {srd(R_X)}, s{T+6} offen")
    for q in (0, 1): tkl[q] = K(f"buffer_load_dwordx4 {vr(RB+4*q,4)}, v{t3}, {srd(R_T)}, s{T+5} offen offset:{448*q}")
    mksrd(R_WS, P_WS, WS_SIZE)
    K(f"s_mov_b32 s{T+6}, 86016"); K(f"v_mul_lo_u32 v{RB+25}, v{t0}, s{T+6}"); K(f"v_and_b32 v{t1}, 7, v{V_LANE}")
    K(f"v_lshl_add_u32 v{RB+25}, v{t1}, 4, v{RB+25}")
    K(f"v_cmp_eq_u32 vcc, 3, v{t2}")
    K(f"s_lshl_b32 s{T+5}, s{K0}, 6"); K(f"s_add_u32 s{T+5}, s{T+5}, {WS_WQ}")
    for q in (2, 3, 4, 5, 0, 1):
        p, hg = q // 2, q % 2; b = RB + 4*q
        K.wait_vm(tkl[q])
        K(f"v_cndmask_b32 v{b+2}, v{b+2}, v{RB+24}, vcc" if p == 0 else f"v_cndmask_b32 v{b+2}, v{b+2}, 0, vcc")
        K(f"v_cndmask_b32 v{b+3}, v{b+3}, 0, vcc")
        K(f"s_add_u32 s{T+6}, s{T+5}, {p*28672 + hg*8*86016}")
        K(f"buffer_store_dwordx4 {vr(b,4)}, v{RB+25}, {srd(R_WS)}, s{T+6} offen sc1")
    K("s_waitcnt vmcnt(0)")
    K("s_barrier")
    K.branch("s_branch L_norp")
    K.label("L_rp7")
    for e in range(4): K(f"v_mov_b32 v{RB+e}, 0")
    K(f"s_lshl_b32 s{T+5}, s{S_FL}, 12"); K(f"s_add_u32 s{T+5}, s{T+5}, {WS_KVP}")
    K(f"s_lshl_b32 s{S_FL}, s{S_FL}, 7"); K(f"s_add_u32 s{S_FL}, s{S_FL}, {WS_RPF}")
    K("s_waitcnt lgkmcnt(0)")
    K(f"s_load_dword s{S_E}, {sp(P_WS)}, {WS_EPOCH}")
    mksrd(R_WS, P_WS, WS_SIZE)
    for q in range(4): K(f"buffer_store_dwordx4 {vr(RB,4)}, v{V_L16}, {srd(R_WS)}, s{T+5} offen offset:{1024*q} sc1")
    K("s_waitcnt vmcnt(0) lgkmcnt(0)")
    settag()
    K("s_barrier")
    flag(S_FL)
    if stamps: K(f"s_mov_b32 s{S_CNT}, s{S_ST}"); stamp("rp_pub"); K(f"s_mov_b32 s{S_ST}, s{S_CNT}")
    K.label("L_norp")
    K(f"s_cmp_ge_u32 s{S_W}, 4")
    K.branch("s_cbranch_scc1 L_M")

    if prioA: K(f"s_setprio {prioA}")
    K(f"s_lshl_b32 s{T+4}, s{T+4}, 1"); K(f"s_add_u32 s{T+2}, s{T+3}, s{T+4}")
    K(f"s_cmp_ge_u32 s{T+2}, 7"); K(f"s_cselect_b32 s{T+3}, 7, 0"); K(f"s_sub_u32 s{S_CH}, s{T+2}, s{T+3}")
    if not rot1: K(f"s_mov_b32 s{S_CH}, 0")
    def rotstep(t):
        K(f"s_lshl_b32 s{S_CHO+t}, s{S_CH}, 12")
        if t < 6: K(f"s_add_u32 s{S_CH}, s{S_CH}, 1"); K(f"s_cmp_eq_u32 s{S_CH}, 7"); K(f"s_cselect_b32 s{S_CH}, 0, s{S_CH}")
    rotstep(0); rotstep(1)
    K(f"s_lshl_b32 s{S_M0}, s{S_A}, 12")
    K(f"s_mul_i32 s{S_XB}, s{S_MT}, {128*896}")
    K(f"v_lshrrev_b32 v{t0}, 3, v{V_LANE}"); K(f"v_and_b32 v{t1}, 7, v{V_LANE}"); K(f"v_lshrrev_b32 v{t2}, 1, v{t0}"); K(f"v_xor_b32 v{t2}, v{t1}, v{t2}")
    K(f"s_lshl_b32 s{T+2}, s{S_A}, 5"); K(f"v_add_u32 v{t3}, s{T+2}, v{t0}"); K(f"v_mul_u32_u24 v{t3}, 896, v{t3}")
    K(f"v_lshl_add_u32 v{A_XD}, v{t2}, 4, v{t3}"); K(f"v_xor_b32 v{t2}, 4, v{t2}"); K(f"v_lshl_add_u32 v{A_XD+1}, v{t2}, 4, v{t3}")
    K(f"v_add_u32 v{A_XD+1}, {8*896-1024}, v{A_XD+1}")
    K(f"v_add_u32 v{A_XD+2}, {16*896-2048}, v{A_XD}"); K(f"v_add_u32 v{A_XD+3}, {16*896-2048}, v{A_XD+1}")
    K(f"v_lshrrev_b32 v{t0}, 4, v{V_LANE}"); K(f"v_and_b32 v{t1}, 15, v{V_LANE}"); K(f"v_lshlrev_b32 v{t2}, 2, v{t0}"); K(f"v_xor_b32 v{t2}, v{t1}, v{t2}")
    K(f"s_lshl_b32 s{T+2}, s{S_A}, 4"); K(f"v_add_u32 v{t3}, s{T+2}, v{t0}"); K(f"v_mul_u32_u24 v{t3}, 3584, v{t3}")
    K(f"v_lshl_add_u32 v{A_WD}, v{t2}, 4, v{t3}")
    for q in range(1, 4): K(f"v_add_u32 v{A_WD+q}, {q*(4*3584-1024)}, v{A_WD}")
    K("s_waitcnt lgkmcnt(0)")
    if stamps: K(f"v_writelane_b32 v{V_STAMP}, s{S_ST}, {STAMP_IDS.setdefault('start', len(STAMP_IDS))}")
    mksrd(R_X, P_X, 2048*896); mksrd(R_W1, P_W1, 448*3584)
    K(f"s_cmp_lt_u32 s{S_J}, 14"); K(f"s_cselect_b32 s{R_W1+2}, s{R_W1+2}, 0")
    tk_stage = {}
    def g_stage(t):
        u = U[t % 4]
        def step(q):
            def f():
                if q == 0: K(f"s_lshr_b32 s{TD}, s{S_CHO+t}, 5"); K(f"s_add_u32 s{TD}, s{TD}, s{S_XB}"); K(f"s_add_u32 m0, s{S_M0}, {u}")
                if q == 4: K(f"s_mul_i32 s{TD}, s{S_CHO+t}, 56"); K(f"s_add_u32 s{TD}, s{TD}, s{S_W1B}"); K(f"s_add_u32 m0, s{S_M0}, {u + 16384}")
                if q < 4: K(f"buffer_load_dwordx4 v{A_XD+q}, {srd(R_X)}, s{TD} offen offset:{1024*q} lds")
                else: x = K(f"buffer_load_dwordx4 v{A_WD+q-4}, {srd(R_W1)}, s{TD} offen offset:{1024*(q-4)} lds")
                if q == 7: tk_stage[t] = x
            return f
        return [step(q) for q in range(8)]
    ilist = []
    for t in range(7): ilist += [(f, t - 2 if t >= 4 else -1) for f in g_stage(t)]
    pos = [0]
    def issue_to(n, lastbar):
        while pos[0] < min(n, len(ilist)) and ilist[pos[0]][1] <= lastbar:
            ilist[pos[0]][0](); pos[0] += 1
    if fine: stamp("A_karg")
    issue_to(8, -1)
    issue_to(8 + LA0, -1)
    if fine: stamp("A_i1")
    K(f"s_load_dword s{S_E}, {sp(P_WS)}, {WS_EPOCH}")
    for t in range(2, 7): rotstep(t)
    mksrd(R_WS, P_WS, WS_SIZE); mksrd(R_OUT, P_OUT, 2048*896)
    p2setup()
    K(f"s_mov_b32 s{S_UP}, 0"); K(f"s_mov_b32 s{S_UP+1}, -1")
    K(f"s_mov_b32 s{S_L28}, 0x10000000"); K(f"s_mov_b32 s{S_L28+1}, 0x10000000")
    xfrag_addr(A_AX)
    lanepart()
    K(f"v_lshl_add_u32 v{t0}, v{t2}, 3, v{t3}"); K(f"v_lshl_add_u32 v{A_TR}, v{t0}, 6, v{t4}")
    K(f"v_lshl_add_u32 v{t0}, v{t2}, 2, v{t3}"); K(f"v_mul_u32_u24 v{t1}, 56, v{t0}"); K(f"v_add_u32 v{t1}, v{t1}, v{t4}"); K(f"v_add_u32 v{A_PH}, {L_PHI}, v{t1}")
    K(f"v_lshlrev_b32 v{A_L4}, 2, v{V_LANE}")
    K(f"s_lshl_b32 s{T}, s{S_A}, 10"); K(f"s_add_u32 s{T}, s{T}, {WS_RPF}"); K(f"v_and_b32 v{A_PA}, 7, v{V_LANE}"); K(f"v_lshl_add_u32 v{A_PA}, v{A_PA}, 7, s{T}")
    K(f"s_mul_i32 s{S_RS}, s{S_J}, {3*28672}"); K(f"s_mul_i32 s{S_P3}, s{S_A}, 7168"); K(f"s_add_u32 s{S_RS}, s{S_RS}, s{S_P3}"); K(f"s_add_u32 s{S_RS}, s{S_RS}, {WS_WQ}")
    K("s_waitcnt lgkmcnt(0)")
    settag()
    if fine: stamp("A_setup")
    tkx = {}
    def g_panel(p, lds):
        def step(q):
            def f():
                if q % 4 == 0: K(f"s_add_u32 s{TD}, s{S_RS}, {28672*p + (q // 4)*4096}"); K(f"s_add_u32 m0, s{S_P3}, {lds + (q // 4)*4096}")
                tkx[p] = K(f"buffer_load_dwordx4 v{V_L16}, {srd(R_WS)}, s{TD} offen offset:{1024*(q%4)} sc1 lds")
            return f
        return [step(q) for q in range(7)]
    for t in range(7):
        issue_to(8*(t+1) + (LA0 if t == 0 else LA), t - 1)
        shift(range(A_AX, A_AX + 4), SH[t])
        if t == 5:
            assert pos[0] == len(ilist)
            tkp = vpoll_issue(A_PA)
        if fine: stamp(f"A{t}a")
        K.wait_vm(tk_stage[t])
        if fine: stamp(f"A{t}b")
        if t < 6:
            if t >= 2: K("s_waitcnt lgkmcnt(4)")
            K("s_barrier")
        else: arrive(C_S)
        if t in (0, 4, 6): stamp(f"A_b{t}")
        for ksl in range(4): K(f"ds_read_b128 {vr(V_X + 16*t + 4*ksl, 4)}, v{A_AX+ksl} offset:{(t % 2) * 32768}")
    arrive(C_E)
    vpoll_check(tkp, A_PA)
    stamp("rp_seen")
    run(g_panel(1, L_K) + g_panel(2, L_V))
    stamp("kv_issued")
    K(f"s_mov_b32 s{S_K}, {f2u(L2E):#x}"); K(f"s_mov_b32 s{S_K+1}, {f2u(L2E):#x}")
    VPH, ID, VB = V_W + 24, 26, V_W + 16
    IDR = [26, 27, 28, 29, V_D2, V_D2+1, V_D2+2, V_D2+3]
    K(f"v_and_b32 v{t0}, 31, v{V_LANE}"); K(f"v_lshrrev_b32 v{t1}, 5, v{V_LANE}"); K(f"v_lshlrev_b32 v{t1}, 2, v{t1}")
    K(f"v_sub_u32 v{t0}, v{t0}, v{t1}")
    K(f"v_and_b32 v{t1}, 1, v{V_LANE}"); K(f"v_lshlrev_b32 v{t1}, 4, v{t1}"); K(f"v_mov_b32 v{t2}, 0x3f80"); K(f"v_lshlrev_b32 v{t1}, v{t1}, v{t2}")
    K(f"v_and_b32 v{t0}, -2, v{t0}")
    for s in range(2):
        for q in range(4): K(f"v_cmp_eq_u32 {sp(T+2*q)}, {16*s + 8*(q // 2) + 2*(q % 2)}, v{t0}")
        for q in range(4): K(f"v_cndmask_b32 v{IDR[4*s+q]}, 0, v{t1}, {sp(T+2*q)}")
    for s in range(2):
        for r in range(2): K(f"ds_read_b64_tr_b16 {vr(VPH + 4*s + 2*r, 2)}, v{A_PH} offset:{(16*s + 8*r)*56}")
    K(f"s_lshl_b32 s{T}, s{S_A}, 11"); K(f"s_lshl_b32 s{T+1}, s{S_H}, 13"); K(f"s_add_u32 s{S_HB}, s{T+1}, s{T}"); K(f"s_add_u32 s{S_PE}, s{S_HB}, {WS_KVF}"); K(f"s_add_u32 s{S_HB}, s{S_HB}, {WS_KVP}")
    K(f"s_lshl_b32 s{T+3}, s{S_MT}, 7"); K(f"s_add_u32 s{S_FL}, s{S_PE}, s{T+3}")
    FL_K = [(S_PE, 128*u) for u in range(16)]
    K(f"s_lshl_b32 s{T}, s{S_MT}, 2"); K(f"s_add_u32 s{T}, s{T}, s{S_A}"); K(f"s_lshl_b32 s{T}, s{T}, 4"); K(f"s_add_u32 s{T}, s{T}, s{S_H}")
    K(f"s_lshl_b32 s{S_OB}, s{T}, 11"); K(f"s_add_u32 s{S_OB}, s{S_OB}, {WS_O}")
    K(f"s_lshl_b32 s{T+2}, s{T}, 7"); K(f"s_add_u32 s{S_FL2}, s{T+2}, {WS_OF}"); K(f"s_add_u32 s{S_XB}, s{T+2}, {WS_G - 128}")
    K.wait_vm(tkx[2]); arrive(C_0)
    stamp("kv_landed0")
    await_(C_0, 4, 1)
    K(f"v_cndmask_b32 v{VPH+6}, v{VPH+6}, 0, {UPM}"); K(f"v_cndmask_b32 v{VPH+7}, v{VPH+7}, 0, {UPM}")
    await_(C_G, 4, 1)
    stamp("kv_start")

    def gemm_qkv(panels, hook=None):
        nb = len(panels) * 4
        D = 3 if len(panels) == 2 else 6
        tk = {}
        for n, (off, acc, sw) in enumerate(panels): K(f"v_add_u32 v{A_AX+n}, {off}, v{A_TR}")
        def rd(ks, n):
            t, ksl = ks // 4, ks % 4
            b = V_W + nb * (ks % D)
            if ksl == 0: K(f"v_add_u32 v{A_AD + n}, s{S_CHO+t}, v{A_AX+n}")
            for r in range(2):
                tk[ks] = K(f"ds_read_b64_tr_b16 {vr(b + 4*n + 2*r, 2)}, v{A_AD + n} offset:{(16*ksl + 4*r)*64}")
        for k in range(D):
            for n in range(len(panels)): rd(k, n)
        for ks in range(28):
            K.wait_lg(tk[ks])
            b = V_W + nb * (ks % D)
            for n, (off, acc, sw) in enumerate(panels):
                wv, xv = b + 4*n, V_X + 4*ks
                if sw: mfma(acc, xv, wv, "0" if ks == 0 else None)
                else: mfma(acc, wv, xv, "0" if ks == 0 else None)
                if ks + D < 28: rd(ks + D, n)
            if hook: hook(ks)
    QP = V_W
    P = V_ACC
    def featmap():
        for e in range(8): K(f"v_cvt_pk_bf16_f32 v{QP+e}, v{V_ACC+2*e}, v{V_ACC+2*e+1}")
        mfma(P, VPH, QP, "0"); mfma(P, VPH + 4, QP + 4)
    def softmax(pk):
        for e in range(4): K(f"v_cndmask_b32 v{P+12+e}, v{P+12+e}, v{P}, {UPM}")
        mx, mn = t0, t2
        K(f"v_max3_f32 v{mx}, v{P}, v{P+1}, v{P+2}"); K(f"v_min3_f32 v{mn}, v{P}, v{P+1}, v{P+2}")
        K(f"v_max3_f32 v{t1}, v{P+3}, v{P+4}, v{P+5}"); K(f"v_min3_f32 v{t3}, v{P+3}, v{P+4}, v{P+5}")
        for e in range(6, 14, 4):
            K(f"v_max3_f32 v{mx}, v{mx}, v{P+e}, v{P+e+1}"); K(f"v_min3_f32 v{mn}, v{mn}, v{P+e}, v{P+e+1}")
            K(f"v_max3_f32 v{t1}, v{t1}, v{P+e+2}, v{P+e+3}"); K(f"v_min3_f32 v{t3}, v{t3}, v{P+e+2}, v{P+e+3}")
        K(f"v_max3_f32 v{mx}, v{mx}, v{P+14}, v{P+15}"); K(f"v_min3_f32 v{mn}, v{mn}, v{P+14}, v{P+15}")
        K(f"v_max_f32 v{mx}, v{mx}, v{t1}"); K(f"v_min_f32 v{mn}, v{mn}, v{t3}")
        K(f"v_mov_b32 v{t1}, v{mx}"); K(f"v_mov_b32 v{t3}, v{mn}")
        K(f"v_permlane32_swap_b32 v{mx}, v{t1}"); K(f"v_permlane32_swap_b32 v{mn}, v{t3}")
        K(f"v_max_f32 v{mx}, v{mx}, v{t1}"); K(f"v_min_f32 v{mn}, v{mn}, v{t3}")
        K(f"v_mul_f32 v{mx}, s{S_K}, v{mx}"); K(f"v_mul_f32 v{mn}, s{S_K}, v{mn}")
        EP, EN = V_P, V_P + 16
        for e in range(0, 16, 2):
            if pk:
                K(f"v_pk_fma_f32 {vr(EP+e,2)}, {vr(P+e,2)}, {sp(S_K)}, {vr(mx,2)} op_sel_hi:[1,1,0] neg_lo:[0,0,1] neg_hi:[0,0,1]")
                K(f"v_pk_fma_f32 {vr(EN+e,2)}, {vr(P+e,2)}, {sp(S_K)}, {vr(mn,2)} op_sel_hi:[1,1,0] neg_lo:[1,0,0] neg_hi:[1,0,0]")
            else:
                for x in (e, e + 1):
                    K(f"v_fma_f32 v{EP+x}, v{P+x}, s{S_K}, -v{mx}"); K(f"v_fma_f32 v{EN+x}, -v{P+x}, s{S_K}, v{mn}")
        for e in range(16):
            K(f"v_exp_f32 v{EP+e}, v{EP+e}"); K(f"v_exp_f32 v{EN+e}, v{EN+e}")
        S = V_W
        for n, E in enumerate((EP, EN)):
            padd(S+4*n, E, E+2, pk); padd(S+4*n+2, E+12, E+14, pk)
        for n, E in enumerate((EP, EN)):
            padd(S+4*n, S+4*n, E+4, pk)
            K(f"v_cndmask_b32 v{S+4*n+2}, v{S+4*n+2}, 0, {UPM}"); K(f"v_cndmask_b32 v{S+4*n+3}, v{S+4*n+3}, 0, {UPM}")
        for n, E in enumerate((EP, EN)):
            padd(S+4*n, S+4*n, E+6, pk); padd(S+4*n+2, S+4*n+2, E+8, pk)
        for n, E in enumerate((EP, EN)): padd(S+4*n, S+4*n, E+10, pk)
        for n in range(2): padd(S+4*n, S+4*n, S+4*n+2, pk)
        K(f"v_add_f32 v{t0}, v{S}, v{S+1}"); K(f"v_add_f32 v{t2}, v{S+4}, v{S+5}")
        K(f"v_mov_b32 v{t1}, v{t0}"); K(f"v_mov_b32 v{t3}, v{t2}")
        K(f"v_permlane32_swap_b32 v{t0}, v{t1}"); K(f"v_permlane32_swap_b32 v{t2}, v{t3}")
        K(f"v_add_f32 v{t0}, v{t0}, v{t1}"); K(f"v_add_f32 v{t2}, v{t2}, v{t3}")
        K(f"v_rcp_f32 v{t0}, v{t0}"); K(f"v_rcp_f32 v{t2}, v{t2}")
        K(f"v_cndmask_b32 v{t1}, v{t0}, 0, {UPM}"); K(f"v_cndmask_b32 v{t3}, v{t2}, 0, {UPM}")
        for e in range(0, 16, 2):
            pscale(EP+e, t0 if e < 12 else t1, pk); pscale(EN+e, t2 if e < 12 else t3, pk)
        for e in range(8):
            K(f"v_cvt_pk_bf16_f32 v{V_PHI+e}, v{EP+2*e}, v{EP+2*e+1}"); K(f"v_cvt_pk_bf16_f32 v{V_PHI+8+e}, v{EN+2*e}, v{EN+2*e+1}")

    pend.extend(g_panel(0, L_Q))
    def hook(ks):
        if ks >= qd and (ks - qd) % 3 == 0: drip(1)
        if ks == 25: arrive(C_1)
    gemm_qkv([(L_K, V_ACC, False), (L_V, V_ACC + 16, True)], hook)
    featmap()
    stamp("kv_gemm")
    K(f"v_mov_b32 v{t4}, 0x3f803f80")
    for e in range(8): K(f"v_cvt_pk_bf16_f32 v{VB+e}, v{V_ACC+16+2*e}, v{V_ACC+16+2*e+1}")
    for e in range(8): K(f"v_cndmask_b32 v{VB+e}, v{VB+e}, v{t4}, {sp(S_L28)}")
    softmax(pkk)
    stamp("sm_k")
    TP, TN = V_P, V_P + 16
    mfma(TP, V_PHI, IDR[0], "0"); mfma(TP, V_PHI + 4, IDR[4])
    mfma(TN, V_PHI + 8, IDR[0], "0"); mfma(TN, V_PHI + 12, IDR[4])
    await_(C_1, 4)
    K(f"s_lshl_b32 s{T}, s{S_A}, 13"); K(f"s_add_u32 s{T}, s{T}, {L_KVS}"); K(f"v_add_u32 v{t0}, s{T}, v{V_L16}")
    K(f"s_lshl_b32 s{T}, s{S_A}, 11"); K(f"s_add_u32 s{T}, s{T}, {L_KVS}"); K(f"v_add_u32 v{t1}, s{T}, v{V_L16}")
    for e in range(8): K(f"v_cvt_pk_bf16_f32 v{V_PHI+e}, v{TP+2*e}, v{TP+2*e+1}")
    mfma(V_ACC, V_PHI, VB, "0"); mfma(V_ACC, V_PHI + 4, VB + 4)
    for e in range(8): K(f"v_cvt_pk_bf16_f32 v{V_PHI+8+e}, v{TN+2*e}, v{TN+2*e+1}")
    mfma(V_ACC + 16, V_PHI + 8, VB, "0"); mfma(V_ACC + 16, V_PHI + 12, VB + 4)
    K("s_waitcnt vmcnt(0)")
    for b in range(8): K(f"ds_write_b128 v{t0}, {vr(V_ACC+4*b,4)} offset:{1024*b}")
    arrive(C_2)
    await_(C_2, 4)
    for hb in range(2):
        for g in range(4): K(f"ds_read_b128 {vr(V_P+16*hb+4*g,4)}, v{t1} offset:{8192*g + 1024*hb}")
    arrive(C_3)
    for hb in range(2):
        K(f"s_waitcnt lgkmcnt({5 - 4*hb})")
        B = V_P + 16*hb
        for e in (0, 2): padd(B+e, B+e, B+4+e, pkq); padd(B+8+e, B+8+e, B+12+e, pkq)
        for e in (0, 2): padd(B+e, B+e, B+8+e, pkq)
        for e in range(4): K(f"buffer_atomic_add_f32 v{B+e}, v{A_L4}, {srd(R_WS)}, s{S_HB} offen offset:{1024*hb + 256*e}")
    stamp("kv_st")
    def hook(ks):
        if ks == 22: arrive(C_Q)
        if ks == kvf:
            K("s_waitcnt vmcnt(0)")
            flag(S_FL)
            stamp("kv_pub")
    gemm_qkv([(L_Q, V_ACC, False)], hook)
    K(f"v_cvt_pk_bf16_f32 v{t0}, v{V_ACC+12}, v{V_ACC+12}")
    featmap()
    K(f"v_lshlrev_b32 v{t0}, 16, v{t0}")
    K(f"v_mul_f32 v{t0}, s{S_K}, v{t0}"); K(f"v_exp_f32 v{t0}, -v{t0}"); K(f"v_add_f32 v{t0}, 1.0, v{t0}"); K(f"v_rcp_f32 v{t0}, v{t0}")
    K(f"v_cvt_pk_bf16_f32 v{t0}, v{t0}, v{t0}"); K(f"v_lshlrev_b32 v{A_G}, 16, v{t0}")
    K("s_mov_b32 exec_lo, 0")
    K(f"buffer_store_dword v{A_G}, v{A_L4}, {srd(R_WS)}, s{S_XB} offen sc1")
    K("s_mov_b32 exec_lo, -1")
    stamp("q_gemm")
    softmax(pkq)
    stamp("sm_q")
    poll_issue(FL_K)
    poll_check(FL_K)
    stamp("kv_seen")
    for e in range(8): K(f"buffer_load_dword v{V_P+e}, v{A_L4}, {srd(R_WS)}, s{S_HB} offen offset:{256*e} sc1")
    F = V_W
    K(f"s_lshl_b32 s{T}, s{S_A}, 10"); K(f"v_add_u32 v{t1}, {L_KVF}, v{V_L16}"); K(f"v_add_u32 v{t0}, s{T}, v{t1}")
    K("s_waitcnt vmcnt(0)")
    stamp("kv_landed")
    for e in range(4): K(f"v_cvt_pk_bf16_f32 v{F+e}, v{V_P+2*e}, v{V_P+2*e+1}")
    K(f"ds_write_b128 v{t0}, {vr(F,4)}")
    arrive(C_4)
    await_(C_4, 4)
    for f in range(4): K(f"ds_read_b128 {vr(F+4*f,4)}, v{t1} offset:{1024*f}")
    N = V_ACC
    for f in range(4):
        K(f"s_waitcnt lgkmcnt({3-f})")
        mfma(N, F + 4*f, V_PHI + 4*f, "0" if f == 0 else None)
    K(f"v_cvt_pk_bf16_f32 v{t0}, v{N+12}, v{N+12}")
    for e in range(8): K(f"v_cvt_pk_bf16_f32 v{F+e}, v{N+2*e}, v{N+2*e+1}")
    K(f"v_lshlrev_b32 v{t0}, 16, v{t0}")
    K(f"v_add_f32 v{t0}, {f2u(1e-6):#x}, v{t0}")
    K(f"v_cvt_pk_bf16_f32 v{t0}, v{t0}, v{t0}"); K(f"v_lshlrev_b32 v{t0}, 16, v{t0}")
    K(f"v_rcp_f32 v{t0}, v{t0}")
    for e in range(4):
        K(f"v_lshlrev_b32 v{N+2*e}, 16, v{F+e}"); K(f"v_and_b32 v{N+2*e+1}, 0xffff0000, v{F+e}")
    K(f"v_mul_f32 v{t0}, v{t0}, v{A_G}"); K(f"v_mov_b32 v{t1}, v{t0}")
    for e in range(4, 8):
        K(f"v_lshlrev_b32 v{N+2*e}, 16, v{F+e}"); K(f"v_and_b32 v{N+2*e+1}, 0xffff0000, v{F+e}")
    K(f"v_permlane32_swap_b32 v{t1}, v{t0}")
    for e in range(0, 16, 2): pscale(N+e, t0, pkq)
    for e in range(8): K(f"v_cvt_pk_bf16_f32 v{F+e}, v{N+2*e}, v{N+2*e+1}")
    K(f"v_cndmask_b32 v{F+6}, v{F+6}, 0, {UPM}"); K(f"v_cndmask_b32 v{F+7}, v{F+7}, 0, {UPM}")
    K(f"buffer_store_dwordx4 {vr(F,4)}, v{V_L16}, {srd(R_WS)}, s{S_OB} offen sc1")
    K(f"buffer_store_dwordx4 {vr(F+4,4)}, v{V_L16}, {srd(R_WS)}, s{S_OB} offen offset:1024 sc1")
    K("s_waitcnt vmcnt(0)")
    flag(S_FL2)
    stamp("o_pub")
    K(f"s_cmp_eq_u32 s{S_ACT}, 0")
    K.branch("s_cbranch_scc1 L_fin")
    K.branch("s_branch L_red")

    K.label("L_M")
    if prioM: K(f"s_setprio {prioM}")
    K("s_waitcnt lgkmcnt(0)")
    if stamps: K(f"v_writelane_b32 v{V_STAMP}, s{S_ST}, {STAMP_IDS.setdefault('start', len(STAMP_IDS))}")
    K(f"s_load_dword s{S_E}, {sp(P_WS)}, {WS_EPOCH}")
    mksrd(R_T, P_B1, 3584)
    K(f"s_lshl_b32 s{T+1}, s{S_A}, 8"); K(f"s_add_u32 m0, s{T+1}, {L_B1}")
    K("s_mov_b64 exec, 0xffff")
    tk_b1 = K(f"buffer_load_dwordx4 v{V_L16}, {srd(R_T)}, s{S_W1B} offen lds")
    K("s_mov_b64 exec, -1")
    mksrd(R_T, P_PHI, 16*1568)
    K(f"s_mul_i32 s{T}, s{S_J}, 1568"); K(f"s_mul_i32 s{T+1}, s{S_A}, 400"); K(f"s_add_u32 s{T}, s{T}, s{T+1}"); K(f"s_add_u32 m0, s{T+1}, {L_PHI}")
    K("s_mov_b64 exec, 0x1ffffff")
    K(f"buffer_load_dwordx4 v{V_L16}, {srd(R_T)}, s{T} offen lds")
    K("s_mov_b64 exec, -1")
    mksrd(R_WS, P_WS, WS_SIZE); mksrd(R_WO, P_WO, 448*896); mksrd(R_OUT, P_OUT, 2048*896)
    p2setup()
    K(f"s_mul_i32 s{T}, s{S_ROW}, {112*1024}"); K(f"s_add_u32 s{T}, s{T}, {WS_H}")
    K(f"s_lshl_b32 s{S_HB}, s{T+4}, 12"); K(f"s_add_u32 s{S_HB}, s{S_HB}, s{T}")
    K(f"s_lshl_b32 s{S_HB3}, s{T+2}, 12"); K(f"s_add_u32 s{S_HB3}, s{S_HB3}, s{T}")
    mksrd(R_T, P_B2, 896)
    K(f"s_lshl_b32 s{T}, s{S_CT}, 7"); K(f"s_lshl_b32 s{T+1}, s{S_A}, 10"); K(f"s_add_u32 s{T}, s{T}, s{T+1}")
    K(f"s_lshl_b32 s{T+1}, s{S_A}, 7"); K(f"s_add_u32 m0, s{T+1}, {L_B2}")
    K("s_mov_b64 exec, 0xff")
    tk_b2 = K(f"buffer_load_dwordx4 v{V_L16}, {srd(R_T)}, s{T} offen lds")
    K("s_mov_b64 exec, -1")
    K(f"s_lshl_b32 s{T}, s{S_ROW}, 12"); K(f"s_add_u32 s{T}, s{T}, {WS_HF}")
    K(f"s_lshl_b32 s{S_PE}, s{T+4}, 7"); K(f"s_add_u32 s{S_PE}, s{S_PE}, s{T}")
    K(f"s_lshl_b32 s{S_P3}, s{T+2}, 7"); K(f"s_add_u32 s{S_P3}, s{S_P3}, s{T}")
    K(f"s_lshl_b32 s{T}, s{S_ROW}, 4"); K(f"s_lshl_b32 s{T+1}, s{S_A}, 2"); K(f"s_add_u32 s{S_OB}, s{T+1}, s{T}")
    K(f"s_lshl_b32 s{S_PO}, s{S_OB}, 7"); K(f"s_add_u32 s{S_PO}, s{S_PO}, {WS_OF}")
    FL_E = [(S_PE, 4096*r + 256*u) for r in range(2) for u in range(3)]
    FL_L = [(S_PE, 4096*r + 256*u + 128) for r in range(2) for u in range(3)] + [(S_P3, 0), (S_P3, 4096)]
    FL_O = [(S_PO, 2048*r + 128*u) for r in range(2) for u in range(4)]
    K(f"s_lshl_b32 s{T}, s{S_MT}, 2"); K(f"s_add_u32 s{T}, s{T}, s{S_A}"); K(f"s_mul_i32 s{S_RS}, s{T}, 112")
    K(f"s_lshl_b32 s{T+1}, s{S_J}, 3"); K(f"s_add_u32 s{S_RS}, s{S_RS}, s{T+1}"); K(f"s_lshl_b32 s{S_RS}, s{S_RS}, 10"); K(f"s_add_u32 s{S_RS}, s{S_RS}, {WS_H}")
    K(f"s_lshl_b32 s{S_FL}, s{T}, 4"); K(f"s_add_u32 s{S_FL}, s{S_FL}, s{S_J}"); K(f"s_lshl_b32 s{S_FL}, s{S_FL}, 8"); K(f"s_add_u32 s{S_FL}, s{S_FL}, {WS_HF}")
    K(f"s_add_u32 s{S_FL2}, s{S_FL}, 128")
    K(f"v_mov_b32 v{t0}, 0"); K(f"v_lshl_add_u32 v{t1}, v{V_LANE}, 2, v{V_CNT}"); K(f"ds_write_b32 v{t1}, v{t0}")
    K(f"v_add_u32 v{M_L16B}, {112*1024}, v{V_L16}")
    MP = M_AR + 40
    K(f"v_lshlrev_b32 v{MP}, 7, v{V_LANE}")
    K(f"s_lshl_b32 s{T+3}, s2, 2"); K(f"s_add_u32 s{T+3}, s{T+3}, s{S_A}")
    K(f"s_mul_i32 s{S_XB}, s{T+3}, {13*128}"); K(f"s_lshl_b32 s{S_M0}, s{T+3}, 9")
    def mall_pf():
        K("s_mov_b64 exec, 0x1fff")
        K(f"buffer_load_dword v{V_POLL}, v{MP}, {srd(R_W2)}, s{S_XB} offen")
        K("s_mov_b64 exec, 15")
        K(f"buffer_load_dword v{V_POLL}, v{MP}, {srd(R_WO)}, s{S_M0} offen")
        K("s_mov_b64 exec, -1")
    if mpf == 1: mall_pf()
    if tlb:
        l = newl("tlb")
        K(f"s_cmp_lg_u32 s{S_A}, 1")
        K.branch(f"s_cbranch_scc1 {l}")
        K(f"v_lshlrev_b32 v{t0}, {tlb}, v{V_LANE}")
        K(f"buffer_load_dword v{V_POLL}, v{t0}, {srd(R_WS)}, 0 offen offset:2048"); K.vm -= 1
        K(f"buffer_load_dword v{V_POLL}, v{t0}, {srd(R_OUT)}, 0 offen"); K.vm -= 1
        K.label(l)
    xfrag_addr(M_AX)
    lanepart()
    K(f"v_lshl_add_u32 v{t0}, v{t2}, 3, v{t3}"); K(f"v_lshl_add_u32 v{t0}, v{t0}, 8, v{t4}"); K(f"v_lshl_add_u32 v{t0}, v{t3}, 6, v{t0}")
    K(f"v_add_u32 v{M_AW}, 16384, v{t0}")
    for p in range(1, 4): K(f"v_xor_b32 v{M_AW+p}, {64*p}, v{M_AW}")
    AB = M_AB
    K(f"v_lshl_add_u32 v{t0}, v{t2}, 2, v{t3}"); K(f"v_lshl_add_u32 v{t0}, v{t0}, 7, v{t4}"); K(f"v_bfe_u32 v{t1}, v{V_LANE}, 3, 1"); K(f"v_lshl_add_u32 v{t0}, v{t1}, 6, v{t0}")
    K(f"v_add_u32 v{AB}, s{S_M02}, v{t0}"); K(f"v_xor_b32 v{AB+1}, 64, v{AB}")
    K(f"v_add_u32 v{AB+2}, 65536, v{AB}"); K(f"v_add_u32 v{AB+3}, 65536, v{AB+1}")
    K(f"v_lshlrev_b32 v{t0}, 9, v{t2}"); K(f"v_sub_u32 v22, v{AB+2}, v{t0}"); K(f"v_sub_u32 v23, v{AB+3}, v{t0}")
    K(f"s_lshl_b32 s{T}, s{S_A}, 7"); K(f"s_add_u32 s{T}, s{T}, {L_B2}"); K(f"v_lshl_add_u32 v0, v{t2}, 3, s{T}")
    K(f"s_lshl_b32 s{T}, s{S_A}, 8"); K(f"s_add_u32 s{T}, s{T}, {L_B1}"); K(f"v_lshl_add_u32 v{t0}, v{t2}, 3, s{T}")
    box = {}
    K(f"s_cmp_ge_u32 s{S_J}, 14")
    K.branch("s_cbranch_scc1 L_nof")
    vm_nof = K.vm
    K.wait_vm(tk_b1)
    for q in range(8): K(f"ds_read2_b64 {vr(M_AR+4*q,4)}, v{t0} offset0:{4*q} offset1:{4*q+2}")
    K("s_waitcnt lgkmcnt(0)")
    settag()
    for q in range(32):
        K(f"v_lshlrev_b32 v{M_ACC+2*q}, 16, v{M_AR+q}")
        K(f"v_and_b32 v{M_ACC+2*q+1}, 0xffff0000, v{M_AR+q}")
    if fine: stamp("M_rdy")
    WR, XR = M_BH, M_BH + 4*G
    tk = {}
    def rdg(g):
        ks, p = g // 4, g % 4
        t, ksl = ks // 4, ks % 4
        uo = (t % 2) * 32768
        if p == 0 and ksl == 0:
            shift(range(M_AX, M_AX + 8), SH[t])
            if t == 3: K.wait_vm(tk_b2)
            if t < 6: K("s_barrier")
            else:
                l = newl("s6")
                K.wait_lg(box['cs'])
                K(f"v_cmp_ne_u32 vcc, 4, v{t4}")
                K(f"s_cbranch_vccz {l}")
                lgs = K.lg
                await_(C_S, 4)
                K.lg = lgs
                K.raw(f"{l}:")
        if p == 0: K(f"ds_read_b128 {vr(XR + 4*(ks % 3), 4)}, v{M_AX+ksl} offset:{uo}")
        for r in range(2):
            tk[g] = K(f"ds_read_b64_tr_b16 {vr(WR + 4*(g % G) + 2*r, 2)}, v{M_AW+p} offset:{uo + (16*ksl + 4*r)*256}")
    for g in range(G): rdg(g)
    for g in range(112):
        K.wait_lg(tk[g])
        mfma(M_ACC + 16*(g % 4), WR + 4*(g % G), XR + 4*((g // 4) % 3))
        if g + G < 112: rdg(g + G)
        if g + G == 112: arrive(C_E)
        if g + G + 3 == 96: box['cs'] = K(f"ds_read_b32 v{t4}, v{V_CNT} offset:{C_S}")
        if mpf > 1 and g == mpf: mall_pf()
    stamp("ffn1")
    if prioG: K(f"s_setprio {prioG}")
    cc = -2.0 * 0.7978845608028654 * 1.4426950408889634
    K(f"v_mov_b32 v{t0}, {f2u(cc):#x}"); K(f"v_mov_b32 v{t1}, 1.0"); K(f"s_mov_b32 s{S_K}, {f2u(cc*0.044715):#x}"); K(f"s_mov_b32 s{S_K+1}, {f2u(cc*0.044715):#x}")
    tkh = {}
    for g in range(8):
        a = M_ACC + 8*g; tt = M_AR + 8*(g % 2); o = M_AR + 48 + 4*g
        for e in range(0, 8, 2): K(f"v_pk_mul_f32 {vr(tt+e,2)}, {vr(a+e,2)}, {vr(a+e,2)}")
        for e in range(0, 8, 2): K(f"v_pk_fma_f32 {vr(tt+e,2)}, {vr(tt+e,2)}, {sp(S_K)}, {vr(t0,2)} op_sel_hi:[1,1,0]")
        for e in range(0, 8, 2): K(f"v_pk_mul_f32 {vr(tt+e,2)}, {vr(a+e,2)}, {vr(tt+e,2)}")
        for e in range(8): K(f"v_exp_f32 v{tt+e}, v{tt+e}")
        for e in range(0, 8, 2): K(f"v_pk_add_f32 {vr(tt+e,2)}, {vr(tt+e,2)}, {vr(t0,2)} op_sel:[0,1] op_sel_hi:[1,1]")
        for e in range(8): K(f"v_rcp_f32 v{tt+e}, v{tt+e}")
        for e in range(0, 8, 2): K(f"v_pk_mul_f32 {vr(tt+e,2)}, {vr(a+e,2)}, {vr(tt+e,2)}")
        for e in range(4): K(f"v_cvt_pk_bf16_f32 v{o+e}, v{tt+2*e}, v{tt+2*e+1}")
        if g == gw: arrive(C_G)
        if (g + 1) % sb == 0:
            for x in range(g + 1 - sb, g + 1):
                if x == 4: K(f"s_add_u32 s{S_RS}, s{S_RS}, 4096")
                tkh[x] = K(f"buffer_store_dwordx4 {vr(M_AR + 48 + 4*x,4)}, v{V_L16}, {srd(R_WS)}, s{S_RS} offen offset:{1024*(x%4)} sc1")
    stamp("gelu_v")
    K.wait_vm(tkh[3]); flag(S_FL)
    stamp("gelu")
    K(f"s_cmp_eq_u32 s{S_ACT}, 1")
    K.branch("s_cbranch_scc1 L_p2")
    K("s_waitcnt vmcnt(0)")
    flag(S_FL2)
    K.branch("s_branch L_fin")
    K.label("L_nof")
    K.vm = vm_nof
    K("s_waitcnt lgkmcnt(0)")
    settag()
    for t in range(6):
        if t == 3: K("s_waitcnt vmcnt(0)")
        K("s_barrier")
    if mpf > 1: mall_pf()
    arrive(C_E); arrive(C_G)

    K.label("L_p2")
    tk_h = K.vm
    def g_wo(hf):
        def step(q):
            def f():
                if q == 0:
                    K(f"s_mul_i32 s{TD}, s{S_A}, {112*896}"); K(f"s_lshl_b32 s{TD+1}, s{S_CT}, 7"); K(f"s_add_u32 s{TD}, s{TD}, s{TD+1}")
                    if hf: K(f"s_add_u32 s{TD}, s{TD}, {56*896}")
                    K(f"s_add_u32 m0, s{S_M02}, {U[RUNIT[7+hf]]}")
                if q == 4: K(f"s_add_u32 s{TD}, s{TD}, {32*896}"); K(f"s_add_u32 m0, s{S_M02}, {U[RUNIT[7+hf]] + 4096}")
                x = K(f"buffer_load_dwordx4 v{V_D2+q%4}, {srd(R_WO)}, s{TD} offen offset:{1024*(q%4)} lds")
                if q == 6: tk_r[7+hf] = x
            return f
        return [step(q) for q in range(7)]
    tk = {}
    def rdb(ks, part=3):
        r, ksl = ks // 4, ks % 4
        b = M_BH + 8 * (ks % 8)
        u = RUNIT[r]
        if ksl == 0 and r >= 2 and part & 1: K.wait_vm(tk_r[r])
        for pp in range(2):
            for h in range(2):
                if not part & (1 << pp): continue
                if r < 7:
                    tk[ks] = K(f"ds_read_b64_tr_b16 {vr(b + 4*pp + 2*h, 2)}, v{AB + pp + (2 if u >= 2 else 0)} offset:{(u%2)*32768 + (16*ksl + 8*h)*128}")
                else:
                    hh, sx = (ks % 4) // 2, ks % 2
                    tk[ks] = K(f"ds_read_b64_tr_b16 {vr(b + 4*pp + 2*h, 2)}, v{(22 if (sx == 1 and h == 1) else AB + 2) + pp} offset:{(u%2)*32768 + (28*hh + 16*sx + 8*h)*128}")
    tk_a = {}
    def lda(ks, part=3):
        b = M_AR + 8 * (ks % NA); r = ks // 4
        if part & 1:
            if ks % 4 == 0: K(f"s_add_u32 s{T+7}, s{S_HB3 if r == 3 else S_HB}, {0 if r == 3 else (2*r % 7)*4096}")
            K(f"buffer_load_dwordx4 {vr(b,4)}, v{V_L16}, {srd(R_WS)}, s{T+7} offen offset:{1024*(ks%4)} sc1")
        if part & 2: tk_a[ks] = K(f"buffer_load_dwordx4 {vr(b+4,4)}, v{M_L16B}, {srd(R_WS)}, s{T+7} offen offset:{1024*(ks%4)} sc1")
    B2T = M_AR + 80
    for q in range(4): K(f"ds_read2_b64 {vr(B2T+4*q,4)}, v0 offset0:{4*q} offset1:{4*q+2}")
    def unpack(e):
        for t2_ in range(2):
            K(f"v_lshlrev_b32 v{M_ACC+32*t2_+2*e}, 16, v{B2T+e}")
            K(f"v_and_b32 v{M_ACC+32*t2_+2*e+1}, 0xffff0000, v{B2T+e}")
    await_(C_E, 8)
    g0, g1, g2, g3 = g_w2(0), g_w2(1), g_w2(2), g_w2(3)
    for q in range(8):
        g0[q](); unpack(2*q); unpack(2*q + 1)
    K.wait_vm(tk_h - 1)
    flag(S_FL2)
    K(f"s_setprio 0")
    stamp("h_pub1")
    poll_issue(FL_E)
    run(g1)
    poll_check(FL_E)
    stamp("hE_seen")
    for ks in range(4): lda(ks)
    K.wait_vm(tk_r[0])
    for ks in range(4):
        if ks == 3: K.wait_lg(tk[0])
        rdb(ks); lda(4 + ks)
    K.wait_vm(tk_r[1]); K.wait_lg(tk[3])
    for q in range(8):
        g2[q]()
        if q < 4:
            if q == 3: K.wait_lg(tk[4])
            rdb(4 + q)
    K("s_waitcnt lgkmcnt(0)")
    stamp("p2_prep")
    poll_issue(FL_L)
    for ks in range(8, 12): pend.extend([lambda ks=ks: lda(ks, 1), lambda ks=ks: lda(ks, 2)])
    pend.extend(g3)
    def step(ks, side):
        K.wait_vm(tk_a[ks])
        if ks >= 8: K.wait_lg(tk[ks])
        a = M_AR + 8 * (ks % NA); b = M_BH + 8 * (ks % 8)
        n = 0
        for t2_ in range(2):
            for pp in range(2):
                mfma(M_ACC + 32*t2_ + 16*pp, b + 4*pp, a + 4*t2_)
                side(n); n += 1
    nxt = [12]
    for ks in range(28):
        def side(n):
            if n < 2 and ks + 3 >= 8: rdb(ks + 3, 1 << n)
            drip(2 if len(pend) > 8 else 1)
        step(ks, side)
        if ks == c0:
            poll_check(FL_L)
            stamp("hL_seen")
        if ks == 7:
            await_(C_3, 4)
            pend.extend(g_w2(4))
        while ks >= c0 and nxt[0] <= ks + NA and nxt[0] < 28:
            pend.extend([lambda k=nxt[0]: lda(k, 1), lambda k=nxt[0]: lda(k, 2)]); nxt[0] += 1
        if ks == 11: pend.extend(g_w2(5))
        if ks == 15: pend.extend(g_w2(6))
        if ks == 17:
            await_(C_Q, 4)
            pend.extend(g_wo(0))
        if ks == 19: pend.extend(g_wo(1))
        if ks in (3, 11, 19): stamp(f"p2_k{ks}")
    assert not pend
    K("s_waitcnt lgkmcnt(4)")
    poll_issue(FL_O)
    stamp("p2_h_done")
    K(f"v_and_b32 v{t2}, 31, v{V_LANE}"); K(f"v_lshlrev_b32 v{t2}, 2, v{t2}")
    K(f"s_lshl_b32 s{T+3}, s{S_OB}, 7"); K(f"s_add_u32 s{T+3}, s{T+3}, {WS_G}")
    K(f"s_lshl_b32 s{T+4}, s{S_OB}, 11"); K(f"s_add_u32 s{T+4}, s{T+4}, {WS_O}")
    K(f"v_add_u32 v{M_L16B}, 32768, v{V_L16}")
    K(f"v_add_u32 v{V_D2}, s{S_M02}, v{V_L16}")
    for q in range(1, 4): K(f"v_xor_b32 v{V_D2+q}, {64*q}, v{V_D2}")
    poll_check(FL_O)
    stamp("o_seen")
    K(f"buffer_load_dword v{t4}, v{t2}, {srd(R_WS)}, s{T+3} offen sc1")
    tk_g = K(f"buffer_load_dword v{t5}, v{t2}, {srd(R_WS)}, s{T+3} offen offset:2048 sc1")
    for ks in range(28, 36):
        b = M_AR + 8 * (ks % NA)
        if ks == 32: K(f"s_add_u32 s{T+4}, s{T+4}, 4096")
        K(f"buffer_load_dwordx4 {vr(b,4)}, v{V_L16}, {srd(R_WS)}, s{T+4} offen offset:{1024*(ks%4)} sc1")
        tk_a[ks] = K(f"buffer_load_dwordx4 {vr(b+4,4)}, v{M_L16B}, {srd(R_WS)}, s{T+4} offen offset:{1024*(ks%4)} sc1")
    K.wait_vm(tk_g)
    K(f"v_sub_f32 v{t4}, 1.0, v{t4}"); K(f"v_sub_f32 v{t5}, 1.0, v{t5}")
    K(f"v_cvt_pk_bf16_f32 v{t4}, v{t4}, v{t5}"); K(f"v_and_b32 v{t5}, 0xffff0000, v{t4}"); K(f"v_lshlrev_b32 v{t4}, 16, v{t4}")
    for e in range(0, 64, 2): pscale(M_ACC+e, t4 if e < 32 else t5, True)
    for ks in range(28, 36):
        def side(n):
            if n < 2 and ks + 3 < 36: rdb(ks + 3, 1 << n)
        step(ks, side)
    for t2_ in range(2):
        for b in range(8): K(f"ds_write_b128 v{V_D2 + b%4}, {vr(M_ACC+32*t2_+4*b,4)} offset:{32768*t2_ + 1024*b}")
    stamp("p2_done")

    K.label("L_red")
    K(f"v_and_b32 v{t1}, 7, v{V_LANE}"); K(f"v_lshrrev_b32 v{t3}, 3, v{V_LANE}")
    K(f"s_lshl_b32 s{T+1}, s{S_A}, 3"); K(f"v_add_u32 v{t0}, s{T+1}, v{t3}")
    K(f"v_and_b32 v{t2}, 3, v{V_LANE}"); K(f"v_lshlrev_b32 v{t2}, 2, v{t2}"); K(f"v_xor_b32 v{t0}, v{t0}, v{t2}")
    K(f"v_lshlrev_b32 v{t0}, 4, v{t0}"); K(f"v_lshl_add_u32 v{t0}, v{t1}, 10, v{t0}")
    K(f"s_lshr_b32 s{T+2}, s{S_W}, 2"); K(f"s_lshl_b32 s{T}, s{T+2}, 15"); K(f"v_add_u32 v{t0}, s{T}, v{t0}")
    K(f"v_mul_u32_u24 v{t3}, 896, v{t3}"); K(f"v_lshl_add_u32 v{t3}, v{t1}, 4, v{t3}")
    K(f"s_lshl_b32 s{T}, s{S_ROW}, 2"); K(f"s_add_u32 s{T}, s{T}, s{S_W}"); K(f"s_mul_i32 s{T}, s{T}, {8*896}"); K(f"s_lshl_b32 s{T+1}, s{S_CT}, 7"); K(f"s_add_u32 s{T+5}, s{T}, s{T+1}")
    K("s_waitcnt lgkmcnt(0)")
    K("s_barrier")
    R = 160
    for q in range(4):
        K(f"ds_read_b128 {vr(R+8*q,4)}, v{t0} offset:{8192*q}")
        K(f"ds_read_b128 {vr(R+8*q+4,4)}, v{t0} offset:{8192*q + 512}")
    K("s_waitcnt lgkmcnt(4)")
    for e in range(0, 8, 2): padd(R+e, R+e, R+8+e, True)
    K("s_waitcnt lgkmcnt(0)")
    for e in range(0, 8, 2): padd(R+16+e, R+16+e, R+24+e, True)
    for e in range(0, 8, 2): padd(R+e, R+e, R+16+e, True)
    for e in range(4): K(f"v_cvt_pk_bf16_f32 v{R+e}, v{R+2*e}, v{R+2*e+1}")
    K(f"buffer_store_dwordx4 {vr(R,4)}, v{t3}, {srd(R_OUT)}, s{T+5} offen" + ["", " sc1", " nt", " sc0 sc1"][outm])
    K(f"s_or_b32 s{T}, s2, s{S_W}"); K(f"s_cmp_lg_u32 s{T}, 0")
    K.branch("s_cbranch_scc1 L_fin")
    K(f"s_mov_b32 s{T}, {WS_EPOCH}")
    flag(T)
    K.label("L_fin")
    if stamps:
        K("s_waitcnt vmcnt(0)")
        stamp("end")
        if probe is not None:
            i0 = STAMP_IDS.setdefault('start', len(STAMP_IDS)); i1 = STAMP_IDS.setdefault(probe, len(STAMP_IDS))
            K(f"v_readlane_b32 s{T}, v{V_STAMP}, {i0}"); K(f"v_readlane_b32 s{T+1}, v{V_STAMP}, {i1}")
            K("s_nop 4")
            K(f"s_cmp_eq_u32 s{T+1}, 0"); K(f"s_cselect_b32 s{T+1}, s{T}, s{T+1}")
            K.label("L_probe")
            K("s_sleep 2")
            K(f"s_memrealtime {sp(S_ST)}"); K("s_waitcnt lgkmcnt(0)")
            K(f"s_sub_u32 s{T+2}, s{S_ST}, s{T+1}"); K(f"s_cmp_lt_u32 s{T+2}, 4000")
            K.branch("s_cbranch_scc1 L_probe")
        K(f"s_lshl_b32 s{T}, s2, 3"); K(f"s_add_u32 s{T}, s{T}, s{S_W}"); K(f"s_lshl_b32 s{T}, s{T}, 8"); K(f"s_add_u32 s{T}, s{T}, {WS_STAMP}")
        K(f"v_lshlrev_b32 v{t0}, 2, v{V_LANE}")
        K(f"buffer_store_dword v{V_STAMP}, v{t0}, {srd(R_WS)}, s{T} offen")
    K.label("L_end")
    K("s_endpgm")
    K.raw(f".fill (28672 + 4096 * {1 if stamps else 0} - (L_end - {NAME})) / 4, 4, 0xbf800000")

    head = f"""; Fused gated mix of hedgehog linear attention and GELU FFN (emitted by a hand-written generator script)
; @launch grid=(256,1,1) block=(512,1,1) lds=163840
.amdgcn_target "amdgcn-amd-amdhsa--gfx950"
.text
.globl {NAME}
.p2align 8
.type {NAME},@function
"""
    tail = f""".section .rodata,"a"
.p2align 6
.amdhsa_kernel {NAME}
  .amdhsa_next_free_vgpr 256
  .amdhsa_next_free_sgpr 102
  .amdhsa_accum_offset 256
  .amdhsa_group_segment_fixed_size 0
  .amdhsa_kernarg_size 104
  .amdhsa_user_sgpr_count 2
  .amdhsa_user_sgpr_kernarg_segment_ptr 1
  .amdhsa_system_sgpr_workgroup_id_x 1
.end_amdhsa_kernel
"""
    return head + K.text() + tail

STAMP_IDS = {}
def parse_opts(argv):
    kw = {}
    for a in argv:
        if a.startswith("-D"):
            k, v = a[2:].split("="); kw[k] = int(v) if v.lstrip("-").isdigit() else v
    return kw
if __name__ == "__main__":
    out = sys.argv[1] if len(sys.argv) > 1 else "k.s"
    open(out, "w").write(gen(**parse_opts(sys.argv)))
```

```python
import sys, struct
from asmlib import Asm

NAME = "gated_mix__linear_kernel_hedgehog__dense_activation_gelu__prompt_kernel"
def f2u(x): return struct.unpack("<I", struct.pack("<f", x))[0]

WS_EPOCH = 0
WS_RPF   = 0x8000
WS_STAMP = 0x10000
WS_G     = 0xA0000
WS_WQ    = 0x100000
WS_KVP   = 0x280000
WS_O     = 0x480000
WS_H     = 0x680000
WS_HF    = 0xE00000
WS_KVF   = 0xE50000
WS_OF    = 0xE70000
WS_SIZE  = 0xF00000

U = [0, 32768, 65536, 98304, 131072]
L_K, L_V, L_Q = 98304, 126976, 65536
L_MISC = 155648
L_PHI, L_CNT, L_B2, L_B1 = L_MISC, L_MISC + 2048, L_MISC + 2560, L_MISC + 3072
L_KVS = U[3]
L_KVF = L_MISC + 4096
RUNIT = [0, 1, 0, 1, 3, 0, 1, 2, 3]
C_E, C_0, C_1, C_2, C_3, C_4, C_Q, C_G, C_B, C_S = 0, 4, 8, 12, 16, 20, 24, 28, 32, 36

P_X, P_WQKV, P_PHI, P_WO, P_W1, P_B1, P_W2 = 16, 18, 20, 22, 26, 28, 30
P_B2, P_GATE, P_OUT, P_WS = 32, 34, 36, 40
R_X, R_W1, R_W2, R_WO, R_WS, R_OUT, R_T = 44, 48, 52, 56, 60, 64, 68
S_MT, S_J, S_W, S_A, S_FL2, S_TAG, S_CH, S_CNT = 72, 73, 74, 75, 76, 78, 77, 100
S_CHO = 80
S_M0 = 87
S_XB, S_W1B = 88, 89
S_T = 90
S_UP = 98
S_E = 42
S_H = S_J
S_CT, S_ROW, S_ACT = 43, 3, 101
S_K = 4
S_ST = 6
S_L28 = 24
S_FL = 8
S_HB, S_W2B, S_OB, S_HB3, S_W2B3, S_M02, S_RS = 9, 10, 11, 12, 13, 14, 15
S_PE, S_P3, S_PO = 34, 35, 38
PD = [16, 17, 18, 19, 20, 21, 22, 23, 26, 27, 28, 29, 30, 31, 32, 33]
def srd(r): return f"s[{r}:{r+3}]"
def sp(r): return f"s[{r}:{r+1}]"

V_LANE, V_L16, V_STAMP, V_TAG, V_POLL, V_CNT = 1, 2, 3, 4, 5, 6
V_T = 8
V_D2 = 18
A_PA, A_AX, A_AD, A_L4, A_PH, A_TR, A_G = 7, 14, 22, 24, 25, 30, 31
V_W, V_P, V_ACC, V_PHI, V_X = 32, 64, 96, 128, 144
A_XD, A_WD, A_QD, A_GW = 64, 68, 72, 16
M_L16B, M_AB = 7, 14
M_ACC, M_BH, M_AR = 24, 88, 152
M_AX, M_AW = 136, 140
NA = 13
def vr(a, n): return f"v[{a}:{a+n-1}]"
UPM = sp(S_UP)
L2E = 1.4426950408889634

def gen(stamps=False, spin=20000, rot1=True, codepf=True, slp=2, cyc=False, G=5, prioA=1, prioM=2, kvf=27, fine=False,
        pkq=0, pkk=1, LA=9, LA0=6, c0=2, mpf=40, outm=0, tlb=21, gw=6, hf0=7, rpb=3, prioG=2, k6=4, qpf=1, sb=1, qd=6, probe=None, pwg=-1, pt=4000):
    K = Asm()
    T = S_T
    TD = T + 5
    t0, t1, t2, t3, t4, t5 = range(V_T, V_T + 6)
    def stamp(name):
        if not stamps: return
        if probe is not None and name != probe: return
        K("s_waitcnt lgkmcnt(0)")
        K(f"s_memrealtime {sp(S_ST)}")
        if cyc: K(f"s_memtime s[0:1]")
        K("s_waitcnt lgkmcnt(0)")
        i = STAMP_IDS.setdefault(name, len(STAMP_IDS))
        K(f"v_writelane_b32 v{V_STAMP}, s{S_ST}, {i}")
        if cyc: K(f"v_writelane_b32 v{V_STAMP}, s0, {32 + i}")
    uid = [0]
    def newl(p): uid[0] += 1; return f"L_{p}{uid[0]}"
    def poll_issue(fl):
        for n, (so, im) in enumerate(fl):
            if n == 15: K("s_waitcnt lgkmcnt(14)")
            K(f"s_load_dword s{PD[n]}, {sp(P_WS)}, s{so} offset:{im} glc")
    def poll_check(fl):
        l, d = newl("poll"), newl("polld")
        K(f"s_mov_b32 s{S_CNT}, {spin}")
        K.raw(f"{l}:")
        K("s_waitcnt lgkmcnt(0)")
        for n in range(0, len(fl), 2):
            K(f"s_xor_b64 {sp(PD[n])}, {sp(PD[n])}, {sp(S_TAG)}")
            if n: K(f"s_or_b64 {sp(PD[0])}, {sp(PD[0])}, {sp(PD[n])}")
        K.branch(f"s_cbranch_scc0 {d}")
        K(f"s_sub_u32 s{S_CNT}, s{S_CNT}, 1")
        K(f"s_cbranch_scc1 {d}")
        if slp: K(f"s_sleep {slp}")
        poll_issue(fl)
        K(f"s_branch {l}")
        K.label(d)
    def vpoll_issue(vaddr):
        return K(f"buffer_load_dword v{V_POLL}, v{vaddr}, {srd(R_WS)}, 0 offen sc1")
    def vpoll_check(tok, vaddr):
        l, d = newl("poll"), newl("polld")
        K(f"s_mov_b32 s{S_CNT}, {spin}")
        K.wait_vm(tok)
        K.label(l)
        K(f"v_cmp_ne_u32 vcc, s{S_TAG}, v{V_POLL}")
        K.branch(f"s_cbranch_vccz {d}")
        K(f"s_sub_u32 s{S_CNT}, s{S_CNT}, 1")
        K.branch(f"s_cbranch_scc1 {d}")
        K(f"s_sleep 10")
        K(f"buffer_load_dword v{V_POLL}, v{vaddr}, {srd(R_WS)}, 0 offen sc1"); K.vm -= 1
        K("s_waitcnt vmcnt(0)")
        K.branch(f"s_branch {l}")
        K.label(d)
    def flag(soff_reg):
        K("s_mov_b64 exec, 1")
        K(f"buffer_store_dword v{V_TAG}, v{V_LANE}, {srd(R_WS)}, s{soff_reg} offen sc1")
        K("s_mov_b64 exec, -1")
    def arrive(c):
        K(f"v_mov_b32 v{t5}, 1")
        K("s_mov_b64 exec, 1")
        K(f"ds_add_u32 v{V_CNT}, v{t5} offset:{c}")
        K("s_mov_b64 exec, -1")
    def await_(c, n, sleep=0):
        l, d = newl("aw"), newl("awd")
        K(f"s_mov_b32 s{S_CNT}, {spin * 8}")
        K.label(l)
        K(f"ds_read_b32 v{t5}, v{V_CNT} offset:{c}")
        K("s_waitcnt lgkmcnt(0)")
        K(f"v_cmp_ne_u32 vcc, {n}, v{t5}")
        K.branch(f"s_cbranch_vccz {d}")
        if sleep: K(f"s_sleep {sleep}")
        K(f"s_sub_u32 s{S_CNT}, s{S_CNT}, 1")
        K.branch(f"s_cbranch_scc0 {l}")
        K.label(d)
    def mksrd(r, p, nbytes):
        K(f"s_mov_b32 s{r}, s{p}"); K(f"s_and_b32 s{r+1}, s{p+1}, 0xffff")
        K(f"s_mov_b32 s{r+2}, {nbytes}"); K(f"s_mov_b32 s{r+3}, 0x20000")
    def mfma(d, a, b, c=None):
        cs = vr(d, 16) if c is None else c
        K(f"v_mfma_f32_32x32x16_bf16 {vr(d,16)}, {vr(a,4)}, {vr(b,4)}, {cs}")
    def padd(d, a, b, pk):
        if pk: K(f"v_pk_add_f32 {vr(d,2)}, {vr(a,2)}, {vr(b,2)}")
        else: K(f"v_add_f32 v{d}, v{a}, v{b}"); K(f"v_add_f32 v{d+1}, v{a+1}, v{b+1}")
    def pscale(d, r, pk):
        if pk: K(f"v_pk_mul_f32 {vr(d,2)}, {vr(d,2)}, {vr(r & ~1,2)} " + ("op_sel:[0,1] op_sel_hi:[1,1]" if r & 1 else "op_sel_hi:[1,0]"))
        else: K(f"v_mul_f32 v{d}, v{d}, v{r}"); K(f"v_mul_f32 v{d+1}, v{d+1}, v{r}")
    def settag():
        K(f"s_add_u32 s{S_TAG}, s{S_E}, 0x9E3779B9"); K(f"s_mov_b32 s{S_TAG+1}, s{S_TAG}"); K(f"v_mov_b32 v{V_TAG}, s{S_TAG}")
    def xfrag_addr(dst):
        K(f"v_and_b32 v{t0}, 31, v{V_LANE}"); K(f"v_lshrrev_b32 v{t2}, 5, v{V_LANE}"); K(f"v_bfe_u32 v{t3}, v{V_LANE}, 1, 3")
        K(f"v_xor_b32 v{t3}, v{t2}, v{t3}"); K(f"s_lshl_b32 s{T}, s{S_A}, 12"); K(f"v_lshlrev_b32 v{t0}, 7, v{t0}")
        K(f"v_lshl_add_u32 v{t0}, v{t3}, 4, v{t0}"); K(f"v_add_u32 v{dst}, s{T}, v{t0}")
        for k in range(1, 4): K(f"v_xor_b32 v{dst+k}, {32*k}, v{dst}")
    def lanepart():
        K(f"v_bfe_u32 v{t4}, v{V_LANE}, 4, 1"); K(f"v_lshlrev_b32 v{t4}, 5, v{t4}")
        K(f"v_and_b32 v{t3}, 3, v{V_LANE}"); K(f"v_lshl_add_u32 v{t4}, v{t3}, 3, v{t4}")
        K(f"v_bfe_u32 v{t3}, v{V_LANE}, 2, 2"); K(f"v_lshrrev_b32 v{t2}, 5, v{V_LANE}")
    def p2setup():
        mksrd(R_W2, P_W2, 1792*896)
        K(f"s_and_b32 s{T}, s2, 7"); K(f"s_lshr_b32 s{T+1}, s2, 3")
        K(f"s_mul_i32 s{T+2}, s{T+1}, 37"); K(f"s_lshr_b32 s{T+2}, s{T+2}, 8"); K(f"s_mul_i32 s{T+3}, s{T+2}, 7"); K(f"s_sub_u32 s{S_CT}, s{T+1}, s{T+3}")
        K(f"s_lshl_b32 s{T+2}, s{T+2}, 1"); K(f"s_lshl_b32 s{T+3}, s{T}, 3"); K(f"s_add_u32 s{S_ROW}, s{T+2}, s{T+3}")
        K(f"s_cmp_lt_u32 s{T+1}, 28"); K(f"s_cselect_b32 s{S_ACT}, 1, 0")
        K(f"s_and_b32 s{T+2}, s{S_A}, 1"); K(f"s_mul_i32 s{T+3}, s{S_A}, 7"); K(f"s_add_u32 s{T+4}, s{T+3}, s{T+2}")
        K(f"s_cmp_eq_u32 s{T+2}, 0"); K(f"s_cselect_b32 s{T+2}, 6, 0"); K(f"s_add_u32 s{T+2}, s{T+2}, s{T+3}")
        K(f"s_lshl_b32 s{T}, s{S_CT}, 7")
        K(f"s_mul_i32 s{S_W2B}, s{T+4}, {64*896}"); K(f"s_add_u32 s{S_W2B}, s{S_W2B}, s{T}")
        K(f"s_mul_i32 s{S_W2B3}, s{T+2}, {64*896}"); K(f"s_add_u32 s{S_W2B3}, s{S_W2B3}, s{T}")
        K(f"s_lshl_b32 s{S_M02}, s{S_A}, 13")
        K(f"v_lshrrev_b32 v{t0}, 3, v{V_LANE}"); K(f"v_and_b32 v{t1}, 7, v{V_LANE}")
        K(f"v_bfe_u32 v{t2}, v{V_LANE}, 4, 1"); K(f"v_lshlrev_b32 v{t2}, 2, v{t2}"); K(f"v_xor_b32 v{t1}, v{t1}, v{t2}")
        K(f"v_mul_u32_u24 v{t0}, 896, v{t0}"); K(f"v_lshl_add_u32 v{V_D2}, v{t1}, 4, v{t0}")
        for q in range(1, 4): K(f"v_add_u32 v{V_D2+q}, {q*(8*896-1024)}, v{V_D2}")
        K(f"v_mov_b32 v{V_CNT}, {L_CNT}")
    def shift(regs, d):
        for r in regs:
            if d > 0: K(f"v_add_u32 v{r}, {d}, v{r}")
            elif d < 0: K(f"v_subrev_u32 v{r}, {-d}, v{r}")
    pend = []
    def drip(n):
        for _ in range(n):
            if pend: pend.pop(0)()
    def run(steps):
        for f in steps: f()
    tk_r = {}
    def g_w2(r):
        def step(q):
            def f():
                if q % 4 == 0:
                    K(f"s_add_u32 s{TD}, s{S_W2B3 if r == 3 else S_W2B}, {(0 if r == 3 else (2*r % 7)*64*896) + (q // 4)*32*896}")
                    K(f"s_add_u32 m0, s{S_M02}, {U[RUNIT[r]] + (q // 4)*4096}")
                x = K(f"buffer_load_dwordx4 v{V_D2+q%4}, {srd(R_W2)}, s{TD} offen offset:{1024*(q%4)} lds")
                if q == 7: tk_r[r] = x
            return f
        return [step(q) for q in range(8)]
    SH = [0, 0, 65536, 0, -65536, 0, 65536]

    K.raw(f"{NAME}:")
    K("s_cmp_ge_u32 s2, 256"); K("s_cbranch_scc1 L_end")
    K("s_load_dwordx16 s[16:31], s[0:1], 0"); K("s_load_dwordx8 s[32:39], s[0:1], 64"); K("s_load_dwordx2 s[40:41], s[0:1], 96")
    if stamps:
        K(f"s_memrealtime {sp(S_ST)}")
        K(f"v_mov_b32 v{V_STAMP}, 0")
    K(f"v_lshrrev_b32 v{t0}, 6, v0"); K(f"v_and_b32 v{V_LANE}, 63, v0")
    K(f"v_readfirstlane_b32 s{S_W}, v{t0}")
    K(f"v_lshlrev_b32 v{V_L16}, 4, v{V_LANE}")
    K(f"s_and_b32 s{T}, s2, 7"); K(f"s_lshr_b32 s{T+1}, s2, 3")
    if codepf:
        K(f"s_lshr_b32 s{T+2}, s2, 5"); K(f"s_lshl_b32 s{T+2}, s{T+2}, 3"); K(f"s_or_b32 s{T+2}, s{T+2}, s{S_W}"); K(f"s_cmp_lg_u32 s{T+2}, 7")
        K("s_cbranch_scc1 L_nopf")
        K(f"s_getpc_b64 {sp(T+2)}")
        K.raw("L_pc:")
        K(f"s_lshl_b32 s{T+4}, s{T+1}, 7"); K(f"s_sub_u32 s{T+2}, s{T+2}, L_pc - {NAME}"); K(f"s_subb_u32 s{T+3}, s{T+3}, 0")
        K(f"s_add_u32 s{T+2}, s{T+2}, s{T+4}"); K(f"s_addc_u32 s{T+3}, s{T+3}, 0")
        K(f"v_lshlrev_b32 v{t0}, 9, v{V_LANE}")
        K("s_mov_b32 exec_hi, 0xffffff")
        K(f"global_load_dword v{V_POLL}, v{t0}, {sp(T+2)}"); K.vm -= 1
        K("s_mov_b32 exec_hi, -1")
        K.label("L_nopf")
    K(f"s_and_b32 s{T+2}, s{T}, 2"); K(f"s_lshl_b32 s{T+2}, s{T+2}, 1")
    K(f"s_and_b32 s{T+3}, s{T}, 1"); K(f"s_cmp_lt_u32 s{T+1}, 4"); K(f"s_cselect_b32 s{T+4}, 14, 12"); K(f"s_add_u32 s{T+3}, s{T+3}, s{T+4}")
    K(f"s_lshr_b32 s{T+4}, s{T+1}, 3"); K(f"s_lshl_b32 s{S_J}, s{T+4}, 2"); K(f"s_and_b32 s{S_MT}, s{T}, 3"); K(f"s_add_u32 s{S_J}, s{S_J}, s{S_MT}"); K(f"s_sub_u32 s{S_J}, s{S_J}, 4")
    K(f"s_cmp_lt_u32 s{T+1}, 8"); K(f"s_cselect_b32 s{S_J}, s{T+3}, s{S_J}"); K(f"s_cselect_b32 s{T+2}, s{T+2}, 0")
    K(f"s_and_b32 s{T+3}, s{T+1}, 7"); K(f"s_xor_b32 s{T+3}, s{T+3}, s{T+2}")
    K(f"s_and_b32 s{S_MT}, s{T}, 4"); K(f"s_lshl_b32 s{S_MT}, s{S_MT}, 1"); K(f"s_add_u32 s{S_MT}, s{S_MT}, s{T+3}")
    K(f"s_and_b32 s{S_A}, s{S_W}, 3")
    K(f"s_lshl_b32 s{S_W1B}, s{S_J}, 8")
    K(f"s_cmp_lt_u32 s{S_J}, 14")
    K.branch("s_cbranch_scc1 L_norp")
    K(f"s_lshl_b32 s{S_FL}, s{S_MT}, 1"); K(f"s_add_u32 s{S_FL}, s{S_FL}, s{S_J}"); K(f"s_sub_u32 s{S_FL}, s{S_FL}, 14")
    RB = 96
    K(f"s_cmp_eq_u32 s{S_W}, 7")
    K.branch("s_cbranch_scc1 L_rp7")
    K0 = S_XB
    K(f"s_mul_i32 s{K0}, s{S_FL}, 14"); K(f"s_lshl_b32 s{T+5}, s{S_W}, 1"); K(f"s_add_u32 s{K0}, s{K0}, s{T+5}")
    K(f"v_lshrrev_b32 v{t0}, 3, v{V_LANE}"); K(f"v_bfe_u32 v{t1}, v{V_LANE}, 2, 1"); K(f"v_and_b32 v{t2}, 3, v{V_LANE}")
    K(f"v_mul_u32_u24 v{t3}, 56, v{t0}"); K(f"v_mul_u32_u24 v{t4}, 2688, v{t1}"); K(f"v_add_u32 v{t3}, v{t3}, v{t4}")
    K(f"v_lshl_add_u32 v{t3}, v{t2}, 4, v{t3}")
    K(f"s_mul_i32 s{T+5}, s{K0}, 2688"); K(f"v_lshlrev_b32 v{t4}, 1, v{t1}"); K(f"s_lshl_b32 s{T+6}, s{K0}, 1")
    K("s_waitcnt lgkmcnt(0)")
    mksrd(R_T, P_WQKV, 448*2688)
    tkl = {}
    for q in (2, 3, 4, 5): tkl[q] = K(f"buffer_load_dwordx4 {vr(RB+4*q,4)}, v{t3}, {srd(R_T)}, s{T+5} offen offset:{448*q}")
    mksrd(R_X, P_GATE, 896)
    K(f"buffer_load_ushort v{RB+24}, v{t4}, {srd(R_X)}, s{T+6} offen")
    for q in (0, 1): tkl[q] = K(f"buffer_load_dwordx4 {vr(RB+4*q,4)}, v{t3}, {srd(R_T)}, s{T+5} offen offset:{448*q}")
    mksrd(R_WS, P_WS, WS_SIZE)
    K(f"s_mov_b32 s{T+6}, 86016"); K(f"v_mul_lo_u32 v{RB+25}, v{t0}, s{T+6}"); K(f"v_and_b32 v{t1}, 7, v{V_LANE}")
    K(f"v_lshl_add_u32 v{RB+25}, v{t1}, 4, v{RB+25}")
    K(f"v_cmp_eq_u32 vcc, 3, v{t2}")
    K(f"s_lshl_b32 s{T+5}, s{K0}, 6"); K(f"s_add_u32 s{T+5}, s{T+5}, {WS_WQ}")
    for q in (2, 3, 4, 5, 0, 1):
        p, hg = q // 2, q % 2; b = RB + 4*q
        K.wait_vm(tkl[q])
        K(f"v_cndmask_b32 v{b+2}, v{b+2}, v{RB+24}, vcc" if p == 0 else f"v_cndmask_b32 v{b+2}, v{b+2}, 0, vcc")
        K(f"v_cndmask_b32 v{b+3}, v{b+3}, 0, vcc")
        K(f"s_add_u32 s{T+6}, s{T+5}, {p*28672 + hg*8*86016}")
        K(f"buffer_store_dwordx4 {vr(b,4)}, v{RB+25}, {srd(R_WS)}, s{T+6} offen sc1")
    K("s_waitcnt vmcnt(0)")
    K("s_barrier")
    K.branch("s_branch L_norp")
    K.label("L_rp7")
    for e in range(4): K(f"v_mov_b32 v{RB+e}, 0")
    K(f"s_lshl_b32 s{T+5}, s{S_FL}, 12"); K(f"s_add_u32 s{T+5}, s{T+5}, {WS_KVP}")
    K(f"s_lshl_b32 s{S_FL}, s{S_FL}, 7"); K(f"s_add_u32 s{S_FL}, s{S_FL}, {WS_RPF}")
    K("s_waitcnt lgkmcnt(0)")
    K(f"s_load_dword s{S_E}, {sp(P_WS)}, {WS_EPOCH}")
    mksrd(R_WS, P_WS, WS_SIZE)
    for q in range(4): K(f"buffer_store_dwordx4 {vr(RB,4)}, v{V_L16}, {srd(R_WS)}, s{T+5} offen offset:{1024*q} sc1")
    K("s_waitcnt vmcnt(0) lgkmcnt(0)")
    settag()
    K("s_barrier")
    flag(S_FL)
    if stamps: K(f"s_mov_b32 s{S_CNT}, s{S_ST}"); stamp("rp_pub"); K(f"s_mov_b32 s{S_ST}, s{S_CNT}")
    K.label("L_norp")
    K(f"s_cmp_ge_u32 s{S_W}, 4")
    K.branch("s_cbranch_scc1 L_M")

    if prioA: K(f"s_setprio {prioA}")
    K(f"s_lshl_b32 s{T+4}, s{T+4}, 1"); K(f"s_add_u32 s{T+2}, s{T+3}, s{T+4}")
    K(f"s_cmp_ge_u32 s{T+2}, 7"); K(f"s_cselect_b32 s{T+3}, 7, 0"); K(f"s_sub_u32 s{S_CH}, s{T+2}, s{T+3}")
    if not rot1: K(f"s_mov_b32 s{S_CH}, 0")
    def rotstep(t):
        K(f"s_lshl_b32 s{S_CHO+t}, s{S_CH}, 12")
        if t < 6: K(f"s_add_u32 s{S_CH}, s{S_CH}, 1"); K(f"s_cmp_eq_u32 s{S_CH}, 7"); K(f"s_cselect_b32 s{S_CH}, 0, s{S_CH}")
    rotstep(0); rotstep(1)
    K(f"s_lshl_b32 s{S_M0}, s{S_A}, 12")
    K(f"s_mul_i32 s{S_XB}, s{S_MT}, {128*896}")
    K(f"v_lshrrev_b32 v{t0}, 3, v{V_LANE}"); K(f"v_and_b32 v{t1}, 7, v{V_LANE}"); K(f"v_lshrrev_b32 v{t2}, 1, v{t0}"); K(f"v_xor_b32 v{t2}, v{t1}, v{t2}")
    K(f"s_lshl_b32 s{T+2}, s{S_A}, 5"); K(f"v_add_u32 v{t3}, s{T+2}, v{t0}"); K(f"v_mul_u32_u24 v{t3}, 896, v{t3}")
    K(f"v_lshl_add_u32 v{A_XD}, v{t2}, 4, v{t3}"); K(f"v_xor_b32 v{t2}, 4, v{t2}"); K(f"v_lshl_add_u32 v{A_XD+1}, v{t2}, 4, v{t3}")
    K(f"v_add_u32 v{A_XD+1}, {8*896-1024}, v{A_XD+1}")
    K(f"v_add_u32 v{A_XD+2}, {16*896-2048}, v{A_XD}"); K(f"v_add_u32 v{A_XD+3}, {16*896-2048}, v{A_XD+1}")
    K(f"v_lshrrev_b32 v{t0}, 4, v{V_LANE}"); K(f"v_and_b32 v{t1}, 15, v{V_LANE}"); K(f"v_lshlrev_b32 v{t2}, 2, v{t0}"); K(f"v_xor_b32 v{t2}, v{t1}, v{t2}")
    K(f"s_lshl_b32 s{T+2}, s{S_A}, 4"); K(f"v_add_u32 v{t3}, s{T+2}, v{t0}"); K(f"v_mul_u32_u24 v{t3}, 3584, v{t3}")
    K(f"v_lshl_add_u32 v{A_WD}, v{t2}, 4, v{t3}")
    for q in range(1, 4): K(f"v_add_u32 v{A_WD+q}, {q*(4*3584-1024)}, v{A_WD}")
    K("s_waitcnt lgkmcnt(0)")
    if stamps: K(f"v_writelane_b32 v{V_STAMP}, s{S_ST}, {STAMP_IDS.setdefault('start', len(STAMP_IDS))}")
    mksrd(R_X, P_X, 2048*896); mksrd(R_W1, P_W1, 448*3584)
    K(f"s_cmp_lt_u32 s{S_J}, 14"); K(f"s_cselect_b32 s{R_W1+2}, s{R_W1+2}, 0")
    tk_stage = {}
    def g_stage(t):
        u = U[t % 4]
        def step(q):
            def f():
                if q == 0: K(f"s_lshr_b32 s{TD}, s{S_CHO+t}, 5"); K(f"s_add_u32 s{TD}, s{TD}, s{S_XB}"); K(f"s_add_u32 m0, s{S_M0}, {u}")
                if q == 4: K(f"s_mul_i32 s{TD}, s{S_CHO+t}, 56"); K(f"s_add_u32 s{TD}, s{TD}, s{S_W1B}"); K(f"s_add_u32 m0, s{S_M0}, {u + 16384}")
                if q < 4: K(f"buffer_load_dwordx4 v{A_XD+q}, {srd(R_X)}, s{TD} offen offset:{1024*q} lds")
                else: x = K(f"buffer_load_dwordx4 v{A_WD+q-4}, {srd(R_W1)}, s{TD} offen offset:{1024*(q-4)} lds")
                if q == 7: tk_stage[t] = x
            return f
        return [step(q) for q in range(8)]
    ilist = []
    for t in range(7): ilist += [(f, t - 2 if t >= 4 else -1) for f in g_stage(t)]
    pos = [0]
    def issue_to(n, lastbar):
        while pos[0] < min(n, len(ilist)) and ilist[pos[0]][1] <= lastbar:
            ilist[pos[0]][0](); pos[0] += 1
    if fine: stamp("A_karg")
    issue_to(8, -1)
    issue_to(8 + LA0, -1)
    if fine: stamp("A_i1")
    K(f"s_load_dword s{S_E}, {sp(P_WS)}, {WS_EPOCH}")
    for t in range(2, 7): rotstep(t)
    mksrd(R_WS, P_WS, WS_SIZE); mksrd(R_OUT, P_OUT, 2048*896)
    p2setup()
    K(f"s_mov_b32 s{S_UP}, 0"); K(f"s_mov_b32 s{S_UP+1}, -1")
    K(f"s_mov_b32 s{S_L28}, 0x10000000"); K(f"s_mov_b32 s{S_L28+1}, 0x10000000")
    xfrag_addr(A_AX)
    lanepart()
    K(f"v_lshl_add_u32 v{t0}, v{t2}, 3, v{t3}"); K(f"v_lshl_add_u32 v{A_TR}, v{t0}, 6, v{t4}")
    K(f"v_lshl_add_u32 v{t0}, v{t2}, 2, v{t3}"); K(f"v_mul_u32_u24 v{t1}, 56, v{t0}"); K(f"v_add_u32 v{t1}, v{t1}, v{t4}"); K(f"v_add_u32 v{A_PH}, {L_PHI}, v{t1}")
    K(f"v_lshlrev_b32 v{A_L4}, 2, v{V_LANE}")
    K(f"s_lshl_b32 s{T}, s{S_A}, 10"); K(f"s_add_u32 s{T}, s{T}, {WS_RPF}"); K(f"v_and_b32 v{A_PA}, 7, v{V_LANE}"); K(f"v_lshl_add_u32 v{A_PA}, v{A_PA}, 7, s{T}")
    K(f"s_mul_i32 s{S_RS}, s{S_J}, {3*28672}"); K(f"s_mul_i32 s{S_P3}, s{S_A}, 7168"); K(f"s_add_u32 s{S_RS}, s{S_RS}, s{S_P3}"); K(f"s_add_u32 s{S_RS}, s{S_RS}, {WS_WQ}")
    K("s_waitcnt lgkmcnt(0)")
    settag()
    if fine: stamp("A_setup")
    tkx = {}
    def g_panel(p, lds):
        def step(q):
            def f():
                if q % 4 == 0: K(f"s_add_u32 s{TD}, s{S_RS}, {28672*p + (q // 4)*4096}"); K(f"s_add_u32 m0, s{S_P3}, {lds + (q // 4)*4096}")
                tkx[p] = K(f"buffer_load_dwordx4 v{V_L16}, {srd(R_WS)}, s{TD} offen offset:{1024*(q%4)} sc1 lds")
            return f
        return [step(q) for q in range(7)]
    for t in range(7):
        issue_to(8*(t+1) + (LA0 if t == 0 else LA), t - 1)
        shift(range(A_AX, A_AX + 4), SH[t])
        if t == 5:
            assert pos[0] == len(ilist)
            tkp = vpoll_issue(A_PA)
        if fine: stamp(f"A{t}a")
        K.wait_vm(tk_stage[t])
        if fine: stamp(f"A{t}b")
        if t < 6:
            if t >= 2: K("s_waitcnt lgkmcnt(4)")
            K("s_barrier")
        else: arrive(C_S)
        if t in (0, 4, 6): stamp(f"A_b{t}")
        for ksl in range(4): K(f"ds_read_b128 {vr(V_X + 16*t + 4*ksl, 4)}, v{A_AX+ksl} offset:{(t % 2) * 32768}")
    arrive(C_E)
    vpoll_check(tkp, A_PA)
    stamp("rp_seen")
    run(g_panel(1, L_K) + g_panel(2, L_V))
    stamp("kv_issued")
    K(f"s_mov_b32 s{S_K}, {f2u(L2E):#x}"); K(f"s_mov_b32 s{S_K+1}, {f2u(L2E):#x}")
    VPH, ID, VB = V_W + 24, 26, V_W + 16
    IDR = [26, 27, 28, 29, V_D2, V_D2+1, V_D2+2, V_D2+3]
    K(f"v_and_b32 v{t0}, 31, v{V_LANE}"); K(f"v_lshrrev_b32 v{t1}, 5, v{V_LANE}"); K(f"v_lshlrev_b32 v{t1}, 2, v{t1}")
    K(f"v_sub_u32 v{t0}, v{t0}, v{t1}")
    K(f"v_and_b32 v{t1}, 1, v{V_LANE}"); K(f"v_lshlrev_b32 v{t1}, 4, v{t1}"); K(f"v_mov_b32 v{t2}, 0x3f80"); K(f"v_lshlrev_b32 v{t1}, v{t1}, v{t2}")
    K(f"v_and_b32 v{t0}, -2, v{t0}")
    for s in range(2):
        for q in range(4): K(f"v_cmp_eq_u32 {sp(T+2*q)}, {16*s + 8*(q // 2) + 2*(q % 2)}, v{t0}")
        for q in range(4): K(f"v_cndmask_b32 v{IDR[4*s+q]}, 0, v{t1}, {sp(T+2*q)}")
    for s in range(2):
        for r in range(2): K(f"ds_read_b64_tr_b16 {vr(VPH + 4*s + 2*r, 2)}, v{A_PH} offset:{(16*s + 8*r)*56}")
    K(f"s_lshl_b32 s{T}, s{S_A}, 11"); K(f"s_lshl_b32 s{T+1}, s{S_H}, 13"); K(f"s_add_u32 s{S_HB}, s{T+1}, s{T}"); K(f"s_add_u32 s{S_PE}, s{S_HB}, {WS_KVF}"); K(f"s_add_u32 s{S_HB}, s{S_HB}, {WS_KVP}")
    K(f"s_lshl_b32 s{T+3}, s{S_MT}, 7"); K(f"s_add_u32 s{S_FL}, s{S_PE}, s{T+3}")
    FL_K = [(S_PE, 128*u) for u in range(16)]
    K(f"s_lshl_b32 s{T}, s{S_MT}, 2"); K(f"s_add_u32 s{T}, s{T}, s{S_A}"); K(f"s_lshl_b32 s{T}, s{T}, 4"); K(f"s_add_u32 s{T}, s{T}, s{S_H}")
    K(f"s_lshl_b32 s{S_OB}, s{T}, 11"); K(f"s_add_u32 s{S_OB}, s{S_OB}, {WS_O}")
    K(f"s_lshl_b32 s{T+2}, s{T}, 7"); K(f"s_add_u32 s{S_FL2}, s{T+2}, {WS_OF}"); K(f"s_add_u32 s{S_XB}, s{T+2}, {WS_G - 128}")
    K.wait_vm(tkx[2]); arrive(C_0)
    stamp("kv_landed0")
    await_(C_0, 4, 1)
    K(f"v_cndmask_b32 v{VPH+6}, v{VPH+6}, 0, {UPM}"); K(f"v_cndmask_b32 v{VPH+7}, v{VPH+7}, 0, {UPM}")
    await_(C_G, 4, 1)
    stamp("kv_start")

    def gemm_qkv(panels, hook=None):
        nb = len(panels) * 4
        D = 3 if len(panels) == 2 else 6
        tk = {}
        for n, (off, acc, sw) in enumerate(panels): K(f"v_add_u32 v{A_AX+n}, {off}, v{A_TR}")
        def rd(ks, n):
            t, ksl = ks // 4, ks % 4
            b = V_W + nb * (ks % D)
            if ksl == 0: K(f"v_add_u32 v{A_AD + n}, s{S_CHO+t}, v{A_AX+n}")
            for r in range(2):
                tk[ks] = K(f"ds_read_b64_tr_b16 {vr(b + 4*n + 2*r, 2)}, v{A_AD + n} offset:{(16*ksl + 4*r)*64}")
        for k in range(D):
            for n in range(len(panels)): rd(k, n)
        for ks in range(28):
            K.wait_lg(tk[ks])
            b = V_W + nb * (ks % D)
            for n, (off, acc, sw) in enumerate(panels):
                wv, xv = b + 4*n, V_X + 4*ks
                if sw: mfma(acc, xv, wv, "0" if ks == 0 else None)
                else: mfma(acc, wv, xv, "0" if ks == 0 else None)
                if ks + D < 28: rd(ks + D, n)
            if hook: hook(ks)
    QP = V_W
    P = V_ACC
    def featmap():
        for e in range(8): K(f"v_cvt_pk_bf16_f32 v{QP+e}, v{V_ACC+2*e}, v{V_ACC+2*e+1}")
        mfma(P, VPH, QP, "0"); mfma(P, VPH + 4, QP + 4)
    def softmax(pk):
        for e in range(4): K(f"v_cndmask_b32 v{P+12+e}, v{P+12+e}, v{P}, {UPM}")
        mx, mn = t0, t2
        K(f"v_max3_f32 v{mx}, v{P}, v{P+1}, v{P+2}"); K(f"v_min3_f32 v{mn}, v{P}, v{P+1}, v{P+2}")
        K(f"v_max3_f32 v{t1}, v{P+3}, v{P+4}, v{P+5}"); K(f"v_min3_f32 v{t3}, v{P+3}, v{P+4}, v{P+5}")
        for e in range(6, 14, 4):
            K(f"v_max3_f32 v{mx}, v{mx}, v{P+e}, v{P+e+1}"); K(f"v_min3_f32 v{mn}, v{mn}, v{P+e}, v{P+e+1}")
            K(f"v_max3_f32 v{t1}, v{t1}, v{P+e+2}, v{P+e+3}"); K(f"v_min3_f32 v{t3}, v{t3}, v{P+e+2}, v{P+e+3}")
        K(f"v_max3_f32 v{mx}, v{mx}, v{P+14}, v{P+15}"); K(f"v_min3_f32 v{mn}, v{mn}, v{P+14}, v{P+15}")
        K(f"v_max_f32 v{mx}, v{mx}, v{t1}"); K(f"v_min_f32 v{mn}, v{mn}, v{t3}")
        K(f"v_mov_b32 v{t1}, v{mx}"); K(f"v_mov_b32 v{t3}, v{mn}")
        K(f"v_permlane32_swap_b32 v{mx}, v{t1}"); K(f"v_permlane32_swap_b32 v{mn}, v{t3}")
        K(f"v_max_f32 v{mx}, v{mx}, v{t1}"); K(f"v_min_f32 v{mn}, v{mn}, v{t3}")
        K(f"v_mul_f32 v{mx}, s{S_K}, v{mx}"); K(f"v_mul_f32 v{mn}, s{S_K}, v{mn}")
        EP, EN = V_P, V_P + 16
        for e in range(0, 16, 2):
            if pk:
                K(f"v_pk_fma_f32 {vr(EP+e,2)}, {vr(P+e,2)}, {sp(S_K)}, {vr(mx,2)} op_sel_hi:[1,1,0] neg_lo:[0,0,1] neg_hi:[0,0,1]")
                K(f"v_pk_fma_f32 {vr(EN+e,2)}, {vr(P+e,2)}, {sp(S_K)}, {vr(mn,2)} op_sel_hi:[1,1,0] neg_lo:[1,0,0] neg_hi:[1,0,0]")
            else:
                for x in (e, e + 1):
                    K(f"v_fma_f32 v{EP+x}, v{P+x}, s{S_K}, -v{mx}"); K(f"v_fma_f32 v{EN+x}, -v{P+x}, s{S_K}, v{mn}")
        for e in range(16):
            K(f"v_exp_f32 v{EP+e}, v{EP+e}"); K(f"v_exp_f32 v{EN+e}, v{EN+e}")
        S = V_W
        for n, E in enumerate((EP, EN)):
            padd(S+4*n, E, E+2, pk); padd(S+4*n+2, E+12, E+14, pk)
        for n, E in enumerate((EP, EN)):
            padd(S+4*n, S+4*n, E+4, pk)
            K(f"v_cndmask_b32 v{S+4*n+2}, v{S+4*n+2}, 0, {UPM}"); K(f"v_cndmask_b32 v{S+4*n+3}, v{S+4*n+3}, 0, {UPM}")
        for n, E in enumerate((EP, EN)):
            padd(S+4*n, S+4*n, E+6, pk); padd(S+4*n+2, S+4*n+2, E+8, pk)
        for n, E in enumerate((EP, EN)): padd(S+4*n, S+4*n, E+10, pk)
        for n in range(2): padd(S+4*n, S+4*n, S+4*n+2, pk)
        K(f"v_add_f32 v{t0}, v{S}, v{S+1}"); K(f"v_add_f32 v{t2}, v{S+4}, v{S+5}")
        K(f"v_mov_b32 v{t1}, v{t0}"); K(f"v_mov_b32 v{t3}, v{t2}")
        K(f"v_permlane32_swap_b32 v{t0}, v{t1}"); K(f"v_permlane32_swap_b32 v{t2}, v{t3}")
        K(f"v_add_f32 v{t0}, v{t0}, v{t1}"); K(f"v_add_f32 v{t2}, v{t2}, v{t3}")
        K(f"v_rcp_f32 v{t0}, v{t0}"); K(f"v_rcp_f32 v{t2}, v{t2}")
        K(f"v_cndmask_b32 v{t1}, v{t0}, 0, {UPM}"); K(f"v_cndmask_b32 v{t3}, v{t2}, 0, {UPM}")
        for e in range(0, 16, 2):
            pscale(EP+e, t0 if e < 12 else t1, pk); pscale(EN+e, t2 if e < 12 else t3, pk)
        for e in range(8):
            K(f"v_cvt_pk_bf16_f32 v{V_PHI+e}, v{EP+2*e}, v{EP+2*e+1}"); K(f"v_cvt_pk_bf16_f32 v{V_PHI+8+e}, v{EN+2*e}, v{EN+2*e+1}")

    pend.extend(g_panel(0, L_Q))
    def hook(ks):
        if ks >= qd and (ks - qd) % 3 == 0: drip(1)
        if ks == 25: arrive(C_1)
    gemm_qkv([(L_K, V_ACC, False), (L_V, V_ACC + 16, True)], hook)
    featmap()
    stamp("kv_gemm")
    K(f"v_mov_b32 v{t4}, 0x3f803f80")
    for e in range(8): K(f"v_cvt_pk_bf16_f32 v{VB+e}, v{V_ACC+16+2*e}, v{V_ACC+16+2*e+1}")
    for e in range(8): K(f"v_cndmask_b32 v{VB+e}, v{VB+e}, v{t4}, {sp(S_L28)}")
    softmax(pkk)
    stamp("sm_k")
    TP, TN = V_P, V_P + 16
    mfma(TP, V_PHI, IDR[0], "0"); mfma(TP, V_PHI + 4, IDR[4])
    mfma(TN, V_PHI + 8, IDR[0], "0"); mfma(TN, V_PHI + 12, IDR[4])
    await_(C_1, 4)
    K(f"s_lshl_b32 s{T}, s{S_A}, 13"); K(f"s_add_u32 s{T}, s{T}, {L_KVS}"); K(f"v_add_u32 v{t0}, s{T}, v{V_L16}")
    K(f"s_lshl_b32 s{T}, s{S_A}, 11"); K(f"s_add_u32 s{T}, s{T}, {L_KVS}"); K(f"v_add_u32 v{t1}, s{T}, v{V_L16}")
    for e in range(8): K(f"v_cvt_pk_bf16_f32 v{V_PHI+e}, v{TP+2*e}, v{TP+2*e+1}")
    mfma(V_ACC, V_PHI, VB, "0"); mfma(V_ACC, V_PHI + 4, VB + 4)
    for e in range(8): K(f"v_cvt_pk_bf16_f32 v{V_PHI+8+e}, v{TN+2*e}, v{TN+2*e+1}")
    mfma(V_ACC + 16, V_PHI + 8, VB, "0"); mfma(V_ACC + 16, V_PHI + 12, VB + 4)
    K("s_waitcnt vmcnt(0)")
    for b in range(8): K(f"ds_write_b128 v{t0}, {vr(V_ACC+4*b,4)} offset:{1024*b}")
    arrive(C_2)
    await_(C_2, 4)
    for hb in range(2):
        for g in range(4): K(f"ds_read_b128 {vr(V_P+16*hb+4*g,4)}, v{t1} offset:{8192*g + 1024*hb}")
    arrive(C_3)
    for hb in range(2):
        K(f"s_waitcnt lgkmcnt({5 - 4*hb})")
        B = V_P + 16*hb
        for e in (0, 2): padd(B+e, B+e, B+4+e, pkq); padd(B+8+e, B+8+e, B+12+e, pkq)
        for e in (0, 2): padd(B+e, B+e, B+8+e, pkq)
        for e in range(4): K(f"buffer_atomic_add_f32 v{B+e}, v{A_L4}, {srd(R_WS)}, s{S_HB} offen offset:{1024*hb + 256*e}")
    stamp("kv_st")
    def hook(ks):
        if ks == 22: arrive(C_Q)
        if ks == kvf:
            K("s_waitcnt vmcnt(0)")
            flag(S_FL)
            stamp("kv_pub")
    gemm_qkv([(L_Q, V_ACC, False)], hook)
    K(f"v_cvt_pk_bf16_f32 v{t0}, v{V_ACC+12}, v{V_ACC+12}")
    featmap()
    K(f"v_lshlrev_b32 v{t0}, 16, v{t0}")
    K(f"v_mul_f32 v{t0}, s{S_K}, v{t0}"); K(f"v_exp_f32 v{t0}, -v{t0}"); K(f"v_add_f32 v{t0}, 1.0, v{t0}"); K(f"v_rcp_f32 v{t0}, v{t0}")
    K(f"v_cvt_pk_bf16_f32 v{t0}, v{t0}, v{t0}"); K(f"v_lshlrev_b32 v{A_G}, 16, v{t0}")
    K("s_mov_b32 exec_lo, 0")
    K(f"buffer_store_dword v{A_G}, v{A_L4}, {srd(R_WS)}, s{S_XB} offen sc1")
    K("s_mov_b32 exec_lo, -1")
    stamp("q_gemm")
    softmax(pkq)
    stamp("sm_q")
    poll_issue(FL_K)
    poll_check(FL_K)
    stamp("kv_seen")
    for e in range(8): K(f"buffer_load_dword v{V_P+e}, v{A_L4}, {srd(R_WS)}, s{S_HB} offen offset:{256*e} sc1")
    F = V_W
    K(f"s_lshl_b32 s{T}, s{S_A}, 10"); K(f"v_add_u32 v{t1}, {L_KVF}, v{V_L16}"); K(f"v_add_u32 v{t0}, s{T}, v{t1}")
    K("s_waitcnt vmcnt(0)")
    stamp("kv_landed")
    for e in range(4): K(f"v_cvt_pk_bf16_f32 v{F+e}, v{V_P+2*e}, v{V_P+2*e+1}")
    K(f"ds_write_b128 v{t0}, {vr(F,4)}")
    arrive(C_4)
    await_(C_4, 4)
    for f in range(4): K(f"ds_read_b128 {vr(F+4*f,4)}, v{t1} offset:{1024*f}")
    N = V_ACC
    for f in range(4):
        K(f"s_waitcnt lgkmcnt({3-f})")
        mfma(N, F + 4*f, V_PHI + 4*f, "0" if f == 0 else None)
    K(f"v_cvt_pk_bf16_f32 v{t0}, v{N+12}, v{N+12}")
    for e in range(8): K(f"v_cvt_pk_bf16_f32 v{F+e}, v{N+2*e}, v{N+2*e+1}")
    K(f"v_lshlrev_b32 v{t0}, 16, v{t0}")
    K(f"v_add_f32 v{t0}, {f2u(1e-6):#x}, v{t0}")
    K(f"v_cvt_pk_bf16_f32 v{t0}, v{t0}, v{t0}"); K(f"v_lshlrev_b32 v{t0}, 16, v{t0}")
    K(f"v_rcp_f32 v{t0}, v{t0}")
    for e in range(4):
        K(f"v_lshlrev_b32 v{N+2*e}, 16, v{F+e}"); K(f"v_and_b32 v{N+2*e+1}, 0xffff0000, v{F+e}")
    K(f"v_mul_f32 v{t0}, v{t0}, v{A_G}"); K(f"v_mov_b32 v{t1}, v{t0}")
    for e in range(4, 8):
        K(f"v_lshlrev_b32 v{N+2*e}, 16, v{F+e}"); K(f"v_and_b32 v{N+2*e+1}, 0xffff0000, v{F+e}")
    K(f"v_permlane32_swap_b32 v{t1}, v{t0}")
    for e in range(0, 16, 2): pscale(N+e, t0, pkq)
    for e in range(8): K(f"v_cvt_pk_bf16_f32 v{F+e}, v{N+2*e}, v{N+2*e+1}")
    K(f"v_cndmask_b32 v{F+6}, v{F+6}, 0, {UPM}"); K(f"v_cndmask_b32 v{F+7}, v{F+7}, 0, {UPM}")
    K(f"buffer_store_dwordx4 {vr(F,4)}, v{V_L16}, {srd(R_WS)}, s{S_OB} offen sc1")
    K(f"buffer_store_dwordx4 {vr(F+4,4)}, v{V_L16}, {srd(R_WS)}, s{S_OB} offen offset:1024 sc1")
    K("s_waitcnt vmcnt(0)")
    flag(S_FL2)
    stamp("o_pub")
    K(f"s_cmp_eq_u32 s{S_ACT}, 0")
    K.branch("s_cbranch_scc1 L_fin")
    K.branch("s_branch L_red")

    K.label("L_M")
    if prioM: K(f"s_setprio {prioM}")
    K("s_waitcnt lgkmcnt(0)")
    if stamps: K(f"v_writelane_b32 v{V_STAMP}, s{S_ST}, {STAMP_IDS.setdefault('start', len(STAMP_IDS))}")
    K(f"s_load_dword s{S_E}, {sp(P_WS)}, {WS_EPOCH}")
    mksrd(R_T, P_B1, 3584)
    K(f"s_lshl_b32 s{T+1}, s{S_A}, 8"); K(f"s_add_u32 m0, s{T+1}, {L_B1}")
    K("s_mov_b64 exec, 0xffff")
    tk_b1 = K(f"buffer_load_dwordx4 v{V_L16}, {srd(R_T)}, s{S_W1B} offen lds")
    K("s_mov_b64 exec, -1")
    mksrd(R_T, P_PHI, 16*1568)
    K(f"s_mul_i32 s{T}, s{S_J}, 1568"); K(f"s_mul_i32 s{T+1}, s{S_A}, 400"); K(f"s_add_u32 s{T}, s{T}, s{T+1}"); K(f"s_add_u32 m0, s{T+1}, {L_PHI}")
    K("s_mov_b64 exec, 0x1ffffff")
    K(f"buffer_load_dwordx4 v{V_L16}, {srd(R_T)}, s{T} offen lds")
    K("s_mov_b64 exec, -1")
    mksrd(R_WS, P_WS, WS_SIZE); mksrd(R_WO, P_WO, 448*896); mksrd(R_OUT, P_OUT, 2048*896)
    p2setup()
    K(f"s_mul_i32 s{T}, s{S_ROW}, {112*1024}"); K(f"s_add_u32 s{T}, s{T}, {WS_H}")
    K(f"s_lshl_b32 s{S_HB}, s{T+4}, 12"); K(f"s_add_u32 s{S_HB}, s{S_HB}, s{T}")
    K(f"s_lshl_b32 s{S_HB3}, s{T+2}, 12"); K(f"s_add_u32 s{S_HB3}, s{S_HB3}, s{T}")
    mksrd(R_T, P_B2, 896)
    K(f"s_lshl_b32 s{T}, s{S_CT}, 7"); K(f"s_lshl_b32 s{T+1}, s{S_A}, 10"); K(f"s_add_u32 s{T}, s{T}, s{T+1}")
    K(f"s_lshl_b32 s{T+1}, s{S_A}, 7"); K(f"s_add_u32 m0, s{T+1}, {L_B2}")
    K("s_mov_b64 exec, 0xff")
    tk_b2 = K(f"buffer_load_dwordx4 v{V_L16}, {srd(R_T)}, s{T} offen lds")
    K("s_mov_b64 exec, -1")
    K(f"s_lshl_b32 s{T}, s{S_ROW}, 12"); K(f"s_add_u32 s{T}, s{T}, {WS_HF}")
    K(f"s_lshl_b32 s{S_PE}, s{T+4}, 7"); K(f"s_add_u32 s{S_PE}, s{S_PE}, s{T}")
    K(f"s_lshl_b32 s{S_P3}, s{T+2}, 7"); K(f"s_add_u32 s{S_P3}, s{S_P3}, s{T}")
    K(f"s_lshl_b32 s{T}, s{S_ROW}, 4"); K(f"s_lshl_b32 s{T+1}, s{S_A}, 2"); K(f"s_add_u32 s{S_OB}, s{T+1}, s{T}")
    K(f"s_lshl_b32 s{S_PO}, s{S_OB}, 7"); K(f"s_add_u32 s{S_PO}, s{S_PO}, {WS_OF}")
    FL_E = [(S_PE, 4096*r + 256*u) for r in range(2) for u in range(3)]
    FL_L = [(S_PE, 4096*r + 256*u + 128) for r in range(2) for u in range(3)] + [(S_P3, 0), (S_P3, 4096)]
    FL_O = [(S_PO, 2048*r + 128*u) for r in range(2) for u in range(4)]
    K(f"s_lshl_b32 s{T}, s{S_MT}, 2"); K(f"s_add_u32 s{T}, s{T}, s{S_A}"); K(f"s_mul_i32 s{S_RS}, s{T}, 112")
    K(f"s_lshl_b32 s{T+1}, s{S_J}, 3"); K(f"s_add_u32 s{S_RS}, s{S_RS}, s{T+1}"); K(f"s_lshl_b32 s{S_RS}, s{S_RS}, 10"); K(f"s_add_u32 s{S_RS}, s{S_RS}, {WS_H}")
    K(f"s_lshl_b32 s{S_FL}, s{T}, 4"); K(f"s_add_u32 s{S_FL}, s{S_FL}, s{S_J}"); K(f"s_lshl_b32 s{S_FL}, s{S_FL}, 8"); K(f"s_add_u32 s{S_FL}, s{S_FL}, {WS_HF}")
    K(f"s_add_u32 s{S_FL2}, s{S_FL}, 128")
    K(f"v_mov_b32 v{t0}, 0"); K(f"v_lshl_add_u32 v{t1}, v{V_LANE}, 2, v{V_CNT}"); K(f"ds_write_b32 v{t1}, v{t0}")
    K(f"v_add_u32 v{M_L16B}, {112*1024}, v{V_L16}")
    MP = M_AR + 40
    K(f"v_lshlrev_b32 v{MP}, 7, v{V_LANE}")
    K(f"s_lshl_b32 s{T+3}, s2, 2"); K(f"s_add_u32 s{T+3}, s{T+3}, s{S_A}")
    K(f"s_mul_i32 s{S_XB}, s{T+3}, {13*128}"); K(f"s_lshl_b32 s{S_M0}, s{T+3}, 9")
    def mall_pf():
        K("s_mov_b64 exec, 0x1fff")
        K(f"buffer_load_dword v{V_POLL}, v{MP}, {srd(R_W2)}, s{S_XB} offen")
        K("s_mov_b64 exec, 15")
        K(f"buffer_load_dword v{V_POLL}, v{MP}, {srd(R_WO)}, s{S_M0} offen")
        K("s_mov_b64 exec, -1")
    if mpf == 1: mall_pf()
    if tlb:
        l = newl("tlb")
        K(f"s_cmp_lg_u32 s{S_A}, 1")
        K.branch(f"s_cbranch_scc1 {l}")
        K(f"v_lshlrev_b32 v{t0}, {tlb}, v{V_LANE}")
        K(f"buffer_load_dword v{V_POLL}, v{t0}, {srd(R_WS)}, 0 offen offset:2048"); K.vm -= 1
        K(f"buffer_load_dword v{V_POLL}, v{t0}, {srd(R_OUT)}, 0 offen"); K.vm -= 1
        K.label(l)
    xfrag_addr(M_AX)
    lanepart()
    K(f"v_lshl_add_u32 v{t0}, v{t2}, 3, v{t3}"); K(f"v_lshl_add_u32 v{t0}, v{t0}, 8, v{t4}"); K(f"v_lshl_add_u32 v{t0}, v{t3}, 6, v{t0}")
    K(f"v_add_u32 v{M_AW}, 16384, v{t0}")
    for p in range(1, 4): K(f"v_xor_b32 v{M_AW+p}, {64*p}, v{M_AW}")
    AB = M_AB
    K(f"v_lshl_add_u32 v{t0}, v{t2}, 2, v{t3}"); K(f"v_lshl_add_u32 v{t0}, v{t0}, 7, v{t4}"); K(f"v_bfe_u32 v{t1}, v{V_LANE}, 3, 1"); K(f"v_lshl_add_u32 v{t0}, v{t1}, 6, v{t0}")
    K(f"v_add_u32 v{AB}, s{S_M02}, v{t0}"); K(f"v_xor_b32 v{AB+1}, 64, v{AB}")
    K(f"v_add_u32 v{AB+2}, 65536, v{AB}"); K(f"v_add_u32 v{AB+3}, 65536, v{AB+1}")
    K(f"v_lshlrev_b32 v{t0}, 9, v{t2}"); K(f"v_sub_u32 v22, v{AB+2}, v{t0}"); K(f"v_sub_u32 v23, v{AB+3}, v{t0}")
    K(f"s_lshl_b32 s{T}, s{S_A}, 7"); K(f"s_add_u32 s{T}, s{T}, {L_B2}"); K(f"v_lshl_add_u32 v0, v{t2}, 3, s{T}")
    K(f"s_lshl_b32 s{T}, s{S_A}, 8"); K(f"s_add_u32 s{T}, s{T}, {L_B1}"); K(f"v_lshl_add_u32 v{t0}, v{t2}, 3, s{T}")
    box = {}
    K(f"s_cmp_ge_u32 s{S_J}, 14")
    K.branch("s_cbranch_scc1 L_nof")
    vm_nof = K.vm
    K.wait_vm(tk_b1)
    for q in range(8): K(f"ds_read2_b64 {vr(M_AR+4*q,4)}, v{t0} offset0:{4*q} offset1:{4*q+2}")
    K("s_waitcnt lgkmcnt(0)")
    settag()
    for q in range(32):
        K(f"v_lshlrev_b32 v{M_ACC+2*q}, 16, v{M_AR+q}")
        K(f"v_and_b32 v{M_ACC+2*q+1}, 0xffff0000, v{M_AR+q}")
    if fine: stamp("M_rdy")
    WR, XR = M_BH, M_BH + 4*G
    tk = {}
    def rdg(g):
        ks, p = g // 4, g % 4
        t, ksl = ks // 4, ks % 4
        uo = (t % 2) * 32768
        if p == 0 and ksl == 0:
            shift(range(M_AX, M_AX + 8), SH[t])
            if t == 3: K.wait_vm(tk_b2)
            if t < 6: K("s_barrier")
            else:
                l = newl("s6")
                K.wait_lg(box['cs'])
                K(f"v_cmp_ne_u32 vcc, 4, v{t4}")
                K(f"s_cbranch_vccz {l}")
                lgs = K.lg
                await_(C_S, 4)
                K.lg = lgs
                K.raw(f"{l}:")
        if p == 0: K(f"ds_read_b128 {vr(XR + 4*(ks % 3), 4)}, v{M_AX+ksl} offset:{uo}")
        for r in range(2):
            tk[g] = K(f"ds_read_b64_tr_b16 {vr(WR + 4*(g % G) + 2*r, 2)}, v{M_AW+p} offset:{uo + (16*ksl + 4*r)*256}")
    for g in range(G): rdg(g)
    for g in range(112):
        K.wait_lg(tk[g])
        mfma(M_ACC + 16*(g % 4), WR + 4*(g % G), XR + 4*((g // 4) % 3))
        if g + G < 112: rdg(g + G)
        if g + G == 112: arrive(C_E)
        if g + G + 3 == 96: box['cs'] = K(f"ds_read_b32 v{t4}, v{V_CNT} offset:{C_S}")
        if mpf > 1 and g == mpf: mall_pf()
    stamp("ffn1")
    if prioG: K(f"s_setprio {prioG}")
    cc = -2.0 * 0.7978845608028654 * 1.4426950408889634
    K(f"v_mov_b32 v{t0}, {f2u(cc):#x}"); K(f"v_mov_b32 v{t1}, 1.0"); K(f"s_mov_b32 s{S_K}, {f2u(cc*0.044715):#x}"); K(f"s_mov_b32 s{S_K+1}, {f2u(cc*0.044715):#x}")
    tkh = {}
    for g in range(8):
        a = M_ACC + 8*g; tt = M_AR + 8*(g % 2); o = M_AR + 48 + 4*g
        for e in range(0, 8, 2): K(f"v_pk_mul_f32 {vr(tt+e,2)}, {vr(a+e,2)}, {vr(a+e,2)}")
        for e in range(0, 8, 2): K(f"v_pk_fma_f32 {vr(tt+e,2)}, {vr(tt+e,2)}, {sp(S_K)}, {vr(t0,2)} op_sel_hi:[1,1,0]")
        for e in range(0, 8, 2): K(f"v_pk_mul_f32 {vr(tt+e,2)}, {vr(a+e,2)}, {vr(tt+e,2)}")
        for e in range(8): K(f"v_exp_f32 v{tt+e}, v{tt+e}")
        for e in range(0, 8, 2): K(f"v_pk_add_f32 {vr(tt+e,2)}, {vr(tt+e,2)}, {vr(t0,2)} op_sel:[0,1] op_sel_hi:[1,1]")
        for e in range(8): K(f"v_rcp_f32 v{tt+e}, v{tt+e}")
        for e in range(0, 8, 2): K(f"v_pk_mul_f32 {vr(tt+e,2)}, {vr(a+e,2)}, {vr(tt+e,2)}")
        for e in range(4): K(f"v_cvt_pk_bf16_f32 v{o+e}, v{tt+2*e}, v{tt+2*e+1}")
        if g == gw: arrive(C_G)
        if (g + 1) % sb == 0:
            for x in range(g + 1 - sb, g + 1):
                if x == 4: K(f"s_add_u32 s{S_RS}, s{S_RS}, 4096")
                tkh[x] = K(f"buffer_store_dwordx4 {vr(M_AR + 48 + 4*x,4)}, v{V_L16}, {srd(R_WS)}, s{S_RS} offen offset:{1024*(x%4)} sc1")
    stamp("gelu_v")
    K.wait_vm(tkh[3]); flag(S_FL)
    stamp("gelu")
    K(f"s_cmp_eq_u32 s{S_ACT}, 1")
    K.branch("s_cbranch_scc1 L_p2")
    K("s_waitcnt vmcnt(0)")
    flag(S_FL2)
    K.branch("s_branch L_fin")
    K.label("L_nof")
    K.vm = vm_nof
    K("s_waitcnt lgkmcnt(0)")
    settag()
    for t in range(6):
        if t == 3: K("s_waitcnt vmcnt(0)")
        K("s_barrier")
    if mpf > 1: mall_pf()
    arrive(C_E); arrive(C_G)

    K.label("L_p2")
    tk_h = K.vm
    def g_wo(hf):
        def step(q):
            def f():
                if q == 0:
                    K(f"s_mul_i32 s{TD}, s{S_A}, {112*896}"); K(f"s_lshl_b32 s{TD+1}, s{S_CT}, 7"); K(f"s_add_u32 s{TD}, s{TD}, s{TD+1}")
                    if hf: K(f"s_add_u32 s{TD}, s{TD}, {56*896}")
                    K(f"s_add_u32 m0, s{S_M02}, {U[RUNIT[7+hf]]}")
                if q == 4: K(f"s_add_u32 s{TD}, s{TD}, {32*896}"); K(f"s_add_u32 m0, s{S_M02}, {U[RUNIT[7+hf]] + 4096}")
                x = K(f"buffer_load_dwordx4 v{V_D2+q%4}, {srd(R_WO)}, s{TD} offen offset:{1024*(q%4)} lds")
                if q == 6: tk_r[7+hf] = x
            return f
        return [step(q) for q in range(7)]
    tk = {}
    def rdb(ks, part=3):
        r, ksl = ks // 4, ks % 4
        b = M_BH + 8 * (ks % 8)
        u = RUNIT[r]
        if ksl == 0 and r >= 2 and part & 1: K.wait_vm(tk_r[r])
        for pp in range(2):
            for h in range(2):
                if not part & (1 << pp): continue
                if r < 7:
                    tk[ks] = K(f"ds_read_b64_tr_b16 {vr(b + 4*pp + 2*h, 2)}, v{AB + pp + (2 if u >= 2 else 0)} offset:{(u%2)*32768 + (16*ksl + 8*h)*128}")
                else:
                    hh, sx = (ks % 4) // 2, ks % 2
                    tk[ks] = K(f"ds_read_b64_tr_b16 {vr(b + 4*pp + 2*h, 2)}, v{(22 if (sx == 1 and h == 1) else AB + 2) + pp} offset:{(u%2)*32768 + (28*hh + 16*sx + 8*h)*128}")
    tk_a = {}
    def lda(ks, part=3):
        b = M_AR + 8 * (ks % NA); r = ks // 4
        if part & 1:
            if ks % 4 == 0: K(f"s_add_u32 s{T+7}, s{S_HB3 if r == 3 else S_HB}, {0 if r == 3 else (2*r % 7)*4096}")
            K(f"buffer_load_dwordx4 {vr(b,4)}, v{V_L16}, {srd(R_WS)}, s{T+7} offen offset:{1024*(ks%4)} sc1")
        if part & 2: tk_a[ks] = K(f"buffer_load_dwordx4 {vr(b+4,4)}, v{M_L16B}, {srd(R_WS)}, s{T+7} offen offset:{1024*(ks%4)} sc1")
    B2T = M_AR + 80
    for q in range(4): K(f"ds_read2_b64 {vr(B2T+4*q,4)}, v0 offset0:{4*q} offset1:{4*q+2}")
    def unpack(e):
        for t2_ in range(2):
            K(f"v_lshlrev_b32 v{M_ACC+32*t2_+2*e}, 16, v{B2T+e}")
            K(f"v_and_b32 v{M_ACC+32*t2_+2*e+1}, 0xffff0000, v{B2T+e}")
    await_(C_E, 8)
    g0, g1, g2, g3 = g_w2(0), g_w2(1), g_w2(2), g_w2(3)
    for q in range(8):
        g0[q](); unpack(2*q); unpack(2*q + 1)
    K.wait_vm(tk_h - 1)
    flag(S_FL2)
    K(f"s_setprio 0")
    stamp("h_pub1")
    poll_issue(FL_E)
    run(g1)
    poll_check(FL_E)
    stamp("hE_seen")
    for ks in range(4): lda(ks)
    K.wait_vm(tk_r[0])
    for ks in range(4):
        if ks == 3: K.wait_lg(tk[0])
        rdb(ks); lda(4 + ks)
    K.wait_vm(tk_r[1]); K.wait_lg(tk[3])
    for q in range(8):
        g2[q]()
        if q < 4:
            if q == 3: K.wait_lg(tk[4])
            rdb(4 + q)
    K("s_waitcnt lgkmcnt(0)")
    stamp("p2_prep")
    poll_issue(FL_L)
    for ks in range(8, 12): pend.extend([lambda ks=ks: lda(ks, 1), lambda ks=ks: lda(ks, 2)])
    pend.extend(g3)
    def step(ks, side):
        K.wait_vm(tk_a[ks])
        if ks >= 8: K.wait_lg(tk[ks])
        a = M_AR + 8 * (ks % NA); b = M_BH + 8 * (ks % 8)
        n = 0
        for t2_ in range(2):
            for pp in range(2):
                mfma(M_ACC + 32*t2_ + 16*pp, b + 4*pp, a + 4*t2_)
                side(n); n += 1
    nxt = [12]
    for ks in range(28):
        def side(n):
            if n < 2 and ks + 3 >= 8: rdb(ks + 3, 1 << n)
            drip(2 if len(pend) > 8 else 1)
        step(ks, side)
        if ks == c0:
            poll_check(FL_L)
            stamp("hL_seen")
        if ks == 7:
            await_(C_3, 4)
            pend.extend(g_w2(4))
        while ks >= c0 and nxt[0] <= ks + NA and nxt[0] < 28:
            pend.extend([lambda k=nxt[0]: lda(k, 1), lambda k=nxt[0]: lda(k, 2)]); nxt[0] += 1
        if ks == 11: pend.extend(g_w2(5))
        if ks == 15: pend.extend(g_w2(6))
        if ks == 17:
            await_(C_Q, 4)
            pend.extend(g_wo(0))
        if ks == 19: pend.extend(g_wo(1))
        if ks in (3, 11, 19): stamp(f"p2_k{ks}")
    assert not pend
    K("s_waitcnt lgkmcnt(4)")
    poll_issue(FL_O)
    stamp("p2_h_done")
    K(f"v_and_b32 v{t2}, 31, v{V_LANE}"); K(f"v_lshlrev_b32 v{t2}, 2, v{t2}")
    K(f"s_lshl_b32 s{T+3}, s{S_OB}, 7"); K(f"s_add_u32 s{T+3}, s{T+3}, {WS_G}")
    K(f"s_lshl_b32 s{T+4}, s{S_OB}, 11"); K(f"s_add_u32 s{T+4}, s{T+4}, {WS_O}")
    K(f"v_add_u32 v{M_L16B}, 32768, v{V_L16}")
    K(f"v_add_u32 v{V_D2}, s{S_M02}, v{V_L16}")
    for q in range(1, 4): K(f"v_xor_b32 v{V_D2+q}, {64*q}, v{V_D2}")
    poll_check(FL_O)
    stamp("o_seen")
    K(f"buffer_load_dword v{t4}, v{t2}, {srd(R_WS)}, s{T+3} offen sc1")
    tk_g = K(f"buffer_load_dword v{t5}, v{t2}, {srd(R_WS)}, s{T+3} offen offset:2048 sc1")
    for ks in range(28, 36):
        b = M_AR + 8 * (ks % NA)
        if ks == 32: K(f"s_add_u32 s{T+4}, s{T+4}, 4096")
        K(f"buffer_load_dwordx4 {vr(b,4)}, v{V_L16}, {srd(R_WS)}, s{T+4} offen offset:{1024*(ks%4)} sc1")
        tk_a[ks] = K(f"buffer_load_dwordx4 {vr(b+4,4)}, v{M_L16B}, {srd(R_WS)}, s{T+4} offen offset:{1024*(ks%4)} sc1")
    K.wait_vm(tk_g)
    K(f"v_sub_f32 v{t4}, 1.0, v{t4}"); K(f"v_sub_f32 v{t5}, 1.0, v{t5}")
    K(f"v_cvt_pk_bf16_f32 v{t4}, v{t4}, v{t5}"); K(f"v_and_b32 v{t5}, 0xffff0000, v{t4}"); K(f"v_lshlrev_b32 v{t4}, 16, v{t4}")
    for e in range(0, 64, 2): pscale(M_ACC+e, t4 if e < 32 else t5, True)
    for ks in range(28, 36):
        def side(n):
            if n < 2 and ks + 3 < 36: rdb(ks + 3, 1 << n)
        step(ks, side)
    for t2_ in range(2):
        for b in range(8): K(f"ds_write_b128 v{V_D2 + b%4}, {vr(M_ACC+32*t2_+4*b,4)} offset:{32768*t2_ + 1024*b}")
    stamp("p2_done")

    K.label("L_red")
    K(f"v_and_b32 v{t1}, 7, v{V_LANE}"); K(f"v_lshrrev_b32 v{t3}, 3, v{V_LANE}")
    K(f"s_lshl_b32 s{T+1}, s{S_A}, 3"); K(f"v_add_u32 v{t0}, s{T+1}, v{t3}")
    K(f"v_and_b32 v{t2}, 3, v{V_LANE}"); K(f"v_lshlrev_b32 v{t2}, 2, v{t2}"); K(f"v_xor_b32 v{t0}, v{t0}, v{t2}")
    K(f"v_lshlrev_b32 v{t0}, 4, v{t0}"); K(f"v_lshl_add_u32 v{t0}, v{t1}, 10, v{t0}")
    K(f"s_lshr_b32 s{T+2}, s{S_W}, 2"); K(f"s_lshl_b32 s{T}, s{T+2}, 15"); K(f"v_add_u32 v{t0}, s{T}, v{t0}")
    K(f"v_mul_u32_u24 v{t3}, 896, v{t3}"); K(f"v_lshl_add_u32 v{t3}, v{t1}, 4, v{t3}")
    K(f"s_lshl_b32 s{T}, s{S_ROW}, 2"); K(f"s_add_u32 s{T}, s{T}, s{S_W}"); K(f"s_mul_i32 s{T}, s{T}, {8*896}"); K(f"s_lshl_b32 s{T+1}, s{S_CT}, 7"); K(f"s_add_u32 s{T+5}, s{T}, s{T+1}")
    K("s_waitcnt lgkmcnt(0)")
    K("s_barrier")
    R = 160
    for q in range(4):
        K(f"ds_read_b128 {vr(R+8*q,4)}, v{t0} offset:{8192*q}")
        K(f"ds_read_b128 {vr(R+8*q+4,4)}, v{t0} offset:{8192*q + 512}")
    K("s_waitcnt lgkmcnt(4)")
    for e in range(0, 8, 2): padd(R+e, R+e, R+8+e, True)
    K("s_waitcnt lgkmcnt(0)")
    for e in range(0, 8, 2): padd(R+16+e, R+16+e, R+24+e, True)
    for e in range(0, 8, 2): padd(R+e, R+e, R+16+e, True)
    for e in range(4): K(f"v_cvt_pk_bf16_f32 v{R+e}, v{R+2*e}, v{R+2*e+1}")
    K(f"buffer_store_dwordx4 {vr(R,4)}, v{t3}, {srd(R_OUT)}, s{T+5} offen" + ["", " sc1", " nt", " sc0 sc1"][outm])
    K(f"s_or_b32 s{T}, s2, s{S_W}"); K(f"s_cmp_lg_u32 s{T}, 0")
    K.branch("s_cbranch_scc1 L_fin")
    K(f"s_mov_b32 s{T}, {WS_EPOCH}")
    flag(T)
    K.label("L_fin")
    if stamps:
        K("s_waitcnt vmcnt(0)")
        stamp("end")
        if probe is not None:
            i0 = STAMP_IDS.setdefault('start', len(STAMP_IDS)); i1 = STAMP_IDS.setdefault(probe, len(STAMP_IDS))
            K(f"v_readlane_b32 s{T}, v{V_STAMP}, {i0}"); K(f"v_readlane_b32 s{T+1}, v{V_STAMP}, {i1}")
            K("s_nop 4")
            K(f"s_cmp_eq_u32 s{T+1}, 0"); K(f"s_cselect_b32 s{T+1}, s{T}, s{T+1}")
            if pwg >= 0:
                K(f"s_cmp_lg_u32 s2, {pwg}")
                K.branch("s_cbranch_scc1 L_end")
            K.label("L_probe")
            K("s_sleep 2")
            K(f"s_memrealtime {sp(S_ST)}"); K("s_waitcnt lgkmcnt(0)")
            K(f"s_sub_u32 s{T+2}, s{S_ST}, s{T+1}"); K(f"s_cmp_lt_u32 s{T+2}, {pt}")
            K.branch("s_cbranch_scc1 L_probe")
            K.branch("s_branch L_end")
        K(f"s_lshl_b32 s{T}, s2, 3"); K(f"s_add_u32 s{T}, s{T}, s{S_W}"); K(f"s_lshl_b32 s{T}, s{T}, 8"); K(f"s_add_u32 s{T}, s{T}, {WS_STAMP}")
        K(f"v_lshlrev_b32 v{t0}, 2, v{V_LANE}")
        K(f"buffer_store_dword v{V_STAMP}, v{t0}, {srd(R_WS)}, s{T} offen")
    K.label("L_end")
    K("s_endpgm")
    K.raw(f".fill (28672 + 4096 * {1 if stamps else 0} - (L_end - {NAME})) / 4, 4, 0xbf800000")

    head = f"""; Fused gated mix of hedgehog linear attention and GELU FFN (emitted by a hand-written generator script)
; @launch grid=(256,1,1) block=(512,1,1) lds=163840
.amdgcn_target "amdgcn-amd-amdhsa--gfx950"
.text
.globl {NAME}
.p2align 8
.type {NAME},@function
"""
    tail = f""".section .rodata,"a"
.p2align 6
.amdhsa_kernel {NAME}
  .amdhsa_next_free_vgpr 256
  .amdhsa_next_free_sgpr 102
  .amdhsa_accum_offset 256
  .amdhsa_group_segment_fixed_size 0
  .amdhsa_kernarg_size 104
  .amdhsa_user_sgpr_count 2
  .amdhsa_user_sgpr_kernarg_segment_ptr 1
  .amdhsa_system_sgpr_workgroup_id_x 1
.end_amdhsa_kernel
"""
    return head + K.text() + tail

STAMP_IDS = {}
def parse_opts(argv):
    kw = {}
    for a in argv:
        if a.startswith("-D"):
            k, v = a[2:].split("="); kw[k] = int(v) if v.lstrip("-").isdigit() else v
    return kw
if __name__ == "__main__":
    out = sys.argv[1] if len(sys.argv) > 1 else "k.s"
    open(out, "w").write(gen(**parse_opts(sys.argv)))
```

```python
import sys, struct
from asmlib import Asm

NAME = "gated_mix__linear_kernel_hedgehog__dense_activation_gelu__prompt_kernel"
def f2u(x): return struct.unpack("<I", struct.pack("<f", x))[0]

WS_EPOCH = 0
WS_RPF   = 0x8000
WS_STAMP = 0x10000
WS_G     = 0xA0000
WS_WQ    = 0x100000
WS_KVP   = 0x280000
WS_O     = 0x480000
WS_H     = 0x680000
WS_HF    = 0xE00000
WS_KVF   = 0xE50000
WS_OF    = 0xE70000
WS_SIZE  = 0xF00000

U = [0, 32768, 65536, 98304, 131072]
L_K, L_V, L_Q = 98304, 126976, 65536
L_MISC = 155648
L_PHI, L_CNT, L_B2, L_B1 = L_MISC, L_MISC + 2048, L_MISC + 2560, L_MISC + 3072
L_KVS = U[3]
L_KVF = L_MISC + 4096
RUNIT = [0, 1, 0, 1, 3, 0, 1, 2, 3]
C_E, C_0, C_1, C_2, C_3, C_4, C_Q, C_G, C_B, C_S, C_5 = 0, 4, 8, 12, 16, 20, 24, 28, 32, 36, 40

P_X, P_WQKV, P_PHI, P_WO, P_W1, P_B1, P_W2 = 16, 18, 20, 22, 26, 28, 30
P_B2, P_GATE, P_OUT, P_WS = 32, 34, 36, 40
R_X, R_W1, R_W2, R_WO, R_WS, R_OUT, R_T = 44, 48, 52, 56, 60, 64, 68
S_MT, S_J, S_W, S_A, S_FL2, S_TAG, S_CH, S_CNT = 72, 73, 74, 75, 76, 78, 77, 100
S_CHO = 80
S_M0 = 87
S_XB, S_W1B = 88, 89
S_T = 90
S_UP = 98
S_E = 42
S_H = S_J
S_CT, S_ROW, S_ACT = 43, 3, 101
S_K = 4
S_ST = 6
S_L28 = 24
S_FL = 8
S_HB, S_W2B, S_OB, S_HB3, S_W2B3, S_M02, S_RS = 9, 10, 11, 12, 13, 14, 15
S_PE, S_P3, S_PO = 34, 35, 38
PD = [16, 17, 18, 19, 20, 21, 22, 23, 26, 27, 28, 29, 30, 31, 32, 33]
def srd(r): return f"s[{r}:{r+3}]"
def sp(r): return f"s[{r}:{r+1}]"

V_LANE, V_L16, V_STAMP, V_TAG, V_POLL, V_CNT = 1, 2, 3, 4, 5, 6
V_T = 8
V_D2 = 18
A_PA, A_AX, A_AD, A_L4, A_PH, A_TR, A_G = 7, 14, 22, 24, 25, 30, 31
V_W, V_P, V_ACC, V_PHI, V_X = 32, 64, 96, 128, 144
A_XD, A_WD, A_QD, A_GW = 64, 68, 72, 16
M_L16B, M_AB = 7, 14
M_ACC, M_BH, M_AR = 24, 88, 152
M_AX, M_AW = 136, 140
NA = 13
def vr(a, n): return f"v[{a}:{a+n-1}]"
UPM = sp(S_UP)
L2E = 1.4426950408889634

def gen(stamps=False, spin=20000, rot1=True, codepf=True, slp=2, cyc=False, G=5, prioA=1, prioM=2, kvf=27, fine=False,
        pkq=0, pkk=1, LA=9, LA0=6, c0=2, mpf=60, outm=0, tlb=21, gw=-1, hf0=7, rpb=3, prioG=2, k6=4, qpf=1, sb=1, qd=0, probe=None, pwg=-1, pt=4000, aw2=2, pre=8, cb=22, pkg=2, rpa=0, f2=0, hfirst=1, early=0):
    K = Asm()
    T = S_T
    TD = T + 5
    t0, t1, t2, t3, t4, t5 = range(V_T, V_T + 6)
    def stamp(name):
        if not stamps: return
        if probe is not None and name != probe: return
        K("s_waitcnt lgkmcnt(0)")
        K(f"s_memrealtime {sp(S_ST)}")
        if cyc: K(f"s_memtime s[0:1]")
        K("s_waitcnt lgkmcnt(0)")
        i = STAMP_IDS.setdefault(name, len(STAMP_IDS))
        K(f"v_writelane_b32 v{V_STAMP}, s{S_ST}, {i}")
        if cyc: K(f"v_writelane_b32 v{V_STAMP}, s0, {32 + i}")
    uid = [0]
    def newl(p): uid[0] += 1; return f"L_{p}{uid[0]}"
    def poll_issue(fl):
        for n, (so, im) in enumerate(fl):
            if n == 15: K("s_waitcnt lgkmcnt(14)")
            K(f"s_load_dword s{PD[n]}, {sp(P_WS)}, s{so} offset:{im} glc")
    def poll_check(fl):
        l, d = newl("poll"), newl("polld")
        K(f"s_mov_b32 s{S_CNT}, {spin}")
        K.raw(f"{l}:")
        K("s_waitcnt lgkmcnt(0)")
        for n in range(0, len(fl), 2):
            K(f"s_xor_b64 {sp(PD[n])}, {sp(PD[n])}, {sp(S_TAG)}")
            if n: K(f"s_or_b64 {sp(PD[0])}, {sp(PD[0])}, {sp(PD[n])}")
        K.branch(f"s_cbranch_scc0 {d}")
        K(f"s_sub_u32 s{S_CNT}, s{S_CNT}, 1")
        K(f"s_cbranch_scc1 {d}")
        if slp: K(f"s_sleep {slp}")
        poll_issue(fl)
        K(f"s_branch {l}")
        K.label(d)
    def vpoll_issue(vaddr):
        return K(f"buffer_load_dword v{V_POLL}, v{vaddr}, {srd(R_WS)}, 0 offen sc1")
    def vpoll_check(tok, vaddr):
        l, d = newl("poll"), newl("polld")
        K(f"s_mov_b32 s{S_CNT}, {spin}")
        K.wait_vm(tok)
        K.label(l)
        K(f"v_cmp_ne_u32 vcc, s{S_TAG}, v{V_POLL}")
        K.branch(f"s_cbranch_vccz {d}")
        K(f"s_sub_u32 s{S_CNT}, s{S_CNT}, 1")
        K.branch(f"s_cbranch_scc1 {d}")
        K(f"s_sleep 10")
        K(f"buffer_load_dword v{V_POLL}, v{vaddr}, {srd(R_WS)}, 0 offen sc1"); K.vm -= 1
        K("s_waitcnt vmcnt(0)")
        K.branch(f"s_branch {l}")
        K.label(d)
    def flag(soff_reg):
        K("s_mov_b64 exec, 1")
        K(f"buffer_store_dword v{V_TAG}, v{V_LANE}, {srd(R_WS)}, s{soff_reg} offen sc1")
        K("s_mov_b64 exec, -1")
    def arrive(c):
        K(f"v_mov_b32 v{t5}, 1")
        K("s_mov_b64 exec, 1")
        K(f"ds_add_u32 v{V_CNT}, v{t5} offset:{c}")
        K("s_mov_b64 exec, -1")
    def await_(c, n, sleep=0):
        l, d = newl("aw"), newl("awd")
        K(f"s_mov_b32 s{S_CNT}, {spin * 8}")
        K.label(l)
        K(f"ds_read_b32 v{t5}, v{V_CNT} offset:{c}")
        K("s_waitcnt lgkmcnt(0)")
        K(f"v_cmp_ne_u32 vcc, {n}, v{t5}")
        K.branch(f"s_cbranch_vccz {d}")
        if sleep: K(f"s_sleep {sleep}")
        K(f"s_sub_u32 s{S_CNT}, s{S_CNT}, 1")
        K.branch(f"s_cbranch_scc0 {l}")
        K.label(d)
    def mksrd(r, p, nbytes):
        K(f"s_mov_b32 s{r}, s{p}"); K(f"s_and_b32 s{r+1}, s{p+1}, 0xffff")
        K(f"s_mov_b32 s{r+2}, {nbytes}"); K(f"s_mov_b32 s{r+3}, 0x20000")
    def mfma(d, a, b, c=None):
        cs = vr(d, 16) if c is None else c
        K(f"v_mfma_f32_32x32x16_bf16 {vr(d,16)}, {vr(a,4)}, {vr(b,4)}, {cs}")
    def padd(d, a, b, pk):
        if pk: K(f"v_pk_add_f32 {vr(d,2)}, {vr(a,2)}, {vr(b,2)}")
        else: K(f"v_add_f32 v{d}, v{a}, v{b}"); K(f"v_add_f32 v{d+1}, v{a+1}, v{b+1}")
    def pscale(d, r, pk):
        if pk: K(f"v_pk_mul_f32 {vr(d,2)}, {vr(d,2)}, {vr(r & ~1,2)} " + ("op_sel:[0,1] op_sel_hi:[1,1]" if r & 1 else "op_sel_hi:[1,0]"))
        else: K(f"v_mul_f32 v{d}, v{d}, v{r}"); K(f"v_mul_f32 v{d+1}, v{d+1}, v{r}")
    def settag():
        K(f"s_add_u32 s{S_TAG}, s{S_E}, 0x9E3779B9"); K(f"s_mov_b32 s{S_TAG+1}, s{S_TAG}"); K(f"v_mov_b32 v{V_TAG}, s{S_TAG}")
    def xfrag_addr(dst):
        K(f"v_and_b32 v{t0}, 31, v{V_LANE}"); K(f"v_lshrrev_b32 v{t2}, 5, v{V_LANE}"); K(f"v_bfe_u32 v{t3}, v{V_LANE}, 1, 3")
        K(f"v_xor_b32 v{t3}, v{t2}, v{t3}"); K(f"s_lshl_b32 s{T}, s{S_A}, 12"); K(f"v_lshlrev_b32 v{t0}, 7, v{t0}")
        K(f"v_lshl_add_u32 v{t0}, v{t3}, 4, v{t0}"); K(f"v_add_u32 v{dst}, s{T}, v{t0}")
        for k in range(1, 4): K(f"v_xor_b32 v{dst+k}, {32*k}, v{dst}")
    def lanepart():
        K(f"v_bfe_u32 v{t4}, v{V_LANE}, 4, 1"); K(f"v_lshlrev_b32 v{t4}, 5, v{t4}")
        K(f"v_and_b32 v{t3}, 3, v{V_LANE}"); K(f"v_lshl_add_u32 v{t4}, v{t3}, 3, v{t4}")
        K(f"v_bfe_u32 v{t3}, v{V_LANE}, 2, 2"); K(f"v_lshrrev_b32 v{t2}, 5, v{V_LANE}")
    def p2setup():
        mksrd(R_W2, P_W2, 1792*896)
        K(f"s_and_b32 s{T}, s2, 7"); K(f"s_lshr_b32 s{T+1}, s2, 3")
        K(f"s_mul_i32 s{T+2}, s{T+1}, 37"); K(f"s_lshr_b32 s{T+2}, s{T+2}, 8"); K(f"s_mul_i32 s{T+3}, s{T+2}, 7"); K(f"s_sub_u32 s{S_CT}, s{T+1}, s{T+3}")
        K(f"s_lshl_b32 s{T+2}, s{T+2}, 1"); K(f"s_lshl_b32 s{T+3}, s{T}, 3"); K(f"s_add_u32 s{S_ROW}, s{T+2}, s{T+3}")
        K(f"s_cmp_lt_u32 s{T+1}, 28"); K(f"s_cselect_b32 s{S_ACT}, 1, 0")
        K(f"s_and_b32 s{T+2}, s{S_A}, 1"); K(f"s_mul_i32 s{T+3}, s{S_A}, 7"); K(f"s_add_u32 s{T+4}, s{T+3}, s{T+2}")
        K(f"s_cmp_eq_u32 s{T+2}, 0"); K(f"s_cselect_b32 s{T+2}, 6, 0"); K(f"s_add_u32 s{T+2}, s{T+2}, s{T+3}")
        K(f"s_lshl_b32 s{T}, s{S_CT}, 7")
        K(f"s_mul_i32 s{S_W2B}, s{T+4}, {64*896}"); K(f"s_add_u32 s{S_W2B}, s{S_W2B}, s{T}")
        K(f"s_mul_i32 s{S_W2B3}, s{T+2}, {64*896}"); K(f"s_add_u32 s{S_W2B3}, s{S_W2B3}, s{T}")
        K(f"s_lshl_b32 s{S_M02}, s{S_A}, 13")
        K(f"v_lshrrev_b32 v{t0}, 3, v{V_LANE}"); K(f"v_and_b32 v{t1}, 7, v{V_LANE}")
        K(f"v_bfe_u32 v{t2}, v{V_LANE}, 4, 1"); K(f"v_lshlrev_b32 v{t2}, 2, v{t2}"); K(f"v_xor_b32 v{t1}, v{t1}, v{t2}")
        K(f"v_mul_u32_u24 v{t0}, 896, v{t0}"); K(f"v_lshl_add_u32 v{V_D2}, v{t1}, 4, v{t0}")
        for q in range(1, 4): K(f"v_add_u32 v{V_D2+q}, {q*(8*896-1024)}, v{V_D2}")
        K(f"v_mov_b32 v{V_CNT}, {L_CNT}")
    def shift(regs, d):
        for r in regs:
            if d > 0: K(f"v_add_u32 v{r}, {d}, v{r}")
            elif d < 0: K(f"v_subrev_u32 v{r}, {-d}, v{r}")
    pend = []
    def drip(n):
        for _ in range(n):
            if pend: pend.pop(0)()
    def run(steps):
        for f in steps: f()
    tk_r = {}
    def g_w2(r):
        def step(q):
            def f():
                if q % 4 == 0:
                    K(f"s_add_u32 s{TD}, s{S_W2B3 if r == 3 else S_W2B}, {(0 if r == 3 else (2*r % 7)*64*896) + (q // 4)*32*896}")
                    K(f"s_add_u32 m0, s{S_M02}, {U[RUNIT[r]] + (q // 4)*4096}")
                x = K(f"buffer_load_dwordx4 v{V_D2+q%4}, {srd(R_W2)}, s{TD} offen offset:{1024*(q%4)} lds")
                if q == 7: tk_r[r] = x
            return f
        return [step(q) for q in range(8)]
    SH = [0, 0, 65536, 0, -65536, 0, 65536]

    K.raw(f"{NAME}:")
    K("s_cmp_ge_u32 s2, 256"); K("s_cbranch_scc1 L_end")
    if stamps and early: K(f"s_memrealtime {sp(S_ST)}"); K("s_waitcnt lgkmcnt(0)")
    K("s_load_dwordx16 s[16:31], s[0:1], 0"); K("s_load_dwordx8 s[32:39], s[0:1], 64"); K("s_load_dwordx2 s[40:41], s[0:1], 96")
    if stamps:
        if not early: K(f"s_memrealtime {sp(S_ST)}")
        K(f"v_mov_b32 v{V_STAMP}, 0")
    K(f"v_lshrrev_b32 v{t0}, 6, v0"); K(f"v_and_b32 v{V_LANE}, 63, v0")
    K(f"v_readfirstlane_b32 s{S_W}, v{t0}")
    K(f"v_lshlrev_b32 v{V_L16}, 4, v{V_LANE}")
    K(f"s_and_b32 s{T}, s2, 7"); K(f"s_lshr_b32 s{T+1}, s2, 3")
    if codepf:
        K(f"s_lshr_b32 s{T+2}, s2, 5"); K(f"s_lshl_b32 s{T+2}, s{T+2}, 3"); K(f"s_or_b32 s{T+2}, s{T+2}, s{S_W}"); K(f"s_cmp_lg_u32 s{T+2}, 7")
        K("s_cbranch_scc1 L_nopf")
        K(f"s_getpc_b64 {sp(T+2)}")
        K.raw("L_pc:")
        K(f"s_lshl_b32 s{T+4}, s{T+1}, 7"); K(f"s_sub_u32 s{T+2}, s{T+2}, L_pc - {NAME}"); K(f"s_subb_u32 s{T+3}, s{T+3}, 0")
        K(f"s_add_u32 s{T+2}, s{T+2}, s{T+4}"); K(f"s_addc_u32 s{T+3}, s{T+3}, 0")
        K(f"v_lshlrev_b32 v{t0}, 9, v{V_LANE}")
        K("s_mov_b32 exec_hi, 0xffffff")
        K(f"global_load_dword v{V_POLL}, v{t0}, {sp(T+2)}"); K.vm -= 1
        K("s_mov_b32 exec_hi, -1")
        K.label("L_nopf")
    K(f"s_and_b32 s{T+2}, s{T}, 2"); K(f"s_lshl_b32 s{T+2}, s{T+2}, 1")
    K(f"s_and_b32 s{T+3}, s{T}, 1"); K(f"s_cmp_lt_u32 s{T+1}, 4"); K(f"s_cselect_b32 s{T+4}, 14, 12"); K(f"s_add_u32 s{T+3}, s{T+3}, s{T+4}")
    K(f"s_lshr_b32 s{T+4}, s{T+1}, 3"); K(f"s_lshl_b32 s{S_J}, s{T+4}, 2"); K(f"s_and_b32 s{S_MT}, s{T}, 3"); K(f"s_add_u32 s{S_J}, s{S_J}, s{S_MT}"); K(f"s_sub_u32 s{S_J}, s{S_J}, 4")
    K(f"s_cmp_lt_u32 s{T+1}, 8"); K(f"s_cselect_b32 s{S_J}, s{T+3}, s{S_J}"); K(f"s_cselect_b32 s{T+2}, s{T+2}, 0")
    K(f"s_and_b32 s{T+3}, s{T+1}, 7"); K(f"s_xor_b32 s{T+3}, s{T+3}, s{T+2}")
    K(f"s_and_b32 s{S_MT}, s{T}, 4"); K(f"s_lshl_b32 s{S_MT}, s{S_MT}, 1"); K(f"s_add_u32 s{S_MT}, s{S_MT}, s{T+3}")
    K(f"s_and_b32 s{S_A}, s{S_W}, 3")
    K(f"s_lshl_b32 s{S_W1B}, s{S_J}, 8")
    K(f"s_cmp_lt_u32 s{S_J}, 14")
    K.branch("s_cbranch_scc1 L_norp")
    K(f"s_lshl_b32 s{S_FL}, s{S_MT}, 1"); K(f"s_add_u32 s{S_FL}, s{S_FL}, s{S_J}"); K(f"s_sub_u32 s{S_FL}, s{S_FL}, 14")
    RB = 96
    K(f"s_cmp_eq_u32 s{S_W}, 7")
    K.branch("s_cbranch_scc1 L_rp7")
    K0 = S_XB
    K(f"s_mul_i32 s{K0}, s{S_FL}, 14"); K(f"s_lshl_b32 s{T+5}, s{S_W}, 1"); K(f"s_add_u32 s{K0}, s{K0}, s{T+5}")
    K(f"v_lshrrev_b32 v{t0}, 3, v{V_LANE}"); K(f"v_bfe_u32 v{t1}, v{V_LANE}, 2, 1"); K(f"v_and_b32 v{t2}, 3, v{V_LANE}")
    K(f"v_mul_u32_u24 v{t3}, 56, v{t0}"); K(f"v_mul_u32_u24 v{t4}, 2688, v{t1}"); K(f"v_add_u32 v{t3}, v{t3}, v{t4}")
    K(f"v_lshl_add_u32 v{t3}, v{t2}, 4, v{t3}")
    K(f"s_mul_i32 s{T+5}, s{K0}, 2688"); K(f"v_lshlrev_b32 v{t4}, 1, v{t1}"); K(f"s_lshl_b32 s{T+6}, s{K0}, 1")
    K("s_waitcnt lgkmcnt(0)")
    mksrd(R_T, P_WQKV, 448*2688)
    tkl = {}
    for q in (2, 3, 4, 5): tkl[q] = K(f"buffer_load_dwordx4 {vr(RB+4*q,4)}, v{t3}, {srd(R_T)}, s{T+5} offen offset:{448*q}")
    mksrd(R_X, P_GATE, 896)
    K(f"buffer_load_ushort v{RB+24}, v{t4}, {srd(R_X)}, s{T+6} offen")
    for q in (0, 1): tkl[q] = K(f"buffer_load_dwordx4 {vr(RB+4*q,4)}, v{t3}, {srd(R_T)}, s{T+5} offen offset:{448*q}")
    mksrd(R_WS, P_WS, WS_SIZE)
    K(f"s_mov_b32 s{T+6}, 86016"); K(f"v_mul_lo_u32 v{RB+25}, v{t0}, s{T+6}"); K(f"v_and_b32 v{t1}, 7, v{V_LANE}")
    K(f"v_lshl_add_u32 v{RB+25}, v{t1}, 4, v{RB+25}")
    K(f"v_cmp_eq_u32 vcc, 3, v{t2}")
    K(f"s_lshl_b32 s{T+5}, s{K0}, 6"); K(f"s_add_u32 s{T+5}, s{T+5}, {WS_WQ}")
    for q in (2, 3, 4, 5, 0, 1):
        p, hg = q // 2, q % 2; b = RB + 4*q
        K.wait_vm(tkl[q])
        K(f"v_cndmask_b32 v{b+2}, v{b+2}, v{RB+24}, vcc" if p == 0 else f"v_cndmask_b32 v{b+2}, v{b+2}, 0, vcc")
        K(f"v_cndmask_b32 v{b+3}, v{b+3}, 0, vcc")
        K(f"s_add_u32 s{T+6}, s{T+5}, {p*28672 + hg*8*86016}")
        K(f"buffer_store_dwordx4 {vr(b,4)}, v{RB+25}, {srd(R_WS)}, s{T+6} offen sc1")
    if rpa:
        K(f"s_cmp_lt_u32 s{S_W}, 4")
        K.branch("s_cbranch_scc1 L_norp")
    K("s_waitcnt vmcnt(0)")
    K("s_barrier")
    K.branch("s_branch L_norp")
    K.label("L_rp7")
    for e in range(4): K(f"v_mov_b32 v{RB+e}, 0")
    K(f"s_lshl_b32 s{T+5}, s{S_FL}, 12"); K(f"s_add_u32 s{T+5}, s{T+5}, {WS_KVP}")
    K(f"s_lshl_b32 s{S_FL}, s{S_FL}, 7"); K(f"s_add_u32 s{S_FL}, s{S_FL}, {WS_RPF}")
    K("s_waitcnt lgkmcnt(0)")
    K(f"s_load_dword s{S_E}, {sp(P_WS)}, {WS_EPOCH}")
    mksrd(R_WS, P_WS, WS_SIZE)
    for q in range(4): K(f"buffer_store_dwordx4 {vr(RB,4)}, v{V_L16}, {srd(R_WS)}, s{T+5} offen offset:{1024*q} sc1")
    K("s_waitcnt vmcnt(0) lgkmcnt(0)")
    settag()
    K("s_barrier")
    flag(S_FL)
    if stamps: K(f"s_mov_b32 s{S_CNT}, s{S_ST}"); stamp("rp_pub"); K(f"s_mov_b32 s{S_ST}, s{S_CNT}")
    K.label("L_norp")
    K(f"s_cmp_ge_u32 s{S_W}, 4")
    K.branch("s_cbranch_scc1 L_M")

    if prioA: K(f"s_setprio {prioA}")
    K(f"s_lshl_b32 s{T+4}, s{T+4}, 1"); K(f"s_add_u32 s{T+2}, s{T+3}, s{T+4}")
    K(f"s_cmp_ge_u32 s{T+2}, 7"); K(f"s_cselect_b32 s{T+3}, 7, 0"); K(f"s_sub_u32 s{S_CH}, s{T+2}, s{T+3}")
    if not rot1: K(f"s_mov_b32 s{S_CH}, 0")
    def rotstep(t):
        K(f"s_lshl_b32 s{S_CHO+t}, s{S_CH}, 12")
        if t < 6: K(f"s_add_u32 s{S_CH}, s{S_CH}, 1"); K(f"s_cmp_eq_u32 s{S_CH}, 7"); K(f"s_cselect_b32 s{S_CH}, 0, s{S_CH}")
    rotstep(0); rotstep(1)
    K(f"s_lshl_b32 s{S_M0}, s{S_A}, 12")
    K(f"s_mul_i32 s{S_XB}, s{S_MT}, {128*896}")
    K(f"v_lshrrev_b32 v{t0}, 3, v{V_LANE}"); K(f"v_and_b32 v{t1}, 7, v{V_LANE}"); K(f"v_lshrrev_b32 v{t2}, 1, v{t0}"); K(f"v_xor_b32 v{t2}, v{t1}, v{t2}")
    K(f"s_lshl_b32 s{T+2}, s{S_A}, 5"); K(f"v_add_u32 v{t3}, s{T+2}, v{t0}"); K(f"v_mul_u32_u24 v{t3}, 896, v{t3}")
    K(f"v_lshl_add_u32 v{A_XD}, v{t2}, 4, v{t3}"); K(f"v_xor_b32 v{t2}, 4, v{t2}"); K(f"v_lshl_add_u32 v{A_XD+1}, v{t2}, 4, v{t3}")
    K(f"v_add_u32 v{A_XD+1}, {8*896-1024}, v{A_XD+1}")
    K(f"v_add_u32 v{A_XD+2}, {16*896-2048}, v{A_XD}"); K(f"v_add_u32 v{A_XD+3}, {16*896-2048}, v{A_XD+1}")
    K(f"v_lshrrev_b32 v{t0}, 4, v{V_LANE}"); K(f"v_and_b32 v{t1}, 15, v{V_LANE}"); K(f"v_lshlrev_b32 v{t2}, 2, v{t0}"); K(f"v_xor_b32 v{t2}, v{t1}, v{t2}")
    K(f"s_lshl_b32 s{T+2}, s{S_A}, 4"); K(f"v_add_u32 v{t3}, s{T+2}, v{t0}"); K(f"v_mul_u32_u24 v{t3}, 3584, v{t3}")
    K(f"v_lshl_add_u32 v{A_WD}, v{t2}, 4, v{t3}")
    for q in range(1, 4): K(f"v_add_u32 v{A_WD+q}, {q*(4*3584-1024)}, v{A_WD}")
    K("s_waitcnt lgkmcnt(0)")
    if stamps: K(f"v_writelane_b32 v{V_STAMP}, s{S_ST}, {STAMP_IDS.setdefault('start', len(STAMP_IDS))}")
    mksrd(R_X, P_X, 2048*896); mksrd(R_W1, P_W1, 448*3584)
    K(f"s_cmp_lt_u32 s{S_J}, 14"); K(f"s_cselect_b32 s{R_W1+2}, s{R_W1+2}, 0")
    tk_stage = {}
    def g_stage(t):
        u = U[t % 4]
        def step(q):
            def f():
                if q == 0: K(f"s_lshr_b32 s{TD}, s{S_CHO+t}, 5"); K(f"s_add_u32 s{TD}, s{TD}, s{S_XB}"); K(f"s_add_u32 m0, s{S_M0}, {u}")
                if q == 4: K(f"s_mul_i32 s{TD}, s{S_CHO+t}, 56"); K(f"s_add_u32 s{TD}, s{TD}, s{S_W1B}"); K(f"s_add_u32 m0, s{S_M0}, {u + 16384}")
                if q < 4: K(f"buffer_load_dwordx4 v{A_XD+q}, {srd(R_X)}, s{TD} offen offset:{1024*q} lds")
                else: x = K(f"buffer_load_dwordx4 v{A_WD+q-4}, {srd(R_W1)}, s{TD} offen offset:{1024*(q-4)} lds")
                if q == 7: tk_stage[t] = x
            return f
        return [step(q) for q in range(8)]
    ilist = []
    for t in range(7): ilist += [(f, t - 2 if t >= 4 else -1) for f in g_stage(t)]
    pos = [0]
    def issue_to(n, lastbar):
        while pos[0] < min(n, len(ilist)) and ilist[pos[0]][1] <= lastbar:
            ilist[pos[0]][0](); pos[0] += 1
    if fine: stamp("A_karg")
    vm0 = K.vm
    issue_to(8, -1)
    issue_to(8 + LA0, -1)
    if fine: stamp("A_i1")
    K(f"s_load_dword s{S_E}, {sp(P_WS)}, {WS_EPOCH}")
    for t in range(2, 7): rotstep(t)
    mksrd(R_WS, P_WS, WS_SIZE); mksrd(R_OUT, P_OUT, 2048*896)
    p2setup()
    K(f"s_mov_b32 s{S_UP}, 0"); K(f"s_mov_b32 s{S_UP+1}, -1")
    K(f"s_mov_b32 s{S_L28}, 0x10000000"); K(f"s_mov_b32 s{S_L28+1}, 0x10000000")
    xfrag_addr(A_AX)
    lanepart()
    K(f"v_lshl_add_u32 v{t0}, v{t2}, 3, v{t3}"); K(f"v_lshl_add_u32 v{A_TR}, v{t0}, 6, v{t4}")
    K(f"v_lshl_add_u32 v{t0}, v{t2}, 2, v{t3}"); K(f"v_mul_u32_u24 v{t1}, 56, v{t0}"); K(f"v_add_u32 v{t1}, v{t1}, v{t4}"); K(f"v_add_u32 v{A_PH}, {L_PHI}, v{t1}")
    K(f"v_lshlrev_b32 v{A_L4}, 2, v{V_LANE}")
    K(f"s_lshl_b32 s{T}, s{S_A}, 10"); K(f"s_add_u32 s{T}, s{T}, {WS_RPF}"); K(f"v_and_b32 v{A_PA}, 7, v{V_LANE}"); K(f"v_lshl_add_u32 v{A_PA}, v{A_PA}, 7, s{T}")
    K(f"s_mul_i32 s{S_RS}, s{S_J}, {3*28672}"); K(f"s_mul_i32 s{S_P3}, s{S_A}, 7168"); K(f"s_add_u32 s{S_RS}, s{S_RS}, s{S_P3}"); K(f"s_add_u32 s{S_RS}, s{S_RS}, {WS_WQ}")
    K("s_waitcnt lgkmcnt(0)")
    settag()
    if rpa:
        K(f"s_cmp_lt_u32 s{S_J}, 14")
        K.branch("s_cbranch_scc1 L_norb")
        K.wait_vm(vm0)
        K("s_barrier")
        K.label("L_norb")
    if fine: stamp("A_setup")
    tkx = {}
    def g_panel(p, lds):
        def step(q):
            def f():
                if q % 4 == 0: K(f"s_add_u32 s{TD}, s{S_RS}, {28672*p + (q // 4)*4096}"); K(f"s_add_u32 m0, s{S_P3}, {lds + (q // 4)*4096}")
                tkx[p] = K(f"buffer_load_dwordx4 v{V_L16}, {srd(R_WS)}, s{TD} offen offset:{1024*(q%4)} sc1 lds")
            return f
        return [step(q) for q in range(7)]
    for t in range(7):
        issue_to(8*(t+1) + (LA0 if t == 0 else LA), t - 1)
        shift(range(A_AX, A_AX + 4), SH[t])
        if t == 5:
            assert pos[0] == len(ilist)
            tkp = vpoll_issue(A_PA)
        if fine: stamp(f"A{t}a")
        K.wait_vm(tk_stage[t])
        if fine: stamp(f"A{t}b")
        if t < 6:
            if t >= 2: K("s_waitcnt lgkmcnt(4)")
            K("s_barrier")
        else: arrive(C_S)
        if t in (0, 4, 6): stamp(f"A_b{t}")
        for ksl in range(4): K(f"ds_read_b128 {vr(V_X + 16*t + 4*ksl, 4)}, v{A_AX+ksl} offset:{(t % 2) * 32768}")
    arrive(C_E)
    vpoll_check(tkp, A_PA)
    stamp("rp_seen")
    run(g_panel(1, L_K) + g_panel(2, L_V))
    stamp("kv_issued")
    K(f"s_mov_b32 s{S_K}, {f2u(L2E):#x}"); K(f"s_mov_b32 s{S_K+1}, {f2u(L2E):#x}")
    VPH, VB = V_W + 24, V_W + 16
    for s in range(2):
        for r in range(2): K(f"ds_read_b64_tr_b16 {vr(VPH + 4*s + 2*r, 2)}, v{A_PH} offset:{(16*s + 8*r)*56}")
    K(f"s_lshl_b32 s{T}, s{S_A}, 11"); K(f"s_lshl_b32 s{T+1}, s{S_H}, 13"); K(f"s_add_u32 s{S_HB}, s{T+1}, s{T}"); K(f"s_add_u32 s{S_PE}, s{S_HB}, {WS_KVF}"); K(f"s_add_u32 s{S_HB}, s{S_HB}, {WS_KVP}")
    K(f"s_lshl_b32 s{T+3}, s{S_MT}, 7"); K(f"s_add_u32 s{S_FL}, s{S_PE}, s{T+3}")
    FL_K = [(S_PE, 128*u) for u in range(16)]
    K(f"s_lshl_b32 s{T}, s{S_MT}, 2"); K(f"s_add_u32 s{T}, s{T}, s{S_A}"); K(f"s_lshl_b32 s{T}, s{T}, 4"); K(f"s_add_u32 s{T}, s{T}, s{S_H}")
    K(f"s_lshl_b32 s{S_OB}, s{T}, 11"); K(f"s_add_u32 s{S_OB}, s{S_OB}, {WS_O}")
    K(f"s_lshl_b32 s{T+2}, s{T}, 7"); K(f"s_add_u32 s{S_FL2}, s{T+2}, {WS_OF}"); K(f"s_add_u32 s{S_XB}, s{T+2}, {WS_G - 128}")
    IDR = [26, 27, 28, 29, V_PHI, V_PHI+1, V_PHI+2, V_PHI+3]
    K(f"v_and_b32 v{t0}, 31, v{V_LANE}"); K(f"v_lshrrev_b32 v{t1}, 5, v{V_LANE}"); K(f"v_lshlrev_b32 v{t1}, 2, v{t1}")
    K(f"v_sub_u32 v{t0}, v{t0}, v{t1}")
    K(f"v_and_b32 v{t1}, 1, v{V_LANE}"); K(f"v_lshlrev_b32 v{t1}, 4, v{t1}"); K(f"v_mov_b32 v{t2}, 0x3f80"); K(f"v_lshlrev_b32 v{t1}, v{t1}, v{t2}")
    K(f"v_and_b32 v{t0}, -2, v{t0}")
    for s in range(2):
        for q in range(4): K(f"v_cmp_eq_u32 {sp(T+2*q)}, {16*s + 8*(q // 2) + 2*(q % 2)}, v{t0}")
        for q in range(4): K(f"v_cndmask_b32 v{IDR[4*s+q]}, 0, v{t1}, {sp(T+2*q)}")
    if aw2: K(f"s_cmp_eq_u32 s{S_ACT}, 1"); K(f"s_cselect_b32 s{R_W2+2}, s{R_W2+2}, 0")
    if aw2 == 1:
        await_(C_E, 8, 1)
        run(g_w2(0))
        K.wait_vm(tkx[2]); arrive(C_0)
        run(g_w2(1))
        if qd < 0: run(g_panel(0, L_Q))
    else: K.wait_vm(tkx[2]); arrive(C_0)
    stamp("kv_landed0")
    if aw2 == 1: K.wait_vm(tk_r[1]); arrive(C_B)
    await_(C_0, 4, 1)
    K(f"v_cndmask_b32 v{VPH+6}, v{VPH+6}, 0, {UPM}"); K(f"v_cndmask_b32 v{VPH+7}, v{VPH+7}, 0, {UPM}")
    await_(C_G if gw >= 0 else C_E, 4 if gw >= 0 else 8, 1)
    stamp("kv_start")

    def gemm_qkv(panels, hook=None):
        nb = len(panels) * 4
        D = 3 if len(panels) == 2 else 6
        tk = {}
        for n, (off, acc, sw) in enumerate(panels): K(f"v_add_u32 v{A_AX+n}, {off}, v{A_TR}")
        def rd(ks, n):
            t, ksl = ks // 4, ks % 4
            b = V_W + nb * (ks % D)
            if ksl == 0: K(f"v_add_u32 v{A_AD + n}, s{S_CHO+t}, v{A_AX+n}")
            for r in range(2):
                tk[ks] = K(f"ds_read_b64_tr_b16 {vr(b + 4*n + 2*r, 2)}, v{A_AD + n} offset:{(16*ksl + 4*r)*64}")
        for k in range(D):
            for n in range(len(panels)): rd(k, n)
        for ks in range(28):
            K.wait_lg(tk[ks])
            b = V_W + nb * (ks % D)
            for n, (off, acc, sw) in enumerate(panels):
                wv, xv = b + 4*n, V_X + 4*ks
                if sw: mfma(acc, xv, wv, "0" if ks == 0 else None)
                else: mfma(acc, wv, xv, "0" if ks == 0 else None)
                if ks + D < 28: rd(ks + D, n)
            if hook: hook(ks)
    QP = V_W
    P = V_ACC
    def featmap():
        for e in range(8): K(f"v_cvt_pk_bf16_f32 v{QP+e}, v{V_ACC+2*e}, v{V_ACC+2*e+1}")
        mfma(P, VPH, QP, "0"); mfma(P, VPH + 4, QP + 4)
    def softmax(pk):
        for e in range(4): K(f"v_cndmask_b32 v{P+12+e}, v{P+12+e}, v{P}, {UPM}")
        mx, mn = t0, t2
        K(f"v_max3_f32 v{mx}, v{P}, v{P+1}, v{P+2}"); K(f"v_min3_f32 v{mn}, v{P}, v{P+1}, v{P+2}")
        K(f"v_max3_f32 v{t1}, v{P+3}, v{P+4}, v{P+5}"); K(f"v_min3_f32 v{t3}, v{P+3}, v{P+4}, v{P+5}")
        for e in range(6, 14, 4):
            K(f"v_max3_f32 v{mx}, v{mx}, v{P+e}, v{P+e+1}"); K(f"v_min3_f32 v{mn}, v{mn}, v{P+e}, v{P+e+1}")
            K(f"v_max3_f32 v{t1}, v{t1}, v{P+e+2}, v{P+e+3}"); K(f"v_min3_f32 v{t3}, v{t3}, v{P+e+2}, v{P+e+3}")
        K(f"v_max3_f32 v{mx}, v{mx}, v{P+14}, v{P+15}"); K(f"v_min3_f32 v{mn}, v{mn}, v{P+14}, v{P+15}")
        K(f"v_max_f32 v{mx}, v{mx}, v{t1}"); K(f"v_min_f32 v{mn}, v{mn}, v{t3}")
        K(f"v_mov_b32 v{t1}, v{mx}"); K(f"v_mov_b32 v{t3}, v{mn}")
        K(f"v_permlane32_swap_b32 v{mx}, v{t1}"); K(f"v_permlane32_swap_b32 v{mn}, v{t3}")
        K(f"v_max_f32 v{mx}, v{mx}, v{t1}"); K(f"v_min_f32 v{mn}, v{mn}, v{t3}")
        K(f"v_mul_f32 v{mx}, s{S_K}, v{mx}"); K(f"v_mul_f32 v{mn}, s{S_K}, v{mn}")
        EP, EN = V_P, V_P + 16
        for e in range(0, 16, 2):
            if pk:
                K(f"v_pk_fma_f32 {vr(EP+e,2)}, {vr(P+e,2)}, {sp(S_K)}, {vr(mx,2)} op_sel_hi:[1,1,0] neg_lo:[0,0,1] neg_hi:[0,0,1]")
                K(f"v_pk_fma_f32 {vr(EN+e,2)}, {vr(P+e,2)}, {sp(S_K)}, {vr(mn,2)} op_sel_hi:[1,1,0] neg_lo:[1,0,0] neg_hi:[1,0,0]")
            else:
                for x in (e, e + 1):
                    K(f"v_fma_f32 v{EP+x}, v{P+x}, s{S_K}, -v{mx}"); K(f"v_fma_f32 v{EN+x}, -v{P+x}, s{S_K}, v{mn}")
        for e in range(16):
            K(f"v_exp_f32 v{EP+e}, v{EP+e}"); K(f"v_exp_f32 v{EN+e}, v{EN+e}")
        S = V_W
        for n, E in enumerate((EP, EN)):
            padd(S+4*n, E, E+2, pk); padd(S+4*n+2, E+12, E+14, pk)
        for n, E in enumerate((EP, EN)):
            padd(S+4*n, S+4*n, E+4, pk)
            K(f"v_cndmask_b32 v{S+4*n+2}, v{S+4*n+2}, 0, {UPM}"); K(f"v_cndmask_b32 v{S+4*n+3}, v{S+4*n+3}, 0, {UPM}")
        for n, E in enumerate((EP, EN)):
            padd(S+4*n, S+4*n, E+6, pk); padd(S+4*n+2, S+4*n+2, E+8, pk)
        for n, E in enumerate((EP, EN)): padd(S+4*n, S+4*n, E+10, pk)
        for n in range(2): padd(S+4*n, S+4*n, S+4*n+2, pk)
        K(f"v_add_f32 v{t0}, v{S}, v{S+1}"); K(f"v_add_f32 v{t2}, v{S+4}, v{S+5}")
        K(f"v_mov_b32 v{t1}, v{t0}"); K(f"v_mov_b32 v{t3}, v{t2}")
        K(f"v_permlane32_swap_b32 v{t0}, v{t1}"); K(f"v_permlane32_swap_b32 v{t2}, v{t3}")
        K(f"v_add_f32 v{t0}, v{t0}, v{t1}"); K(f"v_add_f32 v{t2}, v{t2}, v{t3}")
        K(f"v_rcp_f32 v{t0}, v{t0}"); K(f"v_rcp_f32 v{t2}, v{t2}")
        K(f"v_cndmask_b32 v{t1}, v{t0}, 0, {UPM}"); K(f"v_cndmask_b32 v{t3}, v{t2}, 0, {UPM}")
        for e in range(0, 16, 2):
            pscale(EP+e, t0 if e < 12 else t1, pk); pscale(EN+e, t2 if e < 12 else t3, pk)
        for e in range(8):
            K(f"v_cvt_pk_bf16_f32 v{V_PHI+e}, v{EP+2*e}, v{EP+2*e+1}"); K(f"v_cvt_pk_bf16_f32 v{V_PHI+8+e}, v{EN+2*e}, v{EN+2*e+1}")

    if aw2 == 2: pend.extend(g_w2(0) + g_w2(1))
    if qd >= 0: pend.extend(g_panel(0, L_Q))
    def hook(ks):
        if aw2 == 2:
            drip(1)
            if ks == cb: K.wait_vm(tk_r[1]); arrive(C_B)
        elif ks >= qd and (ks - qd) % 3 == 0: drip(1)
        if ks == 25: arrive(C_1)
    gemm_qkv([(L_K, V_ACC, False), (L_V, V_ACC + 16, True)], hook)
    featmap()
    assert not pend
    for e in range(4): K(f"v_mov_b32 v{V_W+8+e}, v{V_PHI+e}")
    IDR[4] = V_W + 8
    stamp("kv_gemm")
    K(f"v_mov_b32 v{t4}, 0x3f803f80")
    for e in range(8): K(f"v_cvt_pk_bf16_f32 v{VB+e}, v{V_ACC+16+2*e}, v{V_ACC+16+2*e+1}")
    for e in range(8): K(f"v_cndmask_b32 v{VB+e}, v{VB+e}, v{t4}, {sp(S_L28)}")
    softmax(pkk)
    stamp("sm_k")
    TP, TN = V_P, V_P + 16
    mfma(TP, V_PHI, IDR[0], "0"); mfma(TP, V_PHI + 4, IDR[4])
    mfma(TN, V_PHI + 8, IDR[0], "0"); mfma(TN, V_PHI + 12, IDR[4])
    await_(C_1, 4)
    if f2: stamp("kv_a")
    K(f"s_lshl_b32 s{T}, s{S_A}, 13"); K(f"s_add_u32 s{T}, s{T}, {L_KVS}"); K(f"v_add_u32 v{t0}, s{T}, v{V_L16}")
    K(f"s_lshl_b32 s{T}, s{S_A}, 11"); K(f"s_add_u32 s{T}, s{T}, {L_KVS}"); K(f"v_add_u32 v{t1}, s{T}, v{V_L16}")
    for e in range(8): K(f"v_cvt_pk_bf16_f32 v{V_PHI+e}, v{TP+2*e}, v{TP+2*e+1}")
    mfma(V_ACC, V_PHI, VB, "0"); mfma(V_ACC, V_PHI + 4, VB + 4)
    for e in range(8): K(f"v_cvt_pk_bf16_f32 v{V_PHI+8+e}, v{TN+2*e}, v{TN+2*e+1}")
    mfma(V_ACC + 16, V_PHI + 8, VB, "0"); mfma(V_ACC + 16, V_PHI + 12, VB + 4)
    for b in range(8): K(f"ds_write_b128 v{t0}, {vr(V_ACC+4*b,4)} offset:{1024*b}")
    arrive(C_2)
    if f2: stamp("kv_b")
    await_(C_2, 4)
    if f2: stamp("kv_c")
    for hb in range(2):
        for g in range(4): K(f"ds_read_b128 {vr(V_P+16*hb+4*g,4)}, v{t1} offset:{8192*g + 1024*hb}")
    arrive(C_3)
    if f2: stamp("kv_d")
    for hb in range(2):
        K(f"s_waitcnt lgkmcnt({5 - 4*hb})")
        B = V_P + 16*hb
        for e in (0, 2): padd(B+e, B+e, B+4+e, pkq); padd(B+8+e, B+8+e, B+12+e, pkq)
        for e in (0, 2): padd(B+e, B+e, B+8+e, pkq)
        for e in range(4): K(f"buffer_atomic_add_f32 v{B+e}, v{A_L4}, {srd(R_WS)}, s{S_HB} offen offset:{1024*hb + 256*e}")
    stamp("kv_st")
    K.wait_vm(tkx[0]); arrive(C_5); await_(C_5, 4)
    def hook(ks):
        if ks == 22: arrive(C_Q)
        if ks == kvf:
            K("s_waitcnt vmcnt(0)")
            flag(S_FL)
            stamp("kv_pub")
    gemm_qkv([(L_Q, V_ACC, False)], hook)
    K(f"v_cvt_pk_bf16_f32 v{t0}, v{V_ACC+12}, v{V_ACC+12}")
    featmap()
    K(f"v_lshlrev_b32 v{t0}, 16, v{t0}")
    K(f"v_mul_f32 v{t0}, s{S_K}, v{t0}"); K(f"v_exp_f32 v{t0}, -v{t0}"); K(f"v_add_f32 v{t0}, 1.0, v{t0}"); K(f"v_rcp_f32 v{t0}, v{t0}")
    K(f"v_cvt_pk_bf16_f32 v{t0}, v{t0}, v{t0}"); K(f"v_lshlrev_b32 v{A_G}, 16, v{t0}")
    K("s_mov_b32 exec_lo, 0")
    K(f"buffer_store_dword v{A_G}, v{A_L4}, {srd(R_WS)}, s{S_XB} offen sc1")
    K("s_mov_b32 exec_lo, -1")
    stamp("q_gemm")
    softmax(pkq)
    stamp("sm_q")
    poll_issue(FL_K)
    poll_check(FL_K)
    stamp("kv_seen")
    for e in range(8): K(f"buffer_load_dword v{V_P+e}, v{A_L4}, {srd(R_WS)}, s{S_HB} offen offset:{256*e} sc1")
    F = V_W
    K(f"s_lshl_b32 s{T}, s{S_A}, 10"); K(f"v_add_u32 v{t1}, {L_KVF}, v{V_L16}"); K(f"v_add_u32 v{t0}, s{T}, v{t1}")
    K("s_waitcnt vmcnt(0)")
    stamp("kv_landed")
    for e in range(4): K(f"v_cvt_pk_bf16_f32 v{F+e}, v{V_P+2*e}, v{V_P+2*e+1}")
    K(f"ds_write_b128 v{t0}, {vr(F,4)}")
    arrive(C_4)
    await_(C_4, 4)
    if f2: stamp("o_a")
    for f in range(4): K(f"ds_read_b128 {vr(F+4*f,4)}, v{t1} offset:{1024*f}")
    N = V_ACC
    for f in range(4):
        K(f"s_waitcnt lgkmcnt({3-f})")
        mfma(N, F + 4*f, V_PHI + 4*f, "0" if f == 0 else None)
    K(f"v_cvt_pk_bf16_f32 v{t0}, v{N+12}, v{N+12}")
    for e in range(8): K(f"v_cvt_pk_bf16_f32 v{F+e}, v{N+2*e}, v{N+2*e+1}")
    K(f"v_lshlrev_b32 v{t0}, 16, v{t0}")
    K(f"v_add_f32 v{t0}, {f2u(1e-6):#x}, v{t0}")
    K(f"v_cvt_pk_bf16_f32 v{t0}, v{t0}, v{t0}"); K(f"v_lshlrev_b32 v{t0}, 16, v{t0}")
    K(f"v_rcp_f32 v{t0}, v{t0}")
    for e in range(4):
        K(f"v_lshlrev_b32 v{N+2*e}, 16, v{F+e}"); K(f"v_and_b32 v{N+2*e+1}, 0xffff0000, v{F+e}")
    K(f"v_mul_f32 v{t0}, v{t0}, v{A_G}"); K(f"v_mov_b32 v{t1}, v{t0}")
    for e in range(4, 8):
        K(f"v_lshlrev_b32 v{N+2*e}, 16, v{F+e}"); K(f"v_and_b32 v{N+2*e+1}, 0xffff0000, v{F+e}")
    K(f"v_permlane32_swap_b32 v{t1}, v{t0}")
    for e in range(0, 16, 2): pscale(N+e, t0, pkq)
    for e in range(8): K(f"v_cvt_pk_bf16_f32 v{F+e}, v{N+2*e}, v{N+2*e+1}")
    K(f"v_cndmask_b32 v{F+6}, v{F+6}, 0, {UPM}"); K(f"v_cndmask_b32 v{F+7}, v{F+7}, 0, {UPM}")
    K(f"buffer_store_dwordx4 {vr(F,4)}, v{V_L16}, {srd(R_WS)}, s{S_OB} offen sc1")
    K(f"buffer_store_dwordx4 {vr(F+4,4)}, v{V_L16}, {srd(R_WS)}, s{S_OB} offen offset:1024 sc1")
    if f2: stamp("o_b")
    K("s_waitcnt vmcnt(0)")
    flag(S_FL2)
    stamp("o_pub")
    K(f"s_cmp_eq_u32 s{S_ACT}, 0")
    K.branch("s_cbranch_scc1 L_fin")
    K.branch("s_branch L_red")

    K.label("L_M")
    if prioM: K(f"s_setprio {prioM}")
    K("s_waitcnt lgkmcnt(0)")
    if stamps: K(f"v_writelane_b32 v{V_STAMP}, s{S_ST}, {STAMP_IDS.setdefault('start', len(STAMP_IDS))}")
    K(f"s_load_dword s{S_E}, {sp(P_WS)}, {WS_EPOCH}")
    mksrd(R_T, P_B1, 3584)
    K(f"s_lshl_b32 s{T+1}, s{S_A}, 8"); K(f"s_add_u32 m0, s{T+1}, {L_B1}")
    K("s_mov_b64 exec, 0xffff")
    tk_b1 = K(f"buffer_load_dwordx4 v{V_L16}, {srd(R_T)}, s{S_W1B} offen lds")
    K("s_mov_b64 exec, -1")
    mksrd(R_T, P_PHI, 16*1568)
    K(f"s_mul_i32 s{T}, s{S_J}, 1568"); K(f"s_mul_i32 s{T+1}, s{S_A}, 400"); K(f"s_add_u32 s{T}, s{T}, s{T+1}"); K(f"s_add_u32 m0, s{T+1}, {L_PHI}")
    K("s_mov_b64 exec, 0x1ffffff")
    K(f"buffer_load_dwordx4 v{V_L16}, {srd(R_T)}, s{T} offen lds")
    K("s_mov_b64 exec, -1")
    K(f"v_mov_b32 v{V_CNT}, {L_CNT}")
    K(f"v_mov_b32 v{t0}, 0"); K(f"v_lshl_add_u32 v{t1}, v{V_LANE}, 2, v{V_CNT}"); K(f"ds_write_b32 v{t1}, v{t0}")
    K(f"s_cmp_lt_u32 s{S_J}, 14")
    K.branch("s_cbranch_scc1 L_mset")
    K("s_waitcnt lgkmcnt(0)")
    for t in range(6):
        if t == 5: K("s_waitcnt vmcnt(0)")
        K("s_barrier")
    arrive(C_E); arrive(C_G)
    K("s_setprio 0")
    K.label("L_mset")
    mksrd(R_WS, P_WS, WS_SIZE); mksrd(R_WO, P_WO, 448*896); mksrd(R_OUT, P_OUT, 2048*896)
    p2setup()
    K(f"s_mul_i32 s{T}, s{S_ROW}, {112*1024}"); K(f"s_add_u32 s{T}, s{T}, {WS_H}")
    K(f"s_lshl_b32 s{S_HB}, s{T+4}, 12"); K(f"s_add_u32 s{S_HB}, s{S_HB}, s{T}")
    K(f"s_lshl_b32 s{S_HB3}, s{T+2}, 12"); K(f"s_add_u32 s{S_HB3}, s{S_HB3}, s{T}")
    mksrd(R_T, P_B2, 896)
    K(f"s_lshl_b32 s{T}, s{S_CT}, 7"); K(f"s_lshl_b32 s{T+1}, s{S_A}, 10"); K(f"s_add_u32 s{T}, s{T}, s{T+1}")
    K(f"s_lshl_b32 s{T+1}, s{S_A}, 7"); K(f"s_add_u32 m0, s{T+1}, {L_B2}")
    K("s_mov_b64 exec, 0xff")
    tk_b2 = K(f"buffer_load_dwordx4 v{V_L16}, {srd(R_T)}, s{T} offen lds")
    K("s_mov_b64 exec, -1")
    K(f"s_lshl_b32 s{T}, s{S_ROW}, 12"); K(f"s_add_u32 s{T}, s{T}, {WS_HF}")
    K(f"s_lshl_b32 s{S_PE}, s{T+4}, 7"); K(f"s_add_u32 s{S_PE}, s{S_PE}, s{T}")
    K(f"s_lshl_b32 s{S_P3}, s{T+2}, 7"); K(f"s_add_u32 s{S_P3}, s{S_P3}, s{T}")
    K(f"s_lshl_b32 s{T}, s{S_ROW}, 4"); K(f"s_lshl_b32 s{T+1}, s{S_A}, 2"); K(f"s_add_u32 s{S_OB}, s{T+1}, s{T}")
    K(f"s_lshl_b32 s{S_PO}, s{S_OB}, 7"); K(f"s_add_u32 s{S_PO}, s{S_PO}, {WS_OF}")
    FL_E = [(S_PE, 4096*r + 256*u) for r in range(2) for u in range(3)]
    FL_L = [(S_PE, 4096*r + 256*u + 128) for r in range(2) for u in range(3)] + [(S_P3, 0), (S_P3, 4096)]
    FL_O = [(S_PO, 2048*r + 128*u) for r in range(2) for u in range(4)]
    K(f"s_lshl_b32 s{T}, s{S_MT}, 2"); K(f"s_add_u32 s{T}, s{T}, s{S_A}"); K(f"s_mul_i32 s{S_RS}, s{T}, 112")
    K(f"s_lshl_b32 s{T+1}, s{S_J}, 3"); K(f"s_add_u32 s{S_RS}, s{S_RS}, s{T+1}"); K(f"s_lshl_b32 s{S_RS}, s{S_RS}, 10"); K(f"s_add_u32 s{S_RS}, s{S_RS}, {WS_H}")
    K(f"s_lshl_b32 s{S_FL}, s{T}, 4"); K(f"s_add_u32 s{S_FL}, s{S_FL}, s{S_J}"); K(f"s_lshl_b32 s{S_FL}, s{S_FL}, 8"); K(f"s_add_u32 s{S_FL}, s{S_FL}, {WS_HF}")
    K(f"s_add_u32 s{S_FL2}, s{S_FL}, 128")
    K(f"v_add_u32 v{M_L16B}, {112*1024}, v{V_L16}")
    MP = M_AR + 40
    K(f"v_lshlrev_b32 v{MP}, 7, v{V_LANE}")
    K(f"s_lshl_b32 s{T+3}, s2, 2"); K(f"s_add_u32 s{T+3}, s{T+3}, s{S_A}")
    K(f"s_mul_i32 s{S_XB}, s{T+3}, {13*128}"); K(f"s_lshl_b32 s{S_M0}, s{T+3}, 9")
    def mall_pf():
        K("s_mov_b64 exec, 0x1fff")
        K(f"buffer_load_dword v{V_POLL}, v{MP}, {srd(R_W2)}, s{S_XB} offen")
        K("s_mov_b64 exec, 15")
        K(f"buffer_load_dword v{V_POLL}, v{MP}, {srd(R_WO)}, s{S_M0} offen")
        K("s_mov_b64 exec, -1")
    if mpf == 1: mall_pf()
    if tlb:
        l = newl("tlb")
        K(f"s_cmp_lg_u32 s{S_A}, 1")
        K.branch(f"s_cbranch_scc1 {l}")
        K(f"v_lshlrev_b32 v{t0}, {tlb}, v{V_LANE}")
        K(f"buffer_load_dword v{V_POLL}, v{t0}, {srd(R_WS)}, 0 offen offset:2048"); K.vm -= 1
        K(f"buffer_load_dword v{V_POLL}, v{t0}, {srd(R_OUT)}, 0 offen"); K.vm -= 1
        K.label(l)
    xfrag_addr(M_AX)
    lanepart()
    K(f"v_lshl_add_u32 v{t0}, v{t2}, 3, v{t3}"); K(f"v_lshl_add_u32 v{t0}, v{t0}, 8, v{t4}"); K(f"v_lshl_add_u32 v{t0}, v{t3}, 6, v{t0}")
    K(f"v_add_u32 v{M_AW}, 16384, v{t0}")
    for p in range(1, 4): K(f"v_xor_b32 v{M_AW+p}, {64*p}, v{M_AW}")
    AB = M_AB
    K(f"v_lshl_add_u32 v{t0}, v{t2}, 2, v{t3}"); K(f"v_lshl_add_u32 v{t0}, v{t0}, 7, v{t4}"); K(f"v_bfe_u32 v{t1}, v{V_LANE}, 3, 1"); K(f"v_lshl_add_u32 v{t0}, v{t1}, 6, v{t0}")
    K(f"v_add_u32 v{AB}, s{S_M02}, v{t0}"); K(f"v_xor_b32 v{AB+1}, 64, v{AB}")
    K(f"v_add_u32 v{AB+2}, 65536, v{AB}"); K(f"v_add_u32 v{AB+3}, 65536, v{AB+1}")
    K(f"v_lshlrev_b32 v{t0}, 9, v{t2}"); K(f"v_sub_u32 v22, v{AB+2}, v{t0}"); K(f"v_sub_u32 v23, v{AB+3}, v{t0}")
    K(f"s_lshl_b32 s{T}, s{S_A}, 7"); K(f"s_add_u32 s{T}, s{T}, {L_B2}"); K(f"v_lshl_add_u32 v0, v{t2}, 3, s{T}")
    K(f"s_lshl_b32 s{T}, s{S_A}, 8"); K(f"s_add_u32 s{T}, s{T}, {L_B1}"); K(f"v_lshl_add_u32 v{t0}, v{t2}, 3, s{T}")
    box = {}
    K(f"s_cmp_ge_u32 s{S_J}, 14")
    K.branch("s_cbranch_scc1 L_nof")
    vm_nof = K.vm
    K.wait_vm(tk_b1)
    for q in range(8): K(f"ds_read2_b64 {vr(M_AR+4*q,4)}, v{t0} offset0:{4*q} offset1:{4*q+2}")
    K("s_waitcnt lgkmcnt(0)")
    settag()
    for q in range(32):
        K(f"v_lshlrev_b32 v{M_ACC+2*q}, 16, v{M_AR+q}")
        K(f"v_and_b32 v{M_ACC+2*q+1}, 0xffff0000, v{M_AR+q}")
    if fine: stamp("M_rdy")
    WR, XR = M_BH, M_BH + 4*G
    tk = {}
    def rdg(g):
        ks, p = g // 4, g % 4
        t, ksl = ks // 4, ks % 4
        uo = (t % 2) * 32768
        if p == 0 and ksl == 0:
            shift(range(M_AX, M_AX + 8), SH[t])
            if t == 3: K.wait_vm(tk_b2)
            if t < 6: K("s_barrier")
            else:
                l = newl("s6")
                K.wait_lg(box['cs'])
                K(f"v_cmp_ne_u32 vcc, 4, v{t4}")
                K(f"s_cbranch_vccz {l}")
                lgs = K.lg
                await_(C_S, 4)
                K.lg = lgs
                K.raw(f"{l}:")
        if p == 0: K(f"ds_read_b128 {vr(XR + 4*(ks % 3), 4)}, v{M_AX+ksl} offset:{uo}")
        for r in range(2):
            tk[g] = K(f"ds_read_b64_tr_b16 {vr(WR + 4*(g % G) + 2*r, 2)}, v{M_AW+p} offset:{uo + (16*ksl + 4*r)*256}")
    for g in range(G): rdg(g)
    for g in range(112):
        K.wait_lg(tk[g])
        mfma(M_ACC + 16*(g % 4), WR + 4*(g % G), XR + 4*((g // 4) % 3))
        if g + G < 112: rdg(g + G)
        if g + G == 112: arrive(C_E)
        if g + G + 3 == 96: box['cs'] = K(f"ds_read_b32 v{t4}, v{V_CNT} offset:{C_S}")
        if mpf > 1 and g == mpf: mall_pf()
    stamp("ffn1")
    K(f"s_setprio {prioG}")
    cc = -2.0 * 0.7978845608028654 * 1.4426950408889634
    K(f"v_mov_b32 v{t0}, {f2u(cc):#x}"); K(f"v_mov_b32 v{t1}, 1.0"); K(f"s_mov_b32 s{S_K}, {f2u(cc*0.044715):#x}"); K(f"s_mov_b32 s{S_K+1}, {f2u(cc*0.044715):#x}")
    tkh = {}
    for g in range(8):
        a = M_ACC + 8*g; tt = M_AR + 8*(g % 2); o = M_AR + 48 + 4*g
        if g < pkg:
            for e in range(0, 8, 2): K(f"v_pk_mul_f32 {vr(tt+e,2)}, {vr(a+e,2)}, {vr(a+e,2)}")
            for e in range(0, 8, 2): K(f"v_pk_fma_f32 {vr(tt+e,2)}, {vr(tt+e,2)}, {sp(S_K)}, {vr(t0,2)} op_sel_hi:[1,1,0]")
            for e in range(0, 8, 2): K(f"v_pk_mul_f32 {vr(tt+e,2)}, {vr(a+e,2)}, {vr(tt+e,2)}")
            for e in range(8): K(f"v_exp_f32 v{tt+e}, v{tt+e}")
            for e in range(0, 8, 2): K(f"v_pk_add_f32 {vr(tt+e,2)}, {vr(tt+e,2)}, {vr(t0,2)} op_sel:[0,1] op_sel_hi:[1,1]")
            for e in range(8): K(f"v_rcp_f32 v{tt+e}, v{tt+e}")
            for e in range(0, 8, 2): K(f"v_pk_mul_f32 {vr(tt+e,2)}, {vr(a+e,2)}, {vr(tt+e,2)}")
        else:
            for e in range(8): K(f"v_mul_f32 v{tt+e}, v{a+e}, v{a+e}")
            for e in range(8): K(f"v_fma_f32 v{tt+e}, v{tt+e}, s{S_K}, v{t0}")
            for e in range(8): K(f"v_mul_f32 v{tt+e}, v{a+e}, v{tt+e}")
            for e in range(8): K(f"v_exp_f32 v{tt+e}, v{tt+e}")
            for e in range(8): K(f"v_add_f32 v{tt+e}, 1.0, v{tt+e}")
            for e in range(8): K(f"v_rcp_f32 v{tt+e}, v{tt+e}")
            for e in range(8): K(f"v_mul_f32 v{tt+e}, v{a+e}, v{tt+e}")
        for e in range(4): K(f"v_cvt_pk_bf16_f32 v{o+e}, v{tt+2*e}, v{tt+2*e+1}")
        if g == gw: arrive(C_G)
        if (g + 1) % sb == 0:
            K("s_setprio 3")
            for x in range(g + 1 - sb, g + 1):
                if x == 4: K(f"s_add_u32 s{S_RS}, s{S_RS}, 4096")
                tkh[x] = K(f"buffer_store_dwordx4 {vr(M_AR + 48 + 4*x,4)}, v{V_L16}, {srd(R_WS)}, s{S_RS} offen offset:{1024*(x%4)} sc1")
            if g < 7: K(f"s_setprio {prioG}")
    stamp("gelu_v")
    K.wait_vm(tkh[3]); flag(S_FL)
    stamp("gelu")
    K(f"s_cmp_eq_u32 s{S_ACT}, 1")
    K.branch("s_cbranch_scc1 L_p2")
    K("s_waitcnt vmcnt(0)")
    flag(S_FL2)
    K.branch("s_branch L_fin")
    K.label("L_nof")
    K.vm = vm_nof
    K("s_waitcnt lgkmcnt(0)")
    settag()
    if mpf > 1: mall_pf()
    K("s_waitcnt vmcnt(0)")

    K.label("L_p2")
    tk_h = K.vm
    def g_wo(hf):
        def step(q):
            def f():
                if q == 0:
                    K(f"s_mul_i32 s{TD}, s{S_A}, {112*896}"); K(f"s_lshl_b32 s{TD+1}, s{S_CT}, 7"); K(f"s_add_u32 s{TD}, s{TD}, s{TD+1}")
                    if hf: K(f"s_add_u32 s{TD}, s{TD}, {56*896}")
                    K(f"s_add_u32 m0, s{S_M02}, {U[RUNIT[7+hf]]}")
                if q == 4: K(f"s_add_u32 s{TD}, s{TD}, {32*896}"); K(f"s_add_u32 m0, s{S_M02}, {U[RUNIT[7+hf]] + 4096}")
                x = K(f"buffer_load_dwordx4 v{V_D2+q%4}, {srd(R_WO)}, s{TD} offen offset:{1024*(q%4)} lds")
                if q == 6: tk_r[7+hf] = x
            return f
        return [step(q) for q in range(7)]
    tk = {}
    def rdb(ks, part=3):
        r, ksl = ks // 4, ks % 4
        b = M_BH + 8 * (ks % 8)
        u = RUNIT[r]
        if ksl == 0 and r >= 2 and part & 1: K.wait_vm(tk_r[r])
        for pp in range(2):
            for h in range(2):
                if not part & (1 << pp): continue
                if r < 7:
                    tk[ks] = K(f"ds_read_b64_tr_b16 {vr(b + 4*pp + 2*h, 2)}, v{AB + pp + (2 if u >= 2 else 0)} offset:{(u%2)*32768 + (16*ksl + 8*h)*128}")
                else:
                    hh, sx = (ks % 4) // 2, ks % 2
                    tk[ks] = K(f"ds_read_b64_tr_b16 {vr(b + 4*pp + 2*h, 2)}, v{(22 if (sx == 1 and h == 1) else AB + 2) + pp} offset:{(u%2)*32768 + (28*hh + 16*sx + 8*h)*128}")
    tk_a = {}
    def lda(ks, part=3):
        b = M_AR + 8 * (ks % NA); r = ks // 4
        if part & 1:
            if ks % 4 == 0: K(f"s_add_u32 s{T+7}, s{S_HB3 if r == 3 else S_HB}, {0 if r == 3 else (2*r % 7)*4096}")
            K(f"buffer_load_dwordx4 {vr(b,4)}, v{V_L16}, {srd(R_WS)}, s{T+7} offen offset:{1024*(ks%4)} sc1")
        if part & 2: tk_a[ks] = K(f"buffer_load_dwordx4 {vr(b+4,4)}, v{M_L16B}, {srd(R_WS)}, s{T+7} offen offset:{1024*(ks%4)} sc1")
    B2T = M_AR + 80
    for q in range(4): K(f"ds_read2_b64 {vr(B2T+4*q,4)}, v0 offset0:{4*q} offset1:{4*q+2}")
    def unpack(e):
        for t2_ in range(2):
            K(f"v_lshlrev_b32 v{M_ACC+32*t2_+2*e}, 16, v{B2T+e}")
            K(f"v_and_b32 v{M_ACC+32*t2_+2*e+1}, 0xffff0000, v{B2T+e}")
    g0, g1, g2, g3 = g_w2(0), g_w2(1), g_w2(2), g_w2(3)
    if aw2:
        K("s_waitcnt lgkmcnt(0)")
        for e in range(16): unpack(e)
        K.wait_vm(tk_h - 1)
        flag(S_FL2)
        K(f"s_setprio 0")
        stamp("h_pub1")
        if hfirst:
            poll_issue(FL_E)
            poll_check(FL_E)
            stamp("hE_seen")
            for ks in range(pre): lda(ks)
        await_(C_B, 4)
        stamp("B_seen")
        for ks in range(3): rdb(ks)
        K.wait_lg(tk[0]); rdb(3)
        K.wait_lg(tk[3])
        for q in range(8):
            g2[q]()
            if q < 4:
                if q == 3: K.wait_lg(tk[4])
                rdb(4 + q)
        K("s_waitcnt lgkmcnt(0)")
        if not hfirst:
            poll_issue(FL_E)
            run(g3); g3 = []
            poll_check(FL_E)
            stamp("hE_seen")
            for ks in range(pre): lda(ks)
    else:
        await_(C_E, 8)
        for q in range(8):
            g0[q](); unpack(2*q); unpack(2*q + 1)
        K.wait_vm(tk_h - 1)
        flag(S_FL2)
        K(f"s_setprio 0")
        stamp("h_pub1")
        poll_issue(FL_E)
        run(g1)
        poll_check(FL_E)
        stamp("hE_seen")
        for ks in range(4): lda(ks)
        K.wait_vm(tk_r[0])
        for ks in range(4):
            if ks == 3: K.wait_lg(tk[0])
            rdb(ks); lda(4 + ks)
        K.wait_vm(tk_r[1]); K.wait_lg(tk[3])
        for q in range(8):
            g2[q]()
            if q < 4:
                if q == 3: K.wait_lg(tk[4])
                rdb(4 + q)
        K("s_waitcnt lgkmcnt(0)")
    stamp("p2_prep")
    poll_issue(FL_L)
    for ks in range(pre if aw2 else 8, 12): pend.extend([lambda ks=ks: lda(ks, 1), lambda ks=ks: lda(ks, 2)])
    pend.extend(g3)
    def step(ks, side):
        K.wait_vm(tk_a[ks])
        if ks >= 8: K.wait_lg(tk[ks])
        a = M_AR + 8 * (ks % NA); b = M_BH + 8 * (ks % 8)
        n = 0
        for t2_ in range(2):
            for pp in range(2):
                mfma(M_ACC + 32*t2_ + 16*pp, b + 4*pp, a + 4*t2_)
                side(n); n += 1
    nxt = [12]
    for ks in range(28):
        def side(n):
            if n < 2 and ks + 3 >= 8: rdb(ks + 3, 1 << n)
            drip(2 if len(pend) > 8 else 1)
        step(ks, side)
        if ks == c0:
            poll_check(FL_L)
            stamp("hL_seen")
        if ks == 7:
            await_(C_3, 4)
            pend.extend(g_w2(4))
        while ks >= c0 and nxt[0] <= ks + NA and nxt[0] < 28:
            pend.extend([lambda k=nxt[0]: lda(k, 1), lambda k=nxt[0]: lda(k, 2)]); nxt[0] += 1
        if ks == 11: pend.extend(g_w2(5))
        if ks == 15: pend.extend(g_w2(6))
        if ks == 17:
            await_(C_Q, 4)
            pend.extend(g_wo(0))
        if ks == 19: pend.extend(g_wo(1))
        if ks in (3, 11, 19): stamp(f"p2_k{ks}")
    assert not pend
    K("s_waitcnt lgkmcnt(4)")
    poll_issue(FL_O)
    stamp("p2_h_done")
    K(f"v_and_b32 v{t2}, 31, v{V_LANE}"); K(f"v_lshlrev_b32 v{t2}, 2, v{t2}")
    K(f"s_lshl_b32 s{T+3}, s{S_OB}, 7"); K(f"s_add_u32 s{T+3}, s{T+3}, {WS_G}")
    K(f"s_lshl_b32 s{T+4}, s{S_OB}, 11"); K(f"s_add_u32 s{T+4}, s{T+4}, {WS_O}")
    K(f"v_add_u32 v{M_L16B}, 32768, v{V_L16}")
    K(f"v_add_u32 v{V_D2}, s{S_M02}, v{V_L16}")
    for q in range(1, 4): K(f"v_xor_b32 v{V_D2+q}, {64*q}, v{V_D2}")
    poll_check(FL_O)
    stamp("o_seen")
    K(f"buffer_load_dword v{t4}, v{t2}, {srd(R_WS)}, s{T+3} offen sc1")
    tk_g = K(f"buffer_load_dword v{t5}, v{t2}, {srd(R_WS)}, s{T+3} offen offset:2048 sc1")
    for ks in range(28, 36):
        b = M_AR + 8 * (ks % NA)
        if ks == 32: K(f"s_add_u32 s{T+4}, s{T+4}, 4096")
        K(f"buffer_load_dwordx4 {vr(b,4)}, v{V_L16}, {srd(R_WS)}, s{T+4} offen offset:{1024*(ks%4)} sc1")
        tk_a[ks] = K(f"buffer_load_dwordx4 {vr(b+4,4)}, v{M_L16B}, {srd(R_WS)}, s{T+4} offen offset:{1024*(ks%4)} sc1")
    K.wait_vm(tk_g)
    if f2: stamp("t_g")
    K(f"v_sub_f32 v{t4}, 1.0, v{t4}"); K(f"v_sub_f32 v{t5}, 1.0, v{t5}")
    K(f"v_cvt_pk_bf16_f32 v{t4}, v{t4}, v{t5}"); K(f"v_and_b32 v{t5}, 0xffff0000, v{t4}"); K(f"v_lshlrev_b32 v{t4}, 16, v{t4}")
    for e in range(0, 64, 2): pscale(M_ACC+e, t4 if e < 32 else t5, True)
    for ks in range(28, 36):
        def side(n):
            if n < 2 and ks + 3 < 36: rdb(ks + 3, 1 << n)
        step(ks, side)
    if f2: stamp("t_mf")
    for t2_ in range(2):
        for b in range(8): K(f"ds_write_b128 v{V_D2 + b%4}, {vr(M_ACC+32*t2_+4*b,4)} offset:{32768*t2_ + 1024*b}")
    stamp("p2_done")

    K.label("L_red")
    K(f"v_and_b32 v{t1}, 7, v{V_LANE}"); K(f"v_lshrrev_b32 v{t3}, 3, v{V_LANE}")
    K(f"s_lshl_b32 s{T+1}, s{S_A}, 3"); K(f"v_add_u32 v{t0}, s{T+1}, v{t3}")
    K(f"v_and_b32 v{t2}, 3, v{V_LANE}"); K(f"v_lshlrev_b32 v{t2}, 2, v{t2}"); K(f"v_xor_b32 v{t0}, v{t0}, v{t2}")
    K(f"v_lshlrev_b32 v{t0}, 4, v{t0}"); K(f"v_lshl_add_u32 v{t0}, v{t1}, 10, v{t0}")
    K(f"s_lshr_b32 s{T+2}, s{S_W}, 2"); K(f"s_lshl_b32 s{T}, s{T+2}, 15"); K(f"v_add_u32 v{t0}, s{T}, v{t0}")
    K(f"v_mul_u32_u24 v{t3}, 896, v{t3}"); K(f"v_lshl_add_u32 v{t3}, v{t1}, 4, v{t3}")
    K(f"s_lshl_b32 s{T}, s{S_ROW}, 2"); K(f"s_add_u32 s{T}, s{T}, s{S_W}"); K(f"s_mul_i32 s{T}, s{T}, {8*896}"); K(f"s_lshl_b32 s{T+1}, s{S_CT}, 7"); K(f"s_add_u32 s{T+5}, s{T}, s{T+1}")
    K("s_waitcnt lgkmcnt(0)")
    K("s_barrier")
    if f2: stamp("t_bar")
    R = 160
    for q in range(4):
        K(f"ds_read_b128 {vr(R+8*q,4)}, v{t0} offset:{8192*q}")
        K(f"ds_read_b128 {vr(R+8*q+4,4)}, v{t0} offset:{8192*q + 512}")
    K("s_waitcnt lgkmcnt(4)")
    for e in range(0, 8, 2): padd(R+e, R+e, R+8+e, True)
    K("s_waitcnt lgkmcnt(0)")
    for e in range(0, 8, 2): padd(R+16+e, R+16+e, R+24+e, True)
    for e in range(0, 8, 2): padd(R+e, R+e, R+16+e, True)
    for e in range(4): K(f"v_cvt_pk_bf16_f32 v{R+e}, v{R+2*e}, v{R+2*e+1}")
    K(f"buffer_store_dwordx4 {vr(R,4)}, v{t3}, {srd(R_OUT)}, s{T+5} offen" + ["", " sc1", " nt", " sc0 sc1"][outm])
    if f2: stamp("t_st")
    K(f"s_or_b32 s{T}, s2, s{S_W}"); K(f"s_cmp_lg_u32 s{T}, 0")
    K.branch("s_cbranch_scc1 L_fin")
    K(f"s_mov_b32 s{T}, {WS_EPOCH}")
    flag(T)
    K.label("L_fin")
    if stamps:
        K("s_waitcnt vmcnt(0)")
        stamp("end")
        if probe is not None:
            i0 = STAMP_IDS.setdefault('start', len(STAMP_IDS)); i1 = STAMP_IDS.setdefault(probe, len(STAMP_IDS))
            K(f"v_readlane_b32 s{T}, v{V_STAMP}, {i0}"); K(f"v_readlane_b32 s{T+1}, v{V_STAMP}, {i1}")
            K("s_nop 4")
            K(f"s_cmp_eq_u32 s{T+1}, 0"); K(f"s_cselect_b32 s{T+1}, s{T}, s{T+1}")
            if pwg >= 0:
                K(f"s_cmp_lg_u32 s2, {pwg}")
                K.branch("s_cbranch_scc1 L_end")
            K.label("L_probe")
            K("s_sleep 2")
            K(f"s_memrealtime {sp(S_ST)}"); K("s_waitcnt lgkmcnt(0)")
            K(f"s_sub_u32 s{T+2}, s{S_ST}, s{T+1}"); K(f"s_cmp_lt_u32 s{T+2}, {pt}")
            K.branch("s_cbranch_scc1 L_probe")
            K.branch("s_branch L_end")
        K(f"s_lshl_b32 s{T}, s2, 3"); K(f"s_add_u32 s{T}, s{T}, s{S_W}"); K(f"s_lshl_b32 s{T}, s{T}, 8"); K(f"s_add_u32 s{T}, s{T}, {WS_STAMP}")
        K(f"v_lshlrev_b32 v{t0}, 2, v{V_LANE}")
        K(f"buffer_store_dword v{V_STAMP}, v{t0}, {srd(R_WS)}, s{T} offen")
    K.label("L_end")
    K("s_endpgm")
    K.raw(f".fill (28672 + 4096 * {1 if stamps else 0} - (L_end - {NAME})) / 4, 4, 0xbf800000")

    head = f"""; Fused gated mix of hedgehog linear attention and GELU FFN (emitted by a hand-written generator script)
; @launch grid=(256,1,1) block=(512,1,1) lds=163840
.amdgcn_target "amdgcn-amd-amdhsa--gfx950"
.text
.globl {NAME}
.p2align 8
.type {NAME},@function
"""
    tail = f""".section .rodata,"a"
.p2align 6
.amdhsa_kernel {NAME}
  .amdhsa_next_free_vgpr 256
  .amdhsa_next_free_sgpr 102
  .amdhsa_accum_offset 256
  .amdhsa_group_segment_fixed_size 0
  .amdhsa_kernarg_size 104
  .amdhsa_user_sgpr_count 2
  .amdhsa_user_sgpr_kernarg_segment_ptr 1
  .amdhsa_system_sgpr_workgroup_id_x 1
.end_amdhsa_kernel
"""
    return head + K.text() + tail

STAMP_IDS = {}
def parse_opts(argv):
    kw = {}
    for a in argv:
        if a.startswith("-D"):
            k, v = a[2:].split("="); kw[k] = int(v) if v.lstrip("-").isdigit() else v
    return kw
if __name__ == "__main__":
    out = sys.argv[1] if len(sys.argv) > 1 else "k.s"
    open(out, "w").write(gen(**parse_opts(sys.argv)))
```

```python
import sys, struct
from asmlib import Asm

NAME = "gated_mix__linear_kernel_hedgehog__dense_activation_gelu__prompt_kernel"
def f2u(x): return struct.unpack("<I", struct.pack("<f", x))[0]

WS_EPOCH = 0
WS_RPF   = 0x8000
WS_STAMP = 0x10000
WS_G     = 0xA0000
WS_WQ    = 0x100000
WS_KVP   = 0x280000
WS_O     = 0x480000
WS_H     = 0x680000
WS_HF    = 0xE00000
WS_KVF   = 0xE50000
WS_OF    = 0xE70000
WS_SIZE  = 0xF00000

U = [0, 32768, 65536, 98304, 131072]
L_K, L_V, L_Q = 98304, 126976, 65536
L_MISC = 155648
L_PHI, L_CNT, L_B2, L_B1 = L_MISC, L_MISC + 2048, L_MISC + 2560, L_MISC + 3072
L_KVS = U[3]
L_KVF = L_MISC + 4096
RUNIT = [0, 1, 0, 1, 3, 0, 1, 2, 3]
C_E, C_0, C_1, C_2, C_3, C_4, C_Q, C_G, C_B, C_S, C_5 = 0, 4, 8, 12, 16, 20, 24, 28, 32, 36, 40

P_X, P_WQKV, P_PHI, P_WO, P_W1, P_B1, P_W2 = 16, 18, 20, 22, 26, 28, 30
P_B2, P_GATE, P_OUT, P_WS = 32, 34, 36, 40
R_X, R_W1, R_W2, R_WO, R_WS, R_OUT, R_T = 44, 48, 52, 56, 60, 64, 68
S_MT, S_J, S_W, S_A, S_FL2, S_TAG, S_CH, S_CNT = 72, 73, 74, 75, 76, 78, 77, 100
S_CHO = 80
S_M0 = 87
S_XB, S_W1B = 88, 89
S_T = 90
S_UP = 98
S_E = 42
S_H = S_J
S_CT, S_ROW, S_ACT = 43, 3, 101
S_K = 4
S_ST = 6
S_L28 = 24
S_FL = 8
S_HB, S_W2B, S_OB, S_HB3, S_W2B3, S_M02, S_RS = 9, 10, 11, 12, 13, 14, 15
S_PE, S_P3, S_PO = 34, 35, 38
PD = [16, 17, 18, 19, 20, 21, 22, 23, 26, 27, 28, 29, 30, 31, 32, 33]
def srd(r): return f"s[{r}:{r+3}]"
def sp(r): return f"s[{r}:{r+1}]"

V_LANE, V_L16, V_STAMP, V_TAG, V_POLL, V_CNT = 1, 2, 3, 4, 5, 6
V_T = 8
V_D2 = 18
A_PA, A_AX, A_AD, A_L4, A_PH, A_TR, A_G = 7, 14, 22, 24, 25, 30, 31
V_W, V_P, V_ACC, V_PHI, V_X = 32, 64, 96, 128, 144
A_XD, A_WD, A_QD, A_GW = 64, 68, 72, 16
M_L16B, M_AB = 7, 14
M_ACC, M_BH, M_AR = 24, 88, 152
M_AX, M_AW = 136, 140
NA = 13
def vr(a, n): return f"v[{a}:{a+n-1}]"
UPM = sp(S_UP)
L2E = 1.4426950408889634

def gen(stamps=False, spin=20000, rot1=False, codepf=True, slp=2, cyc=False, G=5, prioA=1, prioM=2, kvf=27, fine=False,
        pkq=0, pkk=1, LA=9, LA0=6, c0=2, mpf=60, outm=0, tlb=21, gw=-1, hf0=7, rpb=3, prioG=2, k6=4, qpf=1, sb=1, qd=0, probe=None, pwg=-1, pt=4000, aw2=2, pre=8, cb=22, pkg=2, rpa=0, f2=0, hfirst=1, early=0, stl=1):
    K = Asm()
    T = S_T
    TD = T + 5
    t0, t1, t2, t3, t4, t5 = range(V_T, V_T + 6)
    def stamp(name):
        if not stamps: return
        if probe is not None and name != probe: return
        K("s_waitcnt lgkmcnt(0)")
        K(f"s_memrealtime {sp(S_ST)}")
        if cyc: K(f"s_memtime s[0:1]")
        K("s_waitcnt lgkmcnt(0)")
        i = STAMP_IDS.setdefault(name, len(STAMP_IDS))
        K(f"v_writelane_b32 v{V_STAMP}, s{S_ST}, {i}")
        if cyc: K(f"v_writelane_b32 v{V_STAMP}, s0, {32 + i}")
    uid = [0]
    def newl(p): uid[0] += 1; return f"L_{p}{uid[0]}"
    def poll_issue(fl):
        for n, (so, im) in enumerate(fl):
            if n == 15: K("s_waitcnt lgkmcnt(14)")
            K(f"s_load_dword s{PD[n]}, {sp(P_WS)}, s{so} offset:{im} glc")
    def poll_check(fl):
        l, d = newl("poll"), newl("polld")
        K(f"s_mov_b32 s{S_CNT}, {spin}")
        K.raw(f"{l}:")
        K("s_waitcnt lgkmcnt(0)")
        for n in range(0, len(fl), 2):
            K(f"s_xor_b64 {sp(PD[n])}, {sp(PD[n])}, {sp(S_TAG)}")
            if n: K(f"s_or_b64 {sp(PD[0])}, {sp(PD[0])}, {sp(PD[n])}")
        K.branch(f"s_cbranch_scc0 {d}")
        K(f"s_sub_u32 s{S_CNT}, s{S_CNT}, 1")
        K(f"s_cbranch_scc1 {d}")
        if slp: K(f"s_sleep {slp}")
        poll_issue(fl)
        K(f"s_branch {l}")
        K.label(d)
    def vpoll_issue(vaddr):
        return K(f"buffer_load_dword v{V_POLL}, v{vaddr}, {srd(R_WS)}, 0 offen sc1")
    def vpoll_check(tok, vaddr):
        l, d = newl("poll"), newl("polld")
        K(f"s_mov_b32 s{S_CNT}, {spin}")
        K.wait_vm(tok)
        K.label(l)
        K(f"v_cmp_ne_u32 vcc, s{S_TAG}, v{V_POLL}")
        K.branch(f"s_cbranch_vccz {d}")
        K(f"s_sub_u32 s{S_CNT}, s{S_CNT}, 1")
        K.branch(f"s_cbranch_scc1 {d}")
        K(f"s_sleep 10")
        K(f"buffer_load_dword v{V_POLL}, v{vaddr}, {srd(R_WS)}, 0 offen sc1"); K.vm -= 1
        K("s_waitcnt vmcnt(0)")
        K.branch(f"s_branch {l}")
        K.label(d)
    def flag(soff_reg):
        K("s_mov_b64 exec, 1")
        K(f"buffer_store_dword v{V_TAG}, v{V_LANE}, {srd(R_WS)}, s{soff_reg} offen sc1")
        K("s_mov_b64 exec, -1")
    def arrive(c):
        K(f"v_mov_b32 v{t5}, 1")
        K("s_mov_b64 exec, 1")
        K(f"ds_add_u32 v{V_CNT}, v{t5} offset:{c}")
        K("s_mov_b64 exec, -1")
    def await_(c, n, sleep=0):
        l, d = newl("aw"), newl("awd")
        K(f"s_mov_b32 s{S_CNT}, {spin * 8}")
        K.label(l)
        K(f"ds_read_b32 v{t5}, v{V_CNT} offset:{c}")
        K("s_waitcnt lgkmcnt(0)")
        K(f"v_cmp_ne_u32 vcc, {n}, v{t5}")
        K.branch(f"s_cbranch_vccz {d}")
        if sleep: K(f"s_sleep {sleep}")
        K(f"s_sub_u32 s{S_CNT}, s{S_CNT}, 1")
        K.branch(f"s_cbranch_scc0 {l}")
        K.label(d)
    def mksrd(r, p, nbytes):
        K(f"s_mov_b32 s{r}, s{p}"); K(f"s_and_b32 s{r+1}, s{p+1}, 0xffff")
        K(f"s_mov_b32 s{r+2}, {nbytes}"); K(f"s_mov_b32 s{r+3}, 0x20000")
    def mfma(d, a, b, c=None):
        cs = vr(d, 16) if c is None else c
        K(f"v_mfma_f32_32x32x16_bf16 {vr(d,16)}, {vr(a,4)}, {vr(b,4)}, {cs}")
    def padd(d, a, b, pk):
        if pk: K(f"v_pk_add_f32 {vr(d,2)}, {vr(a,2)}, {vr(b,2)}")
        else: K(f"v_add_f32 v{d}, v{a}, v{b}"); K(f"v_add_f32 v{d+1}, v{a+1}, v{b+1}")
    def pscale(d, r, pk):
        if pk: K(f"v_pk_mul_f32 {vr(d,2)}, {vr(d,2)}, {vr(r & ~1,2)} " + ("op_sel:[0,1] op_sel_hi:[1,1]" if r & 1 else "op_sel_hi:[1,0]"))
        else: K(f"v_mul_f32 v{d}, v{d}, v{r}"); K(f"v_mul_f32 v{d+1}, v{d+1}, v{r}")
    def settag():
        K(f"s_add_u32 s{S_TAG}, s{S_E}, 0x9E3779B9"); K(f"s_mov_b32 s{S_TAG+1}, s{S_TAG}"); K(f"v_mov_b32 v{V_TAG}, s{S_TAG}")
    def xfrag_addr(dst):
        K(f"v_and_b32 v{t0}, 31, v{V_LANE}"); K(f"v_lshrrev_b32 v{t2}, 5, v{V_LANE}"); K(f"v_bfe_u32 v{t3}, v{V_LANE}, 1, 3")
        K(f"v_xor_b32 v{t3}, v{t2}, v{t3}"); K(f"s_lshl_b32 s{T}, s{S_A}, 12"); K(f"v_lshlrev_b32 v{t0}, 7, v{t0}")
        K(f"v_lshl_add_u32 v{t0}, v{t3}, 4, v{t0}"); K(f"v_add_u32 v{dst}, s{T}, v{t0}")
        for k in range(1, 4): K(f"v_xor_b32 v{dst+k}, {32*k}, v{dst}")
    def lanepart():
        K(f"v_bfe_u32 v{t4}, v{V_LANE}, 4, 1"); K(f"v_lshlrev_b32 v{t4}, 5, v{t4}")
        K(f"v_and_b32 v{t3}, 3, v{V_LANE}"); K(f"v_lshl_add_u32 v{t4}, v{t3}, 3, v{t4}")
        K(f"v_bfe_u32 v{t3}, v{V_LANE}, 2, 2"); K(f"v_lshrrev_b32 v{t2}, 5, v{V_LANE}")
    def p2setup():
        mksrd(R_W2, P_W2, 1792*896)
        K(f"s_and_b32 s{T}, s2, 7"); K(f"s_lshr_b32 s{T+1}, s2, 3")
        K(f"s_mul_i32 s{T+2}, s{T+1}, 37"); K(f"s_lshr_b32 s{T+2}, s{T+2}, 8"); K(f"s_mul_i32 s{T+3}, s{T+2}, 7"); K(f"s_sub_u32 s{S_CT}, s{T+1}, s{T+3}")
        K(f"s_lshl_b32 s{T+2}, s{T+2}, 1"); K(f"s_lshl_b32 s{T+3}, s{T}, 3"); K(f"s_add_u32 s{S_ROW}, s{T+2}, s{T+3}")
        K(f"s_cmp_lt_u32 s{T+1}, 28"); K(f"s_cselect_b32 s{S_ACT}, 1, 0")
        K(f"s_and_b32 s{T+2}, s{S_A}, 1"); K(f"s_mul_i32 s{T+3}, s{S_A}, 7"); K(f"s_add_u32 s{T+4}, s{T+3}, s{T+2}")
        K(f"s_cmp_eq_u32 s{T+2}, 0"); K(f"s_cselect_b32 s{T+2}, 6, 0"); K(f"s_add_u32 s{T+2}, s{T+2}, s{T+3}")
        K(f"s_lshl_b32 s{T}, s{S_CT}, 7")
        K(f"s_mul_i32 s{S_W2B}, s{T+4}, {64*896}"); K(f"s_add_u32 s{S_W2B}, s{S_W2B}, s{T}")
        K(f"s_mul_i32 s{S_W2B3}, s{T+2}, {64*896}"); K(f"s_add_u32 s{S_W2B3}, s{S_W2B3}, s{T}")
        K(f"s_lshl_b32 s{S_M02}, s{S_A}, 13")
        K(f"v_lshrrev_b32 v{t0}, 3, v{V_LANE}"); K(f"v_and_b32 v{t1}, 7, v{V_LANE}")
        K(f"v_bfe_u32 v{t2}, v{V_LANE}, 4, 1"); K(f"v_lshlrev_b32 v{t2}, 2, v{t2}"); K(f"v_xor_b32 v{t1}, v{t1}, v{t2}")
        K(f"v_mul_u32_u24 v{t0}, 896, v{t0}"); K(f"v_lshl_add_u32 v{V_D2}, v{t1}, 4, v{t0}")
        for q in range(1, 4): K(f"v_add_u32 v{V_D2+q}, {q*(8*896-1024)}, v{V_D2}")
        K(f"v_mov_b32 v{V_CNT}, {L_CNT}")
    def shift(regs, d):
        for r in regs:
            if d > 0: K(f"v_add_u32 v{r}, {d}, v{r}")
            elif d < 0: K(f"v_subrev_u32 v{r}, {-d}, v{r}")
    pend = []
    def drip(n):
        for _ in range(n):
            if pend: pend.pop(0)()
    def run(steps):
        for f in steps: f()
    tk_r = {}
    def g_w2(r):
        def step(q):
            def f():
                if q % 4 == 0:
                    K(f"s_add_u32 s{TD}, s{S_W2B3 if r == 3 else S_W2B}, {(0 if r == 3 else (2*r % 7)*64*896) + (q // 4)*32*896}")
                    K(f"s_add_u32 m0, s{S_M02}, {U[RUNIT[r]] + (q // 4)*4096}")
                x = K(f"buffer_load_dwordx4 v{V_D2+q%4}, {srd(R_W2)}, s{TD} offen offset:{1024*(q%4)} lds")
                if q == 7: tk_r[r] = x
            return f
        return [step(q) for q in range(8)]
    SH = [0, 0, 65536, 0, -65536, 0, 65536]

    K.raw(f"{NAME}:")
    K("s_cmp_ge_u32 s2, 256"); K("s_cbranch_scc1 L_end")
    if stamps and early: K(f"s_memrealtime {sp(S_ST)}"); K("s_waitcnt lgkmcnt(0)")
    K("s_load_dwordx16 s[16:31], s[0:1], 0"); K("s_load_dwordx8 s[32:39], s[0:1], 64"); K("s_load_dwordx2 s[40:41], s[0:1], 96")
    if stamps:
        if not early: K(f"s_memrealtime {sp(S_ST)}")
        K(f"v_mov_b32 v{V_STAMP}, 0")
    K(f"v_lshrrev_b32 v{t0}, 6, v0"); K(f"v_and_b32 v{V_LANE}, 63, v0")
    K(f"v_readfirstlane_b32 s{S_W}, v{t0}")
    K(f"v_lshlrev_b32 v{V_L16}, 4, v{V_LANE}")
    K(f"s_and_b32 s{T}, s2, 7"); K(f"s_lshr_b32 s{T+1}, s2, 3")
    if codepf:
        K(f"s_lshr_b32 s{T+2}, s2, 5"); K(f"s_lshl_b32 s{T+2}, s{T+2}, 3"); K(f"s_or_b32 s{T+2}, s{T+2}, s{S_W}"); K(f"s_cmp_lg_u32 s{T+2}, 7")
        K("s_cbranch_scc1 L_nopf")
        K(f"s_getpc_b64 {sp(T+2)}")
        K.raw("L_pc:")
        K(f"s_lshl_b32 s{T+4}, s{T+1}, 7"); K(f"s_sub_u32 s{T+2}, s{T+2}, L_pc - {NAME}"); K(f"s_subb_u32 s{T+3}, s{T+3}, 0")
        K(f"s_add_u32 s{T+2}, s{T+2}, s{T+4}"); K(f"s_addc_u32 s{T+3}, s{T+3}, 0")
        K(f"v_lshlrev_b32 v{t0}, 9, v{V_LANE}")
        K("s_mov_b32 exec_hi, 0xffffff")
        K(f"global_load_dword v{V_POLL}, v{t0}, {sp(T+2)}"); K.vm -= 1
        K("s_mov_b32 exec_hi, -1")
        K.label("L_nopf")
    K(f"s_and_b32 s{T+2}, s{T}, 2"); K(f"s_lshl_b32 s{T+2}, s{T+2}, 1")
    K(f"s_and_b32 s{T+3}, s{T}, 1"); K(f"s_cmp_lt_u32 s{T+1}, 4"); K(f"s_cselect_b32 s{T+4}, 14, 12"); K(f"s_add_u32 s{T+3}, s{T+3}, s{T+4}")
    K(f"s_lshr_b32 s{T+4}, s{T+1}, 3"); K(f"s_lshl_b32 s{S_J}, s{T+4}, 2"); K(f"s_and_b32 s{S_MT}, s{T}, 3"); K(f"s_add_u32 s{S_J}, s{S_J}, s{S_MT}"); K(f"s_sub_u32 s{S_J}, s{S_J}, 4")
    K(f"s_cmp_lt_u32 s{T+1}, 8"); K(f"s_cselect_b32 s{S_J}, s{T+3}, s{S_J}"); K(f"s_cselect_b32 s{T+2}, s{T+2}, 0")
    K(f"s_and_b32 s{T+3}, s{T+1}, 7"); K(f"s_xor_b32 s{T+3}, s{T+3}, s{T+2}")
    K(f"s_and_b32 s{S_MT}, s{T}, 4"); K(f"s_lshl_b32 s{S_MT}, s{S_MT}, 1"); K(f"s_add_u32 s{S_MT}, s{S_MT}, s{T+3}")
    K(f"s_and_b32 s{S_A}, s{S_W}, 3")
    K(f"s_lshl_b32 s{S_W1B}, s{S_J}, 8")
    K(f"s_cmp_lt_u32 s{S_J}, 14")
    K.branch("s_cbranch_scc1 L_norp")
    K(f"s_lshl_b32 s{S_FL}, s{S_MT}, 1"); K(f"s_add_u32 s{S_FL}, s{S_FL}, s{S_J}"); K(f"s_sub_u32 s{S_FL}, s{S_FL}, 14")
    RB = 96
    K(f"s_cmp_eq_u32 s{S_W}, 7")
    K.branch("s_cbranch_scc1 L_rp7")
    K0 = S_XB
    K(f"s_mul_i32 s{K0}, s{S_FL}, 14"); K(f"s_lshl_b32 s{T+5}, s{S_W}, 1"); K(f"s_add_u32 s{K0}, s{K0}, s{T+5}")
    K(f"v_lshrrev_b32 v{t0}, 3, v{V_LANE}"); K(f"v_bfe_u32 v{t1}, v{V_LANE}, 2, 1"); K(f"v_and_b32 v{t2}, 3, v{V_LANE}")
    K(f"v_mul_u32_u24 v{t3}, 56, v{t0}"); K(f"v_mul_u32_u24 v{t4}, 2688, v{t1}"); K(f"v_add_u32 v{t3}, v{t3}, v{t4}")
    K(f"v_lshl_add_u32 v{t3}, v{t2}, 4, v{t3}")
    K(f"s_mul_i32 s{T+5}, s{K0}, 2688"); K(f"v_lshlrev_b32 v{t4}, 1, v{t1}"); K(f"s_lshl_b32 s{T+6}, s{K0}, 1")
    K("s_waitcnt lgkmcnt(0)")
    mksrd(R_T, P_WQKV, 448*2688)
    tkl = {}
    for q in (2, 3, 4, 5): tkl[q] = K(f"buffer_load_dwordx4 {vr(RB+4*q,4)}, v{t3}, {srd(R_T)}, s{T+5} offen offset:{448*q}")
    mksrd(R_X, P_GATE, 896)
    K(f"buffer_load_ushort v{RB+24}, v{t4}, {srd(R_X)}, s{T+6} offen")
    for q in (0, 1): tkl[q] = K(f"buffer_load_dwordx4 {vr(RB+4*q,4)}, v{t3}, {srd(R_T)}, s{T+5} offen offset:{448*q}")
    mksrd(R_WS, P_WS, WS_SIZE)
    K(f"s_mov_b32 s{T+6}, 86016"); K(f"v_mul_lo_u32 v{RB+25}, v{t0}, s{T+6}"); K(f"v_and_b32 v{t1}, 7, v{V_LANE}")
    K(f"v_lshl_add_u32 v{RB+25}, v{t1}, 4, v{RB+25}")
    K(f"v_cmp_eq_u32 vcc, 3, v{t2}")
    K(f"s_lshl_b32 s{T+5}, s{K0}, 6"); K(f"s_add_u32 s{T+5}, s{T+5}, {WS_WQ}")
    for q in (2, 3, 4, 5, 0, 1):
        p, hg = q // 2, q % 2; b = RB + 4*q
        K.wait_vm(tkl[q])
        K(f"v_cndmask_b32 v{b+2}, v{b+2}, v{RB+24}, vcc" if p == 0 else f"v_cndmask_b32 v{b+2}, v{b+2}, 0, vcc")
        K(f"v_cndmask_b32 v{b+3}, v{b+3}, 0, vcc")
        K(f"s_add_u32 s{T+6}, s{T+5}, {p*28672 + hg*8*86016}")
        K(f"buffer_store_dwordx4 {vr(b,4)}, v{RB+25}, {srd(R_WS)}, s{T+6} offen sc1")
    if rpa:
        K(f"s_cmp_lt_u32 s{S_W}, 4")
        K.branch("s_cbranch_scc1 L_norp")
    K("s_waitcnt vmcnt(0)")
    K("s_barrier")
    K.branch("s_branch L_norp")
    K.label("L_rp7")
    for e in range(4): K(f"v_mov_b32 v{RB+e}, 0")
    K(f"s_lshl_b32 s{T+5}, s{S_FL}, 12"); K(f"s_add_u32 s{T+5}, s{T+5}, {WS_KVP}")
    K(f"s_lshl_b32 s{S_FL}, s{S_FL}, 7"); K(f"s_add_u32 s{S_FL}, s{S_FL}, {WS_RPF}")
    K("s_waitcnt lgkmcnt(0)")
    K(f"s_load_dword s{S_E}, {sp(P_WS)}, {WS_EPOCH}")
    mksrd(R_WS, P_WS, WS_SIZE)
    for q in range(4): K(f"buffer_store_dwordx4 {vr(RB,4)}, v{V_L16}, {srd(R_WS)}, s{T+5} offen offset:{1024*q} sc1")
    K("s_waitcnt vmcnt(0) lgkmcnt(0)")
    settag()
    K("s_barrier")
    flag(S_FL)
    if stamps: K(f"s_mov_b32 s{S_CNT}, s{S_ST}"); stamp("rp_pub"); K(f"s_mov_b32 s{S_ST}, s{S_CNT}")
    K.label("L_norp")
    K(f"s_cmp_ge_u32 s{S_W}, 4")
    K.branch("s_cbranch_scc1 L_M")

    if prioA: K(f"s_setprio {prioA}")
    K(f"s_lshl_b32 s{T+4}, s{T+4}, 1"); K(f"s_add_u32 s{T+2}, s{T+3}, s{T+4}")
    K(f"s_cmp_ge_u32 s{T+2}, 7"); K(f"s_cselect_b32 s{T+3}, 7, 0"); K(f"s_sub_u32 s{S_CH}, s{T+2}, s{T+3}")
    if not rot1: K(f"s_mov_b32 s{S_CH}, 0")
    def rotstep(t):
        K(f"s_lshl_b32 s{S_CHO+t}, s{S_CH}, 12")
        if t < 6: K(f"s_add_u32 s{S_CH}, s{S_CH}, 1"); K(f"s_cmp_eq_u32 s{S_CH}, 7"); K(f"s_cselect_b32 s{S_CH}, 0, s{S_CH}")
    rotstep(0); rotstep(1)
    K(f"s_lshl_b32 s{S_M0}, s{S_A}, 12")
    K(f"s_mul_i32 s{S_XB}, s{S_MT}, {128*896}")
    K(f"v_lshrrev_b32 v{t0}, 3, v{V_LANE}"); K(f"v_and_b32 v{t1}, 7, v{V_LANE}"); K(f"v_lshrrev_b32 v{t2}, 1, v{t0}"); K(f"v_xor_b32 v{t2}, v{t1}, v{t2}")
    K(f"s_lshl_b32 s{T+2}, s{S_A}, 5"); K(f"v_add_u32 v{t3}, s{T+2}, v{t0}"); K(f"v_mul_u32_u24 v{t3}, 896, v{t3}")
    K(f"v_lshl_add_u32 v{A_XD}, v{t2}, 4, v{t3}"); K(f"v_xor_b32 v{t2}, 4, v{t2}"); K(f"v_lshl_add_u32 v{A_XD+1}, v{t2}, 4, v{t3}")
    K(f"v_add_u32 v{A_XD+1}, {8*896-1024}, v{A_XD+1}")
    K(f"v_add_u32 v{A_XD+2}, {16*896-2048}, v{A_XD}"); K(f"v_add_u32 v{A_XD+3}, {16*896-2048}, v{A_XD+1}")
    K(f"v_lshrrev_b32 v{t0}, 4, v{V_LANE}"); K(f"v_and_b32 v{t1}, 15, v{V_LANE}"); K(f"v_lshlrev_b32 v{t2}, 2, v{t0}"); K(f"v_xor_b32 v{t2}, v{t1}, v{t2}")
    K(f"s_lshl_b32 s{T+2}, s{S_A}, 4"); K(f"v_add_u32 v{t3}, s{T+2}, v{t0}"); K(f"v_mul_u32_u24 v{t3}, 3584, v{t3}")
    K(f"v_lshl_add_u32 v{A_WD}, v{t2}, 4, v{t3}")
    for q in range(1, 4): K(f"v_add_u32 v{A_WD+q}, {q*(4*3584-1024)}, v{A_WD}")
    K("s_waitcnt lgkmcnt(0)")
    if stamps: K(f"v_writelane_b32 v{V_STAMP}, s{S_ST}, {STAMP_IDS.setdefault('start', len(STAMP_IDS))}")
    mksrd(R_X, P_X, 2048*896); mksrd(R_W1, P_W1, 448*3584)
    K(f"s_cmp_lt_u32 s{S_J}, 14"); K(f"s_cselect_b32 s{R_W1+2}, s{R_W1+2}, 0")
    tk_stage = {}
    def g_stage(t):
        u = U[t % 4]
        def step(q):
            def f():
                if q == 0: K(f"s_lshr_b32 s{TD}, s{S_CHO+t}, 5"); K(f"s_add_u32 s{TD}, s{TD}, s{S_XB}"); K(f"s_add_u32 m0, s{S_M0}, {u}")
                if q == 4: K(f"s_mul_i32 s{TD}, s{S_CHO+t}, 56"); K(f"s_add_u32 s{TD}, s{TD}, s{S_W1B}"); K(f"s_add_u32 m0, s{S_M0}, {u + 16384}")
                if q < 4: K(f"buffer_load_dwordx4 v{A_XD+q}, {srd(R_X)}, s{TD} offen offset:{1024*q} lds")
                else: x = K(f"buffer_load_dwordx4 v{A_WD+q-4}, {srd(R_W1)}, s{TD} offen offset:{1024*(q-4)} lds")
                if q == 7: tk_stage[t] = x
            return f
        return [step(q) for q in range(8)]
    ilist = []
    for t in range(7): ilist += [(f, t - 2 if t >= 4 else -1) for f in g_stage(t)]
    pos = [0]
    def issue_to(n, lastbar):
        while pos[0] < min(n, len(ilist)) and ilist[pos[0]][1] <= lastbar:
            ilist[pos[0]][0](); pos[0] += 1
    if fine: stamp("A_karg")
    vm0 = K.vm
    issue_to(8, -1)
    issue_to(8 + LA0, -1)
    if fine: stamp("A_i1")
    K(f"s_load_dword s{S_E}, {sp(P_WS)}, {WS_EPOCH}")
    for t in range(2, 7): rotstep(t)
    mksrd(R_WS, P_WS, WS_SIZE); mksrd(R_OUT, P_OUT, 2048*896)
    p2setup()
    K(f"s_mov_b32 s{S_UP}, 0"); K(f"s_mov_b32 s{S_UP+1}, -1")
    K(f"s_mov_b32 s{S_L28}, 0x10000000"); K(f"s_mov_b32 s{S_L28+1}, 0x10000000")
    xfrag_addr(A_AX)
    lanepart()
    K(f"v_lshl_add_u32 v{t0}, v{t2}, 3, v{t3}"); K(f"v_lshl_add_u32 v{A_TR}, v{t0}, 6, v{t4}")
    K(f"v_lshl_add_u32 v{t0}, v{t2}, 2, v{t3}"); K(f"v_mul_u32_u24 v{t1}, 56, v{t0}"); K(f"v_add_u32 v{t1}, v{t1}, v{t4}"); K(f"v_add_u32 v{A_PH}, {L_PHI}, v{t1}")
    K(f"v_lshlrev_b32 v{A_L4}, 2, v{V_LANE}")
    if stl:
        K(f"s_lshl_b32 s{T}, s{S_A}, 11"); K(f"s_lshl_b32 s{T+1}, s{S_J}, 13"); K(f"s_add_u32 s{T}, s{T}, s{T+1}"); K(f"s_add_u32 s{T}, s{T}, {WS_KVF}")
        K(f"s_load_dword s{S_CNT}, {sp(P_WS)}, s{T} glc")
    K(f"s_lshl_b32 s{T}, s{S_A}, 10"); K(f"s_add_u32 s{T}, s{T}, {WS_RPF}"); K(f"v_and_b32 v{A_PA}, 7, v{V_LANE}"); K(f"v_lshl_add_u32 v{A_PA}, v{A_PA}, 7, s{T}")
    K(f"s_mul_i32 s{S_RS}, s{S_J}, {3*28672}"); K(f"s_mul_i32 s{S_P3}, s{S_A}, 7168"); K(f"s_add_u32 s{S_RS}, s{S_RS}, s{S_P3}"); K(f"s_add_u32 s{S_RS}, s{S_RS}, {WS_WQ}")
    K("s_waitcnt lgkmcnt(0)")
    settag()
    if rpa:
        K(f"s_cmp_lt_u32 s{S_J}, 14")
        K.branch("s_cbranch_scc1 L_norb")
        K.wait_vm(vm0)
        K("s_barrier")
        K.label("L_norb")
    if fine: stamp("A_setup")
    tkx = {}
    def g_panel(p, lds):
        def step(q):
            def f():
                if q % 4 == 0: K(f"s_add_u32 s{TD}, s{S_RS}, {28672*p + (q // 4)*4096}"); K(f"s_add_u32 m0, s{S_P3}, {lds + (q // 4)*4096}")
                tkx[p] = K(f"buffer_load_dwordx4 v{V_L16}, {srd(R_WS)}, s{TD} offen offset:{1024*(q%4)} sc1 lds")
            return f
        return [step(q) for q in range(7)]
    for t in range(7):
        issue_to(8*(t+1) + (LA0 if t == 0 else LA), t - 1)
        shift(range(A_AX, A_AX + 4), SH[t])
        if t == 5:
            assert pos[0] == len(ilist)
            tkp = vpoll_issue(A_PA)
        if fine: stamp(f"A{t}a")
        K.wait_vm(tk_stage[t])
        if fine: stamp(f"A{t}b")
        if t < 6:
            if t >= 2: K("s_waitcnt lgkmcnt(4)")
            K("s_barrier")
        else: arrive(C_S)
        if t in (0, 4, 6): stamp(f"A_b{t}")
        for ksl in range(4): K(f"ds_read_b128 {vr(V_X + 16*t + 4*ksl, 4)}, v{A_AX+ksl} offset:{(t % 2) * 32768}")
    arrive(C_E)
    vpoll_check(tkp, A_PA)
    stamp("rp_seen")
    run(g_panel(1, L_K) + g_panel(2, L_V))
    stamp("kv_issued")
    K(f"s_mov_b32 s{S_K}, {f2u(L2E):#x}"); K(f"s_mov_b32 s{S_K+1}, {f2u(L2E):#x}")
    VPH, VB = V_W + 24, V_W + 16
    for s in range(2):
        for r in range(2): K(f"ds_read_b64_tr_b16 {vr(VPH + 4*s + 2*r, 2)}, v{A_PH} offset:{(16*s + 8*r)*56}")
    K(f"s_lshl_b32 s{T}, s{S_A}, 11"); K(f"s_lshl_b32 s{T+1}, s{S_H}, 13"); K(f"s_add_u32 s{S_HB}, s{T+1}, s{T}"); K(f"s_add_u32 s{S_PE}, s{S_HB}, {WS_KVF}"); K(f"s_add_u32 s{S_HB}, s{S_HB}, {WS_KVP}")
    K(f"s_lshl_b32 s{T+3}, s{S_MT}, 7"); K(f"s_add_u32 s{S_FL}, s{S_PE}, s{T+3}")
    FL_K = [(S_PE, 128*u) for u in range(16)]
    K(f"s_lshl_b32 s{T}, s{S_MT}, 2"); K(f"s_add_u32 s{T}, s{T}, s{S_A}"); K(f"s_lshl_b32 s{T}, s{T}, 4"); K(f"s_add_u32 s{T}, s{T}, s{S_H}")
    K(f"s_lshl_b32 s{S_OB}, s{T}, 11"); K(f"s_add_u32 s{S_OB}, s{S_OB}, {WS_O}")
    K(f"s_lshl_b32 s{T+2}, s{T}, 7"); K(f"s_add_u32 s{S_FL2}, s{T+2}, {WS_OF}"); K(f"s_add_u32 s{S_XB}, s{T+2}, {WS_G - 128}")
    IDR = [26, 27, 28, 29, V_PHI, V_PHI+1, V_PHI+2, V_PHI+3]
    K(f"v_and_b32 v{t0}, 31, v{V_LANE}"); K(f"v_lshrrev_b32 v{t1}, 5, v{V_LANE}"); K(f"v_lshlrev_b32 v{t1}, 2, v{t1}")
    K(f"v_sub_u32 v{t0}, v{t0}, v{t1}")
    K(f"v_and_b32 v{t1}, 1, v{V_LANE}"); K(f"v_lshlrev_b32 v{t1}, 4, v{t1}"); K(f"v_mov_b32 v{t2}, 0x3f80"); K(f"v_lshlrev_b32 v{t1}, v{t1}, v{t2}")
    K(f"v_and_b32 v{t0}, -2, v{t0}")
    for s in range(2):
        for q in range(4): K(f"v_cmp_eq_u32 {sp(T+2*q)}, {16*s + 8*(q // 2) + 2*(q % 2)}, v{t0}")
        for q in range(4): K(f"v_cndmask_b32 v{IDR[4*s+q]}, 0, v{t1}, {sp(T+2*q)}")
    if aw2: K(f"s_cmp_eq_u32 s{S_ACT}, 1"); K(f"s_cselect_b32 s{R_W2+2}, s{R_W2+2}, 0")
    if aw2 == 1:
        await_(C_E, 8, 1)
        run(g_w2(0))
        K.wait_vm(tkx[2]); arrive(C_0)
        run(g_w2(1))
        if qd < 0: run(g_panel(0, L_Q))
    else: K.wait_vm(tkx[2]); arrive(C_0)
    stamp("kv_landed0")
    if aw2 == 1: K.wait_vm(tk_r[1]); arrive(C_B)
    await_(C_0, 4, 1)
    K(f"v_cndmask_b32 v{VPH+6}, v{VPH+6}, 0, {UPM}"); K(f"v_cndmask_b32 v{VPH+7}, v{VPH+7}, 0, {UPM}")
    await_(C_G if gw >= 0 else C_E, 4 if gw >= 0 else 8, 1)
    stamp("kv_start")

    def gemm_qkv(panels, hook=None):
        nb = len(panels) * 4
        D = 3 if len(panels) == 2 else 6
        tk = {}
        for n, (off, acc, sw) in enumerate(panels): K(f"v_add_u32 v{A_AX+n}, {off}, v{A_TR}")
        def rd(ks, n):
            t, ksl = ks // 4, ks % 4
            b = V_W + nb * (ks % D)
            if ksl == 0: K(f"v_add_u32 v{A_AD + n}, s{S_CHO+t}, v{A_AX+n}")
            for r in range(2):
                tk[ks] = K(f"ds_read_b64_tr_b16 {vr(b + 4*n + 2*r, 2)}, v{A_AD + n} offset:{(16*ksl + 4*r)*64}")
        for k in range(D):
            for n in range(len(panels)): rd(k, n)
        for ks in range(28):
            K.wait_lg(tk[ks])
            b = V_W + nb * (ks % D)
            for n, (off, acc, sw) in enumerate(panels):
                wv, xv = b + 4*n, V_X + 4*ks
                if sw: mfma(acc, xv, wv, "0" if ks == 0 else None)
                else: mfma(acc, wv, xv, "0" if ks == 0 else None)
                if ks + D < 28: rd(ks + D, n)
            if hook: hook(ks)
    QP = V_W
    P = V_ACC
    def featmap():
        for e in range(8): K(f"v_cvt_pk_bf16_f32 v{QP+e}, v{V_ACC+2*e}, v{V_ACC+2*e+1}")
        mfma(P, VPH, QP, "0"); mfma(P, VPH + 4, QP + 4)
    def softmax(pk):
        for e in range(4): K(f"v_cndmask_b32 v{P+12+e}, v{P+12+e}, v{P}, {UPM}")
        mx, mn = t0, t2
        K(f"v_max3_f32 v{mx}, v{P}, v{P+1}, v{P+2}"); K(f"v_min3_f32 v{mn}, v{P}, v{P+1}, v{P+2}")
        K(f"v_max3_f32 v{t1}, v{P+3}, v{P+4}, v{P+5}"); K(f"v_min3_f32 v{t3}, v{P+3}, v{P+4}, v{P+5}")
        for e in range(6, 14, 4):
            K(f"v_max3_f32 v{mx}, v{mx}, v{P+e}, v{P+e+1}"); K(f"v_min3_f32 v{mn}, v{mn}, v{P+e}, v{P+e+1}")
            K(f"v_max3_f32 v{t1}, v{t1}, v{P+e+2}, v{P+e+3}"); K(f"v_min3_f32 v{t3}, v{t3}, v{P+e+2}, v{P+e+3}")
        K(f"v_max3_f32 v{mx}, v{mx}, v{P+14}, v{P+15}"); K(f"v_min3_f32 v{mn}, v{mn}, v{P+14}, v{P+15}")
        K(f"v_max_f32 v{mx}, v{mx}, v{t1}"); K(f"v_min_f32 v{mn}, v{mn}, v{t3}")
        K(f"v_mov_b32 v{t1}, v{mx}"); K(f"v_mov_b32 v{t3}, v{mn}")
        K(f"v_permlane32_swap_b32 v{mx}, v{t1}"); K(f"v_permlane32_swap_b32 v{mn}, v{t3}")
        K(f"v_max_f32 v{mx}, v{mx}, v{t1}"); K(f"v_min_f32 v{mn}, v{mn}, v{t3}")
        K(f"v_mul_f32 v{mx}, s{S_K}, v{mx}"); K(f"v_mul_f32 v{mn}, s{S_K}, v{mn}")
        EP, EN = V_P, V_P + 16
        for e in range(0, 16, 2):
            if pk:
                K(f"v_pk_fma_f32 {vr(EP+e,2)}, {vr(P+e,2)}, {sp(S_K)}, {vr(mx,2)} op_sel_hi:[1,1,0] neg_lo:[0,0,1] neg_hi:[0,0,1]")
                K(f"v_pk_fma_f32 {vr(EN+e,2)}, {vr(P+e,2)}, {sp(S_K)}, {vr(mn,2)} op_sel_hi:[1,1,0] neg_lo:[1,0,0] neg_hi:[1,0,0]")
            else:
                for x in (e, e + 1):
                    K(f"v_fma_f32 v{EP+x}, v{P+x}, s{S_K}, -v{mx}"); K(f"v_fma_f32 v{EN+x}, -v{P+x}, s{S_K}, v{mn}")
        for e in range(16):
            K(f"v_exp_f32 v{EP+e}, v{EP+e}"); K(f"v_exp_f32 v{EN+e}, v{EN+e}")
        S = V_W
        for n, E in enumerate((EP, EN)):
            padd(S+4*n, E, E+2, pk); padd(S+4*n+2, E+12, E+14, pk)
        for n, E in enumerate((EP, EN)):
            padd(S+4*n, S+4*n, E+4, pk)
            K(f"v_cndmask_b32 v{S+4*n+2}, v{S+4*n+2}, 0, {UPM}"); K(f"v_cndmask_b32 v{S+4*n+3}, v{S+4*n+3}, 0, {UPM}")
        for n, E in enumerate((EP, EN)):
            padd(S+4*n, S+4*n, E+6, pk); padd(S+4*n+2, S+4*n+2, E+8, pk)
        for n, E in enumerate((EP, EN)): padd(S+4*n, S+4*n, E+10, pk)
        for n in range(2): padd(S+4*n, S+4*n, S+4*n+2, pk)
        K(f"v_add_f32 v{t0}, v{S}, v{S+1}"); K(f"v_add_f32 v{t2}, v{S+4}, v{S+5}")
        K(f"v_mov_b32 v{t1}, v{t0}"); K(f"v_mov_b32 v{t3}, v{t2}")
        K(f"v_permlane32_swap_b32 v{t0}, v{t1}"); K(f"v_permlane32_swap_b32 v{t2}, v{t3}")
        K(f"v_add_f32 v{t0}, v{t0}, v{t1}"); K(f"v_add_f32 v{t2}, v{t2}, v{t3}")
        K(f"v_rcp_f32 v{t0}, v{t0}"); K(f"v_rcp_f32 v{t2}, v{t2}")
        K(f"v_cndmask_b32 v{t1}, v{t0}, 0, {UPM}"); K(f"v_cndmask_b32 v{t3}, v{t2}, 0, {UPM}")
        for e in range(0, 16, 2):
            pscale(EP+e, t0 if e < 12 else t1, pk); pscale(EN+e, t2 if e < 12 else t3, pk)
        for e in range(8):
            K(f"v_cvt_pk_bf16_f32 v{V_PHI+e}, v{EP+2*e}, v{EP+2*e+1}"); K(f"v_cvt_pk_bf16_f32 v{V_PHI+8+e}, v{EN+2*e}, v{EN+2*e+1}")

    if aw2 == 2: pend.extend(g_w2(0) + g_w2(1))
    if qd >= 0: pend.extend(g_panel(0, L_Q))
    def hook(ks):
        if aw2 == 2:
            drip(1)
            if ks == cb: K.wait_vm(tk_r[1]); arrive(C_B)
        elif ks >= qd and (ks - qd) % 3 == 0: drip(1)
        if ks == 25: arrive(C_1)
    gemm_qkv([(L_K, V_ACC, False), (L_V, V_ACC + 16, True)], hook)
    featmap()
    assert not pend
    for e in range(4): K(f"v_mov_b32 v{V_W+8+e}, v{V_PHI+e}")
    IDR[4] = V_W + 8
    stamp("kv_gemm")
    K(f"v_mov_b32 v{t4}, 0x3f803f80")
    for e in range(8): K(f"v_cvt_pk_bf16_f32 v{VB+e}, v{V_ACC+16+2*e}, v{V_ACC+16+2*e+1}")
    for e in range(8): K(f"v_cndmask_b32 v{VB+e}, v{VB+e}, v{t4}, {sp(S_L28)}")
    softmax(pkk)
    stamp("sm_k")
    TP, TN = V_P, V_P + 16
    mfma(TP, V_PHI, IDR[0], "0"); mfma(TP, V_PHI + 4, IDR[4])
    mfma(TN, V_PHI + 8, IDR[0], "0"); mfma(TN, V_PHI + 12, IDR[4])
    await_(C_1, 4)
    if f2: stamp("kv_a")
    K(f"s_lshl_b32 s{T}, s{S_A}, 13"); K(f"s_add_u32 s{T}, s{T}, {L_KVS}"); K(f"v_add_u32 v{t0}, s{T}, v{V_L16}")
    K(f"s_lshl_b32 s{T}, s{S_A}, 11"); K(f"s_add_u32 s{T}, s{T}, {L_KVS}"); K(f"v_add_u32 v{t1}, s{T}, v{V_L16}")
    for e in range(8): K(f"v_cvt_pk_bf16_f32 v{V_PHI+e}, v{TP+2*e}, v{TP+2*e+1}")
    mfma(V_ACC, V_PHI, VB, "0"); mfma(V_ACC, V_PHI + 4, VB + 4)
    for e in range(8): K(f"v_cvt_pk_bf16_f32 v{V_PHI+8+e}, v{TN+2*e}, v{TN+2*e+1}")
    mfma(V_ACC + 16, V_PHI + 8, VB, "0"); mfma(V_ACC + 16, V_PHI + 12, VB + 4)
    for b in range(8): K(f"ds_write_b128 v{t0}, {vr(V_ACC+4*b,4)} offset:{1024*b}")
    arrive(C_2)
    if f2: stamp("kv_b")
    await_(C_2, 4)
    if f2: stamp("kv_c")
    for hb in range(2):
        for g in range(4): K(f"ds_read_b128 {vr(V_P+16*hb+4*g,4)}, v{t1} offset:{8192*g + 1024*hb}")
    arrive(C_3)
    if f2: stamp("kv_d")
    for hb in range(2):
        K(f"s_waitcnt lgkmcnt({5 - 4*hb})")
        B = V_P + 16*hb
        for e in (0, 2): padd(B+e, B+e, B+4+e, pkq); padd(B+8+e, B+8+e, B+12+e, pkq)
        for e in (0, 2): padd(B+e, B+e, B+8+e, pkq)
        for e in range(4): K(f"buffer_atomic_add_f32 v{B+e}, v{A_L4}, {srd(R_WS)}, s{S_HB} offen offset:{1024*hb + 256*e}")
    stamp("kv_st")
    K.wait_vm(tkx[0]); arrive(C_5); await_(C_5, 4)
    def hook(ks):
        if ks == 22: arrive(C_Q)
        if ks == kvf:
            K("s_waitcnt vmcnt(0)")
            flag(S_FL)
            stamp("kv_pub")
    gemm_qkv([(L_Q, V_ACC, False)], hook)
    K(f"v_cvt_pk_bf16_f32 v{t0}, v{V_ACC+12}, v{V_ACC+12}")
    featmap()
    K(f"v_lshlrev_b32 v{t0}, 16, v{t0}")
    K(f"v_mul_f32 v{t0}, s{S_K}, v{t0}"); K(f"v_exp_f32 v{t0}, -v{t0}"); K(f"v_add_f32 v{t0}, 1.0, v{t0}"); K(f"v_rcp_f32 v{t0}, v{t0}")
    K(f"v_cvt_pk_bf16_f32 v{t0}, v{t0}, v{t0}"); K(f"v_lshlrev_b32 v{A_G}, 16, v{t0}")
    K("s_mov_b32 exec_lo, 0")
    K(f"buffer_store_dword v{A_G}, v{A_L4}, {srd(R_WS)}, s{S_XB} offen sc1")
    K("s_mov_b32 exec_lo, -1")
    stamp("q_gemm")
    softmax(pkq)
    stamp("sm_q")
    poll_issue(FL_K)
    poll_check(FL_K)
    stamp("kv_seen")
    for e in range(8): K(f"buffer_load_dword v{V_P+e}, v{A_L4}, {srd(R_WS)}, s{S_HB} offen offset:{256*e} sc1")
    F = V_W
    K(f"s_lshl_b32 s{T}, s{S_A}, 10"); K(f"v_add_u32 v{t1}, {L_KVF}, v{V_L16}"); K(f"v_add_u32 v{t0}, s{T}, v{t1}")
    K("s_waitcnt vmcnt(0)")
    stamp("kv_landed")
    for e in range(4): K(f"v_cvt_pk_bf16_f32 v{F+e}, v{V_P+2*e}, v{V_P+2*e+1}")
    K(f"ds_write_b128 v{t0}, {vr(F,4)}")
    arrive(C_4)
    await_(C_4, 4)
    if f2: stamp("o_a")
    for f in range(4): K(f"ds_read_b128 {vr(F+4*f,4)}, v{t1} offset:{1024*f}")
    N = V_ACC
    for f in range(4):
        K(f"s_waitcnt lgkmcnt({3-f})")
        mfma(N, F + 4*f, V_PHI + 4*f, "0" if f == 0 else None)
    K(f"v_cvt_pk_bf16_f32 v{t0}, v{N+12}, v{N+12}")
    for e in range(8): K(f"v_cvt_pk_bf16_f32 v{F+e}, v{N+2*e}, v{N+2*e+1}")
    K(f"v_lshlrev_b32 v{t0}, 16, v{t0}")
    K(f"v_add_f32 v{t0}, {f2u(1e-6):#x}, v{t0}")
    K(f"v_cvt_pk_bf16_f32 v{t0}, v{t0}, v{t0}"); K(f"v_lshlrev_b32 v{t0}, 16, v{t0}")
    K(f"v_rcp_f32 v{t0}, v{t0}")
    for e in range(4):
        K(f"v_lshlrev_b32 v{N+2*e}, 16, v{F+e}"); K(f"v_and_b32 v{N+2*e+1}, 0xffff0000, v{F+e}")
    K(f"v_mul_f32 v{t0}, v{t0}, v{A_G}"); K(f"v_mov_b32 v{t1}, v{t0}")
    for e in range(4, 8):
        K(f"v_lshlrev_b32 v{N+2*e}, 16, v{F+e}"); K(f"v_and_b32 v{N+2*e+1}, 0xffff0000, v{F+e}")
    K(f"v_permlane32_swap_b32 v{t1}, v{t0}")
    for e in range(0, 16, 2): pscale(N+e, t0, pkq)
    for e in range(8): K(f"v_cvt_pk_bf16_f32 v{F+e}, v{N+2*e}, v{N+2*e+1}")
    K(f"v_cndmask_b32 v{F+6}, v{F+6}, 0, {UPM}"); K(f"v_cndmask_b32 v{F+7}, v{F+7}, 0, {UPM}")
    K(f"buffer_store_dwordx4 {vr(F,4)}, v{V_L16}, {srd(R_WS)}, s{S_OB} offen sc1")
    K(f"buffer_store_dwordx4 {vr(F+4,4)}, v{V_L16}, {srd(R_WS)}, s{S_OB} offen offset:1024 sc1")
    if f2: stamp("o_b")
    K("s_waitcnt vmcnt(0)")
    flag(S_FL2)
    stamp("o_pub")
    K(f"s_cmp_eq_u32 s{S_ACT}, 0")
    K.branch("s_cbranch_scc1 L_fin")
    K.branch("s_branch L_red")

    K.label("L_M")
    if prioM: K(f"s_setprio {prioM}")
    K("s_waitcnt lgkmcnt(0)")
    if stamps: K(f"v_writelane_b32 v{V_STAMP}, s{S_ST}, {STAMP_IDS.setdefault('start', len(STAMP_IDS))}")
    K(f"s_load_dword s{S_E}, {sp(P_WS)}, {WS_EPOCH}")
    mksrd(R_T, P_B1, 3584)
    K(f"s_lshl_b32 s{T+1}, s{S_A}, 8"); K(f"s_add_u32 m0, s{T+1}, {L_B1}")
    K("s_mov_b64 exec, 0xffff")
    tk_b1 = K(f"buffer_load_dwordx4 v{V_L16}, {srd(R_T)}, s{S_W1B} offen lds")
    K("s_mov_b64 exec, -1")
    mksrd(R_T, P_PHI, 16*1568)
    K(f"s_mul_i32 s{T}, s{S_J}, 1568"); K(f"s_mul_i32 s{T+1}, s{S_A}, 400"); K(f"s_add_u32 s{T}, s{T}, s{T+1}"); K(f"s_add_u32 m0, s{T+1}, {L_PHI}")
    K("s_mov_b64 exec, 0x1ffffff")
    K(f"buffer_load_dwordx4 v{V_L16}, {srd(R_T)}, s{T} offen lds")
    K("s_mov_b64 exec, -1")
    K(f"v_mov_b32 v{V_CNT}, {L_CNT}")
    K(f"v_mov_b32 v{t0}, 0"); K(f"v_lshl_add_u32 v{t1}, v{V_LANE}, 2, v{V_CNT}"); K(f"ds_write_b32 v{t1}, v{t0}")
    K(f"s_cmp_lt_u32 s{S_J}, 14")
    K.branch("s_cbranch_scc1 L_mset")
    K("s_waitcnt lgkmcnt(0)")
    for t in range(6):
        if t == 5: K("s_waitcnt vmcnt(0)")
        K("s_barrier")
    arrive(C_E); arrive(C_G)
    K("s_setprio 0")
    K.label("L_mset")
    mksrd(R_WS, P_WS, WS_SIZE); mksrd(R_WO, P_WO, 448*896); mksrd(R_OUT, P_OUT, 2048*896)
    p2setup()
    K(f"s_mul_i32 s{T}, s{S_ROW}, {112*1024}"); K(f"s_add_u32 s{T}, s{T}, {WS_H}")
    K(f"s_lshl_b32 s{S_HB}, s{T+4}, 12"); K(f"s_add_u32 s{S_HB}, s{S_HB}, s{T}")
    K(f"s_lshl_b32 s{S_HB3}, s{T+2}, 12"); K(f"s_add_u32 s{S_HB3}, s{S_HB3}, s{T}")
    mksrd(R_T, P_B2, 896)
    K(f"s_lshl_b32 s{T}, s{S_CT}, 7"); K(f"s_lshl_b32 s{T+1}, s{S_A}, 10"); K(f"s_add_u32 s{T}, s{T}, s{T+1}")
    K(f"s_lshl_b32 s{T+1}, s{S_A}, 7"); K(f"s_add_u32 m0, s{T+1}, {L_B2}")
    K("s_mov_b64 exec, 0xff")
    tk_b2 = K(f"buffer_load_dwordx4 v{V_L16}, {srd(R_T)}, s{T} offen lds")
    K("s_mov_b64 exec, -1")
    K(f"s_lshl_b32 s{T}, s{S_ROW}, 12"); K(f"s_add_u32 s{T}, s{T}, {WS_HF}")
    K(f"s_lshl_b32 s{S_PE}, s{T+4}, 7"); K(f"s_add_u32 s{S_PE}, s{S_PE}, s{T}")
    K(f"s_lshl_b32 s{S_P3}, s{T+2}, 7"); K(f"s_add_u32 s{S_P3}, s{S_P3}, s{T}")
    K(f"s_lshl_b32 s{T}, s{S_ROW}, 4"); K(f"s_lshl_b32 s{T+1}, s{S_A}, 2"); K(f"s_add_u32 s{S_OB}, s{T+1}, s{T}")
    K(f"s_lshl_b32 s{S_PO}, s{S_OB}, 7"); K(f"s_add_u32 s{S_PO}, s{S_PO}, {WS_OF}")
    FL_E = [(S_PE, 4096*r + 256*u) for r in range(2) for u in range(3)]
    FL_L = [(S_PE, 4096*r + 256*u + 128) for r in range(2) for u in range(3)] + [(S_P3, 0), (S_P3, 4096)]
    FL_O = [(S_PO, 2048*r + 128*u) for r in range(2) for u in range(4)]
    if stl:
        for so, im in ((S_PE, 0), (S_PE, 4096), (S_PO, 0), (S_PO, 2048)): K(f"s_load_dword s{S_CNT}, {sp(P_WS)}, s{so} offset:{im} glc")
    K(f"s_lshl_b32 s{T}, s{S_MT}, 2"); K(f"s_add_u32 s{T}, s{T}, s{S_A}"); K(f"s_mul_i32 s{S_RS}, s{T}, 112")
    K(f"s_lshl_b32 s{T+1}, s{S_J}, 3"); K(f"s_add_u32 s{S_RS}, s{S_RS}, s{T+1}"); K(f"s_lshl_b32 s{S_RS}, s{S_RS}, 10"); K(f"s_add_u32 s{S_RS}, s{S_RS}, {WS_H}")
    K(f"s_lshl_b32 s{S_FL}, s{T}, 4"); K(f"s_add_u32 s{S_FL}, s{S_FL}, s{S_J}"); K(f"s_lshl_b32 s{S_FL}, s{S_FL}, 8"); K(f"s_add_u32 s{S_FL}, s{S_FL}, {WS_HF}")
    K(f"s_add_u32 s{S_FL2}, s{S_FL}, 128")
    K(f"v_add_u32 v{M_L16B}, {112*1024}, v{V_L16}")
    MP = M_AR + 40
    K(f"v_lshlrev_b32 v{MP}, 7, v{V_LANE}")
    K(f"s_lshl_b32 s{T+3}, s2, 2"); K(f"s_add_u32 s{T+3}, s{T+3}, s{S_A}")
    K(f"s_mul_i32 s{S_XB}, s{T+3}, {13*128}"); K(f"s_lshl_b32 s{S_M0}, s{T+3}, 9")
    def mall_pf():
        K("s_mov_b64 exec, 0x1fff")
        K(f"buffer_load_dword v{V_POLL}, v{MP}, {srd(R_W2)}, s{S_XB} offen")
        K("s_mov_b64 exec, 15")
        K(f"buffer_load_dword v{V_POLL}, v{MP}, {srd(R_WO)}, s{S_M0} offen")
        K("s_mov_b64 exec, -1")
    if mpf == 1: mall_pf()
    if tlb:
        l = newl("tlb")
        K(f"s_cmp_lg_u32 s{S_A}, 1")
        K.branch(f"s_cbranch_scc1 {l}")
        K(f"v_lshlrev_b32 v{t0}, {tlb}, v{V_LANE}")
        K(f"buffer_load_dword v{V_POLL}, v{t0}, {srd(R_WS)}, 0 offen offset:2048"); K.vm -= 1
        K(f"buffer_load_dword v{V_POLL}, v{t0}, {srd(R_OUT)}, 0 offen"); K.vm -= 1
        K.label(l)
    xfrag_addr(M_AX)
    lanepart()
    K(f"v_lshl_add_u32 v{t0}, v{t2}, 3, v{t3}"); K(f"v_lshl_add_u32 v{t0}, v{t0}, 8, v{t4}"); K(f"v_lshl_add_u32 v{t0}, v{t3}, 6, v{t0}")
    K(f"v_add_u32 v{M_AW}, 16384, v{t0}")
    for p in range(1, 4): K(f"v_xor_b32 v{M_AW+p}, {64*p}, v{M_AW}")
    AB = M_AB
    K(f"v_lshl_add_u32 v{t0}, v{t2}, 2, v{t3}"); K(f"v_lshl_add_u32 v{t0}, v{t0}, 7, v{t4}"); K(f"v_bfe_u32 v{t1}, v{V_LANE}, 3, 1"); K(f"v_lshl_add_u32 v{t0}, v{t1}, 6, v{t0}")
    K(f"v_add_u32 v{AB}, s{S_M02}, v{t0}"); K(f"v_xor_b32 v{AB+1}, 64, v{AB}")
    K(f"v_add_u32 v{AB+2}, 65536, v{AB}"); K(f"v_add_u32 v{AB+3}, 65536, v{AB+1}")
    K(f"v_lshlrev_b32 v{t0}, 9, v{t2}"); K(f"v_sub_u32 v22, v{AB+2}, v{t0}"); K(f"v_sub_u32 v23, v{AB+3}, v{t0}")
    K(f"s_lshl_b32 s{T}, s{S_A}, 7"); K(f"s_add_u32 s{T}, s{T}, {L_B2}"); K(f"v_lshl_add_u32 v0, v{t2}, 3, s{T}")
    K(f"s_lshl_b32 s{T}, s{S_A}, 8"); K(f"s_add_u32 s{T}, s{T}, {L_B1}"); K(f"v_lshl_add_u32 v{t0}, v{t2}, 3, s{T}")
    box = {}
    K(f"s_cmp_ge_u32 s{S_J}, 14")
    K.branch("s_cbranch_scc1 L_nof")
    vm_nof = K.vm
    K.wait_vm(tk_b1)
    for q in range(8): K(f"ds_read2_b64 {vr(M_AR+4*q,4)}, v{t0} offset0:{4*q} offset1:{4*q+2}")
    K("s_waitcnt lgkmcnt(0)")
    settag()
    for q in range(32):
        K(f"v_lshlrev_b32 v{M_ACC+2*q}, 16, v{M_AR+q}")
        K(f"v_and_b32 v{M_ACC+2*q+1}, 0xffff0000, v{M_AR+q}")
    if fine: stamp("M_rdy")
    WR, XR = M_BH, M_BH + 4*G
    tk = {}
    def rdg(g):
        ks, p = g // 4, g % 4
        t, ksl = ks // 4, ks % 4
        uo = (t % 2) * 32768
        if p == 0 and ksl == 0:
            shift(range(M_AX, M_AX + 8), SH[t])
            if t == 3: K.wait_vm(tk_b2)
            if t < 6: K("s_barrier")
            else:
                l = newl("s6")
                K.wait_lg(box['cs'])
                K(f"v_cmp_ne_u32 vcc, 4, v{t4}")
                K(f"s_cbranch_vccz {l}")
                lgs = K.lg
                await_(C_S, 4)
                K.lg = lgs
                K.raw(f"{l}:")
        if p == 0: K(f"ds_read_b128 {vr(XR + 4*(ks % 3), 4)}, v{M_AX+ksl} offset:{uo}")
        for r in range(2):
            tk[g] = K(f"ds_read_b64_tr_b16 {vr(WR + 4*(g % G) + 2*r, 2)}, v{M_AW+p} offset:{uo + (16*ksl + 4*r)*256}")
    for g in range(G): rdg(g)
    for g in range(112):
        K.wait_lg(tk[g])
        mfma(M_ACC + 16*(g % 4), WR + 4*(g % G), XR + 4*((g // 4) % 3))
        if g + G < 112: rdg(g + G)
        if g + G == 112: arrive(C_E)
        if g + G + 3 == 96: box['cs'] = K(f"ds_read_b32 v{t4}, v{V_CNT} offset:{C_S}")
        if mpf > 1 and g == mpf: mall_pf()
    stamp("ffn1")
    K(f"s_setprio {prioG}")
    cc = -2.0 * 0.7978845608028654 * 1.4426950408889634
    K(f"v_mov_b32 v{t0}, {f2u(cc):#x}"); K(f"v_mov_b32 v{t1}, 1.0"); K(f"s_mov_b32 s{S_K}, {f2u(cc*0.044715):#x}"); K(f"s_mov_b32 s{S_K+1}, {f2u(cc*0.044715):#x}")
    tkh = {}
    for g in range(8):
        a = M_ACC + 8*g; tt = M_AR + 8*(g % 2); o = M_AR + 48 + 4*g
        if g < pkg:
            for e in range(0, 8, 2): K(f"v_pk_mul_f32 {vr(tt+e,2)}, {vr(a+e,2)}, {vr(a+e,2)}")
            for e in range(0, 8, 2): K(f"v_pk_fma_f32 {vr(tt+e,2)}, {vr(tt+e,2)}, {sp(S_K)}, {vr(t0,2)} op_sel_hi:[1,1,0]")
            for e in range(0, 8, 2): K(f"v_pk_mul_f32 {vr(tt+e,2)}, {vr(a+e,2)}, {vr(tt+e,2)}")
            for e in range(8): K(f"v_exp_f32 v{tt+e}, v{tt+e}")
            for e in range(0, 8, 2): K(f"v_pk_add_f32 {vr(tt+e,2)}, {vr(tt+e,2)}, {vr(t0,2)} op_sel:[0,1] op_sel_hi:[1,1]")
            for e in range(8): K(f"v_rcp_f32 v{tt+e}, v{tt+e}")
            for e in range(0, 8, 2): K(f"v_pk_mul_f32 {vr(tt+e,2)}, {vr(a+e,2)}, {vr(tt+e,2)}")
        else:
            for e in range(8): K(f"v_mul_f32 v{tt+e}, v{a+e}, v{a+e}")
            for e in range(8): K(f"v_fma_f32 v{tt+e}, v{tt+e}, s{S_K}, v{t0}")
            for e in range(8): K(f"v_mul_f32 v{tt+e}, v{a+e}, v{tt+e}")
            for e in range(8): K(f"v_exp_f32 v{tt+e}, v{tt+e}")
            for e in range(8): K(f"v_add_f32 v{tt+e}, 1.0, v{tt+e}")
            for e in range(8): K(f"v_rcp_f32 v{tt+e}, v{tt+e}")
            for e in range(8): K(f"v_mul_f32 v{tt+e}, v{a+e}, v{tt+e}")
        for e in range(4): K(f"v_cvt_pk_bf16_f32 v{o+e}, v{tt+2*e}, v{tt+2*e+1}")
        if g == gw: arrive(C_G)
        if (g + 1) % sb == 0:
            K("s_setprio 3")
            for x in range(g + 1 - sb, g + 1):
                if x == 4: K(f"s_add_u32 s{S_RS}, s{S_RS}, 4096")
                tkh[x] = K(f"buffer_store_dwordx4 {vr(M_AR + 48 + 4*x,4)}, v{V_L16}, {srd(R_WS)}, s{S_RS} offen offset:{1024*(x%4)} sc1")
            if g < 7: K(f"s_setprio {prioG}")
    stamp("gelu_v")
    K.wait_vm(tkh[3]); flag(S_FL)
    stamp("gelu")
    K(f"s_cmp_eq_u32 s{S_ACT}, 1")
    K.branch("s_cbranch_scc1 L_p2")
    K("s_waitcnt vmcnt(0)")
    flag(S_FL2)
    K.branch("s_branch L_fin")
    K.label("L_nof")
    K.vm = vm_nof
    K("s_waitcnt lgkmcnt(0)")
    settag()
    if mpf > 1: mall_pf()
    K("s_waitcnt vmcnt(0)")

    K.label("L_p2")
    tk_h = K.vm
    def g_wo(hf):
        def step(q):
            def f():
                if q == 0:
                    K(f"s_mul_i32 s{TD}, s{S_A}, {112*896}"); K(f"s_lshl_b32 s{TD+1}, s{S_CT}, 7"); K(f"s_add_u32 s{TD}, s{TD}, s{TD+1}")
                    if hf: K(f"s_add_u32 s{TD}, s{TD}, {56*896}")
                    K(f"s_add_u32 m0, s{S_M02}, {U[RUNIT[7+hf]]}")
                if q == 4: K(f"s_add_u32 s{TD}, s{TD}, {32*896}"); K(f"s_add_u32 m0, s{S_M02}, {U[RUNIT[7+hf]] + 4096}")
                x = K(f"buffer_load_dwordx4 v{V_D2+q%4}, {srd(R_WO)}, s{TD} offen offset:{1024*(q%4)} lds")
                if q == 6: tk_r[7+hf] = x
            return f
        return [step(q) for q in range(7)]
    tk = {}
    def rdb(ks, part=3):
        r, ksl = ks // 4, ks % 4
        b = M_BH + 8 * (ks % 8)
        u = RUNIT[r]
        if ksl == 0 and r >= 2 and part & 1: K.wait_vm(tk_r[r])
        for pp in range(2):
            for h in range(2):
                if not part & (1 << pp): continue
                if r < 7:
                    tk[ks] = K(f"ds_read_b64_tr_b16 {vr(b + 4*pp + 2*h, 2)}, v{AB + pp + (2 if u >= 2 else 0)} offset:{(u%2)*32768 + (16*ksl + 8*h)*128}")
                else:
                    hh, sx = (ks % 4) // 2, ks % 2
                    tk[ks] = K(f"ds_read_b64_tr_b16 {vr(b + 4*pp + 2*h, 2)}, v{(22 if (sx == 1 and h == 1) else AB + 2) + pp} offset:{(u%2)*32768 + (28*hh + 16*sx + 8*h)*128}")
    tk_a = {}
    def lda(ks, part=3):
        b = M_AR + 8 * (ks % NA); r = ks // 4
        if part & 1:
            if ks % 4 == 0: K(f"s_add_u32 s{T+7}, s{S_HB3 if r == 3 else S_HB}, {0 if r == 3 else (2*r % 7)*4096}")
            K(f"buffer_load_dwordx4 {vr(b,4)}, v{V_L16}, {srd(R_WS)}, s{T+7} offen offset:{1024*(ks%4)} sc1")
        if part & 2: tk_a[ks] = K(f"buffer_load_dwordx4 {vr(b+4,4)}, v{M_L16B}, {srd(R_WS)}, s{T+7} offen offset:{1024*(ks%4)} sc1")
    B2T = M_AR + 80
    for q in range(4): K(f"ds_read2_b64 {vr(B2T+4*q,4)}, v0 offset0:{4*q} offset1:{4*q+2}")
    def unpack(e):
        for t2_ in range(2):
            K(f"v_lshlrev_b32 v{M_ACC+32*t2_+2*e}, 16, v{B2T+e}")
            K(f"v_and_b32 v{M_ACC+32*t2_+2*e+1}, 0xffff0000, v{B2T+e}")
    g0, g1, g2, g3 = g_w2(0), g_w2(1), g_w2(2), g_w2(3)
    if aw2:
        K("s_waitcnt lgkmcnt(0)")
        for e in range(16): unpack(e)
        K.wait_vm(tk_h - 1)
        flag(S_FL2)
        K(f"s_setprio 0")
        stamp("h_pub1")
        if hfirst:
            poll_issue(FL_E)
            poll_check(FL_E)
            stamp("hE_seen")
            for ks in range(pre): lda(ks)
        await_(C_B, 4)
        stamp("B_seen")
        for ks in range(3): rdb(ks)
        K.wait_lg(tk[0]); rdb(3)
        K.wait_lg(tk[3])
        for q in range(8):
            g2[q]()
            if q < 4:
                if q == 3: K.wait_lg(tk[4])
                rdb(4 + q)
        K("s_waitcnt lgkmcnt(0)")
        if not hfirst:
            poll_issue(FL_E)
            run(g3); g3 = []
            poll_check(FL_E)
            stamp("hE_seen")
            for ks in range(pre): lda(ks)
    else:
        await_(C_E, 8)
        for q in range(8):
            g0[q](); unpack(2*q); unpack(2*q + 1)
        K.wait_vm(tk_h - 1)
        flag(S_FL2)
        K(f"s_setprio 0")
        stamp("h_pub1")
        poll_issue(FL_E)
        run(g1)
        poll_check(FL_E)
        stamp("hE_seen")
        for ks in range(4): lda(ks)
        K.wait_vm(tk_r[0])
        for ks in range(4):
            if ks == 3: K.wait_lg(tk[0])
            rdb(ks); lda(4 + ks)
        K.wait_vm(tk_r[1]); K.wait_lg(tk[3])
        for q in range(8):
            g2[q]()
            if q < 4:
                if q == 3: K.wait_lg(tk[4])
                rdb(4 + q)
        K("s_waitcnt lgkmcnt(0)")
    stamp("p2_prep")
    poll_issue(FL_L)
    for ks in range(pre if aw2 else 8, 12): pend.extend([lambda ks=ks: lda(ks, 1), lambda ks=ks: lda(ks, 2)])
    pend.extend(g3)
    def step(ks, side):
        K.wait_vm(tk_a[ks])
        if ks >= 8: K.wait_lg(tk[ks])
        a = M_AR + 8 * (ks % NA); b = M_BH + 8 * (ks % 8)
        n = 0
        for t2_ in range(2):
            for pp in range(2):
                mfma(M_ACC + 32*t2_ + 16*pp, b + 4*pp, a + 4*t2_)
                side(n); n += 1
    nxt = [12]
    for ks in range(28):
        def side(n):
            if n < 2 and ks + 3 >= 8: rdb(ks + 3, 1 << n)
            drip(2 if len(pend) > 8 else 1)
        step(ks, side)
        if ks == c0:
            poll_check(FL_L)
            stamp("hL_seen")
        if ks == 7:
            await_(C_3, 4)
            pend.extend(g_w2(4))
        while ks >= c0 and nxt[0] <= ks + NA and nxt[0] < 28:
            pend.extend([lambda k=nxt[0]: lda(k, 1), lambda k=nxt[0]: lda(k, 2)]); nxt[0] += 1
        if ks == 11: pend.extend(g_w2(5))
        if ks == 15: pend.extend(g_w2(6))
        if ks == 17:
            await_(C_Q, 4)
            pend.extend(g_wo(0))
        if ks == 19: pend.extend(g_wo(1))
        if ks in (3, 11, 19): stamp(f"p2_k{ks}")
    assert not pend
    K("s_waitcnt lgkmcnt(4)")
    poll_issue(FL_O)
    stamp("p2_h_done")
    K(f"v_and_b32 v{t2}, 31, v{V_LANE}"); K(f"v_lshlrev_b32 v{t2}, 2, v{t2}")
    K(f"s_lshl_b32 s{T+3}, s{S_OB}, 7"); K(f"s_add_u32 s{T+3}, s{T+3}, {WS_G}")
    K(f"s_lshl_b32 s{T+4}, s{S_OB}, 11"); K(f"s_add_u32 s{T+4}, s{T+4}, {WS_O}")
    K(f"v_add_u32 v{M_L16B}, 32768, v{V_L16}")
    K(f"v_add_u32 v{V_D2}, s{S_M02}, v{V_L16}")
    for q in range(1, 4): K(f"v_xor_b32 v{V_D2+q}, {64*q}, v{V_D2}")
    poll_check(FL_O)
    stamp("o_seen")
    K(f"buffer_load_dword v{t4}, v{t2}, {srd(R_WS)}, s{T+3} offen sc1")
    tk_g = K(f"buffer_load_dword v{t5}, v{t2}, {srd(R_WS)}, s{T+3} offen offset:2048 sc1")
    for ks in range(28, 36):
        b = M_AR + 8 * (ks % NA)
        if ks == 32: K(f"s_add_u32 s{T+4}, s{T+4}, 4096")
        K(f"buffer_load_dwordx4 {vr(b,4)}, v{V_L16}, {srd(R_WS)}, s{T+4} offen offset:{1024*(ks%4)} sc1")
        tk_a[ks] = K(f"buffer_load_dwordx4 {vr(b+4,4)}, v{M_L16B}, {srd(R_WS)}, s{T+4} offen offset:{1024*(ks%4)} sc1")
    K.wait_vm(tk_g)
    if f2: stamp("t_g")
    K(f"v_sub_f32 v{t4}, 1.0, v{t4}"); K(f"v_sub_f32 v{t5}, 1.0, v{t5}")
    K(f"v_cvt_pk_bf16_f32 v{t4}, v{t4}, v{t5}"); K(f"v_and_b32 v{t5}, 0xffff0000, v{t4}"); K(f"v_lshlrev_b32 v{t4}, 16, v{t4}")
    for e in range(0, 64, 2): pscale(M_ACC+e, t4 if e < 32 else t5, True)
    for ks in range(28, 36):
        def side(n):
            if n < 2 and ks + 3 < 36: rdb(ks + 3, 1 << n)
        step(ks, side)
    if f2: stamp("t_mf")
    for t2_ in range(2):
        for b in range(8): K(f"ds_write_b128 v{V_D2 + b%4}, {vr(M_ACC+32*t2_+4*b,4)} offset:{32768*t2_ + 1024*b}")
    stamp("p2_done")

    K.label("L_red")
    K(f"v_and_b32 v{t1}, 7, v{V_LANE}"); K(f"v_lshrrev_b32 v{t3}, 3, v{V_LANE}")
    K(f"s_lshl_b32 s{T+1}, s{S_A}, 3"); K(f"v_add_u32 v{t0}, s{T+1}, v{t3}")
    K(f"v_and_b32 v{t2}, 3, v{V_LANE}"); K(f"v_lshlrev_b32 v{t2}, 2, v{t2}"); K(f"v_xor_b32 v{t0}, v{t0}, v{t2}")
    K(f"v_lshlrev_b32 v{t0}, 4, v{t0}"); K(f"v_lshl_add_u32 v{t0}, v{t1}, 10, v{t0}")
    K(f"s_lshr_b32 s{T+2}, s{S_W}, 2"); K(f"s_lshl_b32 s{T}, s{T+2}, 15"); K(f"v_add_u32 v{t0}, s{T}, v{t0}")
    K(f"v_mul_u32_u24 v{t3}, 896, v{t3}"); K(f"v_lshl_add_u32 v{t3}, v{t1}, 4, v{t3}")
    K(f"s_lshl_b32 s{T}, s{S_ROW}, 2"); K(f"s_add_u32 s{T}, s{T}, s{S_W}"); K(f"s_mul_i32 s{T}, s{T}, {8*896}"); K(f"s_lshl_b32 s{T+1}, s{S_CT}, 7"); K(f"s_add_u32 s{T+5}, s{T}, s{T+1}")
    K("s_waitcnt lgkmcnt(0)")
    K("s_barrier")
    if f2: stamp("t_bar")
    R = 160
    for q in range(4):
        K(f"ds_read_b128 {vr(R+8*q,4)}, v{t0} offset:{8192*q}")
        K(f"ds_read_b128 {vr(R+8*q+4,4)}, v{t0} offset:{8192*q + 512}")
    K("s_waitcnt lgkmcnt(4)")
    for e in range(0, 8, 2): padd(R+e, R+e, R+8+e, True)
    K("s_waitcnt lgkmcnt(0)")
    for e in range(0, 8, 2): padd(R+16+e, R+16+e, R+24+e, True)
    for e in range(0, 8, 2): padd(R+e, R+e, R+16+e, True)
    for e in range(4): K(f"v_cvt_pk_bf16_f32 v{R+e}, v{R+2*e}, v{R+2*e+1}")
    K(f"buffer_store_dwordx4 {vr(R,4)}, v{t3}, {srd(R_OUT)}, s{T+5} offen" + ["", " sc1", " nt", " sc0 sc1"][outm])
    if f2: stamp("t_st")
    K(f"s_or_b32 s{T}, s2, s{S_W}"); K(f"s_cmp_lg_u32 s{T}, 0")
    K.branch("s_cbranch_scc1 L_fin")
    K(f"s_mov_b32 s{T}, {WS_EPOCH}")
    flag(T)
    K.label("L_fin")
    if stamps:
        K("s_waitcnt vmcnt(0)")
        stamp("end")
        if probe is not None:
            i0 = STAMP_IDS.setdefault('start', len(STAMP_IDS)); i1 = STAMP_IDS.setdefault(probe, len(STAMP_IDS))
            K(f"v_readlane_b32 s{T}, v{V_STAMP}, {i0}"); K(f"v_readlane_b32 s{T+1}, v{V_STAMP}, {i1}")
            K("s_nop 4")
            K(f"s_cmp_eq_u32 s{T+1}, 0"); K(f"s_cselect_b32 s{T+1}, s{T}, s{T+1}")
            if pwg >= 0:
                K(f"s_cmp_lg_u32 s2, {pwg}")
                K.branch("s_cbranch_scc1 L_end")
            K.label("L_probe")
            K("s_sleep 2")
            K(f"s_memrealtime {sp(S_ST)}"); K("s_waitcnt lgkmcnt(0)")
            K(f"s_sub_u32 s{T+2}, s{S_ST}, s{T+1}"); K(f"s_cmp_lt_u32 s{T+2}, {pt}")
            K.branch("s_cbranch_scc1 L_probe")
            K.branch("s_branch L_end")
        K(f"s_lshl_b32 s{T}, s2, 3"); K(f"s_add_u32 s{T}, s{T}, s{S_W}"); K(f"s_lshl_b32 s{T}, s{T}, 8"); K(f"s_add_u32 s{T}, s{T}, {WS_STAMP}")
        K(f"v_lshlrev_b32 v{t0}, 2, v{V_LANE}")
        K(f"buffer_store_dword v{V_STAMP}, v{t0}, {srd(R_WS)}, s{T} offen")
    K.label("L_end")
    K("s_endpgm")
    K.raw(f".fill (28672 + 4096 * {1 if stamps else 0} - (L_end - {NAME})) / 4, 4, 0xbf800000")

    head = f"""; Fused gated mix of hedgehog linear attention and GELU FFN (emitted by a hand-written generator script)
; @launch grid=(256,1,1) block=(512,1,1) lds=163840
.amdgcn_target "amdgcn-amd-amdhsa--gfx950"
.text
.globl {NAME}
.p2align 8
.type {NAME},@function
"""
    tail = f""".section .rodata,"a"
.p2align 6
.amdhsa_kernel {NAME}
  .amdhsa_next_free_vgpr 256
  .amdhsa_next_free_sgpr 102
  .amdhsa_accum_offset 256
  .amdhsa_group_segment_fixed_size 0
  .amdhsa_kernarg_size 104
  .amdhsa_user_sgpr_count 2
  .amdhsa_user_sgpr_kernarg_segment_ptr 1
  .amdhsa_system_sgpr_workgroup_id_x 1
.end_amdhsa_kernel
"""
    return head + K.text() + tail

STAMP_IDS = {}
def parse_opts(argv):
    kw = {}
    for a in argv:
        if a.startswith("-D"):
            k, v = a[2:].split("="); kw[k] = int(v) if v.lstrip("-").isdigit() else v
    return kw
if __name__ == "__main__":
    out = sys.argv[1] if len(sys.argv) > 1 else "k.s"
    open(out, "w").write(gen(**parse_opts(sys.argv)))
```

```python
import sys, struct
from asmlib import Asm

NAME = "gated_mix__linear_kernel_hedgehog__dense_activation_gelu__prompt_kernel"
def f2u(x): return struct.unpack("<I", struct.pack("<f", x))[0]

WS_EPOCH = 0
WS_RPF   = 0x8000
WS_STAMP = 0x10000
WS_G     = 0xA0000
WS_WQ    = 0x100000
WS_KVP   = 0x280000
WS_O     = 0x480000
WS_H     = 0x680000
WS_CN    = 0xC0000
WS_HF    = WS_CN
WS_OF    = WS_CN + 256*128
WS_KVF   = WS_CN + 384*128
WS_DUM   = WS_CN + 448*128
WS_SIZE  = 0xE00000

U = [0, 32768, 65536, 98304, 131072]
L_K, L_V, L_Q = 98304, 126976, 65536
L_MISC = 155648
L_PHI, L_CNT, L_B2, L_B1 = L_MISC, L_MISC + 2048, L_MISC + 2560, L_MISC + 3072
L_KVS = U[3]
L_KVF = L_MISC + 4096
RUNIT = [0, 1, 0, 1, 3, 0, 1, 2, 3]
C_E, C_0, C_1, C_2, C_3, C_4, C_Q, C_G, C_B, C_S, C_5 = 0, 4, 8, 12, 16, 20, 24, 28, 32, 36, 40

P_X, P_WQKV, P_PHI, P_WO, P_W1, P_B1, P_W2 = 16, 18, 20, 22, 26, 28, 30
P_B2, P_GATE, P_OUT, P_WS = 32, 34, 36, 40
R_X, R_W1, R_W2, R_WO, R_WS, R_OUT, R_T = 44, 48, 52, 56, 60, 64, 68
S_MT, S_J, S_W, S_A, S_FL2, S_TAG, S_CH, S_CNT = 72, 73, 74, 75, 76, 78, 77, 100
S_CHO = 80
S_M0 = 87
S_XB, S_W1B = 88, 89
S_T = 90
S_UP = 98
S_E = 42
S_H = S_J
S_CT, S_ROW, S_ACT = 43, 3, 101
S_K = 4
S_ST = 6
S_L28 = 24
S_FL = 8
S_HB, S_W2B, S_OB, S_HB3, S_W2B3, S_M02, S_RS = 9, 10, 11, 12, 13, 14, 15
S_PE, S_P3, S_PO = 34, 35, 38
PD = [16, 17, 18, 19, 20, 21, 22, 23, 26, 27, 28, 29, 30, 31, 32, 33]
def srd(r): return f"s[{r}:{r+3}]"
def sp(r): return f"s[{r}:{r+1}]"

V_LANE, V_L16, V_STAMP, V_TAG, V_POLL, V_CNT = 1, 2, 3, 4, 5, 6
V_T = 8
V_D2 = 18
A_PA, A_AX, A_AD, A_L4, A_PH, A_TR, A_G = 7, 14, 22, 24, 25, 30, 31
V_W, V_P, V_ACC, V_PHI, V_X = 32, 64, 96, 128, 144
A_XD, A_WD, A_QD, A_GW = 64, 68, 72, 16
M_L16B, M_AB = 7, 14
M_ACC, M_BH, M_AR = 24, 88, 152
M_AX, M_AW = 136, 140
NA = 13
def vr(a, n): return f"v[{a}:{a+n-1}]"
UPM = sp(S_UP)
L2E = 1.4426950408889634

def gen(stamps=False, spin=20000, rot1=False, codepf=True, slp=2, cyc=False, G=5, prioA=1, prioM=2, kvf=27, fine=False,
        pkq=0, pkk=1, LA=9, LA0=6, c0=2, mpf=60, outm=0, tlb=21, gw=-1, hf0=7, rpb=3, prioG=2, k6=4, qpf=1, sb=1, qd=0, probe=None, pwg=-1, pt=4000, aw2=2, pre=8, cb=22, pkg=2, rpa=0, f2=0, hfirst=1, early=0, stl=1):
    K = Asm()
    T = S_T
    TD = T + 5
    t0, t1, t2, t3, t4, t5 = range(V_T, V_T + 6)
    def stamp(name):
        if not stamps: return
        if probe is not None and name != probe: return
        K("s_waitcnt lgkmcnt(0)")
        K(f"s_memrealtime {sp(S_ST)}")
        if cyc: K(f"s_memtime s[0:1]")
        K("s_waitcnt lgkmcnt(0)")
        i = STAMP_IDS.setdefault(name, len(STAMP_IDS))
        K(f"v_writelane_b32 v{V_STAMP}, s{S_ST}, {i}")
        if cyc: K(f"v_writelane_b32 v{V_STAMP}, s0, {32 + i}")
    uid = [0]
    def newl(p): uid[0] += 1; return f"L_{p}{uid[0]}"
    def poll_issue(fl):
        K(f"s_load_dword s{PD[0]}, {sp(P_WS)}, s{fl[0]} offset:{fl[1]} glc")
    def poll_check(fl):
        l, d = newl("poll"), newl("polld")
        K(f"s_mov_b32 s{S_CNT}, {spin}")
        K.raw(f"{l}:")
        K("s_waitcnt lgkmcnt(0)")
        K(f"s_cmp_eq_u32 s{PD[0]}, {fl[2]}")
        K.branch(f"s_cbranch_scc1 {d}")
        K(f"s_sub_u32 s{S_CNT}, s{S_CNT}, 1")
        K(f"s_cbranch_scc1 {d}")
        if slp: K(f"s_sleep {slp}")
        poll_issue(fl)
        K(f"s_branch {l}")
        K.label(d)
    def signal(soff_reg):
        K(f"v_mov_b32 v{t5}, 1")
        K("s_mov_b64 exec, 1")
        K(f"buffer_atomic_add v{t5}, v{V_LANE}, {srd(R_WS)}, s{soff_reg} offen")
        K("s_mov_b64 exec, -1")
    def vpoll_issue(vaddr):
        return K(f"buffer_load_dword v{V_POLL}, v{vaddr}, {srd(R_WS)}, 0 offen sc1")
    def vpoll_check(tok, vaddr):
        l, d = newl("poll"), newl("polld")
        K(f"s_mov_b32 s{S_CNT}, {spin}")
        K.wait_vm(tok)
        K.label(l)
        K(f"v_cmp_ne_u32 vcc, s{S_TAG}, v{V_POLL}")
        K.branch(f"s_cbranch_vccz {d}")
        K(f"s_sub_u32 s{S_CNT}, s{S_CNT}, 1")
        K.branch(f"s_cbranch_scc1 {d}")
        K(f"s_sleep 10")
        K(f"buffer_load_dword v{V_POLL}, v{vaddr}, {srd(R_WS)}, 0 offen sc1"); K.vm -= 1
        K("s_waitcnt vmcnt(0)")
        K.branch(f"s_branch {l}")
        K.label(d)
    def flag(soff_reg):
        K("s_mov_b64 exec, 1")
        K(f"buffer_store_dword v{V_TAG}, v{V_LANE}, {srd(R_WS)}, s{soff_reg} offen sc1")
        K("s_mov_b64 exec, -1")
    def arrive(c):
        K(f"v_mov_b32 v{t5}, 1")
        K("s_mov_b64 exec, 1")
        K(f"ds_add_u32 v{V_CNT}, v{t5} offset:{c}")
        K("s_mov_b64 exec, -1")
    def await_(c, n, sleep=0):
        l, d = newl("aw"), newl("awd")
        K(f"s_mov_b32 s{S_CNT}, {spin * 8}")
        K.label(l)
        K(f"ds_read_b32 v{t5}, v{V_CNT} offset:{c}")
        K("s_waitcnt lgkmcnt(0)")
        K(f"v_cmp_ne_u32 vcc, {n}, v{t5}")
        K.branch(f"s_cbranch_vccz {d}")
        if sleep: K(f"s_sleep {sleep}")
        K(f"s_sub_u32 s{S_CNT}, s{S_CNT}, 1")
        K.branch(f"s_cbranch_scc0 {l}")
        K.label(d)
    def mksrd(r, p, nbytes):
        K(f"s_mov_b32 s{r}, s{p}"); K(f"s_and_b32 s{r+1}, s{p+1}, 0xffff")
        K(f"s_mov_b32 s{r+2}, {nbytes}"); K(f"s_mov_b32 s{r+3}, 0x20000")
    def mfma(d, a, b, c=None):
        cs = vr(d, 16) if c is None else c
        K(f"v_mfma_f32_32x32x16_bf16 {vr(d,16)}, {vr(a,4)}, {vr(b,4)}, {cs}")
    def padd(d, a, b, pk):
        if pk: K(f"v_pk_add_f32 {vr(d,2)}, {vr(a,2)}, {vr(b,2)}")
        else: K(f"v_add_f32 v{d}, v{a}, v{b}"); K(f"v_add_f32 v{d+1}, v{a+1}, v{b+1}")
    def pscale(d, r, pk):
        if pk: K(f"v_pk_mul_f32 {vr(d,2)}, {vr(d,2)}, {vr(r & ~1,2)} " + ("op_sel:[0,1] op_sel_hi:[1,1]" if r & 1 else "op_sel_hi:[1,0]"))
        else: K(f"v_mul_f32 v{d}, v{d}, v{r}"); K(f"v_mul_f32 v{d+1}, v{d+1}, v{r}")
    def settag():
        K(f"s_add_u32 s{S_TAG}, s{S_E}, 0x9E3779B9"); K(f"s_mov_b32 s{S_TAG+1}, s{S_TAG}"); K(f"v_mov_b32 v{V_TAG}, s{S_TAG}")
    def xfrag_addr(dst):
        K(f"v_and_b32 v{t0}, 31, v{V_LANE}"); K(f"v_lshrrev_b32 v{t2}, 5, v{V_LANE}"); K(f"v_bfe_u32 v{t3}, v{V_LANE}, 1, 3")
        K(f"v_xor_b32 v{t3}, v{t2}, v{t3}"); K(f"s_lshl_b32 s{T}, s{S_A}, 12"); K(f"v_lshlrev_b32 v{t0}, 7, v{t0}")
        K(f"v_lshl_add_u32 v{t0}, v{t3}, 4, v{t0}"); K(f"v_add_u32 v{dst}, s{T}, v{t0}")
        for k in range(1, 4): K(f"v_xor_b32 v{dst+k}, {32*k}, v{dst}")
    def lanepart():
        K(f"v_bfe_u32 v{t4}, v{V_LANE}, 4, 1"); K(f"v_lshlrev_b32 v{t4}, 5, v{t4}")
        K(f"v_and_b32 v{t3}, 3, v{V_LANE}"); K(f"v_lshl_add_u32 v{t4}, v{t3}, 3, v{t4}")
        K(f"v_bfe_u32 v{t3}, v{V_LANE}, 2, 2"); K(f"v_lshrrev_b32 v{t2}, 5, v{V_LANE}")
    def p2setup():
        mksrd(R_W2, P_W2, 1792*896)
        K(f"s_and_b32 s{T}, s2, 7"); K(f"s_lshr_b32 s{T+1}, s2, 3")
        K(f"s_mul_i32 s{T+2}, s{T+1}, 37"); K(f"s_lshr_b32 s{T+2}, s{T+2}, 8"); K(f"s_mul_i32 s{T+3}, s{T+2}, 7"); K(f"s_sub_u32 s{S_CT}, s{T+1}, s{T+3}")
        K(f"s_lshl_b32 s{T+2}, s{T+2}, 1"); K(f"s_lshl_b32 s{T+3}, s{T}, 3"); K(f"s_add_u32 s{S_ROW}, s{T+2}, s{T+3}")
        K(f"s_cmp_lt_u32 s{T+1}, 28"); K(f"s_cselect_b32 s{S_ACT}, 1, 0")
        K(f"s_and_b32 s{T+2}, s{S_A}, 1"); K(f"s_mul_i32 s{T+3}, s{S_A}, 7"); K(f"s_add_u32 s{T+4}, s{T+3}, s{T+2}")
        K(f"s_cmp_eq_u32 s{T+2}, 0"); K(f"s_cselect_b32 s{T+2}, 6, 0"); K(f"s_add_u32 s{T+2}, s{T+2}, s{T+3}")
        K(f"s_lshl_b32 s{T}, s{S_CT}, 7")
        K(f"s_mul_i32 s{S_W2B}, s{T+4}, {64*896}"); K(f"s_add_u32 s{S_W2B}, s{S_W2B}, s{T}")
        K(f"s_mul_i32 s{S_W2B3}, s{T+2}, {64*896}"); K(f"s_add_u32 s{S_W2B3}, s{S_W2B3}, s{T}")
        K(f"s_lshl_b32 s{S_M02}, s{S_A}, 13")
        K(f"v_lshrrev_b32 v{t0}, 3, v{V_LANE}"); K(f"v_and_b32 v{t1}, 7, v{V_LANE}")
        K(f"v_bfe_u32 v{t2}, v{V_LANE}, 4, 1"); K(f"v_lshlrev_b32 v{t2}, 2, v{t2}"); K(f"v_xor_b32 v{t1}, v{t1}, v{t2}")
        K(f"v_mul_u32_u24 v{t0}, 896, v{t0}"); K(f"v_lshl_add_u32 v{V_D2}, v{t1}, 4, v{t0}")
        for q in range(1, 4): K(f"v_add_u32 v{V_D2+q}, {q*(8*896-1024)}, v{V_D2}")
        K(f"v_mov_b32 v{V_CNT}, {L_CNT}")
    def shift(regs, d):
        for r in regs:
            if d > 0: K(f"v_add_u32 v{r}, {d}, v{r}")
            elif d < 0: K(f"v_subrev_u32 v{r}, {-d}, v{r}")
    pend = []
    def drip(n):
        for _ in range(n):
            if pend: pend.pop(0)()
    def run(steps):
        for f in steps: f()
    tk_r = {}
    def g_w2(r):
        def step(q):
            def f():
                if q % 4 == 0:
                    K(f"s_add_u32 s{TD}, s{S_W2B3 if r == 3 else S_W2B}, {(0 if r == 3 else (2*r % 7)*64*896) + (q // 4)*32*896}")
                    K(f"s_add_u32 m0, s{S_M02}, {U[RUNIT[r]] + (q // 4)*4096}")
                x = K(f"buffer_load_dwordx4 v{V_D2+q%4}, {srd(R_W2)}, s{TD} offen offset:{1024*(q%4)} lds")
                if q == 7: tk_r[r] = x
            return f
        return [step(q) for q in range(8)]
    SH = [0, 0, 65536, 0, -65536, 0, 65536]

    K.raw(f"{NAME}:")
    K("s_cmp_ge_u32 s2, 256"); K("s_cbranch_scc1 L_end")
    if stamps and early: K(f"s_memrealtime {sp(S_ST)}"); K("s_waitcnt lgkmcnt(0)")
    K("s_load_dwordx16 s[16:31], s[0:1], 0"); K("s_load_dwordx8 s[32:39], s[0:1], 64"); K("s_load_dwordx2 s[40:41], s[0:1], 96")
    if stamps:
        if not early: K(f"s_memrealtime {sp(S_ST)}")
        K(f"v_mov_b32 v{V_STAMP}, 0")
    K(f"v_lshrrev_b32 v{t0}, 6, v0"); K(f"v_and_b32 v{V_LANE}, 63, v0")
    K(f"v_readfirstlane_b32 s{S_W}, v{t0}")
    K(f"v_lshlrev_b32 v{V_L16}, 4, v{V_LANE}")
    K(f"s_and_b32 s{T}, s2, 7"); K(f"s_lshr_b32 s{T+1}, s2, 3")
    if codepf:
        K(f"s_lshr_b32 s{T+2}, s2, 5"); K(f"s_lshl_b32 s{T+2}, s{T+2}, 3"); K(f"s_or_b32 s{T+2}, s{T+2}, s{S_W}"); K(f"s_cmp_lg_u32 s{T+2}, 7")
        K("s_cbranch_scc1 L_nopf")
        K(f"s_getpc_b64 {sp(T+2)}")
        K.raw("L_pc:")
        K(f"s_lshl_b32 s{T+4}, s{T+1}, 7"); K(f"s_sub_u32 s{T+2}, s{T+2}, L_pc - {NAME}"); K(f"s_subb_u32 s{T+3}, s{T+3}, 0")
        K(f"s_add_u32 s{T+2}, s{T+2}, s{T+4}"); K(f"s_addc_u32 s{T+3}, s{T+3}, 0")
        K(f"v_lshlrev_b32 v{t0}, 9, v{V_LANE}")
        K("s_mov_b32 exec_hi, 0xffffff")
        K(f"global_load_dword v{V_POLL}, v{t0}, {sp(T+2)}"); K.vm -= 1
        K("s_mov_b32 exec_hi, -1")
        K.label("L_nopf")
    K(f"s_and_b32 s{T+2}, s{T}, 2"); K(f"s_lshl_b32 s{T+2}, s{T+2}, 1")
    K(f"s_and_b32 s{T+3}, s{T}, 1"); K(f"s_cmp_lt_u32 s{T+1}, 4"); K(f"s_cselect_b32 s{T+4}, 14, 12"); K(f"s_add_u32 s{T+3}, s{T+3}, s{T+4}")
    K(f"s_lshr_b32 s{T+4}, s{T+1}, 3"); K(f"s_lshl_b32 s{S_J}, s{T+4}, 2"); K(f"s_and_b32 s{S_MT}, s{T}, 3"); K(f"s_add_u32 s{S_J}, s{S_J}, s{S_MT}"); K(f"s_sub_u32 s{S_J}, s{S_J}, 4")
    K(f"s_cmp_lt_u32 s{T+1}, 8"); K(f"s_cselect_b32 s{S_J}, s{T+3}, s{S_J}"); K(f"s_cselect_b32 s{T+2}, s{T+2}, 0")
    K(f"s_and_b32 s{T+3}, s{T+1}, 7"); K(f"s_xor_b32 s{T+3}, s{T+3}, s{T+2}")
    K(f"s_and_b32 s{S_MT}, s{T}, 4"); K(f"s_lshl_b32 s{S_MT}, s{S_MT}, 1"); K(f"s_add_u32 s{S_MT}, s{S_MT}, s{T+3}")
    K(f"s_and_b32 s{S_A}, s{S_W}, 3")
    K(f"s_lshl_b32 s{S_W1B}, s{S_J}, 8")
    K(f"s_cmp_lt_u32 s{S_J}, 14")
    K.branch("s_cbranch_scc1 L_norp")
    K(f"s_lshl_b32 s{S_FL}, s{S_MT}, 1"); K(f"s_add_u32 s{S_FL}, s{S_FL}, s{S_J}"); K(f"s_sub_u32 s{S_FL}, s{S_FL}, 14")
    RB = 96
    K(f"s_cmp_eq_u32 s{S_W}, 7")
    K.branch("s_cbranch_scc1 L_rp7")
    K0 = S_XB
    K(f"s_mul_i32 s{K0}, s{S_FL}, 14"); K(f"s_lshl_b32 s{T+5}, s{S_W}, 1"); K(f"s_add_u32 s{K0}, s{K0}, s{T+5}")
    K(f"v_lshrrev_b32 v{t0}, 3, v{V_LANE}"); K(f"v_bfe_u32 v{t1}, v{V_LANE}, 2, 1"); K(f"v_and_b32 v{t2}, 3, v{V_LANE}")
    K(f"v_mul_u32_u24 v{t3}, 56, v{t0}"); K(f"v_mul_u32_u24 v{t4}, 2688, v{t1}"); K(f"v_add_u32 v{t3}, v{t3}, v{t4}")
    K(f"v_lshl_add_u32 v{t3}, v{t2}, 4, v{t3}")
    K(f"s_mul_i32 s{T+5}, s{K0}, 2688"); K(f"v_lshlrev_b32 v{t4}, 1, v{t1}"); K(f"s_lshl_b32 s{T+6}, s{K0}, 1")
    K("s_waitcnt lgkmcnt(0)")
    mksrd(R_T, P_WQKV, 448*2688)
    tkl = {}
    for q in (2, 3, 4, 5): tkl[q] = K(f"buffer_load_dwordx4 {vr(RB+4*q,4)}, v{t3}, {srd(R_T)}, s{T+5} offen offset:{448*q}")
    mksrd(R_X, P_GATE, 896)
    K(f"buffer_load_ushort v{RB+24}, v{t4}, {srd(R_X)}, s{T+6} offen")
    for q in (0, 1): tkl[q] = K(f"buffer_load_dwordx4 {vr(RB+4*q,4)}, v{t3}, {srd(R_T)}, s{T+5} offen offset:{448*q}")
    mksrd(R_WS, P_WS, WS_SIZE)
    K(f"s_mov_b32 s{T+6}, 86016"); K(f"v_mul_lo_u32 v{RB+25}, v{t0}, s{T+6}"); K(f"v_and_b32 v{t1}, 7, v{V_LANE}")
    K(f"v_lshl_add_u32 v{RB+25}, v{t1}, 4, v{RB+25}")
    K(f"v_cmp_eq_u32 vcc, 3, v{t2}")
    K(f"s_lshl_b32 s{T+5}, s{K0}, 6"); K(f"s_add_u32 s{T+5}, s{T+5}, {WS_WQ}")
    for q in (2, 3, 4, 5, 0, 1):
        p, hg = q // 2, q % 2; b = RB + 4*q
        K.wait_vm(tkl[q])
        K(f"v_cndmask_b32 v{b+2}, v{b+2}, v{RB+24}, vcc" if p == 0 else f"v_cndmask_b32 v{b+2}, v{b+2}, 0, vcc")
        K(f"v_cndmask_b32 v{b+3}, v{b+3}, 0, vcc")
        K(f"s_add_u32 s{T+6}, s{T+5}, {p*28672 + hg*8*86016}")
        K(f"buffer_store_dwordx4 {vr(b,4)}, v{RB+25}, {srd(R_WS)}, s{T+6} offen sc1")
    if rpa:
        K(f"s_cmp_lt_u32 s{S_W}, 4")
        K.branch("s_cbranch_scc1 L_norp")
    K("s_waitcnt vmcnt(0)")
    K("s_barrier")
    K.branch("s_branch L_norp")
    K.label("L_rp7")
    for e in range(4): K(f"v_mov_b32 v{RB+e}, 0")
    K(f"s_lshl_b32 s{T+5}, s{S_FL}, 12"); K(f"s_add_u32 s{T+5}, s{T+5}, {WS_KVP}")
    K(f"s_lshl_b32 s{T+6}, s{S_FL}, 11"); K(f"s_add_u32 s{T+6}, s{T+6}, {WS_CN}")
    K(f"s_lshl_b32 s{S_FL}, s{S_FL}, 7"); K(f"s_add_u32 s{S_FL}, s{S_FL}, {WS_RPF}")
    K("s_waitcnt lgkmcnt(0)")
    K(f"s_load_dword s{S_E}, {sp(P_WS)}, {WS_EPOCH}")
    mksrd(R_WS, P_WS, WS_SIZE)
    for q in range(4): K(f"buffer_store_dwordx4 {vr(RB,4)}, v{V_L16}, {srd(R_WS)}, s{T+5} offen offset:{1024*q} sc1")
    for q in range(2): K(f"buffer_store_dwordx4 {vr(RB,4)}, v{V_L16}, {srd(R_WS)}, s{T+6} offen offset:{1024*q} sc1")
    K("s_waitcnt vmcnt(0) lgkmcnt(0)")
    settag()
    K("s_barrier")
    flag(S_FL)
    if stamps: K(f"s_mov_b32 s{S_CNT}, s{S_ST}"); stamp("rp_pub"); K(f"s_mov_b32 s{S_ST}, s{S_CNT}")
    K.label("L_norp")
    K(f"s_cmp_ge_u32 s{S_W}, 4")
    K.branch("s_cbranch_scc1 L_M")

    if prioA: K(f"s_setprio {prioA}")
    K(f"s_lshl_b32 s{T+4}, s{T+4}, 1"); K(f"s_add_u32 s{T+2}, s{T+3}, s{T+4}")
    K(f"s_cmp_ge_u32 s{T+2}, 7"); K(f"s_cselect_b32 s{T+3}, 7, 0"); K(f"s_sub_u32 s{S_CH}, s{T+2}, s{T+3}")
    if not rot1: K(f"s_mov_b32 s{S_CH}, 0")
    def rotstep(t):
        K(f"s_lshl_b32 s{S_CHO+t}, s{S_CH}, 12")
        if t < 6: K(f"s_add_u32 s{S_CH}, s{S_CH}, 1"); K(f"s_cmp_eq_u32 s{S_CH}, 7"); K(f"s_cselect_b32 s{S_CH}, 0, s{S_CH}")
    rotstep(0); rotstep(1)
    K(f"s_lshl_b32 s{S_M0}, s{S_A}, 12")
    K(f"s_mul_i32 s{S_XB}, s{S_MT}, {128*896}")
    K(f"v_lshrrev_b32 v{t0}, 3, v{V_LANE}"); K(f"v_and_b32 v{t1}, 7, v{V_LANE}"); K(f"v_lshrrev_b32 v{t2}, 1, v{t0}"); K(f"v_xor_b32 v{t2}, v{t1}, v{t2}")
    K(f"s_lshl_b32 s{T+2}, s{S_A}, 5"); K(f"v_add_u32 v{t3}, s{T+2}, v{t0}"); K(f"v_mul_u32_u24 v{t3}, 896, v{t3}")
    K(f"v_lshl_add_u32 v{A_XD}, v{t2}, 4, v{t3}"); K(f"v_xor_b32 v{t2}, 4, v{t2}"); K(f"v_lshl_add_u32 v{A_XD+1}, v{t2}, 4, v{t3}")
    K(f"v_add_u32 v{A_XD+1}, {8*896-1024}, v{A_XD+1}")
    K(f"v_add_u32 v{A_XD+2}, {16*896-2048}, v{A_XD}"); K(f"v_add_u32 v{A_XD+3}, {16*896-2048}, v{A_XD+1}")
    K(f"v_lshrrev_b32 v{t0}, 4, v{V_LANE}"); K(f"v_and_b32 v{t1}, 15, v{V_LANE}"); K(f"v_lshlrev_b32 v{t2}, 2, v{t0}"); K(f"v_xor_b32 v{t2}, v{t1}, v{t2}")
    K(f"s_lshl_b32 s{T+2}, s{S_A}, 4"); K(f"v_add_u32 v{t3}, s{T+2}, v{t0}"); K(f"v_mul_u32_u24 v{t3}, 3584, v{t3}")
    K(f"v_lshl_add_u32 v{A_WD}, v{t2}, 4, v{t3}")
    for q in range(1, 4): K(f"v_add_u32 v{A_WD+q}, {q*(4*3584-1024)}, v{A_WD}")
    K("s_waitcnt lgkmcnt(0)")
    if stamps: K(f"v_writelane_b32 v{V_STAMP}, s{S_ST}, {STAMP_IDS.setdefault('start', len(STAMP_IDS))}")
    mksrd(R_X, P_X, 2048*896); mksrd(R_W1, P_W1, 448*3584)
    K(f"s_cmp_lt_u32 s{S_J}, 14"); K(f"s_cselect_b32 s{R_W1+2}, s{R_W1+2}, 0")
    tk_stage = {}
    def g_stage(t):
        u = U[t % 4]
        def step(q):
            def f():
                if q == 0: K(f"s_lshr_b32 s{TD}, s{S_CHO+t}, 5"); K(f"s_add_u32 s{TD}, s{TD}, s{S_XB}"); K(f"s_add_u32 m0, s{S_M0}, {u}")
                if q == 4: K(f"s_mul_i32 s{TD}, s{S_CHO+t}, 56"); K(f"s_add_u32 s{TD}, s{TD}, s{S_W1B}"); K(f"s_add_u32 m0, s{S_M0}, {u + 16384}")
                if q < 4: K(f"buffer_load_dwordx4 v{A_XD+q}, {srd(R_X)}, s{TD} offen offset:{1024*q} lds")
                else: x = K(f"buffer_load_dwordx4 v{A_WD+q-4}, {srd(R_W1)}, s{TD} offen offset:{1024*(q-4)} lds")
                if q == 7: tk_stage[t] = x
            return f
        return [step(q) for q in range(8)]
    ilist = []
    for t in range(7): ilist += [(f, t - 2 if t >= 4 else -1) for f in g_stage(t)]
    pos = [0]
    def issue_to(n, lastbar):
        while pos[0] < min(n, len(ilist)) and ilist[pos[0]][1] <= lastbar:
            ilist[pos[0]][0](); pos[0] += 1
    if fine: stamp("A_karg")
    vm0 = K.vm
    issue_to(8, -1)
    issue_to(8 + LA0, -1)
    if fine: stamp("A_i1")
    K(f"s_load_dword s{S_E}, {sp(P_WS)}, {WS_EPOCH}")
    for t in range(2, 7): rotstep(t)
    mksrd(R_WS, P_WS, WS_SIZE); mksrd(R_OUT, P_OUT, 2048*896)
    p2setup()
    K(f"s_mov_b32 s{S_UP}, 0"); K(f"s_mov_b32 s{S_UP+1}, -1")
    K(f"s_mov_b32 s{S_L28}, 0x10000000"); K(f"s_mov_b32 s{S_L28+1}, 0x10000000")
    xfrag_addr(A_AX)
    lanepart()
    K(f"v_lshl_add_u32 v{t0}, v{t2}, 3, v{t3}"); K(f"v_lshl_add_u32 v{A_TR}, v{t0}, 6, v{t4}")
    K(f"v_lshl_add_u32 v{t0}, v{t2}, 2, v{t3}"); K(f"v_mul_u32_u24 v{t1}, 56, v{t0}"); K(f"v_add_u32 v{t1}, v{t1}, v{t4}"); K(f"v_add_u32 v{A_PH}, {L_PHI}, v{t1}")
    K(f"v_lshlrev_b32 v{A_L4}, 2, v{V_LANE}")
    K(f"s_lshl_b32 s{T}, s{S_A}, 10"); K(f"s_add_u32 s{T}, s{T}, {WS_RPF}"); K(f"v_and_b32 v{A_PA}, 7, v{V_LANE}"); K(f"v_lshl_add_u32 v{A_PA}, v{A_PA}, 7, s{T}")
    K(f"s_mul_i32 s{S_RS}, s{S_J}, {3*28672}"); K(f"s_mul_i32 s{S_P3}, s{S_A}, 7168"); K(f"s_add_u32 s{S_RS}, s{S_RS}, s{S_P3}"); K(f"s_add_u32 s{S_RS}, s{S_RS}, {WS_WQ}")
    K("s_waitcnt lgkmcnt(0)")
    settag()
    if rpa:
        K(f"s_cmp_lt_u32 s{S_J}, 14")
        K.branch("s_cbranch_scc1 L_norb")
        K.wait_vm(vm0)
        K("s_barrier")
        K.label("L_norb")
    if fine: stamp("A_setup")
    tkx = {}
    def g_panel(p, lds):
        def step(q):
            def f():
                if q % 4 == 0: K(f"s_add_u32 s{TD}, s{S_RS}, {28672*p + (q // 4)*4096}"); K(f"s_add_u32 m0, s{S_P3}, {lds + (q // 4)*4096}")
                tkx[p] = K(f"buffer_load_dwordx4 v{V_L16}, {srd(R_WS)}, s{TD} offen offset:{1024*(q%4)} sc1 lds")
            return f
        return [step(q) for q in range(7)]
    for t in range(7):
        issue_to(8*(t+1) + (LA0 if t == 0 else LA), t - 1)
        shift(range(A_AX, A_AX + 4), SH[t])
        if t == 5:
            assert pos[0] == len(ilist)
            tkp = vpoll_issue(A_PA)
        if fine: stamp(f"A{t}a")
        K.wait_vm(tk_stage[t])
        if fine: stamp(f"A{t}b")
        if t < 6:
            if t >= 2: K("s_waitcnt lgkmcnt(4)")
            K("s_barrier")
        else: arrive(C_S)
        if t in (0, 4, 6): stamp(f"A_b{t}")
        for ksl in range(4): K(f"ds_read_b128 {vr(V_X + 16*t + 4*ksl, 4)}, v{A_AX+ksl} offset:{(t % 2) * 32768}")
    arrive(C_E)
    vpoll_check(tkp, A_PA)
    stamp("rp_seen")
    run(g_panel(1, L_K) + g_panel(2, L_V))
    stamp("kv_issued")
    K(f"s_mov_b32 s{S_K}, {f2u(L2E):#x}"); K(f"s_mov_b32 s{S_K+1}, {f2u(L2E):#x}")
    VPH, VB = V_W + 24, V_W + 16
    for s in range(2):
        for r in range(2): K(f"ds_read_b64_tr_b16 {vr(VPH + 4*s + 2*r, 2)}, v{A_PH} offset:{(16*s + 8*r)*56}")
    K(f"s_lshl_b32 s{T}, s{S_A}, 11"); K(f"s_lshl_b32 s{T+1}, s{S_J}, 13"); K(f"s_add_u32 s{S_HB}, s{T+1}, s{T}"); K(f"s_lshr_b32 s{S_FL}, s{S_HB}, 4"); K(f"s_add_u32 s{S_FL}, s{S_FL}, {WS_KVF}"); K(f"s_add_u32 s{S_HB}, s{S_HB}, {WS_KVP}")
    FL_K = (S_FL, 0, 16)
    K(f"s_lshl_b32 s{T}, s{S_MT}, 2"); K(f"s_add_u32 s{T}, s{T}, s{S_A}")
    K(f"s_lshr_b32 s{T+1}, s{T}, 1"); K(f"s_lshl_b32 s{T+1}, s{T+1}, 2"); K(f"s_lshr_b32 s{T+2}, s{S_J}, 2"); K(f"s_add_u32 s{T+1}, s{T+1}, s{T+2}"); K(f"s_lshl_b32 s{T+1}, s{T+1}, 7"); K(f"s_add_u32 s{S_FL2}, s{T+1}, {WS_OF}")
    K(f"s_lshl_b32 s{T}, s{T}, 4"); K(f"s_add_u32 s{T}, s{T}, s{S_J}")
    K(f"s_lshl_b32 s{S_OB}, s{T}, 11"); K(f"s_add_u32 s{S_OB}, s{S_OB}, {WS_O}")
    K(f"s_lshl_b32 s{T+2}, s{T}, 7"); K(f"s_add_u32 s{S_XB}, s{T+2}, {WS_G - 128}")
    IDR = [26, 27, 28, 29, V_PHI, V_PHI+1, V_PHI+2, V_PHI+3]
    K(f"v_and_b32 v{t0}, 31, v{V_LANE}"); K(f"v_lshrrev_b32 v{t1}, 5, v{V_LANE}"); K(f"v_lshlrev_b32 v{t1}, 2, v{t1}")
    K(f"v_sub_u32 v{t0}, v{t0}, v{t1}")
    K(f"v_and_b32 v{t1}, 1, v{V_LANE}"); K(f"v_lshlrev_b32 v{t1}, 4, v{t1}"); K(f"v_mov_b32 v{t2}, 0x3f80"); K(f"v_lshlrev_b32 v{t1}, v{t1}, v{t2}")
    K(f"v_and_b32 v{t0}, -2, v{t0}")
    for s in range(2):
        for q in range(4): K(f"v_cmp_eq_u32 {sp(T+2*q)}, {16*s + 8*(q // 2) + 2*(q % 2)}, v{t0}")
        for q in range(4): K(f"v_cndmask_b32 v{IDR[4*s+q]}, 0, v{t1}, {sp(T+2*q)}")
    if aw2: K(f"s_cmp_eq_u32 s{S_ACT}, 1"); K(f"s_cselect_b32 s{R_W2+2}, s{R_W2+2}, 0")
    if aw2 == 1:
        await_(C_E, 8, 1)
        run(g_w2(0))
        K.wait_vm(tkx[2]); arrive(C_0)
        run(g_w2(1))
        if qd < 0: run(g_panel(0, L_Q))
    else: K.wait_vm(tkx[2]); arrive(C_0)
    stamp("kv_landed0")
    if aw2 == 1: K.wait_vm(tk_r[1]); arrive(C_B)
    await_(C_0, 4, 1)
    K(f"v_cndmask_b32 v{VPH+6}, v{VPH+6}, 0, {UPM}"); K(f"v_cndmask_b32 v{VPH+7}, v{VPH+7}, 0, {UPM}")
    await_(C_G if gw >= 0 else C_E, 4 if gw >= 0 else 8, 1)
    stamp("kv_start")

    def gemm_qkv(panels, hook=None):
        nb = len(panels) * 4
        D = 3 if len(panels) == 2 else 6
        tk = {}
        for n, (off, acc, sw) in enumerate(panels): K(f"v_add_u32 v{A_AX+n}, {off}, v{A_TR}")
        def rd(ks, n):
            t, ksl = ks // 4, ks % 4
            b = V_W + nb * (ks % D)
            if ksl == 0: K(f"v_add_u32 v{A_AD + n}, s{S_CHO+t}, v{A_AX+n}")
            for r in range(2):
                tk[ks] = K(f"ds_read_b64_tr_b16 {vr(b + 4*n + 2*r, 2)}, v{A_AD + n} offset:{(16*ksl + 4*r)*64}")
        for k in range(D):
            for n in range(len(panels)): rd(k, n)
        for ks in range(28):
            K.wait_lg(tk[ks])
            b = V_W + nb * (ks % D)
            for n, (off, acc, sw) in enumerate(panels):
                wv, xv = b + 4*n, V_X + 4*ks
                if sw: mfma(acc, xv, wv, "0" if ks == 0 else None)
                else: mfma(acc, wv, xv, "0" if ks == 0 else None)
                if ks + D < 28: rd(ks + D, n)
            if hook: hook(ks)
    QP = V_W
    P = V_ACC
    def featmap():
        for e in range(8): K(f"v_cvt_pk_bf16_f32 v{QP+e}, v{V_ACC+2*e}, v{V_ACC+2*e+1}")
        mfma(P, VPH, QP, "0"); mfma(P, VPH + 4, QP + 4)
    def softmax(pk):
        for e in range(4): K(f"v_cndmask_b32 v{P+12+e}, v{P+12+e}, v{P}, {UPM}")
        mx, mn = t0, t2
        K(f"v_max3_f32 v{mx}, v{P}, v{P+1}, v{P+2}"); K(f"v_min3_f32 v{mn}, v{P}, v{P+1}, v{P+2}")
        K(f"v_max3_f32 v{t1}, v{P+3}, v{P+4}, v{P+5}"); K(f"v_min3_f32 v{t3}, v{P+3}, v{P+4}, v{P+5}")
        for e in range(6, 14, 4):
            K(f"v_max3_f32 v{mx}, v{mx}, v{P+e}, v{P+e+1}"); K(f"v_min3_f32 v{mn}, v{mn}, v{P+e}, v{P+e+1}")
            K(f"v_max3_f32 v{t1}, v{t1}, v{P+e+2}, v{P+e+3}"); K(f"v_min3_f32 v{t3}, v{t3}, v{P+e+2}, v{P+e+3}")
        K(f"v_max3_f32 v{mx}, v{mx}, v{P+14}, v{P+15}"); K(f"v_min3_f32 v{mn}, v{mn}, v{P+14}, v{P+15}")
        K(f"v_max_f32 v{mx}, v{mx}, v{t1}"); K(f"v_min_f32 v{mn}, v{mn}, v{t3}")
        K(f"v_mov_b32 v{t1}, v{mx}"); K(f"v_mov_b32 v{t3}, v{mn}")
        K(f"v_permlane32_swap_b32 v{mx}, v{t1}"); K(f"v_permlane32_swap_b32 v{mn}, v{t3}")
        K(f"v_max_f32 v{mx}, v{mx}, v{t1}"); K(f"v_min_f32 v{mn}, v{mn}, v{t3}")
        K(f"v_mul_f32 v{mx}, s{S_K}, v{mx}"); K(f"v_mul_f32 v{mn}, s{S_K}, v{mn}")
        EP, EN = V_P, V_P + 16
        for e in range(0, 16, 2):
            if pk:
                K(f"v_pk_fma_f32 {vr(EP+e,2)}, {vr(P+e,2)}, {sp(S_K)}, {vr(mx,2)} op_sel_hi:[1,1,0] neg_lo:[0,0,1] neg_hi:[0,0,1]")
                K(f"v_pk_fma_f32 {vr(EN+e,2)}, {vr(P+e,2)}, {sp(S_K)}, {vr(mn,2)} op_sel_hi:[1,1,0] neg_lo:[1,0,0] neg_hi:[1,0,0]")
            else:
                for x in (e, e + 1):
                    K(f"v_fma_f32 v{EP+x}, v{P+x}, s{S_K}, -v{mx}"); K(f"v_fma_f32 v{EN+x}, -v{P+x}, s{S_K}, v{mn}")
        for e in range(16):
            K(f"v_exp_f32 v{EP+e}, v{EP+e}"); K(f"v_exp_f32 v{EN+e}, v{EN+e}")
        S = V_W
        for n, E in enumerate((EP, EN)):
            padd(S+4*n, E, E+2, pk); padd(S+4*n+2, E+12, E+14, pk)
        for n, E in enumerate((EP, EN)):
            padd(S+4*n, S+4*n, E+4, pk)
            K(f"v_cndmask_b32 v{S+4*n+2}, v{S+4*n+2}, 0, {UPM}"); K(f"v_cndmask_b32 v{S+4*n+3}, v{S+4*n+3}, 0, {UPM}")
        for n, E in enumerate((EP, EN)):
            padd(S+4*n, S+4*n, E+6, pk); padd(S+4*n+2, S+4*n+2, E+8, pk)
        for n, E in enumerate((EP, EN)): padd(S+4*n, S+4*n, E+10, pk)
        for n in range(2): padd(S+4*n, S+4*n, S+4*n+2, pk)
        K(f"v_add_f32 v{t0}, v{S}, v{S+1}"); K(f"v_add_f32 v{t2}, v{S+4}, v{S+5}")
        K(f"v_mov_b32 v{t1}, v{t0}"); K(f"v_mov_b32 v{t3}, v{t2}")
        K(f"v_permlane32_swap_b32 v{t0}, v{t1}"); K(f"v_permlane32_swap_b32 v{t2}, v{t3}")
        K(f"v_add_f32 v{t0}, v{t0}, v{t1}"); K(f"v_add_f32 v{t2}, v{t2}, v{t3}")
        K(f"v_rcp_f32 v{t0}, v{t0}"); K(f"v_rcp_f32 v{t2}, v{t2}")
        K(f"v_cndmask_b32 v{t1}, v{t0}, 0, {UPM}"); K(f"v_cndmask_b32 v{t3}, v{t2}, 0, {UPM}")
        for e in range(0, 16, 2):
            pscale(EP+e, t0 if e < 12 else t1, pk); pscale(EN+e, t2 if e < 12 else t3, pk)
        for e in range(8):
            K(f"v_cvt_pk_bf16_f32 v{V_PHI+e}, v{EP+2*e}, v{EP+2*e+1}"); K(f"v_cvt_pk_bf16_f32 v{V_PHI+8+e}, v{EN+2*e}, v{EN+2*e+1}")

    if aw2 == 2: pend.extend(g_w2(0) + g_w2(1))
    if qd >= 0: pend.extend(g_panel(0, L_Q))
    def hook(ks):
        if aw2 == 2:
            drip(1)
            if ks == cb: K.wait_vm(tk_r[1]); arrive(C_B)
        elif ks >= qd and (ks - qd) % 3 == 0: drip(1)
        if ks == 25: arrive(C_1)
    gemm_qkv([(L_K, V_ACC, False), (L_V, V_ACC + 16, True)], hook)
    featmap()
    assert not pend
    for e in range(4): K(f"v_mov_b32 v{V_W+8+e}, v{V_PHI+e}")
    IDR[4] = V_W + 8
    stamp("kv_gemm")
    K(f"v_mov_b32 v{t4}, 0x3f803f80")
    for e in range(8): K(f"v_cvt_pk_bf16_f32 v{VB+e}, v{V_ACC+16+2*e}, v{V_ACC+16+2*e+1}")
    for e in range(8): K(f"v_cndmask_b32 v{VB+e}, v{VB+e}, v{t4}, {sp(S_L28)}")
    softmax(pkk)
    stamp("sm_k")
    TP, TN = V_P, V_P + 16
    mfma(TP, V_PHI, IDR[0], "0"); mfma(TP, V_PHI + 4, IDR[4])
    mfma(TN, V_PHI + 8, IDR[0], "0"); mfma(TN, V_PHI + 12, IDR[4])
    await_(C_1, 4)
    if f2: stamp("kv_a")
    K(f"s_lshl_b32 s{T}, s{S_A}, 13"); K(f"s_add_u32 s{T}, s{T}, {L_KVS}"); K(f"v_add_u32 v{t0}, s{T}, v{V_L16}")
    K(f"s_lshl_b32 s{T}, s{S_A}, 11"); K(f"s_add_u32 s{T}, s{T}, {L_KVS}"); K(f"v_add_u32 v{t1}, s{T}, v{V_L16}")
    for e in range(8): K(f"v_cvt_pk_bf16_f32 v{V_PHI+e}, v{TP+2*e}, v{TP+2*e+1}")
    mfma(V_ACC, V_PHI, VB, "0"); mfma(V_ACC, V_PHI + 4, VB + 4)
    for e in range(8): K(f"v_cvt_pk_bf16_f32 v{V_PHI+8+e}, v{TN+2*e}, v{TN+2*e+1}")
    mfma(V_ACC + 16, V_PHI + 8, VB, "0"); mfma(V_ACC + 16, V_PHI + 12, VB + 4)
    for b in range(8): K(f"ds_write_b128 v{t0}, {vr(V_ACC+4*b,4)} offset:{1024*b}")
    arrive(C_2)
    if f2: stamp("kv_b")
    await_(C_2, 4)
    if f2: stamp("kv_c")
    for hb in range(2):
        for g in range(4): K(f"ds_read_b128 {vr(V_P+16*hb+4*g,4)}, v{t1} offset:{8192*g + 1024*hb}")
    arrive(C_3)
    if f2: stamp("kv_d")
    for hb in range(2):
        K(f"s_waitcnt lgkmcnt({5 - 4*hb})")
        B = V_P + 16*hb
        for e in (0, 2): padd(B+e, B+e, B+4+e, pkq); padd(B+8+e, B+8+e, B+12+e, pkq)
        for e in (0, 2): padd(B+e, B+e, B+8+e, pkq)
        for e in range(4): K(f"buffer_atomic_add_f32 v{B+e}, v{A_L4}, {srd(R_WS)}, s{S_HB} offen offset:{1024*hb + 256*e}")
    stamp("kv_st")
    K.wait_vm(tkx[0]); arrive(C_5); await_(C_5, 4)
    def hook(ks):
        if ks == 22: arrive(C_Q)
        if ks == kvf:
            K("s_waitcnt vmcnt(0)")
            signal(S_FL)
            stamp("kv_pub")
    gemm_qkv([(L_Q, V_ACC, False)], hook)
    K(f"v_cvt_pk_bf16_f32 v{t0}, v{V_ACC+12}, v{V_ACC+12}")
    featmap()
    K(f"v_lshlrev_b32 v{t0}, 16, v{t0}")
    K(f"v_mul_f32 v{t0}, s{S_K}, v{t0}"); K(f"v_exp_f32 v{t0}, -v{t0}"); K(f"v_add_f32 v{t0}, 1.0, v{t0}"); K(f"v_rcp_f32 v{t0}, v{t0}")
    K(f"v_cvt_pk_bf16_f32 v{t0}, v{t0}, v{t0}"); K(f"v_lshlrev_b32 v{A_G}, 16, v{t0}")
    K("s_mov_b32 exec_lo, 0")
    K(f"buffer_store_dword v{A_G}, v{A_L4}, {srd(R_WS)}, s{S_XB} offen sc1")
    K("s_mov_b32 exec_lo, -1")
    stamp("q_gemm")
    softmax(pkq)
    stamp("sm_q")
    poll_issue(FL_K)
    poll_check(FL_K)
    stamp("kv_seen")
    for e in range(8): K(f"buffer_load_dword v{V_P+e}, v{A_L4}, {srd(R_WS)}, s{S_HB} offen offset:{256*e} sc1")
    F = V_W
    K(f"s_lshl_b32 s{T}, s{S_A}, 10"); K(f"v_add_u32 v{t1}, {L_KVF}, v{V_L16}"); K(f"v_add_u32 v{t0}, s{T}, v{t1}")
    K("s_waitcnt vmcnt(0)")
    stamp("kv_landed")
    for e in range(4): K(f"v_cvt_pk_bf16_f32 v{F+e}, v{V_P+2*e}, v{V_P+2*e+1}")
    K(f"ds_write_b128 v{t0}, {vr(F,4)}")
    arrive(C_4)
    await_(C_4, 4)
    if f2: stamp("o_a")
    for f in range(4): K(f"ds_read_b128 {vr(F+4*f,4)}, v{t1} offset:{1024*f}")
    N = V_ACC
    for f in range(4):
        K(f"s_waitcnt lgkmcnt({3-f})")
        mfma(N, F + 4*f, V_PHI + 4*f, "0" if f == 0 else None)
    K(f"v_cvt_pk_bf16_f32 v{t0}, v{N+12}, v{N+12}")
    for e in range(8): K(f"v_cvt_pk_bf16_f32 v{F+e}, v{N+2*e}, v{N+2*e+1}")
    K(f"v_lshlrev_b32 v{t0}, 16, v{t0}")
    K(f"v_add_f32 v{t0}, {f2u(1e-6):#x}, v{t0}")
    K(f"v_cvt_pk_bf16_f32 v{t0}, v{t0}, v{t0}"); K(f"v_lshlrev_b32 v{t0}, 16, v{t0}")
    K(f"v_rcp_f32 v{t0}, v{t0}")
    for e in range(4):
        K(f"v_lshlrev_b32 v{N+2*e}, 16, v{F+e}"); K(f"v_and_b32 v{N+2*e+1}, 0xffff0000, v{F+e}")
    K(f"v_mul_f32 v{t0}, v{t0}, v{A_G}"); K(f"v_mov_b32 v{t1}, v{t0}")
    for e in range(4, 8):
        K(f"v_lshlrev_b32 v{N+2*e}, 16, v{F+e}"); K(f"v_and_b32 v{N+2*e+1}, 0xffff0000, v{F+e}")
    K(f"v_permlane32_swap_b32 v{t1}, v{t0}")
    for e in range(0, 16, 2): pscale(N+e, t0, pkq)
    for e in range(8): K(f"v_cvt_pk_bf16_f32 v{F+e}, v{N+2*e}, v{N+2*e+1}")
    K(f"v_cndmask_b32 v{F+6}, v{F+6}, 0, {UPM}"); K(f"v_cndmask_b32 v{F+7}, v{F+7}, 0, {UPM}")
    K(f"buffer_store_dwordx4 {vr(F,4)}, v{V_L16}, {srd(R_WS)}, s{S_OB} offen sc1")
    K(f"buffer_store_dwordx4 {vr(F+4,4)}, v{V_L16}, {srd(R_WS)}, s{S_OB} offen offset:1024 sc1")
    if f2: stamp("o_b")
    K("s_waitcnt vmcnt(0)")
    signal(S_FL2)
    stamp("o_pub")
    K(f"s_cmp_eq_u32 s{S_ACT}, 0")
    K.branch("s_cbranch_scc1 L_fin")
    K.branch("s_branch L_red")

    K.label("L_M")
    if prioM: K(f"s_setprio {prioM}")
    K("s_waitcnt lgkmcnt(0)")
    if stamps: K(f"v_writelane_b32 v{V_STAMP}, s{S_ST}, {STAMP_IDS.setdefault('start', len(STAMP_IDS))}")
    K(f"s_load_dword s{S_E}, {sp(P_WS)}, {WS_EPOCH}")
    mksrd(R_T, P_B1, 3584)
    K(f"s_lshl_b32 s{T+1}, s{S_A}, 8"); K(f"s_add_u32 m0, s{T+1}, {L_B1}")
    K("s_mov_b64 exec, 0xffff")
    tk_b1 = K(f"buffer_load_dwordx4 v{V_L16}, {srd(R_T)}, s{S_W1B} offen lds")
    K("s_mov_b64 exec, -1")
    mksrd(R_T, P_PHI, 16*1568)
    K(f"s_mul_i32 s{T}, s{S_J}, 1568"); K(f"s_mul_i32 s{T+1}, s{S_A}, 400"); K(f"s_add_u32 s{T}, s{T}, s{T+1}"); K(f"s_add_u32 m0, s{T+1}, {L_PHI}")
    K("s_mov_b64 exec, 0x1ffffff")
    K(f"buffer_load_dwordx4 v{V_L16}, {srd(R_T)}, s{T} offen lds")
    K("s_mov_b64 exec, -1")
    K(f"v_mov_b32 v{V_CNT}, {L_CNT}")
    K(f"v_mov_b32 v{t0}, 0"); K(f"v_lshl_add_u32 v{t1}, v{V_LANE}, 2, v{V_CNT}"); K(f"ds_write_b32 v{t1}, v{t0}")
    K(f"s_cmp_lt_u32 s{S_J}, 14")
    K.branch("s_cbranch_scc1 L_mset")
    K("s_waitcnt lgkmcnt(0)")
    for t in range(6):
        if t == 5: K("s_waitcnt vmcnt(0)")
        K("s_barrier")
    arrive(C_E); arrive(C_G)
    K("s_setprio 0")
    K.label("L_mset")
    mksrd(R_WS, P_WS, WS_SIZE); mksrd(R_WO, P_WO, 448*896); mksrd(R_OUT, P_OUT, 2048*896)
    p2setup()
    K(f"s_mul_i32 s{T}, s{S_ROW}, {112*1024}"); K(f"s_add_u32 s{T}, s{T}, {WS_H}")
    K(f"s_lshl_b32 s{S_HB}, s{T+4}, 12"); K(f"s_add_u32 s{S_HB}, s{S_HB}, s{T}")
    K(f"s_lshl_b32 s{S_HB3}, s{T+2}, 12"); K(f"s_add_u32 s{S_HB3}, s{S_HB3}, s{T}")
    mksrd(R_T, P_B2, 896)
    K(f"s_lshl_b32 s{T}, s{S_CT}, 7"); K(f"s_lshl_b32 s{T+1}, s{S_A}, 10"); K(f"s_add_u32 s{T}, s{T}, s{T+1}")
    K(f"s_lshl_b32 s{T+1}, s{S_A}, 7"); K(f"s_add_u32 m0, s{T+1}, {L_B2}")
    K("s_mov_b64 exec, 0xff")
    tk_b2 = K(f"buffer_load_dwordx4 v{V_L16}, {srd(R_T)}, s{T} offen lds")
    K("s_mov_b64 exec, -1")
    K(f"s_lshl_b32 s{T}, s{S_ROW}, 1"); K(f"s_add_u32 s{T}, s{T}, s{S_A}")
    K(f"s_lshl_b32 s{S_PE}, s{T}, 8"); K(f"s_add_u32 s{S_PE}, s{S_PE}, {WS_HF}")
    K(f"s_lshl_b32 s{S_PO}, s{T}, 7"); K(f"s_add_u32 s{S_PO}, s{S_PO}, {WS_OF}")
    K(f"s_lshl_b32 s{T}, s{S_ROW}, 4"); K(f"s_lshl_b32 s{T+1}, s{S_A}, 2"); K(f"s_add_u32 s{S_OB}, s{T+1}, s{T}")
    FL_E, FL_L, FL_O = (S_PE, 0, 6), (S_PE, 128, 8), (S_PO, 0, 8)
    K(f"s_lshl_b32 s{T}, s{S_MT}, 2"); K(f"s_add_u32 s{T}, s{T}, s{S_A}"); K(f"s_mul_i32 s{S_RS}, s{T}, 112")
    K(f"s_lshl_b32 s{T+1}, s{S_J}, 3"); K(f"s_add_u32 s{S_RS}, s{S_RS}, s{T+1}"); K(f"s_lshl_b32 s{S_RS}, s{S_RS}, 10"); K(f"s_add_u32 s{S_RS}, s{S_RS}, {WS_H}")
    K(f"s_lshr_b32 s{T}, s{T}, 1"); K(f"s_lshl_b32 s{T}, s{T}, 10"); K(f"s_add_u32 s{T}, s{T}, {WS_HF}")
    K(f"s_mul_i32 s{T+1}, s{S_J}, 74"); K(f"s_and_b32 s{S_FL}, s{T+1}, 0xff00"); K(f"s_add_u32 s{S_FL}, s{S_FL}, s{T}")
    K(f"s_add_u32 s{T+1}, s{T+1}, 37"); K(f"s_and_b32 s{S_FL2}, s{T+1}, 0xff00"); K(f"s_add_u32 s{S_FL2}, s{S_FL2}, s{T}"); K(f"s_add_u32 s{S_FL2}, s{S_FL2}, 128")
    K(f"s_lshr_b32 s{T+1}, {(1 << 3) | (1 << 10)}, s{S_J}"); K(f"s_and_b32 s{T+1}, s{T+1}, 1"); K(f"s_lshl_b32 s{T+1}, s{T+1}, 7"); K(f"s_add_u32 s{S_FL}, s{S_FL}, s{T+1}")
    K(f"s_cmp_ge_u32 s{S_J}, 14"); K(f"s_cselect_b32 s{S_FL2}, 0x7000000, s{S_FL2}")
    K(f"v_add_u32 v{M_L16B}, {112*1024}, v{V_L16}")
    MP = M_AR + 40
    K(f"v_lshlrev_b32 v{MP}, 7, v{V_LANE}")
    K(f"s_lshl_b32 s{T+3}, s2, 2"); K(f"s_add_u32 s{T+3}, s{T+3}, s{S_A}")
    K(f"s_mul_i32 s{S_XB}, s{T+3}, {13*128}"); K(f"s_lshl_b32 s{S_M0}, s{T+3}, 9")
    def mall_pf():
        K("s_mov_b64 exec, 0x1fff")
        K(f"buffer_load_dword v{V_POLL}, v{MP}, {srd(R_W2)}, s{S_XB} offen")
        K("s_mov_b64 exec, 15")
        K(f"buffer_load_dword v{V_POLL}, v{MP}, {srd(R_WO)}, s{S_M0} offen")
        K("s_mov_b64 exec, -1")
    if mpf == 1: mall_pf()
    if tlb:
        l = newl("tlb")
        K(f"s_cmp_lg_u32 s{S_A}, 1")
        K.branch(f"s_cbranch_scc1 {l}")
        K(f"v_lshlrev_b32 v{t0}, {tlb}, v{V_LANE}")
        K(f"buffer_load_dword v{V_POLL}, v{t0}, {srd(R_WS)}, 0 offen offset:2048"); K.vm -= 1
        K(f"buffer_load_dword v{V_POLL}, v{t0}, {srd(R_OUT)}, 0 offen"); K.vm -= 1
        K.label(l)
    xfrag_addr(M_AX)
    lanepart()
    K(f"v_lshl_add_u32 v{t0}, v{t2}, 3, v{t3}"); K(f"v_lshl_add_u32 v{t0}, v{t0}, 8, v{t4}"); K(f"v_lshl_add_u32 v{t0}, v{t3}, 6, v{t0}")
    K(f"v_add_u32 v{M_AW}, 16384, v{t0}")
    for p in range(1, 4): K(f"v_xor_b32 v{M_AW+p}, {64*p}, v{M_AW}")
    AB = M_AB
    K(f"v_lshl_add_u32 v{t0}, v{t2}, 2, v{t3}"); K(f"v_lshl_add_u32 v{t0}, v{t0}, 7, v{t4}"); K(f"v_bfe_u32 v{t1}, v{V_LANE}, 3, 1"); K(f"v_lshl_add_u32 v{t0}, v{t1}, 6, v{t0}")
    K(f"v_add_u32 v{AB}, s{S_M02}, v{t0}"); K(f"v_xor_b32 v{AB+1}, 64, v{AB}")
    K(f"v_add_u32 v{AB+2}, 65536, v{AB}"); K(f"v_add_u32 v{AB+3}, 65536, v{AB+1}")
    K(f"v_lshlrev_b32 v{t0}, 9, v{t2}"); K(f"v_sub_u32 v22, v{AB+2}, v{t0}"); K(f"v_sub_u32 v23, v{AB+3}, v{t0}")
    K(f"s_lshl_b32 s{T}, s{S_A}, 7"); K(f"s_add_u32 s{T}, s{T}, {L_B2}"); K(f"v_lshl_add_u32 v0, v{t2}, 3, s{T}")
    K(f"s_lshl_b32 s{T}, s{S_A}, 8"); K(f"s_add_u32 s{T}, s{T}, {L_B1}"); K(f"v_lshl_add_u32 v{t0}, v{t2}, 3, s{T}")
    box = {}
    K(f"s_cmp_ge_u32 s{S_J}, 14")
    K.branch("s_cbranch_scc1 L_nof")
    vm_nof = K.vm
    K.wait_vm(tk_b1)
    for q in range(8): K(f"ds_read2_b64 {vr(M_AR+4*q,4)}, v{t0} offset0:{4*q} offset1:{4*q+2}")
    K("s_waitcnt lgkmcnt(0)")
    settag()
    for q in range(32):
        K(f"v_lshlrev_b32 v{M_ACC+2*q}, 16, v{M_AR+q}")
        K(f"v_and_b32 v{M_ACC+2*q+1}, 0xffff0000, v{M_AR+q}")
    if fine: stamp("M_rdy")
    WR, XR = M_BH, M_BH + 4*G
    tk = {}
    def rdg(g):
        ks, p = g // 4, g % 4
        t, ksl = ks // 4, ks % 4
        uo = (t % 2) * 32768
        if p == 0 and ksl == 0:
            shift(range(M_AX, M_AX + 8), SH[t])
            if t == 3: K.wait_vm(tk_b2)
            if t < 6: K("s_barrier")
            else:
                l = newl("s6")
                K.wait_lg(box['cs'])
                K(f"v_cmp_ne_u32 vcc, 4, v{t4}")
                K(f"s_cbranch_vccz {l}")
                lgs = K.lg
                await_(C_S, 4)
                K.lg = lgs
                K.raw(f"{l}:")
        if p == 0: K(f"ds_read_b128 {vr(XR + 4*(ks % 3), 4)}, v{M_AX+ksl} offset:{uo}")
        for r in range(2):
            tk[g] = K(f"ds_read_b64_tr_b16 {vr(WR + 4*(g % G) + 2*r, 2)}, v{M_AW+p} offset:{uo + (16*ksl + 4*r)*256}")
    for g in range(G): rdg(g)
    for g in range(112):
        K.wait_lg(tk[g])
        mfma(M_ACC + 16*(g % 4), WR + 4*(g % G), XR + 4*((g // 4) % 3))
        if g + G < 112: rdg(g + G)
        if g + G == 112: arrive(C_E)
        if g + G + 3 == 96: box['cs'] = K(f"ds_read_b32 v{t4}, v{V_CNT} offset:{C_S}")
        if mpf > 1 and g == mpf: mall_pf()
    stamp("ffn1")
    K(f"s_setprio {prioG}")
    cc = -2.0 * 0.7978845608028654 * 1.4426950408889634
    K(f"v_mov_b32 v{t0}, {f2u(cc):#x}"); K(f"v_mov_b32 v{t1}, 1.0"); K(f"s_mov_b32 s{S_K}, {f2u(cc*0.044715):#x}"); K(f"s_mov_b32 s{S_K+1}, {f2u(cc*0.044715):#x}")
    tkh = {}
    for g in range(8):
        a = M_ACC + 8*g; tt = M_AR + 8*(g % 2); o = M_AR + 48 + 4*g
        if g < pkg:
            for e in range(0, 8, 2): K(f"v_pk_mul_f32 {vr(tt+e,2)}, {vr(a+e,2)}, {vr(a+e,2)}")
            for e in range(0, 8, 2): K(f"v_pk_fma_f32 {vr(tt+e,2)}, {vr(tt+e,2)}, {sp(S_K)}, {vr(t0,2)} op_sel_hi:[1,1,0]")
            for e in range(0, 8, 2): K(f"v_pk_mul_f32 {vr(tt+e,2)}, {vr(a+e,2)}, {vr(tt+e,2)}")
            for e in range(8): K(f"v_exp_f32 v{tt+e}, v{tt+e}")
            for e in range(0, 8, 2): K(f"v_pk_add_f32 {vr(tt+e,2)}, {vr(tt+e,2)}, {vr(t0,2)} op_sel:[0,1] op_sel_hi:[1,1]")
            for e in range(8): K(f"v_rcp_f32 v{tt+e}, v{tt+e}")
            for e in range(0, 8, 2): K(f"v_pk_mul_f32 {vr(tt+e,2)}, {vr(a+e,2)}, {vr(tt+e,2)}")
        else:
            for e in range(8): K(f"v_mul_f32 v{tt+e}, v{a+e}, v{a+e}")
            for e in range(8): K(f"v_fma_f32 v{tt+e}, v{tt+e}, s{S_K}, v{t0}")
            for e in range(8): K(f"v_mul_f32 v{tt+e}, v{a+e}, v{tt+e}")
            for e in range(8): K(f"v_exp_f32 v{tt+e}, v{tt+e}")
            for e in range(8): K(f"v_add_f32 v{tt+e}, 1.0, v{tt+e}")
            for e in range(8): K(f"v_rcp_f32 v{tt+e}, v{tt+e}")
            for e in range(8): K(f"v_mul_f32 v{tt+e}, v{a+e}, v{tt+e}")
        for e in range(4): K(f"v_cvt_pk_bf16_f32 v{o+e}, v{tt+2*e}, v{tt+2*e+1}")
        if g == gw: arrive(C_G)
        if (g + 1) % sb == 0:
            K("s_setprio 3")
            for x in range(g + 1 - sb, g + 1):
                if x == 4: K(f"s_add_u32 s{S_RS}, s{S_RS}, 4096")
                tkh[x] = K(f"buffer_store_dwordx4 {vr(M_AR + 48 + 4*x,4)}, v{V_L16}, {srd(R_WS)}, s{S_RS} offen offset:{1024*(x%4)} sc1")
            if g < 7: K(f"s_setprio {prioG}")
    stamp("gelu_v")
    await_(C_0, 4)
    K.wait_vm(tkh[3]); signal(S_FL)
    stamp("gelu")
    K(f"s_cmp_eq_u32 s{S_ACT}, 1")
    K.branch("s_cbranch_scc1 L_p2")
    K("s_waitcnt vmcnt(0)")
    signal(S_FL2)
    K.branch("s_branch L_fin")
    K.label("L_nof")
    K.vm = vm_nof
    await_(C_0, 4, 2)
    K("s_waitcnt lgkmcnt(0)")
    settag()
    if mpf > 1: mall_pf()
    K("s_waitcnt vmcnt(0)")

    K.label("L_p2")
    tk_h = K.vm
    def g_wo(hf):
        def step(q):
            def f():
                if q == 0:
                    K(f"s_mul_i32 s{TD}, s{S_A}, {112*896}"); K(f"s_lshl_b32 s{TD+1}, s{S_CT}, 7"); K(f"s_add_u32 s{TD}, s{TD}, s{TD+1}")
                    if hf: K(f"s_add_u32 s{TD}, s{TD}, {56*896}")
                    K(f"s_add_u32 m0, s{S_M02}, {U[RUNIT[7+hf]]}")
                if q == 4: K(f"s_add_u32 s{TD}, s{TD}, {32*896}"); K(f"s_add_u32 m0, s{S_M02}, {U[RUNIT[7+hf]] + 4096}")
                x = K(f"buffer_load_dwordx4 v{V_D2+q%4}, {srd(R_WO)}, s{TD} offen offset:{1024*(q%4)} lds")
                if q == 6: tk_r[7+hf] = x
            return f
        return [step(q) for q in range(7)]
    tk = {}
    def rdb(ks, part=3):
        r, ksl = ks // 4, ks % 4
        b = M_BH + 8 * (ks % 8)
        u = RUNIT[r]
        if ksl == 0 and r >= 2 and part & 1: K.wait_vm(tk_r[r])
        for pp in range(2):
            for h in range(2):
                if not part & (1 << pp): continue
                if r < 7:
                    tk[ks] = K(f"ds_read_b64_tr_b16 {vr(b + 4*pp + 2*h, 2)}, v{AB + pp + (2 if u >= 2 else 0)} offset:{(u%2)*32768 + (16*ksl + 8*h)*128}")
                else:
                    hh, sx = (ks % 4) // 2, ks % 2
                    tk[ks] = K(f"ds_read_b64_tr_b16 {vr(b + 4*pp + 2*h, 2)}, v{(22 if (sx == 1 and h == 1) else AB + 2) + pp} offset:{(u%2)*32768 + (28*hh + 16*sx + 8*h)*128}")
    tk_a = {}
    def lda(ks, part=3):
        b = M_AR + 8 * (ks % NA); r = ks // 4
        if part & 1:
            if ks % 4 == 0: K(f"s_add_u32 s{T+7}, s{S_HB3 if r == 3 else S_HB}, {0 if r == 3 else (2*r % 7)*4096}")
            K(f"buffer_load_dwordx4 {vr(b,4)}, v{V_L16}, {srd(R_WS)}, s{T+7} offen offset:{1024*(ks%4)} sc1")
        if part & 2: tk_a[ks] = K(f"buffer_load_dwordx4 {vr(b+4,4)}, v{M_L16B}, {srd(R_WS)}, s{T+7} offen offset:{1024*(ks%4)} sc1")
    B2T = M_AR + 80
    for q in range(4): K(f"ds_read2_b64 {vr(B2T+4*q,4)}, v0 offset0:{4*q} offset1:{4*q+2}")
    def unpack(e):
        for t2_ in range(2):
            K(f"v_lshlrev_b32 v{M_ACC+32*t2_+2*e}, 16, v{B2T+e}")
            K(f"v_and_b32 v{M_ACC+32*t2_+2*e+1}, 0xffff0000, v{B2T+e}")
    g0, g1, g2, g3 = g_w2(0), g_w2(1), g_w2(2), g_w2(3)
    if aw2:
        K("s_waitcnt lgkmcnt(0)")
        for e in range(16): unpack(e)
        K.wait_vm(tk_h - 1)
        signal(S_FL2)
        K(f"s_setprio 0")
        stamp("h_pub1")
        if hfirst:
            poll_issue(FL_E)
            poll_check(FL_E)
            stamp("hE_seen")
            for ks in range(pre): lda(ks)
        await_(C_B, 4)
        stamp("B_seen")
        for ks in range(3): rdb(ks)
        K.wait_lg(tk[0]); rdb(3)
        K.wait_lg(tk[3])
        for q in range(8):
            g2[q]()
            if q < 4:
                if q == 3: K.wait_lg(tk[4])
                rdb(4 + q)
        K("s_waitcnt lgkmcnt(0)")
        if not hfirst:
            poll_issue(FL_E)
            run(g3); g3 = []
            poll_check(FL_E)
            stamp("hE_seen")
            for ks in range(pre): lda(ks)
    else:
        await_(C_E, 8)
        for q in range(8):
            g0[q](); unpack(2*q); unpack(2*q + 1)
        K.wait_vm(tk_h - 1)
        signal(S_FL2)
        K(f"s_setprio 0")
        stamp("h_pub1")
        poll_issue(FL_E)
        run(g1)
        poll_check(FL_E)
        stamp("hE_seen")
        for ks in range(4): lda(ks)
        K.wait_vm(tk_r[0])
        for ks in range(4):
            if ks == 3: K.wait_lg(tk[0])
            rdb(ks); lda(4 + ks)
        K.wait_vm(tk_r[1]); K.wait_lg(tk[3])
        for q in range(8):
            g2[q]()
            if q < 4:
                if q == 3: K.wait_lg(tk[4])
                rdb(4 + q)
        K("s_waitcnt lgkmcnt(0)")
    stamp("p2_prep")
    poll_issue(FL_L)
    for ks in range(pre if aw2 else 8, 12): pend.extend([lambda ks=ks: lda(ks, 1), lambda ks=ks: lda(ks, 2)])
    pend.extend(g3)
    def step(ks, side):
        K.wait_vm(tk_a[ks])
        if ks >= 8: K.wait_lg(tk[ks])
        a = M_AR + 8 * (ks % NA); b = M_BH + 8 * (ks % 8)
        n = 0
        for t2_ in range(2):
            for pp in range(2):
                mfma(M_ACC + 32*t2_ + 16*pp, b + 4*pp, a + 4*t2_)
                side(n); n += 1
    nxt = [12]
    for ks in range(28):
        def side(n):
            if n < 2 and ks + 3 >= 8: rdb(ks + 3, 1 << n)
            drip(2 if len(pend) > 8 else 1)
        step(ks, side)
        if ks == c0:
            poll_check(FL_L)
            stamp("hL_seen")
        if ks == 7:
            await_(C_3, 4)
            pend.extend(g_w2(4))
        while ks >= c0 and nxt[0] <= ks + NA and nxt[0] < 28:
            pend.extend([lambda k=nxt[0]: lda(k, 1), lambda k=nxt[0]: lda(k, 2)]); nxt[0] += 1
        if ks == 11: pend.extend(g_w2(5))
        if ks == 15: pend.extend(g_w2(6))
        if ks == 17:
            await_(C_Q, 4)
            pend.extend(g_wo(0))
        if ks == 19: pend.extend(g_wo(1))
        if ks in (3, 11, 19): stamp(f"p2_k{ks}")
    assert not pend
    K("s_waitcnt lgkmcnt(4)")
    poll_issue(FL_O)
    stamp("p2_h_done")
    K(f"v_and_b32 v{t2}, 31, v{V_LANE}"); K(f"v_lshlrev_b32 v{t2}, 2, v{t2}")
    K(f"s_lshl_b32 s{T+3}, s{S_OB}, 7"); K(f"s_add_u32 s{T+3}, s{T+3}, {WS_G}")
    K(f"s_lshl_b32 s{T+4}, s{S_OB}, 11"); K(f"s_add_u32 s{T+4}, s{T+4}, {WS_O}")
    K(f"v_add_u32 v{M_L16B}, 32768, v{V_L16}")
    K(f"v_add_u32 v{V_D2}, s{S_M02}, v{V_L16}")
    for q in range(1, 4): K(f"v_xor_b32 v{V_D2+q}, {64*q}, v{V_D2}")
    poll_check(FL_O)
    stamp("o_seen")
    K(f"buffer_load_dword v{t4}, v{t2}, {srd(R_WS)}, s{T+3} offen sc1")
    tk_g = K(f"buffer_load_dword v{t5}, v{t2}, {srd(R_WS)}, s{T+3} offen offset:2048 sc1")
    for ks in range(28, 36):
        b = M_AR + 8 * (ks % NA)
        if ks == 32: K(f"s_add_u32 s{T+4}, s{T+4}, 4096")
        K(f"buffer_load_dwordx4 {vr(b,4)}, v{V_L16}, {srd(R_WS)}, s{T+4} offen offset:{1024*(ks%4)} sc1")
        tk_a[ks] = K(f"buffer_load_dwordx4 {vr(b+4,4)}, v{M_L16B}, {srd(R_WS)}, s{T+4} offen offset:{1024*(ks%4)} sc1")
    K.wait_vm(tk_g)
    if f2: stamp("t_g")
    K(f"v_sub_f32 v{t4}, 1.0, v{t4}"); K(f"v_sub_f32 v{t5}, 1.0, v{t5}")
    K(f"v_cvt_pk_bf16_f32 v{t4}, v{t4}, v{t5}"); K(f"v_and_b32 v{t5}, 0xffff0000, v{t4}"); K(f"v_lshlrev_b32 v{t4}, 16, v{t4}")
    for e in range(0, 64, 2): pscale(M_ACC+e, t4 if e < 32 else t5, True)
    for ks in range(28, 36):
        def side(n):
            if n < 2 and ks + 3 < 36: rdb(ks + 3, 1 << n)
        step(ks, side)
    if f2: stamp("t_mf")
    for t2_ in range(2):
        for b in range(8): K(f"ds_write_b128 v{V_D2 + b%4}, {vr(M_ACC+32*t2_+4*b,4)} offset:{32768*t2_ + 1024*b}")
    stamp("p2_done")

    K.label("L_red")
    K(f"v_and_b32 v{t1}, 7, v{V_LANE}"); K(f"v_lshrrev_b32 v{t3}, 3, v{V_LANE}")
    K(f"s_lshl_b32 s{T+1}, s{S_A}, 3"); K(f"v_add_u32 v{t0}, s{T+1}, v{t3}")
    K(f"v_and_b32 v{t2}, 3, v{V_LANE}"); K(f"v_lshlrev_b32 v{t2}, 2, v{t2}"); K(f"v_xor_b32 v{t0}, v{t0}, v{t2}")
    K(f"v_lshlrev_b32 v{t0}, 4, v{t0}"); K(f"v_lshl_add_u32 v{t0}, v{t1}, 10, v{t0}")
    K(f"s_lshr_b32 s{T+2}, s{S_W}, 2"); K(f"s_lshl_b32 s{T}, s{T+2}, 15"); K(f"v_add_u32 v{t0}, s{T}, v{t0}")
    K(f"v_mul_u32_u24 v{t3}, 896, v{t3}"); K(f"v_lshl_add_u32 v{t3}, v{t1}, 4, v{t3}")
    K(f"s_lshl_b32 s{T}, s{S_ROW}, 2"); K(f"s_add_u32 s{T}, s{T}, s{S_W}"); K(f"s_mul_i32 s{T}, s{T}, {8*896}"); K(f"s_lshl_b32 s{T+1}, s{S_CT}, 7"); K(f"s_add_u32 s{T+5}, s{T}, s{T+1}")
    K("s_waitcnt lgkmcnt(0)")
    K("s_barrier")
    if f2: stamp("t_bar")
    R = 160
    for q in range(4):
        K(f"ds_read_b128 {vr(R+8*q,4)}, v{t0} offset:{8192*q}")
        K(f"ds_read_b128 {vr(R+8*q+4,4)}, v{t0} offset:{8192*q + 512}")
    K("s_waitcnt lgkmcnt(4)")
    for e in range(0, 8, 2): padd(R+e, R+e, R+8+e, True)
    K("s_waitcnt lgkmcnt(0)")
    for e in range(0, 8, 2): padd(R+16+e, R+16+e, R+24+e, True)
    for e in range(0, 8, 2): padd(R+e, R+e, R+16+e, True)
    for e in range(4): K(f"v_cvt_pk_bf16_f32 v{R+e}, v{R+2*e}, v{R+2*e+1}")
    K(f"buffer_store_dwordx4 {vr(R,4)}, v{t3}, {srd(R_OUT)}, s{T+5} offen" + ["", " sc1", " nt", " sc0 sc1"][outm])
    if f2: stamp("t_st")
    K(f"s_or_b32 s{T}, s2, s{S_W}"); K(f"s_cmp_lg_u32 s{T}, 0")
    K.branch("s_cbranch_scc1 L_fin")
    K(f"s_mov_b32 s{T}, {WS_EPOCH}")
    flag(T)
    K.label("L_fin")
    if stamps:
        K("s_waitcnt vmcnt(0)")
        stamp("end")
        if probe is not None:
            i0 = STAMP_IDS.setdefault('start', len(STAMP_IDS)); i1 = STAMP_IDS.setdefault(probe, len(STAMP_IDS))
            K(f"v_readlane_b32 s{T}, v{V_STAMP}, {i0}"); K(f"v_readlane_b32 s{T+1}, v{V_STAMP}, {i1}")
            K("s_nop 4")
            K(f"s_cmp_eq_u32 s{T+1}, 0"); K(f"s_cselect_b32 s{T+1}, s{T}, s{T+1}")
            if pwg >= 0:
                K(f"s_cmp_lg_u32 s2, {pwg}")
                K.branch("s_cbranch_scc1 L_end")
            K.label("L_probe")
            K("s_sleep 2")
            K(f"s_memrealtime {sp(S_ST)}"); K("s_waitcnt lgkmcnt(0)")
            K(f"s_sub_u32 s{T+2}, s{S_ST}, s{T+1}"); K(f"s_cmp_lt_u32 s{T+2}, {pt}")
            K.branch("s_cbranch_scc1 L_probe")
            K.branch("s_branch L_end")
        K(f"s_lshl_b32 s{T}, s2, 3"); K(f"s_add_u32 s{T}, s{T}, s{S_W}"); K(f"s_lshl_b32 s{T}, s{T}, 8"); K(f"s_add_u32 s{T}, s{T}, {WS_STAMP}")
        K(f"v_lshlrev_b32 v{t0}, 2, v{V_LANE}")
        K(f"buffer_store_dword v{V_STAMP}, v{t0}, {srd(R_WS)}, s{T} offen")
    K.label("L_end")
    K("s_endpgm")
    K.raw(f".fill (28672 + 4096 * {1 if stamps else 0} - (L_end - {NAME})) / 4, 4, 0xbf800000")

    head = f"""; Fused gated mix of hedgehog linear attention and GELU FFN (emitted by a hand-written generator script)
; @launch grid=(256,1,1) block=(512,1,1) lds=163840
.amdgcn_target "amdgcn-amd-amdhsa--gfx950"
.text
.globl {NAME}
.p2align 8
.type {NAME},@function
"""
    tail = f""".section .rodata,"a"
.p2align 6
.amdhsa_kernel {NAME}
  .amdhsa_next_free_vgpr 256
  .amdhsa_next_free_sgpr 102
  .amdhsa_accum_offset 256
  .amdhsa_group_segment_fixed_size 0
  .amdhsa_kernarg_size 104
  .amdhsa_user_sgpr_count 2
  .amdhsa_user_sgpr_kernarg_segment_ptr 1
  .amdhsa_system_sgpr_workgroup_id_x 1
.end_amdhsa_kernel
"""
    return head + K.text() + tail

STAMP_IDS = {}
def parse_opts(argv):
    kw = {}
    for a in argv:
        if a.startswith("-D"):
            k, v = a[2:].split("="); kw[k] = int(v) if v.lstrip("-").isdigit() else v
    return kw
if __name__ == "__main__":
    out = sys.argv[1] if len(sys.argv) > 1 else "k.s"
    open(out, "w").write(gen(**parse_opts(sys.argv)))
```

```python
import sys, struct
from asmlib import Asm

NAME = "gated_mix__linear_kernel_hedgehog__dense_activation_gelu__prompt_kernel"
def f2u(x): return struct.unpack("<I", struct.pack("<f", x))[0]

WS_EPOCH = 0
WS_RPF   = 0x8000
WS_STAMP = 0x10000
WS_G     = 0xA0000
WS_WQ    = 0x100000
WS_KVP   = 0x280000
WS_O     = 0x480000
WS_H     = 0x680000
WS_CN    = 0x300000
WS_HF    = WS_CN
WS_OF    = WS_CN + 2048*128
WS_KVF   = WS_CN + 3072*128
WS_SIZE  = 0xE00000

U = [0, 32768, 65536, 98304, 131072]
L_K, L_V, L_Q = 98304, 126976, 65536
L_MISC = 155648
L_PHI, L_CNT, L_B2, L_B1 = L_MISC, L_MISC + 2048, L_MISC + 2560, L_MISC + 3072
L_KVS = U[3]
L_KVF = L_MISC + 4096
RUNIT = [0, 1, 0, 1, 3, 0, 1, 2, 3]
C_E, C_0, C_1, C_2, C_3, C_4, C_Q, C_G, C_B, C_S, C_5 = 0, 4, 8, 12, 16, 20, 24, 28, 32, 36, 40

P_X, P_WQKV, P_PHI, P_WO, P_W1, P_B1, P_W2 = 16, 18, 20, 22, 26, 28, 30
P_B2, P_GATE, P_OUT, P_WS = 32, 34, 36, 40
R_X, R_W1, R_W2, R_WO, R_WS, R_OUT, R_T = 44, 48, 52, 56, 60, 64, 68
S_MT, S_J, S_W, S_A, S_FL2, S_TAG, S_CH, S_CNT = 72, 73, 74, 75, 76, 78, 77, 100
S_CHO = 80
S_M0 = 87
S_XB, S_W1B = 88, 89
S_T = 90
S_UP = 98
S_E = 42
S_H = S_J
S_CT, S_ROW, S_ACT = 43, 3, 101
S_K = 4
S_ST = 6
S_L28 = 24
S_FL = 8
S_HB, S_W2B, S_OB, S_HB3, S_W2B3, S_M02, S_RS = 9, 10, 11, 12, 13, 14, 15
S_PE, S_P3, S_PO = 34, 35, 38
PD = [16, 17, 18, 19, 20, 21, 22, 23, 26, 27, 28, 29, 30, 31, 32, 33]
def srd(r): return f"s[{r}:{r+3}]"
def sp(r): return f"s[{r}:{r+1}]"

V_LANE, V_L16, V_STAMP, V_TAG, V_POLL, V_CNT = 1, 2, 3, 4, 5, 6
V_T = 8
V_D2 = 18
A_PA, A_AX, A_AD, A_L4, A_PH, A_TR, A_G = 7, 14, 22, 24, 25, 30, 31
V_W, V_P, V_ACC, V_PHI, V_X = 32, 64, 96, 128, 144
A_XD, A_WD, A_QD, A_GW = 64, 68, 72, 16
M_L16B, M_AB = 7, 14
M_ACC, M_BH, M_AR = 24, 88, 152
M_AX, M_AW = 136, 140
NA = 13
def vr(a, n): return f"v[{a}:{a+n-1}]"
UPM = sp(S_UP)
L2E = 1.4426950408889634

def gen(stamps=False, spin=20000, rot1=False, codepf=True, slp=2, cyc=False, G=5, prioA=1, prioM=2, kvf=27, fine=False,
        pkq=0, pkk=1, LA=9, LA0=6, c0=2, mpf=60, outm=0, tlb=21, gw=-1, hf0=7, rpb=3, prioG=2, k6=4, qpf=1, sb=1, qd=0, probe=None, pwg=-1, pt=4000, aw2=2, pre=8, cb=22, pkg=2, rpa=0, f2=0, hfirst=1, early=0, oc=22, x_now2=0, x_noh=0, x_nomf=0, x_now1=0, rb2=0):
    K = Asm()
    T = S_T
    TD = T + 5
    t0, t1, t2, t3, t4, t5 = range(V_T, V_T + 6)
    def stamp(name):
        if not stamps: return
        if probe is not None and name != probe: return
        K("s_waitcnt lgkmcnt(0)")
        K(f"s_memrealtime {sp(S_ST)}")
        if cyc: K(f"s_memtime s[0:1]")
        K("s_waitcnt lgkmcnt(0)")
        i = STAMP_IDS.setdefault(name, len(STAMP_IDS))
        K(f"v_writelane_b32 v{V_STAMP}, s{S_ST}, {i}")
        if cyc: K(f"v_writelane_b32 v{V_STAMP}, s0, {32 + i}")
    uid = [0]
    def newl(p): uid[0] += 1; return f"L_{p}{uid[0]}"
    def poll_issue(fl):
        K(f"s_load_dword s{PD[0]}, {sp(P_WS)}, s{fl[0]} offset:{fl[1]} glc")
    def poll_check(fl):
        l, d = newl("poll"), newl("polld")
        K(f"s_mov_b32 s{S_CNT}, {spin}")
        K.raw(f"{l}:")
        K("s_waitcnt lgkmcnt(0)")
        K(f"s_cmp_eq_u32 s{PD[0]}, {fl[2]}")
        K.branch(f"s_cbranch_scc1 {d}")
        K(f"s_sub_u32 s{S_CNT}, s{S_CNT}, 1")
        K(f"s_cbranch_scc1 {d}")
        if slp: K(f"s_sleep {slp}")
        poll_issue(fl)
        K(f"s_branch {l}")
        K.label(d)
    def signal(soff_reg, n):
        K(f"v_mov_b32 v{t5}, 1"); K(f"v_lshlrev_b32 v{V_POLL}, 7, v{V_LANE}")
        K(f"s_mov_b64 exec, {(1 << n) - 1}")
        K(f"buffer_atomic_add v{t5}, v{V_POLL}, {srd(R_WS)}, s{soff_reg} offen")
        K("s_mov_b64 exec, -1")
    def vpoll_issue(vaddr):
        return K(f"buffer_load_dword v{V_POLL}, v{vaddr}, {srd(R_WS)}, 0 offen sc1")
    def vpoll_check(tok, vaddr):
        l, d = newl("poll"), newl("polld")
        K(f"s_mov_b32 s{S_CNT}, {spin}")
        K.wait_vm(tok)
        K.label(l)
        K(f"v_cmp_ne_u32 vcc, s{S_TAG}, v{V_POLL}")
        K.branch(f"s_cbranch_vccz {d}")
        K(f"s_sub_u32 s{S_CNT}, s{S_CNT}, 1")
        K.branch(f"s_cbranch_scc1 {d}")
        K(f"s_sleep 10")
        K(f"buffer_load_dword v{V_POLL}, v{vaddr}, {srd(R_WS)}, 0 offen sc1"); K.vm -= 1
        K("s_waitcnt vmcnt(0)")
        K.branch(f"s_branch {l}")
        K.label(d)
    def flag(soff_reg):
        K("s_mov_b64 exec, 1")
        K(f"buffer_store_dword v{V_TAG}, v{V_LANE}, {srd(R_WS)}, s{soff_reg} offen sc1")
        K("s_mov_b64 exec, -1")
    def arrive(c):
        K(f"v_mov_b32 v{t5}, 1")
        K("s_mov_b64 exec, 1")
        K(f"ds_add_u32 v{V_CNT}, v{t5} offset:{c}")
        K("s_mov_b64 exec, -1")
    def await_(c, n, sleep=0):
        l, d = newl("aw"), newl("awd")
        K(f"s_mov_b32 s{S_CNT}, {spin * 8}")
        K.label(l)
        K(f"ds_read_b32 v{t5}, v{V_CNT} offset:{c}")
        K("s_waitcnt lgkmcnt(0)")
        K(f"v_cmp_ne_u32 vcc, {n}, v{t5}")
        K.branch(f"s_cbranch_vccz {d}")
        if sleep: K(f"s_sleep {sleep}")
        K(f"s_sub_u32 s{S_CNT}, s{S_CNT}, 1")
        K.branch(f"s_cbranch_scc0 {l}")
        K.label(d)
    def mksrd(r, p, nbytes):
        K(f"s_mov_b32 s{r}, s{p}"); K(f"s_and_b32 s{r+1}, s{p+1}, 0xffff")
        K(f"s_mov_b32 s{r+2}, {nbytes}"); K(f"s_mov_b32 s{r+3}, 0x20000")
    def mfma(d, a, b, c=None):
        cs = vr(d, 16) if c is None else c
        K(f"v_mfma_f32_32x32x16_bf16 {vr(d,16)}, {vr(a,4)}, {vr(b,4)}, {cs}")
    def padd(d, a, b, pk):
        if pk: K(f"v_pk_add_f32 {vr(d,2)}, {vr(a,2)}, {vr(b,2)}")
        else: K(f"v_add_f32 v{d}, v{a}, v{b}"); K(f"v_add_f32 v{d+1}, v{a+1}, v{b+1}")
    def pscale(d, r, pk):
        if pk: K(f"v_pk_mul_f32 {vr(d,2)}, {vr(d,2)}, {vr(r & ~1,2)} " + ("op_sel:[0,1] op_sel_hi:[1,1]" if r & 1 else "op_sel_hi:[1,0]"))
        else: K(f"v_mul_f32 v{d}, v{d}, v{r}"); K(f"v_mul_f32 v{d+1}, v{d+1}, v{r}")
    def settag():
        K(f"s_add_u32 s{S_TAG}, s{S_E}, 0x9E3779B9"); K(f"s_mov_b32 s{S_TAG+1}, s{S_TAG}"); K(f"v_mov_b32 v{V_TAG}, s{S_TAG}")
    def xfrag_addr(dst):
        K(f"v_and_b32 v{t0}, 31, v{V_LANE}"); K(f"v_lshrrev_b32 v{t2}, 5, v{V_LANE}"); K(f"v_bfe_u32 v{t3}, v{V_LANE}, 1, 3")
        K(f"v_xor_b32 v{t3}, v{t2}, v{t3}"); K(f"s_lshl_b32 s{T}, s{S_A}, 12"); K(f"v_lshlrev_b32 v{t0}, 7, v{t0}")
        K(f"v_lshl_add_u32 v{t0}, v{t3}, 4, v{t0}"); K(f"v_add_u32 v{dst}, s{T}, v{t0}")
        for k in range(1, 4): K(f"v_xor_b32 v{dst+k}, {32*k}, v{dst}")
    def lanepart():
        K(f"v_bfe_u32 v{t4}, v{V_LANE}, 4, 1"); K(f"v_lshlrev_b32 v{t4}, 5, v{t4}")
        K(f"v_and_b32 v{t3}, 3, v{V_LANE}"); K(f"v_lshl_add_u32 v{t4}, v{t3}, 3, v{t4}")
        K(f"v_bfe_u32 v{t3}, v{V_LANE}, 2, 2"); K(f"v_lshrrev_b32 v{t2}, 5, v{V_LANE}")
    def p2setup():
        mksrd(R_W2, P_W2, 0 if x_now2 else 1792*896)
        K(f"s_and_b32 s{T}, s2, 7"); K(f"s_lshr_b32 s{T+1}, s2, 3")
        K(f"s_mul_i32 s{T+2}, s{T+1}, 37"); K(f"s_lshr_b32 s{T+2}, s{T+2}, 8"); K(f"s_mul_i32 s{T+3}, s{T+2}, 7"); K(f"s_sub_u32 s{S_CT}, s{T+1}, s{T+3}")
        K(f"s_lshl_b32 s{T+2}, s{T+2}, 1"); K(f"s_lshl_b32 s{T+3}, s{T}, 3"); K(f"s_add_u32 s{S_ROW}, s{T+2}, s{T+3}")
        K(f"s_cmp_lt_u32 s{T+1}, 28"); K(f"s_cselect_b32 s{S_ACT}, 1, 0")
        K(f"s_and_b32 s{T+2}, s{S_A}, 1"); K(f"s_mul_i32 s{T+3}, s{S_A}, 7"); K(f"s_add_u32 s{T+4}, s{T+3}, s{T+2}")
        K(f"s_cmp_eq_u32 s{T+2}, 0"); K(f"s_cselect_b32 s{T+2}, 6, 0"); K(f"s_add_u32 s{T+2}, s{T+2}, s{T+3}")
        K(f"s_lshl_b32 s{T}, s{S_CT}, 7")
        K(f"s_mul_i32 s{S_W2B}, s{T+4}, {64*896}"); K(f"s_add_u32 s{S_W2B}, s{S_W2B}, s{T}")
        K(f"s_mul_i32 s{S_W2B3}, s{T+2}, {64*896}"); K(f"s_add_u32 s{S_W2B3}, s{S_W2B3}, s{T}")
        K(f"s_lshl_b32 s{S_M02}, s{S_A}, 13")
        K(f"v_lshrrev_b32 v{t0}, 3, v{V_LANE}"); K(f"v_and_b32 v{t1}, 7, v{V_LANE}")
        K(f"v_bfe_u32 v{t2}, v{V_LANE}, 4, 1"); K(f"v_lshlrev_b32 v{t2}, 2, v{t2}"); K(f"v_xor_b32 v{t1}, v{t1}, v{t2}")
        K(f"v_mul_u32_u24 v{t0}, 896, v{t0}"); K(f"v_lshl_add_u32 v{V_D2}, v{t1}, 4, v{t0}")
        for q in range(1, 4): K(f"v_add_u32 v{V_D2+q}, {q*(8*896-1024)}, v{V_D2}")
        K(f"v_mov_b32 v{V_CNT}, {L_CNT}")
    def shift(regs, d):
        for r in regs:
            if d > 0: K(f"v_add_u32 v{r}, {d}, v{r}")
            elif d < 0: K(f"v_subrev_u32 v{r}, {-d}, v{r}")
    pend = []
    def drip(n):
        for _ in range(n):
            if pend: pend.pop(0)()
    def run(steps):
        for f in steps: f()
    tk_r = {}
    def g_w2(r):
        def step(q):
            def f():
                if q % 4 == 0:
                    K(f"s_add_u32 s{TD}, s{S_W2B3 if r == 3 else S_W2B}, {(0 if r == 3 else (2*r % 7)*64*896) + (q // 4)*32*896}")
                    K(f"s_add_u32 m0, s{S_M02}, {U[RUNIT[r]] + (q // 4)*4096}")
                x = K(f"buffer_load_dwordx4 v{V_D2+q%4}, {srd(R_W2)}, s{TD} offen offset:{1024*(q%4)} lds")
                if q == 7: tk_r[r] = x
            return f
        return [step(q) for q in range(8)]
    SH = [0, 0, 65536, 0, -65536, 0, 65536]

    K.raw(f"{NAME}:")
    K("s_cmp_ge_u32 s2, 256"); K("s_cbranch_scc1 L_end")
    if stamps and early: K(f"s_memrealtime {sp(S_ST)}"); K("s_waitcnt lgkmcnt(0)")
    K("s_load_dwordx16 s[16:31], s[0:1], 0"); K("s_load_dwordx8 s[32:39], s[0:1], 64"); K("s_load_dwordx2 s[40:41], s[0:1], 96")
    if stamps:
        if not early: K(f"s_memrealtime {sp(S_ST)}")
        K(f"v_mov_b32 v{V_STAMP}, 0")
    K(f"v_lshrrev_b32 v{t0}, 6, v0"); K(f"v_and_b32 v{V_LANE}, 63, v0")
    K(f"v_readfirstlane_b32 s{S_W}, v{t0}")
    K(f"v_lshlrev_b32 v{V_L16}, 4, v{V_LANE}")
    K(f"s_and_b32 s{T}, s2, 7"); K(f"s_lshr_b32 s{T+1}, s2, 3")
    if codepf:
        K(f"s_lshr_b32 s{T+2}, s2, 5"); K(f"s_lshl_b32 s{T+2}, s{T+2}, 3"); K(f"s_or_b32 s{T+2}, s{T+2}, s{S_W}"); K(f"s_cmp_lg_u32 s{T+2}, 7")
        K("s_cbranch_scc1 L_nopf")
        K(f"s_getpc_b64 {sp(T+2)}")
        K.raw("L_pc:")
        K(f"s_lshl_b32 s{T+4}, s{T+1}, 7"); K(f"s_sub_u32 s{T+2}, s{T+2}, L_pc - {NAME}"); K(f"s_subb_u32 s{T+3}, s{T+3}, 0")
        K(f"s_add_u32 s{T+2}, s{T+2}, s{T+4}"); K(f"s_addc_u32 s{T+3}, s{T+3}, 0")
        K(f"v_lshlrev_b32 v{t0}, 9, v{V_LANE}")
        K("s_mov_b32 exec_hi, 0xffffff")
        K(f"global_load_dword v{V_POLL}, v{t0}, {sp(T+2)}"); K.vm -= 1
        K("s_mov_b32 exec_hi, -1")
        K.label("L_nopf")
    K(f"s_and_b32 s{T+2}, s{T}, 2"); K(f"s_lshl_b32 s{T+2}, s{T+2}, 1")
    K(f"s_and_b32 s{T+3}, s{T}, 1"); K(f"s_cmp_lt_u32 s{T+1}, 4"); K(f"s_cselect_b32 s{T+4}, 14, 12"); K(f"s_add_u32 s{T+3}, s{T+3}, s{T+4}")
    K(f"s_lshr_b32 s{T+4}, s{T+1}, 3"); K(f"s_lshl_b32 s{S_J}, s{T+4}, 2"); K(f"s_and_b32 s{S_MT}, s{T}, 3"); K(f"s_add_u32 s{S_J}, s{S_J}, s{S_MT}"); K(f"s_sub_u32 s{S_J}, s{S_J}, 4")
    K(f"s_cmp_lt_u32 s{T+1}, 8"); K(f"s_cselect_b32 s{S_J}, s{T+3}, s{S_J}"); K(f"s_cselect_b32 s{T+2}, s{T+2}, 0")
    K(f"s_and_b32 s{T+3}, s{T+1}, 7"); K(f"s_xor_b32 s{T+3}, s{T+3}, s{T+2}")
    K(f"s_and_b32 s{S_MT}, s{T}, 4"); K(f"s_lshl_b32 s{S_MT}, s{S_MT}, 1"); K(f"s_add_u32 s{S_MT}, s{S_MT}, s{T+3}")
    K(f"s_and_b32 s{S_A}, s{S_W}, 3")
    K(f"s_lshl_b32 s{S_W1B}, s{S_J}, 8")
    K(f"s_cmp_ge_u32 s{S_W}, 4")
    K.branch("s_cbranch_scc1 L_M")

    if prioA: K(f"s_setprio {prioA}")
    K(f"s_lshl_b32 s{T+4}, s{T+4}, 1"); K(f"s_add_u32 s{T+2}, s{T+3}, s{T+4}")
    K(f"s_cmp_ge_u32 s{T+2}, 7"); K(f"s_cselect_b32 s{T+3}, 7, 0"); K(f"s_sub_u32 s{S_CH}, s{T+2}, s{T+3}")
    if not rot1: K(f"s_mov_b32 s{S_CH}, 0")
    def rotstep(t):
        K(f"s_lshl_b32 s{S_CHO+t}, s{S_CH}, 12")
        if t < 6: K(f"s_add_u32 s{S_CH}, s{S_CH}, 1"); K(f"s_cmp_eq_u32 s{S_CH}, 7"); K(f"s_cselect_b32 s{S_CH}, 0, s{S_CH}")
    rotstep(0); rotstep(1)
    K(f"s_lshl_b32 s{S_M0}, s{S_A}, 12")
    K(f"s_mul_i32 s{S_XB}, s{S_MT}, {128*896}")
    K(f"v_lshrrev_b32 v{t0}, 3, v{V_LANE}"); K(f"v_and_b32 v{t1}, 7, v{V_LANE}"); K(f"v_lshrrev_b32 v{t2}, 1, v{t0}"); K(f"v_xor_b32 v{t2}, v{t1}, v{t2}")
    K(f"s_lshl_b32 s{T+2}, s{S_A}, 5"); K(f"v_add_u32 v{t3}, s{T+2}, v{t0}"); K(f"v_mul_u32_u24 v{t3}, 896, v{t3}")
    K(f"v_lshl_add_u32 v{A_XD}, v{t2}, 4, v{t3}"); K(f"v_xor_b32 v{t2}, 4, v{t2}"); K(f"v_lshl_add_u32 v{A_XD+1}, v{t2}, 4, v{t3}")
    K(f"v_add_u32 v{A_XD+1}, {8*896-1024}, v{A_XD+1}")
    K(f"v_add_u32 v{A_XD+2}, {16*896-2048}, v{A_XD}"); K(f"v_add_u32 v{A_XD+3}, {16*896-2048}, v{A_XD+1}")
    K(f"v_lshrrev_b32 v{t0}, 4, v{V_LANE}"); K(f"v_and_b32 v{t1}, 15, v{V_LANE}"); K(f"v_lshlrev_b32 v{t2}, 2, v{t0}"); K(f"v_xor_b32 v{t2}, v{t1}, v{t2}")
    K(f"s_lshl_b32 s{T+2}, s{S_A}, 4"); K(f"v_add_u32 v{t3}, s{T+2}, v{t0}"); K(f"v_mul_u32_u24 v{t3}, 3584, v{t3}")
    K(f"v_lshl_add_u32 v{A_WD}, v{t2}, 4, v{t3}")
    for q in range(1, 4): K(f"v_add_u32 v{A_WD+q}, {q*(4*3584-1024)}, v{A_WD}")
    K("s_waitcnt lgkmcnt(0)")
    if stamps: K(f"v_writelane_b32 v{V_STAMP}, s{S_ST}, {STAMP_IDS.setdefault('start', len(STAMP_IDS))}")
    mksrd(R_X, P_X, 2048*896); mksrd(R_W1, P_W1, 0 if x_now1 else 448*3584)
    tk_stage = {}
    def g_stage(t):
        u = U[t % 4]
        def step(q):
            def f():
                if q == 0: K(f"s_lshr_b32 s{TD}, s{S_CHO+t}, 5"); K(f"s_add_u32 s{TD}, s{TD}, s{S_XB}"); K(f"s_add_u32 m0, s{S_M0}, {u}")
                if q == 4: K(f"s_mul_i32 s{TD}, s{S_CHO+t}, 56"); K(f"s_add_u32 s{TD}, s{TD}, s{S_W1B}"); K(f"s_add_u32 m0, s{S_M0}, {u + 16384}")
                if q < 4: K(f"buffer_load_dwordx4 v{A_XD+q}, {srd(R_X)}, s{TD} offen offset:{1024*q} lds")
                else: x = K(f"buffer_load_dwordx4 v{A_WD+q-4}, {srd(R_W1)}, s{TD} offen offset:{1024*(q-4)} lds")
                if q == 7: tk_stage[t] = x
            return f
        return [step(q) for q in range(8)]
    ilist = []
    for t in range(7): ilist += [(f, t - 2 if t >= 4 else -1) for f in g_stage(t)]
    pos = [0]
    def issue_to(n, lastbar):
        while pos[0] < min(n, len(ilist)) and ilist[pos[0]][1] <= lastbar:
            ilist[pos[0]][0](); pos[0] += 1
    if fine: stamp("A_karg")
    K(f"s_cmp_ge_u32 s{S_J}, 14")
    K.branch("s_cbranch_scc1 L_a1")
    vm0 = K.vm
    issue_to(8, -1)
    issue_to(8 + LA0, -1)
    K.label("L_a1")
    if fine: stamp("A_i1")
    K(f"s_load_dword s{S_E}, {sp(P_WS)}, {WS_EPOCH}")
    for t in range(2, 7): rotstep(t)
    mksrd(R_WS, P_WS, WS_SIZE); mksrd(R_OUT, P_OUT, 2048*896)
    p2setup()
    K(f"s_mov_b32 s{S_UP}, 0"); K(f"s_mov_b32 s{S_UP+1}, -1")
    K(f"s_mov_b32 s{S_L28}, 0x10000000"); K(f"s_mov_b32 s{S_L28+1}, 0x10000000")
    xfrag_addr(A_AX)
    lanepart()
    K(f"v_lshl_add_u32 v{t0}, v{t2}, 3, v{t3}"); K(f"v_lshl_add_u32 v{A_TR}, v{t0}, 6, v{t4}")
    K(f"v_lshl_add_u32 v{t0}, v{t2}, 2, v{t3}"); K(f"v_mul_u32_u24 v{t1}, 56, v{t0}"); K(f"v_add_u32 v{t1}, v{t1}, v{t4}"); K(f"v_add_u32 v{A_PH}, {L_PHI}, v{t1}")
    K(f"v_lshlrev_b32 v{A_L4}, 2, v{V_LANE}")
    K(f"s_lshl_b32 s{T}, s{S_A}, 10"); K(f"s_add_u32 s{T}, s{T}, {WS_RPF}"); K(f"v_and_b32 v{A_PA}, 7, v{V_LANE}"); K(f"v_lshl_add_u32 v{A_PA}, v{A_PA}, 7, s{T}")
    K(f"s_mul_i32 s{S_RS}, s{S_J}, {3*28672}"); K(f"s_mul_i32 s{S_P3}, s{S_A}, 7168"); K(f"s_add_u32 s{S_RS}, s{S_RS}, s{S_P3}"); K(f"s_add_u32 s{S_RS}, s{S_RS}, {WS_WQ}")
    K("s_waitcnt lgkmcnt(0)")
    settag()
    K(f"s_cmp_lt_u32 s{S_J}, 14")
    K.branch("s_cbranch_scc1 L_a2")
    sv = K.vm
    K(f"s_mul_i32 s{T}, s{S_A}, 3072"); K(f"s_add_u32 s{T}, s{T}, {L_K}")
    K("s_barrier")
    for t in range(7):
        K(f"s_lshr_b32 s{TD}, s{S_CHO+t}, 5"); K(f"s_add_u32 s{TD}, s{TD}, s{S_XB}")
        if t < 6: K(f"s_add_u32 m0, s{S_M0}, {16384*t}")
        else: K(f"s_add_u32 m0, s{S_M0}, s{T}")
        for q in range(4): K(f"buffer_load_dwordx4 v{A_XD+q}, {srd(R_X)}, s{TD} offen offset:{1024*q} lds")
        if t == rb2: K("s_barrier")
    K("s_waitcnt vmcnt(0)")
    for t in range(7):
        if t == 4: shift(range(A_AX, A_AX + 4), 65536)
        if t == 6:
            K(f"s_sub_u32 s{T}, s{T}, 65536")
            for k in range(4): K(f"v_add_u32 v{A_AX+k}, s{T}, v{A_AX+k}")
        for ksl in range(4): K(f"ds_read_b128 {vr(V_X + 16*t + 4*ksl, 4)}, v{A_AX+ksl} offset:{(t % 4) * 16384 if t < 6 else 0}")
        if t % 2 == 1: K("s_waitcnt lgkmcnt(4)")
    K("s_waitcnt lgkmcnt(0)")
    stamp("A_b6")
    vpoll_issue(A_PA)
    K.branch("s_branch L_a3")
    K.label("L_a2")
    K.vm = sv
    if fine: stamp("A_setup")
    tkx = {}
    def g_panel(p, lds):
        def step(q):
            def f():
                if q % 4 == 0: K(f"s_add_u32 s{TD}, s{S_RS}, {28672*p + (q // 4)*4096}"); K(f"s_add_u32 m0, s{S_P3}, {lds + (q // 4)*4096}")
                tkx[p] = K(f"buffer_load_dwordx4 v{V_L16}, {srd(R_WS)}, s{TD} offen offset:{1024*(q%4)} sc1 lds")
            return f
        return [step(q) for q in range(7)]
    for t in range(7):
        issue_to(8*(t+1) + (LA0 if t == 0 else LA), t - 1)
        shift(range(A_AX, A_AX + 4), SH[t])
        if t == 5:
            assert pos[0] == len(ilist)
            tkp = vpoll_issue(A_PA)
        if fine: stamp(f"A{t}a")
        K.wait_vm(tk_stage[t])
        if fine: stamp(f"A{t}b")
        if t < 6:
            if t >= 2: K("s_waitcnt lgkmcnt(4)")
            K("s_barrier")
        else: arrive(C_S)
        if t in (0, 4, 6): stamp(f"A_b{t}")
        for ksl in range(4): K(f"ds_read_b128 {vr(V_X + 16*t + 4*ksl, 4)}, v{A_AX+ksl} offset:{(t % 2) * 32768}")
    assert tkp == K.vm
    K.label("L_a3")
    arrive(C_E)
    vpoll_check(tkp, A_PA)
    stamp("rp_seen")
    run(g_panel(1, L_K) + g_panel(2, L_V))
    K(f"v_add_u32 v{A_PA}, 4096, v{A_PA}")
    tkp = vpoll_issue(A_PA)
    stamp("kv_issued")
    K(f"s_mov_b32 s{S_K}, {f2u(L2E):#x}"); K(f"s_mov_b32 s{S_K+1}, {f2u(L2E):#x}")
    VPH, VB = V_W + 24, V_W + 16
    for s in range(2):
        for r in range(2): K(f"ds_read_b64_tr_b16 {vr(VPH + 4*s + 2*r, 2)}, v{A_PH} offset:{(16*s + 8*r)*56}")
    K(f"s_lshl_b32 s{T}, s{S_A}, 11"); K(f"s_lshl_b32 s{T+1}, s{S_J}, 13"); K(f"s_add_u32 s{S_HB}, s{T+1}, s{T}"); K(f"s_add_u32 s{S_FL}, s{S_HB}, {WS_KVF}"); K(f"s_lshl_b32 s{S_PE}, s{S_MT}, 7"); K(f"s_add_u32 s{S_PE}, s{S_PE}, s{S_FL}"); K(f"s_add_u32 s{S_HB}, s{S_HB}, {WS_KVP}")
    FL_K = (S_PE, 0, 16)
    K(f"s_lshl_b32 s{T}, s{S_MT}, 2"); K(f"s_add_u32 s{T}, s{T}, s{S_A}")
    K(f"s_lshr_b32 s{T+1}, s{T}, 1"); K(f"s_lshl_b32 s{T+1}, s{T+1}, 2"); K(f"s_lshr_b32 s{T+2}, s{S_J}, 2"); K(f"s_add_u32 s{T+1}, s{T+1}, s{T+2}"); K(f"s_lshl_b32 s{T+1}, s{T+1}, 10"); K(f"s_add_u32 s{S_FL2}, s{T+1}, {WS_OF}")
    K(f"s_lshl_b32 s{T}, s{T}, 4"); K(f"s_add_u32 s{T}, s{T}, s{S_J}")
    K(f"s_lshl_b32 s{S_OB}, s{T}, 11"); K(f"s_add_u32 s{S_OB}, s{S_OB}, {WS_O}")
    K(f"s_lshl_b32 s{T+2}, s{T}, 7"); K(f"s_add_u32 s{S_XB}, s{T+2}, {WS_G - 128}")
    IDR = [26, 27, 28, 29, V_PHI, V_PHI+1, V_PHI+2, V_PHI+3]
    K(f"v_and_b32 v{t0}, 31, v{V_LANE}"); K(f"v_lshrrev_b32 v{t1}, 5, v{V_LANE}"); K(f"v_lshlrev_b32 v{t1}, 2, v{t1}")
    K(f"v_sub_u32 v{t0}, v{t0}, v{t1}")
    K(f"v_and_b32 v{t1}, 1, v{V_LANE}"); K(f"v_lshlrev_b32 v{t1}, 4, v{t1}"); K(f"v_mov_b32 v{t2}, 0x3f80"); K(f"v_lshlrev_b32 v{t1}, v{t1}, v{t2}")
    K(f"v_and_b32 v{t0}, -2, v{t0}")
    for s in range(2):
        for q in range(4): K(f"v_cmp_eq_u32 {sp(T+2*q)}, {16*s + 8*(q // 2) + 2*(q % 2)}, v{t0}")
        for q in range(4): K(f"v_cndmask_b32 v{IDR[4*s+q]}, 0, v{t1}, {sp(T+2*q)}")
    if aw2: K(f"s_cmp_eq_u32 s{S_ACT}, 1"); K(f"s_cselect_b32 s{R_W2+2}, s{R_W2+2}, 0")
    if aw2 == 1:
        await_(C_E, 8, 1)
        run(g_w2(0))
        K.wait_vm(tkx[2]); arrive(C_0)
        run(g_w2(1))
        if qd < 0: run(g_panel(0, L_Q))
    else: K.wait_vm(tkx[2]); arrive(C_0)
    stamp("kv_landed0")
    if aw2 == 1: K.wait_vm(tk_r[1]); arrive(C_B)
    await_(C_0, 4, 1)
    K(f"v_cndmask_b32 v{VPH+6}, v{VPH+6}, 0, {UPM}"); K(f"v_cndmask_b32 v{VPH+7}, v{VPH+7}, 0, {UPM}")
    await_(C_G if gw >= 0 else C_E, 4 if gw >= 0 else 8, 1)
    vpoll_check(tkp, A_PA)
    stamp("kv_start")

    def gemm_qkv(panels, hook=None):
        nb = len(panels) * 4
        D = 3 if len(panels) == 2 else 6
        tk = {}
        for n, (off, acc, sw) in enumerate(panels): K(f"v_add_u32 v{A_AX+n}, {off}, v{A_TR}")
        def rd(ks, n):
            t, ksl = ks // 4, ks % 4
            b = V_W + nb * (ks % D)
            if ksl == 0: K(f"v_add_u32 v{A_AD + n}, s{S_CHO+t}, v{A_AX+n}")
            for r in range(2):
                tk[ks] = K(f"ds_read_b64_tr_b16 {vr(b + 4*n + 2*r, 2)}, v{A_AD + n} offset:{(16*ksl + 4*r)*64}")
        for k in range(D):
            for n in range(len(panels)): rd(k, n)
        for ks in range(28):
            K.wait_lg(tk[ks])
            b = V_W + nb * (ks % D)
            for n, (off, acc, sw) in enumerate(panels):
                wv, xv = b + 4*n, V_X + 4*ks
                if sw: mfma(acc, xv, wv, "0" if ks == 0 else None)
                else: mfma(acc, wv, xv, "0" if ks == 0 else None)
                if ks + D < 28: rd(ks + D, n)
            if hook: hook(ks)
    QP = V_W
    P = V_ACC
    def featmap():
        for e in range(8): K(f"v_cvt_pk_bf16_f32 v{QP+e}, v{V_ACC+2*e}, v{V_ACC+2*e+1}")
        mfma(P, VPH, QP, "0"); mfma(P, VPH + 4, QP + 4)
    def softmax(pk):
        for e in range(4): K(f"v_cndmask_b32 v{P+12+e}, v{P+12+e}, v{P}, {UPM}")
        mx, mn = t0, t2
        K(f"v_max3_f32 v{mx}, v{P}, v{P+1}, v{P+2}"); K(f"v_min3_f32 v{mn}, v{P}, v{P+1}, v{P+2}")
        K(f"v_max3_f32 v{t1}, v{P+3}, v{P+4}, v{P+5}"); K(f"v_min3_f32 v{t3}, v{P+3}, v{P+4}, v{P+5}")
        for e in range(6, 14, 4):
            K(f"v_max3_f32 v{mx}, v{mx}, v{P+e}, v{P+e+1}"); K(f"v_min3_f32 v{mn}, v{mn}, v{P+e}, v{P+e+1}")
            K(f"v_max3_f32 v{t1}, v{t1}, v{P+e+2}, v{P+e+3}"); K(f"v_min3_f32 v{t3}, v{t3}, v{P+e+2}, v{P+e+3}")
        K(f"v_max3_f32 v{mx}, v{mx}, v{P+14}, v{P+15}"); K(f"v_min3_f32 v{mn}, v{mn}, v{P+14}, v{P+15}")
        K(f"v_max_f32 v{mx}, v{mx}, v{t1}"); K(f"v_min_f32 v{mn}, v{mn}, v{t3}")
        K(f"v_mov_b32 v{t1}, v{mx}"); K(f"v_mov_b32 v{t3}, v{mn}")
        K(f"v_permlane32_swap_b32 v{mx}, v{t1}"); K(f"v_permlane32_swap_b32 v{mn}, v{t3}")
        K(f"v_max_f32 v{mx}, v{mx}, v{t1}"); K(f"v_min_f32 v{mn}, v{mn}, v{t3}")
        K(f"v_mul_f32 v{mx}, s{S_K}, v{mx}"); K(f"v_mul_f32 v{mn}, s{S_K}, v{mn}")
        EP, EN = V_P, V_P + 16
        for e in range(0, 16, 2):
            if pk:
                K(f"v_pk_fma_f32 {vr(EP+e,2)}, {vr(P+e,2)}, {sp(S_K)}, {vr(mx,2)} op_sel_hi:[1,1,0] neg_lo:[0,0,1] neg_hi:[0,0,1]")
                K(f"v_pk_fma_f32 {vr(EN+e,2)}, {vr(P+e,2)}, {sp(S_K)}, {vr(mn,2)} op_sel_hi:[1,1,0] neg_lo:[1,0,0] neg_hi:[1,0,0]")
            else:
                for x in (e, e + 1):
                    K(f"v_fma_f32 v{EP+x}, v{P+x}, s{S_K}, -v{mx}"); K(f"v_fma_f32 v{EN+x}, -v{P+x}, s{S_K}, v{mn}")
        for e in range(16):
            K(f"v_exp_f32 v{EP+e}, v{EP+e}"); K(f"v_exp_f32 v{EN+e}, v{EN+e}")
        S = V_W
        for n, E in enumerate((EP, EN)):
            padd(S+4*n, E, E+2, pk); padd(S+4*n+2, E+12, E+14, pk)
        for n, E in enumerate((EP, EN)):
            padd(S+4*n, S+4*n, E+4, pk)
            K(f"v_cndmask_b32 v{S+4*n+2}, v{S+4*n+2}, 0, {UPM}"); K(f"v_cndmask_b32 v{S+4*n+3}, v{S+4*n+3}, 0, {UPM}")
        for n, E in enumerate((EP, EN)):
            padd(S+4*n, S+4*n, E+6, pk); padd(S+4*n+2, S+4*n+2, E+8, pk)
        for n, E in enumerate((EP, EN)): padd(S+4*n, S+4*n, E+10, pk)
        for n in range(2): padd(S+4*n, S+4*n, S+4*n+2, pk)
        K(f"v_add_f32 v{t0}, v{S}, v{S+1}"); K(f"v_add_f32 v{t2}, v{S+4}, v{S+5}")
        K(f"v_mov_b32 v{t1}, v{t0}"); K(f"v_mov_b32 v{t3}, v{t2}")
        K(f"v_permlane32_swap_b32 v{t0}, v{t1}"); K(f"v_permlane32_swap_b32 v{t2}, v{t3}")
        K(f"v_add_f32 v{t0}, v{t0}, v{t1}"); K(f"v_add_f32 v{t2}, v{t2}, v{t3}")
        K(f"v_rcp_f32 v{t0}, v{t0}"); K(f"v_rcp_f32 v{t2}, v{t2}")
        K(f"v_cndmask_b32 v{t1}, v{t0}, 0, {UPM}"); K(f"v_cndmask_b32 v{t3}, v{t2}, 0, {UPM}")
        for e in range(0, 16, 2):
            pscale(EP+e, t0 if e < 12 else t1, pk); pscale(EN+e, t2 if e < 12 else t3, pk)
        for e in range(8):
            K(f"v_cvt_pk_bf16_f32 v{V_PHI+e}, v{EP+2*e}, v{EP+2*e+1}"); K(f"v_cvt_pk_bf16_f32 v{V_PHI+8+e}, v{EN+2*e}, v{EN+2*e+1}")

    if aw2 == 2: pend.extend(g_w2(0) + g_w2(1))
    if qd >= 0: pend.extend(g_panel(0, L_Q))
    def hook(ks):
        if aw2 == 2:
            drip(1)
            if ks == cb: K.wait_vm(tk_r[1]); arrive(C_B)
        elif ks >= qd and (ks - qd) % 3 == 0: drip(1)
        if ks == 25: arrive(C_1)
    gemm_qkv([(L_K, V_ACC, False), (L_V, V_ACC + 16, True)], hook)
    featmap()
    assert not pend
    for e in range(4): K(f"v_mov_b32 v{V_W+8+e}, v{V_PHI+e}")
    IDR[4] = V_W + 8
    stamp("kv_gemm")
    K(f"v_mov_b32 v{t4}, 0x3f803f80")
    for e in range(8): K(f"v_cvt_pk_bf16_f32 v{VB+e}, v{V_ACC+16+2*e}, v{V_ACC+16+2*e+1}")
    for e in range(8): K(f"v_cndmask_b32 v{VB+e}, v{VB+e}, v{t4}, {sp(S_L28)}")
    softmax(pkk)
    stamp("sm_k")
    TP, TN = V_P, V_P + 16
    mfma(TP, V_PHI, IDR[0], "0"); mfma(TP, V_PHI + 4, IDR[4])
    mfma(TN, V_PHI + 8, IDR[0], "0"); mfma(TN, V_PHI + 12, IDR[4])
    await_(C_1, 4)
    if f2: stamp("kv_a")
    K(f"s_lshl_b32 s{T}, s{S_A}, 13"); K(f"s_add_u32 s{T}, s{T}, {L_KVS}"); K(f"v_add_u32 v{t0}, s{T}, v{V_L16}")
    K(f"s_lshl_b32 s{T}, s{S_A}, 11"); K(f"s_add_u32 s{T}, s{T}, {L_KVS}"); K(f"v_add_u32 v{t1}, s{T}, v{V_L16}")
    for e in range(8): K(f"v_cvt_pk_bf16_f32 v{V_PHI+e}, v{TP+2*e}, v{TP+2*e+1}")
    mfma(V_ACC, V_PHI, VB, "0"); mfma(V_ACC, V_PHI + 4, VB + 4)
    for e in range(8): K(f"v_cvt_pk_bf16_f32 v{V_PHI+8+e}, v{TN+2*e}, v{TN+2*e+1}")
    mfma(V_ACC + 16, V_PHI + 8, VB, "0"); mfma(V_ACC + 16, V_PHI + 12, VB + 4)
    for b in range(8): K(f"ds_write_b128 v{t0}, {vr(V_ACC+4*b,4)} offset:{1024*b}")
    K.wait_vm(tkx[0])
    arrive(C_2)
    if f2: stamp("kv_b")
    await_(C_2, 4)
    if f2: stamp("kv_c")
    for hb in range(2):
        for g in range(4): K(f"ds_read_b128 {vr(V_P+16*hb+4*g,4)}, v{t1} offset:{8192*g + 1024*hb}")
    arrive(C_3)
    if f2: stamp("kv_d")
    for hb in range(2):
        K(f"s_waitcnt lgkmcnt({5 - 4*hb})")
        B = V_P + 16*hb
        for e in (0, 2): padd(B+e, B+e, B+4+e, pkq); padd(B+8+e, B+8+e, B+12+e, pkq)
        for e in (0, 2): padd(B+e, B+e, B+8+e, pkq)
        for e in range(4): K(f"buffer_atomic_add_f32 v{B+e}, v{A_L4}, {srd(R_WS)}, s{S_HB} offen offset:{1024*hb + 256*e}")
    stamp("kv_st")
    def hook(ks):
        if ks == 22: arrive(C_Q)
        if ks == kvf:
            K("s_waitcnt vmcnt(0)")
            signal(S_FL, 16)
            stamp("kv_pub")
    gemm_qkv([(L_Q, V_ACC, False)], hook)
    K(f"v_cvt_pk_bf16_f32 v{t0}, v{V_ACC+12}, v{V_ACC+12}")
    featmap()
    K(f"v_lshlrev_b32 v{t0}, 16, v{t0}")
    K(f"v_mul_f32 v{t0}, s{S_K}, v{t0}"); K(f"v_exp_f32 v{t0}, -v{t0}"); K(f"v_add_f32 v{t0}, 1.0, v{t0}"); K(f"v_rcp_f32 v{t0}, v{t0}")
    K(f"v_cvt_pk_bf16_f32 v{t0}, v{t0}, v{t0}"); K(f"v_lshlrev_b32 v{A_G}, 16, v{t0}")
    K("s_mov_b32 exec_lo, 0")
    K(f"buffer_store_dword v{A_G}, v{A_L4}, {srd(R_WS)}, s{S_XB} offen sc1")
    K("s_mov_b32 exec_lo, -1")
    stamp("q_gemm")
    softmax(pkq)
    stamp("sm_q")
    poll_issue(FL_K)
    poll_check(FL_K)
    stamp("kv_seen")
    for e in range(8): K(f"buffer_load_dword v{V_P+e}, v{A_L4}, {srd(R_WS)}, s{S_HB} offen offset:{256*e} sc1")
    F = V_W
    K(f"s_lshl_b32 s{T}, s{S_A}, 10"); K(f"v_add_u32 v{t1}, {L_KVF}, v{V_L16}"); K(f"v_add_u32 v{t0}, s{T}, v{t1}")
    K("s_waitcnt vmcnt(0)")
    stamp("kv_landed")
    for e in range(4): K(f"v_cvt_pk_bf16_f32 v{F+e}, v{V_P+2*e}, v{V_P+2*e+1}")
    K(f"ds_write_b128 v{t0}, {vr(F,4)}")
    arrive(C_4)
    await_(C_4, 4)
    if f2: stamp("o_a")
    for f in range(4): K(f"ds_read_b128 {vr(F+4*f,4)}, v{t1} offset:{1024*f}")
    N = V_ACC
    for f in range(4):
        K(f"s_waitcnt lgkmcnt({3-f})")
        mfma(N, F + 4*f, V_PHI + 4*f, "0" if f == 0 else None)
    K(f"v_cvt_pk_bf16_f32 v{t0}, v{N+12}, v{N+12}")
    for e in range(8): K(f"v_cvt_pk_bf16_f32 v{F+e}, v{N+2*e}, v{N+2*e+1}")
    K(f"v_lshlrev_b32 v{t0}, 16, v{t0}")
    K(f"v_add_f32 v{t0}, {f2u(1e-6):#x}, v{t0}")
    K(f"v_cvt_pk_bf16_f32 v{t0}, v{t0}, v{t0}"); K(f"v_lshlrev_b32 v{t0}, 16, v{t0}")
    K(f"v_rcp_f32 v{t0}, v{t0}")
    for e in range(4):
        K(f"v_lshlrev_b32 v{N+2*e}, 16, v{F+e}"); K(f"v_and_b32 v{N+2*e+1}, 0xffff0000, v{F+e}")
    K(f"v_mul_f32 v{t0}, v{t0}, v{A_G}"); K(f"v_mov_b32 v{t1}, v{t0}")
    for e in range(4, 8):
        K(f"v_lshlrev_b32 v{N+2*e}, 16, v{F+e}"); K(f"v_and_b32 v{N+2*e+1}, 0xffff0000, v{F+e}")
    K(f"v_permlane32_swap_b32 v{t1}, v{t0}")
    for e in range(0, 16, 2): pscale(N+e, t0, pkq)
    for e in range(8): K(f"v_cvt_pk_bf16_f32 v{F+e}, v{N+2*e}, v{N+2*e+1}")
    K(f"v_cndmask_b32 v{F+6}, v{F+6}, 0, {UPM}"); K(f"v_cndmask_b32 v{F+7}, v{F+7}, 0, {UPM}")
    K(f"buffer_store_dwordx4 {vr(F,4)}, v{V_L16}, {srd(R_WS)}, s{S_OB} offen sc1")
    K(f"buffer_store_dwordx4 {vr(F+4,4)}, v{V_L16}, {srd(R_WS)}, s{S_OB} offen offset:1024 sc1")
    if f2: stamp("o_b")
    K("s_waitcnt vmcnt(0)")
    signal(S_FL2, 7)
    stamp("o_pub")
    K(f"s_cmp_eq_u32 s{S_ACT}, 0")
    K.branch("s_cbranch_scc1 L_fin")
    K.branch("s_branch L_red")

    K.label("L_M")
    if prioM: K(f"s_setprio {prioM}")
    K("s_waitcnt lgkmcnt(0)")
    if stamps: K(f"v_writelane_b32 v{V_STAMP}, s{S_ST}, {STAMP_IDS.setdefault('start', len(STAMP_IDS))}")
    K(f"s_load_dword s{S_E}, {sp(P_WS)}, {WS_EPOCH}")
    mksrd(R_T, P_PHI, 16*1568)
    K(f"s_mul_i32 s{T}, s{S_J}, 1568"); K(f"s_mul_i32 s{T+1}, s{S_A}, 400"); K(f"s_add_u32 s{T}, s{T}, s{T+1}"); K(f"s_add_u32 m0, s{T+1}, {L_PHI}")
    K("s_mov_b64 exec, 0x1ffffff")
    K(f"buffer_load_dwordx4 v{V_L16}, {srd(R_T)}, s{T} offen lds")
    K("s_mov_b64 exec, -1")
    K(f"v_mov_b32 v{V_CNT}, {L_CNT}")
    K(f"v_mov_b32 v{t0}, 0"); K(f"v_lshl_add_u32 v{t1}, v{V_LANE}, 2, v{V_CNT}"); K(f"ds_write_b32 v{t1}, v{t0}")
    K(f"s_cmp_lt_u32 s{S_J}, 14")
    K.branch("s_cbranch_scc1 L_mset")
    vm_m = K.vm
    RB = 96
    K0 = S_XB
    mksrd(R_T, P_WQKV, 448*2688)
    K(f"s_lshl_b32 s{S_FL}, s{S_MT}, 1"); K(f"s_add_u32 s{S_FL}, s{S_FL}, s{S_J}"); K(f"s_sub_u32 s{S_FL}, s{S_FL}, 14")
    K(f"s_mul_i32 s{K0}, s{S_FL}, 14"); K(f"s_lshl_b32 s{T+5}, s{S_A}, 1"); K(f"s_add_u32 s{K0}, s{K0}, s{T+5}")
    K(f"v_lshrrev_b32 v{t0}, 3, v{V_LANE}"); K(f"v_bfe_u32 v{t1}, v{V_LANE}, 2, 1"); K(f"v_and_b32 v{t2}, 3, v{V_LANE}")
    K(f"v_mul_u32_u24 v{t3}, 56, v{t0}"); K(f"v_mul_u32_u24 v{t4}, 2688, v{t1}"); K(f"v_add_u32 v{t3}, v{t3}, v{t4}")
    K(f"v_lshl_add_u32 v{t3}, v{t2}, 4, v{t3}")
    K(f"s_mul_i32 s{T+5}, s{K0}, 2688"); K(f"v_lshlrev_b32 v{t4}, 1, v{t1}"); K(f"s_lshl_b32 s{T+6}, s{K0}, 1")
    tkl = {}
    if fine: stamp("rp_0")
    K(f"s_add_u32 s{T+7}, s{T+5}, {8*2688}"); K(f"s_cmp_eq_u32 s{S_A}, 3"); K(f"s_cselect_b32 s{T+7}, 0x7000000, s{T+7}"); K(f"s_cselect_b32 s{S_CH}, s{T+7}, 512")
    def rp_load(q): tkl[q] = K(f"buffer_load_dwordx4 {vr(RB+4*q,4)}, v{t3}, {srd(R_T)}, s{T+5 if q < 6 else T+7} offen offset:{448*(q%6)}")
    for q in (2, 3, 4, 5, 8, 9, 10, 11): rp_load(q)
    mksrd(R_X, P_GATE, 896)
    K(f"buffer_load_ushort v{RB+48}, v{t4}, {srd(R_X)}, s{T+6} offen"); K(f"buffer_load_ushort v{RB+49}, v{t4}, {srd(R_X)}, s{T+6} offen offset:16")
    for q in (0, 1, 6, 7): rp_load(q)
    mksrd(R_WS, P_WS, WS_SIZE)
    K(f"s_mov_b32 s{T+6}, 86016"); K(f"v_mul_lo_u32 v{RB+50}, v{t0}, s{T+6}"); K(f"v_and_b32 v{t1}, 7, v{V_LANE}")
    K(f"v_lshl_add_u32 v{RB+50}, v{t1}, 4, v{RB+50}")
    K(f"v_cmp_eq_u32 vcc, 3, v{t2}")
    K(f"s_lshl_b32 s{K0}, s{K0}, 6"); K(f"s_add_u32 s{K0}, s{K0}, {WS_WQ}")
    def rp_store(q):
        n, p, hg = q // 6, (q % 6) // 2, q % 2; b = RB + 4*q
        K.wait_vm(tkl[q])
        K(f"v_cndmask_b32 v{b+2}, v{b+2}, v{RB+48+n}, vcc" if p == 0 else f"v_cndmask_b32 v{b+2}, v{b+2}, 0, vcc")
        K(f"v_cndmask_b32 v{b+3}, v{b+3}, 0, vcc")
        K(f"s_add_u32 s{T+6}, s{K0}, {p*28672 + hg*8*86016}")
        if n: K(f"s_add_u32 s{T+6}, s{T+6}, s{S_CH}")
        return K(f"buffer_store_dwordx4 {vr(b,4)}, v{RB+50}, {srd(R_WS)}, s{T+6} offen sc1")
    for e in range(4): K(f"v_mov_b32 v{RB+52+e}, 0")
    K(f"s_lshl_b32 s{T+5}, s{S_FL}, 2"); K(f"s_add_u32 s{T+5}, s{T+5}, s{S_A}"); K(f"s_lshl_b32 s{T+7}, s{T+5}, 12"); K(f"s_lshl_b32 s{T+5}, s{T+5}, 10")
    K(f"s_add_u32 s{T+5}, s{T+5}, {WS_KVP}"); K(f"s_add_u32 s{T+7}, s{T+7}, {WS_CN}"); K(f"v_lshlrev_b32 v{t0}, 7, v{V_LANE}")
    K(f"buffer_store_dwordx4 {vr(RB+52,4)}, v{V_L16}, {srd(R_WS)}, s{T+5} offen sc1")
    K("s_mov_b32 exec_hi, 0")
    K(f"buffer_store_dword v{RB+52}, v{t0}, {srd(R_WS)}, s{T+7} offen sc1")
    K("s_mov_b32 exec_hi, -1")
    K(f"s_lshl_b32 s{S_FL}, s{S_FL}, 7"); K(f"s_add_u32 s{S_FL}, s{S_FL}, {WS_RPF}"); K(f"s_add_u32 s{S_FL2}, s{S_FL}, 4096")
    K(f"s_cmp_eq_u32 s{S_A}, 3"); K(f"s_cselect_b32 s{S_FL}, s{S_FL}, 0x7000000"); K(f"s_cselect_b32 s{S_FL2}, s{S_FL2}, 0x7000000")
    K("s_waitcnt lgkmcnt(0)")
    settag()
    for q in (2, 3, 4, 5, 8, 9, 10, 11): tk1 = rp_store(q)
    for q in (0, 1, 6, 7): rp_store(q)
    if fine: stamp("rp_st")
    K("s_barrier")
    K.wait_vm(tk1)
    K("s_barrier")
    flag(S_FL)
    stamp("rp_pub")
    K("s_waitcnt vmcnt(1)")
    arrive(C_5); await_(C_5, 4)
    flag(S_FL2)
    arrive(C_E); arrive(C_G)
    K("s_setprio 0")
    K.vm = vm_m
    K.label("L_mset")
    mksrd(R_WS, P_WS, WS_SIZE); mksrd(R_WO, P_WO, 448*896); mksrd(R_OUT, P_OUT, 2048*896)
    p2setup()
    K(f"s_mul_i32 s{T}, s{S_ROW}, {112*1024}"); K(f"s_add_u32 s{T}, s{T}, {0x7000000 if x_noh else WS_H}")
    K(f"s_lshl_b32 s{S_HB}, s{T+4}, 12"); K(f"s_add_u32 s{S_HB}, s{S_HB}, s{T}")
    K(f"s_lshl_b32 s{S_HB3}, s{T+2}, 12"); K(f"s_add_u32 s{S_HB3}, s{S_HB3}, s{T}")
    BF1, BF2, BONE = M_AR + 80, 128, 124
    for r in list(range(BF1, BF1 + 16)) + list(range(BONE, BF2 + 8)): K(f"v_mov_b32 v{r}, 0")
    K(f"v_lshlrev_b32 v{t0}, 1, v{V_LANE}")
    K("s_mov_b32 exec_hi, 0")
    K(f"v_mov_b32 v{BONE}, 0x3f80")
    mksrd(R_T, P_B1, 3584)
    for p in range(4): K(f"buffer_load_ushort v{BF1+4*p}, v{t0}, {srd(R_T)}, s{S_W1B} offen offset:{64*p}")
    mksrd(R_T, P_B2, 896)
    K(f"s_lshl_b32 s{T}, s{S_CT}, 7"); K(f"s_lshl_b32 s{T+1}, s{S_A}, 10"); K(f"s_add_u32 s{T}, s{T}, s{T+1}")
    for p in range(2): tk_b2 = K(f"buffer_load_ushort v{BF2+4*p}, v{t0}, {srd(R_T)}, s{T} offen offset:{64*p}")
    K("s_mov_b32 exec_hi, -1")
    K(f"s_lshl_b32 s{T}, s{S_ROW}, 1"); K(f"s_add_u32 s{T}, s{T}, s{S_A}")
    K(f"s_lshl_b32 s{T+1}, s{S_CT}, 7")
    K(f"s_lshl_b32 s{S_PE}, s{T}, 11"); K(f"s_add_u32 s{S_PE}, s{S_PE}, s{T+1}"); K(f"s_add_u32 s{S_PE}, s{S_PE}, {WS_HF}")
    K(f"s_lshl_b32 s{S_PO}, s{T}, 10"); K(f"s_add_u32 s{S_PO}, s{S_PO}, s{T+1}"); K(f"s_add_u32 s{S_PO}, s{S_PO}, {WS_OF}")
    K(f"s_lshl_b32 s{T}, s{S_ROW}, 4"); K(f"s_lshl_b32 s{T+1}, s{S_A}, 2"); K(f"s_add_u32 s{S_OB}, s{T+1}, s{T}")
    FL_E, FL_L, FL_O = (S_PE, 0, 6), (S_PE, 1024, 8), (S_PO, 0, 8)
    K(f"s_lshl_b32 s{T}, s{S_MT}, 2"); K(f"s_add_u32 s{T}, s{T}, s{S_A}"); K(f"s_mul_i32 s{S_RS}, s{T}, 112")
    K(f"s_lshl_b32 s{T+1}, s{S_J}, 3"); K(f"s_add_u32 s{S_RS}, s{S_RS}, s{T+1}"); K(f"s_lshl_b32 s{S_RS}, s{S_RS}, 10"); K(f"s_add_u32 s{S_RS}, s{S_RS}, {WS_H}")
    K(f"s_lshr_b32 s{T}, s{T}, 1"); K(f"s_lshl_b32 s{T}, s{T}, 13"); K(f"s_add_u32 s{T}, s{T}, {WS_HF}")
    K(f"s_mul_i32 s{T+1}, s{S_J}, {74*8}"); K(f"s_and_b32 s{S_FL}, s{T+1}, 0xf800"); K(f"s_add_u32 s{S_FL}, s{S_FL}, s{T}")
    K(f"s_add_u32 s{T+1}, s{T+1}, {37*8}"); K(f"s_and_b32 s{S_FL2}, s{T+1}, 0xf800"); K(f"s_add_u32 s{S_FL2}, s{S_FL2}, s{T}"); K(f"s_add_u32 s{S_FL2}, s{S_FL2}, 1024")
    K(f"s_lshr_b32 s{T+1}, {(1 << 3) | (1 << 10)}, s{S_J}"); K(f"s_and_b32 s{T+1}, s{T+1}, 1"); K(f"s_lshl_b32 s{T+1}, s{T+1}, 10"); K(f"s_add_u32 s{S_FL}, s{S_FL}, s{T+1}")
    K(f"s_cmp_ge_u32 s{S_J}, 14"); K(f"s_cselect_b32 s{S_FL2}, 0x7000000, s{S_FL2}")
    K(f"v_add_u32 v{M_L16B}, {112*1024}, v{V_L16}")
    MP = M_AR + 40
    K(f"v_lshlrev_b32 v{MP}, 7, v{V_LANE}")
    K(f"s_lshl_b32 s{T+3}, s2, 2"); K(f"s_add_u32 s{T+3}, s{T+3}, s{S_A}")
    K(f"s_mul_i32 s{S_XB}, s{T+3}, {13*128}"); K(f"s_lshl_b32 s{S_M0}, s{T+3}, 9")
    def mall_pf():
        K("s_mov_b64 exec, 0x1fff")
        K(f"buffer_load_dword v{V_POLL}, v{MP}, {srd(R_W2)}, s{S_XB} offen")
        K("s_mov_b64 exec, 15")
        K(f"buffer_load_dword v{V_POLL}, v{MP}, {srd(R_WO)}, s{S_M0} offen")
        K("s_mov_b64 exec, -1")
    if mpf == 1: mall_pf()
    if tlb:
        l = newl("tlb")
        K(f"s_cmp_lg_u32 s{S_A}, 1")
        K.branch(f"s_cbranch_scc1 {l}")
        K(f"v_lshlrev_b32 v{t0}, {tlb}, v{V_LANE}")
        K(f"buffer_load_dword v{V_POLL}, v{t0}, {srd(R_WS)}, 0 offen offset:2048"); K.vm -= 1
        K(f"buffer_load_dword v{V_POLL}, v{t0}, {srd(R_OUT)}, 0 offen"); K.vm -= 1
        K.label(l)
    xfrag_addr(M_AX)
    lanepart()
    K(f"v_lshl_add_u32 v{t0}, v{t2}, 3, v{t3}"); K(f"v_lshl_add_u32 v{t0}, v{t0}, 8, v{t4}"); K(f"v_lshl_add_u32 v{t0}, v{t3}, 6, v{t0}")
    K(f"v_add_u32 v{M_AW}, 16384, v{t0}")
    for p in range(1, 4): K(f"v_xor_b32 v{M_AW+p}, {64*p}, v{M_AW}")
    AB = M_AB
    K(f"v_lshl_add_u32 v{t0}, v{t2}, 2, v{t3}"); K(f"v_lshl_add_u32 v{t0}, v{t0}, 7, v{t4}"); K(f"v_bfe_u32 v{t1}, v{V_LANE}, 3, 1"); K(f"v_lshl_add_u32 v{t0}, v{t1}, 6, v{t0}")
    K(f"v_add_u32 v{AB}, s{S_M02}, v{t0}"); K(f"v_xor_b32 v{AB+1}, 64, v{AB}")
    K(f"v_add_u32 v{AB+2}, 65536, v{AB}"); K(f"v_add_u32 v{AB+3}, 65536, v{AB+1}")
    K(f"v_lshlrev_b32 v{t0}, 9, v{t2}"); K(f"v_sub_u32 v22, v{AB+2}, v{t0}"); K(f"v_sub_u32 v23, v{AB+3}, v{t0}")
    box = {}
    K(f"s_cmp_ge_u32 s{S_J}, 14")
    K.branch("s_cbranch_scc1 L_nof")
    vm_nof = K.vm
    K("s_waitcnt lgkmcnt(0)")
    settag()
    if fine: stamp("M_rdy")
    WR, XR = M_BH, M_BH + 4*G
    tk = {}
    def rdg(g):
        ks, p = g // 4, g % 4
        t, ksl = ks // 4, ks % 4
        uo = (t % 2) * 32768
        if p == 0 and ksl == 0:
            shift(range(M_AX, M_AX + 8), SH[t])
            if t == 3: K.wait_vm(tk_b2)
            if t < 6: K("s_barrier")
            else:
                l = newl("s6")
                K.wait_lg(box['cs'])
                K(f"v_cmp_ne_u32 vcc, 4, v{t4}")
                K(f"s_cbranch_vccz {l}")
                lgs = K.lg
                await_(C_S, 4)
                K.lg = lgs
                K.raw(f"{l}:")
        if p == 0: K(f"ds_read_b128 {vr(XR + 4*(ks % 3), 4)}, v{M_AX+ksl} offset:{uo}")
        for r in range(2):
            tk[g] = K(f"ds_read_b64_tr_b16 {vr(WR + 4*(g % G) + 2*r, 2)}, v{M_AW+p} offset:{uo + (16*ksl + 4*r)*256}")
    for g in range(G): rdg(g)
    for g in range(112):
        K.wait_lg(tk[g])
        mfma(M_ACC + 16*(g % 4), WR + 4*(g % G), XR + 4*((g // 4) % 3), "0" if g < 4 else None)
        if 52 <= g < 56: mfma(M_ACC + 16*(g % 4), BF1 + 4*(g % 4), BONE)
        if g + G < 112: rdg(g + G)
        if g + G == 112: arrive(C_E)
        if g + G + 3 == 96: box['cs'] = K(f"ds_read_b32 v{t4}, v{V_CNT} offset:{C_S}")
        if mpf > 1 and g == mpf: mall_pf()
    stamp("ffn1")
    K(f"s_setprio {prioG}")
    cc = -2.0 * 0.7978845608028654 * 1.4426950408889634
    K(f"v_mov_b32 v{t0}, {f2u(cc):#x}"); K(f"v_mov_b32 v{t1}, 1.0"); K(f"s_mov_b32 s{S_K}, {f2u(cc*0.044715):#x}"); K(f"s_mov_b32 s{S_K+1}, {f2u(cc*0.044715):#x}")
    tkh = {}
    for g in range(8):
        a = M_ACC + 8*g; tt = M_AR + 8*(g % 2); o = M_AR + 48 + 4*g
        if g < pkg:
            for e in range(0, 8, 2): K(f"v_pk_mul_f32 {vr(tt+e,2)}, {vr(a+e,2)}, {vr(a+e,2)}")
            for e in range(0, 8, 2): K(f"v_pk_fma_f32 {vr(tt+e,2)}, {vr(tt+e,2)}, {sp(S_K)}, {vr(t0,2)} op_sel_hi:[1,1,0]")
            for e in range(0, 8, 2): K(f"v_pk_mul_f32 {vr(tt+e,2)}, {vr(a+e,2)}, {vr(tt+e,2)}")
            for e in range(8): K(f"v_exp_f32 v{tt+e}, v{tt+e}")
            for e in range(0, 8, 2): K(f"v_pk_add_f32 {vr(tt+e,2)}, {vr(tt+e,2)}, {vr(t0,2)} op_sel:[0,1] op_sel_hi:[1,1]")
            for e in range(8): K(f"v_rcp_f32 v{tt+e}, v{tt+e}")
            for e in range(0, 8, 2): K(f"v_pk_mul_f32 {vr(tt+e,2)}, {vr(a+e,2)}, {vr(tt+e,2)}")
        else:
            for e in range(8): K(f"v_mul_f32 v{tt+e}, v{a+e}, v{a+e}")
            for e in range(8): K(f"v_fma_f32 v{tt+e}, v{tt+e}, s{S_K}, v{t0}")
            for e in range(8): K(f"v_mul_f32 v{tt+e}, v{a+e}, v{tt+e}")
            for e in range(8): K(f"v_exp_f32 v{tt+e}, v{tt+e}")
            for e in range(8): K(f"v_add_f32 v{tt+e}, 1.0, v{tt+e}")
            for e in range(8): K(f"v_rcp_f32 v{tt+e}, v{tt+e}")
            for e in range(8): K(f"v_mul_f32 v{tt+e}, v{a+e}, v{tt+e}")
        for e in range(4): K(f"v_cvt_pk_bf16_f32 v{o+e}, v{tt+2*e}, v{tt+2*e+1}")
        if g == gw: arrive(C_G)
        if (g + 1) % sb == 0:
            K("s_setprio 3")
            for x in range(g + 1 - sb, g + 1):
                if x == 4: K(f"s_add_u32 s{S_RS}, s{S_RS}, 4096")
                tkh[x] = K(f"buffer_store_dwordx4 {vr(M_AR + 48 + 4*x,4)}, v{V_L16}, {srd(R_WS)}, s{S_RS} offen offset:{1024*(x%4)} sc1")
            if g < 7: K(f"s_setprio {prioG}")
    stamp("gelu_v")
    await_(C_0, 4)
    K.wait_vm(tkh[3]); signal(S_FL, 7)
    stamp("gelu")
    K(f"s_cmp_eq_u32 s{S_ACT}, 1")
    K.branch("s_cbranch_scc1 L_p2")
    K("s_waitcnt vmcnt(0)")
    signal(S_FL2, 7)
    K.branch("s_branch L_fin")
    K.label("L_nof")
    K.vm = vm_nof
    await_(C_0, 4, 2)
    K("s_waitcnt lgkmcnt(0)")
    settag()
    if mpf > 1: mall_pf()
    K("s_waitcnt vmcnt(0)")

    K.label("L_p2")
    tk_h = K.vm
    def g_wo(hf):
        def step(q):
            def f():
                if q == 0:
                    K(f"s_mul_i32 s{TD}, s{S_A}, {112*896}"); K(f"s_lshl_b32 s{TD+1}, s{S_CT}, 7"); K(f"s_add_u32 s{TD}, s{TD}, s{TD+1}")
                    if hf: K(f"s_add_u32 s{TD}, s{TD}, {56*896}")
                    K(f"s_add_u32 m0, s{S_M02}, {U[RUNIT[7+hf]]}")
                if q == 4: K(f"s_add_u32 s{TD}, s{TD}, {32*896}"); K(f"s_add_u32 m0, s{S_M02}, {U[RUNIT[7+hf]] + 4096}")
                x = K(f"buffer_load_dwordx4 v{V_D2+q%4}, {srd(R_WO)}, s{TD} offen offset:{1024*(q%4)} lds")
                if q == 6: tk_r[7+hf] = x
            return f
        return [step(q) for q in range(7)]
    tk = {}
    def rdb(ks, part=3):
        r, ksl = ks // 4, ks % 4
        b = M_BH + 8 * (ks % 8)
        u = RUNIT[r]
        if ksl == 0 and r >= 2 and part & 1: K.wait_vm(tk_r[r])
        for pp in range(2):
            for h in range(2):
                if not part & (1 << pp): continue
                if r < 7:
                    tk[ks] = K(f"ds_read_b64_tr_b16 {vr(b + 4*pp + 2*h, 2)}, v{AB + pp + (2 if u >= 2 else 0)} offset:{(u%2)*32768 + (16*ksl + 8*h)*128}")
                else:
                    hh, sx = (ks % 4) // 2, ks % 2
                    tk[ks] = K(f"ds_read_b64_tr_b16 {vr(b + 4*pp + 2*h, 2)}, v{(22 if (sx == 1 and h == 1) else AB + 2) + pp} offset:{(u%2)*32768 + (28*hh + 16*sx + 8*h)*128}")
    tk_a = {}
    def lda(ks, part=3):
        b = M_AR + 8 * (ks % NA); r = ks // 4
        if part & 1:
            if ks % 4 == 0: K(f"s_add_u32 s{T+7}, s{S_HB3 if r == 3 else S_HB}, {0 if r == 3 else (2*r % 7)*4096}")
            K(f"buffer_load_dwordx4 {vr(b,4)}, v{V_L16}, {srd(R_WS)}, s{T+7} offen offset:{1024*(ks%4)} sc1")
        if part & 2: tk_a[ks] = K(f"buffer_load_dwordx4 {vr(b+4,4)}, v{M_L16B}, {srd(R_WS)}, s{T+7} offen offset:{1024*(ks%4)} sc1")
    for t2_ in range(2):
        for pp in range(2): mfma(M_ACC + 32*t2_ + 16*pp, BF2 + 4*pp, BONE, "0")
    g0, g1, g2, g3 = g_w2(0), g_w2(1), g_w2(2), g_w2(3)
    if aw2:
        K.wait_vm(tk_h - 1)
        signal(S_FL2, 7)
        K(f"s_setprio 0")
        stamp("h_pub1")
        if hfirst:
            poll_issue(FL_E)
            poll_check(FL_E)
            stamp("hE_seen")
            for ks in range(pre): lda(ks)
        await_(C_B, 4)
        stamp("B_seen")
        for ks in range(3): rdb(ks)
        K.wait_lg(tk[0]); rdb(3)
        K.wait_lg(tk[3])
        for q in range(8):
            g2[q]()
            if q < 4:
                if q == 3: K.wait_lg(tk[4])
                rdb(4 + q)
        K("s_waitcnt lgkmcnt(0)")
        if not hfirst:
            poll_issue(FL_E)
            run(g3); g3 = []
            poll_check(FL_E)
            stamp("hE_seen")
            for ks in range(pre): lda(ks)
    else:
        await_(C_E, 8)
        for q in range(8):
            g0[q]()
        K.wait_vm(tk_h - 1)
        signal(S_FL2, 7)
        K(f"s_setprio 0")
        stamp("h_pub1")
        poll_issue(FL_E)
        run(g1)
        poll_check(FL_E)
        stamp("hE_seen")
        for ks in range(4): lda(ks)
        K.wait_vm(tk_r[0])
        for ks in range(4):
            if ks == 3: K.wait_lg(tk[0])
            rdb(ks); lda(4 + ks)
        K.wait_vm(tk_r[1]); K.wait_lg(tk[3])
        for q in range(8):
            g2[q]()
            if q < 4:
                if q == 3: K.wait_lg(tk[4])
                rdb(4 + q)
        K("s_waitcnt lgkmcnt(0)")
    stamp("p2_prep")
    poll_issue(FL_L)
    for ks in range(pre if aw2 else 8, 12): pend.extend([lambda ks=ks: lda(ks, 1), lambda ks=ks: lda(ks, 2)])
    pend.extend(g3)
    def step(ks, side):
        K.wait_vm(tk_a[ks])
        if ks >= 8: K.wait_lg(tk[ks])
        a = M_AR + 8 * (ks % NA); b = M_BH + 8 * (ks % 8)
        n = 0
        for t2_ in range(2):
            for pp in range(2):
                if not (x_nomf and ks < 28): mfma(M_ACC + 32*t2_ + 16*pp, b + 4*pp, a + 4*t2_)
                side(n); n += 1
    nxt = [12]
    def hstep(ks):
        def side(n):
            if n < 2 and ks + 3 >= 8: rdb(ks + 3, 1 << n)
            drip(2 if len(pend) > 8 else 1)
        step(ks, side)
    def ldo(ks, part):
        b = M_AR + 8 * (ks % NA)
        if part == 0:
            K(f"buffer_load_dword v{t2}, v{t3}, {srd(R_WS)}, s{T+3} offen sc1")
            box['g'] = K(f"buffer_load_dword v{t3}, v{t3}, {srd(R_WS)}, s{T+3} offen offset:2048 sc1")
        if part == 1:
            if ks == 32: K(f"s_add_u32 s{T+4}, s{T+4}, 4096")
            K(f"buffer_load_dwordx4 {vr(b,4)}, v{V_L16}, {srd(R_WS)}, s{T+4} offen offset:{1024*(ks%4)} sc1")
        if part == 2: tk_a[ks] = K(f"buffer_load_dwordx4 {vr(b+4,4)}, v{M_L16B}, {srd(R_WS)}, s{T+4} offen offset:{1024*(ks%4)} sc1")
    olist = lambda: [lambda: ldo(0, 0)] + [lambda k=k, p=p: ldo(k, p) for k in range(28, 36) for p in (1, 2)]
    for ks in range(oc + 1):
        hstep(ks)
        if ks == c0:
            poll_check(FL_L)
            stamp("hL_seen")
        if ks == 7:
            await_(C_3, 4)
            pend.extend(g_w2(4))
        while ks >= c0 and nxt[0] <= ks + NA and nxt[0] < 28:
            pend.extend([lambda k=nxt[0]: lda(k, 1), lambda k=nxt[0]: lda(k, 2)]); nxt[0] += 1
        if ks == 11: pend.extend(g_w2(5))
        if ks == 15: pend.extend(g_w2(6))
        if ks == 17:
            await_(C_Q, 4)
            pend.extend(g_wo(0))
        if ks == 19: pend.extend(g_wo(1))
        if ks in (3, 11, 19): stamp(f"p2_k{ks}")
        if ks == oc - 2: poll_issue(FL_O)
    assert not pend and oc >= 22
    K(f"v_and_b32 v{t3}, 31, v{V_LANE}"); K(f"v_lshlrev_b32 v{t3}, 2, v{t3}")
    K(f"s_lshl_b32 s{T+3}, s{S_OB}, 7"); K(f"s_add_u32 s{T+3}, s{T+3}, {WS_G}")
    K(f"s_lshl_b32 s{T+4}, s{S_OB}, 11"); K(f"s_add_u32 s{T+4}, s{T+4}, {WS_O}")
    K(f"v_add_u32 v{M_L16B}, 32768, v{V_L16}")
    K(f"v_add_u32 v{V_D2}, s{S_M02}, v{V_L16}")
    for q in range(1, 4): K(f"v_xor_b32 v{V_D2+q}, {64*q}, v{V_D2}")
    K("s_waitcnt lgkmcnt(0)")
    K(f"s_cmp_lg_u32 s{PD[0]}, {FL_O[2]}")
    K.branch("s_cbranch_scc1 L_olate")
    sv, sl = K.vm, K.lg
    stamp("o_early")
    pend.extend(olist())
    for ks in range(oc + 1, 28): hstep(ks)
    drip(99)
    ev, el = K.vm, K.lg
    K.branch("s_branch L_ojoin")
    K.label("L_olate")
    K.vm, K.lg = sv, sl
    for ks in range(oc + 1, 28): hstep(ks)
    poll_issue(FL_O)
    poll_check(FL_O)
    stamp("o_late")
    run(olist())
    assert (ev, el) == (K.vm, K.lg)
    K.label("L_ojoin")
    stamp("p2_h_done")
    tk_g = box['g']
    K.wait_vm(tk_g)
    if f2: stamp("t_g")
    K(f"v_sub_f32 v{t4}, 1.0, v{t2}"); K(f"v_sub_f32 v{t5}, 1.0, v{t3}")
    K(f"v_cvt_pk_bf16_f32 v{t4}, v{t4}, v{t5}"); K(f"v_and_b32 v{t5}, 0xffff0000, v{t4}"); K(f"v_lshlrev_b32 v{t4}, 16, v{t4}")
    for e in range(0, 64, 2): pscale(M_ACC+e, t4 if e < 32 else t5, True)
    for ks in range(28, 36):
        def side(n):
            if n < 2 and ks + 3 < 36: rdb(ks + 3, 1 << n)
        step(ks, side)
    if f2: stamp("t_mf")
    for t2_ in range(2):
        for b in range(8): K(f"ds_write_b128 v{V_D2 + b%4}, {vr(M_ACC+32*t2_+4*b,4)} offset:{32768*t2_ + 1024*b}")
    stamp("p2_done")

    K.label("L_red")
    K(f"v_and_b32 v{t1}, 7, v{V_LANE}"); K(f"v_lshrrev_b32 v{t3}, 3, v{V_LANE}")
    K(f"s_lshl_b32 s{T+1}, s{S_A}, 3"); K(f"v_add_u32 v{t0}, s{T+1}, v{t3}")
    K(f"v_and_b32 v{t2}, 3, v{V_LANE}"); K(f"v_lshlrev_b32 v{t2}, 2, v{t2}"); K(f"v_xor_b32 v{t0}, v{t0}, v{t2}")
    K(f"v_lshlrev_b32 v{t0}, 4, v{t0}"); K(f"v_lshl_add_u32 v{t0}, v{t1}, 10, v{t0}")
    K(f"s_lshr_b32 s{T+2}, s{S_W}, 2"); K(f"s_lshl_b32 s{T}, s{T+2}, 15"); K(f"v_add_u32 v{t0}, s{T}, v{t0}")
    K(f"v_mul_u32_u24 v{t3}, 896, v{t3}"); K(f"v_lshl_add_u32 v{t3}, v{t1}, 4, v{t3}")
    K(f"s_lshl_b32 s{T}, s{S_ROW}, 2"); K(f"s_add_u32 s{T}, s{T}, s{S_W}"); K(f"s_mul_i32 s{T}, s{T}, {8*896}"); K(f"s_lshl_b32 s{T+1}, s{S_CT}, 7"); K(f"s_add_u32 s{T+5}, s{T}, s{T+1}")
    K("s_waitcnt lgkmcnt(0)")
    K("s_barrier")
    if f2: stamp("t_bar")
    R = 160
    for q in range(4):
        K(f"ds_read_b128 {vr(R+8*q,4)}, v{t0} offset:{8192*q}")
        K(f"ds_read_b128 {vr(R+8*q+4,4)}, v{t0} offset:{8192*q + 512}")
    K("s_waitcnt lgkmcnt(4)")
    for e in range(0, 8, 2): padd(R+e, R+e, R+8+e, True)
    K("s_waitcnt lgkmcnt(0)")
    for e in range(0, 8, 2): padd(R+16+e, R+16+e, R+24+e, True)
    for e in range(0, 8, 2): padd(R+e, R+e, R+16+e, True)
    for e in range(4): K(f"v_cvt_pk_bf16_f32 v{R+e}, v{R+2*e}, v{R+2*e+1}")
    K(f"buffer_store_dwordx4 {vr(R,4)}, v{t3}, {srd(R_OUT)}, s{T+5} offen" + ["", " sc1", " nt", " sc0 sc1"][outm])
    if f2: stamp("t_st")
    K(f"s_or_b32 s{T}, s2, s{S_W}"); K(f"s_cmp_lg_u32 s{T}, 0")
    K.branch("s_cbranch_scc1 L_fin")
    K(f"s_mov_b32 s{T}, {WS_EPOCH}")
    flag(T)
    K.label("L_fin")
    if stamps:
        K("s_waitcnt vmcnt(0)")
        stamp("end")
        if probe is not None:
            i0 = STAMP_IDS.setdefault('start', len(STAMP_IDS)); i1 = STAMP_IDS.setdefault(probe, len(STAMP_IDS))
            K(f"v_readlane_b32 s{T}, v{V_STAMP}, {i0}"); K(f"v_readlane_b32 s{T+1}, v{V_STAMP}, {i1}")
            K("s_nop 4")
            K(f"s_cmp_eq_u32 s{T+1}, 0"); K(f"s_cselect_b32 s{T+1}, s{T}, s{T+1}")
            if pwg >= 0:
                K(f"s_cmp_lg_u32 s2, {pwg}")
                K.branch("s_cbranch_scc1 L_end")
            K.label("L_probe")
            K("s_sleep 2")
            K(f"s_memrealtime {sp(S_ST)}"); K("s_waitcnt lgkmcnt(0)")
            K(f"s_sub_u32 s{T+2}, s{S_ST}, s{T+1}"); K(f"s_cmp_lt_u32 s{T+2}, {pt}")
            K.branch("s_cbranch_scc1 L_probe")
            K.branch("s_branch L_end")
        K(f"s_lshl_b32 s{T}, s2, 3"); K(f"s_add_u32 s{T}, s{T}, s{S_W}"); K(f"s_lshl_b32 s{T}, s{T}, 8"); K(f"s_add_u32 s{T}, s{T}, {WS_STAMP}")
        K(f"v_lshlrev_b32 v{t0}, 2, v{V_LANE}")
        K(f"buffer_store_dword v{V_STAMP}, v{t0}, {srd(R_WS)}, s{T} offen")
    K.label("L_end")
    K("s_endpgm")
    K.raw(f".fill (28672 + 4096 * {1 if stamps else 0} - (L_end - {NAME})) / 4, 4, 0xbf800000")

    head = f"""; Fused gated mix of hedgehog linear attention and GELU FFN (emitted by a hand-written generator script)
; @launch grid=(256,1,1) block=(512,1,1) lds=163840
.amdgcn_target "amdgcn-amd-amdhsa--gfx950"
.text
.globl {NAME}
.p2align 8
.type {NAME},@function
"""
    tail = f""".section .rodata,"a"
.p2align 6
.amdhsa_kernel {NAME}
  .amdhsa_next_free_vgpr 256
  .amdhsa_next_free_sgpr 102
  .amdhsa_accum_offset 256
  .amdhsa_group_segment_fixed_size 0
  .amdhsa_kernarg_size 104
  .amdhsa_user_sgpr_count 2
  .amdhsa_user_sgpr_kernarg_segment_ptr 1
  .amdhsa_system_sgpr_workgroup_id_x 1
.end_amdhsa_kernel
"""
    return head + K.text() + tail

STAMP_IDS = {}
def parse_opts(argv):
    kw = {}
    for a in argv:
        if a.startswith("-D"):
            k, v = a[2:].split("="); kw[k] = int(v) if v.lstrip("-").isdigit() else v
    return kw
if __name__ == "__main__":
    out = sys.argv[1] if len(sys.argv) > 1 else "k.s"
    open(out, "w").write(gen(**parse_opts(sys.argv)))
```

```python
import sys, struct
from asmlib import Asm

NAME = "gated_mix__linear_kernel_hedgehog__dense_activation_gelu__prompt_kernel"
def f2u(x): return struct.unpack("<I", struct.pack("<f", x))[0]

WS_EPOCH = 0
WS_RPF   = 0x8000
WS_STAMP = 0x10000
WS_G     = 0xA0000
WS_WQ    = 0x100000
WS_KVP   = 0x280000
WS_O     = 0x480000
WS_H     = 0x680000
WS_CN    = 0x300000
WS_HF    = WS_CN
WS_OF    = WS_CN + 2048*128
WS_KVF   = WS_CN + 3072*128
WS_SIZE  = 0xE00000

U = [0, 32768, 65536, 98304, 131072]
L_K, L_V, L_Q = 98304, 126976, 65536
L_MISC = 155648
L_PHI, L_CNT, L_B2, L_B1 = L_MISC, L_MISC + 2048, L_MISC + 2560, L_MISC + 3072
L_KVS = U[3]
L_KVF = L_MISC + 4096
RUNIT = [0, 1, 0, 1, 3, 0, 1, 2, 3]
C_E, C_0, C_1, C_2, C_3, C_4, C_Q, C_G, C_B, C_S, C_5 = 0, 4, 8, 12, 16, 20, 24, 28, 32, 36, 40

P_X, P_WQKV, P_PHI, P_WO, P_W1, P_B1, P_W2 = 16, 18, 20, 22, 26, 28, 30
P_B2, P_GATE, P_OUT, P_WS = 32, 34, 36, 40
R_X, R_W1, R_W2, R_WO, R_WS, R_OUT, R_T = 44, 48, 52, 56, 60, 64, 68
S_MT, S_J, S_W, S_A, S_FL2, S_TAG, S_CH, S_CNT = 72, 73, 74, 75, 76, 78, 77, 100
S_CHO = 80
S_M0 = 87
S_XB, S_W1B = 88, 89
S_T = 90
S_UP = 98
S_E = 42
S_H = S_J
S_CT, S_ROW, S_ACT = 43, 3, 101
S_K = 4
S_ST = 6
S_L28 = 24
S_FL = 8
S_HB, S_W2B, S_OB, S_HB3, S_W2B3, S_M02, S_RS = 9, 10, 11, 12, 13, 14, 15
S_PE, S_P3, S_PO = 34, 35, 38
PD = [16, 17, 18, 19, 20, 21, 22, 23, 26, 27, 28, 29, 30, 31, 32, 33]
def srd(r): return f"s[{r}:{r+3}]"
def sp(r): return f"s[{r}:{r+1}]"

V_LANE, V_L16, V_STAMP, V_TAG, V_POLL, V_CNT = 1, 2, 3, 4, 5, 6
V_T = 8
V_D2 = 18
A_PA, A_AX, A_AD, A_L4, A_PH, A_TR, A_G = 7, 14, 22, 24, 25, 30, 31
V_W, V_P, V_ACC, V_PHI, V_X = 32, 64, 96, 128, 144
A_XD, A_WD, A_QD, A_GW = 64, 68, 72, 16
M_L16B, M_AB = 7, 14
M_ACC, M_BH, M_AR = 24, 88, 152
M_AX, M_AW = 136, 140
NA = 13
def vr(a, n): return f"v[{a}:{a+n-1}]"
UPM = sp(S_UP)
L2E = 1.4426950408889634

def gen(stamps=False, spin=20000, rot1=False, codepf=True, slp=2, cyc=False, G=5, prioA=1, prioM=2, kvf=27, fine=False,
        pkq=0, pkk=1, LA=9, LA0=6, c0=2, mpf=60, outm=0, tlb=21, gw=-1, hf0=7, rpb=3, prioG=2, k6=4, qpf=1, sb=1, qd=0, probe=None, pwg=-1, pt=4000, aw2=2, pre=8, cb=22, pkg=2, rpa=0, f2=0, hfirst=1, early=0, oc=22, x_now2=0, x_noh=0, x_nomf=0, x_now1=0, rb2=0):
    K = Asm()
    T = S_T
    TD = T + 5
    t0, t1, t2, t3, t4, t5 = range(V_T, V_T + 6)
    def stamp(name):
        if not stamps: return
        if probe is not None and name != probe: return
        K("s_waitcnt lgkmcnt(0)")
        K(f"s_memrealtime {sp(S_ST)}")
        if cyc: K(f"s_memtime s[0:1]")
        K("s_waitcnt lgkmcnt(0)")
        i = STAMP_IDS.setdefault(name, len(STAMP_IDS))
        K(f"v_writelane_b32 v{V_STAMP}, s{S_ST}, {i}")
        if cyc: K(f"v_writelane_b32 v{V_STAMP}, s0, {32 + i}")
    uid = [0]
    def newl(p): uid[0] += 1; return f"L_{p}{uid[0]}"
    def poll_issue(fl):
        K(f"s_load_dword s{PD[0]}, {sp(P_WS)}, s{fl[0]} offset:{fl[1]} glc")
    def poll_check(fl):
        l, d = newl("poll"), newl("polld")
        K(f"s_mov_b32 s{S_CNT}, {spin}")
        K.raw(f"{l}:")
        K("s_waitcnt lgkmcnt(0)")
        K(f"s_cmp_eq_u32 s{PD[0]}, {fl[2]}")
        K.branch(f"s_cbranch_scc1 {d}")
        K(f"s_sub_u32 s{S_CNT}, s{S_CNT}, 1")
        K(f"s_cbranch_scc1 {d}")
        if slp: K(f"s_sleep {slp}")
        poll_issue(fl)
        K(f"s_branch {l}")
        K.label(d)
    def signal(soff_reg, n):
        K(f"v_mov_b32 v{t5}, 1"); K(f"v_lshlrev_b32 v{V_POLL}, 7, v{V_LANE}")
        K(f"s_mov_b64 exec, {(1 << n) - 1}")
        K(f"buffer_atomic_add v{t5}, v{V_POLL}, {srd(R_WS)}, s{soff_reg} offen")
        K("s_mov_b64 exec, -1")
    def vpoll_issue(vaddr):
        return K(f"buffer_load_dword v{V_POLL}, v{vaddr}, {srd(R_WS)}, 0 offen sc1")
    def vpoll_check(tok, vaddr):
        l, d = newl("poll"), newl("polld")
        K(f"s_mov_b32 s{S_CNT}, {spin}")
        K.wait_vm(tok)
        K.label(l)
        K(f"v_cmp_ne_u32 vcc, s{S_TAG}, v{V_POLL}")
        K.branch(f"s_cbranch_vccz {d}")
        K(f"s_sub_u32 s{S_CNT}, s{S_CNT}, 1")
        K.branch(f"s_cbranch_scc1 {d}")
        K(f"s_sleep 10")
        K(f"buffer_load_dword v{V_POLL}, v{vaddr}, {srd(R_WS)}, 0 offen sc1"); K.vm -= 1
        K("s_waitcnt vmcnt(0)")
        K.branch(f"s_branch {l}")
        K.label(d)
    def flag(soff_reg):
        K("s_mov_b64 exec, 1")
        K(f"buffer_store_dword v{V_TAG}, v{V_LANE}, {srd(R_WS)}, s{soff_reg} offen sc1")
        K("s_mov_b64 exec, -1")
    def arrive(c):
        K(f"v_mov_b32 v{t5}, 1")
        K("s_mov_b64 exec, 1")
        K(f"ds_add_u32 v{V_CNT}, v{t5} offset:{c}")
        K("s_mov_b64 exec, -1")
    def await_(c, n, sleep=0):
        l, d = newl("aw"), newl("awd")
        K(f"s_mov_b32 s{S_CNT}, {spin * 8}")
        K.label(l)
        K(f"ds_read_b32 v{t5}, v{V_CNT} offset:{c}")
        K("s_waitcnt lgkmcnt(0)")
        K(f"v_cmp_ne_u32 vcc, {n}, v{t5}")
        K.branch(f"s_cbranch_vccz {d}")
        if sleep: K(f"s_sleep {sleep}")
        K(f"s_sub_u32 s{S_CNT}, s{S_CNT}, 1")
        K.branch(f"s_cbranch_scc0 {l}")
        K.label(d)
    def mksrd(r, p, nbytes):
        K(f"s_mov_b32 s{r}, s{p}"); K(f"s_and_b32 s{r+1}, s{p+1}, 0xffff")
        K(f"s_mov_b32 s{r+2}, {nbytes}"); K(f"s_mov_b32 s{r+3}, 0x20000")
    def mfma(d, a, b, c=None):
        cs = vr(d, 16) if c is None else c
        K(f"v_mfma_f32_32x32x16_bf16 {vr(d,16)}, {vr(a,4)}, {vr(b,4)}, {cs}")
    def padd(d, a, b, pk):
        if pk: K(f"v_pk_add_f32 {vr(d,2)}, {vr(a,2)}, {vr(b,2)}")
        else: K(f"v_add_f32 v{d}, v{a}, v{b}"); K(f"v_add_f32 v{d+1}, v{a+1}, v{b+1}")
    def pscale(d, r, pk):
        if pk: K(f"v_pk_mul_f32 {vr(d,2)}, {vr(d,2)}, {vr(r & ~1,2)} " + ("op_sel:[0,1] op_sel_hi:[1,1]" if r & 1 else "op_sel_hi:[1,0]"))
        else: K(f"v_mul_f32 v{d}, v{d}, v{r}"); K(f"v_mul_f32 v{d+1}, v{d+1}, v{r}")
    def settag():
        K(f"s_add_u32 s{S_TAG}, s{S_E}, 0x9E3779B9"); K(f"s_mov_b32 s{S_TAG+1}, s{S_TAG}"); K(f"v_mov_b32 v{V_TAG}, s{S_TAG}")
    def xfrag_addr(dst):
        K(f"v_and_b32 v{t0}, 31, v{V_LANE}"); K(f"v_lshrrev_b32 v{t2}, 5, v{V_LANE}"); K(f"v_bfe_u32 v{t3}, v{V_LANE}, 1, 3")
        K(f"v_xor_b32 v{t3}, v{t2}, v{t3}"); K(f"s_lshl_b32 s{T}, s{S_A}, 12"); K(f"v_lshlrev_b32 v{t0}, 7, v{t0}")
        K(f"v_lshl_add_u32 v{t0}, v{t3}, 4, v{t0}"); K(f"v_add_u32 v{dst}, s{T}, v{t0}")
        for k in range(1, 4): K(f"v_xor_b32 v{dst+k}, {32*k}, v{dst}")
    def lanepart():
        K(f"v_bfe_u32 v{t4}, v{V_LANE}, 4, 1"); K(f"v_lshlrev_b32 v{t4}, 5, v{t4}")
        K(f"v_and_b32 v{t3}, 3, v{V_LANE}"); K(f"v_lshl_add_u32 v{t4}, v{t3}, 3, v{t4}")
        K(f"v_bfe_u32 v{t3}, v{V_LANE}, 2, 2"); K(f"v_lshrrev_b32 v{t2}, 5, v{V_LANE}")
    def p2setup():
        mksrd(R_W2, P_W2, 0 if x_now2 else 1792*896)
        K(f"s_and_b32 s{T}, s2, 7"); K(f"s_lshr_b32 s{T+1}, s2, 3")
        K(f"s_mul_i32 s{T+2}, s{T+1}, 37"); K(f"s_lshr_b32 s{T+2}, s{T+2}, 8"); K(f"s_mul_i32 s{T+3}, s{T+2}, 7"); K(f"s_sub_u32 s{S_CT}, s{T+1}, s{T+3}")
        K(f"s_lshl_b32 s{T+2}, s{T+2}, 1"); K(f"s_lshl_b32 s{T+3}, s{T}, 3"); K(f"s_add_u32 s{S_ROW}, s{T+2}, s{T+3}")
        K(f"s_cmp_lt_u32 s{T+1}, 28"); K(f"s_cselect_b32 s{S_ACT}, 1, 0")
        K(f"s_and_b32 s{T+2}, s{S_A}, 1"); K(f"s_mul_i32 s{T+3}, s{S_A}, 7"); K(f"s_add_u32 s{T+4}, s{T+3}, s{T+2}")
        K(f"s_cmp_eq_u32 s{T+2}, 0"); K(f"s_cselect_b32 s{T+2}, 6, 0"); K(f"s_add_u32 s{T+2}, s{T+2}, s{T+3}")
        K(f"s_lshl_b32 s{T}, s{S_CT}, 7")
        K(f"s_mul_i32 s{S_W2B}, s{T+4}, {64*896}"); K(f"s_add_u32 s{S_W2B}, s{S_W2B}, s{T}")
        K(f"s_mul_i32 s{S_W2B3}, s{T+2}, {64*896}"); K(f"s_add_u32 s{S_W2B3}, s{S_W2B3}, s{T}")
        K(f"s_lshl_b32 s{S_M02}, s{S_A}, 13")
        K(f"v_lshrrev_b32 v{t0}, 3, v{V_LANE}"); K(f"v_and_b32 v{t1}, 7, v{V_LANE}")
        K(f"v_bfe_u32 v{t2}, v{V_LANE}, 4, 1"); K(f"v_lshlrev_b32 v{t2}, 2, v{t2}"); K(f"v_xor_b32 v{t1}, v{t1}, v{t2}")
        K(f"v_mul_u32_u24 v{t0}, 896, v{t0}"); K(f"v_lshl_add_u32 v{V_D2}, v{t1}, 4, v{t0}")
        for q in range(1, 4): K(f"v_add_u32 v{V_D2+q}, {q*(8*896-1024)}, v{V_D2}")
        K(f"v_mov_b32 v{V_CNT}, {L_CNT}")
    def shift(regs, d):
        for r in regs:
            if d > 0: K(f"v_add_u32 v{r}, {d}, v{r}")
            elif d < 0: K(f"v_subrev_u32 v{r}, {-d}, v{r}")
    pend = []
    def drip(n):
        for _ in range(n):
            if pend: pend.pop(0)()
    def run(steps):
        for f in steps: f()
    tk_r = {}
    def g_w2(r):
        def step(q):
            def f():
                if q % 4 == 0:
                    K(f"s_add_u32 s{TD}, s{S_W2B3 if r == 3 else S_W2B}, {(0 if r == 3 else (2*r % 7)*64*896) + (q // 4)*32*896}")
                    K(f"s_add_u32 m0, s{S_M02}, {U[RUNIT[r]] + (q // 4)*4096}")
                x = K(f"buffer_load_dwordx4 v{V_D2+q%4}, {srd(R_W2)}, s{TD} offen offset:{1024*(q%4)} lds")
                if q == 7: tk_r[r] = x
            return f
        return [step(q) for q in range(8)]
    SH = [0, 0, 65536, 0, -65536, 0, 65536]

    K.raw(f"{NAME}:")
    K("s_cmp_ge_u32 s2, 256"); K("s_cbranch_scc1 L_end")
    if stamps and early: K(f"s_memrealtime {sp(S_ST)}"); K("s_waitcnt lgkmcnt(0)")
    K("s_load_dwordx16 s[16:31], s[0:1], 0"); K("s_load_dwordx8 s[32:39], s[0:1], 64"); K("s_load_dwordx2 s[40:41], s[0:1], 96")
    if stamps:
        if not early: K(f"s_memrealtime {sp(S_ST)}")
        K(f"v_mov_b32 v{V_STAMP}, 0")
    K(f"v_lshrrev_b32 v{t0}, 6, v0"); K(f"v_and_b32 v{V_LANE}, 63, v0")
    K(f"v_readfirstlane_b32 s{S_W}, v{t0}")
    K(f"v_lshlrev_b32 v{V_L16}, 4, v{V_LANE}")
    K(f"s_and_b32 s{T}, s2, 7"); K(f"s_lshr_b32 s{T+1}, s2, 3")
    if codepf:
        K(f"s_lshr_b32 s{T+2}, s2, 5"); K(f"s_lshl_b32 s{T+2}, s{T+2}, 3"); K(f"s_or_b32 s{T+2}, s{T+2}, s{S_W}"); K(f"s_cmp_lg_u32 s{T+2}, 7")
        K("s_cbranch_scc1 L_nopf")
        K(f"s_getpc_b64 {sp(T+2)}")
        K.raw("L_pc:")
        K(f"s_lshl_b32 s{T+4}, s{T+1}, 7"); K(f"s_sub_u32 s{T+2}, s{T+2}, L_pc - {NAME}"); K(f"s_subb_u32 s{T+3}, s{T+3}, 0")
        K(f"s_add_u32 s{T+2}, s{T+2}, s{T+4}"); K(f"s_addc_u32 s{T+3}, s{T+3}, 0")
        K(f"v_lshlrev_b32 v{t0}, 9, v{V_LANE}")
        K("s_mov_b32 exec_hi, 0xffffff")
        K(f"global_load_dword v{V_POLL}, v{t0}, {sp(T+2)}"); K.vm -= 1
        K("s_mov_b32 exec_hi, -1")
        K.label("L_nopf")
    K(f"s_and_b32 s{T+2}, s{T}, 2"); K(f"s_lshl_b32 s{T+2}, s{T+2}, 1")
    K(f"s_and_b32 s{T+3}, s{T}, 1"); K(f"s_cmp_lt_u32 s{T+1}, 4"); K(f"s_cselect_b32 s{T+4}, 14, 12"); K(f"s_add_u32 s{T+3}, s{T+3}, s{T+4}")
    K(f"s_lshr_b32 s{T+4}, s{T+1}, 3"); K(f"s_lshl_b32 s{S_J}, s{T+4}, 2"); K(f"s_and_b32 s{S_MT}, s{T}, 3"); K(f"s_add_u32 s{S_J}, s{S_J}, s{S_MT}"); K(f"s_sub_u32 s{S_J}, s{S_J}, 4")
    K(f"s_cmp_lt_u32 s{T+1}, 8"); K(f"s_cselect_b32 s{S_J}, s{T+3}, s{S_J}"); K(f"s_cselect_b32 s{T+2}, s{T+2}, 0")
    K(f"s_and_b32 s{T+3}, s{T+1}, 7"); K(f"s_xor_b32 s{T+3}, s{T+3}, s{T+2}")
    K(f"s_and_b32 s{S_MT}, s{T}, 4"); K(f"s_lshl_b32 s{S_MT}, s{S_MT}, 1"); K(f"s_add_u32 s{S_MT}, s{S_MT}, s{T+3}")
    K(f"s_and_b32 s{S_A}, s{S_W}, 3")
    K(f"s_lshl_b32 s{S_W1B}, s{S_J}, 8")
    K(f"s_cmp_ge_u32 s{S_W}, 4")
    K.branch("s_cbranch_scc1 L_M")

    if prioA: K(f"s_setprio {prioA}")
    K(f"s_lshl_b32 s{T+4}, s{T+4}, 1"); K(f"s_add_u32 s{T+2}, s{T+3}, s{T+4}")
    K(f"s_cmp_ge_u32 s{T+2}, 7"); K(f"s_cselect_b32 s{T+3}, 7, 0"); K(f"s_sub_u32 s{S_CH}, s{T+2}, s{T+3}")
    if not rot1: K(f"s_mov_b32 s{S_CH}, 0")
    def rotstep(t):
        K(f"s_lshl_b32 s{S_CHO+t}, s{S_CH}, 12")
        if t < 6: K(f"s_add_u32 s{S_CH}, s{S_CH}, 1"); K(f"s_cmp_eq_u32 s{S_CH}, 7"); K(f"s_cselect_b32 s{S_CH}, 0, s{S_CH}")
    rotstep(0); rotstep(1)
    K(f"s_lshl_b32 s{S_M0}, s{S_A}, 12")
    K(f"s_mul_i32 s{S_XB}, s{S_MT}, {128*896}")
    K(f"v_lshrrev_b32 v{t0}, 3, v{V_LANE}"); K(f"v_and_b32 v{t1}, 7, v{V_LANE}"); K(f"v_lshrrev_b32 v{t2}, 1, v{t0}"); K(f"v_xor_b32 v{t2}, v{t1}, v{t2}")
    K(f"s_lshl_b32 s{T+2}, s{S_A}, 5"); K(f"v_add_u32 v{t3}, s{T+2}, v{t0}"); K(f"v_mul_u32_u24 v{t3}, 896, v{t3}")
    K(f"v_lshl_add_u32 v{A_XD}, v{t2}, 4, v{t3}"); K(f"v_xor_b32 v{t2}, 4, v{t2}"); K(f"v_lshl_add_u32 v{A_XD+1}, v{t2}, 4, v{t3}")
    K(f"v_add_u32 v{A_XD+1}, {8*896-1024}, v{A_XD+1}")
    K(f"v_add_u32 v{A_XD+2}, {16*896-2048}, v{A_XD}"); K(f"v_add_u32 v{A_XD+3}, {16*896-2048}, v{A_XD+1}")
    K(f"v_lshrrev_b32 v{t0}, 4, v{V_LANE}"); K(f"v_and_b32 v{t1}, 15, v{V_LANE}"); K(f"v_lshlrev_b32 v{t2}, 2, v{t0}"); K(f"v_xor_b32 v{t2}, v{t1}, v{t2}")
    K(f"s_lshl_b32 s{T+2}, s{S_A}, 4"); K(f"v_add_u32 v{t3}, s{T+2}, v{t0}"); K(f"v_mul_u32_u24 v{t3}, 3584, v{t3}")
    K(f"v_lshl_add_u32 v{A_WD}, v{t2}, 4, v{t3}")
    for q in range(1, 4): K(f"v_add_u32 v{A_WD+q}, {q*(4*3584-1024)}, v{A_WD}")
    K("s_waitcnt lgkmcnt(0)")
    if stamps: K(f"v_writelane_b32 v{V_STAMP}, s{S_ST}, {STAMP_IDS.setdefault('start', len(STAMP_IDS))}")
    mksrd(R_X, P_X, 2048*896); mksrd(R_W1, P_W1, 0 if x_now1 else 448*3584)
    tk_stage = {}
    def g_stage(t):
        u = U[t % 4]
        def step(q):
            def f():
                if q == 0: K(f"s_lshr_b32 s{TD}, s{S_CHO+t}, 5"); K(f"s_add_u32 s{TD}, s{TD}, s{S_XB}"); K(f"s_add_u32 m0, s{S_M0}, {u}")
                if q == 4: K(f"s_mul_i32 s{TD}, s{S_CHO+t}, 56"); K(f"s_add_u32 s{TD}, s{TD}, s{S_W1B}"); K(f"s_add_u32 m0, s{S_M0}, {u + 16384}")
                if q < 4: K(f"buffer_load_dwordx4 v{A_XD+q}, {srd(R_X)}, s{TD} offen offset:{1024*q} lds")
                else: x = K(f"buffer_load_dwordx4 v{A_WD+q-4}, {srd(R_W1)}, s{TD} offen offset:{1024*(q-4)} lds")
                if q == 7: tk_stage[t] = x
            return f
        return [step(q) for q in range(8)]
    ilist = []
    for t in range(7): ilist += [(f, t - 2 if t >= 4 else -1) for f in g_stage(t)]
    pos = [0]
    def issue_to(n, lastbar):
        while pos[0] < min(n, len(ilist)) and ilist[pos[0]][1] <= lastbar:
            ilist[pos[0]][0](); pos[0] += 1
    if fine: stamp("A_karg")
    K(f"s_cmp_ge_u32 s{S_J}, 14")
    K.branch("s_cbranch_scc1 L_a1")
    vm0 = K.vm
    issue_to(8, -1)
    issue_to(8 + LA0, -1)
    K.label("L_a1")
    if fine: stamp("A_i1")
    K(f"s_load_dword s{S_E}, {sp(P_WS)}, {WS_EPOCH}")
    for t in range(2, 7): rotstep(t)
    mksrd(R_WS, P_WS, WS_SIZE); mksrd(R_OUT, P_OUT, 2048*896)
    p2setup()
    K(f"s_mov_b32 s{S_UP}, 0"); K(f"s_mov_b32 s{S_UP+1}, -1")
    K(f"s_mov_b32 s{S_L28}, 0x10000000"); K(f"s_mov_b32 s{S_L28+1}, 0x10000000")
    xfrag_addr(A_AX)
    lanepart()
    K(f"v_lshl_add_u32 v{t0}, v{t2}, 3, v{t3}"); K(f"v_lshl_add_u32 v{A_TR}, v{t0}, 6, v{t4}")
    K(f"v_lshl_add_u32 v{t0}, v{t2}, 2, v{t3}"); K(f"v_mul_u32_u24 v{t1}, 56, v{t0}"); K(f"v_add_u32 v{t1}, v{t1}, v{t4}"); K(f"v_add_u32 v{A_PH}, {L_PHI}, v{t1}")
    K(f"v_lshlrev_b32 v{A_L4}, 2, v{V_LANE}")
    K(f"s_lshl_b32 s{T}, s{S_A}, 10"); K(f"s_add_u32 s{T}, s{T}, {WS_RPF}"); K(f"v_and_b32 v{A_PA}, 7, v{V_LANE}"); K(f"v_lshl_add_u32 v{A_PA}, v{A_PA}, 7, s{T}")
    K(f"s_mul_i32 s{S_RS}, s{S_J}, {3*28672}"); K(f"s_mul_i32 s{S_P3}, s{S_A}, 7168"); K(f"s_add_u32 s{S_RS}, s{S_RS}, s{S_P3}"); K(f"s_add_u32 s{S_RS}, s{S_RS}, {WS_WQ}")
    K("s_waitcnt lgkmcnt(0)")
    settag()
    K(f"s_cmp_lt_u32 s{S_J}, 14")
    K.branch("s_cbranch_scc1 L_a2")
    sv = K.vm
    K(f"s_mul_i32 s{T}, s{S_A}, 3072"); K(f"s_add_u32 s{T}, s{T}, {L_K}")
    K("s_barrier")
    for t in range(7):
        K(f"s_lshr_b32 s{TD}, s{S_CHO+t}, 5"); K(f"s_add_u32 s{TD}, s{TD}, s{S_XB}")
        if t < 6: K(f"s_add_u32 m0, s{S_M0}, {16384*t}")
        else: K(f"s_add_u32 m0, s{S_M0}, s{T}")
        for q in range(4): K(f"buffer_load_dwordx4 v{A_XD+q}, {srd(R_X)}, s{TD} offen offset:{1024*q} lds")
        if t == rb2: K("s_barrier")
    K("s_waitcnt vmcnt(0)")
    for t in range(7):
        if t == 4: shift(range(A_AX, A_AX + 4), 65536)
        if t == 6:
            K(f"s_sub_u32 s{T}, s{T}, 65536")
            for k in range(4): K(f"v_add_u32 v{A_AX+k}, s{T}, v{A_AX+k}")
        for ksl in range(4): K(f"ds_read_b128 {vr(V_X + 16*t + 4*ksl, 4)}, v{A_AX+ksl} offset:{(t % 4) * 16384 if t < 6 else 0}")
        if t % 2 == 1: K("s_waitcnt lgkmcnt(4)")
    K("s_waitcnt lgkmcnt(0)")
    stamp("A_b6")
    vpoll_issue(A_PA)
    K.branch("s_branch L_a3")
    K.label("L_a2")
    K.vm = sv
    if fine: stamp("A_setup")
    tkx = {}
    def g_panel(p, lds):
        def step(q):
            def f():
                if q % 4 == 0: K(f"s_add_u32 s{TD}, s{S_RS}, {28672*p + (q // 4)*4096}"); K(f"s_add_u32 m0, s{S_P3}, {lds + (q // 4)*4096}")
                tkx[p] = K(f"buffer_load_dwordx4 v{V_L16}, {srd(R_WS)}, s{TD} offen offset:{1024*(q%4)} sc1 lds")
            return f
        return [step(q) for q in range(7)]
    for t in range(7):
        issue_to(8*(t+1) + (LA0 if t == 0 else LA), t - 1)
        shift(range(A_AX, A_AX + 4), SH[t])
        if t == 5:
            assert pos[0] == len(ilist)
            tkp = vpoll_issue(A_PA)
        if fine: stamp(f"A{t}a")
        K.wait_vm(tk_stage[t])
        if fine: stamp(f"A{t}b")
        if t < 6:
            if t >= 2: K("s_waitcnt lgkmcnt(4)")
            K("s_barrier")
        else: arrive(C_S)
        if t in (0, 4, 6): stamp(f"A_b{t}")
        for ksl in range(4): K(f"ds_read_b128 {vr(V_X + 16*t + 4*ksl, 4)}, v{A_AX+ksl} offset:{(t % 2) * 32768}")
    assert tkp == K.vm
    K.label("L_a3")
    arrive(C_E)
    vpoll_check(tkp, A_PA)
    stamp("rp_seen")
    run(g_panel(1, L_K) + g_panel(2, L_V))
    K(f"v_add_u32 v{A_PA}, 4096, v{A_PA}")
    tkp = vpoll_issue(A_PA)
    stamp("kv_issued")
    K(f"s_mov_b32 s{S_K}, {f2u(L2E):#x}"); K(f"s_mov_b32 s{S_K+1}, {f2u(L2E):#x}")
    VPH, VB = V_W + 24, V_W + 16
    for s in range(2):
        for r in range(2): K(f"ds_read_b64_tr_b16 {vr(VPH + 4*s + 2*r, 2)}, v{A_PH} offset:{(16*s + 8*r)*56}")
    K(f"s_lshl_b32 s{T}, s{S_A}, 11"); K(f"s_lshl_b32 s{T+1}, s{S_J}, 13"); K(f"s_add_u32 s{S_HB}, s{T+1}, s{T}"); K(f"s_add_u32 s{S_FL}, s{S_HB}, {WS_KVF}"); K(f"s_lshl_b32 s{S_PE}, s{S_MT}, 7"); K(f"s_add_u32 s{S_PE}, s{S_PE}, s{S_FL}"); K(f"s_add_u32 s{S_HB}, s{S_HB}, {WS_KVP}")
    FL_K = (S_PE, 0, 16)
    K(f"s_lshl_b32 s{T}, s{S_MT}, 2"); K(f"s_add_u32 s{T}, s{T}, s{S_A}")
    K(f"s_lshr_b32 s{T+1}, s{T}, 1"); K(f"s_lshl_b32 s{T+1}, s{T+1}, 2"); K(f"s_lshr_b32 s{T+2}, s{S_J}, 2"); K(f"s_add_u32 s{T+1}, s{T+1}, s{T+2}"); K(f"s_lshl_b32 s{T+1}, s{T+1}, 10"); K(f"s_add_u32 s{S_FL2}, s{T+1}, {WS_OF}")
    K(f"s_lshl_b32 s{T}, s{T}, 4"); K(f"s_add_u32 s{T}, s{T}, s{S_J}")
    K(f"s_lshl_b32 s{S_OB}, s{T}, 11"); K(f"s_add_u32 s{S_OB}, s{S_OB}, {WS_O}")
    K(f"s_lshl_b32 s{T+2}, s{T}, 7"); K(f"s_add_u32 s{S_XB}, s{T+2}, {WS_G - 128}")
    IDR = [26, 27, 28, 29, V_PHI, V_PHI+1, V_PHI+2, V_PHI+3]
    K(f"v_and_b32 v{t0}, 31, v{V_LANE}"); K(f"v_lshrrev_b32 v{t1}, 5, v{V_LANE}"); K(f"v_lshlrev_b32 v{t1}, 2, v{t1}")
    K(f"v_sub_u32 v{t0}, v{t0}, v{t1}")
    K(f"v_and_b32 v{t1}, 1, v{V_LANE}"); K(f"v_lshlrev_b32 v{t1}, 4, v{t1}"); K(f"v_mov_b32 v{t2}, 0x3f80"); K(f"v_lshlrev_b32 v{t1}, v{t1}, v{t2}")
    K(f"v_and_b32 v{t0}, -2, v{t0}")
    for s in range(2):
        for q in range(4): K(f"v_cmp_eq_u32 {sp(T+2*q)}, {16*s + 8*(q // 2) + 2*(q % 2)}, v{t0}")
        for q in range(4): K(f"v_cndmask_b32 v{IDR[4*s+q]}, 0, v{t1}, {sp(T+2*q)}")
    if aw2: K(f"s_cmp_eq_u32 s{S_ACT}, 1"); K(f"s_cselect_b32 s{R_W2+2}, s{R_W2+2}, 0")
    if aw2 == 1:
        await_(C_E, 8, 1)
        run(g_w2(0))
        K.wait_vm(tkx[2]); arrive(C_0)
        run(g_w2(1))
        if qd < 0: run(g_panel(0, L_Q))
    else: K.wait_vm(tkx[2]); arrive(C_0)
    stamp("kv_landed0")
    if aw2 == 1: K.wait_vm(tk_r[1]); arrive(C_B)
    await_(C_0, 4, 1)
    K(f"v_cndmask_b32 v{VPH+6}, v{VPH+6}, 0, {UPM}"); K(f"v_cndmask_b32 v{VPH+7}, v{VPH+7}, 0, {UPM}")
    await_(C_G if gw >= 0 else C_E, 4 if gw >= 0 else 8, 1)
    vpoll_check(tkp, A_PA)
    stamp("kv_start")

    def gemm_qkv(panels, hook=None):
        nb = len(panels) * 4
        D = 3 if len(panels) == 2 else 6
        tk = {}
        for n, (off, acc, sw) in enumerate(panels): K(f"v_add_u32 v{A_AX+n}, {off}, v{A_TR}")
        def rd(ks, n):
            t, ksl = ks // 4, ks % 4
            b = V_W + nb * (ks % D)
            if ksl == 0: K(f"v_add_u32 v{A_AD + n}, s{S_CHO+t}, v{A_AX+n}")
            for r in range(2):
                tk[ks] = K(f"ds_read_b64_tr_b16 {vr(b + 4*n + 2*r, 2)}, v{A_AD + n} offset:{(16*ksl + 4*r)*64}")
        for k in range(D):
            for n in range(len(panels)): rd(k, n)
        for ks in range(28):
            K.wait_lg(tk[ks])
            b = V_W + nb * (ks % D)
            for n, (off, acc, sw) in enumerate(panels):
                wv, xv = b + 4*n, V_X + 4*ks
                if sw: mfma(acc, xv, wv, "0" if ks == 0 else None)
                else: mfma(acc, wv, xv, "0" if ks == 0 else None)
                if ks + D < 28: rd(ks + D, n)
            if hook: hook(ks)
    QP = V_W
    P = V_ACC
    def featmap():
        for e in range(8): K(f"v_cvt_pk_bf16_f32 v{QP+e}, v{V_ACC+2*e}, v{V_ACC+2*e+1}")
        mfma(P, VPH, QP, "0"); mfma(P, VPH + 4, QP + 4)
    def softmax(pk):
        for e in range(4): K(f"v_cndmask_b32 v{P+12+e}, v{P+12+e}, v{P}, {UPM}")
        mx, mn = t0, t2
        K(f"v_max3_f32 v{mx}, v{P}, v{P+1}, v{P+2}"); K(f"v_min3_f32 v{mn}, v{P}, v{P+1}, v{P+2}")
        K(f"v_max3_f32 v{t1}, v{P+3}, v{P+4}, v{P+5}"); K(f"v_min3_f32 v{t3}, v{P+3}, v{P+4}, v{P+5}")
        for e in range(6, 14, 4):
            K(f"v_max3_f32 v{mx}, v{mx}, v{P+e}, v{P+e+1}"); K(f"v_min3_f32 v{mn}, v{mn}, v{P+e}, v{P+e+1}")
            K(f"v_max3_f32 v{t1}, v{t1}, v{P+e+2}, v{P+e+3}"); K(f"v_min3_f32 v{t3}, v{t3}, v{P+e+2}, v{P+e+3}")
        K(f"v_max3_f32 v{mx}, v{mx}, v{P+14}, v{P+15}"); K(f"v_min3_f32 v{mn}, v{mn}, v{P+14}, v{P+15}")
        K(f"v_max_f32 v{mx}, v{mx}, v{t1}"); K(f"v_min_f32 v{mn}, v{mn}, v{t3}")
        K(f"v_mov_b32 v{t1}, v{mx}"); K(f"v_mov_b32 v{t3}, v{mn}")
        K(f"v_permlane32_swap_b32 v{mx}, v{t1}"); K(f"v_permlane32_swap_b32 v{mn}, v{t3}")
        K(f"v_max_f32 v{mx}, v{mx}, v{t1}"); K(f"v_min_f32 v{mn}, v{mn}, v{t3}")
        K(f"v_mul_f32 v{mx}, s{S_K}, v{mx}"); K(f"v_mul_f32 v{mn}, s{S_K}, v{mn}")
        EP, EN = V_P, V_P + 16
        for e in range(0, 16, 2):
            if pk:
                K(f"v_pk_fma_f32 {vr(EP+e,2)}, {vr(P+e,2)}, {sp(S_K)}, {vr(mx,2)} op_sel_hi:[1,1,0] neg_lo:[0,0,1] neg_hi:[0,0,1]")
                K(f"v_pk_fma_f32 {vr(EN+e,2)}, {vr(P+e,2)}, {sp(S_K)}, {vr(mn,2)} op_sel_hi:[1,1,0] neg_lo:[1,0,0] neg_hi:[1,0,0]")
            else:
                for x in (e, e + 1):
                    K(f"v_fma_f32 v{EP+x}, v{P+x}, s{S_K}, -v{mx}"); K(f"v_fma_f32 v{EN+x}, -v{P+x}, s{S_K}, v{mn}")
        for e in range(16):
            K(f"v_exp_f32 v{EP+e}, v{EP+e}"); K(f"v_exp_f32 v{EN+e}, v{EN+e}")
        S = V_W
        for n, E in enumerate((EP, EN)):
            padd(S+4*n, E, E+2, pk); padd(S+4*n+2, E+12, E+14, pk)
        for n, E in enumerate((EP, EN)):
            padd(S+4*n, S+4*n, E+4, pk)
            K(f"v_cndmask_b32 v{S+4*n+2}, v{S+4*n+2}, 0, {UPM}"); K(f"v_cndmask_b32 v{S+4*n+3}, v{S+4*n+3}, 0, {UPM}")
        for n, E in enumerate((EP, EN)):
            padd(S+4*n, S+4*n, E+6, pk); padd(S+4*n+2, S+4*n+2, E+8, pk)
        for n, E in enumerate((EP, EN)): padd(S+4*n, S+4*n, E+10, pk)
        for n in range(2): padd(S+4*n, S+4*n, S+4*n+2, pk)
        K(f"v_add_f32 v{t0}, v{S}, v{S+1}"); K(f"v_add_f32 v{t2}, v{S+4}, v{S+5}")
        K(f"v_mov_b32 v{t1}, v{t0}"); K(f"v_mov_b32 v{t3}, v{t2}")
        K(f"v_permlane32_swap_b32 v{t0}, v{t1}"); K(f"v_permlane32_swap_b32 v{t2}, v{t3}")
        K(f"v_add_f32 v{t0}, v{t0}, v{t1}"); K(f"v_add_f32 v{t2}, v{t2}, v{t3}")
        K(f"v_rcp_f32 v{t0}, v{t0}"); K(f"v_rcp_f32 v{t2}, v{t2}")
        K(f"v_cndmask_b32 v{t1}, v{t0}, 0, {UPM}"); K(f"v_cndmask_b32 v{t3}, v{t2}, 0, {UPM}")
        for e in range(0, 16, 2):
            pscale(EP+e, t0 if e < 12 else t1, pk); pscale(EN+e, t2 if e < 12 else t3, pk)
        for e in range(8):
            K(f"v_cvt_pk_bf16_f32 v{V_PHI+e}, v{EP+2*e}, v{EP+2*e+1}"); K(f"v_cvt_pk_bf16_f32 v{V_PHI+8+e}, v{EN+2*e}, v{EN+2*e+1}")

    if aw2 == 2: pend.extend(g_w2(0) + g_w2(1))
    if qd >= 0: pend.extend(g_panel(0, L_Q))
    def hook(ks):
        if aw2 == 2:
            drip(1)
            if ks == cb: K.wait_vm(tk_r[1]); arrive(C_B)
        elif ks >= qd and (ks - qd) % 3 == 0: drip(1)
        if ks == 25: arrive(C_1)
    gemm_qkv([(L_K, V_ACC, False), (L_V, V_ACC + 16, True)], hook)
    featmap()
    assert not pend
    for e in range(4): K(f"v_mov_b32 v{V_W+8+e}, v{V_PHI+e}")
    IDR[4] = V_W + 8
    stamp("kv_gemm")
    K(f"v_mov_b32 v{t4}, 0x3f803f80")
    for e in range(8): K(f"v_cvt_pk_bf16_f32 v{VB+e}, v{V_ACC+16+2*e}, v{V_ACC+16+2*e+1}")
    for e in range(8): K(f"v_cndmask_b32 v{VB+e}, v{VB+e}, v{t4}, {sp(S_L28)}")
    softmax(pkk)
    stamp("sm_k")
    TP, TN = V_P, V_P + 16
    mfma(TP, V_PHI, IDR[0], "0"); mfma(TP, V_PHI + 4, IDR[4])
    mfma(TN, V_PHI + 8, IDR[0], "0"); mfma(TN, V_PHI + 12, IDR[4])
    await_(C_1, 4)
    if f2: stamp("kv_a")
    K(f"s_lshl_b32 s{T}, s{S_A}, 13"); K(f"s_add_u32 s{T}, s{T}, {L_KVS}"); K(f"v_add_u32 v{t0}, s{T}, v{V_L16}")
    K(f"s_lshl_b32 s{T}, s{S_A}, 11"); K(f"s_add_u32 s{T}, s{T}, {L_KVS}"); K(f"v_add_u32 v{t1}, s{T}, v{V_L16}")
    for e in range(8): K(f"v_cvt_pk_bf16_f32 v{V_PHI+e}, v{TP+2*e}, v{TP+2*e+1}")
    mfma(V_ACC, V_PHI, VB, "0"); mfma(V_ACC, V_PHI + 4, VB + 4)
    for e in range(8): K(f"v_cvt_pk_bf16_f32 v{V_PHI+8+e}, v{TN+2*e}, v{TN+2*e+1}")
    mfma(V_ACC + 16, V_PHI + 8, VB, "0"); mfma(V_ACC + 16, V_PHI + 12, VB + 4)
    for b in range(8): K(f"ds_write_b128 v{t0}, {vr(V_ACC+4*b,4)} offset:{1024*b}")
    K.wait_vm(tkx[0])
    arrive(C_2)
    if f2: stamp("kv_b")
    await_(C_2, 4)
    if f2: stamp("kv_c")
    for hb in range(2):
        for g in range(4): K(f"ds_read_b128 {vr(V_P+16*hb+4*g,4)}, v{t1} offset:{8192*g + 1024*hb}")
    arrive(C_3)
    if f2: stamp("kv_d")
    for hb in range(2):
        K(f"s_waitcnt lgkmcnt({5 - 4*hb})")
        B = V_P + 16*hb
        for e in (0, 2): padd(B+e, B+e, B+4+e, pkq); padd(B+8+e, B+8+e, B+12+e, pkq)
        for e in (0, 2): padd(B+e, B+e, B+8+e, pkq)
        for e in range(4): K(f"buffer_atomic_add_f32 v{B+e}, v{A_L4}, {srd(R_WS)}, s{S_HB} offen offset:{1024*hb + 256*e}")
    stamp("kv_st")
    def hook(ks):
        if ks == 22: arrive(C_Q)
        if ks == kvf:
            K("s_waitcnt vmcnt(0)")
            signal(S_FL, 16)
            stamp("kv_pub")
    gemm_qkv([(L_Q, V_ACC, False)], hook)
    K(f"v_cvt_pk_bf16_f32 v{t0}, v{V_ACC+12}, v{V_ACC+12}")
    featmap()
    K(f"v_lshlrev_b32 v{t0}, 16, v{t0}")
    K(f"v_mul_f32 v{t0}, s{S_K}, v{t0}"); K(f"v_exp_f32 v{t0}, -v{t0}"); K(f"v_add_f32 v{t0}, 1.0, v{t0}"); K(f"v_rcp_f32 v{t0}, v{t0}")
    K(f"v_cvt_pk_bf16_f32 v{t0}, v{t0}, v{t0}"); K(f"v_lshlrev_b32 v{A_G}, 16, v{t0}")
    K("s_mov_b32 exec_lo, 0")
    K(f"buffer_store_dword v{A_G}, v{A_L4}, {srd(R_WS)}, s{S_XB} offen sc1")
    K("s_mov_b32 exec_lo, -1")
    stamp("q_gemm")
    softmax(pkq)
    stamp("sm_q")
    poll_issue(FL_K)
    poll_check(FL_K)
    stamp("kv_seen")
    for e in range(8): K(f"buffer_load_dword v{V_P+e}, v{A_L4}, {srd(R_WS)}, s{S_HB} offen offset:{256*e} sc1")
    F = V_W
    K(f"s_lshl_b32 s{T}, s{S_A}, 10"); K(f"v_add_u32 v{t1}, {L_KVF}, v{V_L16}"); K(f"v_add_u32 v{t0}, s{T}, v{t1}")
    K("s_waitcnt vmcnt(0)")
    stamp("kv_landed")
    for e in range(4): K(f"v_cvt_pk_bf16_f32 v{F+e}, v{V_P+2*e}, v{V_P+2*e+1}")
    K(f"ds_write_b128 v{t0}, {vr(F,4)}")
    arrive(C_4)
    await_(C_4, 4)
    if f2: stamp("o_a")
    for f in range(4): K(f"ds_read_b128 {vr(F+4*f,4)}, v{t1} offset:{1024*f}")
    N = V_ACC
    for f in range(4):
        K(f"s_waitcnt lgkmcnt({3-f})")
        mfma(N, F + 4*f, V_PHI + 4*f, "0" if f == 0 else None)
    K(f"v_cvt_pk_bf16_f32 v{t0}, v{N+12}, v{N+12}")
    for e in range(8): K(f"v_cvt_pk_bf16_f32 v{F+e}, v{N+2*e}, v{N+2*e+1}")
    K(f"v_lshlrev_b32 v{t0}, 16, v{t0}")
    K(f"v_add_f32 v{t0}, {f2u(1e-6):#x}, v{t0}")
    K(f"v_cvt_pk_bf16_f32 v{t0}, v{t0}, v{t0}"); K(f"v_lshlrev_b32 v{t0}, 16, v{t0}")
    K(f"v_rcp_f32 v{t0}, v{t0}")
    for e in range(4):
        K(f"v_lshlrev_b32 v{N+2*e}, 16, v{F+e}"); K(f"v_and_b32 v{N+2*e+1}, 0xffff0000, v{F+e}")
    K(f"v_mul_f32 v{t0}, v{t0}, v{A_G}"); K(f"v_mov_b32 v{t1}, v{t0}")
    for e in range(4, 8):
        K(f"v_lshlrev_b32 v{N+2*e}, 16, v{F+e}"); K(f"v_and_b32 v{N+2*e+1}, 0xffff0000, v{F+e}")
    K(f"v_permlane32_swap_b32 v{t1}, v{t0}")
    for e in range(0, 16, 2): pscale(N+e, t0, pkq)
    for e in range(8): K(f"v_cvt_pk_bf16_f32 v{F+e}, v{N+2*e}, v{N+2*e+1}")
    K(f"v_cndmask_b32 v{F+6}, v{F+6}, 0, {UPM}"); K(f"v_cndmask_b32 v{F+7}, v{F+7}, 0, {UPM}")
    K(f"buffer_store_dwordx4 {vr(F,4)}, v{V_L16}, {srd(R_WS)}, s{S_OB} offen sc1")
    K(f"buffer_store_dwordx4 {vr(F+4,4)}, v{V_L16}, {srd(R_WS)}, s{S_OB} offen offset:1024 sc1")
    if f2: stamp("o_b")
    K("s_waitcnt vmcnt(0)")
    signal(S_FL2, 7)
    stamp("o_pub")
    K(f"s_cmp_eq_u32 s{S_ACT}, 0")
    K.branch("s_cbranch_scc1 L_fin")
    K.branch("s_branch L_red")

    K.label("L_M")
    if prioM: K(f"s_setprio {prioM}")
    K("s_waitcnt lgkmcnt(0)")
    if stamps: K(f"v_writelane_b32 v{V_STAMP}, s{S_ST}, {STAMP_IDS.setdefault('start', len(STAMP_IDS))}")
    K(f"s_load_dword s{S_E}, {sp(P_WS)}, {WS_EPOCH}")
    mksrd(R_T, P_PHI, 16*1568)
    K(f"s_mul_i32 s{T}, s{S_J}, 1568"); K(f"s_mul_i32 s{T+1}, s{S_A}, 400"); K(f"s_add_u32 s{T}, s{T}, s{T+1}"); K(f"s_add_u32 m0, s{T+1}, {L_PHI}")
    K("s_mov_b64 exec, 0x1ffffff")
    K(f"buffer_load_dwordx4 v{V_L16}, {srd(R_T)}, s{T} offen lds")
    K("s_mov_b64 exec, -1")
    K(f"v_mov_b32 v{V_CNT}, {L_CNT}")
    K(f"v_mov_b32 v{t0}, 0"); K(f"v_lshl_add_u32 v{t1}, v{V_LANE}, 2, v{V_CNT}"); K(f"ds_write_b32 v{t1}, v{t0}")
    K(f"s_cmp_lt_u32 s{S_J}, 14")
    K.branch("s_cbranch_scc1 L_mset")
    vm_m = K.vm
    RB = 96
    K0 = S_XB
    mksrd(R_T, P_WQKV, 448*2688)
    K(f"s_lshl_b32 s{S_FL}, s{S_MT}, 1"); K(f"s_add_u32 s{S_FL}, s{S_FL}, s{S_J}"); K(f"s_sub_u32 s{S_FL}, s{S_FL}, 14")
    K(f"s_mul_i32 s{K0}, s{S_FL}, 14"); K(f"s_lshl_b32 s{T+5}, s{S_A}, 1"); K(f"s_add_u32 s{K0}, s{K0}, s{T+5}")
    K(f"v_lshrrev_b32 v{t0}, 3, v{V_LANE}"); K(f"v_bfe_u32 v{t1}, v{V_LANE}, 2, 1"); K(f"v_and_b32 v{t2}, 3, v{V_LANE}")
    K(f"v_mul_u32_u24 v{t3}, 56, v{t0}"); K(f"v_mul_u32_u24 v{t4}, 2688, v{t1}"); K(f"v_add_u32 v{t3}, v{t3}, v{t4}")
    K(f"v_lshl_add_u32 v{t3}, v{t2}, 4, v{t3}")
    K(f"s_mul_i32 s{T+5}, s{K0}, 2688"); K(f"v_lshlrev_b32 v{t4}, 1, v{t1}"); K(f"s_lshl_b32 s{T+6}, s{K0}, 1")
    tkl = {}
    if fine: stamp("rp_0")
    K(f"s_add_u32 s{T+7}, s{T+5}, {8*2688}"); K(f"s_cmp_eq_u32 s{S_A}, 3"); K(f"s_cselect_b32 s{T+7}, 0x7000000, s{T+7}"); K(f"s_cselect_b32 s{S_CH}, s{T+7}, 512")
    def rp_load(q): tkl[q] = K(f"buffer_load_dwordx4 {vr(RB+4*q,4)}, v{t3}, {srd(R_T)}, s{T+5 if q < 6 else T+7} offen offset:{448*(q%6)}")
    for q in (2, 3, 4, 5, 8, 9, 10, 11): rp_load(q)
    mksrd(R_X, P_GATE, 896)
    K(f"buffer_load_ushort v{RB+48}, v{t4}, {srd(R_X)}, s{T+6} offen"); K(f"buffer_load_ushort v{RB+49}, v{t4}, {srd(R_X)}, s{T+6} offen offset:16")
    for q in (0, 1, 6, 7): rp_load(q)
    mksrd(R_WS, P_WS, WS_SIZE)
    K(f"s_mov_b32 s{T+6}, 86016"); K(f"v_mul_lo_u32 v{RB+50}, v{t0}, s{T+6}"); K(f"v_and_b32 v{t1}, 7, v{V_LANE}")
    K(f"v_lshl_add_u32 v{RB+50}, v{t1}, 4, v{RB+50}")
    K(f"v_cmp_eq_u32 vcc, 3, v{t2}")
    K(f"s_lshl_b32 s{K0}, s{K0}, 6"); K(f"s_add_u32 s{K0}, s{K0}, {WS_WQ}")
    def rp_store(q):
        n, p, hg = q // 6, (q % 6) // 2, q % 2; b = RB + 4*q
        K.wait_vm(tkl[q])
        K(f"v_cndmask_b32 v{b+2}, v{b+2}, v{RB+48+n}, vcc" if p == 0 else f"v_cndmask_b32 v{b+2}, v{b+2}, 0, vcc")
        K(f"v_cndmask_b32 v{b+3}, v{b+3}, 0, vcc")
        K(f"s_add_u32 s{T+6}, s{K0}, {p*28672 + hg*8*86016}")
        if n: K(f"s_add_u32 s{T+6}, s{T+6}, s{S_CH}")
        return K(f"buffer_store_dwordx4 {vr(b,4)}, v{RB+50}, {srd(R_WS)}, s{T+6} offen sc1")
    for e in range(4): K(f"v_mov_b32 v{RB+52+e}, 0")
    K(f"s_lshl_b32 s{T+5}, s{S_FL}, 2"); K(f"s_add_u32 s{T+5}, s{T+5}, s{S_A}"); K(f"s_lshl_b32 s{T+7}, s{T+5}, 12"); K(f"s_lshl_b32 s{T+5}, s{T+5}, 10")
    K(f"s_add_u32 s{T+5}, s{T+5}, {WS_KVP}"); K(f"s_add_u32 s{T+7}, s{T+7}, {WS_CN}"); K(f"v_lshlrev_b32 v{t0}, 7, v{V_LANE}")
    K(f"buffer_store_dwordx4 {vr(RB+52,4)}, v{V_L16}, {srd(R_WS)}, s{T+5} offen sc1")
    K("s_mov_b32 exec_hi, 0")
    K(f"buffer_store_dword v{RB+52}, v{t0}, {srd(R_WS)}, s{T+7} offen sc1")
    K("s_mov_b32 exec_hi, -1")
    K(f"s_lshl_b32 s{S_FL}, s{S_FL}, 7"); K(f"s_add_u32 s{S_FL}, s{S_FL}, {WS_RPF}"); K(f"s_add_u32 s{S_FL2}, s{S_FL}, 4096")
    K(f"s_cmp_eq_u32 s{S_A}, 3"); K(f"s_cselect_b32 s{S_FL}, s{S_FL}, 0x7000000"); K(f"s_cselect_b32 s{S_FL2}, s{S_FL2}, 0x7000000")
    K("s_waitcnt lgkmcnt(0)")
    settag()
    for q in (2, 3, 4, 5, 8, 9, 10, 11): tk1 = rp_store(q)
    for q in (0, 1, 6, 7): rp_store(q)
    if fine: stamp("rp_st")
    K("s_barrier")
    K.wait_vm(tk1)
    K("s_barrier")
    flag(S_FL)
    stamp("rp_pub")
    K("s_waitcnt vmcnt(1)")
    arrive(C_5); await_(C_5, 4)
    flag(S_FL2)
    arrive(C_E); arrive(C_G)
    K("s_setprio 0")
    K.vm = vm_m
    K.label("L_mset")
    mksrd(R_WS, P_WS, WS_SIZE); mksrd(R_WO, P_WO, 448*896); mksrd(R_OUT, P_OUT, 2048*896)
    p2setup()
    K(f"s_mul_i32 s{T}, s{S_ROW}, {112*1024}"); K(f"s_add_u32 s{T}, s{T}, {0x7000000 if x_noh else WS_H}")
    K(f"s_lshl_b32 s{S_HB}, s{T+4}, 12"); K(f"s_add_u32 s{S_HB}, s{S_HB}, s{T}")
    K(f"s_lshl_b32 s{S_HB3}, s{T+2}, 12"); K(f"s_add_u32 s{S_HB3}, s{S_HB3}, s{T}")
    BF1, BF2, BONE = M_AR + 80, 128, 124
    for r in list(range(BF1, BF1 + 16)) + list(range(BONE, BF2 + 8)): K(f"v_mov_b32 v{r}, 0")
    K(f"v_lshlrev_b32 v{t0}, 1, v{V_LANE}")
    K("s_mov_b32 exec_hi, 0")
    K(f"v_mov_b32 v{BONE}, 0x3f80")
    mksrd(R_T, P_B1, 3584)
    for p in range(4): K(f"buffer_load_ushort v{BF1+4*p}, v{t0}, {srd(R_T)}, s{S_W1B} offen offset:{64*p}")
    mksrd(R_T, P_B2, 896)
    K(f"s_lshl_b32 s{T}, s{S_CT}, 7"); K(f"s_lshl_b32 s{T+1}, s{S_A}, 10"); K(f"s_add_u32 s{T}, s{T}, s{T+1}")
    for p in range(2): tk_b2 = K(f"buffer_load_ushort v{BF2+4*p}, v{t0}, {srd(R_T)}, s{T} offen offset:{64*p}")
    K("s_mov_b32 exec_hi, -1")
    K(f"s_lshl_b32 s{T}, s{S_ROW}, 1"); K(f"s_add_u32 s{T}, s{T}, s{S_A}")
    K(f"s_lshl_b32 s{T+1}, s{S_CT}, 7")
    K(f"s_lshl_b32 s{S_PE}, s{T}, 11"); K(f"s_add_u32 s{S_PE}, s{S_PE}, s{T+1}"); K(f"s_add_u32 s{S_PE}, s{S_PE}, {WS_HF}")
    K(f"s_lshl_b32 s{S_PO}, s{T}, 10"); K(f"s_add_u32 s{S_PO}, s{S_PO}, s{T+1}"); K(f"s_add_u32 s{S_PO}, s{S_PO}, {WS_OF}")
    K(f"s_lshl_b32 s{T}, s{S_ROW}, 4"); K(f"s_lshl_b32 s{T+1}, s{S_A}, 2"); K(f"s_add_u32 s{S_OB}, s{T+1}, s{T}")
    FL_E, FL_L, FL_O = (S_PE, 0, 6), (S_PE, 1024, 8), (S_PO, 0, 8)
    K(f"s_lshl_b32 s{T}, s{S_MT}, 2"); K(f"s_add_u32 s{T}, s{T}, s{S_A}"); K(f"s_mul_i32 s{S_RS}, s{T}, 112")
    K(f"s_lshl_b32 s{T+1}, s{S_J}, 3"); K(f"s_add_u32 s{S_RS}, s{S_RS}, s{T+1}"); K(f"s_lshl_b32 s{S_RS}, s{S_RS}, 10"); K(f"s_add_u32 s{S_RS}, s{S_RS}, {WS_H}")
    K(f"s_lshr_b32 s{T}, s{T}, 1"); K(f"s_lshl_b32 s{T}, s{T}, 13"); K(f"s_add_u32 s{T}, s{T}, {WS_HF}")
    K(f"s_mul_i32 s{T+1}, s{S_J}, {74*8}"); K(f"s_and_b32 s{S_FL}, s{T+1}, 0xf800"); K(f"s_add_u32 s{S_FL}, s{S_FL}, s{T}")
    K(f"s_add_u32 s{T+1}, s{T+1}, {37*8}"); K(f"s_and_b32 s{S_FL2}, s{T+1}, 0xf800"); K(f"s_add_u32 s{S_FL2}, s{S_FL2}, s{T}"); K(f"s_add_u32 s{S_FL2}, s{S_FL2}, 1024")
    K(f"s_lshr_b32 s{T+1}, {(1 << 3) | (1 << 10)}, s{S_J}"); K(f"s_and_b32 s{T+1}, s{T+1}, 1"); K(f"s_lshl_b32 s{T+1}, s{T+1}, 10"); K(f"s_add_u32 s{S_FL}, s{S_FL}, s{T+1}")
    K(f"s_cmp_ge_u32 s{S_J}, 14"); K(f"s_cselect_b32 s{S_FL2}, 0x7000000, s{S_FL2}")
    K(f"v_add_u32 v{M_L16B}, {112*1024}, v{V_L16}")
    MP = M_AR + 40
    K(f"v_lshlrev_b32 v{MP}, 7, v{V_LANE}")
    K(f"s_lshl_b32 s{T+3}, s2, 2"); K(f"s_add_u32 s{T+3}, s{T+3}, s{S_A}")
    K(f"s_mul_i32 s{S_XB}, s{T+3}, {13*128}"); K(f"s_lshl_b32 s{S_M0}, s{T+3}, 9")
    def mall_pf():
        K("s_mov_b64 exec, 0x1fff")
        K(f"buffer_load_dword v{V_POLL}, v{MP}, {srd(R_W2)}, s{S_XB} offen")
        K("s_mov_b64 exec, 15")
        K(f"buffer_load_dword v{V_POLL}, v{MP}, {srd(R_WO)}, s{S_M0} offen")
        K("s_mov_b64 exec, -1")
    if mpf == 1: mall_pf()
    if tlb:
        l = newl("tlb")
        K(f"s_cmp_lg_u32 s{S_A}, 1")
        K.branch(f"s_cbranch_scc1 {l}")
        K(f"v_lshlrev_b32 v{t0}, {tlb}, v{V_LANE}")
        K(f"buffer_load_dword v{V_POLL}, v{t0}, {srd(R_WS)}, 0 offen offset:2048"); K.vm -= 1
        K(f"buffer_load_dword v{V_POLL}, v{t0}, {srd(R_OUT)}, 0 offen"); K.vm -= 1
        K.label(l)
    xfrag_addr(M_AX)
    lanepart()
    K(f"v_lshl_add_u32 v{t0}, v{t2}, 3, v{t3}"); K(f"v_lshl_add_u32 v{t0}, v{t0}, 8, v{t4}"); K(f"v_lshl_add_u32 v{t0}, v{t3}, 6, v{t0}")
    K(f"v_add_u32 v{M_AW}, 16384, v{t0}")
    for p in range(1, 4): K(f"v_xor_b32 v{M_AW+p}, {64*p}, v{M_AW}")
    AB = M_AB
    K(f"v_lshl_add_u32 v{t0}, v{t2}, 2, v{t3}"); K(f"v_lshl_add_u32 v{t0}, v{t0}, 7, v{t4}"); K(f"v_bfe_u32 v{t1}, v{V_LANE}, 3, 1"); K(f"v_lshl_add_u32 v{t0}, v{t1}, 6, v{t0}")
    K(f"v_add_u32 v{AB}, s{S_M02}, v{t0}"); K(f"v_xor_b32 v{AB+1}, 64, v{AB}")
    K(f"v_add_u32 v{AB+2}, 65536, v{AB}"); K(f"v_add_u32 v{AB+3}, 65536, v{AB+1}")
    K(f"v_lshlrev_b32 v{t0}, 9, v{t2}"); K(f"v_sub_u32 v22, v{AB+2}, v{t0}"); K(f"v_sub_u32 v23, v{AB+3}, v{t0}")
    box = {}
    K(f"s_cmp_ge_u32 s{S_J}, 14")
    K.branch("s_cbranch_scc1 L_nof")
    vm_nof = K.vm
    K("s_waitcnt lgkmcnt(0)")
    settag()
    if fine: stamp("M_rdy")
    WR, XR = M_BH, M_BH + 4*G
    tk = {}
    def rdg(g):
        ks, p = g // 4, g % 4
        t, ksl = ks // 4, ks % 4
        uo = (t % 2) * 32768
        if p == 0 and ksl == 0:
            shift(range(M_AX, M_AX + 8), SH[t])
            if t == 3: K.wait_vm(tk_b2)
            if t < 6: K("s_barrier")
            else:
                l = newl("s6")
                K.wait_lg(box['cs'])
                K(f"v_cmp_ne_u32 vcc, 4, v{t4}")
                K(f"s_cbranch_vccz {l}")
                lgs = K.lg
                await_(C_S, 4)
                K.lg = lgs
                K.raw(f"{l}:")
        if p == 0: K(f"ds_read_b128 {vr(XR + 4*(ks % 3), 4)}, v{M_AX+ksl} offset:{uo}")
        for r in range(2):
            tk[g] = K(f"ds_read_b64_tr_b16 {vr(WR + 4*(g % G) + 2*r, 2)}, v{M_AW+p} offset:{uo + (16*ksl + 4*r)*256}")
    for g in range(G): rdg(g)
    for g in range(112):
        K.wait_lg(tk[g])
        mfma(M_ACC + 16*(g % 4), WR + 4*(g % G), XR + 4*((g // 4) % 3), "0" if g < 4 else None)
        if 52 <= g < 56: mfma(M_ACC + 16*(g % 4), BF1 + 4*(g % 4), BONE)
        if g + G < 112: rdg(g + G)
        if g + G == 112: arrive(C_E)
        if g + G + 3 == 96: box['cs'] = K(f"ds_read_b32 v{t4}, v{V_CNT} offset:{C_S}")
        if mpf > 1 and g == mpf: mall_pf()
    stamp("ffn1")
    K(f"s_setprio {prioG}")
    cc = -2.0 * 0.7978845608028654 * 1.4426950408889634
    K(f"v_mov_b32 v{t0}, {f2u(cc):#x}"); K(f"v_mov_b32 v{t1}, 1.0"); K(f"s_mov_b32 s{S_K}, {f2u(cc*0.044715):#x}"); K(f"s_mov_b32 s{S_K+1}, {f2u(cc*0.044715):#x}")
    tkh = {}
    for g in range(8):
        a = M_ACC + 8*g; tt = M_AR + 8*(g % 2); o = M_AR + 48 + 4*g
        if g < pkg:
            for e in range(0, 8, 2): K(f"v_pk_mul_f32 {vr(tt+e,2)}, {vr(a+e,2)}, {vr(a+e,2)}")
            for e in range(0, 8, 2): K(f"v_pk_fma_f32 {vr(tt+e,2)}, {vr(tt+e,2)}, {sp(S_K)}, {vr(t0,2)} op_sel_hi:[1,1,0]")
            for e in range(0, 8, 2): K(f"v_pk_mul_f32 {vr(tt+e,2)}, {vr(a+e,2)}, {vr(tt+e,2)}")
            for e in range(8): K(f"v_exp_f32 v{tt+e}, v{tt+e}")
            for e in range(0, 8, 2): K(f"v_pk_add_f32 {vr(tt+e,2)}, {vr(tt+e,2)}, {vr(t0,2)} op_sel:[0,1] op_sel_hi:[1,1]")
            for e in range(8): K(f"v_rcp_f32 v{tt+e}, v{tt+e}")
            for e in range(0, 8, 2): K(f"v_pk_mul_f32 {vr(tt+e,2)}, {vr(a+e,2)}, {vr(tt+e,2)}")
        else:
            for e in range(8): K(f"v_mul_f32 v{tt+e}, v{a+e}, v{a+e}")
            for e in range(8): K(f"v_fma_f32 v{tt+e}, v{tt+e}, s{S_K}, v{t0}")
            for e in range(8): K(f"v_mul_f32 v{tt+e}, v{a+e}, v{tt+e}")
            for e in range(8): K(f"v_exp_f32 v{tt+e}, v{tt+e}")
            for e in range(8): K(f"v_add_f32 v{tt+e}, 1.0, v{tt+e}")
            for e in range(8): K(f"v_rcp_f32 v{tt+e}, v{tt+e}")
            for e in range(8): K(f"v_mul_f32 v{tt+e}, v{a+e}, v{tt+e}")
        for e in range(4): K(f"v_cvt_pk_bf16_f32 v{o+e}, v{tt+2*e}, v{tt+2*e+1}")
        if g == gw: arrive(C_G)
        if (g + 1) % sb == 0:
            K("s_setprio 3")
            for x in range(g + 1 - sb, g + 1):
                if x == 4: K(f"s_add_u32 s{S_RS}, s{S_RS}, 4096")
                tkh[x] = K(f"buffer_store_dwordx4 {vr(M_AR + 48 + 4*x,4)}, v{V_L16}, {srd(R_WS)}, s{S_RS} offen offset:{1024*(x%4)} sc1")
            if g < 7: K(f"s_setprio {prioG}")
    stamp("gelu_v")
    await_(C_0, 4)
    K.wait_vm(tkh[3]); signal(S_FL, 7)
    stamp("gelu")
    K(f"s_cmp_eq_u32 s{S_ACT}, 1")
    K.branch("s_cbranch_scc1 L_p2")
    K("s_waitcnt vmcnt(0)")
    signal(S_FL2, 7)
    K.branch("s_branch L_fin")
    K.label("L_nof")
    K.vm = vm_nof
    if mpf == -2: await_(C_E, 8, 2)
    if mpf == -1: await_(C_0, 4, 2)
    if mpf < 0:
        K(f"s_lshl_b32 s{T+3}, s2, 2"); K(f"s_add_u32 s{T+3}, s{T+3}, s{S_A}")
        K(f"s_mul_i32 s{T}, s{T+3}, {98*128}"); K(f"s_mul_i32 s{T+1}, s{T+3}, {25*128}")
        K(f"buffer_load_dword v{V_POLL}, v{MP}, {srd(R_W2)}, s{T} offen")
        K(f"s_add_u32 s{T}, s{T}, {64*128}")
        K("s_mov_b32 exec_hi, 3")
        K(f"buffer_load_dword v{V_POLL}, v{MP}, {srd(R_W2)}, s{T} offen")
        K("s_mov_b64 exec, 0x1ffffff")
        K(f"buffer_load_dword v{V_POLL}, v{MP}, {srd(R_WO)}, s{T+1} offen")
        K("s_mov_b64 exec, -1")
    await_(C_0, 4, 2)
    K("s_waitcnt lgkmcnt(0)")
    settag()
    if mpf > 1: mall_pf()
    K("s_waitcnt vmcnt(0)")

    K.label("L_p2")
    tk_h = K.vm
    def g_wo(hf):
        def step(q):
            def f():
                if q == 0:
                    K(f"s_mul_i32 s{TD}, s{S_A}, {112*896}"); K(f"s_lshl_b32 s{TD+1}, s{S_CT}, 7"); K(f"s_add_u32 s{TD}, s{TD}, s{TD+1}")
                    if hf: K(f"s_add_u32 s{TD}, s{TD}, {56*896}")
                    K(f"s_add_u32 m0, s{S_M02}, {U[RUNIT[7+hf]]}")
                if q == 4: K(f"s_add_u32 s{TD}, s{TD}, {32*896}"); K(f"s_add_u32 m0, s{S_M02}, {U[RUNIT[7+hf]] + 4096}")
                x = K(f"buffer_load_dwordx4 v{V_D2+q%4}, {srd(R_WO)}, s{TD} offen offset:{1024*(q%4)} lds")
                if q == 6: tk_r[7+hf] = x
            return f
        return [step(q) for q in range(7)]
    tk = {}
    def rdb(ks, part=3):
        r, ksl = ks // 4, ks % 4
        b = M_BH + 8 * (ks % 8)
        u = RUNIT[r]
        if ksl == 0 and r >= 2 and part & 1: K.wait_vm(tk_r[r])
        for pp in range(2):
            for h in range(2):
                if not part & (1 << pp): continue
                if r < 7:
                    tk[ks] = K(f"ds_read_b64_tr_b16 {vr(b + 4*pp + 2*h, 2)}, v{AB + pp + (2 if u >= 2 else 0)} offset:{(u%2)*32768 + (16*ksl + 8*h)*128}")
                else:
                    hh, sx = (ks % 4) // 2, ks % 2
                    tk[ks] = K(f"ds_read_b64_tr_b16 {vr(b + 4*pp + 2*h, 2)}, v{(22 if (sx == 1 and h == 1) else AB + 2) + pp} offset:{(u%2)*32768 + (28*hh + 16*sx + 8*h)*128}")
    tk_a = {}
    def lda(ks, part=3):
        b = M_AR + 8 * (ks % NA); r = ks // 4
        if part & 1:
            if ks % 4 == 0: K(f"s_add_u32 s{T+7}, s{S_HB3 if r == 3 else S_HB}, {0 if r == 3 else (2*r % 7)*4096}")
            K(f"buffer_load_dwordx4 {vr(b,4)}, v{V_L16}, {srd(R_WS)}, s{T+7} offen offset:{1024*(ks%4)} sc1")
        if part & 2: tk_a[ks] = K(f"buffer_load_dwordx4 {vr(b+4,4)}, v{M_L16B}, {srd(R_WS)}, s{T+7} offen offset:{1024*(ks%4)} sc1")
    for t2_ in range(2):
        for pp in range(2): mfma(M_ACC + 32*t2_ + 16*pp, BF2 + 4*pp, BONE, "0")
    g0, g1, g2, g3 = g_w2(0), g_w2(1), g_w2(2), g_w2(3)
    if aw2:
        K.wait_vm(tk_h - 1)
        signal(S_FL2, 7)
        K(f"s_setprio 0")
        stamp("h_pub1")
        if hfirst:
            poll_issue(FL_E)
            poll_check(FL_E)
            stamp("hE_seen")
            for ks in range(pre): lda(ks)
        await_(C_B, 4)
        stamp("B_seen")
        for ks in range(3): rdb(ks)
        K.wait_lg(tk[0]); rdb(3)
        K.wait_lg(tk[3])
        for q in range(8):
            g2[q]()
            if q < 4:
                if q == 3: K.wait_lg(tk[4])
                rdb(4 + q)
        K("s_waitcnt lgkmcnt(0)")
        if not hfirst:
            poll_issue(FL_E)
            run(g3); g3 = []
            poll_check(FL_E)
            stamp("hE_seen")
            for ks in range(pre): lda(ks)
    else:
        await_(C_E, 8)
        for q in range(8):
            g0[q]()
        K.wait_vm(tk_h - 1)
        signal(S_FL2, 7)
        K(f"s_setprio 0")
        stamp("h_pub1")
        poll_issue(FL_E)
        run(g1)
        poll_check(FL_E)
        stamp("hE_seen")
        for ks in range(4): lda(ks)
        K.wait_vm(tk_r[0])
        for ks in range(4):
            if ks == 3: K.wait_lg(tk[0])
            rdb(ks); lda(4 + ks)
        K.wait_vm(tk_r[1]); K.wait_lg(tk[3])
        for q in range(8):
            g2[q]()
            if q < 4:
                if q == 3: K.wait_lg(tk[4])
                rdb(4 + q)
        K("s_waitcnt lgkmcnt(0)")
    stamp("p2_prep")
    poll_issue(FL_L)
    for ks in range(pre if aw2 else 8, 12): pend.extend([lambda ks=ks: lda(ks, 1), lambda ks=ks: lda(ks, 2)])
    pend.extend(g3)
    def step(ks, side):
        K.wait_vm(tk_a[ks])
        if ks >= 8: K.wait_lg(tk[ks])
        a = M_AR + 8 * (ks % NA); b = M_BH + 8 * (ks % 8)
        n = 0
        for t2_ in range(2):
            for pp in range(2):
                if not (x_nomf and ks < 28): mfma(M_ACC + 32*t2_ + 16*pp, b + 4*pp, a + 4*t2_)
                side(n); n += 1
    nxt = [12]
    def hstep(ks):
        def side(n):
            if n < 2 and ks + 3 >= 8: rdb(ks + 3, 1 << n)
            drip(2 if len(pend) > 8 else 1)
        step(ks, side)
    def ldo(ks, part):
        b = M_AR + 8 * (ks % NA)
        if part == 0:
            K(f"buffer_load_dword v{t2}, v{t3}, {srd(R_WS)}, s{T+3} offen sc1")
            box['g'] = K(f"buffer_load_dword v{t3}, v{t3}, {srd(R_WS)}, s{T+3} offen offset:2048 sc1")
        if part == 1:
            if ks == 32: K(f"s_add_u32 s{T+4}, s{T+4}, 4096")
            K(f"buffer_load_dwordx4 {vr(b,4)}, v{V_L16}, {srd(R_WS)}, s{T+4} offen offset:{1024*(ks%4)} sc1")
        if part == 2: tk_a[ks] = K(f"buffer_load_dwordx4 {vr(b+4,4)}, v{M_L16B}, {srd(R_WS)}, s{T+4} offen offset:{1024*(ks%4)} sc1")
    olist = lambda: [lambda: ldo(0, 0)] + [lambda k=k, p=p: ldo(k, p) for k in range(28, 36) for p in (1, 2)]
    for ks in range(oc + 1):
        hstep(ks)
        if ks == c0:
            poll_check(FL_L)
            stamp("hL_seen")
        if ks == 7:
            await_(C_3, 4)
            pend.extend(g_w2(4))
        while ks >= c0 and nxt[0] <= ks + NA and nxt[0] < 28:
            pend.extend([lambda k=nxt[0]: lda(k, 1), lambda k=nxt[0]: lda(k, 2)]); nxt[0] += 1
        if ks == 11: pend.extend(g_w2(5))
        if ks == 15: pend.extend(g_w2(6))
        if ks == 17:
            await_(C_Q, 4)
            pend.extend(g_wo(0))
        if ks == 19: pend.extend(g_wo(1))
        if ks in (3, 11, 19): stamp(f"p2_k{ks}")
        if ks == oc - 2: poll_issue(FL_O)
    assert not pend and oc >= 22
    K(f"v_and_b32 v{t3}, 31, v{V_LANE}"); K(f"v_lshlrev_b32 v{t3}, 2, v{t3}")
    K(f"s_lshl_b32 s{T+3}, s{S_OB}, 7"); K(f"s_add_u32 s{T+3}, s{T+3}, {WS_G}")
    K(f"s_lshl_b32 s{T+4}, s{S_OB}, 11"); K(f"s_add_u32 s{T+4}, s{T+4}, {WS_O}")
    K(f"v_add_u32 v{M_L16B}, 32768, v{V_L16}")
    K(f"v_add_u32 v{V_D2}, s{S_M02}, v{V_L16}")
    for q in range(1, 4): K(f"v_xor_b32 v{V_D2+q}, {64*q}, v{V_D2}")
    K("s_waitcnt lgkmcnt(0)")
    K(f"s_cmp_lg_u32 s{PD[0]}, {FL_O[2]}")
    K.branch("s_cbranch_scc1 L_olate")
    sv, sl = K.vm, K.lg
    stamp("o_early")
    pend.extend(olist())
    for ks in range(oc + 1, 28): hstep(ks)
    drip(99)
    ev, el = K.vm, K.lg
    K.branch("s_branch L_ojoin")
    K.label("L_olate")
    K.vm, K.lg = sv, sl
    for ks in range(oc + 1, 28): hstep(ks)
    poll_issue(FL_O)
    poll_check(FL_O)
    stamp("o_late")
    run(olist())
    assert (ev, el) == (K.vm, K.lg)
    K.label("L_ojoin")
    stamp("p2_h_done")
    tk_g = box['g']
    K.wait_vm(tk_g)
    if f2: stamp("t_g")
    K(f"v_sub_f32 v{t4}, 1.0, v{t2}"); K(f"v_sub_f32 v{t5}, 1.0, v{t3}")
    K(f"v_cvt_pk_bf16_f32 v{t4}, v{t4}, v{t5}"); K(f"v_and_b32 v{t5}, 0xffff0000, v{t4}"); K(f"v_lshlrev_b32 v{t4}, 16, v{t4}")
    for e in range(0, 64, 2): pscale(M_ACC+e, t4 if e < 32 else t5, True)
    for ks in range(28, 36):
        def side(n):
            if n < 2 and ks + 3 < 36: rdb(ks + 3, 1 << n)
        step(ks, side)
    if f2: stamp("t_mf")
    for t2_ in range(2):
        for b in range(8): K(f"ds_write_b128 v{V_D2 + b%4}, {vr(M_ACC+32*t2_+4*b,4)} offset:{32768*t2_ + 1024*b}")
    stamp("p2_done")

    K.label("L_red")
    K(f"v_and_b32 v{t1}, 7, v{V_LANE}"); K(f"v_lshrrev_b32 v{t3}, 3, v{V_LANE}")
    K(f"s_lshl_b32 s{T+1}, s{S_A}, 3"); K(f"v_add_u32 v{t0}, s{T+1}, v{t3}")
    K(f"v_and_b32 v{t2}, 3, v{V_LANE}"); K(f"v_lshlrev_b32 v{t2}, 2, v{t2}"); K(f"v_xor_b32 v{t0}, v{t0}, v{t2}")
    K(f"v_lshlrev_b32 v{t0}, 4, v{t0}"); K(f"v_lshl_add_u32 v{t0}, v{t1}, 10, v{t0}")
    K(f"s_lshr_b32 s{T+2}, s{S_W}, 2"); K(f"s_lshl_b32 s{T}, s{T+2}, 15"); K(f"v_add_u32 v{t0}, s{T}, v{t0}")
    K(f"v_mul_u32_u24 v{t3}, 896, v{t3}"); K(f"v_lshl_add_u32 v{t3}, v{t1}, 4, v{t3}")
    K(f"s_lshl_b32 s{T}, s{S_ROW}, 2"); K(f"s_add_u32 s{T}, s{T}, s{S_W}"); K(f"s_mul_i32 s{T}, s{T}, {8*896}"); K(f"s_lshl_b32 s{T+1}, s{S_CT}, 7"); K(f"s_add_u32 s{T+5}, s{T}, s{T+1}")
    K("s_waitcnt lgkmcnt(0)")
    K("s_barrier")
    if f2: stamp("t_bar")
    R = 160
    for q in range(4):
        K(f"ds_read_b128 {vr(R+8*q,4)}, v{t0} offset:{8192*q}")
        K(f"ds_read_b128 {vr(R+8*q+4,4)}, v{t0} offset:{8192*q + 512}")
    K("s_waitcnt lgkmcnt(4)")
    for e in range(0, 8, 2): padd(R+e, R+e, R+8+e, True)
    K("s_waitcnt lgkmcnt(0)")
    for e in range(0, 8, 2): padd(R+16+e, R+16+e, R+24+e, True)
    for e in range(0, 8, 2): padd(R+e, R+e, R+16+e, True)
    for e in range(4): K(f"v_cvt_pk_bf16_f32 v{R+e}, v{R+2*e}, v{R+2*e+1}")
    K(f"buffer_store_dwordx4 {vr(R,4)}, v{t3}, {srd(R_OUT)}, s{T+5} offen" + ["", " sc1", " nt", " sc0 sc1"][outm])
    if f2: stamp("t_st")
    K(f"s_or_b32 s{T}, s2, s{S_W}"); K(f"s_cmp_lg_u32 s{T}, 0")
    K.branch("s_cbranch_scc1 L_fin")
    K(f"s_mov_b32 s{T}, {WS_EPOCH}")
    flag(T)
    K.label("L_fin")
    if stamps:
        K("s_waitcnt vmcnt(0)")
        stamp("end")
        if probe is not None:
            i0 = STAMP_IDS.setdefault('start', len(STAMP_IDS)); i1 = STAMP_IDS.setdefault(probe, len(STAMP_IDS))
            K(f"v_readlane_b32 s{T}, v{V_STAMP}, {i0}"); K(f"v_readlane_b32 s{T+1}, v{V_STAMP}, {i1}")
            K("s_nop 4")
            K(f"s_cmp_eq_u32 s{T+1}, 0"); K(f"s_cselect_b32 s{T+1}, s{T}, s{T+1}")
            if pwg >= 0:
                K(f"s_cmp_lg_u32 s2, {pwg}")
                K.branch("s_cbranch_scc1 L_end")
            K.label("L_probe")
            K("s_sleep 2")
            K(f"s_memrealtime {sp(S_ST)}"); K("s_waitcnt lgkmcnt(0)")
            K(f"s_sub_u32 s{T+2}, s{S_ST}, s{T+1}"); K(f"s_cmp_lt_u32 s{T+2}, {pt}")
            K.branch("s_cbranch_scc1 L_probe")
            K.branch("s_branch L_end")
        K(f"s_lshl_b32 s{T}, s2, 3"); K(f"s_add_u32 s{T}, s{T}, s{S_W}"); K(f"s_lshl_b32 s{T}, s{T}, 8"); K(f"s_add_u32 s{T}, s{T}, {WS_STAMP}")
        K(f"v_lshlrev_b32 v{t0}, 2, v{V_LANE}")
        K(f"buffer_store_dword v{V_STAMP}, v{t0}, {srd(R_WS)}, s{T} offen")
    K.label("L_end")
    K("s_endpgm")
    K.raw(f".fill (28672 + 4096 * {1 if stamps else 0} - (L_end - {NAME})) / 4, 4, 0xbf800000")

    head = f"""; Fused gated mix of hedgehog linear attention and GELU FFN (emitted by a hand-written generator script)
; @launch grid=(256,1,1) block=(512,1,1) lds=163840
.amdgcn_target "amdgcn-amd-amdhsa--gfx950"
.text
.globl {NAME}
.p2align 8
.type {NAME},@function
"""
    tail = f""".section .rodata,"a"
.p2align 6
.amdhsa_kernel {NAME}
  .amdhsa_next_free_vgpr 256
  .amdhsa_next_free_sgpr 102
  .amdhsa_accum_offset 256
  .amdhsa_group_segment_fixed_size 0
  .amdhsa_kernarg_size 104
  .amdhsa_user_sgpr_count 2
  .amdhsa_user_sgpr_kernarg_segment_ptr 1
  .amdhsa_system_sgpr_workgroup_id_x 1
.end_amdhsa_kernel
"""
    return head + K.text() + tail

STAMP_IDS = {}
def parse_opts(argv):
    kw = {}
    for a in argv:
        if a.startswith("-D"):
            k, v = a[2:].split("="); kw[k] = int(v) if v.lstrip("-").isdigit() else v
    return kw
if __name__ == "__main__":
    out = sys.argv[1] if len(sys.argv) > 1 else "k.s"
    open(out, "w").write(gen(**parse_opts(sys.argv)))
```

```python
import sys, struct
from asmlib import Asm

NAME = "gated_mix__linear_kernel_hedgehog__dense_activation_gelu__prompt_kernel"
def f2u(x): return struct.unpack("<I", struct.pack("<f", x))[0]

WS_EPOCH = 0
WS_RPF   = 0x8000
WS_STAMP = 0x10000
WS_G     = 0xA0000
WS_WQ    = 0x100000
WS_KVP   = 0x280000
WS_O     = 0x480000
WS_H     = 0x680000
WS_CN    = 0x300000
WS_HF    = WS_CN
WS_OF    = WS_CN + 2048*128
WS_KVF   = WS_CN + 3072*128
WS_SIZE  = 0xE00000

U = [0, 32768, 65536, 98304, 131072]
L_K, L_V, L_Q = 98304, 126976, 65536
L_MISC = 155648
L_PHI, L_CNT, L_B2, L_B1 = L_MISC, L_MISC + 2048, L_MISC + 2560, L_MISC + 3072
L_KVS = U[3]
L_KVF = L_MISC + 4096
RUNIT = [0, 1, 0, 1, 3, 0, 1, 2, 3]
C_E, C_0, C_1, C_2, C_3, C_4, C_Q, C_G, C_B, C_S, C_5, C_P, C_B2 = 0, 4, 8, 12, 16, 20, 24, 28, 32, 36, 40, 44, 48

P_X, P_WQKV, P_PHI, P_WO, P_W1, P_B1, P_W2 = 16, 18, 20, 22, 26, 28, 30
P_B2, P_GATE, P_OUT, P_WS = 32, 34, 36, 40
R_X, R_W1, R_W2, R_WO, R_WS, R_OUT, R_T = 44, 48, 52, 56, 60, 64, 68
S_MT, S_J, S_W, S_A, S_FL2, S_TAG, S_CH, S_CNT = 72, 73, 74, 75, 76, 78, 77, 100
S_CHO = 80
S_M0 = 87
S_XB, S_W1B = 88, 89
S_T = 90
S_UP = 98
S_E = 42
S_H = S_J
S_CT, S_ROW, S_ACT = 43, 3, 101
S_K = 4
S_ST = 6
S_L28 = 24
S_FL = 8
S_HB, S_W2B, S_OB, S_HB3, S_W2B3, S_M02, S_RS = 9, 10, 11, 12, 13, 14, 15
S_PE, S_P3, S_PO = 34, 35, 38
PD = [16, 17, 18, 19, 20, 21, 22, 23, 26, 27, 28, 29, 30, 31, 32, 33]
def srd(r): return f"s[{r}:{r+3}]"
def sp(r): return f"s[{r}:{r+1}]"

V_LANE, V_L16, V_STAMP, V_TAG, V_POLL, V_CNT = 1, 2, 3, 4, 5, 6
V_T = 8
V_D2 = 18
A_PA, A_AX, A_AD, A_L4, A_PH, A_TR, A_G = 7, 14, 22, 24, 25, 30, 31
V_W, V_P, V_ACC, V_PHI, V_X = 32, 64, 96, 128, 144
A_XD, A_WD, A_QD, A_GW = 64, 68, 72, 16
M_L16B, M_AB = 7, 14
M_ACC, M_BH, M_AR = 24, 88, 152
M_AX, M_AW = 136, 140
NA = 13
def vr(a, n): return f"v[{a}:{a+n-1}]"
UPM = sp(S_UP)
L2E = 1.4426950408889634

def gen(stamps=False, spin=20000, rot1=False, codepf=True, slp=2, cyc=False, G=5, prioA=1, prioM=2, kvf=27, fine=False,
        pkq=0, pkk=1, LA=9, LA0=6, c0=2, mpf=60, outm=0, tlb=21, gw=-1, hf0=7, rpb=3, prioG=2, k6=4, qpf=1, sb=1, qd=0, probe=None, pwg=-1, pt=4000, aw2=2, pre=8, cb=22, pkg=2, rpa=0, f2=0, hfirst=1, early=0, oc=22, x_now2=0, x_noh=0, x_nomf=0, x_now1=0, rb2=0, gp=3, pa=10, x_at=4, c3=9, cq=17, spf=0):
    K = Asm()
    T = S_T
    TD = T + 5
    t0, t1, t2, t3, t4, t5 = range(V_T, V_T + 6)
    def stamp(name):
        if not stamps: return
        if probe is not None and name != probe: return
        K("s_waitcnt lgkmcnt(0)")
        K(f"s_memrealtime {sp(S_ST)}")
        if cyc: K(f"s_memtime s[0:1]")
        K("s_waitcnt lgkmcnt(0)")
        i = STAMP_IDS.setdefault(name, len(STAMP_IDS))
        K(f"v_writelane_b32 v{V_STAMP}, s{S_ST}, {i}")
        if cyc: K(f"v_writelane_b32 v{V_STAMP}, s0, {32 + i}")
    uid = [0]
    def newl(p): uid[0] += 1; return f"L_{p}{uid[0]}"
    def poll_issue(fl):
        K(f"s_load_dword s{PD[0]}, {sp(P_WS)}, s{fl[0]} offset:{fl[1]} glc")
    def poll_check(fl):
        l, d = newl("poll"), newl("polld")
        K(f"s_mov_b32 s{S_CNT}, {spin}")
        K.raw(f"{l}:")
        K("s_waitcnt lgkmcnt(0)")
        K(f"s_cmp_eq_u32 s{PD[0]}, {fl[2]}")
        K.branch(f"s_cbranch_scc1 {d}")
        K(f"s_sub_u32 s{S_CNT}, s{S_CNT}, 1")
        K(f"s_cbranch_scc1 {d}")
        if slp: K(f"s_sleep {slp}")
        poll_issue(fl)
        K(f"s_branch {l}")
        K.label(d)
    def signal(soff_reg, n):
        K(f"v_mov_b32 v{t5}, 1"); K(f"v_lshlrev_b32 v{V_POLL}, 7, v{V_LANE}")
        K(f"s_mov_b64 exec, {(1 << n) - 1}")
        K(f"buffer_atomic_add v{t5}, v{V_POLL}, {srd(R_WS)}, s{soff_reg} offen")
        K("s_mov_b64 exec, -1")
    def vpoll_issue(vaddr):
        return K(f"buffer_load_dword v{V_POLL}, v{vaddr}, {srd(R_WS)}, 0 offen sc1")
    def vpoll_check(tok, vaddr):
        l, d = newl("poll"), newl("polld")
        K(f"s_mov_b32 s{S_CNT}, {spin}")
        K.wait_vm(tok)
        K.label(l)
        K(f"v_cmp_ne_u32 vcc, s{S_TAG}, v{V_POLL}")
        K.branch(f"s_cbranch_vccz {d}")
        K(f"s_sub_u32 s{S_CNT}, s{S_CNT}, 1")
        K.branch(f"s_cbranch_scc1 {d}")
        K(f"s_sleep 10")
        K(f"buffer_load_dword v{V_POLL}, v{vaddr}, {srd(R_WS)}, 0 offen sc1"); K.vm -= 1
        K("s_waitcnt vmcnt(0)")
        K.branch(f"s_branch {l}")
        K.label(d)
    def flag(soff_reg):
        K("s_mov_b64 exec, 1")
        K(f"buffer_store_dword v{V_TAG}, v{V_LANE}, {srd(R_WS)}, s{soff_reg} offen sc1")
        K("s_mov_b64 exec, -1")
    def arrive(c):
        K(f"v_mov_b32 v{t5}, 1")
        K("s_mov_b64 exec, 1")
        K(f"ds_add_u32 v{V_CNT}, v{t5} offset:{c}")
        K("s_mov_b64 exec, -1")
    def await_(c, n, sleep=0):
        l, d = newl("aw"), newl("awd")
        K(f"s_mov_b32 s{S_CNT}, {spin * 8}")
        K.label(l)
        K(f"ds_read_b32 v{t5}, v{V_CNT} offset:{c}")
        K("s_waitcnt lgkmcnt(0)")
        K(f"v_cmp_ne_u32 vcc, {n}, v{t5}")
        K.branch(f"s_cbranch_vccz {d}")
        if sleep: K(f"s_sleep {sleep}")
        K(f"s_sub_u32 s{S_CNT}, s{S_CNT}, 1")
        K.branch(f"s_cbranch_scc0 {l}")
        K.label(d)
    def mksrd(r, p, nbytes):
        K(f"s_mov_b32 s{r}, s{p}"); K(f"s_and_b32 s{r+1}, s{p+1}, 0xffff")
        K(f"s_mov_b32 s{r+2}, {nbytes}"); K(f"s_mov_b32 s{r+3}, 0x20000")
    def mfma(d, a, b, c=None):
        cs = vr(d, 16) if c is None else c
        K(f"v_mfma_f32_32x32x16_bf16 {vr(d,16)}, {vr(a,4)}, {vr(b,4)}, {cs}")
    def padd(d, a, b, pk):
        if pk: K(f"v_pk_add_f32 {vr(d,2)}, {vr(a,2)}, {vr(b,2)}")
        else: K(f"v_add_f32 v{d}, v{a}, v{b}"); K(f"v_add_f32 v{d+1}, v{a+1}, v{b+1}")
    def pscale(d, r, pk):
        if pk: K(f"v_pk_mul_f32 {vr(d,2)}, {vr(d,2)}, {vr(r & ~1,2)} " + ("op_sel:[0,1] op_sel_hi:[1,1]" if r & 1 else "op_sel_hi:[1,0]"))
        else: K(f"v_mul_f32 v{d}, v{d}, v{r}"); K(f"v_mul_f32 v{d+1}, v{d+1}, v{r}")
    def settag():
        K(f"s_add_u32 s{S_TAG}, s{S_E}, 0x9E3779B9"); K(f"s_mov_b32 s{S_TAG+1}, s{S_TAG}"); K(f"v_mov_b32 v{V_TAG}, s{S_TAG}")
    def xfrag_addr(dst):
        K(f"v_and_b32 v{t0}, 31, v{V_LANE}"); K(f"v_lshrrev_b32 v{t2}, 5, v{V_LANE}"); K(f"v_bfe_u32 v{t3}, v{V_LANE}, 1, 3")
        K(f"v_xor_b32 v{t3}, v{t2}, v{t3}"); K(f"s_lshl_b32 s{T}, s{S_A}, 12"); K(f"v_lshlrev_b32 v{t0}, 7, v{t0}")
        K(f"v_lshl_add_u32 v{t0}, v{t3}, 4, v{t0}"); K(f"v_add_u32 v{dst}, s{T}, v{t0}")
        for k in range(1, 4): K(f"v_xor_b32 v{dst+k}, {32*k}, v{dst}")
    def lanepart():
        K(f"v_bfe_u32 v{t4}, v{V_LANE}, 4, 1"); K(f"v_lshlrev_b32 v{t4}, 5, v{t4}")
        K(f"v_and_b32 v{t3}, 3, v{V_LANE}"); K(f"v_lshl_add_u32 v{t4}, v{t3}, 3, v{t4}")
        K(f"v_bfe_u32 v{t3}, v{V_LANE}, 2, 2"); K(f"v_lshrrev_b32 v{t2}, 5, v{V_LANE}")
    def p2setup():
        mksrd(R_W2, P_W2, 0 if x_now2 else 1792*896)
        K(f"s_and_b32 s{T}, s2, 7"); K(f"s_lshr_b32 s{T+1}, s2, 3")
        K(f"s_mul_i32 s{T+2}, s{T+1}, 37"); K(f"s_lshr_b32 s{T+2}, s{T+2}, 8"); K(f"s_mul_i32 s{T+3}, s{T+2}, 7"); K(f"s_sub_u32 s{S_CT}, s{T+1}, s{T+3}")
        K(f"s_lshl_b32 s{T+2}, s{T+2}, 1"); K(f"s_lshl_b32 s{T+3}, s{T}, 3"); K(f"s_add_u32 s{S_ROW}, s{T+2}, s{T+3}")
        K(f"s_cmp_lt_u32 s{T+1}, 28"); K(f"s_cselect_b32 s{S_ACT}, 1, 0")
        K(f"s_and_b32 s{T+2}, s{S_A}, 1"); K(f"s_mul_i32 s{T+3}, s{S_A}, 7"); K(f"s_add_u32 s{T+4}, s{T+3}, s{T+2}")
        K(f"s_cmp_eq_u32 s{T+2}, 0"); K(f"s_cselect_b32 s{T+2}, 6, 0"); K(f"s_add_u32 s{T+2}, s{T+2}, s{T+3}")
        K(f"s_lshl_b32 s{T}, s{S_CT}, 7")
        K(f"s_mul_i32 s{S_W2B}, s{T+4}, {64*896}"); K(f"s_add_u32 s{S_W2B}, s{S_W2B}, s{T}")
        K(f"s_mul_i32 s{S_W2B3}, s{T+2}, {64*896}"); K(f"s_add_u32 s{S_W2B3}, s{S_W2B3}, s{T}")
        K(f"s_lshl_b32 s{S_M02}, s{S_A}, 13")
        K(f"v_lshrrev_b32 v{t0}, 3, v{V_LANE}"); K(f"v_and_b32 v{t1}, 7, v{V_LANE}")
        K(f"v_bfe_u32 v{t2}, v{V_LANE}, 4, 1"); K(f"v_lshlrev_b32 v{t2}, 2, v{t2}"); K(f"v_xor_b32 v{t1}, v{t1}, v{t2}")
        K(f"v_mul_u32_u24 v{t0}, 896, v{t0}"); K(f"v_lshl_add_u32 v{V_D2}, v{t1}, 4, v{t0}")
        for q in range(1, 4): K(f"v_add_u32 v{V_D2+q}, {q*(8*896-1024)}, v{V_D2}")
        K(f"v_mov_b32 v{V_CNT}, {L_CNT}")
    def shift(regs, d):
        for r in regs:
            if d > 0: K(f"v_add_u32 v{r}, {d}, v{r}")
            elif d < 0: K(f"v_subrev_u32 v{r}, {-d}, v{r}")
    pend = []
    def drip(n):
        for _ in range(n):
            if pend: pend.pop(0)()
    def run(steps):
        for f in steps: f()
    tk_r = {}
    def g_w2(r):
        def step(q):
            def f():
                if q % 4 == 0:
                    K(f"s_add_u32 s{TD}, s{S_W2B3 if r == 3 else S_W2B}, {(0 if r == 3 else (2*r % 7)*64*896) + (q // 4)*32*896}")
                    K(f"s_add_u32 m0, s{S_M02}, {U[RUNIT[r]] + (q // 4)*4096}")
                x = K(f"buffer_load_dwordx4 v{V_D2+q%4}, {srd(R_W2)}, s{TD} offen offset:{1024*(q%4)} lds")
                if q == 7: tk_r[r] = x
            return f
        return [step(q) for q in range(8)]
    SH = [0, 0, 65536, 0, -65536, 0, 65536]

    K.raw(f"{NAME}:")
    K("s_cmp_ge_u32 s2, 256"); K("s_cbranch_scc1 L_end")
    if stamps and early: K(f"s_memrealtime {sp(S_ST)}"); K("s_waitcnt lgkmcnt(0)")
    K("s_load_dwordx16 s[16:31], s[0:1], 0"); K("s_load_dwordx8 s[32:39], s[0:1], 64"); K("s_load_dwordx2 s[40:41], s[0:1], 96")
    if stamps:
        if not early: K(f"s_memrealtime {sp(S_ST)}")
        K(f"v_mov_b32 v{V_STAMP}, 0")
    K(f"v_lshrrev_b32 v{t0}, 6, v0"); K(f"v_and_b32 v{V_LANE}, 63, v0")
    K(f"v_readfirstlane_b32 s{S_W}, v{t0}")
    K(f"v_lshlrev_b32 v{V_L16}, 4, v{V_LANE}")
    K(f"s_and_b32 s{T}, s2, 7"); K(f"s_lshr_b32 s{T+1}, s2, 3")
    if codepf:
        K(f"s_lshr_b32 s{T+2}, s2, 5"); K(f"s_lshl_b32 s{T+2}, s{T+2}, 3"); K(f"s_or_b32 s{T+2}, s{T+2}, s{S_W}"); K(f"s_cmp_lg_u32 s{T+2}, 7")
        K("s_cbranch_scc1 L_nopf")
        K(f"s_getpc_b64 {sp(T+2)}")
        K.raw("L_pc:")
        K(f"s_lshl_b32 s{T+4}, s{T+1}, 7"); K(f"s_sub_u32 s{T+2}, s{T+2}, L_pc - {NAME}"); K(f"s_subb_u32 s{T+3}, s{T+3}, 0")
        K(f"s_add_u32 s{T+2}, s{T+2}, s{T+4}"); K(f"s_addc_u32 s{T+3}, s{T+3}, 0")
        K(f"v_lshlrev_b32 v{t0}, 9, v{V_LANE}")
        K("s_mov_b32 exec_hi, 0xffffff")
        K(f"global_load_dword v{V_POLL}, v{t0}, {sp(T+2)}"); K.vm -= 1
        K("s_mov_b32 exec_hi, -1")
        K.label("L_nopf")
    K(f"s_and_b32 s{T+2}, s{T}, 2"); K(f"s_lshl_b32 s{T+2}, s{T+2}, 1")
    K(f"s_and_b32 s{T+3}, s{T}, 1"); K(f"s_cmp_lt_u32 s{T+1}, 4"); K(f"s_cselect_b32 s{T+4}, 14, 12"); K(f"s_add_u32 s{T+3}, s{T+3}, s{T+4}")
    K(f"s_lshr_b32 s{T+4}, s{T+1}, 3"); K(f"s_lshl_b32 s{S_J}, s{T+4}, 2"); K(f"s_and_b32 s{S_MT}, s{T}, 3"); K(f"s_add_u32 s{S_J}, s{S_J}, s{S_MT}"); K(f"s_sub_u32 s{S_J}, s{S_J}, 4")
    K(f"s_cmp_lt_u32 s{T+1}, 8"); K(f"s_cselect_b32 s{S_J}, s{T+3}, s{S_J}"); K(f"s_cselect_b32 s{T+2}, s{T+2}, 0")
    K(f"s_and_b32 s{T+3}, s{T+1}, 7"); K(f"s_xor_b32 s{T+3}, s{T+3}, s{T+2}")
    K(f"s_and_b32 s{S_MT}, s{T}, 4"); K(f"s_lshl_b32 s{S_MT}, s{S_MT}, 1"); K(f"s_add_u32 s{S_MT}, s{S_MT}, s{T+3}")
    K(f"s_and_b32 s{S_A}, s{S_W}, 3")
    K(f"s_lshl_b32 s{S_W1B}, s{S_J}, 8")
    K(f"s_cmp_ge_u32 s{S_W}, 4")
    K.branch("s_cbranch_scc1 L_M")

    if prioA: K(f"s_setprio {prioA}")
    K(f"s_lshl_b32 s{T+4}, s{T+4}, 1"); K(f"s_add_u32 s{T+2}, s{T+3}, s{T+4}")
    K(f"s_cmp_ge_u32 s{T+2}, 7"); K(f"s_cselect_b32 s{T+3}, 7, 0"); K(f"s_sub_u32 s{S_CH}, s{T+2}, s{T+3}")
    if not rot1: K(f"s_mov_b32 s{S_CH}, 0")
    def rotstep(t):
        K(f"s_lshl_b32 s{S_CHO+t}, s{S_CH}, 12")
        if t < 6: K(f"s_add_u32 s{S_CH}, s{S_CH}, 1"); K(f"s_cmp_eq_u32 s{S_CH}, 7"); K(f"s_cselect_b32 s{S_CH}, 0, s{S_CH}")
    rotstep(0); rotstep(1)
    K(f"s_lshl_b32 s{S_M0}, s{S_A}, 12")
    K(f"s_mul_i32 s{S_XB}, s{S_MT}, {128*896}")
    K(f"v_lshrrev_b32 v{t0}, 3, v{V_LANE}"); K(f"v_and_b32 v{t1}, 7, v{V_LANE}"); K(f"v_lshrrev_b32 v{t2}, 1, v{t0}"); K(f"v_xor_b32 v{t2}, v{t1}, v{t2}")
    K(f"s_lshl_b32 s{T+2}, s{S_A}, 5"); K(f"v_add_u32 v{t3}, s{T+2}, v{t0}"); K(f"v_mul_u32_u24 v{t3}, 896, v{t3}")
    K(f"v_lshl_add_u32 v{A_XD}, v{t2}, 4, v{t3}"); K(f"v_xor_b32 v{t2}, 4, v{t2}"); K(f"v_lshl_add_u32 v{A_XD+1}, v{t2}, 4, v{t3}")
    K(f"v_add_u32 v{A_XD+1}, {8*896-1024}, v{A_XD+1}")
    K(f"v_add_u32 v{A_XD+2}, {16*896-2048}, v{A_XD}"); K(f"v_add_u32 v{A_XD+3}, {16*896-2048}, v{A_XD+1}")
    K(f"v_lshrrev_b32 v{t0}, 4, v{V_LANE}"); K(f"v_and_b32 v{t1}, 15, v{V_LANE}"); K(f"v_lshlrev_b32 v{t2}, 2, v{t0}"); K(f"v_xor_b32 v{t2}, v{t1}, v{t2}")
    K(f"s_lshl_b32 s{T+2}, s{S_A}, 4"); K(f"v_add_u32 v{t3}, s{T+2}, v{t0}"); K(f"v_mul_u32_u24 v{t3}, 3584, v{t3}")
    K(f"v_lshl_add_u32 v{A_WD}, v{t2}, 4, v{t3}")
    for q in range(1, 4): K(f"v_add_u32 v{A_WD+q}, {q*(4*3584-1024)}, v{A_WD}")
    K("s_waitcnt lgkmcnt(0)")
    if stamps: K(f"v_writelane_b32 v{V_STAMP}, s{S_ST}, {STAMP_IDS.setdefault('start', len(STAMP_IDS))}")
    mksrd(R_X, P_X, 2048*896); mksrd(R_W1, P_W1, 0 if x_now1 else 448*3584)
    tk_stage = {}
    def g_stage(t):
        u = U[t % 4]
        def step(q):
            def f():
                if q == 0: K(f"s_lshr_b32 s{TD}, s{S_CHO+t}, 5"); K(f"s_add_u32 s{TD}, s{TD}, s{S_XB}"); K(f"s_add_u32 m0, s{S_M0}, {u}")
                if q == 4: K(f"s_mul_i32 s{TD}, s{S_CHO+t}, 56"); K(f"s_add_u32 s{TD}, s{TD}, s{S_W1B}"); K(f"s_add_u32 m0, s{S_M0}, {u + 16384}")
                if q < 4: K(f"buffer_load_dwordx4 v{A_XD+q}, {srd(R_X)}, s{TD} offen offset:{1024*q} lds")
                else: x = K(f"buffer_load_dwordx4 v{A_WD+q-4}, {srd(R_W1)}, s{TD} offen offset:{1024*(q-4)} lds")
                if q == 7: tk_stage[t] = x
            return f
        return [step(q) for q in range(8)]
    ilist = []
    for t in range(7): ilist += [(f, t - 2 if t >= 4 else -1) for f in g_stage(t)]
    pos = [0]
    def issue_to(n, lastbar):
        while pos[0] < min(n, len(ilist)) and ilist[pos[0]][1] <= lastbar:
            ilist[pos[0]][0](); pos[0] += 1
    if fine: stamp("A_karg")
    K(f"s_cmp_ge_u32 s{S_J}, 14")
    K.branch("s_cbranch_scc1 L_a1")
    vm0 = K.vm
    issue_to(8, -1)
    issue_to(8 + LA0, -1)
    K.label("L_a1")
    if fine: stamp("A_i1")
    K(f"s_load_dword s{S_E}, {sp(P_WS)}, {WS_EPOCH}")
    for t in range(2, 7): rotstep(t)
    mksrd(R_WS, P_WS, WS_SIZE); mksrd(R_OUT, P_OUT, 2048*896)
    p2setup()
    K(f"s_mov_b32 s{S_UP}, 0"); K(f"s_mov_b32 s{S_UP+1}, -1")
    K(f"s_mov_b32 s{S_L28}, 0x10000000"); K(f"s_mov_b32 s{S_L28+1}, 0x10000000")
    xfrag_addr(A_AX)
    lanepart()
    K(f"v_lshl_add_u32 v{t0}, v{t2}, 3, v{t3}"); K(f"v_lshl_add_u32 v{A_TR}, v{t0}, 6, v{t4}")
    K(f"v_lshl_add_u32 v{t0}, v{t2}, 2, v{t3}"); K(f"v_mul_u32_u24 v{t1}, 56, v{t0}"); K(f"v_add_u32 v{t1}, v{t1}, v{t4}"); K(f"v_add_u32 v{A_PH}, {L_PHI}, v{t1}")
    K(f"v_lshlrev_b32 v{A_L4}, 2, v{V_LANE}")
    K(f"s_lshl_b32 s{T}, s{S_A}, 10"); K(f"s_add_u32 s{T}, s{T}, {WS_RPF}"); K(f"v_and_b32 v{A_PA}, 7, v{V_LANE}"); K(f"v_lshl_add_u32 v{A_PA}, v{A_PA}, 7, s{T}")
    K(f"s_mul_i32 s{S_RS}, s{S_J}, {3*28672}"); K(f"s_mul_i32 s{S_P3}, s{S_A}, 7168"); K(f"s_add_u32 s{S_RS}, s{S_RS}, s{S_P3}"); K(f"s_add_u32 s{S_RS}, s{S_RS}, {WS_WQ}")
    K("s_waitcnt lgkmcnt(0)")
    settag()
    K(f"s_cmp_lt_u32 s{S_J}, 14")
    K.branch("s_cbranch_scc1 L_a2")
    sv = K.vm
    K(f"s_mul_i32 s{T}, s{S_A}, 3072"); K(f"s_add_u32 s{T}, s{T}, {L_K}")
    K("s_barrier")
    for t in range(7):
        K(f"s_lshr_b32 s{TD}, s{S_CHO+t}, 5"); K(f"s_add_u32 s{TD}, s{TD}, s{S_XB}")
        if t < 6: K(f"s_add_u32 m0, s{S_M0}, {16384*t}")
        else: K(f"s_add_u32 m0, s{S_M0}, s{T}")
        for q in range(4): K(f"buffer_load_dwordx4 v{A_XD+q}, {srd(R_X)}, s{TD} offen offset:{1024*q} lds")
        if t == rb2: K("s_barrier")
    K("s_waitcnt vmcnt(0)")
    for t in range(7):
        if t == 4: shift(range(A_AX, A_AX + 4), 65536)
        if t == 6:
            K(f"s_sub_u32 s{T}, s{T}, 65536")
            for k in range(4): K(f"v_add_u32 v{A_AX+k}, s{T}, v{A_AX+k}")
        for ksl in range(4): K(f"ds_read_b128 {vr(V_X + 16*t + 4*ksl, 4)}, v{A_AX+ksl} offset:{(t % 4) * 16384 if t < 6 else 0}")
        if t % 2 == 1: K("s_waitcnt lgkmcnt(4)")
    K("s_waitcnt lgkmcnt(0)")
    stamp("A_b6")
    vpoll_issue(A_PA)
    K.branch("s_branch L_a3")
    K.label("L_a2")
    K.vm = sv
    if fine: stamp("A_setup")
    tkx = {}
    def g_panel(p, lds):
        def step(q):
            def f():
                if q % 4 == 0: K(f"s_add_u32 s{TD}, s{S_RS}, {28672*p + (q // 4)*4096}"); K(f"s_add_u32 m0, s{S_P3}, {lds + (q // 4)*4096}")
                tkx[p] = K(f"buffer_load_dwordx4 v{V_L16}, {srd(R_WS)}, s{TD} offen offset:{1024*(q%4)} sc1 lds")
            return f
        return [step(q) for q in range(7)]
    for t in range(7):
        issue_to(8*(t+1) + (LA0 if t == 0 else LA), t - 1)
        shift(range(A_AX, A_AX + 4), SH[t])
        if t == 5:
            assert pos[0] == len(ilist)
            tkp = vpoll_issue(A_PA)
        if fine: stamp(f"A{t}a")
        K.wait_vm(tk_stage[t])
        if fine: stamp(f"A{t}b")
        if t < 6:
            if t >= 2: K("s_waitcnt lgkmcnt(4)")
            K("s_barrier")
        else: arrive(C_S)
        if t in (0, 4, 6): stamp(f"A_b{t}")
        for ksl in range(4): K(f"ds_read_b128 {vr(V_X + 16*t + 4*ksl, 4)}, v{A_AX+ksl} offset:{(t % 2) * 32768}")
    assert tkp == K.vm
    K.label("L_a3")
    arrive(C_E)
    vpoll_check(tkp, A_PA)
    stamp("rp_seen")
    run(g_panel(1, L_K) + g_panel(2, L_V))
    K(f"v_add_u32 v{A_PA}, 4096, v{A_PA}")
    tkp = vpoll_issue(A_PA)
    stamp("kv_issued")
    K(f"s_mov_b32 s{S_K}, {f2u(L2E):#x}"); K(f"s_mov_b32 s{S_K+1}, {f2u(L2E):#x}")
    VPH, VB = V_W + 24, V_W + 16
    for s in range(2):
        for r in range(2): K(f"ds_read_b64_tr_b16 {vr(VPH + 4*s + 2*r, 2)}, v{A_PH} offset:{(16*s + 8*r)*56}")
    K(f"s_lshl_b32 s{T}, s{S_A}, 11"); K(f"s_lshl_b32 s{T+1}, s{S_J}, 13"); K(f"s_add_u32 s{S_HB}, s{T+1}, s{T}"); K(f"s_add_u32 s{S_FL}, s{S_HB}, {WS_KVF}"); K(f"s_lshl_b32 s{S_PE}, s{S_MT}, 7"); K(f"s_add_u32 s{S_PE}, s{S_PE}, s{S_FL}"); K(f"s_add_u32 s{S_HB}, s{S_HB}, {WS_KVP}")
    FL_K = (S_PE, 0, 16)
    K(f"s_lshl_b32 s{T}, s{S_MT}, 2"); K(f"s_add_u32 s{T}, s{T}, s{S_A}")
    K(f"s_lshr_b32 s{T+1}, s{T}, 1"); K(f"s_lshl_b32 s{T+1}, s{T+1}, 2"); K(f"s_lshr_b32 s{T+2}, s{S_J}, 2"); K(f"s_add_u32 s{T+1}, s{T+1}, s{T+2}"); K(f"s_lshl_b32 s{T+1}, s{T+1}, 10"); K(f"s_add_u32 s{S_FL2}, s{T+1}, {WS_OF}")
    K(f"s_lshl_b32 s{T}, s{T}, 4"); K(f"s_add_u32 s{T}, s{T}, s{S_J}")
    K(f"s_lshl_b32 s{S_OB}, s{T}, 11"); K(f"s_add_u32 s{S_OB}, s{S_OB}, {WS_O}")
    K(f"s_lshl_b32 s{T+2}, s{T}, 7"); K(f"s_add_u32 s{S_XB}, s{T+2}, {WS_G - 128}")
    IDR = [26, 27, 28, 29, V_PHI, V_PHI+1, V_PHI+2, V_PHI+3]
    K(f"v_and_b32 v{t0}, 31, v{V_LANE}"); K(f"v_lshrrev_b32 v{t1}, 5, v{V_LANE}"); K(f"v_lshlrev_b32 v{t1}, 2, v{t1}")
    K(f"v_sub_u32 v{t0}, v{t0}, v{t1}")
    K(f"v_and_b32 v{t1}, 1, v{V_LANE}"); K(f"v_lshlrev_b32 v{t1}, 4, v{t1}"); K(f"v_mov_b32 v{t2}, 0x3f80"); K(f"v_lshlrev_b32 v{t1}, v{t1}, v{t2}")
    K(f"v_and_b32 v{t0}, -2, v{t0}")
    for s in range(2):
        for q in range(4): K(f"v_cmp_eq_u32 {sp(T+2*q)}, {16*s + 8*(q // 2) + 2*(q % 2)}, v{t0}")
        for q in range(4): K(f"v_cndmask_b32 v{IDR[4*s+q]}, 0, v{t1}, {sp(T+2*q)}")
    if aw2: K(f"s_cmp_eq_u32 s{S_ACT}, 1"); K(f"s_cselect_b32 s{R_W2+2}, s{R_W2+2}, 0")
    if aw2 in (1, 3):
        await_(C_E, 8, 1)
        run(g_w2(0))
        K.wait_vm(tkx[2]); arrive(C_0)
        run(g_w2(1))
        if qd < 0: run(g_panel(0, L_Q))
    else: K.wait_vm(tkx[2]); arrive(C_0)
    stamp("kv_landed0")
    if aw2 == 1: K.wait_vm(tk_r[1]); arrive(C_B)
    await_(C_0, 4, 1)
    K(f"v_cndmask_b32 v{VPH+6}, v{VPH+6}, 0, {UPM}"); K(f"v_cndmask_b32 v{VPH+7}, v{VPH+7}, 0, {UPM}")
    await_(C_G if gw >= 0 else C_E, 4 if gw >= 0 else 8, 1)
    vpoll_check(tkp, A_PA)
    stamp("kv_start")

    def gemm_qkv(panels, hook=None):
        nb = len(panels) * 4
        D = 3 if len(panels) == 2 else 6
        tk = {}
        for n, (off, acc, sw) in enumerate(panels): K(f"v_add_u32 v{A_AX+n}, {off}, v{A_TR}")
        def rd(ks, n):
            t, ksl = ks // 4, ks % 4
            b = V_W + nb * (ks % D)
            if ksl == 0: K(f"v_add_u32 v{A_AD + n}, s{S_CHO+t}, v{A_AX+n}")
            for r in range(2):
                tk[ks] = K(f"ds_read_b64_tr_b16 {vr(b + 4*n + 2*r, 2)}, v{A_AD + n} offset:{(16*ksl + 4*r)*64}")
        for k in range(D):
            for n in range(len(panels)): rd(k, n)
        for ks in range(28):
            K.wait_lg(tk[ks])
            b = V_W + nb * (ks % D)
            for n, (off, acc, sw) in enumerate(panels):
                wv, xv = b + 4*n, V_X + 4*ks
                if sw: mfma(acc, xv, wv, "0" if ks == 0 else None)
                else: mfma(acc, wv, xv, "0" if ks == 0 else None)
                if ks + D < 28: rd(ks + D, n)
            if hook: hook(ks)
    QP = V_W
    P = V_ACC
    def featmap():
        for e in range(8): K(f"v_cvt_pk_bf16_f32 v{QP+e}, v{V_ACC+2*e}, v{V_ACC+2*e+1}")
        mfma(P, VPH, QP, "0"); mfma(P, VPH + 4, QP + 4)
    def softmax(pk):
        for e in range(4): K(f"v_cndmask_b32 v{P+12+e}, v{P+12+e}, v{P}, {UPM}")
        mx, mn = t0, t2
        K(f"v_max3_f32 v{mx}, v{P}, v{P+1}, v{P+2}"); K(f"v_min3_f32 v{mn}, v{P}, v{P+1}, v{P+2}")
        K(f"v_max3_f32 v{t1}, v{P+3}, v{P+4}, v{P+5}"); K(f"v_min3_f32 v{t3}, v{P+3}, v{P+4}, v{P+5}")
        for e in range(6, 14, 4):
            K(f"v_max3_f32 v{mx}, v{mx}, v{P+e}, v{P+e+1}"); K(f"v_min3_f32 v{mn}, v{mn}, v{P+e}, v{P+e+1}")
            K(f"v_max3_f32 v{t1}, v{t1}, v{P+e+2}, v{P+e+3}"); K(f"v_min3_f32 v{t3}, v{t3}, v{P+e+2}, v{P+e+3}")
        K(f"v_max3_f32 v{mx}, v{mx}, v{P+14}, v{P+15}"); K(f"v_min3_f32 v{mn}, v{mn}, v{P+14}, v{P+15}")
        K(f"v_max_f32 v{mx}, v{mx}, v{t1}"); K(f"v_min_f32 v{mn}, v{mn}, v{t3}")
        K(f"v_mov_b32 v{t1}, v{mx}"); K(f"v_mov_b32 v{t3}, v{mn}")
        K(f"v_permlane32_swap_b32 v{mx}, v{t1}"); K(f"v_permlane32_swap_b32 v{mn}, v{t3}")
        K(f"v_max_f32 v{mx}, v{mx}, v{t1}"); K(f"v_min_f32 v{mn}, v{mn}, v{t3}")
        K(f"v_mul_f32 v{mx}, s{S_K}, v{mx}"); K(f"v_mul_f32 v{mn}, s{S_K}, v{mn}")
        EP, EN = V_P, V_P + 16
        for e in range(0, 16, 2):
            if pk:
                K(f"v_pk_fma_f32 {vr(EP+e,2)}, {vr(P+e,2)}, {sp(S_K)}, {vr(mx,2)} op_sel_hi:[1,1,0] neg_lo:[0,0,1] neg_hi:[0,0,1]")
                K(f"v_pk_fma_f32 {vr(EN+e,2)}, {vr(P+e,2)}, {sp(S_K)}, {vr(mn,2)} op_sel_hi:[1,1,0] neg_lo:[1,0,0] neg_hi:[1,0,0]")
            else:
                for x in (e, e + 1):
                    K(f"v_fma_f32 v{EP+x}, v{P+x}, s{S_K}, -v{mx}"); K(f"v_fma_f32 v{EN+x}, -v{P+x}, s{S_K}, v{mn}")
        for e in range(16):
            K(f"v_exp_f32 v{EP+e}, v{EP+e}"); K(f"v_exp_f32 v{EN+e}, v{EN+e}")
        S = V_W
        for n, E in enumerate((EP, EN)):
            padd(S+4*n, E, E+2, pk); padd(S+4*n+2, E+12, E+14, pk)
        for n, E in enumerate((EP, EN)):
            padd(S+4*n, S+4*n, E+4, pk)
            K(f"v_cndmask_b32 v{S+4*n+2}, v{S+4*n+2}, 0, {UPM}"); K(f"v_cndmask_b32 v{S+4*n+3}, v{S+4*n+3}, 0, {UPM}")
        for n, E in enumerate((EP, EN)):
            padd(S+4*n, S+4*n, E+6, pk); padd(S+4*n+2, S+4*n+2, E+8, pk)
        for n, E in enumerate((EP, EN)): padd(S+4*n, S+4*n, E+10, pk)
        for n in range(2): padd(S+4*n, S+4*n, S+4*n+2, pk)
        K(f"v_add_f32 v{t0}, v{S}, v{S+1}"); K(f"v_add_f32 v{t2}, v{S+4}, v{S+5}")
        K(f"v_mov_b32 v{t1}, v{t0}"); K(f"v_mov_b32 v{t3}, v{t2}")
        K(f"v_permlane32_swap_b32 v{t0}, v{t1}"); K(f"v_permlane32_swap_b32 v{t2}, v{t3}")
        K(f"v_add_f32 v{t0}, v{t0}, v{t1}"); K(f"v_add_f32 v{t2}, v{t2}, v{t3}")
        K(f"v_rcp_f32 v{t0}, v{t0}"); K(f"v_rcp_f32 v{t2}, v{t2}")
        K(f"v_cndmask_b32 v{t1}, v{t0}, 0, {UPM}"); K(f"v_cndmask_b32 v{t3}, v{t2}, 0, {UPM}")
        for e in range(0, 16, 2):
            pscale(EP+e, t0 if e < 12 else t1, pk); pscale(EN+e, t2 if e < 12 else t3, pk)
        for e in range(8):
            K(f"v_cvt_pk_bf16_f32 v{V_PHI+e}, v{EP+2*e}, v{EP+2*e+1}"); K(f"v_cvt_pk_bf16_f32 v{V_PHI+8+e}, v{EN+2*e}, v{EN+2*e+1}")

    if aw2 == 2: pend.extend(g_w2(0) + g_w2(1))
    if qd >= 0: pend.extend(g_panel(0, L_Q))
    def hook(ks):
        if aw2 == 3:
            if ks == 1: K.wait_vm(tk_r[1]); arrive(C_B)
            if ks == pa:
                await_(C_P, 4)
                pend.extend(g_w2(2) + g_w2(3))
            drip(2 if len(pend) > 27 - ks else 1)
        elif aw2 == 2:
            drip(1)
            if ks == cb: K.wait_vm(tk_r[1]); arrive(C_B)
        elif ks >= qd and (ks - qd) % 3 == 0: drip(1)
        if ks == 25: arrive(C_1)
    gemm_qkv([(L_K, V_ACC, False), (L_V, V_ACC + 16, True)], hook)
    featmap()
    assert not pend
    for e in range(4): K(f"v_mov_b32 v{V_W+8+e}, v{V_PHI+e}")
    IDR[4] = V_W + 8
    stamp("kv_gemm")
    K(f"v_mov_b32 v{t4}, 0x3f803f80")
    for e in range(8): K(f"v_cvt_pk_bf16_f32 v{VB+e}, v{V_ACC+16+2*e}, v{V_ACC+16+2*e+1}")
    for e in range(8): K(f"v_cndmask_b32 v{VB+e}, v{VB+e}, v{t4}, {sp(S_L28)}")
    softmax(pkk)
    stamp("sm_k")
    if aw2 == 3: K.wait_vm(tk_r[3]); arrive(C_B2)
    TP, TN = V_P, V_P + 16
    mfma(TP, V_PHI, IDR[0], "0"); mfma(TP, V_PHI + 4, IDR[4])
    mfma(TN, V_PHI + 8, IDR[0], "0"); mfma(TN, V_PHI + 12, IDR[4])
    await_(C_1, 4)
    if f2: stamp("kv_a")
    K(f"s_lshl_b32 s{T}, s{S_A}, 13"); K(f"s_add_u32 s{T}, s{T}, {L_KVS}"); K(f"v_add_u32 v{t0}, s{T}, v{V_L16}")
    K(f"s_lshl_b32 s{T}, s{S_A}, 11"); K(f"s_add_u32 s{T}, s{T}, {L_KVS}"); K(f"v_add_u32 v{t1}, s{T}, v{V_L16}")
    for e in range(8): K(f"v_cvt_pk_bf16_f32 v{V_PHI+e}, v{TP+2*e}, v{TP+2*e+1}")
    mfma(V_ACC, V_PHI, VB, "0"); mfma(V_ACC, V_PHI + 4, VB + 4)
    for e in range(8): K(f"v_cvt_pk_bf16_f32 v{V_PHI+8+e}, v{TN+2*e}, v{TN+2*e+1}")
    mfma(V_ACC + 16, V_PHI + 8, VB, "0"); mfma(V_ACC + 16, V_PHI + 12, VB + 4)
    for b in range(8): K(f"ds_write_b128 v{t0}, {vr(V_ACC+4*b,4)} offset:{1024*b}")
    K.wait_vm(tkx[0])
    arrive(C_2)
    if f2: stamp("kv_b")
    await_(C_2, 4)
    if f2: stamp("kv_c")
    for hb in range(2):
        for g in range(4): K(f"ds_read_b128 {vr(V_P+16*hb+4*g,4)}, v{t1} offset:{8192*g + 1024*hb}")
    arrive(C_3)
    if f2: stamp("kv_d")
    for hb in range(2):
        K(f"s_waitcnt lgkmcnt({5 - 4*hb})")
        B = V_P + 16*hb
        for e in (0, 2): padd(B+e, B+e, B+4+e, pkq); padd(B+8+e, B+8+e, B+12+e, pkq)
        for e in (0, 2): padd(B+e, B+e, B+8+e, pkq)
        for e in range(x_at): K(f"buffer_atomic_add_f32 v{B+e}, v{A_L4}, {srd(R_WS)}, s{S_HB} offen offset:{1024*hb + 256*e}")
    stamp("kv_st")
    def hook(ks):
        if ks == 22: arrive(C_Q)
        if ks == kvf:
            K("s_waitcnt vmcnt(0)")
            signal(S_FL, 16)
            stamp("kv_pub")
    gemm_qkv([(L_Q, V_ACC, False)], hook)
    K(f"v_cvt_pk_bf16_f32 v{t0}, v{V_ACC+12}, v{V_ACC+12}")
    featmap()
    K(f"v_lshlrev_b32 v{t0}, 16, v{t0}")
    K(f"v_mul_f32 v{t0}, s{S_K}, v{t0}"); K(f"v_exp_f32 v{t0}, -v{t0}"); K(f"v_add_f32 v{t0}, 1.0, v{t0}"); K(f"v_rcp_f32 v{t0}, v{t0}")
    K(f"v_cvt_pk_bf16_f32 v{t0}, v{t0}, v{t0}"); K(f"v_lshlrev_b32 v{A_G}, 16, v{t0}")
    K("s_mov_b32 exec_lo, 0")
    K(f"buffer_store_dword v{A_G}, v{A_L4}, {srd(R_WS)}, s{S_XB} offen sc1")
    K("s_mov_b32 exec_lo, -1")
    stamp("q_gemm")
    softmax(pkq)
    stamp("sm_q")
    poll_issue(FL_K)
    poll_check(FL_K)
    stamp("kv_seen")
    for e in range(8): K(f"buffer_load_dword v{V_P+e}, v{A_L4}, {srd(R_WS)}, s{S_HB} offen offset:{256*e} sc1")
    F = V_W
    K(f"s_lshl_b32 s{T}, s{S_A}, 10"); K(f"v_add_u32 v{t1}, {L_KVF}, v{V_L16}"); K(f"v_add_u32 v{t0}, s{T}, v{t1}")
    K("s_waitcnt vmcnt(0)")
    stamp("kv_landed")
    for e in range(4): K(f"v_cvt_pk_bf16_f32 v{F+e}, v{V_P+2*e}, v{V_P+2*e+1}")
    K(f"ds_write_b128 v{t0}, {vr(F,4)}")
    arrive(C_4)
    await_(C_4, 4)
    if f2: stamp("o_a")
    for f in range(4): K(f"ds_read_b128 {vr(F+4*f,4)}, v{t1} offset:{1024*f}")
    N = V_ACC
    for f in range(4):
        K(f"s_waitcnt lgkmcnt({3-f})")
        mfma(N, F + 4*f, V_PHI + 4*f, "0" if f == 0 else None)
    K(f"v_cvt_pk_bf16_f32 v{t0}, v{N+12}, v{N+12}")
    for e in range(8): K(f"v_cvt_pk_bf16_f32 v{F+e}, v{N+2*e}, v{N+2*e+1}")
    K(f"v_lshlrev_b32 v{t0}, 16, v{t0}")
    K(f"v_add_f32 v{t0}, {f2u(1e-6):#x}, v{t0}")
    K(f"v_cvt_pk_bf16_f32 v{t0}, v{t0}, v{t0}"); K(f"v_lshlrev_b32 v{t0}, 16, v{t0}")
    K(f"v_rcp_f32 v{t0}, v{t0}")
    for e in range(4):
        K(f"v_lshlrev_b32 v{N+2*e}, 16, v{F+e}"); K(f"v_and_b32 v{N+2*e+1}, 0xffff0000, v{F+e}")
    K(f"v_mul_f32 v{t0}, v{t0}, v{A_G}"); K(f"v_mov_b32 v{t1}, v{t0}")
    for e in range(4, 8):
        K(f"v_lshlrev_b32 v{N+2*e}, 16, v{F+e}"); K(f"v_and_b32 v{N+2*e+1}, 0xffff0000, v{F+e}")
    K(f"v_permlane32_swap_b32 v{t1}, v{t0}")
    for e in range(0, 16, 2): pscale(N+e, t0, pkq)
    for e in range(8): K(f"v_cvt_pk_bf16_f32 v{F+e}, v{N+2*e}, v{N+2*e+1}")
    K(f"v_cndmask_b32 v{F+6}, v{F+6}, 0, {UPM}"); K(f"v_cndmask_b32 v{F+7}, v{F+7}, 0, {UPM}")
    K(f"buffer_store_dwordx4 {vr(F,4)}, v{V_L16}, {srd(R_WS)}, s{S_OB} offen sc1")
    K(f"buffer_store_dwordx4 {vr(F+4,4)}, v{V_L16}, {srd(R_WS)}, s{S_OB} offen offset:1024 sc1")
    if f2: stamp("o_b")
    K("s_waitcnt vmcnt(0)")
    signal(S_FL2, 7)
    stamp("o_pub")
    K(f"s_cmp_eq_u32 s{S_ACT}, 0")
    K.branch("s_cbranch_scc1 L_fin")
    K.branch("s_branch L_red")

    K.label("L_M")
    if prioM: K(f"s_setprio {prioM}")
    K("s_waitcnt lgkmcnt(0)")
    if stamps: K(f"v_writelane_b32 v{V_STAMP}, s{S_ST}, {STAMP_IDS.setdefault('start', len(STAMP_IDS))}")
    K(f"s_load_dword s{S_E}, {sp(P_WS)}, {WS_EPOCH}")
    mksrd(R_T, P_PHI, 16*1568)
    K(f"s_mul_i32 s{T}, s{S_J}, 1568"); K(f"s_mul_i32 s{T+1}, s{S_A}, 400"); K(f"s_add_u32 s{T}, s{T}, s{T+1}"); K(f"s_add_u32 m0, s{T+1}, {L_PHI}")
    K("s_mov_b64 exec, 0x1ffffff")
    K(f"buffer_load_dwordx4 v{V_L16}, {srd(R_T)}, s{T} offen lds")
    K("s_mov_b64 exec, -1")
    K(f"v_mov_b32 v{V_CNT}, {L_CNT}")
    K(f"v_mov_b32 v{t0}, 0"); K(f"v_lshl_add_u32 v{t1}, v{V_LANE}, 2, v{V_CNT}"); K(f"ds_write_b32 v{t1}, v{t0}")
    K(f"s_cmp_lt_u32 s{S_J}, 14")
    K.branch("s_cbranch_scc1 L_mset")
    vm_m = K.vm
    RB = 96
    K0 = S_XB
    mksrd(R_T, P_WQKV, 448*2688)
    K(f"s_lshl_b32 s{S_FL}, s{S_MT}, 1"); K(f"s_add_u32 s{S_FL}, s{S_FL}, s{S_J}"); K(f"s_sub_u32 s{S_FL}, s{S_FL}, 14")
    K(f"s_mul_i32 s{K0}, s{S_FL}, 14"); K(f"s_lshl_b32 s{T+5}, s{S_A}, 1"); K(f"s_add_u32 s{K0}, s{K0}, s{T+5}")
    K(f"v_lshrrev_b32 v{t0}, 3, v{V_LANE}"); K(f"v_bfe_u32 v{t1}, v{V_LANE}, 2, 1"); K(f"v_and_b32 v{t2}, 3, v{V_LANE}")
    K(f"v_mul_u32_u24 v{t3}, 56, v{t0}"); K(f"v_mul_u32_u24 v{t4}, 2688, v{t1}"); K(f"v_add_u32 v{t3}, v{t3}, v{t4}")
    K(f"v_lshl_add_u32 v{t3}, v{t2}, 4, v{t3}")
    K(f"s_mul_i32 s{T+5}, s{K0}, 2688"); K(f"v_lshlrev_b32 v{t4}, 1, v{t1}"); K(f"s_lshl_b32 s{T+6}, s{K0}, 1")
    tkl = {}
    if fine: stamp("rp_0")
    K(f"s_add_u32 s{T+7}, s{T+5}, {8*2688}"); K(f"s_cmp_eq_u32 s{S_A}, 3"); K(f"s_cselect_b32 s{T+7}, 0x7000000, s{T+7}"); K(f"s_cselect_b32 s{S_CH}, s{T+7}, 512")
    def rp_load(q): tkl[q] = K(f"buffer_load_dwordx4 {vr(RB+4*q,4)}, v{t3}, {srd(R_T)}, s{T+5 if q < 6 else T+7} offen offset:{448*(q%6)}")
    for q in (2, 3, 4, 5, 8, 9, 10, 11): rp_load(q)
    mksrd(R_X, P_GATE, 896)
    K(f"buffer_load_ushort v{RB+48}, v{t4}, {srd(R_X)}, s{T+6} offen"); K(f"buffer_load_ushort v{RB+49}, v{t4}, {srd(R_X)}, s{T+6} offen offset:16")
    for q in (0, 1, 6, 7): rp_load(q)
    mksrd(R_WS, P_WS, WS_SIZE)
    K(f"s_mov_b32 s{T+6}, 86016"); K(f"v_mul_lo_u32 v{RB+50}, v{t0}, s{T+6}"); K(f"v_and_b32 v{t1}, 7, v{V_LANE}")
    K(f"v_lshl_add_u32 v{RB+50}, v{t1}, 4, v{RB+50}")
    K(f"v_cmp_eq_u32 vcc, 3, v{t2}")
    K(f"s_lshl_b32 s{K0}, s{K0}, 6"); K(f"s_add_u32 s{K0}, s{K0}, {WS_WQ}")
    def rp_store(q):
        n, p, hg = q // 6, (q % 6) // 2, q % 2; b = RB + 4*q
        K.wait_vm(tkl[q])
        K(f"v_cndmask_b32 v{b+2}, v{b+2}, v{RB+48+n}, vcc" if p == 0 else f"v_cndmask_b32 v{b+2}, v{b+2}, 0, vcc")
        K(f"v_cndmask_b32 v{b+3}, v{b+3}, 0, vcc")
        K(f"s_add_u32 s{T+6}, s{K0}, {p*28672 + hg*8*86016}")
        if n: K(f"s_add_u32 s{T+6}, s{T+6}, s{S_CH}")
        return K(f"buffer_store_dwordx4 {vr(b,4)}, v{RB+50}, {srd(R_WS)}, s{T+6} offen sc1")
    for e in range(4): K(f"v_mov_b32 v{RB+52+e}, 0")
    K(f"s_lshl_b32 s{T+5}, s{S_FL}, 2"); K(f"s_add_u32 s{T+5}, s{T+5}, s{S_A}"); K(f"s_lshl_b32 s{T+7}, s{T+5}, 12"); K(f"s_lshl_b32 s{T+5}, s{T+5}, 10")
    K(f"s_add_u32 s{T+5}, s{T+5}, {WS_KVP}"); K(f"s_add_u32 s{T+7}, s{T+7}, {WS_CN}"); K(f"v_lshlrev_b32 v{t0}, 7, v{V_LANE}")
    K(f"buffer_store_dwordx4 {vr(RB+52,4)}, v{V_L16}, {srd(R_WS)}, s{T+5} offen sc1")
    K("s_mov_b32 exec_hi, 0")
    K(f"buffer_store_dword v{RB+52}, v{t0}, {srd(R_WS)}, s{T+7} offen sc1")
    K("s_mov_b32 exec_hi, -1")
    K(f"s_lshl_b32 s{S_FL}, s{S_FL}, 7"); K(f"s_add_u32 s{S_FL}, s{S_FL}, {WS_RPF}"); K(f"s_add_u32 s{S_FL2}, s{S_FL}, 4096")
    K(f"s_cmp_eq_u32 s{S_A}, 3"); K(f"s_cselect_b32 s{S_FL}, s{S_FL}, 0x7000000"); K(f"s_cselect_b32 s{S_FL2}, s{S_FL2}, 0x7000000")
    K("s_waitcnt lgkmcnt(0)")
    settag()
    for q in (2, 3, 4, 5, 8, 9, 10, 11): tk1 = rp_store(q)
    for q in (0, 1, 6, 7): rp_store(q)
    if fine: stamp("rp_st")
    K("s_barrier")
    K.wait_vm(tk1)
    K("s_barrier")
    flag(S_FL)
    stamp("rp_pub")
    K("s_waitcnt vmcnt(1)")
    arrive(C_5); await_(C_5, 4)
    flag(S_FL2)
    arrive(C_E); arrive(C_G)
    K("s_setprio 0")
    K.vm = vm_m
    K.label("L_mset")
    if spf:
        K(f"s_lshl_b32 s{T+3}, s2, 2"); K(f"s_add_u32 s{T+3}, s{T+3}, s{S_A}")
        K(f"s_mul_i32 s{T}, s{T+3}, {12*128 + 32}"); K(f"s_mul_i32 s{T+1}, s{T+3}, {3*128 + 8}")
        for q in range(13): K(f"s_load_dword s{S_CNT}, {sp(P_W2)}, s{T} offset:{min(128*q, 12*128 + 28)}")
        K("s_waitcnt lgkmcnt(10)")
        for q in range(4): K(f"s_load_dword s{S_CNT}, {sp(P_WO)}, s{T+1} offset:{min(128*q, 3*128 + 4)}")
    mksrd(R_WS, P_WS, WS_SIZE); mksrd(R_WO, P_WO, 448*896); mksrd(R_OUT, P_OUT, 2048*896)
    p2setup()
    K(f"s_mul_i32 s{T}, s{S_ROW}, {112*1024}"); K(f"s_add_u32 s{T}, s{T}, {0x7000000 if x_noh else WS_H}")
    K(f"s_lshl_b32 s{S_HB}, s{T+4}, 12"); K(f"s_add_u32 s{S_HB}, s{S_HB}, s{T}")
    K(f"s_lshl_b32 s{S_HB3}, s{T+2}, 12"); K(f"s_add_u32 s{S_HB3}, s{S_HB3}, s{T}")
    BF1, BF2, BONE = M_AR + 80, 128, 124
    for r in list(range(BF1, BF1 + 16)) + list(range(BONE, BF2 + 8)): K(f"v_mov_b32 v{r}, 0")
    K(f"v_lshlrev_b32 v{t0}, 1, v{V_LANE}")
    K("s_mov_b32 exec_hi, 0")
    K(f"v_mov_b32 v{BONE}, 0x3f80")
    mksrd(R_T, P_B1, 3584)
    for p in range(4): K(f"buffer_load_ushort v{BF1+4*p}, v{t0}, {srd(R_T)}, s{S_W1B} offen offset:{64*p}")
    mksrd(R_T, P_B2, 896)
    K(f"s_lshl_b32 s{T}, s{S_CT}, 7"); K(f"s_lshl_b32 s{T+1}, s{S_A}, 10"); K(f"s_add_u32 s{T}, s{T}, s{T+1}")
    for p in range(2): tk_b2 = K(f"buffer_load_ushort v{BF2+4*p}, v{t0}, {srd(R_T)}, s{T} offen offset:{64*p}")
    K("s_mov_b32 exec_hi, -1")
    K(f"s_lshl_b32 s{T}, s{S_ROW}, 1"); K(f"s_add_u32 s{T}, s{T}, s{S_A}")
    K(f"s_lshl_b32 s{T+1}, s{S_CT}, 7")
    K(f"s_lshl_b32 s{S_PE}, s{T}, 11"); K(f"s_add_u32 s{S_PE}, s{S_PE}, s{T+1}"); K(f"s_add_u32 s{S_PE}, s{S_PE}, {WS_HF}")
    K(f"s_lshl_b32 s{S_PO}, s{T}, 10"); K(f"s_add_u32 s{S_PO}, s{S_PO}, s{T+1}"); K(f"s_add_u32 s{S_PO}, s{S_PO}, {WS_OF}")
    K(f"s_lshl_b32 s{T}, s{S_ROW}, 4"); K(f"s_lshl_b32 s{T+1}, s{S_A}, 2"); K(f"s_add_u32 s{S_OB}, s{T+1}, s{T}")
    FL_E, FL_L, FL_O = (S_PE, 0, 6), (S_PE, 1024, 8), (S_PO, 0, 8)
    K(f"s_lshl_b32 s{T}, s{S_MT}, 2"); K(f"s_add_u32 s{T}, s{T}, s{S_A}"); K(f"s_mul_i32 s{S_RS}, s{T}, 112")
    K(f"s_lshl_b32 s{T+1}, s{S_J}, 3"); K(f"s_add_u32 s{S_RS}, s{S_RS}, s{T+1}"); K(f"s_lshl_b32 s{S_RS}, s{S_RS}, 10"); K(f"s_add_u32 s{S_RS}, s{S_RS}, {WS_H}")
    K(f"s_lshr_b32 s{T}, s{T}, 1"); K(f"s_lshl_b32 s{T}, s{T}, 13"); K(f"s_add_u32 s{T}, s{T}, {WS_HF}")
    K(f"s_mul_i32 s{T+1}, s{S_J}, {74*8}"); K(f"s_and_b32 s{S_FL}, s{T+1}, 0xf800"); K(f"s_add_u32 s{S_FL}, s{S_FL}, s{T}")
    K(f"s_add_u32 s{T+1}, s{T+1}, {37*8}"); K(f"s_and_b32 s{S_FL2}, s{T+1}, 0xf800"); K(f"s_add_u32 s{S_FL2}, s{S_FL2}, s{T}"); K(f"s_add_u32 s{S_FL2}, s{S_FL2}, 1024")
    K(f"s_lshr_b32 s{T+1}, {(1 << 3) | (1 << 10)}, s{S_J}"); K(f"s_and_b32 s{T+1}, s{T+1}, 1"); K(f"s_lshl_b32 s{T+1}, s{T+1}, 10"); K(f"s_add_u32 s{S_FL}, s{S_FL}, s{T+1}")
    K(f"s_cmp_ge_u32 s{S_J}, 14"); K(f"s_cselect_b32 s{S_FL2}, 0x7000000, s{S_FL2}")
    K(f"v_add_u32 v{M_L16B}, {112*1024}, v{V_L16}")
    MP = M_AR + 40
    K(f"v_lshlrev_b32 v{MP}, 7, v{V_LANE}")
    K(f"s_lshl_b32 s{T+3}, s2, 2"); K(f"s_add_u32 s{T+3}, s{T+3}, s{S_A}")
    K(f"s_mul_i32 s{S_XB}, s{T+3}, {13*128}"); K(f"s_lshl_b32 s{S_M0}, s{T+3}, 9")
    def mall_pf():
        K("s_mov_b64 exec, 0x1fff")
        K(f"buffer_load_dword v{V_POLL}, v{MP}, {srd(R_W2)}, s{S_XB} offen")
        K("s_mov_b64 exec, 15")
        K(f"buffer_load_dword v{V_POLL}, v{MP}, {srd(R_WO)}, s{S_M0} offen")
        K("s_mov_b64 exec, -1")
    if mpf == 1: mall_pf()
    if tlb:
        l = newl("tlb")
        K(f"s_cmp_lg_u32 s{S_A}, 1")
        K.branch(f"s_cbranch_scc1 {l}")
        K(f"v_lshlrev_b32 v{t0}, {tlb}, v{V_LANE}")
        K(f"buffer_load_dword v{V_POLL}, v{t0}, {srd(R_WS)}, 0 offen offset:2048"); K.vm -= 1
        K(f"buffer_load_dword v{V_POLL}, v{t0}, {srd(R_OUT)}, 0 offen"); K.vm -= 1
        K.label(l)
    xfrag_addr(M_AX)
    lanepart()
    K(f"v_lshl_add_u32 v{t0}, v{t2}, 3, v{t3}"); K(f"v_lshl_add_u32 v{t0}, v{t0}, 8, v{t4}"); K(f"v_lshl_add_u32 v{t0}, v{t3}, 6, v{t0}")
    K(f"v_add_u32 v{M_AW}, 16384, v{t0}")
    for p in range(1, 4): K(f"v_xor_b32 v{M_AW+p}, {64*p}, v{M_AW}")
    AB = M_AB
    K(f"v_lshl_add_u32 v{t0}, v{t2}, 2, v{t3}"); K(f"v_lshl_add_u32 v{t0}, v{t0}, 7, v{t4}"); K(f"v_bfe_u32 v{t1}, v{V_LANE}, 3, 1"); K(f"v_lshl_add_u32 v{t0}, v{t1}, 6, v{t0}")
    K(f"v_add_u32 v{AB}, s{S_M02}, v{t0}"); K(f"v_xor_b32 v{AB+1}, 64, v{AB}")
    K(f"v_add_u32 v{AB+2}, 65536, v{AB}"); K(f"v_add_u32 v{AB+3}, 65536, v{AB+1}")
    K(f"v_lshlrev_b32 v{t0}, 9, v{t2}"); K(f"v_sub_u32 v22, v{AB+2}, v{t0}"); K(f"v_sub_u32 v23, v{AB+3}, v{t0}")
    box = {}
    K(f"s_cmp_ge_u32 s{S_J}, 14")
    K.branch("s_cbranch_scc1 L_nof")
    vm_nof = K.vm
    K("s_waitcnt lgkmcnt(0)")
    settag()
    if fine: stamp("M_rdy")
    WR, XR = M_BH, M_BH + 4*G
    tk = {}
    def rdg(g):
        ks, p = g // 4, g % 4
        t, ksl = ks // 4, ks % 4
        uo = (t % 2) * 32768
        if p == 0 and ksl == 0:
            shift(range(M_AX, M_AX + 8), SH[t])
            if t == 3: K.wait_vm(tk_b2)
            if t < 6: K("s_barrier")
            else:
                l = newl("s6")
                K.wait_lg(box['cs'])
                K(f"v_cmp_ne_u32 vcc, 4, v{t4}")
                K(f"s_cbranch_vccz {l}")
                lgs = K.lg
                await_(C_S, 4)
                K.lg = lgs
                K.raw(f"{l}:")
        if p == 0: K(f"ds_read_b128 {vr(XR + 4*(ks % 3), 4)}, v{M_AX+ksl} offset:{uo}")
        for r in range(2):
            tk[g] = K(f"ds_read_b64_tr_b16 {vr(WR + 4*(g % G) + 2*r, 2)}, v{M_AW+p} offset:{uo + (16*ksl + 4*r)*256}")
    for g in range(G): rdg(g)
    for g in range(112):
        K.wait_lg(tk[g])
        mfma(M_ACC + 16*(g % 4), WR + 4*(g % G), XR + 4*((g // 4) % 3), "0" if g < 4 else None)
        if 52 <= g < 56: mfma(M_ACC + 16*(g % 4), BF1 + 4*(g % 4), BONE)
        if g + G < 112: rdg(g + G)
        if g + G == 112: arrive(C_E)
        if g + G + 3 == 96: box['cs'] = K(f"ds_read_b32 v{t4}, v{V_CNT} offset:{C_S}")
        if mpf > 1 and g == mpf: mall_pf()
    stamp("ffn1")
    K(f"s_setprio {prioG}")
    tk = {}
    def rdb(ks, part=3):
        r, ksl = ks // 4, ks % 4
        b = M_BH + 8 * (ks % 8)
        u = RUNIT[r]
        if ksl == 0 and r >= (4 if aw2 == 3 else 2) and part & 1: K.wait_vm(tk_r[r])
        for pp in range(2):
            for h in range(2):
                if not part & (1 << pp): continue
                if r < 7:
                    tk[ks] = K(f"ds_read_b64_tr_b16 {vr(b + 4*pp + 2*h, 2)}, v{AB + pp + (2 if u >= 2 else 0)} offset:{(u%2)*32768 + (16*ksl + 8*h)*128}")
                else:
                    hh, sx = (ks % 4) // 2, ks % 2
                    tk[ks] = K(f"ds_read_b64_tr_b16 {vr(b + 4*pp + 2*h, 2)}, v{(22 if (sx == 1 and h == 1) else AB + 2) + pp} offset:{(u%2)*32768 + (28*hh + 16*sx + 8*h)*128}")
    def pull():
        await_(C_B, 4)
        for e in range(12): K(f"v_mov_b32 v{BF1+e}, v{BONE+e}")
        for ks in range(8):
            if ks >= 3: K.wait_lg(tk[ks - 3])
            rdb(ks)
        arrive(C_P)
    cc = -2.0 * 0.7978845608028654 * 1.4426950408889634
    K(f"v_mov_b32 v{t0}, {f2u(cc):#x}"); K(f"v_mov_b32 v{t1}, 1.0"); K(f"s_mov_b32 s{S_K}, {f2u(cc*0.044715):#x}"); K(f"s_mov_b32 s{S_K+1}, {f2u(cc*0.044715):#x}")
    tkh = {}
    for g in range(8):
        a = M_ACC + 8*g; tt = M_AR + 8*(g % 2); o = M_AR + 48 + 4*g
        if g < pkg:
            for e in range(0, 8, 2): K(f"v_pk_mul_f32 {vr(tt+e,2)}, {vr(a+e,2)}, {vr(a+e,2)}")
            for e in range(0, 8, 2): K(f"v_pk_fma_f32 {vr(tt+e,2)}, {vr(tt+e,2)}, {sp(S_K)}, {vr(t0,2)} op_sel_hi:[1,1,0]")
            for e in range(0, 8, 2): K(f"v_pk_mul_f32 {vr(tt+e,2)}, {vr(a+e,2)}, {vr(tt+e,2)}")
            for e in range(8): K(f"v_exp_f32 v{tt+e}, v{tt+e}")
            for e in range(0, 8, 2): K(f"v_pk_add_f32 {vr(tt+e,2)}, {vr(tt+e,2)}, {vr(t0,2)} op_sel:[0,1] op_sel_hi:[1,1]")
            for e in range(8): K(f"v_rcp_f32 v{tt+e}, v{tt+e}")
            for e in range(0, 8, 2): K(f"v_pk_mul_f32 {vr(tt+e,2)}, {vr(a+e,2)}, {vr(tt+e,2)}")
        else:
            for e in range(8): K(f"v_mul_f32 v{tt+e}, v{a+e}, v{a+e}")
            for e in range(8): K(f"v_fma_f32 v{tt+e}, v{tt+e}, s{S_K}, v{t0}")
            for e in range(8): K(f"v_mul_f32 v{tt+e}, v{a+e}, v{tt+e}")
            for e in range(8): K(f"v_exp_f32 v{tt+e}, v{tt+e}")
            for e in range(8): K(f"v_add_f32 v{tt+e}, 1.0, v{tt+e}")
            for e in range(8): K(f"v_rcp_f32 v{tt+e}, v{tt+e}")
            for e in range(8): K(f"v_mul_f32 v{tt+e}, v{a+e}, v{tt+e}")
        for e in range(4): K(f"v_cvt_pk_bf16_f32 v{o+e}, v{tt+2*e}, v{tt+2*e+1}")
        if g == gw: arrive(C_G)
        if aw2 == 3 and g == gp: pull()
        if (g + 1) % sb == 0:
            K("s_setprio 3")
            for x in range(g + 1 - sb, g + 1):
                if x == 4: K(f"s_add_u32 s{S_RS}, s{S_RS}, 4096")
                tkh[x] = K(f"buffer_store_dwordx4 {vr(M_AR + 48 + 4*x,4)}, v{V_L16}, {srd(R_WS)}, s{S_RS} offen offset:{1024*(x%4)} sc1")
            if g < 7: K(f"s_setprio {prioG}")
    stamp("gelu_v")
    await_(C_0, 4)
    K.wait_vm(tkh[3]); signal(S_FL, 7)
    stamp("gelu")
    K(f"s_cmp_eq_u32 s{S_ACT}, 1")
    K.branch("s_cbranch_scc1 L_p2")
    K("s_waitcnt vmcnt(0)")
    signal(S_FL2, 7)
    K.branch("s_branch L_fin")
    K.label("L_nof")
    K.vm = vm_nof
    if mpf == -2: await_(C_E, 8, 2)
    if mpf == -1: await_(C_0, 4, 2)
    if mpf < 0:
        K(f"s_lshl_b32 s{T+3}, s2, 2"); K(f"s_add_u32 s{T+3}, s{T+3}, s{S_A}")
        K(f"s_mul_i32 s{T}, s{T+3}, {98*128}"); K(f"s_mul_i32 s{T+1}, s{T+3}, {25*128}")
        K(f"buffer_load_dword v{V_POLL}, v{MP}, {srd(R_W2)}, s{T} offen")
        K(f"s_add_u32 s{T}, s{T}, {64*128}")
        K("s_mov_b32 exec_hi, 3")
        K(f"buffer_load_dword v{V_POLL}, v{MP}, {srd(R_W2)}, s{T} offen")
        K("s_mov_b64 exec, 0x1ffffff")
        K(f"buffer_load_dword v{V_POLL}, v{MP}, {srd(R_WO)}, s{T+1} offen")
        K("s_mov_b64 exec, -1")
    await_(C_0, 4, 2)
    K("s_waitcnt lgkmcnt(0)")
    settag()
    if mpf > 1: mall_pf()
    K("s_waitcnt vmcnt(0)")
    if aw2 == 3: pull()

    K.label("L_p2")
    tk_h = K.vm
    def g_wo(hf):
        def step(q):
            def f():
                if q == 0:
                    K(f"s_mul_i32 s{TD}, s{S_A}, {112*896}"); K(f"s_lshl_b32 s{TD+1}, s{S_CT}, 7"); K(f"s_add_u32 s{TD}, s{TD}, s{TD+1}")
                    if hf: K(f"s_add_u32 s{TD}, s{TD}, {56*896}")
                    K(f"s_add_u32 m0, s{S_M02}, {U[RUNIT[7+hf]]}")
                if q == 4: K(f"s_add_u32 s{TD}, s{TD}, {32*896}"); K(f"s_add_u32 m0, s{S_M02}, {U[RUNIT[7+hf]] + 4096}")
                x = K(f"buffer_load_dwordx4 v{V_D2+q%4}, {srd(R_WO)}, s{TD} offen offset:{1024*(q%4)} lds")
                if q == 6: tk_r[7+hf] = x
            return f
        return [step(q) for q in range(7)]
    tk_a = {}
    def lda(ks, part=3):
        b = M_AR + 8 * (ks % NA); r = ks // 4
        if part & 1:
            if ks % 4 == 0: K(f"s_add_u32 s{T+7}, s{S_HB3 if r == 3 else S_HB}, {0 if r == 3 else (2*r % 7)*4096}")
            K(f"buffer_load_dwordx4 {vr(b,4)}, v{V_L16}, {srd(R_WS)}, s{T+7} offen offset:{1024*(ks%4)} sc1")
        if part & 2: tk_a[ks] = K(f"buffer_load_dwordx4 {vr(b+4,4)}, v{M_L16B}, {srd(R_WS)}, s{T+7} offen offset:{1024*(ks%4)} sc1")
    for t2_ in range(2):
        for pp in range(2): mfma(M_ACC + 32*t2_ + 16*pp, (BF1 + 4 if aw2 == 3 else BF2) + 4*pp, BF1 if aw2 == 3 else BONE, "0")
    g0, g1, g2, g3 = g_w2(0), g_w2(1), g_w2(2), g_w2(3)
    if aw2 == 3:
        K.wait_vm(tk_h - 1)
        signal(S_FL2, 7)
        K(f"s_setprio 0")
        stamp("h_pub1")
        poll_issue(FL_E)
        poll_check(FL_E)
        stamp("hE_seen")
        for ks in range(pre): lda(ks)
        g3 = []
    elif aw2:
        K.wait_vm(tk_h - 1)
        signal(S_FL2, 7)
        K(f"s_setprio 0")
        stamp("h_pub1")
        if hfirst:
            poll_issue(FL_E)
            poll_check(FL_E)
            stamp("hE_seen")
            for ks in range(pre): lda(ks)
        await_(C_B, 4)
        stamp("B_seen")
        for ks in range(3): rdb(ks)
        K.wait_lg(tk[0]); rdb(3)
        K.wait_lg(tk[3])
        for q in range(8):
            g2[q]()
            if q < 4:
                if q == 3: K.wait_lg(tk[4])
                rdb(4 + q)
        K("s_waitcnt lgkmcnt(0)")
        if not hfirst:
            poll_issue(FL_E)
            run(g3); g3 = []
            poll_check(FL_E)
            stamp("hE_seen")
            for ks in range(pre): lda(ks)
    else:
        await_(C_E, 8)
        for q in range(8):
            g0[q]()
        K.wait_vm(tk_h - 1)
        signal(S_FL2, 7)
        K(f"s_setprio 0")
        stamp("h_pub1")
        poll_issue(FL_E)
        run(g1)
        poll_check(FL_E)
        stamp("hE_seen")
        for ks in range(4): lda(ks)
        K.wait_vm(tk_r[0])
        for ks in range(4):
            if ks == 3: K.wait_lg(tk[0])
            rdb(ks); lda(4 + ks)
        K.wait_vm(tk_r[1]); K.wait_lg(tk[3])
        for q in range(8):
            g2[q]()
            if q < 4:
                if q == 3: K.wait_lg(tk[4])
                rdb(4 + q)
        K("s_waitcnt lgkmcnt(0)")
    stamp("p2_prep")
    poll_issue(FL_L)
    for ks in range(pre if aw2 else 8, 12): pend.extend([lambda ks=ks: lda(ks, 1), lambda ks=ks: lda(ks, 2)])
    pend.extend(g3)
    def step(ks, side):
        K.wait_vm(tk_a[ks])
        if ks >= 8: K.wait_lg(tk[ks])
        a = M_AR + 8 * (ks % NA); b = M_BH + 8 * (ks % 8)
        n = 0
        for t2_ in range(2):
            for pp in range(2):
                if not (x_nomf and ks < 28): mfma(M_ACC + 32*t2_ + 16*pp, b + 4*pp, a + 4*t2_)
                side(n); n += 1
    nxt = [12]
    def hstep(ks):
        def side(n):
            if n < 2 and ks + 3 >= 8: rdb(ks + 3, 1 << n)
            drip(2 if len(pend) > 8 else 1)
        step(ks, side)
    def ldo(ks, part):
        b = M_AR + 8 * (ks % NA)
        if part == 0:
            K(f"buffer_load_dword v{t2}, v{t3}, {srd(R_WS)}, s{T+3} offen sc1")
            box['g'] = K(f"buffer_load_dword v{t3}, v{t3}, {srd(R_WS)}, s{T+3} offen offset:2048 sc1")
        if part == 1:
            if ks == 32: K(f"s_add_u32 s{T+4}, s{T+4}, 4096")
            K(f"buffer_load_dwordx4 {vr(b,4)}, v{V_L16}, {srd(R_WS)}, s{T+4} offen offset:{1024*(ks%4)} sc1")
        if part == 2: tk_a[ks] = K(f"buffer_load_dwordx4 {vr(b+4,4)}, v{M_L16B}, {srd(R_WS)}, s{T+4} offen offset:{1024*(ks%4)} sc1")
    olist = lambda: [lambda: ldo(0, 0)] + [lambda k=k, p=p: ldo(k, p) for k in range(28, 36) for p in (1, 2)]
    for ks in range(oc + 1):
        hstep(ks)
        if ks == c0:
            poll_check(FL_L)
            stamp("hL_seen")
        if ks == 4 and aw2 == 3: await_(C_B2, 4)
        if ks == c3:
            await_(C_3, 4)
            pend.extend(g_w2(4))
        while ks >= c0 and nxt[0] <= ks + NA and nxt[0] < 28:
            pend.extend([lambda k=nxt[0]: lda(k, 1), lambda k=nxt[0]: lda(k, 2)]); nxt[0] += 1
        if ks == 11: pend.extend(g_w2(5))
        if ks == 15: pend.extend(g_w2(6))
        if ks == cq:
            await_(C_Q, 4)
            pend.extend(g_wo(0))
        if ks == 19: pend.extend(g_wo(1))
        if ks in (3, 11, 19): stamp(f"p2_k{ks}")
        if ks == oc - 2: poll_issue(FL_O)
    assert not pend and oc >= 22
    K(f"v_and_b32 v{t3}, 31, v{V_LANE}"); K(f"v_lshlrev_b32 v{t3}, 2, v{t3}")
    K(f"s_lshl_b32 s{T+3}, s{S_OB}, 7"); K(f"s_add_u32 s{T+3}, s{T+3}, {WS_G}")
    K(f"s_lshl_b32 s{T+4}, s{S_OB}, 11"); K(f"s_add_u32 s{T+4}, s{T+4}, {WS_O}")
    K(f"v_add_u32 v{M_L16B}, 32768, v{V_L16}")
    K(f"v_add_u32 v{V_D2}, s{S_M02}, v{V_L16}")
    for q in range(1, 4): K(f"v_xor_b32 v{V_D2+q}, {64*q}, v{V_D2}")
    K("s_waitcnt lgkmcnt(0)")
    K(f"s_cmp_lg_u32 s{PD[0]}, {FL_O[2]}")
    K.branch("s_cbranch_scc1 L_olate")
    sv, sl = K.vm, K.lg
    stamp("o_early")
    pend.extend(olist())
    for ks in range(oc + 1, 28): hstep(ks)
    drip(99)
    ev, el = K.vm, K.lg
    K.branch("s_branch L_ojoin")
    K.label("L_olate")
    K.vm, K.lg = sv, sl
    for ks in range(oc + 1, 28): hstep(ks)
    poll_issue(FL_O)
    poll_check(FL_O)
    stamp("o_late")
    run(olist())
    assert (ev, el) == (K.vm, K.lg)
    K.label("L_ojoin")
    stamp("p2_h_done")
    tk_g = box['g']
    K.wait_vm(tk_g)
    if f2: stamp("t_g")
    K(f"v_sub_f32 v{t4}, 1.0, v{t2}"); K(f"v_sub_f32 v{t5}, 1.0, v{t3}")
    K(f"v_cvt_pk_bf16_f32 v{t4}, v{t4}, v{t5}"); K(f"v_and_b32 v{t5}, 0xffff0000, v{t4}"); K(f"v_lshlrev_b32 v{t4}, 16, v{t4}")
    for e in range(0, 64, 2): pscale(M_ACC+e, t4 if e < 32 else t5, True)
    for ks in range(28, 36):
        def side(n):
            if n < 2 and ks + 3 < 36: rdb(ks + 3, 1 << n)
        step(ks, side)
    if f2: stamp("t_mf")
    for t2_ in range(2):
        for b in range(8): K(f"ds_write_b128 v{V_D2 + b%4}, {vr(M_ACC+32*t2_+4*b,4)} offset:{32768*t2_ + 1024*b}")
    stamp("p2_done")

    K.label("L_red")
    K(f"v_and_b32 v{t1}, 7, v{V_LANE}"); K(f"v_lshrrev_b32 v{t3}, 3, v{V_LANE}")
    K(f"s_lshl_b32 s{T+1}, s{S_A}, 3"); K(f"v_add_u32 v{t0}, s{T+1}, v{t3}")
    K(f"v_and_b32 v{t2}, 3, v{V_LANE}"); K(f"v_lshlrev_b32 v{t2}, 2, v{t2}"); K(f"v_xor_b32 v{t0}, v{t0}, v{t2}")
    K(f"v_lshlrev_b32 v{t0}, 4, v{t0}"); K(f"v_lshl_add_u32 v{t0}, v{t1}, 10, v{t0}")
    K(f"s_lshr_b32 s{T+2}, s{S_W}, 2"); K(f"s_lshl_b32 s{T}, s{T+2}, 15"); K(f"v_add_u32 v{t0}, s{T}, v{t0}")
    K(f"v_mul_u32_u24 v{t3}, 896, v{t3}"); K(f"v_lshl_add_u32 v{t3}, v{t1}, 4, v{t3}")
    K(f"s_lshl_b32 s{T}, s{S_ROW}, 2"); K(f"s_add_u32 s{T}, s{T}, s{S_W}"); K(f"s_mul_i32 s{T}, s{T}, {8*896}"); K(f"s_lshl_b32 s{T+1}, s{S_CT}, 7"); K(f"s_add_u32 s{T+5}, s{T}, s{T+1}")
    K("s_waitcnt lgkmcnt(0)")
    K("s_barrier")
    if f2: stamp("t_bar")
    R = 160
    for q in range(4):
        K(f"ds_read_b128 {vr(R+8*q,4)}, v{t0} offset:{8192*q}")
        K(f"ds_read_b128 {vr(R+8*q+4,4)}, v{t0} offset:{8192*q + 512}")
    K("s_waitcnt lgkmcnt(4)")
    for e in range(0, 8, 2): padd(R+e, R+e, R+8+e, True)
    K("s_waitcnt lgkmcnt(0)")
    for e in range(0, 8, 2): padd(R+16+e, R+16+e, R+24+e, True)
    for e in range(0, 8, 2): padd(R+e, R+e, R+16+e, True)
    for e in range(4): K(f"v_cvt_pk_bf16_f32 v{R+e}, v{R+2*e}, v{R+2*e+1}")
    K(f"buffer_store_dwordx4 {vr(R,4)}, v{t3}, {srd(R_OUT)}, s{T+5} offen" + ["", " sc1", " nt", " sc0 sc1"][outm])
    if f2: stamp("t_st")
    K(f"s_or_b32 s{T}, s2, s{S_W}"); K(f"s_cmp_lg_u32 s{T}, 0")
    K.branch("s_cbranch_scc1 L_fin")
    K(f"s_mov_b32 s{T}, {WS_EPOCH}")
    flag(T)
    K.label("L_fin")
    if stamps:
        K("s_waitcnt vmcnt(0)")
        stamp("end")
        if probe is not None:
            i0 = STAMP_IDS.setdefault('start', len(STAMP_IDS)); i1 = STAMP_IDS.setdefault(probe, len(STAMP_IDS))
            K(f"v_readlane_b32 s{T}, v{V_STAMP}, {i0}"); K(f"v_readlane_b32 s{T+1}, v{V_STAMP}, {i1}")
            K("s_nop 4")
            K(f"s_cmp_eq_u32 s{T+1}, 0"); K(f"s_cselect_b32 s{T+1}, s{T}, s{T+1}")
            if pwg >= 0:
                K(f"s_cmp_lg_u32 s2, {pwg}")
                K.branch("s_cbranch_scc1 L_end")
            K.label("L_probe")
            K("s_sleep 2")
            K(f"s_memrealtime {sp(S_ST)}"); K("s_waitcnt lgkmcnt(0)")
            K(f"s_sub_u32 s{T+2}, s{S_ST}, s{T+1}"); K(f"s_cmp_lt_u32 s{T+2}, {pt}")
            K.branch("s_cbranch_scc1 L_probe")
            K.branch("s_branch L_end")
        K(f"s_lshl_b32 s{T}, s2, 3"); K(f"s_add_u32 s{T}, s{T}, s{S_W}"); K(f"s_lshl_b32 s{T}, s{T}, 8"); K(f"s_add_u32 s{T}, s{T}, {WS_STAMP}")
        K(f"v_lshlrev_b32 v{t0}, 2, v{V_LANE}")
        K(f"buffer_store_dword v{V_STAMP}, v{t0}, {srd(R_WS)}, s{T} offen")
    K.label("L_end")
    K("s_endpgm")
    K.raw(f".fill (28672 + 4096 * {1 if stamps else 0} - (L_end - {NAME})) / 4, 4, 0xbf800000")

    head = f"""; Fused gated mix of hedgehog linear attention and GELU FFN (emitted by a hand-written generator script)
; @launch grid=(256,1,1) block=(512,1,1) lds=163840
.amdgcn_target "amdgcn-amd-amdhsa--gfx950"
.text
.globl {NAME}
.p2align 8
.type {NAME},@function
"""
    tail = f""".section .rodata,"a"
.p2align 6
.amdhsa_kernel {NAME}
  .amdhsa_next_free_vgpr 256
  .amdhsa_next_free_sgpr 102
  .amdhsa_accum_offset 256
  .amdhsa_group_segment_fixed_size 0
  .amdhsa_kernarg_size 104
  .amdhsa_user_sgpr_count 2
  .amdhsa_user_sgpr_kernarg_segment_ptr 1
  .amdhsa_system_sgpr_workgroup_id_x 1
.end_amdhsa_kernel
"""
    return head + K.text() + tail

STAMP_IDS = {}
def parse_opts(argv):
    kw = {}
    for a in argv:
        if a.startswith("-D"):
            k, v = a[2:].split("="); kw[k] = int(v) if v.lstrip("-").isdigit() else v
    return kw
if __name__ == "__main__":
    out = sys.argv[1] if len(sys.argv) > 1 else "k.s"
    open(out, "w").write(gen(**parse_opts(sys.argv)))
```

```python
import sys, struct
from asmlib import Asm

NAME = "gated_mix__linear_kernel_hedgehog__dense_activation_gelu__prompt_kernel"
def f2u(x): return struct.unpack("<I", struct.pack("<f", x))[0]

WS_EPOCH = 0
WS_RPF   = 0x8000
WS_STAMP = 0x10000
WS_G     = 0xA0000
WS_WQ    = 0x100000
WS_KVP   = 0x280000
WS_O     = 0x480000
WS_H     = 0x680000
WS_CN    = 0x300000
WS_HF    = WS_CN
WS_OF    = WS_CN + 2048*128
WS_KVF   = WS_CN + 3072*128
WS_SIZE  = 0xE00000

U = [0, 32768, 65536, 98304, 131072]
L_K, L_V, L_Q = 98304, 126976, 65536
L_MISC = 155648
L_PHI, L_CNT, L_B2, L_B1 = L_MISC, L_MISC + 2048, L_MISC + 2560, L_MISC + 3072
L_KVS = U[3]
L_KVF = L_MISC + 4096
RUNIT = [0, 1, 0, 1, 3, 0, 1, 2, 3]
C_E, C_0, C_1, C_2, C_3, C_4, C_Q, C_G, C_B, C_S, C_5, C_P, C_B2 = 0, 4, 8, 12, 16, 20, 24, 28, 32, 36, 40, 44, 48

P_X, P_WQKV, P_PHI, P_WO, P_W1, P_B1, P_W2 = 16, 18, 20, 22, 26, 28, 30
P_B2, P_GATE, P_OUT, P_WS = 32, 34, 36, 40
R_X, R_W1, R_W2, R_WO, R_WS, R_OUT, R_T = 44, 48, 52, 56, 60, 64, 68
S_MT, S_J, S_W, S_A, S_FL2, S_TAG, S_CH, S_CNT = 72, 73, 74, 75, 76, 78, 77, 100
S_CHO = 80
S_M0 = 87
S_XB, S_W1B = 88, 89
S_T = 90
S_UP = 98
S_E = 42
S_H = S_J
S_CT, S_ROW, S_ACT = 43, 3, 101
S_K = 4
S_ST = 6
S_L28 = 24
S_FL = 8
S_HB, S_W2B, S_OB, S_HB3, S_W2B3, S_M02, S_RS = 9, 10, 11, 12, 13, 14, 15
S_PE, S_P3, S_PO = 34, 35, 38
PD = [16, 17, 18, 19, 20, 21, 22, 23, 26, 27, 28, 29, 30, 31, 32, 33]
def srd(r): return f"s[{r}:{r+3}]"
def sp(r): return f"s[{r}:{r+1}]"

V_LANE, V_L16, V_STAMP, V_TAG, V_POLL, V_CNT = 1, 2, 3, 4, 5, 6
V_T = 8
V_D2 = 18
A_PA, A_AX, A_AD, A_L4, A_PH, A_TR, A_G = 7, 14, 22, 24, 25, 30, 31
V_W, V_P, V_ACC, V_PHI, V_X = 32, 64, 96, 128, 144
A_XD, A_WD, A_QD, A_GW = 64, 68, 72, 16
M_L16B, M_AB = 7, 14
M_ACC, M_BH, M_AR = 24, 88, 152
M_AX, M_AW = 136, 140
NA = 13
def vr(a, n): return f"v[{a}:{a+n-1}]"
UPM = sp(S_UP)
L2E = 1.4426950408889634

def gen(stamps=False, spin=20000, rot1=False, codepf=True, slp=2, cyc=False, G=5, prioA=1, prioM=2, kvf=27, fine=False,
        pkq=0, pkk=1, LA=9, LA0=6, c0=2, mpf=60, outm=0, tlb=21, gw=-1, hf0=7, rpb=3, prioG=2, k6=4, qpf=1, sb=1, qd=0, probe=None, pwg=-1, pt=4000, aw2=2, pre=8, cb=22, pkg=2, rpa=0, f2=0, hfirst=1, early=0, oc=22, x_now2=0, x_noh=0, x_nomf=0, x_now1=0, rb2=0, gp=3, pa=10, x_at=4, c3=9, cq=17, spf=0, allpf=0, l2w=0):
    K = Asm()
    T = S_T
    TD = T + 5
    t0, t1, t2, t3, t4, t5 = range(V_T, V_T + 6)
    def stamp(name):
        if not stamps: return
        if probe is not None and name != probe: return
        K("s_waitcnt lgkmcnt(0)")
        K(f"s_memrealtime {sp(S_ST)}")
        if cyc: K(f"s_memtime s[0:1]")
        K("s_waitcnt lgkmcnt(0)")
        i = STAMP_IDS.setdefault(name, len(STAMP_IDS))
        K(f"v_writelane_b32 v{V_STAMP}, s{S_ST}, {i}")
        if cyc: K(f"v_writelane_b32 v{V_STAMP}, s0, {32 + i}")
    uid = [0]
    def newl(p): uid[0] += 1; return f"L_{p}{uid[0]}"
    def poll_issue(fl):
        K(f"s_load_dword s{PD[0]}, {sp(P_WS)}, s{fl[0]} offset:{fl[1]} glc")
    def poll_check(fl):
        l, d = newl("poll"), newl("polld")
        K(f"s_mov_b32 s{S_CNT}, {spin}")
        K.raw(f"{l}:")
        K("s_waitcnt lgkmcnt(0)")
        K(f"s_cmp_eq_u32 s{PD[0]}, {fl[2]}")
        K.branch(f"s_cbranch_scc1 {d}")
        K(f"s_sub_u32 s{S_CNT}, s{S_CNT}, 1")
        K(f"s_cbranch_scc1 {d}")
        if slp: K(f"s_sleep {slp}")
        poll_issue(fl)
        K(f"s_branch {l}")
        K.label(d)
    def signal(soff_reg, n):
        K(f"v_mov_b32 v{t5}, 1"); K(f"v_lshlrev_b32 v{V_POLL}, 7, v{V_LANE}")
        K(f"s_mov_b64 exec, {(1 << n) - 1}")
        K(f"buffer_atomic_add v{t5}, v{V_POLL}, {srd(R_WS)}, s{soff_reg} offen")
        K("s_mov_b64 exec, -1")
    def vpoll_issue(vaddr):
        return K(f"buffer_load_dword v{V_POLL}, v{vaddr}, {srd(R_WS)}, 0 offen sc1")
    def vpoll_check(tok, vaddr):
        l, d = newl("poll"), newl("polld")
        K(f"s_mov_b32 s{S_CNT}, {spin}")
        K.wait_vm(tok)
        K.label(l)
        K(f"v_cmp_ne_u32 vcc, s{S_TAG}, v{V_POLL}")
        K.branch(f"s_cbranch_vccz {d}")
        K(f"s_sub_u32 s{S_CNT}, s{S_CNT}, 1")
        K.branch(f"s_cbranch_scc1 {d}")
        K(f"s_sleep 10")
        K(f"buffer_load_dword v{V_POLL}, v{vaddr}, {srd(R_WS)}, 0 offen sc1"); K.vm -= 1
        K("s_waitcnt vmcnt(0)")
        K.branch(f"s_branch {l}")
        K.label(d)
    def flag(soff_reg):
        K("s_mov_b64 exec, 1")
        K(f"buffer_store_dword v{V_TAG}, v{V_LANE}, {srd(R_WS)}, s{soff_reg} offen sc1")
        K("s_mov_b64 exec, -1")
    def arrive(c):
        K(f"v_mov_b32 v{t5}, 1")
        K("s_mov_b64 exec, 1")
        K(f"ds_add_u32 v{V_CNT}, v{t5} offset:{c}")
        K("s_mov_b64 exec, -1")
    def await_(c, n, sleep=0):
        l, d = newl("aw"), newl("awd")
        K(f"s_mov_b32 s{S_CNT}, {spin * 8}")
        K.label(l)
        K(f"ds_read_b32 v{t5}, v{V_CNT} offset:{c}")
        K("s_waitcnt lgkmcnt(0)")
        K(f"v_cmp_ne_u32 vcc, {n}, v{t5}")
        K.branch(f"s_cbranch_vccz {d}")
        if sleep: K(f"s_sleep {sleep}")
        K(f"s_sub_u32 s{S_CNT}, s{S_CNT}, 1")
        K.branch(f"s_cbranch_scc0 {l}")
        K.label(d)
    def mksrd(r, p, nbytes):
        K(f"s_mov_b32 s{r}, s{p}"); K(f"s_and_b32 s{r+1}, s{p+1}, 0xffff")
        K(f"s_mov_b32 s{r+2}, {nbytes}"); K(f"s_mov_b32 s{r+3}, 0x20000")
    def mfma(d, a, b, c=None):
        cs = vr(d, 16) if c is None else c
        K(f"v_mfma_f32_32x32x16_bf16 {vr(d,16)}, {vr(a,4)}, {vr(b,4)}, {cs}")
    def padd(d, a, b, pk):
        if pk: K(f"v_pk_add_f32 {vr(d,2)}, {vr(a,2)}, {vr(b,2)}")
        else: K(f"v_add_f32 v{d}, v{a}, v{b}"); K(f"v_add_f32 v{d+1}, v{a+1}, v{b+1}")
    def pscale(d, r, pk):
        if pk: K(f"v_pk_mul_f32 {vr(d,2)}, {vr(d,2)}, {vr(r & ~1,2)} " + ("op_sel:[0,1] op_sel_hi:[1,1]" if r & 1 else "op_sel_hi:[1,0]"))
        else: K(f"v_mul_f32 v{d}, v{d}, v{r}"); K(f"v_mul_f32 v{d+1}, v{d+1}, v{r}")
    def settag():
        K(f"s_add_u32 s{S_TAG}, s{S_E}, 0x9E3779B9"); K(f"s_mov_b32 s{S_TAG+1}, s{S_TAG}"); K(f"v_mov_b32 v{V_TAG}, s{S_TAG}")
    def xfrag_addr(dst):
        K(f"v_and_b32 v{t0}, 31, v{V_LANE}"); K(f"v_lshrrev_b32 v{t2}, 5, v{V_LANE}"); K(f"v_bfe_u32 v{t3}, v{V_LANE}, 1, 3")
        K(f"v_xor_b32 v{t3}, v{t2}, v{t3}"); K(f"s_lshl_b32 s{T}, s{S_A}, 12"); K(f"v_lshlrev_b32 v{t0}, 7, v{t0}")
        K(f"v_lshl_add_u32 v{t0}, v{t3}, 4, v{t0}"); K(f"v_add_u32 v{dst}, s{T}, v{t0}")
        for k in range(1, 4): K(f"v_xor_b32 v{dst+k}, {32*k}, v{dst}")
    def lanepart():
        K(f"v_bfe_u32 v{t4}, v{V_LANE}, 4, 1"); K(f"v_lshlrev_b32 v{t4}, 5, v{t4}")
        K(f"v_and_b32 v{t3}, 3, v{V_LANE}"); K(f"v_lshl_add_u32 v{t4}, v{t3}, 3, v{t4}")
        K(f"v_bfe_u32 v{t3}, v{V_LANE}, 2, 2"); K(f"v_lshrrev_b32 v{t2}, 5, v{V_LANE}")
    def p2setup():
        mksrd(R_W2, P_W2, 0 if x_now2 else 1792*896)
        K(f"s_and_b32 s{T}, s2, 7"); K(f"s_lshr_b32 s{T+1}, s2, 3")
        K(f"s_mul_i32 s{T+2}, s{T+1}, 37"); K(f"s_lshr_b32 s{T+2}, s{T+2}, 8"); K(f"s_mul_i32 s{T+3}, s{T+2}, 7"); K(f"s_sub_u32 s{S_CT}, s{T+1}, s{T+3}")
        K(f"s_lshl_b32 s{T+2}, s{T+2}, 1"); K(f"s_lshl_b32 s{T+3}, s{T}, 3"); K(f"s_add_u32 s{S_ROW}, s{T+2}, s{T+3}")
        K(f"s_cmp_lt_u32 s{T+1}, 28"); K(f"s_cselect_b32 s{S_ACT}, 1, 0")
        K(f"s_and_b32 s{T+2}, s{S_A}, 1"); K(f"s_mul_i32 s{T+3}, s{S_A}, 7"); K(f"s_add_u32 s{T+4}, s{T+3}, s{T+2}")
        K(f"s_cmp_eq_u32 s{T+2}, 0"); K(f"s_cselect_b32 s{T+2}, 6, 0"); K(f"s_add_u32 s{T+2}, s{T+2}, s{T+3}")
        K(f"s_lshl_b32 s{T}, s{S_CT}, 7")
        K(f"s_mul_i32 s{S_W2B}, s{T+4}, {64*896}"); K(f"s_add_u32 s{S_W2B}, s{S_W2B}, s{T}")
        K(f"s_mul_i32 s{S_W2B3}, s{T+2}, {64*896}"); K(f"s_add_u32 s{S_W2B3}, s{S_W2B3}, s{T}")
        K(f"s_lshl_b32 s{S_M02}, s{S_A}, 13")
        K(f"v_lshrrev_b32 v{t0}, 3, v{V_LANE}"); K(f"v_and_b32 v{t1}, 7, v{V_LANE}")
        K(f"v_bfe_u32 v{t2}, v{V_LANE}, 4, 1"); K(f"v_lshlrev_b32 v{t2}, 2, v{t2}"); K(f"v_xor_b32 v{t1}, v{t1}, v{t2}")
        K(f"v_mul_u32_u24 v{t0}, 896, v{t0}"); K(f"v_lshl_add_u32 v{V_D2}, v{t1}, 4, v{t0}")
        for q in range(1, 4): K(f"v_add_u32 v{V_D2+q}, {q*(8*896-1024)}, v{V_D2}")
        K(f"v_mov_b32 v{V_CNT}, {L_CNT}")
    def shift(regs, d):
        for r in regs:
            if d > 0: K(f"v_add_u32 v{r}, {d}, v{r}")
            elif d < 0: K(f"v_subrev_u32 v{r}, {-d}, v{r}")
    pend = []
    def drip(n):
        for _ in range(n):
            if pend: pend.pop(0)()
    def run(steps):
        for f in steps: f()
    tk_r = {}
    def g_w2(r):
        def step(q):
            def f():
                if q % 4 == 0:
                    K(f"s_add_u32 s{TD}, s{S_W2B3 if r == 3 else S_W2B}, {(0 if r == 3 else (2*r % 7)*64*896) + (q // 4)*32*896}")
                    K(f"s_add_u32 m0, s{S_M02}, {U[RUNIT[r]] + (q // 4)*4096}")
                x = K(f"buffer_load_dwordx4 v{V_D2+q%4}, {srd(R_W2)}, s{TD} offen offset:{1024*(q%4)} lds")
                if q == 7: tk_r[r] = x
            return f
        return [step(q) for q in range(8)]
    SH = [0, 0, 65536, 0, -65536, 0, 65536]

    K.raw(f"{NAME}:")
    K("s_cmp_ge_u32 s2, 256"); K("s_cbranch_scc1 L_end")
    if stamps and early: K(f"s_memrealtime {sp(S_ST)}"); K("s_waitcnt lgkmcnt(0)")
    K("s_load_dwordx16 s[16:31], s[0:1], 0"); K("s_load_dwordx8 s[32:39], s[0:1], 64"); K("s_load_dwordx2 s[40:41], s[0:1], 96")
    if stamps:
        if not early: K(f"s_memrealtime {sp(S_ST)}")
        K(f"v_mov_b32 v{V_STAMP}, 0")
    K(f"v_lshrrev_b32 v{t0}, 6, v0"); K(f"v_and_b32 v{V_LANE}, 63, v0")
    K(f"v_readfirstlane_b32 s{S_W}, v{t0}")
    K(f"v_lshlrev_b32 v{V_L16}, 4, v{V_LANE}")
    K(f"s_and_b32 s{T}, s2, 7"); K(f"s_lshr_b32 s{T+1}, s2, 3")
    if codepf:
        K(f"s_lshr_b32 s{T+2}, s2, 5"); K(f"s_lshl_b32 s{T+2}, s{T+2}, 3"); K(f"s_or_b32 s{T+2}, s{T+2}, s{S_W}"); K(f"s_cmp_lg_u32 s{T+2}, 7")
        K("s_cbranch_scc1 L_nopf")
        K(f"s_getpc_b64 {sp(T+2)}")
        K.raw("L_pc:")
        K(f"s_lshl_b32 s{T+4}, s{T+1}, 7"); K(f"s_sub_u32 s{T+2}, s{T+2}, L_pc - {NAME}"); K(f"s_subb_u32 s{T+3}, s{T+3}, 0")
        K(f"s_add_u32 s{T+2}, s{T+2}, s{T+4}"); K(f"s_addc_u32 s{T+3}, s{T+3}, 0")
        K(f"v_lshlrev_b32 v{t0}, 9, v{V_LANE}")
        K("s_mov_b32 exec_hi, 0xffffff")
        K(f"global_load_dword v{V_POLL}, v{t0}, {sp(T+2)}"); K.vm -= 1
        K("s_mov_b32 exec_hi, -1")
        K.label("L_nopf")
    K(f"s_and_b32 s{T+2}, s{T}, 2"); K(f"s_lshl_b32 s{T+2}, s{T+2}, 1")
    K(f"s_and_b32 s{T+3}, s{T}, 1"); K(f"s_cmp_lt_u32 s{T+1}, 4"); K(f"s_cselect_b32 s{T+4}, 14, 12"); K(f"s_add_u32 s{T+3}, s{T+3}, s{T+4}")
    K(f"s_lshr_b32 s{T+4}, s{T+1}, 3"); K(f"s_lshl_b32 s{S_J}, s{T+4}, 2"); K(f"s_and_b32 s{S_MT}, s{T}, 3"); K(f"s_add_u32 s{S_J}, s{S_J}, s{S_MT}"); K(f"s_sub_u32 s{S_J}, s{S_J}, 4")
    K(f"s_cmp_lt_u32 s{T+1}, 8"); K(f"s_cselect_b32 s{S_J}, s{T+3}, s{S_J}"); K(f"s_cselect_b32 s{T+2}, s{T+2}, 0")
    K(f"s_and_b32 s{T+3}, s{T+1}, 7"); K(f"s_xor_b32 s{T+3}, s{T+3}, s{T+2}")
    K(f"s_and_b32 s{S_MT}, s{T}, 4"); K(f"s_lshl_b32 s{S_MT}, s{S_MT}, 1"); K(f"s_add_u32 s{S_MT}, s{S_MT}, s{T+3}")
    K(f"s_and_b32 s{S_A}, s{S_W}, 3")
    K(f"s_lshl_b32 s{S_W1B}, s{S_J}, 8")
    K(f"s_cmp_ge_u32 s{S_W}, 4")
    K.branch("s_cbranch_scc1 L_M")

    if prioA: K(f"s_setprio {prioA}")
    K(f"s_lshl_b32 s{T+4}, s{T+4}, 1"); K(f"s_add_u32 s{T+2}, s{T+3}, s{T+4}")
    K(f"s_cmp_ge_u32 s{T+2}, 7"); K(f"s_cselect_b32 s{T+3}, 7, 0"); K(f"s_sub_u32 s{S_CH}, s{T+2}, s{T+3}")
    if not rot1: K(f"s_mov_b32 s{S_CH}, 0")
    def rotstep(t):
        K(f"s_lshl_b32 s{S_CHO+t}, s{S_CH}, 12")
        if t < 6: K(f"s_add_u32 s{S_CH}, s{S_CH}, 1"); K(f"s_cmp_eq_u32 s{S_CH}, 7"); K(f"s_cselect_b32 s{S_CH}, 0, s{S_CH}")
    rotstep(0); rotstep(1)
    K(f"s_lshl_b32 s{S_M0}, s{S_A}, 12")
    K(f"s_mul_i32 s{S_XB}, s{S_MT}, {128*896}")
    K(f"v_lshrrev_b32 v{t0}, 3, v{V_LANE}"); K(f"v_and_b32 v{t1}, 7, v{V_LANE}"); K(f"v_lshrrev_b32 v{t2}, 1, v{t0}"); K(f"v_xor_b32 v{t2}, v{t1}, v{t2}")
    K(f"s_lshl_b32 s{T+2}, s{S_A}, 5"); K(f"v_add_u32 v{t3}, s{T+2}, v{t0}"); K(f"v_mul_u32_u24 v{t3}, 896, v{t3}")
    K(f"v_lshl_add_u32 v{A_XD}, v{t2}, 4, v{t3}"); K(f"v_xor_b32 v{t2}, 4, v{t2}"); K(f"v_lshl_add_u32 v{A_XD+1}, v{t2}, 4, v{t3}")
    K(f"v_add_u32 v{A_XD+1}, {8*896-1024}, v{A_XD+1}")
    K(f"v_add_u32 v{A_XD+2}, {16*896-2048}, v{A_XD}"); K(f"v_add_u32 v{A_XD+3}, {16*896-2048}, v{A_XD+1}")
    K(f"v_lshrrev_b32 v{t0}, 4, v{V_LANE}"); K(f"v_and_b32 v{t1}, 15, v{V_LANE}"); K(f"v_lshlrev_b32 v{t2}, 2, v{t0}"); K(f"v_xor_b32 v{t2}, v{t1}, v{t2}")
    K(f"s_lshl_b32 s{T+2}, s{S_A}, 4"); K(f"v_add_u32 v{t3}, s{T+2}, v{t0}"); K(f"v_mul_u32_u24 v{t3}, 3584, v{t3}")
    K(f"v_lshl_add_u32 v{A_WD}, v{t2}, 4, v{t3}")
    for q in range(1, 4): K(f"v_add_u32 v{A_WD+q}, {q*(4*3584-1024)}, v{A_WD}")
    K("s_waitcnt lgkmcnt(0)")
    if stamps: K(f"v_writelane_b32 v{V_STAMP}, s{S_ST}, {STAMP_IDS.setdefault('start', len(STAMP_IDS))}")
    mksrd(R_X, P_X, 2048*896); mksrd(R_W1, P_W1, 0 if x_now1 else 448*3584)
    tk_stage = {}
    def g_stage(t):
        u = U[t % 4]
        def step(q):
            def f():
                if q == 0: K(f"s_lshr_b32 s{TD}, s{S_CHO+t}, 5"); K(f"s_add_u32 s{TD}, s{TD}, s{S_XB}"); K(f"s_add_u32 m0, s{S_M0}, {u}")
                if q == 4: K(f"s_mul_i32 s{TD}, s{S_CHO+t}, 56"); K(f"s_add_u32 s{TD}, s{TD}, s{S_W1B}"); K(f"s_add_u32 m0, s{S_M0}, {u + 16384}")
                if q < 4: K(f"buffer_load_dwordx4 v{A_XD+q}, {srd(R_X)}, s{TD} offen offset:{1024*q} lds")
                else: x = K(f"buffer_load_dwordx4 v{A_WD+q-4}, {srd(R_W1)}, s{TD} offen offset:{1024*(q-4)} lds")
                if q == 7: tk_stage[t] = x
            return f
        return [step(q) for q in range(8)]
    ilist = []
    for t in range(7): ilist += [(f, t - 2 if t >= 4 else -1) for f in g_stage(t)]
    pos = [0]
    def issue_to(n, lastbar):
        while pos[0] < min(n, len(ilist)) and ilist[pos[0]][1] <= lastbar:
            ilist[pos[0]][0](); pos[0] += 1
    if fine: stamp("A_karg")
    K(f"s_cmp_ge_u32 s{S_J}, 14")
    K.branch("s_cbranch_scc1 L_a1")
    vm0 = K.vm
    issue_to(8, -1)
    issue_to(8 + LA0, -1)
    K.label("L_a1")
    if fine: stamp("A_i1")
    K(f"s_load_dword s{S_E}, {sp(P_WS)}, {WS_EPOCH}")
    for t in range(2, 7): rotstep(t)
    mksrd(R_WS, P_WS, WS_SIZE); mksrd(R_OUT, P_OUT, 2048*896)
    p2setup()
    K(f"s_mov_b32 s{S_UP}, 0"); K(f"s_mov_b32 s{S_UP+1}, -1")
    K(f"s_mov_b32 s{S_L28}, 0x10000000"); K(f"s_mov_b32 s{S_L28+1}, 0x10000000")
    xfrag_addr(A_AX)
    lanepart()
    K(f"v_lshl_add_u32 v{t0}, v{t2}, 3, v{t3}"); K(f"v_lshl_add_u32 v{A_TR}, v{t0}, 6, v{t4}")
    K(f"v_lshl_add_u32 v{t0}, v{t2}, 2, v{t3}"); K(f"v_mul_u32_u24 v{t1}, 56, v{t0}"); K(f"v_add_u32 v{t1}, v{t1}, v{t4}"); K(f"v_add_u32 v{A_PH}, {L_PHI}, v{t1}")
    K(f"v_lshlrev_b32 v{A_L4}, 2, v{V_LANE}")
    K(f"s_lshl_b32 s{T}, s{S_A}, 10"); K(f"s_add_u32 s{T}, s{T}, {WS_RPF}"); K(f"v_and_b32 v{A_PA}, 7, v{V_LANE}"); K(f"v_lshl_add_u32 v{A_PA}, v{A_PA}, 7, s{T}")
    K(f"s_mul_i32 s{S_RS}, s{S_J}, {3*28672}"); K(f"s_mul_i32 s{S_P3}, s{S_A}, 7168"); K(f"s_add_u32 s{S_RS}, s{S_RS}, s{S_P3}"); K(f"s_add_u32 s{S_RS}, s{S_RS}, {WS_WQ}")
    K("s_waitcnt lgkmcnt(0)")
    settag()
    K(f"s_cmp_lt_u32 s{S_J}, 14")
    K.branch("s_cbranch_scc1 L_a2")
    sv = K.vm
    K(f"s_mul_i32 s{T}, s{S_A}, 3072"); K(f"s_add_u32 s{T}, s{T}, {L_K}")
    K("s_barrier")
    for t in range(7):
        K(f"s_lshr_b32 s{TD}, s{S_CHO+t}, 5"); K(f"s_add_u32 s{TD}, s{TD}, s{S_XB}")
        if t < 6: K(f"s_add_u32 m0, s{S_M0}, {16384*t}")
        else: K(f"s_add_u32 m0, s{S_M0}, s{T}")
        for q in range(4): K(f"buffer_load_dwordx4 v{A_XD+q}, {srd(R_X)}, s{TD} offen offset:{1024*q} lds")
        if t == rb2: K("s_barrier")
    K("s_waitcnt vmcnt(0)")
    for t in range(7):
        if t == 4: shift(range(A_AX, A_AX + 4), 65536)
        if t == 6:
            K(f"s_sub_u32 s{T}, s{T}, 65536")
            for k in range(4): K(f"v_add_u32 v{A_AX+k}, s{T}, v{A_AX+k}")
        for ksl in range(4): K(f"ds_read_b128 {vr(V_X + 16*t + 4*ksl, 4)}, v{A_AX+ksl} offset:{(t % 4) * 16384 if t < 6 else 0}")
        if t % 2 == 1: K("s_waitcnt lgkmcnt(4)")
    K("s_waitcnt lgkmcnt(0)")
    stamp("A_b6")
    vpoll_issue(A_PA)
    K.branch("s_branch L_a3")
    K.label("L_a2")
    K.vm = sv
    if fine: stamp("A_setup")
    tkx = {}
    def g_panel(p, lds):
        def step(q):
            def f():
                if q % 4 == 0: K(f"s_add_u32 s{TD}, s{S_RS}, {28672*p + (q // 4)*4096}"); K(f"s_add_u32 m0, s{S_P3}, {lds + (q // 4)*4096}")
                tkx[p] = K(f"buffer_load_dwordx4 v{V_L16}, {srd(R_WS)}, s{TD} offen offset:{1024*(q%4)} sc1 lds")
            return f
        return [step(q) for q in range(7)]
    for t in range(7):
        issue_to(8*(t+1) + (LA0 if t == 0 else LA), t - 1)
        shift(range(A_AX, A_AX + 4), SH[t])
        if t == 5:
            assert pos[0] == len(ilist)
            tkp = vpoll_issue(A_PA)
        if fine: stamp(f"A{t}a")
        K.wait_vm(tk_stage[t])
        if fine: stamp(f"A{t}b")
        if t < 6:
            if t >= 2: K("s_waitcnt lgkmcnt(4)")
            K("s_barrier")
        else: arrive(C_S)
        if t in (0, 4, 6): stamp(f"A_b{t}")
        for ksl in range(4): K(f"ds_read_b128 {vr(V_X + 16*t + 4*ksl, 4)}, v{A_AX+ksl} offset:{(t % 2) * 32768}")
    assert tkp == K.vm
    K.label("L_a3")
    arrive(C_E)
    vpoll_check(tkp, A_PA)
    stamp("rp_seen")
    run(g_panel(1, L_K) + g_panel(2, L_V))
    K(f"v_add_u32 v{A_PA}, 4096, v{A_PA}")
    tkp = vpoll_issue(A_PA)
    stamp("kv_issued")
    K(f"s_mov_b32 s{S_K}, {f2u(L2E):#x}"); K(f"s_mov_b32 s{S_K+1}, {f2u(L2E):#x}")
    VPH, VB = V_W + 24, V_W + 16
    for s in range(2):
        for r in range(2): K(f"ds_read_b64_tr_b16 {vr(VPH + 4*s + 2*r, 2)}, v{A_PH} offset:{(16*s + 8*r)*56}")
    K(f"s_lshl_b32 s{T}, s{S_A}, 11"); K(f"s_lshl_b32 s{T+1}, s{S_J}, 13"); K(f"s_add_u32 s{S_HB}, s{T+1}, s{T}"); K(f"s_add_u32 s{S_FL}, s{S_HB}, {WS_KVF}"); K(f"s_lshl_b32 s{S_PE}, s{S_MT}, 7"); K(f"s_add_u32 s{S_PE}, s{S_PE}, s{S_FL}"); K(f"s_add_u32 s{S_HB}, s{S_HB}, {WS_KVP}")
    FL_K = (S_PE, 0, 16)
    K(f"s_lshl_b32 s{T}, s{S_MT}, 2"); K(f"s_add_u32 s{T}, s{T}, s{S_A}")
    K(f"s_lshr_b32 s{T+1}, s{T}, 1"); K(f"s_lshl_b32 s{T+1}, s{T+1}, 2"); K(f"s_lshr_b32 s{T+2}, s{S_J}, 2"); K(f"s_add_u32 s{T+1}, s{T+1}, s{T+2}"); K(f"s_lshl_b32 s{T+1}, s{T+1}, 10"); K(f"s_add_u32 s{S_FL2}, s{T+1}, {WS_OF}")
    K(f"s_lshl_b32 s{T}, s{T}, 4"); K(f"s_add_u32 s{T}, s{T}, s{S_J}")
    K(f"s_lshl_b32 s{S_OB}, s{T}, 11"); K(f"s_add_u32 s{S_OB}, s{S_OB}, {WS_O}")
    K(f"s_lshl_b32 s{T+2}, s{T}, 7"); K(f"s_add_u32 s{S_XB}, s{T+2}, {WS_G - 128}")
    IDR = [26, 27, 28, 29, V_PHI, V_PHI+1, V_PHI+2, V_PHI+3]
    K(f"v_and_b32 v{t0}, 31, v{V_LANE}"); K(f"v_lshrrev_b32 v{t1}, 5, v{V_LANE}"); K(f"v_lshlrev_b32 v{t1}, 2, v{t1}")
    K(f"v_sub_u32 v{t0}, v{t0}, v{t1}")
    K(f"v_and_b32 v{t1}, 1, v{V_LANE}"); K(f"v_lshlrev_b32 v{t1}, 4, v{t1}"); K(f"v_mov_b32 v{t2}, 0x3f80"); K(f"v_lshlrev_b32 v{t1}, v{t1}, v{t2}")
    K(f"v_and_b32 v{t0}, -2, v{t0}")
    for s in range(2):
        for q in range(4): K(f"v_cmp_eq_u32 {sp(T+2*q)}, {16*s + 8*(q // 2) + 2*(q % 2)}, v{t0}")
        for q in range(4): K(f"v_cndmask_b32 v{IDR[4*s+q]}, 0, v{t1}, {sp(T+2*q)}")
    if aw2: K(f"s_cmp_eq_u32 s{S_ACT}, 1"); K(f"s_cselect_b32 s{R_W2+2}, s{R_W2+2}, 0")
    if aw2 in (1, 3):
        await_(C_E, 8, 1)
        run(g_w2(0))
        K.wait_vm(tkx[2]); arrive(C_0)
        run(g_w2(1))
        if qd < 0: run(g_panel(0, L_Q))
    else: K.wait_vm(tkx[2]); arrive(C_0)
    stamp("kv_landed0")
    if aw2 == 1: K.wait_vm(tk_r[1]); arrive(C_B)
    await_(C_0, 4, 1)
    K(f"v_cndmask_b32 v{VPH+6}, v{VPH+6}, 0, {UPM}"); K(f"v_cndmask_b32 v{VPH+7}, v{VPH+7}, 0, {UPM}")
    await_(C_G if gw >= 0 else C_E, 4 if gw >= 0 else 8, 1)
    vpoll_check(tkp, A_PA)
    stamp("kv_start")

    def gemm_qkv(panels, hook=None):
        nb = len(panels) * 4
        D = 3 if len(panels) == 2 else 6
        tk = {}
        for n, (off, acc, sw) in enumerate(panels): K(f"v_add_u32 v{A_AX+n}, {off}, v{A_TR}")
        def rd(ks, n):
            t, ksl = ks // 4, ks % 4
            b = V_W + nb * (ks % D)
            if ksl == 0: K(f"v_add_u32 v{A_AD + n}, s{S_CHO+t}, v{A_AX+n}")
            for r in range(2):
                tk[ks] = K(f"ds_read_b64_tr_b16 {vr(b + 4*n + 2*r, 2)}, v{A_AD + n} offset:{(16*ksl + 4*r)*64}")
        for k in range(D):
            for n in range(len(panels)): rd(k, n)
        for ks in range(28):
            K.wait_lg(tk[ks])
            b = V_W + nb * (ks % D)
            for n, (off, acc, sw) in enumerate(panels):
                wv, xv = b + 4*n, V_X + 4*ks
                if sw: mfma(acc, xv, wv, "0" if ks == 0 else None)
                else: mfma(acc, wv, xv, "0" if ks == 0 else None)
                if ks + D < 28: rd(ks + D, n)
            if hook: hook(ks)
    QP = V_W
    P = V_ACC
    def featmap():
        for e in range(8): K(f"v_cvt_pk_bf16_f32 v{QP+e}, v{V_ACC+2*e}, v{V_ACC+2*e+1}")
        mfma(P, VPH, QP, "0"); mfma(P, VPH + 4, QP + 4)
    def softmax(pk):
        for e in range(4): K(f"v_cndmask_b32 v{P+12+e}, v{P+12+e}, v{P}, {UPM}")
        mx, mn = t0, t2
        K(f"v_max3_f32 v{mx}, v{P}, v{P+1}, v{P+2}"); K(f"v_min3_f32 v{mn}, v{P}, v{P+1}, v{P+2}")
        K(f"v_max3_f32 v{t1}, v{P+3}, v{P+4}, v{P+5}"); K(f"v_min3_f32 v{t3}, v{P+3}, v{P+4}, v{P+5}")
        for e in range(6, 14, 4):
            K(f"v_max3_f32 v{mx}, v{mx}, v{P+e}, v{P+e+1}"); K(f"v_min3_f32 v{mn}, v{mn}, v{P+e}, v{P+e+1}")
            K(f"v_max3_f32 v{t1}, v{t1}, v{P+e+2}, v{P+e+3}"); K(f"v_min3_f32 v{t3}, v{t3}, v{P+e+2}, v{P+e+3}")
        K(f"v_max3_f32 v{mx}, v{mx}, v{P+14}, v{P+15}"); K(f"v_min3_f32 v{mn}, v{mn}, v{P+14}, v{P+15}")
        K(f"v_max_f32 v{mx}, v{mx}, v{t1}"); K(f"v_min_f32 v{mn}, v{mn}, v{t3}")
        K(f"v_mov_b32 v{t1}, v{mx}"); K(f"v_mov_b32 v{t3}, v{mn}")
        K(f"v_permlane32_swap_b32 v{mx}, v{t1}"); K(f"v_permlane32_swap_b32 v{mn}, v{t3}")
        K(f"v_max_f32 v{mx}, v{mx}, v{t1}"); K(f"v_min_f32 v{mn}, v{mn}, v{t3}")
        K(f"v_mul_f32 v{mx}, s{S_K}, v{mx}"); K(f"v_mul_f32 v{mn}, s{S_K}, v{mn}")
        EP, EN = V_P, V_P + 16
        for e in range(0, 16, 2):
            if pk:
                K(f"v_pk_fma_f32 {vr(EP+e,2)}, {vr(P+e,2)}, {sp(S_K)}, {vr(mx,2)} op_sel_hi:[1,1,0] neg_lo:[0,0,1] neg_hi:[0,0,1]")
                K(f"v_pk_fma_f32 {vr(EN+e,2)}, {vr(P+e,2)}, {sp(S_K)}, {vr(mn,2)} op_sel_hi:[1,1,0] neg_lo:[1,0,0] neg_hi:[1,0,0]")
            else:
                for x in (e, e + 1):
                    K(f"v_fma_f32 v{EP+x}, v{P+x}, s{S_K}, -v{mx}"); K(f"v_fma_f32 v{EN+x}, -v{P+x}, s{S_K}, v{mn}")
        for e in range(16):
            K(f"v_exp_f32 v{EP+e}, v{EP+e}"); K(f"v_exp_f32 v{EN+e}, v{EN+e}")
        S = V_W
        for n, E in enumerate((EP, EN)):
            padd(S+4*n, E, E+2, pk); padd(S+4*n+2, E+12, E+14, pk)
        for n, E in enumerate((EP, EN)):
            padd(S+4*n, S+4*n, E+4, pk)
            K(f"v_cndmask_b32 v{S+4*n+2}, v{S+4*n+2}, 0, {UPM}"); K(f"v_cndmask_b32 v{S+4*n+3}, v{S+4*n+3}, 0, {UPM}")
        for n, E in enumerate((EP, EN)):
            padd(S+4*n, S+4*n, E+6, pk); padd(S+4*n+2, S+4*n+2, E+8, pk)
        for n, E in enumerate((EP, EN)): padd(S+4*n, S+4*n, E+10, pk)
        for n in range(2): padd(S+4*n, S+4*n, S+4*n+2, pk)
        K(f"v_add_f32 v{t0}, v{S}, v{S+1}"); K(f"v_add_f32 v{t2}, v{S+4}, v{S+5}")
        K(f"v_mov_b32 v{t1}, v{t0}"); K(f"v_mov_b32 v{t3}, v{t2}")
        K(f"v_permlane32_swap_b32 v{t0}, v{t1}"); K(f"v_permlane32_swap_b32 v{t2}, v{t3}")
        K(f"v_add_f32 v{t0}, v{t0}, v{t1}"); K(f"v_add_f32 v{t2}, v{t2}, v{t3}")
        K(f"v_rcp_f32 v{t0}, v{t0}"); K(f"v_rcp_f32 v{t2}, v{t2}")
        K(f"v_cndmask_b32 v{t1}, v{t0}, 0, {UPM}"); K(f"v_cndmask_b32 v{t3}, v{t2}, 0, {UPM}")
        for e in range(0, 16, 2):
            pscale(EP+e, t0 if e < 12 else t1, pk); pscale(EN+e, t2 if e < 12 else t3, pk)
        for e in range(8):
            K(f"v_cvt_pk_bf16_f32 v{V_PHI+e}, v{EP+2*e}, v{EP+2*e+1}"); K(f"v_cvt_pk_bf16_f32 v{V_PHI+8+e}, v{EN+2*e}, v{EN+2*e+1}")

    if aw2 == 2: pend.extend(g_w2(0) + g_w2(1))
    if qd >= 0: pend.extend(g_panel(0, L_Q))
    def hook(ks):
        if aw2 == 3:
            if ks == 1: K.wait_vm(tk_r[1]); arrive(C_B)
            if ks == pa:
                await_(C_P, 4)
                pend.extend(g_w2(2) + g_w2(3))
            drip(2 if len(pend) > 27 - ks else 1)
        elif aw2 == 2:
            drip(1)
            if ks == cb: K.wait_vm(tk_r[1]); arrive(C_B)
        elif ks >= qd and (ks - qd) % 3 == 0: drip(1)
        if ks == 25: arrive(C_1)
    gemm_qkv([(L_K, V_ACC, False), (L_V, V_ACC + 16, True)], hook)
    featmap()
    assert not pend
    for e in range(4): K(f"v_mov_b32 v{V_W+8+e}, v{V_PHI+e}")
    IDR[4] = V_W + 8
    stamp("kv_gemm")
    K(f"v_mov_b32 v{t4}, 0x3f803f80")
    for e in range(8): K(f"v_cvt_pk_bf16_f32 v{VB+e}, v{V_ACC+16+2*e}, v{V_ACC+16+2*e+1}")
    for e in range(8): K(f"v_cndmask_b32 v{VB+e}, v{VB+e}, v{t4}, {sp(S_L28)}")
    softmax(pkk)
    stamp("sm_k")
    if aw2 == 3: K.wait_vm(tk_r[3]); arrive(C_B2)
    TP, TN = V_P, V_P + 16
    mfma(TP, V_PHI, IDR[0], "0"); mfma(TP, V_PHI + 4, IDR[4])
    mfma(TN, V_PHI + 8, IDR[0], "0"); mfma(TN, V_PHI + 12, IDR[4])
    await_(C_1, 4)
    if f2: stamp("kv_a")
    K(f"s_lshl_b32 s{T}, s{S_A}, 13"); K(f"s_add_u32 s{T}, s{T}, {L_KVS}"); K(f"v_add_u32 v{t0}, s{T}, v{V_L16}")
    K(f"s_lshl_b32 s{T}, s{S_A}, 11"); K(f"s_add_u32 s{T}, s{T}, {L_KVS}"); K(f"v_add_u32 v{t1}, s{T}, v{V_L16}")
    for e in range(8): K(f"v_cvt_pk_bf16_f32 v{V_PHI+e}, v{TP+2*e}, v{TP+2*e+1}")
    mfma(V_ACC, V_PHI, VB, "0"); mfma(V_ACC, V_PHI + 4, VB + 4)
    for e in range(8): K(f"v_cvt_pk_bf16_f32 v{V_PHI+8+e}, v{TN+2*e}, v{TN+2*e+1}")
    mfma(V_ACC + 16, V_PHI + 8, VB, "0"); mfma(V_ACC + 16, V_PHI + 12, VB + 4)
    for b in range(8): K(f"ds_write_b128 v{t0}, {vr(V_ACC+4*b,4)} offset:{1024*b}")
    K.wait_vm(tkx[0])
    arrive(C_2)
    if f2: stamp("kv_b")
    await_(C_2, 4)
    if f2: stamp("kv_c")
    for hb in range(2):
        for g in range(4): K(f"ds_read_b128 {vr(V_P+16*hb+4*g,4)}, v{t1} offset:{8192*g + 1024*hb}")
    arrive(C_3)
    if f2: stamp("kv_d")
    for hb in range(2):
        K(f"s_waitcnt lgkmcnt({5 - 4*hb})")
        B = V_P + 16*hb
        for e in (0, 2): padd(B+e, B+e, B+4+e, pkq); padd(B+8+e, B+8+e, B+12+e, pkq)
        for e in (0, 2): padd(B+e, B+e, B+8+e, pkq)
        for e in range(x_at): K(f"buffer_atomic_add_f32 v{B+e}, v{A_L4}, {srd(R_WS)}, s{S_HB} offen offset:{1024*hb + 256*e}")
    stamp("kv_st")
    def hook(ks):
        if ks == 22: arrive(C_Q)
        if ks == kvf:
            K("s_waitcnt vmcnt(0)")
            signal(S_FL, 16)
            stamp("kv_pub")
    gemm_qkv([(L_Q, V_ACC, False)], hook)
    K(f"v_cvt_pk_bf16_f32 v{t0}, v{V_ACC+12}, v{V_ACC+12}")
    featmap()
    K(f"v_lshlrev_b32 v{t0}, 16, v{t0}")
    K(f"v_mul_f32 v{t0}, s{S_K}, v{t0}"); K(f"v_exp_f32 v{t0}, -v{t0}"); K(f"v_add_f32 v{t0}, 1.0, v{t0}"); K(f"v_rcp_f32 v{t0}, v{t0}")
    K(f"v_cvt_pk_bf16_f32 v{t0}, v{t0}, v{t0}"); K(f"v_lshlrev_b32 v{A_G}, 16, v{t0}")
    K("s_mov_b32 exec_lo, 0")
    K(f"buffer_store_dword v{A_G}, v{A_L4}, {srd(R_WS)}, s{S_XB} offen sc1")
    K("s_mov_b32 exec_lo, -1")
    stamp("q_gemm")
    softmax(pkq)
    stamp("sm_q")
    poll_issue(FL_K)
    poll_check(FL_K)
    stamp("kv_seen")
    for e in range(8): K(f"buffer_load_dword v{V_P+e}, v{A_L4}, {srd(R_WS)}, s{S_HB} offen offset:{256*e} sc1")
    F = V_W
    K(f"s_lshl_b32 s{T}, s{S_A}, 10"); K(f"v_add_u32 v{t1}, {L_KVF}, v{V_L16}"); K(f"v_add_u32 v{t0}, s{T}, v{t1}")
    K("s_waitcnt vmcnt(0)")
    stamp("kv_landed")
    for e in range(4): K(f"v_cvt_pk_bf16_f32 v{F+e}, v{V_P+2*e}, v{V_P+2*e+1}")
    K(f"ds_write_b128 v{t0}, {vr(F,4)}")
    arrive(C_4)
    await_(C_4, 4)
    if f2: stamp("o_a")
    for f in range(4): K(f"ds_read_b128 {vr(F+4*f,4)}, v{t1} offset:{1024*f}")
    N = V_ACC
    for f in range(4):
        K(f"s_waitcnt lgkmcnt({3-f})")
        mfma(N, F + 4*f, V_PHI + 4*f, "0" if f == 0 else None)
    K(f"v_cvt_pk_bf16_f32 v{t0}, v{N+12}, v{N+12}")
    for e in range(8): K(f"v_cvt_pk_bf16_f32 v{F+e}, v{N+2*e}, v{N+2*e+1}")
    K(f"v_lshlrev_b32 v{t0}, 16, v{t0}")
    K(f"v_add_f32 v{t0}, {f2u(1e-6):#x}, v{t0}")
    K(f"v_cvt_pk_bf16_f32 v{t0}, v{t0}, v{t0}"); K(f"v_lshlrev_b32 v{t0}, 16, v{t0}")
    K(f"v_rcp_f32 v{t0}, v{t0}")
    for e in range(4):
        K(f"v_lshlrev_b32 v{N+2*e}, 16, v{F+e}"); K(f"v_and_b32 v{N+2*e+1}, 0xffff0000, v{F+e}")
    K(f"v_mul_f32 v{t0}, v{t0}, v{A_G}"); K(f"v_mov_b32 v{t1}, v{t0}")
    for e in range(4, 8):
        K(f"v_lshlrev_b32 v{N+2*e}, 16, v{F+e}"); K(f"v_and_b32 v{N+2*e+1}, 0xffff0000, v{F+e}")
    K(f"v_permlane32_swap_b32 v{t1}, v{t0}")
    for e in range(0, 16, 2): pscale(N+e, t0, pkq)
    for e in range(8): K(f"v_cvt_pk_bf16_f32 v{F+e}, v{N+2*e}, v{N+2*e+1}")
    K(f"v_cndmask_b32 v{F+6}, v{F+6}, 0, {UPM}"); K(f"v_cndmask_b32 v{F+7}, v{F+7}, 0, {UPM}")
    K(f"buffer_store_dwordx4 {vr(F,4)}, v{V_L16}, {srd(R_WS)}, s{S_OB} offen sc1")
    K(f"buffer_store_dwordx4 {vr(F+4,4)}, v{V_L16}, {srd(R_WS)}, s{S_OB} offen offset:1024 sc1")
    if f2: stamp("o_b")
    K("s_waitcnt vmcnt(0)")
    signal(S_FL2, 7)
    stamp("o_pub")
    K(f"s_cmp_eq_u32 s{S_ACT}, 0")
    K.branch("s_cbranch_scc1 L_fin")
    K.branch("s_branch L_red")

    K.label("L_M")
    if prioM: K(f"s_setprio {prioM}")
    K("s_waitcnt lgkmcnt(0)")
    if stamps: K(f"v_writelane_b32 v{V_STAMP}, s{S_ST}, {STAMP_IDS.setdefault('start', len(STAMP_IDS))}")
    K(f"s_load_dword s{S_E}, {sp(P_WS)}, {WS_EPOCH}")
    mksrd(R_T, P_PHI, 16*1568)
    K(f"s_mul_i32 s{T}, s{S_J}, 1568"); K(f"s_mul_i32 s{T+1}, s{S_A}, 400"); K(f"s_add_u32 s{T}, s{T}, s{T+1}"); K(f"s_add_u32 m0, s{T+1}, {L_PHI}")
    K("s_mov_b64 exec, 0x1ffffff")
    K(f"buffer_load_dwordx4 v{V_L16}, {srd(R_T)}, s{T} offen lds")
    K("s_mov_b64 exec, -1")
    K(f"v_mov_b32 v{V_CNT}, {L_CNT}")
    K(f"v_mov_b32 v{t0}, 0"); K(f"v_lshl_add_u32 v{t1}, v{V_LANE}, 2, v{V_CNT}"); K(f"ds_write_b32 v{t1}, v{t0}")
    K(f"s_cmp_lt_u32 s{S_J}, 14")
    K.branch("s_cbranch_scc1 L_mset")
    vm_m = K.vm
    RB = 96
    K0 = S_XB
    mksrd(R_T, P_WQKV, 448*2688)
    K(f"s_lshl_b32 s{S_FL}, s{S_MT}, 1"); K(f"s_add_u32 s{S_FL}, s{S_FL}, s{S_J}"); K(f"s_sub_u32 s{S_FL}, s{S_FL}, 14")
    K(f"s_mul_i32 s{K0}, s{S_FL}, 14"); K(f"s_lshl_b32 s{T+5}, s{S_A}, 1"); K(f"s_add_u32 s{K0}, s{K0}, s{T+5}")
    K(f"v_lshrrev_b32 v{t0}, 3, v{V_LANE}"); K(f"v_bfe_u32 v{t1}, v{V_LANE}, 2, 1"); K(f"v_and_b32 v{t2}, 3, v{V_LANE}")
    K(f"v_mul_u32_u24 v{t3}, 56, v{t0}"); K(f"v_mul_u32_u24 v{t4}, 2688, v{t1}"); K(f"v_add_u32 v{t3}, v{t3}, v{t4}")
    K(f"v_lshl_add_u32 v{t3}, v{t2}, 4, v{t3}")
    K(f"s_mul_i32 s{T+5}, s{K0}, 2688"); K(f"v_lshlrev_b32 v{t4}, 1, v{t1}"); K(f"s_lshl_b32 s{T+6}, s{K0}, 1")
    tkl = {}
    if fine: stamp("rp_0")
    K(f"s_add_u32 s{T+7}, s{T+5}, {8*2688}"); K(f"s_cmp_eq_u32 s{S_A}, 3"); K(f"s_cselect_b32 s{T+7}, 0x7000000, s{T+7}"); K(f"s_cselect_b32 s{S_CH}, s{T+7}, 512")
    def rp_load(q): tkl[q] = K(f"buffer_load_dwordx4 {vr(RB+4*q,4)}, v{t3}, {srd(R_T)}, s{T+5 if q < 6 else T+7} offen offset:{448*(q%6)}")
    for q in (2, 3, 4, 5, 8, 9, 10, 11): rp_load(q)
    mksrd(R_X, P_GATE, 896)
    K(f"buffer_load_ushort v{RB+48}, v{t4}, {srd(R_X)}, s{T+6} offen"); K(f"buffer_load_ushort v{RB+49}, v{t4}, {srd(R_X)}, s{T+6} offen offset:16")
    for q in (0, 1, 6, 7): rp_load(q)
    mksrd(R_WS, P_WS, WS_SIZE)
    K(f"s_mov_b32 s{T+6}, 86016"); K(f"v_mul_lo_u32 v{RB+50}, v{t0}, s{T+6}"); K(f"v_and_b32 v{t1}, 7, v{V_LANE}")
    K(f"v_lshl_add_u32 v{RB+50}, v{t1}, 4, v{RB+50}")
    K(f"v_cmp_eq_u32 vcc, 3, v{t2}")
    K(f"s_lshl_b32 s{K0}, s{K0}, 6"); K(f"s_add_u32 s{K0}, s{K0}, {WS_WQ}")
    def rp_store(q):
        n, p, hg = q // 6, (q % 6) // 2, q % 2; b = RB + 4*q
        K.wait_vm(tkl[q])
        K(f"v_cndmask_b32 v{b+2}, v{b+2}, v{RB+48+n}, vcc" if p == 0 else f"v_cndmask_b32 v{b+2}, v{b+2}, 0, vcc")
        K(f"v_cndmask_b32 v{b+3}, v{b+3}, 0, vcc")
        K(f"s_add_u32 s{T+6}, s{K0}, {p*28672 + hg*8*86016}")
        if n: K(f"s_add_u32 s{T+6}, s{T+6}, s{S_CH}")
        return K(f"buffer_store_dwordx4 {vr(b,4)}, v{RB+50}, {srd(R_WS)}, s{T+6} offen sc1")
    for e in range(4): K(f"v_mov_b32 v{RB+52+e}, 0")
    K(f"s_lshl_b32 s{T+5}, s{S_FL}, 2"); K(f"s_add_u32 s{T+5}, s{T+5}, s{S_A}"); K(f"s_lshl_b32 s{T+7}, s{T+5}, 12"); K(f"s_lshl_b32 s{T+5}, s{T+5}, 10")
    K(f"s_add_u32 s{T+5}, s{T+5}, {WS_KVP}"); K(f"s_add_u32 s{T+7}, s{T+7}, {WS_CN}"); K(f"v_lshlrev_b32 v{t0}, 7, v{V_LANE}")
    K(f"buffer_store_dwordx4 {vr(RB+52,4)}, v{V_L16}, {srd(R_WS)}, s{T+5} offen sc1")
    K("s_mov_b32 exec_hi, 0")
    K(f"buffer_store_dword v{RB+52}, v{t0}, {srd(R_WS)}, s{T+7} offen sc1")
    K("s_mov_b32 exec_hi, -1")
    K(f"s_lshl_b32 s{S_FL}, s{S_FL}, 7"); K(f"s_add_u32 s{S_FL}, s{S_FL}, {WS_RPF}"); K(f"s_add_u32 s{S_FL2}, s{S_FL}, 4096")
    K(f"s_cmp_eq_u32 s{S_A}, 3"); K(f"s_cselect_b32 s{S_FL}, s{S_FL}, 0x7000000"); K(f"s_cselect_b32 s{S_FL2}, s{S_FL2}, 0x7000000")
    K("s_waitcnt lgkmcnt(0)")
    settag()
    for q in (2, 3, 4, 5, 8, 9, 10, 11): tk1 = rp_store(q)
    for q in (0, 1, 6, 7): rp_store(q)
    if fine: stamp("rp_st")
    K("s_barrier")
    K.wait_vm(tk1)
    K("s_barrier")
    flag(S_FL)
    stamp("rp_pub")
    K("s_waitcnt vmcnt(1)")
    arrive(C_5); await_(C_5, 4)
    flag(S_FL2)
    arrive(C_E); arrive(C_G)
    K("s_setprio 0")
    K.vm = vm_m
    K.label("L_mset")
    if allpf:
        mksrd(R_X, P_X, 2048*896); mksrd(R_W1, P_W1, 448*3584)
        K(f"s_lshl_b32 s{T+3}, s2, 2"); K(f"s_add_u32 s{T+3}, s{T+3}, s{S_A}")
        K(f"s_mul_i32 s{T}, s{T+3}, {14*128}"); K(f"s_mul_i32 s{T+1}, s{T+3}, {13*128}"); K(f"v_lshlrev_b32 v{t0}, 7, v{V_LANE}")
        K("s_mov_b64 exec, 0x3fff")
        if allpf & 1: K(f"buffer_load_dword v{V_POLL}, v{t0}, {srd(R_X)}, s{T} offen")
        K("s_mov_b64 exec, 0x1fff")
        if allpf & 2: K(f"buffer_load_dword v{V_POLL}, v{t0}, {srd(R_W1)}, s{T+1} offen")
        K("s_mov_b64 exec, -1")
    if spf:
        K(f"s_lshl_b32 s{T+3}, s2, 2"); K(f"s_add_u32 s{T+3}, s{T+3}, s{S_A}")
        K(f"s_mul_i32 s{T}, s{T+3}, {12*128 + 32}"); K(f"s_mul_i32 s{T+1}, s{T+3}, {3*128 + 8}")
        for q in range(13): K(f"s_load_dword s{S_CNT}, {sp(P_W2)}, s{T} offset:{min(128*q, 12*128 + 28)}")
        K("s_waitcnt lgkmcnt(10)")
        for q in range(4): K(f"s_load_dword s{S_CNT}, {sp(P_WO)}, s{T+1} offset:{min(128*q, 3*128 + 4)}")
    mksrd(R_WS, P_WS, WS_SIZE); mksrd(R_WO, P_WO, 448*896); mksrd(R_OUT, P_OUT, 2048*896)
    p2setup()
    K(f"s_mul_i32 s{T}, s{S_ROW}, {112*1024}"); K(f"s_add_u32 s{T}, s{T}, {0x7000000 if x_noh else WS_H}")
    K(f"s_lshl_b32 s{S_HB}, s{T+4}, 12"); K(f"s_add_u32 s{S_HB}, s{S_HB}, s{T}")
    K(f"s_lshl_b32 s{S_HB3}, s{T+2}, 12"); K(f"s_add_u32 s{S_HB3}, s{S_HB3}, s{T}")
    BF1, BF2, BONE = M_AR + 80, 128, 124
    for r in list(range(BF1, BF1 + 16)) + list(range(BONE, BF2 + 8)): K(f"v_mov_b32 v{r}, 0")
    K(f"v_lshlrev_b32 v{t0}, 1, v{V_LANE}")
    K("s_mov_b32 exec_hi, 0")
    K(f"v_mov_b32 v{BONE}, 0x3f80")
    mksrd(R_T, P_B1, 3584)
    for p in range(4): K(f"buffer_load_ushort v{BF1+4*p}, v{t0}, {srd(R_T)}, s{S_W1B} offen offset:{64*p}")
    mksrd(R_T, P_B2, 896)
    K(f"s_lshl_b32 s{T}, s{S_CT}, 7"); K(f"s_lshl_b32 s{T+1}, s{S_A}, 10"); K(f"s_add_u32 s{T}, s{T}, s{T+1}")
    for p in range(2): tk_b2 = K(f"buffer_load_ushort v{BF2+4*p}, v{t0}, {srd(R_T)}, s{T} offen offset:{64*p}")
    K("s_mov_b32 exec_hi, -1")
    K(f"s_lshl_b32 s{T}, s{S_ROW}, 1"); K(f"s_add_u32 s{T}, s{T}, s{S_A}")
    K(f"s_lshl_b32 s{T+1}, s{S_CT}, 7")
    K(f"s_lshl_b32 s{S_PE}, s{T}, 11"); K(f"s_add_u32 s{S_PE}, s{S_PE}, s{T+1}"); K(f"s_add_u32 s{S_PE}, s{S_PE}, {WS_HF}")
    K(f"s_lshl_b32 s{S_PO}, s{T}, 10"); K(f"s_add_u32 s{S_PO}, s{S_PO}, s{T+1}"); K(f"s_add_u32 s{S_PO}, s{S_PO}, {WS_OF}")
    K(f"s_lshl_b32 s{T}, s{S_ROW}, 4"); K(f"s_lshl_b32 s{T+1}, s{S_A}, 2"); K(f"s_add_u32 s{S_OB}, s{T+1}, s{T}")
    FL_E, FL_L, FL_O = (S_PE, 0, 6), (S_PE, 1024, 8), (S_PO, 0, 8)
    K(f"s_lshl_b32 s{T}, s{S_MT}, 2"); K(f"s_add_u32 s{T}, s{T}, s{S_A}"); K(f"s_mul_i32 s{S_RS}, s{T}, 112")
    K(f"s_lshl_b32 s{T+1}, s{S_J}, 3"); K(f"s_add_u32 s{S_RS}, s{S_RS}, s{T+1}"); K(f"s_lshl_b32 s{S_RS}, s{S_RS}, 10"); K(f"s_add_u32 s{S_RS}, s{S_RS}, {WS_H}")
    K(f"s_lshr_b32 s{T}, s{T}, 1"); K(f"s_lshl_b32 s{T}, s{T}, 13"); K(f"s_add_u32 s{T}, s{T}, {WS_HF}")
    K(f"s_mul_i32 s{T+1}, s{S_J}, {74*8}"); K(f"s_and_b32 s{S_FL}, s{T+1}, 0xf800"); K(f"s_add_u32 s{S_FL}, s{S_FL}, s{T}")
    K(f"s_add_u32 s{T+1}, s{T+1}, {37*8}"); K(f"s_and_b32 s{S_FL2}, s{T+1}, 0xf800"); K(f"s_add_u32 s{S_FL2}, s{S_FL2}, s{T}"); K(f"s_add_u32 s{S_FL2}, s{S_FL2}, 1024")
    K(f"s_lshr_b32 s{T+1}, {(1 << 3) | (1 << 10)}, s{S_J}"); K(f"s_and_b32 s{T+1}, s{T+1}, 1"); K(f"s_lshl_b32 s{T+1}, s{T+1}, 10"); K(f"s_add_u32 s{S_FL}, s{S_FL}, s{T+1}")
    K(f"s_cmp_ge_u32 s{S_J}, 14"); K(f"s_cselect_b32 s{S_FL2}, 0x7000000, s{S_FL2}")
    K(f"v_add_u32 v{M_L16B}, {112*1024}, v{V_L16}")
    MP = M_AR + 40
    K(f"v_lshlrev_b32 v{MP}, 7, v{V_LANE}")
    K(f"s_lshl_b32 s{T+3}, s2, 2"); K(f"s_add_u32 s{T+3}, s{T+3}, s{S_A}")
    K(f"s_mul_i32 s{S_XB}, s{T+3}, {13*128}"); K(f"s_lshl_b32 s{S_M0}, s{T+3}, 9")
    def mall_pf():
        K("s_mov_b64 exec, 0x1fff")
        K(f"buffer_load_dword v{V_POLL}, v{MP}, {srd(R_W2)}, s{S_XB} offen")
        K("s_mov_b64 exec, 15")
        K(f"buffer_load_dword v{V_POLL}, v{MP}, {srd(R_WO)}, s{S_M0} offen")
        K("s_mov_b64 exec, -1")
    if mpf == 1: mall_pf()
    if tlb:
        l = newl("tlb")
        K(f"s_cmp_lg_u32 s{S_A}, 1")
        K.branch(f"s_cbranch_scc1 {l}")
        K(f"v_lshlrev_b32 v{t0}, {tlb}, v{V_LANE}")
        K(f"buffer_load_dword v{V_POLL}, v{t0}, {srd(R_WS)}, 0 offen offset:2048"); K.vm -= 1
        K(f"buffer_load_dword v{V_POLL}, v{t0}, {srd(R_OUT)}, 0 offen"); K.vm -= 1
        K.label(l)
    xfrag_addr(M_AX)
    lanepart()
    K(f"v_lshl_add_u32 v{t0}, v{t2}, 3, v{t3}"); K(f"v_lshl_add_u32 v{t0}, v{t0}, 8, v{t4}"); K(f"v_lshl_add_u32 v{t0}, v{t3}, 6, v{t0}")
    K(f"v_add_u32 v{M_AW}, 16384, v{t0}")
    for p in range(1, 4): K(f"v_xor_b32 v{M_AW+p}, {64*p}, v{M_AW}")
    AB = M_AB
    K(f"v_lshl_add_u32 v{t0}, v{t2}, 2, v{t3}"); K(f"v_lshl_add_u32 v{t0}, v{t0}, 7, v{t4}"); K(f"v_bfe_u32 v{t1}, v{V_LANE}, 3, 1"); K(f"v_lshl_add_u32 v{t0}, v{t1}, 6, v{t0}")
    K(f"v_add_u32 v{AB}, s{S_M02}, v{t0}"); K(f"v_xor_b32 v{AB+1}, 64, v{AB}")
    K(f"v_add_u32 v{AB+2}, 65536, v{AB}"); K(f"v_add_u32 v{AB+3}, 65536, v{AB+1}")
    K(f"v_lshlrev_b32 v{t0}, 9, v{t2}"); K(f"v_sub_u32 v22, v{AB+2}, v{t0}"); K(f"v_sub_u32 v23, v{AB+3}, v{t0}")
    box = {}
    K(f"s_cmp_ge_u32 s{S_J}, 14")
    K.branch("s_cbranch_scc1 L_nof")
    vm_nof = K.vm
    K("s_waitcnt lgkmcnt(0)")
    settag()
    if fine: stamp("M_rdy")
    WR, XR = M_BH, M_BH + 4*G
    tk = {}
    def rdg(g):
        ks, p = g // 4, g % 4
        t, ksl = ks // 4, ks % 4
        uo = (t % 2) * 32768
        if p == 0 and ksl == 0:
            shift(range(M_AX, M_AX + 8), SH[t])
            if t == 3: K.wait_vm(tk_b2)
            if t < 6: K("s_barrier")
            else:
                l = newl("s6")
                K.wait_lg(box['cs'])
                K(f"v_cmp_ne_u32 vcc, 4, v{t4}")
                K(f"s_cbranch_vccz {l}")
                lgs = K.lg
                await_(C_S, 4)
                K.lg = lgs
                K.raw(f"{l}:")
        if p == 0: K(f"ds_read_b128 {vr(XR + 4*(ks % 3), 4)}, v{M_AX+ksl} offset:{uo}")
        for r in range(2):
            tk[g] = K(f"ds_read_b64_tr_b16 {vr(WR + 4*(g % G) + 2*r, 2)}, v{M_AW+p} offset:{uo + (16*ksl + 4*r)*256}")
    for g in range(G): rdg(g)
    for g in range(112):
        K.wait_lg(tk[g])
        mfma(M_ACC + 16*(g % 4), WR + 4*(g % G), XR + 4*((g // 4) % 3), "0" if g < 4 else None)
        if 52 <= g < 56: mfma(M_ACC + 16*(g % 4), BF1 + 4*(g % 4), BONE)
        if g + G < 112: rdg(g + G)
        if g + G == 112: arrive(C_E)
        if g + G + 3 == 96: box['cs'] = K(f"ds_read_b32 v{t4}, v{V_CNT} offset:{C_S}")
        if mpf > 1 and g == mpf: mall_pf()
    stamp("ffn1")
    K(f"s_setprio {prioG}")
    tk = {}
    def rdb(ks, part=3):
        r, ksl = ks // 4, ks % 4
        b = M_BH + 8 * (ks % 8)
        u = RUNIT[r]
        if ksl == 0 and r >= (4 if aw2 == 3 else 2) and part & 1: K.wait_vm(tk_r[r])
        for pp in range(2):
            for h in range(2):
                if not part & (1 << pp): continue
                if r < 7:
                    tk[ks] = K(f"ds_read_b64_tr_b16 {vr(b + 4*pp + 2*h, 2)}, v{AB + pp + (2 if u >= 2 else 0)} offset:{(u%2)*32768 + (16*ksl + 8*h)*128}")
                else:
                    hh, sx = (ks % 4) // 2, ks % 2
                    tk[ks] = K(f"ds_read_b64_tr_b16 {vr(b + 4*pp + 2*h, 2)}, v{(22 if (sx == 1 and h == 1) else AB + 2) + pp} offset:{(u%2)*32768 + (28*hh + 16*sx + 8*h)*128}")
    def pull():
        await_(C_B, 4)
        for e in range(12): K(f"v_mov_b32 v{BF1+e}, v{BONE+e}")
        for ks in range(8):
            if ks >= 3: K.wait_lg(tk[ks - 3])
            rdb(ks)
        arrive(C_P)
    cc = -2.0 * 0.7978845608028654 * 1.4426950408889634
    K(f"v_mov_b32 v{t0}, {f2u(cc):#x}"); K(f"v_mov_b32 v{t1}, 1.0"); K(f"s_mov_b32 s{S_K}, {f2u(cc*0.044715):#x}"); K(f"s_mov_b32 s{S_K+1}, {f2u(cc*0.044715):#x}")
    tkh = {}
    for g in range(8):
        a = M_ACC + 8*g; tt = M_AR + 8*(g % 2); o = M_AR + 48 + 4*g
        if g < pkg:
            for e in range(0, 8, 2): K(f"v_pk_mul_f32 {vr(tt+e,2)}, {vr(a+e,2)}, {vr(a+e,2)}")
            for e in range(0, 8, 2): K(f"v_pk_fma_f32 {vr(tt+e,2)}, {vr(tt+e,2)}, {sp(S_K)}, {vr(t0,2)} op_sel_hi:[1,1,0]")
            for e in range(0, 8, 2): K(f"v_pk_mul_f32 {vr(tt+e,2)}, {vr(a+e,2)}, {vr(tt+e,2)}")
            for e in range(8): K(f"v_exp_f32 v{tt+e}, v{tt+e}")
            for e in range(0, 8, 2): K(f"v_pk_add_f32 {vr(tt+e,2)}, {vr(tt+e,2)}, {vr(t0,2)} op_sel:[0,1] op_sel_hi:[1,1]")
            for e in range(8): K(f"v_rcp_f32 v{tt+e}, v{tt+e}")
            for e in range(0, 8, 2): K(f"v_pk_mul_f32 {vr(tt+e,2)}, {vr(a+e,2)}, {vr(tt+e,2)}")
        else:
            for e in range(8): K(f"v_mul_f32 v{tt+e}, v{a+e}, v{a+e}")
            for e in range(8): K(f"v_fma_f32 v{tt+e}, v{tt+e}, s{S_K}, v{t0}")
            for e in range(8): K(f"v_mul_f32 v{tt+e}, v{a+e}, v{tt+e}")
            for e in range(8): K(f"v_exp_f32 v{tt+e}, v{tt+e}")
            for e in range(8): K(f"v_add_f32 v{tt+e}, 1.0, v{tt+e}")
            for e in range(8): K(f"v_rcp_f32 v{tt+e}, v{tt+e}")
            for e in range(8): K(f"v_mul_f32 v{tt+e}, v{a+e}, v{tt+e}")
        for e in range(4): K(f"v_cvt_pk_bf16_f32 v{o+e}, v{tt+2*e}, v{tt+2*e+1}")
        if g == gw: arrive(C_G)
        if aw2 == 3 and g == gp: pull()
        if (g + 1) % sb == 0:
            K("s_setprio 3")
            for x in range(g + 1 - sb, g + 1):
                if x == 4: K(f"s_add_u32 s{S_RS}, s{S_RS}, 4096")
                tkh[x] = K(f"buffer_store_dwordx4 {vr(M_AR + 48 + 4*x,4)}, v{V_L16}, {srd(R_WS)}, s{S_RS} offen offset:{1024*(x%4)} sc1")
            if g < 7: K(f"s_setprio {prioG}")
    stamp("gelu_v")
    await_(C_0, 4)
    K.wait_vm(tkh[3]); signal(S_FL, 7)
    stamp("gelu")
    K(f"s_cmp_eq_u32 s{S_ACT}, 1")
    K.branch("s_cbranch_scc1 L_p2")
    K("s_waitcnt vmcnt(0)")
    signal(S_FL2, 7)
    def l2warm(first, n):
        K(f"s_lshr_b32 s{T}, s2, 3"); K(f"s_and_b32 s{T}, s{T}, 3"); K(f"s_lshl_b32 s{T}, s{T}, 2"); K(f"s_add_u32 s{T}, s{T}, s{S_A}"); K(f"s_lshl_b32 s{T}, s{T}, 13")
        K(f"v_lshlrev_b32 v{t0}, 7, v{V_LANE}")
        for k in range(n):
            K(f"s_add_u32 s{T+1}, s{T}, {(first + 1024*k)*128}")
            K(f"buffer_load_dword v{t1}, v{t0}, {srd(R_W2)}, s{T+1} offen")
    if l2w & 1:
        l2warm(0, 13)
        for k in range(4):
            K(f"s_add_u32 s{T+1}, s{T}, {1024*k*128}")
            K(f"buffer_load_dword v{t1}, v{t0}, {srd(R_WO)}, s{T+1} offen")
    K.branch("s_branch L_fin")
    K.label("L_nof")
    K.vm = vm_nof
    if mpf == -2: await_(C_E, 8, 2)
    if mpf == -1: await_(C_0, 4, 2)
    if mpf < 0:
        K(f"s_lshl_b32 s{T+3}, s2, 2"); K(f"s_add_u32 s{T+3}, s{T+3}, s{S_A}")
        K(f"s_mul_i32 s{T}, s{T+3}, {98*128}"); K(f"s_mul_i32 s{T+1}, s{T+3}, {25*128}")
        K(f"buffer_load_dword v{V_POLL}, v{MP}, {srd(R_W2)}, s{T} offen")
        K(f"s_add_u32 s{T}, s{T}, {64*128}")
        K("s_mov_b32 exec_hi, 3")
        K(f"buffer_load_dword v{V_POLL}, v{MP}, {srd(R_W2)}, s{T} offen")
        K("s_mov_b64 exec, 0x1ffffff")
        K(f"buffer_load_dword v{V_POLL}, v{MP}, {srd(R_WO)}, s{T+1} offen")
        K("s_mov_b64 exec, -1")
    await_(C_0, 4, 2)
    K("s_waitcnt lgkmcnt(0)")
    settag()
    if mpf > 1: mall_pf()
    if l2w & 2: l2warm(0, 13)
    K("s_waitcnt vmcnt(0)")
    if aw2 == 3: pull()

    K.label("L_p2")
    tk_h = K.vm
    def g_wo(hf):
        def step(q):
            def f():
                if q == 0:
                    K(f"s_mul_i32 s{TD}, s{S_A}, {112*896}"); K(f"s_lshl_b32 s{TD+1}, s{S_CT}, 7"); K(f"s_add_u32 s{TD}, s{TD}, s{TD+1}")
                    if hf: K(f"s_add_u32 s{TD}, s{TD}, {56*896}")
                    K(f"s_add_u32 m0, s{S_M02}, {U[RUNIT[7+hf]]}")
                if q == 4: K(f"s_add_u32 s{TD}, s{TD}, {32*896}"); K(f"s_add_u32 m0, s{S_M02}, {U[RUNIT[7+hf]] + 4096}")
                x = K(f"buffer_load_dwordx4 v{V_D2+q%4}, {srd(R_WO)}, s{TD} offen offset:{1024*(q%4)} lds")
                if q == 6: tk_r[7+hf] = x
            return f
        return [step(q) for q in range(7)]
    tk_a = {}
    def lda(ks, part=3):
        b = M_AR + 8 * (ks % NA); r = ks // 4
        if part & 1:
            if ks % 4 == 0: K(f"s_add_u32 s{T+7}, s{S_HB3 if r == 3 else S_HB}, {0 if r == 3 else (2*r % 7)*4096}")
            K(f"buffer_load_dwordx4 {vr(b,4)}, v{V_L16}, {srd(R_WS)}, s{T+7} offen offset:{1024*(ks%4)} sc1")
        if part & 2: tk_a[ks] = K(f"buffer_load_dwordx4 {vr(b+4,4)}, v{M_L16B}, {srd(R_WS)}, s{T+7} offen offset:{1024*(ks%4)} sc1")
    for t2_ in range(2):
        for pp in range(2): mfma(M_ACC + 32*t2_ + 16*pp, (BF1 + 4 if aw2 == 3 else BF2) + 4*pp, BF1 if aw2 == 3 else BONE, "0")
    g0, g1, g2, g3 = g_w2(0), g_w2(1), g_w2(2), g_w2(3)
    if aw2 == 3:
        K.wait_vm(tk_h - 1)
        signal(S_FL2, 7)
        K(f"s_setprio 0")
        stamp("h_pub1")
        poll_issue(FL_E)
        poll_check(FL_E)
        stamp("hE_seen")
        for ks in range(pre): lda(ks)
        g3 = []
    elif aw2:
        K.wait_vm(tk_h - 1)
        signal(S_FL2, 7)
        K(f"s_setprio 0")
        stamp("h_pub1")
        if hfirst:
            poll_issue(FL_E)
            poll_check(FL_E)
            stamp("hE_seen")
            for ks in range(pre): lda(ks)
        await_(C_B, 4)
        stamp("B_seen")
        for ks in range(3): rdb(ks)
        K.wait_lg(tk[0]); rdb(3)
        K.wait_lg(tk[3])
        for q in range(8):
            g2[q]()
            if q < 4:
                if q == 3: K.wait_lg(tk[4])
                rdb(4 + q)
        K("s_waitcnt lgkmcnt(0)")
        if not hfirst:
            poll_issue(FL_E)
            run(g3); g3 = []
            poll_check(FL_E)
            stamp("hE_seen")
            for ks in range(pre): lda(ks)
    else:
        await_(C_E, 8)
        for q in range(8):
            g0[q]()
        K.wait_vm(tk_h - 1)
        signal(S_FL2, 7)
        K(f"s_setprio 0")
        stamp("h_pub1")
        poll_issue(FL_E)
        run(g1)
        poll_check(FL_E)
        stamp("hE_seen")
        for ks in range(4): lda(ks)
        K.wait_vm(tk_r[0])
        for ks in range(4):
            if ks == 3: K.wait_lg(tk[0])
            rdb(ks); lda(4 + ks)
        K.wait_vm(tk_r[1]); K.wait_lg(tk[3])
        for q in range(8):
            g2[q]()
            if q < 4:
                if q == 3: K.wait_lg(tk[4])
                rdb(4 + q)
        K("s_waitcnt lgkmcnt(0)")
    stamp("p2_prep")
    poll_issue(FL_L)
    for ks in range(pre if aw2 else 8, 12): pend.extend([lambda ks=ks: lda(ks, 1), lambda ks=ks: lda(ks, 2)])
    pend.extend(g3)
    def step(ks, side):
        K.wait_vm(tk_a[ks])
        if ks >= 8: K.wait_lg(tk[ks])
        a = M_AR + 8 * (ks % NA); b = M_BH + 8 * (ks % 8)
        n = 0
        for t2_ in range(2):
            for pp in range(2):
                if not (x_nomf and ks < 28): mfma(M_ACC + 32*t2_ + 16*pp, b + 4*pp, a + 4*t2_)
                side(n); n += 1
    nxt = [12]
    def hstep(ks):
        def side(n):
            if n < 2 and ks + 3 >= 8: rdb(ks + 3, 1 << n)
            drip(2 if len(pend) > 8 else 1)
        step(ks, side)
    def ldo(ks, part):
        b = M_AR + 8 * (ks % NA)
        if part == 0:
            K(f"buffer_load_dword v{t2}, v{t3}, {srd(R_WS)}, s{T+3} offen sc1")
            box['g'] = K(f"buffer_load_dword v{t3}, v{t3}, {srd(R_WS)}, s{T+3} offen offset:2048 sc1")
        if part == 1:
            if ks == 32: K(f"s_add_u32 s{T+4}, s{T+4}, 4096")
            K(f"buffer_load_dwordx4 {vr(b,4)}, v{V_L16}, {srd(R_WS)}, s{T+4} offen offset:{1024*(ks%4)} sc1")
        if part == 2: tk_a[ks] = K(f"buffer_load_dwordx4 {vr(b+4,4)}, v{M_L16B}, {srd(R_WS)}, s{T+4} offen offset:{1024*(ks%4)} sc1")
    olist = lambda: [lambda: ldo(0, 0)] + [lambda k=k, p=p: ldo(k, p) for k in range(28, 36) for p in (1, 2)]
    for ks in range(oc + 1):
        hstep(ks)
        if ks == c0:
            poll_check(FL_L)
            stamp("hL_seen")
        if ks == 4 and aw2 == 3: await_(C_B2, 4)
        if ks == c3:
            await_(C_3, 4)
            pend.extend(g_w2(4))
        while ks >= c0 and nxt[0] <= ks + NA and nxt[0] < 28:
            pend.extend([lambda k=nxt[0]: lda(k, 1), lambda k=nxt[0]: lda(k, 2)]); nxt[0] += 1
        if ks == 11: pend.extend(g_w2(5))
        if ks == 15: pend.extend(g_w2(6))
        if ks == cq:
            await_(C_Q, 4)
            pend.extend(g_wo(0))
        if ks == 19: pend.extend(g_wo(1))
        if ks in (3, 11, 19): stamp(f"p2_k{ks}")
        if ks == oc - 2: poll_issue(FL_O)
    assert not pend and oc >= 22
    K(f"v_and_b32 v{t3}, 31, v{V_LANE}"); K(f"v_lshlrev_b32 v{t3}, 2, v{t3}")
    K(f"s_lshl_b32 s{T+3}, s{S_OB}, 7"); K(f"s_add_u32 s{T+3}, s{T+3}, {WS_G}")
    K(f"s_lshl_b32 s{T+4}, s{S_OB}, 11"); K(f"s_add_u32 s{T+4}, s{T+4}, {WS_O}")
    K(f"v_add_u32 v{M_L16B}, 32768, v{V_L16}")
    K(f"v_add_u32 v{V_D2}, s{S_M02}, v{V_L16}")
    for q in range(1, 4): K(f"v_xor_b32 v{V_D2+q}, {64*q}, v{V_D2}")
    K("s_waitcnt lgkmcnt(0)")
    K(f"s_cmp_lg_u32 s{PD[0]}, {FL_O[2]}")
    K.branch("s_cbranch_scc1 L_olate")
    sv, sl = K.vm, K.lg
    stamp("o_early")
    pend.extend(olist())
    for ks in range(oc + 1, 28): hstep(ks)
    drip(99)
    ev, el = K.vm, K.lg
    K.branch("s_branch L_ojoin")
    K.label("L_olate")
    K.vm, K.lg = sv, sl
    for ks in range(oc + 1, 28): hstep(ks)
    poll_issue(FL_O)
    poll_check(FL_O)
    stamp("o_late")
    run(olist())
    assert (ev, el) == (K.vm, K.lg)
    K.label("L_ojoin")
    stamp("p2_h_done")
    tk_g = box['g']
    K.wait_vm(tk_g)
    if f2: stamp("t_g")
    K(f"v_sub_f32 v{t4}, 1.0, v{t2}"); K(f"v_sub_f32 v{t5}, 1.0, v{t3}")
    K(f"v_cvt_pk_bf16_f32 v{t4}, v{t4}, v{t5}"); K(f"v_and_b32 v{t5}, 0xffff0000, v{t4}"); K(f"v_lshlrev_b32 v{t4}, 16, v{t4}")
    for e in range(0, 64, 2): pscale(M_ACC+e, t4 if e < 32 else t5, True)
    for ks in range(28, 36):
        def side(n):
            if n < 2 and ks + 3 < 36: rdb(ks + 3, 1 << n)
        step(ks, side)
    if f2: stamp("t_mf")
    for t2_ in range(2):
        for b in range(8): K(f"ds_write_b128 v{V_D2 + b%4}, {vr(M_ACC+32*t2_+4*b,4)} offset:{32768*t2_ + 1024*b}")
    stamp("p2_done")

    K.label("L_red")
    K(f"v_and_b32 v{t1}, 7, v{V_LANE}"); K(f"v_lshrrev_b32 v{t3}, 3, v{V_LANE}")
    K(f"s_lshl_b32 s{T+1}, s{S_A}, 3"); K(f"v_add_u32 v{t0}, s{T+1}, v{t3}")
    K(f"v_and_b32 v{t2}, 3, v{V_LANE}"); K(f"v_lshlrev_b32 v{t2}, 2, v{t2}"); K(f"v_xor_b32 v{t0}, v{t0}, v{t2}")
    K(f"v_lshlrev_b32 v{t0}, 4, v{t0}"); K(f"v_lshl_add_u32 v{t0}, v{t1}, 10, v{t0}")
    K(f"s_lshr_b32 s{T+2}, s{S_W}, 2"); K(f"s_lshl_b32 s{T}, s{T+2}, 15"); K(f"v_add_u32 v{t0}, s{T}, v{t0}")
    K(f"v_mul_u32_u24 v{t3}, 896, v{t3}"); K(f"v_lshl_add_u32 v{t3}, v{t1}, 4, v{t3}")
    K(f"s_lshl_b32 s{T}, s{S_ROW}, 2"); K(f"s_add_u32 s{T}, s{T}, s{S_W}"); K(f"s_mul_i32 s{T}, s{T}, {8*896}"); K(f"s_lshl_b32 s{T+1}, s{S_CT}, 7"); K(f"s_add_u32 s{T+5}, s{T}, s{T+1}")
    K("s_waitcnt lgkmcnt(0)")
    K("s_barrier")
    if f2: stamp("t_bar")
    R = 160
    for q in range(4):
        K(f"ds_read_b128 {vr(R+8*q,4)}, v{t0} offset:{8192*q}")
        K(f"ds_read_b128 {vr(R+8*q+4,4)}, v{t0} offset:{8192*q + 512}")
    K("s_waitcnt lgkmcnt(4)")
    for e in range(0, 8, 2): padd(R+e, R+e, R+8+e, True)
    K("s_waitcnt lgkmcnt(0)")
    for e in range(0, 8, 2): padd(R+16+e, R+16+e, R+24+e, True)
    for e in range(0, 8, 2): padd(R+e, R+e, R+16+e, True)
    for e in range(4): K(f"v_cvt_pk_bf16_f32 v{R+e}, v{R+2*e}, v{R+2*e+1}")
    K(f"buffer_store_dwordx4 {vr(R,4)}, v{t3}, {srd(R_OUT)}, s{T+5} offen" + ["", " sc1", " nt", " sc0 sc1"][outm])
    if f2: stamp("t_st")
    K(f"s_or_b32 s{T}, s2, s{S_W}"); K(f"s_cmp_lg_u32 s{T}, 0")
    K.branch("s_cbranch_scc1 L_fin")
    K(f"s_mov_b32 s{T}, {WS_EPOCH}")
    flag(T)
    K.label("L_fin")
    if stamps:
        K("s_waitcnt vmcnt(0)")
        stamp("end")
        if probe is not None:
            i0 = STAMP_IDS.setdefault('start', len(STAMP_IDS)); i1 = STAMP_IDS.setdefault(probe, len(STAMP_IDS))
            K(f"v_readlane_b32 s{T}, v{V_STAMP}, {i0}"); K(f"v_readlane_b32 s{T+1}, v{V_STAMP}, {i1}")
            K("s_nop 4")
            K(f"s_cmp_eq_u32 s{T+1}, 0"); K(f"s_cselect_b32 s{T+1}, s{T}, s{T+1}")
            if pwg >= 0:
                K(f"s_cmp_lg_u32 s2, {pwg}")
                K.branch("s_cbranch_scc1 L_end")
            K.label("L_probe")
            K("s_sleep 2")
            K(f"s_memrealtime {sp(S_ST)}"); K("s_waitcnt lgkmcnt(0)")
            K(f"s_sub_u32 s{T+2}, s{S_ST}, s{T+1}"); K(f"s_cmp_lt_u32 s{T+2}, {pt}")
            K.branch("s_cbranch_scc1 L_probe")
            K.branch("s_branch L_end")
        K(f"s_lshl_b32 s{T}, s2, 3"); K(f"s_add_u32 s{T}, s{T}, s{S_W}"); K(f"s_lshl_b32 s{T}, s{T}, 8"); K(f"s_add_u32 s{T}, s{T}, {WS_STAMP}")
        K(f"v_lshlrev_b32 v{t0}, 2, v{V_LANE}")
        K(f"buffer_store_dword v{V_STAMP}, v{t0}, {srd(R_WS)}, s{T} offen")
    K.label("L_end")
    K("s_endpgm")
    K.raw(f".fill (28672 + 4096 * {1 if stamps else 0} - (L_end - {NAME})) / 4, 4, 0xbf800000")

    head = f"""; Fused gated mix of hedgehog linear attention and GELU FFN (emitted by a hand-written generator script)
; @launch grid=(256,1,1) block=(512,1,1) lds=163840
.amdgcn_target "amdgcn-amd-amdhsa--gfx950"
.text
.globl {NAME}
.p2align 8
.type {NAME},@function
"""
    tail = f""".section .rodata,"a"
.p2align 6
.amdhsa_kernel {NAME}
  .amdhsa_next_free_vgpr 256
  .amdhsa_next_free_sgpr 102
  .amdhsa_accum_offset 256
  .amdhsa_group_segment_fixed_size 0
  .amdhsa_kernarg_size 104
  .amdhsa_user_sgpr_count 2
  .amdhsa_user_sgpr_kernarg_segment_ptr 1
  .amdhsa_system_sgpr_workgroup_id_x 1
.end_amdhsa_kernel
"""
    return head + K.text() + tail

STAMP_IDS = {}
def parse_opts(argv):
    kw = {}
    for a in argv:
        if a.startswith("-D"):
            k, v = a[2:].split("="); kw[k] = int(v) if v.lstrip("-").isdigit() else v
    return kw
if __name__ == "__main__":
    out = sys.argv[1] if len(sys.argv) > 1 else "k.s"
    open(out, "w").write(gen(**parse_opts(sys.argv)))
```

```python
import sys, struct
from asmlib import Asm

NAME = "gated_mix__linear_kernel_hedgehog__dense_activation_gelu__prompt_kernel"
def f2u(x): return struct.unpack("<I", struct.pack("<f", x))[0]

WS_EPOCH = 0
WS_RPF   = 0x8000
WS_STAMP = 0x10000
WS_G     = 0xA0000
WS_WQ    = 0x100000
WS_KVP   = 0x280000
WS_O     = 0x480000
WS_H     = 0x680000
WS_CN    = 0x300000
WS_HF    = WS_CN
WS_OF    = WS_CN + 2048*128
WS_KVF   = WS_CN + 3072*128
WS_SIZE  = 0xE00000

U = [0, 32768, 65536, 98304, 131072]
L_K, L_V, L_Q = 98304, 126976, 65536
L_MISC = 155648
L_PHI, L_CNT, L_B2, L_B1 = L_MISC, L_MISC + 2048, L_MISC + 2560, L_MISC + 3072
L_KVS = U[3]
L_KVF = L_MISC + 4096
RUNIT = [0, 1, 0, 1, 3, 0, 1, 2, 3]
C_E, C_0, C_1, C_2, C_3, C_4, C_Q, C_G, C_B, C_S, C_5, C_P, C_B2 = 0, 4, 8, 12, 16, 20, 24, 28, 32, 36, 40, 44, 48

P_X, P_WQKV, P_PHI, P_WO, P_W1, P_B1, P_W2 = 16, 18, 20, 22, 26, 28, 30
P_B2, P_GATE, P_OUT, P_WS = 32, 34, 36, 40
R_X, R_W1, R_W2, R_WO, R_WS, R_OUT, R_T = 44, 48, 52, 56, 60, 64, 68
S_MT, S_J, S_W, S_A, S_FL2, S_TAG, S_CH, S_CNT = 72, 73, 74, 75, 76, 78, 77, 100
S_CHO = 80
S_M0 = 87
S_XB, S_W1B = 88, 89
S_T = 90
S_UP = 98
S_E = 42
S_H = S_J
S_CT, S_ROW, S_ACT = 43, 3, 101
S_K = 4
S_ST = 6
S_L28 = 24
S_FL = 8
S_HB, S_W2B, S_OB, S_HB3, S_W2B3, S_M02, S_RS = 9, 10, 11, 12, 13, 14, 15
S_PE, S_P3, S_PO = 34, 35, 38
PD = [16, 17, 18, 19, 20, 21, 22, 23, 26, 27, 28, 29, 30, 31, 32, 33]
def srd(r): return f"s[{r}:{r+3}]"
def sp(r): return f"s[{r}:{r+1}]"

V_LANE, V_L16, V_STAMP, V_TAG, V_POLL, V_CNT = 1, 2, 3, 4, 5, 6
V_T = 8
V_D2 = 18
A_PA, A_AX, A_AD, A_L4, A_PH, A_TR, A_G = 7, 14, 22, 24, 25, 30, 31
V_W, V_P, V_ACC, V_PHI, V_X = 32, 64, 96, 128, 144
A_XD, A_WD, A_QD, A_GW = 64, 68, 72, 16
M_L16B, M_AB = 7, 14
M_ACC, M_BH, M_AR = 24, 88, 152
M_AX, M_AW = 136, 140
NA = 13
def vr(a, n): return f"v[{a}:{a+n-1}]"
UPM = sp(S_UP)
L2E = 1.4426950408889634

def gen(stamps=False, spin=20000, rot1=False, codepf=True, slp=2, cyc=False, G=5, prioA=1, prioM=2, kvf=27, fine=False,
        pkq=0, pkk=1, LA=9, LA0=6, c0=2, mpf=30, outm=0, tlb=21, gw=-1, hf0=7, rpb=3, prioG=2, k6=4, qpf=1, sb=1, qd=0, probe=None, pwg=-1, pt=4000, aw2=2, pre=8, cb=22, pkg=2, rpa=0, f2=0, hfirst=1, early=0, oc=22, x_now2=0, x_noh=0, x_nomf=0, x_now1=0, rb2=0, gp=3, pa=10, x_at=4, c3=9, cq=17, spf=0, allpf=0, l2w=0, jit=1, bl=5, rate=4, x_m16=0):
    K = Asm()
    T = S_T
    TD = T + 5
    t0, t1, t2, t3, t4, t5 = range(V_T, V_T + 6)
    def stamp(name):
        if not stamps: return
        if probe is not None and name != probe: return
        K("s_waitcnt lgkmcnt(0)")
        K(f"s_memrealtime {sp(S_ST)}")
        if cyc: K(f"s_memtime s[0:1]")
        K("s_waitcnt lgkmcnt(0)")
        i = STAMP_IDS.setdefault(name, len(STAMP_IDS))
        K(f"v_writelane_b32 v{V_STAMP}, s{S_ST}, {i}")
        if cyc: K(f"v_writelane_b32 v{V_STAMP}, s0, {32 + i}")
    uid = [0]
    def newl(p): uid[0] += 1; return f"L_{p}{uid[0]}"
    def poll_issue(fl):
        K(f"s_load_dword s{PD[0]}, {sp(P_WS)}, s{fl[0]} offset:{fl[1]} glc")
    def poll_check(fl):
        l, d = newl("poll"), newl("polld")
        K(f"s_mov_b32 s{S_CNT}, {spin}")
        K.raw(f"{l}:")
        K("s_waitcnt lgkmcnt(0)")
        K(f"s_cmp_eq_u32 s{PD[0]}, {fl[2]}")
        K.branch(f"s_cbranch_scc1 {d}")
        K(f"s_sub_u32 s{S_CNT}, s{S_CNT}, 1")
        K(f"s_cbranch_scc1 {d}")
        if slp: K(f"s_sleep {slp}")
        poll_issue(fl)
        K(f"s_branch {l}")
        K.label(d)
    def signal(soff_reg, n):
        K(f"v_mov_b32 v{t5}, 1"); K(f"v_lshlrev_b32 v{V_POLL}, 7, v{V_LANE}")
        K(f"s_mov_b64 exec, {(1 << n) - 1}")
        K(f"buffer_atomic_add v{t5}, v{V_POLL}, {srd(R_WS)}, s{soff_reg} offen")
        K("s_mov_b64 exec, -1")
    def vpoll_issue(vaddr):
        return K(f"buffer_load_dword v{V_POLL}, v{vaddr}, {srd(R_WS)}, 0 offen sc1")
    def vpoll_check(tok, vaddr):
        l, d = newl("poll"), newl("polld")
        K(f"s_mov_b32 s{S_CNT}, {spin}")
        K.wait_vm(tok)
        K.label(l)
        K(f"v_cmp_ne_u32 vcc, s{S_TAG}, v{V_POLL}")
        K.branch(f"s_cbranch_vccz {d}")
        K(f"s_sub_u32 s{S_CNT}, s{S_CNT}, 1")
        K.branch(f"s_cbranch_scc1 {d}")
        K(f"s_sleep 10")
        K(f"buffer_load_dword v{V_POLL}, v{vaddr}, {srd(R_WS)}, 0 offen sc1"); K.vm -= 1
        K("s_waitcnt vmcnt(0)")
        K.branch(f"s_branch {l}")
        K.label(d)
    def flag(soff_reg):
        K("s_mov_b64 exec, 1")
        K(f"buffer_store_dword v{V_TAG}, v{V_LANE}, {srd(R_WS)}, s{soff_reg} offen sc1")
        K("s_mov_b64 exec, -1")
    def arrive(c):
        K(f"v_mov_b32 v{t5}, 1")
        K("s_mov_b64 exec, 1")
        K(f"ds_add_u32 v{V_CNT}, v{t5} offset:{c}")
        K("s_mov_b64 exec, -1")
    def await_(c, n, sleep=0):
        l, d = newl("aw"), newl("awd")
        K(f"s_mov_b32 s{S_CNT}, {spin * 8}")
        K.label(l)
        K(f"ds_read_b32 v{t5}, v{V_CNT} offset:{c}")
        K("s_waitcnt lgkmcnt(0)")
        K(f"v_cmp_ne_u32 vcc, {n}, v{t5}")
        K.branch(f"s_cbranch_vccz {d}")
        if sleep: K(f"s_sleep {sleep}")
        K(f"s_sub_u32 s{S_CNT}, s{S_CNT}, 1")
        K.branch(f"s_cbranch_scc0 {l}")
        K.label(d)
    def mksrd(r, p, nbytes):
        K(f"s_mov_b32 s{r}, s{p}"); K(f"s_and_b32 s{r+1}, s{p+1}, 0xffff")
        K(f"s_mov_b32 s{r+2}, {nbytes}"); K(f"s_mov_b32 s{r+3}, 0x20000")
    cnt16 = [0]
    def mfma(d, a, b, c=None, big=False):
        if x_m16 and big and c is None:
            cnt16[0] += 1
            o = 8 * ((cnt16[0] // 4) % 2)
            for q in range(2): K(f"v_mfma_f32_16x16x32_bf16 {vr(d+o+4*q,4)}, {vr(a,4)}, {vr(b,4)}, {vr(d+o+4*q,4)}")
            return
        cs = vr(d, 16) if c is None else c
        K(f"v_mfma_f32_32x32x16_bf16 {vr(d,16)}, {vr(a,4)}, {vr(b,4)}, {cs}")
    def padd(d, a, b, pk):
        if pk: K(f"v_pk_add_f32 {vr(d,2)}, {vr(a,2)}, {vr(b,2)}")
        else: K(f"v_add_f32 v{d}, v{a}, v{b}"); K(f"v_add_f32 v{d+1}, v{a+1}, v{b+1}")
    def pscale(d, r, pk):
        if pk: K(f"v_pk_mul_f32 {vr(d,2)}, {vr(d,2)}, {vr(r & ~1,2)} " + ("op_sel:[0,1] op_sel_hi:[1,1]" if r & 1 else "op_sel_hi:[1,0]"))
        else: K(f"v_mul_f32 v{d}, v{d}, v{r}"); K(f"v_mul_f32 v{d+1}, v{d+1}, v{r}")
    def settag():
        K(f"s_add_u32 s{S_TAG}, s{S_E}, 0x9E3779B9"); K(f"s_mov_b32 s{S_TAG+1}, s{S_TAG}"); K(f"v_mov_b32 v{V_TAG}, s{S_TAG}")
    def xfrag_addr(dst):
        K(f"v_and_b32 v{t0}, 31, v{V_LANE}"); K(f"v_lshrrev_b32 v{t2}, 5, v{V_LANE}"); K(f"v_bfe_u32 v{t3}, v{V_LANE}, 1, 3")
        K(f"v_xor_b32 v{t3}, v{t2}, v{t3}"); K(f"s_lshl_b32 s{T}, s{S_A}, 12"); K(f"v_lshlrev_b32 v{t0}, 7, v{t0}")
        K(f"v_lshl_add_u32 v{t0}, v{t3}, 4, v{t0}"); K(f"v_add_u32 v{dst}, s{T}, v{t0}")
        for k in range(1, 4): K(f"v_xor_b32 v{dst+k}, {32*k}, v{dst}")
    def lanepart():
        K(f"v_bfe_u32 v{t4}, v{V_LANE}, 4, 1"); K(f"v_lshlrev_b32 v{t4}, 5, v{t4}")
        K(f"v_and_b32 v{t3}, 3, v{V_LANE}"); K(f"v_lshl_add_u32 v{t4}, v{t3}, 3, v{t4}")
        K(f"v_bfe_u32 v{t3}, v{V_LANE}, 2, 2"); K(f"v_lshrrev_b32 v{t2}, 5, v{V_LANE}")
    def p2setup():
        mksrd(R_W2, P_W2, 0 if x_now2 else 1792*896)
        K(f"s_and_b32 s{T}, s2, 7"); K(f"s_lshr_b32 s{T+1}, s2, 3")
        K(f"s_mul_i32 s{T+2}, s{T+1}, 37"); K(f"s_lshr_b32 s{T+2}, s{T+2}, 8"); K(f"s_mul_i32 s{T+3}, s{T+2}, 7"); K(f"s_sub_u32 s{S_CT}, s{T+1}, s{T+3}")
        K(f"s_lshl_b32 s{T+2}, s{T+2}, 1"); K(f"s_lshl_b32 s{T+3}, s{T}, 3"); K(f"s_add_u32 s{S_ROW}, s{T+2}, s{T+3}")
        K(f"s_cmp_lt_u32 s{T+1}, 28"); K(f"s_cselect_b32 s{S_ACT}, 1, 0")
        K(f"s_and_b32 s{T+2}, s{S_A}, 1"); K(f"s_mul_i32 s{T+3}, s{S_A}, 7"); K(f"s_add_u32 s{T+4}, s{T+3}, s{T+2}")
        K(f"s_cmp_eq_u32 s{T+2}, 0"); K(f"s_cselect_b32 s{T+2}, 6, 0"); K(f"s_add_u32 s{T+2}, s{T+2}, s{T+3}")
        K(f"s_lshl_b32 s{T}, s{S_CT}, 7")
        K(f"s_mul_i32 s{S_W2B}, s{T+4}, {64*896}"); K(f"s_add_u32 s{S_W2B}, s{S_W2B}, s{T}")
        K(f"s_mul_i32 s{S_W2B3}, s{T+2}, {64*896}"); K(f"s_add_u32 s{S_W2B3}, s{S_W2B3}, s{T}")
        K(f"s_lshl_b32 s{S_M02}, s{S_A}, 13")
        K(f"v_lshrrev_b32 v{t0}, 3, v{V_LANE}"); K(f"v_and_b32 v{t1}, 7, v{V_LANE}")
        K(f"v_bfe_u32 v{t2}, v{V_LANE}, 4, 1"); K(f"v_lshlrev_b32 v{t2}, 2, v{t2}"); K(f"v_xor_b32 v{t1}, v{t1}, v{t2}")
        K(f"v_mul_u32_u24 v{t0}, 896, v{t0}"); K(f"v_lshl_add_u32 v{V_D2}, v{t1}, 4, v{t0}")
        for q in range(1, 4): K(f"v_add_u32 v{V_D2+q}, {q*(8*896-1024)}, v{V_D2}")
        K(f"v_mov_b32 v{V_CNT}, {L_CNT}")
    def shift(regs, d):
        for r in regs:
            if d > 0: K(f"v_add_u32 v{r}, {d}, v{r}")
            elif d < 0: K(f"v_subrev_u32 v{r}, {-d}, v{r}")
    pend = []
    def drip(n):
        for _ in range(n):
            if pend: pend.pop(0)()
    def run(steps):
        for f in steps: f()
    tk_r = {}
    def g_w2(r):
        def step(q):
            def f():
                if q % 4 == 0:
                    K(f"s_add_u32 s{TD}, s{S_W2B3 if r == 3 else S_W2B}, {(0 if r == 3 else (2*r % 7)*64*896) + (q // 4)*32*896}")
                    K(f"s_add_u32 m0, s{S_M02}, {U[RUNIT[r]] + (q // 4)*4096}")
                x = K(f"buffer_load_dwordx4 v{V_D2+q%4}, {srd(R_W2)}, s{TD} offen offset:{1024*(q%4)} lds")
                if q == 7: tk_r[r] = x
            return f
        return [step(q) for q in range(8)]
    SH = [0, 0, 65536, 0, -65536, 0, 65536]

    K.raw(f"{NAME}:")
    K("s_cmp_ge_u32 s2, 256"); K("s_cbranch_scc1 L_end")
    if stamps and early: K(f"s_memrealtime {sp(S_ST)}"); K("s_waitcnt lgkmcnt(0)")
    K("s_load_dwordx16 s[16:31], s[0:1], 0"); K("s_load_dwordx8 s[32:39], s[0:1], 64"); K("s_load_dwordx2 s[40:41], s[0:1], 96")
    if stamps:
        if not early: K(f"s_memrealtime {sp(S_ST)}")
        K(f"v_mov_b32 v{V_STAMP}, 0")
    K(f"v_lshrrev_b32 v{t0}, 6, v0"); K(f"v_and_b32 v{V_LANE}, 63, v0")
    K(f"v_readfirstlane_b32 s{S_W}, v{t0}")
    K(f"v_lshlrev_b32 v{V_L16}, 4, v{V_LANE}")
    K(f"s_and_b32 s{T}, s2, 7"); K(f"s_lshr_b32 s{T+1}, s2, 3")
    if codepf:
        K(f"s_lshr_b32 s{T+2}, s2, 5"); K(f"s_lshl_b32 s{T+2}, s{T+2}, 3"); K(f"s_or_b32 s{T+2}, s{T+2}, s{S_W}"); K(f"s_cmp_lg_u32 s{T+2}, 7")
        K("s_cbranch_scc1 L_nopf")
        K(f"s_getpc_b64 {sp(T+2)}")
        K.raw("L_pc:")
        K(f"s_lshl_b32 s{T+4}, s{T+1}, 7"); K(f"s_sub_u32 s{T+2}, s{T+2}, L_pc - {NAME}"); K(f"s_subb_u32 s{T+3}, s{T+3}, 0")
        K(f"s_add_u32 s{T+2}, s{T+2}, s{T+4}"); K(f"s_addc_u32 s{T+3}, s{T+3}, 0")
        K(f"v_lshlrev_b32 v{t0}, 9, v{V_LANE}")
        K("s_mov_b32 exec_hi, 0xffffff")
        K(f"global_load_dword v{V_POLL}, v{t0}, {sp(T+2)}"); K.vm -= 1
        K("s_mov_b32 exec_hi, -1")
        K.label("L_nopf")
    K(f"s_and_b32 s{T+2}, s{T}, 2"); K(f"s_lshl_b32 s{T+2}, s{T+2}, 1")
    K(f"s_and_b32 s{T+3}, s{T}, 1"); K(f"s_cmp_lt_u32 s{T+1}, 4"); K(f"s_cselect_b32 s{T+4}, 14, 12"); K(f"s_add_u32 s{T+3}, s{T+3}, s{T+4}")
    K(f"s_lshr_b32 s{T+4}, s{T+1}, 3"); K(f"s_lshl_b32 s{S_J}, s{T+4}, 2"); K(f"s_and_b32 s{S_MT}, s{T}, 3"); K(f"s_add_u32 s{S_J}, s{S_J}, s{S_MT}"); K(f"s_sub_u32 s{S_J}, s{S_J}, 4")
    K(f"s_cmp_lt_u32 s{T+1}, 8"); K(f"s_cselect_b32 s{S_J}, s{T+3}, s{S_J}"); K(f"s_cselect_b32 s{T+2}, s{T+2}, 0")
    K(f"s_and_b32 s{T+3}, s{T+1}, 7"); K(f"s_xor_b32 s{T+3}, s{T+3}, s{T+2}")
    K(f"s_and_b32 s{S_MT}, s{T}, 4"); K(f"s_lshl_b32 s{S_MT}, s{S_MT}, 1"); K(f"s_add_u32 s{S_MT}, s{S_MT}, s{T+3}")
    K(f"s_and_b32 s{S_A}, s{S_W}, 3")
    K(f"s_lshl_b32 s{S_W1B}, s{S_J}, 8")
    K(f"s_cmp_ge_u32 s{S_W}, 4")
    K.branch("s_cbranch_scc1 L_M")

    if prioA: K(f"s_setprio {prioA}")
    K(f"s_lshl_b32 s{T+4}, s{T+4}, 1"); K(f"s_add_u32 s{T+2}, s{T+3}, s{T+4}")
    K(f"s_cmp_ge_u32 s{T+2}, 7"); K(f"s_cselect_b32 s{T+3}, 7, 0"); K(f"s_sub_u32 s{S_CH}, s{T+2}, s{T+3}")
    if not rot1: K(f"s_mov_b32 s{S_CH}, 0")
    if rot1 == 2:
        K(f"s_lshr_b32 s{T+4}, s{T+4}, 1"); K(f"s_add_u32 s{T+2}, s{S_MT}, s{T+4}"); K(f"s_and_b32 s{T+2}, s{T+2}, 1"); K(f"s_lshl_b32 s{S_CH}, s{T+2}, 2")
    if rot1 == 4:
        K(f"s_lshr_b32 s{T+4}, s{T+4}, 1"); K(f"s_add_u32 s{T+2}, s{S_MT}, s{T+4}"); K(f"s_and_b32 s{T+2}, s{T+2}, 3"); K(f"s_lshl_b32 s{S_CH}, s{T+2}, 1")
    if rot1 == 8:
        K(f"s_and_b32 s{T+2}, s2, 7"); K(f"s_cmp_eq_u32 s{T+2}, 7"); K(f"s_cselect_b32 s{S_CH}, 3, s{T+2}")
    def rotstep(t):
        K(f"s_lshl_b32 s{S_CHO+t}, s{S_CH}, 12")
        if t < 6: K(f"s_add_u32 s{S_CH}, s{S_CH}, 1"); K(f"s_cmp_eq_u32 s{S_CH}, 7"); K(f"s_cselect_b32 s{S_CH}, 0, s{S_CH}")
    rotstep(0); rotstep(1)
    K(f"s_lshl_b32 s{S_M0}, s{S_A}, 12")
    K(f"s_mul_i32 s{S_XB}, s{S_MT}, {128*896}")
    K(f"v_lshrrev_b32 v{t0}, 3, v{V_LANE}"); K(f"v_and_b32 v{t1}, 7, v{V_LANE}"); K(f"v_lshrrev_b32 v{t2}, 1, v{t0}"); K(f"v_xor_b32 v{t2}, v{t1}, v{t2}")
    K(f"s_lshl_b32 s{T+2}, s{S_A}, 5"); K(f"v_add_u32 v{t3}, s{T+2}, v{t0}"); K(f"v_mul_u32_u24 v{t3}, 896, v{t3}")
    K(f"v_lshl_add_u32 v{A_XD}, v{t2}, 4, v{t3}"); K(f"v_xor_b32 v{t2}, 4, v{t2}"); K(f"v_lshl_add_u32 v{A_XD+1}, v{t2}, 4, v{t3}")
    K(f"v_add_u32 v{A_XD+1}, {8*896-1024}, v{A_XD+1}")
    K(f"v_add_u32 v{A_XD+2}, {16*896-2048}, v{A_XD}"); K(f"v_add_u32 v{A_XD+3}, {16*896-2048}, v{A_XD+1}")
    K(f"v_lshrrev_b32 v{t0}, 4, v{V_LANE}"); K(f"v_and_b32 v{t1}, 15, v{V_LANE}"); K(f"v_lshlrev_b32 v{t2}, 2, v{t0}"); K(f"v_xor_b32 v{t2}, v{t1}, v{t2}")
    K(f"s_lshl_b32 s{T+2}, s{S_A}, 4"); K(f"v_add_u32 v{t3}, s{T+2}, v{t0}"); K(f"v_mul_u32_u24 v{t3}, 3584, v{t3}")
    K(f"v_lshl_add_u32 v{A_WD}, v{t2}, 4, v{t3}")
    for q in range(1, 4): K(f"v_add_u32 v{A_WD+q}, {q*(4*3584-1024)}, v{A_WD}")
    K("s_waitcnt lgkmcnt(0)")
    if stamps: K(f"v_writelane_b32 v{V_STAMP}, s{S_ST}, {STAMP_IDS.setdefault('start', len(STAMP_IDS))}")
    mksrd(R_X, P_X, 2048*896); mksrd(R_W1, P_W1, 0 if x_now1 else 448*3584)
    tk_stage = {}
    def g_stage(t):
        u = U[t % 4]
        def step(q):
            def f():
                if q == 0: K(f"s_lshr_b32 s{TD}, s{S_CHO+t}, 5"); K(f"s_add_u32 s{TD}, s{TD}, s{S_XB}"); K(f"s_add_u32 m0, s{S_M0}, {u}")
                if q == 4: K(f"s_mul_i32 s{TD}, s{S_CHO+t}, 56"); K(f"s_add_u32 s{TD}, s{TD}, s{S_W1B}"); K(f"s_add_u32 m0, s{S_M0}, {u + 16384}")
                if q < 4: K(f"buffer_load_dwordx4 v{A_XD+q}, {srd(R_X)}, s{TD} offen offset:{1024*q} lds")
                else: x = K(f"buffer_load_dwordx4 v{A_WD+q-4}, {srd(R_W1)}, s{TD} offen offset:{1024*(q-4)} lds")
                if q == 7: tk_stage[t] = x
            return f
        return [step(q) for q in range(8)]
    ilist = []
    for t in range(7): ilist += [(f, t - 2 if t >= 4 else -1) for f in g_stage(t)]
    pos = [0]
    def issue_to(n, lastbar):
        while pos[0] < min(n, len(ilist)) and ilist[pos[0]][1] <= lastbar:
            ilist[pos[0]][0](); pos[0] += 1
    if fine: stamp("A_karg")
    K(f"s_cmp_ge_u32 s{S_J}, 14")
    K.branch("s_cbranch_scc1 L_a1")
    vm0 = K.vm
    issue_to(8, -1)
    issue_to(8 + LA0, -1)
    K.label("L_a1")
    if fine: stamp("A_i1")
    K(f"s_load_dword s{S_E}, {sp(P_WS)}, {WS_EPOCH}")
    for t in range(2, 7): rotstep(t)
    mksrd(R_WS, P_WS, WS_SIZE); mksrd(R_OUT, P_OUT, 2048*896)
    p2setup()
    K(f"s_mov_b32 s{S_UP}, 0"); K(f"s_mov_b32 s{S_UP+1}, -1")
    K(f"s_mov_b32 s{S_L28}, 0x10000000"); K(f"s_mov_b32 s{S_L28+1}, 0x10000000")
    xfrag_addr(A_AX)
    lanepart()
    K(f"v_lshl_add_u32 v{t0}, v{t2}, 3, v{t3}"); K(f"v_lshl_add_u32 v{A_TR}, v{t0}, 6, v{t4}")
    K(f"v_lshl_add_u32 v{t0}, v{t2}, 2, v{t3}"); K(f"v_mul_u32_u24 v{t1}, 56, v{t0}"); K(f"v_add_u32 v{t1}, v{t1}, v{t4}"); K(f"v_add_u32 v{A_PH}, {L_PHI}, v{t1}")
    K(f"v_lshlrev_b32 v{A_L4}, 2, v{V_LANE}")
    K(f"s_lshl_b32 s{T}, s{S_A}, 10"); K(f"s_add_u32 s{T}, s{T}, {WS_RPF}"); K(f"v_and_b32 v{A_PA}, 7, v{V_LANE}"); K(f"v_lshl_add_u32 v{A_PA}, v{A_PA}, 7, s{T}")
    K(f"s_mul_i32 s{S_RS}, s{S_J}, {3*28672}"); K(f"s_mul_i32 s{S_P3}, s{S_A}, 7168"); K(f"s_add_u32 s{S_RS}, s{S_RS}, s{S_P3}"); K(f"s_add_u32 s{S_RS}, s{S_RS}, {WS_WQ}")
    K("s_waitcnt lgkmcnt(0)")
    settag()
    K(f"s_cmp_lt_u32 s{S_J}, 14")
    K.branch("s_cbranch_scc1 L_a2")
    sv = K.vm
    K(f"s_mul_i32 s{T}, s{S_A}, 3072"); K(f"s_add_u32 s{T}, s{T}, {L_K}")
    K("s_barrier")
    for t in range(7):
        K(f"s_lshr_b32 s{TD}, s{S_CHO+t}, 5"); K(f"s_add_u32 s{TD}, s{TD}, s{S_XB}")
        if t < 6: K(f"s_add_u32 m0, s{S_M0}, {16384*t}")
        else: K(f"s_add_u32 m0, s{S_M0}, s{T}")
        for q in range(4): K(f"buffer_load_dwordx4 v{A_XD+q}, {srd(R_X)}, s{TD} offen offset:{1024*q} lds")
        if t == rb2: K("s_barrier")
    K("s_waitcnt vmcnt(0)")
    for t in range(7):
        if t == 4: shift(range(A_AX, A_AX + 4), 65536)
        if t == 6:
            K(f"s_sub_u32 s{T}, s{T}, 65536")
            for k in range(4): K(f"v_add_u32 v{A_AX+k}, s{T}, v{A_AX+k}")
        for ksl in range(4): K(f"ds_read_b128 {vr(V_X + 16*t + 4*ksl, 4)}, v{A_AX+ksl} offset:{(t % 4) * 16384 if t < 6 else 0}")
        if t % 2 == 1: K("s_waitcnt lgkmcnt(4)")
    K("s_waitcnt lgkmcnt(0)")
    stamp("A_b6")
    vpoll_issue(A_PA)
    K.branch("s_branch L_a3")
    K.label("L_a2")
    K.vm = sv
    if fine: stamp("A_setup")
    tkx = {}
    def g_panel(p, lds):
        def step(q):
            def f():
                if q % 4 == 0: K(f"s_add_u32 s{TD}, s{S_RS}, {28672*p + (q // 4)*4096}"); K(f"s_add_u32 m0, s{S_P3}, {lds + (q // 4)*4096}")
                tkx[p] = K(f"buffer_load_dwordx4 v{V_L16}, {srd(R_WS)}, s{TD} offen offset:{1024*(q%4)} sc1 lds")
            return f
        return [step(q) for q in range(7)]
    for t in range(7):
        issue_to(8*(t+1) + (LA0 if t == 0 else LA), t - 1)
        shift(range(A_AX, A_AX + 4), SH[t])
        if t == 5:
            assert pos[0] == len(ilist)
            tkp = vpoll_issue(A_PA)
        if fine: stamp(f"A{t}a")
        K.wait_vm(tk_stage[t])
        if fine: stamp(f"A{t}b")
        if t < 6:
            if t >= 2: K("s_waitcnt lgkmcnt(4)")
            K("s_barrier")
        else: arrive(C_S)
        if t in (0, 4, 6): stamp(f"A_b{t}")
        for ksl in range(4): K(f"ds_read_b128 {vr(V_X + 16*t + 4*ksl, 4)}, v{A_AX+ksl} offset:{(t % 2) * 32768}")
    assert tkp == K.vm
    K.label("L_a3")
    arrive(C_E)
    vpoll_check(tkp, A_PA)
    stamp("rp_seen")
    run(g_panel(1, L_K) + g_panel(2, L_V))
    K(f"v_add_u32 v{A_PA}, 4096, v{A_PA}")
    tkp = vpoll_issue(A_PA)
    stamp("kv_issued")
    K(f"s_mov_b32 s{S_K}, {f2u(L2E):#x}"); K(f"s_mov_b32 s{S_K+1}, {f2u(L2E):#x}")
    VPH, VB = V_W + 24, V_W + 16
    for s in range(2):
        for r in range(2): K(f"ds_read_b64_tr_b16 {vr(VPH + 4*s + 2*r, 2)}, v{A_PH} offset:{(16*s + 8*r)*56}")
    K(f"s_lshl_b32 s{T}, s{S_A}, 11"); K(f"s_lshl_b32 s{T+1}, s{S_J}, 13"); K(f"s_add_u32 s{S_HB}, s{T+1}, s{T}"); K(f"s_add_u32 s{S_FL}, s{S_HB}, {WS_KVF}"); K(f"s_lshl_b32 s{S_PE}, s{S_MT}, 7"); K(f"s_add_u32 s{S_PE}, s{S_PE}, s{S_FL}"); K(f"s_add_u32 s{S_HB}, s{S_HB}, {WS_KVP}")
    FL_K = (S_PE, 0, 16)
    K(f"s_lshl_b32 s{T}, s{S_MT}, 2"); K(f"s_add_u32 s{T}, s{T}, s{S_A}")
    K(f"s_lshr_b32 s{T+1}, s{T}, 1"); K(f"s_lshl_b32 s{T+1}, s{T+1}, 2"); K(f"s_lshr_b32 s{T+2}, s{S_J}, 2"); K(f"s_add_u32 s{T+1}, s{T+1}, s{T+2}"); K(f"s_lshl_b32 s{T+1}, s{T+1}, 10"); K(f"s_add_u32 s{S_FL2}, s{T+1}, {WS_OF}")
    K(f"s_lshl_b32 s{T}, s{T}, 4"); K(f"s_add_u32 s{T}, s{T}, s{S_J}")
    K(f"s_lshl_b32 s{S_OB}, s{T}, 11"); K(f"s_add_u32 s{S_OB}, s{S_OB}, {WS_O}")
    K(f"s_lshl_b32 s{T+2}, s{T}, 7"); K(f"s_add_u32 s{S_XB}, s{T+2}, {WS_G - 128}")
    IDR = [26, 27, 28, 29, V_PHI, V_PHI+1, V_PHI+2, V_PHI+3]
    K(f"v_and_b32 v{t0}, 31, v{V_LANE}"); K(f"v_lshrrev_b32 v{t1}, 5, v{V_LANE}"); K(f"v_lshlrev_b32 v{t1}, 2, v{t1}")
    K(f"v_sub_u32 v{t0}, v{t0}, v{t1}")
    K(f"v_and_b32 v{t1}, 1, v{V_LANE}"); K(f"v_lshlrev_b32 v{t1}, 4, v{t1}"); K(f"v_mov_b32 v{t2}, 0x3f80"); K(f"v_lshlrev_b32 v{t1}, v{t1}, v{t2}")
    K(f"v_and_b32 v{t0}, -2, v{t0}")
    for s in range(2):
        for q in range(4): K(f"v_cmp_eq_u32 {sp(T+2*q)}, {16*s + 8*(q // 2) + 2*(q % 2)}, v{t0}")
        for q in range(4): K(f"v_cndmask_b32 v{IDR[4*s+q]}, 0, v{t1}, {sp(T+2*q)}")
    if aw2: K(f"s_cmp_eq_u32 s{S_ACT}, 1"); K(f"s_cselect_b32 s{R_W2+2}, s{R_W2+2}, 0")
    if aw2 in (1, 3):
        await_(C_E, 8, 1)
        run(g_w2(0))
        K.wait_vm(tkx[2]); arrive(C_0)
        run(g_w2(1))
        if qd < 0: run(g_panel(0, L_Q))
    else: K.wait_vm(tkx[2]); arrive(C_0)
    stamp("kv_landed0")
    if aw2 == 1: K.wait_vm(tk_r[1]); arrive(C_B)
    await_(C_0, 4, 1)
    K(f"v_cndmask_b32 v{VPH+6}, v{VPH+6}, 0, {UPM}"); K(f"v_cndmask_b32 v{VPH+7}, v{VPH+7}, 0, {UPM}")
    await_(C_G if gw >= 0 else C_E, 4 if gw >= 0 else 8, 1)
    vpoll_check(tkp, A_PA)
    stamp("kv_start")

    def gemm_qkv(panels, hook=None):
        nb = len(panels) * 4
        D = 3 if len(panels) == 2 else 6
        tk = {}
        for n, (off, acc, sw) in enumerate(panels): K(f"v_add_u32 v{A_AX+n}, {off}, v{A_TR}")
        def rd(ks, n):
            t, ksl = ks // 4, ks % 4
            b = V_W + nb * (ks % D)
            if ksl == 0: K(f"v_add_u32 v{A_AD + n}, s{S_CHO+t}, v{A_AX+n}")
            for r in range(2):
                tk[ks] = K(f"ds_read_b64_tr_b16 {vr(b + 4*n + 2*r, 2)}, v{A_AD + n} offset:{(16*ksl + 4*r)*64}")
        for k in range(D):
            for n in range(len(panels)): rd(k, n)
        for ks in range(28):
            K.wait_lg(tk[ks])
            b = V_W + nb * (ks % D)
            for n, (off, acc, sw) in enumerate(panels):
                wv, xv = b + 4*n, V_X + 4*ks
                if sw: mfma(acc, xv, wv, "0" if ks == 0 else None, x_m16 & 4)
                else: mfma(acc, wv, xv, "0" if ks == 0 else None, x_m16 & 4)
                if ks + D < 28: rd(ks + D, n)
            if hook: hook(ks)
    QP = V_W
    P = V_ACC
    def featmap():
        for e in range(8): K(f"v_cvt_pk_bf16_f32 v{QP+e}, v{V_ACC+2*e}, v{V_ACC+2*e+1}")
        mfma(P, VPH, QP, "0"); mfma(P, VPH + 4, QP + 4)
    def softmax(pk):
        for e in range(4): K(f"v_cndmask_b32 v{P+12+e}, v{P+12+e}, v{P}, {UPM}")
        mx, mn = t0, t2
        K(f"v_max3_f32 v{mx}, v{P}, v{P+1}, v{P+2}"); K(f"v_min3_f32 v{mn}, v{P}, v{P+1}, v{P+2}")
        K(f"v_max3_f32 v{t1}, v{P+3}, v{P+4}, v{P+5}"); K(f"v_min3_f32 v{t3}, v{P+3}, v{P+4}, v{P+5}")
        for e in range(6, 14, 4):
            K(f"v_max3_f32 v{mx}, v{mx}, v{P+e}, v{P+e+1}"); K(f"v_min3_f32 v{mn}, v{mn}, v{P+e}, v{P+e+1}")
            K(f"v_max3_f32 v{t1}, v{t1}, v{P+e+2}, v{P+e+3}"); K(f"v_min3_f32 v{t3}, v{t3}, v{P+e+2}, v{P+e+3}")
        K(f"v_max3_f32 v{mx}, v{mx}, v{P+14}, v{P+15}"); K(f"v_min3_f32 v{mn}, v{mn}, v{P+14}, v{P+15}")
        K(f"v_max_f32 v{mx}, v{mx}, v{t1}"); K(f"v_min_f32 v{mn}, v{mn}, v{t3}")
        K(f"v_mov_b32 v{t1}, v{mx}"); K(f"v_mov_b32 v{t3}, v{mn}")
        K(f"v_permlane32_swap_b32 v{mx}, v{t1}"); K(f"v_permlane32_swap_b32 v{mn}, v{t3}")
        K(f"v_max_f32 v{mx}, v{mx}, v{t1}"); K(f"v_min_f32 v{mn}, v{mn}, v{t3}")
        K(f"v_mul_f32 v{mx}, s{S_K}, v{mx}"); K(f"v_mul_f32 v{mn}, s{S_K}, v{mn}")
        EP, EN = V_P, V_P + 16
        for e in range(0, 16, 2):
            if pk:
                K(f"v_pk_fma_f32 {vr(EP+e,2)}, {vr(P+e,2)}, {sp(S_K)}, {vr(mx,2)} op_sel_hi:[1,1,0] neg_lo:[0,0,1] neg_hi:[0,0,1]")
                K(f"v_pk_fma_f32 {vr(EN+e,2)}, {vr(P+e,2)}, {sp(S_K)}, {vr(mn,2)} op_sel_hi:[1,1,0] neg_lo:[1,0,0] neg_hi:[1,0,0]")
            else:
                for x in (e, e + 1):
                    K(f"v_fma_f32 v{EP+x}, v{P+x}, s{S_K}, -v{mx}"); K(f"v_fma_f32 v{EN+x}, -v{P+x}, s{S_K}, v{mn}")
        for e in range(16):
            K(f"v_exp_f32 v{EP+e}, v{EP+e}"); K(f"v_exp_f32 v{EN+e}, v{EN+e}")
        S = V_W
        for n, E in enumerate((EP, EN)):
            padd(S+4*n, E, E+2, pk); padd(S+4*n+2, E+12, E+14, pk)
        for n, E in enumerate((EP, EN)):
            padd(S+4*n, S+4*n, E+4, pk)
            K(f"v_cndmask_b32 v{S+4*n+2}, v{S+4*n+2}, 0, {UPM}"); K(f"v_cndmask_b32 v{S+4*n+3}, v{S+4*n+3}, 0, {UPM}")
        for n, E in enumerate((EP, EN)):
            padd(S+4*n, S+4*n, E+6, pk); padd(S+4*n+2, S+4*n+2, E+8, pk)
        for n, E in enumerate((EP, EN)): padd(S+4*n, S+4*n, E+10, pk)
        for n in range(2): padd(S+4*n, S+4*n, S+4*n+2, pk)
        K(f"v_add_f32 v{t0}, v{S}, v{S+1}"); K(f"v_add_f32 v{t2}, v{S+4}, v{S+5}")
        K(f"v_mov_b32 v{t1}, v{t0}"); K(f"v_mov_b32 v{t3}, v{t2}")
        K(f"v_permlane32_swap_b32 v{t0}, v{t1}"); K(f"v_permlane32_swap_b32 v{t2}, v{t3}")
        K(f"v_add_f32 v{t0}, v{t0}, v{t1}"); K(f"v_add_f32 v{t2}, v{t2}, v{t3}")
        K(f"v_rcp_f32 v{t0}, v{t0}"); K(f"v_rcp_f32 v{t2}, v{t2}")
        K(f"v_cndmask_b32 v{t1}, v{t0}, 0, {UPM}"); K(f"v_cndmask_b32 v{t3}, v{t2}, 0, {UPM}")
        for e in range(0, 16, 2):
            pscale(EP+e, t0 if e < 12 else t1, pk); pscale(EN+e, t2 if e < 12 else t3, pk)
        for e in range(8):
            K(f"v_cvt_pk_bf16_f32 v{V_PHI+e}, v{EP+2*e}, v{EP+2*e+1}"); K(f"v_cvt_pk_bf16_f32 v{V_PHI+8+e}, v{EN+2*e}, v{EN+2*e+1}")

    if aw2 == 2: pend.extend(g_w2(0) + g_w2(1))
    if qd >= 0: pend.extend(g_panel(0, L_Q))
    def hook(ks):
        if aw2 == 3:
            if ks == 1: K.wait_vm(tk_r[1]); arrive(C_B)
            if ks == pa:
                await_(C_P, 4)
                pend.extend(g_w2(2) + g_w2(3))
            drip(2 if len(pend) > 27 - ks else 1)
        elif aw2 == 2:
            drip(1)
            if ks == cb: K.wait_vm(tk_r[1]); arrive(C_B)
        elif ks >= qd and (ks - qd) % 3 == 0: drip(1)
        if ks == 25: arrive(C_1)
    gemm_qkv([(L_K, V_ACC, False), (L_V, V_ACC + 16, True)], hook)
    featmap()
    assert not pend
    for e in range(4): K(f"v_mov_b32 v{V_W+8+e}, v{V_PHI+e}")
    IDR[4] = V_W + 8
    stamp("kv_gemm")
    K(f"v_mov_b32 v{t4}, 0x3f803f80")
    for e in range(8): K(f"v_cvt_pk_bf16_f32 v{VB+e}, v{V_ACC+16+2*e}, v{V_ACC+16+2*e+1}")
    for e in range(8): K(f"v_cndmask_b32 v{VB+e}, v{VB+e}, v{t4}, {sp(S_L28)}")
    softmax(pkk)
    stamp("sm_k")
    if aw2 == 3: K.wait_vm(tk_r[3]); arrive(C_B2)
    TP, TN = V_P, V_P + 16
    mfma(TP, V_PHI, IDR[0], "0"); mfma(TP, V_PHI + 4, IDR[4])
    mfma(TN, V_PHI + 8, IDR[0], "0"); mfma(TN, V_PHI + 12, IDR[4])
    await_(C_1, 4)
    if f2: stamp("kv_a")
    K(f"s_lshl_b32 s{T}, s{S_A}, 13"); K(f"s_add_u32 s{T}, s{T}, {L_KVS}"); K(f"v_add_u32 v{t0}, s{T}, v{V_L16}")
    K(f"s_lshl_b32 s{T}, s{S_A}, 11"); K(f"s_add_u32 s{T}, s{T}, {L_KVS}"); K(f"v_add_u32 v{t1}, s{T}, v{V_L16}")
    for e in range(8): K(f"v_cvt_pk_bf16_f32 v{V_PHI+e}, v{TP+2*e}, v{TP+2*e+1}")
    mfma(V_ACC, V_PHI, VB, "0"); mfma(V_ACC, V_PHI + 4, VB + 4)
    for e in range(8): K(f"v_cvt_pk_bf16_f32 v{V_PHI+8+e}, v{TN+2*e}, v{TN+2*e+1}")
    mfma(V_ACC + 16, V_PHI + 8, VB, "0"); mfma(V_ACC + 16, V_PHI + 12, VB + 4)
    for b in range(8): K(f"ds_write_b128 v{t0}, {vr(V_ACC+4*b,4)} offset:{1024*b}")
    K.wait_vm(tkx[0])
    arrive(C_2)
    if f2: stamp("kv_b")
    await_(C_2, 4)
    if f2: stamp("kv_c")
    for hb in range(2):
        for g in range(4): K(f"ds_read_b128 {vr(V_P+16*hb+4*g,4)}, v{t1} offset:{8192*g + 1024*hb}")
    arrive(C_3)
    if f2: stamp("kv_d")
    for hb in range(2):
        K(f"s_waitcnt lgkmcnt({5 - 4*hb})")
        B = V_P + 16*hb
        for e in (0, 2): padd(B+e, B+e, B+4+e, pkq); padd(B+8+e, B+8+e, B+12+e, pkq)
        for e in (0, 2): padd(B+e, B+e, B+8+e, pkq)
        for e in range(x_at): K(f"buffer_atomic_add_f32 v{B+e}, v{A_L4}, {srd(R_WS)}, s{S_HB} offen offset:{1024*hb + 256*e}")
    stamp("kv_st")
    def hook(ks):
        if ks == 22: arrive(C_Q)
        if ks == kvf:
            K("s_waitcnt vmcnt(0)")
            signal(S_FL, 16)
            stamp("kv_pub")
    gemm_qkv([(L_Q, V_ACC, False)], hook)
    K(f"v_cvt_pk_bf16_f32 v{t0}, v{V_ACC+12}, v{V_ACC+12}")
    featmap()
    K(f"v_lshlrev_b32 v{t0}, 16, v{t0}")
    K(f"v_mul_f32 v{t0}, s{S_K}, v{t0}"); K(f"v_exp_f32 v{t0}, -v{t0}"); K(f"v_add_f32 v{t0}, 1.0, v{t0}"); K(f"v_rcp_f32 v{t0}, v{t0}")
    K(f"v_cvt_pk_bf16_f32 v{t0}, v{t0}, v{t0}"); K(f"v_lshlrev_b32 v{A_G}, 16, v{t0}")
    K("s_mov_b32 exec_lo, 0")
    K(f"buffer_store_dword v{A_G}, v{A_L4}, {srd(R_WS)}, s{S_XB} offen sc1")
    K("s_mov_b32 exec_lo, -1")
    stamp("q_gemm")
    softmax(pkq)
    stamp("sm_q")
    poll_issue(FL_K)
    poll_check(FL_K)
    stamp("kv_seen")
    for e in range(8): K(f"buffer_load_dword v{V_P+e}, v{A_L4}, {srd(R_WS)}, s{S_HB} offen offset:{256*e} sc1")
    F = V_W
    K(f"s_lshl_b32 s{T}, s{S_A}, 10"); K(f"v_add_u32 v{t1}, {L_KVF}, v{V_L16}"); K(f"v_add_u32 v{t0}, s{T}, v{t1}")
    K("s_waitcnt vmcnt(0)")
    stamp("kv_landed")
    for e in range(4): K(f"v_cvt_pk_bf16_f32 v{F+e}, v{V_P+2*e}, v{V_P+2*e+1}")
    K(f"ds_write_b128 v{t0}, {vr(F,4)}")
    arrive(C_4)
    await_(C_4, 4)
    if f2: stamp("o_a")
    for f in range(4): K(f"ds_read_b128 {vr(F+4*f,4)}, v{t1} offset:{1024*f}")
    N = V_ACC
    for f in range(4):
        K(f"s_waitcnt lgkmcnt({3-f})")
        mfma(N, F + 4*f, V_PHI + 4*f, "0" if f == 0 else None)
    K(f"v_cvt_pk_bf16_f32 v{t0}, v{N+12}, v{N+12}")
    for e in range(8): K(f"v_cvt_pk_bf16_f32 v{F+e}, v{N+2*e}, v{N+2*e+1}")
    K(f"v_lshlrev_b32 v{t0}, 16, v{t0}")
    K(f"v_add_f32 v{t0}, {f2u(1e-6):#x}, v{t0}")
    K(f"v_cvt_pk_bf16_f32 v{t0}, v{t0}, v{t0}"); K(f"v_lshlrev_b32 v{t0}, 16, v{t0}")
    K(f"v_rcp_f32 v{t0}, v{t0}")
    for e in range(4):
        K(f"v_lshlrev_b32 v{N+2*e}, 16, v{F+e}"); K(f"v_and_b32 v{N+2*e+1}, 0xffff0000, v{F+e}")
    K(f"v_mul_f32 v{t0}, v{t0}, v{A_G}"); K(f"v_mov_b32 v{t1}, v{t0}")
    for e in range(4, 8):
        K(f"v_lshlrev_b32 v{N+2*e}, 16, v{F+e}"); K(f"v_and_b32 v{N+2*e+1}, 0xffff0000, v{F+e}")
    K(f"v_permlane32_swap_b32 v{t1}, v{t0}")
    for e in range(0, 16, 2): pscale(N+e, t0, pkq)
    for e in range(8): K(f"v_cvt_pk_bf16_f32 v{F+e}, v{N+2*e}, v{N+2*e+1}")
    K(f"v_cndmask_b32 v{F+6}, v{F+6}, 0, {UPM}"); K(f"v_cndmask_b32 v{F+7}, v{F+7}, 0, {UPM}")
    K(f"buffer_store_dwordx4 {vr(F,4)}, v{V_L16}, {srd(R_WS)}, s{S_OB} offen sc1")
    K(f"buffer_store_dwordx4 {vr(F+4,4)}, v{V_L16}, {srd(R_WS)}, s{S_OB} offen offset:1024 sc1")
    if f2: stamp("o_b")
    K("s_waitcnt vmcnt(0)")
    signal(S_FL2, 7)
    stamp("o_pub")
    K(f"s_cmp_eq_u32 s{S_ACT}, 0")
    K.branch("s_cbranch_scc1 L_fin")
    K.branch("s_branch L_red")

    K.label("L_M")
    if prioM: K(f"s_setprio {prioM}")
    K("s_waitcnt lgkmcnt(0)")
    if stamps: K(f"v_writelane_b32 v{V_STAMP}, s{S_ST}, {STAMP_IDS.setdefault('start', len(STAMP_IDS))}")
    K(f"s_load_dword s{S_E}, {sp(P_WS)}, {WS_EPOCH}")
    mksrd(R_T, P_PHI, 16*1568)
    K(f"s_mul_i32 s{T}, s{S_J}, 1568"); K(f"s_mul_i32 s{T+1}, s{S_A}, 400"); K(f"s_add_u32 s{T}, s{T}, s{T+1}"); K(f"s_add_u32 m0, s{T+1}, {L_PHI}")
    K("s_mov_b64 exec, 0x1ffffff")
    K(f"buffer_load_dwordx4 v{V_L16}, {srd(R_T)}, s{T} offen lds")
    K("s_mov_b64 exec, -1")
    K(f"v_mov_b32 v{V_CNT}, {L_CNT}")
    K(f"v_mov_b32 v{t0}, 0"); K(f"v_lshl_add_u32 v{t1}, v{V_LANE}, 2, v{V_CNT}"); K(f"ds_write_b32 v{t1}, v{t0}")
    K(f"s_cmp_lt_u32 s{S_J}, 14")
    K.branch("s_cbranch_scc1 L_mset")
    vm_m = K.vm
    RB = 96
    K0 = S_XB
    mksrd(R_T, P_WQKV, 448*2688)
    K(f"s_lshl_b32 s{S_FL}, s{S_MT}, 1"); K(f"s_add_u32 s{S_FL}, s{S_FL}, s{S_J}"); K(f"s_sub_u32 s{S_FL}, s{S_FL}, 14")
    K(f"s_mul_i32 s{K0}, s{S_FL}, 14"); K(f"s_lshl_b32 s{T+5}, s{S_A}, 1"); K(f"s_add_u32 s{K0}, s{K0}, s{T+5}")
    K(f"v_lshrrev_b32 v{t0}, 3, v{V_LANE}"); K(f"v_bfe_u32 v{t1}, v{V_LANE}, 2, 1"); K(f"v_and_b32 v{t2}, 3, v{V_LANE}")
    K(f"v_mul_u32_u24 v{t3}, 56, v{t0}"); K(f"v_mul_u32_u24 v{t4}, 2688, v{t1}"); K(f"v_add_u32 v{t3}, v{t3}, v{t4}")
    K(f"v_lshl_add_u32 v{t3}, v{t2}, 4, v{t3}")
    K(f"s_mul_i32 s{T+5}, s{K0}, 2688"); K(f"v_lshlrev_b32 v{t4}, 1, v{t1}"); K(f"s_lshl_b32 s{T+6}, s{K0}, 1")
    tkl = {}
    if fine: stamp("rp_0")
    K(f"s_add_u32 s{T+7}, s{T+5}, {8*2688}"); K(f"s_cmp_eq_u32 s{S_A}, 3"); K(f"s_cselect_b32 s{T+7}, 0x7000000, s{T+7}"); K(f"s_cselect_b32 s{S_CH}, s{T+7}, 512")
    def rp_load(q): tkl[q] = K(f"buffer_load_dwordx4 {vr(RB+4*q,4)}, v{t3}, {srd(R_T)}, s{T+5 if q < 6 else T+7} offen offset:{448*(q%6)}")
    for q in (2, 3, 4, 5, 8, 9, 10, 11): rp_load(q)
    mksrd(R_X, P_GATE, 896)
    K(f"buffer_load_ushort v{RB+48}, v{t4}, {srd(R_X)}, s{T+6} offen"); K(f"buffer_load_ushort v{RB+49}, v{t4}, {srd(R_X)}, s{T+6} offen offset:16")
    for q in (0, 1, 6, 7): rp_load(q)
    mksrd(R_WS, P_WS, WS_SIZE)
    K(f"s_mov_b32 s{T+6}, 86016"); K(f"v_mul_lo_u32 v{RB+50}, v{t0}, s{T+6}"); K(f"v_and_b32 v{t1}, 7, v{V_LANE}")
    K(f"v_lshl_add_u32 v{RB+50}, v{t1}, 4, v{RB+50}")
    K(f"v_cmp_eq_u32 vcc, 3, v{t2}")
    K(f"s_lshl_b32 s{K0}, s{K0}, 6"); K(f"s_add_u32 s{K0}, s{K0}, {WS_WQ}")
    def rp_store(q):
        n, p, hg = q // 6, (q % 6) // 2, q % 2; b = RB + 4*q
        K.wait_vm(tkl[q])
        K(f"v_cndmask_b32 v{b+2}, v{b+2}, v{RB+48+n}, vcc" if p == 0 else f"v_cndmask_b32 v{b+2}, v{b+2}, 0, vcc")
        K(f"v_cndmask_b32 v{b+3}, v{b+3}, 0, vcc")
        K(f"s_add_u32 s{T+6}, s{K0}, {p*28672 + hg*8*86016}")
        if n: K(f"s_add_u32 s{T+6}, s{T+6}, s{S_CH}")
        return K(f"buffer_store_dwordx4 {vr(b,4)}, v{RB+50}, {srd(R_WS)}, s{T+6} offen sc1")
    for e in range(4): K(f"v_mov_b32 v{RB+52+e}, 0")
    K(f"s_lshl_b32 s{T+5}, s{S_FL}, 2"); K(f"s_add_u32 s{T+5}, s{T+5}, s{S_A}"); K(f"s_lshl_b32 s{T+7}, s{T+5}, 12"); K(f"s_lshl_b32 s{T+5}, s{T+5}, 10")
    K(f"s_add_u32 s{T+5}, s{T+5}, {WS_KVP}"); K(f"s_add_u32 s{T+7}, s{T+7}, {WS_CN}"); K(f"v_lshlrev_b32 v{t0}, 7, v{V_LANE}")
    K(f"buffer_store_dwordx4 {vr(RB+52,4)}, v{V_L16}, {srd(R_WS)}, s{T+5} offen sc1")
    K("s_mov_b32 exec_hi, 0")
    K(f"buffer_store_dword v{RB+52}, v{t0}, {srd(R_WS)}, s{T+7} offen sc1")
    K("s_mov_b32 exec_hi, -1")
    K(f"s_lshl_b32 s{S_FL}, s{S_FL}, 7"); K(f"s_add_u32 s{S_FL}, s{S_FL}, {WS_RPF}"); K(f"s_add_u32 s{S_FL2}, s{S_FL}, 4096")
    K(f"s_cmp_eq_u32 s{S_A}, 3"); K(f"s_cselect_b32 s{S_FL}, s{S_FL}, 0x7000000"); K(f"s_cselect_b32 s{S_FL2}, s{S_FL2}, 0x7000000")
    K("s_waitcnt lgkmcnt(0)")
    settag()
    for q in (2, 3, 4, 5, 8, 9, 10, 11): tk1 = rp_store(q)
    for q in (0, 1, 6, 7): rp_store(q)
    if fine: stamp("rp_st")
    K("s_barrier")
    K.wait_vm(tk1)
    K("s_barrier")
    flag(S_FL)
    stamp("rp_pub")
    K("s_waitcnt vmcnt(1)")
    arrive(C_5); await_(C_5, 4)
    flag(S_FL2)
    arrive(C_E); arrive(C_G)
    K("s_setprio 0")
    K.vm = vm_m
    K.label("L_mset")
    if allpf:
        mksrd(R_X, P_X, 2048*896); mksrd(R_W1, P_W1, 448*3584)
        K(f"s_lshl_b32 s{T+3}, s2, 2"); K(f"s_add_u32 s{T+3}, s{T+3}, s{S_A}")
        K(f"s_mul_i32 s{T}, s{T+3}, {14*128}"); K(f"s_mul_i32 s{T+1}, s{T+3}, {13*128}"); K(f"v_lshlrev_b32 v{t0}, 7, v{V_LANE}")
        K("s_mov_b64 exec, 0x3fff")
        if allpf & 1: K(f"buffer_load_dword v{V_POLL}, v{t0}, {srd(R_X)}, s{T} offen")
        K("s_mov_b64 exec, 0x1fff")
        if allpf & 2: K(f"buffer_load_dword v{V_POLL}, v{t0}, {srd(R_W1)}, s{T+1} offen")
        K("s_mov_b64 exec, -1")
    if spf:
        K(f"s_lshl_b32 s{T+3}, s2, 2"); K(f"s_add_u32 s{T+3}, s{T+3}, s{S_A}")
        K(f"s_mul_i32 s{T}, s{T+3}, {12*128 + 32}"); K(f"s_mul_i32 s{T+1}, s{T+3}, {3*128 + 8}")
        for q in range(13): K(f"s_load_dword s{S_CNT}, {sp(P_W2)}, s{T} offset:{min(128*q, 12*128 + 28)}")
        K("s_waitcnt lgkmcnt(10)")
        for q in range(4): K(f"s_load_dword s{S_CNT}, {sp(P_WO)}, s{T+1} offset:{min(128*q, 3*128 + 4)}")
    mksrd(R_WS, P_WS, WS_SIZE); mksrd(R_WO, P_WO, 448*896); mksrd(R_OUT, P_OUT, 2048*896)
    p2setup()
    K(f"s_mul_i32 s{T}, s{S_ROW}, {112*1024}"); K(f"s_add_u32 s{T}, s{T}, {0x7000000 if x_noh else WS_H}")
    K(f"s_lshl_b32 s{S_HB}, s{T+4}, 12"); K(f"s_add_u32 s{S_HB}, s{S_HB}, s{T}")
    K(f"s_lshl_b32 s{S_HB3}, s{T+2}, 12"); K(f"s_add_u32 s{S_HB3}, s{S_HB3}, s{T}")
    BF1, BF2, BONE = M_AR + 80, 128, 124
    for r in list(range(BF1, BF1 + 16)) + list(range(BONE, BF2 + 8)): K(f"v_mov_b32 v{r}, 0")
    K(f"v_lshlrev_b32 v{t0}, 1, v{V_LANE}")
    K("s_mov_b32 exec_hi, 0")
    K(f"v_mov_b32 v{BONE}, 0x3f80")
    mksrd(R_T, P_B1, 3584)
    for p in range(4): K(f"buffer_load_ushort v{BF1+4*p}, v{t0}, {srd(R_T)}, s{S_W1B} offen offset:{64*p}")
    mksrd(R_T, P_B2, 896)
    K(f"s_lshl_b32 s{T}, s{S_CT}, 7"); K(f"s_lshl_b32 s{T+1}, s{S_A}, 10"); K(f"s_add_u32 s{T}, s{T}, s{T+1}")
    for p in range(2): tk_b2 = K(f"buffer_load_ushort v{BF2+4*p}, v{t0}, {srd(R_T)}, s{T} offen offset:{64*p}")
    K("s_mov_b32 exec_hi, -1")
    K(f"s_lshl_b32 s{T}, s{S_ROW}, 1"); K(f"s_add_u32 s{T}, s{T}, s{S_A}")
    K(f"s_lshl_b32 s{T+1}, s{S_CT}, 7")
    K(f"s_lshl_b32 s{S_PE}, s{T}, 11"); K(f"s_add_u32 s{S_PE}, s{S_PE}, s{T+1}"); K(f"s_add_u32 s{S_PE}, s{S_PE}, {WS_HF}")
    K(f"s_lshl_b32 s{S_PO}, s{T}, 10"); K(f"s_add_u32 s{S_PO}, s{S_PO}, s{T+1}"); K(f"s_add_u32 s{S_PO}, s{S_PO}, {WS_OF}")
    K(f"s_lshl_b32 s{T}, s{S_ROW}, 4"); K(f"s_lshl_b32 s{T+1}, s{S_A}, 2"); K(f"s_add_u32 s{S_OB}, s{T+1}, s{T}")
    FL_E, FL_L, FL_O = (S_PE, 0, 6), (S_PE, 1024, 8), (S_PO, 0, 8)
    K(f"s_lshl_b32 s{T}, s{S_MT}, 2"); K(f"s_add_u32 s{T}, s{T}, s{S_A}"); K(f"s_mul_i32 s{S_RS}, s{T}, 112")
    K(f"s_lshl_b32 s{T+1}, s{S_J}, 3"); K(f"s_add_u32 s{S_RS}, s{S_RS}, s{T+1}"); K(f"s_lshl_b32 s{S_RS}, s{S_RS}, 10"); K(f"s_add_u32 s{S_RS}, s{S_RS}, {WS_H}")
    K(f"s_lshr_b32 s{T}, s{T}, 1"); K(f"s_lshl_b32 s{T}, s{T}, 13"); K(f"s_add_u32 s{T}, s{T}, {WS_HF}")
    K(f"s_mul_i32 s{T+1}, s{S_J}, {74*8}"); K(f"s_and_b32 s{S_FL}, s{T+1}, 0xf800"); K(f"s_add_u32 s{S_FL}, s{S_FL}, s{T}")
    K(f"s_add_u32 s{T+1}, s{T+1}, {37*8}"); K(f"s_and_b32 s{S_FL2}, s{T+1}, 0xf800"); K(f"s_add_u32 s{S_FL2}, s{S_FL2}, s{T}"); K(f"s_add_u32 s{S_FL2}, s{S_FL2}, 1024")
    K(f"s_lshr_b32 s{T+1}, {(1 << 3) | (1 << 10)}, s{S_J}"); K(f"s_and_b32 s{T+1}, s{T+1}, 1"); K(f"s_lshl_b32 s{T+1}, s{T+1}, 10"); K(f"s_add_u32 s{S_FL}, s{S_FL}, s{T+1}")
    K(f"s_cmp_ge_u32 s{S_J}, 14"); K(f"s_cselect_b32 s{S_FL2}, 0x7000000, s{S_FL2}")
    K(f"v_add_u32 v{M_L16B}, {112*1024}, v{V_L16}")
    MP = M_AR + 40
    K(f"v_lshlrev_b32 v{MP}, 7, v{V_LANE}")
    K(f"s_lshl_b32 s{T+3}, s2, 2"); K(f"s_add_u32 s{T+3}, s{T+3}, s{S_A}")
    K(f"s_mul_i32 s{S_XB}, s{T+3}, {13*128}"); K(f"s_lshl_b32 s{S_M0}, s{T+3}, 9")
    def mall_pf():
        K("s_mov_b64 exec, 0x1fff")
        K(f"buffer_load_dword v{V_POLL}, v{MP}, {srd(R_W2)}, s{S_XB} offen")
        K("s_mov_b64 exec, 15")
        K(f"buffer_load_dword v{V_POLL}, v{MP}, {srd(R_WO)}, s{S_M0} offen")
        K("s_mov_b64 exec, -1")
    if mpf == 1: mall_pf()
    if tlb:
        l = newl("tlb")
        K(f"s_cmp_lg_u32 s{S_A}, 1")
        K.branch(f"s_cbranch_scc1 {l}")
        K(f"v_lshlrev_b32 v{t0}, {tlb}, v{V_LANE}")
        K(f"buffer_load_dword v{V_POLL}, v{t0}, {srd(R_WS)}, 0 offen offset:2048"); K.vm -= 1
        K(f"buffer_load_dword v{V_POLL}, v{t0}, {srd(R_OUT)}, 0 offen"); K.vm -= 1
        K.label(l)
    xfrag_addr(M_AX)
    lanepart()
    K(f"v_lshl_add_u32 v{t0}, v{t2}, 3, v{t3}"); K(f"v_lshl_add_u32 v{t0}, v{t0}, 8, v{t4}"); K(f"v_lshl_add_u32 v{t0}, v{t3}, 6, v{t0}")
    K(f"v_add_u32 v{M_AW}, 16384, v{t0}")
    for p in range(1, 4): K(f"v_xor_b32 v{M_AW+p}, {64*p}, v{M_AW}")
    AB = M_AB
    K(f"v_lshl_add_u32 v{t0}, v{t2}, 2, v{t3}"); K(f"v_lshl_add_u32 v{t0}, v{t0}, 7, v{t4}"); K(f"v_bfe_u32 v{t1}, v{V_LANE}, 3, 1"); K(f"v_lshl_add_u32 v{t0}, v{t1}, 6, v{t0}")
    K(f"v_add_u32 v{AB}, s{S_M02}, v{t0}"); K(f"v_xor_b32 v{AB+1}, 64, v{AB}")
    K(f"v_add_u32 v{AB+2}, 65536, v{AB}"); K(f"v_add_u32 v{AB+3}, 65536, v{AB+1}")
    K(f"v_lshlrev_b32 v{t0}, 9, v{t2}"); K(f"v_sub_u32 v22, v{AB+2}, v{t0}"); K(f"v_sub_u32 v23, v{AB+3}, v{t0}")
    box = {}
    K(f"s_cmp_ge_u32 s{S_J}, 14")
    K.branch("s_cbranch_scc1 L_nof")
    vm_nof = K.vm
    K("s_waitcnt lgkmcnt(0)")
    settag()
    if fine: stamp("M_rdy")
    WR, XR = M_BH, M_BH + 4*G
    tk = {}
    def rdg(g):
        ks, p = g // 4, g % 4
        t, ksl = ks // 4, ks % 4
        uo = (t % 2) * 32768
        if p == 0 and ksl == 0:
            shift(range(M_AX, M_AX + 8), SH[t])
            if t == 3: K.wait_vm(tk_b2)
            if t < 6: K("s_barrier")
            else:
                l = newl("s6")
                K.wait_lg(box['cs'])
                K(f"v_cmp_ne_u32 vcc, 4, v{t4}")
                K(f"s_cbranch_vccz {l}")
                lgs = K.lg
                await_(C_S, 4)
                K.lg = lgs
                K.raw(f"{l}:")
        if p == 0: K(f"ds_read_b128 {vr(XR + 4*(ks % 3), 4)}, v{M_AX+ksl} offset:{uo}")
        for r in range(2):
            tk[g] = K(f"ds_read_b64_tr_b16 {vr(WR + 4*(g % G) + 2*r, 2)}, v{M_AW+p} offset:{uo + (16*ksl + 4*r)*256}")
    for g in range(G): rdg(g)
    for g in range(112):
        K.wait_lg(tk[g])
        mfma(M_ACC + 16*(g % 4), WR + 4*(g % G), XR + 4*((g // 4) % 3), "0" if g < 4 else None, x_m16 & 1)
        if 52 <= g < 56: mfma(M_ACC + 16*(g % 4), BF1 + 4*(g % 4), BONE)
        if g + G < 112: rdg(g + G)
        if g + G == 112: arrive(C_E)
        if g + G + 3 == 96: box['cs'] = K(f"ds_read_b32 v{t4}, v{V_CNT} offset:{C_S}")
        if mpf > 1 and g == mpf: mall_pf()
    stamp("ffn1")
    K(f"s_setprio {prioG}")
    tk = {}
    def rdb(ks, part=3):
        r, ksl = ks // 4, ks % 4
        b = M_BH + 8 * (ks % 8)
        u = RUNIT[r]
        if ksl == 0 and r >= (4 if aw2 == 3 else 2) and part & 1: K.wait_vm(tk_r[r])
        for pp in range(2):
            for h in range(2):
                if not part & (1 << pp): continue
                if r < 7:
                    tk[ks] = K(f"ds_read_b64_tr_b16 {vr(b + 4*pp + 2*h, 2)}, v{AB + pp + (2 if u >= 2 else 0)} offset:{(u%2)*32768 + (16*ksl + 8*h)*128}")
                else:
                    hh, sx = (ks % 4) // 2, ks % 2
                    tk[ks] = K(f"ds_read_b64_tr_b16 {vr(b + 4*pp + 2*h, 2)}, v{(22 if (sx == 1 and h == 1) else AB + 2) + pp} offset:{(u%2)*32768 + (28*hh + 16*sx + 8*h)*128}")
    def pull():
        await_(C_B, 4)
        for e in range(12): K(f"v_mov_b32 v{BF1+e}, v{BONE+e}")
        for ks in range(8):
            if ks >= 3: K.wait_lg(tk[ks - 3])
            rdb(ks)
        arrive(C_P)
    cc = -2.0 * 0.7978845608028654 * 1.4426950408889634
    K(f"v_mov_b32 v{t0}, {f2u(cc):#x}"); K(f"v_mov_b32 v{t1}, 1.0"); K(f"s_mov_b32 s{S_K}, {f2u(cc*0.044715):#x}"); K(f"s_mov_b32 s{S_K+1}, {f2u(cc*0.044715):#x}")
    tkh = {}
    for g in range(8):
        a = M_ACC + 8*g; tt = M_AR + 8*(g % 2); o = M_AR + 48 + 4*g
        if g < pkg:
            for e in range(0, 8, 2): K(f"v_pk_mul_f32 {vr(tt+e,2)}, {vr(a+e,2)}, {vr(a+e,2)}")
            for e in range(0, 8, 2): K(f"v_pk_fma_f32 {vr(tt+e,2)}, {vr(tt+e,2)}, {sp(S_K)}, {vr(t0,2)} op_sel_hi:[1,1,0]")
            for e in range(0, 8, 2): K(f"v_pk_mul_f32 {vr(tt+e,2)}, {vr(a+e,2)}, {vr(tt+e,2)}")
            for e in range(8): K(f"v_exp_f32 v{tt+e}, v{tt+e}")
            for e in range(0, 8, 2): K(f"v_pk_add_f32 {vr(tt+e,2)}, {vr(tt+e,2)}, {vr(t0,2)} op_sel:[0,1] op_sel_hi:[1,1]")
            for e in range(8): K(f"v_rcp_f32 v{tt+e}, v{tt+e}")
            for e in range(0, 8, 2): K(f"v_pk_mul_f32 {vr(tt+e,2)}, {vr(a+e,2)}, {vr(tt+e,2)}")
        else:
            for e in range(8): K(f"v_mul_f32 v{tt+e}, v{a+e}, v{a+e}")
            for e in range(8): K(f"v_fma_f32 v{tt+e}, v{tt+e}, s{S_K}, v{t0}")
            for e in range(8): K(f"v_mul_f32 v{tt+e}, v{a+e}, v{tt+e}")
            for e in range(8): K(f"v_exp_f32 v{tt+e}, v{tt+e}")
            for e in range(8): K(f"v_add_f32 v{tt+e}, 1.0, v{tt+e}")
            for e in range(8): K(f"v_rcp_f32 v{tt+e}, v{tt+e}")
            for e in range(8): K(f"v_mul_f32 v{tt+e}, v{a+e}, v{tt+e}")
        for e in range(4): K(f"v_cvt_pk_bf16_f32 v{o+e}, v{tt+2*e}, v{tt+2*e+1}")
        if g == gw: arrive(C_G)
        if aw2 == 3 and g == gp: pull()
        if (g + 1) % sb == 0:
            K("s_setprio 3")
            for x in range(g + 1 - sb, g + 1):
                if x == 4: K(f"s_add_u32 s{S_RS}, s{S_RS}, 4096")
                tkh[x] = K(f"buffer_store_dwordx4 {vr(M_AR + 48 + 4*x,4)}, v{V_L16}, {srd(R_WS)}, s{S_RS} offen offset:{1024*(x%4)} sc1")
            if g < 7: K(f"s_setprio {prioG}")
    stamp("gelu_v")
    await_(C_0, 4)
    K.wait_vm(tkh[3]); signal(S_FL, 7)
    stamp("gelu")
    K(f"s_cmp_eq_u32 s{S_ACT}, 1")
    K.branch("s_cbranch_scc1 L_p2")
    K("s_waitcnt vmcnt(0)")
    signal(S_FL2, 7)
    def l2warm(first, n):
        K(f"s_lshr_b32 s{T}, s2, 3"); K(f"s_and_b32 s{T}, s{T}, 3"); K(f"s_lshl_b32 s{T}, s{T}, 2"); K(f"s_add_u32 s{T}, s{T}, s{S_A}"); K(f"s_lshl_b32 s{T}, s{T}, 13")
        K(f"v_lshlrev_b32 v{t0}, 7, v{V_LANE}")
        for k in range(n):
            K(f"s_add_u32 s{T+1}, s{T}, {(first + 1024*k)*128}")
            K(f"buffer_load_dword v{t1}, v{t0}, {srd(R_W2)}, s{T+1} offen")
    if l2w & 1:
        l2warm(0, 13)
        for k in range(4):
            K(f"s_add_u32 s{T+1}, s{T}, {1024*k*128}")
            K(f"buffer_load_dword v{t1}, v{t0}, {srd(R_WO)}, s{T+1} offen")
    K.branch("s_branch L_fin")
    K.label("L_nof")
    K.vm = vm_nof
    if mpf == -2: await_(C_E, 8, 2)
    if mpf == -1: await_(C_0, 4, 2)
    if mpf < 0:
        K(f"s_lshl_b32 s{T+3}, s2, 2"); K(f"s_add_u32 s{T+3}, s{T+3}, s{S_A}")
        K(f"s_mul_i32 s{T}, s{T+3}, {98*128}"); K(f"s_mul_i32 s{T+1}, s{T+3}, {25*128}")
        K(f"buffer_load_dword v{V_POLL}, v{MP}, {srd(R_W2)}, s{T} offen")
        K(f"s_add_u32 s{T}, s{T}, {64*128}")
        K("s_mov_b32 exec_hi, 3")
        K(f"buffer_load_dword v{V_POLL}, v{MP}, {srd(R_W2)}, s{T} offen")
        K("s_mov_b64 exec, 0x1ffffff")
        K(f"buffer_load_dword v{V_POLL}, v{MP}, {srd(R_WO)}, s{T+1} offen")
        K("s_mov_b64 exec, -1")
    await_(C_0, 4, 2)
    K("s_waitcnt lgkmcnt(0)")
    settag()
    if mpf > 1: mall_pf()
    if l2w & 2: l2warm(0, 13)
    K("s_waitcnt vmcnt(0)")
    if aw2 == 3: pull()

    K.label("L_p2")
    tk_h = K.vm
    def g_wo(hf):
        def step(q):
            def f():
                if q == 0:
                    K(f"s_mul_i32 s{TD}, s{S_A}, {112*896}"); K(f"s_lshl_b32 s{TD+1}, s{S_CT}, 7"); K(f"s_add_u32 s{TD}, s{TD}, s{TD+1}")
                    if hf: K(f"s_add_u32 s{TD}, s{TD}, {56*896}")
                    K(f"s_add_u32 m0, s{S_M02}, {U[RUNIT[7+hf]]}")
                if q == 4: K(f"s_add_u32 s{TD}, s{TD}, {32*896}"); K(f"s_add_u32 m0, s{S_M02}, {U[RUNIT[7+hf]] + 4096}")
                x = K(f"buffer_load_dwordx4 v{V_D2+q%4}, {srd(R_WO)}, s{TD} offen offset:{1024*(q%4)} lds")
                if q == 6: tk_r[7+hf] = x
            return f
        return [step(q) for q in range(7)]
    tk_a = {}
    def lda(ks, part=3):
        b = M_AR + 8 * (ks % NA); r = ks // 4
        if part & 1:
            if ks % 4 == 0: K(f"s_add_u32 s{T+7}, s{S_HB3 if r == 3 else S_HB}, {0 if r == 3 else (2*r % 7)*4096}")
            K(f"buffer_load_dwordx4 {vr(b,4)}, v{V_L16}, {srd(R_WS)}, s{T+7} offen offset:{1024*(ks%4)} sc1")
        if part & 2: tk_a[ks] = K(f"buffer_load_dwordx4 {vr(b+4,4)}, v{M_L16B}, {srd(R_WS)}, s{T+7} offen offset:{1024*(ks%4)} sc1")
    for t2_ in range(2):
        for pp in range(2): mfma(M_ACC + 32*t2_ + 16*pp, (BF1 + 4 if aw2 == 3 else BF2) + 4*pp, BF1 if aw2 == 3 else BONE, "0")
    g0, g1, g2, g3 = g_w2(0), g_w2(1), g_w2(2), g_w2(3)
    if aw2 == 3:
        K.wait_vm(tk_h - 1)
        signal(S_FL2, 7)
        K(f"s_setprio 0")
        stamp("h_pub1")
        poll_issue(FL_E)
        poll_check(FL_E)
        stamp("hE_seen")
        for ks in range(pre): lda(ks)
        g3 = []
    elif aw2:
        K.wait_vm(tk_h - 1)
        signal(S_FL2, 7)
        K(f"s_setprio 0")
        stamp("h_pub1")
        if hfirst:
            poll_issue(FL_E)
            poll_check(FL_E)
            stamp("hE_seen")
            for ks in range(pre): lda(ks)
        await_(C_B, 4)
        stamp("B_seen")
        if jit:
            for ks in range(8):
                if ks >= 3: K.wait_lg(tk[ks - 3])
                rdb(ks)
        else:
            for ks in range(3): rdb(ks)
            K.wait_lg(tk[0]); rdb(3)
            K.wait_lg(tk[3])
            for q in range(8):
                g2[q]()
                if q < 4:
                    if q == 3: K.wait_lg(tk[4])
                    rdb(4 + q)
        K("s_waitcnt lgkmcnt(0)")
        if not hfirst:
            poll_issue(FL_E)
            run(g3); g3 = []
            poll_check(FL_E)
            stamp("hE_seen")
            for ks in range(pre): lda(ks)
    else:
        await_(C_E, 8)
        for q in range(8):
            g0[q]()
        K.wait_vm(tk_h - 1)
        signal(S_FL2, 7)
        K(f"s_setprio 0")
        stamp("h_pub1")
        poll_issue(FL_E)
        run(g1)
        poll_check(FL_E)
        stamp("hE_seen")
        if jit:
            for ks in range(8):
                if ks < pre: lda(ks)
                if ks % 4 == 0: K.wait_vm(tk_r[ks // 4])
                if ks >= 3: K.wait_lg(tk[ks - 3])
                rdb(ks)
            assert pre <= 8
        else:
            for ks in range(4): lda(ks)
            K.wait_vm(tk_r[0])
            for ks in range(4):
                if ks == 3: K.wait_lg(tk[0])
                rdb(ks); lda(4 + ks)
            K.wait_vm(tk_r[1]); K.wait_lg(tk[3])
            for q in range(8):
                g2[q]()
                if q < 4:
                    if q == 3: K.wait_lg(tk[4])
                    rdb(4 + q)
        K("s_waitcnt lgkmcnt(0)")
    stamp("p2_prep")
    poll_issue(FL_L)
    sched = []
    if jit:
        for k in range(pre, 28):
            for p in (1, 2): sched.append((k, max(k - NA + 1, c0 + 1 if k >= 12 else 0), lambda k=k, p=p: lda(k, p), 0))
        early = {2: 0, 3: 0, 4: c3 + 1, 5: 12, 6: 16, 7: cq + 1, 8: 20}
        for r in range(2, 9):
            for q, f in enumerate(g_w2(r) if r < 7 else g_wo(r - 7)): sched.append((4*r - bl + q // 2 + 0.5, early[r], f, r))
        sched.sort(key=lambda z: z[0])
    else:
        for ks in range(pre if aw2 else 8, 12): pend.extend([lambda ks=ks: lda(ks, 1), lambda ks=ks: lda(ks, 2)])
        pend.extend(g3)
    def jdrip(ks):
        first = min([z[3] for z in sched if z[3]], default=0)
        for n, (key, e, f, grp) in enumerate(sched):
            if e <= ks and grp in (0, first):
                f(); sched.pop(n); return
    def step(ks, side):
        K.wait_vm(tk_a[ks])
        if ks >= 8: K.wait_lg(tk[ks])
        a = M_AR + 8 * (ks % NA); b = M_BH + 8 * (ks % 8)
        n = 0
        for t2_ in range(2):
            for pp in range(2):
                if not (x_nomf and ks < 28): mfma(M_ACC + 32*t2_ + 16*pp, b + 4*pp, a + 4*t2_, None, x_m16 & 2)
                side(n); n += 1
    nxt = [12]
    def hstep(ks):
        def side(n):
            if n < 2 and ks + 3 >= 8: rdb(ks + 3, 1 << n)
            if jit and sched:
                jdrip(ks)
                if n < rate - 4: jdrip(ks)
            else: drip(2 if len(pend) > 8 else 1)
        step(ks, side)
    def ldo(ks, part):
        b = M_AR + 8 * (ks % NA)
        if part == 0:
            K(f"buffer_load_dword v{t2}, v{t3}, {srd(R_WS)}, s{T+3} offen sc1")
            box['g'] = K(f"buffer_load_dword v{t3}, v{t3}, {srd(R_WS)}, s{T+3} offen offset:2048 sc1")
        if part == 1:
            if ks == 32: K(f"s_add_u32 s{T+4}, s{T+4}, 4096")
            K(f"buffer_load_dwordx4 {vr(b,4)}, v{V_L16}, {srd(R_WS)}, s{T+4} offen offset:{1024*(ks%4)} sc1")
        if part == 2: tk_a[ks] = K(f"buffer_load_dwordx4 {vr(b+4,4)}, v{M_L16B}, {srd(R_WS)}, s{T+4} offen offset:{1024*(ks%4)} sc1")
    olist = lambda: [lambda: ldo(0, 0)] + [lambda k=k, p=p: ldo(k, p) for k in range(28, 36) for p in (1, 2)]
    for ks in range(oc + 1):
        hstep(ks)
        if ks == c0:
            poll_check(FL_L)
            stamp("hL_seen")
        if ks == 4 and aw2 == 3: await_(C_B2, 4)
        if ks == c3:
            await_(C_3, 4)
            if not jit: pend.extend(g_w2(4))
        if ks == cq:
            await_(C_Q, 4)
            if not jit: pend.extend(g_wo(0))
        if not jit:
            while ks >= c0 and nxt[0] <= ks + NA and nxt[0] < 28:
                pend.extend([lambda k=nxt[0]: lda(k, 1), lambda k=nxt[0]: lda(k, 2)]); nxt[0] += 1
            if ks == 11: pend.extend(g_w2(5))
            if ks == 15: pend.extend(g_w2(6))
            if ks == 19: pend.extend(g_wo(1))
        if ks in (3, 11, 19): stamp(f"p2_k{ks}")
        if ks == oc - 2: poll_issue(FL_O)
    while sched: jdrip(99)
    assert not pend and oc >= 22
    K(f"v_and_b32 v{t3}, 31, v{V_LANE}"); K(f"v_lshlrev_b32 v{t3}, 2, v{t3}")
    K(f"s_lshl_b32 s{T+3}, s{S_OB}, 7"); K(f"s_add_u32 s{T+3}, s{T+3}, {WS_G}")
    K(f"s_lshl_b32 s{T+4}, s{S_OB}, 11"); K(f"s_add_u32 s{T+4}, s{T+4}, {WS_O}")
    K(f"v_add_u32 v{M_L16B}, 32768, v{V_L16}")
    K(f"v_add_u32 v{V_D2}, s{S_M02}, v{V_L16}")
    for q in range(1, 4): K(f"v_xor_b32 v{V_D2+q}, {64*q}, v{V_D2}")
    K("s_waitcnt lgkmcnt(0)")
    K(f"s_cmp_lg_u32 s{PD[0]}, {FL_O[2]}")
    K.branch("s_cbranch_scc1 L_olate")
    sv, sl = K.vm, K.lg
    stamp("o_early")
    pend.extend(olist())
    for ks in range(oc + 1, 28): hstep(ks)
    drip(99)
    ev, el = K.vm, K.lg
    K.branch("s_branch L_ojoin")
    K.label("L_olate")
    K.vm, K.lg = sv, sl
    for ks in range(oc + 1, 28): hstep(ks)
    poll_issue(FL_O)
    poll_check(FL_O)
    stamp("o_late")
    run(olist())
    assert (ev, el) == (K.vm, K.lg)
    K.label("L_ojoin")
    stamp("p2_h_done")
    tk_g = box['g']
    K.wait_vm(tk_g)
    if f2: stamp("t_g")
    K(f"v_sub_f32 v{t4}, 1.0, v{t2}"); K(f"v_sub_f32 v{t5}, 1.0, v{t3}")
    K(f"v_cvt_pk_bf16_f32 v{t4}, v{t4}, v{t5}"); K(f"v_and_b32 v{t5}, 0xffff0000, v{t4}"); K(f"v_lshlrev_b32 v{t4}, 16, v{t4}")
    for e in range(0, 64, 2): pscale(M_ACC+e, t4 if e < 32 else t5, True)
    for ks in range(28, 36):
        def side(n):
            if n < 2 and ks + 3 < 36: rdb(ks + 3, 1 << n)
        step(ks, side)
    if f2: stamp("t_mf")
    for t2_ in range(2):
        for b in range(8): K(f"ds_write_b128 v{V_D2 + b%4}, {vr(M_ACC+32*t2_+4*b,4)} offset:{32768*t2_ + 1024*b}")
    stamp("p2_done")

    K.label("L_red")
    K(f"v_and_b32 v{t1}, 7, v{V_LANE}"); K(f"v_lshrrev_b32 v{t3}, 3, v{V_LANE}")
    K(f"s_lshl_b32 s{T+1}, s{S_A}, 3"); K(f"v_add_u32 v{t0}, s{T+1}, v{t3}")
    K(f"v_and_b32 v{t2}, 3, v{V_LANE}"); K(f"v_lshlrev_b32 v{t2}, 2, v{t2}"); K(f"v_xor_b32 v{t0}, v{t0}, v{t2}")
    K(f"v_lshlrev_b32 v{t0}, 4, v{t0}"); K(f"v_lshl_add_u32 v{t0}, v{t1}, 10, v{t0}")
    K(f"s_lshr_b32 s{T+2}, s{S_W}, 2"); K(f"s_lshl_b32 s{T}, s{T+2}, 15"); K(f"v_add_u32 v{t0}, s{T}, v{t0}")
    K(f"v_mul_u32_u24 v{t3}, 896, v{t3}"); K(f"v_lshl_add_u32 v{t3}, v{t1}, 4, v{t3}")
    K(f"s_lshl_b32 s{T}, s{S_ROW}, 2"); K(f"s_add_u32 s{T}, s{T}, s{S_W}"); K(f"s_mul_i32 s{T}, s{T}, {8*896}"); K(f"s_lshl_b32 s{T+1}, s{S_CT}, 7"); K(f"s_add_u32 s{T+5}, s{T}, s{T+1}")
    K("s_waitcnt lgkmcnt(0)")
    K("s_barrier")
    if f2: stamp("t_bar")
    R = 160
    for q in range(4):
        K(f"ds_read_b128 {vr(R+8*q,4)}, v{t0} offset:{8192*q}")
        K(f"ds_read_b128 {vr(R+8*q+4,4)}, v{t0} offset:{8192*q + 512}")
    K("s_waitcnt lgkmcnt(4)")
    for e in range(0, 8, 2): padd(R+e, R+e, R+8+e, True)
    K("s_waitcnt lgkmcnt(0)")
    for e in range(0, 8, 2): padd(R+16+e, R+16+e, R+24+e, True)
    for e in range(0, 8, 2): padd(R+e, R+e, R+16+e, True)
    for e in range(4): K(f"v_cvt_pk_bf16_f32 v{R+e}, v{R+2*e}, v{R+2*e+1}")
    K(f"buffer_store_dwordx4 {vr(R,4)}, v{t3}, {srd(R_OUT)}, s{T+5} offen" + ["", " sc1", " nt", " sc0 sc1"][outm])
    if f2: stamp("t_st")
    K(f"s_or_b32 s{T}, s2, s{S_W}"); K(f"s_cmp_lg_u32 s{T}, 0")
    K.branch("s_cbranch_scc1 L_fin")
    K(f"s_mov_b32 s{T}, {WS_EPOCH}")
    flag(T)
    K.label("L_fin")
    if stamps:
        K("s_waitcnt vmcnt(0)")
        stamp("end")
        if probe is not None:
            i0 = STAMP_IDS.setdefault('start', len(STAMP_IDS)); i1 = STAMP_IDS.setdefault(probe, len(STAMP_IDS))
            K(f"v_readlane_b32 s{T}, v{V_STAMP}, {i0}"); K(f"v_readlane_b32 s{T+1}, v{V_STAMP}, {i1}")
            K("s_nop 4")
            K(f"s_cmp_eq_u32 s{T+1}, 0"); K(f"s_cselect_b32 s{T+1}, s{T}, s{T+1}")
            if pwg >= 0:
                K(f"s_cmp_lg_u32 s2, {pwg}")
                K.branch("s_cbranch_scc1 L_end")
            K.label("L_probe")
            K("s_sleep 2")
            K(f"s_memrealtime {sp(S_ST)}"); K("s_waitcnt lgkmcnt(0)")
            K(f"s_sub_u32 s{T+2}, s{S_ST}, s{T+1}"); K(f"s_cmp_lt_u32 s{T+2}, {pt}")
            K.branch("s_cbranch_scc1 L_probe")
            K.branch("s_branch L_end")
        K(f"s_lshl_b32 s{T}, s2, 3"); K(f"s_add_u32 s{T}, s{T}, s{S_W}"); K(f"s_lshl_b32 s{T}, s{T}, 8"); K(f"s_add_u32 s{T}, s{T}, {WS_STAMP}")
        K(f"v_lshlrev_b32 v{t0}, 2, v{V_LANE}")
        K(f"buffer_store_dword v{V_STAMP}, v{t0}, {srd(R_WS)}, s{T} offen")
    K.label("L_end")
    K("s_endpgm")
    K.raw(f".fill (28672 + 8192 * {1 if stamps else 0} - (L_end - {NAME})) / 4, 4, 0xbf800000")

    head = f"""; Fused gated mix of hedgehog linear attention and GELU FFN (emitted by a hand-written generator script)
; @launch grid=(256,1,1) block=(512,1,1) lds=163840
.amdgcn_target "amdgcn-amd-amdhsa--gfx950"
.text
.globl {NAME}
.p2align 8
.type {NAME},@function
"""
    tail = f""".section .rodata,"a"
.p2align 6
.amdhsa_kernel {NAME}
  .amdhsa_next_free_vgpr 256
  .amdhsa_next_free_sgpr 102
  .amdhsa_accum_offset 256
  .amdhsa_group_segment_fixed_size 0
  .amdhsa_kernarg_size 104
  .amdhsa_user_sgpr_count 2
  .amdhsa_user_sgpr_kernarg_segment_ptr 1
  .amdhsa_system_sgpr_workgroup_id_x 1
.end_amdhsa_kernel
"""
    return head + K.text() + tail

STAMP_IDS = {}
def parse_opts(argv):
    kw = {}
    for a in argv:
        if a.startswith("-D"):
            k, v = a[2:].split("="); kw[k] = int(v) if v.lstrip("-").isdigit() else v
    return kw
if __name__ == "__main__":
    out = sys.argv[1] if len(sys.argv) > 1 else "k.s"
    open(out, "w").write(gen(**parse_opts(sys.argv)))
```

```python
import sys, struct
from asmlib import Asm

NAME = "gated_mix__linear_kernel_hedgehog__dense_activation_gelu__prompt_kernel"
def f2u(x): return struct.unpack("<I", struct.pack("<f", x))[0]

WS_EPOCH = 0
WS_RPF   = 0x8000
WS_STAMP = 0x10000
WS_G     = 0xA0000
WS_WQ    = 0x100000
WS_KVP   = 0x280000
WS_O     = 0x480000
WS_H     = 0x680000
WS_CN    = 0x300000
WS_HF    = WS_CN
WS_OF    = WS_CN + 2048*128
WS_KVF   = WS_CN + 3072*128
WS_SIZE  = 0xE00000

U = [0, 32768, 65536, 98304, 131072]
L_K, L_V, L_Q = 98304, 126976, 65536
L_MISC = 155648
L_PHI, L_CNT, L_B2, L_B1 = L_MISC, L_MISC + 2048, L_MISC + 2560, L_MISC + 3072
L_KVS = U[3]
L_KVF = L_MISC + 4096
RUNIT = [0, 1, 0, 1, 3, 0, 1, 2, 3]
C_E, C_0, C_1, C_2, C_3, C_4, C_Q, C_G, C_B, C_S, C_5, C_P, C_B2 = 0, 4, 8, 12, 16, 20, 24, 28, 32, 36, 40, 44, 48

P_X, P_WQKV, P_PHI, P_WO, P_W1, P_B1, P_W2 = 16, 18, 20, 22, 26, 28, 30
P_B2, P_GATE, P_OUT, P_WS = 32, 34, 36, 40
R_X, R_W1, R_W2, R_WO, R_WS, R_OUT, R_T = 44, 48, 52, 56, 60, 64, 68
S_MT, S_J, S_W, S_A, S_FL2, S_TAG, S_CH, S_CNT = 72, 73, 74, 75, 76, 78, 77, 100
S_CHO = 80
S_M0 = 87
S_XB, S_W1B = 88, 89
S_T = 90
S_UP = 98
S_E = 42
S_H = S_J
S_CT, S_ROW, S_ACT = 43, 3, 101
S_K = 4
S_ST = 6
S_L28 = 24
S_FL = 8
S_HB, S_W2B, S_OB, S_HB3, S_W2B3, S_M02, S_RS = 9, 10, 11, 12, 13, 14, 15
S_PE, S_P3, S_PO = 34, 35, 38
PD = [16, 17, 18, 19, 20, 21, 22, 23, 26, 27, 28, 29, 30, 31, 32, 33]
def srd(r): return f"s[{r}:{r+3}]"
def sp(r): return f"s[{r}:{r+1}]"

V_LANE, V_L16, V_STAMP, V_TAG, V_POLL, V_CNT = 1, 2, 3, 4, 5, 6
V_T = 8
V_D2 = 18
A_PA, A_AX, A_AD, A_L4, A_PH, A_TR, A_G = 7, 14, 22, 24, 25, 30, 31
V_W, V_P, V_ACC, V_PHI, V_X = 32, 64, 96, 128, 144
A_XD, A_WD, A_QD, A_GW = 64, 68, 72, 16
M_L16B, M_AB = 7, 14
M_ACC, M_BH, M_AR = 24, 88, 152
M_AX, M_AW = 136, 140
NA = 13
def vr(a, n): return f"v[{a}:{a+n-1}]"
UPM = sp(S_UP)
L2E = 1.4426950408889634

def gen(stamps=False, spin=20000, rot1=8, codepf=True, slp=2, cyc=False, G=5, prioA=1, prioM=2, kvf=27, fine=False,
        pkq=0, pkk=1, LA=9, LA0=6, c0=2, mpf=30, outm=0, tlb=21, gw=-1, hf0=7, rpb=3, prioG=2, k6=4, qpf=1, sb=1, qd=0, probe=None, pwg=-1, pt=4000, aw2=2, pre=8, cb=22, pkg=2, rpa=0, f2=0, hfirst=1, early=0, oc=22, x_now2=0, x_noh=0, x_nomf=0, x_now1=0, rb2=0, gp=3, pa=10, x_at=4, c3=9, cq=17, spf=0, allpf=0, l2w=0, jit=0, bl=5, rate=4, x_m16=0, ra=2, rb=3, rc=0, rd=0):
    K = Asm()
    T = S_T
    TD = T + 5
    t0, t1, t2, t3, t4, t5 = range(V_T, V_T + 6)
    def stamp(name):
        if not stamps: return
        if probe is not None and name != probe: return
        K("s_waitcnt lgkmcnt(0)")
        K(f"s_memrealtime {sp(S_ST)}")
        if cyc: K(f"s_memtime s[0:1]")
        K("s_waitcnt lgkmcnt(0)")
        i = STAMP_IDS.setdefault(name, len(STAMP_IDS))
        K(f"v_writelane_b32 v{V_STAMP}, s{S_ST}, {i}")
        if cyc: K(f"v_writelane_b32 v{V_STAMP}, s0, {32 + i}")
    uid = [0]
    def newl(p): uid[0] += 1; return f"L_{p}{uid[0]}"
    def poll_issue(fl):
        K(f"s_load_dword s{PD[0]}, {sp(P_WS)}, s{fl[0]} offset:{fl[1]} glc")
    def poll_check(fl):
        l, d = newl("poll"), newl("polld")
        K(f"s_mov_b32 s{S_CNT}, {spin}")
        K.raw(f"{l}:")
        K("s_waitcnt lgkmcnt(0)")
        K(f"s_cmp_eq_u32 s{PD[0]}, {fl[2]}")
        K.branch(f"s_cbranch_scc1 {d}")
        K(f"s_sub_u32 s{S_CNT}, s{S_CNT}, 1")
        K(f"s_cbranch_scc1 {d}")
        if slp: K(f"s_sleep {slp}")
        poll_issue(fl)
        K(f"s_branch {l}")
        K.label(d)
    def signal(soff_reg, n):
        K(f"v_mov_b32 v{t5}, 1"); K(f"v_lshlrev_b32 v{V_POLL}, 7, v{V_LANE}")
        K(f"s_mov_b64 exec, {(1 << n) - 1}")
        K(f"buffer_atomic_add v{t5}, v{V_POLL}, {srd(R_WS)}, s{soff_reg} offen")
        K("s_mov_b64 exec, -1")
    def vpoll_issue(vaddr):
        return K(f"buffer_load_dword v{V_POLL}, v{vaddr}, {srd(R_WS)}, 0 offen sc1")
    def vpoll_check(tok, vaddr):
        l, d = newl("poll"), newl("polld")
        K(f"s_mov_b32 s{S_CNT}, {spin}")
        K.wait_vm(tok)
        K.label(l)
        K(f"v_cmp_ne_u32 vcc, s{S_TAG}, v{V_POLL}")
        K.branch(f"s_cbranch_vccz {d}")
        K(f"s_sub_u32 s{S_CNT}, s{S_CNT}, 1")
        K.branch(f"s_cbranch_scc1 {d}")
        K(f"s_sleep 10")
        K(f"buffer_load_dword v{V_POLL}, v{vaddr}, {srd(R_WS)}, 0 offen sc1"); K.vm -= 1
        K("s_waitcnt vmcnt(0)")
        K.branch(f"s_branch {l}")
        K.label(d)
    def flag(soff_reg):
        K("s_mov_b64 exec, 1")
        K(f"buffer_store_dword v{V_TAG}, v{V_LANE}, {srd(R_WS)}, s{soff_reg} offen sc1")
        K("s_mov_b64 exec, -1")
    def arrive(c):
        K(f"v_mov_b32 v{t5}, 1")
        K("s_mov_b64 exec, 1")
        K(f"ds_add_u32 v{V_CNT}, v{t5} offset:{c}")
        K("s_mov_b64 exec, -1")
    def await_(c, n, sleep=0):
        l, d = newl("aw"), newl("awd")
        K(f"s_mov_b32 s{S_CNT}, {spin * 8}")
        K.label(l)
        K(f"ds_read_b32 v{t5}, v{V_CNT} offset:{c}")
        K("s_waitcnt lgkmcnt(0)")
        K(f"v_cmp_ne_u32 vcc, {n}, v{t5}")
        K.branch(f"s_cbranch_vccz {d}")
        if sleep: K(f"s_sleep {sleep}")
        K(f"s_sub_u32 s{S_CNT}, s{S_CNT}, 1")
        K.branch(f"s_cbranch_scc0 {l}")
        K.label(d)
    def mksrd(r, p, nbytes):
        K(f"s_mov_b32 s{r}, s{p}"); K(f"s_and_b32 s{r+1}, s{p+1}, 0xffff")
        K(f"s_mov_b32 s{r+2}, {nbytes}"); K(f"s_mov_b32 s{r+3}, 0x20000")
    cnt16 = [0]
    def mfma(d, a, b, c=None, big=False):
        if x_m16 and big and c is None:
            cnt16[0] += 1
            o = 8 * ((cnt16[0] // 4) % 2)
            for q in range(2): K(f"v_mfma_f32_16x16x32_bf16 {vr(d+o+4*q,4)}, {vr(a,4)}, {vr(b,4)}, {vr(d+o+4*q,4)}")
            return
        cs = vr(d, 16) if c is None else c
        K(f"v_mfma_f32_32x32x16_bf16 {vr(d,16)}, {vr(a,4)}, {vr(b,4)}, {cs}")
    def padd(d, a, b, pk):
        if pk: K(f"v_pk_add_f32 {vr(d,2)}, {vr(a,2)}, {vr(b,2)}")
        else: K(f"v_add_f32 v{d}, v{a}, v{b}"); K(f"v_add_f32 v{d+1}, v{a+1}, v{b+1}")
    def pscale(d, r, pk):
        if pk: K(f"v_pk_mul_f32 {vr(d,2)}, {vr(d,2)}, {vr(r & ~1,2)} " + ("op_sel:[0,1] op_sel_hi:[1,1]" if r & 1 else "op_sel_hi:[1,0]"))
        else: K(f"v_mul_f32 v{d}, v{d}, v{r}"); K(f"v_mul_f32 v{d+1}, v{d+1}, v{r}")
    def settag():
        K(f"s_add_u32 s{S_TAG}, s{S_E}, 0x9E3779B9"); K(f"s_mov_b32 s{S_TAG+1}, s{S_TAG}"); K(f"v_mov_b32 v{V_TAG}, s{S_TAG}")
    def xfrag_addr(dst):
        K(f"v_and_b32 v{t0}, 31, v{V_LANE}"); K(f"v_lshrrev_b32 v{t2}, 5, v{V_LANE}"); K(f"v_bfe_u32 v{t3}, v{V_LANE}, 1, 3")
        K(f"v_xor_b32 v{t3}, v{t2}, v{t3}"); K(f"s_lshl_b32 s{T}, s{S_A}, 12"); K(f"v_lshlrev_b32 v{t0}, 7, v{t0}")
        K(f"v_lshl_add_u32 v{t0}, v{t3}, 4, v{t0}"); K(f"v_add_u32 v{dst}, s{T}, v{t0}")
        for k in range(1, 4): K(f"v_xor_b32 v{dst+k}, {32*k}, v{dst}")
    def lanepart():
        K(f"v_bfe_u32 v{t4}, v{V_LANE}, 4, 1"); K(f"v_lshlrev_b32 v{t4}, 5, v{t4}")
        K(f"v_and_b32 v{t3}, 3, v{V_LANE}"); K(f"v_lshl_add_u32 v{t4}, v{t3}, 3, v{t4}")
        K(f"v_bfe_u32 v{t3}, v{V_LANE}, 2, 2"); K(f"v_lshrrev_b32 v{t2}, 5, v{V_LANE}")
    def p2setup():
        mksrd(R_W2, P_W2, 0 if x_now2 else 1792*896)
        K(f"s_and_b32 s{T}, s2, 7"); K(f"s_lshr_b32 s{T+1}, s2, 3")
        K(f"s_mul_i32 s{T+2}, s{T+1}, 37"); K(f"s_lshr_b32 s{T+2}, s{T+2}, 8"); K(f"s_mul_i32 s{T+3}, s{T+2}, 7"); K(f"s_sub_u32 s{S_CT}, s{T+1}, s{T+3}")
        K(f"s_lshl_b32 s{T+2}, s{T+2}, 1"); K(f"s_lshl_b32 s{T+3}, s{T}, 3"); K(f"s_add_u32 s{S_ROW}, s{T+2}, s{T+3}")
        K(f"s_cmp_lt_u32 s{T+1}, 28"); K(f"s_cselect_b32 s{S_ACT}, 1, 0")
        K(f"s_and_b32 s{T+2}, s{S_A}, 1"); K(f"s_mul_i32 s{T+3}, s{S_A}, 7"); K(f"s_add_u32 s{T+4}, s{T+3}, s{T+2}")
        K(f"s_cmp_eq_u32 s{T+2}, 0"); K(f"s_cselect_b32 s{T+2}, 6, 0"); K(f"s_add_u32 s{T+2}, s{T+2}, s{T+3}")
        K(f"s_lshl_b32 s{T}, s{S_CT}, 7")
        K(f"s_mul_i32 s{S_W2B}, s{T+4}, {64*896}"); K(f"s_add_u32 s{S_W2B}, s{S_W2B}, s{T}")
        K(f"s_mul_i32 s{S_W2B3}, s{T+2}, {64*896}"); K(f"s_add_u32 s{S_W2B3}, s{S_W2B3}, s{T}")
        K(f"s_lshl_b32 s{S_M02}, s{S_A}, 13")
        K(f"v_lshrrev_b32 v{t0}, 3, v{V_LANE}"); K(f"v_and_b32 v{t1}, 7, v{V_LANE}")
        K(f"v_bfe_u32 v{t2}, v{V_LANE}, 4, 1"); K(f"v_lshlrev_b32 v{t2}, 2, v{t2}"); K(f"v_xor_b32 v{t1}, v{t1}, v{t2}")
        K(f"v_mul_u32_u24 v{t0}, 896, v{t0}"); K(f"v_lshl_add_u32 v{V_D2}, v{t1}, 4, v{t0}")
        for q in range(1, 4): K(f"v_add_u32 v{V_D2+q}, {q*(8*896-1024)}, v{V_D2}")
        K(f"v_mov_b32 v{V_CNT}, {L_CNT}")
    def shift(regs, d):
        for r in regs:
            if d > 0: K(f"v_add_u32 v{r}, {d}, v{r}")
            elif d < 0: K(f"v_subrev_u32 v{r}, {-d}, v{r}")
    pend = []
    def drip(n):
        for _ in range(n):
            if pend: pend.pop(0)()
    def run(steps):
        for f in steps: f()
    tk_r = {}
    def g_w2(r):
        def step(q):
            def f():
                if q % 4 == 0:
                    K(f"s_add_u32 s{TD}, s{S_W2B3 if r == 3 else S_W2B}, {(0 if r == 3 else (2*r % 7)*64*896) + (q // 4)*32*896}")
                    K(f"s_add_u32 m0, s{S_M02}, {U[RUNIT[r]] + (q // 4)*4096}")
                x = K(f"buffer_load_dwordx4 v{V_D2+q%4}, {srd(R_W2)}, s{TD} offen offset:{1024*(q%4)} lds")
                if q == 7: tk_r[r] = x
            return f
        return [step(q) for q in range(8)]
    SH = [0, 0, 65536, 0, -65536, 0, 65536]

    K.raw(f"{NAME}:")
    K("s_cmp_ge_u32 s2, 256"); K("s_cbranch_scc1 L_end")
    if stamps and early: K(f"s_memrealtime {sp(S_ST)}"); K("s_waitcnt lgkmcnt(0)")
    K("s_load_dwordx16 s[16:31], s[0:1], 0"); K("s_load_dwordx8 s[32:39], s[0:1], 64"); K("s_load_dwordx2 s[40:41], s[0:1], 96")
    if stamps:
        if not early: K(f"s_memrealtime {sp(S_ST)}")
        K(f"v_mov_b32 v{V_STAMP}, 0")
    K(f"v_lshrrev_b32 v{t0}, 6, v0"); K(f"v_and_b32 v{V_LANE}, 63, v0")
    K(f"v_readfirstlane_b32 s{S_W}, v{t0}")
    K(f"v_lshlrev_b32 v{V_L16}, 4, v{V_LANE}")
    K(f"s_and_b32 s{T}, s2, 7"); K(f"s_lshr_b32 s{T+1}, s2, 3")
    if codepf:
        K(f"s_lshr_b32 s{T+2}, s2, 5"); K(f"s_lshl_b32 s{T+2}, s{T+2}, 3"); K(f"s_or_b32 s{T+2}, s{T+2}, s{S_W}"); K(f"s_cmp_lg_u32 s{T+2}, 7")
        K("s_cbranch_scc1 L_nopf")
        K(f"s_getpc_b64 {sp(T+2)}")
        K.raw("L_pc:")
        K(f"s_lshl_b32 s{T+4}, s{T+1}, 7"); K(f"s_sub_u32 s{T+2}, s{T+2}, L_pc - {NAME}"); K(f"s_subb_u32 s{T+3}, s{T+3}, 0")
        K(f"s_add_u32 s{T+2}, s{T+2}, s{T+4}"); K(f"s_addc_u32 s{T+3}, s{T+3}, 0")
        K(f"v_lshlrev_b32 v{t0}, 9, v{V_LANE}")
        K("s_mov_b32 exec_hi, 0xffffff")
        K(f"global_load_dword v{V_POLL}, v{t0}, {sp(T+2)}"); K.vm -= 1
        K("s_mov_b32 exec_hi, -1")
        K.label("L_nopf")
    K(f"s_and_b32 s{T+2}, s{T}, 2"); K(f"s_lshl_b32 s{T+2}, s{T+2}, 1")
    K(f"s_and_b32 s{T+3}, s{T}, 1"); K(f"s_cmp_lt_u32 s{T+1}, 4"); K(f"s_cselect_b32 s{T+4}, 14, 12"); K(f"s_add_u32 s{T+3}, s{T+3}, s{T+4}")
    K(f"s_lshr_b32 s{T+4}, s{T+1}, 3"); K(f"s_lshl_b32 s{S_J}, s{T+4}, 2"); K(f"s_and_b32 s{S_MT}, s{T}, 3"); K(f"s_add_u32 s{S_J}, s{S_J}, s{S_MT}"); K(f"s_sub_u32 s{S_J}, s{S_J}, 4")
    K(f"s_cmp_lt_u32 s{T+1}, 8"); K(f"s_cselect_b32 s{S_J}, s{T+3}, s{S_J}"); K(f"s_cselect_b32 s{T+2}, s{T+2}, 0")
    K(f"s_and_b32 s{T+3}, s{T+1}, 7"); K(f"s_xor_b32 s{T+3}, s{T+3}, s{T+2}")
    K(f"s_and_b32 s{S_MT}, s{T}, 4"); K(f"s_lshl_b32 s{S_MT}, s{S_MT}, 1"); K(f"s_add_u32 s{S_MT}, s{S_MT}, s{T+3}")
    K(f"s_and_b32 s{S_A}, s{S_W}, 3")
    K(f"s_lshl_b32 s{S_W1B}, s{S_J}, 8")
    K(f"s_cmp_ge_u32 s{S_W}, 4")
    K.branch("s_cbranch_scc1 L_M")

    if prioA: K(f"s_setprio {prioA}")
    K(f"s_lshl_b32 s{T+4}, s{T+4}, 1"); K(f"s_add_u32 s{T+2}, s{T+3}, s{T+4}")
    K(f"s_cmp_ge_u32 s{T+2}, 7"); K(f"s_cselect_b32 s{T+3}, 7, 0"); K(f"s_sub_u32 s{S_CH}, s{T+2}, s{T+3}")
    if not rot1: K(f"s_mov_b32 s{S_CH}, 0")
    if rot1 == 2:
        K(f"s_lshr_b32 s{T+4}, s{T+4}, 1"); K(f"s_add_u32 s{T+2}, s{S_MT}, s{T+4}"); K(f"s_and_b32 s{T+2}, s{T+2}, 1"); K(f"s_lshl_b32 s{S_CH}, s{T+2}, 2")
    if rot1 == 4:
        K(f"s_lshr_b32 s{T+4}, s{T+4}, 1"); K(f"s_add_u32 s{T+2}, s{S_MT}, s{T+4}"); K(f"s_and_b32 s{T+2}, s{T+2}, 3"); K(f"s_lshl_b32 s{S_CH}, s{T+2}, 1")
    if rot1 >= 9:
        K(f"s_and_b32 s{T+2}, s2, 3"); K(f"s_mul_i32 s{T+2}, s{T+2}, {ra}"); K(f"s_bfe_u32 s{T+3}, s2, 0x10002"); K(f"s_mul_i32 s{T+3}, s{T+3}, {rb}"); K(f"s_add_u32 s{T+2}, s{T+2}, s{T+3}")
        if rc: K(f"s_and_b32 s{T+3}, s{S_MT}, 1"); K(f"s_mul_i32 s{T+3}, s{T+3}, {rc}"); K(f"s_add_u32 s{T+2}, s{T+2}, s{T+3}")
        if rd: K(f"s_bfe_u32 s{T+3}, s{S_MT}, 0x10001"); K(f"s_mul_i32 s{T+3}, s{T+3}, {rd}"); K(f"s_add_u32 s{T+2}, s{T+2}, s{T+3}")
        K(f"s_mul_i32 s{T+3}, s{T+2}, 37"); K(f"s_lshr_b32 s{T+3}, s{T+3}, 8"); K(f"s_mul_i32 s{T+3}, s{T+3}, 7"); K(f"s_sub_u32 s{S_CH}, s{T+2}, s{T+3}")
    if rot1 == 8:
        K(f"s_and_b32 s{T+2}, s2, 7"); K(f"s_cmp_eq_u32 s{T+2}, 7"); K(f"s_cselect_b32 s{S_CH}, 3, s{T+2}")
    def rotstep(t):
        K(f"s_lshl_b32 s{S_CHO+t}, s{S_CH}, 12")
        if t < 6: K(f"s_add_u32 s{S_CH}, s{S_CH}, 1"); K(f"s_cmp_eq_u32 s{S_CH}, 7"); K(f"s_cselect_b32 s{S_CH}, 0, s{S_CH}")
    rotstep(0); rotstep(1)
    K(f"s_lshl_b32 s{S_M0}, s{S_A}, 12")
    K(f"s_mul_i32 s{S_XB}, s{S_MT}, {128*896}")
    K(f"v_lshrrev_b32 v{t0}, 3, v{V_LANE}"); K(f"v_and_b32 v{t1}, 7, v{V_LANE}"); K(f"v_lshrrev_b32 v{t2}, 1, v{t0}"); K(f"v_xor_b32 v{t2}, v{t1}, v{t2}")
    K(f"s_lshl_b32 s{T+2}, s{S_A}, 5"); K(f"v_add_u32 v{t3}, s{T+2}, v{t0}"); K(f"v_mul_u32_u24 v{t3}, 896, v{t3}")
    K(f"v_lshl_add_u32 v{A_XD}, v{t2}, 4, v{t3}"); K(f"v_xor_b32 v{t2}, 4, v{t2}"); K(f"v_lshl_add_u32 v{A_XD+1}, v{t2}, 4, v{t3}")
    K(f"v_add_u32 v{A_XD+1}, {8*896-1024}, v{A_XD+1}")
    K(f"v_add_u32 v{A_XD+2}, {16*896-2048}, v{A_XD}"); K(f"v_add_u32 v{A_XD+3}, {16*896-2048}, v{A_XD+1}")
    K(f"v_lshrrev_b32 v{t0}, 4, v{V_LANE}"); K(f"v_and_b32 v{t1}, 15, v{V_LANE}"); K(f"v_lshlrev_b32 v{t2}, 2, v{t0}"); K(f"v_xor_b32 v{t2}, v{t1}, v{t2}")
    K(f"s_lshl_b32 s{T+2}, s{S_A}, 4"); K(f"v_add_u32 v{t3}, s{T+2}, v{t0}"); K(f"v_mul_u32_u24 v{t3}, 3584, v{t3}")
    K(f"v_lshl_add_u32 v{A_WD}, v{t2}, 4, v{t3}")
    for q in range(1, 4): K(f"v_add_u32 v{A_WD+q}, {q*(4*3584-1024)}, v{A_WD}")
    K("s_waitcnt lgkmcnt(0)")
    if stamps: K(f"v_writelane_b32 v{V_STAMP}, s{S_ST}, {STAMP_IDS.setdefault('start', len(STAMP_IDS))}")
    mksrd(R_X, P_X, 2048*896); mksrd(R_W1, P_W1, 0 if x_now1 else 448*3584)
    tk_stage = {}
    def g_stage(t):
        u = U[t % 4]
        def step(q):
            def f():
                if q == 0: K(f"s_lshr_b32 s{TD}, s{S_CHO+t}, 5"); K(f"s_add_u32 s{TD}, s{TD}, s{S_XB}"); K(f"s_add_u32 m0, s{S_M0}, {u}")
                if q == 4: K(f"s_mul_i32 s{TD}, s{S_CHO+t}, 56"); K(f"s_add_u32 s{TD}, s{TD}, s{S_W1B}"); K(f"s_add_u32 m0, s{S_M0}, {u + 16384}")
                if q < 4: K(f"buffer_load_dwordx4 v{A_XD+q}, {srd(R_X)}, s{TD} offen offset:{1024*q} lds")
                else: x = K(f"buffer_load_dwordx4 v{A_WD+q-4}, {srd(R_W1)}, s{TD} offen offset:{1024*(q-4)} lds")
                if q == 7: tk_stage[t] = x
            return f
        return [step(q) for q in range(8)]
    ilist = []
    for t in range(7): ilist += [(f, t - 2 if t >= 4 else -1) for f in g_stage(t)]
    pos = [0]
    def issue_to(n, lastbar):
        while pos[0] < min(n, len(ilist)) and ilist[pos[0]][1] <= lastbar:
            ilist[pos[0]][0](); pos[0] += 1
    if fine: stamp("A_karg")
    K(f"s_cmp_ge_u32 s{S_J}, 14")
    K.branch("s_cbranch_scc1 L_a1")
    vm0 = K.vm
    issue_to(8, -1)
    issue_to(8 + LA0, -1)
    K.label("L_a1")
    if fine: stamp("A_i1")
    K(f"s_load_dword s{S_E}, {sp(P_WS)}, {WS_EPOCH}")
    for t in range(2, 7): rotstep(t)
    mksrd(R_WS, P_WS, WS_SIZE); mksrd(R_OUT, P_OUT, 2048*896)
    p2setup()
    K(f"s_mov_b32 s{S_UP}, 0"); K(f"s_mov_b32 s{S_UP+1}, -1")
    K(f"s_mov_b32 s{S_L28}, 0x10000000"); K(f"s_mov_b32 s{S_L28+1}, 0x10000000")
    xfrag_addr(A_AX)
    lanepart()
    K(f"v_lshl_add_u32 v{t0}, v{t2}, 3, v{t3}"); K(f"v_lshl_add_u32 v{A_TR}, v{t0}, 6, v{t4}")
    K(f"v_lshl_add_u32 v{t0}, v{t2}, 2, v{t3}"); K(f"v_mul_u32_u24 v{t1}, 56, v{t0}"); K(f"v_add_u32 v{t1}, v{t1}, v{t4}"); K(f"v_add_u32 v{A_PH}, {L_PHI}, v{t1}")
    K(f"v_lshlrev_b32 v{A_L4}, 2, v{V_LANE}")
    K(f"s_lshl_b32 s{T}, s{S_A}, 10"); K(f"s_add_u32 s{T}, s{T}, {WS_RPF}"); K(f"v_and_b32 v{A_PA}, 7, v{V_LANE}"); K(f"v_lshl_add_u32 v{A_PA}, v{A_PA}, 7, s{T}")
    K(f"s_mul_i32 s{S_RS}, s{S_J}, {3*28672}"); K(f"s_mul_i32 s{S_P3}, s{S_A}, 7168"); K(f"s_add_u32 s{S_RS}, s{S_RS}, s{S_P3}"); K(f"s_add_u32 s{S_RS}, s{S_RS}, {WS_WQ}")
    K("s_waitcnt lgkmcnt(0)")
    settag()
    K(f"s_cmp_lt_u32 s{S_J}, 14")
    K.branch("s_cbranch_scc1 L_a2")
    sv = K.vm
    K(f"s_mul_i32 s{T}, s{S_A}, 3072"); K(f"s_add_u32 s{T}, s{T}, {L_K}")
    K("s_barrier")
    for t in range(7):
        K(f"s_lshr_b32 s{TD}, s{S_CHO+t}, 5"); K(f"s_add_u32 s{TD}, s{TD}, s{S_XB}")
        if t < 6: K(f"s_add_u32 m0, s{S_M0}, {16384*t}")
        else: K(f"s_add_u32 m0, s{S_M0}, s{T}")
        for q in range(4): K(f"buffer_load_dwordx4 v{A_XD+q}, {srd(R_X)}, s{TD} offen offset:{1024*q} lds")
        if t == rb2: K("s_barrier")
    K("s_waitcnt vmcnt(0)")
    for t in range(7):
        if t == 4: shift(range(A_AX, A_AX + 4), 65536)
        if t == 6:
            K(f"s_sub_u32 s{T}, s{T}, 65536")
            for k in range(4): K(f"v_add_u32 v{A_AX+k}, s{T}, v{A_AX+k}")
        for ksl in range(4): K(f"ds_read_b128 {vr(V_X + 16*t + 4*ksl, 4)}, v{A_AX+ksl} offset:{(t % 4) * 16384 if t < 6 else 0}")
        if t % 2 == 1: K("s_waitcnt lgkmcnt(4)")
    K("s_waitcnt lgkmcnt(0)")
    stamp("A_b6")
    vpoll_issue(A_PA)
    K.branch("s_branch L_a3")
    K.label("L_a2")
    K.vm = sv
    if fine: stamp("A_setup")
    tkx = {}
    def g_panel(p, lds):
        def step(q):
            def f():
                if q % 4 == 0: K(f"s_add_u32 s{TD}, s{S_RS}, {28672*p + (q // 4)*4096}"); K(f"s_add_u32 m0, s{S_P3}, {lds + (q // 4)*4096}")
                tkx[p] = K(f"buffer_load_dwordx4 v{V_L16}, {srd(R_WS)}, s{TD} offen offset:{1024*(q%4)} sc1 lds")
            return f
        return [step(q) for q in range(7)]
    for t in range(7):
        issue_to(8*(t+1) + (LA0 if t == 0 else LA), t - 1)
        shift(range(A_AX, A_AX + 4), SH[t])
        if t == 5:
            assert pos[0] == len(ilist)
            tkp = vpoll_issue(A_PA)
        if fine: stamp(f"A{t}a")
        K.wait_vm(tk_stage[t])
        if fine: stamp(f"A{t}b")
        if t < 6:
            if t >= 2: K("s_waitcnt lgkmcnt(4)")
            K("s_barrier")
        else: arrive(C_S)
        if t in (0, 4, 6): stamp(f"A_b{t}")
        for ksl in range(4): K(f"ds_read_b128 {vr(V_X + 16*t + 4*ksl, 4)}, v{A_AX+ksl} offset:{(t % 2) * 32768}")
    assert tkp == K.vm
    K.label("L_a3")
    arrive(C_E)
    vpoll_check(tkp, A_PA)
    stamp("rp_seen")
    run(g_panel(1, L_K) + g_panel(2, L_V))
    K(f"v_add_u32 v{A_PA}, 4096, v{A_PA}")
    tkp = vpoll_issue(A_PA)
    stamp("kv_issued")
    K(f"s_mov_b32 s{S_K}, {f2u(L2E):#x}"); K(f"s_mov_b32 s{S_K+1}, {f2u(L2E):#x}")
    VPH, VB = V_W + 24, V_W + 16
    for s in range(2):
        for r in range(2): K(f"ds_read_b64_tr_b16 {vr(VPH + 4*s + 2*r, 2)}, v{A_PH} offset:{(16*s + 8*r)*56}")
    K(f"s_lshl_b32 s{T}, s{S_A}, 11"); K(f"s_lshl_b32 s{T+1}, s{S_J}, 13"); K(f"s_add_u32 s{S_HB}, s{T+1}, s{T}"); K(f"s_add_u32 s{S_FL}, s{S_HB}, {WS_KVF}"); K(f"s_lshl_b32 s{S_PE}, s{S_MT}, 7"); K(f"s_add_u32 s{S_PE}, s{S_PE}, s{S_FL}"); K(f"s_add_u32 s{S_HB}, s{S_HB}, {WS_KVP}")
    FL_K = (S_PE, 0, 16)
    K(f"s_lshl_b32 s{T}, s{S_MT}, 2"); K(f"s_add_u32 s{T}, s{T}, s{S_A}")
    K(f"s_lshr_b32 s{T+1}, s{T}, 1"); K(f"s_lshl_b32 s{T+1}, s{T+1}, 2"); K(f"s_lshr_b32 s{T+2}, s{S_J}, 2"); K(f"s_add_u32 s{T+1}, s{T+1}, s{T+2}"); K(f"s_lshl_b32 s{T+1}, s{T+1}, 10"); K(f"s_add_u32 s{S_FL2}, s{T+1}, {WS_OF}")
    K(f"s_lshl_b32 s{T}, s{T}, 4"); K(f"s_add_u32 s{T}, s{T}, s{S_J}")
    K(f"s_lshl_b32 s{S_OB}, s{T}, 11"); K(f"s_add_u32 s{S_OB}, s{S_OB}, {WS_O}")
    K(f"s_lshl_b32 s{T+2}, s{T}, 7"); K(f"s_add_u32 s{S_XB}, s{T+2}, {WS_G - 128}")
    IDR = [26, 27, 28, 29, V_PHI, V_PHI+1, V_PHI+2, V_PHI+3]
    K(f"v_and_b32 v{t0}, 31, v{V_LANE}"); K(f"v_lshrrev_b32 v{t1}, 5, v{V_LANE}"); K(f"v_lshlrev_b32 v{t1}, 2, v{t1}")
    K(f"v_sub_u32 v{t0}, v{t0}, v{t1}")
    K(f"v_and_b32 v{t1}, 1, v{V_LANE}"); K(f"v_lshlrev_b32 v{t1}, 4, v{t1}"); K(f"v_mov_b32 v{t2}, 0x3f80"); K(f"v_lshlrev_b32 v{t1}, v{t1}, v{t2}")
    K(f"v_and_b32 v{t0}, -2, v{t0}")
    for s in range(2):
        for q in range(4): K(f"v_cmp_eq_u32 {sp(T+2*q)}, {16*s + 8*(q // 2) + 2*(q % 2)}, v{t0}")
        for q in range(4): K(f"v_cndmask_b32 v{IDR[4*s+q]}, 0, v{t1}, {sp(T+2*q)}")
    if aw2: K(f"s_cmp_eq_u32 s{S_ACT}, 1"); K(f"s_cselect_b32 s{R_W2+2}, s{R_W2+2}, 0")
    if aw2 in (1, 3):
        await_(C_E, 8, 1)
        run(g_w2(0))
        K.wait_vm(tkx[2]); arrive(C_0)
        run(g_w2(1))
        if qd < 0: run(g_panel(0, L_Q))
    else: K.wait_vm(tkx[2]); arrive(C_0)
    stamp("kv_landed0")
    if aw2 == 1: K.wait_vm(tk_r[1]); arrive(C_B)
    await_(C_0, 4, 1)
    K(f"v_cndmask_b32 v{VPH+6}, v{VPH+6}, 0, {UPM}"); K(f"v_cndmask_b32 v{VPH+7}, v{VPH+7}, 0, {UPM}")
    await_(C_G if gw >= 0 else C_E, 4 if gw >= 0 else 8, 1)
    vpoll_check(tkp, A_PA)
    stamp("kv_start")

    def gemm_qkv(panels, hook=None):
        nb = len(panels) * 4
        D = 3 if len(panels) == 2 else 6
        tk = {}
        for n, (off, acc, sw) in enumerate(panels): K(f"v_add_u32 v{A_AX+n}, {off}, v{A_TR}")
        def rd(ks, n):
            t, ksl = ks // 4, ks % 4
            b = V_W + nb * (ks % D)
            if ksl == 0: K(f"v_add_u32 v{A_AD + n}, s{S_CHO+t}, v{A_AX+n}")
            for r in range(2):
                tk[ks] = K(f"ds_read_b64_tr_b16 {vr(b + 4*n + 2*r, 2)}, v{A_AD + n} offset:{(16*ksl + 4*r)*64}")
        for k in range(D):
            for n in range(len(panels)): rd(k, n)
        for ks in range(28):
            K.wait_lg(tk[ks])
            b = V_W + nb * (ks % D)
            for n, (off, acc, sw) in enumerate(panels):
                wv, xv = b + 4*n, V_X + 4*ks
                if sw: mfma(acc, xv, wv, "0" if ks == 0 else None, x_m16 & 4)
                else: mfma(acc, wv, xv, "0" if ks == 0 else None, x_m16 & 4)
                if ks + D < 28: rd(ks + D, n)
            if hook: hook(ks)
    QP = V_W
    P = V_ACC
    def featmap():
        for e in range(8): K(f"v_cvt_pk_bf16_f32 v{QP+e}, v{V_ACC+2*e}, v{V_ACC+2*e+1}")
        mfma(P, VPH, QP, "0"); mfma(P, VPH + 4, QP + 4)
    def softmax(pk):
        for e in range(4): K(f"v_cndmask_b32 v{P+12+e}, v{P+12+e}, v{P}, {UPM}")
        mx, mn = t0, t2
        K(f"v_max3_f32 v{mx}, v{P}, v{P+1}, v{P+2}"); K(f"v_min3_f32 v{mn}, v{P}, v{P+1}, v{P+2}")
        K(f"v_max3_f32 v{t1}, v{P+3}, v{P+4}, v{P+5}"); K(f"v_min3_f32 v{t3}, v{P+3}, v{P+4}, v{P+5}")
        for e in range(6, 14, 4):
            K(f"v_max3_f32 v{mx}, v{mx}, v{P+e}, v{P+e+1}"); K(f"v_min3_f32 v{mn}, v{mn}, v{P+e}, v{P+e+1}")
            K(f"v_max3_f32 v{t1}, v{t1}, v{P+e+2}, v{P+e+3}"); K(f"v_min3_f32 v{t3}, v{t3}, v{P+e+2}, v{P+e+3}")
        K(f"v_max3_f32 v{mx}, v{mx}, v{P+14}, v{P+15}"); K(f"v_min3_f32 v{mn}, v{mn}, v{P+14}, v{P+15}")
        K(f"v_max_f32 v{mx}, v{mx}, v{t1}"); K(f"v_min_f32 v{mn}, v{mn}, v{t3}")
        K(f"v_mov_b32 v{t1}, v{mx}"); K(f"v_mov_b32 v{t3}, v{mn}")
        K(f"v_permlane32_swap_b32 v{mx}, v{t1}"); K(f"v_permlane32_swap_b32 v{mn}, v{t3}")
        K(f"v_max_f32 v{mx}, v{mx}, v{t1}"); K(f"v_min_f32 v{mn}, v{mn}, v{t3}")
        K(f"v_mul_f32 v{mx}, s{S_K}, v{mx}"); K(f"v_mul_f32 v{mn}, s{S_K}, v{mn}")
        EP, EN = V_P, V_P + 16
        for e in range(0, 16, 2):
            if pk:
                K(f"v_pk_fma_f32 {vr(EP+e,2)}, {vr(P+e,2)}, {sp(S_K)}, {vr(mx,2)} op_sel_hi:[1,1,0] neg_lo:[0,0,1] neg_hi:[0,0,1]")
                K(f"v_pk_fma_f32 {vr(EN+e,2)}, {vr(P+e,2)}, {sp(S_K)}, {vr(mn,2)} op_sel_hi:[1,1,0] neg_lo:[1,0,0] neg_hi:[1,0,0]")
            else:
                for x in (e, e + 1):
                    K(f"v_fma_f32 v{EP+x}, v{P+x}, s{S_K}, -v{mx}"); K(f"v_fma_f32 v{EN+x}, -v{P+x}, s{S_K}, v{mn}")
        for e in range(16):
            K(f"v_exp_f32 v{EP+e}, v{EP+e}"); K(f"v_exp_f32 v{EN+e}, v{EN+e}")
        S = V_W
        for n, E in enumerate((EP, EN)):
            padd(S+4*n, E, E+2, pk); padd(S+4*n+2, E+12, E+14, pk)
        for n, E in enumerate((EP, EN)):
            padd(S+4*n, S+4*n, E+4, pk)
            K(f"v_cndmask_b32 v{S+4*n+2}, v{S+4*n+2}, 0, {UPM}"); K(f"v_cndmask_b32 v{S+4*n+3}, v{S+4*n+3}, 0, {UPM}")
        for n, E in enumerate((EP, EN)):
            padd(S+4*n, S+4*n, E+6, pk); padd(S+4*n+2, S+4*n+2, E+8, pk)
        for n, E in enumerate((EP, EN)): padd(S+4*n, S+4*n, E+10, pk)
        for n in range(2): padd(S+4*n, S+4*n, S+4*n+2, pk)
        K(f"v_add_f32 v{t0}, v{S}, v{S+1}"); K(f"v_add_f32 v{t2}, v{S+4}, v{S+5}")
        K(f"v_mov_b32 v{t1}, v{t0}"); K(f"v_mov_b32 v{t3}, v{t2}")
        K(f"v_permlane32_swap_b32 v{t0}, v{t1}"); K(f"v_permlane32_swap_b32 v{t2}, v{t3}")
        K(f"v_add_f32 v{t0}, v{t0}, v{t1}"); K(f"v_add_f32 v{t2}, v{t2}, v{t3}")
        K(f"v_rcp_f32 v{t0}, v{t0}"); K(f"v_rcp_f32 v{t2}, v{t2}")
        K(f"v_cndmask_b32 v{t1}, v{t0}, 0, {UPM}"); K(f"v_cndmask_b32 v{t3}, v{t2}, 0, {UPM}")
        for e in range(0, 16, 2):
            pscale(EP+e, t0 if e < 12 else t1, pk); pscale(EN+e, t2 if e < 12 else t3, pk)
        for e in range(8):
            K(f"v_cvt_pk_bf16_f32 v{V_PHI+e}, v{EP+2*e}, v{EP+2*e+1}"); K(f"v_cvt_pk_bf16_f32 v{V_PHI+8+e}, v{EN+2*e}, v{EN+2*e+1}")

    if aw2 == 2: pend.extend(g_w2(0) + g_w2(1))
    if qd >= 0: pend.extend(g_panel(0, L_Q))
    def hook(ks):
        if aw2 == 3:
            if ks == 1: K.wait_vm(tk_r[1]); arrive(C_B)
            if ks == pa:
                await_(C_P, 4)
                pend.extend(g_w2(2) + g_w2(3))
            drip(2 if len(pend) > 27 - ks else 1)
        elif aw2 == 2:
            drip(1)
            if ks == cb: K.wait_vm(tk_r[1]); arrive(C_B)
        elif ks >= qd and (ks - qd) % 3 == 0: drip(1)
        if ks == 25: arrive(C_1)
    gemm_qkv([(L_K, V_ACC, False), (L_V, V_ACC + 16, True)], hook)
    featmap()
    assert not pend
    for e in range(4): K(f"v_mov_b32 v{V_W+8+e}, v{V_PHI+e}")
    IDR[4] = V_W + 8
    stamp("kv_gemm")
    K(f"v_mov_b32 v{t4}, 0x3f803f80")
    for e in range(8): K(f"v_cvt_pk_bf16_f32 v{VB+e}, v{V_ACC+16+2*e}, v{V_ACC+16+2*e+1}")
    for e in range(8): K(f"v_cndmask_b32 v{VB+e}, v{VB+e}, v{t4}, {sp(S_L28)}")
    softmax(pkk)
    stamp("sm_k")
    if aw2 == 3: K.wait_vm(tk_r[3]); arrive(C_B2)
    TP, TN = V_P, V_P + 16
    mfma(TP, V_PHI, IDR[0], "0"); mfma(TP, V_PHI + 4, IDR[4])
    mfma(TN, V_PHI + 8, IDR[0], "0"); mfma(TN, V_PHI + 12, IDR[4])
    await_(C_1, 4)
    if f2: stamp("kv_a")
    K(f"s_lshl_b32 s{T}, s{S_A}, 13"); K(f"s_add_u32 s{T}, s{T}, {L_KVS}"); K(f"v_add_u32 v{t0}, s{T}, v{V_L16}")
    K(f"s_lshl_b32 s{T}, s{S_A}, 11"); K(f"s_add_u32 s{T}, s{T}, {L_KVS}"); K(f"v_add_u32 v{t1}, s{T}, v{V_L16}")
    for e in range(8): K(f"v_cvt_pk_bf16_f32 v{V_PHI+e}, v{TP+2*e}, v{TP+2*e+1}")
    mfma(V_ACC, V_PHI, VB, "0"); mfma(V_ACC, V_PHI + 4, VB + 4)
    for e in range(8): K(f"v_cvt_pk_bf16_f32 v{V_PHI+8+e}, v{TN+2*e}, v{TN+2*e+1}")
    mfma(V_ACC + 16, V_PHI + 8, VB, "0"); mfma(V_ACC + 16, V_PHI + 12, VB + 4)
    for b in range(8): K(f"ds_write_b128 v{t0}, {vr(V_ACC+4*b,4)} offset:{1024*b}")
    K.wait_vm(tkx[0])
    arrive(C_2)
    if f2: stamp("kv_b")
    await_(C_2, 4)
    if f2: stamp("kv_c")
    for hb in range(2):
        for g in range(4): K(f"ds_read_b128 {vr(V_P+16*hb+4*g,4)}, v{t1} offset:{8192*g + 1024*hb}")
    arrive(C_3)
    if f2: stamp("kv_d")
    for hb in range(2):
        K(f"s_waitcnt lgkmcnt({5 - 4*hb})")
        B = V_P + 16*hb
        for e in (0, 2): padd(B+e, B+e, B+4+e, pkq); padd(B+8+e, B+8+e, B+12+e, pkq)
        for e in (0, 2): padd(B+e, B+e, B+8+e, pkq)
        for e in range(x_at): K(f"buffer_atomic_add_f32 v{B+e}, v{A_L4}, {srd(R_WS)}, s{S_HB} offen offset:{1024*hb + 256*e}")
    stamp("kv_st")
    def hook(ks):
        if ks == 22: arrive(C_Q)
        if ks == kvf:
            K("s_waitcnt vmcnt(0)")
            signal(S_FL, 16)
            stamp("kv_pub")
    gemm_qkv([(L_Q, V_ACC, False)], hook)
    K(f"v_cvt_pk_bf16_f32 v{t0}, v{V_ACC+12}, v{V_ACC+12}")
    featmap()
    K(f"v_lshlrev_b32 v{t0}, 16, v{t0}")
    K(f"v_mul_f32 v{t0}, s{S_K}, v{t0}"); K(f"v_exp_f32 v{t0}, -v{t0}"); K(f"v_add_f32 v{t0}, 1.0, v{t0}"); K(f"v_rcp_f32 v{t0}, v{t0}")
    K(f"v_cvt_pk_bf16_f32 v{t0}, v{t0}, v{t0}"); K(f"v_lshlrev_b32 v{A_G}, 16, v{t0}")
    K("s_mov_b32 exec_lo, 0")
    K(f"buffer_store_dword v{A_G}, v{A_L4}, {srd(R_WS)}, s{S_XB} offen sc1")
    K("s_mov_b32 exec_lo, -1")
    stamp("q_gemm")
    softmax(pkq)
    stamp("sm_q")
    poll_issue(FL_K)
    poll_check(FL_K)
    stamp("kv_seen")
    for e in range(8): K(f"buffer_load_dword v{V_P+e}, v{A_L4}, {srd(R_WS)}, s{S_HB} offen offset:{256*e} sc1")
    F = V_W
    K(f"s_lshl_b32 s{T}, s{S_A}, 10"); K(f"v_add_u32 v{t1}, {L_KVF}, v{V_L16}"); K(f"v_add_u32 v{t0}, s{T}, v{t1}")
    K("s_waitcnt vmcnt(0)")
    stamp("kv_landed")
    for e in range(4): K(f"v_cvt_pk_bf16_f32 v{F+e}, v{V_P+2*e}, v{V_P+2*e+1}")
    K(f"ds_write_b128 v{t0}, {vr(F,4)}")
    arrive(C_4)
    await_(C_4, 4)
    if f2: stamp("o_a")
    for f in range(4): K(f"ds_read_b128 {vr(F+4*f,4)}, v{t1} offset:{1024*f}")
    N = V_ACC
    for f in range(4):
        K(f"s_waitcnt lgkmcnt({3-f})")
        mfma(N, F + 4*f, V_PHI + 4*f, "0" if f == 0 else None)
    K(f"v_cvt_pk_bf16_f32 v{t0}, v{N+12}, v{N+12}")
    for e in range(8): K(f"v_cvt_pk_bf16_f32 v{F+e}, v{N+2*e}, v{N+2*e+1}")
    K(f"v_lshlrev_b32 v{t0}, 16, v{t0}")
    K(f"v_add_f32 v{t0}, {f2u(1e-6):#x}, v{t0}")
    K(f"v_cvt_pk_bf16_f32 v{t0}, v{t0}, v{t0}"); K(f"v_lshlrev_b32 v{t0}, 16, v{t0}")
    K(f"v_rcp_f32 v{t0}, v{t0}")
    for e in range(4):
        K(f"v_lshlrev_b32 v{N+2*e}, 16, v{F+e}"); K(f"v_and_b32 v{N+2*e+1}, 0xffff0000, v{F+e}")
    K(f"v_mul_f32 v{t0}, v{t0}, v{A_G}"); K(f"v_mov_b32 v{t1}, v{t0}")
    for e in range(4, 8):
        K(f"v_lshlrev_b32 v{N+2*e}, 16, v{F+e}"); K(f"v_and_b32 v{N+2*e+1}, 0xffff0000, v{F+e}")
    K(f"v_permlane32_swap_b32 v{t1}, v{t0}")
    for e in range(0, 16, 2): pscale(N+e, t0, pkq)
    for e in range(8): K(f"v_cvt_pk_bf16_f32 v{F+e}, v{N+2*e}, v{N+2*e+1}")
    K(f"v_cndmask_b32 v{F+6}, v{F+6}, 0, {UPM}"); K(f"v_cndmask_b32 v{F+7}, v{F+7}, 0, {UPM}")
    K(f"buffer_store_dwordx4 {vr(F,4)}, v{V_L16}, {srd(R_WS)}, s{S_OB} offen sc1")
    K(f"buffer_store_dwordx4 {vr(F+4,4)}, v{V_L16}, {srd(R_WS)}, s{S_OB} offen offset:1024 sc1")
    if f2: stamp("o_b")
    K("s_waitcnt vmcnt(0)")
    signal(S_FL2, 7)
    stamp("o_pub")
    K(f"s_cmp_eq_u32 s{S_ACT}, 0")
    K.branch("s_cbranch_scc1 L_fin")
    K.branch("s_branch L_red")

    K.label("L_M")
    if prioM: K(f"s_setprio {prioM}")
    K("s_waitcnt lgkmcnt(0)")
    if stamps: K(f"v_writelane_b32 v{V_STAMP}, s{S_ST}, {STAMP_IDS.setdefault('start', len(STAMP_IDS))}")
    K(f"s_load_dword s{S_E}, {sp(P_WS)}, {WS_EPOCH}")
    mksrd(R_T, P_PHI, 16*1568)
    K(f"s_mul_i32 s{T}, s{S_J}, 1568"); K(f"s_mul_i32 s{T+1}, s{S_A}, 400"); K(f"s_add_u32 s{T}, s{T}, s{T+1}"); K(f"s_add_u32 m0, s{T+1}, {L_PHI}")
    K("s_mov_b64 exec, 0x1ffffff")
    K(f"buffer_load_dwordx4 v{V_L16}, {srd(R_T)}, s{T} offen lds")
    K("s_mov_b64 exec, -1")
    K(f"v_mov_b32 v{V_CNT}, {L_CNT}")
    K(f"v_mov_b32 v{t0}, 0"); K(f"v_lshl_add_u32 v{t1}, v{V_LANE}, 2, v{V_CNT}"); K(f"ds_write_b32 v{t1}, v{t0}")
    K(f"s_cmp_lt_u32 s{S_J}, 14")
    K.branch("s_cbranch_scc1 L_mset")
    vm_m = K.vm
    RB = 96
    K0 = S_XB
    mksrd(R_T, P_WQKV, 448*2688)
    K(f"s_lshl_b32 s{S_FL}, s{S_MT}, 1"); K(f"s_add_u32 s{S_FL}, s{S_FL}, s{S_J}"); K(f"s_sub_u32 s{S_FL}, s{S_FL}, 14")
    K(f"s_mul_i32 s{K0}, s{S_FL}, 14"); K(f"s_lshl_b32 s{T+5}, s{S_A}, 1"); K(f"s_add_u32 s{K0}, s{K0}, s{T+5}")
    K(f"v_lshrrev_b32 v{t0}, 3, v{V_LANE}"); K(f"v_bfe_u32 v{t1}, v{V_LANE}, 2, 1"); K(f"v_and_b32 v{t2}, 3, v{V_LANE}")
    K(f"v_mul_u32_u24 v{t3}, 56, v{t0}"); K(f"v_mul_u32_u24 v{t4}, 2688, v{t1}"); K(f"v_add_u32 v{t3}, v{t3}, v{t4}")
    K(f"v_lshl_add_u32 v{t3}, v{t2}, 4, v{t3}")
    K(f"s_mul_i32 s{T+5}, s{K0}, 2688"); K(f"v_lshlrev_b32 v{t4}, 1, v{t1}"); K(f"s_lshl_b32 s{T+6}, s{K0}, 1")
    tkl = {}
    if fine: stamp("rp_0")
    K(f"s_add_u32 s{T+7}, s{T+5}, {8*2688}"); K(f"s_cmp_eq_u32 s{S_A}, 3"); K(f"s_cselect_b32 s{T+7}, 0x7000000, s{T+7}"); K(f"s_cselect_b32 s{S_CH}, s{T+7}, 512")
    def rp_load(q): tkl[q] = K(f"buffer_load_dwordx4 {vr(RB+4*q,4)}, v{t3}, {srd(R_T)}, s{T+5 if q < 6 else T+7} offen offset:{448*(q%6)}")
    for q in (2, 3, 4, 5, 8, 9, 10, 11): rp_load(q)
    mksrd(R_X, P_GATE, 896)
    K(f"buffer_load_ushort v{RB+48}, v{t4}, {srd(R_X)}, s{T+6} offen"); K(f"buffer_load_ushort v{RB+49}, v{t4}, {srd(R_X)}, s{T+6} offen offset:16")
    for q in (0, 1, 6, 7): rp_load(q)
    mksrd(R_WS, P_WS, WS_SIZE)
    K(f"s_mov_b32 s{T+6}, 86016"); K(f"v_mul_lo_u32 v{RB+50}, v{t0}, s{T+6}"); K(f"v_and_b32 v{t1}, 7, v{V_LANE}")
    K(f"v_lshl_add_u32 v{RB+50}, v{t1}, 4, v{RB+50}")
    K(f"v_cmp_eq_u32 vcc, 3, v{t2}")
    K(f"s_lshl_b32 s{K0}, s{K0}, 6"); K(f"s_add_u32 s{K0}, s{K0}, {WS_WQ}")
    def rp_store(q):
        n, p, hg = q // 6, (q % 6) // 2, q % 2; b = RB + 4*q
        K.wait_vm(tkl[q])
        K(f"v_cndmask_b32 v{b+2}, v{b+2}, v{RB+48+n}, vcc" if p == 0 else f"v_cndmask_b32 v{b+2}, v{b+2}, 0, vcc")
        K(f"v_cndmask_b32 v{b+3}, v{b+3}, 0, vcc")
        K(f"s_add_u32 s{T+6}, s{K0}, {p*28672 + hg*8*86016}")
        if n: K(f"s_add_u32 s{T+6}, s{T+6}, s{S_CH}")
        return K(f"buffer_store_dwordx4 {vr(b,4)}, v{RB+50}, {srd(R_WS)}, s{T+6} offen sc1")
    for e in range(4): K(f"v_mov_b32 v{RB+52+e}, 0")
    K(f"s_lshl_b32 s{T+5}, s{S_FL}, 2"); K(f"s_add_u32 s{T+5}, s{T+5}, s{S_A}"); K(f"s_lshl_b32 s{T+7}, s{T+5}, 12"); K(f"s_lshl_b32 s{T+5}, s{T+5}, 10")
    K(f"s_add_u32 s{T+5}, s{T+5}, {WS_KVP}"); K(f"s_add_u32 s{T+7}, s{T+7}, {WS_CN}"); K(f"v_lshlrev_b32 v{t0}, 7, v{V_LANE}")
    K(f"buffer_store_dwordx4 {vr(RB+52,4)}, v{V_L16}, {srd(R_WS)}, s{T+5} offen sc1")
    K("s_mov_b32 exec_hi, 0")
    K(f"buffer_store_dword v{RB+52}, v{t0}, {srd(R_WS)}, s{T+7} offen sc1")
    K("s_mov_b32 exec_hi, -1")
    K(f"s_lshl_b32 s{S_FL}, s{S_FL}, 7"); K(f"s_add_u32 s{S_FL}, s{S_FL}, {WS_RPF}"); K(f"s_add_u32 s{S_FL2}, s{S_FL}, 4096")
    K(f"s_cmp_eq_u32 s{S_A}, 3"); K(f"s_cselect_b32 s{S_FL}, s{S_FL}, 0x7000000"); K(f"s_cselect_b32 s{S_FL2}, s{S_FL2}, 0x7000000")
    K("s_waitcnt lgkmcnt(0)")
    settag()
    for q in (2, 3, 4, 5, 8, 9, 10, 11): tk1 = rp_store(q)
    for q in (0, 1, 6, 7): rp_store(q)
    if fine: stamp("rp_st")
    K("s_barrier")
    K.wait_vm(tk1)
    K("s_barrier")
    flag(S_FL)
    stamp("rp_pub")
    K("s_waitcnt vmcnt(1)")
    arrive(C_5); await_(C_5, 4)
    flag(S_FL2)
    arrive(C_E); arrive(C_G)
    K("s_setprio 0")
    K.vm = vm_m
    K.label("L_mset")
    if allpf:
        mksrd(R_X, P_X, 2048*896); mksrd(R_W1, P_W1, 448*3584)
        K(f"s_lshl_b32 s{T+3}, s2, 2"); K(f"s_add_u32 s{T+3}, s{T+3}, s{S_A}")
        K(f"s_mul_i32 s{T}, s{T+3}, {14*128}"); K(f"s_mul_i32 s{T+1}, s{T+3}, {13*128}"); K(f"v_lshlrev_b32 v{t0}, 7, v{V_LANE}")
        K("s_mov_b64 exec, 0x3fff")
        if allpf & 1: K(f"buffer_load_dword v{V_POLL}, v{t0}, {srd(R_X)}, s{T} offen")
        K("s_mov_b64 exec, 0x1fff")
        if allpf & 2: K(f"buffer_load_dword v{V_POLL}, v{t0}, {srd(R_W1)}, s{T+1} offen")
        K("s_mov_b64 exec, -1")
    if spf:
        K(f"s_lshl_b32 s{T+3}, s2, 2"); K(f"s_add_u32 s{T+3}, s{T+3}, s{S_A}")
        K(f"s_mul_i32 s{T}, s{T+3}, {12*128 + 32}"); K(f"s_mul_i32 s{T+1}, s{T+3}, {3*128 + 8}")
        for q in range(13): K(f"s_load_dword s{S_CNT}, {sp(P_W2)}, s{T} offset:{min(128*q, 12*128 + 28)}")
        K("s_waitcnt lgkmcnt(10)")
        for q in range(4): K(f"s_load_dword s{S_CNT}, {sp(P_WO)}, s{T+1} offset:{min(128*q, 3*128 + 4)}")
    mksrd(R_WS, P_WS, WS_SIZE); mksrd(R_WO, P_WO, 448*896); mksrd(R_OUT, P_OUT, 2048*896)
    p2setup()
    K(f"s_mul_i32 s{T}, s{S_ROW}, {112*1024}"); K(f"s_add_u32 s{T}, s{T}, {0x7000000 if x_noh else WS_H}")
    K(f"s_lshl_b32 s{S_HB}, s{T+4}, 12"); K(f"s_add_u32 s{S_HB}, s{S_HB}, s{T}")
    K(f"s_lshl_b32 s{S_HB3}, s{T+2}, 12"); K(f"s_add_u32 s{S_HB3}, s{S_HB3}, s{T}")
    BF1, BF2, BONE = M_AR + 80, 128, 124
    for r in list(range(BF1, BF1 + 16)) + list(range(BONE, BF2 + 8)): K(f"v_mov_b32 v{r}, 0")
    K(f"v_lshlrev_b32 v{t0}, 1, v{V_LANE}")
    K("s_mov_b32 exec_hi, 0")
    K(f"v_mov_b32 v{BONE}, 0x3f80")
    mksrd(R_T, P_B1, 3584)
    for p in range(4): K(f"buffer_load_ushort v{BF1+4*p}, v{t0}, {srd(R_T)}, s{S_W1B} offen offset:{64*p}")
    mksrd(R_T, P_B2, 896)
    K(f"s_lshl_b32 s{T}, s{S_CT}, 7"); K(f"s_lshl_b32 s{T+1}, s{S_A}, 10"); K(f"s_add_u32 s{T}, s{T}, s{T+1}")
    for p in range(2): tk_b2 = K(f"buffer_load_ushort v{BF2+4*p}, v{t0}, {srd(R_T)}, s{T} offen offset:{64*p}")
    K("s_mov_b32 exec_hi, -1")
    K(f"s_lshl_b32 s{T}, s{S_ROW}, 1"); K(f"s_add_u32 s{T}, s{T}, s{S_A}")
    K(f"s_lshl_b32 s{T+1}, s{S_CT}, 7")
    K(f"s_lshl_b32 s{S_PE}, s{T}, 11"); K(f"s_add_u32 s{S_PE}, s{S_PE}, s{T+1}"); K(f"s_add_u32 s{S_PE}, s{S_PE}, {WS_HF}")
    K(f"s_lshl_b32 s{S_PO}, s{T}, 10"); K(f"s_add_u32 s{S_PO}, s{S_PO}, s{T+1}"); K(f"s_add_u32 s{S_PO}, s{S_PO}, {WS_OF}")
    K(f"s_lshl_b32 s{T}, s{S_ROW}, 4"); K(f"s_lshl_b32 s{T+1}, s{S_A}, 2"); K(f"s_add_u32 s{S_OB}, s{T+1}, s{T}")
    FL_E, FL_L, FL_O = (S_PE, 0, 6), (S_PE, 1024, 8), (S_PO, 0, 8)
    K(f"s_lshl_b32 s{T}, s{S_MT}, 2"); K(f"s_add_u32 s{T}, s{T}, s{S_A}"); K(f"s_mul_i32 s{S_RS}, s{T}, 112")
    K(f"s_lshl_b32 s{T+1}, s{S_J}, 3"); K(f"s_add_u32 s{S_RS}, s{S_RS}, s{T+1}"); K(f"s_lshl_b32 s{S_RS}, s{S_RS}, 10"); K(f"s_add_u32 s{S_RS}, s{S_RS}, {WS_H}")
    K(f"s_lshr_b32 s{T}, s{T}, 1"); K(f"s_lshl_b32 s{T}, s{T}, 13"); K(f"s_add_u32 s{T}, s{T}, {WS_HF}")
    K(f"s_mul_i32 s{T+1}, s{S_J}, {74*8}"); K(f"s_and_b32 s{S_FL}, s{T+1}, 0xf800"); K(f"s_add_u32 s{S_FL}, s{S_FL}, s{T}")
    K(f"s_add_u32 s{T+1}, s{T+1}, {37*8}"); K(f"s_and_b32 s{S_FL2}, s{T+1}, 0xf800"); K(f"s_add_u32 s{S_FL2}, s{S_FL2}, s{T}"); K(f"s_add_u32 s{S_FL2}, s{S_FL2}, 1024")
    K(f"s_lshr_b32 s{T+1}, {(1 << 3) | (1 << 10)}, s{S_J}"); K(f"s_and_b32 s{T+1}, s{T+1}, 1"); K(f"s_lshl_b32 s{T+1}, s{T+1}, 10"); K(f"s_add_u32 s{S_FL}, s{S_FL}, s{T+1}")
    K(f"s_cmp_ge_u32 s{S_J}, 14"); K(f"s_cselect_b32 s{S_FL2}, 0x7000000, s{S_FL2}")
    K(f"v_add_u32 v{M_L16B}, {112*1024}, v{V_L16}")
    MP = M_AR + 40
    K(f"v_lshlrev_b32 v{MP}, 7, v{V_LANE}")
    K(f"s_lshl_b32 s{T+3}, s2, 2"); K(f"s_add_u32 s{T+3}, s{T+3}, s{S_A}")
    K(f"s_mul_i32 s{S_XB}, s{T+3}, {13*128}"); K(f"s_lshl_b32 s{S_M0}, s{T+3}, 9")
    def mall_pf():
        K("s_mov_b64 exec, 0x1fff")
        K(f"buffer_load_dword v{V_POLL}, v{MP}, {srd(R_W2)}, s{S_XB} offen")
        K("s_mov_b64 exec, 15")
        K(f"buffer_load_dword v{V_POLL}, v{MP}, {srd(R_WO)}, s{S_M0} offen")
        K("s_mov_b64 exec, -1")
    if mpf == 1: mall_pf()
    if tlb:
        l = newl("tlb")
        K(f"s_cmp_lg_u32 s{S_A}, 1")
        K.branch(f"s_cbranch_scc1 {l}")
        K(f"v_lshlrev_b32 v{t0}, {tlb}, v{V_LANE}")
        K(f"buffer_load_dword v{V_POLL}, v{t0}, {srd(R_WS)}, 0 offen offset:2048"); K.vm -= 1
        K(f"buffer_load_dword v{V_POLL}, v{t0}, {srd(R_OUT)}, 0 offen"); K.vm -= 1
        K.label(l)
    xfrag_addr(M_AX)
    lanepart()
    K(f"v_lshl_add_u32 v{t0}, v{t2}, 3, v{t3}"); K(f"v_lshl_add_u32 v{t0}, v{t0}, 8, v{t4}"); K(f"v_lshl_add_u32 v{t0}, v{t3}, 6, v{t0}")
    K(f"v_add_u32 v{M_AW}, 16384, v{t0}")
    for p in range(1, 4): K(f"v_xor_b32 v{M_AW+p}, {64*p}, v{M_AW}")
    AB = M_AB
    K(f"v_lshl_add_u32 v{t0}, v{t2}, 2, v{t3}"); K(f"v_lshl_add_u32 v{t0}, v{t0}, 7, v{t4}"); K(f"v_bfe_u32 v{t1}, v{V_LANE}, 3, 1"); K(f"v_lshl_add_u32 v{t0}, v{t1}, 6, v{t0}")
    K(f"v_add_u32 v{AB}, s{S_M02}, v{t0}"); K(f"v_xor_b32 v{AB+1}, 64, v{AB}")
    K(f"v_add_u32 v{AB+2}, 65536, v{AB}"); K(f"v_add_u32 v{AB+3}, 65536, v{AB+1}")
    K(f"v_lshlrev_b32 v{t0}, 9, v{t2}"); K(f"v_sub_u32 v22, v{AB+2}, v{t0}"); K(f"v_sub_u32 v23, v{AB+3}, v{t0}")
    box = {}
    K(f"s_cmp_ge_u32 s{S_J}, 14")
    K.branch("s_cbranch_scc1 L_nof")
    vm_nof = K.vm
    K("s_waitcnt lgkmcnt(0)")
    settag()
    if fine: stamp("M_rdy")
    WR, XR = M_BH, M_BH + 4*G
    tk = {}
    def rdg(g):
        ks, p = g // 4, g % 4
        t, ksl = ks // 4, ks % 4
        uo = (t % 2) * 32768
        if p == 0 and ksl == 0:
            shift(range(M_AX, M_AX + 8), SH[t])
            if t == 3: K.wait_vm(tk_b2)
            if t < 6: K("s_barrier")
            else:
                l = newl("s6")
                K.wait_lg(box['cs'])
                K(f"v_cmp_ne_u32 vcc, 4, v{t4}")
                K(f"s_cbranch_vccz {l}")
                lgs = K.lg
                await_(C_S, 4)
                K.lg = lgs
                K.raw(f"{l}:")
        if p == 0: K(f"ds_read_b128 {vr(XR + 4*(ks % 3), 4)}, v{M_AX+ksl} offset:{uo}")
        for r in range(2):
            tk[g] = K(f"ds_read_b64_tr_b16 {vr(WR + 4*(g % G) + 2*r, 2)}, v{M_AW+p} offset:{uo + (16*ksl + 4*r)*256}")
    for g in range(G): rdg(g)
    for g in range(112):
        K.wait_lg(tk[g])
        mfma(M_ACC + 16*(g % 4), WR + 4*(g % G), XR + 4*((g // 4) % 3), "0" if g < 4 else None, x_m16 & 1)
        if 52 <= g < 56: mfma(M_ACC + 16*(g % 4), BF1 + 4*(g % 4), BONE)
        if g + G < 112: rdg(g + G)
        if g + G == 112: arrive(C_E)
        if g + G + 3 == 96: box['cs'] = K(f"ds_read_b32 v{t4}, v{V_CNT} offset:{C_S}")
        if mpf > 1 and g == mpf: mall_pf()
    stamp("ffn1")
    K(f"s_setprio {prioG}")
    tk = {}
    def rdb(ks, part=3):
        r, ksl = ks // 4, ks % 4
        b = M_BH + 8 * (ks % 8)
        u = RUNIT[r]
        if ksl == 0 and r >= (4 if aw2 == 3 else 2) and part & 1: K.wait_vm(tk_r[r])
        for pp in range(2):
            for h in range(2):
                if not part & (1 << pp): continue
                if r < 7:
                    tk[ks] = K(f"ds_read_b64_tr_b16 {vr(b + 4*pp + 2*h, 2)}, v{AB + pp + (2 if u >= 2 else 0)} offset:{(u%2)*32768 + (16*ksl + 8*h)*128}")
                else:
                    hh, sx = (ks % 4) // 2, ks % 2
                    tk[ks] = K(f"ds_read_b64_tr_b16 {vr(b + 4*pp + 2*h, 2)}, v{(22 if (sx == 1 and h == 1) else AB + 2) + pp} offset:{(u%2)*32768 + (28*hh + 16*sx + 8*h)*128}")
    def pull():
        await_(C_B, 4)
        for e in range(12): K(f"v_mov_b32 v{BF1+e}, v{BONE+e}")
        for ks in range(8):
            if ks >= 3: K.wait_lg(tk[ks - 3])
            rdb(ks)
        arrive(C_P)
    cc = -2.0 * 0.7978845608028654 * 1.4426950408889634
    K(f"v_mov_b32 v{t0}, {f2u(cc):#x}"); K(f"v_mov_b32 v{t1}, 1.0"); K(f"s_mov_b32 s{S_K}, {f2u(cc*0.044715):#x}"); K(f"s_mov_b32 s{S_K+1}, {f2u(cc*0.044715):#x}")
    tkh = {}
    for g in range(8):
        a = M_ACC + 8*g; tt = M_AR + 8*(g % 2); o = M_AR + 48 + 4*g
        if g < pkg:
            for e in range(0, 8, 2): K(f"v_pk_mul_f32 {vr(tt+e,2)}, {vr(a+e,2)}, {vr(a+e,2)}")
            for e in range(0, 8, 2): K(f"v_pk_fma_f32 {vr(tt+e,2)}, {vr(tt+e,2)}, {sp(S_K)}, {vr(t0,2)} op_sel_hi:[1,1,0]")
            for e in range(0, 8, 2): K(f"v_pk_mul_f32 {vr(tt+e,2)}, {vr(a+e,2)}, {vr(tt+e,2)}")
            for e in range(8): K(f"v_exp_f32 v{tt+e}, v{tt+e}")
            for e in range(0, 8, 2): K(f"v_pk_add_f32 {vr(tt+e,2)}, {vr(tt+e,2)}, {vr(t0,2)} op_sel:[0,1] op_sel_hi:[1,1]")
            for e in range(8): K(f"v_rcp_f32 v{tt+e}, v{tt+e}")
            for e in range(0, 8, 2): K(f"v_pk_mul_f32 {vr(tt+e,2)}, {vr(a+e,2)}, {vr(tt+e,2)}")
        else:
            for e in range(8): K(f"v_mul_f32 v{tt+e}, v{a+e}, v{a+e}")
            for e in range(8): K(f"v_fma_f32 v{tt+e}, v{tt+e}, s{S_K}, v{t0}")
            for e in range(8): K(f"v_mul_f32 v{tt+e}, v{a+e}, v{tt+e}")
            for e in range(8): K(f"v_exp_f32 v{tt+e}, v{tt+e}")
            for e in range(8): K(f"v_add_f32 v{tt+e}, 1.0, v{tt+e}")
            for e in range(8): K(f"v_rcp_f32 v{tt+e}, v{tt+e}")
            for e in range(8): K(f"v_mul_f32 v{tt+e}, v{a+e}, v{tt+e}")
        for e in range(4): K(f"v_cvt_pk_bf16_f32 v{o+e}, v{tt+2*e}, v{tt+2*e+1}")
        if g == gw: arrive(C_G)
        if aw2 == 3 and g == gp: pull()
        if (g + 1) % sb == 0:
            K("s_setprio 3")
            for x in range(g + 1 - sb, g + 1):
                if x == 4: K(f"s_add_u32 s{S_RS}, s{S_RS}, 4096")
                tkh[x] = K(f"buffer_store_dwordx4 {vr(M_AR + 48 + 4*x,4)}, v{V_L16}, {srd(R_WS)}, s{S_RS} offen offset:{1024*(x%4)} sc1")
            if g < 7: K(f"s_setprio {prioG}")
    stamp("gelu_v")
    await_(C_0, 4)
    K.wait_vm(tkh[3]); signal(S_FL, 7)
    stamp("gelu")
    K(f"s_cmp_eq_u32 s{S_ACT}, 1")
    K.branch("s_cbranch_scc1 L_p2")
    K("s_waitcnt vmcnt(0)")
    signal(S_FL2, 7)
    def l2warm(first, n):
        K(f"s_lshr_b32 s{T}, s2, 3"); K(f"s_and_b32 s{T}, s{T}, 3"); K(f"s_lshl_b32 s{T}, s{T}, 2"); K(f"s_add_u32 s{T}, s{T}, s{S_A}"); K(f"s_lshl_b32 s{T}, s{T}, 13")
        K(f"v_lshlrev_b32 v{t0}, 7, v{V_LANE}")
        for k in range(n):
            K(f"s_add_u32 s{T+1}, s{T}, {(first + 1024*k)*128}")
            K(f"buffer_load_dword v{t1}, v{t0}, {srd(R_W2)}, s{T+1} offen")
    if l2w & 1:
        l2warm(0, 13)
        for k in range(4):
            K(f"s_add_u32 s{T+1}, s{T}, {1024*k*128}")
            K(f"buffer_load_dword v{t1}, v{t0}, {srd(R_WO)}, s{T+1} offen")
    K.branch("s_branch L_fin")
    K.label("L_nof")
    K.vm = vm_nof
    if mpf == -2: await_(C_E, 8, 2)
    if mpf == -1: await_(C_0, 4, 2)
    if mpf < 0:
        K(f"s_lshl_b32 s{T+3}, s2, 2"); K(f"s_add_u32 s{T+3}, s{T+3}, s{S_A}")
        K(f"s_mul_i32 s{T}, s{T+3}, {98*128}"); K(f"s_mul_i32 s{T+1}, s{T+3}, {25*128}")
        K(f"buffer_load_dword v{V_POLL}, v{MP}, {srd(R_W2)}, s{T} offen")
        K(f"s_add_u32 s{T}, s{T}, {64*128}")
        K("s_mov_b32 exec_hi, 3")
        K(f"buffer_load_dword v{V_POLL}, v{MP}, {srd(R_W2)}, s{T} offen")
        K("s_mov_b64 exec, 0x1ffffff")
        K(f"buffer_load_dword v{V_POLL}, v{MP}, {srd(R_WO)}, s{T+1} offen")
        K("s_mov_b64 exec, -1")
    await_(C_0, 4, 2)
    K("s_waitcnt lgkmcnt(0)")
    settag()
    if mpf > 1: mall_pf()
    if l2w & 2: l2warm(0, 13)
    K("s_waitcnt vmcnt(0)")
    if aw2 == 3: pull()

    K.label("L_p2")
    tk_h = K.vm
    def g_wo(hf):
        def step(q):
            def f():
                if q == 0:
                    K(f"s_mul_i32 s{TD}, s{S_A}, {112*896}"); K(f"s_lshl_b32 s{TD+1}, s{S_CT}, 7"); K(f"s_add_u32 s{TD}, s{TD}, s{TD+1}")
                    if hf: K(f"s_add_u32 s{TD}, s{TD}, {56*896}")
                    K(f"s_add_u32 m0, s{S_M02}, {U[RUNIT[7+hf]]}")
                if q == 4: K(f"s_add_u32 s{TD}, s{TD}, {32*896}"); K(f"s_add_u32 m0, s{S_M02}, {U[RUNIT[7+hf]] + 4096}")
                x = K(f"buffer_load_dwordx4 v{V_D2+q%4}, {srd(R_WO)}, s{TD} offen offset:{1024*(q%4)} lds")
                if q == 6: tk_r[7+hf] = x
            return f
        return [step(q) for q in range(7)]
    tk_a = {}
    def lda(ks, part=3):
        b = M_AR + 8 * (ks % NA); r = ks // 4
        if part & 1:
            if ks % 4 == 0: K(f"s_add_u32 s{T+7}, s{S_HB3 if r == 3 else S_HB}, {0 if r == 3 else (2*r % 7)*4096}")
            K(f"buffer_load_dwordx4 {vr(b,4)}, v{V_L16}, {srd(R_WS)}, s{T+7} offen offset:{1024*(ks%4)} sc1")
        if part & 2: tk_a[ks] = K(f"buffer_load_dwordx4 {vr(b+4,4)}, v{M_L16B}, {srd(R_WS)}, s{T+7} offen offset:{1024*(ks%4)} sc1")
    for t2_ in range(2):
        for pp in range(2): mfma(M_ACC + 32*t2_ + 16*pp, (BF1 + 4 if aw2 == 3 else BF2) + 4*pp, BF1 if aw2 == 3 else BONE, "0")
    g0, g1, g2, g3 = g_w2(0), g_w2(1), g_w2(2), g_w2(3)
    if aw2 == 3:
        K.wait_vm(tk_h - 1)
        signal(S_FL2, 7)
        K(f"s_setprio 0")
        stamp("h_pub1")
        poll_issue(FL_E)
        poll_check(FL_E)
        stamp("hE_seen")
        for ks in range(pre): lda(ks)
        g3 = []
    elif aw2:
        K.wait_vm(tk_h - 1)
        signal(S_FL2, 7)
        K(f"s_setprio 0")
        stamp("h_pub1")
        if hfirst:
            poll_issue(FL_E)
            poll_check(FL_E)
            stamp("hE_seen")
            for ks in range(pre): lda(ks)
        await_(C_B, 4)
        stamp("B_seen")
        if jit:
            for ks in range(8):
                if ks >= 3: K.wait_lg(tk[ks - 3])
                rdb(ks)
        else:
            for ks in range(3): rdb(ks)
            K.wait_lg(tk[0]); rdb(3)
            K.wait_lg(tk[3])
            for q in range(8):
                g2[q]()
                if q < 4:
                    if q == 3: K.wait_lg(tk[4])
                    rdb(4 + q)
        K("s_waitcnt lgkmcnt(0)")
        if not hfirst:
            poll_issue(FL_E)
            run(g3); g3 = []
            poll_check(FL_E)
            stamp("hE_seen")
            for ks in range(pre): lda(ks)
    else:
        await_(C_E, 8)
        for q in range(8):
            g0[q]()
        K.wait_vm(tk_h - 1)
        signal(S_FL2, 7)
        K(f"s_setprio 0")
        stamp("h_pub1")
        poll_issue(FL_E)
        run(g1)
        poll_check(FL_E)
        stamp("hE_seen")
        if jit:
            for ks in range(8):
                if ks < pre: lda(ks)
                if ks % 4 == 0: K.wait_vm(tk_r[ks // 4])
                if ks >= 3: K.wait_lg(tk[ks - 3])
                rdb(ks)
            assert pre <= 8
        else:
            for ks in range(4): lda(ks)
            K.wait_vm(tk_r[0])
            for ks in range(4):
                if ks == 3: K.wait_lg(tk[0])
                rdb(ks); lda(4 + ks)
            K.wait_vm(tk_r[1]); K.wait_lg(tk[3])
            for q in range(8):
                g2[q]()
                if q < 4:
                    if q == 3: K.wait_lg(tk[4])
                    rdb(4 + q)
        K("s_waitcnt lgkmcnt(0)")
    stamp("p2_prep")
    poll_issue(FL_L)
    sched = []
    if jit:
        for k in range(pre, 28):
            for p in (1, 2): sched.append((k, max(k - NA + 1, c0 + 1 if k >= 12 else 0), lambda k=k, p=p: lda(k, p), 0))
        early = {2: 0, 3: 0, 4: c3 + 1, 5: 12, 6: 16, 7: cq + 1, 8: 20}
        for r in range(2, 9):
            for q, f in enumerate(g_w2(r) if r < 7 else g_wo(r - 7)): sched.append((4*r - bl + q // 2 + 0.5, early[r], f, r))
        sched.sort(key=lambda z: z[0])
    else:
        for ks in range(pre if aw2 else 8, 12): pend.extend([lambda ks=ks: lda(ks, 1), lambda ks=ks: lda(ks, 2)])
        pend.extend(g3)
    def jdrip(ks):
        first = min([z[3] for z in sched if z[3]], default=0)
        for n, (key, e, f, grp) in enumerate(sched):
            if e <= ks and grp in (0, first):
                f(); sched.pop(n); return
    def step(ks, side):
        K.wait_vm(tk_a[ks])
        if ks >= 8: K.wait_lg(tk[ks])
        a = M_AR + 8 * (ks % NA); b = M_BH + 8 * (ks % 8)
        n = 0
        for t2_ in range(2):
            for pp in range(2):
                if not (x_nomf and ks < 28): mfma(M_ACC + 32*t2_ + 16*pp, b + 4*pp, a + 4*t2_, None, x_m16 & 2)
                side(n); n += 1
    nxt = [12]
    def hstep(ks):
        def side(n):
            if n < 2 and ks + 3 >= 8: rdb(ks + 3, 1 << n)
            if jit and sched:
                jdrip(ks)
                if n < rate - 4: jdrip(ks)
            else: drip(2 if len(pend) > 8 else 1)
        step(ks, side)
    def ldo(ks, part):
        b = M_AR + 8 * (ks % NA)
        if part == 0:
            K(f"buffer_load_dword v{t2}, v{t3}, {srd(R_WS)}, s{T+3} offen sc1")
            box['g'] = K(f"buffer_load_dword v{t3}, v{t3}, {srd(R_WS)}, s{T+3} offen offset:2048 sc1")
        if part == 1:
            if ks == 32: K(f"s_add_u32 s{T+4}, s{T+4}, 4096")
            K(f"buffer_load_dwordx4 {vr(b,4)}, v{V_L16}, {srd(R_WS)}, s{T+4} offen offset:{1024*(ks%4)} sc1")
        if part == 2: tk_a[ks] = K(f"buffer_load_dwordx4 {vr(b+4,4)}, v{M_L16B}, {srd(R_WS)}, s{T+4} offen offset:{1024*(ks%4)} sc1")
    olist = lambda: [lambda: ldo(0, 0)] + [lambda k=k, p=p: ldo(k, p) for k in range(28, 36) for p in (1, 2)]
    for ks in range(oc + 1):
        hstep(ks)
        if ks == c0:
            poll_check(FL_L)
            stamp("hL_seen")
        if ks == 4 and aw2 == 3: await_(C_B2, 4)
        if ks == c3:
            await_(C_3, 4)
            if not jit: pend.extend(g_w2(4))
        if ks == cq:
            await_(C_Q, 4)
            if not jit: pend.extend(g_wo(0))
        if not jit:
            while ks >= c0 and nxt[0] <= ks + NA and nxt[0] < 28:
                pend.extend([lambda k=nxt[0]: lda(k, 1), lambda k=nxt[0]: lda(k, 2)]); nxt[0] += 1
            if ks == 11: pend.extend(g_w2(5))
            if ks == 15: pend.extend(g_w2(6))
            if ks == 19: pend.extend(g_wo(1))
        if ks in (3, 11, 19): stamp(f"p2_k{ks}")
        if ks == oc - 2: poll_issue(FL_O)
    while sched: jdrip(99)
    assert not pend and oc >= 22
    K(f"v_and_b32 v{t3}, 31, v{V_LANE}"); K(f"v_lshlrev_b32 v{t3}, 2, v{t3}")
    K(f"s_lshl_b32 s{T+3}, s{S_OB}, 7"); K(f"s_add_u32 s{T+3}, s{T+3}, {WS_G}")
    K(f"s_lshl_b32 s{T+4}, s{S_OB}, 11"); K(f"s_add_u32 s{T+4}, s{T+4}, {WS_O}")
    K(f"v_add_u32 v{M_L16B}, 32768, v{V_L16}")
    K(f"v_add_u32 v{V_D2}, s{S_M02}, v{V_L16}")
    for q in range(1, 4): K(f"v_xor_b32 v{V_D2+q}, {64*q}, v{V_D2}")
    K("s_waitcnt lgkmcnt(0)")
    K(f"s_cmp_lg_u32 s{PD[0]}, {FL_O[2]}")
    K.branch("s_cbranch_scc1 L_olate")
    sv, sl = K.vm, K.lg
    stamp("o_early")
    pend.extend(olist())
    for ks in range(oc + 1, 28): hstep(ks)
    drip(99)
    ev, el = K.vm, K.lg
    K.branch("s_branch L_ojoin")
    K.label("L_olate")
    K.vm, K.lg = sv, sl
    for ks in range(oc + 1, 28): hstep(ks)
    poll_issue(FL_O)
    poll_check(FL_O)
    stamp("o_late")
    run(olist())
    assert (ev, el) == (K.vm, K.lg)
    K.label("L_ojoin")
    stamp("p2_h_done")
    tk_g = box['g']
    K.wait_vm(tk_g)
    if f2: stamp("t_g")
    K(f"v_sub_f32 v{t4}, 1.0, v{t2}"); K(f"v_sub_f32 v{t5}, 1.0, v{t3}")
    K(f"v_cvt_pk_bf16_f32 v{t4}, v{t4}, v{t5}"); K(f"v_and_b32 v{t5}, 0xffff0000, v{t4}"); K(f"v_lshlrev_b32 v{t4}, 16, v{t4}")
    for e in range(0, 64, 2): pscale(M_ACC+e, t4 if e < 32 else t5, True)
    for ks in range(28, 36):
        def side(n):
            if n < 2 and ks + 3 < 36: rdb(ks + 3, 1 << n)
        step(ks, side)
    if f2: stamp("t_mf")
    for t2_ in range(2):
        for b in range(8): K(f"ds_write_b128 v{V_D2 + b%4}, {vr(M_ACC+32*t2_+4*b,4)} offset:{32768*t2_ + 1024*b}")
    stamp("p2_done")

    K.label("L_red")
    K(f"v_and_b32 v{t1}, 7, v{V_LANE}"); K(f"v_lshrrev_b32 v{t3}, 3, v{V_LANE}")
    K(f"s_lshl_b32 s{T+1}, s{S_A}, 3"); K(f"v_add_u32 v{t0}, s{T+1}, v{t3}")
    K(f"v_and_b32 v{t2}, 3, v{V_LANE}"); K(f"v_lshlrev_b32 v{t2}, 2, v{t2}"); K(f"v_xor_b32 v{t0}, v{t0}, v{t2}")
    K(f"v_lshlrev_b32 v{t0}, 4, v{t0}"); K(f"v_lshl_add_u32 v{t0}, v{t1}, 10, v{t0}")
    K(f"s_lshr_b32 s{T+2}, s{S_W}, 2"); K(f"s_lshl_b32 s{T}, s{T+2}, 15"); K(f"v_add_u32 v{t0}, s{T}, v{t0}")
    K(f"v_mul_u32_u24 v{t3}, 896, v{t3}"); K(f"v_lshl_add_u32 v{t3}, v{t1}, 4, v{t3}")
    K(f"s_lshl_b32 s{T}, s{S_ROW}, 2"); K(f"s_add_u32 s{T}, s{T}, s{S_W}"); K(f"s_mul_i32 s{T}, s{T}, {8*896}"); K(f"s_lshl_b32 s{T+1}, s{S_CT}, 7"); K(f"s_add_u32 s{T+5}, s{T}, s{T+1}")
    K("s_waitcnt lgkmcnt(0)")
    K("s_barrier")
    if f2: stamp("t_bar")
    R = 160
    for q in range(4):
        K(f"ds_read_b128 {vr(R+8*q,4)}, v{t0} offset:{8192*q}")
        K(f"ds_read_b128 {vr(R+8*q+4,4)}, v{t0} offset:{8192*q + 512}")
    K("s_waitcnt lgkmcnt(4)")
    for e in range(0, 8, 2): padd(R+e, R+e, R+8+e, True)
    K("s_waitcnt lgkmcnt(0)")
    for e in range(0, 8, 2): padd(R+16+e, R+16+e, R+24+e, True)
    for e in range(0, 8, 2): padd(R+e, R+e, R+16+e, True)
    for e in range(4): K(f"v_cvt_pk_bf16_f32 v{R+e}, v{R+2*e}, v{R+2*e+1}")
    K(f"buffer_store_dwordx4 {vr(R,4)}, v{t3}, {srd(R_OUT)}, s{T+5} offen" + ["", " sc1", " nt", " sc0 sc1"][outm])
    if f2: stamp("t_st")
    K(f"s_or_b32 s{T}, s2, s{S_W}"); K(f"s_cmp_lg_u32 s{T}, 0")
    K.branch("s_cbranch_scc1 L_fin")
    K(f"s_mov_b32 s{T}, {WS_EPOCH}")
    flag(T)
    K.label("L_fin")
    if stamps:
        K("s_waitcnt vmcnt(0)")
        stamp("end")
        if probe is not None:
            i0 = STAMP_IDS.setdefault('start', len(STAMP_IDS)); i1 = STAMP_IDS.setdefault(probe, len(STAMP_IDS))
            K(f"v_readlane_b32 s{T}, v{V_STAMP}, {i0}"); K(f"v_readlane_b32 s{T+1}, v{V_STAMP}, {i1}")
            K("s_nop 4")
            K(f"s_cmp_eq_u32 s{T+1}, 0"); K(f"s_cselect_b32 s{T+1}, s{T}, s{T+1}")
            if pwg >= 0:
                K(f"s_cmp_lg_u32 s2, {pwg}")
                K.branch("s_cbranch_scc1 L_end")
            K.label("L_probe")
            K("s_sleep 2")
            K(f"s_memrealtime {sp(S_ST)}"); K("s_waitcnt lgkmcnt(0)")
            K(f"s_sub_u32 s{T+2}, s{S_ST}, s{T+1}"); K(f"s_cmp_lt_u32 s{T+2}, {pt}")
            K.branch("s_cbranch_scc1 L_probe")
            K.branch("s_branch L_end")
        K(f"s_lshl_b32 s{T}, s2, 3"); K(f"s_add_u32 s{T}, s{T}, s{S_W}"); K(f"s_lshl_b32 s{T}, s{T}, 8"); K(f"s_add_u32 s{T}, s{T}, {WS_STAMP}")
        K(f"v_lshlrev_b32 v{t0}, 2, v{V_LANE}")
        K(f"buffer_store_dword v{V_STAMP}, v{t0}, {srd(R_WS)}, s{T} offen")
    K.label("L_end")
    K("s_endpgm")
    K.raw(f".fill (28672 + 8192 * {1 if stamps else 0} - (L_end - {NAME})) / 4, 4, 0xbf800000")

    head = f"""; Fused gated mix of hedgehog linear attention and GELU FFN (emitted by a hand-written generator script)
; @launch grid=(256,1,1) block=(512,1,1) lds=163840
.amdgcn_target "amdgcn-amd-amdhsa--gfx950"
.text
.globl {NAME}
.p2align 8
.type {NAME},@function
"""
    tail = f""".section .rodata,"a"
.p2align 6
.amdhsa_kernel {NAME}
  .amdhsa_next_free_vgpr 256
  .amdhsa_next_free_sgpr 102
  .amdhsa_accum_offset 256
  .amdhsa_group_segment_fixed_size 0
  .amdhsa_kernarg_size 104
  .amdhsa_user_sgpr_count 2
  .amdhsa_user_sgpr_kernarg_segment_ptr 1
  .amdhsa_system_sgpr_workgroup_id_x 1
.end_amdhsa_kernel
"""
    return head + K.text() + tail

STAMP_IDS = {}
def parse_opts(argv):
    kw = {}
    for a in argv:
        if a.startswith("-D"):
            k, v = a[2:].split("="); kw[k] = int(v) if v.lstrip("-").isdigit() else v
    return kw
if __name__ == "__main__":
    out = sys.argv[1] if len(sys.argv) > 1 else "k.s"
    open(out, "w").write(gen(**parse_opts(sys.argv)))
```

```python
import sys, struct
from asmlib import Asm

NAME = "gated_mix__linear_kernel_hedgehog__dense_activation_gelu__prompt_kernel"
def f2u(x): return struct.unpack("<I", struct.pack("<f", x))[0]

WS_EPOCH = 0
WS_RPF   = 0x8000
WS_STAMP = 0x10000
WS_G     = 0xA0000
WS_WQ    = 0x100000
WS_KVP   = 0x280000
WS_O     = 0x480000
WS_H     = 0x680000
WS_CN    = 0x300000
WS_HF    = WS_CN
WS_OF    = WS_CN + 2048*128
WS_KVF   = WS_CN + 3072*128
WS_SIZE  = 0xE00000

U = [0, 32768, 65536, 98304, 131072]
L_K, L_V, L_Q = 98304, 126976, 65536
L_MISC = 155648
L_PHI, L_CNT, L_B2, L_B1 = L_MISC, L_MISC + 2048, L_MISC + 2560, L_MISC + 3072
L_KVS = U[3]
L_KVF = L_MISC + 4096
RUNIT = [0, 1, 0, 1, 3, 0, 1, 2, 3]
C_E, C_0, C_1, C_2, C_3, C_4, C_Q, C_G, C_B, C_S, C_5, C_P, C_B2 = 0, 4, 8, 12, 16, 20, 24, 28, 32, 36, 40, 44, 48

P_X, P_WQKV, P_PHI, P_WO, P_W1, P_B1, P_W2 = 16, 18, 20, 22, 26, 28, 30
P_B2, P_GATE, P_OUT, P_WS = 32, 34, 36, 40
R_X, R_W1, R_W2, R_WO, R_WS, R_OUT, R_T = 44, 48, 52, 56, 60, 64, 68
S_MT, S_J, S_W, S_A, S_FL2, S_TAG, S_CH, S_CNT = 72, 73, 74, 75, 76, 78, 77, 100
S_CHO = 80
S_M0 = 87
S_XB, S_W1B = 88, 89
S_T = 90
S_UP = 98
S_E = 42
S_H = S_J
S_CT, S_ROW, S_ACT = 43, 3, 101
S_K = 4
S_ST = 6
S_L28 = 24
S_FL = 8
S_HB, S_W2B, S_OB, S_HB3, S_W2B3, S_M02, S_RS = 9, 10, 11, 12, 13, 14, 15
S_PE, S_P3, S_PO = 34, 35, 38
PD = [16, 17, 18, 19, 20, 21, 22, 23, 26, 27, 28, 29, 30, 31, 32, 33]
def srd(r): return f"s[{r}:{r+3}]"
def sp(r): return f"s[{r}:{r+1}]"

V_LANE, V_L16, V_STAMP, V_TAG, V_POLL, V_CNT = 1, 2, 3, 4, 5, 6
V_T = 8
V_D2 = 18
A_PA, A_AX, A_AD, A_L4, A_PH, A_TR, A_G = 7, 14, 22, 24, 25, 30, 31
V_W, V_P, V_ACC, V_PHI, V_X = 32, 64, 96, 128, 144
A_XD, A_WD, A_QD, A_GW = 64, 68, 72, 16
M_L16B, M_AB = 7, 14
M_ACC, M_BH, M_AR = 24, 88, 152
M_AX, M_AW = 136, 140
NA = 13
def vr(a, n): return f"v[{a}:{a+n-1}]"
UPM = sp(S_UP)
L2E = 1.4426950408889634

def gen(stamps=False, spin=20000, rot1=9, codepf=True, slp=2, cyc=False, G=5, prioA=1, prioM=2, kvf=27, fine=False,
        pkq=0, pkk=1, LA=9, LA0=6, c0=2, mpf=30, outm=0, tlb=21, gw=-1, hf0=7, rpb=3, prioG=2, k6=4, qpf=1, sb=1, qd=0, probe=None, pwg=-1, pt=4000, aw2=2, pre=8, cb=22, pkg=2, rpa=0, f2=0, hfirst=1, early=0, oc=22, x_now2=0, x_noh=0, x_nomf=0, x_now1=0, rb2=0, gp=3, pa=10, x_at=4, c3=9, cq=17, spf=0, allpf=0, l2w=0, jit=0, bl=5, rate=4, x_m16=0, ra=2, rb=4, rc=2, rd=0, x_skipB=99, x_noo=0, x_nog=0, x_noE=0, md=2, hlp=0, hw=2, h0=0, hd=0, hh=0):
    K = Asm()
    T = S_T
    TD = T + 5
    t0, t1, t2, t3, t4, t5 = range(V_T, V_T + 6)
    def stamp(name):
        if not stamps: return
        if probe is not None and name != probe: return
        K("s_waitcnt lgkmcnt(0)")
        K(f"s_memrealtime {sp(S_ST)}")
        if cyc: K(f"s_memtime s[0:1]")
        K("s_waitcnt lgkmcnt(0)")
        i = STAMP_IDS.setdefault(name, len(STAMP_IDS))
        K(f"v_writelane_b32 v{V_STAMP}, s{S_ST}, {i}")
        if cyc: K(f"v_writelane_b32 v{V_STAMP}, s0, {32 + i}")
    uid = [0]
    def newl(p): uid[0] += 1; return f"L_{p}{uid[0]}"
    def poll_issue(fl):
        K(f"s_load_dword s{PD[0]}, {sp(P_WS)}, s{fl[0]} offset:{fl[1]} glc")
    def poll_check(fl):
        l, d = newl("poll"), newl("polld")
        K(f"s_mov_b32 s{S_CNT}, {spin}")
        K.raw(f"{l}:")
        K("s_waitcnt lgkmcnt(0)")
        K(f"s_cmp_eq_u32 s{PD[0]}, {fl[2]}")
        K.branch(f"s_cbranch_scc1 {d}")
        K(f"s_sub_u32 s{S_CNT}, s{S_CNT}, 1")
        K(f"s_cbranch_scc1 {d}")
        if slp: K(f"s_sleep {slp}")
        poll_issue(fl)
        K(f"s_branch {l}")
        K.label(d)
    def signal(soff_reg, n):
        K(f"v_mov_b32 v{t5}, 1"); K(f"v_lshlrev_b32 v{V_POLL}, 7, v{V_LANE}")
        K(f"s_mov_b64 exec, {(1 << n) - 1}")
        K(f"buffer_atomic_add v{t5}, v{V_POLL}, {srd(R_WS)}, s{soff_reg} offen")
        K("s_mov_b64 exec, -1")
    def vpoll_issue(vaddr):
        return K(f"buffer_load_dword v{V_POLL}, v{vaddr}, {srd(R_WS)}, 0 offen sc1")
    def vpoll_check(tok, vaddr):
        l, d = newl("poll"), newl("polld")
        K(f"s_mov_b32 s{S_CNT}, {spin}")
        K.wait_vm(tok)
        K.label(l)
        K(f"v_cmp_ne_u32 vcc, s{S_TAG}, v{V_POLL}")
        K.branch(f"s_cbranch_vccz {d}")
        K(f"s_sub_u32 s{S_CNT}, s{S_CNT}, 1")
        K.branch(f"s_cbranch_scc1 {d}")
        K(f"s_sleep 10")
        K(f"buffer_load_dword v{V_POLL}, v{vaddr}, {srd(R_WS)}, 0 offen sc1"); K.vm -= 1
        K("s_waitcnt vmcnt(0)")
        K.branch(f"s_branch {l}")
        K.label(d)
    def flag(soff_reg):
        K("s_mov_b64 exec, 1")
        K(f"buffer_store_dword v{V_TAG}, v{V_LANE}, {srd(R_WS)}, s{soff_reg} offen sc1")
        K("s_mov_b64 exec, -1")
    def arrive(c):
        K(f"v_mov_b32 v{t5}, 1")
        K("s_mov_b64 exec, 1")
        K(f"ds_add_u32 v{V_CNT}, v{t5} offset:{c}")
        K("s_mov_b64 exec, -1")
    def await_(c, n, sleep=0):
        l, d = newl("aw"), newl("awd")
        K(f"s_mov_b32 s{S_CNT}, {spin * 8}")
        K.label(l)
        K(f"ds_read_b32 v{t5}, v{V_CNT} offset:{c}")
        K("s_waitcnt lgkmcnt(0)")
        K(f"v_cmp_ne_u32 vcc, {n}, v{t5}")
        K.branch(f"s_cbranch_vccz {d}")
        if sleep: K(f"s_sleep {sleep}")
        K(f"s_sub_u32 s{S_CNT}, s{S_CNT}, 1")
        K.branch(f"s_cbranch_scc0 {l}")
        K.label(d)
    def mksrd(r, p, nbytes):
        K(f"s_mov_b32 s{r}, s{p}"); K(f"s_and_b32 s{r+1}, s{p+1}, 0xffff")
        K(f"s_mov_b32 s{r+2}, {nbytes}"); K(f"s_mov_b32 s{r+3}, 0x20000")
    cnt16 = [0]
    def mfma(d, a, b, c=None, big=False):
        if x_m16 and big and c is None:
            cnt16[0] += 1
            o = 8 * ((cnt16[0] // 4) % 2)
            for q in range(2): K(f"v_mfma_f32_16x16x32_bf16 {vr(d+o+4*q,4)}, {vr(a,4)}, {vr(b,4)}, {vr(d+o+4*q,4)}")
            return
        cs = vr(d, 16) if c is None else c
        K(f"v_mfma_f32_32x32x16_bf16 {vr(d,16)}, {vr(a,4)}, {vr(b,4)}, {cs}")
    def padd(d, a, b, pk):
        if pk: K(f"v_pk_add_f32 {vr(d,2)}, {vr(a,2)}, {vr(b,2)}")
        else: K(f"v_add_f32 v{d}, v{a}, v{b}"); K(f"v_add_f32 v{d+1}, v{a+1}, v{b+1}")
    def pscale(d, r, pk):
        if pk: K(f"v_pk_mul_f32 {vr(d,2)}, {vr(d,2)}, {vr(r & ~1,2)} " + ("op_sel:[0,1] op_sel_hi:[1,1]" if r & 1 else "op_sel_hi:[1,0]"))
        else: K(f"v_mul_f32 v{d}, v{d}, v{r}"); K(f"v_mul_f32 v{d+1}, v{d+1}, v{r}")
    def settag():
        K(f"s_add_u32 s{S_TAG}, s{S_E}, 0x9E3779B9"); K(f"s_mov_b32 s{S_TAG+1}, s{S_TAG}"); K(f"v_mov_b32 v{V_TAG}, s{S_TAG}")
    def xfrag_addr(dst):
        K(f"v_and_b32 v{t0}, 31, v{V_LANE}"); K(f"v_lshrrev_b32 v{t2}, 5, v{V_LANE}"); K(f"v_bfe_u32 v{t3}, v{V_LANE}, 1, 3")
        K(f"v_xor_b32 v{t3}, v{t2}, v{t3}"); K(f"s_lshl_b32 s{T}, s{S_A}, 12"); K(f"v_lshlrev_b32 v{t0}, 7, v{t0}")
        K(f"v_lshl_add_u32 v{t0}, v{t3}, 4, v{t0}"); K(f"v_add_u32 v{dst}, s{T}, v{t0}")
        for k in range(1, 4): K(f"v_xor_b32 v{dst+k}, {32*k}, v{dst}")
    def lanepart():
        K(f"v_bfe_u32 v{t4}, v{V_LANE}, 4, 1"); K(f"v_lshlrev_b32 v{t4}, 5, v{t4}")
        K(f"v_and_b32 v{t3}, 3, v{V_LANE}"); K(f"v_lshl_add_u32 v{t4}, v{t3}, 3, v{t4}")
        K(f"v_bfe_u32 v{t3}, v{V_LANE}, 2, 2"); K(f"v_lshrrev_b32 v{t2}, 5, v{V_LANE}")
    def p2setup():
        mksrd(R_W2, P_W2, 0 if x_now2 else 1792*896)
        K(f"s_and_b32 s{T}, s2, 7"); K(f"s_lshr_b32 s{T+1}, s2, 3")
        if hlp: K(f"s_add_u32 s{T+1}, s{T+1}, 28"); K(f"s_and_b32 s{T+1}, s{T+1}, 31")
        K(f"s_mul_i32 s{T+2}, s{T+1}, 37"); K(f"s_lshr_b32 s{T+2}, s{T+2}, 8"); K(f"s_mul_i32 s{T+3}, s{T+2}, 7"); K(f"s_sub_u32 s{S_CT}, s{T+1}, s{T+3}")
        K(f"s_lshl_b32 s{T+2}, s{T+2}, 1"); K(f"s_lshl_b32 s{T+3}, s{T}, 3"); K(f"s_add_u32 s{S_ROW}, s{T+2}, s{T+3}")
        K(f"s_cmp_lt_u32 s{T+1}, 28"); K(f"s_cselect_b32 s{S_ACT}, 1, 0")
        K(f"s_and_b32 s{T+2}, s{S_A}, 1"); K(f"s_mul_i32 s{T+3}, s{S_A}, 7"); K(f"s_add_u32 s{T+4}, s{T+3}, s{T+2}")
        K(f"s_cmp_eq_u32 s{T+2}, 0"); K(f"s_cselect_b32 s{T+2}, 6, 0"); K(f"s_add_u32 s{T+2}, s{T+2}, s{T+3}")
        K(f"s_lshl_b32 s{T}, s{S_CT}, 7")
        K(f"s_mul_i32 s{S_W2B}, s{T+4}, {64*896}"); K(f"s_add_u32 s{S_W2B}, s{S_W2B}, s{T}")
        K(f"s_mul_i32 s{S_W2B3}, s{T+2}, {64*896}"); K(f"s_add_u32 s{S_W2B3}, s{S_W2B3}, s{T}")
        K(f"s_lshl_b32 s{S_M02}, s{S_A}, 13")
        K(f"v_lshrrev_b32 v{t0}, 3, v{V_LANE}"); K(f"v_and_b32 v{t1}, 7, v{V_LANE}")
        K(f"v_bfe_u32 v{t2}, v{V_LANE}, 4, 1"); K(f"v_lshlrev_b32 v{t2}, 2, v{t2}"); K(f"v_xor_b32 v{t1}, v{t1}, v{t2}")
        K(f"v_mul_u32_u24 v{t0}, 896, v{t0}"); K(f"v_lshl_add_u32 v{V_D2}, v{t1}, 4, v{t0}")
        for q in range(1, 4): K(f"v_add_u32 v{V_D2+q}, {q*(8*896-1024)}, v{V_D2}")
        K(f"v_mov_b32 v{V_CNT}, {L_CNT}")
    def shift(regs, d):
        for r in regs:
            if d > 0: K(f"v_add_u32 v{r}, {d}, v{r}")
            elif d < 0: K(f"v_subrev_u32 v{r}, {-d}, v{r}")
    pend = []
    def drip(n):
        for _ in range(n):
            if pend: pend.pop(0)()
    def run(steps):
        for f in steps: f()
    tk_r = {}
    def g_w2(r):
        def step(q):
            def f():
                if q % 4 == 0:
                    K(f"s_add_u32 s{TD}, s{S_W2B3 if r == 3 else S_W2B}, {(0 if r == 3 else (2*r % 7)*64*896) + (q // 4)*32*896}")
                    K(f"s_add_u32 m0, s{S_M02}, {U[RUNIT[r]] + (q // 4)*4096}")
                x = K(f"buffer_load_dwordx4 v{V_D2+q%4}, {srd(R_W2)}, s{TD} offen offset:{1024*(q%4)} lds") if r < x_skipB else K.vm - 8
                if q == 7: tk_r[r] = x
            return f
        return [step(q) for q in range(8)]
    SH = [0, 0, 65536, 0, -65536, 0, 65536]

    K.raw(f"{NAME}:")
    K("s_cmp_ge_u32 s2, 256"); K("s_cbranch_scc1 L_end")
    if stamps and early: K(f"s_memrealtime {sp(S_ST)}"); K("s_waitcnt lgkmcnt(0)")
    K("s_load_dwordx16 s[16:31], s[0:1], 0"); K("s_load_dwordx8 s[32:39], s[0:1], 64"); K("s_load_dwordx2 s[40:41], s[0:1], 96")
    if stamps:
        if not early: K(f"s_memrealtime {sp(S_ST)}")
        K(f"v_mov_b32 v{V_STAMP}, 0")
    K(f"v_lshrrev_b32 v{t0}, 6, v0"); K(f"v_and_b32 v{V_LANE}, 63, v0")
    K(f"v_readfirstlane_b32 s{S_W}, v{t0}")
    K(f"v_lshlrev_b32 v{V_L16}, 4, v{V_LANE}")
    K(f"s_and_b32 s{T}, s2, 7"); K(f"s_lshr_b32 s{T+1}, s2, 3")
    if codepf:
        K(f"s_lshr_b32 s{T+2}, s2, 5"); K(f"s_lshl_b32 s{T+2}, s{T+2}, 3"); K(f"s_or_b32 s{T+2}, s{T+2}, s{S_W}"); K(f"s_cmp_lg_u32 s{T+2}, 7")
        K("s_cbranch_scc1 L_nopf")
        K(f"s_getpc_b64 {sp(T+2)}")
        K.raw("L_pc:")
        K(f"s_lshl_b32 s{T+4}, s{T+1}, 7"); K(f"s_sub_u32 s{T+2}, s{T+2}, L_pc - {NAME}"); K(f"s_subb_u32 s{T+3}, s{T+3}, 0")
        K(f"s_add_u32 s{T+2}, s{T+2}, s{T+4}"); K(f"s_addc_u32 s{T+3}, s{T+3}, 0")
        K(f"v_lshlrev_b32 v{t0}, 9, v{V_LANE}")
        K("s_mov_b32 exec_hi, 0xffffff")
        K(f"global_load_dword v{V_POLL}, v{t0}, {sp(T+2)}"); K.vm -= 1
        K("s_mov_b32 exec_hi, -1")
        K.label("L_nopf")
    K(f"s_and_b32 s{T+2}, s{T}, 2"); K(f"s_lshl_b32 s{T+2}, s{T+2}, 1")
    K(f"s_and_b32 s{T+3}, s{T}, 1"); K(f"s_cmp_lt_u32 s{T+1}, 4"); K(f"s_cselect_b32 s{T+4}, 14, 12"); K(f"s_add_u32 s{T+3}, s{T+3}, s{T+4}")
    K(f"s_lshr_b32 s{T+4}, s{T+1}, 3"); K(f"s_lshl_b32 s{S_J}, s{T+4}, 2"); K(f"s_and_b32 s{S_MT}, s{T}, 3"); K(f"s_add_u32 s{S_J}, s{S_J}, s{S_MT}"); K(f"s_sub_u32 s{S_J}, s{S_J}, 4")
    K(f"s_cmp_lt_u32 s{T+1}, 8"); K(f"s_cselect_b32 s{S_J}, s{T+3}, s{S_J}"); K(f"s_cselect_b32 s{T+2}, s{T+2}, 0")
    K(f"s_and_b32 s{T+3}, s{T+1}, 7"); K(f"s_xor_b32 s{T+3}, s{T+3}, s{T+2}")
    K(f"s_and_b32 s{S_MT}, s{T}, 4"); K(f"s_lshl_b32 s{S_MT}, s{S_MT}, 1"); K(f"s_add_u32 s{S_MT}, s{S_MT}, s{T+3}")
    K(f"s_and_b32 s{S_A}, s{S_W}, 3")
    K(f"s_lshl_b32 s{S_W1B}, s{S_J}, 8")
    K(f"s_cmp_ge_u32 s{S_W}, 4")
    K.branch("s_cbranch_scc1 L_M")

    if prioA: K(f"s_setprio {prioA}")
    K(f"s_lshl_b32 s{T+4}, s{T+4}, 1"); K(f"s_add_u32 s{T+2}, s{T+3}, s{T+4}")
    K(f"s_cmp_ge_u32 s{T+2}, 7"); K(f"s_cselect_b32 s{T+3}, 7, 0"); K(f"s_sub_u32 s{S_CH}, s{T+2}, s{T+3}")
    if not rot1: K(f"s_mov_b32 s{S_CH}, 0")
    if rot1 == 2:
        K(f"s_lshr_b32 s{T+4}, s{T+4}, 1"); K(f"s_add_u32 s{T+2}, s{S_MT}, s{T+4}"); K(f"s_and_b32 s{T+2}, s{T+2}, 1"); K(f"s_lshl_b32 s{S_CH}, s{T+2}, 2")
    if rot1 == 4:
        K(f"s_lshr_b32 s{T+4}, s{T+4}, 1"); K(f"s_add_u32 s{T+2}, s{S_MT}, s{T+4}"); K(f"s_and_b32 s{T+2}, s{T+2}, 3"); K(f"s_lshl_b32 s{S_CH}, s{T+2}, 1")
    if rot1 >= 9:
        K(f"s_and_b32 s{T+2}, s2, 3"); K(f"s_mul_i32 s{T+2}, s{T+2}, {ra}"); K(f"s_bfe_u32 s{T+3}, s2, 0x10002"); K(f"s_mul_i32 s{T+3}, s{T+3}, {rb}"); K(f"s_add_u32 s{T+2}, s{T+2}, s{T+3}")
        if rc: K(f"s_and_b32 s{T+3}, s{S_MT}, 1"); K(f"s_mul_i32 s{T+3}, s{T+3}, {rc}"); K(f"s_add_u32 s{T+2}, s{T+2}, s{T+3}")
        if rd: K(f"s_bfe_u32 s{T+3}, s{S_MT}, 0x10001"); K(f"s_mul_i32 s{T+3}, s{T+3}, {rd}"); K(f"s_add_u32 s{T+2}, s{T+2}, s{T+3}")
        K(f"s_mul_i32 s{T+3}, s{T+2}, 37"); K(f"s_lshr_b32 s{T+3}, s{T+3}, 8"); K(f"s_mul_i32 s{T+3}, s{T+3}, 7"); K(f"s_sub_u32 s{S_CH}, s{T+2}, s{T+3}")
    if rot1 == 8:
        K(f"s_and_b32 s{T+2}, s2, 7"); K(f"s_cmp_eq_u32 s{T+2}, 7"); K(f"s_cselect_b32 s{S_CH}, 3, s{T+2}")
    def rotstep(t):
        K(f"s_lshl_b32 s{S_CHO+t}, s{S_CH}, 12")
        if t < 6: K(f"s_add_u32 s{S_CH}, s{S_CH}, 1"); K(f"s_cmp_eq_u32 s{S_CH}, 7"); K(f"s_cselect_b32 s{S_CH}, 0, s{S_CH}")
    rotstep(0); rotstep(1)
    K(f"s_lshl_b32 s{S_M0}, s{S_A}, 12")
    K(f"s_mul_i32 s{S_XB}, s{S_MT}, {128*896}")
    K(f"v_lshrrev_b32 v{t0}, 3, v{V_LANE}"); K(f"v_and_b32 v{t1}, 7, v{V_LANE}"); K(f"v_lshrrev_b32 v{t2}, 1, v{t0}"); K(f"v_xor_b32 v{t2}, v{t1}, v{t2}")
    K(f"s_lshl_b32 s{T+2}, s{S_A}, 5"); K(f"v_add_u32 v{t3}, s{T+2}, v{t0}"); K(f"v_mul_u32_u24 v{t3}, 896, v{t3}")
    K(f"v_lshl_add_u32 v{A_XD}, v{t2}, 4, v{t3}"); K(f"v_xor_b32 v{t2}, 4, v{t2}"); K(f"v_lshl_add_u32 v{A_XD+1}, v{t2}, 4, v{t3}")
    K(f"v_add_u32 v{A_XD+1}, {8*896-1024}, v{A_XD+1}")
    K(f"v_add_u32 v{A_XD+2}, {16*896-2048}, v{A_XD}"); K(f"v_add_u32 v{A_XD+3}, {16*896-2048}, v{A_XD+1}")
    K(f"v_lshrrev_b32 v{t0}, 4, v{V_LANE}"); K(f"v_and_b32 v{t1}, 15, v{V_LANE}"); K(f"v_lshlrev_b32 v{t2}, 2, v{t0}"); K(f"v_xor_b32 v{t2}, v{t1}, v{t2}")
    K(f"s_lshl_b32 s{T+2}, s{S_A}, 4"); K(f"v_add_u32 v{t3}, s{T+2}, v{t0}"); K(f"v_mul_u32_u24 v{t3}, 3584, v{t3}")
    K(f"v_lshl_add_u32 v{A_WD}, v{t2}, 4, v{t3}")
    for q in range(1, 4): K(f"v_add_u32 v{A_WD+q}, {q*(4*3584-1024)}, v{A_WD}")
    K("s_waitcnt lgkmcnt(0)")
    if stamps: K(f"v_writelane_b32 v{V_STAMP}, s{S_ST}, {STAMP_IDS.setdefault('start', len(STAMP_IDS))}")
    mksrd(R_X, P_X, 2048*896); mksrd(R_W1, P_W1, 0 if x_now1 else 448*3584)
    tk_stage = {}
    def g_stage(t):
        u = U[t % 4]
        def step(q):
            def f():
                if q == 0: K(f"s_lshr_b32 s{TD}, s{S_CHO+t}, 5"); K(f"s_add_u32 s{TD}, s{TD}, s{S_XB}"); K(f"s_add_u32 m0, s{S_M0}, {u}")
                if q == 4: K(f"s_mul_i32 s{TD}, s{S_CHO+t}, 56"); K(f"s_add_u32 s{TD}, s{TD}, s{S_W1B}"); K(f"s_add_u32 m0, s{S_M0}, {u + 16384}")
                if q < 4: K(f"buffer_load_dwordx4 v{A_XD+q}, {srd(R_X)}, s{TD} offen offset:{1024*q} lds")
                else: x = K(f"buffer_load_dwordx4 v{A_WD+q-4}, {srd(R_W1)}, s{TD} offen offset:{1024*(q-4)} lds")
                if q == 7: tk_stage[t] = x
            return f
        return [step(q) for q in range(8)]
    ilist = []
    for t in range(7): ilist += [(f, t - 2 if t >= 4 else -1) for f in g_stage(t)]
    pos = [0]
    def issue_to(n, lastbar):
        while pos[0] < min(n, len(ilist)) and ilist[pos[0]][1] <= lastbar:
            ilist[pos[0]][0](); pos[0] += 1
    if fine: stamp("A_karg")
    K(f"s_cmp_ge_u32 s{S_J}, 14")
    K.branch("s_cbranch_scc1 L_a1")
    vm0 = K.vm
    issue_to(8, -1)
    issue_to(8 + LA0, -1)
    K.label("L_a1")
    if fine: stamp("A_i1")
    K(f"s_load_dword s{S_E}, {sp(P_WS)}, {WS_EPOCH}")
    for t in range(2, 7): rotstep(t)
    mksrd(R_WS, P_WS, WS_SIZE); mksrd(R_OUT, P_OUT, 2048*896)
    p2setup()
    K(f"s_mov_b32 s{S_UP}, 0"); K(f"s_mov_b32 s{S_UP+1}, -1")
    K(f"s_mov_b32 s{S_L28}, 0x10000000"); K(f"s_mov_b32 s{S_L28+1}, 0x10000000")
    xfrag_addr(A_AX)
    lanepart()
    K(f"v_lshl_add_u32 v{t0}, v{t2}, 3, v{t3}"); K(f"v_lshl_add_u32 v{A_TR}, v{t0}, 6, v{t4}")
    K(f"v_lshl_add_u32 v{t0}, v{t2}, 2, v{t3}"); K(f"v_mul_u32_u24 v{t1}, 56, v{t0}"); K(f"v_add_u32 v{t1}, v{t1}, v{t4}"); K(f"v_add_u32 v{A_PH}, {L_PHI}, v{t1}")
    K(f"v_lshlrev_b32 v{A_L4}, 2, v{V_LANE}")
    K(f"s_lshl_b32 s{T}, s{S_A}, 10"); K(f"s_add_u32 s{T}, s{T}, {WS_RPF}"); K(f"v_and_b32 v{A_PA}, 7, v{V_LANE}"); K(f"v_lshl_add_u32 v{A_PA}, v{A_PA}, 7, s{T}")
    K(f"s_mul_i32 s{S_RS}, s{S_J}, {3*28672}"); K(f"s_mul_i32 s{S_P3}, s{S_A}, 7168"); K(f"s_add_u32 s{S_RS}, s{S_RS}, s{S_P3}"); K(f"s_add_u32 s{S_RS}, s{S_RS}, {WS_WQ}")
    K("s_waitcnt lgkmcnt(0)")
    settag()
    K(f"s_cmp_lt_u32 s{S_J}, 14")
    K.branch("s_cbranch_scc1 L_a2")
    sv = K.vm
    K(f"s_mul_i32 s{T}, s{S_A}, 3072"); K(f"s_add_u32 s{T}, s{T}, {L_K}")
    K("s_barrier")
    for t in range(7):
        K(f"s_lshr_b32 s{TD}, s{S_CHO+t}, 5"); K(f"s_add_u32 s{TD}, s{TD}, s{S_XB}")
        if t < 6: K(f"s_add_u32 m0, s{S_M0}, {16384*t}")
        else: K(f"s_add_u32 m0, s{S_M0}, s{T}")
        for q in range(4): K(f"buffer_load_dwordx4 v{A_XD+q}, {srd(R_X)}, s{TD} offen offset:{1024*q} lds")
        if t == rb2: K("s_barrier")
    K("s_waitcnt vmcnt(0)")
    for t in range(7):
        if t == 4: shift(range(A_AX, A_AX + 4), 65536)
        if t == 6:
            K(f"s_sub_u32 s{T}, s{T}, 65536")
            for k in range(4): K(f"v_add_u32 v{A_AX+k}, s{T}, v{A_AX+k}")
        for ksl in range(4): K(f"ds_read_b128 {vr(V_X + 16*t + 4*ksl, 4)}, v{A_AX+ksl} offset:{(t % 4) * 16384 if t < 6 else 0}")
        if t % 2 == 1: K("s_waitcnt lgkmcnt(4)")
    K("s_waitcnt lgkmcnt(0)")
    stamp("A_b6")
    vpoll_issue(A_PA)
    K.branch("s_branch L_a3")
    K.label("L_a2")
    K.vm = sv
    if fine: stamp("A_setup")
    tkx = {}
    def g_panel(p, lds):
        def step(q):
            def f():
                if q % 4 == 0: K(f"s_add_u32 s{TD}, s{S_RS}, {28672*p + (q // 4)*4096}"); K(f"s_add_u32 m0, s{S_P3}, {lds + (q // 4)*4096}")
                tkx[p] = K(f"buffer_load_dwordx4 v{V_L16}, {srd(R_WS)}, s{TD} offen offset:{1024*(q%4)} sc1 lds")
            return f
        return [step(q) for q in range(7)]
    for t in range(7):
        issue_to(8*(t+1) + (LA0 if t == 0 else LA), t - 1)
        shift(range(A_AX, A_AX + 4), SH[t])
        if t == 5:
            assert pos[0] == len(ilist)
            tkp = vpoll_issue(A_PA)
        if fine: stamp(f"A{t}a")
        K.wait_vm(tk_stage[t])
        if fine: stamp(f"A{t}b")
        if t < 6:
            if t >= 2: K("s_waitcnt lgkmcnt(4)")
            K("s_barrier")
        else: arrive(C_S)
        if t in (0, 4, 6): stamp(f"A_b{t}")
        for ksl in range(4): K(f"ds_read_b128 {vr(V_X + 16*t + 4*ksl, 4)}, v{A_AX+ksl} offset:{(t % 2) * 32768}")
    assert tkp == K.vm
    K.label("L_a3")
    arrive(C_E)
    vpoll_check(tkp, A_PA)
    stamp("rp_seen")
    run(g_panel(1, L_K) + g_panel(2, L_V))
    K(f"v_add_u32 v{A_PA}, 4096, v{A_PA}")
    tkp = vpoll_issue(A_PA)
    stamp("kv_issued")
    K(f"s_mov_b32 s{S_K}, {f2u(L2E):#x}"); K(f"s_mov_b32 s{S_K+1}, {f2u(L2E):#x}")
    VPH, VB = V_W + 24, V_W + 16
    for s in range(2):
        for r in range(2): K(f"ds_read_b64_tr_b16 {vr(VPH + 4*s + 2*r, 2)}, v{A_PH} offset:{(16*s + 8*r)*56}")
    K(f"s_lshl_b32 s{T}, s{S_A}, 11"); K(f"s_lshl_b32 s{T+1}, s{S_J}, 13"); K(f"s_add_u32 s{S_HB}, s{T+1}, s{T}"); K(f"s_add_u32 s{S_FL}, s{S_HB}, {WS_KVF}"); K(f"s_lshl_b32 s{S_PE}, s{S_MT}, 7"); K(f"s_add_u32 s{S_PE}, s{S_PE}, s{S_FL}"); K(f"s_add_u32 s{S_HB}, s{S_HB}, {WS_KVP}")
    FL_K = (S_PE, 0, 16)
    K(f"s_lshl_b32 s{T}, s{S_MT}, 2"); K(f"s_add_u32 s{T}, s{T}, s{S_A}")
    K(f"s_lshr_b32 s{T+1}, s{T}, 1"); K(f"s_lshl_b32 s{T+1}, s{T+1}, 2"); K(f"s_lshr_b32 s{T+2}, s{S_J}, 2"); K(f"s_add_u32 s{T+1}, s{T+1}, s{T+2}"); K(f"s_lshl_b32 s{T+1}, s{T+1}, 10"); K(f"s_add_u32 s{S_FL2}, s{T+1}, {WS_OF}")
    K(f"s_lshl_b32 s{T}, s{T}, 4"); K(f"s_add_u32 s{T}, s{T}, s{S_J}")
    K(f"s_lshl_b32 s{S_OB}, s{T}, 11"); K(f"s_add_u32 s{S_OB}, s{S_OB}, {WS_O}")
    K(f"s_lshl_b32 s{T+2}, s{T}, 7"); K(f"s_add_u32 s{S_XB}, s{T+2}, {WS_G - 128}")
    IDR = [26, 27, 28, 29, V_PHI, V_PHI+1, V_PHI+2, V_PHI+3]
    K(f"v_and_b32 v{t0}, 31, v{V_LANE}"); K(f"v_lshrrev_b32 v{t1}, 5, v{V_LANE}"); K(f"v_lshlrev_b32 v{t1}, 2, v{t1}")
    K(f"v_sub_u32 v{t0}, v{t0}, v{t1}")
    K(f"v_and_b32 v{t1}, 1, v{V_LANE}"); K(f"v_lshlrev_b32 v{t1}, 4, v{t1}"); K(f"v_mov_b32 v{t2}, 0x3f80"); K(f"v_lshlrev_b32 v{t1}, v{t1}, v{t2}")
    K(f"v_and_b32 v{t0}, -2, v{t0}")
    for s in range(2):
        for q in range(4): K(f"v_cmp_eq_u32 {sp(T+2*q)}, {16*s + 8*(q // 2) + 2*(q % 2)}, v{t0}")
        for q in range(4): K(f"v_cndmask_b32 v{IDR[4*s+q]}, 0, v{t1}, {sp(T+2*q)}")
    if aw2: K(f"s_cmp_eq_u32 s{S_ACT}, 1"); K(f"s_cselect_b32 s{R_W2+2}, s{R_W2+2}, 0")
    if aw2 in (1, 3):
        await_(C_E, 8, 1)
        run(g_w2(0))
        K.wait_vm(tkx[2]); arrive(C_0)
        run(g_w2(1))
        if qd < 0: run(g_panel(0, L_Q))
    else: K.wait_vm(tkx[2]); arrive(C_0)
    stamp("kv_landed0")
    if aw2 == 1: K.wait_vm(tk_r[1]); arrive(C_B)
    await_(C_0, 4, 1)
    K(f"v_cndmask_b32 v{VPH+6}, v{VPH+6}, 0, {UPM}"); K(f"v_cndmask_b32 v{VPH+7}, v{VPH+7}, 0, {UPM}")
    await_(C_G if gw >= 0 else C_E, 4 if gw >= 0 else 8, 1)
    vpoll_check(tkp, A_PA)
    stamp("kv_start")

    def gemm_qkv(panels, hook=None):
        nb = len(panels) * 4
        D = 3 if len(panels) == 2 else 6
        tk = {}
        for n, (off, acc, sw) in enumerate(panels): K(f"v_add_u32 v{A_AX+n}, {off}, v{A_TR}")
        def rd(ks, n):
            t, ksl = ks // 4, ks % 4
            b = V_W + nb * (ks % D)
            if ksl == 0: K(f"v_add_u32 v{A_AD + n}, s{S_CHO+t}, v{A_AX+n}")
            for r in range(2):
                tk[ks] = K(f"ds_read_b64_tr_b16 {vr(b + 4*n + 2*r, 2)}, v{A_AD + n} offset:{(16*ksl + 4*r)*64}")
        for k in range(D):
            for n in range(len(panels)): rd(k, n)
        for ks in range(28):
            K.wait_lg(tk[ks])
            b = V_W + nb * (ks % D)
            for n, (off, acc, sw) in enumerate(panels):
                wv, xv = b + 4*n, V_X + 4*ks
                if sw: mfma(acc, xv, wv, "0" if ks == 0 else None, x_m16 & 4)
                else: mfma(acc, wv, xv, "0" if ks == 0 else None, x_m16 & 4)
                if ks + D < 28: rd(ks + D, n)
            if hook: hook(ks)
    QP = V_W
    P = V_ACC
    def featmap():
        for e in range(8): K(f"v_cvt_pk_bf16_f32 v{QP+e}, v{V_ACC+2*e}, v{V_ACC+2*e+1}")
        mfma(P, VPH, QP, "0"); mfma(P, VPH + 4, QP + 4)
    def softmax(pk):
        for e in range(4): K(f"v_cndmask_b32 v{P+12+e}, v{P+12+e}, v{P}, {UPM}")
        mx, mn = t0, t2
        K(f"v_max3_f32 v{mx}, v{P}, v{P+1}, v{P+2}"); K(f"v_min3_f32 v{mn}, v{P}, v{P+1}, v{P+2}")
        K(f"v_max3_f32 v{t1}, v{P+3}, v{P+4}, v{P+5}"); K(f"v_min3_f32 v{t3}, v{P+3}, v{P+4}, v{P+5}")
        for e in range(6, 14, 4):
            K(f"v_max3_f32 v{mx}, v{mx}, v{P+e}, v{P+e+1}"); K(f"v_min3_f32 v{mn}, v{mn}, v{P+e}, v{P+e+1}")
            K(f"v_max3_f32 v{t1}, v{t1}, v{P+e+2}, v{P+e+3}"); K(f"v_min3_f32 v{t3}, v{t3}, v{P+e+2}, v{P+e+3}")
        K(f"v_max3_f32 v{mx}, v{mx}, v{P+14}, v{P+15}"); K(f"v_min3_f32 v{mn}, v{mn}, v{P+14}, v{P+15}")
        K(f"v_max_f32 v{mx}, v{mx}, v{t1}"); K(f"v_min_f32 v{mn}, v{mn}, v{t3}")
        K(f"v_mov_b32 v{t1}, v{mx}"); K(f"v_mov_b32 v{t3}, v{mn}")
        K(f"v_permlane32_swap_b32 v{mx}, v{t1}"); K(f"v_permlane32_swap_b32 v{mn}, v{t3}")
        K(f"v_max_f32 v{mx}, v{mx}, v{t1}"); K(f"v_min_f32 v{mn}, v{mn}, v{t3}")
        K(f"v_mul_f32 v{mx}, s{S_K}, v{mx}"); K(f"v_mul_f32 v{mn}, s{S_K}, v{mn}")
        EP, EN = V_P, V_P + 16
        for e in range(0, 16, 2):
            if pk:
                K(f"v_pk_fma_f32 {vr(EP+e,2)}, {vr(P+e,2)}, {sp(S_K)}, {vr(mx,2)} op_sel_hi:[1,1,0] neg_lo:[0,0,1] neg_hi:[0,0,1]")
                K(f"v_pk_fma_f32 {vr(EN+e,2)}, {vr(P+e,2)}, {sp(S_K)}, {vr(mn,2)} op_sel_hi:[1,1,0] neg_lo:[1,0,0] neg_hi:[1,0,0]")
            else:
                for x in (e, e + 1):
                    K(f"v_fma_f32 v{EP+x}, v{P+x}, s{S_K}, -v{mx}"); K(f"v_fma_f32 v{EN+x}, -v{P+x}, s{S_K}, v{mn}")
        for e in range(16):
            K(f"v_exp_f32 v{EP+e}, v{EP+e}"); K(f"v_exp_f32 v{EN+e}, v{EN+e}")
        S = V_W
        for n, E in enumerate((EP, EN)):
            padd(S+4*n, E, E+2, pk); padd(S+4*n+2, E+12, E+14, pk)
        for n, E in enumerate((EP, EN)):
            padd(S+4*n, S+4*n, E+4, pk)
            K(f"v_cndmask_b32 v{S+4*n+2}, v{S+4*n+2}, 0, {UPM}"); K(f"v_cndmask_b32 v{S+4*n+3}, v{S+4*n+3}, 0, {UPM}")
        for n, E in enumerate((EP, EN)):
            padd(S+4*n, S+4*n, E+6, pk); padd(S+4*n+2, S+4*n+2, E+8, pk)
        for n, E in enumerate((EP, EN)): padd(S+4*n, S+4*n, E+10, pk)
        for n in range(2): padd(S+4*n, S+4*n, S+4*n+2, pk)
        K(f"v_add_f32 v{t0}, v{S}, v{S+1}"); K(f"v_add_f32 v{t2}, v{S+4}, v{S+5}")
        K(f"v_mov_b32 v{t1}, v{t0}"); K(f"v_mov_b32 v{t3}, v{t2}")
        K(f"v_permlane32_swap_b32 v{t0}, v{t1}"); K(f"v_permlane32_swap_b32 v{t2}, v{t3}")
        K(f"v_add_f32 v{t0}, v{t0}, v{t1}"); K(f"v_add_f32 v{t2}, v{t2}, v{t3}")
        K(f"v_rcp_f32 v{t0}, v{t0}"); K(f"v_rcp_f32 v{t2}, v{t2}")
        K(f"v_cndmask_b32 v{t1}, v{t0}, 0, {UPM}"); K(f"v_cndmask_b32 v{t3}, v{t2}, 0, {UPM}")
        for e in range(0, 16, 2):
            pscale(EP+e, t0 if e < 12 else t1, pk); pscale(EN+e, t2 if e < 12 else t3, pk)
        for e in range(8):
            K(f"v_cvt_pk_bf16_f32 v{V_PHI+e}, v{EP+2*e}, v{EP+2*e+1}"); K(f"v_cvt_pk_bf16_f32 v{V_PHI+8+e}, v{EN+2*e}, v{EN+2*e+1}")

    if aw2 == 2: pend.extend(g_w2(0) + g_w2(1))
    if qd >= 0: pend.extend(g_panel(0, L_Q))
    def hook(ks):
        if aw2 == 3:
            if ks == 1: K.wait_vm(tk_r[1]); arrive(C_B)
            if ks == pa:
                await_(C_P, 4)
                pend.extend(g_w2(2) + g_w2(3))
            drip(2 if len(pend) > 27 - ks else 1)
        elif aw2 == 2:
            drip(1)
            if ks == cb: K.wait_vm(tk_r[1]); arrive(C_B)
        elif ks >= qd and (ks - qd) % 3 == 0: drip(1)
        if ks == 25: arrive(C_1)
    gemm_qkv([(L_K, V_ACC, False), (L_V, V_ACC + 16, True)], hook)
    featmap()
    assert not pend
    for e in range(4): K(f"v_mov_b32 v{V_W+8+e}, v{V_PHI+e}")
    IDR[4] = V_W + 8
    stamp("kv_gemm")
    K(f"v_mov_b32 v{t4}, 0x3f803f80")
    for e in range(8): K(f"v_cvt_pk_bf16_f32 v{VB+e}, v{V_ACC+16+2*e}, v{V_ACC+16+2*e+1}")
    for e in range(8): K(f"v_cndmask_b32 v{VB+e}, v{VB+e}, v{t4}, {sp(S_L28)}")
    softmax(pkk)
    stamp("sm_k")
    if aw2 == 3: K.wait_vm(tk_r[3]); arrive(C_B2)
    TP, TN = V_P, V_P + 16
    mfma(TP, V_PHI, IDR[0], "0"); mfma(TP, V_PHI + 4, IDR[4])
    mfma(TN, V_PHI + 8, IDR[0], "0"); mfma(TN, V_PHI + 12, IDR[4])
    await_(C_1, 4)
    if f2: stamp("kv_a")
    K(f"s_lshl_b32 s{T}, s{S_A}, 13"); K(f"s_add_u32 s{T}, s{T}, {L_KVS}"); K(f"v_add_u32 v{t0}, s{T}, v{V_L16}")
    K(f"s_lshl_b32 s{T}, s{S_A}, 11"); K(f"s_add_u32 s{T}, s{T}, {L_KVS}"); K(f"v_add_u32 v{t1}, s{T}, v{V_L16}")
    for e in range(8): K(f"v_cvt_pk_bf16_f32 v{V_PHI+e}, v{TP+2*e}, v{TP+2*e+1}")
    mfma(V_ACC, V_PHI, VB, "0"); mfma(V_ACC, V_PHI + 4, VB + 4)
    for e in range(8): K(f"v_cvt_pk_bf16_f32 v{V_PHI+8+e}, v{TN+2*e}, v{TN+2*e+1}")
    mfma(V_ACC + 16, V_PHI + 8, VB, "0"); mfma(V_ACC + 16, V_PHI + 12, VB + 4)
    for b in range(8): K(f"ds_write_b128 v{t0}, {vr(V_ACC+4*b,4)} offset:{1024*b}")
    K.wait_vm(tkx[0])
    arrive(C_2)
    if f2: stamp("kv_b")
    await_(C_2, 4)
    if f2: stamp("kv_c")
    for hb in range(2):
        for g in range(4): K(f"ds_read_b128 {vr(V_P+16*hb+4*g,4)}, v{t1} offset:{8192*g + 1024*hb}")
    arrive(C_3)
    if f2: stamp("kv_d")
    for hb in range(2):
        K(f"s_waitcnt lgkmcnt({5 - 4*hb})")
        B = V_P + 16*hb
        for e in (0, 2): padd(B+e, B+e, B+4+e, pkq); padd(B+8+e, B+8+e, B+12+e, pkq)
        for e in (0, 2): padd(B+e, B+e, B+8+e, pkq)
        for e in range(x_at): K(f"buffer_atomic_add_f32 v{B+e}, v{A_L4}, {srd(R_WS)}, s{S_HB} offen offset:{1024*hb + 256*e}")
    stamp("kv_st")
    def hook(ks):
        if ks == 22: arrive(C_Q)
        if ks == kvf:
            K("s_waitcnt vmcnt(0)")
            signal(S_FL, 16)
            stamp("kv_pub")
    gemm_qkv([(L_Q, V_ACC, False)], hook)
    K(f"v_cvt_pk_bf16_f32 v{t0}, v{V_ACC+12}, v{V_ACC+12}")
    featmap()
    K(f"v_lshlrev_b32 v{t0}, 16, v{t0}")
    K(f"v_mul_f32 v{t0}, s{S_K}, v{t0}"); K(f"v_exp_f32 v{t0}, -v{t0}"); K(f"v_add_f32 v{t0}, 1.0, v{t0}"); K(f"v_rcp_f32 v{t0}, v{t0}")
    K(f"v_cvt_pk_bf16_f32 v{t0}, v{t0}, v{t0}"); K(f"v_lshlrev_b32 v{A_G}, 16, v{t0}")
    K("s_mov_b32 exec_lo, 0")
    K(f"buffer_store_dword v{A_G}, v{A_L4}, {srd(R_WS)}, s{S_XB} offen sc1")
    K("s_mov_b32 exec_lo, -1")
    stamp("q_gemm")
    softmax(pkq)
    stamp("sm_q")
    poll_issue(FL_K)
    poll_check(FL_K)
    stamp("kv_seen")
    for e in range(8): K(f"buffer_load_dword v{V_P+e}, v{A_L4}, {srd(R_WS)}, s{S_HB} offen offset:{256*e} sc1")
    F = V_W
    K(f"s_lshl_b32 s{T}, s{S_A}, 10"); K(f"v_add_u32 v{t1}, {L_KVF}, v{V_L16}"); K(f"v_add_u32 v{t0}, s{T}, v{t1}")
    K("s_waitcnt vmcnt(0)")
    stamp("kv_landed")
    for e in range(4): K(f"v_cvt_pk_bf16_f32 v{F+e}, v{V_P+2*e}, v{V_P+2*e+1}")
    K(f"ds_write_b128 v{t0}, {vr(F,4)}")
    arrive(C_4)
    await_(C_4, 4)
    if f2: stamp("o_a")
    for f in range(4): K(f"ds_read_b128 {vr(F+4*f,4)}, v{t1} offset:{1024*f}")
    N = V_ACC
    for f in range(4):
        K(f"s_waitcnt lgkmcnt({3-f})")
        mfma(N, F + 4*f, V_PHI + 4*f, "0" if f == 0 else None)
    K(f"v_cvt_pk_bf16_f32 v{t0}, v{N+12}, v{N+12}")
    for e in range(8): K(f"v_cvt_pk_bf16_f32 v{F+e}, v{N+2*e}, v{N+2*e+1}")
    K(f"v_lshlrev_b32 v{t0}, 16, v{t0}")
    K(f"v_add_f32 v{t0}, {f2u(1e-6):#x}, v{t0}")
    K(f"v_cvt_pk_bf16_f32 v{t0}, v{t0}, v{t0}"); K(f"v_lshlrev_b32 v{t0}, 16, v{t0}")
    K(f"v_rcp_f32 v{t0}, v{t0}")
    for e in range(4):
        K(f"v_lshlrev_b32 v{N+2*e}, 16, v{F+e}"); K(f"v_and_b32 v{N+2*e+1}, 0xffff0000, v{F+e}")
    K(f"v_mul_f32 v{t0}, v{t0}, v{A_G}"); K(f"v_mov_b32 v{t1}, v{t0}")
    for e in range(4, 8):
        K(f"v_lshlrev_b32 v{N+2*e}, 16, v{F+e}"); K(f"v_and_b32 v{N+2*e+1}, 0xffff0000, v{F+e}")
    K(f"v_permlane32_swap_b32 v{t1}, v{t0}")
    for e in range(0, 16, 2): pscale(N+e, t0, pkq)
    for e in range(8): K(f"v_cvt_pk_bf16_f32 v{F+e}, v{N+2*e}, v{N+2*e+1}")
    K(f"v_cndmask_b32 v{F+6}, v{F+6}, 0, {UPM}"); K(f"v_cndmask_b32 v{F+7}, v{F+7}, 0, {UPM}")
    K(f"buffer_store_dwordx4 {vr(F,4)}, v{V_L16}, {srd(R_WS)}, s{S_OB} offen sc1")
    K(f"buffer_store_dwordx4 {vr(F+4,4)}, v{V_L16}, {srd(R_WS)}, s{S_OB} offen offset:1024 sc1")
    if f2: stamp("o_b")
    K("s_waitcnt vmcnt(0)")
    signal(S_FL2, 7)
    stamp("o_pub")
    K(f"s_cmp_eq_u32 s{S_ACT}, 0")
    K.branch("s_cbranch_scc1 L_fin")
    K.branch("s_branch L_red")

    K.label("L_M")
    if prioM: K(f"s_setprio {prioM}")
    K("s_waitcnt lgkmcnt(0)")
    if stamps: K(f"v_writelane_b32 v{V_STAMP}, s{S_ST}, {STAMP_IDS.setdefault('start', len(STAMP_IDS))}")
    K(f"s_load_dword s{S_E}, {sp(P_WS)}, {WS_EPOCH}")
    mksrd(R_T, P_PHI, 16*1568)
    K(f"s_mul_i32 s{T}, s{S_J}, 1568"); K(f"s_mul_i32 s{T+1}, s{S_A}, 400"); K(f"s_add_u32 s{T}, s{T}, s{T+1}"); K(f"s_add_u32 m0, s{T+1}, {L_PHI}")
    K("s_mov_b64 exec, 0x1ffffff")
    K(f"buffer_load_dwordx4 v{V_L16}, {srd(R_T)}, s{T} offen lds")
    K("s_mov_b64 exec, -1")
    K(f"v_mov_b32 v{V_CNT}, {L_CNT}")
    K(f"v_mov_b32 v{t0}, 0"); K(f"v_lshl_add_u32 v{t1}, v{V_LANE}, 2, v{V_CNT}"); K(f"ds_write_b32 v{t1}, v{t0}")
    K(f"s_cmp_lt_u32 s{S_J}, 14")
    K.branch("s_cbranch_scc1 L_mset")
    vm_m = K.vm
    RB = 96
    K0 = S_XB
    mksrd(R_T, P_WQKV, 448*2688)
    K(f"s_lshl_b32 s{S_FL}, s{S_MT}, 1"); K(f"s_add_u32 s{S_FL}, s{S_FL}, s{S_J}"); K(f"s_sub_u32 s{S_FL}, s{S_FL}, 14")
    K(f"s_mul_i32 s{K0}, s{S_FL}, 14"); K(f"s_lshl_b32 s{T+5}, s{S_A}, 1"); K(f"s_add_u32 s{K0}, s{K0}, s{T+5}")
    K(f"v_lshrrev_b32 v{t0}, 3, v{V_LANE}"); K(f"v_bfe_u32 v{t1}, v{V_LANE}, 2, 1"); K(f"v_and_b32 v{t2}, 3, v{V_LANE}")
    K(f"v_mul_u32_u24 v{t3}, 56, v{t0}"); K(f"v_mul_u32_u24 v{t4}, 2688, v{t1}"); K(f"v_add_u32 v{t3}, v{t3}, v{t4}")
    K(f"v_lshl_add_u32 v{t3}, v{t2}, 4, v{t3}")
    K(f"s_mul_i32 s{T+5}, s{K0}, 2688"); K(f"v_lshlrev_b32 v{t4}, 1, v{t1}"); K(f"s_lshl_b32 s{T+6}, s{K0}, 1")
    tkl = {}
    if fine: stamp("rp_0")
    K(f"s_add_u32 s{T+7}, s{T+5}, {8*2688}"); K(f"s_cmp_eq_u32 s{S_A}, 3"); K(f"s_cselect_b32 s{T+7}, 0x7000000, s{T+7}"); K(f"s_cselect_b32 s{S_CH}, s{T+7}, 512")
    def rp_load(q): tkl[q] = K(f"buffer_load_dwordx4 {vr(RB+4*q,4)}, v{t3}, {srd(R_T)}, s{T+5 if q < 6 else T+7} offen offset:{448*(q%6)}")
    for q in (2, 3, 4, 5, 8, 9, 10, 11): rp_load(q)
    mksrd(R_X, P_GATE, 896)
    K(f"buffer_load_ushort v{RB+48}, v{t4}, {srd(R_X)}, s{T+6} offen"); K(f"buffer_load_ushort v{RB+49}, v{t4}, {srd(R_X)}, s{T+6} offen offset:16")
    for q in (0, 1, 6, 7): rp_load(q)
    mksrd(R_WS, P_WS, WS_SIZE)
    K(f"s_mov_b32 s{T+6}, 86016"); K(f"v_mul_lo_u32 v{RB+50}, v{t0}, s{T+6}"); K(f"v_and_b32 v{t1}, 7, v{V_LANE}")
    K(f"v_lshl_add_u32 v{RB+50}, v{t1}, 4, v{RB+50}")
    K(f"v_cmp_eq_u32 vcc, 3, v{t2}")
    K(f"s_lshl_b32 s{K0}, s{K0}, 6"); K(f"s_add_u32 s{K0}, s{K0}, {WS_WQ}")
    def rp_store(q):
        n, p, hg = q // 6, (q % 6) // 2, q % 2; b = RB + 4*q
        K.wait_vm(tkl[q])
        K(f"v_cndmask_b32 v{b+2}, v{b+2}, v{RB+48+n}, vcc" if p == 0 else f"v_cndmask_b32 v{b+2}, v{b+2}, 0, vcc")
        K(f"v_cndmask_b32 v{b+3}, v{b+3}, 0, vcc")
        K(f"s_add_u32 s{T+6}, s{K0}, {p*28672 + hg*8*86016}")
        if n: K(f"s_add_u32 s{T+6}, s{T+6}, s{S_CH}")
        return K(f"buffer_store_dwordx4 {vr(b,4)}, v{RB+50}, {srd(R_WS)}, s{T+6} offen sc1")
    for e in range(4): K(f"v_mov_b32 v{RB+52+e}, 0")
    K(f"s_lshl_b32 s{T+5}, s{S_FL}, 2"); K(f"s_add_u32 s{T+5}, s{T+5}, s{S_A}"); K(f"s_lshl_b32 s{T+7}, s{T+5}, 12"); K(f"s_lshl_b32 s{T+5}, s{T+5}, 10")
    K(f"s_add_u32 s{T+5}, s{T+5}, {WS_KVP}"); K(f"s_add_u32 s{T+7}, s{T+7}, {WS_CN}"); K(f"v_lshlrev_b32 v{t0}, 7, v{V_LANE}")
    K(f"buffer_store_dwordx4 {vr(RB+52,4)}, v{V_L16}, {srd(R_WS)}, s{T+5} offen sc1")
    K("s_mov_b32 exec_hi, 0")
    K(f"buffer_store_dword v{RB+52}, v{t0}, {srd(R_WS)}, s{T+7} offen sc1")
    K("s_mov_b32 exec_hi, -1")
    K(f"s_lshl_b32 s{S_FL}, s{S_FL}, 7"); K(f"s_add_u32 s{S_FL}, s{S_FL}, {WS_RPF}"); K(f"s_add_u32 s{S_FL2}, s{S_FL}, 4096")
    K(f"s_cmp_eq_u32 s{S_A}, 3"); K(f"s_cselect_b32 s{S_FL}, s{S_FL}, 0x7000000"); K(f"s_cselect_b32 s{S_FL2}, s{S_FL2}, 0x7000000")
    K("s_waitcnt lgkmcnt(0)")
    settag()
    for q in (2, 3, 4, 5, 8, 9, 10, 11): tk1 = rp_store(q)
    for q in (0, 1, 6, 7): rp_store(q)
    if fine: stamp("rp_st")
    K("s_barrier")
    K.wait_vm(tk1)
    K("s_barrier")
    flag(S_FL)
    stamp("rp_pub")
    K("s_waitcnt vmcnt(1)")
    arrive(C_5); await_(C_5, 4)
    flag(S_FL2)
    arrive(C_E); arrive(C_G)
    K("s_setprio 0")
    K.vm = vm_m
    K.label("L_mset")
    if allpf:
        mksrd(R_X, P_X, 2048*896); mksrd(R_W1, P_W1, 448*3584)
        K(f"s_lshl_b32 s{T+3}, s2, 2"); K(f"s_add_u32 s{T+3}, s{T+3}, s{S_A}")
        K(f"s_mul_i32 s{T}, s{T+3}, {14*128}"); K(f"s_mul_i32 s{T+1}, s{T+3}, {13*128}"); K(f"v_lshlrev_b32 v{t0}, 7, v{V_LANE}")
        K("s_mov_b64 exec, 0x3fff")
        if allpf & 1: K(f"buffer_load_dword v{V_POLL}, v{t0}, {srd(R_X)}, s{T} offen")
        K("s_mov_b64 exec, 0x1fff")
        if allpf & 2: K(f"buffer_load_dword v{V_POLL}, v{t0}, {srd(R_W1)}, s{T+1} offen")
        K("s_mov_b64 exec, -1")
    if spf:
        K(f"s_lshl_b32 s{T+3}, s2, 2"); K(f"s_add_u32 s{T+3}, s{T+3}, s{S_A}")
        K(f"s_mul_i32 s{T}, s{T+3}, {12*128 + 32}"); K(f"s_mul_i32 s{T+1}, s{T+3}, {3*128 + 8}")
        for q in range(13): K(f"s_load_dword s{S_CNT}, {sp(P_W2)}, s{T} offset:{min(128*q, 12*128 + 28)}")
        K("s_waitcnt lgkmcnt(10)")
        for q in range(4): K(f"s_load_dword s{S_CNT}, {sp(P_WO)}, s{T+1} offset:{min(128*q, 3*128 + 4)}")
    mksrd(R_WS, P_WS, WS_SIZE); mksrd(R_WO, P_WO, 448*896); mksrd(R_OUT, P_OUT, 2048*896)
    p2setup()
    K(f"s_mul_i32 s{T}, s{S_ROW}, {112*1024}"); K(f"s_add_u32 s{T}, s{T}, {0x7000000 if x_noh else WS_H}")
    K(f"s_lshl_b32 s{S_HB}, s{T+4}, 12"); K(f"s_add_u32 s{S_HB}, s{S_HB}, s{T}")
    K(f"s_lshl_b32 s{S_HB3}, s{T+2}, 12"); K(f"s_add_u32 s{S_HB3}, s{S_HB3}, s{T}")
    BF1, BF2, BONE = M_AR + 80, 128, 124
    for r in list(range(BF1, BF1 + 16)) + list(range(BONE, BF2 + 8)): K(f"v_mov_b32 v{r}, 0")
    K(f"v_lshlrev_b32 v{t0}, 1, v{V_LANE}")
    K("s_mov_b32 exec_hi, 0")
    K(f"v_mov_b32 v{BONE}, 0x3f80")
    mksrd(R_T, P_B1, 3584)
    for p in range(4): K(f"buffer_load_ushort v{BF1+4*p}, v{t0}, {srd(R_T)}, s{S_W1B} offen offset:{64*p}")
    mksrd(R_T, P_B2, 896)
    K(f"s_lshl_b32 s{T}, s{S_CT}, 7"); K(f"s_lshl_b32 s{T+1}, s{S_A}, 10"); K(f"s_add_u32 s{T}, s{T}, s{T+1}")
    for p in range(2): tk_b2 = K(f"buffer_load_ushort v{BF2+4*p}, v{t0}, {srd(R_T)}, s{T} offen offset:{64*p}")
    K("s_mov_b32 exec_hi, -1")
    K(f"s_lshl_b32 s{T}, s{S_ROW}, 1"); K(f"s_add_u32 s{T}, s{T}, s{S_A}")
    K(f"s_lshl_b32 s{T+1}, s{S_CT}, 7")
    K(f"s_lshl_b32 s{S_PE}, s{T}, 11"); K(f"s_add_u32 s{S_PE}, s{S_PE}, s{T+1}"); K(f"s_add_u32 s{S_PE}, s{S_PE}, {WS_HF}")
    K(f"s_lshl_b32 s{S_PO}, s{T}, 10"); K(f"s_add_u32 s{S_PO}, s{S_PO}, s{T+1}"); K(f"s_add_u32 s{S_PO}, s{S_PO}, {WS_OF}")
    K(f"s_lshl_b32 s{T}, s{S_ROW}, 4"); K(f"s_lshl_b32 s{T+1}, s{S_A}, 2"); K(f"s_add_u32 s{S_OB}, s{T+1}, s{T}")
    FL_E, FL_L, FL_O = (S_PE, 0, 6), (S_PE, 1024, 8), (S_PO, 0, 8)
    K(f"s_lshl_b32 s{T}, s{S_MT}, 2"); K(f"s_add_u32 s{T}, s{T}, s{S_A}"); K(f"s_mul_i32 s{S_RS}, s{T}, 112")
    K(f"s_lshl_b32 s{T+1}, s{S_J}, 3"); K(f"s_add_u32 s{S_RS}, s{S_RS}, s{T+1}"); K(f"s_lshl_b32 s{S_RS}, s{S_RS}, 10"); K(f"s_add_u32 s{S_RS}, s{S_RS}, {WS_H}")
    K(f"s_lshr_b32 s{T}, s{T}, 1"); K(f"s_lshl_b32 s{T}, s{T}, 13"); K(f"s_add_u32 s{T}, s{T}, {WS_HF}")
    K(f"s_mul_i32 s{T+1}, s{S_J}, {74*8}"); K(f"s_and_b32 s{S_FL}, s{T+1}, 0xf800"); K(f"s_add_u32 s{S_FL}, s{S_FL}, s{T}")
    K(f"s_add_u32 s{T+1}, s{T+1}, {37*8}"); K(f"s_and_b32 s{S_FL2}, s{T+1}, 0xf800"); K(f"s_add_u32 s{S_FL2}, s{S_FL2}, s{T}"); K(f"s_add_u32 s{S_FL2}, s{S_FL2}, 1024")
    K(f"s_lshr_b32 s{T+1}, {(1 << 3) | (1 << 10)}, s{S_J}"); K(f"s_and_b32 s{T+1}, s{T+1}, 1"); K(f"s_lshl_b32 s{T+1}, s{T+1}, 10"); K(f"s_add_u32 s{S_FL}, s{S_FL}, s{T+1}")
    K(f"s_cmp_ge_u32 s{S_J}, 14"); K(f"s_cselect_b32 s{S_FL2}, 0x7000000, s{S_FL2}")
    K(f"v_add_u32 v{M_L16B}, {112*1024}, v{V_L16}")
    MP = M_AR + 40
    K(f"v_lshlrev_b32 v{MP}, 7, v{V_LANE}")
    K(f"s_lshl_b32 s{T+3}, s2, 2"); K(f"s_add_u32 s{T+3}, s{T+3}, s{S_A}")
    K(f"s_mul_i32 s{S_XB}, s{T+3}, {13*128}"); K(f"s_lshl_b32 s{S_M0}, s{T+3}, 9")
    def mall_pf():
        K("s_mov_b64 exec, 0x1fff")
        K(f"buffer_load_dword v{V_POLL}, v{MP}, {srd(R_W2)}, s{S_XB} offen")
        K("s_mov_b64 exec, 15")
        K(f"buffer_load_dword v{V_POLL}, v{MP}, {srd(R_WO)}, s{S_M0} offen")
        K("s_mov_b64 exec, -1")
    if mpf == 1: mall_pf()
    if tlb:
        l = newl("tlb")
        K(f"s_cmp_lg_u32 s{S_A}, 1")
        K.branch(f"s_cbranch_scc1 {l}")
        K(f"v_lshlrev_b32 v{t0}, {tlb}, v{V_LANE}")
        K(f"buffer_load_dword v{V_POLL}, v{t0}, {srd(R_WS)}, 0 offen offset:2048"); K.vm -= 1
        K(f"buffer_load_dword v{V_POLL}, v{t0}, {srd(R_OUT)}, 0 offen"); K.vm -= 1
        K.label(l)
    xfrag_addr(M_AX)
    lanepart()
    K(f"v_lshl_add_u32 v{t0}, v{t2}, 3, v{t3}"); K(f"v_lshl_add_u32 v{t0}, v{t0}, 8, v{t4}"); K(f"v_lshl_add_u32 v{t0}, v{t3}, 6, v{t0}")
    K(f"v_add_u32 v{M_AW}, 16384, v{t0}")
    for p in range(1, 4): K(f"v_xor_b32 v{M_AW+p}, {64*p}, v{M_AW}")
    AB = M_AB
    K(f"v_lshl_add_u32 v{t0}, v{t2}, 2, v{t3}"); K(f"v_lshl_add_u32 v{t0}, v{t0}, 7, v{t4}"); K(f"v_bfe_u32 v{t1}, v{V_LANE}, 3, 1"); K(f"v_lshl_add_u32 v{t0}, v{t1}, 6, v{t0}")
    K(f"v_add_u32 v{AB}, s{S_M02}, v{t0}"); K(f"v_xor_b32 v{AB+1}, 64, v{AB}")
    K(f"v_add_u32 v{AB+2}, 65536, v{AB}"); K(f"v_add_u32 v{AB+3}, 65536, v{AB+1}")
    K(f"v_lshlrev_b32 v{t0}, 9, v{t2}"); K(f"v_sub_u32 v22, v{AB+2}, v{t0}"); K(f"v_sub_u32 v23, v{AB+3}, v{t0}")
    box = {}
    K(f"s_cmp_ge_u32 s{S_J}, 14")
    K.branch("s_cbranch_scc1 L_nof")
    vm_nof = K.vm
    K("s_waitcnt lgkmcnt(0)")
    settag()
    if fine: stamp("M_rdy")
    WR, XR = M_BH, M_BH + 4*G
    tk = {}
    def rdg(g):
        ks, p = g // 4, g % 4
        t, ksl = ks // 4, ks % 4
        uo = (t % 2) * 32768
        if p == 0 and ksl == 0:
            shift(range(M_AX, M_AX + 8), SH[t])
            if t == 3: K.wait_vm(tk_b2)
            if t < 6: K("s_barrier")
            else:
                l = newl("s6")
                K.wait_lg(box['cs'])
                K(f"v_cmp_ne_u32 vcc, 4, v{t4}")
                K(f"s_cbranch_vccz {l}")
                lgs = K.lg
                await_(C_S, 4)
                K.lg = lgs
                K.raw(f"{l}:")
        if p == 0: K(f"ds_read_b128 {vr(XR + 4*(ks % 3), 4)}, v{M_AX+ksl} offset:{uo}")
        for r in range(2):
            tk[g] = K(f"ds_read_b64_tr_b16 {vr(WR + 4*(g % G) + 2*r, 2)}, v{M_AW+p} offset:{uo + (16*ksl + 4*r)*256}")
    for g in range(G): rdg(g)
    for g in range(112):
        K.wait_lg(tk[g])
        mfma(M_ACC + 16*(g % 4), WR + 4*(g % G), XR + 4*((g // 4) % 3), "0" if g < 4 else None, x_m16 & 1)
        if 52 <= g < 56: mfma(M_ACC + 16*(g % 4), BF1 + 4*(g % 4), BONE)
        if g + G < 112: rdg(g + G)
        if g + G == 112: arrive(C_E)
        if g + G + 3 == 96: box['cs'] = K(f"ds_read_b32 v{t4}, v{V_CNT} offset:{C_S}")
        if mpf > 1 and g == mpf: mall_pf()
    stamp("ffn1")
    K(f"s_setprio {prioG}")
    tk = {}
    def rdb(ks, part=3):
        r, ksl = ks // 4, ks % 4
        b = M_BH + 8 * (ks % 8)
        u = RUNIT[r]
        if ksl == 0 and r >= (4 if aw2 == 3 else 2) and part & 1: K.wait_vm(tk_r[r])
        for pp in range(2):
            for h in range(2):
                if not part & (1 << pp): continue
                if r < 7:
                    tk[ks] = K(f"ds_read_b64_tr_b16 {vr(b + 4*pp + 2*h, 2)}, v{AB + pp + (2 if u >= 2 else 0)} offset:{(u%2)*32768 + (16*ksl + 8*h)*128}")
                else:
                    hh, sx = (ks % 4) // 2, ks % 2
                    tk[ks] = K(f"ds_read_b64_tr_b16 {vr(b + 4*pp + 2*h, 2)}, v{(22 if (sx == 1 and h == 1) else AB + 2) + pp} offset:{(u%2)*32768 + (28*hh + 16*sx + 8*h)*128}")
    def pull():
        await_(C_B, 4)
        for e in range(12): K(f"v_mov_b32 v{BF1+e}, v{BONE+e}")
        for ks in range(8):
            if ks >= 3: K.wait_lg(tk[ks - 3])
            rdb(ks)
        arrive(C_P)
    cc = -2.0 * 0.7978845608028654 * 1.4426950408889634
    K(f"v_mov_b32 v{t0}, {f2u(cc):#x}"); K(f"v_mov_b32 v{t1}, 1.0"); K(f"s_mov_b32 s{S_K}, {f2u(cc*0.044715):#x}"); K(f"s_mov_b32 s{S_K+1}, {f2u(cc*0.044715):#x}")
    tkh = {}
    for g in range(8):
        a = M_ACC + 8*g; tt = M_AR + 8*(g % 2); o = M_AR + 48 + 4*g
        if aw2 == 4 and g == md:
            await_(C_E, 8)
            K(f"s_cmp_eq_u32 s{S_ACT}, 1"); K(f"s_cselect_b32 s{R_W2+2}, s{R_W2+2}, 0")
            pend.extend(g_w2(0) + g_w2(1))
        if x_nog: pass
        elif g < pkg:
            for e in range(0, 8, 2): K(f"v_pk_mul_f32 {vr(tt+e,2)}, {vr(a+e,2)}, {vr(a+e,2)}")
            for e in range(0, 8, 2): K(f"v_pk_fma_f32 {vr(tt+e,2)}, {vr(tt+e,2)}, {sp(S_K)}, {vr(t0,2)} op_sel_hi:[1,1,0]")
            drip(1)
            for e in range(0, 8, 2): K(f"v_pk_mul_f32 {vr(tt+e,2)}, {vr(a+e,2)}, {vr(tt+e,2)}")
            for e in range(8):
                K(f"v_exp_f32 v{tt+e}, v{tt+e}")
                if e == 2: drip(1)
            for e in range(0, 8, 2): K(f"v_pk_add_f32 {vr(tt+e,2)}, {vr(tt+e,2)}, {vr(t0,2)} op_sel:[0,1] op_sel_hi:[1,1]")
            drip(1)
            for e in range(8): K(f"v_rcp_f32 v{tt+e}, v{tt+e}")
            drip(1 if g < 7 else 99)
            for e in range(0, 8, 2): K(f"v_pk_mul_f32 {vr(tt+e,2)}, {vr(a+e,2)}, {vr(tt+e,2)}")
        else:
            for e in range(8): K(f"v_mul_f32 v{tt+e}, v{a+e}, v{a+e}")
            for e in range(8): K(f"v_fma_f32 v{tt+e}, v{tt+e}, s{S_K}, v{t0}")
            drip(1)
            for e in range(8): K(f"v_mul_f32 v{tt+e}, v{a+e}, v{tt+e}")
            for e in range(8):
                K(f"v_exp_f32 v{tt+e}, v{tt+e}")
                if e == 2: drip(1)
            for e in range(8): K(f"v_add_f32 v{tt+e}, 1.0, v{tt+e}")
            drip(1)
            for e in range(8): K(f"v_rcp_f32 v{tt+e}, v{tt+e}")
            drip(1 if g < 7 else 99)
            for e in range(8): K(f"v_mul_f32 v{tt+e}, v{a+e}, v{tt+e}")
        for e in range(4): K(f"v_cvt_pk_bf16_f32 v{o+e}, v{tt+2*e}, v{tt+2*e+1}")
        if g == gw: arrive(C_G)
        if aw2 == 3 and g == gp: pull()
        if (g + 1) % sb == 0:
            K("s_setprio 3")
            for x in range(g + 1 - sb, g + 1):
                if x == 4: K(f"s_add_u32 s{S_RS}, s{S_RS}, 4096")
                tkh[x] = K(f"buffer_store_dwordx4 {vr(M_AR + 48 + 4*x,4)}, v{V_L16}, {srd(R_WS)}, s{S_RS} offen offset:{1024*(x%4)} sc1")
            if g < 7: K(f"s_setprio {prioG}")
    stamp("gelu_v")
    await_(C_0, 4)
    K.wait_vm(tkh[3]); signal(S_FL, 7)
    stamp("gelu")
    K(f"s_cmp_eq_u32 s{S_ACT}, 1")
    K.branch("s_cbranch_scc1 L_p2")
    K("s_waitcnt vmcnt(0)")
    signal(S_FL2, 7)
    def l2warm(first, n):
        K(f"s_lshr_b32 s{T}, s2, 3"); K(f"s_and_b32 s{T}, s{T}, 3"); K(f"s_lshl_b32 s{T}, s{T}, 2"); K(f"s_add_u32 s{T}, s{T}, s{S_A}"); K(f"s_lshl_b32 s{T}, s{T}, 13")
        K(f"v_lshlrev_b32 v{t0}, 7, v{V_LANE}")
        for k in range(n):
            K(f"s_add_u32 s{T+1}, s{T}, {(first + 1024*k)*128}")
            K(f"buffer_load_dword v{t1}, v{t0}, {srd(R_W2)}, s{T+1} offen")
    if l2w & 1:
        l2warm(0, 13)
        for k in range(4):
            K(f"s_add_u32 s{T+1}, s{T}, {1024*k*128}")
            K(f"buffer_load_dword v{t1}, v{t0}, {srd(R_WO)}, s{T+1} offen")
    K.branch("s_branch L_fin")
    K.label("L_nof")
    K.vm = vm_nof
    if hlp:
        if hw == 1: await_(C_E, 8, 2)
        if hw == 2: await_(C_0, 4, 2)
        if mpf > 1: mall_pf()
        K(f"s_mul_i32 s{T}, s{S_CT}, {111*128}")
        K("s_mov_b32 exec_hi, 0xffffff")
        for r in range(h0, 7):
            for q in range(2):
                K(f"s_add_u32 s{T+1}, s{S_W2B3 if r == 3 else S_W2B}, {(0 if r == 3 else (2*r % 7)*64*896) + q*56*128}"); K(f"s_add_u32 s{T+1}, s{T+1}, s{T}")
                K(f"buffer_load_dword v{V_POLL}, v{MP}, {srd(R_W2)}, s{T+1} offen")
                K(f"s_waitcnt vmcnt({hd})")
        K(f"s_lshl_b32 s{T}, s{S_CT}, 2"); K(f"s_add_u32 s{T}, s{T}, s{S_A}"); K(f"s_mul_i32 s{T}, s{T}, {196*128}")
        K("s_mov_b32 exec_hi, 0x1ffff")
        for q in range(4):
            K(f"buffer_load_dword v{V_POLL}, v{MP}, {srd(R_WO)}, s{T} offen"); K(f"s_add_u32 s{T}, s{T}, {49*128}")
            K(f"s_waitcnt vmcnt({hd})")
        K("s_mov_b64 exec, -1")
        stamp("hlp_done")
        K.branch("s_branch L_fin")
    if mpf == -2: await_(C_E, 8, 2)
    if mpf == -1: await_(C_0, 4, 2)
    if mpf < 0:
        K(f"s_lshl_b32 s{T+3}, s2, 2"); K(f"s_add_u32 s{T+3}, s{T+3}, s{S_A}")
        K(f"s_mul_i32 s{T}, s{T+3}, {98*128}"); K(f"s_mul_i32 s{T+1}, s{T+3}, {25*128}")
        K(f"buffer_load_dword v{V_POLL}, v{MP}, {srd(R_W2)}, s{T} offen")
        K(f"s_add_u32 s{T}, s{T}, {64*128}")
        K("s_mov_b32 exec_hi, 3")
        K(f"buffer_load_dword v{V_POLL}, v{MP}, {srd(R_W2)}, s{T} offen")
        K("s_mov_b64 exec, 0x1ffffff")
        K(f"buffer_load_dword v{V_POLL}, v{MP}, {srd(R_WO)}, s{T+1} offen")
        K("s_mov_b64 exec, -1")
    await_(C_0, 4, 2)
    K("s_waitcnt lgkmcnt(0)")
    settag()
    if mpf > 1: mall_pf()
    if l2w & 2: l2warm(0, 13)
    K("s_waitcnt vmcnt(0)")
    if aw2 == 3: pull()
    if aw2 == 4:
        await_(C_E, 8); run(g_w2(0) + g_w2(1)); K("s_waitcnt vmcnt(0)")

    K.label("L_p2")
    tk_h = K.vm
    def g_wo(hf):
        def step(q):
            def f():
                if q == 0:
                    K(f"s_mul_i32 s{TD}, s{S_A}, {112*896}"); K(f"s_lshl_b32 s{TD+1}, s{S_CT}, 7"); K(f"s_add_u32 s{TD}, s{TD}, s{TD+1}")
                    if hf: K(f"s_add_u32 s{TD}, s{TD}, {56*896}")
                    K(f"s_add_u32 m0, s{S_M02}, {U[RUNIT[7+hf]]}")
                if q == 4: K(f"s_add_u32 s{TD}, s{TD}, {32*896}"); K(f"s_add_u32 m0, s{S_M02}, {U[RUNIT[7+hf]] + 4096}")
                x = K(f"buffer_load_dwordx4 v{V_D2+q%4}, {srd(R_WO)}, s{TD} offen offset:{1024*(q%4)} lds") if 7 < x_skipB else K.vm - 8
                if q == 6: tk_r[7+hf] = x
            return f
        return [step(q) for q in range(7)]
    tk_a = {}
    def lda(ks, part=3):
        b = M_AR + 8 * (ks % NA); r = ks // 4
        if part & 1:
            if ks % 4 == 0: K(f"s_add_u32 s{T+7}, s{S_HB3 if r == 3 else S_HB}, {0 if r == 3 else (2*r % 7)*4096}")
            K(f"buffer_load_dwordx4 {vr(b,4)}, v{V_L16}, {srd(R_WS)}, s{T+7} offen offset:{1024*(ks%4)} sc1")
        if part & 2: tk_a[ks] = K(f"buffer_load_dwordx4 {vr(b+4,4)}, v{M_L16B}, {srd(R_WS)}, s{T+7} offen offset:{1024*(ks%4)} sc1")
    for t2_ in range(2):
        for pp in range(2): mfma(M_ACC + 32*t2_ + 16*pp, (BF1 + 4 if aw2 == 3 else BF2) + 4*pp, BF1 if aw2 == 3 else BONE, "0")
    g0, g1, g2, g3 = g_w2(0), g_w2(1), g_w2(2), g_w2(3)
    if aw2 == 3:
        K.wait_vm(tk_h - 1)
        signal(S_FL2, 7)
        K(f"s_setprio 0")
        stamp("h_pub1")
        poll_issue(FL_E)
        poll_check(FL_E)
        stamp("hE_seen")
        for ks in range(pre): lda(ks)
        g3 = []
    elif aw2:
        K.wait_vm(tk_h - 1)
        signal(S_FL2, 7)
        K(f"s_setprio 0")
        stamp("h_pub1")
        if hfirst:
            poll_issue(FL_E)
            if not x_noE: poll_check(FL_E)
            stamp("hE_seen")
            for ks in range(pre): lda(ks)
        if aw2 != 4: await_(C_B, 4)
        stamp("B_seen")
        if jit:
            for ks in range(8):
                if ks >= 3: K.wait_lg(tk[ks - 3])
                rdb(ks)
        else:
            for ks in range(3): rdb(ks)
            K.wait_lg(tk[0]); rdb(3)
            K.wait_lg(tk[3])
            for q in range(8):
                g2[q]()
                if q < 4:
                    if q == 3: K.wait_lg(tk[4])
                    rdb(4 + q)
        K("s_waitcnt lgkmcnt(0)")
        if not hfirst:
            poll_issue(FL_E)
            run(g3); g3 = []
            poll_check(FL_E)
            stamp("hE_seen")
            for ks in range(pre): lda(ks)
    else:
        await_(C_E, 8)
        for q in range(8):
            g0[q]()
        K.wait_vm(tk_h - 1)
        signal(S_FL2, 7)
        K(f"s_setprio 0")
        stamp("h_pub1")
        poll_issue(FL_E)
        run(g1)
        poll_check(FL_E)
        stamp("hE_seen")
        if jit:
            for ks in range(8):
                if ks < pre: lda(ks)
                if ks % 4 == 0: K.wait_vm(tk_r[ks // 4])
                if ks >= 3: K.wait_lg(tk[ks - 3])
                rdb(ks)
            assert pre <= 8
        else:
            for ks in range(4): lda(ks)
            K.wait_vm(tk_r[0])
            for ks in range(4):
                if ks == 3: K.wait_lg(tk[0])
                rdb(ks); lda(4 + ks)
            K.wait_vm(tk_r[1]); K.wait_lg(tk[3])
            for q in range(8):
                g2[q]()
                if q < 4:
                    if q == 3: K.wait_lg(tk[4])
                    rdb(4 + q)
        K("s_waitcnt lgkmcnt(0)")
    stamp("p2_prep")
    poll_issue(FL_L)
    sched = []
    if jit:
        for k in range(pre, 28):
            for p in (1, 2): sched.append((k, max(k - NA + 1, c0 + 1 if k >= 12 else 0), lambda k=k, p=p: lda(k, p), 0))
        early = {2: 0, 3: 0, 4: c3 + 1, 5: 12, 6: 16, 7: cq + 1, 8: 20}
        for r in range(2, 9):
            for q, f in enumerate(g_w2(r) if r < 7 else g_wo(r - 7)): sched.append((4*r - bl + q // 2 + 0.5, early[r], f, r))
        sched.sort(key=lambda z: z[0])
    else:
        for ks in range(pre if aw2 else 8, 12): pend.extend([lambda ks=ks: lda(ks, 1), lambda ks=ks: lda(ks, 2)])
        pend.extend(g3)
    def jdrip(ks):
        first = min([z[3] for z in sched if z[3]], default=0)
        for n, (key, e, f, grp) in enumerate(sched):
            if e <= ks and grp in (0, first):
                f(); sched.pop(n); return
    def step(ks, side):
        K.wait_vm(tk_a[ks])
        if ks >= 8: K.wait_lg(tk[ks])
        a = M_AR + 8 * (ks % NA); b = M_BH + 8 * (ks % 8)
        n = 0
        for t2_ in range(2):
            for pp in range(2):
                if not (x_nomf and ks < 28): mfma(M_ACC + 32*t2_ + 16*pp, b + 4*pp, a + 4*t2_, None, x_m16 & 2)
                side(n); n += 1
    nxt = [12]
    def hstep(ks):
        def side(n):
            if n < 2 and ks + 3 >= 8: rdb(ks + 3, 1 << n)
            if jit and sched:
                jdrip(ks)
                if n < rate - 4: jdrip(ks)
            else: drip(2 if len(pend) > 8 else 1)
        step(ks, side)
    def ldo(ks, part):
        b = M_AR + 8 * (ks % NA)
        if part == 0:
            K(f"buffer_load_dword v{t2}, v{t3}, {srd(R_WS)}, s{T+3} offen sc1")
            box['g'] = K(f"buffer_load_dword v{t3}, v{t3}, {srd(R_WS)}, s{T+3} offen offset:2048 sc1")
        if part == 1:
            if ks == 32: K(f"s_add_u32 s{T+4}, s{T+4}, 4096")
            K(f"buffer_load_dwordx4 {vr(b,4)}, v{V_L16}, {srd(R_WS)}, s{T+4} offen offset:{1024*(ks%4)} sc1")
        if part == 2: tk_a[ks] = K(f"buffer_load_dwordx4 {vr(b+4,4)}, v{M_L16B}, {srd(R_WS)}, s{T+4} offen offset:{1024*(ks%4)} sc1")
    olist = lambda: [lambda: ldo(0, 0)] + [lambda k=k, p=p: ldo(k, p) for k in range(28, 36) for p in (1, 2)]
    for ks in range(oc + 1):
        hstep(ks)
        if ks == c0:
            if not x_noE: poll_check(FL_L)
            stamp("hL_seen")
        if ks == 4 and aw2 == 3: await_(C_B2, 4)
        if ks == c3:
            await_(C_3, 4)
            if not jit: pend.extend(g_w2(4))
        if ks == cq:
            await_(C_Q, 4)
            if not jit: pend.extend(g_wo(0))
        if not jit:
            while ks >= c0 and nxt[0] <= ks + NA and nxt[0] < 28:
                pend.extend([lambda k=nxt[0]: lda(k, 1), lambda k=nxt[0]: lda(k, 2)]); nxt[0] += 1
            if ks == 11: pend.extend(g_w2(5))
            if ks == 15: pend.extend(g_w2(6))
            if ks == 19: pend.extend(g_wo(1))
        if ks in (3, 11, 19): stamp(f"p2_k{ks}")
        if ks == oc - 2: poll_issue(FL_O)
    while sched: jdrip(99)
    assert not pend and oc >= 22
    K(f"v_and_b32 v{t3}, 31, v{V_LANE}"); K(f"v_lshlrev_b32 v{t3}, 2, v{t3}")
    K(f"s_lshl_b32 s{T+3}, s{S_OB}, 7"); K(f"s_add_u32 s{T+3}, s{T+3}, {WS_G}")
    K(f"s_lshl_b32 s{T+4}, s{S_OB}, 11"); K(f"s_add_u32 s{T+4}, s{T+4}, {WS_O}")
    K(f"v_add_u32 v{M_L16B}, 32768, v{V_L16}")
    K(f"v_add_u32 v{V_D2}, s{S_M02}, v{V_L16}")
    for q in range(1, 4): K(f"v_xor_b32 v{V_D2+q}, {64*q}, v{V_D2}")
    K("s_waitcnt lgkmcnt(0)")
    K(f"s_cmp_lg_u32 s{PD[0]}, {FL_O[2]}" if not x_noo else "s_cmp_lg_u32 0, 0")
    K.branch("s_cbranch_scc1 L_olate")
    sv, sl = K.vm, K.lg
    stamp("o_early")
    pend.extend(olist())
    for ks in range(oc + 1, 28): hstep(ks)
    drip(99)
    ev, el = K.vm, K.lg
    K.branch("s_branch L_ojoin")
    K.label("L_olate")
    K.vm, K.lg = sv, sl
    for ks in range(oc + 1, 28): hstep(ks)
    poll_issue(FL_O)
    poll_check(FL_O)
    stamp("o_late")
    run(olist())
    assert (ev, el) == (K.vm, K.lg)
    K.label("L_ojoin")
    stamp("p2_h_done")
    tk_g = box['g']
    K.wait_vm(tk_g)
    if f2: stamp("t_g")
    K(f"v_sub_f32 v{t4}, 1.0, v{t2}"); K(f"v_sub_f32 v{t5}, 1.0, v{t3}")
    K(f"v_cvt_pk_bf16_f32 v{t4}, v{t4}, v{t5}"); K(f"v_and_b32 v{t5}, 0xffff0000, v{t4}"); K(f"v_lshlrev_b32 v{t4}, 16, v{t4}")
    for e in range(0, 64, 2): pscale(M_ACC+e, t4 if e < 32 else t5, True)
    for ks in range(28, 36):
        def side(n):
            if n < 2 and ks + 3 < 36: rdb(ks + 3, 1 << n)
        step(ks, side)
    if f2: stamp("t_mf")
    for t2_ in range(2):
        for b in range(8): K(f"ds_write_b128 v{V_D2 + b%4}, {vr(M_ACC+32*t2_+4*b,4)} offset:{32768*t2_ + 1024*b}")
    stamp("p2_done")

    K.label("L_red")
    K(f"v_and_b32 v{t1}, 7, v{V_LANE}"); K(f"v_lshrrev_b32 v{t3}, 3, v{V_LANE}")
    K(f"s_lshl_b32 s{T+1}, s{S_A}, 3"); K(f"v_add_u32 v{t0}, s{T+1}, v{t3}")
    K(f"v_and_b32 v{t2}, 3, v{V_LANE}"); K(f"v_lshlrev_b32 v{t2}, 2, v{t2}"); K(f"v_xor_b32 v{t0}, v{t0}, v{t2}")
    K(f"v_lshlrev_b32 v{t0}, 4, v{t0}"); K(f"v_lshl_add_u32 v{t0}, v{t1}, 10, v{t0}")
    K(f"s_lshr_b32 s{T+2}, s{S_W}, 2"); K(f"s_lshl_b32 s{T}, s{T+2}, 15"); K(f"v_add_u32 v{t0}, s{T}, v{t0}")
    K(f"v_mul_u32_u24 v{t3}, 896, v{t3}"); K(f"v_lshl_add_u32 v{t3}, v{t1}, 4, v{t3}")
    K(f"s_lshl_b32 s{T}, s{S_ROW}, 2"); K(f"s_add_u32 s{T}, s{T}, s{S_W}"); K(f"s_mul_i32 s{T}, s{T}, {8*896}"); K(f"s_lshl_b32 s{T+1}, s{S_CT}, 7"); K(f"s_add_u32 s{T+5}, s{T}, s{T+1}")
    K("s_waitcnt lgkmcnt(0)")
    K("s_barrier")
    if f2: stamp("t_bar")
    R = 160
    for q in range(4):
        K(f"ds_read_b128 {vr(R+8*q,4)}, v{t0} offset:{8192*q}")
        K(f"ds_read_b128 {vr(R+8*q+4,4)}, v{t0} offset:{8192*q + 512}")
    K("s_waitcnt lgkmcnt(4)")
    for e in range(0, 8, 2): padd(R+e, R+e, R+8+e, True)
    K("s_waitcnt lgkmcnt(0)")
    for e in range(0, 8, 2): padd(R+16+e, R+16+e, R+24+e, True)
    for e in range(0, 8, 2): padd(R+e, R+e, R+16+e, True)
    for e in range(4): K(f"v_cvt_pk_bf16_f32 v{R+e}, v{R+2*e}, v{R+2*e+1}")
    K(f"buffer_store_dwordx4 {vr(R,4)}, v{t3}, {srd(R_OUT)}, s{T+5} offen" + ["", " sc1", " nt", " sc0 sc1"][outm])
    if f2: stamp("t_st")
    K(f"s_xor_b32 s{T}, s2, 64"); K(f"s_or_b32 s{T}, s{T}, s{S_W}"); K(f"s_cmp_lg_u32 s{T}, 0")
    K.branch("s_cbranch_scc1 L_fin")
    K(f"s_mov_b32 s{T}, {WS_EPOCH}")
    flag(T)
    K.label("L_fin")
    if stamps:
        K("s_waitcnt vmcnt(0)")
        stamp("end")
        if probe is not None:
            i0 = STAMP_IDS.setdefault('start', len(STAMP_IDS)); i1 = STAMP_IDS.setdefault(probe, len(STAMP_IDS))
            K(f"v_readlane_b32 s{T}, v{V_STAMP}, {i0}"); K(f"v_readlane_b32 s{T+1}, v{V_STAMP}, {i1}")
            K("s_nop 4")
            K(f"s_cmp_eq_u32 s{T+1}, 0"); K(f"s_cselect_b32 s{T+1}, s{T}, s{T+1}")
            if pwg >= 0:
                K(f"s_cmp_lg_u32 s2, {pwg}")
                K.branch("s_cbranch_scc1 L_end")
            K.label("L_probe")
            K("s_sleep 2")
            K(f"s_memrealtime {sp(S_ST)}"); K("s_waitcnt lgkmcnt(0)")
            K(f"s_sub_u32 s{T+2}, s{S_ST}, s{T+1}"); K(f"s_cmp_lt_u32 s{T+2}, {pt}")
            K.branch("s_cbranch_scc1 L_probe")
            K.branch("s_branch L_end")
        K(f"s_lshl_b32 s{T}, s2, 3"); K(f"s_add_u32 s{T}, s{T}, s{S_W}"); K(f"s_lshl_b32 s{T}, s{T}, 8"); K(f"s_add_u32 s{T}, s{T}, {WS_STAMP}")
        K(f"v_lshlrev_b32 v{t0}, 2, v{V_LANE}")
        K(f"buffer_store_dword v{V_STAMP}, v{t0}, {srd(R_WS)}, s{T} offen")
    K.label("L_end")
    K("s_endpgm")
    K.raw(f".fill (28672 + 8192 * {1 if stamps else 0} - (L_end - {NAME})) / 4, 4, 0xbf800000")

    head = f"""; Fused gated mix of hedgehog linear attention and GELU FFN (emitted by a hand-written generator script)
; @launch grid=(256,1,1) block=(512,1,1) lds=163840
.amdgcn_target "amdgcn-amd-amdhsa--gfx950"
.text
.globl {NAME}
.p2align 8
.type {NAME},@function
"""
    tail = f""".section .rodata,"a"
.p2align 6
.amdhsa_kernel {NAME}
  .amdhsa_next_free_vgpr 256
  .amdhsa_next_free_sgpr 102
  .amdhsa_accum_offset 256
  .amdhsa_group_segment_fixed_size 0
  .amdhsa_kernarg_size 104
  .amdhsa_user_sgpr_count 2
  .amdhsa_user_sgpr_kernarg_segment_ptr 1
  .amdhsa_system_sgpr_workgroup_id_x 1
.end_amdhsa_kernel
"""
    return head + K.text() + tail

STAMP_IDS = {}
def parse_opts(argv):
    kw = {}
    for a in argv:
        if a.startswith("-D"):
            k, v = a[2:].split("="); kw[k] = int(v) if v.lstrip("-").isdigit() else v
    return kw
if __name__ == "__main__":
    out = sys.argv[1] if len(sys.argv) > 1 else "k.s"
    open(out, "w").write(gen(**parse_opts(sys.argv)))
```

```python
import sys, struct
from asmlib import Asm

NAME = "gated_mix__linear_kernel_hedgehog__dense_activation_gelu__prompt_kernel"
def f2u(x): return struct.unpack("<I", struct.pack("<f", x))[0]

WS_EPOCH = 0
WS_RPF   = 0x8000
WS_STAMP = 0x10000
WS_G     = 0xA0000
WS_WQ    = 0x100000
WS_KVP   = 0x280000
WS_O     = 0x480000
WS_H     = 0x680000
WS_CN    = 0x300000
WS_HF    = WS_CN
WS_OF    = WS_CN + 2048*128
WS_KVF   = WS_CN + 3072*128
WS_SIZE  = 0xE00000

U = [0, 32768, 65536, 98304, 131072]
L_K, L_V, L_Q = 98304, 126976, 65536
L_MISC = 155648
L_PHI, L_CNT, L_B2, L_B1 = L_MISC, L_MISC + 2048, L_MISC + 2560, L_MISC + 3072
L_KVS = U[3]
L_KVF = L_MISC + 4096
RUNIT = [0, 1, 0, 1, 3, 0, 1, 2, 3]
C_E, C_0, C_1, C_2, C_3, C_4, C_Q, C_G, C_B, C_S, C_5, C_P, C_B2 = 0, 4, 8, 12, 16, 20, 24, 28, 32, 36, 40, 44, 48

P_X, P_WQKV, P_PHI, P_WO, P_W1, P_B1, P_W2 = 16, 18, 20, 22, 26, 28, 30
P_B2, P_GATE, P_OUT, P_WS = 32, 34, 36, 40
R_X, R_W1, R_W2, R_WO, R_WS, R_OUT, R_T = 44, 48, 52, 56, 60, 64, 68
S_MT, S_J, S_W, S_A, S_FL2, S_TAG, S_CH, S_CNT = 72, 73, 74, 75, 76, 78, 77, 100
S_CHO = 80
S_M0 = 87
S_XB, S_W1B = 88, 89
S_T = 90
S_UP = 98
S_E = 42
S_H = S_J
S_CT, S_ROW, S_ACT = 43, 3, 101
S_K = 4
S_ST = 6
S_L28 = 24
S_FL = 8
S_HB, S_W2B, S_OB, S_HB3, S_W2B3, S_M02, S_RS = 9, 10, 11, 12, 13, 14, 15
S_PE, S_P3, S_PO = 34, 35, 38
PD = [16, 17, 18, 19, 20, 21, 22, 23, 26, 27, 28, 29, 30, 31, 32, 33]
def srd(r): return f"s[{r}:{r+3}]"
def sp(r): return f"s[{r}:{r+1}]"

V_LANE, V_L16, V_STAMP, V_TAG, V_POLL, V_CNT = 1, 2, 3, 4, 5, 6
V_T = 8
V_D2 = 18
A_PA, A_AX, A_AD, A_L4, A_PH, A_TR, A_G = 7, 14, 22, 24, 25, 30, 31
V_W, V_P, V_ACC, V_PHI, V_X = 32, 64, 96, 128, 144
A_XD, A_WD, A_QD, A_GW = 64, 68, 72, 16
M_L16B, M_AB = 7, 14
M_ACC, M_BH, M_AR = 24, 88, 152
M_AX, M_AW = 136, 140
NA = 13
def vr(a, n): return f"v[{a}:{a+n-1}]"
UPM = sp(S_UP)
L2E = 1.4426950408889634

def gen(stamps=False, spin=20000, rot1=9, codepf=True, slp=2, cyc=False, G=5, prioA=1, prioM=2, kvf=27, fine=False,
        pkq=0, pkk=1, LA=9, LA0=6, c0=2, mpf=30, outm=0, tlb=0, gw=-1, hf0=7, rpb=3, prioG=2, k6=4, qpf=1, sb=1, qd=0, probe=None, pwg=-1, pt=4000, aw2=2, pre=8, cb=22, pkg=2, rpa=0, f2=0, hfirst=1, early=0, oc=22, x_now2=0, x_noh=0, x_nomf=0, x_now1=0, rb2=0, gp=3, pa=10, x_at=4, c3=9, cq=17, spf=0, allpf=0, l2w=0, jit=0, bl=5, rate=4, x_m16=0, ra=2, rb=4, rc=2, rd=0, x_skipB=99, x_noo=0, x_nog=0, x_noE=0, md=2, hlp=0, hw=2, h0=0, hd=0, hh=0, tl=1, am=1, kf=1, wso=0, hpt=0, hst=0):
    K = Asm()
    T = S_T
    TD = T + 5
    t0, t1, t2, t3, t4, t5 = range(V_T, V_T + 6)
    def stamp(name):
        if not stamps: return
        if probe is not None and name != probe: return
        K("s_waitcnt lgkmcnt(0)")
        K(f"s_memrealtime {sp(S_ST)}")
        if cyc: K(f"s_memtime s[0:1]")
        K("s_waitcnt lgkmcnt(0)")
        i = STAMP_IDS.setdefault(name, len(STAMP_IDS))
        K(f"v_writelane_b32 v{V_STAMP}, s{S_ST}, {i}")
        if cyc: K(f"v_writelane_b32 v{V_STAMP}, s0, {32 + i}")
    uid = [0]
    def newl(p): uid[0] += 1; return f"L_{p}{uid[0]}"
    def poll_issue(fl):
        K(f"s_load_dword s{PD[0]}, {sp(P_WS)}, s{fl[0]} offset:{fl[1]} glc")
    def poll_check(fl):
        l, d = newl("poll"), newl("polld")
        K(f"s_mov_b32 s{S_CNT}, {spin}")
        K.raw(f"{l}:")
        K("s_waitcnt lgkmcnt(0)")
        K(f"s_cmp_eq_u32 s{PD[0]}, {fl[2]}")
        K.branch(f"s_cbranch_scc1 {d}")
        K(f"s_sub_u32 s{S_CNT}, s{S_CNT}, 1")
        K(f"s_cbranch_scc1 {d}")
        if slp: K(f"s_sleep {slp}")
        poll_issue(fl)
        K(f"s_branch {l}")
        K.label(d)
    def signal(soff_reg, n):
        K(f"v_mov_b32 v{t5}, 1"); K(f"v_lshlrev_b32 v{V_POLL}, 7, v{V_LANE}")
        K(f"s_mov_b64 exec, {(1 << n) - 1}")
        K(f"buffer_atomic_add v{t5}, v{V_POLL}, {srd(R_WS)}, s{soff_reg} offen")
        K("s_mov_b64 exec, -1")
    def vpoll_issue(vaddr):
        return K(f"buffer_load_dword v{V_POLL}, v{vaddr}, {srd(R_WS)}, 0 offen sc1")
    def vpoll_check(tok, vaddr):
        l, d = newl("poll"), newl("polld")
        K(f"s_mov_b32 s{S_CNT}, {spin}")
        K.wait_vm(tok)
        K.label(l)
        K(f"v_cmp_ne_u32 vcc, s{S_TAG}, v{V_POLL}")
        K.branch(f"s_cbranch_vccz {d}")
        K(f"s_sub_u32 s{S_CNT}, s{S_CNT}, 1")
        K.branch(f"s_cbranch_scc1 {d}")
        K(f"s_sleep 10")
        K(f"buffer_load_dword v{V_POLL}, v{vaddr}, {srd(R_WS)}, 0 offen sc1"); K.vm -= 1
        K("s_waitcnt vmcnt(0)")
        K.branch(f"s_branch {l}")
        K.label(d)
    def flag(soff_reg):
        K("s_mov_b64 exec, 1")
        K(f"buffer_store_dword v{V_TAG}, v{V_LANE}, {srd(R_WS)}, s{soff_reg} offen sc1")
        K("s_mov_b64 exec, -1")
    def arrive(c):
        K(f"v_mov_b32 v{t5}, 1")
        K("s_mov_b64 exec, 1")
        K(f"ds_add_u32 v{V_CNT}, v{t5} offset:{c}")
        K("s_mov_b64 exec, -1")
    def await_(c, n, sleep=0):
        l, d = newl("aw"), newl("awd")
        K(f"s_mov_b32 s{S_CNT}, {spin * 8}")
        K.label(l)
        K(f"ds_read_b32 v{t5}, v{V_CNT} offset:{c}")
        K("s_waitcnt lgkmcnt(0)")
        K(f"v_cmp_ne_u32 vcc, {n}, v{t5}")
        K.branch(f"s_cbranch_vccz {d}")
        if sleep: K(f"s_sleep {sleep}")
        K(f"s_sub_u32 s{S_CNT}, s{S_CNT}, 1")
        K.branch(f"s_cbranch_scc0 {l}")
        K.label(d)
    def mksrd(r, p, nbytes):
        K(f"s_mov_b32 s{r}, s{p}"); K(f"s_and_b32 s{r+1}, s{p+1}, 0xffff")
        K(f"s_mov_b32 s{r+2}, {nbytes}"); K(f"s_mov_b32 s{r+3}, 0x20000")
    cnt16 = [0]
    def mfma(d, a, b, c=None, big=False):
        if x_m16 and big and c is None:
            cnt16[0] += 1
            o = 8 * ((cnt16[0] // 4) % 2)
            for q in range(2): K(f"v_mfma_f32_16x16x32_bf16 {vr(d+o+4*q,4)}, {vr(a,4)}, {vr(b,4)}, {vr(d+o+4*q,4)}")
            return
        cs = vr(d, 16) if c is None else c
        K(f"v_mfma_f32_32x32x16_bf16 {vr(d,16)}, {vr(a,4)}, {vr(b,4)}, {cs}")
    def padd(d, a, b, pk):
        if pk: K(f"v_pk_add_f32 {vr(d,2)}, {vr(a,2)}, {vr(b,2)}")
        else: K(f"v_add_f32 v{d}, v{a}, v{b}"); K(f"v_add_f32 v{d+1}, v{a+1}, v{b+1}")
    def pscale(d, r, pk):
        if pk: K(f"v_pk_mul_f32 {vr(d,2)}, {vr(d,2)}, {vr(r & ~1,2)} " + ("op_sel:[0,1] op_sel_hi:[1,1]" if r & 1 else "op_sel_hi:[1,0]"))
        else: K(f"v_mul_f32 v{d}, v{d}, v{r}"); K(f"v_mul_f32 v{d+1}, v{d+1}, v{r}")
    def settag():
        K(f"s_add_u32 s{S_TAG}, s{S_E}, 0x9E3779B9"); K(f"s_mov_b32 s{S_TAG+1}, s{S_TAG}"); K(f"v_mov_b32 v{V_TAG}, s{S_TAG}")
    def xfrag_addr(dst):
        K(f"v_and_b32 v{t0}, 31, v{V_LANE}"); K(f"v_lshrrev_b32 v{t2}, 5, v{V_LANE}"); K(f"v_bfe_u32 v{t3}, v{V_LANE}, 1, 3")
        K(f"v_xor_b32 v{t3}, v{t2}, v{t3}"); K(f"s_lshl_b32 s{T}, s{S_A}, 12"); K(f"v_lshlrev_b32 v{t0}, 7, v{t0}")
        K(f"v_lshl_add_u32 v{t0}, v{t3}, 4, v{t0}"); K(f"v_add_u32 v{dst}, s{T}, v{t0}")
        for k in range(1, 4): K(f"v_xor_b32 v{dst+k}, {32*k}, v{dst}")
    def lanepart():
        K(f"v_bfe_u32 v{t4}, v{V_LANE}, 4, 1"); K(f"v_lshlrev_b32 v{t4}, 5, v{t4}")
        K(f"v_and_b32 v{t3}, 3, v{V_LANE}"); K(f"v_lshl_add_u32 v{t4}, v{t3}, 3, v{t4}")
        K(f"v_bfe_u32 v{t3}, v{V_LANE}, 2, 2"); K(f"v_lshrrev_b32 v{t2}, 5, v{V_LANE}")
    def p2setup():
        mksrd(R_W2, P_W2, 0 if x_now2 else 1792*896)
        K(f"s_and_b32 s{T}, s2, 7"); K(f"s_lshr_b32 s{T+1}, s2, 3")
        if hlp: K(f"s_add_u32 s{T+1}, s{T+1}, 28"); K(f"s_and_b32 s{T+1}, s{T+1}, 31")
        K(f"s_mul_i32 s{T+2}, s{T+1}, 37"); K(f"s_lshr_b32 s{T+2}, s{T+2}, 8"); K(f"s_mul_i32 s{T+3}, s{T+2}, 7"); K(f"s_sub_u32 s{S_CT}, s{T+1}, s{T+3}")
        K(f"s_lshl_b32 s{T+2}, s{T+2}, 1"); K(f"s_lshl_b32 s{T+3}, s{T}, 3"); K(f"s_add_u32 s{S_ROW}, s{T+2}, s{T+3}")
        K(f"s_cmp_lt_u32 s{T+1}, 28"); K(f"s_cselect_b32 s{S_ACT}, 1, 0")
        K(f"s_and_b32 s{T+2}, s{S_A}, 1"); K(f"s_mul_i32 s{T+3}, s{S_A}, 7"); K(f"s_add_u32 s{T+4}, s{T+3}, s{T+2}")
        K(f"s_cmp_eq_u32 s{T+2}, 0"); K(f"s_cselect_b32 s{T+2}, 6, 0"); K(f"s_add_u32 s{T+2}, s{T+2}, s{T+3}")
        K(f"s_lshl_b32 s{T}, s{S_CT}, 7")
        K(f"s_mul_i32 s{S_W2B}, s{T+4}, {64*896}"); K(f"s_add_u32 s{S_W2B}, s{S_W2B}, s{T}")
        K(f"s_mul_i32 s{S_W2B3}, s{T+2}, {64*896}"); K(f"s_add_u32 s{S_W2B3}, s{S_W2B3}, s{T}")
        K(f"s_lshl_b32 s{S_M02}, s{S_A}, 13")
        K(f"v_lshrrev_b32 v{t0}, 3, v{V_LANE}"); K(f"v_and_b32 v{t1}, 7, v{V_LANE}")
        K(f"v_bfe_u32 v{t2}, v{V_LANE}, 4, 1"); K(f"v_lshlrev_b32 v{t2}, 2, v{t2}"); K(f"v_xor_b32 v{t1}, v{t1}, v{t2}")
        K(f"v_mul_u32_u24 v{t0}, 896, v{t0}"); K(f"v_lshl_add_u32 v{V_D2}, v{t1}, 4, v{t0}")
        for q in range(1, 4): K(f"v_add_u32 v{V_D2+q}, {q*(8*896-1024)}, v{V_D2}")
        K(f"v_mov_b32 v{V_CNT}, {L_CNT}")
    def shift(regs, d):
        for r in regs:
            if d > 0: K(f"v_add_u32 v{r}, {d}, v{r}")
            elif d < 0: K(f"v_subrev_u32 v{r}, {-d}, v{r}")
    pend = []
    def drip(n):
        for _ in range(n):
            if pend: pend.pop(0)()
    def run(steps):
        for f in steps: f()
    tk_r = {}
    def g_w2(r):
        def step(q):
            def f():
                if q % 4 == 0:
                    K(f"s_add_u32 s{TD}, s{S_W2B3 if r == 3 else S_W2B}, {(0 if r == 3 else (2*r % 7)*64*896) + (q // 4)*32*896}")
                    K(f"s_add_u32 m0, s{S_M02}, {U[RUNIT[r]] + (q // 4)*4096}")
                x = K(f"buffer_load_dwordx4 v{V_D2+q%4}, {srd(R_W2)}, s{TD} offen offset:{1024*(q%4)} lds") if r < x_skipB else K.vm - 8
                if q == 7: tk_r[r] = x
            return f
        return [step(q) for q in range(8)]
    SH = [0, 0, 65536, 0, -65536, 0, 65536]

    K.raw(f"{NAME}:")
    K("s_cmp_ge_u32 s2, 256"); K("s_cbranch_scc1 L_end")
    if stamps and early: K(f"s_memrealtime {sp(S_ST)}"); K("s_waitcnt lgkmcnt(0)")
    K("s_load_dwordx16 s[16:31], s[0:1], 0"); K("s_load_dwordx8 s[32:39], s[0:1], 64"); K("s_load_dwordx2 s[40:41], s[0:1], 96")
    if stamps:
        if not early: K(f"s_memrealtime {sp(S_ST)}")
        K(f"v_mov_b32 v{V_STAMP}, 0")
    K(f"v_lshrrev_b32 v{t0}, 6, v0"); K(f"v_and_b32 v{V_LANE}, 63, v0")
    K(f"v_readfirstlane_b32 s{S_W}, v{t0}")
    K(f"v_lshlrev_b32 v{V_L16}, 4, v{V_LANE}")
    K(f"s_and_b32 s{T}, s2, 7"); K(f"s_lshr_b32 s{T+1}, s2, 3")
    if codepf:
        K(f"s_lshr_b32 s{T+2}, s2, 5"); K(f"s_lshl_b32 s{T+2}, s{T+2}, 3"); K(f"s_or_b32 s{T+2}, s{T+2}, s{S_W}"); K(f"s_cmp_lg_u32 s{T+2}, 7")
        K("s_cbranch_scc1 L_nopf")
        K(f"s_getpc_b64 {sp(T+2)}")
        K.raw("L_pc:")
        K(f"s_lshl_b32 s{T+4}, s{T+1}, 7"); K(f"s_sub_u32 s{T+2}, s{T+2}, L_pc - {NAME}"); K(f"s_subb_u32 s{T+3}, s{T+3}, 0")
        K(f"s_add_u32 s{T+2}, s{T+2}, s{T+4}"); K(f"s_addc_u32 s{T+3}, s{T+3}, 0")
        K(f"v_lshlrev_b32 v{t0}, 9, v{V_LANE}")
        K("s_mov_b32 exec_hi, 0xffffff")
        K(f"global_load_dword v{V_POLL}, v{t0}, {sp(T+2)}"); K.vm -= 1
        K("s_mov_b32 exec_hi, -1")
        K.label("L_nopf")
    K(f"s_and_b32 s{T+2}, s{T}, 2"); K(f"s_lshl_b32 s{T+2}, s{T+2}, 1")
    K(f"s_and_b32 s{T+3}, s{T}, 1"); K(f"s_cmp_lt_u32 s{T+1}, 4"); K(f"s_cselect_b32 s{T+4}, 14, 12"); K(f"s_add_u32 s{T+3}, s{T+3}, s{T+4}")
    K(f"s_lshr_b32 s{T+4}, s{T+1}, 3"); K(f"s_lshl_b32 s{S_J}, s{T+4}, 2"); K(f"s_and_b32 s{S_MT}, s{T}, 3"); K(f"s_add_u32 s{S_J}, s{S_J}, s{S_MT}"); K(f"s_sub_u32 s{S_J}, s{S_J}, 4")
    K(f"s_cmp_lt_u32 s{T+1}, 8"); K(f"s_cselect_b32 s{S_J}, s{T+3}, s{S_J}"); K(f"s_cselect_b32 s{T+2}, s{T+2}, 0")
    K(f"s_and_b32 s{T+3}, s{T+1}, 7"); K(f"s_xor_b32 s{T+3}, s{T+3}, s{T+2}")
    K(f"s_and_b32 s{S_MT}, s{T}, 4"); K(f"s_lshl_b32 s{S_MT}, s{S_MT}, 1"); K(f"s_add_u32 s{S_MT}, s{S_MT}, s{T+3}")
    K(f"s_and_b32 s{S_A}, s{S_W}, 3")
    K(f"s_lshl_b32 s{S_W1B}, s{S_J}, 8")
    K(f"s_cmp_ge_u32 s{S_W}, 4")
    K.branch("s_cbranch_scc1 L_M")

    if prioA: K(f"s_setprio {prioA}")
    K(f"s_lshl_b32 s{T+4}, s{T+4}, 1"); K(f"s_add_u32 s{T+2}, s{T+3}, s{T+4}")
    K(f"s_cmp_ge_u32 s{T+2}, 7"); K(f"s_cselect_b32 s{T+3}, 7, 0"); K(f"s_sub_u32 s{S_CH}, s{T+2}, s{T+3}")
    if not rot1: K(f"s_mov_b32 s{S_CH}, 0")
    if rot1 == 2:
        K(f"s_lshr_b32 s{T+4}, s{T+4}, 1"); K(f"s_add_u32 s{T+2}, s{S_MT}, s{T+4}"); K(f"s_and_b32 s{T+2}, s{T+2}, 1"); K(f"s_lshl_b32 s{S_CH}, s{T+2}, 2")
    if rot1 == 4:
        K(f"s_lshr_b32 s{T+4}, s{T+4}, 1"); K(f"s_add_u32 s{T+2}, s{S_MT}, s{T+4}"); K(f"s_and_b32 s{T+2}, s{T+2}, 3"); K(f"s_lshl_b32 s{S_CH}, s{T+2}, 1")
    if rot1 >= 9:
        K(f"s_and_b32 s{T+2}, s2, 3"); K(f"s_mul_i32 s{T+2}, s{T+2}, {ra}"); K(f"s_bfe_u32 s{T+3}, s2, 0x10002"); K(f"s_mul_i32 s{T+3}, s{T+3}, {rb}"); K(f"s_add_u32 s{T+2}, s{T+2}, s{T+3}")
        if rc: K(f"s_and_b32 s{T+3}, s{S_MT}, 1"); K(f"s_mul_i32 s{T+3}, s{T+3}, {rc}"); K(f"s_add_u32 s{T+2}, s{T+2}, s{T+3}")
        if rd: K(f"s_bfe_u32 s{T+3}, s{S_MT}, 0x10001"); K(f"s_mul_i32 s{T+3}, s{T+3}, {rd}"); K(f"s_add_u32 s{T+2}, s{T+2}, s{T+3}")
        K(f"s_mul_i32 s{T+3}, s{T+2}, 37"); K(f"s_lshr_b32 s{T+3}, s{T+3}, 8"); K(f"s_mul_i32 s{T+3}, s{T+3}, 7"); K(f"s_sub_u32 s{S_CH}, s{T+2}, s{T+3}")
    if rot1 == 8:
        K(f"s_and_b32 s{T+2}, s2, 7"); K(f"s_cmp_eq_u32 s{T+2}, 7"); K(f"s_cselect_b32 s{S_CH}, 3, s{T+2}")
    def rotstep(t):
        K(f"s_lshl_b32 s{S_CHO+t}, s{S_CH}, 12")
        if t < 6: K(f"s_add_u32 s{S_CH}, s{S_CH}, 1"); K(f"s_cmp_eq_u32 s{S_CH}, 7"); K(f"s_cselect_b32 s{S_CH}, 0, s{S_CH}")
    rotstep(0); rotstep(1)
    K(f"s_lshl_b32 s{S_M0}, s{S_A}, 12")
    K(f"s_mul_i32 s{S_XB}, s{S_MT}, {128*896}")
    K(f"v_lshrrev_b32 v{t0}, 3, v{V_LANE}"); K(f"v_and_b32 v{t1}, 7, v{V_LANE}"); K(f"v_lshrrev_b32 v{t2}, 1, v{t0}"); K(f"v_xor_b32 v{t2}, v{t1}, v{t2}")
    K(f"s_lshl_b32 s{T+2}, s{S_A}, 5"); K(f"v_add_u32 v{t3}, s{T+2}, v{t0}"); K(f"v_mul_u32_u24 v{t3}, 896, v{t3}")
    K(f"v_lshl_add_u32 v{A_XD}, v{t2}, 4, v{t3}"); K(f"v_xor_b32 v{t2}, 4, v{t2}"); K(f"v_lshl_add_u32 v{A_XD+1}, v{t2}, 4, v{t3}")
    K(f"v_add_u32 v{A_XD+1}, {8*896-1024}, v{A_XD+1}")
    K(f"v_add_u32 v{A_XD+2}, {16*896-2048}, v{A_XD}"); K(f"v_add_u32 v{A_XD+3}, {16*896-2048}, v{A_XD+1}")
    K(f"v_lshrrev_b32 v{t0}, 4, v{V_LANE}"); K(f"v_and_b32 v{t1}, 15, v{V_LANE}"); K(f"v_lshlrev_b32 v{t2}, 2, v{t0}"); K(f"v_xor_b32 v{t2}, v{t1}, v{t2}")
    K(f"s_lshl_b32 s{T+2}, s{S_A}, 4"); K(f"v_add_u32 v{t3}, s{T+2}, v{t0}"); K(f"v_mul_u32_u24 v{t3}, 3584, v{t3}")
    K(f"v_lshl_add_u32 v{A_WD}, v{t2}, 4, v{t3}")
    for q in range(1, 4): K(f"v_add_u32 v{A_WD+q}, {q*(4*3584-1024)}, v{A_WD}")
    K("s_waitcnt lgkmcnt(0)")
    if stamps: K(f"v_writelane_b32 v{V_STAMP}, s{S_ST}, {STAMP_IDS.setdefault('start', len(STAMP_IDS))}")
    if wso: K(f"s_add_u32 s{P_WS}, s{P_WS}, {wso << 20}"); K(f"s_addc_u32 s{P_WS+1}, s{P_WS+1}, 0")
    mksrd(R_X, P_X, 2048*896); mksrd(R_W1, P_W1, 0 if x_now1 else 448*3584)
    tk_stage = {}
    def g_stage(t):
        u = U[t % 4]
        def step(q):
            def f():
                if q == 0: K(f"s_lshr_b32 s{TD}, s{S_CHO+t}, 5"); K(f"s_add_u32 s{TD}, s{TD}, s{S_XB}"); K(f"s_add_u32 m0, s{S_M0}, {u}")
                if q == 4: K(f"s_mul_i32 s{TD}, s{S_CHO+t}, 56"); K(f"s_add_u32 s{TD}, s{TD}, s{S_W1B}"); K(f"s_add_u32 m0, s{S_M0}, {u + 16384}")
                if q < 4: K(f"buffer_load_dwordx4 v{A_XD+q}, {srd(R_X)}, s{TD} offen offset:{1024*q} lds")
                else: x = K(f"buffer_load_dwordx4 v{A_WD+q-4}, {srd(R_W1)}, s{TD} offen offset:{1024*(q-4)} lds")
                if q == 7: tk_stage[t] = x
            return f
        return [step(q) for q in range(8)]
    ilist = []
    for t in range(7): ilist += [(f, t - 2 if t >= 4 else -1) for f in g_stage(t)]
    pos = [0]
    def issue_to(n, lastbar):
        while pos[0] < min(n, len(ilist)) and ilist[pos[0]][1] <= lastbar:
            ilist[pos[0]][0](); pos[0] += 1
    if fine: stamp("A_karg")
    K(f"s_cmp_ge_u32 s{S_J}, 14")
    K.branch("s_cbranch_scc1 L_a1")
    vm0 = K.vm
    issue_to(8, -1)
    issue_to(8 + LA0, -1)
    K.label("L_a1")
    if fine: stamp("A_i1")
    K(f"s_load_dword s{S_E}, {sp(P_WS)}, {WS_EPOCH}")
    for t in range(2, 7): rotstep(t)
    mksrd(R_WS, P_WS, WS_SIZE); mksrd(R_OUT, P_OUT, 2048*896)
    p2setup()
    K(f"s_mov_b32 s{S_UP}, 0"); K(f"s_mov_b32 s{S_UP+1}, -1")
    K(f"s_mov_b32 s{S_L28}, 0x10000000"); K(f"s_mov_b32 s{S_L28+1}, 0x10000000")
    xfrag_addr(A_AX)
    lanepart()
    K(f"v_lshl_add_u32 v{t0}, v{t2}, 3, v{t3}"); K(f"v_lshl_add_u32 v{A_TR}, v{t0}, 6, v{t4}")
    K(f"v_lshl_add_u32 v{t0}, v{t2}, 2, v{t3}"); K(f"v_mul_u32_u24 v{t1}, 56, v{t0}"); K(f"v_add_u32 v{t1}, v{t1}, v{t4}"); K(f"v_add_u32 v{A_PH}, {L_PHI}, v{t1}")
    K(f"v_lshlrev_b32 v{A_L4}, 2, v{V_LANE}")
    K(f"s_lshl_b32 s{T}, s{S_A}, 10"); K(f"s_add_u32 s{T}, s{T}, {WS_RPF}"); K(f"v_and_b32 v{A_PA}, 7, v{V_LANE}"); K(f"v_lshl_add_u32 v{A_PA}, v{A_PA}, 7, s{T}")
    K(f"s_mul_i32 s{S_RS}, s{S_J}, {3*28672}"); K(f"s_mul_i32 s{S_P3}, s{S_A}, 7168"); K(f"s_add_u32 s{S_RS}, s{S_RS}, s{S_P3}"); K(f"s_add_u32 s{S_RS}, s{S_RS}, {WS_WQ}")
    K("s_waitcnt lgkmcnt(0)")
    settag()
    K(f"s_cmp_lt_u32 s{S_J}, 14")
    K.branch("s_cbranch_scc1 L_a2")
    sv = K.vm
    K(f"s_mul_i32 s{T}, s{S_A}, 3072"); K(f"s_add_u32 s{T}, s{T}, {L_K}")
    K("s_barrier")
    for t in range(7):
        K(f"s_lshr_b32 s{TD}, s{S_CHO+t}, 5"); K(f"s_add_u32 s{TD}, s{TD}, s{S_XB}")
        if t < 6: K(f"s_add_u32 m0, s{S_M0}, {16384*t}")
        else: K(f"s_add_u32 m0, s{S_M0}, s{T}")
        for q in range(4): K(f"buffer_load_dwordx4 v{A_XD+q}, {srd(R_X)}, s{TD} offen offset:{1024*q} lds")
        if t == rb2: K("s_barrier")
    K("s_waitcnt vmcnt(0)")
    for t in range(7):
        if t == 4: shift(range(A_AX, A_AX + 4), 65536)
        if t == 6:
            K(f"s_sub_u32 s{T}, s{T}, 65536")
            for k in range(4): K(f"v_add_u32 v{A_AX+k}, s{T}, v{A_AX+k}")
        for ksl in range(4): K(f"ds_read_b128 {vr(V_X + 16*t + 4*ksl, 4)}, v{A_AX+ksl} offset:{(t % 4) * 16384 if t < 6 else 0}")
        if t % 2 == 1: K("s_waitcnt lgkmcnt(4)")
    K("s_waitcnt lgkmcnt(0)")
    stamp("A_b6")
    vpoll_issue(A_PA)
    K.branch("s_branch L_a3")
    K.label("L_a2")
    K.vm = sv
    if fine: stamp("A_setup")
    tkx = {}
    def g_panel(p, lds):
        def step(q):
            def f():
                if q % 4 == 0: K(f"s_add_u32 s{TD}, s{S_RS}, {28672*p + (q // 4)*4096}"); K(f"s_add_u32 m0, s{S_P3}, {lds + (q // 4)*4096}")
                tkx[p] = K(f"buffer_load_dwordx4 v{V_L16}, {srd(R_WS)}, s{TD} offen offset:{1024*(q%4)} sc1 lds")
            return f
        return [step(q) for q in range(7)]
    for t in range(7):
        issue_to(8*(t+1) + (LA0 if t == 0 else LA), t - 1)
        shift(range(A_AX, A_AX + 4), SH[t])
        if t == 5:
            assert pos[0] == len(ilist)
            tkp = vpoll_issue(A_PA)
        if fine: stamp(f"A{t}a")
        K.wait_vm(tk_stage[t])
        if fine: stamp(f"A{t}b")
        if t < 6:
            if t >= 2: K("s_waitcnt lgkmcnt(4)")
            K("s_barrier")
        else: arrive(C_S)
        if t in (0, 4, 6): stamp(f"A_b{t}")
        for ksl in range(4): K(f"ds_read_b128 {vr(V_X + 16*t + 4*ksl, 4)}, v{A_AX+ksl} offset:{(t % 2) * 32768}")
    assert tkp == K.vm
    K.label("L_a3")
    arrive(C_E)
    vpoll_check(tkp, A_PA)
    stamp("rp_seen")
    run(g_panel(1, L_K) + g_panel(2, L_V))
    K(f"v_add_u32 v{A_PA}, 4096, v{A_PA}")
    tkp = vpoll_issue(A_PA)
    stamp("kv_issued")
    K(f"s_mov_b32 s{S_K}, {f2u(L2E):#x}"); K(f"s_mov_b32 s{S_K+1}, {f2u(L2E):#x}")
    VPH, VB = V_W + 24, V_W + 16
    for s in range(2):
        for r in range(2): K(f"ds_read_b64_tr_b16 {vr(VPH + 4*s + 2*r, 2)}, v{A_PH} offset:{(16*s + 8*r)*56}")
    K(f"s_lshl_b32 s{T}, s{S_A}, 11"); K(f"s_lshl_b32 s{T+1}, s{S_J}, 13"); K(f"s_add_u32 s{S_HB}, s{T+1}, s{T}"); K(f"s_add_u32 s{S_FL}, s{S_HB}, {WS_KVF}"); K(f"s_lshl_b32 s{S_PE}, s{S_MT}, 7"); K(f"s_add_u32 s{S_PE}, s{S_PE}, s{S_FL}"); K(f"s_add_u32 s{S_HB}, s{S_HB}, {WS_KVP}")
    FL_K = (S_PE, 0, 16)
    K(f"s_lshl_b32 s{T}, s{S_MT}, 2"); K(f"s_add_u32 s{T}, s{T}, s{S_A}")
    K(f"s_lshr_b32 s{T+1}, s{T}, 1"); K(f"s_lshl_b32 s{T+1}, s{T+1}, 2"); K(f"s_lshr_b32 s{T+2}, s{S_J}, 2"); K(f"s_add_u32 s{T+1}, s{T+1}, s{T+2}"); K(f"s_lshl_b32 s{T+1}, s{T+1}, 10"); K(f"s_add_u32 s{S_FL2}, s{T+1}, {WS_OF}")
    K(f"s_lshl_b32 s{T}, s{T}, 4"); K(f"s_add_u32 s{T}, s{T}, s{S_J}")
    K(f"s_lshl_b32 s{S_OB}, s{T}, 11"); K(f"s_add_u32 s{S_OB}, s{S_OB}, {WS_O}")
    K(f"s_lshl_b32 s{T+2}, s{T}, 7"); K(f"s_add_u32 s{S_XB}, s{T+2}, {WS_G - 128}")
    IDR = [26, 27, 28, 29, V_PHI, V_PHI+1, V_PHI+2, V_PHI+3]
    K(f"v_and_b32 v{t0}, 31, v{V_LANE}"); K(f"v_lshrrev_b32 v{t1}, 5, v{V_LANE}"); K(f"v_lshlrev_b32 v{t1}, 2, v{t1}")
    K(f"v_sub_u32 v{t0}, v{t0}, v{t1}")
    K(f"v_and_b32 v{t1}, 1, v{V_LANE}"); K(f"v_lshlrev_b32 v{t1}, 4, v{t1}"); K(f"v_mov_b32 v{t2}, 0x3f80"); K(f"v_lshlrev_b32 v{t1}, v{t1}, v{t2}")
    K(f"v_and_b32 v{t0}, -2, v{t0}")
    for s in range(2):
        for q in range(4): K(f"v_cmp_eq_u32 {sp(T+2*q)}, {16*s + 8*(q // 2) + 2*(q % 2)}, v{t0}")
        for q in range(4): K(f"v_cndmask_b32 v{IDR[4*s+q]}, 0, v{t1}, {sp(T+2*q)}")
    if aw2: K(f"s_cmp_eq_u32 s{S_ACT}, 1"); K(f"s_cselect_b32 s{R_W2+2}, s{R_W2+2}, 0")
    if aw2 in (1, 3):
        await_(C_E, 8, 1)
        run(g_w2(0))
        K.wait_vm(tkx[2]); arrive(C_0)
        run(g_w2(1))
        if qd < 0: run(g_panel(0, L_Q))
    else: K.wait_vm(tkx[1] if kf else tkx[2]); arrive(C_0)
    stamp("kv_landed0")
    if aw2 == 1: K.wait_vm(tk_r[1]); arrive(C_B)
    await_(C_0, 4, 1)
    K(f"v_cndmask_b32 v{VPH+6}, v{VPH+6}, 0, {UPM}"); K(f"v_cndmask_b32 v{VPH+7}, v{VPH+7}, 0, {UPM}")
    if not kf:
        await_(C_G if gw >= 0 else C_E, 4 if gw >= 0 else 8, 1)
        vpoll_check(tkp, A_PA)
    stamp("kv_start")

    def gemm_qkv(panels, hook=None):
        nb = len(panels) * 4
        D = 3 if len(panels) == 2 else 6
        tk = {}
        for n, (off, acc, sw) in enumerate(panels): K(f"v_add_u32 v{A_AX+n}, {off}, v{A_TR}")
        def rd(ks, n):
            t, ksl = ks // 4, ks % 4
            b = V_W + nb * (ks % D)
            if ksl == 0: K(f"v_add_u32 v{A_AD + n}, s{S_CHO+t}, v{A_AX+n}")
            for r in range(2):
                tk[ks] = K(f"ds_read_b64_tr_b16 {vr(b + 4*n + 2*r, 2)}, v{A_AD + n} offset:{(16*ksl + 4*r)*64}")
        for k in range(D):
            for n in range(len(panels)): rd(k, n)
        for ks in range(28):
            K.wait_lg(tk[ks])
            b = V_W + nb * (ks % D)
            for n, (off, acc, sw) in enumerate(panels):
                wv, xv = b + 4*n, V_X + 4*ks
                if sw: mfma(acc, xv, wv, "0" if ks == 0 else None, x_m16 & 4)
                else: mfma(acc, wv, xv, "0" if ks == 0 else None, x_m16 & 4)
                if ks + D < 28: rd(ks + D, n)
            if hook: hook(ks)
    QP = V_W
    P = V_ACC
    def featmap():
        for e in range(8): K(f"v_cvt_pk_bf16_f32 v{QP+e}, v{V_ACC+2*e}, v{V_ACC+2*e+1}")
        mfma(P, VPH, QP, "0"); mfma(P, VPH + 4, QP + 4)
    def softmax(pk):
        for e in range(4): K(f"v_cndmask_b32 v{P+12+e}, v{P+12+e}, v{P}, {UPM}")
        mx, mn = t0, t2
        K(f"v_max3_f32 v{mx}, v{P}, v{P+1}, v{P+2}"); K(f"v_min3_f32 v{mn}, v{P}, v{P+1}, v{P+2}")
        K(f"v_max3_f32 v{t1}, v{P+3}, v{P+4}, v{P+5}"); K(f"v_min3_f32 v{t3}, v{P+3}, v{P+4}, v{P+5}")
        for e in range(6, 14, 4):
            K(f"v_max3_f32 v{mx}, v{mx}, v{P+e}, v{P+e+1}"); K(f"v_min3_f32 v{mn}, v{mn}, v{P+e}, v{P+e+1}")
            K(f"v_max3_f32 v{t1}, v{t1}, v{P+e+2}, v{P+e+3}"); K(f"v_min3_f32 v{t3}, v{t3}, v{P+e+2}, v{P+e+3}")
        K(f"v_max3_f32 v{mx}, v{mx}, v{P+14}, v{P+15}"); K(f"v_min3_f32 v{mn}, v{mn}, v{P+14}, v{P+15}")
        K(f"v_max_f32 v{mx}, v{mx}, v{t1}"); K(f"v_min_f32 v{mn}, v{mn}, v{t3}")
        K(f"v_mov_b32 v{t1}, v{mx}"); K(f"v_mov_b32 v{t3}, v{mn}")
        K(f"v_permlane32_swap_b32 v{mx}, v{t1}"); K(f"v_permlane32_swap_b32 v{mn}, v{t3}")
        K(f"v_max_f32 v{mx}, v{mx}, v{t1}"); K(f"v_min_f32 v{mn}, v{mn}, v{t3}")
        K(f"v_mul_f32 v{mx}, s{S_K}, v{mx}"); K(f"v_mul_f32 v{mn}, s{S_K}, v{mn}")
        EP, EN = V_P, V_P + 16
        for e in range(0, 16, 2):
            if pk:
                K(f"v_pk_fma_f32 {vr(EP+e,2)}, {vr(P+e,2)}, {sp(S_K)}, {vr(mx,2)} op_sel_hi:[1,1,0] neg_lo:[0,0,1] neg_hi:[0,0,1]")
                K(f"v_pk_fma_f32 {vr(EN+e,2)}, {vr(P+e,2)}, {sp(S_K)}, {vr(mn,2)} op_sel_hi:[1,1,0] neg_lo:[1,0,0] neg_hi:[1,0,0]")
            else:
                for x in (e, e + 1):
                    K(f"v_fma_f32 v{EP+x}, v{P+x}, s{S_K}, -v{mx}"); K(f"v_fma_f32 v{EN+x}, -v{P+x}, s{S_K}, v{mn}")
        for e in range(16):
            K(f"v_exp_f32 v{EP+e}, v{EP+e}"); K(f"v_exp_f32 v{EN+e}, v{EN+e}")
        S = V_W
        for n, E in enumerate((EP, EN)):
            padd(S+4*n, E, E+2, pk); padd(S+4*n+2, E+12, E+14, pk)
        for n, E in enumerate((EP, EN)):
            padd(S+4*n, S+4*n, E+4, pk)
            K(f"v_cndmask_b32 v{S+4*n+2}, v{S+4*n+2}, 0, {UPM}"); K(f"v_cndmask_b32 v{S+4*n+3}, v{S+4*n+3}, 0, {UPM}")
        for n, E in enumerate((EP, EN)):
            padd(S+4*n, S+4*n, E+6, pk); padd(S+4*n+2, S+4*n+2, E+8, pk)
        for n, E in enumerate((EP, EN)): padd(S+4*n, S+4*n, E+10, pk)
        for n in range(2): padd(S+4*n, S+4*n, S+4*n+2, pk)
        K(f"v_add_f32 v{t0}, v{S}, v{S+1}"); K(f"v_add_f32 v{t2}, v{S+4}, v{S+5}")
        K(f"v_mov_b32 v{t1}, v{t0}"); K(f"v_mov_b32 v{t3}, v{t2}")
        K(f"v_permlane32_swap_b32 v{t0}, v{t1}"); K(f"v_permlane32_swap_b32 v{t2}, v{t3}")
        K(f"v_add_f32 v{t0}, v{t0}, v{t1}"); K(f"v_add_f32 v{t2}, v{t2}, v{t3}")
        K(f"v_rcp_f32 v{t0}, v{t0}"); K(f"v_rcp_f32 v{t2}, v{t2}")
        K(f"v_cndmask_b32 v{t1}, v{t0}, 0, {UPM}"); K(f"v_cndmask_b32 v{t3}, v{t2}, 0, {UPM}")
        for e in range(0, 16, 2):
            pscale(EP+e, t0 if e < 12 else t1, pk); pscale(EN+e, t2 if e < 12 else t3, pk)
        for e in range(8):
            K(f"v_cvt_pk_bf16_f32 v{V_PHI+e}, v{EP+2*e}, v{EP+2*e+1}"); K(f"v_cvt_pk_bf16_f32 v{V_PHI+8+e}, v{EN+2*e}, v{EN+2*e+1}")

    if aw2 == 2: pend.extend(g_w2(0) + g_w2(1))
    if qd >= 0: pend.extend(g_panel(0, L_Q))
    def hook(ks):
        if aw2 == 3:
            if ks == 1: K.wait_vm(tk_r[1]); arrive(C_B)
            if ks == pa:
                await_(C_P, 4)
                pend.extend(g_w2(2) + g_w2(3))
            drip(2 if len(pend) > 27 - ks else 1)
        elif aw2 == 2:
            drip(1)
            if ks == cb: K.wait_vm(tk_r[1]); arrive(C_B)
        elif ks >= qd and (ks - qd) % 3 == 0: drip(1)
        if ks == 25: arrive(C_1)
    if kf:
        def hookk(ks):
            if ks == 11: vpoll_check(tkp, A_PA); arrive(C_P); await_(C_E, 8)
            if ks >= 12 and ks % 2 == 0: drip(1)
        gemm_qkv([(L_K, V_ACC, False)], hookk)
        await_(C_P, 4)
        def hookv(ks):
            if ks == 4:
                for e in range(8): K(f"v_cvt_pk_bf16_f32 v{V_P+e}, v{V_ACC+2*e}, v{V_ACC+2*e+1}")
            if ks == 6: mfma(P, VPH, V_P, "0"); mfma(P, VPH + 4, V_P + 4)
            if ks % 2 == 0 or ks < 3: drip(1)
            if ks == 24 and aw2 == 2: K.wait_vm(tk_r[1]); arrive(C_B)
            if ks == 22: arrive(C_1)
        gemm_qkv([(L_V, V_ACC + 16, True)], hookv)
    else:
        gemm_qkv([(L_K, V_ACC, False), (L_V, V_ACC + 16, True)], hook)
        featmap()
    assert not pend
    for e in range(4): K(f"v_mov_b32 v{V_W+8+e}, v{V_PHI+e}")
    IDR[4] = V_W + 8
    stamp("kv_gemm")
    K(f"v_mov_b32 v{t4}, 0x3f803f80")
    for e in range(8): K(f"v_cvt_pk_bf16_f32 v{VB+e}, v{V_ACC+16+2*e}, v{V_ACC+16+2*e+1}")
    for e in range(8): K(f"v_cndmask_b32 v{VB+e}, v{VB+e}, v{t4}, {sp(S_L28)}")
    softmax(pkk)
    stamp("sm_k")
    if aw2 == 3: K.wait_vm(tk_r[3]); arrive(C_B2)
    TP, TN = V_P, V_P + 16
    mfma(TP, V_PHI, IDR[0], "0"); mfma(TP, V_PHI + 4, IDR[4])
    mfma(TN, V_PHI + 8, IDR[0], "0"); mfma(TN, V_PHI + 12, IDR[4])
    await_(C_1, 4)
    if f2: stamp("kv_a")
    K(f"s_lshl_b32 s{T}, s{S_A}, 13"); K(f"s_add_u32 s{T}, s{T}, {L_KVS}"); K(f"v_add_u32 v{t0}, s{T}, v{V_L16}")
    K(f"s_lshl_b32 s{T}, s{S_A}, 11"); K(f"s_add_u32 s{T}, s{T}, {L_KVS}"); K(f"v_add_u32 v{t1}, s{T}, v{V_L16}")
    for e in range(8): K(f"v_cvt_pk_bf16_f32 v{V_PHI+e}, v{TP+2*e}, v{TP+2*e+1}")
    mfma(V_ACC, V_PHI, VB, "0"); mfma(V_ACC, V_PHI + 4, VB + 4)
    for e in range(8): K(f"v_cvt_pk_bf16_f32 v{V_PHI+8+e}, v{TN+2*e}, v{TN+2*e+1}")
    mfma(V_ACC + 16, V_PHI + 8, VB, "0"); mfma(V_ACC + 16, V_PHI + 12, VB + 4)
    for b in range(8): K(f"ds_write_b128 v{t0}, {vr(V_ACC+4*b,4)} offset:{1024*b}")
    K.wait_vm(tkx[0])
    arrive(C_2)
    if f2: stamp("kv_b")
    await_(C_2, 4)
    if f2: stamp("kv_c")
    for hb in range(2):
        for g in range(4): K(f"ds_read_b128 {vr(V_P+16*hb+4*g,4)}, v{t1} offset:{8192*g + 1024*hb}")
    arrive(C_3)
    if f2: stamp("kv_d")
    for hb in range(2):
        K(f"s_waitcnt lgkmcnt({5 - 4*hb})")
        B = V_P + 16*hb
        for e in (0, 2): padd(B+e, B+e, B+4+e, pkq); padd(B+8+e, B+8+e, B+12+e, pkq)
        for e in (0, 2): padd(B+e, B+e, B+8+e, pkq)
        if am and hb == 1: K(f"s_bitcmp1_b32 s{S_A}, 0"); K("s_cselect_b32 exec_hi, 0, -1")
        for e in range(x_at): K(f"buffer_atomic_add_f32 v{B+e}, v{A_L4}, {srd(R_WS)}, s{S_HB} offen offset:{1024*hb + 256*e}")
        if am and hb == 1: K("s_mov_b32 exec_hi, -1")
    stamp("kv_st")
    def hook(ks):
        if ks == 22: arrive(C_Q)
        if ks == kvf:
            K("s_waitcnt vmcnt(0)")
            signal(S_FL, 16)
            stamp("kv_pub")
    gemm_qkv([(L_Q, V_ACC, False)], hook)
    K(f"v_cvt_pk_bf16_f32 v{t0}, v{V_ACC+12}, v{V_ACC+12}")
    featmap()
    K(f"v_lshlrev_b32 v{t0}, 16, v{t0}")
    K(f"v_mul_f32 v{t0}, s{S_K}, v{t0}"); K(f"v_exp_f32 v{t0}, -v{t0}"); K(f"v_add_f32 v{t0}, 1.0, v{t0}"); K(f"v_rcp_f32 v{t0}, v{t0}")
    K(f"v_cvt_pk_bf16_f32 v{t0}, v{t0}, v{t0}"); K(f"v_lshlrev_b32 v{A_G}, 16, v{t0}")
    K("s_mov_b32 exec_lo, 0")
    K(f"buffer_store_dword v{A_G}, v{A_L4}, {srd(R_WS)}, s{S_XB} offen sc1")
    K("s_mov_b32 exec_lo, -1")
    stamp("q_gemm")
    softmax(pkq)
    stamp("sm_q")
    poll_issue(FL_K)
    poll_check(FL_K)
    stamp("kv_seen")
    for e in range(8): K(f"buffer_load_dword v{V_P+e}, v{A_L4}, {srd(R_WS)}, s{S_HB} offen offset:{256*e} sc1")
    F = V_W
    K(f"s_lshl_b32 s{T}, s{S_A}, 10"); K(f"v_add_u32 v{t1}, {L_KVF}, v{V_L16}"); K(f"v_add_u32 v{t0}, s{T}, v{t1}")
    K("s_waitcnt vmcnt(0)")
    stamp("kv_landed")
    for e in range(4): K(f"v_cvt_pk_bf16_f32 v{F+e}, v{V_P+2*e}, v{V_P+2*e+1}")
    K(f"ds_write_b128 v{t0}, {vr(F,4)}")
    arrive(C_4)
    await_(C_4, 4)
    if f2: stamp("o_a")
    for f in range(4): K(f"ds_read_b128 {vr(F+4*f,4)}, v{t1} offset:{1024*f}")
    N = V_ACC
    for f in range(4):
        K(f"s_waitcnt lgkmcnt({3-f})")
        mfma(N, F + 4*f, V_PHI + 4*f, "0" if f == 0 else None)
    K(f"v_cvt_pk_bf16_f32 v{t0}, v{N+12}, v{N+12}")
    for e in range(8): K(f"v_cvt_pk_bf16_f32 v{F+e}, v{N+2*e}, v{N+2*e+1}")
    K(f"v_lshlrev_b32 v{t0}, 16, v{t0}")
    K(f"v_add_f32 v{t0}, {f2u(1e-6):#x}, v{t0}")
    K(f"v_cvt_pk_bf16_f32 v{t0}, v{t0}, v{t0}"); K(f"v_lshlrev_b32 v{t0}, 16, v{t0}")
    K(f"v_rcp_f32 v{t0}, v{t0}")
    for e in range(4):
        K(f"v_lshlrev_b32 v{N+2*e}, 16, v{F+e}"); K(f"v_and_b32 v{N+2*e+1}, 0xffff0000, v{F+e}")
    K(f"v_mul_f32 v{t0}, v{t0}, v{A_G}"); K(f"v_mov_b32 v{t1}, v{t0}")
    for e in range(4, 8):
        K(f"v_lshlrev_b32 v{N+2*e}, 16, v{F+e}"); K(f"v_and_b32 v{N+2*e+1}, 0xffff0000, v{F+e}")
    K(f"v_permlane32_swap_b32 v{t1}, v{t0}")
    for e in range(0, 16, 2): pscale(N+e, t0, pkq)
    for e in range(8): K(f"v_cvt_pk_bf16_f32 v{F+e}, v{N+2*e}, v{N+2*e+1}")
    K(f"v_cndmask_b32 v{F+6}, v{F+6}, 0, {UPM}"); K(f"v_cndmask_b32 v{F+7}, v{F+7}, 0, {UPM}")
    K(f"buffer_store_dwordx4 {vr(F,4)}, v{V_L16}, {srd(R_WS)}, s{S_OB} offen sc1")
    K(f"buffer_store_dwordx4 {vr(F+4,4)}, v{V_L16}, {srd(R_WS)}, s{S_OB} offen offset:1024 sc1")
    if f2: stamp("o_b")
    K("s_waitcnt vmcnt(0)")
    signal(S_FL2, 7)
    stamp("o_pub")
    K(f"s_cmp_eq_u32 s{S_ACT}, 0")
    K.branch("s_cbranch_scc1 L_fin")
    K.branch("s_branch L_red")

    K.label("L_M")
    if prioM: K(f"s_setprio {prioM}")
    K("s_waitcnt lgkmcnt(0)")
    if stamps: K(f"v_writelane_b32 v{V_STAMP}, s{S_ST}, {STAMP_IDS.setdefault('start', len(STAMP_IDS))}")
    if wso: K(f"s_add_u32 s{P_WS}, s{P_WS}, {wso << 20}"); K(f"s_addc_u32 s{P_WS+1}, s{P_WS+1}, 0")
    K(f"s_load_dword s{S_E}, {sp(P_WS)}, {WS_EPOCH}")
    mksrd(R_T, P_PHI, 16*1568)
    K(f"s_mul_i32 s{T}, s{S_J}, 1568"); K(f"s_mul_i32 s{T+1}, s{S_A}, 400"); K(f"s_add_u32 s{T}, s{T}, s{T+1}"); K(f"s_add_u32 m0, s{T+1}, {L_PHI}")
    K("s_mov_b64 exec, 0x1ffffff")
    K(f"buffer_load_dwordx4 v{V_L16}, {srd(R_T)}, s{T} offen lds")
    K("s_mov_b64 exec, -1")
    K(f"v_mov_b32 v{V_CNT}, {L_CNT}")
    K(f"v_mov_b32 v{t0}, 0"); K(f"v_lshl_add_u32 v{t1}, v{V_LANE}, 2, v{V_CNT}"); K(f"ds_write_b32 v{t1}, v{t0}")
    K(f"s_cmp_lt_u32 s{S_J}, 14")
    K.branch("s_cbranch_scc1 L_mset")
    vm_m = K.vm
    RB = 96
    K0 = S_XB
    mksrd(R_T, P_WQKV, 448*2688)
    K(f"s_lshl_b32 s{S_FL}, s{S_MT}, 1"); K(f"s_add_u32 s{S_FL}, s{S_FL}, s{S_J}"); K(f"s_sub_u32 s{S_FL}, s{S_FL}, 14")
    K(f"s_mul_i32 s{K0}, s{S_FL}, 14"); K(f"s_lshl_b32 s{T+5}, s{S_A}, 1"); K(f"s_add_u32 s{K0}, s{K0}, s{T+5}")
    K(f"v_lshrrev_b32 v{t0}, 3, v{V_LANE}"); K(f"v_bfe_u32 v{t1}, v{V_LANE}, 2, 1"); K(f"v_and_b32 v{t2}, 3, v{V_LANE}")
    K(f"v_mul_u32_u24 v{t3}, 56, v{t0}"); K(f"v_mul_u32_u24 v{t4}, 2688, v{t1}"); K(f"v_add_u32 v{t3}, v{t3}, v{t4}")
    K(f"v_lshl_add_u32 v{t3}, v{t2}, 4, v{t3}")
    K(f"s_mul_i32 s{T+5}, s{K0}, 2688"); K(f"v_lshlrev_b32 v{t4}, 1, v{t1}"); K(f"s_lshl_b32 s{T+6}, s{K0}, 1")
    tkl = {}
    if fine: stamp("rp_0")
    K(f"s_add_u32 s{T+7}, s{T+5}, {8*2688}"); K(f"s_cmp_eq_u32 s{S_A}, 3"); K(f"s_cselect_b32 s{T+7}, 0x7000000, s{T+7}"); K(f"s_cselect_b32 s{S_CH}, s{T+7}, 512")
    def rp_load(q): tkl[q] = K(f"buffer_load_dwordx4 {vr(RB+4*q,4)}, v{t3}, {srd(R_T)}, s{T+5 if q < 6 else T+7} offen offset:{448*(q%6)}")
    for q in (2, 3, 4, 5, 8, 9, 10, 11): rp_load(q)
    mksrd(R_X, P_GATE, 896)
    K(f"buffer_load_ushort v{RB+48}, v{t4}, {srd(R_X)}, s{T+6} offen"); K(f"buffer_load_ushort v{RB+49}, v{t4}, {srd(R_X)}, s{T+6} offen offset:16")
    for q in (0, 1, 6, 7): rp_load(q)
    mksrd(R_WS, P_WS, WS_SIZE)
    K(f"s_mov_b32 s{T+6}, 86016"); K(f"v_mul_lo_u32 v{RB+50}, v{t0}, s{T+6}"); K(f"v_and_b32 v{t1}, 7, v{V_LANE}")
    K(f"v_lshl_add_u32 v{RB+50}, v{t1}, 4, v{RB+50}")
    K(f"v_cmp_eq_u32 vcc, 3, v{t2}")
    K(f"s_lshl_b32 s{K0}, s{K0}, 6"); K(f"s_add_u32 s{K0}, s{K0}, {WS_WQ}")
    def rp_store(q):
        n, p, hg = q // 6, (q % 6) // 2, q % 2; b = RB + 4*q
        K.wait_vm(tkl[q])
        K(f"v_cndmask_b32 v{b+2}, v{b+2}, v{RB+48+n}, vcc" if p == 0 else f"v_cndmask_b32 v{b+2}, v{b+2}, 0, vcc")
        K(f"v_cndmask_b32 v{b+3}, v{b+3}, 0, vcc")
        K(f"s_add_u32 s{T+6}, s{K0}, {p*28672 + hg*8*86016}")
        if n: K(f"s_add_u32 s{T+6}, s{T+6}, s{S_CH}")
        return K(f"buffer_store_dwordx4 {vr(b,4)}, v{RB+50}, {srd(R_WS)}, s{T+6} offen sc1")
    for e in range(4): K(f"v_mov_b32 v{RB+52+e}, 0")
    K(f"s_lshl_b32 s{T+5}, s{S_FL}, 2"); K(f"s_add_u32 s{T+5}, s{T+5}, s{S_A}"); K(f"s_lshl_b32 s{T+7}, s{T+5}, 12"); K(f"s_lshl_b32 s{T+5}, s{T+5}, 10")
    K(f"s_add_u32 s{T+5}, s{T+5}, {WS_KVP}"); K(f"s_add_u32 s{T+7}, s{T+7}, {WS_CN}"); K(f"v_lshlrev_b32 v{t0}, 7, v{V_LANE}")
    K(f"buffer_store_dwordx4 {vr(RB+52,4)}, v{V_L16}, {srd(R_WS)}, s{T+5} offen sc1")
    K("s_mov_b32 exec_hi, 0")
    K(f"buffer_store_dword v{RB+52}, v{t0}, {srd(R_WS)}, s{T+7} offen sc1")
    K("s_mov_b32 exec_hi, -1")
    K(f"s_lshl_b32 s{S_FL}, s{S_FL}, 7"); K(f"s_add_u32 s{S_FL}, s{S_FL}, {WS_RPF}"); K(f"s_add_u32 s{S_FL2}, s{S_FL}, 4096")
    K(f"s_cmp_eq_u32 s{S_A}, 3"); K(f"s_cselect_b32 s{S_FL}, s{S_FL}, 0x7000000"); K(f"s_cselect_b32 s{S_FL2}, s{S_FL2}, 0x7000000")
    K("s_waitcnt lgkmcnt(0)")
    settag()
    for q in (2, 3, 4, 5, 8, 9, 10, 11): tk1 = rp_store(q)
    for q in (0, 1, 6, 7): rp_store(q)
    if fine: stamp("rp_st")
    K("s_barrier")
    K.wait_vm(tk1)
    K("s_barrier")
    flag(S_FL)
    stamp("rp_pub")
    K("s_waitcnt vmcnt(1)")
    arrive(C_5); await_(C_5, 4)
    flag(S_FL2)
    arrive(C_E); arrive(C_G)
    K("s_setprio 0")
    K.vm = vm_m
    K.label("L_mset")
    if allpf:
        mksrd(R_X, P_X, 2048*896); mksrd(R_W1, P_W1, 448*3584)
        K(f"s_lshl_b32 s{T+3}, s2, 2"); K(f"s_add_u32 s{T+3}, s{T+3}, s{S_A}")
        K(f"s_mul_i32 s{T}, s{T+3}, {14*128}"); K(f"s_mul_i32 s{T+1}, s{T+3}, {13*128}"); K(f"v_lshlrev_b32 v{t0}, 7, v{V_LANE}")
        K("s_mov_b64 exec, 0x3fff")
        if allpf & 1: K(f"buffer_load_dword v{V_POLL}, v{t0}, {srd(R_X)}, s{T} offen")
        K("s_mov_b64 exec, 0x1fff")
        if allpf & 2: K(f"buffer_load_dword v{V_POLL}, v{t0}, {srd(R_W1)}, s{T+1} offen")
        K("s_mov_b64 exec, -1")
    if spf:
        K(f"s_lshl_b32 s{T+3}, s2, 2"); K(f"s_add_u32 s{T+3}, s{T+3}, s{S_A}")
        K(f"s_mul_i32 s{T}, s{T+3}, {12*128 + 32}"); K(f"s_mul_i32 s{T+1}, s{T+3}, {3*128 + 8}")
        for q in range(13): K(f"s_load_dword s{S_CNT}, {sp(P_W2)}, s{T} offset:{min(128*q, 12*128 + 28)}")
        K("s_waitcnt lgkmcnt(10)")
        for q in range(4): K(f"s_load_dword s{S_CNT}, {sp(P_WO)}, s{T+1} offset:{min(128*q, 3*128 + 4)}")
    mksrd(R_WS, P_WS, WS_SIZE); mksrd(R_WO, P_WO, 448*896); mksrd(R_OUT, P_OUT, 2048*896)
    p2setup()
    K(f"s_mul_i32 s{T}, s{S_ROW}, {112*1024}"); K(f"s_add_u32 s{T}, s{T}, {0x7000000 if x_noh else WS_H}")
    K(f"s_lshl_b32 s{S_HB}, s{T+4}, 12"); K(f"s_add_u32 s{S_HB}, s{S_HB}, s{T}")
    K(f"s_lshl_b32 s{S_HB3}, s{T+2}, 12"); K(f"s_add_u32 s{S_HB3}, s{S_HB3}, s{T}")
    BF1, BF2, BONE = M_AR + 80, 128, 124
    for r in list(range(BF1, BF1 + 16)) + list(range(BONE, BF2 + 8)): K(f"v_mov_b32 v{r}, 0")
    K(f"v_lshlrev_b32 v{t0}, 1, v{V_LANE}")
    K("s_mov_b32 exec_hi, 0")
    K(f"v_mov_b32 v{BONE}, 0x3f80")
    mksrd(R_T, P_B1, 3584)
    for p in range(4): K(f"buffer_load_ushort v{BF1+4*p}, v{t0}, {srd(R_T)}, s{S_W1B} offen offset:{64*p}")
    mksrd(R_T, P_B2, 896)
    K(f"s_lshl_b32 s{T}, s{S_CT}, 7"); K(f"s_lshl_b32 s{T+1}, s{S_A}, 10"); K(f"s_add_u32 s{T}, s{T}, s{T+1}")
    for p in range(2): tk_b2 = K(f"buffer_load_ushort v{BF2+4*p}, v{t0}, {srd(R_T)}, s{T} offen offset:{64*p}")
    K("s_mov_b32 exec_hi, -1")
    K(f"s_lshl_b32 s{T}, s{S_ROW}, 1"); K(f"s_add_u32 s{T}, s{T}, s{S_A}")
    K(f"s_lshl_b32 s{T+1}, s{S_CT}, 7")
    K(f"s_lshl_b32 s{S_PE}, s{T}, 11"); K(f"s_add_u32 s{S_PE}, s{S_PE}, s{T+1}"); K(f"s_add_u32 s{S_PE}, s{S_PE}, {WS_HF}")
    K(f"s_lshl_b32 s{S_PO}, s{T}, 10"); K(f"s_add_u32 s{S_PO}, s{S_PO}, s{T+1}"); K(f"s_add_u32 s{S_PO}, s{S_PO}, {WS_OF}")
    K(f"s_lshl_b32 s{T}, s{S_ROW}, 4"); K(f"s_lshl_b32 s{T+1}, s{S_A}, 2"); K(f"s_add_u32 s{S_OB}, s{T+1}, s{T}")
    FL_E, FL_L, FL_O = (S_PE, 0, 6), (S_PE, 1024, 8), (S_PO, 0, 8)
    K(f"s_lshl_b32 s{T}, s{S_MT}, 2"); K(f"s_add_u32 s{T}, s{T}, s{S_A}"); K(f"s_mul_i32 s{S_RS}, s{T}, 112")
    K(f"s_lshl_b32 s{T+1}, s{S_J}, 3"); K(f"s_add_u32 s{S_RS}, s{S_RS}, s{T+1}"); K(f"s_lshl_b32 s{S_RS}, s{S_RS}, 10"); K(f"s_add_u32 s{S_RS}, s{S_RS}, {WS_H}")
    K(f"s_lshr_b32 s{T}, s{T}, 1"); K(f"s_lshl_b32 s{T}, s{T}, 13"); K(f"s_add_u32 s{T}, s{T}, {WS_HF}")
    K(f"s_mul_i32 s{T+1}, s{S_J}, {74*8}"); K(f"s_and_b32 s{S_FL}, s{T+1}, 0xf800"); K(f"s_add_u32 s{S_FL}, s{S_FL}, s{T}")
    K(f"s_add_u32 s{T+1}, s{T+1}, {37*8}"); K(f"s_and_b32 s{S_FL2}, s{T+1}, 0xf800"); K(f"s_add_u32 s{S_FL2}, s{S_FL2}, s{T}"); K(f"s_add_u32 s{S_FL2}, s{S_FL2}, 1024")
    K(f"s_lshr_b32 s{T+1}, {(1 << 3) | (1 << 10)}, s{S_J}"); K(f"s_and_b32 s{T+1}, s{T+1}, 1"); K(f"s_lshl_b32 s{T+1}, s{T+1}, 10"); K(f"s_add_u32 s{S_FL}, s{S_FL}, s{T+1}")
    K(f"s_cmp_ge_u32 s{S_J}, 14"); K(f"s_cselect_b32 s{S_FL2}, 0x7000000, s{S_FL2}")
    K(f"v_add_u32 v{M_L16B}, {112*1024}, v{V_L16}")
    MP = M_AR + 40
    K(f"v_lshlrev_b32 v{MP}, 7, v{V_LANE}")
    K(f"s_lshl_b32 s{T+3}, s2, 2"); K(f"s_add_u32 s{T+3}, s{T+3}, s{S_A}")
    K(f"s_mul_i32 s{S_XB}, s{T+3}, {13*128}"); K(f"s_lshl_b32 s{S_M0}, s{T+3}, 9")
    def mall_pf():
        K("s_mov_b64 exec, 0x1fff")
        K(f"buffer_load_dword v{V_POLL}, v{MP}, {srd(R_W2)}, s{S_XB} offen")
        K("s_mov_b64 exec, 15")
        K(f"buffer_load_dword v{V_POLL}, v{MP}, {srd(R_WO)}, s{S_M0} offen")
        K("s_mov_b64 exec, -1")
    if mpf == 1: mall_pf()
    if tlb:
        l = newl("tlb")
        K(f"s_cmp_lg_u32 s{S_A}, 1")
        K.branch(f"s_cbranch_scc1 {l}")
        K(f"v_lshlrev_b32 v{t0}, {tlb}, v{V_LANE}")
        K(f"buffer_load_dword v{V_POLL}, v{t0}, {srd(R_WS)}, 0 offen offset:2048"); K.vm -= 1
        K(f"buffer_load_dword v{V_POLL}, v{t0}, {srd(R_OUT)}, 0 offen"); K.vm -= 1
        K.label(l)
    xfrag_addr(M_AX)
    lanepart()
    K(f"v_lshl_add_u32 v{t0}, v{t2}, 3, v{t3}"); K(f"v_lshl_add_u32 v{t0}, v{t0}, 8, v{t4}"); K(f"v_lshl_add_u32 v{t0}, v{t3}, 6, v{t0}")
    K(f"v_add_u32 v{M_AW}, 16384, v{t0}")
    for p in range(1, 4): K(f"v_xor_b32 v{M_AW+p}, {64*p}, v{M_AW}")
    AB = M_AB
    K(f"v_lshl_add_u32 v{t0}, v{t2}, 2, v{t3}"); K(f"v_lshl_add_u32 v{t0}, v{t0}, 7, v{t4}"); K(f"v_bfe_u32 v{t1}, v{V_LANE}, 3, 1"); K(f"v_lshl_add_u32 v{t0}, v{t1}, 6, v{t0}")
    K(f"v_add_u32 v{AB}, s{S_M02}, v{t0}"); K(f"v_xor_b32 v{AB+1}, 64, v{AB}")
    K(f"v_add_u32 v{AB+2}, 65536, v{AB}"); K(f"v_add_u32 v{AB+3}, 65536, v{AB+1}")
    K(f"v_lshlrev_b32 v{t0}, 9, v{t2}"); K(f"v_sub_u32 v22, v{AB+2}, v{t0}"); K(f"v_sub_u32 v23, v{AB+3}, v{t0}")
    box = {}
    K(f"s_cmp_ge_u32 s{S_J}, 14")
    K.branch("s_cbranch_scc1 L_nof")
    vm_nof = K.vm
    K("s_waitcnt lgkmcnt(0)")
    settag()
    if fine: stamp("M_rdy")
    WR, XR = M_BH, M_BH + 4*G
    tk = {}
    def rdg(g):
        ks, p = g // 4, g % 4
        t, ksl = ks // 4, ks % 4
        uo = (t % 2) * 32768
        if p == 0 and ksl == 0:
            shift(range(M_AX, M_AX + 8), SH[t])
            if t == 3: K.wait_vm(tk_b2)
            if t < 6: K("s_barrier")
            else:
                l = newl("s6")
                K.wait_lg(box['cs'])
                K(f"v_cmp_ne_u32 vcc, 4, v{t4}")
                K(f"s_cbranch_vccz {l}")
                lgs = K.lg
                await_(C_S, 4)
                K.lg = lgs
                K.raw(f"{l}:")
        if p == 0: K(f"ds_read_b128 {vr(XR + 4*(ks % 3), 4)}, v{M_AX+ksl} offset:{uo}")
        for r in range(2):
            tk[g] = K(f"ds_read_b64_tr_b16 {vr(WR + 4*(g % G) + 2*r, 2)}, v{M_AW+p} offset:{uo + (16*ksl + 4*r)*256}")
    for g in range(G): rdg(g)
    for g in range(112):
        K.wait_lg(tk[g])
        mfma(M_ACC + 16*(g % 4), WR + 4*(g % G), XR + 4*((g // 4) % 3), "0" if g < 4 else None, x_m16 & 1)
        if 52 <= g < 56: mfma(M_ACC + 16*(g % 4), BF1 + 4*(g % 4), BONE)
        if g + G < 112: rdg(g + G)
        if g + G == 112: arrive(C_E)
        if g + G + 3 == 96: box['cs'] = K(f"ds_read_b32 v{t4}, v{V_CNT} offset:{C_S}")
        if mpf > 1 and g == mpf: mall_pf()
        if hpt and g == hpt: K(f"buffer_load_dword v{V_POLL}, v{MP}, {srd(R_WS)}, s{S_RS} offen sc1")
    stamp("ffn1")
    K(f"s_setprio {prioG}")
    tk = {}
    def rdb(ks, part=3):
        r, ksl = ks // 4, ks % 4
        b = M_BH + 8 * (ks % 8)
        u = RUNIT[r]
        if ksl == 0 and r >= (4 if aw2 == 3 else 2) and part & 1: K.wait_vm(tk_r[r])
        for pp in range(2):
            for h in range(2):
                if not part & (1 << pp): continue
                if r < 7:
                    tk[ks] = K(f"ds_read_b64_tr_b16 {vr(b + 4*pp + 2*h, 2)}, v{AB + pp + (2 if u >= 2 else 0)} offset:{(u%2)*32768 + (16*ksl + 8*h)*128}")
                else:
                    hh, sx = (ks % 4) // 2, ks % 2
                    tk[ks] = K(f"ds_read_b64_tr_b16 {vr(b + 4*pp + 2*h, 2)}, v{(22 if (sx == 1 and h == 1) else AB + 2) + pp} offset:{(u%2)*32768 + (28*hh + 16*sx + 8*h)*128}")
    def pull():
        await_(C_B, 4)
        for e in range(12): K(f"v_mov_b32 v{BF1+e}, v{BONE+e}")
        for ks in range(8):
            if ks >= 3: K.wait_lg(tk[ks - 3])
            rdb(ks)
        arrive(C_P)
    cc = -2.0 * 0.7978845608028654 * 1.4426950408889634
    K(f"v_mov_b32 v{t0}, {f2u(cc):#x}"); K(f"v_mov_b32 v{t1}, 1.0"); K(f"s_mov_b32 s{S_K}, {f2u(cc*0.044715):#x}"); K(f"s_mov_b32 s{S_K+1}, {f2u(cc*0.044715):#x}")
    tkh = {}
    for g in range(8):
        a = M_ACC + 8*g; tt = M_AR + 8*(g % 2); o = M_AR + 48 + 4*g
        if aw2 == 4 and g == md:
            await_(C_E, 8)
            K(f"s_cmp_eq_u32 s{S_ACT}, 1"); K(f"s_cselect_b32 s{R_W2+2}, s{R_W2+2}, 0")
            pend.extend(g_w2(0) + g_w2(1))
        if x_nog: pass
        elif g < pkg:
            for e in range(0, 8, 2): K(f"v_pk_mul_f32 {vr(tt+e,2)}, {vr(a+e,2)}, {vr(a+e,2)}")
            for e in range(0, 8, 2): K(f"v_pk_fma_f32 {vr(tt+e,2)}, {vr(tt+e,2)}, {sp(S_K)}, {vr(t0,2)} op_sel_hi:[1,1,0]")
            drip(1)
            for e in range(0, 8, 2): K(f"v_pk_mul_f32 {vr(tt+e,2)}, {vr(a+e,2)}, {vr(tt+e,2)}")
            for e in range(8):
                K(f"v_exp_f32 v{tt+e}, v{tt+e}")
                if e == 2: drip(1)
            for e in range(0, 8, 2): K(f"v_pk_add_f32 {vr(tt+e,2)}, {vr(tt+e,2)}, {vr(t0,2)} op_sel:[0,1] op_sel_hi:[1,1]")
            drip(1)
            for e in range(8): K(f"v_rcp_f32 v{tt+e}, v{tt+e}")
            drip(1 if g < 7 else 99)
            for e in range(0, 8, 2): K(f"v_pk_mul_f32 {vr(tt+e,2)}, {vr(a+e,2)}, {vr(tt+e,2)}")
        else:
            for e in range(8): K(f"v_mul_f32 v{tt+e}, v{a+e}, v{a+e}")
            for e in range(8): K(f"v_fma_f32 v{tt+e}, v{tt+e}, s{S_K}, v{t0}")
            drip(1)
            for e in range(8): K(f"v_mul_f32 v{tt+e}, v{a+e}, v{tt+e}")
            for e in range(8):
                K(f"v_exp_f32 v{tt+e}, v{tt+e}")
                if e == 2: drip(1)
            for e in range(8): K(f"v_add_f32 v{tt+e}, 1.0, v{tt+e}")
            drip(1)
            for e in range(8): K(f"v_rcp_f32 v{tt+e}, v{tt+e}")
            drip(1 if g < 7 else 99)
            for e in range(8): K(f"v_mul_f32 v{tt+e}, v{a+e}, v{tt+e}")
        for e in range(4): K(f"v_cvt_pk_bf16_f32 v{o+e}, v{tt+2*e}, v{tt+2*e+1}")
        if g == gw: arrive(C_G)
        if aw2 == 3 and g == gp: pull()
        if (g + 1) % sb == 0:
            K("s_setprio 3")
            for x in range(g + 1 - sb, g + 1):
                if x == 4: K(f"s_add_u32 s{S_RS}, s{S_RS}, 4096")
                tkh[x] = K(f"buffer_store_dwordx4 {vr(M_AR + 48 + 4*x,4)}, v{V_L16}, {srd(R_WS)}, s{S_RS} offen offset:{1024*(x%4)} " + ["sc1", "sc1 nt", "sc0 sc1"][hst])
            if g < 7: K(f"s_setprio {prioG}")
    stamp("gelu_v")
    await_(C_0, 4)
    K.wait_vm(tkh[3]); signal(S_FL, 7)
    stamp("gelu")
    K(f"s_cmp_eq_u32 s{S_ACT}, 1")
    K.branch("s_cbranch_scc1 L_p2")
    K("s_waitcnt vmcnt(0)")
    signal(S_FL2, 7)
    def l2warm(first, n):
        K(f"s_lshr_b32 s{T}, s2, 3"); K(f"s_and_b32 s{T}, s{T}, 3"); K(f"s_lshl_b32 s{T}, s{T}, 2"); K(f"s_add_u32 s{T}, s{T}, s{S_A}"); K(f"s_lshl_b32 s{T}, s{T}, 13")
        K(f"v_lshlrev_b32 v{t0}, 7, v{V_LANE}")
        for k in range(n):
            K(f"s_add_u32 s{T+1}, s{T}, {(first + 1024*k)*128}")
            K(f"buffer_load_dword v{t1}, v{t0}, {srd(R_W2)}, s{T+1} offen")
    if l2w & 1:
        l2warm(0, 13)
        for k in range(4):
            K(f"s_add_u32 s{T+1}, s{T}, {1024*k*128}")
            K(f"buffer_load_dword v{t1}, v{t0}, {srd(R_WO)}, s{T+1} offen")
    K.branch("s_branch L_fin")
    K.label("L_nof")
    K.vm = vm_nof
    if hlp:
        if hw == 1: await_(C_E, 8, 2)
        if hw == 2: await_(C_0, 4, 2)
        if mpf > 1: mall_pf()
        K(f"s_mul_i32 s{T}, s{S_CT}, {111*128}")
        K("s_mov_b32 exec_hi, 0xffffff")
        for r in range(h0, 7):
            for q in range(2):
                K(f"s_add_u32 s{T+1}, s{S_W2B3 if r == 3 else S_W2B}, {(0 if r == 3 else (2*r % 7)*64*896) + q*56*128}"); K(f"s_add_u32 s{T+1}, s{T+1}, s{T}")
                K(f"buffer_load_dword v{V_POLL}, v{MP}, {srd(R_W2)}, s{T+1} offen")
                K(f"s_waitcnt vmcnt({hd})")
        K(f"s_lshl_b32 s{T}, s{S_CT}, 2"); K(f"s_add_u32 s{T}, s{T}, s{S_A}"); K(f"s_mul_i32 s{T}, s{T}, {196*128}")
        K("s_mov_b32 exec_hi, 0x1ffff")
        for q in range(4):
            K(f"buffer_load_dword v{V_POLL}, v{MP}, {srd(R_WO)}, s{T} offen"); K(f"s_add_u32 s{T}, s{T}, {49*128}")
            K(f"s_waitcnt vmcnt({hd})")
        K("s_mov_b64 exec, -1")
        stamp("hlp_done")
        K.branch("s_branch L_fin")
    if mpf == -2: await_(C_E, 8, 2)
    if mpf == -1: await_(C_0, 4, 2)
    if mpf < 0:
        K(f"s_lshl_b32 s{T+3}, s2, 2"); K(f"s_add_u32 s{T+3}, s{T+3}, s{S_A}")
        K(f"s_mul_i32 s{T}, s{T+3}, {98*128}"); K(f"s_mul_i32 s{T+1}, s{T+3}, {25*128}")
        K(f"buffer_load_dword v{V_POLL}, v{MP}, {srd(R_W2)}, s{T} offen")
        K(f"s_add_u32 s{T}, s{T}, {64*128}")
        K("s_mov_b32 exec_hi, 3")
        K(f"buffer_load_dword v{V_POLL}, v{MP}, {srd(R_W2)}, s{T} offen")
        K("s_mov_b64 exec, 0x1ffffff")
        K(f"buffer_load_dword v{V_POLL}, v{MP}, {srd(R_WO)}, s{T+1} offen")
        K("s_mov_b64 exec, -1")
    await_(C_0, 4, 2)
    K("s_waitcnt lgkmcnt(0)")
    settag()
    if mpf > 1: mall_pf()
    if l2w & 2: l2warm(0, 13)
    K("s_waitcnt vmcnt(0)")
    if aw2 == 3: pull()
    if aw2 == 4:
        await_(C_E, 8); run(g_w2(0) + g_w2(1)); K("s_waitcnt vmcnt(0)")

    K.label("L_p2")
    tk_h = K.vm
    def g_wo(hf):
        def step(q):
            def f():
                if q == 0:
                    K(f"s_mul_i32 s{TD}, s{S_A}, {112*896}"); K(f"s_lshl_b32 s{TD+1}, s{S_CT}, 7"); K(f"s_add_u32 s{TD}, s{TD}, s{TD+1}")
                    if hf: K(f"s_add_u32 s{TD}, s{TD}, {56*896}")
                    K(f"s_add_u32 m0, s{S_M02}, {U[RUNIT[7+hf]]}")
                if q == 4: K(f"s_add_u32 s{TD}, s{TD}, {32*896}"); K(f"s_add_u32 m0, s{S_M02}, {U[RUNIT[7+hf]] + 4096}")
                x = K(f"buffer_load_dwordx4 v{V_D2+q%4}, {srd(R_WO)}, s{TD} offen offset:{1024*(q%4)} lds") if 7 < x_skipB else K.vm - 8
                if q == 6: tk_r[7+hf] = x
            return f
        return [step(q) for q in range(7)]
    tk_a = {}
    def lda(ks, part=3):
        b = M_AR + 8 * (ks % NA); r = ks // 4
        if part & 1:
            if ks % 4 == 0: K(f"s_add_u32 s{T+7}, s{S_HB3 if r == 3 else S_HB}, {0 if r == 3 else (2*r % 7)*4096}")
            K(f"buffer_load_dwordx4 {vr(b,4)}, v{V_L16}, {srd(R_WS)}, s{T+7} offen offset:{1024*(ks%4)} sc1")
        if part & 2: tk_a[ks] = K(f"buffer_load_dwordx4 {vr(b+4,4)}, v{M_L16B}, {srd(R_WS)}, s{T+7} offen offset:{1024*(ks%4)} sc1")
    for t2_ in range(2):
        for pp in range(2): mfma(M_ACC + 32*t2_ + 16*pp, (BF1 + 4 if aw2 == 3 else BF2) + 4*pp, BF1 if aw2 == 3 else BONE, "0")
    g0, g1, g2, g3 = g_w2(0), g_w2(1), g_w2(2), g_w2(3)
    if aw2 == 3:
        K.wait_vm(tk_h - 1)
        signal(S_FL2, 7)
        K(f"s_setprio 0")
        stamp("h_pub1")
        poll_issue(FL_E)
        poll_check(FL_E)
        stamp("hE_seen")
        for ks in range(pre): lda(ks)
        g3 = []
    elif aw2:
        K.wait_vm(tk_h - 1)
        signal(S_FL2, 7)
        K(f"s_setprio 0")
        stamp("h_pub1")
        if hfirst:
            poll_issue(FL_E)
            if not x_noE: poll_check(FL_E)
            stamp("hE_seen")
            for ks in range(pre): lda(ks)
        if aw2 != 4: await_(C_B, 4)
        stamp("B_seen")
        if jit:
            for ks in range(8):
                if ks >= 3: K.wait_lg(tk[ks - 3])
                rdb(ks)
        else:
            for ks in range(3): rdb(ks)
            K.wait_lg(tk[0]); rdb(3)
            K.wait_lg(tk[3])
            for q in range(8):
                g2[q]()
                if q < 4:
                    if q == 3: K.wait_lg(tk[4])
                    rdb(4 + q)
        K("s_waitcnt lgkmcnt(0)")
        if not hfirst:
            poll_issue(FL_E)
            run(g3); g3 = []
            poll_check(FL_E)
            stamp("hE_seen")
            for ks in range(pre): lda(ks)
    else:
        await_(C_E, 8)
        for q in range(8):
            g0[q]()
        K.wait_vm(tk_h - 1)
        signal(S_FL2, 7)
        K(f"s_setprio 0")
        stamp("h_pub1")
        poll_issue(FL_E)
        run(g1)
        poll_check(FL_E)
        stamp("hE_seen")
        if jit:
            for ks in range(8):
                if ks < pre: lda(ks)
                if ks % 4 == 0: K.wait_vm(tk_r[ks // 4])
                if ks >= 3: K.wait_lg(tk[ks - 3])
                rdb(ks)
            assert pre <= 8
        else:
            for ks in range(4): lda(ks)
            K.wait_vm(tk_r[0])
            for ks in range(4):
                if ks == 3: K.wait_lg(tk[0])
                rdb(ks); lda(4 + ks)
            K.wait_vm(tk_r[1]); K.wait_lg(tk[3])
            for q in range(8):
                g2[q]()
                if q < 4:
                    if q == 3: K.wait_lg(tk[4])
                    rdb(4 + q)
        K("s_waitcnt lgkmcnt(0)")
    stamp("p2_prep")
    poll_issue(FL_L)
    sched = []
    if jit:
        for k in range(pre, 28):
            for p in (1, 2): sched.append((k, max(k - NA + 1, c0 + 1 if k >= 12 else 0), lambda k=k, p=p: lda(k, p), 0))
        early = {2: 0, 3: 0, 4: c3 + 1, 5: 12, 6: 16, 7: cq + 1, 8: 20}
        for r in range(2, 9):
            for q, f in enumerate(g_w2(r) if r < 7 else g_wo(r - 7)): sched.append((4*r - bl + q // 2 + 0.5, early[r], f, r))
        sched.sort(key=lambda z: z[0])
    else:
        for ks in range(pre if aw2 else 8, 12): pend.extend([lambda ks=ks: lda(ks, 1), lambda ks=ks: lda(ks, 2)])
        pend.extend(g3)
    def jdrip(ks):
        first = min([z[3] for z in sched if z[3]], default=0)
        for n, (key, e, f, grp) in enumerate(sched):
            if e <= ks and grp in (0, first):
                f(); sched.pop(n); return
    def step(ks, side):
        K.wait_vm(tk_a[ks])
        if ks >= 8: K.wait_lg(tk[ks])
        a = M_AR + 8 * (ks % NA); b = M_BH + 8 * (ks % 8)
        n = 0
        for t2_ in range(2):
            for pp in range(2):
                if not (x_nomf and ks < 28): mfma(M_ACC + 32*t2_ + 16*pp, b + 4*pp, a + 4*t2_, None, x_m16 & 2)
                side(n); n += 1
    nxt = [12]
    def hstep(ks):
        def side(n):
            if n < 2 and ks + 3 >= 8: rdb(ks + 3, 1 << n)
            if jit and sched:
                jdrip(ks)
                if n < rate - 4: jdrip(ks)
            else: drip(2 if len(pend) > 8 else 1)
        step(ks, side)
    def ldo(ks, part):
        b = M_AR + 8 * (ks % NA)
        if part == 0:
            K(f"buffer_load_dword v{t2}, v{t3}, {srd(R_WS)}, s{T+3} offen sc1")
            box['g'] = K(f"buffer_load_dword v{t3}, v{t3}, {srd(R_WS)}, s{T+3} offen offset:2048 sc1")
        if part == 1:
            if ks == 32: K(f"s_add_u32 s{T+4}, s{T+4}, 4096")
            K(f"buffer_load_dwordx4 {vr(b,4)}, v{V_L16}, {srd(R_WS)}, s{T+4} offen offset:{1024*(ks%4)} sc1")
        if part == 2: tk_a[ks] = K(f"buffer_load_dwordx4 {vr(b+4,4)}, v{M_L16B}, {srd(R_WS)}, s{T+4} offen offset:{1024*(ks%4)} sc1")
    olist = lambda: [lambda: ldo(0, 0)] + [lambda k=k, p=p: ldo(k, p) for k in range(28, 36) for p in (1, 2)]
    for ks in range(oc + 1):
        hstep(ks)
        if ks == c0:
            if not x_noE: poll_check(FL_L)
            stamp("hL_seen")
        if ks == 4 and aw2 == 3: await_(C_B2, 4)
        if ks == c3:
            await_(C_3, 4)
            if not jit: pend.extend(g_w2(4))
        if ks == cq:
            await_(C_Q, 4)
            if not jit: pend.extend(g_wo(0))
        if not jit:
            while ks >= c0 and nxt[0] <= ks + NA and nxt[0] < 28:
                pend.extend([lambda k=nxt[0]: lda(k, 1), lambda k=nxt[0]: lda(k, 2)]); nxt[0] += 1
            if ks == 11: pend.extend(g_w2(5))
            if ks == 15: pend.extend(g_w2(6))
            if ks == 19: pend.extend(g_wo(1))
        if ks in (3, 11, 19): stamp(f"p2_k{ks}")
        if ks == oc - 2: poll_issue(FL_O)
    while sched: jdrip(99)
    assert not pend and oc >= 22
    K(f"v_and_b32 v{t3}, 31, v{V_LANE}"); K(f"v_lshlrev_b32 v{t3}, 2, v{t3}")
    K(f"s_lshl_b32 s{T+3}, s{S_OB}, 7"); K(f"s_add_u32 s{T+3}, s{T+3}, {WS_G}")
    K(f"s_lshl_b32 s{T+4}, s{S_OB}, 11"); K(f"s_add_u32 s{T+4}, s{T+4}, {WS_O}")
    K(f"v_add_u32 v{M_L16B}, 32768, v{V_L16}")
    K(f"v_add_u32 v{V_D2}, s{S_M02}, v{V_L16}")
    for q in range(1, 4): K(f"v_xor_b32 v{V_D2+q}, {64*q}, v{V_D2}")
    K("s_waitcnt lgkmcnt(0)")
    K(f"s_cmp_lg_u32 s{PD[0]}, {FL_O[2]}" if not x_noo else "s_cmp_lg_u32 0, 0")
    K.branch("s_cbranch_scc1 L_olate")
    sv, sl = K.vm, K.lg
    stamp("o_early")
    pend.extend(olist())
    for ks in range(oc + 1, 28): hstep(ks)
    drip(99)
    ev, el = K.vm, K.lg
    K.branch("s_branch L_ojoin")
    K.label("L_olate")
    K.vm, K.lg = sv, sl
    for ks in range(oc + 1, 28): hstep(ks)
    poll_issue(FL_O)
    poll_check(FL_O)
    stamp("o_late")
    run(olist())
    assert (ev, el) == (K.vm, K.lg)
    K.label("L_ojoin")
    stamp("p2_h_done")
    tk_g = box['g']
    K.wait_vm(tk_g)
    if f2: stamp("t_g")
    K(f"v_sub_f32 v{t4}, 1.0, v{t2}"); K(f"v_sub_f32 v{t5}, 1.0, v{t3}")
    K(f"v_cvt_pk_bf16_f32 v{t4}, v{t4}, v{t5}"); K(f"v_and_b32 v{t5}, 0xffff0000, v{t4}"); K(f"v_lshlrev_b32 v{t4}, 16, v{t4}")
    if tl:
        for e in range(0, 32, 2): pscale(M_ACC+e, t4, True)
        for ks in range(28, 36):
            K.wait_vm(tk_a[ks] - 1); K.wait_lg(tk[ks])
            a = M_AR + 8 * (ks % NA); b = M_BH + 8 * (ks % 8)
            for pp in range(2):
                mfma(M_ACC + 16*pp, b + 4*pp, a)
                if ks + 3 < 36: rdb(ks + 3, 1 << pp)
                pscale(M_ACC + 32 + 4*(ks - 28) + 2*pp, t5, False)
        K.wait_vm(tk_a[35])
        for ks in range(28, 36):
            a = M_AR + 8 * (ks % NA); b = M_BH + 8 * (ks % 8)
            for pp in range(2):
                mfma(M_ACC + 32 + 16*pp, b + 4*pp, a + 4)
                n = 2*(ks - 28) + pp - 6
                if 0 <= n < 8: K(f"ds_write_b128 v{V_D2 + n%4}, {vr(M_ACC+4*n,4)} offset:{1024*n}")
        for b in range(8): K(f"ds_write_b128 v{V_D2 + b%4}, {vr(M_ACC+32+4*b,4)} offset:{32768 + 1024*b}")
    else:
        for e in range(0, 64, 2): pscale(M_ACC+e, t4 if e < 32 else t5, True)
        for ks in range(28, 36):
            def side(n):
                if n < 2 and ks + 3 < 36: rdb(ks + 3, 1 << n)
            step(ks, side)
        if f2: stamp("t_mf")
        for t2_ in range(2):
            for b in range(8): K(f"ds_write_b128 v{V_D2 + b%4}, {vr(M_ACC+32*t2_+4*b,4)} offset:{32768*t2_ + 1024*b}")
    stamp("p2_done")

    K.label("L_red")
    K(f"v_and_b32 v{t1}, 7, v{V_LANE}"); K(f"v_lshrrev_b32 v{t3}, 3, v{V_LANE}")
    K(f"s_lshl_b32 s{T+1}, s{S_A}, 3"); K(f"v_add_u32 v{t0}, s{T+1}, v{t3}")
    K(f"v_and_b32 v{t2}, 3, v{V_LANE}"); K(f"v_lshlrev_b32 v{t2}, 2, v{t2}"); K(f"v_xor_b32 v{t0}, v{t0}, v{t2}")
    K(f"v_lshlrev_b32 v{t0}, 4, v{t0}"); K(f"v_lshl_add_u32 v{t0}, v{t1}, 10, v{t0}")
    K(f"s_lshr_b32 s{T+2}, s{S_W}, 2"); K(f"s_lshl_b32 s{T}, s{T+2}, 15"); K(f"v_add_u32 v{t0}, s{T}, v{t0}")
    K(f"v_mul_u32_u24 v{t3}, 896, v{t3}"); K(f"v_lshl_add_u32 v{t3}, v{t1}, 4, v{t3}")
    K(f"s_lshl_b32 s{T}, s{S_ROW}, 2"); K(f"s_add_u32 s{T}, s{T}, s{S_W}"); K(f"s_mul_i32 s{T}, s{T}, {8*896}"); K(f"s_lshl_b32 s{T+1}, s{S_CT}, 7"); K(f"s_add_u32 s{T+5}, s{T}, s{T+1}")
    K("s_waitcnt lgkmcnt(0)")
    K("s_barrier")
    if f2: stamp("t_bar")
    R = 160
    for q in range(4):
        K(f"ds_read_b128 {vr(R+8*q,4)}, v{t0} offset:{8192*q}")
        K(f"ds_read_b128 {vr(R+8*q+4,4)}, v{t0} offset:{8192*q + 512}")
    K("s_waitcnt lgkmcnt(4)")
    for e in range(0, 8, 2): padd(R+e, R+e, R+8+e, True)
    K("s_waitcnt lgkmcnt(0)")
    for e in range(0, 8, 2): padd(R+16+e, R+16+e, R+24+e, True)
    for e in range(0, 8, 2): padd(R+e, R+e, R+16+e, True)
    for e in range(4): K(f"v_cvt_pk_bf16_f32 v{R+e}, v{R+2*e}, v{R+2*e+1}")
    K(f"buffer_store_dwordx4 {vr(R,4)}, v{t3}, {srd(R_OUT)}, s{T+5} offen" + ["", " sc1", " nt", " sc0 sc1"][outm])
    if f2: stamp("t_st")
    K(f"s_xor_b32 s{T}, s2, 64"); K(f"s_or_b32 s{T}, s{T}, s{S_W}"); K(f"s_cmp_lg_u32 s{T}, 0")
    K.branch("s_cbranch_scc1 L_fin")
    K(f"s_mov_b32 s{T}, {WS_EPOCH}")
    flag(T)
    K.label("L_fin")
    if stamps:
        K("s_waitcnt vmcnt(0)")
        stamp("end")
        if probe is not None:
            i0 = STAMP_IDS.setdefault('start', len(STAMP_IDS)); i1 = STAMP_IDS.setdefault(probe, len(STAMP_IDS))
            K(f"v_readlane_b32 s{T}, v{V_STAMP}, {i0}"); K(f"v_readlane_b32 s{T+1}, v{V_STAMP}, {i1}")
            K("s_nop 4")
            K(f"s_cmp_eq_u32 s{T+1}, 0"); K(f"s_cselect_b32 s{T+1}, s{T}, s{T+1}")
            if pwg >= 0:
                K(f"s_cmp_lg_u32 s2, {pwg}")
                K.branch("s_cbranch_scc1 L_end")
            K.label("L_probe")
            K("s_sleep 2")
            K(f"s_memrealtime {sp(S_ST)}"); K("s_waitcnt lgkmcnt(0)")
            K(f"s_sub_u32 s{T+2}, s{S_ST}, s{T+1}"); K(f"s_cmp_lt_u32 s{T+2}, {pt}")
            K.branch("s_cbranch_scc1 L_probe")
            K.branch("s_branch L_end")
        K(f"s_lshl_b32 s{T}, s2, 3"); K(f"s_add_u32 s{T}, s{T}, s{S_W}"); K(f"s_lshl_b32 s{T}, s{T}, 8"); K(f"s_add_u32 s{T}, s{T}, {WS_STAMP}")
        K(f"v_lshlrev_b32 v{t0}, 2, v{V_LANE}")
        K(f"buffer_store_dword v{V_STAMP}, v{t0}, {srd(R_WS)}, s{T} offen")
    K.label("L_end")
    K("s_endpgm")
    K.raw(f".fill (28672 + 8192 * {1 if stamps else 0} - (L_end - {NAME})) / 4, 4, 0xbf800000")

    head = f"""; Fused gated mix of hedgehog linear attention and GELU FFN (emitted by a hand-written generator script)
; @launch grid=(256,1,1) block=(512,1,1) lds=163840
.amdgcn_target "amdgcn-amd-amdhsa--gfx950"
.text
.globl {NAME}
.p2align 8
.type {NAME},@function
"""
    tail = f""".section .rodata,"a"
.p2align 6
.amdhsa_kernel {NAME}
  .amdhsa_next_free_vgpr 256
  .amdhsa_next_free_sgpr 102
  .amdhsa_accum_offset 256
  .amdhsa_group_segment_fixed_size 0
  .amdhsa_kernarg_size 104
  .amdhsa_user_sgpr_count 2
  .amdhsa_user_sgpr_kernarg_segment_ptr 1
  .amdhsa_system_sgpr_workgroup_id_x 1
.end_amdhsa_kernel
"""
    return head + K.text() + tail

STAMP_IDS = {}
def parse_opts(argv):
    kw = {}
    for a in argv:
        if a.startswith("-D"):
            k, v = a[2:].split("="); kw[k] = int(v) if v.lstrip("-").isdigit() else v
    return kw
if __name__ == "__main__":
    out = sys.argv[1] if len(sys.argv) > 1 else "k.s"
    open(out, "w").write(gen(**parse_opts(sys.argv)))
```

```python
import sys, struct
from asmlib import Asm

NAME = "gated_mix__linear_kernel_hedgehog__dense_activation_gelu__prompt_kernel"
def f2u(x): return struct.unpack("<I", struct.pack("<f", x))[0]

WS_EPOCH = 0
WS_RPF   = 0x8000
WS_STAMP = 0x10000
WS_G     = 0xA0000
WS_WQ    = 0x100000
WS_KVP   = 0x280000
WS_O     = 0x480000
WS_H     = 0x680000
WS_CN    = 0x300000
WS_HF    = WS_CN
WS_OF    = WS_CN + 2048*128
WS_KVF   = WS_CN + 3072*128
WS_SIZE  = 0xE00000

U = [0, 32768, 65536, 98304, 131072]
L_K, L_V, L_Q = 98304, 126976, 65536
L_MISC = 155648
L_PHI, L_CNT, L_B2, L_B1 = L_MISC, L_MISC + 2048, L_MISC + 2560, L_MISC + 3072
L_KVS = U[3]
L_KVF = L_MISC + 4096
RUNIT = [0, 1, 0, 1, 3, 0, 1, 2, 3]
C_E, C_0, C_1, C_2, C_3, C_4, C_Q, C_G, C_B, C_S, C_5, C_P, C_B2 = 0, 4, 8, 12, 16, 20, 24, 28, 32, 36, 40, 44, 48

P_X, P_WQKV, P_PHI, P_WO, P_W1, P_B1, P_W2 = 16, 18, 20, 22, 26, 28, 30
P_B2, P_GATE, P_OUT, P_WS = 32, 34, 36, 40
R_X, R_W1, R_W2, R_WO, R_WS, R_OUT, R_T = 44, 48, 52, 56, 60, 64, 68
S_MT, S_J, S_W, S_A, S_FL2, S_TAG, S_CH, S_CNT = 72, 73, 74, 75, 76, 78, 77, 100
S_CHO = 80
S_M0 = 87
S_XB, S_W1B = 88, 89
S_T = 90
S_UP = 98
S_E = 42
S_H = S_J
S_CT, S_ROW, S_ACT = 43, 3, 101
S_K = 4
S_ST = 6
S_L28 = 24
S_FL = 8
S_HB, S_W2B, S_OB, S_HB3, S_W2B3, S_M02, S_RS = 9, 10, 11, 12, 13, 14, 15
S_PE, S_P3, S_PO = 34, 35, 38
PD = [16, 17, 18, 19, 20, 21, 22, 23, 26, 27, 28, 29, 30, 31, 32, 33]
def srd(r): return f"s[{r}:{r+3}]"
def sp(r): return f"s[{r}:{r+1}]"

V_LANE, V_L16, V_STAMP, V_TAG, V_POLL, V_CNT = 1, 2, 3, 4, 5, 6
V_T = 8
V_D2 = 18
A_PA, A_AX, A_AD, A_L4, A_PH, A_TR, A_G = 7, 14, 22, 24, 25, 30, 31
V_W, V_P, V_ACC, V_PHI, V_X = 32, 64, 96, 128, 144
A_XD, A_WD, A_QD, A_GW = 64, 68, 72, 16
M_L16B, M_AB = 7, 14
M_ACC, M_BH, M_AR = 24, 88, 152
M_AX, M_AW = 136, 140
NA = 13
def vr(a, n): return f"v[{a}:{a+n-1}]"
UPM = sp(S_UP)
L2E = 1.4426950408889634

def gen(stamps=False, spin=20000, rot1=9, codepf=True, slp=2, cyc=False, G=5, prioA=1, prioM=2, kvf=27, fine=False,
        pkq=0, pkk=1, LA=9, LA0=6, c0=2, mpf=30, outm=0, tlb=0, gw=-1, hf0=7, rpb=3, prioG=2, k6=4, qpf=1, sb=1, qd=0, probe=None, pwg=-1, pt=4000, aw2=2, pre=8, cb=22, pkg=2, rpa=0, f2=0, hfirst=1, early=0, oc=22, x_now2=0, x_noh=0, x_nomf=0, x_now1=0, rb2=0, gp=3, pa=10, x_at=4, c3=9, cq=17, spf=0, allpf=0, l2w=0, jit=0, bl=5, rate=4, x_m16=0, ra=2, rb=4, rc=2, rd=0, x_skipB=99, x_noo=0, x_nog=0, x_noE=0, md=2, hlp=0, hw=2, h0=0, hd=0, hh=0, tl=1, am=1, kf=1, wso=0, hpt=0, hst=0, k1=11, kd=2, kb=24, qfirst=0, rp=1, re=0):
    K = Asm()
    T = S_T
    TD = T + 5
    t0, t1, t2, t3, t4, t5 = range(V_T, V_T + 6)
    def stamp(name):
        if not stamps: return
        if probe is not None and name != probe: return
        if cyc and name in ("rp_seen", "kv_issued", "q_gemm", "B_seen", "o_early", "o_late"): return
        K("s_waitcnt lgkmcnt(0)")
        K(f"s_memrealtime {sp(S_ST)}")
        if cyc: K(f"s_memtime s[0:1]")
        K("s_waitcnt lgkmcnt(0)")
        i = STAMP_IDS.setdefault(name, len(STAMP_IDS))
        K(f"v_writelane_b32 v{V_STAMP}, s{S_ST}, {i}")
        if cyc: K(f"v_writelane_b32 v{V_STAMP}, s0, {32 + i}")
    uid = [0]
    def newl(p): uid[0] += 1; return f"L_{p}{uid[0]}"
    def poll_issue(fl):
        K(f"s_load_dword s{PD[0]}, {sp(P_WS)}, s{fl[0]} offset:{fl[1]} glc")
    def poll_check(fl):
        l, d = newl("poll"), newl("polld")
        K(f"s_mov_b32 s{S_CNT}, {spin}")
        K.raw(f"{l}:")
        K("s_waitcnt lgkmcnt(0)")
        K(f"s_cmp_eq_u32 s{PD[0]}, {fl[2]}")
        K.branch(f"s_cbranch_scc1 {d}")
        K(f"s_sub_u32 s{S_CNT}, s{S_CNT}, 1")
        K(f"s_cbranch_scc1 {d}")
        if slp: K(f"s_sleep {slp}")
        poll_issue(fl)
        K(f"s_branch {l}")
        K.label(d)
    def signal(soff_reg, n):
        K(f"v_mov_b32 v{t5}, 1"); K(f"v_lshlrev_b32 v{V_POLL}, 7, v{V_LANE}")
        K(f"s_mov_b64 exec, {(1 << n) - 1}")
        K(f"buffer_atomic_add v{t5}, v{V_POLL}, {srd(R_WS)}, s{soff_reg} offen")
        K("s_mov_b64 exec, -1")
    def vpoll_issue(vaddr):
        return K(f"buffer_load_dword v{V_POLL}, v{vaddr}, {srd(R_WS)}, 0 offen sc1")
    def vpoll_check(tok, vaddr):
        l, d = newl("poll"), newl("polld")
        K(f"s_mov_b32 s{S_CNT}, {spin}")
        K.wait_vm(tok)
        K.label(l)
        K(f"v_cmp_ne_u32 vcc, s{S_TAG}, v{V_POLL}")
        K.branch(f"s_cbranch_vccz {d}")
        K(f"s_sub_u32 s{S_CNT}, s{S_CNT}, 1")
        K.branch(f"s_cbranch_scc1 {d}")
        K(f"s_sleep 10")
        K(f"buffer_load_dword v{V_POLL}, v{vaddr}, {srd(R_WS)}, 0 offen sc1"); K.vm -= 1
        K("s_waitcnt vmcnt(0)")
        K.branch(f"s_branch {l}")
        K.label(d)
    def flag(soff_reg):
        K("s_mov_b64 exec, 1")
        K(f"buffer_store_dword v{V_TAG}, v{V_LANE}, {srd(R_WS)}, s{soff_reg} offen sc1")
        K("s_mov_b64 exec, -1")
    def arrive(c):
        K(f"v_mov_b32 v{t5}, 1")
        K("s_mov_b64 exec, 1")
        K(f"ds_add_u32 v{V_CNT}, v{t5} offset:{c}")
        K("s_mov_b64 exec, -1")
    def await_(c, n, sleep=0):
        l, d = newl("aw"), newl("awd")
        K(f"s_mov_b32 s{S_CNT}, {spin * 8}")
        K.label(l)
        K(f"ds_read_b32 v{t5}, v{V_CNT} offset:{c}")
        K("s_waitcnt lgkmcnt(0)")
        K(f"v_cmp_ne_u32 vcc, {n}, v{t5}")
        K.branch(f"s_cbranch_vccz {d}")
        if sleep: K(f"s_sleep {sleep}")
        K(f"s_sub_u32 s{S_CNT}, s{S_CNT}, 1")
        K.branch(f"s_cbranch_scc0 {l}")
        K.label(d)
    def mksrd(r, p, nbytes):
        K(f"s_mov_b32 s{r}, s{p}"); K(f"s_and_b32 s{r+1}, s{p+1}, 0xffff")
        K(f"s_mov_b32 s{r+2}, {nbytes}"); K(f"s_mov_b32 s{r+3}, 0x20000")
    cnt16 = [0]
    def mfma(d, a, b, c=None, big=False):
        if x_m16 and big and c is None:
            cnt16[0] += 1
            o = 8 * ((cnt16[0] // 4) % 2)
            for q in range(2): K(f"v_mfma_f32_16x16x32_bf16 {vr(d+o+4*q,4)}, {vr(a,4)}, {vr(b,4)}, {vr(d+o+4*q,4)}")
            return
        cs = vr(d, 16) if c is None else c
        K(f"v_mfma_f32_32x32x16_bf16 {vr(d,16)}, {vr(a,4)}, {vr(b,4)}, {cs}")
    def padd(d, a, b, pk):
        if pk: K(f"v_pk_add_f32 {vr(d,2)}, {vr(a,2)}, {vr(b,2)}")
        else: K(f"v_add_f32 v{d}, v{a}, v{b}"); K(f"v_add_f32 v{d+1}, v{a+1}, v{b+1}")
    def pscale(d, r, pk):
        if pk: K(f"v_pk_mul_f32 {vr(d,2)}, {vr(d,2)}, {vr(r & ~1,2)} " + ("op_sel:[0,1] op_sel_hi:[1,1]" if r & 1 else "op_sel_hi:[1,0]"))
        else: K(f"v_mul_f32 v{d}, v{d}, v{r}"); K(f"v_mul_f32 v{d+1}, v{d+1}, v{r}")
    def settag():
        K(f"s_add_u32 s{S_TAG}, s{S_E}, 0x9E3779B9"); K(f"s_mov_b32 s{S_TAG+1}, s{S_TAG}"); K(f"v_mov_b32 v{V_TAG}, s{S_TAG}")
    def xfrag_addr(dst):
        K(f"v_and_b32 v{t0}, 31, v{V_LANE}"); K(f"v_lshrrev_b32 v{t2}, 5, v{V_LANE}"); K(f"v_bfe_u32 v{t3}, v{V_LANE}, 1, 3")
        K(f"v_xor_b32 v{t3}, v{t2}, v{t3}"); K(f"s_lshl_b32 s{T}, s{S_A}, 12"); K(f"v_lshlrev_b32 v{t0}, 7, v{t0}")
        K(f"v_lshl_add_u32 v{t0}, v{t3}, 4, v{t0}"); K(f"v_add_u32 v{dst}, s{T}, v{t0}")
        for k in range(1, 4): K(f"v_xor_b32 v{dst+k}, {32*k}, v{dst}")
    def lanepart():
        K(f"v_bfe_u32 v{t4}, v{V_LANE}, 4, 1"); K(f"v_lshlrev_b32 v{t4}, 5, v{t4}")
        K(f"v_and_b32 v{t3}, 3, v{V_LANE}"); K(f"v_lshl_add_u32 v{t4}, v{t3}, 3, v{t4}")
        K(f"v_bfe_u32 v{t3}, v{V_LANE}, 2, 2"); K(f"v_lshrrev_b32 v{t2}, 5, v{V_LANE}")
    def p2setup():
        mksrd(R_W2, P_W2, 0 if x_now2 else 1792*896)
        K(f"s_and_b32 s{T}, s2, 7"); K(f"s_lshr_b32 s{T+1}, s2, 3")
        if hlp: K(f"s_add_u32 s{T+1}, s{T+1}, 28"); K(f"s_and_b32 s{T+1}, s{T+1}, 31")
        K(f"s_mul_i32 s{T+2}, s{T+1}, 37"); K(f"s_lshr_b32 s{T+2}, s{T+2}, 8"); K(f"s_mul_i32 s{T+3}, s{T+2}, 7"); K(f"s_sub_u32 s{S_CT}, s{T+1}, s{T+3}")
        K(f"s_lshl_b32 s{T+2}, s{T+2}, 1"); K(f"s_lshl_b32 s{T+3}, s{T}, 3"); K(f"s_add_u32 s{S_ROW}, s{T+2}, s{T+3}")
        K(f"s_cmp_lt_u32 s{T+1}, 28"); K(f"s_cselect_b32 s{S_ACT}, 1, 0")
        K(f"s_and_b32 s{T+2}, s{S_A}, 1"); K(f"s_mul_i32 s{T+3}, s{S_A}, 7"); K(f"s_add_u32 s{T+4}, s{T+3}, s{T+2}")
        K(f"s_cmp_eq_u32 s{T+2}, 0"); K(f"s_cselect_b32 s{T+2}, 6, 0"); K(f"s_add_u32 s{T+2}, s{T+2}, s{T+3}")
        K(f"s_lshl_b32 s{T}, s{S_CT}, 7")
        K(f"s_mul_i32 s{S_W2B}, s{T+4}, {64*896}"); K(f"s_add_u32 s{S_W2B}, s{S_W2B}, s{T}")
        K(f"s_mul_i32 s{S_W2B3}, s{T+2}, {64*896}"); K(f"s_add_u32 s{S_W2B3}, s{S_W2B3}, s{T}")
        K(f"s_lshl_b32 s{S_M02}, s{S_A}, 13")
        K(f"v_lshrrev_b32 v{t0}, 3, v{V_LANE}"); K(f"v_and_b32 v{t1}, 7, v{V_LANE}")
        K(f"v_bfe_u32 v{t2}, v{V_LANE}, 4, 1"); K(f"v_lshlrev_b32 v{t2}, 2, v{t2}"); K(f"v_xor_b32 v{t1}, v{t1}, v{t2}")
        K(f"v_mul_u32_u24 v{t0}, 896, v{t0}"); K(f"v_lshl_add_u32 v{V_D2}, v{t1}, 4, v{t0}")
        for q in range(1, 4): K(f"v_add_u32 v{V_D2+q}, {q*(8*896-1024)}, v{V_D2}")
        K(f"v_mov_b32 v{V_CNT}, {L_CNT}")
    def shift(regs, d):
        for r in regs:
            if d > 0: K(f"v_add_u32 v{r}, {d}, v{r}")
            elif d < 0: K(f"v_subrev_u32 v{r}, {-d}, v{r}")
    pend = []
    def drip(n):
        for _ in range(n):
            if pend: pend.pop(0)()
    def run(steps):
        for f in steps: f()
    tk_r = {}
    def g_w2(r):
        def step(q):
            def f():
                if q % 4 == 0:
                    K(f"s_add_u32 s{TD}, s{S_W2B3 if r == 3 else S_W2B}, {(0 if r == 3 else (2*r % 7)*64*896) + (q // 4)*32*896}")
                    K(f"s_add_u32 m0, s{S_M02}, {U[RUNIT[r]] + (q // 4)*4096}")
                x = K(f"buffer_load_dwordx4 v{V_D2+q%4}, {srd(R_W2)}, s{TD} offen offset:{1024*(q%4)} lds") if r < x_skipB else K.vm - 8
                if q == 7: tk_r[r] = x
            return f
        return [step(q) for q in range(8)]
    SH = [0, 0, 65536, 0, -65536, 0, 65536]

    K.raw(f"{NAME}:")
    K("s_cmp_ge_u32 s2, 256"); K("s_cbranch_scc1 L_end")
    if stamps and early: K(f"s_memrealtime {sp(S_ST)}"); K("s_waitcnt lgkmcnt(0)")
    K("s_load_dwordx16 s[16:31], s[0:1], 0"); K("s_load_dwordx8 s[32:39], s[0:1], 64"); K("s_load_dwordx2 s[40:41], s[0:1], 96")
    if stamps:
        if not early: K(f"s_memrealtime {sp(S_ST)}")
        K(f"v_mov_b32 v{V_STAMP}, 0")
    K(f"v_lshrrev_b32 v{t0}, 6, v0"); K(f"v_and_b32 v{V_LANE}, 63, v0")
    K(f"v_readfirstlane_b32 s{S_W}, v{t0}")
    K(f"v_lshlrev_b32 v{V_L16}, 4, v{V_LANE}")
    K(f"s_and_b32 s{T}, s2, 7"); K(f"s_lshr_b32 s{T+1}, s2, 3")
    if codepf:
        K(f"s_lshr_b32 s{T+2}, s2, 5"); K(f"s_lshl_b32 s{T+2}, s{T+2}, 3"); K(f"s_or_b32 s{T+2}, s{T+2}, s{S_W}"); K(f"s_cmp_lg_u32 s{T+2}, 7")
        K("s_cbranch_scc1 L_nopf")
        K(f"s_getpc_b64 {sp(T+2)}")
        K.raw("L_pc:")
        K(f"s_lshl_b32 s{T+4}, s{T+1}, 7"); K(f"s_sub_u32 s{T+2}, s{T+2}, L_pc - {NAME}"); K(f"s_subb_u32 s{T+3}, s{T+3}, 0")
        K(f"s_add_u32 s{T+2}, s{T+2}, s{T+4}"); K(f"s_addc_u32 s{T+3}, s{T+3}, 0")
        K(f"v_lshlrev_b32 v{t0}, 9, v{V_LANE}")
        K("s_mov_b32 exec_hi, 0xffffff")
        K(f"global_load_dword v{V_POLL}, v{t0}, {sp(T+2)}"); K.vm -= 1
        K("s_mov_b32 exec_hi, -1")
        K.label("L_nopf")
    K(f"s_and_b32 s{T+2}, s{T}, 2"); K(f"s_lshl_b32 s{T+2}, s{T+2}, 1")
    K(f"s_and_b32 s{T+3}, s{T}, 1"); K(f"s_cmp_lt_u32 s{T+1}, 4"); K(f"s_cselect_b32 s{T+4}, 14, 12"); K(f"s_add_u32 s{T+3}, s{T+3}, s{T+4}")
    K(f"s_lshr_b32 s{T+4}, s{T+1}, 3"); K(f"s_lshl_b32 s{S_J}, s{T+4}, 2"); K(f"s_and_b32 s{S_MT}, s{T}, 3"); K(f"s_add_u32 s{S_J}, s{S_J}, s{S_MT}"); K(f"s_sub_u32 s{S_J}, s{S_J}, 4")
    K(f"s_cmp_lt_u32 s{T+1}, 8"); K(f"s_cselect_b32 s{S_J}, s{T+3}, s{S_J}"); K(f"s_cselect_b32 s{T+2}, s{T+2}, 0")
    K(f"s_and_b32 s{T+3}, s{T+1}, 7"); K(f"s_xor_b32 s{T+3}, s{T+3}, s{T+2}")
    K(f"s_and_b32 s{S_MT}, s{T}, 4"); K(f"s_lshl_b32 s{S_MT}, s{S_MT}, 1"); K(f"s_add_u32 s{S_MT}, s{S_MT}, s{T+3}")
    K(f"s_and_b32 s{S_A}, s{S_W}, 3")
    K(f"s_lshl_b32 s{S_W1B}, s{S_J}, 8")
    K(f"s_cmp_ge_u32 s{S_W}, 4")
    K.branch("s_cbranch_scc1 L_M")

    if prioA: K(f"s_setprio {prioA}")
    K(f"s_lshl_b32 s{T+4}, s{T+4}, 1"); K(f"s_add_u32 s{T+2}, s{T+3}, s{T+4}")
    K(f"s_cmp_ge_u32 s{T+2}, 7"); K(f"s_cselect_b32 s{T+3}, 7, 0"); K(f"s_sub_u32 s{S_CH}, s{T+2}, s{T+3}")
    if not rot1: K(f"s_mov_b32 s{S_CH}, 0")
    if rot1 == 2:
        K(f"s_lshr_b32 s{T+4}, s{T+4}, 1"); K(f"s_add_u32 s{T+2}, s{S_MT}, s{T+4}"); K(f"s_and_b32 s{T+2}, s{T+2}, 1"); K(f"s_lshl_b32 s{S_CH}, s{T+2}, 2")
    if rot1 == 4:
        K(f"s_lshr_b32 s{T+4}, s{T+4}, 1"); K(f"s_add_u32 s{T+2}, s{S_MT}, s{T+4}"); K(f"s_and_b32 s{T+2}, s{T+2}, 3"); K(f"s_lshl_b32 s{S_CH}, s{T+2}, 1")
    if rot1 >= 9:
        K(f"s_and_b32 s{T+2}, s2, 3"); K(f"s_mul_i32 s{T+2}, s{T+2}, {ra}"); K(f"s_bfe_u32 s{T+3}, s2, 0x10002"); K(f"s_mul_i32 s{T+3}, s{T+3}, {rb}"); K(f"s_add_u32 s{T+2}, s{T+2}, s{T+3}")
        if rc: K(f"s_and_b32 s{T+3}, s{S_MT}, 1"); K(f"s_mul_i32 s{T+3}, s{T+3}, {rc}"); K(f"s_add_u32 s{T+2}, s{T+2}, s{T+3}")
        if rd: K(f"s_bfe_u32 s{T+3}, s{S_MT}, 0x10001"); K(f"s_mul_i32 s{T+3}, s{T+3}, {rd}"); K(f"s_add_u32 s{T+2}, s{T+2}, s{T+3}")
        if re: K(f"s_bfe_u32 s{T+3}, s2, 0x10006"); K(f"s_mul_i32 s{T+3}, s{T+3}, {re}"); K(f"s_add_u32 s{T+2}, s{T+2}, s{T+3}")
        K(f"s_mul_i32 s{T+3}, s{T+2}, 37"); K(f"s_lshr_b32 s{T+3}, s{T+3}, 8"); K(f"s_mul_i32 s{T+3}, s{T+3}, 7"); K(f"s_sub_u32 s{S_CH}, s{T+2}, s{T+3}")
    if rot1 == 8:
        K(f"s_and_b32 s{T+2}, s2, 7"); K(f"s_cmp_eq_u32 s{T+2}, 7"); K(f"s_cselect_b32 s{S_CH}, 3, s{T+2}")
    def rotstep(t):
        K(f"s_lshl_b32 s{S_CHO+t}, s{S_CH}, 12")
        if t < 6: K(f"s_add_u32 s{S_CH}, s{S_CH}, 1"); K(f"s_cmp_eq_u32 s{S_CH}, 7"); K(f"s_cselect_b32 s{S_CH}, 0, s{S_CH}")
    rotstep(0); rotstep(1)
    K(f"s_lshl_b32 s{S_M0}, s{S_A}, 12")
    K(f"s_mul_i32 s{S_XB}, s{S_MT}, {128*896}")
    K(f"v_lshrrev_b32 v{t0}, 3, v{V_LANE}"); K(f"v_and_b32 v{t1}, 7, v{V_LANE}"); K(f"v_lshrrev_b32 v{t2}, 1, v{t0}"); K(f"v_xor_b32 v{t2}, v{t1}, v{t2}")
    K(f"s_lshl_b32 s{T+2}, s{S_A}, 5"); K(f"v_add_u32 v{t3}, s{T+2}, v{t0}"); K(f"v_mul_u32_u24 v{t3}, 896, v{t3}")
    K(f"v_lshl_add_u32 v{A_XD}, v{t2}, 4, v{t3}"); K(f"v_xor_b32 v{t2}, 4, v{t2}"); K(f"v_lshl_add_u32 v{A_XD+1}, v{t2}, 4, v{t3}")
    K(f"v_add_u32 v{A_XD+1}, {8*896-1024}, v{A_XD+1}")
    K(f"v_add_u32 v{A_XD+2}, {16*896-2048}, v{A_XD}"); K(f"v_add_u32 v{A_XD+3}, {16*896-2048}, v{A_XD+1}")
    K(f"v_lshrrev_b32 v{t0}, 4, v{V_LANE}"); K(f"v_and_b32 v{t1}, 15, v{V_LANE}"); K(f"v_lshlrev_b32 v{t2}, 2, v{t0}"); K(f"v_xor_b32 v{t2}, v{t1}, v{t2}")
    K(f"s_lshl_b32 s{T+2}, s{S_A}, 4"); K(f"v_add_u32 v{t3}, s{T+2}, v{t0}"); K(f"v_mul_u32_u24 v{t3}, 3584, v{t3}")
    K(f"v_lshl_add_u32 v{A_WD}, v{t2}, 4, v{t3}")
    for q in range(1, 4): K(f"v_add_u32 v{A_WD+q}, {q*(4*3584-1024)}, v{A_WD}")
    K("s_waitcnt lgkmcnt(0)")
    if stamps: K(f"v_writelane_b32 v{V_STAMP}, s{S_ST}, {STAMP_IDS.setdefault('start', len(STAMP_IDS))}")
    if wso: K(f"s_add_u32 s{P_WS}, s{P_WS}, {wso << 20}"); K(f"s_addc_u32 s{P_WS+1}, s{P_WS+1}, 0")
    mksrd(R_X, P_X, 2048*896); mksrd(R_W1, P_W1, 0 if x_now1 else 448*3584)
    tk_stage = {}
    def g_stage(t):
        u = U[t % 4]
        def step(q):
            def f():
                if q == 0: K(f"s_lshr_b32 s{TD}, s{S_CHO+t}, 5"); K(f"s_add_u32 s{TD}, s{TD}, s{S_XB}"); K(f"s_add_u32 m0, s{S_M0}, {u}")
                if q == 4: K(f"s_mul_i32 s{TD}, s{S_CHO+t}, 56"); K(f"s_add_u32 s{TD}, s{TD}, s{S_W1B}"); K(f"s_add_u32 m0, s{S_M0}, {u + 16384}")
                if q < 4: K(f"buffer_load_dwordx4 v{A_XD+q}, {srd(R_X)}, s{TD} offen offset:{1024*q} lds")
                else: x = K(f"buffer_load_dwordx4 v{A_WD+q-4}, {srd(R_W1)}, s{TD} offen offset:{1024*(q-4)} lds")
                if q == 7: tk_stage[t] = x
            return f
        return [step(q) for q in range(8)]
    ilist = []
    for t in range(7): ilist += [(f, t - 2 if t >= 4 else -1) for f in g_stage(t)]
    pos = [0]
    def issue_to(n, lastbar):
        while pos[0] < min(n, len(ilist)) and ilist[pos[0]][1] <= lastbar:
            ilist[pos[0]][0](); pos[0] += 1
    if fine: stamp("A_karg")
    K(f"s_cmp_ge_u32 s{S_J}, 14")
    K.branch("s_cbranch_scc1 L_a1")
    vm0 = K.vm
    issue_to(8, -1)
    issue_to(8 + LA0, -1)
    K.label("L_a1")
    if fine: stamp("A_i1")
    K(f"s_load_dword s{S_E}, {sp(P_WS)}, {WS_EPOCH}")
    for t in range(2, 7): rotstep(t)
    mksrd(R_WS, P_WS, WS_SIZE); mksrd(R_OUT, P_OUT, 2048*896)
    p2setup()
    K(f"s_mov_b32 s{S_UP}, 0"); K(f"s_mov_b32 s{S_UP+1}, -1")
    K(f"s_mov_b32 s{S_L28}, 0x10000000"); K(f"s_mov_b32 s{S_L28+1}, 0x10000000")
    xfrag_addr(A_AX)
    lanepart()
    K(f"v_lshl_add_u32 v{t0}, v{t2}, 3, v{t3}"); K(f"v_lshl_add_u32 v{A_TR}, v{t0}, 6, v{t4}")
    K(f"v_lshl_add_u32 v{t0}, v{t2}, 2, v{t3}"); K(f"v_mul_u32_u24 v{t1}, 56, v{t0}"); K(f"v_add_u32 v{t1}, v{t1}, v{t4}"); K(f"v_add_u32 v{A_PH}, {L_PHI}, v{t1}")
    K(f"v_lshlrev_b32 v{A_L4}, 2, v{V_LANE}")
    K(f"s_lshl_b32 s{T}, s{S_A}, 10"); K(f"s_add_u32 s{T}, s{T}, {WS_RPF}"); K(f"v_and_b32 v{A_PA}, 7, v{V_LANE}"); K(f"v_lshl_add_u32 v{A_PA}, v{A_PA}, 7, s{T}")
    K(f"s_mul_i32 s{S_RS}, s{S_J}, {3*28672}"); K(f"s_mul_i32 s{S_P3}, s{S_A}, 7168"); K(f"s_add_u32 s{S_RS}, s{S_RS}, s{S_P3}"); K(f"s_add_u32 s{S_RS}, s{S_RS}, {WS_WQ}")
    K("s_waitcnt lgkmcnt(0)")
    settag()
    K(f"s_cmp_lt_u32 s{S_J}, 14")
    K.branch("s_cbranch_scc1 L_a2")
    sv = K.vm
    K(f"s_mul_i32 s{T}, s{S_A}, 3072"); K(f"s_add_u32 s{T}, s{T}, {L_K}")
    K("s_barrier")
    for t in range(7):
        K(f"s_lshr_b32 s{TD}, s{S_CHO+t}, 5"); K(f"s_add_u32 s{TD}, s{TD}, s{S_XB}")
        if t < 6: K(f"s_add_u32 m0, s{S_M0}, {16384*t}")
        else: K(f"s_add_u32 m0, s{S_M0}, s{T}")
        for q in range(4): K(f"buffer_load_dwordx4 v{A_XD+q}, {srd(R_X)}, s{TD} offen offset:{1024*q} lds")
        if t == rb2: K("s_barrier")
    K("s_waitcnt vmcnt(0)")
    for t in range(7):
        if t == 4: shift(range(A_AX, A_AX + 4), 65536)
        if t == 6:
            K(f"s_sub_u32 s{T}, s{T}, 65536")
            for k in range(4): K(f"v_add_u32 v{A_AX+k}, s{T}, v{A_AX+k}")
        for ksl in range(4): K(f"ds_read_b128 {vr(V_X + 16*t + 4*ksl, 4)}, v{A_AX+ksl} offset:{(t % 4) * 16384 if t < 6 else 0}")
        if t % 2 == 1: K("s_waitcnt lgkmcnt(4)")
    K("s_waitcnt lgkmcnt(0)")
    stamp("A_b6")
    vpoll_issue(A_PA)
    K.branch("s_branch L_a3")
    K.label("L_a2")
    K.vm = sv
    if fine: stamp("A_setup")
    tkx = {}
    def g_panel(p, lds):
        def step(q):
            def f():
                if q % 4 == 0: K(f"s_add_u32 s{TD}, s{S_RS}, {28672*p + (q // 4)*4096}"); K(f"s_add_u32 m0, s{S_P3}, {lds + (q // 4)*4096}")
                tkx[p] = K(f"buffer_load_dwordx4 v{V_L16}, {srd(R_WS)}, s{TD} offen offset:{1024*(q%4)} sc1 lds")
            return f
        return [step(q) for q in range(7)]
    for t in range(7):
        issue_to(8*(t+1) + (LA0 if t == 0 else LA), t - 1)
        shift(range(A_AX, A_AX + 4), SH[t])
        if t == 5:
            assert pos[0] == len(ilist)
            tkp = vpoll_issue(A_PA)
        if fine: stamp(f"A{t}a")
        K.wait_vm(tk_stage[t])
        if fine: stamp(f"A{t}b")
        if t < 6:
            if t >= 2: K("s_waitcnt lgkmcnt(4)")
            K("s_barrier")
        else: arrive(C_S)
        if t in (0, 4, 6): stamp(f"A_b{t}")
        for ksl in range(4): K(f"ds_read_b128 {vr(V_X + 16*t + 4*ksl, 4)}, v{A_AX+ksl} offset:{(t % 2) * 32768}")
    assert tkp == K.vm
    K.label("L_a3")
    arrive(C_E)
    vpoll_check(tkp, A_PA)
    stamp("rp_seen")
    run(g_panel(1, L_K) + g_panel(2, L_V))
    K(f"v_add_u32 v{A_PA}, 4096, v{A_PA}")
    tkp = vpoll_issue(A_PA)
    stamp("kv_issued")
    K(f"s_mov_b32 s{S_K}, {f2u(L2E):#x}"); K(f"s_mov_b32 s{S_K+1}, {f2u(L2E):#x}")
    VPH, VB = V_W + 24, V_W + 16
    for s in range(2):
        for r in range(2): K(f"ds_read_b64_tr_b16 {vr(VPH + 4*s + 2*r, 2)}, v{A_PH} offset:{(16*s + 8*r)*56}")
    K(f"s_lshl_b32 s{T}, s{S_A}, 11"); K(f"s_lshl_b32 s{T+1}, s{S_J}, 13"); K(f"s_add_u32 s{S_HB}, s{T+1}, s{T}"); K(f"s_add_u32 s{S_FL}, s{S_HB}, {WS_KVF}"); K(f"s_lshl_b32 s{S_PE}, s{S_MT}, 7"); K(f"s_add_u32 s{S_PE}, s{S_PE}, s{S_FL}"); K(f"s_add_u32 s{S_HB}, s{S_HB}, {WS_KVP}")
    FL_K = (S_PE, 0, 16)
    K(f"s_lshl_b32 s{T}, s{S_MT}, 2"); K(f"s_add_u32 s{T}, s{T}, s{S_A}")
    K(f"s_lshr_b32 s{T+1}, s{T}, 1"); K(f"s_lshl_b32 s{T+1}, s{T+1}, 2"); K(f"s_lshr_b32 s{T+2}, s{S_J}, 2"); K(f"s_add_u32 s{T+1}, s{T+1}, s{T+2}"); K(f"s_lshl_b32 s{T+1}, s{T+1}, 10"); K(f"s_add_u32 s{S_FL2}, s{T+1}, {WS_OF}")
    K(f"s_lshl_b32 s{T}, s{T}, 4"); K(f"s_add_u32 s{T}, s{T}, s{S_J}")
    K(f"s_lshl_b32 s{S_OB}, s{T}, 11"); K(f"s_add_u32 s{S_OB}, s{S_OB}, {WS_O}")
    K(f"s_lshl_b32 s{T+2}, s{T}, 7"); K(f"s_add_u32 s{S_XB}, s{T+2}, {WS_G - 128}")
    IDR = [26, 27, 28, 29, V_PHI, V_PHI+1, V_PHI+2, V_PHI+3]
    K(f"v_and_b32 v{t0}, 31, v{V_LANE}"); K(f"v_lshrrev_b32 v{t1}, 5, v{V_LANE}"); K(f"v_lshlrev_b32 v{t1}, 2, v{t1}")
    K(f"v_sub_u32 v{t0}, v{t0}, v{t1}")
    K(f"v_and_b32 v{t1}, 1, v{V_LANE}"); K(f"v_lshlrev_b32 v{t1}, 4, v{t1}"); K(f"v_mov_b32 v{t2}, 0x3f80"); K(f"v_lshlrev_b32 v{t1}, v{t1}, v{t2}")
    K(f"v_and_b32 v{t0}, -2, v{t0}")
    for s in range(2):
        for q in range(4): K(f"v_cmp_eq_u32 {sp(T+2*q)}, {16*s + 8*(q // 2) + 2*(q % 2)}, v{t0}")
        for q in range(4): K(f"v_cndmask_b32 v{IDR[4*s+q]}, 0, v{t1}, {sp(T+2*q)}")
    if aw2: K(f"s_cmp_eq_u32 s{S_ACT}, 1"); K(f"s_cselect_b32 s{R_W2+2}, s{R_W2+2}, 0")
    if aw2 in (1, 3):
        await_(C_E, 8, 1)
        run(g_w2(0))
        K.wait_vm(tkx[2]); arrive(C_0)
        run(g_w2(1))
        if qd < 0: run(g_panel(0, L_Q))
    else: K.wait_vm(tkx[1] if kf else tkx[2]); arrive(C_0)
    stamp("kv_landed0")
    if aw2 == 1: K.wait_vm(tk_r[1]); arrive(C_B)
    await_(C_0, 4, 1)
    K(f"v_cndmask_b32 v{VPH+6}, v{VPH+6}, 0, {UPM}"); K(f"v_cndmask_b32 v{VPH+7}, v{VPH+7}, 0, {UPM}")
    if not kf:
        await_(C_G if gw >= 0 else C_E, 4 if gw >= 0 else 8, 1)
        vpoll_check(tkp, A_PA)
    stamp("kv_start")

    def gemm_qkv(panels, hook=None):
        nb = len(panels) * 4
        D = 3 if len(panels) == 2 else 6
        tk = {}
        for n, (off, acc, sw) in enumerate(panels): K(f"v_add_u32 v{A_AX+n}, {off}, v{A_TR}")
        def rd(ks, n):
            t, ksl = ks // 4, ks % 4
            b = V_W + nb * (ks % D)
            if ksl == 0: K(f"v_add_u32 v{A_AD + n}, s{S_CHO+t}, v{A_AX+n}")
            for r in range(2):
                tk[ks] = K(f"ds_read_b64_tr_b16 {vr(b + 4*n + 2*r, 2)}, v{A_AD + n} offset:{(16*ksl + 4*r)*64}")
        for k in range(D):
            for n in range(len(panels)): rd(k, n)
        for ks in range(28):
            K.wait_lg(tk[ks])
            b = V_W + nb * (ks % D)
            for n, (off, acc, sw) in enumerate(panels):
                wv, xv = b + 4*n, V_X + 4*ks
                if sw: mfma(acc, xv, wv, "0" if ks == 0 else None, x_m16 & 4)
                else: mfma(acc, wv, xv, "0" if ks == 0 else None, x_m16 & 4)
                if ks + D < 28: rd(ks + D, n)
            if hook: hook(ks)
    QP = V_W
    P = V_ACC
    def featmap():
        for e in range(8): K(f"v_cvt_pk_bf16_f32 v{QP+e}, v{V_ACC+2*e}, v{V_ACC+2*e+1}")
        mfma(P, VPH, QP, "0"); mfma(P, VPH + 4, QP + 4)
    def roundp(e):
        K(f"v_cvt_pk_bf16_f32 v{P+2*e+1}, v{P+2*e}, v{P+2*e+1}")
        K(f"v_lshlrev_b32 v{P+2*e}, 16, v{P+2*e+1}"); K(f"v_and_b32 v{P+2*e+1}, 0xffff0000, v{P+2*e+1}")
    def softmax(pk, rounded=False):
        if rp and not rounded:
            for e in range(8): roundp(e)
        for e in range(4): K(f"v_cndmask_b32 v{P+12+e}, v{P+12+e}, v{P}, {UPM}")
        mx, mn = t0, t2
        K(f"v_max3_f32 v{mx}, v{P}, v{P+1}, v{P+2}"); K(f"v_min3_f32 v{mn}, v{P}, v{P+1}, v{P+2}")
        K(f"v_max3_f32 v{t1}, v{P+3}, v{P+4}, v{P+5}"); K(f"v_min3_f32 v{t3}, v{P+3}, v{P+4}, v{P+5}")
        for e in range(6, 14, 4):
            K(f"v_max3_f32 v{mx}, v{mx}, v{P+e}, v{P+e+1}"); K(f"v_min3_f32 v{mn}, v{mn}, v{P+e}, v{P+e+1}")
            K(f"v_max3_f32 v{t1}, v{t1}, v{P+e+2}, v{P+e+3}"); K(f"v_min3_f32 v{t3}, v{t3}, v{P+e+2}, v{P+e+3}")
        K(f"v_max3_f32 v{mx}, v{mx}, v{P+14}, v{P+15}"); K(f"v_min3_f32 v{mn}, v{mn}, v{P+14}, v{P+15}")
        K(f"v_max_f32 v{mx}, v{mx}, v{t1}"); K(f"v_min_f32 v{mn}, v{mn}, v{t3}")
        K(f"v_mov_b32 v{t1}, v{mx}"); K(f"v_mov_b32 v{t3}, v{mn}")
        K(f"v_permlane32_swap_b32 v{mx}, v{t1}"); K(f"v_permlane32_swap_b32 v{mn}, v{t3}")
        K(f"v_max_f32 v{mx}, v{mx}, v{t1}"); K(f"v_min_f32 v{mn}, v{mn}, v{t3}")
        K(f"v_mul_f32 v{mx}, s{S_K}, v{mx}"); K(f"v_mul_f32 v{mn}, s{S_K}, v{mn}")
        EP, EN = V_P, V_P + 16
        for e in range(0, 16, 2):
            if pk:
                K(f"v_pk_fma_f32 {vr(EP+e,2)}, {vr(P+e,2)}, {sp(S_K)}, {vr(mx,2)} op_sel_hi:[1,1,0] neg_lo:[0,0,1] neg_hi:[0,0,1]")
                K(f"v_pk_fma_f32 {vr(EN+e,2)}, {vr(P+e,2)}, {sp(S_K)}, {vr(mn,2)} op_sel_hi:[1,1,0] neg_lo:[1,0,0] neg_hi:[1,0,0]")
            else:
                for x in (e, e + 1):
                    K(f"v_fma_f32 v{EP+x}, v{P+x}, s{S_K}, -v{mx}"); K(f"v_fma_f32 v{EN+x}, -v{P+x}, s{S_K}, v{mn}")
        for e in range(16):
            K(f"v_exp_f32 v{EP+e}, v{EP+e}"); K(f"v_exp_f32 v{EN+e}, v{EN+e}")
        S = V_W
        for n, E in enumerate((EP, EN)):
            padd(S+4*n, E, E+2, pk); padd(S+4*n+2, E+12, E+14, pk)
        for n, E in enumerate((EP, EN)):
            padd(S+4*n, S+4*n, E+4, pk)
            K(f"v_cndmask_b32 v{S+4*n+2}, v{S+4*n+2}, 0, {UPM}"); K(f"v_cndmask_b32 v{S+4*n+3}, v{S+4*n+3}, 0, {UPM}")
        for n, E in enumerate((EP, EN)):
            padd(S+4*n, S+4*n, E+6, pk); padd(S+4*n+2, S+4*n+2, E+8, pk)
        for n, E in enumerate((EP, EN)): padd(S+4*n, S+4*n, E+10, pk)
        for n in range(2): padd(S+4*n, S+4*n, S+4*n+2, pk)
        K(f"v_add_f32 v{t0}, v{S}, v{S+1}"); K(f"v_add_f32 v{t2}, v{S+4}, v{S+5}")
        K(f"v_mov_b32 v{t1}, v{t0}"); K(f"v_mov_b32 v{t3}, v{t2}")
        K(f"v_permlane32_swap_b32 v{t0}, v{t1}"); K(f"v_permlane32_swap_b32 v{t2}, v{t3}")
        K(f"v_add_f32 v{t0}, v{t0}, v{t1}"); K(f"v_add_f32 v{t2}, v{t2}, v{t3}")
        K(f"v_rcp_f32 v{t0}, v{t0}"); K(f"v_rcp_f32 v{t2}, v{t2}")
        K(f"v_cndmask_b32 v{t1}, v{t0}, 0, {UPM}"); K(f"v_cndmask_b32 v{t3}, v{t2}, 0, {UPM}")
        for e in range(0, 16, 2):
            pscale(EP+e, t0 if e < 12 else t1, pk); pscale(EN+e, t2 if e < 12 else t3, pk)
        for e in range(8):
            K(f"v_cvt_pk_bf16_f32 v{V_PHI+e}, v{EP+2*e}, v{EP+2*e+1}"); K(f"v_cvt_pk_bf16_f32 v{V_PHI+8+e}, v{EN+2*e}, v{EN+2*e+1}")

    if aw2 == 2: pend.extend(g_w2(0) + g_w2(1))
    if qd >= 0: pend.extend(g_panel(0, L_Q))
    def hook(ks):
        if aw2 == 3:
            if ks == 1: K.wait_vm(tk_r[1]); arrive(C_B)
            if ks == pa:
                await_(C_P, 4)
                pend.extend(g_w2(2) + g_w2(3))
            drip(2 if len(pend) > 27 - ks else 1)
        elif aw2 == 2:
            drip(1)
            if ks == cb: K.wait_vm(tk_r[1]); arrive(C_B)
        elif ks >= qd and (ks - qd) % 3 == 0: drip(1)
        if ks == 25: arrive(C_1)
    if kf:
        def hookk(ks):
            if ks == k1: vpoll_check(tkp, A_PA); arrive(C_P); await_(C_E, 8)
            if ks > k1 and ks % kd == 0: drip(1)
        gemm_qkv([(L_K, V_ACC, False)], hookk)
        await_(C_P, 4)
        def hookv(ks):
            if ks == 4:
                for e in range(8): K(f"v_cvt_pk_bf16_f32 v{V_P+e}, v{V_ACC+2*e}, v{V_ACC+2*e+1}")
            if ks == 6: mfma(P, VPH, V_P, "0"); mfma(P, VPH + 4, V_P + 4)
            if ks % kd == 0 or len(pend) > (27 - ks) // kd: drip(1)
            if ks == kb and aw2 == 2: K.wait_vm(tk_r[1]); arrive(C_B)
            if rp and 12 <= ks < 20: roundp(ks - 12)
            if ks == 22: arrive(C_1)
        gemm_qkv([(L_V, V_ACC + 16, True)], hookv)
    else:
        gemm_qkv([(L_K, V_ACC, False), (L_V, V_ACC + 16, True)], hook)
        featmap()
    assert not pend
    for e in range(4): K(f"v_mov_b32 v{V_W+8+e}, v{V_PHI+e}")
    IDR[4] = V_W + 8
    stamp("kv_gemm")
    K(f"v_mov_b32 v{t4}, 0x3f803f80")
    for e in range(8): K(f"v_cvt_pk_bf16_f32 v{VB+e}, v{V_ACC+16+2*e}, v{V_ACC+16+2*e+1}")
    for e in range(8): K(f"v_cndmask_b32 v{VB+e}, v{VB+e}, v{t4}, {sp(S_L28)}")
    softmax(pkk, kf)
    stamp("sm_k")
    if aw2 == 3: K.wait_vm(tk_r[3]); arrive(C_B2)
    TP, TN = V_P, V_P + 16
    mfma(TP, V_PHI, IDR[0], "0"); mfma(TP, V_PHI + 4, IDR[4])
    mfma(TN, V_PHI + 8, IDR[0], "0"); mfma(TN, V_PHI + 12, IDR[4])
    await_(C_1, 4)
    if f2: stamp("kv_a")
    K(f"s_lshl_b32 s{T}, s{S_A}, 13"); K(f"s_add_u32 s{T}, s{T}, {L_KVS}"); K(f"v_add_u32 v{t0}, s{T}, v{V_L16}")
    K(f"s_lshl_b32 s{T}, s{S_A}, 11"); K(f"s_add_u32 s{T}, s{T}, {L_KVS}"); K(f"v_add_u32 v{t1}, s{T}, v{V_L16}")
    for e in range(8): K(f"v_cvt_pk_bf16_f32 v{V_PHI+e}, v{TP+2*e}, v{TP+2*e+1}")
    mfma(V_ACC, V_PHI, VB, "0"); mfma(V_ACC, V_PHI + 4, VB + 4)
    for e in range(8): K(f"v_cvt_pk_bf16_f32 v{V_PHI+8+e}, v{TN+2*e}, v{TN+2*e+1}")
    mfma(V_ACC + 16, V_PHI + 8, VB, "0"); mfma(V_ACC + 16, V_PHI + 12, VB + 4)
    for b in range(8): K(f"ds_write_b128 v{t0}, {vr(V_ACC+4*b,4)} offset:{1024*b}")
    K.wait_vm(tkx[0])
    arrive(C_2)
    if f2: stamp("kv_b")
    await_(C_2, 4)
    if f2: stamp("kv_c")
    for hb in range(2):
        for g in range(4): K(f"ds_read_b128 {vr(V_P+16*hb+4*g,4)}, v{t1} offset:{8192*g + 1024*hb}")
    arrive(C_3)
    if f2: stamp("kv_d")
    for hb in range(2):
        K(f"s_waitcnt lgkmcnt({5 - 4*hb})")
        B = V_P + 16*hb
        for e in (0, 2): padd(B+e, B+e, B+4+e, pkq); padd(B+8+e, B+8+e, B+12+e, pkq)
        for e in (0, 2): padd(B+e, B+e, B+8+e, pkq)
        if am and hb == 1: K(f"s_bitcmp1_b32 s{S_A}, 0"); K("s_cselect_b32 exec_hi, 0, -1")
        for e in range(x_at): K(f"buffer_atomic_add_f32 v{B+e}, v{A_L4}, {srd(R_WS)}, s{S_HB} offen offset:{1024*hb + 256*e}")
        if am and hb == 1: K("s_mov_b32 exec_hi, -1")
    stamp("kv_st")
    def hook(ks):
        if ks == 22: arrive(C_Q)
        if ks == kvf:
            K("s_waitcnt vmcnt(0)")
            signal(S_FL, 16)
            stamp("kv_pub")
    gemm_qkv([(L_Q, V_ACC, False)], hook)
    K(f"v_cvt_pk_bf16_f32 v{t0}, v{V_ACC+12}, v{V_ACC+12}")
    featmap()
    K(f"v_lshlrev_b32 v{t0}, 16, v{t0}")
    K(f"v_mul_f32 v{t0}, s{S_K}, v{t0}"); K(f"v_exp_f32 v{t0}, -v{t0}"); K(f"v_add_f32 v{t0}, 1.0, v{t0}"); K(f"v_rcp_f32 v{t0}, v{t0}")
    K(f"v_cvt_pk_bf16_f32 v{t0}, v{t0}, v{t0}"); K(f"v_lshlrev_b32 v{A_G}, 16, v{t0}")
    K("s_mov_b32 exec_lo, 0")
    K(f"buffer_store_dword v{A_G}, v{A_L4}, {srd(R_WS)}, s{S_XB} offen sc1")
    K("s_mov_b32 exec_lo, -1")
    stamp("q_gemm")
    softmax(pkq)
    stamp("sm_q")
    poll_issue(FL_K)
    poll_check(FL_K)
    stamp("kv_seen")
    for e in range(8): K(f"buffer_load_dword v{V_P+e}, v{A_L4}, {srd(R_WS)}, s{S_HB} offen offset:{256*e} sc1")
    F = V_W
    K(f"s_lshl_b32 s{T}, s{S_A}, 10"); K(f"v_add_u32 v{t1}, {L_KVF}, v{V_L16}"); K(f"v_add_u32 v{t0}, s{T}, v{t1}")
    K("s_waitcnt vmcnt(0)")
    stamp("kv_landed")
    for e in range(4): K(f"v_cvt_pk_bf16_f32 v{F+e}, v{V_P+2*e}, v{V_P+2*e+1}")
    K(f"ds_write_b128 v{t0}, {vr(F,4)}")
    arrive(C_4)
    await_(C_4, 4)
    if f2: stamp("o_a")
    for f in range(4): K(f"ds_read_b128 {vr(F+4*f,4)}, v{t1} offset:{1024*f}")
    N = V_ACC
    for f in range(4):
        K(f"s_waitcnt lgkmcnt({3-f})")
        mfma(N, F + 4*f, V_PHI + 4*f, "0" if f == 0 else None)
    K(f"v_cvt_pk_bf16_f32 v{t0}, v{N+12}, v{N+12}")
    for e in range(8): K(f"v_cvt_pk_bf16_f32 v{F+e}, v{N+2*e}, v{N+2*e+1}")
    K(f"v_lshlrev_b32 v{t0}, 16, v{t0}")
    K(f"v_add_f32 v{t0}, {f2u(1e-6):#x}, v{t0}")
    K(f"v_cvt_pk_bf16_f32 v{t0}, v{t0}, v{t0}"); K(f"v_lshlrev_b32 v{t0}, 16, v{t0}")
    K(f"v_rcp_f32 v{t0}, v{t0}")
    for e in range(4):
        K(f"v_lshlrev_b32 v{N+2*e}, 16, v{F+e}"); K(f"v_and_b32 v{N+2*e+1}, 0xffff0000, v{F+e}")
    K(f"v_mul_f32 v{t0}, v{t0}, v{A_G}"); K(f"v_mov_b32 v{t1}, v{t0}")
    for e in range(4, 8):
        K(f"v_lshlrev_b32 v{N+2*e}, 16, v{F+e}"); K(f"v_and_b32 v{N+2*e+1}, 0xffff0000, v{F+e}")
    K(f"v_permlane32_swap_b32 v{t1}, v{t0}")
    for e in range(0, 16, 2): pscale(N+e, t0, pkq)
    for e in range(8): K(f"v_cvt_pk_bf16_f32 v{F+e}, v{N+2*e}, v{N+2*e+1}")
    K(f"v_cndmask_b32 v{F+6}, v{F+6}, 0, {UPM}"); K(f"v_cndmask_b32 v{F+7}, v{F+7}, 0, {UPM}")
    K(f"buffer_store_dwordx4 {vr(F,4)}, v{V_L16}, {srd(R_WS)}, s{S_OB} offen sc1")
    K(f"buffer_store_dwordx4 {vr(F+4,4)}, v{V_L16}, {srd(R_WS)}, s{S_OB} offen offset:1024 sc1")
    if f2: stamp("o_b")
    K("s_waitcnt vmcnt(0)")
    signal(S_FL2, 7)
    stamp("o_pub")
    K(f"s_cmp_eq_u32 s{S_ACT}, 0")
    K.branch("s_cbranch_scc1 L_fin")
    K.branch("s_branch L_red")

    K.label("L_M")
    if prioM: K(f"s_setprio {prioM}")
    K("s_waitcnt lgkmcnt(0)")
    if stamps: K(f"v_writelane_b32 v{V_STAMP}, s{S_ST}, {STAMP_IDS.setdefault('start', len(STAMP_IDS))}")
    if wso: K(f"s_add_u32 s{P_WS}, s{P_WS}, {wso << 20}"); K(f"s_addc_u32 s{P_WS+1}, s{P_WS+1}, 0")
    K(f"s_load_dword s{S_E}, {sp(P_WS)}, {WS_EPOCH}")
    mksrd(R_T, P_PHI, 16*1568)
    K(f"s_mul_i32 s{T}, s{S_J}, 1568"); K(f"s_mul_i32 s{T+1}, s{S_A}, 400"); K(f"s_add_u32 s{T}, s{T}, s{T+1}"); K(f"s_add_u32 m0, s{T+1}, {L_PHI}")
    K("s_mov_b64 exec, 0x1ffffff")
    K(f"buffer_load_dwordx4 v{V_L16}, {srd(R_T)}, s{T} offen lds")
    K("s_mov_b64 exec, -1")
    K(f"v_mov_b32 v{V_CNT}, {L_CNT}")
    K(f"v_mov_b32 v{t0}, 0"); K(f"v_lshl_add_u32 v{t1}, v{V_LANE}, 2, v{V_CNT}"); K(f"ds_write_b32 v{t1}, v{t0}")
    K(f"s_cmp_lt_u32 s{S_J}, 14")
    K.branch("s_cbranch_scc1 L_mset")
    vm_m = K.vm
    RB = 96
    K0 = S_XB
    mksrd(R_T, P_WQKV, 448*2688)
    K(f"s_lshl_b32 s{S_FL}, s{S_MT}, 1"); K(f"s_add_u32 s{S_FL}, s{S_FL}, s{S_J}"); K(f"s_sub_u32 s{S_FL}, s{S_FL}, 14")
    K(f"s_mul_i32 s{K0}, s{S_FL}, 14"); K(f"s_lshl_b32 s{T+5}, s{S_A}, 1"); K(f"s_add_u32 s{K0}, s{K0}, s{T+5}")
    K(f"v_lshrrev_b32 v{t0}, 3, v{V_LANE}"); K(f"v_bfe_u32 v{t1}, v{V_LANE}, 2, 1"); K(f"v_and_b32 v{t2}, 3, v{V_LANE}")
    K(f"v_mul_u32_u24 v{t3}, 56, v{t0}"); K(f"v_mul_u32_u24 v{t4}, 2688, v{t1}"); K(f"v_add_u32 v{t3}, v{t3}, v{t4}")
    K(f"v_lshl_add_u32 v{t3}, v{t2}, 4, v{t3}")
    K(f"s_mul_i32 s{T+5}, s{K0}, 2688"); K(f"v_lshlrev_b32 v{t4}, 1, v{t1}"); K(f"s_lshl_b32 s{T+6}, s{K0}, 1")
    tkl = {}
    if fine: stamp("rp_0")
    K(f"s_add_u32 s{T+7}, s{T+5}, {8*2688}"); K(f"s_cmp_eq_u32 s{S_A}, 3"); K(f"s_cselect_b32 s{T+7}, 0x7000000, s{T+7}"); K(f"s_cselect_b32 s{S_CH}, s{T+7}, 512")
    def rp_load(q): tkl[q] = K(f"buffer_load_dwordx4 {vr(RB+4*q,4)}, v{t3}, {srd(R_T)}, s{T+5 if q < 6 else T+7} offen offset:{448*(q%6)}")
    for q in (2, 3, 4, 5, 8, 9, 10, 11): rp_load(q)
    mksrd(R_X, P_GATE, 896)
    K(f"buffer_load_ushort v{RB+48}, v{t4}, {srd(R_X)}, s{T+6} offen"); K(f"buffer_load_ushort v{RB+49}, v{t4}, {srd(R_X)}, s{T+6} offen offset:16")
    for q in (0, 1, 6, 7): rp_load(q)
    mksrd(R_WS, P_WS, WS_SIZE)
    K(f"s_mov_b32 s{T+6}, 86016"); K(f"v_mul_lo_u32 v{RB+50}, v{t0}, s{T+6}"); K(f"v_and_b32 v{t1}, 7, v{V_LANE}")
    K(f"v_lshl_add_u32 v{RB+50}, v{t1}, 4, v{RB+50}")
    K(f"v_cmp_eq_u32 vcc, 3, v{t2}")
    K(f"s_lshl_b32 s{K0}, s{K0}, 6"); K(f"s_add_u32 s{K0}, s{K0}, {WS_WQ}")
    def rp_store(q):
        n, p, hg = q // 6, (q % 6) // 2, q % 2; b = RB + 4*q
        K.wait_vm(tkl[q])
        K(f"v_cndmask_b32 v{b+2}, v{b+2}, v{RB+48+n}, vcc" if p == 0 else f"v_cndmask_b32 v{b+2}, v{b+2}, 0, vcc")
        K(f"v_cndmask_b32 v{b+3}, v{b+3}, 0, vcc")
        K(f"s_add_u32 s{T+6}, s{K0}, {p*28672 + hg*8*86016}")
        if n: K(f"s_add_u32 s{T+6}, s{T+6}, s{S_CH}")
        return K(f"buffer_store_dwordx4 {vr(b,4)}, v{RB+50}, {srd(R_WS)}, s{T+6} offen sc1")
    for e in range(4): K(f"v_mov_b32 v{RB+52+e}, 0")
    K(f"s_lshl_b32 s{T+5}, s{S_FL}, 2"); K(f"s_add_u32 s{T+5}, s{T+5}, s{S_A}"); K(f"s_lshl_b32 s{T+7}, s{T+5}, 12"); K(f"s_lshl_b32 s{T+5}, s{T+5}, 10")
    K(f"s_add_u32 s{T+5}, s{T+5}, {WS_KVP}"); K(f"s_add_u32 s{T+7}, s{T+7}, {WS_CN}"); K(f"v_lshlrev_b32 v{t0}, 7, v{V_LANE}")
    K(f"buffer_store_dwordx4 {vr(RB+52,4)}, v{V_L16}, {srd(R_WS)}, s{T+5} offen sc1")
    K("s_mov_b32 exec_hi, 0")
    K(f"buffer_store_dword v{RB+52}, v{t0}, {srd(R_WS)}, s{T+7} offen sc1")
    K("s_mov_b32 exec_hi, -1")
    K(f"s_lshl_b32 s{S_FL}, s{S_FL}, 7"); K(f"s_add_u32 s{S_FL}, s{S_FL}, {WS_RPF}"); K(f"s_add_u32 s{S_FL2}, s{S_FL}, 4096")
    K(f"s_cmp_eq_u32 s{S_A}, 3"); K(f"s_cselect_b32 s{S_FL}, s{S_FL}, 0x7000000"); K(f"s_cselect_b32 s{S_FL2}, s{S_FL2}, 0x7000000")
    K("s_waitcnt lgkmcnt(0)")
    settag()
    for q in (2, 3, 4, 5, 8, 9, 10, 11): tk1 = rp_store(q)
    for q in (0, 1, 6, 7): rp_store(q)
    if fine: stamp("rp_st")
    K("s_barrier")
    K.wait_vm(tk1)
    K("s_barrier")
    flag(S_FL)
    stamp("rp_pub")
    K("s_waitcnt vmcnt(1)")
    arrive(C_5); await_(C_5, 4)
    flag(S_FL2)
    arrive(C_E); arrive(C_G)
    K("s_setprio 0")
    K.vm = vm_m
    K.label("L_mset")
    if allpf:
        mksrd(R_X, P_X, 2048*896); mksrd(R_W1, P_W1, 448*3584)
        K(f"s_lshl_b32 s{T+3}, s2, 2"); K(f"s_add_u32 s{T+3}, s{T+3}, s{S_A}")
        K(f"s_mul_i32 s{T}, s{T+3}, {14*128}"); K(f"s_mul_i32 s{T+1}, s{T+3}, {13*128}"); K(f"v_lshlrev_b32 v{t0}, 7, v{V_LANE}")
        K("s_mov_b64 exec, 0x3fff")
        if allpf & 1: K(f"buffer_load_dword v{V_POLL}, v{t0}, {srd(R_X)}, s{T} offen")
        K("s_mov_b64 exec, 0x1fff")
        if allpf & 2: K(f"buffer_load_dword v{V_POLL}, v{t0}, {srd(R_W1)}, s{T+1} offen")
        K("s_mov_b64 exec, -1")
    if spf:
        K(f"s_lshl_b32 s{T+3}, s2, 2"); K(f"s_add_u32 s{T+3}, s{T+3}, s{S_A}")
        K(f"s_mul_i32 s{T}, s{T+3}, {12*128 + 32}"); K(f"s_mul_i32 s{T+1}, s{T+3}, {3*128 + 8}")
        for q in range(13): K(f"s_load_dword s{S_CNT}, {sp(P_W2)}, s{T} offset:{min(128*q, 12*128 + 28)}")
        K("s_waitcnt lgkmcnt(10)")
        for q in range(4): K(f"s_load_dword s{S_CNT}, {sp(P_WO)}, s{T+1} offset:{min(128*q, 3*128 + 4)}")
    mksrd(R_WS, P_WS, WS_SIZE); mksrd(R_WO, P_WO, 448*896); mksrd(R_OUT, P_OUT, 2048*896)
    p2setup()
    K(f"s_mul_i32 s{T}, s{S_ROW}, {112*1024}"); K(f"s_add_u32 s{T}, s{T}, {0x7000000 if x_noh else WS_H}")
    K(f"s_lshl_b32 s{S_HB}, s{T+4}, 12"); K(f"s_add_u32 s{S_HB}, s{S_HB}, s{T}")
    K(f"s_lshl_b32 s{S_HB3}, s{T+2}, 12"); K(f"s_add_u32 s{S_HB3}, s{S_HB3}, s{T}")
    BF1, BF2, BONE = M_AR + 80, 128, 124
    for r in list(range(BF1, BF1 + 16)) + list(range(BONE, BF2 + 8)): K(f"v_mov_b32 v{r}, 0")
    K(f"v_lshlrev_b32 v{t0}, 1, v{V_LANE}")
    K("s_mov_b32 exec_hi, 0")
    K(f"v_mov_b32 v{BONE}, 0x3f80")
    mksrd(R_T, P_B1, 3584)
    for p in range(4): K(f"buffer_load_ushort v{BF1+4*p}, v{t0}, {srd(R_T)}, s{S_W1B} offen offset:{64*p}")
    mksrd(R_T, P_B2, 896)
    K(f"s_lshl_b32 s{T}, s{S_CT}, 7"); K(f"s_lshl_b32 s{T+1}, s{S_A}, 10"); K(f"s_add_u32 s{T}, s{T}, s{T+1}")
    for p in range(2): tk_b2 = K(f"buffer_load_ushort v{BF2+4*p}, v{t0}, {srd(R_T)}, s{T} offen offset:{64*p}")
    K("s_mov_b32 exec_hi, -1")
    K(f"s_lshl_b32 s{T}, s{S_ROW}, 1"); K(f"s_add_u32 s{T}, s{T}, s{S_A}")
    K(f"s_lshl_b32 s{T+1}, s{S_CT}, 7")
    K(f"s_lshl_b32 s{S_PE}, s{T}, 11"); K(f"s_add_u32 s{S_PE}, s{S_PE}, s{T+1}"); K(f"s_add_u32 s{S_PE}, s{S_PE}, {WS_HF}")
    K(f"s_lshl_b32 s{S_PO}, s{T}, 10"); K(f"s_add_u32 s{S_PO}, s{S_PO}, s{T+1}"); K(f"s_add_u32 s{S_PO}, s{S_PO}, {WS_OF}")
    K(f"s_lshl_b32 s{T}, s{S_ROW}, 4"); K(f"s_lshl_b32 s{T+1}, s{S_A}, 2"); K(f"s_add_u32 s{S_OB}, s{T+1}, s{T}")
    FL_E, FL_L, FL_O = (S_PE, 0, 6), (S_PE, 1024, 8), (S_PO, 0, 8)
    K(f"s_lshl_b32 s{T}, s{S_MT}, 2"); K(f"s_add_u32 s{T}, s{T}, s{S_A}"); K(f"s_mul_i32 s{S_RS}, s{T}, 112")
    K(f"s_lshl_b32 s{T+1}, s{S_J}, 3"); K(f"s_add_u32 s{S_RS}, s{S_RS}, s{T+1}"); K(f"s_lshl_b32 s{S_RS}, s{S_RS}, 10"); K(f"s_add_u32 s{S_RS}, s{S_RS}, {WS_H}")
    K(f"s_lshr_b32 s{T}, s{T}, 1"); K(f"s_lshl_b32 s{T}, s{T}, 13"); K(f"s_add_u32 s{T}, s{T}, {WS_HF}")
    K(f"s_mul_i32 s{T+1}, s{S_J}, {74*8}"); K(f"s_and_b32 s{S_FL}, s{T+1}, 0xf800"); K(f"s_add_u32 s{S_FL}, s{S_FL}, s{T}")
    K(f"s_add_u32 s{T+1}, s{T+1}, {37*8}"); K(f"s_and_b32 s{S_FL2}, s{T+1}, 0xf800"); K(f"s_add_u32 s{S_FL2}, s{S_FL2}, s{T}"); K(f"s_add_u32 s{S_FL2}, s{S_FL2}, 1024")
    K(f"s_lshr_b32 s{T+1}, {(1 << 3) | (1 << 10)}, s{S_J}"); K(f"s_and_b32 s{T+1}, s{T+1}, 1"); K(f"s_lshl_b32 s{T+1}, s{T+1}, 10"); K(f"s_add_u32 s{S_FL}, s{S_FL}, s{T+1}")
    K(f"s_cmp_ge_u32 s{S_J}, 14"); K(f"s_cselect_b32 s{S_FL2}, 0x7000000, s{S_FL2}")
    K(f"v_add_u32 v{M_L16B}, {112*1024}, v{V_L16}")
    MP = M_AR + 40
    K(f"v_lshlrev_b32 v{MP}, 7, v{V_LANE}")
    K(f"s_lshl_b32 s{T+3}, s2, 2"); K(f"s_add_u32 s{T+3}, s{T+3}, s{S_A}")
    K(f"s_mul_i32 s{S_XB}, s{T+3}, {13*128}"); K(f"s_lshl_b32 s{S_M0}, s{T+3}, 9")
    def mall_pf():
        K("s_mov_b64 exec, 0x1fff")
        K(f"buffer_load_dword v{V_POLL}, v{MP}, {srd(R_W2)}, s{S_XB} offen")
        K("s_mov_b64 exec, 15")
        K(f"buffer_load_dword v{V_POLL}, v{MP}, {srd(R_WO)}, s{S_M0} offen")
        K("s_mov_b64 exec, -1")
    if mpf == 1: mall_pf()
    if tlb:
        l = newl("tlb")
        K(f"s_cmp_lg_u32 s{S_A}, 1")
        K.branch(f"s_cbranch_scc1 {l}")
        K(f"v_lshlrev_b32 v{t0}, {tlb}, v{V_LANE}")
        K(f"buffer_load_dword v{V_POLL}, v{t0}, {srd(R_WS)}, 0 offen offset:2048"); K.vm -= 1
        K(f"buffer_load_dword v{V_POLL}, v{t0}, {srd(R_OUT)}, 0 offen"); K.vm -= 1
        K.label(l)
    xfrag_addr(M_AX)
    lanepart()
    K(f"v_lshl_add_u32 v{t0}, v{t2}, 3, v{t3}"); K(f"v_lshl_add_u32 v{t0}, v{t0}, 8, v{t4}"); K(f"v_lshl_add_u32 v{t0}, v{t3}, 6, v{t0}")
    K(f"v_add_u32 v{M_AW}, 16384, v{t0}")
    for p in range(1, 4): K(f"v_xor_b32 v{M_AW+p}, {64*p}, v{M_AW}")
    AB = M_AB
    K(f"v_lshl_add_u32 v{t0}, v{t2}, 2, v{t3}"); K(f"v_lshl_add_u32 v{t0}, v{t0}, 7, v{t4}"); K(f"v_bfe_u32 v{t1}, v{V_LANE}, 3, 1"); K(f"v_lshl_add_u32 v{t0}, v{t1}, 6, v{t0}")
    K(f"v_add_u32 v{AB}, s{S_M02}, v{t0}"); K(f"v_xor_b32 v{AB+1}, 64, v{AB}")
    K(f"v_add_u32 v{AB+2}, 65536, v{AB}"); K(f"v_add_u32 v{AB+3}, 65536, v{AB+1}")
    K(f"v_lshlrev_b32 v{t0}, 9, v{t2}"); K(f"v_sub_u32 v22, v{AB+2}, v{t0}"); K(f"v_sub_u32 v23, v{AB+3}, v{t0}")
    box = {}
    K(f"s_cmp_ge_u32 s{S_J}, 14")
    K.branch("s_cbranch_scc1 L_nof")
    vm_nof = K.vm
    K("s_waitcnt lgkmcnt(0)")
    settag()
    if fine: stamp("M_rdy")
    WR, XR = M_BH, M_BH + 4*G
    tk = {}
    def rdg(g):
        ks, p = g // 4, g % 4
        t, ksl = ks // 4, ks % 4
        uo = (t % 2) * 32768
        if p == 0 and ksl == 0:
            shift(range(M_AX, M_AX + 8), SH[t])
            if t == 3: K.wait_vm(tk_b2)
            if t < 6: K("s_barrier")
            else:
                l = newl("s6")
                K.wait_lg(box['cs'])
                K(f"v_cmp_ne_u32 vcc, 4, v{t4}")
                K(f"s_cbranch_vccz {l}")
                lgs = K.lg
                await_(C_S, 4)
                K.lg = lgs
                K.raw(f"{l}:")
        if p == 0: K(f"ds_read_b128 {vr(XR + 4*(ks % 3), 4)}, v{M_AX+ksl} offset:{uo}")
        for r in range(2):
            tk[g] = K(f"ds_read_b64_tr_b16 {vr(WR + 4*(g % G) + 2*r, 2)}, v{M_AW+p} offset:{uo + (16*ksl + 4*r)*256}")
    for g in range(G): rdg(g)
    for g in range(112):
        K.wait_lg(tk[g])
        mfma(M_ACC + 16*(g % 4), WR + 4*(g % G), XR + 4*((g // 4) % 3), "0" if g < 4 else None, x_m16 & 1)
        if 52 <= g < 56: mfma(M_ACC + 16*(g % 4), BF1 + 4*(g % 4), BONE)
        if g + G < 112: rdg(g + G)
        if g + G == 112: arrive(C_E)
        if g + G + 3 == 96: box['cs'] = K(f"ds_read_b32 v{t4}, v{V_CNT} offset:{C_S}")
        if mpf > 1 and g == mpf: mall_pf()
        if hpt and g == hpt: K(f"buffer_load_dword v{V_POLL}, v{MP}, {srd(R_WS)}, s{S_RS} offen sc1")
    stamp("ffn1")
    K(f"s_setprio {prioG}")
    tk = {}
    def rdb(ks, part=3):
        r, ksl = ks // 4, ks % 4
        b = M_BH + 8 * (ks % 8)
        u = RUNIT[r]
        if ksl == 0 and r >= (4 if aw2 == 3 else 2) and part & 1: K.wait_vm(tk_r[r])
        for pp in range(2):
            for h in range(2):
                if not part & (1 << pp): continue
                if r < 7:
                    tk[ks] = K(f"ds_read_b64_tr_b16 {vr(b + 4*pp + 2*h, 2)}, v{AB + pp + (2 if u >= 2 else 0)} offset:{(u%2)*32768 + (16*ksl + 8*h)*128}")
                else:
                    hh, sx = (ks % 4) // 2, ks % 2
                    tk[ks] = K(f"ds_read_b64_tr_b16 {vr(b + 4*pp + 2*h, 2)}, v{(22 if (sx == 1 and h == 1) else AB + 2) + pp} offset:{(u%2)*32768 + (28*hh + 16*sx + 8*h)*128}")
    def pull():
        await_(C_B, 4)
        for e in range(12): K(f"v_mov_b32 v{BF1+e}, v{BONE+e}")
        for ks in range(8):
            if ks >= 3: K.wait_lg(tk[ks - 3])
            rdb(ks)
        arrive(C_P)
    cc = -2.0 * 0.7978845608028654 * 1.4426950408889634
    K(f"v_mov_b32 v{t0}, {f2u(cc):#x}"); K(f"v_mov_b32 v{t1}, 1.0"); K(f"s_mov_b32 s{S_K}, {f2u(cc*0.044715):#x}"); K(f"s_mov_b32 s{S_K+1}, {f2u(cc*0.044715):#x}")
    tkh = {}
    for g in range(8):
        a = M_ACC + 8*g; tt = M_AR + 8*(g % 2); o = M_AR + 48 + 4*g
        if aw2 == 4 and g == md:
            await_(C_E, 8)
            K(f"s_cmp_eq_u32 s{S_ACT}, 1"); K(f"s_cselect_b32 s{R_W2+2}, s{R_W2+2}, 0")
            pend.extend(g_w2(0) + g_w2(1))
        if x_nog: pass
        elif g < pkg:
            for e in range(0, 8, 2): K(f"v_pk_mul_f32 {vr(tt+e,2)}, {vr(a+e,2)}, {vr(a+e,2)}")
            for e in range(0, 8, 2): K(f"v_pk_fma_f32 {vr(tt+e,2)}, {vr(tt+e,2)}, {sp(S_K)}, {vr(t0,2)} op_sel_hi:[1,1,0]")
            drip(1)
            for e in range(0, 8, 2): K(f"v_pk_mul_f32 {vr(tt+e,2)}, {vr(a+e,2)}, {vr(tt+e,2)}")
            for e in range(8):
                K(f"v_exp_f32 v{tt+e}, v{tt+e}")
                if e == 2: drip(1)
            for e in range(0, 8, 2): K(f"v_pk_add_f32 {vr(tt+e,2)}, {vr(tt+e,2)}, {vr(t0,2)} op_sel:[0,1] op_sel_hi:[1,1]")
            drip(1)
            for e in range(8): K(f"v_rcp_f32 v{tt+e}, v{tt+e}")
            drip(1 if g < 7 else 99)
            for e in range(0, 8, 2): K(f"v_pk_mul_f32 {vr(tt+e,2)}, {vr(a+e,2)}, {vr(tt+e,2)}")
        else:
            for e in range(8): K(f"v_mul_f32 v{tt+e}, v{a+e}, v{a+e}")
            for e in range(8): K(f"v_fma_f32 v{tt+e}, v{tt+e}, s{S_K}, v{t0}")
            drip(1)
            for e in range(8): K(f"v_mul_f32 v{tt+e}, v{a+e}, v{tt+e}")
            for e in range(8):
                K(f"v_exp_f32 v{tt+e}, v{tt+e}")
                if e == 2: drip(1)
            for e in range(8): K(f"v_add_f32 v{tt+e}, 1.0, v{tt+e}")
            drip(1)
            for e in range(8): K(f"v_rcp_f32 v{tt+e}, v{tt+e}")
            drip(1 if g < 7 else 99)
            for e in range(8): K(f"v_mul_f32 v{tt+e}, v{a+e}, v{tt+e}")
        for e in range(4): K(f"v_cvt_pk_bf16_f32 v{o+e}, v{tt+2*e}, v{tt+2*e+1}")
        if g == gw: arrive(C_G)
        if aw2 == 3 and g == gp: pull()
        if (g + 1) % sb == 0:
            K("s_setprio 3")
            for x in range(g + 1 - sb, g + 1):
                if x == 4: K(f"s_add_u32 s{S_RS}, s{S_RS}, 4096")
                tkh[x] = K(f"buffer_store_dwordx4 {vr(M_AR + 48 + 4*x,4)}, v{V_L16}, {srd(R_WS)}, s{S_RS} offen offset:{1024*(x%4)} " + ["sc1", "sc1 nt", "sc0 sc1"][hst])
            if g < 7: K(f"s_setprio {prioG}")
    stamp("gelu_v")
    await_(C_0, 4)
    K.wait_vm(tkh[3]); signal(S_FL, 7)
    stamp("gelu")
    K(f"s_cmp_eq_u32 s{S_ACT}, 1")
    K.branch("s_cbranch_scc1 L_p2")
    K("s_waitcnt vmcnt(0)")
    signal(S_FL2, 7)
    def l2warm(first, n):
        K(f"s_lshr_b32 s{T}, s2, 3"); K(f"s_and_b32 s{T}, s{T}, 3"); K(f"s_lshl_b32 s{T}, s{T}, 2"); K(f"s_add_u32 s{T}, s{T}, s{S_A}"); K(f"s_lshl_b32 s{T}, s{T}, 13")
        K(f"v_lshlrev_b32 v{t0}, 7, v{V_LANE}")
        for k in range(n):
            K(f"s_add_u32 s{T+1}, s{T}, {(first + 1024*k)*128}")
            K(f"buffer_load_dword v{t1}, v{t0}, {srd(R_W2)}, s{T+1} offen")
    if l2w & 1:
        l2warm(0, 13)
        for k in range(4):
            K(f"s_add_u32 s{T+1}, s{T}, {1024*k*128}")
            K(f"buffer_load_dword v{t1}, v{t0}, {srd(R_WO)}, s{T+1} offen")
    K.branch("s_branch L_fin")
    K.label("L_nof")
    K.vm = vm_nof
    if hlp:
        if hw == 1: await_(C_E, 8, 2)
        if hw == 2: await_(C_0, 4, 2)
        if mpf > 1: mall_pf()
        K(f"s_mul_i32 s{T}, s{S_CT}, {111*128}")
        K("s_mov_b32 exec_hi, 0xffffff")
        for r in range(h0, 7):
            for q in range(2):
                K(f"s_add_u32 s{T+1}, s{S_W2B3 if r == 3 else S_W2B}, {(0 if r == 3 else (2*r % 7)*64*896) + q*56*128}"); K(f"s_add_u32 s{T+1}, s{T+1}, s{T}")
                K(f"buffer_load_dword v{V_POLL}, v{MP}, {srd(R_W2)}, s{T+1} offen")
                K(f"s_waitcnt vmcnt({hd})")
        K(f"s_lshl_b32 s{T}, s{S_CT}, 2"); K(f"s_add_u32 s{T}, s{T}, s{S_A}"); K(f"s_mul_i32 s{T}, s{T}, {196*128}")
        K("s_mov_b32 exec_hi, 0x1ffff")
        for q in range(4):
            K(f"buffer_load_dword v{V_POLL}, v{MP}, {srd(R_WO)}, s{T} offen"); K(f"s_add_u32 s{T}, s{T}, {49*128}")
            K(f"s_waitcnt vmcnt({hd})")
        K("s_mov_b64 exec, -1")
        stamp("hlp_done")
        K.branch("s_branch L_fin")
    if mpf == -2: await_(C_E, 8, 2)
    if mpf == -1: await_(C_0, 4, 2)
    if mpf < 0:
        K(f"s_lshl_b32 s{T+3}, s2, 2"); K(f"s_add_u32 s{T+3}, s{T+3}, s{S_A}")
        K(f"s_mul_i32 s{T}, s{T+3}, {98*128}"); K(f"s_mul_i32 s{T+1}, s{T+3}, {25*128}")
        K(f"buffer_load_dword v{V_POLL}, v{MP}, {srd(R_W2)}, s{T} offen")
        K(f"s_add_u32 s{T}, s{T}, {64*128}")
        K("s_mov_b32 exec_hi, 3")
        K(f"buffer_load_dword v{V_POLL}, v{MP}, {srd(R_W2)}, s{T} offen")
        K("s_mov_b64 exec, 0x1ffffff")
        K(f"buffer_load_dword v{V_POLL}, v{MP}, {srd(R_WO)}, s{T+1} offen")
        K("s_mov_b64 exec, -1")
    await_(C_0, 4, 2)
    K("s_waitcnt lgkmcnt(0)")
    settag()
    if mpf > 1: mall_pf()
    if l2w & 2: l2warm(0, 13)
    K("s_waitcnt vmcnt(0)")
    if aw2 == 3: pull()
    if aw2 == 4:
        await_(C_E, 8); run(g_w2(0) + g_w2(1)); K("s_waitcnt vmcnt(0)")

    K.label("L_p2")
    tk_h = K.vm
    def g_wo(hf):
        def step(q):
            def f():
                if q == 0:
                    K(f"s_mul_i32 s{TD}, s{S_A}, {112*896}"); K(f"s_lshl_b32 s{TD+1}, s{S_CT}, 7"); K(f"s_add_u32 s{TD}, s{TD}, s{TD+1}")
                    if hf: K(f"s_add_u32 s{TD}, s{TD}, {56*896}")
                    K(f"s_add_u32 m0, s{S_M02}, {U[RUNIT[7+hf]]}")
                if q == 4: K(f"s_add_u32 s{TD}, s{TD}, {32*896}"); K(f"s_add_u32 m0, s{S_M02}, {U[RUNIT[7+hf]] + 4096}")
                x = K(f"buffer_load_dwordx4 v{V_D2+q%4}, {srd(R_WO)}, s{TD} offen offset:{1024*(q%4)} lds") if 7 < x_skipB else K.vm - 8
                if q == 6: tk_r[7+hf] = x
            return f
        return [step(q) for q in range(7)]
    tk_a = {}
    def lda(ks, part=3):
        b = M_AR + 8 * (ks % NA); r = ks // 4
        if part & 1:
            if ks % 4 == 0: K(f"s_add_u32 s{T+7}, s{S_HB3 if r == 3 else S_HB}, {0 if r == 3 else (2*r % 7)*4096}")
            K(f"buffer_load_dwordx4 {vr(b,4)}, v{V_L16}, {srd(R_WS)}, s{T+7} offen offset:{1024*(ks%4)} sc1")
        if part & 2: tk_a[ks] = K(f"buffer_load_dwordx4 {vr(b+4,4)}, v{M_L16B}, {srd(R_WS)}, s{T+7} offen offset:{1024*(ks%4)} sc1")
    for t2_ in range(2):
        for pp in range(2): mfma(M_ACC + 32*t2_ + 16*pp, (BF1 + 4 if aw2 == 3 else BF2) + 4*pp, BF1 if aw2 == 3 else BONE, "0")
    g0, g1, g2, g3 = g_w2(0), g_w2(1), g_w2(2), g_w2(3)
    if aw2 == 3:
        K.wait_vm(tk_h - 1)
        signal(S_FL2, 7)
        K(f"s_setprio 0")
        stamp("h_pub1")
        poll_issue(FL_E)
        poll_check(FL_E)
        stamp("hE_seen")
        for ks in range(pre): lda(ks)
        g3 = []
    elif aw2:
        K.wait_vm(tk_h - 1)
        signal(S_FL2, 7)
        K(f"s_setprio 0")
        stamp("h_pub1")
        if hfirst:
            poll_issue(FL_E)
            if not x_noE: poll_check(FL_E)
            stamp("hE_seen")
            for ks in range(pre): lda(ks)
        if aw2 != 4: await_(C_B, 4)
        stamp("B_seen")
        if jit:
            for ks in range(8):
                if ks >= 3: K.wait_lg(tk[ks - 3])
                rdb(ks)
        else:
            for ks in range(3): rdb(ks)
            K.wait_lg(tk[0]); rdb(3)
            K.wait_lg(tk[3])
            for q in range(8):
                g2[q]()
                if q < 4:
                    if q == 3: K.wait_lg(tk[4])
                    rdb(4 + q)
        K("s_waitcnt lgkmcnt(0)")
        if not hfirst:
            poll_issue(FL_E)
            run(g3); g3 = []
            poll_check(FL_E)
            stamp("hE_seen")
            for ks in range(pre): lda(ks)
    else:
        await_(C_E, 8)
        for q in range(8):
            g0[q]()
        K.wait_vm(tk_h - 1)
        signal(S_FL2, 7)
        K(f"s_setprio 0")
        stamp("h_pub1")
        poll_issue(FL_E)
        run(g1)
        poll_check(FL_E)
        stamp("hE_seen")
        if jit:
            for ks in range(8):
                if ks < pre: lda(ks)
                if ks % 4 == 0: K.wait_vm(tk_r[ks // 4])
                if ks >= 3: K.wait_lg(tk[ks - 3])
                rdb(ks)
            assert pre <= 8
        else:
            for ks in range(4): lda(ks)
            K.wait_vm(tk_r[0])
            for ks in range(4):
                if ks == 3: K.wait_lg(tk[0])
                rdb(ks); lda(4 + ks)
            K.wait_vm(tk_r[1]); K.wait_lg(tk[3])
            for q in range(8):
                g2[q]()
                if q < 4:
                    if q == 3: K.wait_lg(tk[4])
                    rdb(4 + q)
        K("s_waitcnt lgkmcnt(0)")
    stamp("p2_prep")
    poll_issue(FL_L)
    sched = []
    if jit:
        for k in range(pre, 28):
            for p in (1, 2): sched.append((k, max(k - NA + 1, c0 + 1 if k >= 12 else 0), lambda k=k, p=p: lda(k, p), 0))
        early = {2: 0, 3: 0, 4: c3 + 1, 5: 12, 6: 16, 7: cq + 1, 8: 20}
        for r in range(2, 9):
            for q, f in enumerate(g_w2(r) if r < 7 else g_wo(r - 7)): sched.append((4*r - bl + q // 2 + 0.5, early[r], f, r))
        sched.sort(key=lambda z: z[0])
    else:
        for ks in range(pre if aw2 else 8, 12): pend.extend([lambda ks=ks: lda(ks, 1), lambda ks=ks: lda(ks, 2)])
        pend.extend(g3)
    def jdrip(ks):
        first = min([z[3] for z in sched if z[3]], default=0)
        for n, (key, e, f, grp) in enumerate(sched):
            if e <= ks and grp in (0, first):
                f(); sched.pop(n); return
    def step(ks, side):
        K.wait_vm(tk_a[ks])
        if ks >= 8: K.wait_lg(tk[ks])
        a = M_AR + 8 * (ks % NA); b = M_BH + 8 * (ks % 8)
        n = 0
        for t2_ in range(2):
            for pp in range(2):
                if not (x_nomf and ks < 28): mfma(M_ACC + 32*t2_ + 16*pp, b + 4*pp, a + 4*t2_, None, x_m16 & 2)
                side(n); n += 1
    nxt = [12]
    def hstep(ks):
        def side(n):
            if n < 2 and ks + 3 >= 8: rdb(ks + 3, 1 << n)
            if jit and sched:
                jdrip(ks)
                if n < rate - 4: jdrip(ks)
            else: drip(2 if len(pend) > 8 else 1)
        step(ks, side)
    def ldo(ks, part):
        b = M_AR + 8 * (ks % NA)
        if part == 0:
            K(f"buffer_load_dword v{t2}, v{t3}, {srd(R_WS)}, s{T+3} offen sc1")
            box['g'] = K(f"buffer_load_dword v{t3}, v{t3}, {srd(R_WS)}, s{T+3} offen offset:2048 sc1")
        if part == 1:
            if ks == 32: K(f"s_add_u32 s{T+4}, s{T+4}, 4096")
            K(f"buffer_load_dwordx4 {vr(b,4)}, v{V_L16}, {srd(R_WS)}, s{T+4} offen offset:{1024*(ks%4)} sc1")
        if part == 2: tk_a[ks] = K(f"buffer_load_dwordx4 {vr(b+4,4)}, v{M_L16B}, {srd(R_WS)}, s{T+4} offen offset:{1024*(ks%4)} sc1")
    olist = lambda: [lambda: ldo(0, 0)] + [lambda k=k, p=p: ldo(k, p) for k in range(28, 36) for p in (1, 2)]
    for ks in range(oc + 1):
        hstep(ks)
        if ks == c0:
            if not x_noE: poll_check(FL_L)
            stamp("hL_seen")
        if ks == 4 and aw2 == 3: await_(C_B2, 4)
        if ks == c3:
            await_(C_3, 4)
            if not jit: pend.extend(g_w2(4))
        if ks == cq:
            await_(C_Q, 4)
            if not jit: pend.extend(g_wo(0))
        if not jit:
            while ks >= c0 and nxt[0] <= ks + NA and nxt[0] < 28:
                pend.extend([lambda k=nxt[0]: lda(k, 1), lambda k=nxt[0]: lda(k, 2)]); nxt[0] += 1
            if ks == 11: pend.extend(g_w2(5))
            if ks == 15: pend.extend(g_w2(6))
            if ks == 19: pend.extend(g_wo(1))
        if ks in (3, 11, 19): stamp(f"p2_k{ks}")
        if ks == oc - 2: poll_issue(FL_O)
    while sched: jdrip(99)
    assert not pend and oc >= 22
    K(f"v_and_b32 v{t3}, 31, v{V_LANE}"); K(f"v_lshlrev_b32 v{t3}, 2, v{t3}")
    K(f"s_lshl_b32 s{T+3}, s{S_OB}, 7"); K(f"s_add_u32 s{T+3}, s{T+3}, {WS_G}")
    K(f"s_lshl_b32 s{T+4}, s{S_OB}, 11"); K(f"s_add_u32 s{T+4}, s{T+4}, {WS_O}")
    K(f"v_add_u32 v{M_L16B}, 32768, v{V_L16}")
    K(f"v_add_u32 v{V_D2}, s{S_M02}, v{V_L16}")
    for q in range(1, 4): K(f"v_xor_b32 v{V_D2+q}, {64*q}, v{V_D2}")
    K("s_waitcnt lgkmcnt(0)")
    K(f"s_cmp_lg_u32 s{PD[0]}, {FL_O[2]}" if not x_noo else "s_cmp_lg_u32 0, 0")
    K.branch("s_cbranch_scc1 L_olate")
    sv, sl = K.vm, K.lg
    stamp("o_early")
    pend.extend(olist())
    for ks in range(oc + 1, 28): hstep(ks)
    drip(99)
    ev, el = K.vm, K.lg
    K.branch("s_branch L_ojoin")
    K.label("L_olate")
    K.vm, K.lg = sv, sl
    for ks in range(oc + 1, 28): hstep(ks)
    poll_issue(FL_O)
    poll_check(FL_O)
    stamp("o_late")
    run(olist())
    assert (ev, el) == (K.vm, K.lg)
    K.label("L_ojoin")
    stamp("p2_h_done")
    tk_g = box['g']
    K.wait_vm(tk_g)
    if f2: stamp("t_g")
    K(f"v_sub_f32 v{t4}, 1.0, v{t2}"); K(f"v_sub_f32 v{t5}, 1.0, v{t3}")
    K(f"v_cvt_pk_bf16_f32 v{t4}, v{t4}, v{t5}"); K(f"v_and_b32 v{t5}, 0xffff0000, v{t4}"); K(f"v_lshlrev_b32 v{t4}, 16, v{t4}")
    if tl:
        for e in range(0, 32, 2): pscale(M_ACC+e, t4, True)
        for ks in range(28, 36):
            K.wait_vm(tk_a[ks] - 1); K.wait_lg(tk[ks])
            a = M_AR + 8 * (ks % NA); b = M_BH + 8 * (ks % 8)
            for pp in range(2):
                mfma(M_ACC + 16*pp, b + 4*pp, a)
                if ks + 3 < 36: rdb(ks + 3, 1 << pp)
                pscale(M_ACC + 32 + 4*(ks - 28) + 2*pp, t5, False)
        K.wait_vm(tk_a[35])
        for ks in range(28, 36):
            a = M_AR + 8 * (ks % NA); b = M_BH + 8 * (ks % 8)
            for pp in range(2):
                mfma(M_ACC + 32 + 16*pp, b + 4*pp, a + 4)
                n = 2*(ks - 28) + pp - 6
                if 0 <= n < 8: K(f"ds_write_b128 v{V_D2 + n%4}, {vr(M_ACC+4*n,4)} offset:{1024*n}")
        for b in range(8): K(f"ds_write_b128 v{V_D2 + b%4}, {vr(M_ACC+32+4*b,4)} offset:{32768 + 1024*b}")
    else:
        for e in range(0, 64, 2): pscale(M_ACC+e, t4 if e < 32 else t5, True)
        for ks in range(28, 36):
            def side(n):
                if n < 2 and ks + 3 < 36: rdb(ks + 3, 1 << n)
            step(ks, side)
        if f2: stamp("t_mf")
        for t2_ in range(2):
            for b in range(8): K(f"ds_write_b128 v{V_D2 + b%4}, {vr(M_ACC+32*t2_+4*b,4)} offset:{32768*t2_ + 1024*b}")
    stamp("p2_done")

    K.label("L_red")
    K(f"v_and_b32 v{t1}, 7, v{V_LANE}"); K(f"v_lshrrev_b32 v{t3}, 3, v{V_LANE}")
    K(f"s_lshl_b32 s{T+1}, s{S_A}, 3"); K(f"v_add_u32 v{t0}, s{T+1}, v{t3}")
    K(f"v_and_b32 v{t2}, 3, v{V_LANE}"); K(f"v_lshlrev_b32 v{t2}, 2, v{t2}"); K(f"v_xor_b32 v{t0}, v{t0}, v{t2}")
    K(f"v_lshlrev_b32 v{t0}, 4, v{t0}"); K(f"v_lshl_add_u32 v{t0}, v{t1}, 10, v{t0}")
    K(f"s_lshr_b32 s{T+2}, s{S_W}, 2"); K(f"s_lshl_b32 s{T}, s{T+2}, 15"); K(f"v_add_u32 v{t0}, s{T}, v{t0}")
    K(f"v_mul_u32_u24 v{t3}, 896, v{t3}"); K(f"v_lshl_add_u32 v{t3}, v{t1}, 4, v{t3}")
    K(f"s_lshl_b32 s{T}, s{S_ROW}, 2"); K(f"s_add_u32 s{T}, s{T}, s{S_W}"); K(f"s_mul_i32 s{T}, s{T}, {8*896}"); K(f"s_lshl_b32 s{T+1}, s{S_CT}, 7"); K(f"s_add_u32 s{T+5}, s{T}, s{T+1}")
    K("s_waitcnt lgkmcnt(0)")
    K("s_barrier")
    if f2: stamp("t_bar")
    R = 160
    for q in range(4):
        K(f"ds_read_b128 {vr(R+8*q,4)}, v{t0} offset:{8192*q}")
        K(f"ds_read_b128 {vr(R+8*q+4,4)}, v{t0} offset:{8192*q + 512}")
    K("s_waitcnt lgkmcnt(4)")
    for e in range(0, 8, 2): padd(R+e, R+e, R+8+e, True)
    K("s_waitcnt lgkmcnt(0)")
    for e in range(0, 8, 2): padd(R+16+e, R+16+e, R+24+e, True)
    for e in range(0, 8, 2): padd(R+e, R+e, R+16+e, True)
    for e in range(4): K(f"v_cvt_pk_bf16_f32 v{R+e}, v{R+2*e}, v{R+2*e+1}")
    K(f"buffer_store_dwordx4 {vr(R,4)}, v{t3}, {srd(R_OUT)}, s{T+5} offen" + ["", " sc1", " nt", " sc0 sc1"][outm])
    if f2: stamp("t_st")
    K(f"s_xor_b32 s{T}, s2, 64"); K(f"s_or_b32 s{T}, s{T}, s{S_W}"); K(f"s_cmp_lg_u32 s{T}, 0")
    K.branch("s_cbranch_scc1 L_fin")
    K(f"s_mov_b32 s{T}, {WS_EPOCH}")
    flag(T)
    K.label("L_fin")
    if stamps:
        K("s_waitcnt vmcnt(0)")
        stamp("end")
        if probe is not None:
            i0 = STAMP_IDS.setdefault('start', len(STAMP_IDS)); i1 = STAMP_IDS.setdefault(probe, len(STAMP_IDS))
            K(f"v_readlane_b32 s{T}, v{V_STAMP}, {i0}"); K(f"v_readlane_b32 s{T+1}, v{V_STAMP}, {i1}")
            K("s_nop 4")
            K(f"s_cmp_eq_u32 s{T+1}, 0"); K(f"s_cselect_b32 s{T+1}, s{T}, s{T+1}")
            if pwg >= 0:
                K(f"s_cmp_lg_u32 s2, {pwg}")
                K.branch("s_cbranch_scc1 L_end")
            K.label("L_probe")
            K("s_sleep 2")
            K(f"s_memrealtime {sp(S_ST)}"); K("s_waitcnt lgkmcnt(0)")
            K(f"s_sub_u32 s{T+2}, s{S_ST}, s{T+1}"); K(f"s_cmp_lt_u32 s{T+2}, {pt}")
            K.branch("s_cbranch_scc1 L_probe")
            K.branch("s_branch L_end")
        K(f"s_lshl_b32 s{T}, s2, 3"); K(f"s_add_u32 s{T}, s{T}, s{S_W}"); K(f"s_lshl_b32 s{T}, s{T}, 8"); K(f"s_add_u32 s{T}, s{T}, {WS_STAMP}")
        K(f"v_lshlrev_b32 v{t0}, 2, v{V_LANE}")
        K(f"buffer_store_dword v{V_STAMP}, v{t0}, {srd(R_WS)}, s{T} offen")
    K.label("L_end")
    K("s_endpgm")
    K.raw(f".fill (28672 + 8192 * {1 if stamps else 0} - (L_end - {NAME})) / 4, 4, 0xbf800000")

    head = f"""; Fused gated mix of hedgehog linear attention and GELU FFN (emitted by a hand-written generator script)
; @launch grid=(256,1,1) block=(512,1,1) lds=163840
.amdgcn_target "amdgcn-amd-amdhsa--gfx950"
.text
.globl {NAME}
.p2align 8
.type {NAME},@function
"""
    tail = f""".section .rodata,"a"
.p2align 6
.amdhsa_kernel {NAME}
  .amdhsa_next_free_vgpr 256
  .amdhsa_next_free_sgpr 102
  .amdhsa_accum_offset 256
  .amdhsa_group_segment_fixed_size 0
  .amdhsa_kernarg_size 104
  .amdhsa_user_sgpr_count 2
  .amdhsa_user_sgpr_kernarg_segment_ptr 1
  .amdhsa_system_sgpr_workgroup_id_x 1
.end_amdhsa_kernel
"""
    return head + K.text() + tail

STAMP_IDS = {}
def parse_opts(argv):
    kw = {}
    for a in argv:
        if a.startswith("-D"):
            k, v = a[2:].split("="); kw[k] = int(v) if v.lstrip("-").isdigit() else v
    return kw
if __name__ == "__main__":
    out = sys.argv[1] if len(sys.argv) > 1 else "k.s"
    open(out, "w").write(gen(**parse_opts(sys.argv)))
```

```python
import sys, struct
from asmlib import Asm

NAME = "gated_mix__linear_kernel_hedgehog__dense_activation_gelu__prompt_kernel"
def f2u(x): return struct.unpack("<I", struct.pack("<f", x))[0]

WS_EPOCH = 0
WS_RPF   = 0x8000
WS_STAMP = 0x10000
WS_G     = 0xA0000
WS_WQ    = 0x100000
WS_KVP   = 0x280000
WS_O     = 0x480000
WS_H     = 0x680000
WS_CN    = 0x300000
WS_HF    = WS_CN
WS_OF    = WS_CN + 2048*128
WS_KVF   = WS_CN + 3072*128
WS_SIZE  = 0xE00000

U = [0, 32768, 65536, 98304, 131072]
L_K, L_V, L_Q = 98304, 126976, 65536
L_MISC = 155648
L_PHI, L_CNT, L_B2, L_B1 = L_MISC, L_MISC + 2048, L_MISC + 2560, L_MISC + 3072
L_KVS = U[3]
L_KVF = L_MISC + 4096
RUNIT = [0, 1, 0, 1, 3, 0, 1, 2, 3]
C_E, C_0, C_1, C_2, C_3, C_4, C_Q, C_G, C_B, C_S, C_5, C_P, C_B2 = 0, 4, 8, 12, 16, 20, 24, 28, 32, 36, 40, 44, 48

P_X, P_WQKV, P_PHI, P_WO, P_W1, P_B1, P_W2 = 16, 18, 20, 22, 26, 28, 30
P_B2, P_GATE, P_OUT, P_WS = 32, 34, 36, 40
R_X, R_W1, R_W2, R_WO, R_WS, R_OUT, R_T = 44, 48, 52, 56, 60, 64, 68
S_MT, S_J, S_W, S_A, S_FL2, S_TAG, S_CH, S_CNT = 72, 73, 74, 75, 76, 78, 77, 100
S_CHO = 80
S_M0 = 87
S_XB, S_W1B = 88, 89
S_T = 90
S_UP = 98
S_E = 42
S_H = S_J
S_CT, S_ROW, S_ACT = 43, 3, 101
S_K = 4
S_ST = 6
S_L28 = 24
S_FL = 8
S_HB, S_W2B, S_OB, S_HB3, S_W2B3, S_M02, S_RS = 9, 10, 11, 12, 13, 14, 15
S_PE, S_P3, S_PO = 34, 35, 38
PD = [16, 17, 18, 19, 20, 21, 22, 23, 26, 27, 28, 29, 30, 31, 32, 33]
def srd(r): return f"s[{r}:{r+3}]"
def sp(r): return f"s[{r}:{r+1}]"

V_LANE, V_L16, V_STAMP, V_TAG, V_POLL, V_CNT = 1, 2, 3, 4, 5, 6
V_T = 8
V_D2 = 18
A_PA, A_AX, A_AD, A_L4, A_PH, A_TR, A_G = 7, 14, 22, 24, 25, 30, 31
V_W, V_P, V_ACC, V_PHI, V_X = 32, 64, 96, 128, 144
A_XD, A_WD, A_QD, A_GW = 64, 68, 72, 16
M_L16B, M_AB = 7, 14
M_ACC, M_BH, M_AR = 24, 88, 152
M_AX, M_AW = 136, 140
NA = 13
def vr(a, n): return f"v[{a}:{a+n-1}]"
UPM = sp(S_UP)
L2E = 1.4426950408889634

def gen(stamps=False, spin=20000, rot1=9, codepf=True, slp=2, cyc=False, G=5, prioA=1, prioM=2, kvf=27, fine=False,
        pkq=0, pkk=1, LA=9, LA0=6, c0=2, mpf=12, outm=0, tlb=0, gw=-1, hf0=7, rpb=3, prioG=2, k6=4, qpf=1, sb=1, qd=0, probe=None, pwg=-1, pt=4000, aw2=2, pre=8, cb=22, pkg=2, rpa=0, f2=0, hfirst=1, early=0, oc=22, x_now2=0, x_noh=0, x_nomf=0, x_now1=0, rb2=0, gp=3, pa=10, x_at=4, c3=9, cq=17, spf=0, allpf=0, l2w=0, jit=0, bl=5, rate=4, x_m16=0, ra=2, rb=4, rc=2, rd=0, x_skipB=99, x_noo=0, x_nog=0, x_noE=0, md=2, hlp=0, hw=2, h0=0, hd=0, hh=0, tl=1, am=1, kf=1, wso=0, hpt=0, hst=0, k1=11, kd=2, kb=24, qfirst=0, rp=1, re=0, mpf2=0, mpa=0, nfe=1):
    K = Asm()
    T = S_T
    TD = T + 5
    t0, t1, t2, t3, t4, t5 = range(V_T, V_T + 6)
    def stamp(name):
        if not stamps: return
        if probe is not None and name != probe: return
        if cyc and name in ("rp_seen", "kv_issued", "q_gemm", "B_seen", "o_early", "o_late"): return
        K("s_waitcnt lgkmcnt(0)")
        K(f"s_memrealtime {sp(S_ST)}")
        if cyc: K(f"s_memtime s[0:1]")
        K("s_waitcnt lgkmcnt(0)")
        i = STAMP_IDS.setdefault(name, len(STAMP_IDS))
        K(f"v_writelane_b32 v{V_STAMP}, s{S_ST}, {i}")
        if cyc: K(f"v_writelane_b32 v{V_STAMP}, s0, {32 + i}")
    uid = [0]
    def newl(p): uid[0] += 1; return f"L_{p}{uid[0]}"
    def poll_issue(fl):
        K(f"s_load_dword s{PD[0]}, {sp(P_WS)}, s{fl[0]} offset:{fl[1]} glc")
    def poll_check(fl):
        l, d = newl("poll"), newl("polld")
        K(f"s_mov_b32 s{S_CNT}, {spin}")
        K.raw(f"{l}:")
        K("s_waitcnt lgkmcnt(0)")
        K(f"s_cmp_eq_u32 s{PD[0]}, {fl[2]}")
        K.branch(f"s_cbranch_scc1 {d}")
        K(f"s_sub_u32 s{S_CNT}, s{S_CNT}, 1")
        K(f"s_cbranch_scc1 {d}")
        if slp: K(f"s_sleep {slp}")
        poll_issue(fl)
        K(f"s_branch {l}")
        K.label(d)
    def signal(soff_reg, n):
        K(f"v_mov_b32 v{t5}, 1"); K(f"v_lshlrev_b32 v{V_POLL}, 7, v{V_LANE}")
        K(f"s_mov_b64 exec, {(1 << n) - 1}")
        K(f"buffer_atomic_add v{t5}, v{V_POLL}, {srd(R_WS)}, s{soff_reg} offen")
        K("s_mov_b64 exec, -1")
    def vpoll_issue(vaddr):
        return K(f"buffer_load_dword v{V_POLL}, v{vaddr}, {srd(R_WS)}, 0 offen sc1")
    def vpoll_check(tok, vaddr):
        l, d = newl("poll"), newl("polld")
        K(f"s_mov_b32 s{S_CNT}, {spin}")
        K.wait_vm(tok)
        K.label(l)
        K(f"v_cmp_ne_u32 vcc, s{S_TAG}, v{V_POLL}")
        K.branch(f"s_cbranch_vccz {d}")
        K(f"s_sub_u32 s{S_CNT}, s{S_CNT}, 1")
        K.branch(f"s_cbranch_scc1 {d}")
        K(f"s_sleep 10")
        K(f"buffer_load_dword v{V_POLL}, v{vaddr}, {srd(R_WS)}, 0 offen sc1"); K.vm -= 1
        K("s_waitcnt vmcnt(0)")
        K.branch(f"s_branch {l}")
        K.label(d)
    def flag(soff_reg):
        K("s_mov_b64 exec, 1")
        K(f"buffer_store_dword v{V_TAG}, v{V_LANE}, {srd(R_WS)}, s{soff_reg} offen sc1")
        K("s_mov_b64 exec, -1")
    def arrive(c):
        K(f"v_mov_b32 v{t5}, 1")
        K("s_mov_b64 exec, 1")
        K(f"ds_add_u32 v{V_CNT}, v{t5} offset:{c}")
        K("s_mov_b64 exec, -1")
    def await_(c, n, sleep=0):
        l, d = newl("aw"), newl("awd")
        K(f"s_mov_b32 s{S_CNT}, {spin * 8}")
        K.label(l)
        K(f"ds_read_b32 v{t5}, v{V_CNT} offset:{c}")
        K("s_waitcnt lgkmcnt(0)")
        K(f"v_cmp_ne_u32 vcc, {n}, v{t5}")
        K.branch(f"s_cbranch_vccz {d}")
        if sleep: K(f"s_sleep {sleep}")
        K(f"s_sub_u32 s{S_CNT}, s{S_CNT}, 1")
        K.branch(f"s_cbranch_scc0 {l}")
        K.label(d)
    def mksrd(r, p, nbytes):
        K(f"s_mov_b32 s{r}, s{p}"); K(f"s_and_b32 s{r+1}, s{p+1}, 0xffff")
        K(f"s_mov_b32 s{r+2}, {nbytes}"); K(f"s_mov_b32 s{r+3}, 0x20000")
    cnt16 = [0]
    def mfma(d, a, b, c=None, big=False):
        if x_m16 and big and c is None:
            cnt16[0] += 1
            o = 8 * ((cnt16[0] // 4) % 2)
            for q in range(2): K(f"v_mfma_f32_16x16x32_bf16 {vr(d+o+4*q,4)}, {vr(a,4)}, {vr(b,4)}, {vr(d+o+4*q,4)}")
            return
        cs = vr(d, 16) if c is None else c
        K(f"v_mfma_f32_32x32x16_bf16 {vr(d,16)}, {vr(a,4)}, {vr(b,4)}, {cs}")
    def padd(d, a, b, pk):
        if pk: K(f"v_pk_add_f32 {vr(d,2)}, {vr(a,2)}, {vr(b,2)}")
        else: K(f"v_add_f32 v{d}, v{a}, v{b}"); K(f"v_add_f32 v{d+1}, v{a+1}, v{b+1}")
    def pscale(d, r, pk):
        if pk: K(f"v_pk_mul_f32 {vr(d,2)}, {vr(d,2)}, {vr(r & ~1,2)} " + ("op_sel:[0,1] op_sel_hi:[1,1]" if r & 1 else "op_sel_hi:[1,0]"))
        else: K(f"v_mul_f32 v{d}, v{d}, v{r}"); K(f"v_mul_f32 v{d+1}, v{d+1}, v{r}")
    def settag():
        K(f"s_add_u32 s{S_TAG}, s{S_E}, 0x9E3779B9"); K(f"s_mov_b32 s{S_TAG+1}, s{S_TAG}"); K(f"v_mov_b32 v{V_TAG}, s{S_TAG}")
    def xfrag_addr(dst):
        K(f"v_and_b32 v{t0}, 31, v{V_LANE}"); K(f"v_lshrrev_b32 v{t2}, 5, v{V_LANE}"); K(f"v_bfe_u32 v{t3}, v{V_LANE}, 1, 3")
        K(f"v_xor_b32 v{t3}, v{t2}, v{t3}"); K(f"s_lshl_b32 s{T}, s{S_A}, 12"); K(f"v_lshlrev_b32 v{t0}, 7, v{t0}")
        K(f"v_lshl_add_u32 v{t0}, v{t3}, 4, v{t0}"); K(f"v_add_u32 v{dst}, s{T}, v{t0}")
        for k in range(1, 4): K(f"v_xor_b32 v{dst+k}, {32*k}, v{dst}")
    def lanepart():
        K(f"v_bfe_u32 v{t4}, v{V_LANE}, 4, 1"); K(f"v_lshlrev_b32 v{t4}, 5, v{t4}")
        K(f"v_and_b32 v{t3}, 3, v{V_LANE}"); K(f"v_lshl_add_u32 v{t4}, v{t3}, 3, v{t4}")
        K(f"v_bfe_u32 v{t3}, v{V_LANE}, 2, 2"); K(f"v_lshrrev_b32 v{t2}, 5, v{V_LANE}")
    def p2setup():
        mksrd(R_W2, P_W2, 0 if x_now2 else 1792*896)
        K(f"s_and_b32 s{T}, s2, 7"); K(f"s_lshr_b32 s{T+1}, s2, 3")
        if hlp: K(f"s_add_u32 s{T+1}, s{T+1}, 28"); K(f"s_and_b32 s{T+1}, s{T+1}, 31")
        K(f"s_mul_i32 s{T+2}, s{T+1}, 37"); K(f"s_lshr_b32 s{T+2}, s{T+2}, 8"); K(f"s_mul_i32 s{T+3}, s{T+2}, 7"); K(f"s_sub_u32 s{S_CT}, s{T+1}, s{T+3}")
        K(f"s_lshl_b32 s{T+2}, s{T+2}, 1"); K(f"s_lshl_b32 s{T+3}, s{T}, 3"); K(f"s_add_u32 s{S_ROW}, s{T+2}, s{T+3}")
        K(f"s_cmp_lt_u32 s{T+1}, 28"); K(f"s_cselect_b32 s{S_ACT}, 1, 0")
        K(f"s_and_b32 s{T+2}, s{S_A}, 1"); K(f"s_mul_i32 s{T+3}, s{S_A}, 7"); K(f"s_add_u32 s{T+4}, s{T+3}, s{T+2}")
        K(f"s_cmp_eq_u32 s{T+2}, 0"); K(f"s_cselect_b32 s{T+2}, 6, 0"); K(f"s_add_u32 s{T+2}, s{T+2}, s{T+3}")
        K(f"s_lshl_b32 s{T}, s{S_CT}, 7")
        K(f"s_mul_i32 s{S_W2B}, s{T+4}, {64*896}"); K(f"s_add_u32 s{S_W2B}, s{S_W2B}, s{T}")
        K(f"s_mul_i32 s{S_W2B3}, s{T+2}, {64*896}"); K(f"s_add_u32 s{S_W2B3}, s{S_W2B3}, s{T}")
        K(f"s_lshl_b32 s{S_M02}, s{S_A}, 13")
        K(f"v_lshrrev_b32 v{t0}, 3, v{V_LANE}"); K(f"v_and_b32 v{t1}, 7, v{V_LANE}")
        K(f"v_bfe_u32 v{t2}, v{V_LANE}, 4, 1"); K(f"v_lshlrev_b32 v{t2}, 2, v{t2}"); K(f"v_xor_b32 v{t1}, v{t1}, v{t2}")
        K(f"v_mul_u32_u24 v{t0}, 896, v{t0}"); K(f"v_lshl_add_u32 v{V_D2}, v{t1}, 4, v{t0}")
        for q in range(1, 4): K(f"v_add_u32 v{V_D2+q}, {q*(8*896-1024)}, v{V_D2}")
        K(f"v_mov_b32 v{V_CNT}, {L_CNT}")
    def shift(regs, d):
        for r in regs:
            if d > 0: K(f"v_add_u32 v{r}, {d}, v{r}")
            elif d < 0: K(f"v_subrev_u32 v{r}, {-d}, v{r}")
    pend = []
    def drip(n):
        for _ in range(n):
            if pend: pend.pop(0)()
    def run(steps):
        for f in steps: f()
    tk_r = {}
    def g_w2(r):
        def step(q):
            def f():
                if q % 4 == 0:
                    K(f"s_add_u32 s{TD}, s{S_W2B3 if r == 3 else S_W2B}, {(0 if r == 3 else (2*r % 7)*64*896) + (q // 4)*32*896}")
                    K(f"s_add_u32 m0, s{S_M02}, {U[RUNIT[r]] + (q // 4)*4096}")
                x = K(f"buffer_load_dwordx4 v{V_D2+q%4}, {srd(R_W2)}, s{TD} offen offset:{1024*(q%4)} lds") if r < x_skipB else K.vm - 8
                if q == 7: tk_r[r] = x
            return f
        return [step(q) for q in range(8)]
    SH = [0, 0, 65536, 0, -65536, 0, 65536]

    K.raw(f"{NAME}:")
    K("s_cmp_ge_u32 s2, 256"); K("s_cbranch_scc1 L_end")
    if stamps and early: K(f"s_memrealtime {sp(S_ST)}"); K("s_waitcnt lgkmcnt(0)")
    K("s_load_dwordx16 s[16:31], s[0:1], 0"); K("s_load_dwordx8 s[32:39], s[0:1], 64"); K("s_load_dwordx2 s[40:41], s[0:1], 96")
    if stamps:
        if not early: K(f"s_memrealtime {sp(S_ST)}")
        K(f"v_mov_b32 v{V_STAMP}, 0")
    K(f"v_lshrrev_b32 v{t0}, 6, v0"); K(f"v_and_b32 v{V_LANE}, 63, v0")
    K(f"v_readfirstlane_b32 s{S_W}, v{t0}")
    K(f"v_lshlrev_b32 v{V_L16}, 4, v{V_LANE}")
    K(f"s_and_b32 s{T}, s2, 7"); K(f"s_lshr_b32 s{T+1}, s2, 3")
    if codepf:
        K(f"s_lshr_b32 s{T+2}, s2, 5"); K(f"s_lshl_b32 s{T+2}, s{T+2}, 3"); K(f"s_or_b32 s{T+2}, s{T+2}, s{S_W}"); K(f"s_cmp_lg_u32 s{T+2}, 7")
        K("s_cbranch_scc1 L_nopf")
        K(f"s_getpc_b64 {sp(T+2)}")
        K.raw("L_pc:")
        K(f"s_lshl_b32 s{T+4}, s{T+1}, 7"); K(f"s_sub_u32 s{T+2}, s{T+2}, L_pc - {NAME}"); K(f"s_subb_u32 s{T+3}, s{T+3}, 0")
        K(f"s_add_u32 s{T+2}, s{T+2}, s{T+4}"); K(f"s_addc_u32 s{T+3}, s{T+3}, 0")
        K(f"v_lshlrev_b32 v{t0}, 9, v{V_LANE}")
        K("s_mov_b32 exec_hi, 0xffffff")
        K(f"global_load_dword v{V_POLL}, v{t0}, {sp(T+2)}"); K.vm -= 1
        K("s_mov_b32 exec_hi, -1")
        K.label("L_nopf")
    K(f"s_and_b32 s{T+2}, s{T}, 2"); K(f"s_lshl_b32 s{T+2}, s{T+2}, 1")
    K(f"s_and_b32 s{T+3}, s{T}, 1"); K(f"s_cmp_lt_u32 s{T+1}, 4"); K(f"s_cselect_b32 s{T+4}, 14, 12"); K(f"s_add_u32 s{T+3}, s{T+3}, s{T+4}")
    K(f"s_lshr_b32 s{T+4}, s{T+1}, 3"); K(f"s_lshl_b32 s{S_J}, s{T+4}, 2"); K(f"s_and_b32 s{S_MT}, s{T}, 3"); K(f"s_add_u32 s{S_J}, s{S_J}, s{S_MT}"); K(f"s_sub_u32 s{S_J}, s{S_J}, 4")
    K(f"s_cmp_lt_u32 s{T+1}, 8"); K(f"s_cselect_b32 s{S_J}, s{T+3}, s{S_J}"); K(f"s_cselect_b32 s{T+2}, s{T+2}, 0")
    K(f"s_and_b32 s{T+3}, s{T+1}, 7"); K(f"s_xor_b32 s{T+3}, s{T+3}, s{T+2}")
    K(f"s_and_b32 s{S_MT}, s{T}, 4"); K(f"s_lshl_b32 s{S_MT}, s{S_MT}, 1"); K(f"s_add_u32 s{S_MT}, s{S_MT}, s{T+3}")
    K(f"s_and_b32 s{S_A}, s{S_W}, 3")
    K(f"s_lshl_b32 s{S_W1B}, s{S_J}, 8")
    K(f"s_cmp_ge_u32 s{S_W}, 4")
    K.branch("s_cbranch_scc1 L_M")

    if prioA: K(f"s_setprio {prioA}")
    K(f"s_lshl_b32 s{T+4}, s{T+4}, 1"); K(f"s_add_u32 s{T+2}, s{T+3}, s{T+4}")
    K(f"s_cmp_ge_u32 s{T+2}, 7"); K(f"s_cselect_b32 s{T+3}, 7, 0"); K(f"s_sub_u32 s{S_CH}, s{T+2}, s{T+3}")
    if not rot1: K(f"s_mov_b32 s{S_CH}, 0")
    if rot1 == 2:
        K(f"s_lshr_b32 s{T+4}, s{T+4}, 1"); K(f"s_add_u32 s{T+2}, s{S_MT}, s{T+4}"); K(f"s_and_b32 s{T+2}, s{T+2}, 1"); K(f"s_lshl_b32 s{S_CH}, s{T+2}, 2")
    if rot1 == 4:
        K(f"s_lshr_b32 s{T+4}, s{T+4}, 1"); K(f"s_add_u32 s{T+2}, s{S_MT}, s{T+4}"); K(f"s_and_b32 s{T+2}, s{T+2}, 3"); K(f"s_lshl_b32 s{S_CH}, s{T+2}, 1")
    if rot1 >= 9:
        K(f"s_and_b32 s{T+2}, s2, 3"); K(f"s_mul_i32 s{T+2}, s{T+2}, {ra}"); K(f"s_bfe_u32 s{T+3}, s2, 0x10002"); K(f"s_mul_i32 s{T+3}, s{T+3}, {rb}"); K(f"s_add_u32 s{T+2}, s{T+2}, s{T+3}")
        if rc: K(f"s_and_b32 s{T+3}, s{S_MT}, 1"); K(f"s_mul_i32 s{T+3}, s{T+3}, {rc}"); K(f"s_add_u32 s{T+2}, s{T+2}, s{T+3}")
        if rd: K(f"s_bfe_u32 s{T+3}, s{S_MT}, 0x10001"); K(f"s_mul_i32 s{T+3}, s{T+3}, {rd}"); K(f"s_add_u32 s{T+2}, s{T+2}, s{T+3}")
        if re: K(f"s_bfe_u32 s{T+3}, s2, 0x10006"); K(f"s_mul_i32 s{T+3}, s{T+3}, {re}"); K(f"s_add_u32 s{T+2}, s{T+2}, s{T+3}")
        K(f"s_mul_i32 s{T+3}, s{T+2}, 37"); K(f"s_lshr_b32 s{T+3}, s{T+3}, 8"); K(f"s_mul_i32 s{T+3}, s{T+3}, 7"); K(f"s_sub_u32 s{S_CH}, s{T+2}, s{T+3}")
    if rot1 == 8:
        K(f"s_and_b32 s{T+2}, s2, 7"); K(f"s_cmp_eq_u32 s{T+2}, 7"); K(f"s_cselect_b32 s{S_CH}, 3, s{T+2}")
    def rotstep(t):
        K(f"s_lshl_b32 s{S_CHO+t}, s{S_CH}, 12")
        if t < 6: K(f"s_add_u32 s{S_CH}, s{S_CH}, 1"); K(f"s_cmp_eq_u32 s{S_CH}, 7"); K(f"s_cselect_b32 s{S_CH}, 0, s{S_CH}")
    rotstep(0); rotstep(1)
    K(f"s_lshl_b32 s{S_M0}, s{S_A}, 12")
    K(f"s_mul_i32 s{S_XB}, s{S_MT}, {128*896}")
    K(f"v_lshrrev_b32 v{t0}, 3, v{V_LANE}"); K(f"v_and_b32 v{t1}, 7, v{V_LANE}"); K(f"v_lshrrev_b32 v{t2}, 1, v{t0}"); K(f"v_xor_b32 v{t2}, v{t1}, v{t2}")
    K(f"s_lshl_b32 s{T+2}, s{S_A}, 5"); K(f"v_add_u32 v{t3}, s{T+2}, v{t0}"); K(f"v_mul_u32_u24 v{t3}, 896, v{t3}")
    K(f"v_lshl_add_u32 v{A_XD}, v{t2}, 4, v{t3}"); K(f"v_xor_b32 v{t2}, 4, v{t2}"); K(f"v_lshl_add_u32 v{A_XD+1}, v{t2}, 4, v{t3}")
    K(f"v_add_u32 v{A_XD+1}, {8*896-1024}, v{A_XD+1}")
    K(f"v_add_u32 v{A_XD+2}, {16*896-2048}, v{A_XD}"); K(f"v_add_u32 v{A_XD+3}, {16*896-2048}, v{A_XD+1}")
    K(f"v_lshrrev_b32 v{t0}, 4, v{V_LANE}"); K(f"v_and_b32 v{t1}, 15, v{V_LANE}"); K(f"v_lshlrev_b32 v{t2}, 2, v{t0}"); K(f"v_xor_b32 v{t2}, v{t1}, v{t2}")
    K(f"s_lshl_b32 s{T+2}, s{S_A}, 4"); K(f"v_add_u32 v{t3}, s{T+2}, v{t0}"); K(f"v_mul_u32_u24 v{t3}, 3584, v{t3}")
    K(f"v_lshl_add_u32 v{A_WD}, v{t2}, 4, v{t3}")
    for q in range(1, 4): K(f"v_add_u32 v{A_WD+q}, {q*(4*3584-1024)}, v{A_WD}")
    K("s_waitcnt lgkmcnt(0)")
    if stamps: K(f"v_writelane_b32 v{V_STAMP}, s{S_ST}, {STAMP_IDS.setdefault('start', len(STAMP_IDS))}")
    if wso: K(f"s_add_u32 s{P_WS}, s{P_WS}, {wso << 20}"); K(f"s_addc_u32 s{P_WS+1}, s{P_WS+1}, 0")
    mksrd(R_X, P_X, 2048*896); mksrd(R_W1, P_W1, 0 if x_now1 else 448*3584)
    tk_stage = {}
    def g_stage(t):
        u = U[t % 4]
        def step(q):
            def f():
                if q == 0: K(f"s_lshr_b32 s{TD}, s{S_CHO+t}, 5"); K(f"s_add_u32 s{TD}, s{TD}, s{S_XB}"); K(f"s_add_u32 m0, s{S_M0}, {u}")
                if q == 4: K(f"s_mul_i32 s{TD}, s{S_CHO+t}, 56"); K(f"s_add_u32 s{TD}, s{TD}, s{S_W1B}"); K(f"s_add_u32 m0, s{S_M0}, {u + 16384}")
                if q < 4: K(f"buffer_load_dwordx4 v{A_XD+q}, {srd(R_X)}, s{TD} offen offset:{1024*q} lds")
                else: x = K(f"buffer_load_dwordx4 v{A_WD+q-4}, {srd(R_W1)}, s{TD} offen offset:{1024*(q-4)} lds")
                if q == 7: tk_stage[t] = x
            return f
        return [step(q) for q in range(8)]
    ilist = []
    for t in range(7): ilist += [(f, t - 2 if t >= 4 else -1) for f in g_stage(t)]
    pos = [0]
    def issue_to(n, lastbar):
        while pos[0] < min(n, len(ilist)) and ilist[pos[0]][1] <= lastbar:
            ilist[pos[0]][0](); pos[0] += 1
    if fine: stamp("A_karg")
    K(f"s_cmp_ge_u32 s{S_J}, 14")
    K.branch("s_cbranch_scc1 L_a1")
    vm0 = K.vm
    issue_to(8, -1)
    issue_to(8 + LA0, -1)
    K.label("L_a1")
    if fine: stamp("A_i1")
    K(f"s_load_dword s{S_E}, {sp(P_WS)}, {WS_EPOCH}")
    for t in range(2, 7): rotstep(t)
    mksrd(R_WS, P_WS, WS_SIZE); mksrd(R_OUT, P_OUT, 2048*896)
    p2setup()
    K(f"s_mov_b32 s{S_UP}, 0"); K(f"s_mov_b32 s{S_UP+1}, -1")
    K(f"s_mov_b32 s{S_L28}, 0x10000000"); K(f"s_mov_b32 s{S_L28+1}, 0x10000000")
    xfrag_addr(A_AX)
    lanepart()
    K(f"v_lshl_add_u32 v{t0}, v{t2}, 3, v{t3}"); K(f"v_lshl_add_u32 v{A_TR}, v{t0}, 6, v{t4}")
    K(f"v_lshl_add_u32 v{t0}, v{t2}, 2, v{t3}"); K(f"v_mul_u32_u24 v{t1}, 56, v{t0}"); K(f"v_add_u32 v{t1}, v{t1}, v{t4}"); K(f"v_add_u32 v{A_PH}, {L_PHI}, v{t1}")
    K(f"v_lshlrev_b32 v{A_L4}, 2, v{V_LANE}")
    K(f"s_lshl_b32 s{T}, s{S_A}, 10"); K(f"s_add_u32 s{T}, s{T}, {WS_RPF}"); K(f"v_and_b32 v{A_PA}, 7, v{V_LANE}"); K(f"v_lshl_add_u32 v{A_PA}, v{A_PA}, 7, s{T}")
    K(f"s_mul_i32 s{S_RS}, s{S_J}, {3*28672}"); K(f"s_mul_i32 s{S_P3}, s{S_A}, 7168"); K(f"s_add_u32 s{S_RS}, s{S_RS}, s{S_P3}"); K(f"s_add_u32 s{S_RS}, s{S_RS}, {WS_WQ}")
    K("s_waitcnt lgkmcnt(0)")
    settag()
    K(f"s_cmp_lt_u32 s{S_J}, 14")
    K.branch("s_cbranch_scc1 L_a2")
    sv = K.vm
    K(f"s_mul_i32 s{T}, s{S_A}, 3072"); K(f"s_add_u32 s{T}, s{T}, {L_K}")
    K("s_barrier")
    for t in range(7):
        K(f"s_lshr_b32 s{TD}, s{S_CHO+t}, 5"); K(f"s_add_u32 s{TD}, s{TD}, s{S_XB}")
        if t < 6: K(f"s_add_u32 m0, s{S_M0}, {16384*t}")
        else: K(f"s_add_u32 m0, s{S_M0}, s{T}")
        for q in range(4): K(f"buffer_load_dwordx4 v{A_XD+q}, {srd(R_X)}, s{TD} offen offset:{1024*q} lds")
        if t == rb2: K("s_barrier")
    K("s_waitcnt vmcnt(0)")
    for t in range(7):
        if t == 4: shift(range(A_AX, A_AX + 4), 65536)
        if t == 6:
            K(f"s_sub_u32 s{T}, s{T}, 65536")
            for k in range(4): K(f"v_add_u32 v{A_AX+k}, s{T}, v{A_AX+k}")
        for ksl in range(4): K(f"ds_read_b128 {vr(V_X + 16*t + 4*ksl, 4)}, v{A_AX+ksl} offset:{(t % 4) * 16384 if t < 6 else 0}")
        if t % 2 == 1: K("s_waitcnt lgkmcnt(4)")
    K("s_waitcnt lgkmcnt(0)")
    stamp("A_b6")
    vpoll_issue(A_PA)
    K.branch("s_branch L_a3")
    K.label("L_a2")
    K.vm = sv
    if fine: stamp("A_setup")
    tkx = {}
    def g_panel(p, lds):
        def step(q):
            def f():
                if q % 4 == 0: K(f"s_add_u32 s{TD}, s{S_RS}, {28672*p + (q // 4)*4096}"); K(f"s_add_u32 m0, s{S_P3}, {lds + (q // 4)*4096}")
                tkx[p] = K(f"buffer_load_dwordx4 v{V_L16}, {srd(R_WS)}, s{TD} offen offset:{1024*(q%4)} sc1 lds")
            return f
        return [step(q) for q in range(7)]
    for t in range(7):
        issue_to(8*(t+1) + (LA0 if t == 0 else LA), t - 1)
        shift(range(A_AX, A_AX + 4), SH[t])
        if t == 5:
            assert pos[0] == len(ilist)
            tkp = vpoll_issue(A_PA)
        if fine: stamp(f"A{t}a")
        K.wait_vm(tk_stage[t])
        if fine: stamp(f"A{t}b")
        if t < 6:
            if t >= 2: K("s_waitcnt lgkmcnt(4)")
            K("s_barrier")
        else: arrive(C_S)
        if t in (0, 4, 6): stamp(f"A_b{t}")
        for ksl in range(4): K(f"ds_read_b128 {vr(V_X + 16*t + 4*ksl, 4)}, v{A_AX+ksl} offset:{(t % 2) * 32768}")
    assert tkp == K.vm
    K.label("L_a3")
    arrive(C_E)
    vpoll_check(tkp, A_PA)
    stamp("rp_seen")
    run(g_panel(1, L_K) + g_panel(2, L_V))
    K(f"v_add_u32 v{A_PA}, 4096, v{A_PA}")
    tkp = vpoll_issue(A_PA)
    stamp("kv_issued")
    K(f"s_mov_b32 s{S_K}, {f2u(L2E):#x}"); K(f"s_mov_b32 s{S_K+1}, {f2u(L2E):#x}")
    VPH, VB = V_W + 24, V_W + 16
    for s in range(2):
        for r in range(2): K(f"ds_read_b64_tr_b16 {vr(VPH + 4*s + 2*r, 2)}, v{A_PH} offset:{(16*s + 8*r)*56}")
    K(f"s_lshl_b32 s{T}, s{S_A}, 11"); K(f"s_lshl_b32 s{T+1}, s{S_J}, 13"); K(f"s_add_u32 s{S_HB}, s{T+1}, s{T}"); K(f"s_add_u32 s{S_FL}, s{S_HB}, {WS_KVF}"); K(f"s_lshl_b32 s{S_PE}, s{S_MT}, 7"); K(f"s_add_u32 s{S_PE}, s{S_PE}, s{S_FL}"); K(f"s_add_u32 s{S_HB}, s{S_HB}, {WS_KVP}")
    FL_K = (S_PE, 0, 16)
    K(f"s_lshl_b32 s{T}, s{S_MT}, 2"); K(f"s_add_u32 s{T}, s{T}, s{S_A}")
    K(f"s_lshr_b32 s{T+1}, s{T}, 1"); K(f"s_lshl_b32 s{T+1}, s{T+1}, 2"); K(f"s_lshr_b32 s{T+2}, s{S_J}, 2"); K(f"s_add_u32 s{T+1}, s{T+1}, s{T+2}"); K(f"s_lshl_b32 s{T+1}, s{T+1}, 10"); K(f"s_add_u32 s{S_FL2}, s{T+1}, {WS_OF}")
    K(f"s_lshl_b32 s{T}, s{T}, 4"); K(f"s_add_u32 s{T}, s{T}, s{S_J}")
    K(f"s_lshl_b32 s{S_OB}, s{T}, 11"); K(f"s_add_u32 s{S_OB}, s{S_OB}, {WS_O}")
    K(f"s_lshl_b32 s{T+2}, s{T}, 7"); K(f"s_add_u32 s{S_XB}, s{T+2}, {WS_G - 128}")
    IDR = [26, 27, 28, 29, V_PHI, V_PHI+1, V_PHI+2, V_PHI+3]
    K(f"v_and_b32 v{t0}, 31, v{V_LANE}"); K(f"v_lshrrev_b32 v{t1}, 5, v{V_LANE}"); K(f"v_lshlrev_b32 v{t1}, 2, v{t1}")
    K(f"v_sub_u32 v{t0}, v{t0}, v{t1}")
    K(f"v_and_b32 v{t1}, 1, v{V_LANE}"); K(f"v_lshlrev_b32 v{t1}, 4, v{t1}"); K(f"v_mov_b32 v{t2}, 0x3f80"); K(f"v_lshlrev_b32 v{t1}, v{t1}, v{t2}")
    K(f"v_and_b32 v{t0}, -2, v{t0}")
    for s in range(2):
        for q in range(4): K(f"v_cmp_eq_u32 {sp(T+2*q)}, {16*s + 8*(q // 2) + 2*(q % 2)}, v{t0}")
        for q in range(4): K(f"v_cndmask_b32 v{IDR[4*s+q]}, 0, v{t1}, {sp(T+2*q)}")
    if aw2: K(f"s_cmp_eq_u32 s{S_ACT}, 1"); K(f"s_cselect_b32 s{R_W2+2}, s{R_W2+2}, 0")
    if aw2 in (1, 3):
        await_(C_E, 8, 1)
        run(g_w2(0))
        K.wait_vm(tkx[2]); arrive(C_0)
        run(g_w2(1))
        if qd < 0: run(g_panel(0, L_Q))
    else: K.wait_vm(tkx[1] if kf else tkx[2]); arrive(C_0)
    stamp("kv_landed0")
    if aw2 == 1: K.wait_vm(tk_r[1]); arrive(C_B)
    await_(C_0, 4, 1)
    K(f"v_cndmask_b32 v{VPH+6}, v{VPH+6}, 0, {UPM}"); K(f"v_cndmask_b32 v{VPH+7}, v{VPH+7}, 0, {UPM}")
    if not kf:
        await_(C_G if gw >= 0 else C_E, 4 if gw >= 0 else 8, 1)
        vpoll_check(tkp, A_PA)
    stamp("kv_start")

    def gemm_qkv(panels, hook=None):
        nb = len(panels) * 4
        D = 3 if len(panels) == 2 else 6
        tk = {}
        for n, (off, acc, sw) in enumerate(panels): K(f"v_add_u32 v{A_AX+n}, {off}, v{A_TR}")
        def rd(ks, n):
            t, ksl = ks // 4, ks % 4
            b = V_W + nb * (ks % D)
            if ksl == 0: K(f"v_add_u32 v{A_AD + n}, s{S_CHO+t}, v{A_AX+n}")
            for r in range(2):
                tk[ks] = K(f"ds_read_b64_tr_b16 {vr(b + 4*n + 2*r, 2)}, v{A_AD + n} offset:{(16*ksl + 4*r)*64}")
        for k in range(D):
            for n in range(len(panels)): rd(k, n)
        for ks in range(28):
            K.wait_lg(tk[ks])
            b = V_W + nb * (ks % D)
            for n, (off, acc, sw) in enumerate(panels):
                wv, xv = b + 4*n, V_X + 4*ks
                if sw: mfma(acc, xv, wv, "0" if ks == 0 else None, x_m16 & 4)
                else: mfma(acc, wv, xv, "0" if ks == 0 else None, x_m16 & 4)
                if ks + D < 28: rd(ks + D, n)
            if hook: hook(ks)
    QP = V_W
    P = V_ACC
    def featmap():
        for e in range(8): K(f"v_cvt_pk_bf16_f32 v{QP+e}, v{V_ACC+2*e}, v{V_ACC+2*e+1}")
        mfma(P, VPH, QP, "0"); mfma(P, VPH + 4, QP + 4)
    def roundp(e):
        K(f"v_cvt_pk_bf16_f32 v{P+2*e+1}, v{P+2*e}, v{P+2*e+1}")
        K(f"v_lshlrev_b32 v{P+2*e}, 16, v{P+2*e+1}"); K(f"v_and_b32 v{P+2*e+1}, 0xffff0000, v{P+2*e+1}")
    def softmax(pk, rounded=False):
        if rp and not rounded:
            for e in range(8): roundp(e)
        for e in range(4): K(f"v_cndmask_b32 v{P+12+e}, v{P+12+e}, v{P}, {UPM}")
        mx, mn = t0, t2
        K(f"v_max3_f32 v{mx}, v{P}, v{P+1}, v{P+2}"); K(f"v_min3_f32 v{mn}, v{P}, v{P+1}, v{P+2}")
        K(f"v_max3_f32 v{t1}, v{P+3}, v{P+4}, v{P+5}"); K(f"v_min3_f32 v{t3}, v{P+3}, v{P+4}, v{P+5}")
        for e in range(6, 14, 4):
            K(f"v_max3_f32 v{mx}, v{mx}, v{P+e}, v{P+e+1}"); K(f"v_min3_f32 v{mn}, v{mn}, v{P+e}, v{P+e+1}")
            K(f"v_max3_f32 v{t1}, v{t1}, v{P+e+2}, v{P+e+3}"); K(f"v_min3_f32 v{t3}, v{t3}, v{P+e+2}, v{P+e+3}")
        K(f"v_max3_f32 v{mx}, v{mx}, v{P+14}, v{P+15}"); K(f"v_min3_f32 v{mn}, v{mn}, v{P+14}, v{P+15}")
        K(f"v_max_f32 v{mx}, v{mx}, v{t1}"); K(f"v_min_f32 v{mn}, v{mn}, v{t3}")
        K(f"v_mov_b32 v{t1}, v{mx}"); K(f"v_mov_b32 v{t3}, v{mn}")
        K(f"v_permlane32_swap_b32 v{mx}, v{t1}"); K(f"v_permlane32_swap_b32 v{mn}, v{t3}")
        K(f"v_max_f32 v{mx}, v{mx}, v{t1}"); K(f"v_min_f32 v{mn}, v{mn}, v{t3}")
        K(f"v_mul_f32 v{mx}, s{S_K}, v{mx}"); K(f"v_mul_f32 v{mn}, s{S_K}, v{mn}")
        EP, EN = V_P, V_P + 16
        for e in range(0, 16, 2):
            if pk:
                K(f"v_pk_fma_f32 {vr(EP+e,2)}, {vr(P+e,2)}, {sp(S_K)}, {vr(mx,2)} op_sel_hi:[1,1,0] neg_lo:[0,0,1] neg_hi:[0,0,1]")
                K(f"v_pk_fma_f32 {vr(EN+e,2)}, {vr(P+e,2)}, {sp(S_K)}, {vr(mn,2)} op_sel_hi:[1,1,0] neg_lo:[1,0,0] neg_hi:[1,0,0]")
            else:
                for x in (e, e + 1):
                    K(f"v_fma_f32 v{EP+x}, v{P+x}, s{S_K}, -v{mx}"); K(f"v_fma_f32 v{EN+x}, -v{P+x}, s{S_K}, v{mn}")
        for e in range(16):
            K(f"v_exp_f32 v{EP+e}, v{EP+e}"); K(f"v_exp_f32 v{EN+e}, v{EN+e}")
        S = V_W
        for n, E in enumerate((EP, EN)):
            padd(S+4*n, E, E+2, pk); padd(S+4*n+2, E+12, E+14, pk)
        for n, E in enumerate((EP, EN)):
            padd(S+4*n, S+4*n, E+4, pk)
            K(f"v_cndmask_b32 v{S+4*n+2}, v{S+4*n+2}, 0, {UPM}"); K(f"v_cndmask_b32 v{S+4*n+3}, v{S+4*n+3}, 0, {UPM}")
        for n, E in enumerate((EP, EN)):
            padd(S+4*n, S+4*n, E+6, pk); padd(S+4*n+2, S+4*n+2, E+8, pk)
        for n, E in enumerate((EP, EN)): padd(S+4*n, S+4*n, E+10, pk)
        for n in range(2): padd(S+4*n, S+4*n, S+4*n+2, pk)
        K(f"v_add_f32 v{t0}, v{S}, v{S+1}"); K(f"v_add_f32 v{t2}, v{S+4}, v{S+5}")
        K(f"v_mov_b32 v{t1}, v{t0}"); K(f"v_mov_b32 v{t3}, v{t2}")
        K(f"v_permlane32_swap_b32 v{t0}, v{t1}"); K(f"v_permlane32_swap_b32 v{t2}, v{t3}")
        K(f"v_add_f32 v{t0}, v{t0}, v{t1}"); K(f"v_add_f32 v{t2}, v{t2}, v{t3}")
        K(f"v_rcp_f32 v{t0}, v{t0}"); K(f"v_rcp_f32 v{t2}, v{t2}")
        K(f"v_cndmask_b32 v{t1}, v{t0}, 0, {UPM}"); K(f"v_cndmask_b32 v{t3}, v{t2}, 0, {UPM}")
        for e in range(0, 16, 2):
            pscale(EP+e, t0 if e < 12 else t1, pk); pscale(EN+e, t2 if e < 12 else t3, pk)
        for e in range(8):
            K(f"v_cvt_pk_bf16_f32 v{V_PHI+e}, v{EP+2*e}, v{EP+2*e+1}"); K(f"v_cvt_pk_bf16_f32 v{V_PHI+8+e}, v{EN+2*e}, v{EN+2*e+1}")

    if aw2 == 2: pend.extend(g_w2(0) + g_w2(1))
    if qd >= 0: pend.extend(g_panel(0, L_Q))
    def hook(ks):
        if aw2 == 3:
            if ks == 1: K.wait_vm(tk_r[1]); arrive(C_B)
            if ks == pa:
                await_(C_P, 4)
                pend.extend(g_w2(2) + g_w2(3))
            drip(2 if len(pend) > 27 - ks else 1)
        elif aw2 == 2:
            drip(1)
            if ks == cb: K.wait_vm(tk_r[1]); arrive(C_B)
        elif ks >= qd and (ks - qd) % 3 == 0: drip(1)
        if ks == 25: arrive(C_1)
    if kf:
        def hookk(ks):
            if ks == k1: vpoll_check(tkp, A_PA); arrive(C_P); await_(C_E, 8)
            if ks > k1 and ks % kd == 0: drip(1)
        gemm_qkv([(L_K, V_ACC, False)], hookk)
        await_(C_P, 4)
        def hookv(ks):
            if ks == 4:
                for e in range(8): K(f"v_cvt_pk_bf16_f32 v{V_P+e}, v{V_ACC+2*e}, v{V_ACC+2*e+1}")
            if ks == 6: mfma(P, VPH, V_P, "0"); mfma(P, VPH + 4, V_P + 4)
            if ks % kd == 0 or len(pend) > (27 - ks) // kd: drip(1)
            if ks == kb and aw2 == 2: K.wait_vm(tk_r[1]); arrive(C_B)
            if rp and 12 <= ks < 20: roundp(ks - 12)
            if ks == 22: arrive(C_1)
        gemm_qkv([(L_V, V_ACC + 16, True)], hookv)
    else:
        gemm_qkv([(L_K, V_ACC, False), (L_V, V_ACC + 16, True)], hook)
        featmap()
    assert not pend
    for e in range(4): K(f"v_mov_b32 v{V_W+8+e}, v{V_PHI+e}")
    IDR[4] = V_W + 8
    stamp("kv_gemm")
    K(f"v_mov_b32 v{t4}, 0x3f803f80")
    for e in range(8): K(f"v_cvt_pk_bf16_f32 v{VB+e}, v{V_ACC+16+2*e}, v{V_ACC+16+2*e+1}")
    for e in range(8): K(f"v_cndmask_b32 v{VB+e}, v{VB+e}, v{t4}, {sp(S_L28)}")
    softmax(pkk, kf)
    stamp("sm_k")
    if aw2 == 3: K.wait_vm(tk_r[3]); arrive(C_B2)
    TP, TN = V_P, V_P + 16
    mfma(TP, V_PHI, IDR[0], "0"); mfma(TP, V_PHI + 4, IDR[4])
    mfma(TN, V_PHI + 8, IDR[0], "0"); mfma(TN, V_PHI + 12, IDR[4])
    await_(C_1, 4)
    if f2: stamp("kv_a")
    K(f"s_lshl_b32 s{T}, s{S_A}, 13"); K(f"s_add_u32 s{T}, s{T}, {L_KVS}"); K(f"v_add_u32 v{t0}, s{T}, v{V_L16}")
    K(f"s_lshl_b32 s{T}, s{S_A}, 11"); K(f"s_add_u32 s{T}, s{T}, {L_KVS}"); K(f"v_add_u32 v{t1}, s{T}, v{V_L16}")
    for e in range(8): K(f"v_cvt_pk_bf16_f32 v{V_PHI+e}, v{TP+2*e}, v{TP+2*e+1}")
    mfma(V_ACC, V_PHI, VB, "0"); mfma(V_ACC, V_PHI + 4, VB + 4)
    for e in range(8): K(f"v_cvt_pk_bf16_f32 v{V_PHI+8+e}, v{TN+2*e}, v{TN+2*e+1}")
    mfma(V_ACC + 16, V_PHI + 8, VB, "0"); mfma(V_ACC + 16, V_PHI + 12, VB + 4)
    for b in range(8): K(f"ds_write_b128 v{t0}, {vr(V_ACC+4*b,4)} offset:{1024*b}")
    K.wait_vm(tkx[0])
    arrive(C_2)
    if f2: stamp("kv_b")
    await_(C_2, 4)
    if f2: stamp("kv_c")
    for hb in range(2):
        for g in range(4): K(f"ds_read_b128 {vr(V_P+16*hb+4*g,4)}, v{t1} offset:{8192*g + 1024*hb}")
    arrive(C_3)
    if f2: stamp("kv_d")
    for hb in range(2):
        K(f"s_waitcnt lgkmcnt({5 - 4*hb})")
        B = V_P + 16*hb
        for e in (0, 2): padd(B+e, B+e, B+4+e, pkq); padd(B+8+e, B+8+e, B+12+e, pkq)
        for e in (0, 2): padd(B+e, B+e, B+8+e, pkq)
        if am and hb == 1: K(f"s_bitcmp1_b32 s{S_A}, 0"); K("s_cselect_b32 exec_hi, 0, -1")
        for e in range(x_at): K(f"buffer_atomic_add_f32 v{B+e}, v{A_L4}, {srd(R_WS)}, s{S_HB} offen offset:{1024*hb + 256*e}")
        if am and hb == 1: K("s_mov_b32 exec_hi, -1")
    stamp("kv_st")
    def hook(ks):
        if ks == 22: arrive(C_Q)
        if ks == kvf:
            K("s_waitcnt vmcnt(0)")
            signal(S_FL, 16)
            stamp("kv_pub")
    gemm_qkv([(L_Q, V_ACC, False)], hook)
    K(f"v_cvt_pk_bf16_f32 v{t0}, v{V_ACC+12}, v{V_ACC+12}")
    featmap()
    K(f"v_lshlrev_b32 v{t0}, 16, v{t0}")
    K(f"v_mul_f32 v{t0}, s{S_K}, v{t0}"); K(f"v_exp_f32 v{t0}, -v{t0}"); K(f"v_add_f32 v{t0}, 1.0, v{t0}"); K(f"v_rcp_f32 v{t0}, v{t0}")
    K(f"v_cvt_pk_bf16_f32 v{t0}, v{t0}, v{t0}"); K(f"v_lshlrev_b32 v{A_G}, 16, v{t0}")
    K("s_mov_b32 exec_lo, 0")
    K(f"buffer_store_dword v{A_G}, v{A_L4}, {srd(R_WS)}, s{S_XB} offen sc1")
    K("s_mov_b32 exec_lo, -1")
    stamp("q_gemm")
    softmax(pkq)
    stamp("sm_q")
    poll_issue(FL_K)
    poll_check(FL_K)
    stamp("kv_seen")
    for e in range(8): K(f"buffer_load_dword v{V_P+e}, v{A_L4}, {srd(R_WS)}, s{S_HB} offen offset:{256*e} sc1")
    F = V_W
    K(f"s_lshl_b32 s{T}, s{S_A}, 10"); K(f"v_add_u32 v{t1}, {L_KVF}, v{V_L16}"); K(f"v_add_u32 v{t0}, s{T}, v{t1}")
    K("s_waitcnt vmcnt(0)")
    stamp("kv_landed")
    for e in range(4): K(f"v_cvt_pk_bf16_f32 v{F+e}, v{V_P+2*e}, v{V_P+2*e+1}")
    K(f"ds_write_b128 v{t0}, {vr(F,4)}")
    arrive(C_4)
    await_(C_4, 4)
    if f2: stamp("o_a")
    for f in range(4): K(f"ds_read_b128 {vr(F+4*f,4)}, v{t1} offset:{1024*f}")
    N = V_ACC
    for f in range(4):
        K(f"s_waitcnt lgkmcnt({3-f})")
        mfma(N, F + 4*f, V_PHI + 4*f, "0" if f == 0 else None)
    K(f"v_cvt_pk_bf16_f32 v{t0}, v{N+12}, v{N+12}")
    for e in range(8): K(f"v_cvt_pk_bf16_f32 v{F+e}, v{N+2*e}, v{N+2*e+1}")
    K(f"v_lshlrev_b32 v{t0}, 16, v{t0}")
    K(f"v_add_f32 v{t0}, {f2u(1e-6):#x}, v{t0}")
    K(f"v_cvt_pk_bf16_f32 v{t0}, v{t0}, v{t0}"); K(f"v_lshlrev_b32 v{t0}, 16, v{t0}")
    K(f"v_rcp_f32 v{t0}, v{t0}")
    for e in range(4):
        K(f"v_lshlrev_b32 v{N+2*e}, 16, v{F+e}"); K(f"v_and_b32 v{N+2*e+1}, 0xffff0000, v{F+e}")
    K(f"v_mul_f32 v{t0}, v{t0}, v{A_G}"); K(f"v_mov_b32 v{t1}, v{t0}")
    for e in range(4, 8):
        K(f"v_lshlrev_b32 v{N+2*e}, 16, v{F+e}"); K(f"v_and_b32 v{N+2*e+1}, 0xffff0000, v{F+e}")
    K(f"v_permlane32_swap_b32 v{t1}, v{t0}")
    for e in range(0, 16, 2): pscale(N+e, t0, pkq)
    for e in range(8): K(f"v_cvt_pk_bf16_f32 v{F+e}, v{N+2*e}, v{N+2*e+1}")
    K(f"v_cndmask_b32 v{F+6}, v{F+6}, 0, {UPM}"); K(f"v_cndmask_b32 v{F+7}, v{F+7}, 0, {UPM}")
    K(f"buffer_store_dwordx4 {vr(F,4)}, v{V_L16}, {srd(R_WS)}, s{S_OB} offen sc1")
    K(f"buffer_store_dwordx4 {vr(F+4,4)}, v{V_L16}, {srd(R_WS)}, s{S_OB} offen offset:1024 sc1")
    if f2: stamp("o_b")
    K("s_waitcnt vmcnt(0)")
    signal(S_FL2, 7)
    stamp("o_pub")
    K(f"s_cmp_eq_u32 s{S_ACT}, 0")
    K.branch("s_cbranch_scc1 L_fin")
    K.branch("s_branch L_red")

    K.label("L_M")
    if prioM: K(f"s_setprio {prioM}")
    K("s_waitcnt lgkmcnt(0)")
    if stamps: K(f"v_writelane_b32 v{V_STAMP}, s{S_ST}, {STAMP_IDS.setdefault('start', len(STAMP_IDS))}")
    if wso: K(f"s_add_u32 s{P_WS}, s{P_WS}, {wso << 20}"); K(f"s_addc_u32 s{P_WS+1}, s{P_WS+1}, 0")
    K(f"s_load_dword s{S_E}, {sp(P_WS)}, {WS_EPOCH}")
    mksrd(R_T, P_PHI, 16*1568)
    K(f"s_mul_i32 s{T}, s{S_J}, 1568"); K(f"s_mul_i32 s{T+1}, s{S_A}, 400"); K(f"s_add_u32 s{T}, s{T}, s{T+1}"); K(f"s_add_u32 m0, s{T+1}, {L_PHI}")
    K("s_mov_b64 exec, 0x1ffffff")
    K(f"buffer_load_dwordx4 v{V_L16}, {srd(R_T)}, s{T} offen lds")
    K("s_mov_b64 exec, -1")
    K(f"v_mov_b32 v{V_CNT}, {L_CNT}")
    K(f"v_mov_b32 v{t0}, 0"); K(f"v_lshl_add_u32 v{t1}, v{V_LANE}, 2, v{V_CNT}"); K(f"ds_write_b32 v{t1}, v{t0}")
    K(f"s_cmp_lt_u32 s{S_J}, 14")
    K.branch("s_cbranch_scc1 L_mset")
    vm_m = K.vm
    RB = 96
    K0 = S_XB
    mksrd(R_T, P_WQKV, 448*2688)
    K(f"s_lshl_b32 s{S_FL}, s{S_MT}, 1"); K(f"s_add_u32 s{S_FL}, s{S_FL}, s{S_J}"); K(f"s_sub_u32 s{S_FL}, s{S_FL}, 14")
    K(f"s_mul_i32 s{K0}, s{S_FL}, 14"); K(f"s_lshl_b32 s{T+5}, s{S_A}, 1"); K(f"s_add_u32 s{K0}, s{K0}, s{T+5}")
    K(f"v_lshrrev_b32 v{t0}, 3, v{V_LANE}"); K(f"v_bfe_u32 v{t1}, v{V_LANE}, 2, 1"); K(f"v_and_b32 v{t2}, 3, v{V_LANE}")
    K(f"v_mul_u32_u24 v{t3}, 56, v{t0}"); K(f"v_mul_u32_u24 v{t4}, 2688, v{t1}"); K(f"v_add_u32 v{t3}, v{t3}, v{t4}")
    K(f"v_lshl_add_u32 v{t3}, v{t2}, 4, v{t3}")
    K(f"s_mul_i32 s{T+5}, s{K0}, 2688"); K(f"v_lshlrev_b32 v{t4}, 1, v{t1}"); K(f"s_lshl_b32 s{T+6}, s{K0}, 1")
    tkl = {}
    if fine: stamp("rp_0")
    K(f"s_add_u32 s{T+7}, s{T+5}, {8*2688}"); K(f"s_cmp_eq_u32 s{S_A}, 3"); K(f"s_cselect_b32 s{T+7}, 0x7000000, s{T+7}"); K(f"s_cselect_b32 s{S_CH}, s{T+7}, 512")
    def rp_load(q): tkl[q] = K(f"buffer_load_dwordx4 {vr(RB+4*q,4)}, v{t3}, {srd(R_T)}, s{T+5 if q < 6 else T+7} offen offset:{448*(q%6)}")
    for q in (2, 3, 4, 5, 8, 9, 10, 11): rp_load(q)
    mksrd(R_X, P_GATE, 896)
    K(f"buffer_load_ushort v{RB+48}, v{t4}, {srd(R_X)}, s{T+6} offen"); K(f"buffer_load_ushort v{RB+49}, v{t4}, {srd(R_X)}, s{T+6} offen offset:16")
    for q in (0, 1, 6, 7): rp_load(q)
    mksrd(R_WS, P_WS, WS_SIZE)
    K(f"s_mov_b32 s{T+6}, 86016"); K(f"v_mul_lo_u32 v{RB+50}, v{t0}, s{T+6}"); K(f"v_and_b32 v{t1}, 7, v{V_LANE}")
    K(f"v_lshl_add_u32 v{RB+50}, v{t1}, 4, v{RB+50}")
    K(f"v_cmp_eq_u32 vcc, 3, v{t2}")
    K(f"s_lshl_b32 s{K0}, s{K0}, 6"); K(f"s_add_u32 s{K0}, s{K0}, {WS_WQ}")
    def rp_store(q):
        n, p, hg = q // 6, (q % 6) // 2, q % 2; b = RB + 4*q
        K.wait_vm(tkl[q])
        K(f"v_cndmask_b32 v{b+2}, v{b+2}, v{RB+48+n}, vcc" if p == 0 else f"v_cndmask_b32 v{b+2}, v{b+2}, 0, vcc")
        K(f"v_cndmask_b32 v{b+3}, v{b+3}, 0, vcc")
        K(f"s_add_u32 s{T+6}, s{K0}, {p*28672 + hg*8*86016}")
        if n: K(f"s_add_u32 s{T+6}, s{T+6}, s{S_CH}")
        return K(f"buffer_store_dwordx4 {vr(b,4)}, v{RB+50}, {srd(R_WS)}, s{T+6} offen sc1")
    for e in range(4): K(f"v_mov_b32 v{RB+52+e}, 0")
    K(f"s_lshl_b32 s{T+5}, s{S_FL}, 2"); K(f"s_add_u32 s{T+5}, s{T+5}, s{S_A}"); K(f"s_lshl_b32 s{T+7}, s{T+5}, 12"); K(f"s_lshl_b32 s{T+5}, s{T+5}, 10")
    K(f"s_add_u32 s{T+5}, s{T+5}, {WS_KVP}"); K(f"s_add_u32 s{T+7}, s{T+7}, {WS_CN}"); K(f"v_lshlrev_b32 v{t0}, 7, v{V_LANE}")
    K(f"buffer_store_dwordx4 {vr(RB+52,4)}, v{V_L16}, {srd(R_WS)}, s{T+5} offen sc1")
    K("s_mov_b32 exec_hi, 0")
    K(f"buffer_store_dword v{RB+52}, v{t0}, {srd(R_WS)}, s{T+7} offen sc1")
    K("s_mov_b32 exec_hi, -1")
    K(f"s_lshl_b32 s{S_FL}, s{S_FL}, 7"); K(f"s_add_u32 s{S_FL}, s{S_FL}, {WS_RPF}"); K(f"s_add_u32 s{S_FL2}, s{S_FL}, 4096")
    K(f"s_cmp_eq_u32 s{S_A}, 3"); K(f"s_cselect_b32 s{S_FL}, s{S_FL}, 0x7000000"); K(f"s_cselect_b32 s{S_FL2}, s{S_FL2}, 0x7000000")
    K("s_waitcnt lgkmcnt(0)")
    settag()
    for q in (2, 3, 4, 5, 8, 9, 10, 11): tk1 = rp_store(q)
    for q in (0, 1, 6, 7): rp_store(q)
    if fine: stamp("rp_st")
    K("s_barrier")
    K.wait_vm(tk1)
    K("s_barrier")
    flag(S_FL)
    stamp("rp_pub")
    K("s_waitcnt vmcnt(1)")
    arrive(C_5); await_(C_5, 4)
    flag(S_FL2)
    arrive(C_E); arrive(C_G)
    K("s_setprio 0")
    K.vm = vm_m
    K.label("L_mset")
    if allpf:
        mksrd(R_X, P_X, 2048*896); mksrd(R_W1, P_W1, 448*3584)
        K(f"s_lshl_b32 s{T+3}, s2, 2"); K(f"s_add_u32 s{T+3}, s{T+3}, s{S_A}")
        K(f"s_mul_i32 s{T}, s{T+3}, {14*128}"); K(f"s_mul_i32 s{T+1}, s{T+3}, {13*128}"); K(f"v_lshlrev_b32 v{t0}, 7, v{V_LANE}")
        K("s_mov_b64 exec, 0x3fff")
        if allpf & 1: K(f"buffer_load_dword v{V_POLL}, v{t0}, {srd(R_X)}, s{T} offen")
        K("s_mov_b64 exec, 0x1fff")
        if allpf & 2: K(f"buffer_load_dword v{V_POLL}, v{t0}, {srd(R_W1)}, s{T+1} offen")
        K("s_mov_b64 exec, -1")
    if spf:
        K(f"s_lshl_b32 s{T+3}, s2, 2"); K(f"s_add_u32 s{T+3}, s{T+3}, s{S_A}")
        K(f"s_mul_i32 s{T}, s{T+3}, {12*128 + 32}"); K(f"s_mul_i32 s{T+1}, s{T+3}, {3*128 + 8}")
        for q in range(13): K(f"s_load_dword s{S_CNT}, {sp(P_W2)}, s{T} offset:{min(128*q, 12*128 + 28)}")
        K("s_waitcnt lgkmcnt(10)")
        for q in range(4): K(f"s_load_dword s{S_CNT}, {sp(P_WO)}, s{T+1} offset:{min(128*q, 3*128 + 4)}")
    mksrd(R_WS, P_WS, WS_SIZE); mksrd(R_WO, P_WO, 448*896); mksrd(R_OUT, P_OUT, 2048*896)
    p2setup()
    K(f"s_mul_i32 s{T}, s{S_ROW}, {112*1024}"); K(f"s_add_u32 s{T}, s{T}, {0x7000000 if x_noh else WS_H}")
    K(f"s_lshl_b32 s{S_HB}, s{T+4}, 12"); K(f"s_add_u32 s{S_HB}, s{S_HB}, s{T}")
    K(f"s_lshl_b32 s{S_HB3}, s{T+2}, 12"); K(f"s_add_u32 s{S_HB3}, s{S_HB3}, s{T}")
    BF1, BF2, BONE = M_AR + 80, 128, 124
    for r in list(range(BF1, BF1 + 16)) + list(range(BONE, BF2 + 8)): K(f"v_mov_b32 v{r}, 0")
    K(f"v_lshlrev_b32 v{t0}, 1, v{V_LANE}")
    K("s_mov_b32 exec_hi, 0")
    K(f"v_mov_b32 v{BONE}, 0x3f80")
    mksrd(R_T, P_B1, 3584)
    for p in range(4): K(f"buffer_load_ushort v{BF1+4*p}, v{t0}, {srd(R_T)}, s{S_W1B} offen offset:{64*p}")
    mksrd(R_T, P_B2, 896)
    K(f"s_lshl_b32 s{T}, s{S_CT}, 7"); K(f"s_lshl_b32 s{T+1}, s{S_A}, 10"); K(f"s_add_u32 s{T}, s{T}, s{T+1}")
    for p in range(2): tk_b2 = K(f"buffer_load_ushort v{BF2+4*p}, v{t0}, {srd(R_T)}, s{T} offen offset:{64*p}")
    K("s_mov_b32 exec_hi, -1")
    K(f"s_lshl_b32 s{T}, s{S_ROW}, 1"); K(f"s_add_u32 s{T}, s{T}, s{S_A}")
    K(f"s_lshl_b32 s{T+1}, s{S_CT}, 7")
    K(f"s_lshl_b32 s{S_PE}, s{T}, 11"); K(f"s_add_u32 s{S_PE}, s{S_PE}, s{T+1}"); K(f"s_add_u32 s{S_PE}, s{S_PE}, {WS_HF}")
    K(f"s_lshl_b32 s{S_PO}, s{T}, 10"); K(f"s_add_u32 s{S_PO}, s{S_PO}, s{T+1}"); K(f"s_add_u32 s{S_PO}, s{S_PO}, {WS_OF}")
    K(f"s_lshl_b32 s{T}, s{S_ROW}, 4"); K(f"s_lshl_b32 s{T+1}, s{S_A}, 2"); K(f"s_add_u32 s{S_OB}, s{T+1}, s{T}")
    FL_E, FL_L, FL_O = (S_PE, 0, 6), (S_PE, 1024, 8), (S_PO, 0, 8)
    K(f"s_lshl_b32 s{T}, s{S_MT}, 2"); K(f"s_add_u32 s{T}, s{T}, s{S_A}"); K(f"s_mul_i32 s{S_RS}, s{T}, 112")
    K(f"s_lshl_b32 s{T+1}, s{S_J}, 3"); K(f"s_add_u32 s{S_RS}, s{S_RS}, s{T+1}"); K(f"s_lshl_b32 s{S_RS}, s{S_RS}, 10"); K(f"s_add_u32 s{S_RS}, s{S_RS}, {WS_H}")
    K(f"s_lshr_b32 s{T}, s{T}, 1"); K(f"s_lshl_b32 s{T}, s{T}, 13"); K(f"s_add_u32 s{T}, s{T}, {WS_HF}")
    K(f"s_mul_i32 s{T+1}, s{S_J}, {74*8}"); K(f"s_and_b32 s{S_FL}, s{T+1}, 0xf800"); K(f"s_add_u32 s{S_FL}, s{S_FL}, s{T}")
    K(f"s_add_u32 s{T+1}, s{T+1}, {37*8}"); K(f"s_and_b32 s{S_FL2}, s{T+1}, 0xf800"); K(f"s_add_u32 s{S_FL2}, s{S_FL2}, s{T}"); K(f"s_add_u32 s{S_FL2}, s{S_FL2}, 1024")
    K(f"s_lshr_b32 s{T+1}, {(1 << 3) | (1 << 10)}, s{S_J}"); K(f"s_and_b32 s{T+1}, s{T+1}, 1"); K(f"s_lshl_b32 s{T+1}, s{T+1}, 10"); K(f"s_add_u32 s{S_FL}, s{S_FL}, s{T+1}")
    K(f"s_cmp_ge_u32 s{S_J}, 14"); K(f"s_cselect_b32 s{S_FL2}, 0x7000000, s{S_FL2}")
    K(f"v_add_u32 v{M_L16B}, {112*1024}, v{V_L16}")
    MP = M_AR + 40
    K(f"v_lshlrev_b32 v{MP}, 7, v{V_LANE}")
    K(f"s_lshl_b32 s{T+3}, s2, 2"); K(f"s_add_u32 s{T+3}, s{T+3}, s{S_A}")
    K(f"s_mul_i32 s{S_XB}, s{T+3}, {13*128}"); K(f"s_lshl_b32 s{S_M0}, s{T+3}, 9")
    def mall_pf():
        K("s_mov_b64 exec, 0x1fff")
        K(f"buffer_load_dword v{V_POLL}, v{MP}, {srd(R_W2)}, s{S_XB} offen" + ["", " sc1", " sc0 sc1", " nt"][mpa])
        K("s_mov_b64 exec, 15")
        K(f"buffer_load_dword v{V_POLL}, v{MP}, {srd(R_WO)}, s{S_M0} offen" + ["", " sc1", " sc0 sc1", " nt"][mpa])
        K("s_mov_b64 exec, -1")
    def mall_again():
        K(f"s_xor_b32 s{T+3}, s2, 1"); K(f"s_lshl_b32 s{T+3}, s{T+3}, 2"); K(f"s_add_u32 s{T+3}, s{T+3}, s{S_A}")
        K(f"s_mul_i32 s{S_XB}, s{T+3}, {13*128}"); K(f"s_lshl_b32 s{S_M0}, s{T+3}, 9")
        mall_pf()
    if mpf == 1: mall_pf()
    if tlb:
        l = newl("tlb")
        K(f"s_cmp_lg_u32 s{S_A}, 1")
        K.branch(f"s_cbranch_scc1 {l}")
        K(f"v_lshlrev_b32 v{t0}, {tlb}, v{V_LANE}")
        K(f"buffer_load_dword v{V_POLL}, v{t0}, {srd(R_WS)}, 0 offen offset:2048"); K.vm -= 1
        K(f"buffer_load_dword v{V_POLL}, v{t0}, {srd(R_OUT)}, 0 offen"); K.vm -= 1
        K.label(l)
    xfrag_addr(M_AX)
    lanepart()
    K(f"v_lshl_add_u32 v{t0}, v{t2}, 3, v{t3}"); K(f"v_lshl_add_u32 v{t0}, v{t0}, 8, v{t4}"); K(f"v_lshl_add_u32 v{t0}, v{t3}, 6, v{t0}")
    K(f"v_add_u32 v{M_AW}, 16384, v{t0}")
    for p in range(1, 4): K(f"v_xor_b32 v{M_AW+p}, {64*p}, v{M_AW}")
    AB = M_AB
    K(f"v_lshl_add_u32 v{t0}, v{t2}, 2, v{t3}"); K(f"v_lshl_add_u32 v{t0}, v{t0}, 7, v{t4}"); K(f"v_bfe_u32 v{t1}, v{V_LANE}, 3, 1"); K(f"v_lshl_add_u32 v{t0}, v{t1}, 6, v{t0}")
    K(f"v_add_u32 v{AB}, s{S_M02}, v{t0}"); K(f"v_xor_b32 v{AB+1}, 64, v{AB}")
    K(f"v_add_u32 v{AB+2}, 65536, v{AB}"); K(f"v_add_u32 v{AB+3}, 65536, v{AB+1}")
    K(f"v_lshlrev_b32 v{t0}, 9, v{t2}"); K(f"v_sub_u32 v22, v{AB+2}, v{t0}"); K(f"v_sub_u32 v23, v{AB+3}, v{t0}")
    box = {}
    K(f"s_cmp_ge_u32 s{S_J}, 14")
    K.branch("s_cbranch_scc1 L_nof")
    vm_nof = K.vm
    K("s_waitcnt lgkmcnt(0)")
    settag()
    if fine: stamp("M_rdy")
    WR, XR = M_BH, M_BH + 4*G
    tk = {}
    def rdg(g):
        ks, p = g // 4, g % 4
        t, ksl = ks // 4, ks % 4
        uo = (t % 2) * 32768
        if p == 0 and ksl == 0:
            shift(range(M_AX, M_AX + 8), SH[t])
            if t == 3: K.wait_vm(tk_b2)
            if t < 6: K("s_barrier")
            else:
                l = newl("s6")
                K.wait_lg(box['cs'])
                K(f"v_cmp_ne_u32 vcc, 4, v{t4}")
                K(f"s_cbranch_vccz {l}")
                lgs = K.lg
                await_(C_S, 4)
                K.lg = lgs
                K.raw(f"{l}:")
        if p == 0: K(f"ds_read_b128 {vr(XR + 4*(ks % 3), 4)}, v{M_AX+ksl} offset:{uo}")
        for r in range(2):
            tk[g] = K(f"ds_read_b64_tr_b16 {vr(WR + 4*(g % G) + 2*r, 2)}, v{M_AW+p} offset:{uo + (16*ksl + 4*r)*256}")
    for g in range(G): rdg(g)
    for g in range(112):
        K.wait_lg(tk[g])
        mfma(M_ACC + 16*(g % 4), WR + 4*(g % G), XR + 4*((g // 4) % 3), "0" if g < 4 else None, x_m16 & 1)
        if 52 <= g < 56: mfma(M_ACC + 16*(g % 4), BF1 + 4*(g % 4), BONE)
        if g + G < 112: rdg(g + G)
        if g + G == 112: arrive(C_E)
        if g + G + 3 == 96: box['cs'] = K(f"ds_read_b32 v{t4}, v{V_CNT} offset:{C_S}")
        if mpf > 1 and g == mpf: mall_pf()
        if mpf2 and g == mpf2: mall_again()
        if hpt and g == hpt: K(f"buffer_load_dword v{V_POLL}, v{MP}, {srd(R_WS)}, s{S_RS} offen sc1")
    stamp("ffn1")
    K(f"s_setprio {prioG}")
    tk = {}
    def rdb(ks, part=3):
        r, ksl = ks // 4, ks % 4
        b = M_BH + 8 * (ks % 8)
        u = RUNIT[r]
        if ksl == 0 and r >= (4 if aw2 == 3 else 2) and part & 1: K.wait_vm(tk_r[r])
        for pp in range(2):
            for h in range(2):
                if not part & (1 << pp): continue
                if r < 7:
                    tk[ks] = K(f"ds_read_b64_tr_b16 {vr(b + 4*pp + 2*h, 2)}, v{AB + pp + (2 if u >= 2 else 0)} offset:{(u%2)*32768 + (16*ksl + 8*h)*128}")
                else:
                    hh, sx = (ks % 4) // 2, ks % 2
                    tk[ks] = K(f"ds_read_b64_tr_b16 {vr(b + 4*pp + 2*h, 2)}, v{(22 if (sx == 1 and h == 1) else AB + 2) + pp} offset:{(u%2)*32768 + (28*hh + 16*sx + 8*h)*128}")
    def pull():
        await_(C_B, 4)
        for e in range(12): K(f"v_mov_b32 v{BF1+e}, v{BONE+e}")
        for ks in range(8):
            if ks >= 3: K.wait_lg(tk[ks - 3])
            rdb(ks)
        arrive(C_P)
    cc = -2.0 * 0.7978845608028654 * 1.4426950408889634
    K(f"v_mov_b32 v{t0}, {f2u(cc):#x}"); K(f"v_mov_b32 v{t1}, 1.0"); K(f"s_mov_b32 s{S_K}, {f2u(cc*0.044715):#x}"); K(f"s_mov_b32 s{S_K+1}, {f2u(cc*0.044715):#x}")
    tkh = {}
    for g in range(8):
        a = M_ACC + 8*g; tt = M_AR + 8*(g % 2); o = M_AR + 48 + 4*g
        if aw2 == 4 and g == md:
            await_(C_E, 8)
            K(f"s_cmp_eq_u32 s{S_ACT}, 1"); K(f"s_cselect_b32 s{R_W2+2}, s{R_W2+2}, 0")
            pend.extend(g_w2(0) + g_w2(1))
        if x_nog: pass
        elif g < pkg:
            for e in range(0, 8, 2): K(f"v_pk_mul_f32 {vr(tt+e,2)}, {vr(a+e,2)}, {vr(a+e,2)}")
            for e in range(0, 8, 2): K(f"v_pk_fma_f32 {vr(tt+e,2)}, {vr(tt+e,2)}, {sp(S_K)}, {vr(t0,2)} op_sel_hi:[1,1,0]")
            drip(1)
            for e in range(0, 8, 2): K(f"v_pk_mul_f32 {vr(tt+e,2)}, {vr(a+e,2)}, {vr(tt+e,2)}")
            for e in range(8):
                K(f"v_exp_f32 v{tt+e}, v{tt+e}")
                if e == 2: drip(1)
            for e in range(0, 8, 2): K(f"v_pk_add_f32 {vr(tt+e,2)}, {vr(tt+e,2)}, {vr(t0,2)} op_sel:[0,1] op_sel_hi:[1,1]")
            drip(1)
            for e in range(8): K(f"v_rcp_f32 v{tt+e}, v{tt+e}")
            drip(1 if g < 7 else 99)
            for e in range(0, 8, 2): K(f"v_pk_mul_f32 {vr(tt+e,2)}, {vr(a+e,2)}, {vr(tt+e,2)}")
        else:
            for e in range(8): K(f"v_mul_f32 v{tt+e}, v{a+e}, v{a+e}")
            for e in range(8): K(f"v_fma_f32 v{tt+e}, v{tt+e}, s{S_K}, v{t0}")
            drip(1)
            for e in range(8): K(f"v_mul_f32 v{tt+e}, v{a+e}, v{tt+e}")
            for e in range(8):
                K(f"v_exp_f32 v{tt+e}, v{tt+e}")
                if e == 2: drip(1)
            for e in range(8): K(f"v_add_f32 v{tt+e}, 1.0, v{tt+e}")
            drip(1)
            for e in range(8): K(f"v_rcp_f32 v{tt+e}, v{tt+e}")
            drip(1 if g < 7 else 99)
            for e in range(8): K(f"v_mul_f32 v{tt+e}, v{a+e}, v{tt+e}")
        for e in range(4): K(f"v_cvt_pk_bf16_f32 v{o+e}, v{tt+2*e}, v{tt+2*e+1}")
        if g == gw: arrive(C_G)
        if aw2 == 3 and g == gp: pull()
        if (g + 1) % sb == 0:
            K("s_setprio 3")
            for x in range(g + 1 - sb, g + 1):
                if x == 4: K(f"s_add_u32 s{S_RS}, s{S_RS}, 4096")
                tkh[x] = K(f"buffer_store_dwordx4 {vr(M_AR + 48 + 4*x,4)}, v{V_L16}, {srd(R_WS)}, s{S_RS} offen offset:{1024*(x%4)} " + ["sc1", "sc1 nt", "sc0 sc1"][hst])
            if g < 7: K(f"s_setprio {prioG}")
    stamp("gelu_v")
    await_(C_0, 4)
    K.wait_vm(tkh[3]); signal(S_FL, 7)
    stamp("gelu")
    K(f"s_cmp_eq_u32 s{S_ACT}, 1")
    K.branch("s_cbranch_scc1 L_p2")
    K("s_waitcnt vmcnt(0)")
    signal(S_FL2, 7)
    def l2warm(first, n):
        K(f"s_lshr_b32 s{T}, s2, 3"); K(f"s_and_b32 s{T}, s{T}, 3"); K(f"s_lshl_b32 s{T}, s{T}, 2"); K(f"s_add_u32 s{T}, s{T}, s{S_A}"); K(f"s_lshl_b32 s{T}, s{T}, 13")
        K(f"v_lshlrev_b32 v{t0}, 7, v{V_LANE}")
        for k in range(n):
            K(f"s_add_u32 s{T+1}, s{T}, {(first + 1024*k)*128}")
            K(f"buffer_load_dword v{t1}, v{t0}, {srd(R_W2)}, s{T+1} offen")
    if l2w & 1:
        l2warm(0, 13)
        for k in range(4):
            K(f"s_add_u32 s{T+1}, s{T}, {1024*k*128}")
            K(f"buffer_load_dword v{t1}, v{t0}, {srd(R_WO)}, s{T+1} offen")
    K.branch("s_branch L_fin")
    K.label("L_nof")
    K.vm = vm_nof
    if hlp:
        if hw == 1: await_(C_E, 8, 2)
        if hw == 2: await_(C_0, 4, 2)
        if mpf > 1: mall_pf()
        K(f"s_mul_i32 s{T}, s{S_CT}, {111*128}")
        K("s_mov_b32 exec_hi, 0xffffff")
        for r in range(h0, 7):
            for q in range(2):
                K(f"s_add_u32 s{T+1}, s{S_W2B3 if r == 3 else S_W2B}, {(0 if r == 3 else (2*r % 7)*64*896) + q*56*128}"); K(f"s_add_u32 s{T+1}, s{T+1}, s{T}")
                K(f"buffer_load_dword v{V_POLL}, v{MP}, {srd(R_W2)}, s{T+1} offen")
                K(f"s_waitcnt vmcnt({hd})")
        K(f"s_lshl_b32 s{T}, s{S_CT}, 2"); K(f"s_add_u32 s{T}, s{T}, s{S_A}"); K(f"s_mul_i32 s{T}, s{T}, {196*128}")
        K("s_mov_b32 exec_hi, 0x1ffff")
        for q in range(4):
            K(f"buffer_load_dword v{V_POLL}, v{MP}, {srd(R_WO)}, s{T} offen"); K(f"s_add_u32 s{T}, s{T}, {49*128}")
            K(f"s_waitcnt vmcnt({hd})")
        K("s_mov_b64 exec, -1")
        stamp("hlp_done")
        K.branch("s_branch L_fin")
    if nfe and mpf > 1: mall_pf()
    if mpf == -2: await_(C_E, 8, 2)
    if mpf == -1: await_(C_0, 4, 2)
    if mpf < 0:
        K(f"s_lshl_b32 s{T+3}, s2, 2"); K(f"s_add_u32 s{T+3}, s{T+3}, s{S_A}")
        K(f"s_mul_i32 s{T}, s{T+3}, {98*128}"); K(f"s_mul_i32 s{T+1}, s{T+3}, {25*128}")
        K(f"buffer_load_dword v{V_POLL}, v{MP}, {srd(R_W2)}, s{T} offen")
        K(f"s_add_u32 s{T}, s{T}, {64*128}")
        K("s_mov_b32 exec_hi, 3")
        K(f"buffer_load_dword v{V_POLL}, v{MP}, {srd(R_W2)}, s{T} offen")
        K("s_mov_b64 exec, 0x1ffffff")
        K(f"buffer_load_dword v{V_POLL}, v{MP}, {srd(R_WO)}, s{T+1} offen")
        K("s_mov_b64 exec, -1")
    await_(C_0, 4, 2)
    K("s_waitcnt lgkmcnt(0)")
    settag()
    if mpf > 1 and not nfe: mall_pf()
    if l2w & 2: l2warm(0, 13)
    K("s_waitcnt vmcnt(0)")
    if aw2 == 3: pull()
    if aw2 == 4:
        await_(C_E, 8); run(g_w2(0) + g_w2(1)); K("s_waitcnt vmcnt(0)")

    K.label("L_p2")
    tk_h = K.vm
    def g_wo(hf):
        def step(q):
            def f():
                if q == 0:
                    K(f"s_mul_i32 s{TD}, s{S_A}, {112*896}"); K(f"s_lshl_b32 s{TD+1}, s{S_CT}, 7"); K(f"s_add_u32 s{TD}, s{TD}, s{TD+1}")
                    if hf: K(f"s_add_u32 s{TD}, s{TD}, {56*896}")
                    K(f"s_add_u32 m0, s{S_M02}, {U[RUNIT[7+hf]]}")
                if q == 4: K(f"s_add_u32 s{TD}, s{TD}, {32*896}"); K(f"s_add_u32 m0, s{S_M02}, {U[RUNIT[7+hf]] + 4096}")
                x = K(f"buffer_load_dwordx4 v{V_D2+q%4}, {srd(R_WO)}, s{TD} offen offset:{1024*(q%4)} lds") if 7 < x_skipB else K.vm - 8
                if q == 6: tk_r[7+hf] = x
            return f
        return [step(q) for q in range(7)]
    tk_a = {}
    def lda(ks, part=3):
        b = M_AR + 8 * (ks % NA); r = ks // 4
        if part & 1:
            if ks % 4 == 0: K(f"s_add_u32 s{T+7}, s{S_HB3 if r == 3 else S_HB}, {0 if r == 3 else (2*r % 7)*4096}")
            K(f"buffer_load_dwordx4 {vr(b,4)}, v{V_L16}, {srd(R_WS)}, s{T+7} offen offset:{1024*(ks%4)} sc1")
        if part & 2: tk_a[ks] = K(f"buffer_load_dwordx4 {vr(b+4,4)}, v{M_L16B}, {srd(R_WS)}, s{T+7} offen offset:{1024*(ks%4)} sc1")
    for t2_ in range(2):
        for pp in range(2): mfma(M_ACC + 32*t2_ + 16*pp, (BF1 + 4 if aw2 == 3 else BF2) + 4*pp, BF1 if aw2 == 3 else BONE, "0")
    g0, g1, g2, g3 = g_w2(0), g_w2(1), g_w2(2), g_w2(3)
    if aw2 == 3:
        K.wait_vm(tk_h - 1)
        signal(S_FL2, 7)
        K(f"s_setprio 0")
        stamp("h_pub1")
        poll_issue(FL_E)
        poll_check(FL_E)
        stamp("hE_seen")
        for ks in range(pre): lda(ks)
        g3 = []
    elif aw2:
        K.wait_vm(tk_h - 1)
        signal(S_FL2, 7)
        K(f"s_setprio 0")
        stamp("h_pub1")
        if hfirst:
            poll_issue(FL_E)
            if not x_noE: poll_check(FL_E)
            stamp("hE_seen")
            for ks in range(pre): lda(ks)
        if aw2 != 4: await_(C_B, 4)
        stamp("B_seen")
        if jit:
            for ks in range(8):
                if ks >= 3: K.wait_lg(tk[ks - 3])
                rdb(ks)
        else:
            for ks in range(3): rdb(ks)
            K.wait_lg(tk[0]); rdb(3)
            K.wait_lg(tk[3])
            for q in range(8):
                g2[q]()
                if q < 4:
                    if q == 3: K.wait_lg(tk[4])
                    rdb(4 + q)
        K("s_waitcnt lgkmcnt(0)")
        if not hfirst:
            poll_issue(FL_E)
            run(g3); g3 = []
            poll_check(FL_E)
            stamp("hE_seen")
            for ks in range(pre): lda(ks)
    else:
        await_(C_E, 8)
        for q in range(8):
            g0[q]()
        K.wait_vm(tk_h - 1)
        signal(S_FL2, 7)
        K(f"s_setprio 0")
        stamp("h_pub1")
        poll_issue(FL_E)
        run(g1)
        poll_check(FL_E)
        stamp("hE_seen")
        if jit:
            for ks in range(8):
                if ks < pre: lda(ks)
                if ks % 4 == 0: K.wait_vm(tk_r[ks // 4])
                if ks >= 3: K.wait_lg(tk[ks - 3])
                rdb(ks)
            assert pre <= 8
        else:
            for ks in range(4): lda(ks)
            K.wait_vm(tk_r[0])
            for ks in range(4):
                if ks == 3: K.wait_lg(tk[0])
                rdb(ks); lda(4 + ks)
            K.wait_vm(tk_r[1]); K.wait_lg(tk[3])
            for q in range(8):
                g2[q]()
                if q < 4:
                    if q == 3: K.wait_lg(tk[4])
                    rdb(4 + q)
        K("s_waitcnt lgkmcnt(0)")
    stamp("p2_prep")
    poll_issue(FL_L)
    sched = []
    if jit:
        for k in range(pre, 28):
            for p in (1, 2): sched.append((k, max(k - NA + 1, c0 + 1 if k >= 12 else 0), lambda k=k, p=p: lda(k, p), 0))
        early = {2: 0, 3: 0, 4: c3 + 1, 5: 12, 6: 16, 7: cq + 1, 8: 20}
        for r in range(2, 9):
            for q, f in enumerate(g_w2(r) if r < 7 else g_wo(r - 7)): sched.append((4*r - bl + q // 2 + 0.5, early[r], f, r))
        sched.sort(key=lambda z: z[0])
    else:
        for ks in range(pre if aw2 else 8, 12): pend.extend([lambda ks=ks: lda(ks, 1), lambda ks=ks: lda(ks, 2)])
        pend.extend(g3)
    def jdrip(ks):
        first = min([z[3] for z in sched if z[3]], default=0)
        for n, (key, e, f, grp) in enumerate(sched):
            if e <= ks and grp in (0, first):
                f(); sched.pop(n); return
    def step(ks, side):
        K.wait_vm(tk_a[ks])
        if ks >= 8: K.wait_lg(tk[ks])
        a = M_AR + 8 * (ks % NA); b = M_BH + 8 * (ks % 8)
        n = 0
        for t2_ in range(2):
            for pp in range(2):
                if not (x_nomf and ks < 28): mfma(M_ACC + 32*t2_ + 16*pp, b + 4*pp, a + 4*t2_, None, x_m16 & 2)
                side(n); n += 1
    nxt = [12]
    def hstep(ks):
        def side(n):
            if n < 2 and ks + 3 >= 8: rdb(ks + 3, 1 << n)
            if jit and sched:
                jdrip(ks)
                if n < rate - 4: jdrip(ks)
            else: drip(2 if len(pend) > 8 else 1)
        step(ks, side)
    def ldo(ks, part):
        b = M_AR + 8 * (ks % NA)
        if part == 0:
            K(f"buffer_load_dword v{t2}, v{t3}, {srd(R_WS)}, s{T+3} offen sc1")
            box['g'] = K(f"buffer_load_dword v{t3}, v{t3}, {srd(R_WS)}, s{T+3} offen offset:2048 sc1")
        if part == 1:
            if ks == 32: K(f"s_add_u32 s{T+4}, s{T+4}, 4096")
            K(f"buffer_load_dwordx4 {vr(b,4)}, v{V_L16}, {srd(R_WS)}, s{T+4} offen offset:{1024*(ks%4)} sc1")
        if part == 2: tk_a[ks] = K(f"buffer_load_dwordx4 {vr(b+4,4)}, v{M_L16B}, {srd(R_WS)}, s{T+4} offen offset:{1024*(ks%4)} sc1")
    olist = lambda: [lambda: ldo(0, 0)] + [lambda k=k, p=p: ldo(k, p) for k in range(28, 36) for p in (1, 2)]
    for ks in range(oc + 1):
        hstep(ks)
        if ks == c0:
            if not x_noE: poll_check(FL_L)
            stamp("hL_seen")
        if ks == 4 and aw2 == 3: await_(C_B2, 4)
        if ks == c3:
            await_(C_3, 4)
            if not jit: pend.extend(g_w2(4))
        if ks == cq:
            await_(C_Q, 4)
            if not jit: pend.extend(g_wo(0))
        if not jit:
            while ks >= c0 and nxt[0] <= ks + NA and nxt[0] < 28:
                pend.extend([lambda k=nxt[0]: lda(k, 1), lambda k=nxt[0]: lda(k, 2)]); nxt[0] += 1
            if ks == 11: pend.extend(g_w2(5))
            if ks == 15: pend.extend(g_w2(6))
            if ks == 19: pend.extend(g_wo(1))
        if ks in (3, 11, 19): stamp(f"p2_k{ks}")
        if ks == oc - 2: poll_issue(FL_O)
    while sched: jdrip(99)
    assert not pend and oc >= 22
    K(f"v_and_b32 v{t3}, 31, v{V_LANE}"); K(f"v_lshlrev_b32 v{t3}, 2, v{t3}")
    K(f"s_lshl_b32 s{T+3}, s{S_OB}, 7"); K(f"s_add_u32 s{T+3}, s{T+3}, {WS_G}")
    K(f"s_lshl_b32 s{T+4}, s{S_OB}, 11"); K(f"s_add_u32 s{T+4}, s{T+4}, {WS_O}")
    K(f"v_add_u32 v{M_L16B}, 32768, v{V_L16}")
    K(f"v_add_u32 v{V_D2}, s{S_M02}, v{V_L16}")
    for q in range(1, 4): K(f"v_xor_b32 v{V_D2+q}, {64*q}, v{V_D2}")
    K("s_waitcnt lgkmcnt(0)")
    K(f"s_cmp_lg_u32 s{PD[0]}, {FL_O[2]}" if not x_noo else "s_cmp_lg_u32 0, 0")
    K.branch("s_cbranch_scc1 L_olate")
    sv, sl = K.vm, K.lg
    stamp("o_early")
    pend.extend(olist())
    for ks in range(oc + 1, 28): hstep(ks)
    drip(99)
    ev, el = K.vm, K.lg
    K.branch("s_branch L_ojoin")
    K.label("L_olate")
    K.vm, K.lg = sv, sl
    for ks in range(oc + 1, 28): hstep(ks)
    poll_issue(FL_O)
    poll_check(FL_O)
    stamp("o_late")
    run(olist())
    assert (ev, el) == (K.vm, K.lg)
    K.label("L_ojoin")
    stamp("p2_h_done")
    tk_g = box['g']
    K.wait_vm(tk_g)
    if f2: stamp("t_g")
    K(f"v_sub_f32 v{t4}, 1.0, v{t2}"); K(f"v_sub_f32 v{t5}, 1.0, v{t3}")
    K(f"v_cvt_pk_bf16_f32 v{t4}, v{t4}, v{t5}"); K(f"v_and_b32 v{t5}, 0xffff0000, v{t4}"); K(f"v_lshlrev_b32 v{t4}, 16, v{t4}")
    if tl:
        for e in range(0, 32, 2): pscale(M_ACC+e, t4, True)
        for ks in range(28, 36):
            K.wait_vm(tk_a[ks] - 1); K.wait_lg(tk[ks])
            a = M_AR + 8 * (ks % NA); b = M_BH + 8 * (ks % 8)
            for pp in range(2):
                mfma(M_ACC + 16*pp, b + 4*pp, a)
                if ks + 3 < 36: rdb(ks + 3, 1 << pp)
                pscale(M_ACC + 32 + 4*(ks - 28) + 2*pp, t5, False)
        K.wait_vm(tk_a[35])
        for ks in range(28, 36):
            a = M_AR + 8 * (ks % NA); b = M_BH + 8 * (ks % 8)
            for pp in range(2):
                mfma(M_ACC + 32 + 16*pp, b + 4*pp, a + 4)
                n = 2*(ks - 28) + pp - 6
                if 0 <= n < 8: K(f"ds_write_b128 v{V_D2 + n%4}, {vr(M_ACC+4*n,4)} offset:{1024*n}")
        for b in range(8): K(f"ds_write_b128 v{V_D2 + b%4}, {vr(M_ACC+32+4*b,4)} offset:{32768 + 1024*b}")
    else:
        for e in range(0, 64, 2): pscale(M_ACC+e, t4 if e < 32 else t5, True)
        for ks in range(28, 36):
            def side(n):
                if n < 2 and ks + 3 < 36: rdb(ks + 3, 1 << n)
            step(ks, side)
        if f2: stamp("t_mf")
        for t2_ in range(2):
            for b in range(8): K(f"ds_write_b128 v{V_D2 + b%4}, {vr(M_ACC+32*t2_+4*b,4)} offset:{32768*t2_ + 1024*b}")
    stamp("p2_done")

    K.label("L_red")
    K(f"v_and_b32 v{t1}, 7, v{V_LANE}"); K(f"v_lshrrev_b32 v{t3}, 3, v{V_LANE}")
    K(f"s_lshl_b32 s{T+1}, s{S_A}, 3"); K(f"v_add_u32 v{t0}, s{T+1}, v{t3}")
    K(f"v_and_b32 v{t2}, 3, v{V_LANE}"); K(f"v_lshlrev_b32 v{t2}, 2, v{t2}"); K(f"v_xor_b32 v{t0}, v{t0}, v{t2}")
    K(f"v_lshlrev_b32 v{t0}, 4, v{t0}"); K(f"v_lshl_add_u32 v{t0}, v{t1}, 10, v{t0}")
    K(f"s_lshr_b32 s{T+2}, s{S_W}, 2"); K(f"s_lshl_b32 s{T}, s{T+2}, 15"); K(f"v_add_u32 v{t0}, s{T}, v{t0}")
    K(f"v_mul_u32_u24 v{t3}, 896, v{t3}"); K(f"v_lshl_add_u32 v{t3}, v{t1}, 4, v{t3}")
    K(f"s_lshl_b32 s{T}, s{S_ROW}, 2"); K(f"s_add_u32 s{T}, s{T}, s{S_W}"); K(f"s_mul_i32 s{T}, s{T}, {8*896}"); K(f"s_lshl_b32 s{T+1}, s{S_CT}, 7"); K(f"s_add_u32 s{T+5}, s{T}, s{T+1}")
    K("s_waitcnt lgkmcnt(0)")
    K("s_barrier")
    if f2: stamp("t_bar")
    R = 160
    for q in range(4):
        K(f"ds_read_b128 {vr(R+8*q,4)}, v{t0} offset:{8192*q}")
        K(f"ds_read_b128 {vr(R+8*q+4,4)}, v{t0} offset:{8192*q + 512}")
    K("s_waitcnt lgkmcnt(4)")
    for e in range(0, 8, 2): padd(R+e, R+e, R+8+e, True)
    K("s_waitcnt lgkmcnt(0)")
    for e in range(0, 8, 2): padd(R+16+e, R+16+e, R+24+e, True)
    for e in range(0, 8, 2): padd(R+e, R+e, R+16+e, True)
    for e in range(4): K(f"v_cvt_pk_bf16_f32 v{R+e}, v{R+2*e}, v{R+2*e+1}")
    K(f"buffer_store_dwordx4 {vr(R,4)}, v{t3}, {srd(R_OUT)}, s{T+5} offen" + ["", " sc1", " nt", " sc0 sc1"][outm])
    if f2: stamp("t_st")
    K(f"s_xor_b32 s{T}, s2, 64"); K(f"s_or_b32 s{T}, s{T}, s{S_W}"); K(f"s_cmp_lg_u32 s{T}, 0")
    K.branch("s_cbranch_scc1 L_fin")
    K(f"s_mov_b32 s{T}, {WS_EPOCH}")
    flag(T)
    K.label("L_fin")
    if stamps:
        K("s_waitcnt vmcnt(0)")
        stamp("end")
        if probe is not None:
            i0 = STAMP_IDS.setdefault('start', len(STAMP_IDS)); i1 = STAMP_IDS.setdefault(probe, len(STAMP_IDS))
            K(f"v_readlane_b32 s{T}, v{V_STAMP}, {i0}"); K(f"v_readlane_b32 s{T+1}, v{V_STAMP}, {i1}")
            K("s_nop 4")
            K(f"s_cmp_eq_u32 s{T+1}, 0"); K(f"s_cselect_b32 s{T+1}, s{T}, s{T+1}")
            if pwg >= 0:
                K(f"s_cmp_lg_u32 s2, {pwg}")
                K.branch("s_cbranch_scc1 L_end")
            K.label("L_probe")
            K("s_sleep 2")
            K(f"s_memrealtime {sp(S_ST)}"); K("s_waitcnt lgkmcnt(0)")
            K(f"s_sub_u32 s{T+2}, s{S_ST}, s{T+1}"); K(f"s_cmp_lt_u32 s{T+2}, {pt}")
            K.branch("s_cbranch_scc1 L_probe")
            K.branch("s_branch L_end")
        K(f"s_lshl_b32 s{T}, s2, 3"); K(f"s_add_u32 s{T}, s{T}, s{S_W}"); K(f"s_lshl_b32 s{T}, s{T}, 8"); K(f"s_add_u32 s{T}, s{T}, {WS_STAMP}")
        K(f"v_lshlrev_b32 v{t0}, 2, v{V_LANE}")
        K(f"buffer_store_dword v{V_STAMP}, v{t0}, {srd(R_WS)}, s{T} offen")
    K.label("L_end")
    K("s_endpgm")
    K.raw(f".fill (28672 + 8192 * {1 if stamps else 0} - (L_end - {NAME})) / 4, 4, 0xbf800000")

    head = f"""; Fused gated mix of hedgehog linear attention and GELU FFN (emitted by a hand-written generator script)
; @launch grid=(256,1,1) block=(512,1,1) lds=163840
.amdgcn_target "amdgcn-amd-amdhsa--gfx950"
.text
.globl {NAME}
.p2align 8
.type {NAME},@function
"""
    tail = f""".section .rodata,"a"
.p2align 6
.amdhsa_kernel {NAME}
  .amdhsa_next_free_vgpr 256
  .amdhsa_next_free_sgpr 102
  .amdhsa_accum_offset 256
  .amdhsa_group_segment_fixed_size 0
  .amdhsa_kernarg_size 104
  .amdhsa_user_sgpr_count 2
  .amdhsa_user_sgpr_kernarg_segment_ptr 1
  .amdhsa_system_sgpr_workgroup_id_x 1
.end_amdhsa_kernel
"""
    return head + K.text() + tail

STAMP_IDS = {}
def parse_opts(argv):
    kw = {}
    for a in argv:
        if a.startswith("-D"):
            k, v = a[2:].split("="); kw[k] = int(v) if v.lstrip("-").isdigit() else v
    return kw
if __name__ == "__main__":
    out = sys.argv[1] if len(sys.argv) > 1 else "k.s"
    open(out, "w").write(gen(**parse_opts(sys.argv)))
```

```python
import sys, struct
from asmlib import Asm

NAME = "gated_mix__linear_kernel_hedgehog__dense_activation_gelu__prompt_kernel"
def f2u(x): return struct.unpack("<I", struct.pack("<f", x))[0]

WS_EPOCH = 0
WS_RPF   = 0x8000
WS_STAMP = 0x10000
WS_G     = 0xA0000
WS_WQ    = 0x100000
WS_KVP   = 0x280000
WS_O     = 0x480000
WS_H     = 0x680000
WS_CN    = 0x300000
WS_HF    = WS_CN
WS_OF    = WS_CN + 2048*128
WS_KVF   = WS_CN + 3072*128
WS_SIZE  = 0xE00000

U = [0, 32768, 65536, 98304, 131072]
L_K, L_V, L_Q = 98304, 126976, 65536
L_MISC = 155648
L_PHI, L_CNT, L_B2, L_B1 = L_MISC, L_MISC + 2048, L_MISC + 2560, L_MISC + 3072
L_KVS = U[3]
L_KVF = L_MISC + 4096
RUNIT = [0, 1, 0, 1, 3, 0, 1, 2, 3]
C_E, C_0, C_1, C_2, C_3, C_4, C_Q, C_G, C_B, C_S, C_5, C_P, C_B2 = 0, 4, 8, 12, 16, 20, 24, 28, 32, 36, 40, 44, 48

P_X, P_WQKV, P_PHI, P_WO, P_W1, P_B1, P_W2 = 16, 18, 20, 22, 26, 28, 30
P_B2, P_GATE, P_OUT, P_WS = 32, 34, 36, 40
R_X, R_W1, R_W2, R_WO, R_WS, R_OUT, R_T = 44, 48, 52, 56, 60, 64, 68
S_MT, S_J, S_W, S_A, S_FL2, S_TAG, S_CH, S_CNT = 72, 73, 74, 75, 76, 78, 77, 100
S_CHO = 80
S_M0 = 87
S_XB, S_W1B = 88, 89
S_T = 90
S_UP = 98
S_E = 42
S_H = S_J
S_CT, S_ROW, S_ACT = 43, 3, 101
S_K = 4
S_ST = 6
S_L28 = 24
S_FL = 8
S_HB, S_W2B, S_OB, S_HB3, S_W2B3, S_M02, S_RS = 9, 10, 11, 12, 13, 14, 15
S_PE, S_P3, S_PO = 34, 35, 38
PD = [16, 17, 18, 19, 20, 21, 22, 23, 26, 27, 28, 29, 30, 31, 32, 33]
def srd(r): return f"s[{r}:{r+3}]"
def sp(r): return f"s[{r}:{r+1}]"

V_LANE, V_L16, V_STAMP, V_TAG, V_POLL, V_CNT = 1, 2, 3, 4, 5, 6
V_T = 8
V_D2 = 18
A_PA, A_AX, A_AD, A_L4, A_PH, A_TR, A_G = 7, 14, 22, 24, 25, 30, 31
V_W, V_P, V_ACC, V_PHI, V_X = 32, 64, 96, 128, 144
A_XD, A_WD, A_QD, A_GW = 64, 68, 72, 16
M_L16B, M_AB = 7, 14
M_ACC, M_BH, M_AR = 24, 88, 152
M_AX, M_AW = 136, 140
NA = 13
def vr(a, n): return f"v[{a}:{a+n-1}]"
UPM = sp(S_UP)
L2E = 1.4426950408889634

def gen(stamps=False, spin=20000, rot1=9, codepf=True, slp=2, cyc=False, G=5, prioA=1, prioM=2, kvf=27, fine=False,
        pkq=0, pkk=1, LA=9, LA0=6, c0=2, mpf=60, outm=0, tlb=0, gw=-1, hf0=7, rpb=3, prioG=2, k6=4, qpf=1, sb=1, qd=0, probe=None, pwg=-1, pt=4000, aw2=2, pre=8, cb=22, pkg=2, rpa=0, f2=0, hfirst=1, early=0, oc=22, x_now2=0, x_noh=0, x_nomf=0, x_now1=0, rb2=0, gp=3, pa=10, x_at=4, c3=9, cq=17, spf=0, allpf=0, l2w=0, jit=0, bl=5, rate=4, x_m16=0, ra=2, rb=4, rc=2, rd=1, x_skipB=99, x_noo=0, x_nog=0, x_noE=0, md=2, hlp=0, hw=2, h0=0, hd=0, hh=0, tl=1, am=1, kf=1, wso=0, hpt=0, hst=0, k1=11, kd=2, kb=24, qfirst=0, rp=1, re=1, mpf2=0, mpa=0, nfe=1, m16=1):
    K = Asm()
    T = S_T
    TD = T + 5
    t0, t1, t2, t3, t4, t5 = range(V_T, V_T + 6)
    def stamp(name):
        if not stamps: return
        if probe is not None and name != probe: return
        if cyc and name in ("rp_seen", "kv_issued", "q_gemm", "B_seen", "o_early", "o_late"): return
        K("s_waitcnt lgkmcnt(0)")
        K(f"s_memrealtime {sp(S_ST)}")
        if cyc: K(f"s_memtime s[0:1]")
        K("s_waitcnt lgkmcnt(0)")
        i = STAMP_IDS.setdefault(name, len(STAMP_IDS))
        K(f"v_writelane_b32 v{V_STAMP}, s{S_ST}, {i}")
        if cyc: K(f"v_writelane_b32 v{V_STAMP}, s0, {32 + i}")
    uid = [0]
    def newl(p): uid[0] += 1; return f"L_{p}{uid[0]}"
    def poll_issue(fl):
        K(f"s_load_dword s{PD[0]}, {sp(P_WS)}, s{fl[0]} offset:{fl[1]} glc")
    def poll_check(fl):
        l, d = newl("poll"), newl("polld")
        K(f"s_mov_b32 s{S_CNT}, {spin}")
        K.raw(f"{l}:")
        K("s_waitcnt lgkmcnt(0)")
        K(f"s_cmp_eq_u32 s{PD[0]}, {fl[2]}")
        K.branch(f"s_cbranch_scc1 {d}")
        K(f"s_sub_u32 s{S_CNT}, s{S_CNT}, 1")
        K(f"s_cbranch_scc1 {d}")
        if slp: K(f"s_sleep {slp}")
        poll_issue(fl)
        K(f"s_branch {l}")
        K.label(d)
    def signal(soff_reg, n):
        K(f"v_mov_b32 v{t5}, 1"); K(f"v_lshlrev_b32 v{V_POLL}, 7, v{V_LANE}")
        K(f"s_mov_b64 exec, {(1 << n) - 1}")
        K(f"buffer_atomic_add v{t5}, v{V_POLL}, {srd(R_WS)}, s{soff_reg} offen")
        K("s_mov_b64 exec, -1")
    def vpoll_issue(vaddr):
        return K(f"buffer_load_dword v{V_POLL}, v{vaddr}, {srd(R_WS)}, 0 offen sc1")
    def vpoll_check(tok, vaddr):
        l, d = newl("poll"), newl("polld")
        K(f"s_mov_b32 s{S_CNT}, {spin}")
        K.wait_vm(tok)
        K.label(l)
        K(f"v_cmp_ne_u32 vcc, s{S_TAG}, v{V_POLL}")
        K.branch(f"s_cbranch_vccz {d}")
        K(f"s_sub_u32 s{S_CNT}, s{S_CNT}, 1")
        K.branch(f"s_cbranch_scc1 {d}")
        K(f"s_sleep 10")
        K(f"buffer_load_dword v{V_POLL}, v{vaddr}, {srd(R_WS)}, 0 offen sc1"); K.vm -= 1
        K("s_waitcnt vmcnt(0)")
        K.branch(f"s_branch {l}")
        K.label(d)
    def flag(soff_reg):
        K("s_mov_b64 exec, 1")
        K(f"buffer_store_dword v{V_TAG}, v{V_LANE}, {srd(R_WS)}, s{soff_reg} offen sc1")
        K("s_mov_b64 exec, -1")
    def arrive(c):
        K(f"v_mov_b32 v{t5}, 1")
        K("s_mov_b64 exec, 1")
        K(f"ds_add_u32 v{V_CNT}, v{t5} offset:{c}")
        K("s_mov_b64 exec, -1")
    def await_(c, n, sleep=0):
        l, d = newl("aw"), newl("awd")
        K(f"s_mov_b32 s{S_CNT}, {spin * 8}")
        K.label(l)
        K(f"ds_read_b32 v{t5}, v{V_CNT} offset:{c}")
        K("s_waitcnt lgkmcnt(0)")
        K(f"v_cmp_ne_u32 vcc, {n}, v{t5}")
        K.branch(f"s_cbranch_vccz {d}")
        if sleep: K(f"s_sleep {sleep}")
        K(f"s_sub_u32 s{S_CNT}, s{S_CNT}, 1")
        K.branch(f"s_cbranch_scc0 {l}")
        K.label(d)
    def mksrd(r, p, nbytes):
        K(f"s_mov_b32 s{r}, s{p}"); K(f"s_and_b32 s{r+1}, s{p+1}, 0xffff")
        K(f"s_mov_b32 s{r+2}, {nbytes}"); K(f"s_mov_b32 s{r+3}, 0x20000")
    cnt16 = [0]
    def mfma(d, a, b, c=None, big=False):
        if x_m16 and big and c is None:
            cnt16[0] += 1
            o = 8 * ((cnt16[0] // 4) % 2)
            for q in range(2): K(f"v_mfma_f32_16x16x32_bf16 {vr(d+o+4*q,4)}, {vr(a,4)}, {vr(b,4)}, {vr(d+o+4*q,4)}")
            return
        cs = vr(d, 16) if c is None else c
        K(f"v_mfma_f32_32x32x16_bf16 {vr(d,16)}, {vr(a,4)}, {vr(b,4)}, {cs}")
    def padd(d, a, b, pk):
        if pk: K(f"v_pk_add_f32 {vr(d,2)}, {vr(a,2)}, {vr(b,2)}")
        else: K(f"v_add_f32 v{d}, v{a}, v{b}"); K(f"v_add_f32 v{d+1}, v{a+1}, v{b+1}")
    def pscale(d, r, pk):
        if pk: K(f"v_pk_mul_f32 {vr(d,2)}, {vr(d,2)}, {vr(r & ~1,2)} " + ("op_sel:[0,1] op_sel_hi:[1,1]" if r & 1 else "op_sel_hi:[1,0]"))
        else: K(f"v_mul_f32 v{d}, v{d}, v{r}"); K(f"v_mul_f32 v{d+1}, v{d+1}, v{r}")
    def settag():
        K(f"s_add_u32 s{S_TAG}, s{S_E}, 0x9E3779B9"); K(f"s_mov_b32 s{S_TAG+1}, s{S_TAG}"); K(f"v_mov_b32 v{V_TAG}, s{S_TAG}")
    def xfrag_addr(dst):
        K(f"v_and_b32 v{t0}, 31, v{V_LANE}"); K(f"v_lshrrev_b32 v{t2}, 5, v{V_LANE}"); K(f"v_bfe_u32 v{t3}, v{V_LANE}, 1, 3")
        K(f"v_xor_b32 v{t3}, v{t2}, v{t3}"); K(f"s_lshl_b32 s{T}, s{S_A}, 12"); K(f"v_lshlrev_b32 v{t0}, 7, v{t0}")
        K(f"v_lshl_add_u32 v{t0}, v{t3}, 4, v{t0}"); K(f"v_add_u32 v{dst}, s{T}, v{t0}")
        for k in range(1, 4): K(f"v_xor_b32 v{dst+k}, {32*k}, v{dst}")
    def lanepart():
        K(f"v_bfe_u32 v{t4}, v{V_LANE}, 4, 1"); K(f"v_lshlrev_b32 v{t4}, 5, v{t4}")
        K(f"v_and_b32 v{t3}, 3, v{V_LANE}"); K(f"v_lshl_add_u32 v{t4}, v{t3}, 3, v{t4}")
        K(f"v_bfe_u32 v{t3}, v{V_LANE}, 2, 2"); K(f"v_lshrrev_b32 v{t2}, 5, v{V_LANE}")
    def p2setup():
        mksrd(R_W2, P_W2, 0 if x_now2 else 1792*896)
        K(f"s_and_b32 s{T}, s2, 7"); K(f"s_lshr_b32 s{T+1}, s2, 3")
        if hlp: K(f"s_add_u32 s{T+1}, s{T+1}, 28"); K(f"s_and_b32 s{T+1}, s{T+1}, 31")
        K(f"s_mul_i32 s{T+2}, s{T+1}, 37"); K(f"s_lshr_b32 s{T+2}, s{T+2}, 8"); K(f"s_mul_i32 s{T+3}, s{T+2}, 7"); K(f"s_sub_u32 s{S_CT}, s{T+1}, s{T+3}")
        K(f"s_lshl_b32 s{T+2}, s{T+2}, 1"); K(f"s_lshl_b32 s{T+3}, s{T}, 3"); K(f"s_add_u32 s{S_ROW}, s{T+2}, s{T+3}")
        K(f"s_cmp_lt_u32 s{T+1}, 28"); K(f"s_cselect_b32 s{S_ACT}, 1, 0")
        K(f"s_and_b32 s{T+2}, s{S_A}, 1"); K(f"s_mul_i32 s{T+3}, s{S_A}, 7"); K(f"s_add_u32 s{T+4}, s{T+3}, s{T+2}")
        K(f"s_cmp_eq_u32 s{T+2}, 0"); K(f"s_cselect_b32 s{T+2}, 6, 0"); K(f"s_add_u32 s{T+2}, s{T+2}, s{T+3}")
        K(f"s_lshl_b32 s{T}, s{S_CT}, 7")
        K(f"s_mul_i32 s{S_W2B}, s{T+4}, {64*896}"); K(f"s_add_u32 s{S_W2B}, s{S_W2B}, s{T}")
        K(f"s_mul_i32 s{S_W2B3}, s{T+2}, {64*896}"); K(f"s_add_u32 s{S_W2B3}, s{S_W2B3}, s{T}")
        K(f"s_lshl_b32 s{S_M02}, s{S_A}, 13")
        K(f"v_lshrrev_b32 v{t0}, 3, v{V_LANE}"); K(f"v_and_b32 v{t1}, 7, v{V_LANE}")
        K(f"v_bfe_u32 v{t2}, v{V_LANE}, 4, 1"); K(f"v_lshlrev_b32 v{t2}, 2, v{t2}"); K(f"v_xor_b32 v{t1}, v{t1}, v{t2}")
        K(f"v_mul_u32_u24 v{t0}, 896, v{t0}"); K(f"v_lshl_add_u32 v{V_D2}, v{t1}, 4, v{t0}")
        for q in range(1, 4): K(f"v_add_u32 v{V_D2+q}, {q*(8*896-1024)}, v{V_D2}")
        K(f"v_mov_b32 v{V_CNT}, {L_CNT}")
    def shift(regs, d):
        for r in regs:
            if d > 0: K(f"v_add_u32 v{r}, {d}, v{r}")
            elif d < 0: K(f"v_subrev_u32 v{r}, {-d}, v{r}")
    pend = []
    def drip(n):
        for _ in range(n):
            if pend: pend.pop(0)()
    def run(steps):
        for f in steps: f()
    tk_r = {}
    def g_w2(r):
        def step(q):
            def f():
                if q % 4 == 0:
                    K(f"s_add_u32 s{TD}, s{S_W2B3 if r == 3 else S_W2B}, {(0 if r == 3 else (2*r % 7)*64*896) + (q // 4)*32*896}")
                    K(f"s_add_u32 m0, s{S_M02}, {U[RUNIT[r]] + (q // 4)*4096}")
                x = K(f"buffer_load_dwordx4 v{V_D2+q%4}, {srd(R_W2)}, s{TD} offen offset:{1024*(q%4)} lds") if r < x_skipB else K.vm - 8
                if q == 7: tk_r[r] = x
            return f
        return [step(q) for q in range(8)]
    SH = [0, 0, 65536, 0, -65536, 0, 65536]

    K.raw(f"{NAME}:")
    K("s_cmp_ge_u32 s2, 256"); K("s_cbranch_scc1 L_end")
    if stamps and early: K(f"s_memrealtime {sp(S_ST)}"); K("s_waitcnt lgkmcnt(0)")
    K("s_load_dwordx16 s[16:31], s[0:1], 0"); K("s_load_dwordx8 s[32:39], s[0:1], 64"); K("s_load_dwordx2 s[40:41], s[0:1], 96")
    if stamps:
        if not early: K(f"s_memrealtime {sp(S_ST)}")
        K(f"v_mov_b32 v{V_STAMP}, 0")
    K(f"v_lshrrev_b32 v{t0}, 6, v0"); K(f"v_and_b32 v{V_LANE}, 63, v0")
    K(f"v_readfirstlane_b32 s{S_W}, v{t0}")
    K(f"v_lshlrev_b32 v{V_L16}, 4, v{V_LANE}")
    K(f"s_and_b32 s{T}, s2, 7"); K(f"s_lshr_b32 s{T+1}, s2, 3")
    if codepf:
        K(f"s_lshr_b32 s{T+2}, s2, 5"); K(f"s_lshl_b32 s{T+2}, s{T+2}, 3"); K(f"s_or_b32 s{T+2}, s{T+2}, s{S_W}"); K(f"s_cmp_lg_u32 s{T+2}, 7")
        K("s_cbranch_scc1 L_nopf")
        K(f"s_getpc_b64 {sp(T+2)}")
        K.raw("L_pc:")
        K(f"s_lshl_b32 s{T+4}, s{T+1}, 7"); K(f"s_sub_u32 s{T+2}, s{T+2}, L_pc - {NAME}"); K(f"s_subb_u32 s{T+3}, s{T+3}, 0")
        K(f"s_add_u32 s{T+2}, s{T+2}, s{T+4}"); K(f"s_addc_u32 s{T+3}, s{T+3}, 0")
        K(f"v_lshlrev_b32 v{t0}, 9, v{V_LANE}")
        K("s_mov_b32 exec_hi, 0xffffff")
        K(f"global_load_dword v{V_POLL}, v{t0}, {sp(T+2)}"); K.vm -= 1
        K("s_mov_b32 exec_hi, -1")
        K.label("L_nopf")
    K(f"s_and_b32 s{T+2}, s{T}, 2"); K(f"s_lshl_b32 s{T+2}, s{T+2}, 1")
    K(f"s_and_b32 s{T+3}, s{T}, 1"); K(f"s_cmp_lt_u32 s{T+1}, 4"); K(f"s_cselect_b32 s{T+4}, 14, 12"); K(f"s_add_u32 s{T+3}, s{T+3}, s{T+4}")
    K(f"s_lshr_b32 s{T+4}, s{T+1}, 3"); K(f"s_lshl_b32 s{S_J}, s{T+4}, 2"); K(f"s_and_b32 s{S_MT}, s{T}, 3"); K(f"s_add_u32 s{S_J}, s{S_J}, s{S_MT}"); K(f"s_sub_u32 s{S_J}, s{S_J}, 4")
    K(f"s_cmp_lt_u32 s{T+1}, 8"); K(f"s_cselect_b32 s{S_J}, s{T+3}, s{S_J}"); K(f"s_cselect_b32 s{T+2}, s{T+2}, 0")
    K(f"s_and_b32 s{T+3}, s{T+1}, 7"); K(f"s_xor_b32 s{T+3}, s{T+3}, s{T+2}")
    K(f"s_and_b32 s{S_MT}, s{T}, 4"); K(f"s_lshl_b32 s{S_MT}, s{S_MT}, 1"); K(f"s_add_u32 s{S_MT}, s{S_MT}, s{T+3}")
    K(f"s_and_b32 s{S_A}, s{S_W}, 3")
    K(f"s_lshl_b32 s{S_W1B}, s{S_J}, 8")
    K(f"s_cmp_ge_u32 s{S_W}, 4")
    K.branch("s_cbranch_scc1 L_M")

    if prioA: K(f"s_setprio {prioA}")
    K(f"s_lshl_b32 s{T+4}, s{T+4}, 1"); K(f"s_add_u32 s{T+2}, s{T+3}, s{T+4}")
    K(f"s_cmp_ge_u32 s{T+2}, 7"); K(f"s_cselect_b32 s{T+3}, 7, 0"); K(f"s_sub_u32 s{S_CH}, s{T+2}, s{T+3}")
    if not rot1: K(f"s_mov_b32 s{S_CH}, 0")
    if rot1 == 2:
        K(f"s_lshr_b32 s{T+4}, s{T+4}, 1"); K(f"s_add_u32 s{T+2}, s{S_MT}, s{T+4}"); K(f"s_and_b32 s{T+2}, s{T+2}, 1"); K(f"s_lshl_b32 s{S_CH}, s{T+2}, 2")
    if rot1 == 4:
        K(f"s_lshr_b32 s{T+4}, s{T+4}, 1"); K(f"s_add_u32 s{T+2}, s{S_MT}, s{T+4}"); K(f"s_and_b32 s{T+2}, s{T+2}, 3"); K(f"s_lshl_b32 s{S_CH}, s{T+2}, 1")
    if rot1 >= 9:
        K(f"s_and_b32 s{T+2}, s2, 3"); K(f"s_mul_i32 s{T+2}, s{T+2}, {ra}"); K(f"s_bfe_u32 s{T+3}, s2, 0x10002"); K(f"s_mul_i32 s{T+3}, s{T+3}, {rb}"); K(f"s_add_u32 s{T+2}, s{T+2}, s{T+3}")
        if rc: K(f"s_and_b32 s{T+3}, s{S_MT}, 1"); K(f"s_mul_i32 s{T+3}, s{T+3}, {rc}"); K(f"s_add_u32 s{T+2}, s{T+2}, s{T+3}")
        if rd: K(f"s_bfe_u32 s{T+3}, s{S_MT}, 0x10001"); K(f"s_mul_i32 s{T+3}, s{T+3}, {rd}"); K(f"s_add_u32 s{T+2}, s{T+2}, s{T+3}")
        if re: K(f"s_bfe_u32 s{T+3}, s2, 0x10006"); K(f"s_mul_i32 s{T+3}, s{T+3}, {re}"); K(f"s_add_u32 s{T+2}, s{T+2}, s{T+3}")
        K(f"s_mul_i32 s{T+3}, s{T+2}, 37"); K(f"s_lshr_b32 s{T+3}, s{T+3}, 8"); K(f"s_mul_i32 s{T+3}, s{T+3}, 7"); K(f"s_sub_u32 s{S_CH}, s{T+2}, s{T+3}")
    if rot1 == 8:
        K(f"s_and_b32 s{T+2}, s2, 7"); K(f"s_cmp_eq_u32 s{T+2}, 7"); K(f"s_cselect_b32 s{S_CH}, 3, s{T+2}")
    def rotstep(t):
        K(f"s_lshl_b32 s{S_CHO+t}, s{S_CH}, 12")
        if t < 6: K(f"s_add_u32 s{S_CH}, s{S_CH}, 1"); K(f"s_cmp_eq_u32 s{S_CH}, 7"); K(f"s_cselect_b32 s{S_CH}, 0, s{S_CH}")
    rotstep(0); rotstep(1)
    K(f"s_lshl_b32 s{S_M0}, s{S_A}, 12")
    K(f"s_mul_i32 s{S_XB}, s{S_MT}, {128*896}")
    K(f"v_lshrrev_b32 v{t0}, 3, v{V_LANE}"); K(f"v_and_b32 v{t1}, 7, v{V_LANE}"); K(f"v_lshrrev_b32 v{t2}, 1, v{t0}"); K(f"v_xor_b32 v{t2}, v{t1}, v{t2}")
    K(f"s_lshl_b32 s{T+2}, s{S_A}, 5"); K(f"v_add_u32 v{t3}, s{T+2}, v{t0}"); K(f"v_mul_u32_u24 v{t3}, 896, v{t3}")
    K(f"v_lshl_add_u32 v{A_XD}, v{t2}, 4, v{t3}"); K(f"v_xor_b32 v{t2}, 4, v{t2}"); K(f"v_lshl_add_u32 v{A_XD+1}, v{t2}, 4, v{t3}")
    K(f"v_add_u32 v{A_XD+1}, {8*896-1024}, v{A_XD+1}")
    K(f"v_add_u32 v{A_XD+2}, {16*896-2048}, v{A_XD}"); K(f"v_add_u32 v{A_XD+3}, {16*896-2048}, v{A_XD+1}")
    K(f"v_lshrrev_b32 v{t0}, 4, v{V_LANE}"); K(f"v_and_b32 v{t1}, 15, v{V_LANE}"); K(f"v_lshlrev_b32 v{t2}, 2, v{t0}"); K(f"v_xor_b32 v{t2}, v{t1}, v{t2}")
    K(f"s_lshl_b32 s{T+2}, s{S_A}, 4"); K(f"v_add_u32 v{t3}, s{T+2}, v{t0}"); K(f"v_mul_u32_u24 v{t3}, 3584, v{t3}")
    K(f"v_lshl_add_u32 v{A_WD}, v{t2}, 4, v{t3}")
    if m16:
        K(f"v_xor_b32 v{t2}, 2, v{t2}"); K(f"v_lshl_add_u32 v{t3}, v{t2}, 4, v{t3}")
        for q in range(1, 4): K(f"v_add_u32 v{A_WD+q}, {q*(4*3584-1024)}, v{A_WD if q < 2 else t3}")
    else:
        for q in range(1, 4): K(f"v_add_u32 v{A_WD+q}, {q*(4*3584-1024)}, v{A_WD}")
    K("s_waitcnt lgkmcnt(0)")
    if stamps: K(f"v_writelane_b32 v{V_STAMP}, s{S_ST}, {STAMP_IDS.setdefault('start', len(STAMP_IDS))}")
    if wso: K(f"s_add_u32 s{P_WS}, s{P_WS}, {wso << 20}"); K(f"s_addc_u32 s{P_WS+1}, s{P_WS+1}, 0")
    mksrd(R_X, P_X, 2048*896); mksrd(R_W1, P_W1, 0 if x_now1 else 448*3584)
    tk_stage = {}
    def g_stage(t):
        u = U[t % 4]
        def step(q):
            def f():
                if q == 0: K(f"s_lshr_b32 s{TD}, s{S_CHO+t}, 5"); K(f"s_add_u32 s{TD}, s{TD}, s{S_XB}"); K(f"s_add_u32 m0, s{S_M0}, {u}")
                if q == 4: K(f"s_mul_i32 s{TD}, s{S_CHO+t}, 56"); K(f"s_add_u32 s{TD}, s{TD}, s{S_W1B}"); K(f"s_add_u32 m0, s{S_M0}, {u + 16384}")
                if q < 4: K(f"buffer_load_dwordx4 v{A_XD+q}, {srd(R_X)}, s{TD} offen offset:{1024*q} lds")
                else: x = K(f"buffer_load_dwordx4 v{A_WD+q-4}, {srd(R_W1)}, s{TD} offen offset:{1024*(q-4)} lds")
                if q == 7: tk_stage[t] = x
            return f
        return [step(q) for q in range(8)]
    ilist = []
    for t in range(7): ilist += [(f, t - 2 if t >= 4 else -1) for f in g_stage(t)]
    pos = [0]
    def issue_to(n, lastbar):
        while pos[0] < min(n, len(ilist)) and ilist[pos[0]][1] <= lastbar:
            ilist[pos[0]][0](); pos[0] += 1
    if fine: stamp("A_karg")
    K(f"s_cmp_ge_u32 s{S_J}, 14")
    K.branch("s_cbranch_scc1 L_a1")
    vm0 = K.vm
    issue_to(8, -1)
    issue_to(8 + LA0, -1)
    K.label("L_a1")
    if fine: stamp("A_i1")
    K(f"s_load_dword s{S_E}, {sp(P_WS)}, {WS_EPOCH}")
    for t in range(2, 7): rotstep(t)
    mksrd(R_WS, P_WS, WS_SIZE); mksrd(R_OUT, P_OUT, 2048*896)
    p2setup()
    K(f"s_mov_b32 s{S_UP}, 0"); K(f"s_mov_b32 s{S_UP+1}, -1")
    K(f"s_mov_b32 s{S_L28}, 0x10000000"); K(f"s_mov_b32 s{S_L28+1}, 0x10000000")
    xfrag_addr(A_AX)
    lanepart()
    K(f"v_lshl_add_u32 v{t0}, v{t2}, 3, v{t3}"); K(f"v_lshl_add_u32 v{A_TR}, v{t0}, 6, v{t4}")
    K(f"v_lshl_add_u32 v{t0}, v{t2}, 2, v{t3}"); K(f"v_mul_u32_u24 v{t1}, 56, v{t0}"); K(f"v_add_u32 v{t1}, v{t1}, v{t4}"); K(f"v_add_u32 v{A_PH}, {L_PHI}, v{t1}")
    K(f"v_lshlrev_b32 v{A_L4}, 2, v{V_LANE}")
    K(f"s_lshl_b32 s{T}, s{S_A}, 10"); K(f"s_add_u32 s{T}, s{T}, {WS_RPF}"); K(f"v_and_b32 v{A_PA}, 7, v{V_LANE}"); K(f"v_lshl_add_u32 v{A_PA}, v{A_PA}, 7, s{T}")
    K(f"s_mul_i32 s{S_RS}, s{S_J}, {3*28672}"); K(f"s_mul_i32 s{S_P3}, s{S_A}, 7168"); K(f"s_add_u32 s{S_RS}, s{S_RS}, s{S_P3}"); K(f"s_add_u32 s{S_RS}, s{S_RS}, {WS_WQ}")
    K("s_waitcnt lgkmcnt(0)")
    settag()
    K(f"s_cmp_lt_u32 s{S_J}, 14")
    K.branch("s_cbranch_scc1 L_a2")
    sv = K.vm
    K(f"s_mul_i32 s{T}, s{S_A}, 3072"); K(f"s_add_u32 s{T}, s{T}, {L_K}")
    K("s_barrier")
    for t in range(7):
        K(f"s_lshr_b32 s{TD}, s{S_CHO+t}, 5"); K(f"s_add_u32 s{TD}, s{TD}, s{S_XB}")
        if t < 6: K(f"s_add_u32 m0, s{S_M0}, {16384*t}")
        else: K(f"s_add_u32 m0, s{S_M0}, s{T}")
        for q in range(4): K(f"buffer_load_dwordx4 v{A_XD+q}, {srd(R_X)}, s{TD} offen offset:{1024*q} lds")
        if t == rb2: K("s_barrier")
    K("s_waitcnt vmcnt(0)")
    for t in range(7):
        if t == 4: shift(range(A_AX, A_AX + 4), 65536)
        if t == 6:
            K(f"s_sub_u32 s{T}, s{T}, 65536")
            for k in range(4): K(f"v_add_u32 v{A_AX+k}, s{T}, v{A_AX+k}")
        for ksl in range(4): K(f"ds_read_b128 {vr(V_X + 16*t + 4*ksl, 4)}, v{A_AX+ksl} offset:{(t % 4) * 16384 if t < 6 else 0}")
        if t % 2 == 1: K("s_waitcnt lgkmcnt(4)")
    K("s_waitcnt lgkmcnt(0)")
    stamp("A_b6")
    vpoll_issue(A_PA)
    K.branch("s_branch L_a3")
    K.label("L_a2")
    K.vm = sv
    if fine: stamp("A_setup")
    tkx = {}
    def g_panel(p, lds):
        def step(q):
            def f():
                if q % 4 == 0: K(f"s_add_u32 s{TD}, s{S_RS}, {28672*p + (q // 4)*4096}"); K(f"s_add_u32 m0, s{S_P3}, {lds + (q // 4)*4096}")
                tkx[p] = K(f"buffer_load_dwordx4 v{V_L16}, {srd(R_WS)}, s{TD} offen offset:{1024*(q%4)} sc1 lds")
            return f
        return [step(q) for q in range(7)]
    for t in range(7):
        issue_to(8*(t+1) + (LA0 if t == 0 else LA), t - 1)
        shift(range(A_AX, A_AX + 4), SH[t])
        if t == 5:
            assert pos[0] == len(ilist)
            tkp = vpoll_issue(A_PA)
        if fine: stamp(f"A{t}a")
        K.wait_vm(tk_stage[t])
        if fine: stamp(f"A{t}b")
        if t < 6:
            if t >= 2: K("s_waitcnt lgkmcnt(4)")
            K("s_barrier")
        else: arrive(C_S)
        if t in (0, 4, 6): stamp(f"A_b{t}")
        for ksl in range(4): K(f"ds_read_b128 {vr(V_X + 16*t + 4*ksl, 4)}, v{A_AX+ksl} offset:{(t % 2) * 32768}")
    assert tkp == K.vm
    K.label("L_a3")
    arrive(C_E)
    vpoll_check(tkp, A_PA)
    stamp("rp_seen")
    run(g_panel(1, L_K) + g_panel(2, L_V))
    K(f"v_add_u32 v{A_PA}, 4096, v{A_PA}")
    tkp = vpoll_issue(A_PA)
    stamp("kv_issued")
    K(f"s_mov_b32 s{S_K}, {f2u(L2E):#x}"); K(f"s_mov_b32 s{S_K+1}, {f2u(L2E):#x}")
    VPH, VB = V_W + 24, V_W + 16
    for s in range(2):
        for r in range(2): K(f"ds_read_b64_tr_b16 {vr(VPH + 4*s + 2*r, 2)}, v{A_PH} offset:{(16*s + 8*r)*56}")
    K(f"s_lshl_b32 s{T}, s{S_A}, 11"); K(f"s_lshl_b32 s{T+1}, s{S_J}, 13"); K(f"s_add_u32 s{S_HB}, s{T+1}, s{T}"); K(f"s_add_u32 s{S_FL}, s{S_HB}, {WS_KVF}"); K(f"s_lshl_b32 s{S_PE}, s{S_MT}, 7"); K(f"s_add_u32 s{S_PE}, s{S_PE}, s{S_FL}"); K(f"s_add_u32 s{S_HB}, s{S_HB}, {WS_KVP}")
    FL_K = (S_PE, 0, 16)
    K(f"s_lshl_b32 s{T}, s{S_MT}, 2"); K(f"s_add_u32 s{T}, s{T}, s{S_A}")
    K(f"s_lshr_b32 s{T+1}, s{T}, 1"); K(f"s_lshl_b32 s{T+1}, s{T+1}, 2"); K(f"s_lshr_b32 s{T+2}, s{S_J}, 2"); K(f"s_add_u32 s{T+1}, s{T+1}, s{T+2}"); K(f"s_lshl_b32 s{T+1}, s{T+1}, 10"); K(f"s_add_u32 s{S_FL2}, s{T+1}, {WS_OF}")
    K(f"s_lshl_b32 s{T}, s{T}, 4"); K(f"s_add_u32 s{T}, s{T}, s{S_J}")
    K(f"s_lshl_b32 s{S_OB}, s{T}, 11"); K(f"s_add_u32 s{S_OB}, s{S_OB}, {WS_O}")
    K(f"s_lshl_b32 s{T+2}, s{T}, 7"); K(f"s_add_u32 s{S_XB}, s{T+2}, {WS_G - 128}")
    IDR = [26, 27, 28, 29, V_PHI, V_PHI+1, V_PHI+2, V_PHI+3]
    K(f"v_and_b32 v{t0}, 31, v{V_LANE}"); K(f"v_lshrrev_b32 v{t1}, 5, v{V_LANE}"); K(f"v_lshlrev_b32 v{t1}, 2, v{t1}")
    K(f"v_sub_u32 v{t0}, v{t0}, v{t1}")
    K(f"v_and_b32 v{t1}, 1, v{V_LANE}"); K(f"v_lshlrev_b32 v{t1}, 4, v{t1}"); K(f"v_mov_b32 v{t2}, 0x3f80"); K(f"v_lshlrev_b32 v{t1}, v{t1}, v{t2}")
    K(f"v_and_b32 v{t0}, -2, v{t0}")
    for s in range(2):
        for q in range(4): K(f"v_cmp_eq_u32 {sp(T+2*q)}, {16*s + 8*(q // 2) + 2*(q % 2)}, v{t0}")
        for q in range(4): K(f"v_cndmask_b32 v{IDR[4*s+q]}, 0, v{t1}, {sp(T+2*q)}")
    if aw2: K(f"s_cmp_eq_u32 s{S_ACT}, 1"); K(f"s_cselect_b32 s{R_W2+2}, s{R_W2+2}, 0")
    if aw2 in (1, 3):
        await_(C_E, 8, 1)
        run(g_w2(0))
        K.wait_vm(tkx[2]); arrive(C_0)
        run(g_w2(1))
        if qd < 0: run(g_panel(0, L_Q))
    else: K.wait_vm(tkx[1] if kf else tkx[2]); arrive(C_0)
    stamp("kv_landed0")
    if aw2 == 1: K.wait_vm(tk_r[1]); arrive(C_B)
    await_(C_0, 4, 1)
    K(f"v_cndmask_b32 v{VPH+6}, v{VPH+6}, 0, {UPM}"); K(f"v_cndmask_b32 v{VPH+7}, v{VPH+7}, 0, {UPM}")
    if not kf:
        await_(C_G if gw >= 0 else C_E, 4 if gw >= 0 else 8, 1)
        vpoll_check(tkp, A_PA)
    stamp("kv_start")

    def gemm_qkv(panels, hook=None):
        nb = len(panels) * 4
        D = 3 if len(panels) == 2 else 6
        tk = {}
        for n, (off, acc, sw) in enumerate(panels): K(f"v_add_u32 v{A_AX+n}, {off}, v{A_TR}")
        def rd(ks, n):
            t, ksl = ks // 4, ks % 4
            b = V_W + nb * (ks % D)
            if ksl == 0: K(f"v_add_u32 v{A_AD + n}, s{S_CHO+t}, v{A_AX+n}")
            for r in range(2):
                tk[ks] = K(f"ds_read_b64_tr_b16 {vr(b + 4*n + 2*r, 2)}, v{A_AD + n} offset:{(16*ksl + 4*r)*64}")
        for k in range(D):
            for n in range(len(panels)): rd(k, n)
        for ks in range(28):
            K.wait_lg(tk[ks])
            b = V_W + nb * (ks % D)
            for n, (off, acc, sw) in enumerate(panels):
                wv, xv = b + 4*n, V_X + 4*ks
                if sw: mfma(acc, xv, wv, "0" if ks == 0 else None, x_m16 & 4)
                else: mfma(acc, wv, xv, "0" if ks == 0 else None, x_m16 & 4)
                if ks + D < 28: rd(ks + D, n)
            if hook: hook(ks)
    QP = V_W
    P = V_ACC
    def featmap():
        for e in range(8): K(f"v_cvt_pk_bf16_f32 v{QP+e}, v{V_ACC+2*e}, v{V_ACC+2*e+1}")
        mfma(P, VPH, QP, "0"); mfma(P, VPH + 4, QP + 4)
    def roundp(e):
        K(f"v_cvt_pk_bf16_f32 v{P+2*e+1}, v{P+2*e}, v{P+2*e+1}")
        K(f"v_lshlrev_b32 v{P+2*e}, 16, v{P+2*e+1}"); K(f"v_and_b32 v{P+2*e+1}, 0xffff0000, v{P+2*e+1}")
    def softmax(pk, rounded=False):
        if rp and not rounded:
            for e in range(8): roundp(e)
        for e in range(4): K(f"v_cndmask_b32 v{P+12+e}, v{P+12+e}, v{P}, {UPM}")
        mx, mn = t0, t2
        K(f"v_max3_f32 v{mx}, v{P}, v{P+1}, v{P+2}"); K(f"v_min3_f32 v{mn}, v{P}, v{P+1}, v{P+2}")
        K(f"v_max3_f32 v{t1}, v{P+3}, v{P+4}, v{P+5}"); K(f"v_min3_f32 v{t3}, v{P+3}, v{P+4}, v{P+5}")
        for e in range(6, 14, 4):
            K(f"v_max3_f32 v{mx}, v{mx}, v{P+e}, v{P+e+1}"); K(f"v_min3_f32 v{mn}, v{mn}, v{P+e}, v{P+e+1}")
            K(f"v_max3_f32 v{t1}, v{t1}, v{P+e+2}, v{P+e+3}"); K(f"v_min3_f32 v{t3}, v{t3}, v{P+e+2}, v{P+e+3}")
        K(f"v_max3_f32 v{mx}, v{mx}, v{P+14}, v{P+15}"); K(f"v_min3_f32 v{mn}, v{mn}, v{P+14}, v{P+15}")
        K(f"v_max_f32 v{mx}, v{mx}, v{t1}"); K(f"v_min_f32 v{mn}, v{mn}, v{t3}")
        K(f"v_mov_b32 v{t1}, v{mx}"); K(f"v_mov_b32 v{t3}, v{mn}")
        K(f"v_permlane32_swap_b32 v{mx}, v{t1}"); K(f"v_permlane32_swap_b32 v{mn}, v{t3}")
        K(f"v_max_f32 v{mx}, v{mx}, v{t1}"); K(f"v_min_f32 v{mn}, v{mn}, v{t3}")
        K(f"v_mul_f32 v{mx}, s{S_K}, v{mx}"); K(f"v_mul_f32 v{mn}, s{S_K}, v{mn}")
        EP, EN = V_P, V_P + 16
        for e in range(0, 16, 2):
            if pk:
                K(f"v_pk_fma_f32 {vr(EP+e,2)}, {vr(P+e,2)}, {sp(S_K)}, {vr(mx,2)} op_sel_hi:[1,1,0] neg_lo:[0,0,1] neg_hi:[0,0,1]")
                K(f"v_pk_fma_f32 {vr(EN+e,2)}, {vr(P+e,2)}, {sp(S_K)}, {vr(mn,2)} op_sel_hi:[1,1,0] neg_lo:[1,0,0] neg_hi:[1,0,0]")
            else:
                for x in (e, e + 1):
                    K(f"v_fma_f32 v{EP+x}, v{P+x}, s{S_K}, -v{mx}"); K(f"v_fma_f32 v{EN+x}, -v{P+x}, s{S_K}, v{mn}")
        for e in range(16):
            K(f"v_exp_f32 v{EP+e}, v{EP+e}"); K(f"v_exp_f32 v{EN+e}, v{EN+e}")
        S = V_W
        for n, E in enumerate((EP, EN)):
            padd(S+4*n, E, E+2, pk); padd(S+4*n+2, E+12, E+14, pk)
        for n, E in enumerate((EP, EN)):
            padd(S+4*n, S+4*n, E+4, pk)
            K(f"v_cndmask_b32 v{S+4*n+2}, v{S+4*n+2}, 0, {UPM}"); K(f"v_cndmask_b32 v{S+4*n+3}, v{S+4*n+3}, 0, {UPM}")
        for n, E in enumerate((EP, EN)):
            padd(S+4*n, S+4*n, E+6, pk); padd(S+4*n+2, S+4*n+2, E+8, pk)
        for n, E in enumerate((EP, EN)): padd(S+4*n, S+4*n, E+10, pk)
        for n in range(2): padd(S+4*n, S+4*n, S+4*n+2, pk)
        K(f"v_add_f32 v{t0}, v{S}, v{S+1}"); K(f"v_add_f32 v{t2}, v{S+4}, v{S+5}")
        K(f"v_mov_b32 v{t1}, v{t0}"); K(f"v_mov_b32 v{t3}, v{t2}")
        K(f"v_permlane32_swap_b32 v{t0}, v{t1}"); K(f"v_permlane32_swap_b32 v{t2}, v{t3}")
        K(f"v_add_f32 v{t0}, v{t0}, v{t1}"); K(f"v_add_f32 v{t2}, v{t2}, v{t3}")
        K(f"v_rcp_f32 v{t0}, v{t0}"); K(f"v_rcp_f32 v{t2}, v{t2}")
        K(f"v_cndmask_b32 v{t1}, v{t0}, 0, {UPM}"); K(f"v_cndmask_b32 v{t3}, v{t2}, 0, {UPM}")
        for e in range(0, 16, 2):
            pscale(EP+e, t0 if e < 12 else t1, pk); pscale(EN+e, t2 if e < 12 else t3, pk)
        for e in range(8):
            K(f"v_cvt_pk_bf16_f32 v{V_PHI+e}, v{EP+2*e}, v{EP+2*e+1}"); K(f"v_cvt_pk_bf16_f32 v{V_PHI+8+e}, v{EN+2*e}, v{EN+2*e+1}")

    if aw2 == 2: pend.extend(g_w2(0) + g_w2(1))
    if qd >= 0: pend.extend(g_panel(0, L_Q))
    def hook(ks):
        if aw2 == 3:
            if ks == 1: K.wait_vm(tk_r[1]); arrive(C_B)
            if ks == pa:
                await_(C_P, 4)
                pend.extend(g_w2(2) + g_w2(3))
            drip(2 if len(pend) > 27 - ks else 1)
        elif aw2 == 2:
            drip(1)
            if ks == cb: K.wait_vm(tk_r[1]); arrive(C_B)
        elif ks >= qd and (ks - qd) % 3 == 0: drip(1)
        if ks == 25: arrive(C_1)
    if kf:
        def hookk(ks):
            if ks == k1: vpoll_check(tkp, A_PA); arrive(C_P); await_(C_E, 8)
            if ks > k1 and ks % kd == 0: drip(1)
        gemm_qkv([(L_K, V_ACC, False)], hookk)
        await_(C_P, 4)
        def hookv(ks):
            if ks == 4:
                for e in range(8): K(f"v_cvt_pk_bf16_f32 v{V_P+e}, v{V_ACC+2*e}, v{V_ACC+2*e+1}")
            if ks == 6: mfma(P, VPH, V_P, "0"); mfma(P, VPH + 4, V_P + 4)
            if ks % kd == 0 or len(pend) > (27 - ks) // kd: drip(1)
            if ks == kb and aw2 == 2: K.wait_vm(tk_r[1]); arrive(C_B)
            if rp and 12 <= ks < 20: roundp(ks - 12)
            if ks == 22: arrive(C_1)
        gemm_qkv([(L_V, V_ACC + 16, True)], hookv)
    else:
        gemm_qkv([(L_K, V_ACC, False), (L_V, V_ACC + 16, True)], hook)
        featmap()
    assert not pend
    for e in range(4): K(f"v_mov_b32 v{V_W+8+e}, v{V_PHI+e}")
    IDR[4] = V_W + 8
    stamp("kv_gemm")
    K(f"v_mov_b32 v{t4}, 0x3f803f80")
    for e in range(8): K(f"v_cvt_pk_bf16_f32 v{VB+e}, v{V_ACC+16+2*e}, v{V_ACC+16+2*e+1}")
    for e in range(8): K(f"v_cndmask_b32 v{VB+e}, v{VB+e}, v{t4}, {sp(S_L28)}")
    softmax(pkk, kf)
    stamp("sm_k")
    if aw2 == 3: K.wait_vm(tk_r[3]); arrive(C_B2)
    TP, TN = V_P, V_P + 16
    mfma(TP, V_PHI, IDR[0], "0"); mfma(TP, V_PHI + 4, IDR[4])
    mfma(TN, V_PHI + 8, IDR[0], "0"); mfma(TN, V_PHI + 12, IDR[4])
    await_(C_1, 4)
    if f2: stamp("kv_a")
    K(f"s_lshl_b32 s{T}, s{S_A}, 13"); K(f"s_add_u32 s{T}, s{T}, {L_KVS}"); K(f"v_add_u32 v{t0}, s{T}, v{V_L16}")
    K(f"s_lshl_b32 s{T}, s{S_A}, 11"); K(f"s_add_u32 s{T}, s{T}, {L_KVS}"); K(f"v_add_u32 v{t1}, s{T}, v{V_L16}")
    for e in range(8): K(f"v_cvt_pk_bf16_f32 v{V_PHI+e}, v{TP+2*e}, v{TP+2*e+1}")
    mfma(V_ACC, V_PHI, VB, "0"); mfma(V_ACC, V_PHI + 4, VB + 4)
    for e in range(8): K(f"v_cvt_pk_bf16_f32 v{V_PHI+8+e}, v{TN+2*e}, v{TN+2*e+1}")
    mfma(V_ACC + 16, V_PHI + 8, VB, "0"); mfma(V_ACC + 16, V_PHI + 12, VB + 4)
    for b in range(8): K(f"ds_write_b128 v{t0}, {vr(V_ACC+4*b,4)} offset:{1024*b}")
    K.wait_vm(tkx[0])
    arrive(C_2)
    if f2: stamp("kv_b")
    await_(C_2, 4)
    if f2: stamp("kv_c")
    for hb in range(2):
        for g in range(4): K(f"ds_read_b128 {vr(V_P+16*hb+4*g,4)}, v{t1} offset:{8192*g + 1024*hb}")
    arrive(C_3)
    if f2: stamp("kv_d")
    for hb in range(2):
        K(f"s_waitcnt lgkmcnt({5 - 4*hb})")
        B = V_P + 16*hb
        for e in (0, 2): padd(B+e, B+e, B+4+e, pkq); padd(B+8+e, B+8+e, B+12+e, pkq)
        for e in (0, 2): padd(B+e, B+e, B+8+e, pkq)
        if am and hb == 1: K(f"s_bitcmp1_b32 s{S_A}, 0"); K("s_cselect_b32 exec_hi, 0, -1")
        for e in range(x_at): K(f"buffer_atomic_add_f32 v{B+e}, v{A_L4}, {srd(R_WS)}, s{S_HB} offen offset:{1024*hb + 256*e}")
        if am and hb == 1: K("s_mov_b32 exec_hi, -1")
    stamp("kv_st")
    def hook(ks):
        if ks == 22: arrive(C_Q)
        if ks == kvf:
            K("s_waitcnt vmcnt(0)")
            signal(S_FL, 16)
            stamp("kv_pub")
    gemm_qkv([(L_Q, V_ACC, False)], hook)
    K(f"v_cvt_pk_bf16_f32 v{t0}, v{V_ACC+12}, v{V_ACC+12}")
    featmap()
    K(f"v_lshlrev_b32 v{t0}, 16, v{t0}")
    K(f"v_mul_f32 v{t0}, s{S_K}, v{t0}"); K(f"v_exp_f32 v{t0}, -v{t0}"); K(f"v_add_f32 v{t0}, 1.0, v{t0}"); K(f"v_rcp_f32 v{t0}, v{t0}")
    K(f"v_cvt_pk_bf16_f32 v{t0}, v{t0}, v{t0}"); K(f"v_lshlrev_b32 v{A_G}, 16, v{t0}")
    K("s_mov_b32 exec_lo, 0")
    K(f"buffer_store_dword v{A_G}, v{A_L4}, {srd(R_WS)}, s{S_XB} offen sc1")
    K("s_mov_b32 exec_lo, -1")
    stamp("q_gemm")
    softmax(pkq)
    stamp("sm_q")
    poll_issue(FL_K)
    poll_check(FL_K)
    stamp("kv_seen")
    for e in range(8): K(f"buffer_load_dword v{V_P+e}, v{A_L4}, {srd(R_WS)}, s{S_HB} offen offset:{256*e} sc1")
    F = V_W
    K(f"s_lshl_b32 s{T}, s{S_A}, 10"); K(f"v_add_u32 v{t1}, {L_KVF}, v{V_L16}"); K(f"v_add_u32 v{t0}, s{T}, v{t1}")
    K("s_waitcnt vmcnt(0)")
    stamp("kv_landed")
    for e in range(4): K(f"v_cvt_pk_bf16_f32 v{F+e}, v{V_P+2*e}, v{V_P+2*e+1}")
    K(f"ds_write_b128 v{t0}, {vr(F,4)}")
    arrive(C_4)
    await_(C_4, 4)
    if f2: stamp("o_a")
    for f in range(4): K(f"ds_read_b128 {vr(F+4*f,4)}, v{t1} offset:{1024*f}")
    N = V_ACC
    for f in range(4):
        K(f"s_waitcnt lgkmcnt({3-f})")
        mfma(N, F + 4*f, V_PHI + 4*f, "0" if f == 0 else None)
    K(f"v_cvt_pk_bf16_f32 v{t0}, v{N+12}, v{N+12}")
    for e in range(8): K(f"v_cvt_pk_bf16_f32 v{F+e}, v{N+2*e}, v{N+2*e+1}")
    K(f"v_lshlrev_b32 v{t0}, 16, v{t0}")
    K(f"v_add_f32 v{t0}, {f2u(1e-6):#x}, v{t0}")
    K(f"v_cvt_pk_bf16_f32 v{t0}, v{t0}, v{t0}"); K(f"v_lshlrev_b32 v{t0}, 16, v{t0}")
    K(f"v_rcp_f32 v{t0}, v{t0}")
    for e in range(4):
        K(f"v_lshlrev_b32 v{N+2*e}, 16, v{F+e}"); K(f"v_and_b32 v{N+2*e+1}, 0xffff0000, v{F+e}")
    K(f"v_mul_f32 v{t0}, v{t0}, v{A_G}"); K(f"v_mov_b32 v{t1}, v{t0}")
    for e in range(4, 8):
        K(f"v_lshlrev_b32 v{N+2*e}, 16, v{F+e}"); K(f"v_and_b32 v{N+2*e+1}, 0xffff0000, v{F+e}")
    K(f"v_permlane32_swap_b32 v{t1}, v{t0}")
    for e in range(0, 16, 2): pscale(N+e, t0, pkq)
    for e in range(8): K(f"v_cvt_pk_bf16_f32 v{F+e}, v{N+2*e}, v{N+2*e+1}")
    K(f"v_cndmask_b32 v{F+6}, v{F+6}, 0, {UPM}"); K(f"v_cndmask_b32 v{F+7}, v{F+7}, 0, {UPM}")
    K(f"buffer_store_dwordx4 {vr(F,4)}, v{V_L16}, {srd(R_WS)}, s{S_OB} offen sc1")
    K(f"buffer_store_dwordx4 {vr(F+4,4)}, v{V_L16}, {srd(R_WS)}, s{S_OB} offen offset:1024 sc1")
    if f2: stamp("o_b")
    K("s_waitcnt vmcnt(0)")
    signal(S_FL2, 7)
    stamp("o_pub")
    K(f"s_cmp_eq_u32 s{S_ACT}, 0")
    K.branch("s_cbranch_scc1 L_fin")
    K.branch("s_branch L_red")

    K.label("L_M")
    if prioM: K(f"s_setprio {prioM}")
    K("s_waitcnt lgkmcnt(0)")
    if stamps: K(f"v_writelane_b32 v{V_STAMP}, s{S_ST}, {STAMP_IDS.setdefault('start', len(STAMP_IDS))}")
    if wso: K(f"s_add_u32 s{P_WS}, s{P_WS}, {wso << 20}"); K(f"s_addc_u32 s{P_WS+1}, s{P_WS+1}, 0")
    K(f"s_load_dword s{S_E}, {sp(P_WS)}, {WS_EPOCH}")
    mksrd(R_T, P_PHI, 16*1568)
    K(f"s_mul_i32 s{T}, s{S_J}, 1568"); K(f"s_mul_i32 s{T+1}, s{S_A}, 400"); K(f"s_add_u32 s{T}, s{T}, s{T+1}"); K(f"s_add_u32 m0, s{T+1}, {L_PHI}")
    K("s_mov_b64 exec, 0x1ffffff")
    K(f"buffer_load_dwordx4 v{V_L16}, {srd(R_T)}, s{T} offen lds")
    K("s_mov_b64 exec, -1")
    K(f"v_mov_b32 v{V_CNT}, {L_CNT}")
    K(f"v_mov_b32 v{t0}, 0"); K(f"v_lshl_add_u32 v{t1}, v{V_LANE}, 2, v{V_CNT}"); K(f"ds_write_b32 v{t1}, v{t0}")
    K(f"s_cmp_lt_u32 s{S_J}, 14")
    K.branch("s_cbranch_scc1 L_mset")
    vm_m = K.vm
    RB = 96
    K0 = S_XB
    mksrd(R_T, P_WQKV, 448*2688)
    K(f"s_lshl_b32 s{S_FL}, s{S_MT}, 1"); K(f"s_add_u32 s{S_FL}, s{S_FL}, s{S_J}"); K(f"s_sub_u32 s{S_FL}, s{S_FL}, 14")
    K(f"s_mul_i32 s{K0}, s{S_FL}, 14"); K(f"s_lshl_b32 s{T+5}, s{S_A}, 1"); K(f"s_add_u32 s{K0}, s{K0}, s{T+5}")
    K(f"v_lshrrev_b32 v{t0}, 3, v{V_LANE}"); K(f"v_bfe_u32 v{t1}, v{V_LANE}, 2, 1"); K(f"v_and_b32 v{t2}, 3, v{V_LANE}")
    K(f"v_mul_u32_u24 v{t3}, 56, v{t0}"); K(f"v_mul_u32_u24 v{t4}, 2688, v{t1}"); K(f"v_add_u32 v{t3}, v{t3}, v{t4}")
    K(f"v_lshl_add_u32 v{t3}, v{t2}, 4, v{t3}")
    K(f"s_mul_i32 s{T+5}, s{K0}, 2688"); K(f"v_lshlrev_b32 v{t4}, 1, v{t1}"); K(f"s_lshl_b32 s{T+6}, s{K0}, 1")
    tkl = {}
    if fine: stamp("rp_0")
    K(f"s_add_u32 s{T+7}, s{T+5}, {8*2688}"); K(f"s_cmp_eq_u32 s{S_A}, 3"); K(f"s_cselect_b32 s{T+7}, 0x7000000, s{T+7}"); K(f"s_cselect_b32 s{S_CH}, s{T+7}, 512")
    def rp_load(q): tkl[q] = K(f"buffer_load_dwordx4 {vr(RB+4*q,4)}, v{t3}, {srd(R_T)}, s{T+5 if q < 6 else T+7} offen offset:{448*(q%6)}")
    for q in (2, 3, 4, 5, 8, 9, 10, 11): rp_load(q)
    mksrd(R_X, P_GATE, 896)
    K(f"buffer_load_ushort v{RB+48}, v{t4}, {srd(R_X)}, s{T+6} offen"); K(f"buffer_load_ushort v{RB+49}, v{t4}, {srd(R_X)}, s{T+6} offen offset:16")
    for q in (0, 1, 6, 7): rp_load(q)
    mksrd(R_WS, P_WS, WS_SIZE)
    K(f"s_mov_b32 s{T+6}, 86016"); K(f"v_mul_lo_u32 v{RB+50}, v{t0}, s{T+6}"); K(f"v_and_b32 v{t1}, 7, v{V_LANE}")
    K(f"v_lshl_add_u32 v{RB+50}, v{t1}, 4, v{RB+50}")
    K(f"v_cmp_eq_u32 vcc, 3, v{t2}")
    K(f"s_lshl_b32 s{K0}, s{K0}, 6"); K(f"s_add_u32 s{K0}, s{K0}, {WS_WQ}")
    def rp_store(q):
        n, p, hg = q // 6, (q % 6) // 2, q % 2; b = RB + 4*q
        K.wait_vm(tkl[q])
        K(f"v_cndmask_b32 v{b+2}, v{b+2}, v{RB+48+n}, vcc" if p == 0 else f"v_cndmask_b32 v{b+2}, v{b+2}, 0, vcc")
        K(f"v_cndmask_b32 v{b+3}, v{b+3}, 0, vcc")
        K(f"s_add_u32 s{T+6}, s{K0}, {p*28672 + hg*8*86016}")
        if n: K(f"s_add_u32 s{T+6}, s{T+6}, s{S_CH}")
        return K(f"buffer_store_dwordx4 {vr(b,4)}, v{RB+50}, {srd(R_WS)}, s{T+6} offen sc1")
    for e in range(4): K(f"v_mov_b32 v{RB+52+e}, 0")
    K(f"s_lshl_b32 s{T+5}, s{S_FL}, 2"); K(f"s_add_u32 s{T+5}, s{T+5}, s{S_A}"); K(f"s_lshl_b32 s{T+7}, s{T+5}, 12"); K(f"s_lshl_b32 s{T+5}, s{T+5}, 10")
    K(f"s_add_u32 s{T+5}, s{T+5}, {WS_KVP}"); K(f"s_add_u32 s{T+7}, s{T+7}, {WS_CN}"); K(f"v_lshlrev_b32 v{t0}, 7, v{V_LANE}")
    K(f"buffer_store_dwordx4 {vr(RB+52,4)}, v{V_L16}, {srd(R_WS)}, s{T+5} offen sc1")
    K("s_mov_b32 exec_hi, 0")
    K(f"buffer_store_dword v{RB+52}, v{t0}, {srd(R_WS)}, s{T+7} offen sc1")
    K("s_mov_b32 exec_hi, -1")
    K(f"s_lshl_b32 s{S_FL}, s{S_FL}, 7"); K(f"s_add_u32 s{S_FL}, s{S_FL}, {WS_RPF}"); K(f"s_add_u32 s{S_FL2}, s{S_FL}, 4096")
    K(f"s_cmp_eq_u32 s{S_A}, 3"); K(f"s_cselect_b32 s{S_FL}, s{S_FL}, 0x7000000"); K(f"s_cselect_b32 s{S_FL2}, s{S_FL2}, 0x7000000")
    K("s_waitcnt lgkmcnt(0)")
    settag()
    for q in (2, 3, 4, 5, 8, 9, 10, 11): tk1 = rp_store(q)
    for q in (0, 1, 6, 7): rp_store(q)
    if fine: stamp("rp_st")
    K("s_barrier")
    K.wait_vm(tk1)
    K("s_barrier")
    flag(S_FL)
    stamp("rp_pub")
    K("s_waitcnt vmcnt(1)")
    arrive(C_5); await_(C_5, 4)
    flag(S_FL2)
    arrive(C_E); arrive(C_G)
    K("s_setprio 0")
    K.vm = vm_m
    K.label("L_mset")
    if allpf:
        mksrd(R_X, P_X, 2048*896); mksrd(R_W1, P_W1, 448*3584)
        K(f"s_lshl_b32 s{T+3}, s2, 2"); K(f"s_add_u32 s{T+3}, s{T+3}, s{S_A}")
        K(f"s_mul_i32 s{T}, s{T+3}, {14*128}"); K(f"s_mul_i32 s{T+1}, s{T+3}, {13*128}"); K(f"v_lshlrev_b32 v{t0}, 7, v{V_LANE}")
        K("s_mov_b64 exec, 0x3fff")
        if allpf & 1: K(f"buffer_load_dword v{V_POLL}, v{t0}, {srd(R_X)}, s{T} offen")
        K("s_mov_b64 exec, 0x1fff")
        if allpf & 2: K(f"buffer_load_dword v{V_POLL}, v{t0}, {srd(R_W1)}, s{T+1} offen")
        K("s_mov_b64 exec, -1")
    if spf:
        K(f"s_lshl_b32 s{T+3}, s2, 2"); K(f"s_add_u32 s{T+3}, s{T+3}, s{S_A}")
        K(f"s_mul_i32 s{T}, s{T+3}, {12*128 + 32}"); K(f"s_mul_i32 s{T+1}, s{T+3}, {3*128 + 8}")
        for q in range(13): K(f"s_load_dword s{S_CNT}, {sp(P_W2)}, s{T} offset:{min(128*q, 12*128 + 28)}")
        K("s_waitcnt lgkmcnt(10)")
        for q in range(4): K(f"s_load_dword s{S_CNT}, {sp(P_WO)}, s{T+1} offset:{min(128*q, 3*128 + 4)}")
    mksrd(R_WS, P_WS, WS_SIZE); mksrd(R_WO, P_WO, 448*896); mksrd(R_OUT, P_OUT, 2048*896)
    p2setup()
    K(f"s_mul_i32 s{T}, s{S_ROW}, {112*1024}"); K(f"s_add_u32 s{T}, s{T}, {0x7000000 if x_noh else WS_H}")
    K(f"s_lshl_b32 s{S_HB}, s{T+4}, 12"); K(f"s_add_u32 s{S_HB}, s{S_HB}, s{T}")
    K(f"s_lshl_b32 s{S_HB3}, s{T+2}, 12"); K(f"s_add_u32 s{S_HB3}, s{S_HB3}, s{T}")
    BF1, BF2, BONE = M_AR + (72 if m16 else 80), 128, 124
    for r in list(range(BF1, BF1 + (32 if m16 else 16))) + list(range(BONE, BF2 + 8)): K(f"v_mov_b32 v{r}, 0")
    K(f"v_lshlrev_b32 v{t0}, 1, v{V_LANE}")
    K("s_mov_b32 exec_hi, 0")
    K(f"v_mov_b32 v{BONE}, 0x3f80")
    mksrd(R_T, P_B1, 3584)
    if m16:
        K(f"v_bfe_u32 v{t1}, v{V_LANE}, 2, 1"); K(f"v_bfe_u32 v{t2}, v{V_LANE}, 3, 1"); K(f"v_and_b32 v{t3}, 3, v{V_LANE}")
        K(f"v_lshl_add_u32 v{t3}, v{t1}, 3, v{t3}"); K(f"v_lshl_add_u32 v{t3}, v{t2}, 2, v{t3}"); K(f"v_lshlrev_b32 v{t3}, 1, v{t3}")
        K("s_mov_b32 exec_lo, 0xffff")
        for p in range(8): K(f"buffer_load_ushort v{BF1+4*p}, v{t3}, {srd(R_T)}, s{S_W1B} offen offset:{32*p}")
        K("s_mov_b32 exec_lo, -1")
    else:
        for p in range(4): K(f"buffer_load_ushort v{BF1+4*p}, v{t0}, {srd(R_T)}, s{S_W1B} offen offset:{64*p}")
    mksrd(R_T, P_B2, 896)
    K(f"s_lshl_b32 s{T}, s{S_CT}, 7"); K(f"s_lshl_b32 s{T+1}, s{S_A}, 10"); K(f"s_add_u32 s{T}, s{T}, s{T+1}")
    for p in range(2): tk_b2 = K(f"buffer_load_ushort v{BF2+4*p}, v{t0}, {srd(R_T)}, s{T} offen offset:{64*p}")
    K("s_mov_b32 exec_hi, -1")
    K(f"s_lshl_b32 s{T}, s{S_ROW}, 1"); K(f"s_add_u32 s{T}, s{T}, s{S_A}")
    K(f"s_lshl_b32 s{T+1}, s{S_CT}, 7")
    K(f"s_lshl_b32 s{S_PE}, s{T}, 11"); K(f"s_add_u32 s{S_PE}, s{S_PE}, s{T+1}"); K(f"s_add_u32 s{S_PE}, s{S_PE}, {WS_HF}")
    K(f"s_lshl_b32 s{S_PO}, s{T}, 10"); K(f"s_add_u32 s{S_PO}, s{S_PO}, s{T+1}"); K(f"s_add_u32 s{S_PO}, s{S_PO}, {WS_OF}")
    K(f"s_lshl_b32 s{T}, s{S_ROW}, 4"); K(f"s_lshl_b32 s{T+1}, s{S_A}, 2"); K(f"s_add_u32 s{S_OB}, s{T+1}, s{T}")
    FL_E, FL_L, FL_O = (S_PE, 0, 6), (S_PE, 1024, 8), (S_PO, 0, 8)
    K(f"s_lshl_b32 s{T}, s{S_MT}, 2"); K(f"s_add_u32 s{T}, s{T}, s{S_A}"); K(f"s_mul_i32 s{S_RS}, s{T}, 112")
    K(f"s_lshl_b32 s{T+1}, s{S_J}, 3"); K(f"s_add_u32 s{S_RS}, s{S_RS}, s{T+1}"); K(f"s_lshl_b32 s{S_RS}, s{S_RS}, 10"); K(f"s_add_u32 s{S_RS}, s{S_RS}, {WS_H}")
    K(f"s_lshr_b32 s{T}, s{T}, 1"); K(f"s_lshl_b32 s{T}, s{T}, 13"); K(f"s_add_u32 s{T}, s{T}, {WS_HF}")
    K(f"s_mul_i32 s{T+1}, s{S_J}, {74*8}"); K(f"s_and_b32 s{S_FL}, s{T+1}, 0xf800"); K(f"s_add_u32 s{S_FL}, s{S_FL}, s{T}")
    K(f"s_add_u32 s{T+1}, s{T+1}, {37*8}"); K(f"s_and_b32 s{S_FL2}, s{T+1}, 0xf800"); K(f"s_add_u32 s{S_FL2}, s{S_FL2}, s{T}"); K(f"s_add_u32 s{S_FL2}, s{S_FL2}, 1024")
    K(f"s_lshr_b32 s{T+1}, {(1 << 3) | (1 << 10)}, s{S_J}"); K(f"s_and_b32 s{T+1}, s{T+1}, 1"); K(f"s_lshl_b32 s{T+1}, s{T+1}, 10"); K(f"s_add_u32 s{S_FL}, s{S_FL}, s{T+1}")
    K(f"s_cmp_ge_u32 s{S_J}, 14"); K(f"s_cselect_b32 s{S_FL2}, 0x7000000, s{S_FL2}")
    K(f"v_add_u32 v{M_L16B}, {112*1024}, v{V_L16}")
    MP = M_AR + 40
    K(f"v_lshlrev_b32 v{MP}, 7, v{V_LANE}")
    K(f"s_lshl_b32 s{T+3}, s2, 2"); K(f"s_add_u32 s{T+3}, s{T+3}, s{S_A}")
    K(f"s_mul_i32 s{S_XB}, s{T+3}, {13*128}"); K(f"s_lshl_b32 s{S_M0}, s{T+3}, 9")
    def mall_pf():
        K("s_mov_b64 exec, 0x1fff")
        K(f"buffer_load_dword v{V_POLL}, v{MP}, {srd(R_W2)}, s{S_XB} offen" + ["", " sc1", " sc0 sc1", " nt"][mpa])
        K("s_mov_b64 exec, 15")
        K(f"buffer_load_dword v{V_POLL}, v{MP}, {srd(R_WO)}, s{S_M0} offen" + ["", " sc1", " sc0 sc1", " nt"][mpa])
        K("s_mov_b64 exec, -1")
    def mall_again():
        K(f"s_xor_b32 s{T+3}, s2, 1"); K(f"s_lshl_b32 s{T+3}, s{T+3}, 2"); K(f"s_add_u32 s{T+3}, s{T+3}, s{S_A}")
        K(f"s_mul_i32 s{S_XB}, s{T+3}, {13*128}"); K(f"s_lshl_b32 s{S_M0}, s{T+3}, 9")
        mall_pf()
    if mpf == 1: mall_pf()
    if tlb:
        l = newl("tlb")
        K(f"s_cmp_lg_u32 s{S_A}, 1")
        K.branch(f"s_cbranch_scc1 {l}")
        K(f"v_lshlrev_b32 v{t0}, {tlb}, v{V_LANE}")
        K(f"buffer_load_dword v{V_POLL}, v{t0}, {srd(R_WS)}, 0 offen offset:2048"); K.vm -= 1
        K(f"buffer_load_dword v{V_POLL}, v{t0}, {srd(R_OUT)}, 0 offen"); K.vm -= 1
        K.label(l)
    if m16:
        NAD = 10
        MX, MW = 136, 138
        K(f"v_and_b32 v{t0}, 15, v{V_LANE}"); K(f"v_lshrrev_b32 v{t1}, 4, v{V_LANE}"); K(f"v_bfe_u32 v{t2}, v{V_LANE}, 1, 3"); K(f"v_xor_b32 v{t2}, v{t1}, v{t2}")
        K(f"v_lshlrev_b32 v{t0}, 7, v{t0}"); K(f"v_lshl_add_u32 v{t0}, v{t2}, 4, v{t0}"); K(f"s_lshl_b32 s{T}, s{S_A}, 12")
        K(f"v_add_u32 v{MX}, s{T}, v{t0}"); K(f"v_xor_b32 v{MX+1}, 64, v{MX}")
        K(f"v_bfe_u32 v{t3}, v{V_LANE}, 2, 2"); K(f"v_lshl_add_u32 v{t0}, v{t1}, 3, v{t3}"); K(f"v_lshlrev_b32 v{t0}, 8, v{t0}"); K(f"v_lshl_add_u32 v{t0}, v{t3}, 6, v{t0}")
        K(f"v_and_b32 v{t2}, 1, v{t1}"); K(f"v_lshl_add_u32 v{t0}, v{t2}, 5, v{t0}")
        K(f"v_and_b32 v{t2}, 1, v{V_LANE}"); K(f"v_lshl_add_u32 v{t0}, v{t2}, 4, v{t0}"); K(f"v_bfe_u32 v{t2}, v{V_LANE}, 1, 1"); K(f"v_lshl_add_u32 v{t0}, v{t2}, 3, v{t0}")
        K(f"v_add_u32 v{MW}, 16384, v{t0}")
        for p in range(1, 8): K(f"v_xor_b32 v{MW+p}, {32*p}, v{MW}")
        lanepart()
    else:
        NAD = 8
        xfrag_addr(M_AX)
        lanepart()
        K(f"v_lshl_add_u32 v{t0}, v{t2}, 3, v{t3}"); K(f"v_lshl_add_u32 v{t0}, v{t0}, 8, v{t4}"); K(f"v_lshl_add_u32 v{t0}, v{t3}, 6, v{t0}")
        K(f"v_add_u32 v{M_AW}, 16384, v{t0}")
        for p in range(1, 4): K(f"v_xor_b32 v{M_AW+p}, {64*p}, v{M_AW}")
    AB = M_AB
    K(f"v_lshl_add_u32 v{t0}, v{t2}, 2, v{t3}"); K(f"v_lshl_add_u32 v{t0}, v{t0}, 7, v{t4}"); K(f"v_bfe_u32 v{t1}, v{V_LANE}, 3, 1"); K(f"v_lshl_add_u32 v{t0}, v{t1}, 6, v{t0}")
    K(f"v_add_u32 v{AB}, s{S_M02}, v{t0}"); K(f"v_xor_b32 v{AB+1}, 64, v{AB}")
    K(f"v_add_u32 v{AB+2}, 65536, v{AB}"); K(f"v_add_u32 v{AB+3}, 65536, v{AB+1}")
    K(f"v_lshlrev_b32 v{t0}, 9, v{t2}"); K(f"v_sub_u32 v22, v{AB+2}, v{t0}"); K(f"v_sub_u32 v23, v{AB+3}, v{t0}")
    box = {}
    K(f"s_cmp_ge_u32 s{S_J}, 14")
    K.branch("s_cbranch_scc1 L_nof")
    vm_nof = K.vm
    K("s_waitcnt lgkmcnt(0)")
    settag()
    if fine: stamp("M_rdy")
    WR, XR = M_BH, M_BH + 4*G
    tk = {}
    def rdg(g):
        ks, p = g // 4, g % 4
        t, ksl = ks // 4, ks % 4
        uo = (t % 2) * 32768
        if p == 0 and ksl == 0:
            shift(range(M_AX, M_AX + NAD), SH[t])
            if t == 3: K.wait_vm(tk_b2)
            if t < 6: K("s_barrier")
            else:
                l = newl("s6")
                K.wait_lg(box['cs'])
                K(f"v_cmp_ne_u32 vcc, 4, v{t4}")
                K(f"s_cbranch_vccz {l}")
                lgs = K.lg
                await_(C_S, 4)
                K.lg = lgs
                K.raw(f"{l}:")
        if m16:
            k2, ct_ = g // 8, g % 8
            if ct_ == 0:
                for tt_ in range(2): K(f"ds_read_b128 {vr(XR + 8*(k2 % 2) + 4*tt_, 4)}, v{MX + k2 % 2} offset:{uo + 2048*tt_}")
            for r in range(2):
                tk[g] = K(f"ds_read_b64_tr_b16 {vr(WR + 4*(g % G) + 2*r, 2)}, v{MW+ct_} offset:{uo + (32*(k2 % 2) + 4*r)*256}")
            return
        if p == 0: K(f"ds_read_b128 {vr(XR + 4*(ks % 3), 4)}, v{M_AX+ksl} offset:{uo}")
        for r in range(2):
            tk[g] = K(f"ds_read_b64_tr_b16 {vr(WR + 4*(g % G) + 2*r, 2)}, v{M_AW+p} offset:{uo + (16*ksl + 4*r)*256}")
    for g in range(G): rdg(g)
    for g in range(112):
        K.wait_lg(tk[g])
        if m16:
            for tt_ in range(2):
                d = vr(M_ACC + 8*(g % 8) + 4*tt_, 4)
                K(f"v_mfma_f32_16x16x32_bf16 {d}, {vr(WR + 4*(g % G), 4)}, {vr(XR + 8*((g // 8) % 2) + 4*tt_, 4)}, {'0' if g < 8 else d}")
            if 52 <= g < 60:
                for tt_ in range(2):
                    d = vr(M_ACC + 8*(g % 8) + 4*tt_, 4)
                    K(f"v_mfma_f32_16x16x32_bf16 {d}, {vr(BF1 + 4*(g % 8), 4)}, {vr(BONE, 4)}, {d}")
        else:
            mfma(M_ACC + 16*(g % 4), WR + 4*(g % G), XR + 4*((g // 4) % 3), "0" if g < 4 else None, x_m16 & 1)
            if 52 <= g < 56: mfma(M_ACC + 16*(g % 4), BF1 + 4*(g % 4), BONE)
        if g + G < 112: rdg(g + G)
        if g + G == 112: arrive(C_E)
        if g + G + 3 == 96: box['cs'] = K(f"ds_read_b32 v{t4}, v{V_CNT} offset:{C_S}")
        if mpf > 1 and g == mpf: mall_pf()
        if mpf2 and g == mpf2: mall_again()
        if hpt and g == hpt: K(f"buffer_load_dword v{V_POLL}, v{MP}, {srd(R_WS)}, s{S_RS} offen sc1")
    stamp("ffn1")
    K(f"s_setprio {prioG}")
    tk = {}
    def rdb(ks, part=3):
        r, ksl = ks // 4, ks % 4
        b = M_BH + 8 * (ks % 8)
        u = RUNIT[r]
        if ksl == 0 and r >= (4 if aw2 == 3 else 2) and part & 1: K.wait_vm(tk_r[r])
        for pp in range(2):
            for h in range(2):
                if not part & (1 << pp): continue
                if r < 7:
                    tk[ks] = K(f"ds_read_b64_tr_b16 {vr(b + 4*pp + 2*h, 2)}, v{AB + pp + (2 if u >= 2 else 0)} offset:{(u%2)*32768 + (16*ksl + 8*h)*128}")
                else:
                    hh, sx = (ks % 4) // 2, ks % 2
                    tk[ks] = K(f"ds_read_b64_tr_b16 {vr(b + 4*pp + 2*h, 2)}, v{(22 if (sx == 1 and h == 1) else AB + 2) + pp} offset:{(u%2)*32768 + (28*hh + 16*sx + 8*h)*128}")
    def pull():
        await_(C_B, 4)
        for e in range(12): K(f"v_mov_b32 v{BF1+e}, v{BONE+e}")
        for ks in range(8):
            if ks >= 3: K.wait_lg(tk[ks - 3])
            rdb(ks)
        arrive(C_P)
    cc = -2.0 * 0.7978845608028654 * 1.4426950408889634
    K(f"v_mov_b32 v{t0}, {f2u(cc):#x}"); K(f"v_mov_b32 v{t1}, 1.0"); K(f"s_mov_b32 s{S_K}, {f2u(cc*0.044715):#x}"); K(f"s_mov_b32 s{S_K+1}, {f2u(cc*0.044715):#x}")
    tkh = {}
    for g in range(8):
        a = M_ACC + 8*g; tt = M_AR + 8*(g % 2); o = M_AR + 48 + 4*g
        if aw2 == 4 and g == md:
            await_(C_E, 8)
            K(f"s_cmp_eq_u32 s{S_ACT}, 1"); K(f"s_cselect_b32 s{R_W2+2}, s{R_W2+2}, 0")
            pend.extend(g_w2(0) + g_w2(1))
        if x_nog: pass
        elif g < pkg:
            for e in range(0, 8, 2): K(f"v_pk_mul_f32 {vr(tt+e,2)}, {vr(a+e,2)}, {vr(a+e,2)}")
            for e in range(0, 8, 2): K(f"v_pk_fma_f32 {vr(tt+e,2)}, {vr(tt+e,2)}, {sp(S_K)}, {vr(t0,2)} op_sel_hi:[1,1,0]")
            drip(1)
            for e in range(0, 8, 2): K(f"v_pk_mul_f32 {vr(tt+e,2)}, {vr(a+e,2)}, {vr(tt+e,2)}")
            for e in range(8):
                K(f"v_exp_f32 v{tt+e}, v{tt+e}")
                if e == 2: drip(1)
            for e in range(0, 8, 2): K(f"v_pk_add_f32 {vr(tt+e,2)}, {vr(tt+e,2)}, {vr(t0,2)} op_sel:[0,1] op_sel_hi:[1,1]")
            drip(1)
            for e in range(8): K(f"v_rcp_f32 v{tt+e}, v{tt+e}")
            drip(1 if g < 7 else 99)
            for e in range(0, 8, 2): K(f"v_pk_mul_f32 {vr(tt+e,2)}, {vr(a+e,2)}, {vr(tt+e,2)}")
        else:
            for e in range(8): K(f"v_mul_f32 v{tt+e}, v{a+e}, v{a+e}")
            for e in range(8): K(f"v_fma_f32 v{tt+e}, v{tt+e}, s{S_K}, v{t0}")
            drip(1)
            for e in range(8): K(f"v_mul_f32 v{tt+e}, v{a+e}, v{tt+e}")
            for e in range(8):
                K(f"v_exp_f32 v{tt+e}, v{tt+e}")
                if e == 2: drip(1)
            for e in range(8): K(f"v_add_f32 v{tt+e}, 1.0, v{tt+e}")
            drip(1)
            for e in range(8): K(f"v_rcp_f32 v{tt+e}, v{tt+e}")
            drip(1 if g < 7 else 99)
            for e in range(8): K(f"v_mul_f32 v{tt+e}, v{a+e}, v{tt+e}")
        for e in ((0, 2, 1, 3) if m16 else range(4)): K(f"v_cvt_pk_bf16_f32 v{o+e}, v{tt+2*e}, v{tt+2*e+1}")
        if m16:
            for e in range(2): K(f"v_permlane16_swap_b32 v{o+e}, v{o+e+2}")
        if g == gw: arrive(C_G)
        if aw2 == 3 and g == gp: pull()
        if (g + 1) % sb == 0:
            K("s_setprio 3")
            for x in range(g + 1 - sb, g + 1):
                if x == 4: K(f"s_add_u32 s{S_RS}, s{S_RS}, 4096")
                tkh[x] = K(f"buffer_store_dwordx4 {vr(M_AR + 48 + 4*x,4)}, v{V_L16}, {srd(R_WS)}, s{S_RS} offen offset:{1024*(x%4)} " + ["sc1", "sc1 nt", "sc0 sc1"][hst])
            if g < 7: K(f"s_setprio {prioG}")
    stamp("gelu_v")
    await_(C_0, 4)
    K.wait_vm(tkh[3]); signal(S_FL, 7)
    stamp("gelu")
    K(f"s_cmp_eq_u32 s{S_ACT}, 1")
    K.branch("s_cbranch_scc1 L_p2")
    K("s_waitcnt vmcnt(0)")
    signal(S_FL2, 7)
    def l2warm(first, n):
        K(f"s_lshr_b32 s{T}, s2, 3"); K(f"s_and_b32 s{T}, s{T}, 3"); K(f"s_lshl_b32 s{T}, s{T}, 2"); K(f"s_add_u32 s{T}, s{T}, s{S_A}"); K(f"s_lshl_b32 s{T}, s{T}, 13")
        K(f"v_lshlrev_b32 v{t0}, 7, v{V_LANE}")
        for k in range(n):
            K(f"s_add_u32 s{T+1}, s{T}, {(first + 1024*k)*128}")
            K(f"buffer_load_dword v{t1}, v{t0}, {srd(R_W2)}, s{T+1} offen")
    if l2w & 1:
        l2warm(0, 13)
        for k in range(4):
            K(f"s_add_u32 s{T+1}, s{T}, {1024*k*128}")
            K(f"buffer_load_dword v{t1}, v{t0}, {srd(R_WO)}, s{T+1} offen")
    K.branch("s_branch L_fin")
    K.label("L_nof")
    K.vm = vm_nof
    if hlp:
        if hw == 1: await_(C_E, 8, 2)
        if hw == 2: await_(C_0, 4, 2)
        if mpf > 1: mall_pf()
        K(f"s_mul_i32 s{T}, s{S_CT}, {111*128}")
        K("s_mov_b32 exec_hi, 0xffffff")
        for r in range(h0, 7):
            for q in range(2):
                K(f"s_add_u32 s{T+1}, s{S_W2B3 if r == 3 else S_W2B}, {(0 if r == 3 else (2*r % 7)*64*896) + q*56*128}"); K(f"s_add_u32 s{T+1}, s{T+1}, s{T}")
                K(f"buffer_load_dword v{V_POLL}, v{MP}, {srd(R_W2)}, s{T+1} offen")
                K(f"s_waitcnt vmcnt({hd})")
        K(f"s_lshl_b32 s{T}, s{S_CT}, 2"); K(f"s_add_u32 s{T}, s{T}, s{S_A}"); K(f"s_mul_i32 s{T}, s{T}, {196*128}")
        K("s_mov_b32 exec_hi, 0x1ffff")
        for q in range(4):
            K(f"buffer_load_dword v{V_POLL}, v{MP}, {srd(R_WO)}, s{T} offen"); K(f"s_add_u32 s{T}, s{T}, {49*128}")
            K(f"s_waitcnt vmcnt({hd})")
        K("s_mov_b64 exec, -1")
        stamp("hlp_done")
        K.branch("s_branch L_fin")
    if nfe and mpf > 1: mall_pf()
    if mpf == -2: await_(C_E, 8, 2)
    if mpf == -1: await_(C_0, 4, 2)
    if mpf < 0:
        K(f"s_lshl_b32 s{T+3}, s2, 2"); K(f"s_add_u32 s{T+3}, s{T+3}, s{S_A}")
        K(f"s_mul_i32 s{T}, s{T+3}, {98*128}"); K(f"s_mul_i32 s{T+1}, s{T+3}, {25*128}")
        K(f"buffer_load_dword v{V_POLL}, v{MP}, {srd(R_W2)}, s{T} offen")
        K(f"s_add_u32 s{T}, s{T}, {64*128}")
        K("s_mov_b32 exec_hi, 3")
        K(f"buffer_load_dword v{V_POLL}, v{MP}, {srd(R_W2)}, s{T} offen")
        K("s_mov_b64 exec, 0x1ffffff")
        K(f"buffer_load_dword v{V_POLL}, v{MP}, {srd(R_WO)}, s{T+1} offen")
        K("s_mov_b64 exec, -1")
    await_(C_0, 4, 2)
    K("s_waitcnt lgkmcnt(0)")
    settag()
    if mpf > 1 and not nfe: mall_pf()
    if l2w & 2: l2warm(0, 13)
    K("s_waitcnt vmcnt(0)")
    if aw2 == 3: pull()
    if aw2 == 4:
        await_(C_E, 8); run(g_w2(0) + g_w2(1)); K("s_waitcnt vmcnt(0)")

    K.label("L_p2")
    tk_h = K.vm
    def g_wo(hf):
        def step(q):
            def f():
                if q == 0:
                    K(f"s_mul_i32 s{TD}, s{S_A}, {112*896}"); K(f"s_lshl_b32 s{TD+1}, s{S_CT}, 7"); K(f"s_add_u32 s{TD}, s{TD}, s{TD+1}")
                    if hf: K(f"s_add_u32 s{TD}, s{TD}, {56*896}")
                    K(f"s_add_u32 m0, s{S_M02}, {U[RUNIT[7+hf]]}")
                if q == 4: K(f"s_add_u32 s{TD}, s{TD}, {32*896}"); K(f"s_add_u32 m0, s{S_M02}, {U[RUNIT[7+hf]] + 4096}")
                x = K(f"buffer_load_dwordx4 v{V_D2+q%4}, {srd(R_WO)}, s{TD} offen offset:{1024*(q%4)} lds") if 7 < x_skipB else K.vm - 8
                if q == 6: tk_r[7+hf] = x
            return f
        return [step(q) for q in range(7)]
    tk_a = {}
    def lda(ks, part=3):
        b = M_AR + 8 * (ks % NA); r = ks // 4
        if part & 1:
            if ks % 4 == 0: K(f"s_add_u32 s{T+7}, s{S_HB3 if r == 3 else S_HB}, {0 if r == 3 else (2*r % 7)*4096}")
            K(f"buffer_load_dwordx4 {vr(b,4)}, v{V_L16}, {srd(R_WS)}, s{T+7} offen offset:{1024*(ks%4)} sc1")
        if part & 2: tk_a[ks] = K(f"buffer_load_dwordx4 {vr(b+4,4)}, v{M_L16B}, {srd(R_WS)}, s{T+7} offen offset:{1024*(ks%4)} sc1")
    for t2_ in range(2):
        for pp in range(2): mfma(M_ACC + 32*t2_ + 16*pp, (BF1 + 4 if aw2 == 3 else BF2) + 4*pp, BF1 if aw2 == 3 else BONE, "0")
    g0, g1, g2, g3 = g_w2(0), g_w2(1), g_w2(2), g_w2(3)
    if aw2 == 3:
        K.wait_vm(tk_h - 1)
        signal(S_FL2, 7)
        K(f"s_setprio 0")
        stamp("h_pub1")
        poll_issue(FL_E)
        poll_check(FL_E)
        stamp("hE_seen")
        for ks in range(pre): lda(ks)
        g3 = []
    elif aw2:
        K.wait_vm(tk_h - 1)
        signal(S_FL2, 7)
        K(f"s_setprio 0")
        stamp("h_pub1")
        if hfirst:
            poll_issue(FL_E)
            if not x_noE: poll_check(FL_E)
            stamp("hE_seen")
            for ks in range(pre): lda(ks)
        if aw2 != 4: await_(C_B, 4)
        stamp("B_seen")
        if jit:
            for ks in range(8):
                if ks >= 3: K.wait_lg(tk[ks - 3])
                rdb(ks)
        else:
            for ks in range(3): rdb(ks)
            K.wait_lg(tk[0]); rdb(3)
            K.wait_lg(tk[3])
            for q in range(8):
                g2[q]()
                if q < 4:
                    if q == 3: K.wait_lg(tk[4])
                    rdb(4 + q)
        K("s_waitcnt lgkmcnt(0)")
        if not hfirst:
            poll_issue(FL_E)
            run(g3); g3 = []
            poll_check(FL_E)
            stamp("hE_seen")
            for ks in range(pre): lda(ks)
    else:
        await_(C_E, 8)
        for q in range(8):
            g0[q]()
        K.wait_vm(tk_h - 1)
        signal(S_FL2, 7)
        K(f"s_setprio 0")
        stamp("h_pub1")
        poll_issue(FL_E)
        run(g1)
        poll_check(FL_E)
        stamp("hE_seen")
        if jit:
            for ks in range(8):
                if ks < pre: lda(ks)
                if ks % 4 == 0: K.wait_vm(tk_r[ks // 4])
                if ks >= 3: K.wait_lg(tk[ks - 3])
                rdb(ks)
            assert pre <= 8
        else:
            for ks in range(4): lda(ks)
            K.wait_vm(tk_r[0])
            for ks in range(4):
                if ks == 3: K.wait_lg(tk[0])
                rdb(ks); lda(4 + ks)
            K.wait_vm(tk_r[1]); K.wait_lg(tk[3])
            for q in range(8):
                g2[q]()
                if q < 4:
                    if q == 3: K.wait_lg(tk[4])
                    rdb(4 + q)
        K("s_waitcnt lgkmcnt(0)")
    stamp("p2_prep")
    poll_issue(FL_L)
    sched = []
    if jit:
        for k in range(pre, 28):
            for p in (1, 2): sched.append((k, max(k - NA + 1, c0 + 1 if k >= 12 else 0), lambda k=k, p=p: lda(k, p), 0))
        early = {2: 0, 3: 0, 4: c3 + 1, 5: 12, 6: 16, 7: cq + 1, 8: 20}
        for r in range(2, 9):
            for q, f in enumerate(g_w2(r) if r < 7 else g_wo(r - 7)): sched.append((4*r - bl + q // 2 + 0.5, early[r], f, r))
        sched.sort(key=lambda z: z[0])
    else:
        for ks in range(pre if aw2 else 8, 12): pend.extend([lambda ks=ks: lda(ks, 1), lambda ks=ks: lda(ks, 2)])
        pend.extend(g3)
    def jdrip(ks):
        first = min([z[3] for z in sched if z[3]], default=0)
        for n, (key, e, f, grp) in enumerate(sched):
            if e <= ks and grp in (0, first):
                f(); sched.pop(n); return
    def step(ks, side):
        K.wait_vm(tk_a[ks])
        if ks >= 8: K.wait_lg(tk[ks])
        a = M_AR + 8 * (ks % NA); b = M_BH + 8 * (ks % 8)
        n = 0
        for t2_ in range(2):
            for pp in range(2):
                if not (x_nomf and ks < 28): mfma(M_ACC + 32*t2_ + 16*pp, b + 4*pp, a + 4*t2_, None, x_m16 & 2)
                side(n); n += 1
    nxt = [12]
    def hstep(ks):
        def side(n):
            if n < 2 and ks + 3 >= 8: rdb(ks + 3, 1 << n)
            if jit and sched:
                jdrip(ks)
                if n < rate - 4: jdrip(ks)
            else: drip(2 if len(pend) > 8 else 1)
        step(ks, side)
    def ldo(ks, part):
        b = M_AR + 8 * (ks % NA)
        if part == 0:
            K(f"buffer_load_dword v{t2}, v{t3}, {srd(R_WS)}, s{T+3} offen sc1")
            box['g'] = K(f"buffer_load_dword v{t3}, v{t3}, {srd(R_WS)}, s{T+3} offen offset:2048 sc1")
        if part == 1:
            if ks == 32: K(f"s_add_u32 s{T+4}, s{T+4}, 4096")
            K(f"buffer_load_dwordx4 {vr(b,4)}, v{V_L16}, {srd(R_WS)}, s{T+4} offen offset:{1024*(ks%4)} sc1")
        if part == 2: tk_a[ks] = K(f"buffer_load_dwordx4 {vr(b+4,4)}, v{M_L16B}, {srd(R_WS)}, s{T+4} offen offset:{1024*(ks%4)} sc1")
    olist = lambda: [lambda: ldo(0, 0)] + [lambda k=k, p=p: ldo(k, p) for k in range(28, 36) for p in (1, 2)]
    for ks in range(oc + 1):
        hstep(ks)
        if ks == c0:
            if not x_noE: poll_check(FL_L)
            stamp("hL_seen")
        if ks == 4 and aw2 == 3: await_(C_B2, 4)
        if ks == c3:
            await_(C_3, 4)
            if not jit: pend.extend(g_w2(4))
        if ks == cq:
            await_(C_Q, 4)
            if not jit: pend.extend(g_wo(0))
        if not jit:
            while ks >= c0 and nxt[0] <= ks + NA and nxt[0] < 28:
                pend.extend([lambda k=nxt[0]: lda(k, 1), lambda k=nxt[0]: lda(k, 2)]); nxt[0] += 1
            if ks == 11: pend.extend(g_w2(5))
            if ks == 15: pend.extend(g_w2(6))
            if ks == 19: pend.extend(g_wo(1))
        if ks in (3, 11, 19): stamp(f"p2_k{ks}")
        if ks == oc - 2: poll_issue(FL_O)
    while sched: jdrip(99)
    assert not pend and oc >= 22
    K(f"v_and_b32 v{t3}, 31, v{V_LANE}"); K(f"v_lshlrev_b32 v{t3}, 2, v{t3}")
    K(f"s_lshl_b32 s{T+3}, s{S_OB}, 7"); K(f"s_add_u32 s{T+3}, s{T+3}, {WS_G}")
    K(f"s_lshl_b32 s{T+4}, s{S_OB}, 11"); K(f"s_add_u32 s{T+4}, s{T+4}, {WS_O}")
    K(f"v_add_u32 v{M_L16B}, 32768, v{V_L16}")
    K(f"v_add_u32 v{V_D2}, s{S_M02}, v{V_L16}")
    for q in range(1, 4): K(f"v_xor_b32 v{V_D2+q}, {64*q}, v{V_D2}")
    K("s_waitcnt lgkmcnt(0)")
    K(f"s_cmp_lg_u32 s{PD[0]}, {FL_O[2]}" if not x_noo else "s_cmp_lg_u32 0, 0")
    K.branch("s_cbranch_scc1 L_olate")
    sv, sl = K.vm, K.lg
    stamp("o_early")
    pend.extend(olist())
    for ks in range(oc + 1, 28): hstep(ks)
    drip(99)
    ev, el = K.vm, K.lg
    K.branch("s_branch L_ojoin")
    K.label("L_olate")
    K.vm, K.lg = sv, sl
    for ks in range(oc + 1, 28): hstep(ks)
    poll_issue(FL_O)
    poll_check(FL_O)
    stamp("o_late")
    run(olist())
    assert (ev, el) == (K.vm, K.lg)
    K.label("L_ojoin")
    stamp("p2_h_done")
    tk_g = box['g']
    K.wait_vm(tk_g)
    if f2: stamp("t_g")
    K(f"v_sub_f32 v{t4}, 1.0, v{t2}"); K(f"v_sub_f32 v{t5}, 1.0, v{t3}")
    K(f"v_cvt_pk_bf16_f32 v{t4}, v{t4}, v{t5}"); K(f"v_and_b32 v{t5}, 0xffff0000, v{t4}"); K(f"v_lshlrev_b32 v{t4}, 16, v{t4}")
    if tl:
        for e in range(0, 32, 2): pscale(M_ACC+e, t4, True)
        for ks in range(28, 36):
            K.wait_vm(tk_a[ks] - 1); K.wait_lg(tk[ks])
            a = M_AR + 8 * (ks % NA); b = M_BH + 8 * (ks % 8)
            for pp in range(2):
                mfma(M_ACC + 16*pp, b + 4*pp, a)
                if ks + 3 < 36: rdb(ks + 3, 1 << pp)
                pscale(M_ACC + 32 + 4*(ks - 28) + 2*pp, t5, False)
        K.wait_vm(tk_a[35])
        for ks in range(28, 36):
            a = M_AR + 8 * (ks % NA); b = M_BH + 8 * (ks % 8)
            for pp in range(2):
                mfma(M_ACC + 32 + 16*pp, b + 4*pp, a + 4)
                n = 2*(ks - 28) + pp - 6
                if 0 <= n < 8: K(f"ds_write_b128 v{V_D2 + n%4}, {vr(M_ACC+4*n,4)} offset:{1024*n}")
        for b in range(8): K(f"ds_write_b128 v{V_D2 + b%4}, {vr(M_ACC+32+4*b,4)} offset:{32768 + 1024*b}")
    else:
        for e in range(0, 64, 2): pscale(M_ACC+e, t4 if e < 32 else t5, True)
        for ks in range(28, 36):
            def side(n):
                if n < 2 and ks + 3 < 36: rdb(ks + 3, 1 << n)
            step(ks, side)
        if f2: stamp("t_mf")
        for t2_ in range(2):
            for b in range(8): K(f"ds_write_b128 v{V_D2 + b%4}, {vr(M_ACC+32*t2_+4*b,4)} offset:{32768*t2_ + 1024*b}")
    stamp("p2_done")

    K.label("L_red")
    K(f"v_and_b32 v{t1}, 7, v{V_LANE}"); K(f"v_lshrrev_b32 v{t3}, 3, v{V_LANE}")
    K(f"s_lshl_b32 s{T+1}, s{S_A}, 3"); K(f"v_add_u32 v{t0}, s{T+1}, v{t3}")
    K(f"v_and_b32 v{t2}, 3, v{V_LANE}"); K(f"v_lshlrev_b32 v{t2}, 2, v{t2}"); K(f"v_xor_b32 v{t0}, v{t0}, v{t2}")
    K(f"v_lshlrev_b32 v{t0}, 4, v{t0}"); K(f"v_lshl_add_u32 v{t0}, v{t1}, 10, v{t0}")
    K(f"s_lshr_b32 s{T+2}, s{S_W}, 2"); K(f"s_lshl_b32 s{T}, s{T+2}, 15"); K(f"v_add_u32 v{t0}, s{T}, v{t0}")
    K(f"v_mul_u32_u24 v{t3}, 896, v{t3}"); K(f"v_lshl_add_u32 v{t3}, v{t1}, 4, v{t3}")
    K(f"s_lshl_b32 s{T}, s{S_ROW}, 2"); K(f"s_add_u32 s{T}, s{T}, s{S_W}"); K(f"s_mul_i32 s{T}, s{T}, {8*896}"); K(f"s_lshl_b32 s{T+1}, s{S_CT}, 7"); K(f"s_add_u32 s{T+5}, s{T}, s{T+1}")
    K("s_waitcnt lgkmcnt(0)")
    K("s_barrier")
    if f2: stamp("t_bar")
    R = 160
    for q in range(4):
        K(f"ds_read_b128 {vr(R+8*q,4)}, v{t0} offset:{8192*q}")
        K(f"ds_read_b128 {vr(R+8*q+4,4)}, v{t0} offset:{8192*q + 512}")
    K("s_waitcnt lgkmcnt(4)")
    for e in range(0, 8, 2): padd(R+e, R+e, R+8+e, True)
    K("s_waitcnt lgkmcnt(0)")
    for e in range(0, 8, 2): padd(R+16+e, R+16+e, R+24+e, True)
    for e in range(0, 8, 2): padd(R+e, R+e, R+16+e, True)
    for e in range(4): K(f"v_cvt_pk_bf16_f32 v{R+e}, v{R+2*e}, v{R+2*e+1}")
    K(f"buffer_store_dwordx4 {vr(R,4)}, v{t3}, {srd(R_OUT)}, s{T+5} offen" + ["", " sc1", " nt", " sc0 sc1"][outm])
    if f2: stamp("t_st")
    K(f"s_xor_b32 s{T}, s2, 64"); K(f"s_or_b32 s{T}, s{T}, s{S_W}"); K(f"s_cmp_lg_u32 s{T}, 0")
    K.branch("s_cbranch_scc1 L_fin")
    K(f"s_mov_b32 s{T}, {WS_EPOCH}")
    flag(T)
    K.label("L_fin")
    if stamps:
        K("s_waitcnt vmcnt(0)")
        stamp("end")
        if probe is not None:
            i0 = STAMP_IDS.setdefault('start', len(STAMP_IDS)); i1 = STAMP_IDS.setdefault(probe, len(STAMP_IDS))
            K(f"v_readlane_b32 s{T}, v{V_STAMP}, {i0}"); K(f"v_readlane_b32 s{T+1}, v{V_STAMP}, {i1}")
            K("s_nop 4")
            K(f"s_cmp_eq_u32 s{T+1}, 0"); K(f"s_cselect_b32 s{T+1}, s{T}, s{T+1}")
            if pwg >= 0:
                K(f"s_cmp_lg_u32 s2, {pwg}")
                K.branch("s_cbranch_scc1 L_end")
            K.label("L_probe")
            K("s_sleep 2")
            K(f"s_memrealtime {sp(S_ST)}"); K("s_waitcnt lgkmcnt(0)")
            K(f"s_sub_u32 s{T+2}, s{S_ST}, s{T+1}"); K(f"s_cmp_lt_u32 s{T+2}, {pt}")
            K.branch("s_cbranch_scc1 L_probe")
            K.branch("s_branch L_end")
        K(f"s_lshl_b32 s{T}, s2, 3"); K(f"s_add_u32 s{T}, s{T}, s{S_W}"); K(f"s_lshl_b32 s{T}, s{T}, 8"); K(f"s_add_u32 s{T}, s{T}, {WS_STAMP}")
        K(f"v_lshlrev_b32 v{t0}, 2, v{V_LANE}")
        K(f"buffer_store_dword v{V_STAMP}, v{t0}, {srd(R_WS)}, s{T} offen")
    K.label("L_end")
    K("s_endpgm")
    K.raw(f".fill (28672 + 8192 * {1 if stamps else 0} - (L_end - {NAME})) / 4, 4, 0xbf800000")

    head = f"""; Fused gated mix of hedgehog linear attention and GELU FFN (emitted by a hand-written generator script)
; @launch grid=(256,1,1) block=(512,1,1) lds=163840
.amdgcn_target "amdgcn-amd-amdhsa--gfx950"
.text
.globl {NAME}
.p2align 8
.type {NAME},@function
"""
    tail = f""".section .rodata,"a"
.p2align 6
.amdhsa_kernel {NAME}
  .amdhsa_next_free_vgpr 256
  .amdhsa_next_free_sgpr 102
  .amdhsa_accum_offset 256
  .amdhsa_group_segment_fixed_size 0
  .amdhsa_kernarg_size 104
  .amdhsa_user_sgpr_count 2
  .amdhsa_user_sgpr_kernarg_segment_ptr 1
  .amdhsa_system_sgpr_workgroup_id_x 1
.end_amdhsa_kernel
"""
    return head + K.text() + tail

STAMP_IDS = {}
def parse_opts(argv):
    kw = {}
    for a in argv:
        if a.startswith("-D"):
            k, v = a[2:].split("="); kw[k] = int(v) if v.lstrip("-").isdigit() else v
    return kw
if __name__ == "__main__":
    out = sys.argv[1] if len(sys.argv) > 1 else "k.s"
    open(out, "w").write(gen(**parse_opts(sys.argv)))
```

```python
import sys, struct
from asmlib import Asm

NAME = "gated_mix__linear_kernel_hedgehog__dense_activation_gelu__prompt_kernel"
def f2u(x): return struct.unpack("<I", struct.pack("<f", x))[0]

WS_EPOCH = 0
WS_RPF   = 0x8000
WS_STAMP = 0x10000
WS_G     = 0xA0000
WS_WQ    = 0x100000
WS_KVP   = 0x280000
WS_O     = 0x480000
WS_H     = 0x680000
WS_CN    = 0x300000
WS_HF    = WS_CN
WS_OF    = WS_CN + 2048*128
WS_KVF   = WS_CN + 3072*128
WS_SIZE  = 0xE00000

U = [0, 32768, 65536, 98304, 131072]
L_K, L_V, L_Q = 98304, 126976, 65536
L_MISC = 155648
L_PHI, L_CNT, L_B2, L_B1 = L_MISC, L_MISC + 2048, L_MISC + 2560, L_MISC + 3072
L_KVS = U[3]
L_KVF = L_MISC + 4096
RUNIT = [0, 1, 0, 1, 3, 0, 1, 2, 3]
C_E, C_0, C_1, C_2, C_3, C_4, C_Q, C_G, C_B, C_S, C_5, C_P, C_B2 = 0, 4, 8, 12, 16, 20, 24, 28, 32, 36, 40, 44, 48

P_X, P_WQKV, P_PHI, P_WO, P_W1, P_B1, P_W2 = 16, 18, 20, 22, 26, 28, 30
P_B2, P_GATE, P_OUT, P_WS = 32, 34, 36, 40
R_X, R_W1, R_W2, R_WO, R_WS, R_OUT, R_T = 44, 48, 52, 56, 60, 64, 68
S_MT, S_J, S_W, S_A, S_FL2, S_TAG, S_CH, S_CNT = 72, 73, 74, 75, 76, 78, 77, 100
S_CHO = 80
S_M0 = 87
S_XB, S_W1B = 88, 89
S_T = 90
S_UP = 98
S_E = 42
S_H = S_J
S_CT, S_ROW, S_ACT = 43, 3, 101
S_K = 4
S_ST = 6
S_L28 = 24
S_FL = 8
S_HB, S_W2B, S_OB, S_HB3, S_W2B3, S_M02, S_RS = 9, 10, 11, 12, 13, 14, 15
S_PE, S_P3, S_PO = 34, 35, 38
PD = [16, 17, 18, 19, 20, 21, 22, 23, 26, 27, 28, 29, 30, 31, 32, 33]
def srd(r): return f"s[{r}:{r+3}]"
def sp(r): return f"s[{r}:{r+1}]"

V_LANE, V_L16, V_STAMP, V_TAG, V_POLL, V_CNT = 1, 2, 3, 4, 5, 6
V_T = 8
V_D2 = 18
A_PA, A_AX, A_AD, A_L4, A_PH, A_TR, A_G = 7, 14, 22, 24, 25, 30, 31
V_W, V_P, V_ACC, V_PHI, V_X = 32, 64, 96, 128, 144
A_XD, A_WD, A_QD, A_GW = 64, 68, 72, 16
M_L16B, M_AB = 7, 14
M_ACC, M_BH, M_AR = 24, 88, 152
M_AX, M_AW = 136, 140
NA = 13
def vr(a, n): return f"v[{a}:{a+n-1}]"
UPM = sp(S_UP)
L2E = 1.4426950408889634

def gen(stamps=False, spin=20000, rot1=9, codepf=True, slp=2, cyc=False, G=5, prioA=1, prioM=2, kvf=27, fine=False,
        pkq=0, pkk=1, LA=9, LA0=6, c0=2, mpf=60, outm=0, tlb=0, gw=-1, hf0=7, rpb=3, prioG=2, k6=4, qpf=1, sb=1, qd=0, probe=None, pwg=-1, pt=4000, aw2=2, pre=8, cb=22, pkg=2, rpa=0, f2=0, hfirst=1, early=0, oc=22, x_now2=0, x_noh=0, x_nomf=0, x_now1=0, rb2=0, gp=3, pa=10, x_at=4, c3=9, cq=17, spf=0, allpf=0, l2w=0, jit=0, bl=5, rate=4, x_m16=0, ra=2, rb=4, rc=2, rd=1, x_skipB=99, x_noo=0, x_nog=0, x_noE=0, md=2, hlp=0, hw=2, h0=0, hd=0, hh=0, tl=1, am=1, kf=1, wso=0, hpt=0, hst=0, k1=11, kd=2, kb=24, qfirst=0, rp=1, re=1, mpf2=0, mpa=0, nfe=1, m16=1, ke=0, sd=0):
    K = Asm()
    T = S_T
    TD = T + 5
    t0, t1, t2, t3, t4, t5 = range(V_T, V_T + 6)
    def stamp(name):
        if not stamps: return
        if probe is not None and name != probe: return
        if cyc and name in ("rp_seen", "kv_issued", "q_gemm", "B_seen", "o_early", "o_late"): return
        K("s_waitcnt lgkmcnt(0)")
        K(f"s_memrealtime {sp(S_ST)}")
        if cyc: K(f"s_memtime s[0:1]")
        K("s_waitcnt lgkmcnt(0)")
        i = STAMP_IDS.setdefault(name, len(STAMP_IDS))
        K(f"v_writelane_b32 v{V_STAMP}, s{S_ST}, {i}")
        if cyc: K(f"v_writelane_b32 v{V_STAMP}, s0, {32 + i}")
    uid = [0]
    def newl(p): uid[0] += 1; return f"L_{p}{uid[0]}"
    def poll_issue(fl):
        K(f"s_load_dword s{PD[0]}, {sp(P_WS)}, s{fl[0]} offset:{fl[1]} glc")
    def poll_check(fl):
        l, d = newl("poll"), newl("polld")
        K(f"s_mov_b32 s{S_CNT}, {spin}")
        K.raw(f"{l}:")
        K("s_waitcnt lgkmcnt(0)")
        K(f"s_cmp_eq_u32 s{PD[0]}, {fl[2]}")
        K.branch(f"s_cbranch_scc1 {d}")
        K(f"s_sub_u32 s{S_CNT}, s{S_CNT}, 1")
        K(f"s_cbranch_scc1 {d}")
        if slp: K(f"s_sleep {slp}")
        poll_issue(fl)
        K(f"s_branch {l}")
        K.label(d)
    def signal(soff_reg, n):
        K(f"v_mov_b32 v{t5}, 1"); K(f"v_lshlrev_b32 v{V_POLL}, 7, v{V_LANE}")
        K(f"s_mov_b64 exec, {(1 << n) - 1}")
        K(f"buffer_atomic_add v{t5}, v{V_POLL}, {srd(R_WS)}, s{soff_reg} offen")
        K("s_mov_b64 exec, -1")
    def vpoll_issue(vaddr):
        return K(f"buffer_load_dword v{V_POLL}, v{vaddr}, {srd(R_WS)}, 0 offen sc1")
    def vpoll_check(tok, vaddr):
        l, d = newl("poll"), newl("polld")
        K(f"s_mov_b32 s{S_CNT}, {spin}")
        K.wait_vm(tok)
        K.label(l)
        K(f"v_cmp_ne_u32 vcc, s{S_TAG}, v{V_POLL}")
        K.branch(f"s_cbranch_vccz {d}")
        K(f"s_sub_u32 s{S_CNT}, s{S_CNT}, 1")
        K.branch(f"s_cbranch_scc1 {d}")
        K(f"s_sleep 10")
        K(f"buffer_load_dword v{V_POLL}, v{vaddr}, {srd(R_WS)}, 0 offen sc1"); K.vm -= 1
        K("s_waitcnt vmcnt(0)")
        K.branch(f"s_branch {l}")
        K.label(d)
    def flag(soff_reg):
        K("s_mov_b64 exec, 1")
        K(f"buffer_store_dword v{V_TAG}, v{V_LANE}, {srd(R_WS)}, s{soff_reg} offen sc1")
        K("s_mov_b64 exec, -1")
    def arrive(c):
        K(f"v_mov_b32 v{t5}, 1")
        K("s_mov_b64 exec, 1")
        K(f"ds_add_u32 v{V_CNT}, v{t5} offset:{c}")
        K("s_mov_b64 exec, -1")
    def await_(c, n, sleep=0):
        l, d = newl("aw"), newl("awd")
        K(f"s_mov_b32 s{S_CNT}, {spin * 8}")
        K.label(l)
        K(f"ds_read_b32 v{t5}, v{V_CNT} offset:{c}")
        K("s_waitcnt lgkmcnt(0)")
        K(f"v_cmp_ne_u32 vcc, {n}, v{t5}")
        K.branch(f"s_cbranch_vccz {d}")
        if sleep: K(f"s_sleep {sleep}")
        K(f"s_sub_u32 s{S_CNT}, s{S_CNT}, 1")
        K.branch(f"s_cbranch_scc0 {l}")
        K.label(d)
    def mksrd(r, p, nbytes):
        K(f"s_mov_b32 s{r}, s{p}"); K(f"s_and_b32 s{r+1}, s{p+1}, 0xffff")
        K(f"s_mov_b32 s{r+2}, {nbytes}"); K(f"s_mov_b32 s{r+3}, 0x20000")
    cnt16 = [0]
    def mfma(d, a, b, c=None, big=False):
        if x_m16 and big and c is None:
            cnt16[0] += 1
            o = 8 * ((cnt16[0] // 4) % 2)
            for q in range(2): K(f"v_mfma_f32_16x16x32_bf16 {vr(d+o+4*q,4)}, {vr(a,4)}, {vr(b,4)}, {vr(d+o+4*q,4)}")
            return
        cs = vr(d, 16) if c is None else c
        K(f"v_mfma_f32_32x32x16_bf16 {vr(d,16)}, {vr(a,4)}, {vr(b,4)}, {cs}")
    def padd(d, a, b, pk):
        if pk: K(f"v_pk_add_f32 {vr(d,2)}, {vr(a,2)}, {vr(b,2)}")
        else: K(f"v_add_f32 v{d}, v{a}, v{b}"); K(f"v_add_f32 v{d+1}, v{a+1}, v{b+1}")
    def pscale(d, r, pk):
        if pk: K(f"v_pk_mul_f32 {vr(d,2)}, {vr(d,2)}, {vr(r & ~1,2)} " + ("op_sel:[0,1] op_sel_hi:[1,1]" if r & 1 else "op_sel_hi:[1,0]"))
        else: K(f"v_mul_f32 v{d}, v{d}, v{r}"); K(f"v_mul_f32 v{d+1}, v{d+1}, v{r}")
    def settag():
        K(f"s_add_u32 s{S_TAG}, s{S_E}, 0x9E3779B9"); K(f"s_mov_b32 s{S_TAG+1}, s{S_TAG}"); K(f"v_mov_b32 v{V_TAG}, s{S_TAG}")
    def xfrag_addr(dst):
        K(f"v_and_b32 v{t0}, 31, v{V_LANE}"); K(f"v_lshrrev_b32 v{t2}, 5, v{V_LANE}"); K(f"v_bfe_u32 v{t3}, v{V_LANE}, 1, 3")
        K(f"v_xor_b32 v{t3}, v{t2}, v{t3}"); K(f"s_lshl_b32 s{T}, s{S_A}, 12"); K(f"v_lshlrev_b32 v{t0}, 7, v{t0}")
        K(f"v_lshl_add_u32 v{t0}, v{t3}, 4, v{t0}"); K(f"v_add_u32 v{dst}, s{T}, v{t0}")
        for k in range(1, 4): K(f"v_xor_b32 v{dst+k}, {32*k}, v{dst}")
    def lanepart():
        K(f"v_bfe_u32 v{t4}, v{V_LANE}, 4, 1"); K(f"v_lshlrev_b32 v{t4}, 5, v{t4}")
        K(f"v_and_b32 v{t3}, 3, v{V_LANE}"); K(f"v_lshl_add_u32 v{t4}, v{t3}, 3, v{t4}")
        K(f"v_bfe_u32 v{t3}, v{V_LANE}, 2, 2"); K(f"v_lshrrev_b32 v{t2}, 5, v{V_LANE}")
    def p2setup():
        mksrd(R_W2, P_W2, 0 if x_now2 else 1792*896)
        K(f"s_and_b32 s{T}, s2, 7"); K(f"s_lshr_b32 s{T+1}, s2, 3")
        if hlp: K(f"s_add_u32 s{T+1}, s{T+1}, 28"); K(f"s_and_b32 s{T+1}, s{T+1}, 31")
        K(f"s_mul_i32 s{T+2}, s{T+1}, 37"); K(f"s_lshr_b32 s{T+2}, s{T+2}, 8"); K(f"s_mul_i32 s{T+3}, s{T+2}, 7"); K(f"s_sub_u32 s{S_CT}, s{T+1}, s{T+3}")
        K(f"s_lshl_b32 s{T+2}, s{T+2}, 1"); K(f"s_lshl_b32 s{T+3}, s{T}, 3"); K(f"s_add_u32 s{S_ROW}, s{T+2}, s{T+3}")
        K(f"s_cmp_lt_u32 s{T+1}, 28"); K(f"s_cselect_b32 s{S_ACT}, 1, 0")
        K(f"s_and_b32 s{T+2}, s{S_A}, 1"); K(f"s_mul_i32 s{T+3}, s{S_A}, 7"); K(f"s_add_u32 s{T+4}, s{T+3}, s{T+2}")
        K(f"s_cmp_eq_u32 s{T+2}, 0"); K(f"s_cselect_b32 s{T+2}, 6, 0"); K(f"s_add_u32 s{T+2}, s{T+2}, s{T+3}")
        K(f"s_lshl_b32 s{T}, s{S_CT}, 7")
        K(f"s_mul_i32 s{S_W2B}, s{T+4}, {64*896}"); K(f"s_add_u32 s{S_W2B}, s{S_W2B}, s{T}")
        K(f"s_mul_i32 s{S_W2B3}, s{T+2}, {64*896}"); K(f"s_add_u32 s{S_W2B3}, s{S_W2B3}, s{T}")
        K(f"s_lshl_b32 s{S_M02}, s{S_A}, 13")
        K(f"v_lshrrev_b32 v{t0}, 3, v{V_LANE}"); K(f"v_and_b32 v{t1}, 7, v{V_LANE}")
        K(f"v_bfe_u32 v{t2}, v{V_LANE}, 4, 1"); K(f"v_lshlrev_b32 v{t2}, 2, v{t2}"); K(f"v_xor_b32 v{t1}, v{t1}, v{t2}")
        K(f"v_mul_u32_u24 v{t0}, 896, v{t0}"); K(f"v_lshl_add_u32 v{V_D2}, v{t1}, 4, v{t0}")
        for q in range(1, 4): K(f"v_add_u32 v{V_D2+q}, {q*(8*896-1024)}, v{V_D2}")
        K(f"v_mov_b32 v{V_CNT}, {L_CNT}")
    def shift(regs, d):
        for r in regs:
            if d > 0: K(f"v_add_u32 v{r}, {d}, v{r}")
            elif d < 0: K(f"v_subrev_u32 v{r}, {-d}, v{r}")
    pend = []
    def drip(n):
        for _ in range(n):
            if pend: pend.pop(0)()
    def run(steps):
        for f in steps: f()
    tk_r = {}
    def g_w2(r):
        def step(q):
            def f():
                if q % 4 == 0:
                    K(f"s_add_u32 s{TD}, s{S_W2B3 if r == 3 else S_W2B}, {(0 if r == 3 else (2*r % 7)*64*896) + (q // 4)*32*896}")
                    K(f"s_add_u32 m0, s{S_M02}, {U[RUNIT[r]] + (q // 4)*4096}")
                x = K(f"buffer_load_dwordx4 v{V_D2+q%4}, {srd(R_W2)}, s{TD} offen offset:{1024*(q%4)} lds") if r < x_skipB else K.vm - 8
                if q == 7: tk_r[r] = x
            return f
        return [step(q) for q in range(8)]
    SH = [0, 0, 65536, 0, -65536, 0, 65536]

    K.raw(f"{NAME}:")
    K("s_cmp_ge_u32 s2, 256"); K("s_cbranch_scc1 L_end")
    if stamps and early: K(f"s_memrealtime {sp(S_ST)}"); K("s_waitcnt lgkmcnt(0)")
    K("s_load_dwordx16 s[16:31], s[0:1], 0"); K("s_load_dwordx8 s[32:39], s[0:1], 64"); K("s_load_dwordx2 s[40:41], s[0:1], 96")
    if stamps:
        if not early: K(f"s_memrealtime {sp(S_ST)}")
        K(f"v_mov_b32 v{V_STAMP}, 0")
    K(f"v_lshrrev_b32 v{t0}, 6, v0"); K(f"v_and_b32 v{V_LANE}, 63, v0")
    K(f"v_readfirstlane_b32 s{S_W}, v{t0}")
    K(f"v_lshlrev_b32 v{V_L16}, 4, v{V_LANE}")
    K(f"s_and_b32 s{T}, s2, 7"); K(f"s_lshr_b32 s{T+1}, s2, 3")
    if codepf:
        K(f"s_lshr_b32 s{T+2}, s2, 5"); K(f"s_lshl_b32 s{T+2}, s{T+2}, 3"); K(f"s_or_b32 s{T+2}, s{T+2}, s{S_W}"); K(f"s_cmp_lg_u32 s{T+2}, 7")
        K("s_cbranch_scc1 L_nopf")
        K(f"s_getpc_b64 {sp(T+2)}")
        K.raw("L_pc:")
        K(f"s_lshl_b32 s{T+4}, s{T+1}, 7"); K(f"s_sub_u32 s{T+2}, s{T+2}, L_pc - {NAME}"); K(f"s_subb_u32 s{T+3}, s{T+3}, 0")
        K(f"s_add_u32 s{T+2}, s{T+2}, s{T+4}"); K(f"s_addc_u32 s{T+3}, s{T+3}, 0")
        K(f"v_lshlrev_b32 v{t0}, 9, v{V_LANE}")
        K("s_mov_b32 exec_hi, 0xffffff")
        K(f"global_load_dword v{V_POLL}, v{t0}, {sp(T+2)}"); K.vm -= 1
        K("s_mov_b32 exec_hi, -1")
        K.label("L_nopf")
    K(f"s_and_b32 s{T+2}, s{T}, 2"); K(f"s_lshl_b32 s{T+2}, s{T+2}, 1")
    K(f"s_and_b32 s{T+3}, s{T}, 1"); K(f"s_cmp_lt_u32 s{T+1}, 4"); K(f"s_cselect_b32 s{T+4}, 14, 12"); K(f"s_add_u32 s{T+3}, s{T+3}, s{T+4}")
    K(f"s_lshr_b32 s{T+4}, s{T+1}, 3"); K(f"s_lshl_b32 s{S_J}, s{T+4}, 2"); K(f"s_and_b32 s{S_MT}, s{T}, 3"); K(f"s_add_u32 s{S_J}, s{S_J}, s{S_MT}"); K(f"s_sub_u32 s{S_J}, s{S_J}, 4")
    K(f"s_cmp_lt_u32 s{T+1}, 8"); K(f"s_cselect_b32 s{S_J}, s{T+3}, s{S_J}"); K(f"s_cselect_b32 s{T+2}, s{T+2}, 0")
    K(f"s_and_b32 s{T+3}, s{T+1}, 7"); K(f"s_xor_b32 s{T+3}, s{T+3}, s{T+2}")
    K(f"s_and_b32 s{S_MT}, s{T}, 4"); K(f"s_lshl_b32 s{S_MT}, s{S_MT}, 1"); K(f"s_add_u32 s{S_MT}, s{S_MT}, s{T+3}")
    K(f"s_and_b32 s{S_A}, s{S_W}, 3")
    K(f"s_lshl_b32 s{S_W1B}, s{S_J}, 8")
    K(f"s_cmp_ge_u32 s{S_W}, 4")
    K.branch("s_cbranch_scc1 L_M")

    if prioA: K(f"s_setprio {prioA}")
    K(f"s_lshl_b32 s{T+4}, s{T+4}, 1"); K(f"s_add_u32 s{T+2}, s{T+3}, s{T+4}")
    K(f"s_cmp_ge_u32 s{T+2}, 7"); K(f"s_cselect_b32 s{T+3}, 7, 0"); K(f"s_sub_u32 s{S_CH}, s{T+2}, s{T+3}")
    if not rot1: K(f"s_mov_b32 s{S_CH}, 0")
    if rot1 == 2:
        K(f"s_lshr_b32 s{T+4}, s{T+4}, 1"); K(f"s_add_u32 s{T+2}, s{S_MT}, s{T+4}"); K(f"s_and_b32 s{T+2}, s{T+2}, 1"); K(f"s_lshl_b32 s{S_CH}, s{T+2}, 2")
    if rot1 == 4:
        K(f"s_lshr_b32 s{T+4}, s{T+4}, 1"); K(f"s_add_u32 s{T+2}, s{S_MT}, s{T+4}"); K(f"s_and_b32 s{T+2}, s{T+2}, 3"); K(f"s_lshl_b32 s{S_CH}, s{T+2}, 1")
    if rot1 >= 9:
        K(f"s_and_b32 s{T+2}, s2, 3"); K(f"s_mul_i32 s{T+2}, s{T+2}, {ra}"); K(f"s_bfe_u32 s{T+3}, s2, 0x10002"); K(f"s_mul_i32 s{T+3}, s{T+3}, {rb}"); K(f"s_add_u32 s{T+2}, s{T+2}, s{T+3}")
        if rc: K(f"s_and_b32 s{T+3}, s{S_MT}, 1"); K(f"s_mul_i32 s{T+3}, s{T+3}, {rc}"); K(f"s_add_u32 s{T+2}, s{T+2}, s{T+3}")
        if rd: K(f"s_bfe_u32 s{T+3}, s{S_MT}, 0x10001"); K(f"s_mul_i32 s{T+3}, s{T+3}, {rd}"); K(f"s_add_u32 s{T+2}, s{T+2}, s{T+3}")
        if re: K(f"s_bfe_u32 s{T+3}, s2, 0x10006"); K(f"s_mul_i32 s{T+3}, s{T+3}, {re}"); K(f"s_add_u32 s{T+2}, s{T+2}, s{T+3}")
        K(f"s_mul_i32 s{T+3}, s{T+2}, 37"); K(f"s_lshr_b32 s{T+3}, s{T+3}, 8"); K(f"s_mul_i32 s{T+3}, s{T+3}, 7"); K(f"s_sub_u32 s{S_CH}, s{T+2}, s{T+3}")
    if rot1 == 8:
        K(f"s_and_b32 s{T+2}, s2, 7"); K(f"s_cmp_eq_u32 s{T+2}, 7"); K(f"s_cselect_b32 s{S_CH}, 3, s{T+2}")
    def rotstep(t):
        K(f"s_lshl_b32 s{S_CHO+t}, s{S_CH}, 12")
        if t < 6: K(f"s_add_u32 s{S_CH}, s{S_CH}, 1"); K(f"s_cmp_eq_u32 s{S_CH}, 7"); K(f"s_cselect_b32 s{S_CH}, 0, s{S_CH}")
    rotstep(0); rotstep(1)
    K(f"s_lshl_b32 s{S_M0}, s{S_A}, 12")
    K(f"s_mul_i32 s{S_XB}, s{S_MT}, {128*896}")
    K(f"v_lshrrev_b32 v{t0}, 3, v{V_LANE}"); K(f"v_and_b32 v{t1}, 7, v{V_LANE}"); K(f"v_lshrrev_b32 v{t2}, 1, v{t0}"); K(f"v_xor_b32 v{t2}, v{t1}, v{t2}")
    K(f"s_lshl_b32 s{T+2}, s{S_A}, 5"); K(f"v_add_u32 v{t3}, s{T+2}, v{t0}"); K(f"v_mul_u32_u24 v{t3}, 896, v{t3}")
    K(f"v_lshl_add_u32 v{A_XD}, v{t2}, 4, v{t3}"); K(f"v_xor_b32 v{t2}, 4, v{t2}"); K(f"v_lshl_add_u32 v{A_XD+1}, v{t2}, 4, v{t3}")
    K(f"v_add_u32 v{A_XD+1}, {8*896-1024}, v{A_XD+1}")
    K(f"v_add_u32 v{A_XD+2}, {16*896-2048}, v{A_XD}"); K(f"v_add_u32 v{A_XD+3}, {16*896-2048}, v{A_XD+1}")
    K(f"v_lshrrev_b32 v{t0}, 4, v{V_LANE}"); K(f"v_and_b32 v{t1}, 15, v{V_LANE}"); K(f"v_lshlrev_b32 v{t2}, 2, v{t0}"); K(f"v_xor_b32 v{t2}, v{t1}, v{t2}")
    K(f"s_lshl_b32 s{T+2}, s{S_A}, 4"); K(f"v_add_u32 v{t3}, s{T+2}, v{t0}"); K(f"v_mul_u32_u24 v{t3}, 3584, v{t3}")
    K(f"v_lshl_add_u32 v{A_WD}, v{t2}, 4, v{t3}")
    if m16:
        K(f"v_xor_b32 v{t2}, 2, v{t2}"); K(f"v_lshl_add_u32 v{t3}, v{t2}, 4, v{t3}")
        for q in range(1, 4): K(f"v_add_u32 v{A_WD+q}, {q*(4*3584-1024)}, v{A_WD if q < 2 else t3}")
    else:
        for q in range(1, 4): K(f"v_add_u32 v{A_WD+q}, {q*(4*3584-1024)}, v{A_WD}")
    K("s_waitcnt lgkmcnt(0)")
    if stamps: K(f"v_writelane_b32 v{V_STAMP}, s{S_ST}, {STAMP_IDS.setdefault('start', len(STAMP_IDS))}")
    if wso: K(f"s_add_u32 s{P_WS}, s{P_WS}, {wso << 20}"); K(f"s_addc_u32 s{P_WS+1}, s{P_WS+1}, 0")
    mksrd(R_X, P_X, 2048*896); mksrd(R_W1, P_W1, 0 if x_now1 else 448*3584)
    tk_stage = {}
    def g_stage(t):
        u = U[t % 4]
        def step(q):
            def f():
                if q == 0: K(f"s_lshr_b32 s{TD}, s{S_CHO+t}, 5"); K(f"s_add_u32 s{TD}, s{TD}, s{S_XB}"); K(f"s_add_u32 m0, s{S_M0}, {u}")
                if q == 4: K(f"s_mul_i32 s{TD}, s{S_CHO+t}, 56"); K(f"s_add_u32 s{TD}, s{TD}, s{S_W1B}"); K(f"s_add_u32 m0, s{S_M0}, {u + 16384}")
                if q < 4: K(f"buffer_load_dwordx4 v{A_XD+q}, {srd(R_X)}, s{TD} offen offset:{1024*q} lds")
                else: x = K(f"buffer_load_dwordx4 v{A_WD+q-4}, {srd(R_W1)}, s{TD} offen offset:{1024*(q-4)} lds")
                if q == 7: tk_stage[t] = x
            return f
        return [step(q) for q in range(8)]
    ilist = []
    for t in range(7): ilist += [(f, t - 2 if t >= 4 else -1) for f in g_stage(t)]
    pos = [0]
    def issue_to(n, lastbar):
        while pos[0] < min(n, len(ilist)) and ilist[pos[0]][1] <= lastbar:
            ilist[pos[0]][0](); pos[0] += 1
    if fine: stamp("A_karg")
    K(f"s_cmp_ge_u32 s{S_J}, 14")
    K.branch("s_cbranch_scc1 L_a1")
    vm0 = K.vm
    issue_to(8, -1)
    issue_to(8 + LA0, -1)
    K.label("L_a1")
    if fine: stamp("A_i1")
    K(f"s_load_dword s{S_E}, {sp(P_WS)}, {WS_EPOCH}")
    for t in range(2, 7): rotstep(t)
    mksrd(R_WS, P_WS, WS_SIZE); mksrd(R_OUT, P_OUT, 2048*896)
    p2setup()
    K(f"s_mov_b32 s{S_UP}, 0"); K(f"s_mov_b32 s{S_UP+1}, -1")
    K(f"s_mov_b32 s{S_L28}, 0x10000000"); K(f"s_mov_b32 s{S_L28+1}, 0x10000000")
    xfrag_addr(A_AX)
    lanepart()
    K(f"v_lshl_add_u32 v{t0}, v{t2}, 3, v{t3}"); K(f"v_lshl_add_u32 v{A_TR}, v{t0}, 6, v{t4}")
    K(f"v_lshl_add_u32 v{t0}, v{t2}, 2, v{t3}"); K(f"v_mul_u32_u24 v{t1}, 56, v{t0}"); K(f"v_add_u32 v{t1}, v{t1}, v{t4}"); K(f"v_add_u32 v{A_PH}, {L_PHI}, v{t1}")
    K(f"v_lshlrev_b32 v{A_L4}, 2, v{V_LANE}")
    K(f"s_lshl_b32 s{T}, s{S_A}, 10"); K(f"s_add_u32 s{T}, s{T}, {WS_RPF}"); K(f"v_and_b32 v{A_PA}, 7, v{V_LANE}"); K(f"v_lshl_add_u32 v{A_PA}, v{A_PA}, 7, s{T}")
    K(f"s_mul_i32 s{S_RS}, s{S_J}, {3*28672}"); K(f"s_mul_i32 s{S_P3}, s{S_A}, 7168"); K(f"s_add_u32 s{S_RS}, s{S_RS}, s{S_P3}"); K(f"s_add_u32 s{S_RS}, s{S_RS}, {WS_WQ}")
    K("s_waitcnt lgkmcnt(0)")
    settag()
    K(f"s_cmp_lt_u32 s{S_J}, 14")
    K.branch("s_cbranch_scc1 L_a2")
    sv = K.vm
    K(f"s_mul_i32 s{T}, s{S_A}, 3072"); K(f"s_add_u32 s{T}, s{T}, {L_K}")
    K("s_barrier")
    for t in range(7):
        K(f"s_lshr_b32 s{TD}, s{S_CHO+t}, 5"); K(f"s_add_u32 s{TD}, s{TD}, s{S_XB}")
        if t < 6: K(f"s_add_u32 m0, s{S_M0}, {16384*t}")
        else: K(f"s_add_u32 m0, s{S_M0}, s{T}")
        for q in range(4): K(f"buffer_load_dwordx4 v{A_XD+q}, {srd(R_X)}, s{TD} offen offset:{1024*q} lds")
        if t == rb2: K("s_barrier")
    K("s_waitcnt vmcnt(0)")
    for t in range(7):
        if t == 4: shift(range(A_AX, A_AX + 4), 65536)
        if t == 6:
            K(f"s_sub_u32 s{T}, s{T}, 65536")
            for k in range(4): K(f"v_add_u32 v{A_AX+k}, s{T}, v{A_AX+k}")
        for ksl in range(4): K(f"ds_read_b128 {vr(V_X + 16*t + 4*ksl, 4)}, v{A_AX+ksl} offset:{(t % 4) * 16384 if t < 6 else 0}")
        if t % 2 == 1: K("s_waitcnt lgkmcnt(4)")
    K("s_waitcnt lgkmcnt(0)")
    stamp("A_b6")
    vpoll_issue(A_PA)
    K.branch("s_branch L_a3")
    K.label("L_a2")
    K.vm = sv
    if fine: stamp("A_setup")
    tkx = {}
    def g_panel(p, lds):
        def step(q):
            def f():
                if q % 4 == 0: K(f"s_add_u32 s{TD}, s{S_RS}, {28672*p + (q // 4)*4096}"); K(f"s_add_u32 m0, s{S_P3}, {lds + (q // 4)*4096}")
                tkx[p] = K(f"buffer_load_dwordx4 v{V_L16}, {srd(R_WS)}, s{TD} offen offset:{1024*(q%4)} sc1 lds")
            return f
        return [step(q) for q in range(7)]
    for t in range(7):
        if ke and t == 5: tkp = vpoll_issue(A_PA)
        issue_to(8*(t+1) + (LA0 if t == 0 else LA), t - 1)
        shift(range(A_AX, A_AX + 4), SH[t])
        if t == 5 and not ke:
            assert pos[0] == len(ilist)
            tkp = vpoll_issue(A_PA)
        if t == 6 and ke:
            vpoll_check(tkp, A_PA)
            run(g_panel(1, L_K)[:ke])
        if fine: stamp(f"A{t}a")
        K.wait_vm(tk_stage[t])
        if fine: stamp(f"A{t}b")
        if t < 6:
            if t >= 2: K("s_waitcnt lgkmcnt(4)")
            K("s_barrier")
        else: arrive(C_S)
        if t in (0, 4, 6): stamp(f"A_b{t}")
        for ksl in range(4): K(f"ds_read_b128 {vr(V_X + 16*t + 4*ksl, 4)}, v{A_AX+ksl} offset:{(t % 2) * 32768}")
    if ke:
        K.branch("s_branch L_a4")
        sv = K.vm
        K.label("L_a3")
        vpoll_check(K.vm, A_PA)
        run(g_panel(1, L_K)[:ke])
        K.vm = sv
        if ke == 7: tkx[1] = None
        K.label("L_a4")
        tk_k0 = K.vm
        arrive(C_E)
        run(g_panel(1, L_K)[ke:] + g_panel(2, L_V))
        if ke == 7: tkx[1] = tk_k0
    else:
        assert tkp == K.vm
        K.label("L_a3")
        arrive(C_E)
        vpoll_check(tkp, A_PA)
        stamp("rp_seen")
        run(g_panel(1, L_K) + g_panel(2, L_V))
    K(f"v_add_u32 v{A_PA}, 4096, v{A_PA}")
    tkp = vpoll_issue(A_PA)
    stamp("kv_issued")
    K(f"s_mov_b32 s{S_K}, {f2u(L2E):#x}"); K(f"s_mov_b32 s{S_K+1}, {f2u(L2E):#x}")
    VPH, VB = V_W + 24, V_W + 16
    for s in range(2):
        for r in range(2): K(f"ds_read_b64_tr_b16 {vr(VPH + 4*s + 2*r, 2)}, v{A_PH} offset:{(16*s + 8*r)*56}")
    K(f"s_lshl_b32 s{T}, s{S_A}, 11"); K(f"s_lshl_b32 s{T+1}, s{S_J}, 13"); K(f"s_add_u32 s{S_HB}, s{T+1}, s{T}"); K(f"s_add_u32 s{S_FL}, s{S_HB}, {WS_KVF}"); K(f"s_lshl_b32 s{S_PE}, s{S_MT}, 7"); K(f"s_add_u32 s{S_PE}, s{S_PE}, s{S_FL}"); K(f"s_add_u32 s{S_HB}, s{S_HB}, {WS_KVP}")
    FL_K = (S_PE, 0, 16)
    K(f"s_lshl_b32 s{T}, s{S_MT}, 2"); K(f"s_add_u32 s{T}, s{T}, s{S_A}")
    K(f"s_lshr_b32 s{T+1}, s{T}, 1"); K(f"s_lshl_b32 s{T+1}, s{T+1}, 2"); K(f"s_lshr_b32 s{T+2}, s{S_J}, 2"); K(f"s_add_u32 s{T+1}, s{T+1}, s{T+2}"); K(f"s_lshl_b32 s{T+1}, s{T+1}, 10"); K(f"s_add_u32 s{S_FL2}, s{T+1}, {WS_OF}")
    K(f"s_lshl_b32 s{T}, s{T}, 4"); K(f"s_add_u32 s{T}, s{T}, s{S_J}")
    K(f"s_lshl_b32 s{S_OB}, s{T}, 11"); K(f"s_add_u32 s{S_OB}, s{S_OB}, {WS_O}")
    K(f"s_lshl_b32 s{T+2}, s{T}, 7"); K(f"s_add_u32 s{S_XB}, s{T+2}, {WS_G - 128}")
    IDR = [26, 27, 28, 29, V_PHI, V_PHI+1, V_PHI+2, V_PHI+3]
    K(f"v_and_b32 v{t0}, 31, v{V_LANE}"); K(f"v_lshrrev_b32 v{t1}, 5, v{V_LANE}"); K(f"v_lshlrev_b32 v{t1}, 2, v{t1}")
    K(f"v_sub_u32 v{t0}, v{t0}, v{t1}")
    K(f"v_and_b32 v{t1}, 1, v{V_LANE}"); K(f"v_lshlrev_b32 v{t1}, 4, v{t1}"); K(f"v_mov_b32 v{t2}, 0x3f80"); K(f"v_lshlrev_b32 v{t1}, v{t1}, v{t2}")
    K(f"v_and_b32 v{t0}, -2, v{t0}")
    for s in range(2):
        for q in range(4): K(f"v_cmp_eq_u32 {sp(T+2*q)}, {16*s + 8*(q // 2) + 2*(q % 2)}, v{t0}")
        for q in range(4): K(f"v_cndmask_b32 v{IDR[4*s+q]}, 0, v{t1}, {sp(T+2*q)}")
    if aw2: K(f"s_cmp_eq_u32 s{S_ACT}, 1"); K(f"s_cselect_b32 s{R_W2+2}, s{R_W2+2}, 0")
    if aw2 in (1, 3):
        await_(C_E, 8, 1)
        run(g_w2(0))
        K.wait_vm(tkx[2]); arrive(C_0)
        run(g_w2(1))
        if qd < 0: run(g_panel(0, L_Q))
    else: K.wait_vm(tkx[1] if kf else tkx[2]); arrive(C_0)
    stamp("kv_landed0")
    if aw2 == 1: K.wait_vm(tk_r[1]); arrive(C_B)
    await_(C_0, 4, 1)
    K(f"v_cndmask_b32 v{VPH+6}, v{VPH+6}, 0, {UPM}"); K(f"v_cndmask_b32 v{VPH+7}, v{VPH+7}, 0, {UPM}")
    if not kf:
        await_(C_G if gw >= 0 else C_E, 4 if gw >= 0 else 8, 1)
        vpoll_check(tkp, A_PA)
    stamp("kv_start")

    def gemm_qkv(panels, hook=None):
        nb = len(panels) * 4
        D = 3 if len(panels) == 2 else 6
        tk = {}
        for n, (off, acc, sw) in enumerate(panels): K(f"v_add_u32 v{A_AX+n}, {off}, v{A_TR}")
        def rd(ks, n):
            t, ksl = ks // 4, ks % 4
            b = V_W + nb * (ks % D)
            if ksl == 0: K(f"v_add_u32 v{A_AD + n}, s{S_CHO+t}, v{A_AX+n}")
            for r in range(2):
                tk[ks] = K(f"ds_read_b64_tr_b16 {vr(b + 4*n + 2*r, 2)}, v{A_AD + n} offset:{(16*ksl + 4*r)*64}")
        for k in range(D):
            for n in range(len(panels)): rd(k, n)
        for ks in range(28):
            K.wait_lg(tk[ks])
            b = V_W + nb * (ks % D)
            for n, (off, acc, sw) in enumerate(panels):
                wv, xv = b + 4*n, V_X + 4*ks
                if sw: mfma(acc, xv, wv, "0" if ks == 0 else None, x_m16 & 4)
                else: mfma(acc, wv, xv, "0" if ks == 0 else None, x_m16 & 4)
                if ks + D < 28: rd(ks + D, n)
            if hook: hook(ks)
    QP = V_W
    P = V_ACC
    def featmap():
        for e in range(8): K(f"v_cvt_pk_bf16_f32 v{QP+e}, v{V_ACC+2*e}, v{V_ACC+2*e+1}")
        mfma(P, VPH, QP, "0"); mfma(P, VPH + 4, QP + 4)
    def roundp(e):
        K(f"v_cvt_pk_bf16_f32 v{P+2*e+1}, v{P+2*e}, v{P+2*e+1}")
        K(f"v_lshlrev_b32 v{P+2*e}, 16, v{P+2*e+1}"); K(f"v_and_b32 v{P+2*e+1}, 0xffff0000, v{P+2*e+1}")
    def softmax(pk, rounded=False, part=3):
        if part & 1: softmax1(pk, rounded)
        if part & 2: softmax2(pk)
    EP, EN = V_P, V_P + 16
    def softmax1(pk, rounded):
        if rp and not rounded:
            for e in range(8): roundp(e)
        for e in range(4): K(f"v_cndmask_b32 v{P+12+e}, v{P+12+e}, v{P}, {UPM}")
        mx, mn = t0, t2
        K(f"v_max3_f32 v{mx}, v{P}, v{P+1}, v{P+2}"); K(f"v_min3_f32 v{mn}, v{P}, v{P+1}, v{P+2}")
        K(f"v_max3_f32 v{t1}, v{P+3}, v{P+4}, v{P+5}"); K(f"v_min3_f32 v{t3}, v{P+3}, v{P+4}, v{P+5}")
        for e in range(6, 14, 4):
            K(f"v_max3_f32 v{mx}, v{mx}, v{P+e}, v{P+e+1}"); K(f"v_min3_f32 v{mn}, v{mn}, v{P+e}, v{P+e+1}")
            K(f"v_max3_f32 v{t1}, v{t1}, v{P+e+2}, v{P+e+3}"); K(f"v_min3_f32 v{t3}, v{t3}, v{P+e+2}, v{P+e+3}")
        K(f"v_max3_f32 v{mx}, v{mx}, v{P+14}, v{P+15}"); K(f"v_min3_f32 v{mn}, v{mn}, v{P+14}, v{P+15}")
        K(f"v_max_f32 v{mx}, v{mx}, v{t1}"); K(f"v_min_f32 v{mn}, v{mn}, v{t3}")
        K(f"v_mov_b32 v{t1}, v{mx}"); K(f"v_mov_b32 v{t3}, v{mn}")
        K(f"v_permlane32_swap_b32 v{mx}, v{t1}"); K(f"v_permlane32_swap_b32 v{mn}, v{t3}")
        K(f"v_max_f32 v{mx}, v{mx}, v{t1}"); K(f"v_min_f32 v{mn}, v{mn}, v{t3}")
        K(f"v_mul_f32 v{mx}, s{S_K}, v{mx}"); K(f"v_mul_f32 v{mn}, s{S_K}, v{mn}")
        for e in range(0, 16, 2):
            if pk:
                K(f"v_pk_fma_f32 {vr(EP+e,2)}, {vr(P+e,2)}, {sp(S_K)}, {vr(mx,2)} op_sel_hi:[1,1,0] neg_lo:[0,0,1] neg_hi:[0,0,1]")
                K(f"v_pk_fma_f32 {vr(EN+e,2)}, {vr(P+e,2)}, {sp(S_K)}, {vr(mn,2)} op_sel_hi:[1,1,0] neg_lo:[1,0,0] neg_hi:[1,0,0]")
            else:
                for x in (e, e + 1):
                    K(f"v_fma_f32 v{EP+x}, v{P+x}, s{S_K}, -v{mx}"); K(f"v_fma_f32 v{EN+x}, -v{P+x}, s{S_K}, v{mn}")
        for e in range(16):
            K(f"v_exp_f32 v{EP+e}, v{EP+e}"); K(f"v_exp_f32 v{EN+e}, v{EN+e}")
    def softmax2(pk):
        S = V_W
        for n, E in enumerate((EP, EN)):
            padd(S+4*n, E, E+2, pk); padd(S+4*n+2, E+12, E+14, pk)
        for n, E in enumerate((EP, EN)):
            padd(S+4*n, S+4*n, E+4, pk)
            K(f"v_cndmask_b32 v{S+4*n+2}, v{S+4*n+2}, 0, {UPM}"); K(f"v_cndmask_b32 v{S+4*n+3}, v{S+4*n+3}, 0, {UPM}")
        for n, E in enumerate((EP, EN)):
            padd(S+4*n, S+4*n, E+6, pk); padd(S+4*n+2, S+4*n+2, E+8, pk)
        for n, E in enumerate((EP, EN)): padd(S+4*n, S+4*n, E+10, pk)
        for n in range(2): padd(S+4*n, S+4*n, S+4*n+2, pk)
        K(f"v_add_f32 v{t0}, v{S}, v{S+1}"); K(f"v_add_f32 v{t2}, v{S+4}, v{S+5}")
        K(f"v_mov_b32 v{t1}, v{t0}"); K(f"v_mov_b32 v{t3}, v{t2}")
        K(f"v_permlane32_swap_b32 v{t0}, v{t1}"); K(f"v_permlane32_swap_b32 v{t2}, v{t3}")
        K(f"v_add_f32 v{t0}, v{t0}, v{t1}"); K(f"v_add_f32 v{t2}, v{t2}, v{t3}")
        K(f"v_rcp_f32 v{t0}, v{t0}"); K(f"v_rcp_f32 v{t2}, v{t2}")
        K(f"v_cndmask_b32 v{t1}, v{t0}, 0, {UPM}"); K(f"v_cndmask_b32 v{t3}, v{t2}, 0, {UPM}")
        for e in range(0, 16, 2):
            pscale(EP+e, t0 if e < 12 else t1, pk); pscale(EN+e, t2 if e < 12 else t3, pk)
        for e in range(8):
            K(f"v_cvt_pk_bf16_f32 v{V_PHI+e}, v{EP+2*e}, v{EP+2*e+1}"); K(f"v_cvt_pk_bf16_f32 v{V_PHI+8+e}, v{EN+2*e}, v{EN+2*e+1}")

    if aw2 == 2: pend.extend(g_w2(0) + g_w2(1))
    if qd >= 0: pend.extend(g_panel(0, L_Q))
    def hook(ks):
        if aw2 == 3:
            if ks == 1: K.wait_vm(tk_r[1]); arrive(C_B)
            if ks == pa:
                await_(C_P, 4)
                pend.extend(g_w2(2) + g_w2(3))
            drip(2 if len(pend) > 27 - ks else 1)
        elif aw2 == 2:
            drip(1)
            if ks == cb: K.wait_vm(tk_r[1]); arrive(C_B)
        elif ks >= qd and (ks - qd) % 3 == 0: drip(1)
        if ks == 25: arrive(C_1)
    if kf:
        def hookk(ks):
            if ks == k1: vpoll_check(tkp, A_PA); arrive(C_P); await_(C_E, 8)
            if ks > k1 and ks % kd == 0: drip(1)
        gemm_qkv([(L_K, V_ACC, False)], hookk)
        await_(C_P, 4)
        side = []
        if sd:
            n0 = len(K.ins); softmax(False, False, 1)
            side = [i.text for i in K.ins[n0:] if i.op != "s_nop"]; del K.ins[n0:]
        f0 = 1 if sd else 4
        def hookv(ks):
            if ks == f0:
                for e in range(8): K(f"v_cvt_pk_bf16_f32 v{V_P+e}, v{V_ACC+2*e}, v{V_ACC+2*e+1}")
            if ks == f0 + (1 if sd else 2): mfma(P, VPH, V_P, "0"); mfma(P, VPH + 4, V_P + 4)
            if ks % kd == 0 or len(pend) > (27 - ks) // kd: drip(1)
            if ks == kb and aw2 == 2: K.wait_vm(tk_r[1]); arrive(C_B)
            if rp and not sd and 12 <= ks < 20: roundp(ks - 12)
            if sd and ks >= 6:
                for _ in range(sd if ks < 27 else 999):
                    if side: K(side.pop(0))
            if ks == 22: arrive(C_1)
        gemm_qkv([(L_V, V_ACC + 16, True)], hookv)
    else:
        gemm_qkv([(L_K, V_ACC, False), (L_V, V_ACC + 16, True)], hook)
        featmap()
    assert not pend
    for e in range(4): K(f"v_mov_b32 v{V_W+8+e}, v{V_PHI+e}")
    IDR[4] = V_W + 8
    stamp("kv_gemm")
    K(f"v_mov_b32 v{t4}, 0x3f803f80")
    for e in range(8): K(f"v_cvt_pk_bf16_f32 v{VB+e}, v{V_ACC+16+2*e}, v{V_ACC+16+2*e+1}")
    for e in range(8): K(f"v_cndmask_b32 v{VB+e}, v{VB+e}, v{t4}, {sp(S_L28)}")
    softmax(pkk, kf, 2 if (kf and sd) else 3)
    stamp("sm_k")
    if aw2 == 3: K.wait_vm(tk_r[3]); arrive(C_B2)
    TP, TN = V_P, V_P + 16
    mfma(TP, V_PHI, IDR[0], "0"); mfma(TP, V_PHI + 4, IDR[4])
    mfma(TN, V_PHI + 8, IDR[0], "0"); mfma(TN, V_PHI + 12, IDR[4])
    await_(C_1, 4)
    if f2: stamp("kv_a")
    K(f"s_lshl_b32 s{T}, s{S_A}, 13"); K(f"s_add_u32 s{T}, s{T}, {L_KVS}"); K(f"v_add_u32 v{t0}, s{T}, v{V_L16}")
    K(f"s_lshl_b32 s{T}, s{S_A}, 11"); K(f"s_add_u32 s{T}, s{T}, {L_KVS}"); K(f"v_add_u32 v{t1}, s{T}, v{V_L16}")
    for e in range(8): K(f"v_cvt_pk_bf16_f32 v{V_PHI+e}, v{TP+2*e}, v{TP+2*e+1}")
    mfma(V_ACC, V_PHI, VB, "0"); mfma(V_ACC, V_PHI + 4, VB + 4)
    for e in range(8): K(f"v_cvt_pk_bf16_f32 v{V_PHI+8+e}, v{TN+2*e}, v{TN+2*e+1}")
    mfma(V_ACC + 16, V_PHI + 8, VB, "0"); mfma(V_ACC + 16, V_PHI + 12, VB + 4)
    for b in range(8): K(f"ds_write_b128 v{t0}, {vr(V_ACC+4*b,4)} offset:{1024*b}")
    K.wait_vm(tkx[0])
    arrive(C_2)
    if f2: stamp("kv_b")
    await_(C_2, 4)
    if f2: stamp("kv_c")
    for hb in range(2):
        for g in range(4): K(f"ds_read_b128 {vr(V_P+16*hb+4*g,4)}, v{t1} offset:{8192*g + 1024*hb}")
    arrive(C_3)
    if f2: stamp("kv_d")
    for hb in range(2):
        K(f"s_waitcnt lgkmcnt({5 - 4*hb})")
        B = V_P + 16*hb
        for e in (0, 2): padd(B+e, B+e, B+4+e, pkq); padd(B+8+e, B+8+e, B+12+e, pkq)
        for e in (0, 2): padd(B+e, B+e, B+8+e, pkq)
        if am and hb == 1: K(f"s_bitcmp1_b32 s{S_A}, 0"); K("s_cselect_b32 exec_hi, 0, -1")
        for e in range(x_at): K(f"buffer_atomic_add_f32 v{B+e}, v{A_L4}, {srd(R_WS)}, s{S_HB} offen offset:{1024*hb + 256*e}")
        if am and hb == 1: K("s_mov_b32 exec_hi, -1")
    stamp("kv_st")
    def hook(ks):
        if ks == 22: arrive(C_Q)
        if ks == kvf:
            K("s_waitcnt vmcnt(0)")
            signal(S_FL, 16)
            stamp("kv_pub")
    gemm_qkv([(L_Q, V_ACC, False)], hook)
    K(f"v_cvt_pk_bf16_f32 v{t0}, v{V_ACC+12}, v{V_ACC+12}")
    featmap()
    K(f"v_lshlrev_b32 v{t0}, 16, v{t0}")
    K(f"v_mul_f32 v{t0}, s{S_K}, v{t0}"); K(f"v_exp_f32 v{t0}, -v{t0}"); K(f"v_add_f32 v{t0}, 1.0, v{t0}"); K(f"v_rcp_f32 v{t0}, v{t0}")
    K(f"v_cvt_pk_bf16_f32 v{t0}, v{t0}, v{t0}"); K(f"v_lshlrev_b32 v{A_G}, 16, v{t0}")
    K("s_mov_b32 exec_lo, 0")
    K(f"buffer_store_dword v{A_G}, v{A_L4}, {srd(R_WS)}, s{S_XB} offen sc1")
    K("s_mov_b32 exec_lo, -1")
    stamp("q_gemm")
    softmax(pkq)
    stamp("sm_q")
    poll_issue(FL_K)
    poll_check(FL_K)
    stamp("kv_seen")
    for e in range(8): K(f"buffer_load_dword v{V_P+e}, v{A_L4}, {srd(R_WS)}, s{S_HB} offen offset:{256*e} sc1")
    F = V_W
    K(f"s_lshl_b32 s{T}, s{S_A}, 10"); K(f"v_add_u32 v{t1}, {L_KVF}, v{V_L16}"); K(f"v_add_u32 v{t0}, s{T}, v{t1}")
    K("s_waitcnt vmcnt(0)")
    stamp("kv_landed")
    for e in range(4): K(f"v_cvt_pk_bf16_f32 v{F+e}, v{V_P+2*e}, v{V_P+2*e+1}")
    K(f"ds_write_b128 v{t0}, {vr(F,4)}")
    arrive(C_4)
    await_(C_4, 4)
    if f2: stamp("o_a")
    for f in range(4): K(f"ds_read_b128 {vr(F+4*f,4)}, v{t1} offset:{1024*f}")
    N = V_ACC
    for f in range(4):
        K(f"s_waitcnt lgkmcnt({3-f})")
        mfma(N, F + 4*f, V_PHI + 4*f, "0" if f == 0 else None)
    K(f"v_cvt_pk_bf16_f32 v{t0}, v{N+12}, v{N+12}")
    for e in range(8): K(f"v_cvt_pk_bf16_f32 v{F+e}, v{N+2*e}, v{N+2*e+1}")
    K(f"v_lshlrev_b32 v{t0}, 16, v{t0}")
    K(f"v_add_f32 v{t0}, {f2u(1e-6):#x}, v{t0}")
    K(f"v_cvt_pk_bf16_f32 v{t0}, v{t0}, v{t0}"); K(f"v_lshlrev_b32 v{t0}, 16, v{t0}")
    K(f"v_rcp_f32 v{t0}, v{t0}")
    for e in range(4):
        K(f"v_lshlrev_b32 v{N+2*e}, 16, v{F+e}"); K(f"v_and_b32 v{N+2*e+1}, 0xffff0000, v{F+e}")
    K(f"v_mul_f32 v{t0}, v{t0}, v{A_G}"); K(f"v_mov_b32 v{t1}, v{t0}")
    for e in range(4, 8):
        K(f"v_lshlrev_b32 v{N+2*e}, 16, v{F+e}"); K(f"v_and_b32 v{N+2*e+1}, 0xffff0000, v{F+e}")
    K(f"v_permlane32_swap_b32 v{t1}, v{t0}")
    for e in range(0, 16, 2): pscale(N+e, t0, pkq)
    for e in range(8): K(f"v_cvt_pk_bf16_f32 v{F+e}, v{N+2*e}, v{N+2*e+1}")
    K(f"v_cndmask_b32 v{F+6}, v{F+6}, 0, {UPM}"); K(f"v_cndmask_b32 v{F+7}, v{F+7}, 0, {UPM}")
    K(f"buffer_store_dwordx4 {vr(F,4)}, v{V_L16}, {srd(R_WS)}, s{S_OB} offen sc1")
    K(f"buffer_store_dwordx4 {vr(F+4,4)}, v{V_L16}, {srd(R_WS)}, s{S_OB} offen offset:1024 sc1")
    if f2: stamp("o_b")
    K("s_waitcnt vmcnt(0)")
    signal(S_FL2, 7)
    stamp("o_pub")
    K(f"s_cmp_eq_u32 s{S_ACT}, 0")
    K.branch("s_cbranch_scc1 L_fin")
    K.branch("s_branch L_red")

    K.label("L_M")
    if prioM: K(f"s_setprio {prioM}")
    K("s_waitcnt lgkmcnt(0)")
    if stamps: K(f"v_writelane_b32 v{V_STAMP}, s{S_ST}, {STAMP_IDS.setdefault('start', len(STAMP_IDS))}")
    if wso: K(f"s_add_u32 s{P_WS}, s{P_WS}, {wso << 20}"); K(f"s_addc_u32 s{P_WS+1}, s{P_WS+1}, 0")
    K(f"s_load_dword s{S_E}, {sp(P_WS)}, {WS_EPOCH}")
    mksrd(R_T, P_PHI, 16*1568)
    K(f"s_mul_i32 s{T}, s{S_J}, 1568"); K(f"s_mul_i32 s{T+1}, s{S_A}, 400"); K(f"s_add_u32 s{T}, s{T}, s{T+1}"); K(f"s_add_u32 m0, s{T+1}, {L_PHI}")
    K("s_mov_b64 exec, 0x1ffffff")
    K(f"buffer_load_dwordx4 v{V_L16}, {srd(R_T)}, s{T} offen lds")
    K("s_mov_b64 exec, -1")
    K(f"v_mov_b32 v{V_CNT}, {L_CNT}")
    K(f"v_mov_b32 v{t0}, 0"); K(f"v_lshl_add_u32 v{t1}, v{V_LANE}, 2, v{V_CNT}"); K(f"ds_write_b32 v{t1}, v{t0}")
    K(f"s_cmp_lt_u32 s{S_J}, 14")
    K.branch("s_cbranch_scc1 L_mset")
    vm_m = K.vm
    RB = 96
    K0 = S_XB
    mksrd(R_T, P_WQKV, 448*2688)
    K(f"s_lshl_b32 s{S_FL}, s{S_MT}, 1"); K(f"s_add_u32 s{S_FL}, s{S_FL}, s{S_J}"); K(f"s_sub_u32 s{S_FL}, s{S_FL}, 14")
    K(f"s_mul_i32 s{K0}, s{S_FL}, 14"); K(f"s_lshl_b32 s{T+5}, s{S_A}, 1"); K(f"s_add_u32 s{K0}, s{K0}, s{T+5}")
    K(f"v_lshrrev_b32 v{t0}, 3, v{V_LANE}"); K(f"v_bfe_u32 v{t1}, v{V_LANE}, 2, 1"); K(f"v_and_b32 v{t2}, 3, v{V_LANE}")
    K(f"v_mul_u32_u24 v{t3}, 56, v{t0}"); K(f"v_mul_u32_u24 v{t4}, 2688, v{t1}"); K(f"v_add_u32 v{t3}, v{t3}, v{t4}")
    K(f"v_lshl_add_u32 v{t3}, v{t2}, 4, v{t3}")
    K(f"s_mul_i32 s{T+5}, s{K0}, 2688"); K(f"v_lshlrev_b32 v{t4}, 1, v{t1}"); K(f"s_lshl_b32 s{T+6}, s{K0}, 1")
    tkl = {}
    if fine: stamp("rp_0")
    K(f"s_add_u32 s{T+7}, s{T+5}, {8*2688}"); K(f"s_cmp_eq_u32 s{S_A}, 3"); K(f"s_cselect_b32 s{T+7}, 0x7000000, s{T+7}"); K(f"s_cselect_b32 s{S_CH}, s{T+7}, 512")
    def rp_load(q): tkl[q] = K(f"buffer_load_dwordx4 {vr(RB+4*q,4)}, v{t3}, {srd(R_T)}, s{T+5 if q < 6 else T+7} offen offset:{448*(q%6)}")
    for q in (2, 3, 4, 5, 8, 9, 10, 11): rp_load(q)
    mksrd(R_X, P_GATE, 896)
    K(f"buffer_load_ushort v{RB+48}, v{t4}, {srd(R_X)}, s{T+6} offen"); K(f"buffer_load_ushort v{RB+49}, v{t4}, {srd(R_X)}, s{T+6} offen offset:16")
    for q in (0, 1, 6, 7): rp_load(q)
    mksrd(R_WS, P_WS, WS_SIZE)
    K(f"s_mov_b32 s{T+6}, 86016"); K(f"v_mul_lo_u32 v{RB+50}, v{t0}, s{T+6}"); K(f"v_and_b32 v{t1}, 7, v{V_LANE}")
    K(f"v_lshl_add_u32 v{RB+50}, v{t1}, 4, v{RB+50}")
    K(f"v_cmp_eq_u32 vcc, 3, v{t2}")
    K(f"s_lshl_b32 s{K0}, s{K0}, 6"); K(f"s_add_u32 s{K0}, s{K0}, {WS_WQ}")
    def rp_store(q):
        n, p, hg = q // 6, (q % 6) // 2, q % 2; b = RB + 4*q
        K.wait_vm(tkl[q])
        K(f"v_cndmask_b32 v{b+2}, v{b+2}, v{RB+48+n}, vcc" if p == 0 else f"v_cndmask_b32 v{b+2}, v{b+2}, 0, vcc")
        K(f"v_cndmask_b32 v{b+3}, v{b+3}, 0, vcc")
        K(f"s_add_u32 s{T+6}, s{K0}, {p*28672 + hg*8*86016}")
        if n: K(f"s_add_u32 s{T+6}, s{T+6}, s{S_CH}")
        return K(f"buffer_store_dwordx4 {vr(b,4)}, v{RB+50}, {srd(R_WS)}, s{T+6} offen sc1")
    for e in range(4): K(f"v_mov_b32 v{RB+52+e}, 0")
    K(f"s_lshl_b32 s{T+5}, s{S_FL}, 2"); K(f"s_add_u32 s{T+5}, s{T+5}, s{S_A}"); K(f"s_lshl_b32 s{T+7}, s{T+5}, 12"); K(f"s_lshl_b32 s{T+5}, s{T+5}, 10")
    K(f"s_add_u32 s{T+5}, s{T+5}, {WS_KVP}"); K(f"s_add_u32 s{T+7}, s{T+7}, {WS_CN}"); K(f"v_lshlrev_b32 v{t0}, 7, v{V_LANE}")
    K(f"buffer_store_dwordx4 {vr(RB+52,4)}, v{V_L16}, {srd(R_WS)}, s{T+5} offen sc1")
    K("s_mov_b32 exec_hi, 0")
    K(f"buffer_store_dword v{RB+52}, v{t0}, {srd(R_WS)}, s{T+7} offen sc1")
    K("s_mov_b32 exec_hi, -1")
    K(f"s_lshl_b32 s{S_FL}, s{S_FL}, 7"); K(f"s_add_u32 s{S_FL}, s{S_FL}, {WS_RPF}"); K(f"s_add_u32 s{S_FL2}, s{S_FL}, 4096")
    K(f"s_cmp_eq_u32 s{S_A}, 3"); K(f"s_cselect_b32 s{S_FL}, s{S_FL}, 0x7000000"); K(f"s_cselect_b32 s{S_FL2}, s{S_FL2}, 0x7000000")
    K("s_waitcnt lgkmcnt(0)")
    settag()
    for q in (2, 3, 4, 5, 8, 9, 10, 11): tk1 = rp_store(q)
    for q in (0, 1, 6, 7): rp_store(q)
    if fine: stamp("rp_st")
    K("s_barrier")
    K.wait_vm(tk1)
    K("s_barrier")
    flag(S_FL)
    stamp("rp_pub")
    K("s_waitcnt vmcnt(1)")
    arrive(C_5); await_(C_5, 4)
    flag(S_FL2)
    arrive(C_E); arrive(C_G)
    K("s_setprio 0")
    K.vm = vm_m
    K.label("L_mset")
    if allpf:
        mksrd(R_X, P_X, 2048*896); mksrd(R_W1, P_W1, 448*3584)
        K(f"s_lshl_b32 s{T+3}, s2, 2"); K(f"s_add_u32 s{T+3}, s{T+3}, s{S_A}")
        K(f"s_mul_i32 s{T}, s{T+3}, {14*128}"); K(f"s_mul_i32 s{T+1}, s{T+3}, {13*128}"); K(f"v_lshlrev_b32 v{t0}, 7, v{V_LANE}")
        K("s_mov_b64 exec, 0x3fff")
        if allpf & 1: K(f"buffer_load_dword v{V_POLL}, v{t0}, {srd(R_X)}, s{T} offen")
        K("s_mov_b64 exec, 0x1fff")
        if allpf & 2: K(f"buffer_load_dword v{V_POLL}, v{t0}, {srd(R_W1)}, s{T+1} offen")
        K("s_mov_b64 exec, -1")
    if spf:
        K(f"s_lshl_b32 s{T+3}, s2, 2"); K(f"s_add_u32 s{T+3}, s{T+3}, s{S_A}")
        K(f"s_mul_i32 s{T}, s{T+3}, {12*128 + 32}"); K(f"s_mul_i32 s{T+1}, s{T+3}, {3*128 + 8}")
        for q in range(13): K(f"s_load_dword s{S_CNT}, {sp(P_W2)}, s{T} offset:{min(128*q, 12*128 + 28)}")
        K("s_waitcnt lgkmcnt(10)")
        for q in range(4): K(f"s_load_dword s{S_CNT}, {sp(P_WO)}, s{T+1} offset:{min(128*q, 3*128 + 4)}")
    mksrd(R_WS, P_WS, WS_SIZE); mksrd(R_WO, P_WO, 448*896); mksrd(R_OUT, P_OUT, 2048*896)
    p2setup()
    K(f"s_mul_i32 s{T}, s{S_ROW}, {112*1024}"); K(f"s_add_u32 s{T}, s{T}, {0x7000000 if x_noh else WS_H}")
    K(f"s_lshl_b32 s{S_HB}, s{T+4}, 12"); K(f"s_add_u32 s{S_HB}, s{S_HB}, s{T}")
    K(f"s_lshl_b32 s{S_HB3}, s{T+2}, 12"); K(f"s_add_u32 s{S_HB3}, s{S_HB3}, s{T}")
    BF1, BF2, BONE = M_AR + (72 if m16 else 80), 128, 124
    for r in list(range(BF1, BF1 + (32 if m16 else 16))) + list(range(BONE, BF2 + 8)): K(f"v_mov_b32 v{r}, 0")
    K(f"v_lshlrev_b32 v{t0}, 1, v{V_LANE}")
    K("s_mov_b32 exec_hi, 0")
    K(f"v_mov_b32 v{BONE}, 0x3f80")
    mksrd(R_T, P_B1, 3584)
    if m16:
        K(f"v_bfe_u32 v{t1}, v{V_LANE}, 2, 1"); K(f"v_bfe_u32 v{t2}, v{V_LANE}, 3, 1"); K(f"v_and_b32 v{t3}, 3, v{V_LANE}")
        K(f"v_lshl_add_u32 v{t3}, v{t1}, 3, v{t3}"); K(f"v_lshl_add_u32 v{t3}, v{t2}, 2, v{t3}"); K(f"v_lshlrev_b32 v{t3}, 1, v{t3}")
        K("s_mov_b32 exec_lo, 0xffff")
        for p in range(8): K(f"buffer_load_ushort v{BF1+4*p}, v{t3}, {srd(R_T)}, s{S_W1B} offen offset:{32*p}")
        K("s_mov_b32 exec_lo, -1")
    else:
        for p in range(4): K(f"buffer_load_ushort v{BF1+4*p}, v{t0}, {srd(R_T)}, s{S_W1B} offen offset:{64*p}")
    mksrd(R_T, P_B2, 896)
    K(f"s_lshl_b32 s{T}, s{S_CT}, 7"); K(f"s_lshl_b32 s{T+1}, s{S_A}, 10"); K(f"s_add_u32 s{T}, s{T}, s{T+1}")
    for p in range(2): tk_b2 = K(f"buffer_load_ushort v{BF2+4*p}, v{t0}, {srd(R_T)}, s{T} offen offset:{64*p}")
    K("s_mov_b32 exec_hi, -1")
    K(f"s_lshl_b32 s{T}, s{S_ROW}, 1"); K(f"s_add_u32 s{T}, s{T}, s{S_A}")
    K(f"s_lshl_b32 s{T+1}, s{S_CT}, 7")
    K(f"s_lshl_b32 s{S_PE}, s{T}, 11"); K(f"s_add_u32 s{S_PE}, s{S_PE}, s{T+1}"); K(f"s_add_u32 s{S_PE}, s{S_PE}, {WS_HF}")
    K(f"s_lshl_b32 s{S_PO}, s{T}, 10"); K(f"s_add_u32 s{S_PO}, s{S_PO}, s{T+1}"); K(f"s_add_u32 s{S_PO}, s{S_PO}, {WS_OF}")
    K(f"s_lshl_b32 s{T}, s{S_ROW}, 4"); K(f"s_lshl_b32 s{T+1}, s{S_A}, 2"); K(f"s_add_u32 s{S_OB}, s{T+1}, s{T}")
    FL_E, FL_L, FL_O = (S_PE, 0, 6), (S_PE, 1024, 8), (S_PO, 0, 8)
    K(f"s_lshl_b32 s{T}, s{S_MT}, 2"); K(f"s_add_u32 s{T}, s{T}, s{S_A}"); K(f"s_mul_i32 s{S_RS}, s{T}, 112")
    K(f"s_lshl_b32 s{T+1}, s{S_J}, 3"); K(f"s_add_u32 s{S_RS}, s{S_RS}, s{T+1}"); K(f"s_lshl_b32 s{S_RS}, s{S_RS}, 10"); K(f"s_add_u32 s{S_RS}, s{S_RS}, {WS_H}")
    K(f"s_lshr_b32 s{T}, s{T}, 1"); K(f"s_lshl_b32 s{T}, s{T}, 13"); K(f"s_add_u32 s{T}, s{T}, {WS_HF}")
    K(f"s_mul_i32 s{T+1}, s{S_J}, {74*8}"); K(f"s_and_b32 s{S_FL}, s{T+1}, 0xf800"); K(f"s_add_u32 s{S_FL}, s{S_FL}, s{T}")
    K(f"s_add_u32 s{T+1}, s{T+1}, {37*8}"); K(f"s_and_b32 s{S_FL2}, s{T+1}, 0xf800"); K(f"s_add_u32 s{S_FL2}, s{S_FL2}, s{T}"); K(f"s_add_u32 s{S_FL2}, s{S_FL2}, 1024")
    K(f"s_lshr_b32 s{T+1}, {(1 << 3) | (1 << 10)}, s{S_J}"); K(f"s_and_b32 s{T+1}, s{T+1}, 1"); K(f"s_lshl_b32 s{T+1}, s{T+1}, 10"); K(f"s_add_u32 s{S_FL}, s{S_FL}, s{T+1}")
    K(f"s_cmp_ge_u32 s{S_J}, 14"); K(f"s_cselect_b32 s{S_FL2}, 0x7000000, s{S_FL2}")
    K(f"v_add_u32 v{M_L16B}, {112*1024}, v{V_L16}")
    MP = M_AR + 40
    K(f"v_lshlrev_b32 v{MP}, 7, v{V_LANE}")
    K(f"s_lshl_b32 s{T+3}, s2, 2"); K(f"s_add_u32 s{T+3}, s{T+3}, s{S_A}")
    K(f"s_mul_i32 s{S_XB}, s{T+3}, {13*128}"); K(f"s_lshl_b32 s{S_M0}, s{T+3}, 9")
    def mall_pf():
        K("s_mov_b64 exec, 0x1fff")
        K(f"buffer_load_dword v{V_POLL}, v{MP}, {srd(R_W2)}, s{S_XB} offen" + ["", " sc1", " sc0 sc1", " nt"][mpa])
        K("s_mov_b64 exec, 15")
        K(f"buffer_load_dword v{V_POLL}, v{MP}, {srd(R_WO)}, s{S_M0} offen" + ["", " sc1", " sc0 sc1", " nt"][mpa])
        K("s_mov_b64 exec, -1")
    def mall_again():
        K(f"s_xor_b32 s{T+3}, s2, 1"); K(f"s_lshl_b32 s{T+3}, s{T+3}, 2"); K(f"s_add_u32 s{T+3}, s{T+3}, s{S_A}")
        K(f"s_mul_i32 s{S_XB}, s{T+3}, {13*128}"); K(f"s_lshl_b32 s{S_M0}, s{T+3}, 9")
        mall_pf()
    if mpf == 1: mall_pf()
    if tlb:
        l = newl("tlb")
        K(f"s_cmp_lg_u32 s{S_A}, 1")
        K.branch(f"s_cbranch_scc1 {l}")
        K(f"v_lshlrev_b32 v{t0}, {tlb}, v{V_LANE}")
        K(f"buffer_load_dword v{V_POLL}, v{t0}, {srd(R_WS)}, 0 offen offset:2048"); K.vm -= 1
        K(f"buffer_load_dword v{V_POLL}, v{t0}, {srd(R_OUT)}, 0 offen"); K.vm -= 1
        K.label(l)
    if m16:
        NAD = 10
        MX, MW = 136, 138
        K(f"v_and_b32 v{t0}, 15, v{V_LANE}"); K(f"v_lshrrev_b32 v{t1}, 4, v{V_LANE}"); K(f"v_bfe_u32 v{t2}, v{V_LANE}, 1, 3"); K(f"v_xor_b32 v{t2}, v{t1}, v{t2}")
        K(f"v_lshlrev_b32 v{t0}, 7, v{t0}"); K(f"v_lshl_add_u32 v{t0}, v{t2}, 4, v{t0}"); K(f"s_lshl_b32 s{T}, s{S_A}, 12")
        K(f"v_add_u32 v{MX}, s{T}, v{t0}"); K(f"v_xor_b32 v{MX+1}, 64, v{MX}")
        K(f"v_bfe_u32 v{t3}, v{V_LANE}, 2, 2"); K(f"v_lshl_add_u32 v{t0}, v{t1}, 3, v{t3}"); K(f"v_lshlrev_b32 v{t0}, 8, v{t0}"); K(f"v_lshl_add_u32 v{t0}, v{t3}, 6, v{t0}")
        K(f"v_and_b32 v{t2}, 1, v{t1}"); K(f"v_lshl_add_u32 v{t0}, v{t2}, 5, v{t0}")
        K(f"v_and_b32 v{t2}, 1, v{V_LANE}"); K(f"v_lshl_add_u32 v{t0}, v{t2}, 4, v{t0}"); K(f"v_bfe_u32 v{t2}, v{V_LANE}, 1, 1"); K(f"v_lshl_add_u32 v{t0}, v{t2}, 3, v{t0}")
        K(f"v_add_u32 v{MW}, 16384, v{t0}")
        for p in range(1, 8): K(f"v_xor_b32 v{MW+p}, {32*p}, v{MW}")
        lanepart()
    else:
        NAD = 8
        xfrag_addr(M_AX)
        lanepart()
        K(f"v_lshl_add_u32 v{t0}, v{t2}, 3, v{t3}"); K(f"v_lshl_add_u32 v{t0}, v{t0}, 8, v{t4}"); K(f"v_lshl_add_u32 v{t0}, v{t3}, 6, v{t0}")
        K(f"v_add_u32 v{M_AW}, 16384, v{t0}")
        for p in range(1, 4): K(f"v_xor_b32 v{M_AW+p}, {64*p}, v{M_AW}")
    AB = M_AB
    K(f"v_lshl_add_u32 v{t0}, v{t2}, 2, v{t3}"); K(f"v_lshl_add_u32 v{t0}, v{t0}, 7, v{t4}"); K(f"v_bfe_u32 v{t1}, v{V_LANE}, 3, 1"); K(f"v_lshl_add_u32 v{t0}, v{t1}, 6, v{t0}")
    K(f"v_add_u32 v{AB}, s{S_M02}, v{t0}"); K(f"v_xor_b32 v{AB+1}, 64, v{AB}")
    K(f"v_add_u32 v{AB+2}, 65536, v{AB}"); K(f"v_add_u32 v{AB+3}, 65536, v{AB+1}")
    K(f"v_lshlrev_b32 v{t0}, 9, v{t2}"); K(f"v_sub_u32 v22, v{AB+2}, v{t0}"); K(f"v_sub_u32 v23, v{AB+3}, v{t0}")
    box = {}
    K(f"s_cmp_ge_u32 s{S_J}, 14")
    K.branch("s_cbranch_scc1 L_nof")
    vm_nof = K.vm
    K("s_waitcnt lgkmcnt(0)")
    settag()
    if fine: stamp("M_rdy")
    WR, XR = M_BH, M_BH + 4*G
    tk = {}
    def rdg(g):
        ks, p = g // 4, g % 4
        t, ksl = ks // 4, ks % 4
        uo = (t % 2) * 32768
        if p == 0 and ksl == 0:
            shift(range(M_AX, M_AX + NAD), SH[t])
            if t == 3: K.wait_vm(tk_b2)
            if t < 6: K("s_barrier")
            else:
                l = newl("s6")
                K.wait_lg(box['cs'])
                K(f"v_cmp_ne_u32 vcc, 4, v{t4}")
                K(f"s_cbranch_vccz {l}")
                lgs = K.lg
                await_(C_S, 4)
                K.lg = lgs
                K.raw(f"{l}:")
        if m16:
            k2, ct_ = g // 8, g % 8
            if ct_ == 0:
                for tt_ in range(2): K(f"ds_read_b128 {vr(XR + 8*(k2 % 2) + 4*tt_, 4)}, v{MX + k2 % 2} offset:{uo + 2048*tt_}")
            for r in range(2):
                tk[g] = K(f"ds_read_b64_tr_b16 {vr(WR + 4*(g % G) + 2*r, 2)}, v{MW+ct_} offset:{uo + (32*(k2 % 2) + 4*r)*256}")
            return
        if p == 0: K(f"ds_read_b128 {vr(XR + 4*(ks % 3), 4)}, v{M_AX+ksl} offset:{uo}")
        for r in range(2):
            tk[g] = K(f"ds_read_b64_tr_b16 {vr(WR + 4*(g % G) + 2*r, 2)}, v{M_AW+p} offset:{uo + (16*ksl + 4*r)*256}")
    for g in range(G): rdg(g)
    for g in range(112):
        K.wait_lg(tk[g])
        if m16:
            for tt_ in range(2):
                d = vr(M_ACC + 8*(g % 8) + 4*tt_, 4)
                K(f"v_mfma_f32_16x16x32_bf16 {d}, {vr(WR + 4*(g % G), 4)}, {vr(XR + 8*((g // 8) % 2) + 4*tt_, 4)}, {'0' if g < 8 else d}")
            if 52 <= g < 60:
                for tt_ in range(2):
                    d = vr(M_ACC + 8*(g % 8) + 4*tt_, 4)
                    K(f"v_mfma_f32_16x16x32_bf16 {d}, {vr(BF1 + 4*(g % 8), 4)}, {vr(BONE, 4)}, {d}")
        else:
            mfma(M_ACC + 16*(g % 4), WR + 4*(g % G), XR + 4*((g // 4) % 3), "0" if g < 4 else None, x_m16 & 1)
            if 52 <= g < 56: mfma(M_ACC + 16*(g % 4), BF1 + 4*(g % 4), BONE)
        if g + G < 112: rdg(g + G)
        if g + G == 112: arrive(C_E)
        if g + G + 3 == 96: box['cs'] = K(f"ds_read_b32 v{t4}, v{V_CNT} offset:{C_S}")
        if mpf > 1 and g == mpf: mall_pf()
        if mpf2 and g == mpf2: mall_again()
        if hpt and g == hpt: K(f"buffer_load_dword v{V_POLL}, v{MP}, {srd(R_WS)}, s{S_RS} offen sc1")
    stamp("ffn1")
    K(f"s_setprio {prioG}")
    tk = {}
    def rdb(ks, part=3):
        r, ksl = ks // 4, ks % 4
        b = M_BH + 8 * (ks % 8)
        u = RUNIT[r]
        if ksl == 0 and r >= (4 if aw2 == 3 else 2) and part & 1: K.wait_vm(tk_r[r])
        for pp in range(2):
            for h in range(2):
                if not part & (1 << pp): continue
                if r < 7:
                    tk[ks] = K(f"ds_read_b64_tr_b16 {vr(b + 4*pp + 2*h, 2)}, v{AB + pp + (2 if u >= 2 else 0)} offset:{(u%2)*32768 + (16*ksl + 8*h)*128}")
                else:
                    hh, sx = (ks % 4) // 2, ks % 2
                    tk[ks] = K(f"ds_read_b64_tr_b16 {vr(b + 4*pp + 2*h, 2)}, v{(22 if (sx == 1 and h == 1) else AB + 2) + pp} offset:{(u%2)*32768 + (28*hh + 16*sx + 8*h)*128}")
    def pull():
        await_(C_B, 4)
        for e in range(12): K(f"v_mov_b32 v{BF1+e}, v{BONE+e}")
        for ks in range(8):
            if ks >= 3: K.wait_lg(tk[ks - 3])
            rdb(ks)
        arrive(C_P)
    cc = -2.0 * 0.7978845608028654 * 1.4426950408889634
    K(f"v_mov_b32 v{t0}, {f2u(cc):#x}"); K(f"v_mov_b32 v{t1}, 1.0"); K(f"s_mov_b32 s{S_K}, {f2u(cc*0.044715):#x}"); K(f"s_mov_b32 s{S_K+1}, {f2u(cc*0.044715):#x}")
    tkh = {}
    for g in range(8):
        a = M_ACC + 8*g; tt = M_AR + 8*(g % 2); o = M_AR + 48 + 4*g
        if aw2 == 4 and g == md:
            await_(C_E, 8)
            K(f"s_cmp_eq_u32 s{S_ACT}, 1"); K(f"s_cselect_b32 s{R_W2+2}, s{R_W2+2}, 0")
            pend.extend(g_w2(0) + g_w2(1))
        if x_nog: pass
        elif g < pkg:
            for e in range(0, 8, 2): K(f"v_pk_mul_f32 {vr(tt+e,2)}, {vr(a+e,2)}, {vr(a+e,2)}")
            for e in range(0, 8, 2): K(f"v_pk_fma_f32 {vr(tt+e,2)}, {vr(tt+e,2)}, {sp(S_K)}, {vr(t0,2)} op_sel_hi:[1,1,0]")
            drip(1)
            for e in range(0, 8, 2): K(f"v_pk_mul_f32 {vr(tt+e,2)}, {vr(a+e,2)}, {vr(tt+e,2)}")
            for e in range(8):
                K(f"v_exp_f32 v{tt+e}, v{tt+e}")
                if e == 2: drip(1)
            for e in range(0, 8, 2): K(f"v_pk_add_f32 {vr(tt+e,2)}, {vr(tt+e,2)}, {vr(t0,2)} op_sel:[0,1] op_sel_hi:[1,1]")
            drip(1)
            for e in range(8): K(f"v_rcp_f32 v{tt+e}, v{tt+e}")
            drip(1 if g < 7 else 99)
            for e in range(0, 8, 2): K(f"v_pk_mul_f32 {vr(tt+e,2)}, {vr(a+e,2)}, {vr(tt+e,2)}")
        else:
            for e in range(8): K(f"v_mul_f32 v{tt+e}, v{a+e}, v{a+e}")
            for e in range(8): K(f"v_fma_f32 v{tt+e}, v{tt+e}, s{S_K}, v{t0}")
            drip(1)
            for e in range(8): K(f"v_mul_f32 v{tt+e}, v{a+e}, v{tt+e}")
            for e in range(8):
                K(f"v_exp_f32 v{tt+e}, v{tt+e}")
                if e == 2: drip(1)
            for e in range(8): K(f"v_add_f32 v{tt+e}, 1.0, v{tt+e}")
            drip(1)
            for e in range(8): K(f"v_rcp_f32 v{tt+e}, v{tt+e}")
            drip(1 if g < 7 else 99)
            for e in range(8): K(f"v_mul_f32 v{tt+e}, v{a+e}, v{tt+e}")
        for e in ((0, 2, 1, 3) if m16 else range(4)): K(f"v_cvt_pk_bf16_f32 v{o+e}, v{tt+2*e}, v{tt+2*e+1}")
        if m16:
            for e in range(2): K(f"v_permlane16_swap_b32 v{o+e}, v{o+e+2}")
        if g == gw: arrive(C_G)
        if aw2 == 3 and g == gp: pull()
        if (g + 1) % sb == 0:
            K("s_setprio 3")
            for x in range(g + 1 - sb, g + 1):
                if x == 4: K(f"s_add_u32 s{S_RS}, s{S_RS}, 4096")
                tkh[x] = K(f"buffer_store_dwordx4 {vr(M_AR + 48 + 4*x,4)}, v{V_L16}, {srd(R_WS)}, s{S_RS} offen offset:{1024*(x%4)} " + ["sc1", "sc1 nt", "sc0 sc1"][hst])
            if g < 7: K(f"s_setprio {prioG}")
    stamp("gelu_v")
    await_(C_0, 4)
    K.wait_vm(tkh[3]); signal(S_FL, 7)
    stamp("gelu")
    K(f"s_cmp_eq_u32 s{S_ACT}, 1")
    K.branch("s_cbranch_scc1 L_p2")
    K("s_waitcnt vmcnt(0)")
    signal(S_FL2, 7)
    def l2warm(first, n):
        K(f"s_lshr_b32 s{T}, s2, 3"); K(f"s_and_b32 s{T}, s{T}, 3"); K(f"s_lshl_b32 s{T}, s{T}, 2"); K(f"s_add_u32 s{T}, s{T}, s{S_A}"); K(f"s_lshl_b32 s{T}, s{T}, 13")
        K(f"v_lshlrev_b32 v{t0}, 7, v{V_LANE}")
        for k in range(n):
            K(f"s_add_u32 s{T+1}, s{T}, {(first + 1024*k)*128}")
            K(f"buffer_load_dword v{t1}, v{t0}, {srd(R_W2)}, s{T+1} offen")
    if l2w & 1:
        l2warm(0, 13)
        for k in range(4):
            K(f"s_add_u32 s{T+1}, s{T}, {1024*k*128}")
            K(f"buffer_load_dword v{t1}, v{t0}, {srd(R_WO)}, s{T+1} offen")
    K.branch("s_branch L_fin")
    K.label("L_nof")
    K.vm = vm_nof
    if hlp:
        if hw == 1: await_(C_E, 8, 2)
        if hw == 2: await_(C_0, 4, 2)
        if mpf > 1: mall_pf()
        K(f"s_mul_i32 s{T}, s{S_CT}, {111*128}")
        K("s_mov_b32 exec_hi, 0xffffff")
        for r in range(h0, 7):
            for q in range(2):
                K(f"s_add_u32 s{T+1}, s{S_W2B3 if r == 3 else S_W2B}, {(0 if r == 3 else (2*r % 7)*64*896) + q*56*128}"); K(f"s_add_u32 s{T+1}, s{T+1}, s{T}")
                K(f"buffer_load_dword v{V_POLL}, v{MP}, {srd(R_W2)}, s{T+1} offen")
                K(f"s_waitcnt vmcnt({hd})")
        K(f"s_lshl_b32 s{T}, s{S_CT}, 2"); K(f"s_add_u32 s{T}, s{T}, s{S_A}"); K(f"s_mul_i32 s{T}, s{T}, {196*128}")
        K("s_mov_b32 exec_hi, 0x1ffff")
        for q in range(4):
            K(f"buffer_load_dword v{V_POLL}, v{MP}, {srd(R_WO)}, s{T} offen"); K(f"s_add_u32 s{T}, s{T}, {49*128}")
            K(f"s_waitcnt vmcnt({hd})")
        K("s_mov_b64 exec, -1")
        stamp("hlp_done")
        K.branch("s_branch L_fin")
    if nfe and mpf > 1: mall_pf()
    if mpf == -2: await_(C_E, 8, 2)
    if mpf == -1: await_(C_0, 4, 2)
    if mpf < 0:
        K(f"s_lshl_b32 s{T+3}, s2, 2"); K(f"s_add_u32 s{T+3}, s{T+3}, s{S_A}")
        K(f"s_mul_i32 s{T}, s{T+3}, {98*128}"); K(f"s_mul_i32 s{T+1}, s{T+3}, {25*128}")
        K(f"buffer_load_dword v{V_POLL}, v{MP}, {srd(R_W2)}, s{T} offen")
        K(f"s_add_u32 s{T}, s{T}, {64*128}")
        K("s_mov_b32 exec_hi, 3")
        K(f"buffer_load_dword v{V_POLL}, v{MP}, {srd(R_W2)}, s{T} offen")
        K("s_mov_b64 exec, 0x1ffffff")
        K(f"buffer_load_dword v{V_POLL}, v{MP}, {srd(R_WO)}, s{T+1} offen")
        K("s_mov_b64 exec, -1")
    await_(C_0, 4, 2)
    K("s_waitcnt lgkmcnt(0)")
    settag()
    if mpf > 1 and not nfe: mall_pf()
    if l2w & 2: l2warm(0, 13)
    K("s_waitcnt vmcnt(0)")
    if aw2 == 3: pull()
    if aw2 == 4:
        await_(C_E, 8); run(g_w2(0) + g_w2(1)); K("s_waitcnt vmcnt(0)")

    K.label("L_p2")
    tk_h = K.vm
    def g_wo(hf):
        def step(q):
            def f():
                if q == 0:
                    K(f"s_mul_i32 s{TD}, s{S_A}, {112*896}"); K(f"s_lshl_b32 s{TD+1}, s{S_CT}, 7"); K(f"s_add_u32 s{TD}, s{TD}, s{TD+1}")
                    if hf: K(f"s_add_u32 s{TD}, s{TD}, {56*896}")
                    K(f"s_add_u32 m0, s{S_M02}, {U[RUNIT[7+hf]]}")
                if q == 4: K(f"s_add_u32 s{TD}, s{TD}, {32*896}"); K(f"s_add_u32 m0, s{S_M02}, {U[RUNIT[7+hf]] + 4096}")
                x = K(f"buffer_load_dwordx4 v{V_D2+q%4}, {srd(R_WO)}, s{TD} offen offset:{1024*(q%4)} lds") if 7 < x_skipB else K.vm - 8
                if q == 6: tk_r[7+hf] = x
            return f
        return [step(q) for q in range(7)]
    tk_a = {}
    def lda(ks, part=3):
        b = M_AR + 8 * (ks % NA); r = ks // 4
        if part & 1:
            if ks % 4 == 0: K(f"s_add_u32 s{T+7}, s{S_HB3 if r == 3 else S_HB}, {0 if r == 3 else (2*r % 7)*4096}")
            K(f"buffer_load_dwordx4 {vr(b,4)}, v{V_L16}, {srd(R_WS)}, s{T+7} offen offset:{1024*(ks%4)} sc1")
        if part & 2: tk_a[ks] = K(f"buffer_load_dwordx4 {vr(b+4,4)}, v{M_L16B}, {srd(R_WS)}, s{T+7} offen offset:{1024*(ks%4)} sc1")
    for t2_ in range(2):
        for pp in range(2): mfma(M_ACC + 32*t2_ + 16*pp, (BF1 + 4 if aw2 == 3 else BF2) + 4*pp, BF1 if aw2 == 3 else BONE, "0")
    g0, g1, g2, g3 = g_w2(0), g_w2(1), g_w2(2), g_w2(3)
    if aw2 == 3:
        K.wait_vm(tk_h - 1)
        signal(S_FL2, 7)
        K(f"s_setprio 0")
        stamp("h_pub1")
        poll_issue(FL_E)
        poll_check(FL_E)
        stamp("hE_seen")
        for ks in range(pre): lda(ks)
        g3 = []
    elif aw2:
        K.wait_vm(tk_h - 1)
        signal(S_FL2, 7)
        K(f"s_setprio 0")
        stamp("h_pub1")
        if hfirst:
            poll_issue(FL_E)
            if not x_noE: poll_check(FL_E)
            stamp("hE_seen")
            for ks in range(pre): lda(ks)
        if aw2 != 4: await_(C_B, 4)
        stamp("B_seen")
        if jit:
            for ks in range(8):
                if ks >= 3: K.wait_lg(tk[ks - 3])
                rdb(ks)
        else:
            for ks in range(3): rdb(ks)
            K.wait_lg(tk[0]); rdb(3)
            K.wait_lg(tk[3])
            for q in range(8):
                g2[q]()
                if q < 4:
                    if q == 3: K.wait_lg(tk[4])
                    rdb(4 + q)
        K("s_waitcnt lgkmcnt(0)")
        if not hfirst:
            poll_issue(FL_E)
            run(g3); g3 = []
            poll_check(FL_E)
            stamp("hE_seen")
            for ks in range(pre): lda(ks)
    else:
        await_(C_E, 8)
        for q in range(8):
            g0[q]()
        K.wait_vm(tk_h - 1)
        signal(S_FL2, 7)
        K(f"s_setprio 0")
        stamp("h_pub1")
        poll_issue(FL_E)
        run(g1)
        poll_check(FL_E)
        stamp("hE_seen")
        if jit:
            for ks in range(8):
                if ks < pre: lda(ks)
                if ks % 4 == 0: K.wait_vm(tk_r[ks // 4])
                if ks >= 3: K.wait_lg(tk[ks - 3])
                rdb(ks)
            assert pre <= 8
        else:
            for ks in range(4): lda(ks)
            K.wait_vm(tk_r[0])
            for ks in range(4):
                if ks == 3: K.wait_lg(tk[0])
                rdb(ks); lda(4 + ks)
            K.wait_vm(tk_r[1]); K.wait_lg(tk[3])
            for q in range(8):
                g2[q]()
                if q < 4:
                    if q == 3: K.wait_lg(tk[4])
                    rdb(4 + q)
        K("s_waitcnt lgkmcnt(0)")
    stamp("p2_prep")
    poll_issue(FL_L)
    sched = []
    if jit:
        for k in range(pre, 28):
            for p in (1, 2): sched.append((k, max(k - NA + 1, c0 + 1 if k >= 12 else 0), lambda k=k, p=p: lda(k, p), 0))
        early = {2: 0, 3: 0, 4: c3 + 1, 5: 12, 6: 16, 7: cq + 1, 8: 20}
        for r in range(2, 9):
            for q, f in enumerate(g_w2(r) if r < 7 else g_wo(r - 7)): sched.append((4*r - bl + q // 2 + 0.5, early[r], f, r))
        sched.sort(key=lambda z: z[0])
    else:
        for ks in range(pre if aw2 else 8, 12): pend.extend([lambda ks=ks: lda(ks, 1), lambda ks=ks: lda(ks, 2)])
        pend.extend(g3)
    def jdrip(ks):
        first = min([z[3] for z in sched if z[3]], default=0)
        for n, (key, e, f, grp) in enumerate(sched):
            if e <= ks and grp in (0, first):
                f(); sched.pop(n); return
    def step(ks, side):
        K.wait_vm(tk_a[ks])
        if ks >= 8: K.wait_lg(tk[ks])
        a = M_AR + 8 * (ks % NA); b = M_BH + 8 * (ks % 8)
        n = 0
        for t2_ in range(2):
            for pp in range(2):
                if not (x_nomf and ks < 28): mfma(M_ACC + 32*t2_ + 16*pp, b + 4*pp, a + 4*t2_, None, x_m16 & 2)
                side(n); n += 1
    nxt = [12]
    def hstep(ks):
        def side(n):
            if n < 2 and ks + 3 >= 8: rdb(ks + 3, 1 << n)
            if jit and sched:
                jdrip(ks)
                if n < rate - 4: jdrip(ks)
            else: drip(2 if len(pend) > 8 else 1)
        step(ks, side)
    def ldo(ks, part):
        b = M_AR + 8 * (ks % NA)
        if part == 0:
            K(f"buffer_load_dword v{t2}, v{t3}, {srd(R_WS)}, s{T+3} offen sc1")
            box['g'] = K(f"buffer_load_dword v{t3}, v{t3}, {srd(R_WS)}, s{T+3} offen offset:2048 sc1")
        if part == 1:
            if ks == 32: K(f"s_add_u32 s{T+4}, s{T+4}, 4096")
            K(f"buffer_load_dwordx4 {vr(b,4)}, v{V_L16}, {srd(R_WS)}, s{T+4} offen offset:{1024*(ks%4)} sc1")
        if part == 2: tk_a[ks] = K(f"buffer_load_dwordx4 {vr(b+4,4)}, v{M_L16B}, {srd(R_WS)}, s{T+4} offen offset:{1024*(ks%4)} sc1")
    olist = lambda: [lambda: ldo(0, 0)] + [lambda k=k, p=p: ldo(k, p) for k in range(28, 36) for p in (1, 2)]
    for ks in range(oc + 1):
        hstep(ks)
        if ks == c0:
            if not x_noE: poll_check(FL_L)
            stamp("hL_seen")
        if ks == 4 and aw2 == 3: await_(C_B2, 4)
        if ks == c3:
            await_(C_3, 4)
            if not jit: pend.extend(g_w2(4))
        if ks == cq:
            await_(C_Q, 4)
            if not jit: pend.extend(g_wo(0))
        if not jit:
            while ks >= c0 and nxt[0] <= ks + NA and nxt[0] < 28:
                pend.extend([lambda k=nxt[0]: lda(k, 1), lambda k=nxt[0]: lda(k, 2)]); nxt[0] += 1
            if ks == 11: pend.extend(g_w2(5))
            if ks == 15: pend.extend(g_w2(6))
            if ks == 19: pend.extend(g_wo(1))
        if ks in (3, 11, 19): stamp(f"p2_k{ks}")
        if ks == oc - 2: poll_issue(FL_O)
    while sched: jdrip(99)
    assert not pend and oc >= 22
    K(f"v_and_b32 v{t3}, 31, v{V_LANE}"); K(f"v_lshlrev_b32 v{t3}, 2, v{t3}")
    K(f"s_lshl_b32 s{T+3}, s{S_OB}, 7"); K(f"s_add_u32 s{T+3}, s{T+3}, {WS_G}")
    K(f"s_lshl_b32 s{T+4}, s{S_OB}, 11"); K(f"s_add_u32 s{T+4}, s{T+4}, {WS_O}")
    K(f"v_add_u32 v{M_L16B}, 32768, v{V_L16}")
    K(f"v_add_u32 v{V_D2}, s{S_M02}, v{V_L16}")
    for q in range(1, 4): K(f"v_xor_b32 v{V_D2+q}, {64*q}, v{V_D2}")
    K("s_waitcnt lgkmcnt(0)")
    K(f"s_cmp_lg_u32 s{PD[0]}, {FL_O[2]}" if not x_noo else "s_cmp_lg_u32 0, 0")
    K.branch("s_cbranch_scc1 L_olate")
    sv, sl = K.vm, K.lg
    stamp("o_early")
    pend.extend(olist())
    for ks in range(oc + 1, 28): hstep(ks)
    drip(99)
    ev, el = K.vm, K.lg
    K.branch("s_branch L_ojoin")
    K.label("L_olate")
    K.vm, K.lg = sv, sl
    for ks in range(oc + 1, 28): hstep(ks)
    poll_issue(FL_O)
    poll_check(FL_O)
    stamp("o_late")
    run(olist())
    assert (ev, el) == (K.vm, K.lg)
    K.label("L_ojoin")
    stamp("p2_h_done")
    tk_g = box['g']
    K.wait_vm(tk_g)
    if f2: stamp("t_g")
    K(f"v_sub_f32 v{t4}, 1.0, v{t2}"); K(f"v_sub_f32 v{t5}, 1.0, v{t3}")
    K(f"v_cvt_pk_bf16_f32 v{t4}, v{t4}, v{t5}"); K(f"v_and_b32 v{t5}, 0xffff0000, v{t4}"); K(f"v_lshlrev_b32 v{t4}, 16, v{t4}")
    if tl:
        for e in range(0, 32, 2): pscale(M_ACC+e, t4, True)
        for ks in range(28, 36):
            K.wait_vm(tk_a[ks] - 1); K.wait_lg(tk[ks])
            a = M_AR + 8 * (ks % NA); b = M_BH + 8 * (ks % 8)
            for pp in range(2):
                mfma(M_ACC + 16*pp, b + 4*pp, a)
                if ks + 3 < 36: rdb(ks + 3, 1 << pp)
                pscale(M_ACC + 32 + 4*(ks - 28) + 2*pp, t5, False)
        K.wait_vm(tk_a[35])
        for ks in range(28, 36):
            a = M_AR + 8 * (ks % NA); b = M_BH + 8 * (ks % 8)
            for pp in range(2):
                mfma(M_ACC + 32 + 16*pp, b + 4*pp, a + 4)
                n = 2*(ks - 28) + pp - 6
                if 0 <= n < 8: K(f"ds_write_b128 v{V_D2 + n%4}, {vr(M_ACC+4*n,4)} offset:{1024*n}")
        for b in range(8): K(f"ds_write_b128 v{V_D2 + b%4}, {vr(M_ACC+32+4*b,4)} offset:{32768 + 1024*b}")
    else:
        for e in range(0, 64, 2): pscale(M_ACC+e, t4 if e < 32 else t5, True)
        for ks in range(28, 36):
            def side(n):
                if n < 2 and ks + 3 < 36: rdb(ks + 3, 1 << n)
            step(ks, side)
        if f2: stamp("t_mf")
        for t2_ in range(2):
            for b in range(8): K(f"ds_write_b128 v{V_D2 + b%4}, {vr(M_ACC+32*t2_+4*b,4)} offset:{32768*t2_ + 1024*b}")
    stamp("p2_done")

    K.label("L_red")
    K(f"v_and_b32 v{t1}, 7, v{V_LANE}"); K(f"v_lshrrev_b32 v{t3}, 3, v{V_LANE}")
    K(f"s_lshl_b32 s{T+1}, s{S_A}, 3"); K(f"v_add_u32 v{t0}, s{T+1}, v{t3}")
    K(f"v_and_b32 v{t2}, 3, v{V_LANE}"); K(f"v_lshlrev_b32 v{t2}, 2, v{t2}"); K(f"v_xor_b32 v{t0}, v{t0}, v{t2}")
    K(f"v_lshlrev_b32 v{t0}, 4, v{t0}"); K(f"v_lshl_add_u32 v{t0}, v{t1}, 10, v{t0}")
    K(f"s_lshr_b32 s{T+2}, s{S_W}, 2"); K(f"s_lshl_b32 s{T}, s{T+2}, 15"); K(f"v_add_u32 v{t0}, s{T}, v{t0}")
    K(f"v_mul_u32_u24 v{t3}, 896, v{t3}"); K(f"v_lshl_add_u32 v{t3}, v{t1}, 4, v{t3}")
    K(f"s_lshl_b32 s{T}, s{S_ROW}, 2"); K(f"s_add_u32 s{T}, s{T}, s{S_W}"); K(f"s_mul_i32 s{T}, s{T}, {8*896}"); K(f"s_lshl_b32 s{T+1}, s{S_CT}, 7"); K(f"s_add_u32 s{T+5}, s{T}, s{T+1}")
    K("s_waitcnt lgkmcnt(0)")
    K("s_barrier")
    if f2: stamp("t_bar")
    R = 160
    for q in range(4):
        K(f"ds_read_b128 {vr(R+8*q,4)}, v{t0} offset:{8192*q}")
        K(f"ds_read_b128 {vr(R+8*q+4,4)}, v{t0} offset:{8192*q + 512}")
    K("s_waitcnt lgkmcnt(4)")
    for e in range(0, 8, 2): padd(R+e, R+e, R+8+e, True)
    K("s_waitcnt lgkmcnt(0)")
    for e in range(0, 8, 2): padd(R+16+e, R+16+e, R+24+e, True)
    for e in range(0, 8, 2): padd(R+e, R+e, R+16+e, True)
    for e in range(4): K(f"v_cvt_pk_bf16_f32 v{R+e}, v{R+2*e}, v{R+2*e+1}")
    K(f"buffer_store_dwordx4 {vr(R,4)}, v{t3}, {srd(R_OUT)}, s{T+5} offen" + ["", " sc1", " nt", " sc0 sc1"][outm])
    if f2: stamp("t_st")
    K(f"s_xor_b32 s{T}, s2, 64"); K(f"s_or_b32 s{T}, s{T}, s{S_W}"); K(f"s_cmp_lg_u32 s{T}, 0")
    K.branch("s_cbranch_scc1 L_fin")
    K(f"s_mov_b32 s{T}, {WS_EPOCH}")
    flag(T)
    K.label("L_fin")
    if stamps:
        K("s_waitcnt vmcnt(0)")
        stamp("end")
        if probe is not None:
            i0 = STAMP_IDS.setdefault('start', len(STAMP_IDS)); i1 = STAMP_IDS.setdefault(probe, len(STAMP_IDS))
            K(f"v_readlane_b32 s{T}, v{V_STAMP}, {i0}"); K(f"v_readlane_b32 s{T+1}, v{V_STAMP}, {i1}")
            K("s_nop 4")
            K(f"s_cmp_eq_u32 s{T+1}, 0"); K(f"s_cselect_b32 s{T+1}, s{T}, s{T+1}")
            if pwg >= 0:
                K(f"s_cmp_lg_u32 s2, {pwg}")
                K.branch("s_cbranch_scc1 L_end")
            K.label("L_probe")
            K("s_sleep 2")
            K(f"s_memrealtime {sp(S_ST)}"); K("s_waitcnt lgkmcnt(0)")
            K(f"s_sub_u32 s{T+2}, s{S_ST}, s{T+1}"); K(f"s_cmp_lt_u32 s{T+2}, {pt}")
            K.branch("s_cbranch_scc1 L_probe")
            K.branch("s_branch L_end")
        K(f"s_lshl_b32 s{T}, s2, 3"); K(f"s_add_u32 s{T}, s{T}, s{S_W}"); K(f"s_lshl_b32 s{T}, s{T}, 8"); K(f"s_add_u32 s{T}, s{T}, {WS_STAMP}")
        K(f"v_lshlrev_b32 v{t0}, 2, v{V_LANE}")
        K(f"buffer_store_dword v{V_STAMP}, v{t0}, {srd(R_WS)}, s{T} offen")
    K.label("L_end")
    K("s_endpgm")
    K.raw(f".fill (28672 + 8192 * {1 if stamps else 0} - (L_end - {NAME})) / 4, 4, 0xbf800000")

    head = f"""; Fused gated mix of hedgehog linear attention and GELU FFN (emitted by a hand-written generator script)
; @launch grid=(256,1,1) block=(512,1,1) lds=163840
.amdgcn_target "amdgcn-amd-amdhsa--gfx950"
.text
.globl {NAME}
.p2align 8
.type {NAME},@function
"""
    tail = f""".section .rodata,"a"
.p2align 6
.amdhsa_kernel {NAME}
  .amdhsa_next_free_vgpr 256
  .amdhsa_next_free_sgpr 102
  .amdhsa_accum_offset 256
  .amdhsa_group_segment_fixed_size 0
  .amdhsa_kernarg_size 104
  .amdhsa_user_sgpr_count 2
  .amdhsa_user_sgpr_kernarg_segment_ptr 1
  .amdhsa_system_sgpr_workgroup_id_x 1
.end_amdhsa_kernel
"""
    return head + K.text() + tail

STAMP_IDS = {}
def parse_opts(argv):
    kw = {}
    for a in argv:
        if a.startswith("-D"):
            k, v = a[2:].split("="); kw[k] = int(v) if v.lstrip("-").isdigit() else v
    return kw
if __name__ == "__main__":
    out = sys.argv[1] if len(sys.argv) > 1 else "k.s"
    open(out, "w").write(gen(**parse_opts(sys.argv)))
```

```python
import sys, struct
from asmlib import Asm

NAME = "gated_mix__linear_kernel_hedgehog__dense_activation_gelu__prompt_kernel"
def f2u(x): return struct.unpack("<I", struct.pack("<f", x))[0]

WS_EPOCH = 0
WS_RPF   = 0x8000
WS_STAMP = 0x10000
WS_G     = 0xA0000
WS_WQ    = 0x100000
WS_KVP   = 0x280000
WS_O     = 0x480000
WS_H     = 0x680000
WS_CN    = 0x300000
WS_HF    = WS_CN
WS_OF    = WS_CN + 2048*128
WS_KVF   = WS_CN + 3072*128
WS_SIZE  = 0xE00000

U = [0, 32768, 65536, 98304, 131072]
L_K, L_V, L_Q = 98304, 126976, 65536
L_MISC = 155648
L_PHI, L_CNT, L_B2, L_B1 = L_MISC, L_MISC + 2048, L_MISC + 2560, L_MISC + 3072
L_KVS = U[3]
L_KVF = L_MISC + 4096
RUNIT = [0, 1, 0, 1, 3, 0, 1, 2, 3]
C_E, C_0, C_1, C_2, C_3, C_4, C_Q, C_G, C_B, C_S, C_5, C_P, C_B2 = 0, 4, 8, 12, 16, 20, 24, 28, 32, 36, 40, 44, 48

P_X, P_WQKV, P_PHI, P_WO, P_W1, P_B1, P_W2 = 16, 18, 20, 22, 26, 28, 30
P_B2, P_GATE, P_OUT, P_WS = 32, 34, 36, 40
R_X, R_W1, R_W2, R_WO, R_WS, R_OUT, R_T = 44, 48, 52, 56, 60, 64, 68
S_MT, S_J, S_W, S_A, S_FL2, S_TAG, S_CH, S_CNT = 72, 73, 74, 75, 76, 78, 77, 100
S_CHO = 80
S_M0 = 87
S_XB, S_W1B = 88, 89
S_T = 90
S_UP = 98
S_E = 42
S_H = S_J
S_CT, S_ROW, S_ACT = 43, 3, 101
S_K = 4
S_ST = 6
S_L28 = 24
S_FL = 8
S_HB, S_W2B, S_OB, S_HB3, S_W2B3, S_M02, S_RS = 9, 10, 11, 12, 13, 14, 15
S_PE, S_P3, S_PO = 34, 35, 38
PD = [16, 17, 18, 19, 20, 21, 22, 23, 26, 27, 28, 29, 30, 31, 32, 33]
def srd(r): return f"s[{r}:{r+3}]"
def sp(r): return f"s[{r}:{r+1}]"

V_LANE, V_L16, V_STAMP, V_TAG, V_POLL, V_CNT = 1, 2, 3, 4, 5, 6
V_T = 8
V_D2 = 18
A_PA, A_AX, A_AD, A_L4, A_PH, A_TR, A_G = 7, 14, 22, 24, 25, 30, 31
V_W, V_P, V_ACC, V_PHI, V_X = 32, 64, 96, 128, 144
A_XD, A_WD, A_QD, A_GW = 64, 68, 72, 16
M_L16B, M_AB = 7, 14
M_ACC, M_BH, M_AR = 24, 88, 152
M_AX, M_AW = 136, 140
NA = 13
def vr(a, n): return f"v[{a}:{a+n-1}]"
UPM = sp(S_UP)
L2E = 1.4426950408889634

def gen(stamps=False, spin=20000, rot1=9, codepf=True, slp=2, cyc=False, G=5, prioA=1, prioM=2, kvf=27, fine=False,
        pkq=0, pkk=1, LA=9, LA0=6, c0=2, mpf=60, outm=0, tlb=0, gw=-1, hf0=7, rpb=3, prioG=2, k6=4, qpf=1, sb=1, qd=0, probe=None, pwg=-1, pt=4000, aw2=2, pre=8, cb=22, pkg=2, rpa=0, f2=0, hfirst=1, early=0, oc=24, x_now2=0, x_noh=0, x_nomf=0, x_now1=0, rb2=0, gp=3, pa=10, x_at=4, c3=10, cq=19, spf=0, allpf=0, l2w=0, jit=0, bl=5, rate=4, x_m16=0, ra=2, rb=4, rc=2, rd=1, x_skipB=99, x_noo=0, x_nog=0, x_noE=0, md=2, hlp=0, hw=2, h0=0, hd=0, hh=0, tl=1, am=1, kf=1, wso=0, hpt=0, hst=0, k1=11, kd=2, kb=24, qfirst=0, rp=1, re=1, mpf2=0, mpa=0, nfe=1, m16=1, ke=0, sd=0, BD=3, own=0, ef=0):
    K = Asm()
    RUNIT = [0, 1, 0, 1, 0, 1, 0, 1, 0] if own else [0, 1, 0, 1, 3, 0, 1, 2, 3]
    T = S_T
    TD = T + 5
    t0, t1, t2, t3, t4, t5 = range(V_T, V_T + 6)
    def stamp(name):
        if not stamps: return
        if probe is not None and name != probe: return
        if cyc and name in ("rp_seen", "kv_issued", "q_gemm", "B_seen", "o_early", "o_late"): return
        K("s_waitcnt lgkmcnt(0)")
        K(f"s_memrealtime {sp(S_ST)}")
        if cyc: K(f"s_memtime s[0:1]")
        K("s_waitcnt lgkmcnt(0)")
        i = STAMP_IDS.setdefault(name, len(STAMP_IDS))
        K(f"v_writelane_b32 v{V_STAMP}, s{S_ST}, {i}")
        if cyc: K(f"v_writelane_b32 v{V_STAMP}, s0, {32 + i}")
    uid = [0]
    def newl(p): uid[0] += 1; return f"L_{p}{uid[0]}"
    def poll_issue(fl):
        K(f"s_load_dword s{PD[0]}, {sp(P_WS)}, s{fl[0]} offset:{fl[1]} glc")
    def poll_check(fl):
        l, d = newl("poll"), newl("polld")
        K(f"s_mov_b32 s{S_CNT}, {spin}")
        K.raw(f"{l}:")
        K("s_waitcnt lgkmcnt(0)")
        K(f"s_cmp_eq_u32 s{PD[0]}, {fl[2]}")
        K.branch(f"s_cbranch_scc1 {d}")
        K(f"s_sub_u32 s{S_CNT}, s{S_CNT}, 1")
        K(f"s_cbranch_scc1 {d}")
        if slp: K(f"s_sleep {slp}")
        poll_issue(fl)
        K(f"s_branch {l}")
        K.label(d)
    def signal(soff_reg, n):
        K(f"v_mov_b32 v{t5}, 1"); K(f"v_lshlrev_b32 v{V_POLL}, 7, v{V_LANE}")
        K(f"s_mov_b64 exec, {(1 << n) - 1}")
        K(f"buffer_atomic_add v{t5}, v{V_POLL}, {srd(R_WS)}, s{soff_reg} offen")
        K("s_mov_b64 exec, -1")
    def vpoll_issue(vaddr):
        return K(f"buffer_load_dword v{V_POLL}, v{vaddr}, {srd(R_WS)}, 0 offen sc1")
    def vpoll_check(tok, vaddr):
        l, d = newl("poll"), newl("polld")
        K(f"s_mov_b32 s{S_CNT}, {spin}")
        K.wait_vm(tok)
        K.label(l)
        K(f"v_cmp_ne_u32 vcc, s{S_TAG}, v{V_POLL}")
        K.branch(f"s_cbranch_vccz {d}")
        K(f"s_sub_u32 s{S_CNT}, s{S_CNT}, 1")
        K.branch(f"s_cbranch_scc1 {d}")
        K(f"s_sleep 10")
        K(f"buffer_load_dword v{V_POLL}, v{vaddr}, {srd(R_WS)}, 0 offen sc1"); K.vm -= 1
        K("s_waitcnt vmcnt(0)")
        K.branch(f"s_branch {l}")
        K.label(d)
    def flag(soff_reg):
        K("s_mov_b64 exec, 1")
        K(f"buffer_store_dword v{V_TAG}, v{V_LANE}, {srd(R_WS)}, s{soff_reg} offen sc1")
        K("s_mov_b64 exec, -1")
    def arrive(c):
        K(f"v_mov_b32 v{t5}, 1")
        K("s_mov_b64 exec, 1")
        K(f"ds_add_u32 v{V_CNT}, v{t5} offset:{c}")
        K("s_mov_b64 exec, -1")
    def await_(c, n, sleep=0):
        l, d = newl("aw"), newl("awd")
        K(f"s_mov_b32 s{S_CNT}, {spin * 8}")
        K.label(l)
        K(f"ds_read_b32 v{t5}, v{V_CNT} offset:{c}")
        K("s_waitcnt lgkmcnt(0)")
        K(f"v_cmp_ne_u32 vcc, {n}, v{t5}")
        K.branch(f"s_cbranch_vccz {d}")
        if sleep: K(f"s_sleep {sleep}")
        K(f"s_sub_u32 s{S_CNT}, s{S_CNT}, 1")
        K.branch(f"s_cbranch_scc0 {l}")
        K.label(d)
    def mksrd(r, p, nbytes):
        K(f"s_mov_b32 s{r}, s{p}"); K(f"s_and_b32 s{r+1}, s{p+1}, 0xffff")
        K(f"s_mov_b32 s{r+2}, {nbytes}"); K(f"s_mov_b32 s{r+3}, 0x20000")
    cnt16 = [0]
    def mfma(d, a, b, c=None, big=False):
        if x_m16 and big and c is None:
            cnt16[0] += 1
            o = 8 * ((cnt16[0] // 4) % 2)
            for q in range(2): K(f"v_mfma_f32_16x16x32_bf16 {vr(d+o+4*q,4)}, {vr(a,4)}, {vr(b,4)}, {vr(d+o+4*q,4)}")
            return
        cs = vr(d, 16) if c is None else c
        K(f"v_mfma_f32_32x32x16_bf16 {vr(d,16)}, {vr(a,4)}, {vr(b,4)}, {cs}")
    def padd(d, a, b, pk):
        if pk: K(f"v_pk_add_f32 {vr(d,2)}, {vr(a,2)}, {vr(b,2)}")
        else: K(f"v_add_f32 v{d}, v{a}, v{b}"); K(f"v_add_f32 v{d+1}, v{a+1}, v{b+1}")
    def pscale(d, r, pk):
        if pk: K(f"v_pk_mul_f32 {vr(d,2)}, {vr(d,2)}, {vr(r & ~1,2)} " + ("op_sel:[0,1] op_sel_hi:[1,1]" if r & 1 else "op_sel_hi:[1,0]"))
        else: K(f"v_mul_f32 v{d}, v{d}, v{r}"); K(f"v_mul_f32 v{d+1}, v{d+1}, v{r}")
    def settag():
        K(f"s_add_u32 s{S_TAG}, s{S_E}, 0x9E3779B9"); K(f"s_mov_b32 s{S_TAG+1}, s{S_TAG}"); K(f"v_mov_b32 v{V_TAG}, s{S_TAG}")
    def xfrag_addr(dst):
        K(f"v_and_b32 v{t0}, 31, v{V_LANE}"); K(f"v_lshrrev_b32 v{t2}, 5, v{V_LANE}"); K(f"v_bfe_u32 v{t3}, v{V_LANE}, 1, 3")
        K(f"v_xor_b32 v{t3}, v{t2}, v{t3}"); K(f"s_lshl_b32 s{T}, s{S_A}, 12"); K(f"v_lshlrev_b32 v{t0}, 7, v{t0}")
        K(f"v_lshl_add_u32 v{t0}, v{t3}, 4, v{t0}"); K(f"v_add_u32 v{dst}, s{T}, v{t0}")
        for k in range(1, 4): K(f"v_xor_b32 v{dst+k}, {32*k}, v{dst}")
    def lanepart():
        K(f"v_bfe_u32 v{t4}, v{V_LANE}, 4, 1"); K(f"v_lshlrev_b32 v{t4}, 5, v{t4}")
        K(f"v_and_b32 v{t3}, 3, v{V_LANE}"); K(f"v_lshl_add_u32 v{t4}, v{t3}, 3, v{t4}")
        K(f"v_bfe_u32 v{t3}, v{V_LANE}, 2, 2"); K(f"v_lshrrev_b32 v{t2}, 5, v{V_LANE}")
    def p2setup():
        mksrd(R_W2, P_W2, 0 if x_now2 else 1792*896)
        K(f"s_and_b32 s{T}, s2, 7"); K(f"s_lshr_b32 s{T+1}, s2, 3")
        if hlp: K(f"s_add_u32 s{T+1}, s{T+1}, 28"); K(f"s_and_b32 s{T+1}, s{T+1}, 31")
        K(f"s_mul_i32 s{T+2}, s{T+1}, 37"); K(f"s_lshr_b32 s{T+2}, s{T+2}, 8"); K(f"s_mul_i32 s{T+3}, s{T+2}, 7"); K(f"s_sub_u32 s{S_CT}, s{T+1}, s{T+3}")
        K(f"s_lshl_b32 s{T+2}, s{T+2}, 1"); K(f"s_lshl_b32 s{T+3}, s{T}, 3"); K(f"s_add_u32 s{S_ROW}, s{T+2}, s{T+3}")
        K(f"s_cmp_lt_u32 s{T+1}, 28"); K(f"s_cselect_b32 s{S_ACT}, 1, 0")
        K(f"s_and_b32 s{T+2}, s{S_A}, 1"); K(f"s_mul_i32 s{T+3}, s{S_A}, 7"); K(f"s_add_u32 s{T+4}, s{T+3}, s{T+2}")
        K(f"s_cmp_eq_u32 s{T+2}, 0"); K(f"s_cselect_b32 s{T+2}, 6, 0"); K(f"s_add_u32 s{T+2}, s{T+2}, s{T+3}")
        K(f"s_lshl_b32 s{T}, s{S_CT}, 7")
        K(f"s_mul_i32 s{S_W2B}, s{T+4}, {64*896}"); K(f"s_add_u32 s{S_W2B}, s{S_W2B}, s{T}")
        K(f"s_mul_i32 s{S_W2B3}, s{T+2}, {64*896}"); K(f"s_add_u32 s{S_W2B3}, s{S_W2B3}, s{T}")
        K(f"s_lshl_b32 s{S_M02}, s{S_A}, 13")
        K(f"v_lshrrev_b32 v{t0}, 3, v{V_LANE}"); K(f"v_and_b32 v{t1}, 7, v{V_LANE}")
        K(f"v_bfe_u32 v{t2}, v{V_LANE}, 4, 1"); K(f"v_lshlrev_b32 v{t2}, 2, v{t2}"); K(f"v_xor_b32 v{t1}, v{t1}, v{t2}")
        K(f"v_mul_u32_u24 v{t0}, 896, v{t0}"); K(f"v_lshl_add_u32 v{V_D2}, v{t1}, 4, v{t0}")
        for q in range(1, 4): K(f"v_add_u32 v{V_D2+q}, {q*(8*896-1024)}, v{V_D2}")
        K(f"v_mov_b32 v{V_CNT}, {L_CNT}")
    def shift(regs, d):
        for r in regs:
            if d > 0: K(f"v_add_u32 v{r}, {d}, v{r}")
            elif d < 0: K(f"v_subrev_u32 v{r}, {-d}, v{r}")
    pend = []
    def drip(n):
        for _ in range(n):
            if pend: pend.pop(0)()
    def run(steps):
        for f in steps: f()
    tk_r = {}
    def g_w2(r):
        def step(q):
            def f():
                if q % 4 == 0:
                    K(f"s_add_u32 s{TD}, s{S_W2B3 if r == 3 else S_W2B}, {(0 if r == 3 else (2*r % 7)*64*896) + (q // 4)*32*896}")
                    K(f"s_add_u32 m0, s{S_M02}, {U[RUNIT[r]] + (q // 4)*4096}")
                x = K(f"buffer_load_dwordx4 v{V_D2+q%4}, {srd(R_W2)}, s{TD} offen offset:{1024*(q%4)} lds") if r < x_skipB else K.vm - 8
                if q == 7: tk_r[r] = x
            return f
        return [step(q) for q in range(8)]
    SH = [0, 0, 65536, 0, -65536, 0, 65536]

    K.raw(f"{NAME}:")
    K("s_cmp_ge_u32 s2, 256"); K("s_cbranch_scc1 L_end")
    if stamps and early: K(f"s_memrealtime {sp(S_ST)}"); K("s_waitcnt lgkmcnt(0)")
    K("s_load_dwordx16 s[16:31], s[0:1], 0"); K("s_load_dwordx8 s[32:39], s[0:1], 64"); K("s_load_dwordx2 s[40:41], s[0:1], 96")
    if stamps:
        if not early: K(f"s_memrealtime {sp(S_ST)}")
        K(f"v_mov_b32 v{V_STAMP}, 0")
    K(f"v_lshrrev_b32 v{t0}, 6, v0"); K(f"v_and_b32 v{V_LANE}, 63, v0")
    K(f"v_readfirstlane_b32 s{S_W}, v{t0}")
    K(f"v_lshlrev_b32 v{V_L16}, 4, v{V_LANE}")
    K(f"s_and_b32 s{T}, s2, 7"); K(f"s_lshr_b32 s{T+1}, s2, 3")
    if codepf:
        K(f"s_lshr_b32 s{T+2}, s2, 5"); K(f"s_lshl_b32 s{T+2}, s{T+2}, 3"); K(f"s_or_b32 s{T+2}, s{T+2}, s{S_W}"); K(f"s_cmp_lg_u32 s{T+2}, 7")
        K("s_cbranch_scc1 L_nopf")
        K(f"s_getpc_b64 {sp(T+2)}")
        K.raw("L_pc:")
        K(f"s_lshl_b32 s{T+4}, s{T+1}, 7"); K(f"s_sub_u32 s{T+2}, s{T+2}, L_pc - {NAME}"); K(f"s_subb_u32 s{T+3}, s{T+3}, 0")
        K(f"s_add_u32 s{T+2}, s{T+2}, s{T+4}"); K(f"s_addc_u32 s{T+3}, s{T+3}, 0")
        K(f"v_lshlrev_b32 v{t0}, 9, v{V_LANE}")
        K("s_mov_b32 exec_hi, 0xffffff")
        K(f"global_load_dword v{V_POLL}, v{t0}, {sp(T+2)}"); K.vm -= 1
        K("s_mov_b32 exec_hi, -1")
        K.label("L_nopf")
    K(f"s_and_b32 s{T+2}, s{T}, 2"); K(f"s_lshl_b32 s{T+2}, s{T+2}, 1")
    K(f"s_and_b32 s{T+3}, s{T}, 1"); K(f"s_cmp_lt_u32 s{T+1}, 4"); K(f"s_cselect_b32 s{T+4}, 14, 12"); K(f"s_add_u32 s{T+3}, s{T+3}, s{T+4}")
    K(f"s_lshr_b32 s{T+4}, s{T+1}, 3"); K(f"s_lshl_b32 s{S_J}, s{T+4}, 2"); K(f"s_and_b32 s{S_MT}, s{T}, 3"); K(f"s_add_u32 s{S_J}, s{S_J}, s{S_MT}"); K(f"s_sub_u32 s{S_J}, s{S_J}, 4")
    K(f"s_cmp_lt_u32 s{T+1}, 8"); K(f"s_cselect_b32 s{S_J}, s{T+3}, s{S_J}"); K(f"s_cselect_b32 s{T+2}, s{T+2}, 0")
    K(f"s_and_b32 s{T+3}, s{T+1}, 7"); K(f"s_xor_b32 s{T+3}, s{T+3}, s{T+2}")
    K(f"s_and_b32 s{S_MT}, s{T}, 4"); K(f"s_lshl_b32 s{S_MT}, s{S_MT}, 1"); K(f"s_add_u32 s{S_MT}, s{S_MT}, s{T+3}")
    K(f"s_and_b32 s{S_A}, s{S_W}, 3")
    K(f"s_lshl_b32 s{S_W1B}, s{S_J}, 8")
    K(f"s_cmp_ge_u32 s{S_W}, 4")
    K.branch("s_cbranch_scc1 L_M")

    if prioA: K(f"s_setprio {prioA}")
    K(f"s_lshl_b32 s{T+4}, s{T+4}, 1"); K(f"s_add_u32 s{T+2}, s{T+3}, s{T+4}")
    K(f"s_cmp_ge_u32 s{T+2}, 7"); K(f"s_cselect_b32 s{T+3}, 7, 0"); K(f"s_sub_u32 s{S_CH}, s{T+2}, s{T+3}")
    if not rot1: K(f"s_mov_b32 s{S_CH}, 0")
    if rot1 == 2:
        K(f"s_lshr_b32 s{T+4}, s{T+4}, 1"); K(f"s_add_u32 s{T+2}, s{S_MT}, s{T+4}"); K(f"s_and_b32 s{T+2}, s{T+2}, 1"); K(f"s_lshl_b32 s{S_CH}, s{T+2}, 2")
    if rot1 == 4:
        K(f"s_lshr_b32 s{T+4}, s{T+4}, 1"); K(f"s_add_u32 s{T+2}, s{S_MT}, s{T+4}"); K(f"s_and_b32 s{T+2}, s{T+2}, 3"); K(f"s_lshl_b32 s{S_CH}, s{T+2}, 1")
    if rot1 >= 9:
        K(f"s_and_b32 s{T+2}, s2, 3"); K(f"s_mul_i32 s{T+2}, s{T+2}, {ra}"); K(f"s_bfe_u32 s{T+3}, s2, 0x10002"); K(f"s_mul_i32 s{T+3}, s{T+3}, {rb}"); K(f"s_add_u32 s{T+2}, s{T+2}, s{T+3}")
        if rc: K(f"s_and_b32 s{T+3}, s{S_MT}, 1"); K(f"s_mul_i32 s{T+3}, s{T+3}, {rc}"); K(f"s_add_u32 s{T+2}, s{T+2}, s{T+3}")
        if rd: K(f"s_bfe_u32 s{T+3}, s{S_MT}, 0x10001"); K(f"s_mul_i32 s{T+3}, s{T+3}, {rd}"); K(f"s_add_u32 s{T+2}, s{T+2}, s{T+3}")
        if re: K(f"s_bfe_u32 s{T+3}, s2, 0x10006"); K(f"s_mul_i32 s{T+3}, s{T+3}, {re}"); K(f"s_add_u32 s{T+2}, s{T+2}, s{T+3}")
        K(f"s_mul_i32 s{T+3}, s{T+2}, 37"); K(f"s_lshr_b32 s{T+3}, s{T+3}, 8"); K(f"s_mul_i32 s{T+3}, s{T+3}, 7"); K(f"s_sub_u32 s{S_CH}, s{T+2}, s{T+3}")
    if rot1 == 8:
        K(f"s_and_b32 s{T+2}, s2, 7"); K(f"s_cmp_eq_u32 s{T+2}, 7"); K(f"s_cselect_b32 s{S_CH}, 3, s{T+2}")
    def rotstep(t):
        K(f"s_lshl_b32 s{S_CHO+t}, s{S_CH}, 12")
        if t < 6: K(f"s_add_u32 s{S_CH}, s{S_CH}, 1"); K(f"s_cmp_eq_u32 s{S_CH}, 7"); K(f"s_cselect_b32 s{S_CH}, 0, s{S_CH}")
    rotstep(0); rotstep(1)
    K(f"s_lshl_b32 s{S_M0}, s{S_A}, 12")
    K(f"s_mul_i32 s{S_XB}, s{S_MT}, {128*896}")
    K(f"v_lshrrev_b32 v{t0}, 3, v{V_LANE}"); K(f"v_and_b32 v{t1}, 7, v{V_LANE}"); K(f"v_lshrrev_b32 v{t2}, 1, v{t0}"); K(f"v_xor_b32 v{t2}, v{t1}, v{t2}")
    K(f"s_lshl_b32 s{T+2}, s{S_A}, 5"); K(f"v_add_u32 v{t3}, s{T+2}, v{t0}"); K(f"v_mul_u32_u24 v{t3}, 896, v{t3}")
    K(f"v_lshl_add_u32 v{A_XD}, v{t2}, 4, v{t3}"); K(f"v_xor_b32 v{t2}, 4, v{t2}"); K(f"v_lshl_add_u32 v{A_XD+1}, v{t2}, 4, v{t3}")
    K(f"v_add_u32 v{A_XD+1}, {8*896-1024}, v{A_XD+1}")
    K(f"v_add_u32 v{A_XD+2}, {16*896-2048}, v{A_XD}"); K(f"v_add_u32 v{A_XD+3}, {16*896-2048}, v{A_XD+1}")
    K(f"v_lshrrev_b32 v{t0}, 4, v{V_LANE}"); K(f"v_and_b32 v{t1}, 15, v{V_LANE}"); K(f"v_lshlrev_b32 v{t2}, 2, v{t0}"); K(f"v_xor_b32 v{t2}, v{t1}, v{t2}")
    K(f"s_lshl_b32 s{T+2}, s{S_A}, 4"); K(f"v_add_u32 v{t3}, s{T+2}, v{t0}"); K(f"v_mul_u32_u24 v{t3}, 3584, v{t3}")
    K(f"v_lshl_add_u32 v{A_WD}, v{t2}, 4, v{t3}")
    if m16:
        K(f"v_xor_b32 v{t2}, 2, v{t2}"); K(f"v_lshl_add_u32 v{t3}, v{t2}, 4, v{t3}")
        for q in range(1, 4): K(f"v_add_u32 v{A_WD+q}, {q*(4*3584-1024)}, v{A_WD if q < 2 else t3}")
    else:
        for q in range(1, 4): K(f"v_add_u32 v{A_WD+q}, {q*(4*3584-1024)}, v{A_WD}")
    K("s_waitcnt lgkmcnt(0)")
    if stamps: K(f"v_writelane_b32 v{V_STAMP}, s{S_ST}, {STAMP_IDS.setdefault('start', len(STAMP_IDS))}")
    if wso: K(f"s_add_u32 s{P_WS}, s{P_WS}, {wso << 20}"); K(f"s_addc_u32 s{P_WS+1}, s{P_WS+1}, 0")
    mksrd(R_X, P_X, 2048*896); mksrd(R_W1, P_W1, 0 if x_now1 else 448*3584)
    tk_stage = {}
    def g_stage(t):
        u = U[t % 4]
        def step(q):
            def f():
                if q == 0: K(f"s_lshr_b32 s{TD}, s{S_CHO+t}, 5"); K(f"s_add_u32 s{TD}, s{TD}, s{S_XB}"); K(f"s_add_u32 m0, s{S_M0}, {u}")
                if q == 4: K(f"s_mul_i32 s{TD}, s{S_CHO+t}, 56"); K(f"s_add_u32 s{TD}, s{TD}, s{S_W1B}"); K(f"s_add_u32 m0, s{S_M0}, {u + 16384}")
                if q < 4: K(f"buffer_load_dwordx4 v{A_XD+q}, {srd(R_X)}, s{TD} offen offset:{1024*q} lds")
                else: x = K(f"buffer_load_dwordx4 v{A_WD+q-4}, {srd(R_W1)}, s{TD} offen offset:{1024*(q-4)} lds")
                if q == 7: tk_stage[t] = x
            return f
        return [step(q) for q in range(8)]
    ilist = []
    for t in range(7): ilist += [(f, t - 2 if t >= 4 else -1) for f in g_stage(t)]
    pos = [0]
    def issue_to(n, lastbar):
        while pos[0] < min(n, len(ilist)) and ilist[pos[0]][1] <= lastbar:
            ilist[pos[0]][0](); pos[0] += 1
    if fine: stamp("A_karg")
    K(f"s_cmp_ge_u32 s{S_J}, 14")
    K.branch("s_cbranch_scc1 L_a1")
    vm0 = K.vm
    issue_to(8, -1)
    issue_to(8 + LA0, -1)
    K.label("L_a1")
    if fine: stamp("A_i1")
    K(f"s_load_dword s{S_E}, {sp(P_WS)}, {WS_EPOCH}")
    for t in range(2, 7): rotstep(t)
    mksrd(R_WS, P_WS, WS_SIZE); mksrd(R_OUT, P_OUT, 2048*896)
    p2setup()
    K(f"s_mov_b32 s{S_UP}, 0"); K(f"s_mov_b32 s{S_UP+1}, -1")
    K(f"s_mov_b32 s{S_L28}, 0x10000000"); K(f"s_mov_b32 s{S_L28+1}, 0x10000000")
    xfrag_addr(A_AX)
    lanepart()
    K(f"v_lshl_add_u32 v{t0}, v{t2}, 3, v{t3}"); K(f"v_lshl_add_u32 v{A_TR}, v{t0}, 6, v{t4}")
    K(f"v_lshl_add_u32 v{t0}, v{t2}, 2, v{t3}"); K(f"v_mul_u32_u24 v{t1}, 56, v{t0}"); K(f"v_add_u32 v{t1}, v{t1}, v{t4}"); K(f"v_add_u32 v{A_PH}, {L_PHI}, v{t1}")
    K(f"v_lshlrev_b32 v{A_L4}, 2, v{V_LANE}")
    K(f"s_lshl_b32 s{T}, s{S_A}, 10"); K(f"s_add_u32 s{T}, s{T}, {WS_RPF}"); K(f"v_and_b32 v{A_PA}, 7, v{V_LANE}"); K(f"v_lshl_add_u32 v{A_PA}, v{A_PA}, 7, s{T}")
    K(f"s_mul_i32 s{S_RS}, s{S_J}, {3*28672}"); K(f"s_mul_i32 s{S_P3}, s{S_A}, 7168"); K(f"s_add_u32 s{S_RS}, s{S_RS}, s{S_P3}"); K(f"s_add_u32 s{S_RS}, s{S_RS}, {WS_WQ}")
    K("s_waitcnt lgkmcnt(0)")
    settag()
    K(f"s_cmp_lt_u32 s{S_J}, 14")
    K.branch("s_cbranch_scc1 L_a2")
    sv = K.vm
    K(f"s_mul_i32 s{T}, s{S_A}, 3072"); K(f"s_add_u32 s{T}, s{T}, {L_K}")
    K("s_barrier")
    for t in range(7):
        K(f"s_lshr_b32 s{TD}, s{S_CHO+t}, 5"); K(f"s_add_u32 s{TD}, s{TD}, s{S_XB}")
        if t < 6: K(f"s_add_u32 m0, s{S_M0}, {16384*t}")
        else: K(f"s_add_u32 m0, s{S_M0}, s{T}")
        for q in range(4): K(f"buffer_load_dwordx4 v{A_XD+q}, {srd(R_X)}, s{TD} offen offset:{1024*q} lds")
        if t == rb2: K("s_barrier")
    K("s_waitcnt vmcnt(0)")
    for t in range(7):
        if t == 4: shift(range(A_AX, A_AX + 4), 65536)
        if t == 6:
            K(f"s_sub_u32 s{T}, s{T}, 65536")
            for k in range(4): K(f"v_add_u32 v{A_AX+k}, s{T}, v{A_AX+k}")
        for ksl in range(4): K(f"ds_read_b128 {vr(V_X + 16*t + 4*ksl, 4)}, v{A_AX+ksl} offset:{(t % 4) * 16384 if t < 6 else 0}")
        if t % 2 == 1: K("s_waitcnt lgkmcnt(4)")
    K("s_waitcnt lgkmcnt(0)")
    stamp("A_b6")
    vpoll_issue(A_PA)
    K.branch("s_branch L_a3")
    K.label("L_a2")
    K.vm = sv
    if fine: stamp("A_setup")
    tkx = {}
    def g_panel(p, lds):
        def step(q):
            def f():
                if q % 4 == 0: K(f"s_add_u32 s{TD}, s{S_RS}, {28672*p + (q // 4)*4096}"); K(f"s_add_u32 m0, s{S_P3}, {lds + (q // 4)*4096}")
                tkx[p] = K(f"buffer_load_dwordx4 v{V_L16}, {srd(R_WS)}, s{TD} offen offset:{1024*(q%4)} sc1 lds")
            return f
        return [step(q) for q in range(7)]
    for t in range(7):
        if ke and t == 5: tkp = vpoll_issue(A_PA)
        issue_to(8*(t+1) + (LA0 if t == 0 else LA), t - 1)
        shift(range(A_AX, A_AX + 4), SH[t])
        if t == 5 and not ke:
            assert pos[0] == len(ilist)
            tkp = vpoll_issue(A_PA)
        if t == 6 and ke:
            vpoll_check(tkp, A_PA)
            run(g_panel(1, L_K)[:ke])
        if fine: stamp(f"A{t}a")
        K.wait_vm(tk_stage[t])
        if fine: stamp(f"A{t}b")
        if t < 6:
            if t >= 2: K("s_waitcnt lgkmcnt(4)")
            K("s_barrier")
        else: arrive(C_S)
        if t in (0, 4, 6): stamp(f"A_b{t}")
        for ksl in range(4): K(f"ds_read_b128 {vr(V_X + 16*t + 4*ksl, 4)}, v{A_AX+ksl} offset:{(t % 2) * 32768}")
    if ke:
        K.branch("s_branch L_a4")
        sv = K.vm
        K.label("L_a3")
        vpoll_check(K.vm, A_PA)
        run(g_panel(1, L_K)[:ke])
        K.vm = sv
        if ke == 7: tkx[1] = None
        K.label("L_a4")
        tk_k0 = K.vm
        arrive(C_E)
        run(g_panel(1, L_K)[ke:] + g_panel(2, L_V))
        if ke == 7: tkx[1] = tk_k0
    else:
        assert tkp == K.vm
        K.label("L_a3")
        arrive(C_E)
        vpoll_check(tkp, A_PA)
        stamp("rp_seen")
        run(g_panel(1, L_K) + g_panel(2, L_V))
    K(f"v_add_u32 v{A_PA}, 4096, v{A_PA}")
    tkp = vpoll_issue(A_PA)
    stamp("kv_issued")
    K(f"s_mov_b32 s{S_K}, {f2u(L2E):#x}"); K(f"s_mov_b32 s{S_K+1}, {f2u(L2E):#x}")
    VPH, VB = V_W + 24, V_W + 16
    for s in range(2):
        for r in range(2): K(f"ds_read_b64_tr_b16 {vr(VPH + 4*s + 2*r, 2)}, v{A_PH} offset:{(16*s + 8*r)*56}")
    K(f"s_lshl_b32 s{T}, s{S_A}, 11"); K(f"s_lshl_b32 s{T+1}, s{S_J}, 13"); K(f"s_add_u32 s{S_HB}, s{T+1}, s{T}"); K(f"s_add_u32 s{S_FL}, s{S_HB}, {WS_KVF}"); K(f"s_lshl_b32 s{S_PE}, s{S_MT}, 7"); K(f"s_add_u32 s{S_PE}, s{S_PE}, s{S_FL}"); K(f"s_add_u32 s{S_HB}, s{S_HB}, {WS_KVP}")
    FL_K = (S_PE, 0, 16)
    K(f"s_lshl_b32 s{T}, s{S_MT}, 2"); K(f"s_add_u32 s{T}, s{T}, s{S_A}")
    K(f"s_lshr_b32 s{T+1}, s{T}, 1"); K(f"s_lshl_b32 s{T+1}, s{T+1}, 2"); K(f"s_lshr_b32 s{T+2}, s{S_J}, 2"); K(f"s_add_u32 s{T+1}, s{T+1}, s{T+2}"); K(f"s_lshl_b32 s{T+1}, s{T+1}, 10"); K(f"s_add_u32 s{S_FL2}, s{T+1}, {WS_OF}")
    K(f"s_lshl_b32 s{T}, s{T}, 4"); K(f"s_add_u32 s{T}, s{T}, s{S_J}")
    K(f"s_lshl_b32 s{S_OB}, s{T}, 11"); K(f"s_add_u32 s{S_OB}, s{S_OB}, {WS_O}")
    K(f"s_lshl_b32 s{T+2}, s{T}, 7"); K(f"s_add_u32 s{S_XB}, s{T+2}, {WS_G - 128}")
    IDR = [26, 27, 28, 29, V_PHI, V_PHI+1, V_PHI+2, V_PHI+3]
    K(f"v_and_b32 v{t0}, 31, v{V_LANE}"); K(f"v_lshrrev_b32 v{t1}, 5, v{V_LANE}"); K(f"v_lshlrev_b32 v{t1}, 2, v{t1}")
    K(f"v_sub_u32 v{t0}, v{t0}, v{t1}")
    K(f"v_and_b32 v{t1}, 1, v{V_LANE}"); K(f"v_lshlrev_b32 v{t1}, 4, v{t1}"); K(f"v_mov_b32 v{t2}, 0x3f80"); K(f"v_lshlrev_b32 v{t1}, v{t1}, v{t2}")
    K(f"v_and_b32 v{t0}, -2, v{t0}")
    for s in range(2):
        for q in range(4): K(f"v_cmp_eq_u32 {sp(T+2*q)}, {16*s + 8*(q // 2) + 2*(q % 2)}, v{t0}")
        for q in range(4): K(f"v_cndmask_b32 v{IDR[4*s+q]}, 0, v{t1}, {sp(T+2*q)}")
    if aw2: K(f"s_cmp_eq_u32 s{S_ACT}, 1"); K(f"s_cselect_b32 s{R_W2+2}, s{R_W2+2}, 0")
    if aw2 in (1, 3):
        await_(C_E, 8, 1)
        run(g_w2(0))
        K.wait_vm(tkx[2]); arrive(C_0)
        run(g_w2(1))
        if qd < 0: run(g_panel(0, L_Q))
    else: K.wait_vm(tkx[1] if kf else tkx[2]); arrive(C_0)
    stamp("kv_landed0")
    if aw2 == 1: K.wait_vm(tk_r[1]); arrive(C_B)
    await_(C_0, 4, 1)
    K(f"v_cndmask_b32 v{VPH+6}, v{VPH+6}, 0, {UPM}"); K(f"v_cndmask_b32 v{VPH+7}, v{VPH+7}, 0, {UPM}")
    if not kf:
        await_(C_G if gw >= 0 else C_E, 4 if gw >= 0 else 8, 1)
        vpoll_check(tkp, A_PA)
    stamp("kv_start")

    def gemm_qkv(panels, hook=None):
        nb = len(panels) * 4
        D = 3 if len(panels) == 2 else 6
        tk = {}
        for n, (off, acc, sw) in enumerate(panels): K(f"v_add_u32 v{A_AX+n}, {off}, v{A_TR}")
        def rd(ks, n):
            t, ksl = ks // 4, ks % 4
            b = V_W + nb * (ks % D)
            if ksl == 0: K(f"v_add_u32 v{A_AD + n}, s{S_CHO+t}, v{A_AX+n}")
            for r in range(2):
                tk[ks] = K(f"ds_read_b64_tr_b16 {vr(b + 4*n + 2*r, 2)}, v{A_AD + n} offset:{(16*ksl + 4*r)*64}")
        for k in range(D):
            for n in range(len(panels)): rd(k, n)
        for ks in range(28):
            K.wait_lg(tk[ks])
            b = V_W + nb * (ks % D)
            for n, (off, acc, sw) in enumerate(panels):
                wv, xv = b + 4*n, V_X + 4*ks
                if sw: mfma(acc, xv, wv, "0" if ks == 0 else None, x_m16 & 4)
                else: mfma(acc, wv, xv, "0" if ks == 0 else None, x_m16 & 4)
                if ks + D < 28: rd(ks + D, n)
            if hook: hook(ks)
    QP = V_W
    P = V_ACC
    def featmap():
        for e in range(8): K(f"v_cvt_pk_bf16_f32 v{QP+e}, v{V_ACC+2*e}, v{V_ACC+2*e+1}")
        mfma(P, VPH, QP, "0"); mfma(P, VPH + 4, QP + 4)
    def roundp(e):
        K(f"v_cvt_pk_bf16_f32 v{P+2*e+1}, v{P+2*e}, v{P+2*e+1}")
        K(f"v_lshlrev_b32 v{P+2*e}, 16, v{P+2*e+1}"); K(f"v_and_b32 v{P+2*e+1}, 0xffff0000, v{P+2*e+1}")
    def softmax(pk, rounded=False, part=3):
        if part & 1: softmax1(pk, rounded)
        if part & 2: softmax2(pk)
    EP, EN = V_P, V_P + 16
    def softmax1(pk, rounded):
        if rp and not rounded:
            for e in range(8): roundp(e)
        for e in range(4): K(f"v_cndmask_b32 v{P+12+e}, v{P+12+e}, v{P}, {UPM}")
        mx, mn = t0, t2
        K(f"v_max3_f32 v{mx}, v{P}, v{P+1}, v{P+2}"); K(f"v_min3_f32 v{mn}, v{P}, v{P+1}, v{P+2}")
        K(f"v_max3_f32 v{t1}, v{P+3}, v{P+4}, v{P+5}"); K(f"v_min3_f32 v{t3}, v{P+3}, v{P+4}, v{P+5}")
        for e in range(6, 14, 4):
            K(f"v_max3_f32 v{mx}, v{mx}, v{P+e}, v{P+e+1}"); K(f"v_min3_f32 v{mn}, v{mn}, v{P+e}, v{P+e+1}")
            K(f"v_max3_f32 v{t1}, v{t1}, v{P+e+2}, v{P+e+3}"); K(f"v_min3_f32 v{t3}, v{t3}, v{P+e+2}, v{P+e+3}")
        K(f"v_max3_f32 v{mx}, v{mx}, v{P+14}, v{P+15}"); K(f"v_min3_f32 v{mn}, v{mn}, v{P+14}, v{P+15}")
        K(f"v_max_f32 v{mx}, v{mx}, v{t1}"); K(f"v_min_f32 v{mn}, v{mn}, v{t3}")
        K(f"v_mov_b32 v{t1}, v{mx}"); K(f"v_mov_b32 v{t3}, v{mn}")
        K(f"v_permlane32_swap_b32 v{mx}, v{t1}"); K(f"v_permlane32_swap_b32 v{mn}, v{t3}")
        K(f"v_max_f32 v{mx}, v{mx}, v{t1}"); K(f"v_min_f32 v{mn}, v{mn}, v{t3}")
        K(f"v_mul_f32 v{mx}, s{S_K}, v{mx}"); K(f"v_mul_f32 v{mn}, s{S_K}, v{mn}")
        for e in range(0, 16, 2):
            if pk:
                K(f"v_pk_fma_f32 {vr(EP+e,2)}, {vr(P+e,2)}, {sp(S_K)}, {vr(mx,2)} op_sel_hi:[1,1,0] neg_lo:[0,0,1] neg_hi:[0,0,1]")
                K(f"v_pk_fma_f32 {vr(EN+e,2)}, {vr(P+e,2)}, {sp(S_K)}, {vr(mn,2)} op_sel_hi:[1,1,0] neg_lo:[1,0,0] neg_hi:[1,0,0]")
            else:
                for x in (e, e + 1):
                    K(f"v_fma_f32 v{EP+x}, v{P+x}, s{S_K}, -v{mx}"); K(f"v_fma_f32 v{EN+x}, -v{P+x}, s{S_K}, v{mn}")
        for e in range(16):
            K(f"v_exp_f32 v{EP+e}, v{EP+e}"); K(f"v_exp_f32 v{EN+e}, v{EN+e}")
    def softmax2(pk):
        S = V_W
        for n, E in enumerate((EP, EN)):
            padd(S+4*n, E, E+2, pk); padd(S+4*n+2, E+12, E+14, pk)
        for n, E in enumerate((EP, EN)):
            padd(S+4*n, S+4*n, E+4, pk)
            K(f"v_cndmask_b32 v{S+4*n+2}, v{S+4*n+2}, 0, {UPM}"); K(f"v_cndmask_b32 v{S+4*n+3}, v{S+4*n+3}, 0, {UPM}")
        for n, E in enumerate((EP, EN)):
            padd(S+4*n, S+4*n, E+6, pk); padd(S+4*n+2, S+4*n+2, E+8, pk)
        for n, E in enumerate((EP, EN)): padd(S+4*n, S+4*n, E+10, pk)
        for n in range(2): padd(S+4*n, S+4*n, S+4*n+2, pk)
        K(f"v_add_f32 v{t0}, v{S}, v{S+1}"); K(f"v_add_f32 v{t2}, v{S+4}, v{S+5}")
        K(f"v_mov_b32 v{t1}, v{t0}"); K(f"v_mov_b32 v{t3}, v{t2}")
        K(f"v_permlane32_swap_b32 v{t0}, v{t1}"); K(f"v_permlane32_swap_b32 v{t2}, v{t3}")
        K(f"v_add_f32 v{t0}, v{t0}, v{t1}"); K(f"v_add_f32 v{t2}, v{t2}, v{t3}")
        K(f"v_rcp_f32 v{t0}, v{t0}"); K(f"v_rcp_f32 v{t2}, v{t2}")
        K(f"v_cndmask_b32 v{t1}, v{t0}, 0, {UPM}"); K(f"v_cndmask_b32 v{t3}, v{t2}, 0, {UPM}")
        for e in range(0, 16, 2):
            pscale(EP+e, t0 if e < 12 else t1, pk); pscale(EN+e, t2 if e < 12 else t3, pk)
        for e in range(8):
            K(f"v_cvt_pk_bf16_f32 v{V_PHI+e}, v{EP+2*e}, v{EP+2*e+1}"); K(f"v_cvt_pk_bf16_f32 v{V_PHI+8+e}, v{EN+2*e}, v{EN+2*e+1}")

    if aw2 == 2: pend.extend(g_w2(0) + g_w2(1))
    if qd >= 0: pend.extend(g_panel(0, L_Q))
    def hook(ks):
        if aw2 == 3:
            if ks == 1: K.wait_vm(tk_r[1]); arrive(C_B)
            if ks == pa:
                await_(C_P, 4)
                pend.extend(g_w2(2) + g_w2(3))
            drip(2 if len(pend) > 27 - ks else 1)
        elif aw2 == 2:
            drip(1)
            if ks == cb: K.wait_vm(tk_r[1]); arrive(C_B)
        elif ks >= qd and (ks - qd) % 3 == 0: drip(1)
        if ks == 25: arrive(C_1)
    if kf:
        def hookk(ks):
            if ks == k1: vpoll_check(tkp, A_PA); arrive(C_P); await_(C_E, 8)
            if ks > k1 and ks % kd == 0: drip(1)
        gemm_qkv([(L_K, V_ACC, False)], hookk)
        await_(C_P, 4)
        side = []
        if sd:
            n0 = len(K.ins); softmax(False, False, 1)
            side = [i.text for i in K.ins[n0:] if i.op != "s_nop"]; del K.ins[n0:]
        f0 = 1 if sd else 4
        def hookv(ks):
            if ks == f0:
                for e in range(8): K(f"v_cvt_pk_bf16_f32 v{V_P+e}, v{V_ACC+2*e}, v{V_ACC+2*e+1}")
            if ks == f0 + (1 if sd else 2): mfma(P, VPH, V_P, "0"); mfma(P, VPH + 4, V_P + 4)
            if ks % kd == 0 or len(pend) > (27 - ks) // kd: drip(1)
            if ks == kb and aw2 == 2: K.wait_vm(tk_r[1]); arrive(C_B)
            if rp and not sd and 12 <= ks < 20: roundp(ks - 12)
            if sd and ks >= 6:
                for _ in range(sd if ks < 27 else 999):
                    if side: K(side.pop(0))
            if ks == 22: arrive(C_1)
        gemm_qkv([(L_V, V_ACC + 16, True)], hookv)
    else:
        gemm_qkv([(L_K, V_ACC, False), (L_V, V_ACC + 16, True)], hook)
        featmap()
    assert not pend
    for e in range(4): K(f"v_mov_b32 v{V_W+8+e}, v{V_PHI+e}")
    IDR[4] = V_W + 8
    stamp("kv_gemm")
    K(f"v_mov_b32 v{t4}, 0x3f803f80")
    for e in range(8): K(f"v_cvt_pk_bf16_f32 v{VB+e}, v{V_ACC+16+2*e}, v{V_ACC+16+2*e+1}")
    for e in range(8): K(f"v_cndmask_b32 v{VB+e}, v{VB+e}, v{t4}, {sp(S_L28)}")
    softmax(pkk, kf, 2 if (kf and sd) else 3)
    stamp("sm_k")
    if aw2 == 3: K.wait_vm(tk_r[3]); arrive(C_B2)
    TP, TN = V_P, V_P + 16
    mfma(TP, V_PHI, IDR[0], "0"); mfma(TP, V_PHI + 4, IDR[4])
    mfma(TN, V_PHI + 8, IDR[0], "0"); mfma(TN, V_PHI + 12, IDR[4])
    await_(C_1, 4)
    if f2: stamp("kv_a")
    K(f"s_lshl_b32 s{T}, s{S_A}, 13"); K(f"s_add_u32 s{T}, s{T}, {L_KVS}"); K(f"v_add_u32 v{t0}, s{T}, v{V_L16}")
    K(f"s_lshl_b32 s{T}, s{S_A}, 11"); K(f"s_add_u32 s{T}, s{T}, {L_KVS}"); K(f"v_add_u32 v{t1}, s{T}, v{V_L16}")
    for e in range(8): K(f"v_cvt_pk_bf16_f32 v{V_PHI+e}, v{TP+2*e}, v{TP+2*e+1}")
    mfma(V_ACC, V_PHI, VB, "0"); mfma(V_ACC, V_PHI + 4, VB + 4)
    for e in range(8): K(f"v_cvt_pk_bf16_f32 v{V_PHI+8+e}, v{TN+2*e}, v{TN+2*e+1}")
    mfma(V_ACC + 16, V_PHI + 8, VB, "0"); mfma(V_ACC + 16, V_PHI + 12, VB + 4)
    for b in range(8): K(f"ds_write_b128 v{t0}, {vr(V_ACC+4*b,4)} offset:{1024*b}")
    K.wait_vm(tkx[0])
    arrive(C_2)
    if f2: stamp("kv_b")
    await_(C_2, 4)
    if f2: stamp("kv_c")
    for hb in range(2):
        for g in range(4): K(f"ds_read_b128 {vr(V_P+16*hb+4*g,4)}, v{t1} offset:{8192*g + 1024*hb}")
    arrive(C_3)
    if f2: stamp("kv_d")
    for hb in range(2):
        K(f"s_waitcnt lgkmcnt({5 - 4*hb})")
        B = V_P + 16*hb
        for e in (0, 2): padd(B+e, B+e, B+4+e, pkq); padd(B+8+e, B+8+e, B+12+e, pkq)
        for e in (0, 2): padd(B+e, B+e, B+8+e, pkq)
        if am and hb == 1: K(f"s_bitcmp1_b32 s{S_A}, 0"); K("s_cselect_b32 exec_hi, 0, -1")
        for e in range(x_at): K(f"buffer_atomic_add_f32 v{B+e}, v{A_L4}, {srd(R_WS)}, s{S_HB} offen offset:{1024*hb + 256*e}")
        if am and hb == 1: K("s_mov_b32 exec_hi, -1")
    stamp("kv_st")
    def hook(ks):
        if ks == 22: arrive(C_Q)
        if ks == kvf:
            K("s_waitcnt vmcnt(0)")
            signal(S_FL, 16)
            stamp("kv_pub")
    gemm_qkv([(L_Q, V_ACC, False)], hook)
    K(f"v_cvt_pk_bf16_f32 v{t0}, v{V_ACC+12}, v{V_ACC+12}")
    featmap()
    K(f"v_lshlrev_b32 v{t0}, 16, v{t0}")
    K(f"v_mul_f32 v{t0}, s{S_K}, v{t0}"); K(f"v_exp_f32 v{t0}, -v{t0}"); K(f"v_add_f32 v{t0}, 1.0, v{t0}"); K(f"v_rcp_f32 v{t0}, v{t0}")
    K(f"v_cvt_pk_bf16_f32 v{t0}, v{t0}, v{t0}"); K(f"v_lshlrev_b32 v{A_G}, 16, v{t0}")
    K("s_mov_b32 exec_lo, 0")
    K(f"buffer_store_dword v{A_G}, v{A_L4}, {srd(R_WS)}, s{S_XB} offen sc1")
    K("s_mov_b32 exec_lo, -1")
    stamp("q_gemm")
    softmax(pkq)
    stamp("sm_q")
    poll_issue(FL_K)
    poll_check(FL_K)
    stamp("kv_seen")
    for e in range(8): K(f"buffer_load_dword v{V_P+e}, v{A_L4}, {srd(R_WS)}, s{S_HB} offen offset:{256*e} sc1")
    F = V_W
    K(f"s_lshl_b32 s{T}, s{S_A}, 10"); K(f"v_add_u32 v{t1}, {L_KVF}, v{V_L16}"); K(f"v_add_u32 v{t0}, s{T}, v{t1}")
    K("s_waitcnt vmcnt(0)")
    stamp("kv_landed")
    for e in range(4): K(f"v_cvt_pk_bf16_f32 v{F+e}, v{V_P+2*e}, v{V_P+2*e+1}")
    K(f"ds_write_b128 v{t0}, {vr(F,4)}")
    arrive(C_4)
    await_(C_4, 4)
    if f2: stamp("o_a")
    for f in range(4): K(f"ds_read_b128 {vr(F+4*f,4)}, v{t1} offset:{1024*f}")
    N = V_ACC
    for f in range(4):
        K(f"s_waitcnt lgkmcnt({3-f})")
        mfma(N, F + 4*f, V_PHI + 4*f, "0" if f == 0 else None)
    K(f"v_cvt_pk_bf16_f32 v{t0}, v{N+12}, v{N+12}")
    for e in range(8): K(f"v_cvt_pk_bf16_f32 v{F+e}, v{N+2*e}, v{N+2*e+1}")
    K(f"v_lshlrev_b32 v{t0}, 16, v{t0}")
    K(f"v_add_f32 v{t0}, {f2u(1e-6):#x}, v{t0}")
    K(f"v_cvt_pk_bf16_f32 v{t0}, v{t0}, v{t0}"); K(f"v_lshlrev_b32 v{t0}, 16, v{t0}")
    K(f"v_rcp_f32 v{t0}, v{t0}")
    for e in range(4):
        K(f"v_lshlrev_b32 v{N+2*e}, 16, v{F+e}"); K(f"v_and_b32 v{N+2*e+1}, 0xffff0000, v{F+e}")
    K(f"v_mul_f32 v{t0}, v{t0}, v{A_G}"); K(f"v_mov_b32 v{t1}, v{t0}")
    for e in range(4, 8):
        K(f"v_lshlrev_b32 v{N+2*e}, 16, v{F+e}"); K(f"v_and_b32 v{N+2*e+1}, 0xffff0000, v{F+e}")
    K(f"v_permlane32_swap_b32 v{t1}, v{t0}")
    for e in range(0, 16, 2): pscale(N+e, t0, pkq)
    for e in range(8): K(f"v_cvt_pk_bf16_f32 v{F+e}, v{N+2*e}, v{N+2*e+1}")
    K(f"v_cndmask_b32 v{F+6}, v{F+6}, 0, {UPM}"); K(f"v_cndmask_b32 v{F+7}, v{F+7}, 0, {UPM}")
    K(f"buffer_store_dwordx4 {vr(F,4)}, v{V_L16}, {srd(R_WS)}, s{S_OB} offen sc1")
    K(f"buffer_store_dwordx4 {vr(F+4,4)}, v{V_L16}, {srd(R_WS)}, s{S_OB} offen offset:1024 sc1")
    if f2: stamp("o_b")
    K("s_waitcnt vmcnt(0)")
    signal(S_FL2, 7)
    stamp("o_pub")
    K(f"s_cmp_eq_u32 s{S_ACT}, 0")
    K.branch("s_cbranch_scc1 L_fin")
    K.branch("s_branch L_red")

    K.label("L_M")
    if prioM: K(f"s_setprio {prioM}")
    K("s_waitcnt lgkmcnt(0)")
    if stamps: K(f"v_writelane_b32 v{V_STAMP}, s{S_ST}, {STAMP_IDS.setdefault('start', len(STAMP_IDS))}")
    if wso: K(f"s_add_u32 s{P_WS}, s{P_WS}, {wso << 20}"); K(f"s_addc_u32 s{P_WS+1}, s{P_WS+1}, 0")
    K(f"s_load_dword s{S_E}, {sp(P_WS)}, {WS_EPOCH}")
    mksrd(R_T, P_PHI, 16*1568)
    K(f"s_mul_i32 s{T}, s{S_J}, 1568"); K(f"s_mul_i32 s{T+1}, s{S_A}, 400"); K(f"s_add_u32 s{T}, s{T}, s{T+1}"); K(f"s_add_u32 m0, s{T+1}, {L_PHI}")
    K("s_mov_b64 exec, 0x1ffffff")
    K(f"buffer_load_dwordx4 v{V_L16}, {srd(R_T)}, s{T} offen lds")
    K("s_mov_b64 exec, -1")
    K(f"v_mov_b32 v{V_CNT}, {L_CNT}")
    K(f"v_mov_b32 v{t0}, 0"); K(f"v_lshl_add_u32 v{t1}, v{V_LANE}, 2, v{V_CNT}"); K(f"ds_write_b32 v{t1}, v{t0}")
    K(f"s_cmp_lt_u32 s{S_J}, 14")
    K.branch("s_cbranch_scc1 L_mset")
    vm_m = K.vm
    RB = 96
    K0 = S_XB
    mksrd(R_T, P_WQKV, 448*2688)
    K(f"s_lshl_b32 s{S_FL}, s{S_MT}, 1"); K(f"s_add_u32 s{S_FL}, s{S_FL}, s{S_J}"); K(f"s_sub_u32 s{S_FL}, s{S_FL}, 14")
    K(f"s_mul_i32 s{K0}, s{S_FL}, 14"); K(f"s_lshl_b32 s{T+5}, s{S_A}, 1"); K(f"s_add_u32 s{K0}, s{K0}, s{T+5}")
    K(f"v_lshrrev_b32 v{t0}, 3, v{V_LANE}"); K(f"v_bfe_u32 v{t1}, v{V_LANE}, 2, 1"); K(f"v_and_b32 v{t2}, 3, v{V_LANE}")
    K(f"v_mul_u32_u24 v{t3}, 56, v{t0}"); K(f"v_mul_u32_u24 v{t4}, 2688, v{t1}"); K(f"v_add_u32 v{t3}, v{t3}, v{t4}")
    K(f"v_lshl_add_u32 v{t3}, v{t2}, 4, v{t3}")
    K(f"s_mul_i32 s{T+5}, s{K0}, 2688"); K(f"v_lshlrev_b32 v{t4}, 1, v{t1}"); K(f"s_lshl_b32 s{T+6}, s{K0}, 1")
    tkl = {}
    if fine: stamp("rp_0")
    K(f"s_add_u32 s{T+7}, s{T+5}, {8*2688}"); K(f"s_cmp_eq_u32 s{S_A}, 3"); K(f"s_cselect_b32 s{T+7}, 0x7000000, s{T+7}"); K(f"s_cselect_b32 s{S_CH}, s{T+7}, 512")
    def rp_load(q): tkl[q] = K(f"buffer_load_dwordx4 {vr(RB+4*q,4)}, v{t3}, {srd(R_T)}, s{T+5 if q < 6 else T+7} offen offset:{448*(q%6)}")
    for q in (2, 3, 4, 5, 8, 9, 10, 11): rp_load(q)
    mksrd(R_X, P_GATE, 896)
    K(f"buffer_load_ushort v{RB+48}, v{t4}, {srd(R_X)}, s{T+6} offen"); K(f"buffer_load_ushort v{RB+49}, v{t4}, {srd(R_X)}, s{T+6} offen offset:16")
    for q in (0, 1, 6, 7): rp_load(q)
    mksrd(R_WS, P_WS, WS_SIZE)
    K(f"s_mov_b32 s{T+6}, 86016"); K(f"v_mul_lo_u32 v{RB+50}, v{t0}, s{T+6}"); K(f"v_and_b32 v{t1}, 7, v{V_LANE}")
    K(f"v_lshl_add_u32 v{RB+50}, v{t1}, 4, v{RB+50}")
    K(f"v_cmp_eq_u32 vcc, 3, v{t2}")
    K(f"s_lshl_b32 s{K0}, s{K0}, 6"); K(f"s_add_u32 s{K0}, s{K0}, {WS_WQ}")
    def rp_store(q):
        n, p, hg = q // 6, (q % 6) // 2, q % 2; b = RB + 4*q
        K.wait_vm(tkl[q])
        K(f"v_cndmask_b32 v{b+2}, v{b+2}, v{RB+48+n}, vcc" if p == 0 else f"v_cndmask_b32 v{b+2}, v{b+2}, 0, vcc")
        K(f"v_cndmask_b32 v{b+3}, v{b+3}, 0, vcc")
        K(f"s_add_u32 s{T+6}, s{K0}, {p*28672 + hg*8*86016}")
        if n: K(f"s_add_u32 s{T+6}, s{T+6}, s{S_CH}")
        return K(f"buffer_store_dwordx4 {vr(b,4)}, v{RB+50}, {srd(R_WS)}, s{T+6} offen sc1")
    for e in range(4): K(f"v_mov_b32 v{RB+52+e}, 0")
    K(f"s_lshl_b32 s{T+5}, s{S_FL}, 2"); K(f"s_add_u32 s{T+5}, s{T+5}, s{S_A}"); K(f"s_lshl_b32 s{T+7}, s{T+5}, 12"); K(f"s_lshl_b32 s{T+5}, s{T+5}, 10")
    K(f"s_add_u32 s{T+5}, s{T+5}, {WS_KVP}"); K(f"s_add_u32 s{T+7}, s{T+7}, {WS_CN}"); K(f"v_lshlrev_b32 v{t0}, 7, v{V_LANE}")
    K(f"buffer_store_dwordx4 {vr(RB+52,4)}, v{V_L16}, {srd(R_WS)}, s{T+5} offen sc1")
    K("s_mov_b32 exec_hi, 0")
    K(f"buffer_store_dword v{RB+52}, v{t0}, {srd(R_WS)}, s{T+7} offen sc1")
    K("s_mov_b32 exec_hi, -1")
    K(f"s_lshl_b32 s{S_FL}, s{S_FL}, 7"); K(f"s_add_u32 s{S_FL}, s{S_FL}, {WS_RPF}"); K(f"s_add_u32 s{S_FL2}, s{S_FL}, 4096")
    K(f"s_cmp_eq_u32 s{S_A}, 3"); K(f"s_cselect_b32 s{S_FL}, s{S_FL}, 0x7000000"); K(f"s_cselect_b32 s{S_FL2}, s{S_FL2}, 0x7000000")
    K("s_waitcnt lgkmcnt(0)")
    settag()
    for q in (2, 3, 4, 5, 8, 9, 10, 11): tk1 = rp_store(q)
    for q in (0, 1, 6, 7): rp_store(q)
    if fine: stamp("rp_st")
    K("s_barrier")
    K.wait_vm(tk1)
    K("s_barrier")
    flag(S_FL)
    stamp("rp_pub")
    K("s_waitcnt vmcnt(1)")
    arrive(C_5); await_(C_5, 4)
    flag(S_FL2)
    arrive(C_E); arrive(C_G)
    K("s_setprio 0")
    K.vm = vm_m
    K.label("L_mset")
    if allpf:
        mksrd(R_X, P_X, 2048*896); mksrd(R_W1, P_W1, 448*3584)
        K(f"s_lshl_b32 s{T+3}, s2, 2"); K(f"s_add_u32 s{T+3}, s{T+3}, s{S_A}")
        K(f"s_mul_i32 s{T}, s{T+3}, {14*128}"); K(f"s_mul_i32 s{T+1}, s{T+3}, {13*128}"); K(f"v_lshlrev_b32 v{t0}, 7, v{V_LANE}")
        K("s_mov_b64 exec, 0x3fff")
        if allpf & 1: K(f"buffer_load_dword v{V_POLL}, v{t0}, {srd(R_X)}, s{T} offen")
        K("s_mov_b64 exec, 0x1fff")
        if allpf & 2: K(f"buffer_load_dword v{V_POLL}, v{t0}, {srd(R_W1)}, s{T+1} offen")
        K("s_mov_b64 exec, -1")
    if spf:
        K(f"s_lshl_b32 s{T+3}, s2, 2"); K(f"s_add_u32 s{T+3}, s{T+3}, s{S_A}")
        K(f"s_mul_i32 s{T}, s{T+3}, {12*128 + 32}"); K(f"s_mul_i32 s{T+1}, s{T+3}, {3*128 + 8}")
        for q in range(13): K(f"s_load_dword s{S_CNT}, {sp(P_W2)}, s{T} offset:{min(128*q, 12*128 + 28)}")
        K("s_waitcnt lgkmcnt(10)")
        for q in range(4): K(f"s_load_dword s{S_CNT}, {sp(P_WO)}, s{T+1} offset:{min(128*q, 3*128 + 4)}")
    mksrd(R_WS, P_WS, WS_SIZE); mksrd(R_WO, P_WO, 448*896); mksrd(R_OUT, P_OUT, 2048*896)
    p2setup()
    K(f"s_mul_i32 s{T}, s{S_ROW}, {112*1024}"); K(f"s_add_u32 s{T}, s{T}, {0x7000000 if x_noh else WS_H}")
    K(f"s_lshl_b32 s{S_HB}, s{T+4}, 12"); K(f"s_add_u32 s{S_HB}, s{S_HB}, s{T}")
    K(f"s_lshl_b32 s{S_HB3}, s{T+2}, 12"); K(f"s_add_u32 s{S_HB3}, s{S_HB3}, s{T}")
    BF1, BF2, BONE = M_AR + (72 if m16 else 80), 128, 124
    for r in list(range(BF1, BF1 + (32 if m16 else 16))) + list(range(BONE, BF2 + 8)): K(f"v_mov_b32 v{r}, 0")
    K(f"v_lshlrev_b32 v{t0}, 1, v{V_LANE}")
    K("s_mov_b32 exec_hi, 0")
    K(f"v_mov_b32 v{BONE}, 0x3f80")
    mksrd(R_T, P_B1, 3584)
    if m16:
        K(f"v_bfe_u32 v{t1}, v{V_LANE}, 2, 1"); K(f"v_bfe_u32 v{t2}, v{V_LANE}, 3, 1"); K(f"v_and_b32 v{t3}, 3, v{V_LANE}")
        K(f"v_lshl_add_u32 v{t3}, v{t1}, 3, v{t3}"); K(f"v_lshl_add_u32 v{t3}, v{t2}, 2, v{t3}"); K(f"v_lshlrev_b32 v{t3}, 1, v{t3}")
        K("s_mov_b32 exec_lo, 0xffff")
        for p in range(8): K(f"buffer_load_ushort v{BF1+4*p}, v{t3}, {srd(R_T)}, s{S_W1B} offen offset:{32*p}")
        K("s_mov_b32 exec_lo, -1")
    else:
        for p in range(4): K(f"buffer_load_ushort v{BF1+4*p}, v{t0}, {srd(R_T)}, s{S_W1B} offen offset:{64*p}")
    mksrd(R_T, P_B2, 896)
    K(f"s_lshl_b32 s{T}, s{S_CT}, 7"); K(f"s_lshl_b32 s{T+1}, s{S_A}, 10"); K(f"s_add_u32 s{T}, s{T}, s{T+1}")
    for p in range(2): tk_b2 = K(f"buffer_load_ushort v{BF2+4*p}, v{t0}, {srd(R_T)}, s{T} offen offset:{64*p}")
    K("s_mov_b32 exec_hi, -1")
    K(f"s_lshl_b32 s{T}, s{S_ROW}, 1"); K(f"s_add_u32 s{T}, s{T}, s{S_A}")
    K(f"s_lshl_b32 s{T+1}, s{S_CT}, 7")
    K(f"s_lshl_b32 s{S_PE}, s{T}, 11"); K(f"s_add_u32 s{S_PE}, s{S_PE}, s{T+1}"); K(f"s_add_u32 s{S_PE}, s{S_PE}, {WS_HF}")
    K(f"s_lshl_b32 s{S_PO}, s{T}, 10"); K(f"s_add_u32 s{S_PO}, s{S_PO}, s{T+1}"); K(f"s_add_u32 s{S_PO}, s{S_PO}, {WS_OF}")
    K(f"s_lshl_b32 s{T}, s{S_ROW}, 4"); K(f"s_lshl_b32 s{T+1}, s{S_A}, 2"); K(f"s_add_u32 s{S_OB}, s{T+1}, s{T}")
    FL_E, FL_L, FL_O = (S_PE, 0, 6), (S_PE, 1024, 8), (S_PO, 0, 8)
    K(f"s_lshl_b32 s{T}, s{S_MT}, 2"); K(f"s_add_u32 s{T}, s{T}, s{S_A}"); K(f"s_mul_i32 s{S_RS}, s{T}, 112")
    K(f"s_lshl_b32 s{T+1}, s{S_J}, 3"); K(f"s_add_u32 s{S_RS}, s{S_RS}, s{T+1}"); K(f"s_lshl_b32 s{S_RS}, s{S_RS}, 10"); K(f"s_add_u32 s{S_RS}, s{S_RS}, {WS_H}")
    K(f"s_lshr_b32 s{T}, s{T}, 1"); K(f"s_lshl_b32 s{T}, s{T}, 13"); K(f"s_add_u32 s{T}, s{T}, {WS_HF}")
    K(f"s_mul_i32 s{T+1}, s{S_J}, {74*8}"); K(f"s_and_b32 s{S_FL}, s{T+1}, 0xf800"); K(f"s_add_u32 s{S_FL}, s{S_FL}, s{T}")
    K(f"s_add_u32 s{T+1}, s{T+1}, {37*8}"); K(f"s_and_b32 s{S_FL2}, s{T+1}, 0xf800"); K(f"s_add_u32 s{S_FL2}, s{S_FL2}, s{T}"); K(f"s_add_u32 s{S_FL2}, s{S_FL2}, 1024")
    K(f"s_lshr_b32 s{T+1}, {(1 << 3) | (1 << 10)}, s{S_J}"); K(f"s_and_b32 s{T+1}, s{T+1}, 1"); K(f"s_lshl_b32 s{T+1}, s{T+1}, 10"); K(f"s_add_u32 s{S_FL}, s{S_FL}, s{T+1}")
    K(f"s_cmp_ge_u32 s{S_J}, 14"); K(f"s_cselect_b32 s{S_FL2}, 0x7000000, s{S_FL2}")
    K(f"v_add_u32 v{M_L16B}, {112*1024}, v{V_L16}")
    MP = M_AR + 40
    K(f"v_lshlrev_b32 v{MP}, 7, v{V_LANE}")
    K(f"s_lshl_b32 s{T+3}, s2, 2"); K(f"s_add_u32 s{T+3}, s{T+3}, s{S_A}")
    K(f"s_mul_i32 s{S_XB}, s{T+3}, {13*128}"); K(f"s_lshl_b32 s{S_M0}, s{T+3}, 9")
    def mall_pf():
        K("s_mov_b64 exec, 0x1fff")
        K(f"buffer_load_dword v{V_POLL}, v{MP}, {srd(R_W2)}, s{S_XB} offen" + ["", " sc1", " sc0 sc1", " nt"][mpa])
        K("s_mov_b64 exec, 15")
        K(f"buffer_load_dword v{V_POLL}, v{MP}, {srd(R_WO)}, s{S_M0} offen" + ["", " sc1", " sc0 sc1", " nt"][mpa])
        K("s_mov_b64 exec, -1")
    def mall_again():
        K(f"s_xor_b32 s{T+3}, s2, 1"); K(f"s_lshl_b32 s{T+3}, s{T+3}, 2"); K(f"s_add_u32 s{T+3}, s{T+3}, s{S_A}")
        K(f"s_mul_i32 s{S_XB}, s{T+3}, {13*128}"); K(f"s_lshl_b32 s{S_M0}, s{T+3}, 9")
        mall_pf()
    if mpf == 1: mall_pf()
    if tlb:
        l = newl("tlb")
        K(f"s_cmp_lg_u32 s{S_A}, 1")
        K.branch(f"s_cbranch_scc1 {l}")
        K(f"v_lshlrev_b32 v{t0}, {tlb}, v{V_LANE}")
        K(f"buffer_load_dword v{V_POLL}, v{t0}, {srd(R_WS)}, 0 offen offset:2048"); K.vm -= 1
        K(f"buffer_load_dword v{V_POLL}, v{t0}, {srd(R_OUT)}, 0 offen"); K.vm -= 1
        K.label(l)
    if m16:
        NAD = 10
        MX, MW = 136, 138
        K(f"v_and_b32 v{t0}, 15, v{V_LANE}"); K(f"v_lshrrev_b32 v{t1}, 4, v{V_LANE}"); K(f"v_bfe_u32 v{t2}, v{V_LANE}, 1, 3"); K(f"v_xor_b32 v{t2}, v{t1}, v{t2}")
        K(f"v_lshlrev_b32 v{t0}, 7, v{t0}"); K(f"v_lshl_add_u32 v{t0}, v{t2}, 4, v{t0}"); K(f"s_lshl_b32 s{T}, s{S_A}, 12")
        K(f"v_add_u32 v{MX}, s{T}, v{t0}"); K(f"v_xor_b32 v{MX+1}, 64, v{MX}")
        K(f"v_bfe_u32 v{t3}, v{V_LANE}, 2, 2"); K(f"v_lshl_add_u32 v{t0}, v{t1}, 3, v{t3}"); K(f"v_lshlrev_b32 v{t0}, 8, v{t0}"); K(f"v_lshl_add_u32 v{t0}, v{t3}, 6, v{t0}")
        K(f"v_and_b32 v{t2}, 1, v{t1}"); K(f"v_lshl_add_u32 v{t0}, v{t2}, 5, v{t0}")
        K(f"v_and_b32 v{t2}, 1, v{V_LANE}"); K(f"v_lshl_add_u32 v{t0}, v{t2}, 4, v{t0}"); K(f"v_bfe_u32 v{t2}, v{V_LANE}, 1, 1"); K(f"v_lshl_add_u32 v{t0}, v{t2}, 3, v{t0}")
        K(f"v_add_u32 v{MW}, 16384, v{t0}")
        for p in range(1, 8): K(f"v_xor_b32 v{MW+p}, {32*p}, v{MW}")
        lanepart()
    else:
        NAD = 8
        xfrag_addr(M_AX)
        lanepart()
        K(f"v_lshl_add_u32 v{t0}, v{t2}, 3, v{t3}"); K(f"v_lshl_add_u32 v{t0}, v{t0}, 8, v{t4}"); K(f"v_lshl_add_u32 v{t0}, v{t3}, 6, v{t0}")
        K(f"v_add_u32 v{M_AW}, 16384, v{t0}")
        for p in range(1, 4): K(f"v_xor_b32 v{M_AW+p}, {64*p}, v{M_AW}")
    AB = M_AB
    K(f"v_lshl_add_u32 v{t0}, v{t2}, 2, v{t3}"); K(f"v_lshl_add_u32 v{t0}, v{t0}, 7, v{t4}"); K(f"v_bfe_u32 v{t1}, v{V_LANE}, 3, 1"); K(f"v_lshl_add_u32 v{t0}, v{t1}, 6, v{t0}")
    K(f"v_add_u32 v{AB}, s{S_M02}, v{t0}"); K(f"v_xor_b32 v{AB+1}, 64, v{AB}")
    K(f"v_add_u32 v{AB+2}, 65536, v{AB}"); K(f"v_add_u32 v{AB+3}, 65536, v{AB+1}")
    K(f"v_lshlrev_b32 v{t0}, 9, v{t2}"); K(f"v_sub_u32 v22, v{AB+(0 if own else 2)}, v{t0}"); K(f"v_sub_u32 v23, v{AB+(1 if own else 3)}, v{t0}")
    box = {}
    K(f"s_cmp_ge_u32 s{S_J}, 14")
    K.branch("s_cbranch_scc1 L_nof")
    vm_nof = K.vm
    K("s_waitcnt lgkmcnt(0)")
    settag()
    if fine: stamp("M_rdy")
    WR, XR = M_BH, M_BH + 4*G
    tk = {}
    def rdg(g):
        ks, p = g // 4, g % 4
        t, ksl = ks // 4, ks % 4
        uo = (t % 2) * 32768
        if p == 0 and ksl == 0:
            shift(range(M_AX, M_AX + NAD), SH[t])
            if t == 3: K.wait_vm(tk_b2)
            if t < 6: K("s_barrier")
            else:
                l = newl("s6")
                K.wait_lg(box['cs'])
                K(f"v_cmp_ne_u32 vcc, 4, v{t4}")
                K(f"s_cbranch_vccz {l}")
                lgs = K.lg
                await_(C_S, 4)
                K.lg = lgs
                K.raw(f"{l}:")
        if m16:
            k2, ct_ = g // 8, g % 8
            if ct_ == 0:
                for tt_ in range(2): K(f"ds_read_b128 {vr(XR + 8*(k2 % 2) + 4*tt_, 4)}, v{MX + k2 % 2} offset:{uo + 2048*tt_}")
            for r in range(2):
                tk[g] = K(f"ds_read_b64_tr_b16 {vr(WR + 4*(g % G) + 2*r, 2)}, v{MW+ct_} offset:{uo + (32*(k2 % 2) + 4*r)*256}")
            return
        if p == 0: K(f"ds_read_b128 {vr(XR + 4*(ks % 3), 4)}, v{M_AX+ksl} offset:{uo}")
        for r in range(2):
            tk[g] = K(f"ds_read_b64_tr_b16 {vr(WR + 4*(g % G) + 2*r, 2)}, v{M_AW+p} offset:{uo + (16*ksl + 4*r)*256}")
    for g in range(G): rdg(g)
    for g in range(112):
        K.wait_lg(tk[g])
        if m16:
            for tt_ in range(2):
                d = vr(M_ACC + 8*(g % 8) + 4*tt_, 4)
                K(f"v_mfma_f32_16x16x32_bf16 {d}, {vr(WR + 4*(g % G), 4)}, {vr(XR + 8*((g // 8) % 2) + 4*tt_, 4)}, {'0' if g < 8 else d}")
            if 52 <= g < 60:
                for tt_ in range(2):
                    d = vr(M_ACC + 8*(g % 8) + 4*tt_, 4)
                    K(f"v_mfma_f32_16x16x32_bf16 {d}, {vr(BF1 + 4*(g % 8), 4)}, {vr(BONE, 4)}, {d}")
        else:
            mfma(M_ACC + 16*(g % 4), WR + 4*(g % G), XR + 4*((g // 4) % 3), "0" if g < 4 else None, x_m16 & 1)
            if 52 <= g < 56: mfma(M_ACC + 16*(g % 4), BF1 + 4*(g % 4), BONE)
        if g + G < 112: rdg(g + G)
        if g + G == 112: arrive(C_E)
        if g + G + 3 == 96: box['cs'] = K(f"ds_read_b32 v{t4}, v{V_CNT} offset:{C_S}")
        if mpf > 1 and g == mpf: mall_pf()
        if mpf2 and g == mpf2: mall_again()
        if hpt and g == hpt: K(f"buffer_load_dword v{V_POLL}, v{MP}, {srd(R_WS)}, s{S_RS} offen sc1")
    stamp("ffn1")
    K(f"s_setprio {prioG}")
    tk = {}
    def rdb(ks, part=3):
        r, ksl = ks // 4, ks % 4
        b = M_BH + 8 * (ks % 8)
        u = RUNIT[r]
        if ksl == 0 and r >= (4 if aw2 == 3 else 2) and part & 1: K.wait_vm(tk_r[r])
        for pp in range(2):
            for h in range(2):
                if not part & (1 << pp): continue
                if r < 7:
                    tk[ks] = K(f"ds_read_b64_tr_b16 {vr(b + 4*pp + 2*h, 2)}, v{AB + pp + (2 if u >= 2 else 0)} offset:{(u%2)*32768 + (16*ksl + 8*h)*128}")
                else:
                    hh, sx = (ks % 4) // 2, ks % 2
                    tk[ks] = K(f"ds_read_b64_tr_b16 {vr(b + 4*pp + 2*h, 2)}, v{(22 if (sx == 1 and h == 1) else AB + (0 if own else 2)) + pp} offset:{(u%2)*32768 + (28*hh + 16*sx + 8*h)*128}")
    def pull():
        await_(C_B, 4)
        for e in range(12): K(f"v_mov_b32 v{BF1+e}, v{BONE+e}")
        for ks in range(8):
            if ks >= 3: K.wait_lg(tk[ks - 3])
            rdb(ks)
        arrive(C_P)
    cc = -2.0 * 0.7978845608028654 * 1.4426950408889634
    K(f"v_mov_b32 v{t0}, {f2u(cc):#x}"); K(f"v_mov_b32 v{t1}, 1.0"); K(f"s_mov_b32 s{S_K}, {f2u(cc*0.044715):#x}"); K(f"s_mov_b32 s{S_K+1}, {f2u(cc*0.044715):#x}")
    tkh = {}
    for g in range(8):
        a = M_ACC + 8*g; tt = M_AR + 8*(g % 2); o = M_AR + 48 + 4*g
        if aw2 == 4 and g == md:
            await_(C_E, 8)
            K(f"s_cmp_eq_u32 s{S_ACT}, 1"); K(f"s_cselect_b32 s{R_W2+2}, s{R_W2+2}, 0")
            pend.extend(g_w2(0) + g_w2(1))
        if x_nog: pass
        elif g < pkg:
            for e in range(0, 8, 2): K(f"v_pk_mul_f32 {vr(tt+e,2)}, {vr(a+e,2)}, {vr(a+e,2)}")
            for e in range(0, 8, 2): K(f"v_pk_fma_f32 {vr(tt+e,2)}, {vr(tt+e,2)}, {sp(S_K)}, {vr(t0,2)} op_sel_hi:[1,1,0]")
            drip(1)
            for e in range(0, 8, 2): K(f"v_pk_mul_f32 {vr(tt+e,2)}, {vr(a+e,2)}, {vr(tt+e,2)}")
            for e in range(8):
                K(f"v_exp_f32 v{tt+e}, v{tt+e}")
                if e == 2: drip(1)
            for e in range(0, 8, 2): K(f"v_pk_add_f32 {vr(tt+e,2)}, {vr(tt+e,2)}, {vr(t0,2)} op_sel:[0,1] op_sel_hi:[1,1]")
            drip(1)
            for e in range(8): K(f"v_rcp_f32 v{tt+e}, v{tt+e}")
            drip(1 if g < 7 else 99)
            for e in range(0, 8, 2): K(f"v_pk_mul_f32 {vr(tt+e,2)}, {vr(a+e,2)}, {vr(tt+e,2)}")
        else:
            for e in range(8): K(f"v_mul_f32 v{tt+e}, v{a+e}, v{a+e}")
            for e in range(8): K(f"v_fma_f32 v{tt+e}, v{tt+e}, s{S_K}, v{t0}")
            drip(1)
            for e in range(8): K(f"v_mul_f32 v{tt+e}, v{a+e}, v{tt+e}")
            for e in range(8):
                K(f"v_exp_f32 v{tt+e}, v{tt+e}")
                if e == 2: drip(1)
            for e in range(8): K(f"v_add_f32 v{tt+e}, 1.0, v{tt+e}")
            drip(1)
            for e in range(8): K(f"v_rcp_f32 v{tt+e}, v{tt+e}")
            drip(1 if g < 7 else 99)
            for e in range(8): K(f"v_mul_f32 v{tt+e}, v{a+e}, v{tt+e}")
        for e in ((0, 2, 1, 3) if m16 else range(4)): K(f"v_cvt_pk_bf16_f32 v{o+e}, v{tt+2*e}, v{tt+2*e+1}")
        if m16:
            for e in range(2): K(f"v_permlane16_swap_b32 v{o+e}, v{o+e+2}")
        if g == gw: arrive(C_G)
        if aw2 == 3 and g == gp: pull()
        if (g + 1) % sb == 0:
            K("s_setprio 3")
            for x in range(g + 1 - sb, g + 1):
                if x == 4: K(f"s_add_u32 s{S_RS}, s{S_RS}, 4096")
                tkh[x] = K(f"buffer_store_dwordx4 {vr(M_AR + 48 + 4*x,4)}, v{V_L16}, {srd(R_WS)}, s{S_RS} offen offset:{1024*(x%4)} " + ["sc1", "sc1 nt", "sc0 sc1"][hst])
            if g < 7: K(f"s_setprio {prioG}")
    stamp("gelu_v")
    await_(C_0, 4)
    K.wait_vm(tkh[3]); signal(S_FL, 7)
    stamp("gelu")
    K(f"s_cmp_eq_u32 s{S_ACT}, 1")
    K.branch("s_cbranch_scc1 L_p2")
    K("s_waitcnt vmcnt(0)")
    signal(S_FL2, 7)
    def l2warm(first, n):
        K(f"s_lshr_b32 s{T}, s2, 3"); K(f"s_and_b32 s{T}, s{T}, 3"); K(f"s_lshl_b32 s{T}, s{T}, 2"); K(f"s_add_u32 s{T}, s{T}, s{S_A}"); K(f"s_lshl_b32 s{T}, s{T}, 13")
        K(f"v_lshlrev_b32 v{t0}, 7, v{V_LANE}")
        for k in range(n):
            K(f"s_add_u32 s{T+1}, s{T}, {(first + 1024*k)*128}")
            K(f"buffer_load_dword v{t1}, v{t0}, {srd(R_W2)}, s{T+1} offen")
    if l2w & 1:
        l2warm(0, 13)
        for k in range(4):
            K(f"s_add_u32 s{T+1}, s{T}, {1024*k*128}")
            K(f"buffer_load_dword v{t1}, v{t0}, {srd(R_WO)}, s{T+1} offen")
    K.branch("s_branch L_fin")
    K.label("L_nof")
    K.vm = vm_nof
    if hlp:
        if hw == 1: await_(C_E, 8, 2)
        if hw == 2: await_(C_0, 4, 2)
        if mpf > 1: mall_pf()
        K(f"s_mul_i32 s{T}, s{S_CT}, {111*128}")
        K("s_mov_b32 exec_hi, 0xffffff")
        for r in range(h0, 7):
            for q in range(2):
                K(f"s_add_u32 s{T+1}, s{S_W2B3 if r == 3 else S_W2B}, {(0 if r == 3 else (2*r % 7)*64*896) + q*56*128}"); K(f"s_add_u32 s{T+1}, s{T+1}, s{T}")
                K(f"buffer_load_dword v{V_POLL}, v{MP}, {srd(R_W2)}, s{T+1} offen")
                K(f"s_waitcnt vmcnt({hd})")
        K(f"s_lshl_b32 s{T}, s{S_CT}, 2"); K(f"s_add_u32 s{T}, s{T}, s{S_A}"); K(f"s_mul_i32 s{T}, s{T}, {196*128}")
        K("s_mov_b32 exec_hi, 0x1ffff")
        for q in range(4):
            K(f"buffer_load_dword v{V_POLL}, v{MP}, {srd(R_WO)}, s{T} offen"); K(f"s_add_u32 s{T}, s{T}, {49*128}")
            K(f"s_waitcnt vmcnt({hd})")
        K("s_mov_b64 exec, -1")
        stamp("hlp_done")
        K.branch("s_branch L_fin")
    if nfe and mpf > 1: mall_pf()
    if mpf == -2: await_(C_E, 8, 2)
    if mpf == -1: await_(C_0, 4, 2)
    if mpf < 0:
        K(f"s_lshl_b32 s{T+3}, s2, 2"); K(f"s_add_u32 s{T+3}, s{T+3}, s{S_A}")
        K(f"s_mul_i32 s{T}, s{T+3}, {98*128}"); K(f"s_mul_i32 s{T+1}, s{T+3}, {25*128}")
        K(f"buffer_load_dword v{V_POLL}, v{MP}, {srd(R_W2)}, s{T} offen")
        K(f"s_add_u32 s{T}, s{T}, {64*128}")
        K("s_mov_b32 exec_hi, 3")
        K(f"buffer_load_dword v{V_POLL}, v{MP}, {srd(R_W2)}, s{T} offen")
        K("s_mov_b64 exec, 0x1ffffff")
        K(f"buffer_load_dword v{V_POLL}, v{MP}, {srd(R_WO)}, s{T+1} offen")
        K("s_mov_b64 exec, -1")
    await_(C_0, 4, 2)
    K("s_waitcnt lgkmcnt(0)")
    settag()
    if mpf > 1 and not nfe: mall_pf()
    if l2w & 2: l2warm(0, 13)
    K("s_waitcnt vmcnt(0)")
    if aw2 == 3: pull()
    if aw2 == 4:
        await_(C_E, 8); run(g_w2(0) + g_w2(1)); K("s_waitcnt vmcnt(0)")

    K.label("L_p2")
    tk_h = K.vm
    def g_wo(hf):
        def step(q):
            def f():
                if q == 0:
                    K(f"s_mul_i32 s{TD}, s{S_A}, {112*896}"); K(f"s_lshl_b32 s{TD+1}, s{S_CT}, 7"); K(f"s_add_u32 s{TD}, s{TD}, s{TD+1}")
                    if hf: K(f"s_add_u32 s{TD}, s{TD}, {56*896}")
                    K(f"s_add_u32 m0, s{S_M02}, {U[RUNIT[7+hf]]}")
                if q == 4: K(f"s_add_u32 s{TD}, s{TD}, {32*896}"); K(f"s_add_u32 m0, s{S_M02}, {U[RUNIT[7+hf]] + 4096}")
                x = K(f"buffer_load_dwordx4 v{V_D2+q%4}, {srd(R_WO)}, s{TD} offen offset:{1024*(q%4)} lds") if 7 < x_skipB else K.vm - 8
                if q == 6: tk_r[7+hf] = x
            return f
        return [step(q) for q in range(7)]
    tk_a = {}
    def lda(ks, part=3):
        b = M_AR + 8 * (ks % NA); r = ks // 4
        if part & 1:
            if ks % 4 == 0: K(f"s_add_u32 s{T+7}, s{S_HB3 if r == 3 else S_HB}, {0 if r == 3 else (2*r % 7)*4096}")
            K(f"buffer_load_dwordx4 {vr(b,4)}, v{V_L16}, {srd(R_WS)}, s{T+7} offen offset:{1024*(ks%4)} sc1")
        if part & 2: tk_a[ks] = K(f"buffer_load_dwordx4 {vr(b+4,4)}, v{M_L16B}, {srd(R_WS)}, s{T+7} offen offset:{1024*(ks%4)} sc1")
    for t2_ in range(2):
        for pp in range(2): mfma(M_ACC + 32*t2_ + 16*pp, (BF1 + 4 if aw2 == 3 else BF2) + 4*pp, BF1 if aw2 == 3 else BONE, "0")
    g0, g1, g2, g3 = g_w2(0), g_w2(1), g_w2(2), g_w2(3)
    if aw2 == 3:
        K.wait_vm(tk_h - 1)
        signal(S_FL2, 7)
        K(f"s_setprio 0")
        stamp("h_pub1")
        poll_issue(FL_E)
        poll_check(FL_E)
        stamp("hE_seen")
        for ks in range(pre): lda(ks)
        g3 = []
    elif aw2:
        K.wait_vm(tk_h - 1)
        signal(S_FL2, 7)
        K(f"s_setprio 0")
        stamp("h_pub1")
        if hfirst:
            poll_issue(FL_E)
            if not x_noE: poll_check(FL_E)
            stamp("hE_seen")
            for ks in range(pre): lda(ks)
        if aw2 != 4: await_(C_B, 4)
        stamp("B_seen")
        if jit:
            for ks in range(8):
                if ks >= 3: K.wait_lg(tk[ks - 3])
                rdb(ks)
        else:
            for ks in range(3): rdb(ks)
            K.wait_lg(tk[0]); rdb(3)
            K.wait_lg(tk[3])
            for q in range(8):
                g2[q]()
                if q < 4:
                    if q == 3: K.wait_lg(tk[4])
                    rdb(4 + q)
        K("s_waitcnt lgkmcnt(0)")
        if not hfirst:
            poll_issue(FL_E)
            run(g3); g3 = []
            poll_check(FL_E)
            stamp("hE_seen")
            for ks in range(pre): lda(ks)
    else:
        await_(C_E, 8)
        for q in range(8):
            g0[q]()
        K.wait_vm(tk_h - 1)
        signal(S_FL2, 7)
        K(f"s_setprio 0")
        stamp("h_pub1")
        poll_issue(FL_E)
        run(g1)
        poll_check(FL_E)
        stamp("hE_seen")
        if jit:
            for ks in range(8):
                if ks < pre: lda(ks)
                if ks % 4 == 0: K.wait_vm(tk_r[ks // 4])
                if ks >= 3: K.wait_lg(tk[ks - 3])
                rdb(ks)
            assert pre <= 8
        else:
            for ks in range(4): lda(ks)
            K.wait_vm(tk_r[0])
            for ks in range(4):
                if ks == 3: K.wait_lg(tk[0])
                rdb(ks); lda(4 + ks)
            K.wait_vm(tk_r[1]); K.wait_lg(tk[3])
            for q in range(8):
                g2[q]()
                if q < 4:
                    if q == 3: K.wait_lg(tk[4])
                    rdb(4 + q)
        K("s_waitcnt lgkmcnt(0)")
    stamp("p2_prep")
    poll_issue(FL_L)
    sched = []
    if jit:
        for k in range(pre, 28):
            for p in (1, 2): sched.append((k, max(k - NA + 1, c0 + 1 if k >= 12 else 0), lambda k=k, p=p: lda(k, p), 0))
        early = {2: 0, 3: 0, 4: c3 + 1, 5: 12, 6: 16, 7: cq + 1, 8: 20}
        for r in range(2, 9):
            for q, f in enumerate(g_w2(r) if r < 7 else g_wo(r - 7)): sched.append((4*r - bl + q // 2 + 0.5, early[r], f, r))
        sched.sort(key=lambda z: z[0])
    else:
        for ks in range(pre if aw2 else 8, 12): pend.extend([lambda ks=ks: lda(ks, 1), lambda ks=ks: lda(ks, 2)])
        pend.extend(g3)
    def jdrip(ks):
        first = min([z[3] for z in sched if z[3]], default=0)
        for n, (key, e, f, grp) in enumerate(sched):
            if e <= ks and grp in (0, first):
                f(); sched.pop(n); return
    def step(ks, side):
        K.wait_vm(tk_a[ks])
        if ks >= 8: K.wait_lg(tk[ks])
        a = M_AR + 8 * (ks % NA); b = M_BH + 8 * (ks % 8)
        n = 0
        for t2_ in range(2):
            for pp in range(2):
                if not (x_nomf and ks < 28): mfma(M_ACC + 32*t2_ + 16*pp, b + 4*pp, a + 4*t2_, None, x_m16 & 2)
                side(n); n += 1
    nxt = [12]
    def hstep(ks):
        def side(n):
            if n == 0 and BD > 3 and ks + BD >= 10: K("s_waitcnt lgkmcnt(8)")
            if n < 2 and ks + BD >= 8: rdb(ks + BD, 1 << n)
            if jit and sched:
                jdrip(ks)
                if n < rate - 4: jdrip(ks)
            else: drip(2 if len(pend) > 8 else 1)
        step(ks, side)
    def ldo(ks, part):
        b = M_AR + 8 * (ks % NA)
        if part == 0:
            K(f"buffer_load_dword v{t2}, v{t3}, {srd(R_WS)}, s{T+3} offen sc1")
            box['g'] = K(f"buffer_load_dword v{t3}, v{t3}, {srd(R_WS)}, s{T+3} offen offset:2048 sc1")
        if part == 1:
            if ks == 32: K(f"s_add_u32 s{T+4}, s{T+4}, 4096")
            K(f"buffer_load_dwordx4 {vr(b,4)}, v{V_L16}, {srd(R_WS)}, s{T+4} offen offset:{1024*(ks%4)} sc1")
        if part == 2: tk_a[ks] = K(f"buffer_load_dwordx4 {vr(b+4,4)}, v{M_L16B}, {srd(R_WS)}, s{T+4} offen offset:{1024*(ks%4)} sc1")
    olist = lambda: [lambda: ldo(0, 0)] + [lambda k=k, p=p: ldo(k, p) for k in range(28, 36) for p in (1, 2)]
    for ks in range(oc + 1):
        hstep(ks)
        if ks == c0:
            if not x_noE: poll_check(FL_L)
            stamp("hL_seen")
        if ks == 4 and aw2 == 3: await_(C_B2, 4)
        if ks == c3 and not own:
            await_(C_3, 4)
            if not jit: pend.extend(g_w2(4))
        if ks == cq and not own:
            await_(C_Q, 4)
            if not jit: pend.extend(g_wo(0))
        if not jit:
            while ks >= c0 and nxt[0] <= ks + NA and nxt[0] < 28:
                pend.extend([lambda k=nxt[0]: lda(k, 1), lambda k=nxt[0]: lda(k, 2)]); nxt[0] += 1
            nextof = {2: 4, 3: 5, 4: 6, 5: 7, 6: 8} if own else {2: 5, 3: 6, 4: 8}
            for r, r2 in nextof.items():
                if ks == (4*r + 4 - BD if (ef or own or BD > 3) else 4*r + 3):
                    K.wait_lg(tk[4*r + 3])
                    pend.extend(g_w2(r2) if r2 < 7 else g_wo(r2 - 7))
        if ks in (3, 11, 19): stamp(f"p2_k{ks}")
        if ks == oc - 2: poll_issue(FL_O)
    while sched: jdrip(99)
    assert not pend and oc >= 22
    K(f"v_and_b32 v{t3}, 31, v{V_LANE}"); K(f"v_lshlrev_b32 v{t3}, 2, v{t3}")
    K(f"s_lshl_b32 s{T+3}, s{S_OB}, 7"); K(f"s_add_u32 s{T+3}, s{T+3}, {WS_G}")
    K(f"s_lshl_b32 s{T+4}, s{S_OB}, 11"); K(f"s_add_u32 s{T+4}, s{T+4}, {WS_O}")
    K(f"v_add_u32 v{M_L16B}, 32768, v{V_L16}")
    K(f"v_add_u32 v{V_D2}, s{S_M02}, v{V_L16}")
    for q in range(1, 4): K(f"v_xor_b32 v{V_D2+q}, {64*q}, v{V_D2}")
    K("s_waitcnt lgkmcnt(0)")
    K(f"s_cmp_lg_u32 s{PD[0]}, {FL_O[2]}" if not x_noo else "s_cmp_lg_u32 0, 0")
    K.branch("s_cbranch_scc1 L_olate")
    sv, sl = K.vm, K.lg
    stamp("o_early")
    pend.extend(olist())
    for ks in range(oc + 1, 28): hstep(ks)
    drip(99)
    ev, el = K.vm, K.lg
    K.branch("s_branch L_ojoin")
    K.label("L_olate")
    K.vm, K.lg = sv, sl
    for ks in range(oc + 1, 28): hstep(ks)
    poll_issue(FL_O)
    poll_check(FL_O)
    stamp("o_late")
    run(olist())
    assert (ev, el) == (K.vm, K.lg)
    K.label("L_ojoin")
    stamp("p2_h_done")
    tk_g = box['g']
    K.wait_vm(tk_g)
    if f2: stamp("t_g")
    K(f"v_sub_f32 v{t4}, 1.0, v{t2}"); K(f"v_sub_f32 v{t5}, 1.0, v{t3}")
    K(f"v_cvt_pk_bf16_f32 v{t4}, v{t4}, v{t5}"); K(f"v_and_b32 v{t5}, 0xffff0000, v{t4}"); K(f"v_lshlrev_b32 v{t4}, 16, v{t4}")
    if tl:
        for e in range(0, 32, 2): pscale(M_ACC+e, t4, True)
        for ks in range(28, 36):
            K.wait_vm(tk_a[ks] - 1); K.wait_lg(tk[ks])
            a = M_AR + 8 * (ks % NA); b = M_BH + 8 * (ks % 8)
            for pp in range(2):
                mfma(M_ACC + 16*pp, b + 4*pp, a)
                if ks + BD < 36: rdb(ks + BD, 1 << pp)
                pscale(M_ACC + 32 + 4*(ks - 28) + 2*pp, t5, False)
        K.wait_vm(tk_a[35])
        for ks in range(28, 36):
            a = M_AR + 8 * (ks % NA); b = M_BH + 8 * (ks % 8)
            for pp in range(2):
                mfma(M_ACC + 32 + 16*pp, b + 4*pp, a + 4)
                n = 2*(ks - 28) + pp - 6
                if 0 <= n < 8: K(f"ds_write_b128 v{V_D2 + n%4}, {vr(M_ACC+4*n,4)} offset:{1024*n}")
        for b in range(8): K(f"ds_write_b128 v{V_D2 + b%4}, {vr(M_ACC+32+4*b,4)} offset:{32768 + 1024*b}")
    else:
        for e in range(0, 64, 2): pscale(M_ACC+e, t4 if e < 32 else t5, True)
        for ks in range(28, 36):
            def side(n):
                if n < 2 and ks + 3 < 36: rdb(ks + 3, 1 << n)
            step(ks, side)
        if f2: stamp("t_mf")
        for t2_ in range(2):
            for b in range(8): K(f"ds_write_b128 v{V_D2 + b%4}, {vr(M_ACC+32*t2_+4*b,4)} offset:{32768*t2_ + 1024*b}")
    stamp("p2_done")

    K.label("L_red")
    K(f"v_and_b32 v{t1}, 7, v{V_LANE}"); K(f"v_lshrrev_b32 v{t3}, 3, v{V_LANE}")
    K(f"s_lshl_b32 s{T+1}, s{S_A}, 3"); K(f"v_add_u32 v{t0}, s{T+1}, v{t3}")
    K(f"v_and_b32 v{t2}, 3, v{V_LANE}"); K(f"v_lshlrev_b32 v{t2}, 2, v{t2}"); K(f"v_xor_b32 v{t0}, v{t0}, v{t2}")
    K(f"v_lshlrev_b32 v{t0}, 4, v{t0}"); K(f"v_lshl_add_u32 v{t0}, v{t1}, 10, v{t0}")
    K(f"s_lshr_b32 s{T+2}, s{S_W}, 2"); K(f"s_lshl_b32 s{T}, s{T+2}, 15"); K(f"v_add_u32 v{t0}, s{T}, v{t0}")
    K(f"v_mul_u32_u24 v{t3}, 896, v{t3}"); K(f"v_lshl_add_u32 v{t3}, v{t1}, 4, v{t3}")
    K(f"s_lshl_b32 s{T}, s{S_ROW}, 2"); K(f"s_add_u32 s{T}, s{T}, s{S_W}"); K(f"s_mul_i32 s{T}, s{T}, {8*896}"); K(f"s_lshl_b32 s{T+1}, s{S_CT}, 7"); K(f"s_add_u32 s{T+5}, s{T}, s{T+1}")
    K("s_waitcnt lgkmcnt(0)")
    K("s_barrier")
    if f2: stamp("t_bar")
    R = 160
    for q in range(4):
        K(f"ds_read_b128 {vr(R+8*q,4)}, v{t0} offset:{8192*q}")
        K(f"ds_read_b128 {vr(R+8*q+4,4)}, v{t0} offset:{8192*q + 512}")
    K("s_waitcnt lgkmcnt(4)")
    for e in range(0, 8, 2): padd(R+e, R+e, R+8+e, True)
    K("s_waitcnt lgkmcnt(0)")
    for e in range(0, 8, 2): padd(R+16+e, R+16+e, R+24+e, True)
    for e in range(0, 8, 2): padd(R+e, R+e, R+16+e, True)
    for e in range(4): K(f"v_cvt_pk_bf16_f32 v{R+e}, v{R+2*e}, v{R+2*e+1}")
    K(f"buffer_store_dwordx4 {vr(R,4)}, v{t3}, {srd(R_OUT)}, s{T+5} offen" + ["", " sc1", " nt", " sc0 sc1"][outm])
    if f2: stamp("t_st")
    K(f"s_xor_b32 s{T}, s2, 64"); K(f"s_or_b32 s{T}, s{T}, s{S_W}"); K(f"s_cmp_lg_u32 s{T}, 0")
    K.branch("s_cbranch_scc1 L_fin")
    K(f"s_mov_b32 s{T}, {WS_EPOCH}")
    flag(T)
    K.label("L_fin")
    if stamps:
        K("s_waitcnt vmcnt(0)")
        stamp("end")
        if probe is not None:
            i0 = STAMP_IDS.setdefault('start', len(STAMP_IDS)); i1 = STAMP_IDS.setdefault(probe, len(STAMP_IDS))
            K(f"v_readlane_b32 s{T}, v{V_STAMP}, {i0}"); K(f"v_readlane_b32 s{T+1}, v{V_STAMP}, {i1}")
            K("s_nop 4")
            K(f"s_cmp_eq_u32 s{T+1}, 0"); K(f"s_cselect_b32 s{T+1}, s{T}, s{T+1}")
            if pwg >= 0:
                K(f"s_cmp_lg_u32 s2, {pwg}")
                K.branch("s_cbranch_scc1 L_end")
            K.label("L_probe")
            K("s_sleep 2")
            K(f"s_memrealtime {sp(S_ST)}"); K("s_waitcnt lgkmcnt(0)")
            K(f"s_sub_u32 s{T+2}, s{S_ST}, s{T+1}"); K(f"s_cmp_lt_u32 s{T+2}, {pt}")
            K.branch("s_cbranch_scc1 L_probe")
            K.branch("s_branch L_end")
        K(f"s_lshl_b32 s{T}, s2, 3"); K(f"s_add_u32 s{T}, s{T}, s{S_W}"); K(f"s_lshl_b32 s{T}, s{T}, 8"); K(f"s_add_u32 s{T}, s{T}, {WS_STAMP}")
        K(f"v_lshlrev_b32 v{t0}, 2, v{V_LANE}")
        K(f"buffer_store_dword v{V_STAMP}, v{t0}, {srd(R_WS)}, s{T} offen")
    K.label("L_end")
    K("s_endpgm")
    K.raw(f".fill (28672 + 8192 * {1 if stamps else 0} - (L_end - {NAME})) / 4, 4, 0xbf800000")

    head = f"""; Fused gated mix of hedgehog linear attention and GELU FFN (emitted by a hand-written generator script)
; @launch grid=(256,1,1) block=(512,1,1) lds=163840
.amdgcn_target "amdgcn-amd-amdhsa--gfx950"
.text
.globl {NAME}
.p2align 8
.type {NAME},@function
"""
    tail = f""".section .rodata,"a"
.p2align 6
.amdhsa_kernel {NAME}
  .amdhsa_next_free_vgpr 256
  .amdhsa_next_free_sgpr 102
  .amdhsa_accum_offset 256
  .amdhsa_group_segment_fixed_size 0
  .amdhsa_kernarg_size 104
  .amdhsa_user_sgpr_count 2
  .amdhsa_user_sgpr_kernarg_segment_ptr 1
  .amdhsa_system_sgpr_workgroup_id_x 1
.end_amdhsa_kernel
"""
    return head + K.text() + tail

STAMP_IDS = {}
def parse_opts(argv):
    kw = {}
    for a in argv:
        if a.startswith("-D"):
            k, v = a[2:].split("="); kw[k] = int(v) if v.lstrip("-").isdigit() else v
    return kw
if __name__ == "__main__":
    out = sys.argv[1] if len(sys.argv) > 1 else "k.s"
    open(out, "w").write(gen(**parse_opts(sys.argv)))
```
